```python
import torch

def _softmax(x, axis=-1):
    return torch.softmax(x, dim=axis)

def _gelu(x):
    return torch.nn.functional.gelu(x, approximate='tanh')

def _silu(x):
    return torch.nn.functional.silu(x)

def _sigmoid(x):
    return torch.sigmoid(x)

def _layernorm(x, axis=-1, eps=1e-05):
    m = x.mean(dim=axis, keepdim=True)
    v = x.var(dim=axis, keepdim=True, unbiased=False)
    return (x - m) / torch.sqrt(v + eps)

def _scatter_add(tgt, idx, src, axis=0):
    return tgt.clone().index_add_(axis, idx, src)

def _segment_sum(src, seg, n):
    out = torch.zeros((n,) + src.shape[1:], dtype=src.dtype)
    return out.index_add_(0, seg, src)

def _pad(x, pw):
    flat = tuple((v for pair in reversed(pw) for v in pair))
    return torch.nn.functional.pad(x, flat)
kernel_name = 'parallel_sum__compressed_kv_cla__mixer_gmlp__prompt'

def setup_inputs():

    _w = lambda a: (lambda t: t.to(torch.bfloat16) if t.is_floating_point() else t)(torch.as_tensor(a))

    def _A_setup():
        B, H, Sq, Sk, D, M = (1, 32, 2048, 2048, 128, 512)
        Dc = 4 * D
        return {'x': _w((lambda *s: torch.randn(*s, dtype=torch.bfloat16) * 0.05)(B, Sq, M)), 'c_kv': _w((lambda *s: torch.randn(*s, dtype=torch.bfloat16) * 1.6)(B, Sk, Dc)), 'w_q': _w((lambda *s: torch.randn(*s, dtype=torch.bfloat16) * 1.6)(M, H, D) * M ** (-0.5)), 'w_uk': _w((lambda *s: torch.randn(*s, dtype=torch.bfloat16) * 1.6)(Dc, H, D) * Dc ** (-0.5)), 'w_uv': _w((lambda *s: torch.randn(*s, dtype=torch.bfloat16) * 1.6)(Dc, H, D) * Dc ** (-0.5)), 'w_o': _w((lambda *s: torch.randn(*s, dtype=torch.bfloat16) * 1.6)(H, D, M) * (H * D) ** (-0.5))}
    _A_in = _A_setup()

    def _B_setup():
        B, S, D, F = (1, 2048, 512, 1792)
        Fh = F // 2
        return {'x': _w((lambda *s: torch.randn(*s, dtype=torch.bfloat16) * 0.05)(B, S, D)), 'w_in': _w((lambda *s: torch.randn(*s, dtype=torch.bfloat16) * 0.4)(D, 2 * Fh)), 'w_sp': _w(0.01 * (lambda *s: torch.randn(*s, dtype=torch.bfloat16) * 0.4)(S, S)), 'b_sp': _w(1.0 + 0.01 * (lambda *s: torch.randn(*s, dtype=torch.bfloat16) * 0.05)(S)), 'w_out': _w((lambda *s: torch.randn(*s, dtype=torch.bfloat16) * 0.05)(Fh, D))}
    _B_in = _B_setup()
    return {'A_x': _A_in['x'], 'A_c_kv': _A_in['c_kv'], 'A_w_q': _A_in['w_q'], 'A_w_uk': _A_in['w_uk'], 'A_w_uv': _A_in['w_uv'], 'A_w_o': _A_in['w_o'], 'B_x': _B_in['x'], 'B_w_in': _B_in['w_in'], 'B_w_sp': _B_in['w_sp'], 'B_b_sp': _B_in['b_sp'], 'B_w_out': _B_in['w_out']}

def reference(A_x, A_c_kv, A_w_q, A_w_uk, A_w_uv, A_w_o, B_x, B_w_in, B_w_sp, B_b_sp, B_w_out):

    def _A_ref(x, c_kv, w_q, w_uk, w_uv, w_o):
        B, Sq, M = (x.shape[0], x.shape[1], x.shape[2])
        Sk = c_kv.shape[1]
        H, D = (w_q.shape[1], w_q.shape[2])
        q = torch.einsum('bqm,mhd->bhqd', x, w_q)
        k = torch.einsum('bkc,chd->bhkd', c_kv, w_uk)
        v = torch.einsum('bkc,chd->bhkd', c_kv, w_uv)
        scores = torch.einsum('bhqd,bhkd->bhqk', q, k) * D ** (-0.5)
        off = Sk - Sq
        qi = torch.arange(Sq)[:, None]
        kj = torch.arange(Sk)[None, :]
        cmask = kj <= qi + off
        scores = torch.where(cmask[None, None], scores, -1000000000.0)
        p = _softmax(scores, axis=-1)
        ctx = torch.einsum('bhqk,bhkd->bhqd', p, v)
        return torch.einsum('bhqd,hdm->bqm', ctx, w_o)

    def _B_ref(x, w_in, w_sp, b_sp, w_out):
        B, S, D = x.shape
        F = w_in.shape[-1]
        Fh = F // 2
        z = _gelu(torch.einsum('bsd,df->bsf', x, w_in))
        z1 = z[..., :Fh].clone()
        z2 = _layernorm(z[..., Fh:], axis=-1)
        g = torch.einsum('ts,bsf->btf', w_sp, z2) + b_sp[None, :, None]
        return torch.einsum('bsf,fd->bsd', z1 * g, w_out)
    x = A_x
    xn = _layernorm(x, axis=-1)
    return x + _A_ref(xn, A_c_kv, A_w_q, A_w_uk, A_w_uv, A_w_o) + _B_ref(xn, B_w_in, B_w_sp, B_b_sp, B_w_out)
```

```python
import struct, os
PROF = int(os.environ.get('PROF', '0'))

def f32(x):
    return struct.unpack('<I', struct.pack('<f', x))[0]

class G:
    def __init__(self):
        self.lines = []
        self.vm = []
        self.ds = []
        self.uid = 0
    def e(self, s):
        self.lines.append(s)
    def label(self, name):
        self.lines.append(name + ":")
    def newlabel(self, base):
        self.uid += 1
        return f"L_{base}_{self.uid}"
    def vmem(self, s, tag=None):
        self.lines.append(s); self.vm.append(tag)
    def lds(self, s, tag=None):
        self.lines.append(s); self.ds.append(tag)
    def _need(self, lst, tags):
        idx = -1
        for i, t in enumerate(lst):
            if t in tags: idx = i
        return idx
    def wait_vm(self, *tags):
        idx = self._need(self.vm, tags)
        if idx < 0: return
        n = min(len(self.vm) - 1 - idx, 63)
        self.lines.append(f"s_waitcnt vmcnt({n})")
        self.vm = self.vm[len(self.vm) - n:] if n else []
    def wait_ds(self, *tags):
        idx = self._need(self.ds, tags)
        if idx < 0: return
        n = min(len(self.ds) - 1 - idx, 15)
        self.lines.append(f"s_waitcnt lgkmcnt({n})")
        self.ds = self.ds[len(self.ds) - n:] if n else []
    def wait_all(self, vm=True, ds=True):
        if vm and ds: self.lines.append("s_waitcnt vmcnt(0) lgkmcnt(0)")
        elif vm: self.lines.append("s_waitcnt vmcnt(0)")
        elif ds: self.lines.append("s_waitcnt lgkmcnt(0)")
        if vm: self.vm = []
        if ds: self.ds = []
    def stamp(self, i):
        if PROF: self.lines.append(f"s_memtime s[{64 + 2 * i}:{65 + 2 * i}]")
    def stamp_dump(self, wslo, wshi, swave, kidx, n=16):
        if not PROF: return
        e = self.e
        e("s_memrealtime s[98:99]")
        e("s_waitcnt vmcnt(0) lgkmcnt(0)")
        e("s_memtime s[96:97]")
        e("s_waitcnt lgkmcnt(0)")
        e(f"s_add_u32 s60, s{wslo}, {WS_DBG + kidx * MB}")
        e(f"s_addc_u32 s61, s{wshi}, 0")
        e(f"s_mov_b32 s62, {MB}")
        e("s_mov_b32 s63, 0x20000")
        e("s_lshl_b32 s59, s2, 10")
        e(f"s_lshl_b32 s58, s{swave}, 7")
        e("s_add_u32 s59, s59, s58")
        e("v_and_b32 v1, 63, v0") if False else None
        e("v_mbcnt_lo_u32_b32 v1, -1, 0")
        e("v_mbcnt_hi_u32_b32 v1, -1, v1")
        e("v_lshlrev_b32 v1, 24, v1")
        for i in range(n + 2):
            e(f"v_mov_b32 v2, s{64 + 2 * i}")
            e(f"buffer_store_dword v2, v1, s[60:63], s59 offen offset:{4 * i}")
            e("s_nop 1")
    def text(self):
        return "\n".join(self.lines) + "\n"

MACROS = r"""
.macro M d,a,b
v_mfma_f32_16x16x32_bf16 v[\d:\d+3],v[\a:\a+3],v[\b:\b+3],v[\d:\d+3]
.endm
.macro MZ d,a,b
v_mfma_f32_16x16x32_bf16 v[\d:\d+3],v[\a:\a+3],v[\b:\b+3],0
.endm
.macro MC d,a,b,c
v_mfma_f32_16x16x32_bf16 v[\d:\d+3],v[\a:\a+3],v[\b:\b+3],v[\c:\c+3]
.endm
.macro TR d,a,o
ds_read_b64_tr_b16 v[\d:\d+1],v\a offset:\o
.endm
.macro DR d,a,o
ds_read_b128 v[\d:\d+3],v\a offset:\o
.endm
.macro DW a,d,o
ds_write_b128 v\a,v[\d:\d+3] offset:\o
.endm
.macro PK d,a,b
v_cvt_pk_bf16_f32 v\d,v\a,v\b
.endm
"""

def kd(name, vgpr, sgpr=102):
    acc = (vgpr + 3) // 4 * 4
    return f"""
.amdhsa_kernel {name}
  .amdhsa_next_free_vgpr {vgpr}
  .amdhsa_next_free_sgpr {sgpr}
  .amdhsa_accum_offset {acc}
  .amdhsa_group_segment_fixed_size 0
  .amdhsa_kernarg_size 112
  .amdhsa_user_sgpr_count 2
  .amdhsa_user_sgpr_kernarg_segment_ptr 1
  .amdhsa_system_sgpr_workgroup_id_x 1
.end_amdhsa_kernel
"""

def srd(g, s, lo, hi, size, off=0):
    if off:
        g.e(f"s_add_u32 s{s}, s{lo}, {off}")
        g.e(f"s_addc_u32 s{s+1}, s{hi}, 0")
    else:
        g.e(f"s_mov_b32 s{s}, s{lo}")
        g.e(f"s_mov_b32 s{s+1}, s{hi}")
    g.e(f"s_mov_b32 s{s+2}, {size}")
    g.e(f"s_mov_b32 s{s+3}, 0x20000")

MB = 1 << 20
WS_XN = 0
WS_K = 2 * MB
WS_V = 18 * MB
WS_Z1 = 34 * MB
WS_Z2 = 38 * MB
WS_ST = 42 * MB
WS_CTX = 44 * MB
SZ_XN = 2 * MB
SZ_KV = 16 * MB
SZ_Z = 2048 * 896 * 2
SZ_ST = 3 * 2048 * 8
SZ_CTX = 128 * 156 * 1024
WS_DBG = 200 * MB
```

```python
from asmlib import *
import math

XR = 128
ACC = [64, 96]
WR = 32
D = 6
XB = 98304
C2 = -2.0 * math.sqrt(2.0 / math.pi) * math.log2(math.e)
C1 = C2 * 0.044715

def xreg(a, m): return XR + (m * 2 + a) * 4
def areg(st, cb, a): return ACC[st] + (cb * 2 + a) * 4

def w_voffsets(g, rowstride, vbase, swave, perm=False):
    g.e("v_bfe_u32 v28, v0, 5, 1")
    g.e("v_bfe_u32 v29, v0, 2, 2")
    g.e("v_lshl_add_u32 v28, v28, 2, v29")
    g.e("v_lshrrev_b32 v29, 6, v0")
    g.e("v_lshl_add_u32 v28, v29, 5, v28")
    g.e(f"s_mov_b32 s49, {rowstride}")
    g.e("v_mul_lo_u32 v28, v28, s49")
    g.e("v_bfe_u32 v29, v0, 4, 1")
    g.e("v_lshl_add_u32 v28, v29, 6, v28")
    g.e("v_and_b32 v29, 3, v0")
    g.e("v_xor_b32 v30, 2, v29")
    g.e("v_lshlrev_b32 v29, 4, v29")
    g.e("v_lshlrev_b32 v30, 4, v30")
    for j in range(4):
        g.e(f"v_add_u32 v31, {j * 8 * rowstride - j * 1024}, v28")
        g.e(f"v_add_u32 v{vbase + j}, v31, v{29 + (j & 1)}")

def tr_bases(g, ve, vo):
    g.e("v_bfe_u32 v28, v0, 4, 2")
    g.e("v_lshlrev_b32 v29, 10, v28")
    g.e("v_bfe_u32 v30, v0, 2, 2")
    g.e("v_lshl_add_u32 v29, v30, 6, v29")
    g.e("v_and_b32 v30, 3, v0")
    g.e("v_lshl_add_u32 v29, v30, 3, v29")
    g.e("v_and_b32 v28, 1, v28")
    g.e(f"v_lshl_add_u32 v{ve}, v28, 5, v29")
    g.e(f"v_xor_b32 v{vo}, 32, v{ve}")

def gelu_ops(regs, T, vc2, sc1, stats=None):
    out = []
    n = len(T)
    for i in range(0, len(regs), n):
        grp = list(zip(regs[i:i + n], T))
        out += [f"v_mul_f32 v{t}, v{x}, v{x}" for x, t in grp]
        out += [f"v_fma_f32 v{t}, v{t}, s{sc1}, v{vc2}" for x, t in grp]
        out += [f"v_mul_f32 v{t}, v{t}, v{x}" for x, t in grp]
        out += [f"v_exp_f32 v{t}, v{t}" for x, t in grp]
        out += [f"v_add_f32 v{t}, 1.0, v{t}" for x, t in grp]
        out += [f"v_rcp_f32 v{t}, v{t}" for x, t in grp]
        out += [f"v_mul_f32 v{x}, v{x}, v{t}" for x, t in grp]
        if stats:
            out += [f"v_add_f32 v{stats[x][0]}, v{stats[x][0]}, v{x}" for x, t in grp]
            out += [f"v_fmac_f32 v{stats[x][1]}, v{x}, v{x}" for x, t in grp]
    return out

def gen_type(g, T):
    ktype = T in ("K", "Z1")
    ztype = T in ("Z1", "Z2")
    rowstride = 3584 if ztype else 8192
    VW = 1
    VTE, VTO = 5, 6
    VST = 7
    VC2 = 8
    VXA = (9, 10)
    VXR = 11
    TMP = [9, 10, 11, 12]
    STAT = 16
    g.vm = []; g.ds = []
    g.label(f"L_k1_{T}")
    if T == "K": srd(g, 20, 10, 11, 512 * 8192); g.e("s_mov_b32 s42, s3")
    if T == "V": srd(g, 20, 12, 13, 512 * 8192); g.e("s_sub_u32 s42, s3, 13")
    if T == "Z1": srd(g, 20, 14, 15, 512 * 3584); g.e("s_sub_u32 s42, s3, 26")
    if T == "Z2": srd(g, 20, 14, 15, 512 * 3584); g.e("s_sub_u32 s42, s3, 29")
    if ztype: srd(g, 24, 4, 5, 2 * MB)
    else: srd(g, 24, 6, 7, 2 * MB)
    off, sz = {"K": (WS_K, SZ_KV), "V": (WS_V, SZ_KV), "Z1": (WS_Z1, SZ_Z), "Z2": (WS_Z2, SZ_Z)}[T]
    srd(g, 28, 16, 17, sz, off)
    lastgi = 2 if ztype else 12
    colbase = 1792 if T == "Z2" else 0
    g.e(f"s_mul_i32 s44, s42, 640")
    if colbase: g.e(f"s_add_u32 s44, s44, {colbase}")
    g.e(f"s_mov_b32 s45, {colbase + ((13 if ztype else 63) * 128)}")
    g.e("s_lshl_b32 s46, s40, 12")
    g.e("s_lshl_b32 s47, s40, 13")
    g.e(f"s_add_u32 s47, s47, {XB}")
    g.e("v_bfe_u32 v28, v0, 2, 4")
    if T == "Z2":
        g.e("v_lshrrev_b32 v29, 2, v28")
        g.e("v_and_b32 v30, 3, v28")
        g.e("v_lshl_add_u32 v29, v29, 3, v30")
        astep = 4
    else:
        g.e("v_mov_b32 v29, v28")
        astep = 16
    g.e("s_lshl_b32 s49, s41, 8")
    g.e("s_lshl_b32 s50, s40, 5")
    g.e("s_add_u32 s49, s49, s50")
    g.e("v_add_u32 v29, s49, v29")
    g.e("v_lshlrev_b32 v29, 10, v29")
    g.e("v_lshrrev_b32 v28, 3, v28")
    g.e("v_lshlrev_b32 v28, 1, v28")
    g.e("v_and_b32 v30, 3, v0")
    g.e("v_xor_b32 v28, v28, v30")
    g.e(f"v_lshl_add_u32 v{VXA[0]}, v28, 4, v29")
    g.e(f"v_add_u32 v{VXA[1]}, {astep * 1024}, v{VXA[0]}")

    def xdma(p):
        m, a = p >> 1, p & 1
        g.e(f"s_add_u32 m0, s47, {(p % 8) * 1024 - m * 64}")
        g.e("s_nop 0")
        g.vmem(f"buffer_load_dwordx4 v{VXA[a]}, s[24:27], 0 offen offset:{m * 64} lds", ("x", p))
    def xread(p):
        m, a = p >> 1, p & 1
        g.lds(f"DR {xreg(a, m)},{VXR},{(p % 8) * 1024}", ("x", p))
    def wdma(s):
        p, kh = s >> 1, s & 1
        if p > 4: return
        g.e(f"s_add_u32 s51, s44, {p * 128}")
        g.e("s_min_u32 s51, s51, s45")
        if kh: g.e(f"s_add_u32 s51, s51, {256 * rowstride}")
        g.e(f"s_add_u32 m0, s46, {(s % 4) * 32768}")
        g.e("s_nop 0")
        for j in range(4):
            g.vmem(f"buffer_load_dwordx4 v{VW + j}, s[20:23], s51 offen offset:{j * 1024} lds", ("w", s))

    if ztype:
        for p in range(8): xdma(p)
        w_voffsets(g, rowstride, VW, 40)
    else:
        w_voffsets(g, rowstride, VW, 40)
        wdma(0)
        for p in range(8): xdma(p)
    tr_bases(g, VTE, VTO)
    g.e("v_and_b32 v28, 63, v0")
    g.e(f"v_lshlrev_b32 v{VST}, 4, v28")
    g.e("v_and_b32 v28, 15, v0")
    g.e("v_bfe_u32 v29, v0, 4, 2")
    g.e("v_bfe_u32 v30, v0, 3, 1")
    g.e("v_lshlrev_b32 v30, 1, v30")
    g.e("v_xor_b32 v29, v29, v30")
    g.e("v_lshlrev_b32 v29, 4, v29")
    g.e("v_lshl_add_u32 v29, v28, 6, v29")
    g.e(f"v_add_u32 v{VXR}, s47, v29")

    if ztype:
        S1, S2 = (12, 13), (14, 15)
        for r in (12, 13, 14, 15): g.e(f"v_mov_b32 v{r}, 0")
        g.e(f"s_mov_b32 s52, {f32(C1)}")
        g.e(f"v_mov_b32 v{VC2}, {f32(C2)}")
        def stats(m):
            for i in range(4):
                for a in range(2):
                    x = xreg(a, m) + i
                    g.e(f"v_dot2c_f32_bf16 v{S1[a]}, 0x3f803f80, v{x}")
                    g.e(f"v_dot2c_f32_bf16 v{S2[a]}, v{x}, v{x}")
        g.wait_vm(("x", 1)); xread(0); xread(1)
        for m in range(16):
            g.wait_ds(("x", 2 * m + 1))
            if 2 * m + 8 < 32:
                xdma(2 * m + 8); xdma(2 * m + 9)
            if m in (12, 13, 14): wdma(m - 12)
            if m < 15:
                g.wait_vm(("x", 2 * m + 3)); xread(2 * m + 2); xread(2 * m + 3)
            stats(m)
        g.e("s_nop 3")
        for sw in ("v_permlane32_swap_b32", "v_permlane16_swap_b32"):
            for i in range(4): g.e(f"v_mov_b32 v{16 + i}, v{12 + i}")
            g.e("s_nop 1")
            for i in range(4): g.e(f"{sw} v{16 + i}, v{12 + i}")
            g.e("s_nop 1")
            for i in range(4): g.e(f"v_add_f32 v{12 + i}, v{12 + i}, v{16 + i}")
        def rbf(r):
            g.e(f"PK {r},{r},{r}")
            g.e(f"v_and_b32 v{r}, 0xffff0000, v{r}")
        for a in range(2):
            mean, var = S1[a], S2[a]
            g.e(f"v_mul_f32 v{mean}, {f32(1 / 512)}, v{mean}")
            g.e(f"v_mul_f32 v{var}, {f32(1 / 512)}, v{var}")
            g.e(f"v_fma_f32 v{var}, -v{mean}, v{mean}, v{var}")
            g.e(f"v_max_f32 v{var}, 0, v{var}")
            rbf(mean); rbf(var)
            g.e(f"v_add_f32 v{var}, {f32(1e-5)}, v{var}")
            rbf(var)
            g.e(f"v_sqrt_f32 v{var}, v{var}")
            g.e("s_nop 0")
            rbf(var)
            g.e(f"v_rcp_f32 v{var}, v{var}")
            g.e("s_nop 0")
            g.e(f"v_mul_f32 v{mean}, v{mean}, v{var}")
        for m in range(16):
            for a in range(2):
                x = xreg(a, m)
                for i in range(4): g.e(f"v_lshlrev_b32 v{16 + i}, 16, v{x + i}")
                for i in range(4): g.e(f"v_and_b32 v{x + i}, 0xffff0000, v{x + i}")
                for i in range(4): g.e(f"v_fma_f32 v{16 + i}, v{16 + i}, v{S2[a]}, -v{S1[a]}")
                for i in range(4): g.e(f"v_fma_f32 v{x + i}, v{x + i}, v{S2[a]}, -v{S1[a]}")
                for i in range(4): g.e(f"PK {x + i},{16 + i},{x + i}")
        if T == "Z1":
            skip = g.newlabel("noxn")
            g.e("s_cmp_lg_u32 s42, 2")
            g.e(f"s_cbranch_scc1 {skip}")
            srd(g, 32, 16, 17, SZ_XN, WS_XN)
            g.e("s_lshl_b32 s49, s41, 18")
            g.e("s_lshl_b32 s50, s40, 15")
            g.e("s_add_u32 s49, s49, s50")
            for a in range(2):
                for m in range(16):
                    if m % 4 == 0 and (a or m): g.e("s_add_u32 s49, s49, 4096")
                    x = xreg(a, m)
                    g.e(f"buffer_store_dwordx4 v[{x}:{x + 3}], v{VST}, s[32:35], s49 offen offset:{(m % 4) * 1024}")
            g.label(skip)
        if T == "Z2":
            for i in range(16): g.e(f"v_mov_b32 v{STAT + i}, 0")

    def epilogue(p):
        st = p & 1
        ops = []
        def I(s): ops.append(lambda s=s: g.e(s))
        I(f"s_mul_i32 s48, s42, 5")
        I(f"s_add_u32 s48, s48, {p}")
        if T in ("K", "V"):
            I("s_lshr_b32 s49, s48, 1")
            I("s_lshl_b32 s49, s49, 19")
            I("s_and_b32 s48, s48, 1")
            I(f"s_lshl_b32 s48, s48, {11 if T == 'K' else 12}")
            I("s_add_u32 s48, s48, s49")
            I("s_lshl_b32 s49, s41, 16")
            I("s_add_u32 s48, s48, s49")
            I("s_lshl_b32 s49, s40, 13")
            I("s_add_u32 s48, s48, s49")
            I("s_add_u32 s50, s48, 4096")
        else:
            I(f"s_lshl_b32 s48, s48, {11 if T == 'Z1' else 12}")
            I("s_lshl_b32 s49, s41, 3")
            I("s_add_u32 s49, s49, s40")
            I("s_mul_i32 s49, s49, 57344")
            I("s_add_u32 s48, s48, s49")
            I("s_add_u32 s50, s48, 28672")
        frags = []
        if ktype:
            for a in range(2):
                for mm in range(2):
                    frags.append((areg(st, 2 * mm, a), areg(st, 2 * mm + 1, a), 50 if a else 48, mm * 1024))
        else:
            for cb in range(4):
                frags.append((areg(st, cb, 0), areg(st, cb, 1), 48, cb * 1024))
        for (x, y, so, io) in frags:
            if ztype:
                stats = None
                if T == "Z2":
                    stats = {}
                    for r in range(4):
                        stats[x + r] = (STAT + 2 * r, STAT + 2 * r + 1)
                        stats[y + r] = (STAT + 8 + 2 * r, STAT + 8 + 2 * r + 1)
                for s in gelu_ops([x, x + 1, x + 2, x + 3, y, y + 1, y + 2, y + 3], TMP, VC2, 52, stats): I(s)
            I(f"PK {x},{x},{x + 1}"); I(f"PK {x + 1},{x + 2},{x + 3}")
            I(f"PK {x + 2},{y},{y + 1}"); I(f"PK {x + 3},{y + 2},{y + 3}")
            ops.append(lambda x=x, so=so, io=io: g.vmem(
                f"buffer_store_dwordx4 v[{x}:{x + 3}], v{VST}, s[28:31], s{so} offen offset:{io}", "st"))
        return ops

    def final(p):
        g.stamp(12)
        g.e("s_nop 7")
        for op in epilogue(p): op()
        if T == "Z2":
            for sh in (8, 4, 2, 1):
                g.e("s_nop 1")
                for i in range(16):
                    g.e(f"v_add_f32_dpp v{STAT + i}, v{STAT + i}, v{STAT + i} row_ror:{sh} row_mask:0xf bank_mask:0xf")
            srd(g, 36, 16, 17, SZ_ST, WS_ST)
            g.e("v_bfe_u32 v9, v0, 4, 2")
            g.e("v_lshlrev_b32 v9, 6, v9")
            g.e("v_and_b32 v10, 15, v0")
            g.e("v_lshl_add_u32 v9, v10, 24, v9")
            g.e("s_lshl_b32 s49, s42, 14")
            g.e("s_lshl_b32 s50, s41, 11")
            g.e("s_add_u32 s49, s49, s50")
            g.e("s_lshl_b32 s50, s40, 8")
            g.e("s_add_u32 s49, s49, s50")
            for i in range(4):
                g.e(f"buffer_store_dwordx4 v[{STAT + 4 * i}:{STAT + 4 * i + 3}], v9, s[36:39], s49 offen offset:{16 * i}")
        g.stamp(13)
        g.stamp_dump(16, 17, 40, 0)
        g.e("s_endpgm")

    def wread(F):
        s, f = F >> 5, F & 31
        if s >= 10: return
        if f == 0:
            g.wait_vm(("w", s))
            if s == 2: g.wait_ds(("x", 31))
            g.e("s_barrier")
            if s >= 2 and s % 2 == 0:
                g.e(f"v_xor_b32 v{VTE}, 0x10000, v{VTE}")
                g.e(f"v_xor_b32 v{VTO}, 0x10000, v{VTO}")
            if ztype:
                if s >= 1: wdma(s + 2)
            else:
                if s == 2: wdma(3)
                if s >= 2: wdma(s + 2)
        mp, cb = f >> 2, f & 3
        r = WR + (F % 8) * 4
        for a in range(2):
            o = (s & 1) * 32768 + mp * 4096 + a * 512 + (cb >> 1) * 256
            g.lds(f"TR {r + 2 * a},{VTO if cb & 1 else VTE},{o}", ("w", F))

    g.stamp(1)
    if not ztype:
        g.wait_vm(("x", 1)); xread(0); xread(1)
    for F in range(D): wread(F)
    fill = []
    for s in range(10):
        p, kh = s >> 1, s & 1
        st = p & 1
        g.stamp(2 + s)
        if kh == 0 and p > 0:
            if p == 4:
                cont = g.newlabel("cont")
                g.e(f"s_cmp_lg_u32 s42, {lastgi}")
                g.e(f"s_cbranch_scc1 {cont}")
                sv = (list(g.vm), list(g.ds))
                final(3)
                g.vm, g.ds = sv
                g.label(cont)
            fill = epilogue(p - 1)
            nslots = 60 if ztype else 28
            per = len(fill) / nslots
            acc = 0.0; slot = -3
        for f in range(32):
            F = s * 32 + f
            mp, cb = f >> 2, f & 3
            m = kh * 8 + mp
            if not ztype and s < 2 and cb == 0:
                g.wait_ds(("x", 2 * m + 1))
                if 2 * m + 8 < 32:
                    xdma(2 * m + 8); xdma(2 * m + 9)
                if m == 1: wdma(1)
                if m == 6: wdma(2)
                if m < 15:
                    g.wait_vm(("x", 2 * m + 3)); xread(2 * m + 2); xread(2 * m + 3)
            g.wait_ds(("w", F))
            r = WR + (F % 8) * 4
            for a in range(2):
                op = "MZ" if m == 0 else "M"
                if ktype: g.e(f"{op} {areg(st, cb, a)},{r},{xreg(a, m)}")
                else: g.e(f"{op} {areg(st, cb, a)},{xreg(a, m)},{r}")
            wread(F + D)
            if fill:
                slot += 1
                if slot > 0:
                    acc += per
                    while fill and acc >= 1.0:
                        fill.pop(0)(); acc -= 1.0
        if kh == 1:
            while fill: fill.pop(0)()
    final(4)

def gen_k1(g):
    g.e(".p2align 8")
    g.e(".type k1_kernel,@function")
    g.label("k1_kernel")
    g.e("s_cmp_ge_u32 s2, 256")
    g.e("s_cbranch_scc1 L_k1_end")
    g.stamp(0)
    if PROF: g.e("s_memrealtime s[94:95]")
    g.e("s_load_dwordx4 s[4:7], s[0:1], 0")
    g.e("s_load_dwordx4 s[8:11], s[0:1], 16")
    g.e("s_load_dwordx2 s[12:13], s[0:1], 32")
    g.e("s_load_dwordx2 s[14:15], s[0:1], 56")
    g.e("s_load_dwordx2 s[16:17], s[0:1], 104")
    g.e("v_lshrrev_b32 v1, 6, v0")
    g.e("s_and_b32 s3, s2, 7")
    g.e("s_lshr_b32 s41, s2, 3")
    g.e("v_readfirstlane_b32 s40, v1")
    g.e("s_and_b32 s49, s41, 24")
    g.e("s_add_u32 s3, s3, s49")
    g.e("s_and_b32 s41, s41, 7")
    g.e("s_waitcnt lgkmcnt(0)")
    g.e("s_cmp_lt_u32 s3, 13")
    g.e("s_cbranch_scc1 L_k1_K")
    g.e("s_cmp_lt_u32 s3, 26")
    g.e("s_cbranch_scc1 L_k1_V")
    g.e("s_cmp_lt_u32 s3, 29")
    g.e("s_cbranch_scc1 L_k1_Z1")
    g.e("s_branch L_k1_Z2")
    g.label("L_k1_end")
    g.e("s_endpgm")
    for T in ("K", "V", "Z1", "Z2"):
        gen_type(g, T)
```

```python
from asmlib import *
import k1
from k1 import w_voffsets, tr_bases, xreg, areg, WR, D
import math

QSCALE = 128 ** -0.5 * math.log2(math.e)
STASH = 131072
NPART = 3
VF, VD, VNEG, VL, VT, V16, VLT = 1, 2, 3, 4, 6, 7, 8
NEGM, PR, SR, QR, OR, FR, TMP = 16, 24, 40, 72, 104, 168, 232
def sreg(kt, qb): return SR + (kt * 2 + qb) * 4
def preg(qb, kg): return PR + (qb * 2 + kg) * 4
def qreg(qb, mm): return QR + (qb * 4 + mm) * 4
def oreg(cb, qb): return OR + (cb * 2 + qb) * 4
def freg(j): return FR + j * 4

def merge_streams(main, fill, start=0):
    out = []
    n = len(main) - start
    acc = 0.0
    fill = list(fill)
    per = len(fill) / max(1, n)
    for i, m in enumerate(main):
        out.append(m)
        if i >= start:
            acc += per
            while fill and acc >= 0.999:
                out.append(fill.pop(0)); acc -= 1.0
    return out + fill

def kv_dma(g, kind, idx_sgpr, other_parity, tag):
    srdn = 28 if kind == "K" else 32
    ops = []
    def setup():
        g.e(f"s_lshl_b32 s51, s{idx_sgpr}, 15")
        g.e("s_add_u32 s51, s51, s54")
        if other_parity:
            g.e("s_xor_b32 s50, s53, 0x10000")
            g.e("s_add_u32 s50, s50, s55")
        else:
            g.e("s_add_u32 s50, s53, s55")
        if kind == "V": g.e("s_add_u32 m0, s50, 32768")
        else: g.e("s_mov_b32 m0, s50")
        g.e("s_nop 0")
    ops.append(setup)
    for j in range(4):
        ops.append(lambda j=j: g.vmem(f"buffer_load_dwordx4 v{V16}, s[{srdn}:{srdn + 3}], s51 offen offset:{j * 1024} lds", tag))
    return ops

def wrap_idx(g, d):
    g.e(f"s_add_u32 s49, s52, {d}")
    g.e("s_cmp_ge_u32 s49, s48")
    g.e("s_cselect_b32 s50, s48, 0")
    g.e("s_sub_u32 s49, s49, s50")

def softmax_ops(g):
    ops = []
    I = lambda s: ops.append(lambda s=s: g.e(s))
    T = [TMP + i for i in range(8)]
    k = 0
    for kt in range(4):
        for qb in range(2):
            s = sreg(kt, qb); t = T[(k % 2) * 4:(k % 2) * 4 + 4]; k += 1
            for r in range(4): I(f"v_exp_f32 v{t[r]}, v{s + r}")
            p = preg(qb, kt >> 1) + (kt & 1) * 2
            if kt == 0:
                I(f"v_add_f32 v{VLT + qb}, v{t[0]}, v{t[1]}")
            else:
                I(f"v_add_f32 v{VLT + qb}, v{VLT + qb}, v{t[0]}")
                I(f"v_add_f32 v{VLT + qb}, v{VLT + qb}, v{t[1]}")
            I(f"PK {p},{t[0]},{t[1]}")
            I(f"v_add_f32 v{VLT + qb}, v{VLT + qb}, v{t[2]}")
            I(f"v_add_f32 v{VLT + qb}, v{VLT + qb}, v{t[3]}")
            I(f"PK {p + 1},{t[2]},{t[3]}")
    return ops

def xgroup(g, regs, op, tmp):
    for sw in ("v_permlane32_swap_b32", "v_permlane16_swap_b32"):
        for i, r in enumerate(regs): g.e(f"v_mov_b32 v{tmp + i}, v{r}")
        g.e("s_nop 1")
        for i, r in enumerate(regs): g.e(f"{sw} v{tmp + i}, v{r}")
        g.e("s_nop 1")
        for i, r in enumerate(regs): g.e(f"{op} v{r}, v{r}, v{tmp + i}")

def rescale(g, first):
    MX = [TMP + 8, TMP + 9]
    for qb in range(2):
        vals = [sreg(kt, qb) + r for kt in range(4) for r in range(4)]
        g.e(f"v_max3_f32 v{MX[qb]}, v{vals[0]}, v{vals[1]}, v{vals[2]}")
        for i in range(3, 15, 2): g.e(f"v_max3_f32 v{MX[qb]}, v{MX[qb]}, v{vals[i]}, v{vals[i + 1]}")
        g.e(f"v_max_f32 v{MX[qb]}, v{MX[qb]}, v{vals[15]}")
    xgroup(g, MX, "v_max_f32", TMP + 10)
    if not first:
        for qb in range(2): g.e(f"v_max_f32 v{MX[qb]}, 0, v{MX[qb]}")
    for kt in range(4):
        for qb in range(2):
            for r in range(4): g.e(f"v_sub_f32 v{sreg(kt, qb) + r}, v{sreg(kt, qb) + r}, v{MX[qb]}")
    for qb in range(2):
        for r in range(4): g.e(f"v_sub_f32 v{NEGM + qb * 4 + r}, v{NEGM + qb * 4 + r}, v{MX[qb]}")
    if first:
        for i in range(64): g.e(f"v_mov_b32 v{OR + i}, 0")
        for qb in range(2): g.e(f"v_mov_b32 v{VL + qb}, 0")
    else:
        for qb in range(2): g.e(f"v_exp_f32 v{MX[qb]}, -v{MX[qb]}")
        g.e("s_nop 0")
        for cb in range(8):
            for qb in range(2):
                for r in range(4): g.e(f"v_mul_f32 v{oreg(cb, qb) + r}, v{oreg(cb, qb) + r}, v{MX[qb]}")
        for qb in range(2): g.e(f"v_mul_f32 v{VL + qb}, v{VL + qb}, v{MX[qb]}")

def mask_block(g):
    skip = g.newlabel("nomask")
    g.e("s_add_u32 s49, s52, 1")
    g.e("s_cmp_lg_u32 s49, s48")
    g.e(f"s_cbranch_scc1 {skip}")
    items = [(dk, r) for dk in range(-1, 4) for r in range(4)]
    pairs = [10, 12, 14]
    def cnd(i):
        dk, r = items[i]; sp = pairs[i % 3]
        for qb in range(2):
            kt = dk + qb
            if 0 <= kt < 4:
                g.e(f"v_cndmask_b32 v{sreg(kt, qb) + r}, v{VNEG}, v{sreg(kt, qb) + r}, s[{sp}:{sp + 1}]")
    for i, (dk, r) in enumerate(items):
        sp = pairs[i % 3]
        g.e(f"v_cmp_le_i32 s[{sp}:{sp + 1}], {16 * dk + r}, v{VD}")
        if i >= 2: cnd(i - 2)
    g.e("s_nop 0")
    cnd(len(items) - 2); cnd(len(items) - 1)
    g.label(skip)

def qk(g, fill=()):
    main = []
    for kt in range(4):
        for mm in range(4):
            j = kt * 4 + mm
            def step(kt=kt, mm=mm, j=j):
                g.wait_ds(("k", j))
                for qb in range(2):
                    if mm == 0: g.e(f"MC {sreg(kt, qb)},{freg(j)},{qreg(qb, mm)},{NEGM + qb * 4}")
                    else: g.e(f"M {sreg(kt, qb)},{freg(j)},{qreg(qb, mm)}")
            main.append(step)
    for op in merge_streams(main, fill): op()

def pv(g, kreads):
    for j in range(16):
        kg, cb = j >> 3, j & 7
        for qb in range(2): g.e(f"M {oreg(cb, qb)},{freg(j)},{preg(qb, kg)}")
        if kreads and j >= 1: g.lds(f"DR {freg(j - 1)},{VF},{(j - 1) * 1024}", ("k", j - 1))
    if kreads: g.lds(f"DR {freg(15)},{VF},{15 * 1024}", ("k", 15))

def s_tail(g):
    last = g.newlabel("slast"); join = g.newlabel("sjoin")
    g.e("s_waitcnt vmcnt(4)")
    g.e("s_add_u32 s49, s52, 1")
    g.e("s_cmp_eq_u32 s49, s48")
    g.e(f"s_cbranch_scc1 {last}")
    wrap_idx(g, 2)
    for op in kv_dma(g, "K", 49, False, None): op()
    g.e(f"s_branch {join}")
    g.label(last)
    g.e(f"v_add_u32 v{VT}, s57, v{V16}")
    for fi in range(8): g.e(f"DR {QR + fi * 4},{VT},{fi * 1024}")
    g.label(join)
    g.e(f"v_xor_b32 v{VF}, 0x10000, v{VF}")
    g.e("s_xor_b32 s53, s53, 0x10000")
    g.e("s_add_u32 s52, s52, 1")
    g.e("s_waitcnt lgkmcnt(0)")
    g.e("s_barrier")
    g.vm = []; g.ds = []

def gen_attn(g):
    g.vm = []; g.ds = []
    g.label("L_k2_attn")
    g.e("s_mul_i32 s49, s41, 37")
    g.e("s_lshr_b32 s49, s49, 8")
    g.e("s_mul_i32 s50, s49, 7")
    g.e("s_sub_u32 s44, s41, s50")
    g.e("s_lshl_b32 s49, s49, 3")
    g.e("s_add_u32 s43, s3, s49")
    g.e("s_lshr_b32 s41, s40, 2")
    g.e("s_and_b32 s42, s40, 3")
    g.e("s_sub_u32 s45, 15, s44")
    g.e("s_add_u32 s46, s44, 3")
    g.e("s_cmp_eq_u32 s44, 6")
    g.e("s_cselect_b32 s46, 2, s46")
    srd(g, 20, 4, 5, 512 * 8192)
    srd(g, 24, 16, 17, SZ_XN, WS_XN)
    srd(g, 28, 16, 17, SZ_KV, WS_K)
    srd(g, 32, 16, 17, SZ_KV, WS_V)
    srd(g, 36, 16, 17, SZ_CTX, WS_CTX)
    g.e("s_lshl_b32 s55, s41, 14")
    g.e("s_lshl_b32 s49, s42, 12")
    g.e("s_add_u32 s55, s55, s49")
    g.e("s_lshl_b32 s54, s43, 19")
    g.e("s_add_u32 s54, s54, s55")
    g.e("s_lshl_b32 s57, s42, 13")
    g.e(f"s_add_u32 s57, s57, {STASH}")
    g.e("v_and_b32 v28, 63, v0")
    g.e(f"v_lshlrev_b32 v{V16}, 4, v28")
    g.label("L_k2_round")
    w_voffsets(g, 8192, 1, 40)
    g.e("s_lshl_b32 s18, s43, 8")
    g.e("s_lshl_b32 s19, s40, 12")
    g.e("s_mov_b32 s53, 0")
    g.e("s_cmp_eq_u32 s41, 0")
    g.e("s_cselect_b32 s47, s45, s46")
    g.e("s_lshl_b32 s47, s47, 17")
    g.e("s_lshl_b32 s49, s42, 15")
    g.e("s_add_u32 s47, s47, s49")
    def wdma(s):
        p, kh = s >> 1, s & 1
        g.e(f"s_add_u32 s51, s18, {p * 128 + kh * 256 * 8192}")
        g.e(f"s_add_u32 m0, s19, {s * 32768}")
        g.e("s_nop 0")
        for j in range(4):
            g.vmem(f"buffer_load_dwordx4 v{1 + j}, s[20:23], s51 offen offset:{j * 1024} lds", ("w", s))
    def xload(kh):
        for m in range(kh * 8, kh * 8 + 8):
            if m % 4 == 0:
                g.e(f"s_add_u32 s49, s47, {m * 1024}")
                g.e(f"s_add_u32 s50, s47, {m * 1024 + 16384}")
            for a in range(2):
                x = xreg(a, m)
                g.vmem(f"buffer_load_dwordx4 v[{x}:{x + 3}], v{V16}, s[24:27], s{49 + a} offen offset:{(m % 4) * 1024}", ("x", m))
    wdma(0); xload(0); wdma(1); xload(1); wdma(2); wdma(3)
    tr_bases(g, 5, 6)
    g.e(f"s_mov_b32 s56, {f32(QSCALE)}")
    g.e("s_mov_b32 s52, 0")
    g.stamp(1)
    def wread(F):
        s, f = F >> 5, F & 31
        if s >= 4: return
        if f == 0:
            g.wait_vm(("w", s))
            g.e("s_barrier")
            if s == 2:
                g.e("v_xor_b32 v5, 0x10000, v5")
                g.e("v_xor_b32 v6, 0x10000, v6")
                for op in kv_dma(g, "K", 52, False, "k0"): op()
            if s == 3:
                for op in kv_dma(g, "V", 52, False, "v0"): op()
        mp, cb = f >> 2, f & 3
        r = WR + (F % 8) * 4
        for a in range(2):
            o = (s & 1) * 32768 + mp * 4096 + a * 512 + (cb >> 1) * 256
            g.lds(f"TR {r + 2 * a},{6 if cb & 1 else 5},{o}", ("w", F))
    def qpack(p):
        ops = []
        I = lambda s: ops.append(lambda s=s: g.e(s))
        for a in range(2):
            for mm in range(2):
                x, y = areg(p, 2 * mm, a), areg(p, 2 * mm + 1, a)
                for r in range(4): I(f"v_mul_f32 v{x + r}, s56, v{x + r}")
                for r in range(4): I(f"v_mul_f32 v{y + r}, s56, v{y + r}")
                I(f"PK {x},{x},{x + 1}"); I(f"PK {x + 1},{x + 2},{x + 3}")
                I(f"PK {x + 2},{y},{y + 1}"); I(f"PK {x + 3},{y + 2},{y + 3}")
        return ops
    for F in range(D): wread(F)
    fill = []
    for s in range(4):
        p, kh = s >> 1, s & 1
        if s == 2: fill = qpack(0)
        for f in range(32):
            F = s * 32 + f
            mp, cb = f >> 2, f & 3
            m = kh * 8 + mp
            if s < 2 and cb == 0: g.wait_vm(("x", m))
            g.wait_ds(("w", F))
            r = WR + (F % 8) * 4
            for a in range(2):
                g.e(f"{'MZ' if m == 0 else 'M'} {areg(p, cb, a)},{r},{xreg(a, m)}")
            wread(F + D)
            if fill and (s > 2 or f >= 4):
                fill.pop(0)()
    assert not fill
    g.stamp(2)
    g.e("s_barrier")
    g.e("s_lshl_b32 s49, s42, 13")
    g.e("s_add_u32 s49, s49, 98304")
    g.e("s_cmp_eq_u32 s41, 0")
    g.e("s_cselect_b32 s50, s49, s57")
    g.e(f"v_add_u32 v8, s50, v{V16}")
    g.e(f"v_add_u32 v9, s49, v{V16}")
    g.e("s_nop 2")
    for op in qpack(1): op()
    for a in range(2):
        for mm in range(4):
            g.e(f"DW 8,{areg(mm >> 1, 2 * (mm & 1), a)},{(a * 4 + mm) * 1024}")
    g.wait_vm("k0")
    g.e("s_waitcnt lgkmcnt(0)")
    g.e("s_barrier")
    g.ds = []
    for fi in range(8): g.e(f"DR {QR + fi * 4},9,{fi * 1024}")
    g.e("s_lshl_b32 s49, s41, 14")
    g.e(f"v_add_u32 v{VF}, s49, v{V16}")
    g.e("s_lshl_b32 s49, s42, 5")
    g.e("s_lshl_b32 s50, s41, 6")
    g.e("s_sub_u32 s49, s49, s50")
    g.e("v_and_b32 v28, 15, v0")
    g.e("v_bfe_u32 v29, v0, 4, 2")
    g.e("v_lshlrev_b32 v29, 2, v29")
    g.e("v_sub_u32 v28, v28, v29")
    g.e(f"v_add_u32 v{VD}, s49, v28")
    g.e(f"v_mov_b32 v{VNEG}, {f32(-1e30)}")
    g.e(f"s_mov_b32 s56, {f32(2.0 ** 30)}")
    g.e("s_mov_b32 s47, s45")
    g.e("s_mov_b32 s18, 0")
    g.e("s_waitcnt lgkmcnt(0)")
    g.stamp(3)
    g.e("s_cmp_eq_u32 s41, 0")
    g.e("s_cbranch_scc1 L_k2_block")
    g.e("s_barrier")
    g.label("L_k2_block")
    g.vm = []; g.ds = []
    g.e("s_add_u32 s48, s47, 1")
    g.e("s_mov_b32 s52, 0")
    for j in range(16): g.lds(f"DR {freg(j)},{VF},{j * 1024}", ("k", j))
    for i in range(8): g.e(f"v_mov_b32 v{NEGM + i}, 0")
    wrap_idx(g, 1)
    g.e("s_setprio 1")
    qk(g, kv_dma(g, "K", 49, True, None))
    g.e("s_setprio 0")
    g.e("s_waitcnt vmcnt(4)")
    g.e("s_barrier")
    for j in range(16): g.e(f"DR {freg(j)},{VF},{32768 + j * 1024}")
    wrap_idx(g, 1)
    for op in kv_dma(g, "V", 49, True, None): op()
    mask_block(g)
    rescale(g, True)
    for op in softmax_ops(g): op()
    for qb in range(2): g.e(f"v_add_f32 v{VL + qb}, v{VL + qb}, v{VLT + qb}")
    s_tail(g)
    g.e("s_cmp_ge_u32 s52, s48")
    g.e("s_cbranch_scc1 L_k2_fin")
    g.label("L_k2_loop")
    g.e("s_setprio 1")
    pv(g, True)
    qk(g)
    g.e("s_setprio 0")
    g.e("s_waitcnt vmcnt(4)")
    g.e("s_barrier")
    for j in range(8): g.e(f"DR {freg(j)},{VF},{32768 + j * 1024}")
    mask_block(g)
    wrap_idx(g, 1)
    fill = [lambda j=j: g.e(f"DR {freg(j)},{VF},{32768 + j * 1024}") for j in range(8, 16)] + kv_dma(g, "V", 49, True, None)
    for op in merge_streams(softmax_ops(g), fill): op()
    g.e(f"v_max_f32 v{VT}, v{VLT}, v{VLT + 1}")
    g.e(f"v_cmp_lt_f32 vcc, s56, v{VT}")
    g.e("s_cbranch_vccnz L_k2_slow")
    g.label("L_k2_back")
    for qb in range(2): g.e(f"v_add_f32 v{VL + qb}, v{VL + qb}, v{VLT + qb}")
    s_tail(g)
    g.e("s_cmp_lt_u32 s52, s48")
    g.e("s_cbranch_scc1 L_k2_loop")
    g.label("L_k2_fin")
    g.e("s_setprio 1")
    pv(g, False)
    g.e("s_setprio 0")
    g.e("s_xor_b32 s49, s53, 0x10000")
    g.e("s_lshl_b32 s50, s42, 13")
    g.e("s_add_u32 s50, s50, s49")
    g.e("s_add_u32 s50, s50, 32768")
    g.e(f"v_add_u32 v10, s57, v{V16}")
    g.e(f"v_add_u32 v11, s50, v{V16}")
    g.e("s_lshl_b32 s50, s42, 10")
    g.e("s_add_u32 s50, s50, s49")
    g.e("s_add_u32 s50, s50, 16384")
    g.e(f"v_add_u32 v12, s50, v{V16}")
    g.e("s_barrier")
    g.e("s_cmp_eq_u32 s41, 0")
    g.e("s_cbranch_scc0 L_k2_merge")
    g.e(f"v_mov_b32 v{TMP}, v{NEGM}")
    g.e(f"v_mov_b32 v{TMP + 1}, v{NEGM + 4}")
    g.e(f"v_mov_b32 v{TMP + 2}, v{VL}")
    g.e(f"v_mov_b32 v{TMP + 3}, v{VL + 1}")
    g.e(f"DW 12,{TMP},0")
    for i in range(16): g.e(f"DW {10 + (i >> 3)},{OR + i * 4},{(i & 7) * 1024}")
    g.e("s_waitcnt lgkmcnt(0)")
    g.e("s_barrier")
    g.e("s_cmp_eq_u32 s18, 0")
    g.e("s_cbranch_scc0 L_k2_rend")
    g.e("s_mov_b32 s18, 1")
    g.e("s_mov_b32 s47, s46")
    g.e("s_branch L_k2_block")
    g.label("L_k2_merge")
    g.ds = []
    g.lds(f"DR {TMP},12,0", "ml")
    for i in range(16): g.lds(f"DR {freg(i)},{10 + (i >> 3)},{(i & 7) * 1024}", ("o", i))
    g.e("s_lshl_b32 s49, s47, 3")
    g.e("s_lshl_b32 s50, s42, 1")
    g.e("s_add_u32 s49, s49, s50")
    g.e("s_mul_i32 s49, s49, 159744")
    g.e("s_lshl_b32 s50, s43, 12")
    g.e("s_add_u32 s49, s49, s50")
    g.e("s_add_u32 s50, s49, 159744")
    g.wait_ds("ml")
    FA, FB, NM = TMP + 4, TMP + 6, TMP + 8
    for qb in range(2): g.e(f"v_min_f32 v{NM + qb}, v{TMP + qb}, v{NEGM + 4 * qb}")
    for qb in range(2): g.e(f"v_sub_f32 v{FA + qb}, v{NM + qb}, v{TMP + qb}")
    for qb in range(2): g.e(f"v_sub_f32 v{FB + qb}, v{NM + qb}, v{NEGM + 4 * qb}")
    for i in range(4): g.e(f"v_exp_f32 v{FA + i}, v{FA + i}")
    g.e("s_nop 0")
    for qb in range(2): g.e(f"v_mul_f32 v{VL + qb}, v{VL + qb}, v{FB + qb}")
    for qb in range(2): g.e(f"v_fmac_f32 v{VL + qb}, v{TMP + 2 + qb}, v{FA + qb}")
    xgroup(g, [VL, VL + 1], "v_add_f32", TMP + 10)
    for qb in range(2): g.e(f"v_rcp_f32 v{VL + qb}, v{VL + qb}")
    g.e("s_nop 0")
    for qb in range(2): g.e(f"v_mul_f32 v{FA + qb}, v{FA + qb}, v{VL + qb}")
    for qb in range(2): g.e(f"v_mul_f32 v{FB + qb}, v{FB + qb}, v{VL + qb}")
    for mm in range(4):
        for qb in range(2):
            for cb in (2 * mm, 2 * mm + 1):
                o = oreg(cb, qb); i = cb * 2 + qb
                for r in range(4): g.e(f"v_mul_f32 v{o + r}, v{o + r}, v{FB + qb}")
                g.wait_ds(("o", i))
                for r in range(4): g.e(f"v_fmac_f32 v{o + r}, v{freg(i) + r}, v{FA + qb}")
            x, y = oreg(2 * mm, qb), oreg(2 * mm + 1, qb)
            g.e(f"PK {x},{x},{x + 1}"); g.e(f"PK {x + 1},{x + 2},{x + 3}")
            g.e(f"PK {x + 2},{y},{y + 1}"); g.e(f"PK {x + 3},{y + 2},{y + 3}")
            g.e(f"buffer_store_dwordx4 v[{x}:{x + 3}], v{V16}, s[36:39], s{49 + qb} offen offset:{mm * 1024}")
    g.e("s_cmp_eq_u32 s18, 0")
    g.e("s_cbranch_scc0 L_k2_rend")
    g.stamp(4)
    g.e("s_mov_b32 s18, 1")
    g.e("s_mov_b32 s47, s46")
    g.e("s_barrier")
    g.e("s_branch L_k2_block")
    g.label("L_k2_rend")
    g.stamp(5)
    g.e("s_cmp_eq_u32 s45, 9")
    g.e("s_cbranch_scc0 L_k2_aend")
    g.e("s_mov_b32 s45, 1")
    g.e("s_mov_b32 s46, 0")
    g.e("s_waitcnt vmcnt(0) lgkmcnt(0)")
    g.e("s_barrier")
    g.e("s_branch L_k2_round")
    g.label("L_k2_aend")
    g.stamp_dump(16, 17, 40, 1)
    g.e("s_endpgm")
    g.label("L_k2_slow")
    rescale(g, False)
    for op in softmax_ops(g): op()
    g.e("s_branch L_k2_back")

def gen_spatial(g):
    ACC, AR, BB, RAW, PAR, TT = 144, 116, 84, 68, 52, 36
    ZB, TB = 65536, 131072
    VWD, VA, VB0, VB1, VZW, VP = 1, 5, 6, 8, 9, 10
    acc = lambda fb, tt: ACC + (fb * 4 + tt) * 4
    g.vm = []; g.ds = []
    g.label("L_k2_sp")
    g.e("s_sub_u32 s44, s41, 28")
    g.e("s_and_b32 s42, s40, 3")
    g.e("s_lshr_b32 s41, s40, 2")
    srd(g, 20, 6, 7, 2048 * 4096)
    srd(g, 24, 16, 17, SZ_Z, WS_Z2)
    srd(g, 28, 16, 17, SZ_Z, WS_Z1)
    srd(g, 32, 16, 17, NPART * 16384, WS_ST)
    srd(g, 36, 16, 17, SZ_CTX, WS_CTX)
    srd(g, 12, 8, 9, 4096)
    g.e("v_and_b32 v28, 63, v0")
    g.e(f"v_lshlrev_b32 v{V16}, 4, v28")
    g.e("v_lshlrev_b32 v11, 5, v0")
    for p in range(NPART):
        g.e(f"s_mov_b32 s49, {p * 16384}")
        for h in range(2):
            r = ACC + p * 8 + h * 4
            g.vmem(f"buffer_load_dwordx4 v[{r}:{r + 3}], v11, s[32:35], s49 offen offset:{h * 16}", "st")
    g.e("v_bfe_u32 v28, v0, 3, 3")
    g.e("v_and_b32 v29, 7, v0")
    g.e("v_lshrrev_b32 v30, 1, v28")
    g.e("v_xor_b32 v29, v29, v30")
    g.e("s_lshl_b32 s49, s3, 8")
    g.e("s_lshl_b32 s50, s40, 5")
    g.e("s_add_u32 s49, s49, s50")
    g.e("v_add_u32 v28, s49, v28")
    g.e("v_lshlrev_b32 v28, 12, v28")
    g.e("v_xor_b32 v30, 4, v29")
    g.e("v_lshl_add_u32 v29, v29, 4, v28")
    g.e("v_lshl_add_u32 v30, v30, 4, v28")
    for j in range(4): g.e(f"v_add_u32 v{VWD + j}, {j * 8 * 4096 - j * 1024}, v{29 + (j & 1)}")
    g.e("s_lshl_b32 s46, s40, 12")
    g.e("s_mov_b32 s45, 0")
    def wdma_ops():
        ops = [lambda: (g.e("s_mov_b32 m0, s46"), g.e("s_nop 0"))]
        for j in range(4):
            ops.append(lambda j=j: g.vmem(f"buffer_load_dwordx4 v{VWD + j}, s[20:23], s45 offen offset:{j * 1024} lds", "w"))
        ops.append(lambda: (g.e("s_add_u32 s45, s45, 128"), g.e("s_xor_b32 s46, s46, 0x8000")))
        return ops
    for op in wdma_ops(): op()
    g.e("s_and_b32 s47, s40, 1")
    g.e("s_lshr_b32 s48, s40, 1")
    g.e("s_lshl_b32 s48, s48, 2")
    g.e("s_min_u32 s48, s48, 10")
    g.e("s_mul_i32 s49, s47, 56")
    g.e("s_mul_i32 s50, s44, 14")
    g.e("s_add_u32 s49, s49, s50")
    g.e("s_add_u32 s49, s49, s48")
    g.e("s_lshl_b32 s43, s49, 10")
    def zload_ops():
        ops = []
        for i in range(4):
            ops.append(lambda i=i: g.vmem(f"buffer_load_dwordx4 v[{RAW + 4 * i}:{RAW + 4 * i + 3}], v{V16}, s[24:27], s43 offen offset:{i * 1024}", ("z", i)))
        return ops
    for op in zload_ops(): op()
    g.e("s_add_u32 s43, s43, 114688")
    g.e("s_mul_i32 s49, s47, 14")
    g.e("s_add_u32 s49, s49, s48")
    g.e("s_lshl_b32 s49, s49, 10")
    g.e(f"s_add_u32 s49, s49, {ZB}")
    g.e(f"v_add_u32 v{VZW}, s49, v{V16}")
    g.e("s_mul_i32 s49, s41, 7168")
    g.e(f"s_add_u32 s49, s49, {ZB}")
    g.e(f"v_add_u32 v{VA}, s49, v{V16}")
    g.e("v_and_b32 v28, 15, v0")
    g.e("v_bfe_u32 v29, v0, 4, 2")
    g.e("v_lshrrev_b32 v30, 1, v28")
    g.e("v_xor_b32 v29, v29, v30")
    g.e("v_lshlrev_b32 v29, 4, v29")
    g.e("v_lshl_add_u32 v29, v28, 7, v29")
    g.e("s_lshl_b32 s49, s42, 13")
    g.e(f"v_add_u32 v{VB0}, s49, v29")
    g.e(f"v_xor_b32 v{VB1}, 64, v{VB0}")
    g.e("v_bfe_u32 v29, v0, 4, 2")
    g.e("s_lshl_b32 s49, s47, 7")
    g.e(f"s_add_u32 s49, s49, {TB}")
    g.e(f"v_lshl_add_u32 v{VP}, v29, 5, s49")
    g.wait_vm("st")
    for p in range(1, NPART):
        for i in range(8): g.e(f"v_add_f32 v{ACC + i}, v{ACC + i}, v{ACC + p * 8 + i}")
    def rbf(rs):
        for r in rs: g.e(f"PK {r},{r},{r}")
        for r in rs: g.e(f"v_and_b32 v{r}, 0xffff0000, v{r}")
    MEAN = [TT + 4 + i for i in range(4)]; VAR = [TT + i for i in range(4)]
    for i in range(4):
        g.e(f"v_mul_f32 v{MEAN[i]}, {f32(1 / 896)}, v{ACC + 2 * i}")
        g.e(f"v_mul_f32 v{VAR[i]}, {f32(1 / 896)}, v{ACC + 2 * i + 1}")
    for i in range(4): g.e(f"v_fma_f32 v{VAR[i]}, -v{MEAN[i]}, v{MEAN[i]}, v{VAR[i]}")
    for i in range(4): g.e(f"v_max_f32 v{VAR[i]}, 0, v{VAR[i]}")
    rbf(MEAN + VAR)
    for i in range(4): g.e(f"v_add_f32 v{VAR[i]}, {f32(1e-5)}, v{VAR[i]}")
    rbf(VAR)
    for i in range(4): g.e(f"v_sqrt_f32 v{VAR[i]}, v{VAR[i]}")
    g.e("s_nop 0")
    rbf(VAR)
    for i in range(4): g.e(f"v_rcp_f32 v{VAR[i]}, v{VAR[i]}")
    g.e("s_nop 0")
    for i in range(4): g.e(f"v_mul_f32 v{MEAN[i]}, v{MEAN[i]}, v{VAR[i]}")
    g.e("v_lshlrev_b32 v11, 4, v0")
    g.e(f"v_add_u32 v11, {TB}, v11")
    g.e(f"DW 11,{TT},0")
    g.e(f"DW 11,{TT + 4},8192")
    for i in range(112): g.e(f"v_mov_b32 v{ACC + i}, 0")
    for i in range(12): g.e(f"v_mov_b32 v{AR + 16 + i}, 0")
    for i in range(16): g.e(f"v_mov_b32 v{BB + 16 + i}, 0")
    g.e("s_waitcnt lgkmcnt(0)")
    g.e("s_barrier")
    def norm_ops():
        ops = []
        I = lambda s: ops.append(lambda s=s: g.e(s))
        for h in range(2):
            ops.append(lambda h=h: g.lds(f"DR {PAR + 4 * h},{VP},{16 * h}", "par"))
            ops.append(lambda h=h: g.lds(f"DR {PAR + 8 + 4 * h},{VP},{8192 + 16 * h}", "par"))
        I(f"v_add_u32 v{VP}, 256, v{VP}")
        zl = zload_ops()
        for i in range(4):
            x = RAW + 4 * i; t = TT + (i & 1) * 8
            ops.append(lambda i=i: g.wait_vm(("z", i)))
            for r in range(4): I(f"v_lshlrev_b32 v{t + 2 * r}, 16, v{x + r}")
            for r in range(4): I(f"v_and_b32 v{t + 2 * r + 1}, 0xffff0000, v{x + r}")
            ops.append(zl[i])
            if i == 0: ops.append(lambda: g.wait_ds("par"))
            for e in range(8): I(f"v_fma_f32 v{t + e}, v{t + e}, v{PAR + e}, -v{PAR + 8 + e}")
            for r in range(4): I(f"PK {t + r},{t + 2 * r},{t + 2 * r + 1}")
            ops.append(lambda i=i, t=t: g.lds(f"DW {VZW},{t},{i * 1024}", "zw"))
        I("s_add_u32 s43, s43, 114688")
        I(f"v_xor_b32 v{VZW}, 0x8000, v{VZW}")
        return ops
    for op in norm_ops(): op()
    g.wait_vm("w")
    g.e("s_waitcnt lgkmcnt(0)")
    g.e("s_barrier")
    g.ds = []
    g.e("s_mov_b32 s52, 0")
    g.stamp(1)
    def aread(i): g.lds(f"DR {AR + (i % 7) * 4},{VA},{(i // 7) * 14336 + (i % 7) * 1024}", ("a", i))
    def bread(ks, tt): g.lds(f"DR {BB + ks * 16 + tt * 4},{VB1 if ks else VB0},{tt * 2048}", ("b", ks))
    def group(i, wait=True):
        ks, fb = i // 7, i % 7
        if wait: g.wait_ds(("a", i), ("b", ks))
        for tt in range(4): g.e(f"M {acc(fb, tt)},{AR + fb * 4},{BB + ks * 16 + tt * 4}")
    g.label("L_k2_sploop")
    vm_entry = list(g.vm)
    main = []
    for gi in (11, 12, 13) + tuple(range(11)):
        def pre(gi=gi):
            if gi == 11:
                aread(0)
                for tt in range(4): bread(0, tt)
                aread(1)
            elif gi == 12: aread(2); aread(3)
            elif gi == 13: aread(4)
        def post(gi=gi):
            if gi <= 8: aread(gi + 5)
            if gi <= 3: bread(1, gi)
        for tt in range(4):
            def mf(gi=gi, tt=tt, pre=pre, post=post):
                ks, fb = gi // 7, gi % 7
                if tt == 0:
                    pre()
                    if gi < 11: g.wait_ds(("a", gi), ("b", ks))
                g.e(f"M {acc(fb, tt)},{AR + fb * 4},{BB + ks * 16 + tt * 4}")
                if tt == 3: post()
            main.append(mf)
    fill = wdma_ops() + norm_ops()
    seq = merge_streams(main[:50], fill) + main[50:]
    for op in seq: op()
    g.e(f"v_xor_b32 v{VA}, 0x8000, v{VA}")
    g.e(f"v_xor_b32 v{VB0}, 0x8000, v{VB0}")
    g.e(f"v_xor_b32 v{VB1}, 0x8000, v{VB1}")
    g.wait_vm("w")
    assert g.vm == vm_entry, (g.vm, vm_entry)
    g.e("s_add_u32 s52, s52, 1")
    g.e("s_cmp_lt_u32 s52, 32")
    g.e("s_waitcnt lgkmcnt(0)")
    g.e("s_barrier")
    g.ds = []
    g.e("s_cbranch_scc1 L_k2_sploop")
    g.stamp(2)
    for gi in (11, 12, 13): group(gi, False)
    g.e("s_waitcnt vmcnt(0)")
    g.vm = []
    g.e("v_and_b32 v28, 15, v0")
    g.e("v_lshlrev_b32 v28, 1, v28")
    g.e("s_lshl_b32 s49, s3, 9")
    g.e("s_lshl_b32 s50, s42, 7")
    g.e("s_add_u32 s49, s49, s50")
    for tt in range(4): g.vmem(f"buffer_load_ushort v{12 + tt}, v28, s[12:15], s49 offen offset:{tt * 32}", "b")
    g.e("s_lshl_b32 s49, s3, 4")
    g.e("s_lshl_b32 s50, s42, 2")
    g.e("s_add_u32 s49, s49, s50")
    g.e("s_mul_i32 s45, s49, 28672")
    g.e("s_mul_i32 s46, s49, 159744")
    g.e(f"s_add_u32 s46, s46, {128 * 1024}")
    for tt in range(4):
        g.e(f"v_add_u32 v{16 + tt}, {tt * 28672}, v{V16}")
        g.e(f"v_add_u32 v{20 + tt}, {tt * 159744}, v{V16}")
    g.e("s_mul_i32 s47, s44, 14")
    g.e("s_mul_i32 s48, s41, 7")
    g.e("s_add_u32 s47, s47, s48")
    Z1R = 36
    def lin(fb):
        g.e(f"s_add_u32 s49, s47, {fb}")
        g.e("s_lshr_b32 s50, s49, 1")
        g.e("s_lshl_b32 s50, s50, 10")
        g.e("s_and_b32 s49, s49, 1")
        g.e("s_lshl_b32 s49, s49, 3")
        g.e("s_add_u32 s49, s49, s50")
    for fb in range(7):
        lin(fb)
        g.e("s_add_u32 s49, s49, s45")
        for tt in range(4):
            r = Z1R + (fb * 4 + tt) * 2
            g.vmem(f"buffer_load_dwordx2 v[{r}:{r + 1}], v{16 + tt}, s[28:31], s49 offen", ("z1", fb))
    g.wait_vm("b")
    for tt in range(4): g.e(f"v_lshlrev_b32 v{12 + tt}, 16, v{12 + tt}")
    for fb in range(7):
        lin(fb)
        g.e("s_add_u32 s49, s49, s46")
        for tt in range(4):
            a = acc(fb, tt)
            for r in range(4): g.e(f"v_add_f32 v{a + r}, v{a + r}, v{12 + tt}")
        g.wait_vm(("z1", fb))
        for tt in range(4):
            a = acc(fb, tt); z = Z1R + (fb * 4 + tt) * 2
            g.e(f"v_lshlrev_b32 v24, 16, v{z}")
            g.e(f"v_and_b32 v25, 0xffff0000, v{z}")
            g.e(f"v_lshlrev_b32 v26, 16, v{z + 1}")
            g.e(f"v_and_b32 v27, 0xffff0000, v{z + 1}")
            for r in range(4): g.e(f"v_mul_f32 v{a + r}, v{a + r}, v{24 + r}")
            g.e(f"PK {a},{a},{a + 1}"); g.e(f"PK {a + 1},{a + 2},{a + 3}")
            g.vmem(f"buffer_store_dwordx2 v[{a}:{a + 1}], v{20 + tt}, s[36:39], s49 offen", "st")
    g.stamp(3)
    g.stamp_dump(16, 17, 40, 1)
    g.e("s_endpgm")

def gen_k2(g):
    g.e(".p2align 8")
    g.e(".type k2_kernel,@function")
    g.label("k2_kernel")
    g.e("s_cmp_ge_u32 s2, 256")
    g.e("s_cbranch_scc1 L_k2_end")
    g.stamp(0)
    if PROF: g.e("s_memrealtime s[94:95]")
    g.e("s_load_dwordx2 s[4:5], s[0:1], 16")
    g.e("s_load_dwordx4 s[8:11], s[0:1], 64")
    g.e("s_load_dwordx2 s[16:17], s[0:1], 104")
    g.e("v_lshrrev_b32 v1, 6, v0")
    g.e("s_and_b32 s3, s2, 7")
    g.e("s_lshr_b32 s41, s2, 3")
    g.e("v_readfirstlane_b32 s40, v1")
    g.e("s_waitcnt lgkmcnt(0)")
    g.e("s_mov_b32 s6, s8")
    g.e("s_mov_b32 s7, s9")
    g.e("s_mov_b32 s8, s10")
    g.e("s_mov_b32 s9, s11")
    g.e("s_cmp_lt_u32 s41, 28")
    g.e("s_cbranch_scc1 L_k2_attn")
    g.e("s_branch L_k2_sp")
    g.label("L_k2_end")
    g.e("s_endpgm")
    gen_attn(g)
    gen_spatial(g)
```

```python
from asmlib import *
from k1 import tr_bases

RS = 272
WREG = 64 * RS
LDS = 8 * WREG
NVGPR = 208
ACC = 32
AR = 96
WF = 160
XR = 192
P = 4

def gen_k3(g):
    g.vm = []; g.ds = []
    g.e(".p2align 8")
    g.e(".type k3_kernel,@function")
    g.label("k3_kernel")
    g.e("s_cmp_ge_u32 s2, 256")
    g.e("s_cbranch_scc1 L_k3_end")
    g.stamp(0)
    if PROF: g.e("s_memrealtime s[94:95]")
    g.e("s_load_dwordx2 s[4:5], s[0:1], 0")
    g.e("s_load_dwordx2 s[6:7], s[0:1], 40")
    g.e("s_load_dwordx4 s[8:11], s[0:1], 80")
    g.e("s_load_dwordx2 s[16:17], s[0:1], 104")
    g.e("v_lshrrev_b32 v1, 6, v0")
    g.e("s_and_b32 s3, s2, 7")
    g.e("s_lshr_b32 s41, s2, 3")
    g.e("v_readfirstlane_b32 s40, v1")
    g.e("s_lshr_b32 s42, s41, 3")
    g.e("s_lshl_b32 s3, s3, 2")
    g.e("s_add_u32 s42, s42, s3")
    g.e("s_and_b32 s41, s41, 7")
    g.e("v_bfe_u32 v28, v0, 5, 1")
    g.e("v_bfe_u32 v29, v0, 2, 2")
    g.e("v_lshl_add_u32 v28, v28, 4, v29")
    g.e("v_lshlrev_b32 v28, 10, v28")
    g.e("v_bfe_u32 v29, v0, 4, 1")
    g.e("v_lshl_add_u32 v28, v29, 6, v28")
    g.e("s_lshl_b32 s49, s41, 7")
    g.e("v_add_u32 v28, s49, v28")
    g.e("v_and_b32 v29, 3, v0")
    g.e("v_xor_b32 v30, 2, v29")
    g.e("v_lshlrev_b32 v29, 4, v29")
    g.e("v_lshlrev_b32 v30, 4, v30")
    for j in range(4):
        g.e(f"v_add_u32 v31, {j * 4096 - j * 1024}, v28")
        g.e(f"v_add_u32 v{1 + j}, v31, v{29 + (j & 1)}")
    g.e("v_and_b32 v28, 63, v0")
    g.e("v_lshlrev_b32 v8, 4, v28")
    for rt in range(1, 4): g.e(f"v_add_u32 v{8 + rt}, {rt * 159744}, v8")
    g.e(f"s_mul_i32 s46, s40, {WREG}")
    g.e(f"s_mul_i32 s47, s42, {4 * 159744}")
    g.e("s_lshl_b32 s44, s40, 4")
    g.e("s_lshl_b32 s49, s40, 2")
    g.e("s_mul_i32 s50, s40, 3")
    g.e("s_add_u32 s50, s50, 4")
    g.e("s_cmp_lt_u32 s40, 4")
    g.e("s_cselect_b32 s45, s49, s50")
    g.e("s_waitcnt lgkmcnt(0)")
    srd(g, 20, 6, 7, 4096 * 1024)
    srd(g, 24, 8, 9, 896 * 1024)
    srd(g, 28, 16, 17, SZ_CTX, WS_CTX)
    srd(g, 32, 4, 5, 2 * MB)
    srd(g, 36, 10, 11, 2 * MB)

    def issue(t):
        if t >= 20: return
        if t < 16:
            g.e(f"s_add_u32 s49, s44, {t}")
            g.e("s_lshl_b32 s50, s49, 15")
            g.e("s_lshl_b32 s49, s49, 10")
            sw = 20
        else:
            g.e(f"s_add_u32 s49, s45, {t - 16}")
            g.e("s_min_u32 s49, s49, 27")
            g.e("s_lshl_b32 s50, s49, 15")
            g.e("s_lshl_b32 s49, s49, 10")
            g.e(f"s_add_u32 s49, s49, {128 * 1024}")
            sw = 24
        g.e("s_add_u32 s49, s49, s47")
        g.e(f"s_add_u32 m0, s46, {(t % P) * 4096}")
        for j in range(4):
            a = AR + (t % P) * 16 + j * 4
            g.vmem(f"buffer_load_dwordx4 v[{a}:{a + 3}], v{8 + j}, s[28:31], s49 offen", ("a", t))
            g.vmem(f"buffer_load_dwordx4 v{1 + j}, s[{sw}:{sw + 3}], s50 offen offset:{j * 1024} lds", ("a", t))
    def wread(t):
        if t >= 20: return
        g.wait_vm(("a", t))
        for cb in range(4):
            for a in range(2):
                g.lds(f"TR {WF + (t & 1) * 16 + cb * 4 + 2 * a},{6 if cb & 1 else 5},{(t % P) * 4096 + a * 512 + (cb >> 1) * 256}", ("w", t, cb))
    code_touch(g, 52, 15, "L_all_end")
    for t in range(P): issue(t)
    tr_bases(g, 5, 6)
    g.e("v_add_u32 v5, s46, v5")
    g.e("v_add_u32 v6, s46, v6")
    g.e("v_lshrrev_b32 v28, 3, v0")
    g.e("v_and_b32 v29, 7, v0")
    g.e(f"v_mul_u32_u24 v12, {RS}, v28")
    g.e("v_lshl_add_u32 v12, v29, 5, v12")
    g.e("v_lshlrev_b32 v13, 10, v28")
    g.e("v_lshl_add_u32 v13, v29, 4, v13")
    g.e("s_lshl_b32 s48, s42, 16")
    g.e("s_lshl_b32 s49, s41, 7")
    g.e("s_add_u32 s48, s48, s49")
    g.e("v_and_b32 v28, 15, v0")
    g.e(f"v_mul_u32_u24 v14, {RS}, v28")
    g.e("v_bfe_u32 v29, v0, 4, 2")
    g.e("v_lshl_add_u32 v14, v29, 4, v14")
    g.e("v_add_u32 v14, s46, v14")
    g.stamp(1)
    wread(0)
    skip = g.newlabel("k3skip")
    for t in range(20):
        if t == 19:
            g.e("s_cmp_ge_u32 s40, 4")
            g.e(f"s_cbranch_scc1 {skip}")
        wread(t + 1)
        for cb in range(4):
            g.wait_ds(("w", t, cb))
            for rt in range(4):
                op = "MZ" if t == 0 else "M"
                g.e(f"{op} {ACC + (cb * 4 + rt) * 4},{WF + (t & 1) * 16 + cb * 4},{AR + (t % P) * 16 + rt * 4}")
        issue(t + P)
        if t == 14:
            g.vmem(f"buffer_load_dwordx4 v[{XR}:{XR + 3}], v13, s[32:35], s48 offen", "x")
        if t in (0, 4, 9, 14): g.stamp({0: 2, 4: 3, 9: 4, 14: 5}[t])
    g.label(skip)
    g.stamp(6)
    g.wait_all()
    g.e("s_nop 7")
    for cb in range(4):
        for rt in range(4):
            g.e(f"DW 14,{ACC + (cb * 4 + rt) * 4},{rt * 16 * RS + cb * 64}")
    g.e("s_waitcnt lgkmcnt(0)")
    g.e("s_barrier")
    g.stamp(7)
    g.e(f"v_add_u32 v15, {4 * WREG}, v12")
    for w in range(8):
        for h in range(2):
            g.lds(f"DR {ACC + w * 8 + h * 4},{12 if w < 4 else 15},{(w % 4) * WREG + h * 16}", ("p", w))
    for i in range(4):
        g.e(f"v_lshlrev_b32 v{16 + 2 * i}, 16, v{XR + i}")
        g.e(f"v_and_b32 v{17 + 2 * i}, 0xffff0000, v{XR + i}")
    for w in range(8):
        g.wait_ds(("p", w))
        for i in range(8):
            g.e(f"v_add_f32 v{16 + i}, v{16 + i}, v{ACC + w * 8 + i}")
    for i in range(4):
        g.e(f"PK {24 + i},{16 + 2 * i},{17 + 2 * i}")
    g.e("buffer_store_dwordx4 v[24:27], v13, s[36:39], s48 offen")
    g.stamp(8)
    g.stamp_dump(16, 17, 40, 2)
    g.label("L_k3_end")
    g.e("s_endpgm")
    g.label("L_all_end")
```

```python
import sys
from asmlib import *
import k1
NAME = "parallel_sum__compressed_kv_cla__mixer_gmlp__prompt"
HDR = open(f"cdna_kernels/{NAME}.s.ref").read().split("\n")
HDR = [l for l in HDR if l.startswith(";   offset") or l.startswith("; Kernarg")]
def build(kernels):
    g = G()
    launches = []
    kds = []
    if "k1" in kernels:
        k1.gen_k1(g); launches.append("; @launch kernel=k1_kernel grid=(256,1,1) block=(512,1,1) lds=163840"); kds.append(kd("k1_kernel", 256))
    if "k2" in kernels:
        import k2
        k2.gen_k2(g); launches.append("; @launch kernel=k2_kernel grid=(256,1,1) block=(512,1,1) lds=163840"); kds.append(kd("k2_kernel", 256))
    if "k3" in kernels:
        import k3
        k3.gen_k3(g); launches.append(f"; @launch kernel=k3_kernel grid=(256,1,1) block=(512,1,1) lds={k3.LDS}"); kds.append(kd("k3_kernel", k3.NVGPR))
    out = "\n".join(HDR + launches) + "\n"
    out += '.amdgcn_target "amdgcn-amd-amdhsa--gfx950"\n' + MACROS + ".text\n" + g.text()
    out += '.section .rodata,"a"\n'
    for k in kds: out += ".p2align 6" + k
    return out
if __name__ == "__main__":
    ks = sys.argv[2].split(",") if len(sys.argv) > 2 else ["k1", "k2", "k3"]
    open(sys.argv[1], "w").write(build(ks))
```

```python
import struct, os
PROF = int(os.environ.get('PROF', '0'))

def f32(x):
    return struct.unpack('<I', struct.pack('<f', x))[0]

class G:
    def __init__(self):
        self.lines = []
        self.vm = []
        self.ds = []
        self.uid = 0
    def e(self, s):
        self.lines.append(s)
    def label(self, name):
        self.lines.append(name + ":")
    def newlabel(self, base):
        self.uid += 1
        return f"L_{base}_{self.uid}"
    def vmem(self, s, tag=None):
        self.lines.append(s); self.vm.append(tag)
    def lds(self, s, tag=None):
        self.lines.append(s); self.ds.append(tag)
    def _need(self, lst, tags):
        idx = -1
        for i, t in enumerate(lst):
            if t in tags: idx = i
        return idx
    def wait_vm(self, *tags):
        idx = self._need(self.vm, tags)
        if idx < 0: return
        n = min(len(self.vm) - 1 - idx, 63)
        self.lines.append(f"s_waitcnt vmcnt({n})")
        self.vm = self.vm[len(self.vm) - n:] if n else []
    def wait_ds(self, *tags):
        idx = self._need(self.ds, tags)
        if idx < 0: return
        n = min(len(self.ds) - 1 - idx, 15)
        self.lines.append(f"s_waitcnt lgkmcnt({n})")
        self.ds = self.ds[len(self.ds) - n:] if n else []
    def wait_all(self, vm=True, ds=True):
        if vm and ds: self.lines.append("s_waitcnt vmcnt(0) lgkmcnt(0)")
        elif vm: self.lines.append("s_waitcnt vmcnt(0)")
        elif ds: self.lines.append("s_waitcnt lgkmcnt(0)")
        if vm: self.vm = []
        if ds: self.ds = []
    def stamp(self, i):
        if PROF: self.lines.append(f"s_memtime s[{64 + 2 * i}:{65 + 2 * i}]")
    def stamp_if(self, i, sreg, val):
        if PROF < 2: return
        l = self.newlabel("st")
        self.e(f"s_cmp_lg_u32 s{sreg}, {val}")
        self.e(f"s_cbranch_scc1 {l}")
        self.stamp(i)
        self.label(l)
    def stamp_dump(self, wslo, wshi, swave, kidx, n=16):
        if not PROF: return
        e = self.e
        e("s_memrealtime s[98:99]")
        e("s_waitcnt vmcnt(0) lgkmcnt(0)")
        e("s_memtime s[96:97]")
        e("s_waitcnt lgkmcnt(0)")
        e(f"s_add_u32 s60, s{wslo}, {WS_DBG + kidx * MB}")
        e(f"s_addc_u32 s61, s{wshi}, 0")
        e(f"s_mov_b32 s62, {MB}")
        e("s_mov_b32 s63, 0x20000")
        e("s_lshl_b32 s59, s2, 10")
        e(f"s_lshl_b32 s58, s{swave}, 7")
        e("s_add_u32 s59, s59, s58")
        e("v_and_b32 v1, 63, v0") if False else None
        e("v_mbcnt_lo_u32_b32 v1, -1, 0")
        e("v_mbcnt_hi_u32_b32 v1, -1, v1")
        e("v_lshlrev_b32 v1, 24, v1")
        for i in range(n + 2):
            e(f"v_mov_b32 v2, s{64 + 2 * i}")
            e(f"buffer_store_dword v2, v1, s[60:63], s59 offen offset:{4 * i}")
            e("s_nop 1")
    def text(self):
        return "\n".join(self.lines) + "\n"

MACROS = r"""
.macro M d,a,b
v_mfma_f32_16x16x32_bf16 v[\d:\d+3],v[\a:\a+3],v[\b:\b+3],v[\d:\d+3]
.endm
.macro MZ d,a,b
v_mfma_f32_16x16x32_bf16 v[\d:\d+3],v[\a:\a+3],v[\b:\b+3],0
.endm
.macro MC d,a,b,c
v_mfma_f32_16x16x32_bf16 v[\d:\d+3],v[\a:\a+3],v[\b:\b+3],v[\c:\c+3]
.endm
.macro TR d,a,o
ds_read_b64_tr_b16 v[\d:\d+1],v\a offset:\o
.endm
.macro DR d,a,o
ds_read_b128 v[\d:\d+3],v\a offset:\o
.endm
.macro DW a,d,o
ds_write_b128 v\a,v[\d:\d+3] offset:\o
.endm
.macro PK d,a,b
v_cvt_pk_bf16_f32 v\d,v\a,v\b
.endm
"""

def kd(name, vgpr, sgpr=102):
    acc = (vgpr + 3) // 4 * 4
    return f"""
.amdhsa_kernel {name}
  .amdhsa_next_free_vgpr {vgpr}
  .amdhsa_next_free_sgpr {sgpr}
  .amdhsa_accum_offset {acc}
  .amdhsa_group_segment_fixed_size 0
  .amdhsa_kernarg_size 112
  .amdhsa_user_sgpr_count 2
  .amdhsa_user_sgpr_kernarg_segment_ptr 1
  .amdhsa_system_sgpr_workgroup_id_x 1
.end_amdhsa_kernel
"""

def srd(g, s, lo, hi, size, off=0):
    if off:
        g.e(f"s_add_u32 s{s}, s{lo}, {off}")
        g.e(f"s_addc_u32 s{s+1}, s{hi}, 0")
    else:
        g.e(f"s_mov_b32 s{s}, s{lo}")
        g.e(f"s_mov_b32 s{s+1}, s{hi}")
    g.e(f"s_mov_b32 s{s+2}, {size}")
    g.e(f"s_mov_b32 s{s+3}, 0x20000")

MB = 1 << 20
WS_XN = 0
WS_K = 2 * MB
WS_V = 18 * MB
WS_Z1 = 34 * MB
WS_Z2 = 38 * MB
WS_ST = 42 * MB
WS_CTX = 44 * MB
SZ_XN = 2 * MB
SZ_KV = 16 * MB
SZ_Z = 2048 * 896 * 2
SZ_ST = 3 * 2048 * 8
SZ_CTX = 128 * 156 * 1024
WS_DBG = 200 * MB
WS_SCR = 64 * MB
SZ_SCR = 32 * MB
```

```python
from asmlib import *
import math

XR = 128
ACC = [64, 96]
WR = 32
D = 6
C2 = -2.0 * math.sqrt(2.0 / math.pi) * math.log2(math.e)
C1 = C2 * 0.044715
NPKV = int(os.environ.get('NPKV', '6'))
NPZ = int(os.environ.get('NPZ', '3'))
GKV = -(-64 // NPKV); GZ = -(-14 // NPZ)
assert 2 * GKV + 2 * GZ <= 32
NTW = os.environ.get('NTW', 'nt')
TOUCH = int(os.environ.get('TOUCH', '0'))
PF = int(os.environ.get('PF', '108'))
ROT = int(os.environ.get('ROT', '1'))
STF = os.environ.get('STF', '')

def xreg(a, m): return XR + (m * 2 + a) * 4
def areg(st, cb, a): return ACC[st] + (cb * 2 + a) * 4

def w_voffsets(g, rowstride, vbase, srot):
    g.e("v_bfe_u32 v28, v0, 5, 1")
    g.e("v_bfe_u32 v29, v0, 2, 2")
    g.e("v_lshl_add_u32 v28, v28, 2, v29")
    g.e(f"s_lshl_b32 s49, s{srot}, 1")
    g.e("s_add_u32 s49, s49, s40")
    g.e("s_and_b32 s49, s49, 7")
    g.e("s_lshl_b32 s49, s49, 5")
    g.e("v_add_u32 v28, s49, v28")
    g.e(f"s_mov_b32 s49, {rowstride}")
    g.e("v_mul_lo_u32 v28, v28, s49")
    g.e("v_bfe_u32 v29, v0, 4, 1")
    g.e("v_lshl_add_u32 v28, v29, 6, v28")
    g.e("v_and_b32 v29, 3, v0")
    g.e("v_xor_b32 v30, 2, v29")
    g.e("v_lshlrev_b32 v29, 4, v29")
    g.e("v_lshlrev_b32 v30, 4, v30")
    for j in range(4):
        g.e(f"v_add_u32 v31, {j * 8 * rowstride - j * 1024}, v28")
        g.e(f"v_add_u32 v{vbase + j}, v31, v{29 + (j & 1)}")

def tr_bases(g, ve, vo):
    g.e("v_bfe_u32 v28, v0, 4, 2")
    g.e("v_lshlrev_b32 v29, 10, v28")
    g.e("v_bfe_u32 v30, v0, 2, 2")
    g.e("v_lshl_add_u32 v29, v30, 6, v29")
    g.e("v_and_b32 v30, 3, v0")
    g.e("v_lshl_add_u32 v29, v30, 3, v29")
    g.e("v_and_b32 v28, 1, v28")
    g.e(f"v_lshl_add_u32 v{ve}, v28, 5, v29")
    g.e(f"v_xor_b32 v{vo}, 32, v{ve}")

def gelu_ops(regs, T, vc2, sc1, stats=None):
    out = []
    n = len(T)
    for i in range(0, len(regs), n):
        grp = list(zip(regs[i:i + n], T))
        out += [f"v_mul_f32 v{t}, v{x}, v{x}" for x, t in grp]
        out += [f"v_fma_f32 v{t}, v{t}, s{sc1}, v{vc2}" for x, t in grp]
        out += [f"v_mul_f32 v{t}, v{t}, v{x}" for x, t in grp]
        out += [f"v_exp_f32 v{t}, v{t}" for x, t in grp]
        out += [f"v_add_f32 v{t}, 1.0, v{t}" for x, t in grp]
        out += [f"v_rcp_f32 v{t}, v{t}" for x, t in grp]
        out += [f"v_mul_f32 v{x}, v{x}, v{t}" for x, t in grp]
        if stats:
            out += [f"v_add_f32 v{stats[x][0]}, v{stats[x][0]}, v{x}" for x, t in grp]
            out += [f"v_fmac_f32 v{stats[x][1]}, v{x}, v{x}" for x, t in grp]
    return out

def ln_params(g, MEAN, VAR, n):
    def rbf(rs):
        for r in rs: g.e(f"PK {r},{r},{r}")
        for r in rs: g.e(f"v_and_b32 v{r}, 0xffff0000, v{r}")
    for m, v in zip(MEAN, VAR):
        g.e(f"v_mul_f32 v{m}, {f32(1 / n)}, v{m}")
        g.e(f"v_mul_f32 v{v}, {f32(1 / n)}, v{v}")
    for m, v in zip(MEAN, VAR): g.e(f"v_fma_f32 v{v}, -v{m}, v{m}, v{v}")
    for v in VAR: g.e(f"v_max_f32 v{v}, 0, v{v}")
    rbf(list(MEAN) + list(VAR))
    for v in VAR: g.e(f"v_add_f32 v{v}, {f32(1e-5)}, v{v}")
    rbf(VAR)
    for v in VAR: g.e(f"v_sqrt_f32 v{v}, v{v}")
    g.e("s_nop 0")
    rbf(VAR)
    for v in VAR: g.e(f"v_rcp_f32 v{v}, v{v}")
    g.e("s_nop 0")
    for m, v in zip(MEAN, VAR): g.e(f"v_mul_f32 v{m}, v{m}, v{v}")

def gen_type(g, T):
    ktype = T in ("K", "Z1")
    ztype = T in ("Z1", "Z2")
    rowstride = 3584 if ztype else 8192
    NP = NPZ if ztype else NPKV
    NTOT = 14 if ztype else 64
    NG = GZ if ztype else GKV
    NS = NTOT - (NG - 1) * NP
    assert NS >= 2
    VW = 1
    VTE, VTO = 5, 6
    VST = 7
    VC2 = 8
    VXA = 20
    VXR = (9, 11, 24)
    TMP = [9, 10, 11, 12]
    STAT = 16
    g.vm = []; g.ds = []
    g.label(f"L_k1_{T}")
    g0 = {"K": 0, "V": GKV, "Z1": 2 * GKV, "Z2": 2 * GKV + GZ}[T]
    g.e(f"s_sub_u32 s42, s3, {g0}")
    if T == "K": srd(g, 20, 10, 11, 512 * 8192)
    if T == "V": srd(g, 20, 12, 13, 512 * 8192)
    if ztype: srd(g, 20, 14, 15, 512 * 3584)
    if ztype: srd(g, 24, 4, 5, 2 * MB)
    else: srd(g, 24, 6, 7, 2 * MB)
    colbase = 1792 if T == "Z2" else 0
    g.e(f"s_mul_i32 s44, s42, {NP * 128}")
    if colbase: g.e(f"s_add_u32 s44, s44, {colbase}")
    g.e(f"s_mov_b32 s45, {colbase + (NTOT - 1) * 128}")
    g.e("s_lshl_b32 s46, s40, 12")
    g.e("s_bfe_u32 s54, s2, 0x20005" if ROT else "s_mov_b32 s54, 0")
    g.e("s_bfe_u32 s55, s2, 0x10007" if (ztype and ROT) else "s_mov_b32 s55, 0")
    g.e(f"s_mul_i32 s56, s55, {256 * rowstride}")
    g.e(f"s_sub_u32 s57, {256 * rowstride}, s56")
    def xoff(dst, q, shift):
        g.e(f"s_add_u32 s{dst}, s54, {q & 3}")
        g.e(f"s_and_b32 s{dst}, s{dst}, 3")
        g.e(f"s_xor_b32 s48, s55, {q >> 2}")
        g.e(f"s_lshl_b32 s48, s48, 2")
        g.e(f"s_add_u32 s{dst}, s{dst}, s48")
        g.e(f"s_lshl_b32 s{dst}, s{dst}, {shift}")
    g.e("v_bfe_u32 v28, v0, 3, 3")
    g.e("v_and_b32 v29, 7, v0")
    g.e("v_lshrrev_b32 v30, 1, v28")
    g.e("v_xor_b32 v29, v29, v30")
    if T == "Z2":
        g.e("v_lshrrev_b32 v30, 2, v28")
        g.e("v_and_b32 v28, 3, v28")
        g.e("v_lshl_add_u32 v28, v30, 3, v28")
        rowoff = [0, 16, 4, 20]
    else:
        rowoff = [0, 8, 16, 24]
    g.e("s_lshl_b32 s49, s41, 8")
    g.e("s_lshl_b32 s50, s40, 5")
    g.e("s_add_u32 s49, s49, s50")
    g.e("v_add_u32 v28, s49, v28")
    g.e("v_lshlrev_b32 v28, 10, v28")
    g.e("v_xor_b32 v30, 4, v29")
    g.e("v_lshl_add_u32 v29, v29, 4, v28")
    g.e("v_lshl_add_u32 v30, v30, 4, v28")
    for i in range(4): g.e(f"v_add_u32 v{VXA + i}, {rowoff[i] * 1024 - i * 1024}, v{29 + (i & 1)}")

    order = [(0, 0), (1, 0), (0, 1), (1, 1)] if not ztype else [(0, 0), (0, 1), (1, 0), (1, 1)]
    for p in range(2, NP): order += [(p, 0), (p, 1)]
    NST = len(order)
    XPOS = [2, 3, 4, 2, 3, 4, 3, 4] if not ztype else [0, 1, 2, 3, 4, 0, 1, 2]

    def xdma_ops(q):
        ops = []
        for i in range(4):
            def op(i=i):
                if i == 0: xoff(43, q, 7)
                g.e(f"s_add_u32 m0, s46, {XPOS[q] * 32768}")
                g.e("s_nop 0")
                g.vmem(f"buffer_load_dwordx4 v{VXA + i}, s[24:27], s43 offen offset:{i * 1024} lds", ("x", q))
            ops.append(op)
        return ops
    def xdma(q):
        for op in xdma_ops(q): op()
    def xread(q):
        g.wait_vm(("x", q))
        for ks in range(2):
            for a in range(2):
                g.lds(f"DR {xreg(a, 2 * q + ks)},{VXR[XPOS[q] >> 1] + ks},{(XPOS[q] & 1) * 32768 + a * 2048}", ("x", q))
    def wdma_ops(s, sr=51):
        if s >= NST: return []
        p, kh = order[s]
        ops = []
        for j in range(4):
            def op(j=j):
                if j == 0:
                    g.e(f"s_add_u32 s{sr}, s44, {p * 128}")
                    g.e(f"s_min_u32 s{sr}, s{sr}, s45")
                    g.e(f"s_add_u32 s{sr}, s{sr}, s{57 if kh else 56}")
                g.e(f"s_add_u32 m0, s46, {(s % 4) * 32768}")
                g.e("s_nop 0")
                g.vmem(f"buffer_load_dwordx4 v{VW + j}, s[20:23], s{sr} offen offset:{j * 1024} {NTW} lds", ("w", s))
            ops.append(op)
        return ops
    def wdma(s):
        for op in wdma_ops(s, 47): op()

    if TOUCH:
        g.e("s_lshr_b32 s49, s2, 5")
        g.e("v_bfe_u32 v28, v0, 5, 1")
        g.e("v_lshl_add_u32 v28, v28, 2, s49")
        g.e("v_and_b32 v28, 7, v28")
        g.e("v_lshlrev_b32 v28, 15, v28")
        g.e("v_and_b32 v29, 31, v0")
        g.e("v_lshl_add_u32 v28, v29, 7, v28")
        g.e("s_lshl_b32 s49, s41, 18")
        g.e("s_add_u32 s49, s49, s46")
        if TOUCH & 1: g.vmem("buffer_load_dword v14, v28, s[24:27], s49 offen", "t")
        g.e("s_bfe_u32 s49, s2, 0x20003")
        g.e("s_lshl_b32 s49, s49, 7")
        g.e("s_lshl_b32 s50, s40, 4")
        g.e("s_add_u32 s49, s49, s50")
        g.e("v_bfe_u32 v28, v0, 1, 4")
        g.e("v_add_u32 v28, s49, v28")
        g.e(f"v_mul_u32_u24 v28, {rowstride}, v28")
        g.e("v_and_b32 v29, 1, v0")
        g.e("v_lshl_add_u32 v28, v29, 7, v28")
        g.e("v_bfe_u32 v29, v0, 5, 1")
        g.e(f"v_lshl_add_u32 v28, v29, {8 if TOUCH & 4 else 30}, v28")
        if TOUCH & 2: g.vmem(f"buffer_load_dword v15, v28, s[20:23], s44 offen {NTW}", "t")
    if ztype:
        xdma(0); xdma(1)
        g.e("s_barrier")
        xdma(2); xdma(3); xdma(4)
        w_voffsets(g, rowstride, VW, 54)
    else:
        w_voffsets(g, rowstride, VW, 54)
        g.stamp(11)
        wdma(0); xdma(0)
        g.stamp(14)
        g.e("s_barrier")
        xdma(1)
    off, sz = {"K": (WS_K, SZ_KV), "V": (WS_V, SZ_KV), "Z1": (WS_Z1, SZ_Z), "Z2": (WS_Z2, SZ_Z)}[T]
    srd(g, 28, 16, 17, sz, off)
    tr_bases(g, VTE, VTO)
    g.e("v_and_b32 v28, 63, v0")
    g.e(f"v_lshlrev_b32 v{VST}, 4, v28")
    g.e("v_and_b32 v28, 15, v0")
    g.e("v_bfe_u32 v29, v0, 4, 2")
    g.e("v_lshrrev_b32 v30, 1, v28")
    g.e("v_xor_b32 v29, v29, v30")
    g.e("v_lshlrev_b32 v29, 4, v29")
    g.e("v_lshl_add_u32 v29, v28, 7, v29")
    g.e(f"v_add_u32 v{VXR[0]}, s46, v29")
    g.e(f"v_xor_b32 v{VXR[0] + 1}, 64, v{VXR[0]}")
    for k in (1, 2):
        for ks in range(2): g.e(f"v_add_u32 v{VXR[k] + ks}, {k * 0x10000}, v{VXR[0] + ks}")

    if ztype:
        ONES = 32
        SUM = (64, 68); GR = (72, 76)
        for i in range(4): g.e(f"v_mov_b32 v{ONES + i}, 0x3f803f80")
        g.e(f"s_mov_b32 s52, {f32(C1)}")
        g.e(f"v_mov_b32 v{VC2}, {f32(C2)}")
        seq = [0, 1, 2, 3, 4, 5, 6, 7]
        if PROF == 3: g.stamp(2)
        xread(seq[0])
        for qi, q in enumerate(seq):
            g.wait_ds(("x", q))
            if PROF == 3: g.stamp(3 + q)
            if q < 3: xdma(q + 5)
            if q >= 5: wdma(q - 5)
            if qi < 7: xread(seq[qi + 1])
            for m in (2 * q, 2 * q + 1):
                op = "MZ" if (qi == 0 and m == 2 * q) else "M"
                for a in range(2): g.e(f"{op} {SUM[a]},{ONES},{xreg(a, m)}")
                for a in range(2): g.e(f"{op} {GR[a]},{xreg(a, m)},{xreg(a, m)}")
        S1, S2 = (96, 97), (14, 15)
        NT = 100
        g.e("v_and_b32 v28, 15, v0")
        g.e("v_bfe_u32 v29, v0, 4, 2")
        g.e("v_lshlrev_b32 v29, 2, v29")
        g.e("v_sub_u32 v28, v28, v29")
        for r in range(4): g.e(f"v_cmp_eq_u32 s[{32 + 2 * r}:{33 + 2 * r}], {r}, v28")
        g.e("s_nop 3")
        for a in range(2):
            g.e(f"v_mov_b32 v{S1[a]}, v{SUM[a]}")
            g.e(f"v_cndmask_b32 v{S2[a]}, 0, v{GR[a]}, s[32:33]")
        for r in range(1, 4):
            for a in range(2): g.e(f"v_cndmask_b32 v{S2[a]}, v{S2[a]}, v{GR[a] + r}, s[{32 + 2 * r}:{33 + 2 * r}]")
        for sw in ("v_permlane32_swap_b32", "v_permlane16_swap_b32"):
            for i in range(2): g.e(f"v_mov_b32 v{16 + i}, v{14 + i}")
            g.e("s_nop 1")
            for i in range(2): g.e(f"{sw} v{16 + i}, v{14 + i}")
            g.e("s_nop 1")
            for i in range(2): g.e(f"v_add_f32 v{14 + i}, v{14 + i}, v{16 + i}")
        ln_params(g, S1, S2, 512)
        if PROF == 3: g.stamp(11)
        g.e("s_mov_b32 s53, 0xffff0000")
        def norm_ops(m):
            ops = []
            for a in range(2):
                x = xreg(a, m)
                ops += [f"v_lshlrev_b32 v{NT + i}, 16, v{x + i}" for i in range(4)]
                ops += [f"v_and_b32 v{x + i}, s53, v{x + i}" for i in range(4)]
                ops += [f"v_fma_f32 v{NT + i}, v{NT + i}, v{S2[a]}, -v{S1[a]}" for i in range(4)]
                ops += [f"v_fma_f32 v{x + i}, v{x + i}, v{S2[a]}, -v{S1[a]}" for i in range(4)]
                ops += [f"PK {x + i},{NT + i},{x + i}" for i in range(4)]
            return ops
        for op in norm_ops(0): g.e(op)
        if T == "Z2":
            for i in range(16): g.e(f"v_mov_b32 v{STAT + i}, 0")
    def xn_store():
        skip = g.newlabel("noxn")
        g.e(f"s_cmp_lg_u32 s42, {NG - 1}")
        g.e(f"s_cbranch_scc1 {skip}")
        srd(g, 32, 16, 17, SZ_XN, WS_XN)
        g.e("s_lshl_b32 s49, s41, 18")
        g.e("s_lshl_b32 s50, s40, 15")
        g.e("s_add_u32 s49, s49, s50")
        for q in range(8):
            xoff(43, q, 11)
            g.e("s_add_u32 s43, s43, s49")
            g.e("s_add_u32 s50, s43, 16384")
            for a in range(2):
                for i in range(2):
                    x = xreg(a, 2 * q + i)
                    g.e(f"buffer_store_dwordx4 v[{x}:{x + 3}], v{VST}, s[32:35], s{50 if a else 43} offen offset:{i * 1024} {STF}")
        g.label(skip)

    def outbase(I, p):
        I(f"s_mul_i32 s48, s42, {NP}")
        I(f"s_add_u32 s48, s48, {p}")
        if T in ("K", "V"):
            I("s_lshr_b32 s49, s48, 1")
            I("s_lshl_b32 s49, s49, 19")
            I("s_and_b32 s48, s48, 1")
            I(f"s_lshl_b32 s48, s48, {11 if T == 'K' else 12}")
            I("s_add_u32 s48, s48, s49")
            I("s_lshl_b32 s49, s41, 16")
            I("s_add_u32 s48, s48, s49")
            I("s_lshl_b32 s49, s40, 13")
            I("s_add_u32 s48, s48, s49")
            I("s_add_u32 s50, s48, 4096")
        else:
            I(f"s_lshl_b32 s48, s48, {11 if T == 'Z1' else 12}")
            I("s_lshl_b32 s49, s41, 3")
            I("s_add_u32 s49, s49, s40")
            I("s_mul_i32 s49, s49, 57344")
            I("s_add_u32 s48, s48, s49")
            I("s_add_u32 s50, s48, 28672")

    ZPARK = 131072
    def epilogue(p, last=False):
        st = p & 1
        ops = []
        def I(s): ops.append(lambda s=s: g.e(s))
        if T != "Z2": outbase(I, p)
        frags = []
        if ktype:
            for a in range(2):
                for mm in range(2):
                    frags.append((areg(st, 2 * mm, a), areg(st, 2 * mm + 1, a), 50 if a else 48, mm * 1024))
        else:
            for cb in range(4):
                frags.append((areg(st, cb, 0), areg(st, cb, 1), 48, cb * 1024))
        for (x, y, so, io) in frags:
            if ztype:
                stats = None
                if T == "Z2":
                    stats = {}
                    for r in range(4):
                        stats[x + r] = (STAT + 2 * r, STAT + 2 * r + 1)
                        stats[y + r] = (STAT + 8 + 2 * r, STAT + 8 + 2 * r + 1)
                for s in gelu_ops([x, x + 1, x + 2, x + 3, y, y + 1, y + 2, y + 3], TMP, VC2, 52, stats): I(s)
            I(f"PK {x},{x},{x + 1}"); I(f"PK {x + 1},{x + 2},{x + 3}")
            I(f"PK {x + 2},{y},{y + 1}"); I(f"PK {x + 3},{y + 2},{y + 3}")
            if T == "Z2":
                if p == 0: ops.append(lambda x=x, io=io: g.lds(f"DW 13,{x},{io}", "park"))
            else:
                ops.append(lambda x=x, so=so, io=io: g.vmem(
                    f"buffer_store_dwordx4 v[{x}:{x + 3}], v{VST}, s[28:31], s{so} offen offset:{io} {STF}", "st"))
        return ops
    if T == "Z2":
        assert NP <= 3
        g.e(f"s_add_u32 s49, s46, {ZPARK}")
        g.e(f"v_add_u32 v13, s49, v{VST}")

    def final(p):
        g.stamp(12)
        g.e("s_nop 7")
        if T == "Z1": xn_store()
        for op in epilogue(p): op()
        if T == "Z2":
            for sh in (8, 4, 2, 1):
                g.e("s_nop 1")
                for i in range(16):
                    g.e(f"v_add_f32_dpp v{STAT + i}, v{STAT + i}, v{STAT + i} row_ror:{sh} row_mask:0xf bank_mask:0xf")
            srd(g, 36, 16, 17, GZ * 16384, WS_ST)
            g.e("v_bfe_u32 v9, v0, 4, 2")
            g.e("v_lshlrev_b32 v9, 6, v9")
            g.e("v_and_b32 v10, 15, v0")
            g.e("v_lshl_add_u32 v10, v10, 24, v9")
            g.e("s_lshl_b32 s50, s41, 11")
            g.e("s_lshl_b32 s49, s40, 8")
            g.e("s_add_u32 s50, s50, s49")
            g.e("s_lshl_b32 s49, s42, 14")
            g.e("s_add_u32 s49, s49, s50")
            for i in range(4):
                g.e(f"buffer_store_dwordx4 v[{STAT + 4 * i}:{STAT + 4 * i + 3}], v10, s[36:39], s49 offen offset:{16 * i} sc1")
            for i in range(4): g.e(f"DR {XR + 4 * i},13,{i * 1024}")
            srd(g, 32, 18, 19, 256)
            g.e("s_lshl_b32 s49, s41, 5")
            g.e("v_mov_b32 v11, 1")
            g.e(f"v_lshlrev_b32 v12, 20, v{VST}")
            g.e("v_and_b32 v10, 31, v0")
            g.e("v_lshlrev_b32 v10, 3, v10")
            spin = g.newlabel("spin"); done = g.newlabel("sdone")
            g.e("s_waitcnt vmcnt(0)")
            g.e("s_barrier")
            g.e("s_cmp_lg_u32 s40, 0")
            g.e(f"s_cbranch_scc1 {done}")
            g.e("buffer_atomic_add v11, v12, s[32:35], s49 offen sc1")
            g.label(spin)
            g.e("buffer_load_dword v11, v12, s[32:35], s49 offen sc1")
            g.e("s_waitcnt vmcnt(0)")
            g.e("v_readfirstlane_b32 s51, v11")
            g.e(f"s_cmp_ge_u32 s51, {GZ}")
            g.e(f"s_cbranch_scc1 {done}")
            g.e("s_sleep 4")
            g.e(f"s_branch {spin}")
            g.label(done)
            g.e("s_barrier")
            g.stamp(14)
            PB = 160
            for q in range(GZ):
                g.e(f"s_add_u32 s49, s50, {q * 16384}")
                g.e(f"buffer_load_dwordx2 v[{PB + 2 * q}:{PB + 2 * q + 1}], v10, s[36:39], s49 offen sc1")
            g.e(f"s_add_u32 s49, s46, {ZPARK}")
            g.e("v_add_u32 v10, s49, v10")
            g.e("v_add_u32 v9, s49, v9")
            g.e("s_waitcnt vmcnt(0) lgkmcnt(0)")
            for q in range(1, GZ):
                for i in range(2): g.e(f"v_add_f32 v{PB + i}, v{PB + i}, v{PB + 2 * q + i}")
            ln_params(g, [PB], [PB + 1], 896)
            g.e(f"ds_write_b64 v10, v[{PB}:{PB + 1}]")
            g.e("s_waitcnt lgkmcnt(0)")
            for i in range(4): g.e(f"DR {PB + 4 * i},9,{16 * i}")
            g.e("s_waitcnt lgkmcnt(0)")
            MEAN = [PB + 2 * e for e in range(8)]; VAR = [PB + 2 * e + 1 for e in range(8)]
            for pp in range(p + 1):
                outbase(g.e, pp)
                for cb in range(4):
                    x = XR + 4 * cb if pp == 0 else areg(pp & 1, cb, 0)
                    t = 16 + (cb & 1) * 8
                    for r in range(4): g.e(f"v_lshlrev_b32 v{t + 2 * r}, 16, v{x + r}")
                    for r in range(4): g.e(f"v_and_b32 v{t + 2 * r + 1}, s53, v{x + r}")
                    for e in range(8): g.e(f"v_fma_f32 v{t + e}, v{t + e}, v{VAR[e]}, -v{MEAN[e]}")
                    for r in range(4): g.e(f"PK {x + r},{t + 2 * r},{t + 2 * r + 1}")
                    g.e(f"buffer_store_dwordx4 v[{x}:{x + 3}], v{VST}, s[28:31], s48 offen offset:{cb * 1024} {STF}")
        g.stamp(13)
        g.stamp_dump(16, 17, 40, 0)
        g.e("s_endpgm")

    pend = []
    def wread(F, half=None):
        s, f = F >> 5, F & 31
        if s >= NST: return
        if f == 0 and half != 1:
            assert not pend
            g.wait_vm(("w", s))
            g.e("s_barrier")
            if s >= 2 and s % 2 == 0:
                g.e(f"v_xor_b32 v{VTE}, 0x10000, v{VTE}")
                g.e(f"v_xor_b32 v{VTO}, 0x10000, v{VTO}")
            if s >= (1 if ztype else 2): pend.extend(wdma_ops(s + 2))
        if pend and f % 4 == 1 and half != 0: pend.pop(0)()
        mp, cb = f >> 2, f & 3
        r = WR + (F % 8) * 4
        for a in (range(2) if half is None else [half]):
            o = (s & 1) * 32768 + mp * 4096 + a * 512 + (cb >> 1) * 256
            g.lds(f"TR {r + 2 * a},{VTO if cb & 1 else VTE},{o}", ("w", F))

    g.stamp(1)
    ev = {}
    def at(F, fn): ev.setdefault(F, []).append(fn)
    if not ztype:
        xread(0)
        def spread(F0, ops, after=None):
            if after is not None: at(F0, lambda: g.wait_ds(("x", after)))
            for i, op in enumerate(ops): at(F0 + i, op)
        at(0, lambda: g.wait_ds(("x", 0)))
        spread(0, xdma_ops(2)); at(4, lambda: xread(1)); spread(4, xdma_ops(3), 0)
        at(8, lambda: g.wait_ds(("x", 1))); spread(8, wdma_ops(1, 47))
        at(12, lambda: xread(2)); spread(12, xdma_ops(4), 1)
        at(16, lambda: g.wait_ds(("x", 2))); spread(18, xdma_ops(5), 2)
        at(20, lambda: xread(3)); at(24, lambda: g.wait_ds(("x", 3)))
        spread(26, wdma_ops(2, 47), 3)
        at(30, lambda: xread(4)); spread(34, xdma_ops(6), 4)
        at(38, lambda: xread(5)); spread(42, xdma_ops(7), 5)
        at(50, lambda: xread(6)); spread(54, wdma_ops(3, 47), 6)
        at(66, lambda: xread(7)); at(84, lambda: g.wait_ds(("x", 7)))
    if PF:
        def prefetch():
            g.e("s_load_dwordx2 s[36:37], s[0:1], 64")
            srd(g, 32, 8, 9, 4 * MB)
            g.e("s_lshl_b32 s43, s2, 3")
            g.e("s_add_u32 s43, s43, s40")
            g.e(f"v_lshlrev_b32 v14, 3, v{VST}")
            g.e("v_bfe_u32 v15, v0, 4, 2")
            g.e("v_lshl_add_u32 v15, v15, 28, v14")
            g.e("s_lshl_b32 s47, s43, 11")
            g.vmem("buffer_load_dword v15, v15, s[32:35], s47 offen", "t")
            g.e("v_and_b32 v14, 0x1f80, v14")
            g.e("v_mul_u32_u24 v14, 0x10001, v14")
            g.e("v_and_b32 v14, 0x10000f80, v14")
            g.e("s_lshl_b32 s47, s43, 12")
            g.e("s_waitcnt lgkmcnt(0)")
            g.ds = []
            g.e(f"s_mov_b32 s38, {8 * MB}")
            g.e("s_mov_b32 s39, 0x20000")
            g.vmem("buffer_load_dword v14, v14, s[36:39], s47 offen", "t")
        at((NST - 2) * 32 + 12, prefetch)
    if ztype:
        for m in range(1, 16):
            ops = norm_ops(m)
            for i in range(4):
                at(("post", (m - 1) * 4 + i), lambda o=ops[i * 10:(i + 1) * 10]: [g.e(x) for x in o])
    for F in range(D): wread(F)
    fill = []
    done_at = {}
    for s, (p, kh) in enumerate(order):
        if kh == 1: done_at[s + 1] = p
    for s, (p, kh) in enumerate(order):
        st = p & 1
        if s < 9 and not (PROF == 3 and ztype): g.stamp(2 + s)
        if s == 2 * NS and NS < NP:
            cont = g.newlabel("cont")
            g.e(f"s_cmp_lg_u32 s42, {NG - 1}")
            g.e(f"s_cbranch_scc1 {cont}")
            sv = (list(g.vm), list(g.ds))
            if PF: prefetch()
            final(NS - 1)
            g.vm, g.ds = sv
            g.label(cont)
        if s in done_at:
            assert not fill
            fill = epilogue(done_at[s])
            nslots = 60 if ztype else 26
            per = len(fill) / nslots
            acc = 0.0; slot = -3
        for f in range(32):
            F = s * 32 + f
            mp, cb = f >> 2, f & 3
            m = kh * 8 + mp
            for fn in ev.pop(F, []): fn()
            g.wait_ds(("w", F))
            r = WR + (F % 8) * 4
            for a in range(2):
                op = "MZ" if m == 0 else "M"
                if ktype: g.e(f"{op} {areg(st, cb, a)},{r},{xreg(a, m)}")
                else: g.e(f"{op} {areg(st, cb, a)},{xreg(a, m)},{r}")
                wread(F + D, a)
            for fn in ev.pop(("post", F), []): fn()
            if ztype and F < 60 and F % 4 == 3: g.e("s_nop 0")
            if fill:
                slot += 1
                if slot > 0:
                    acc += per
                    while fill and acc >= 1.0:
                        fill.pop(0)(); acc -= 1.0
        if kh == 1:
            while fill: fill.pop(0)()
    assert not ev
    final(NP - 1)

def gen_k1(g):
    g.e(".p2align 8")
    g.e(".type k1_kernel,@function")
    g.label("k1_kernel")
    g.e("s_cmp_ge_u32 s2, 256")
    g.e("s_cbranch_scc1 L_k1_end")
    g.stamp(0)
    if PROF: g.e("s_memrealtime s[94:95]")
    g.e("s_load_dwordx4 s[4:7], s[0:1], 0")
    g.e("s_load_dwordx4 s[8:11], s[0:1], 16")
    g.e("s_load_dwordx2 s[12:13], s[0:1], 32")
    g.e("s_load_dwordx2 s[14:15], s[0:1], 56")
    g.e("s_load_dwordx2 s[18:19], s[0:1], 96")
    g.e("s_load_dwordx2 s[16:17], s[0:1], 104")
    g.e("v_lshrrev_b32 v1, 6, v0")
    g.e("s_lshr_b32 s49, s2, 3")
    g.e("s_and_b32 s41, s2, 1")
    g.e("v_readfirstlane_b32 s40, v1")
    g.e("s_lshl_b32 s41, s41, 2")
    g.e("s_and_b32 s50, s49, 3")
    g.e("s_add_u32 s41, s41, s50")
    g.e("s_and_b32 s3, s2, 6")
    g.e("s_lshl_b32 s3, s3, 2")
    g.e("s_lshr_b32 s49, s49, 2")
    g.e("s_add_u32 s3, s3, s49")
    g.e("s_waitcnt lgkmcnt(0)")
    g.e(f"s_cmp_lt_u32 s3, {GKV}")
    g.e("s_cbranch_scc1 L_k1_K")
    g.e(f"s_cmp_lt_u32 s3, {2 * GKV}")
    g.e("s_cbranch_scc1 L_k1_V")
    g.e(f"s_cmp_lt_u32 s3, {2 * GKV + GZ}")
    g.e("s_cbranch_scc1 L_k1_Z1")
    g.e(f"s_cmp_lt_u32 s3, {2 * GKV + 2 * GZ}")
    g.e("s_cbranch_scc1 L_k1_Z2")
    g.label("L_k1_end")
    g.e("s_endpgm")
    for T in ("K", "V", "Z1", "Z2"):
        gen_type(g, T)
```

```python
from asmlib import *
import k1
from k1 import w_voffsets, tr_bases, xreg, areg, WR, D
import math

QSCALE = 128 ** -0.5 * math.log2(math.e)
STASH = 131072
DSP = int(os.environ.get('DSP', '3')); EB = int(os.environ.get('EB', '12'))
XPRE = int(os.environ.get('XPRE', '4'))
PS = int(os.environ.get('PS', '0'))
NTSP = os.environ.get('NTSP', '')
PF2 = int(os.environ.get('PF2', '1'))
NTWQ = os.environ.get('NTWQ', '')
NPART = 3
VF, VD, VNEG, VL, VT, V16, VLT = 1, 2, 3, 4, 6, 7, 8
NEGM, PR, SR, QR, OR, FR, TMP = 16, 24, 40, 72, 104, 168, 232
def sreg(kt, qb): return SR + (kt * 2 + qb) * 4
def preg(qb, kg): return PR + (qb * 2 + kg) * 4
def qreg(qb, mm): return QR + (qb * 4 + mm) * 4
def oreg(cb, qb): return OR + (cb * 2 + qb) * 4
def freg(j): return FR + j * 4

def merge_streams(main, fill, start=0):
    out = []
    n = len(main) - start
    acc = 0.0
    fill = list(fill)
    per = len(fill) / max(1, n)
    for i, m in enumerate(main):
        out.append(m)
        if i >= start:
            acc += per
            while fill and acc >= 0.999:
                out.append(fill.pop(0)); acc -= 1.0
    return out + fill

def kv_dma(g, kind, tag=None, m0set=False):
    srdn = 28 if kind == "K" else 32
    ops = []
    for j in range(4):
        def op(j=j):
            if j == 0 and not m0set:
                if kind == "V": g.e("s_add_u32 m0, s50, 32768")
                else: g.e("s_mov_b32 m0, s50")
                g.e("s_nop 0")
            g.vmem(f"buffer_load_dwordx4 v{V16}, s[{srdn}:{srdn + 3}], s51 offen offset:{j * 1024} lds", tag)
        ops.append(op)
    return ops

def dma_setup(g, nxt=True):
    if nxt:
        g.e("s_add_u32 s49, s52, 1")
        g.e("s_cmp_ge_u32 s49, s48")
        g.e("s_cselect_b32 s49, 0, s49")
        g.e("s_lshl_b32 s51, s49, 15")
        g.e("s_xor_b32 s50, s53, 0x10000")
        g.e("s_add_u32 s50, s50, s55")
    else:
        g.e("s_lshl_b32 s51, s52, 15")
        g.e("s_add_u32 s50, s53, s55")
    g.e("s_add_u32 s51, s51, s54")

def softmax_ops(g):
    ops = []
    I = lambda s: ops.append(lambda s=s: g.e(s))
    T = [TMP + i for i in range(8)]
    k = 0
    for kt in range(4):
        for qb in range(2):
            s = sreg(kt, qb); t = T[(k % 2) * 4:(k % 2) * 4 + 4]; k += 1
            for r in range(4): I(f"v_exp_f32 v{t[r]}, v{s + r}")
            p = preg(qb, kt >> 1) + (kt & 1) * 2
            if kt == 0:
                I(f"v_add_f32 v{VLT + qb}, v{t[0]}, v{t[1]}")
                I(f"PK {p},{t[0]},{t[1]}")
                I(f"v_add_f32 v{VLT + qb}, v{VLT + qb}, v{t[2]}")
                I(f"PK {p + 1},{t[2]},{t[3]}")
                I(f"v_add_f32 v{VLT + qb}, v{VLT + qb}, v{t[3]}")
            else:
                I(f"v_add_f32 v{VLT + qb}, v{VLT + qb}, v{t[0]}")
                I(f"v_add_f32 v{VLT + qb}, v{VLT + qb}, v{t[1]}")
                I(f"PK {p},{t[0]},{t[1]}")
                I(f"v_add_f32 v{VLT + qb}, v{VLT + qb}, v{t[2]}")
                I(f"v_add_f32 v{VLT + qb}, v{VLT + qb}, v{t[3]}")
                I(f"PK {p + 1},{t[2]},{t[3]}")
    return ops

def xgroup(g, regs, op, tmp):
    for sw in ("v_permlane32_swap_b32", "v_permlane16_swap_b32"):
        for i, r in enumerate(regs): g.e(f"v_mov_b32 v{tmp + i}, v{r}")
        g.e("s_nop 1")
        for i, r in enumerate(regs): g.e(f"{sw} v{tmp + i}, v{r}")
        g.e("s_nop 1")
        for i, r in enumerate(regs): g.e(f"{op} v{r}, v{r}, v{tmp + i}")

def rescale(g, first):
    MX = [TMP + 8, TMP + 9]
    for qb in range(2):
        vals = [sreg(kt, qb) + r for kt in range(4) for r in range(4)]
        g.e(f"v_max3_f32 v{MX[qb]}, v{vals[0]}, v{vals[1]}, v{vals[2]}")
        for i in range(3, 15, 2): g.e(f"v_max3_f32 v{MX[qb]}, v{MX[qb]}, v{vals[i]}, v{vals[i + 1]}")
        g.e(f"v_max_f32 v{MX[qb]}, v{MX[qb]}, v{vals[15]}")
    xgroup(g, MX, "v_max_f32", TMP + 10)
    if not first:
        for qb in range(2): g.e(f"v_max_f32 v{MX[qb]}, 0, v{MX[qb]}")
    for kt in range(4):
        for qb in range(2):
            for r in range(4): g.e(f"v_sub_f32 v{sreg(kt, qb) + r}, v{sreg(kt, qb) + r}, v{MX[qb]}")
    for qb in range(2):
        for r in range(4): g.e(f"v_sub_f32 v{NEGM + qb * 4 + r}, v{NEGM + qb * 4 + r}, v{MX[qb]}")
    if not first:
        for qb in range(2): g.e(f"v_exp_f32 v{MX[qb]}, -v{MX[qb]}")
        g.e("s_nop 0")
        for cb in range(8):
            for qb in range(2):
                for r in range(4): g.e(f"v_mul_f32 v{oreg(cb, qb) + r}, v{oreg(cb, qb) + r}, v{MX[qb]}")
        for qb in range(2): g.e(f"v_mul_f32 v{VL + qb}, v{VL + qb}, v{MX[qb]}")

def last_block(g):
    skip = g.newlabel("nolast"); l1 = g.newlabel("m1"); lf = g.newlabel("mf")
    g.e("s_add_u32 s49, s52, 1")
    g.e("s_cmp_lg_u32 s49, s48")
    g.e(f"s_cbranch_scc1 {skip}")
    na = g.newlabel("na")
    g.e("s_cmp_eq_u32 s41, 0")
    g.e(f"s_cbranch_scc1 {na}")
    g.e("s_waitcnt lgkmcnt(0)")
    g.e("s_barrier")
    g.label(na)
    g.e("s_add_u32 s49, s57, 4096")
    for fi in range(8):
        g.e(f"buffer_load_dwordx4 v[{QR + fi * 4}:{QR + fi * 4 + 3}], v{V16}, s[24:27], s{57 if fi < 4 else 49} offen offset:{(fi & 3) * 1024} sc1")
    def diag(kt, qb):
        for r in range(4): g.e(f"v_cndmask_b32 v{sreg(kt, qb) + r}, v{VNEG}, v{sreg(kt, qb) + r}, s[{8 + 2 * r}:{9 + 2 * r}]")
    def full(kt, qb):
        for r in range(4): g.e(f"v_mov_b32 v{sreg(kt, qb) + r}, v{VNEG}")
    g.e("s_cmp_ge_i32 s19, 2")
    g.e(f"s_cbranch_scc1 {skip}")
    g.e("s_cmp_eq_i32 s19, 1")
    g.e(f"s_cbranch_scc1 {l1}")
    g.e("s_cmp_lt_i32 s19, 0")
    g.e(f"s_cbranch_scc1 {lf}")
    diag(0, 0); full(1, 0); diag(1, 1); full(2, 0); full(2, 1); full(3, 0); full(3, 1)
    g.e(f"s_branch {skip}")
    g.label(l1)
    diag(2, 0); full(3, 0); diag(3, 1)
    g.e(f"s_branch {skip}")
    g.label(lf)
    for kt in range(4):
        for qb in range(2): full(kt, qb)
    g.label(skip)

def m_phase(g, has_pv, zero, has_qk, prof=False):
    dma = (kv_dma(g, "K", None, has_pv) + kv_dma(g, "V")) if has_qk else []
    if has_qk and not has_pv: dma_setup(g)
    if has_pv:
        for j in range(16):
            kg, cb = j >> 3, j & 7
            for qb in range(2):
                g.e(f"{'MZ' if zero and kg == 0 else 'M'} {oreg(cb, qb)},{freg(j)},{preg(qb, kg)}")
                if qb == 0 and has_qk and j >= 1: g.lds(f"DR {freg(j - 1)},{VF},{(j - 1) * 1024}", ("k", j - 1))
            if dma and j % DSP == 0: dma.pop(0)()
        if has_qk: g.lds(f"DR {freg(15)},{VF},{15 * 1024}", ("k", 15))
    if prof: g.stamp_if(7, 52, 9)
    if has_qk:
        for j in range(16):
            kt, mm = j >> 2, j & 3
            if j == EB:
                if prof: g.stamp_if(8, 52, 9)
                g.e("s_setprio 2")
                g.e("s_barrier")
            g.wait_ds(("k", j))
            for qb in range(2):
                if mm == 0: g.e(f"MC {sreg(kt, qb)},{freg(j)},{qreg(qb, mm)},{NEGM + qb * 4}")
                else: g.e(f"M {sreg(kt, qb)},{freg(j)},{qreg(qb, mm)}")
                if qb == 0 and j >= 1: g.lds(f"DR {freg(j - 1)},{VF},{32768 + (j - 1) * 1024}", "v")
            if dma and (not has_pv or (j + 16) % DSP == 0): dma.pop(0)()
        assert not dma
        g.lds(f"DR {freg(15)},{VF},{32768 + 15 * 1024}", "v")
        g.e(f"s_setprio {PS}")
        g.e(f"v_xor_b32 v{VF}, 0x10000, v{VF}")
        g.e("s_xor_b32 s53, s53, 0x10000")
    g.vm = []; g.ds = []

def s_tail(g, prof=False):
    g.e("s_add_u32 s52, s52, 1")
    dma_setup(g)
    g.e("s_mov_b32 m0, s50")
    g.e("s_cmp_lt_u32 s52, s48")
    if PS: g.e("s_setprio 0")
    g.e("s_waitcnt vmcnt(0) lgkmcnt(0)")
    g.e("s_barrier")

def gen_attn(g):
    g.vm = []; g.ds = []
    g.label("L_k2_attn")
    g.e("s_mul_i32 s49, s41, 37")
    g.e("s_lshr_b32 s49, s49, 8")
    g.e("s_mul_i32 s50, s49, 7")
    g.e("s_sub_u32 s44, s41, s50")
    g.e("s_lshl_b32 s49, s49, 3")
    g.e("s_add_u32 s43, s3, s49")
    g.e("s_lshr_b32 s41, s40, 2")
    g.e("s_and_b32 s42, s40, 3")
    g.e("s_sub_u32 s45, 15, s44")
    g.e("s_add_u32 s46, s44, 4")
    g.e("s_cmp_eq_u32 s44, 6")
    g.e("s_cselect_b32 s45, 3, s45")
    g.e("s_cselect_b32 s46, 2, s46")
    srd(g, 20, 4, 5, 512 * 8192)
    srd(g, 24, 16, 17, WS_SCR + SZ_SCR, 0)
    srd(g, 28, 16, 17, SZ_KV, WS_K)
    srd(g, 32, 16, 17, SZ_KV, WS_V)
    srd(g, 36, 16, 17, SZ_CTX, WS_CTX)
    g.e("s_lshl_b32 s55, s41, 14")
    g.e("s_lshl_b32 s49, s42, 12")
    g.e("s_add_u32 s55, s55, s49")
    g.e("s_lshl_b32 s54, s43, 19")
    g.e("s_add_u32 s54, s54, s55")
    g.e("s_lshl_b32 s57, s2, 17")
    g.e("s_lshl_b32 s49, s42, 13")
    g.e("s_add_u32 s57, s57, s49")
    g.e(f"s_add_u32 s57, s57, {WS_SCR}")
    g.e("v_and_b32 v28, 63, v0")
    g.e(f"v_lshlrev_b32 v{V16}, 4, v28")
    g.e("v_and_b32 v28, 15, v0")
    g.e("v_bfe_u32 v29, v0, 4, 2")
    g.e("v_lshlrev_b32 v29, 2, v29")
    g.e("v_sub_u32 v28, v28, v29")
    for r in range(4): g.e(f"v_cmp_le_i32 s[{8 + 2 * r}:{9 + 2 * r}], {r}, v28")
    g.label("L_k2_round")
    g.e("s_mov_b32 s53, 0")
    w_voffsets(g, 8192, 1, 53)
    g.e("s_lshl_b32 s18, s43, 8")
    g.e("s_lshl_b32 s19, s40, 12")
    g.e("s_mov_b32 s53, 0")
    g.e("s_cmp_eq_u32 s41, 0")
    g.e("s_cselect_b32 s47, s45, s46")
    g.e("s_lshl_b32 s47, s47, 17")
    g.e("s_lshl_b32 s49, s42, 15")
    g.e("s_add_u32 s47, s47, s49")
    def wdma(s):
        p, kh = s & 1, s >> 1
        g.e(f"s_add_u32 s51, s18, {p * 128 + kh * 256 * 8192}")
        g.e(f"s_add_u32 m0, s19, {s * 32768}")
        g.e("s_nop 0")
        for j in range(4):
            g.vmem(f"buffer_load_dwordx4 v{1 + j}, s[20:23], s51 offen offset:{j * 1024} {NTWQ} lds", ("w", s))
    def xload(m):
        if m % 4 == 0:
            g.e(f"s_add_u32 s6, s47, {m * 1024}")
            g.e(f"s_add_u32 s7, s47, {m * 1024 + 16384}")
        for a in range(2):
            x = xreg(a, m)
            g.vmem(f"buffer_load_dwordx4 v[{x}:{x + 3}], v{V16}, s[24:27], s{6 + a} offen offset:{(m % 4) * 1024}", ("x", m))
    wdma(0)
    for m in range(XPRE): xload(m)
    later = {6: lambda: wdma(1), 20: lambda: wdma(2), 50: lambda: wdma(3)}
    for m, F in zip(range(4, 16), (0, 2, 4, 8, 12, 16, 24, 28, 32, 36, 40, 44)): later[F] = lambda m=m: xload(m)
    tr_bases(g, 5, 6)
    g.e(f"s_mov_b32 s56, {f32(QSCALE)}")
    g.e("s_mov_b32 s52, 0")
    g.stamp(1)
    def wread(F, half=None):
        s, f = F >> 5, F & 31
        if s >= 4: return
        if f == 0 and half != 1:
            g.wait_vm(("w", s))
            g.e("s_barrier")
            if s == 2:
                g.e("v_xor_b32 v5, 0x10000, v5")
                g.e("v_xor_b32 v6, 0x10000, v6")
                dma_setup(g, False)
                for op in kv_dma(g, "K", "k0"): op()
            if s == 3:
                for op in kv_dma(g, "V", "v0"): op()
        mp, cb = f >> 2, f & 3
        r = WR + (F % 8) * 4
        for a in (range(2) if half is None else [half]):
            o = (s & 1) * 32768 + mp * 4096 + a * 512 + (cb >> 1) * 256
            g.lds(f"TR {r + 2 * a},{6 if cb & 1 else 5},{o}", ("w", F))
    def qpack(p):
        ops = []
        I = lambda s: ops.append(lambda s=s: g.e(s))
        for a in range(2):
            for mm in range(2):
                x, y = areg(p, 2 * mm, a), areg(p, 2 * mm + 1, a)
                for r in range(4): I(f"v_mul_f32 v{x + r}, s56, v{x + r}")
                for r in range(4): I(f"v_mul_f32 v{y + r}, s56, v{y + r}")
                I(f"PK {x},{x},{x + 1}"); I(f"PK {x + 1},{x + 2},{x + 3}")
                I(f"PK {x + 2},{y},{y + 1}"); I(f"PK {x + 3},{y + 2},{y + 3}")
        return ops
    for F in range(D): wread(F)
    fill = []
    for s in range(4):
        p, kh = s & 1, s >> 1
        if s == 3: fill = qpack(0)
        for f in range(32):
            F = s * 32 + f
            mp, cb = f >> 2, f & 3
            m = kh * 8 + mp
            if p == 0 and cb == 0: g.wait_vm(("x", m))
            g.wait_ds(("w", F))
            r = WR + (F % 8) * 4
            for a in range(2):
                g.e(f"{'MZ' if m == 0 else 'M'} {areg(p, cb, a)},{r},{xreg(a, m)}")
                wread(F + D, a)
            if F in later: later.pop(F)()
            if fill and f >= 4:
                fill.pop(0)(); fill.pop(0)()
    assert not fill and not later
    g.stamp(2)
    g.e("s_lshl_b32 s49, s42, 13")
    g.e(f"s_add_u32 s49, s49, {STASH}")
    g.e(f"v_add_u32 v9, s49, v{V16}")
    g.e("s_add_u32 s49, s57, 4096")
    g.e("s_nop 4")
    for op in qpack(1): op()
    lb = g.newlabel("qb"); lj = g.newlabel("qj")
    g.e("s_cmp_eq_u32 s41, 0")
    g.e(f"s_cbranch_scc0 {lb}")
    for a in range(2):
        for mm in range(4): g.e(f"DW 9,{areg(mm >> 1, 2 * (mm & 1), a)},{(a * 4 + mm) * 1024}")
    g.e("s_waitcnt vmcnt(0)")
    g.e(f"s_branch {lj}")
    g.label(lb)
    for a in range(2):
        for mm in range(4):
            x = areg(mm >> 1, 2 * (mm & 1), a)
            g.e(f"buffer_store_dwordx4 v[{x}:{x + 3}], v{V16}, s[24:27], s{49 if a else 57} offen offset:{mm * 1024}")
    g.label(lj)
    g.e("s_waitcnt vmcnt(8) lgkmcnt(0)")
    g.e("s_barrier")
    g.vm = []; g.ds = []
    for fi in range(8): g.e(f"DR {QR + fi * 4},9,{fi * 1024}")
    g.e("s_lshl_b32 s49, s41, 14")
    g.e(f"v_add_u32 v{VF}, s49, v{V16}")
    g.e("s_lshl_b32 s49, s41, 1")
    g.e("s_sub_u32 s19, s42, s49")
    g.e(f"v_mov_b32 v{VNEG}, {f32(-1e30)}")
    g.e(f"s_mov_b32 s56, {f32(2.0 ** 30)}")
    g.e(f"s_mov_b32 s6, {f32(2.0 ** -30)}")
    g.e("s_mov_b32 s47, s45")
    g.e("s_mov_b32 s18, 0")
    g.stamp(3)
    g.e("s_cmp_eq_u32 s41, 0")
    g.e("s_cbranch_scc1 L_k2_block")
    g.e("s_barrier")
    g.label("L_k2_block")
    g.vm = []; g.ds = []
    g.e("s_add_u32 s48, s47, 1")
    g.e("s_mov_b32 s52, 0")
    for j in range(16): g.lds(f"DR {freg(j)},{VF},{j * 1024}", ("k", j))
    for i in range(8): g.e(f"v_mov_b32 v{NEGM + i}, 0")
    m_phase(g, False, False, True)
    g.e("s_nop 4")
    last_block(g)
    for op in softmax_ops(g): op()
    g.e(f"v_max_f32 v{VT}, v{VLT}, v{VLT + 1}")
    g.e(f"v_min_f32 v{TMP}, v{VLT}, v{VLT + 1}")
    g.e(f"v_cmp_lt_f32 vcc, s56, v{VT}")
    g.e("s_cbranch_vccnz L_k2_slow0")
    g.e(f"v_cmp_gt_f32 vcc, s6, v{TMP}")
    g.e("s_cbranch_vccnz L_k2_slow0")
    g.label("L_k2_back0")
    for qb in range(2): g.e(f"v_mov_b32 v{VL + qb}, v{VLT + qb}")
    s_tail(g)
    g.e("s_cbranch_scc0 L_k2_finz")
    m_phase(g, True, True, True)
    g.e("s_branch L_k2_s")
    g.label("L_k2_loop")
    g.stamp_if(6, 52, 9)
    g.stamp_if(12, 52, 10)
    m_phase(g, True, False, True, True)
    g.label("L_k2_s")
    g.stamp_if(9, 52, 9)
    g.e("s_nop 4")
    last_block(g)
    for op in softmax_ops(g): op()
    g.e(f"v_max_f32 v{VT}, v{VLT}, v{VLT + 1}")
    g.e(f"v_cmp_lt_f32 vcc, s56, v{VT}")
    g.e("s_cbranch_vccnz L_k2_slow")
    g.label("L_k2_back")
    for qb in range(2): g.e(f"v_add_f32 v{VL + qb}, v{VL + qb}, v{VLT + qb}")
    g.stamp_if(10, 52, 9)
    g.stamp_if(11, 52, 9)
    s_tail(g)
    g.e("s_cbranch_scc1 L_k2_loop")
    def fin_pre():
        g.e("s_and_b32 s7, s57, 0xffff9fff")
        g.e("s_lshl_b32 s49, s18, 12")
        g.e("s_add_u32 s7, s7, s49")
        g.e("s_lshl_b32 s49, s42, 10")
        g.e("s_add_u32 s7, s7, s49")
        g.e("s_add_u32 s7, s7, 32768")
        g.e(f"buffer_load_dwordx4 v[{TMP}:{TMP + 3}], v{V16}, s[24:27], s7 offen sc1")
        nb = g.newlabel("nb")
        g.e("s_cmp_eq_u32 s41, 0")
        g.e(f"s_cbranch_scc0 {nb}")
        g.e("s_barrier")
        g.label(nb)
    fin_pre()
    m_phase(g, True, False, False)
    g.e("s_branch L_k2_fin")
    g.label("L_k2_finz")
    fin_pre()
    m_phase(g, True, True, False)
    g.label("L_k2_fin")
    g.e("s_lshl_b32 s50, s42, 13")
    g.e(f"s_add_u32 s50, s50, {STASH}")
    g.e(f"v_add_u32 v10, s50, v{V16}")
    g.e("s_xor_b32 s49, s53, 0x10000")
    g.e("s_lshl_b32 s50, s42, 12")
    g.e("s_add_u32 s50, s50, s49")
    g.e("s_add_u32 s50, s50, 16384")
    g.e(f"v_add_u32 v11, s50, v{V16}")
    xaddr = lambda i: (10, i * 1024) if i < 8 else (11, (i & 3) * 1024 + (32768 if i >= 12 else 0))
    g.e("s_cmp_eq_u32 s41, 0")
    g.e("s_cbranch_scc0 L_k2_merge")
    g.e(f"v_mov_b32 v{TMP + 4}, v{NEGM}")
    g.e(f"v_mov_b32 v{TMP + 5}, v{NEGM + 4}")
    g.e(f"v_mov_b32 v{TMP + 6}, v{VL}")
    g.e(f"v_mov_b32 v{TMP + 7}, v{VL + 1}")
    g.e(f"buffer_store_dwordx4 v[{TMP + 4}:{TMP + 7}], v{V16}, s[24:27], s7 offen")
    for i in range(16): g.e(f"DW {xaddr(i)[0]},{OR + i * 4},{xaddr(i)[1]}")
    g.e("s_waitcnt vmcnt(0) lgkmcnt(0)")
    g.e("s_barrier")
    g.e("s_cmp_eq_u32 s18, 0")
    g.e("s_cbranch_scc0 L_k2_rend")
    g.e("s_mov_b32 s18, 1")
    g.e("s_mov_b32 s47, s46")
    g.e("s_branch L_k2_block")
    g.label("L_k2_merge")
    g.ds = []
    for i in range(16): g.lds(f"DR {freg(i)},{xaddr(i)[0]},{xaddr(i)[1]}", ("o", i))
    g.e("s_lshl_b32 s49, s47, 3")
    g.e("s_lshl_b32 s50, s42, 1")
    g.e("s_add_u32 s49, s49, s50")
    g.e("s_mul_i32 s49, s49, 159744")
    g.e("s_lshl_b32 s50, s43, 12")
    g.e("s_add_u32 s49, s49, s50")
    g.e("s_add_u32 s50, s49, 159744")
    g.e("s_waitcnt vmcnt(0)")
    FA, FB, NM = TMP + 4, TMP + 6, TMP + 8
    for qb in range(2): g.e(f"v_min_f32 v{NM + qb}, v{TMP + qb}, v{NEGM + 4 * qb}")
    for qb in range(2): g.e(f"v_sub_f32 v{FA + qb}, v{NM + qb}, v{TMP + qb}")
    for qb in range(2): g.e(f"v_sub_f32 v{FB + qb}, v{NM + qb}, v{NEGM + 4 * qb}")
    for i in range(4): g.e(f"v_exp_f32 v{FA + i}, v{FA + i}")
    g.e("s_nop 0")
    for qb in range(2): g.e(f"v_mul_f32 v{VL + qb}, v{VL + qb}, v{FB + qb}")
    for qb in range(2): g.e(f"v_fmac_f32 v{VL + qb}, v{TMP + 2 + qb}, v{FA + qb}")
    xgroup(g, [VL, VL + 1], "v_add_f32", TMP + 10)
    for qb in range(2): g.e(f"v_rcp_f32 v{VL + qb}, v{VL + qb}")
    g.e("s_nop 0")
    for qb in range(2): g.e(f"v_mul_f32 v{FA + qb}, v{FA + qb}, v{VL + qb}")
    for qb in range(2): g.e(f"v_mul_f32 v{FB + qb}, v{FB + qb}, v{VL + qb}")
    for mm in range(4):
        for qb in range(2):
            for cb in (2 * mm, 2 * mm + 1):
                o = oreg(cb, qb); i = cb * 2 + qb
                for r in range(4): g.e(f"v_mul_f32 v{o + r}, v{o + r}, v{FB + qb}")
                g.wait_ds(("o", i))
                for r in range(4): g.e(f"v_fmac_f32 v{o + r}, v{freg(i) + r}, v{FA + qb}")
            x, y = oreg(2 * mm, qb), oreg(2 * mm + 1, qb)
            g.e(f"PK {x},{x},{x + 1}"); g.e(f"PK {x + 1},{x + 2},{x + 3}")
            g.e(f"PK {x + 2},{y},{y + 1}"); g.e(f"PK {x + 3},{y + 2},{y + 3}")
            g.e(f"buffer_store_dwordx4 v[{x}:{x + 3}], v{V16}, s[36:39], s{49 + qb} offen offset:{mm * 1024}")
    g.e("s_cmp_eq_u32 s18, 0")
    g.e("s_cbranch_scc0 L_k2_rend")
    g.stamp(4)
    g.e("s_mov_b32 s18, 1")
    g.e("s_mov_b32 s47, s46")
    g.e("s_barrier")
    g.e("s_branch L_k2_block")
    g.label("L_k2_rend")
    g.stamp(5)
    g.e("s_cmp_eq_u32 s45, 3")
    g.e("s_cbranch_scc0 L_k2_aend")
    g.e("s_mov_b32 s45, 1")
    g.e("s_mov_b32 s46, 0")
    g.e("s_add_u32 s57, s57, 65536")
    g.e("s_waitcnt vmcnt(0) lgkmcnt(0)")
    g.e("s_barrier")
    g.e("s_branch L_k2_round")
    g.label("L_k2_aend")
    if PF2:
        sk = g.newlabel("nopf")
        g.e("s_cmp_eq_u32 s44, 6")
        g.e(f"s_cbranch_scc0 {sk}")
        g.e("s_load_dwordx2 s[20:21], s[0:1], 40")
        g.e("s_load_dwordx2 s[28:29], s[0:1], 80")
        g.e("s_lshl_b32 s49, s43, 3")
        g.e("s_add_u32 s49, s49, s40")
        g.e(f"v_lshlrev_b32 v10, 3, v{V16}")
        g.e("s_lshl_b32 s50, s49, 14")
        g.e("s_add_u32 s48, s50, 8192")
        g.e("s_mul_i32 s51, s49, 3584")
        g.e("v_cmp_gt_u32 vcc, 3584, v10")
        g.e("v_mov_b32 v12, 0x10000000")
        g.e("s_nop 0")
        g.e("v_cndmask_b32 v11, v12, v10, vcc")
        g.e("s_waitcnt lgkmcnt(0)")
        g.e(f"s_mov_b32 s22, {4 * MB}")
        g.e("s_mov_b32 s23, 0x20000")
        g.e(f"s_mov_b32 s30, {896 * 1024}")
        g.e("s_mov_b32 s31, 0x20000")
        g.e("buffer_load_dword v14, v10, s[20:23], s50 offen")
        g.e("buffer_load_dword v15, v10, s[20:23], s48 offen")
        g.e("buffer_load_dword v13, v11, s[28:31], s51 offen")
        g.label(sk)
    g.stamp_dump(16, 17, 40, 1)
    g.e("s_endpgm")
    g.label("L_k2_slow")
    rescale(g, False)
    for op in softmax_ops(g): op()
    g.e("s_branch L_k2_back")
    g.label("L_k2_slow0")
    rescale(g, True)
    for op in softmax_ops(g): op()
    g.e("s_branch L_k2_back0")

def gen_spatial(g):
    ACC, AR, BB, Z1R = 144, 116, 84, 24
    ZB, ZS = 98304, 14336
    VWD = 80
    acc = lambda fb, tt: ACC + (fb * 4 + tt) * 4
    g.vm = []; g.ds = []
    g.label("L_k2_sp")
    g.e("s_sub_u32 s44, s41, 28")
    g.e("s_and_b32 s42, s40, 3")
    g.e("s_lshr_b32 s41, s40, 2")
    srd(g, 20, 6, 7, 2048 * 4096)
    srd(g, 24, 16, 17, SZ_Z, WS_Z2)
    g.e("v_and_b32 v28, 63, v0")
    g.e(f"v_lshlrev_b32 v{V16}, 4, v28")
    g.e("v_bfe_u32 v28, v0, 3, 3")
    g.e("v_and_b32 v29, 7, v0")
    g.e("v_lshrrev_b32 v30, 1, v28")
    g.e("v_xor_b32 v29, v29, v30")
    g.e("s_lshl_b32 s49, s3, 8")
    g.e("s_lshl_b32 s50, s40, 5")
    g.e("s_add_u32 s49, s49, s50")
    g.e("v_add_u32 v28, s49, v28")
    g.e("v_lshlrev_b32 v28, 12, v28")
    g.e("v_xor_b32 v30, 4, v29")
    g.e("v_lshl_add_u32 v29, v29, 4, v28")
    g.e("v_lshl_add_u32 v30, v30, 4, v28")
    for j in range(4): g.e(f"v_add_u32 v{VWD + j}, {j * 8 * 4096 - j * 1024}, v{29 + (j & 1)}")
    g.e("s_lshl_b32 s48, s40, 1")
    g.e("s_min_u32 s48, s48, 12")
    g.e("s_mul_i32 s49, s44, 14")
    g.e("s_add_u32 s49, s49, s48")
    g.e("s_lshl_b32 s43, s49, 10")
    g.e("s_mov_b32 s45, 0")
    g.e("s_lshl_b32 s46, s40, 12")
    g.e("s_lshl_b32 s47, s48, 10")
    g.e(f"s_add_u32 s47, s47, {ZB}")
    def wop(b, j):
        if j % 2 == 0:
            g.e(f"s_add_u32 m0, s46, {(b % 3) * 32768}")
            g.e("s_nop 0")
        g.vmem(f"buffer_load_dwordx4 v{VWD + j}, s[20:23], s45 offen offset:{j * 1024} {NTSP} lds", ("w", 2 * b))
        if j == 3: g.e("s_add_u32 s45, s45, 128")
    def zop(st, j):
        if j == 0:
            g.e(f"s_add_u32 m0, s47, {(st % 4) * ZS}")
            g.e("s_nop 0")
        g.vmem(f"buffer_load_dwordx4 v{V16}, s[24:27], s43 offen offset:{j * 1024} lds", ("z", st))
        if j == 1: g.e("s_add_u32 s43, s43, 57344")
    def dma_ops(st):
        b, h = st // 2 + 2, st & 1
        return [lambda: zop(st + 3, 0), lambda: zop(st + 3, 1), lambda: wop(b, 2 * h), lambda: wop(b, 2 * h + 1)]
    zop(0, 0); zop(0, 1)
    for j in range(4): wop(0, j)
    g.e("s_barrier")
    for st in (-2, -1):
        for op in dma_ops(st): op()
    srd(g, 28, 16, 17, SZ_Z, WS_Z1)
    srd(g, 36, 16, 17, SZ_CTX, WS_CTX)
    srd(g, 12, 8, 9, 4096)
    g.e("s_mul_i32 s49, s41, 7168")
    g.e(f"s_add_u32 s49, s49, {ZB}")
    g.e(f"v_add_u32 v4, s49, v{V16}")
    g.e("v_and_b32 v28, 15, v0")
    g.e("v_bfe_u32 v29, v0, 4, 2")
    g.e("v_lshrrev_b32 v30, 1, v28")
    g.e("v_xor_b32 v29, v29, v30")
    g.e("v_lshlrev_b32 v29, 4, v29")
    g.e("v_lshl_add_u32 v29, v28, 7, v29")
    g.e("s_lshl_b32 s49, s42, 13")
    g.e("v_add_u32 v1, s49, v29")
    g.e("v_xor_b32 v2, 64, v1")
    g.e("v_add_u32 v5, 0x10000, v1")
    g.e("v_add_u32 v6, 0x10000, v2")
    for i in range(112): g.e(f"v_mov_b32 v{ACC + i}, 0")
    def aread(st, fb): g.lds(f"DR {AR + fb * 4},4,{(st % 4) * ZS + fb * 1024}", ("a", st, fb))
    def bread(st, tt):
        sl = (st // 2) % 3
        g.lds(f"DR {BB + (st & 1) * 16 + tt * 4},{(5 if sl == 2 else 1) + (st & 1)},{(sl & 1) * 32768 + tt * 2048}", ("b", st))
    SCH = {(3, 0): ("a", 0), (3, 1): ("b", 0), (3, 2): ("b", 1), (4, 0): ("b", 2), (4, 1): ("b", 3), (4, 2): ("a", 1), (5, 0): ("a", 2), (6, 0): ("a", 3)}
    rd = lambda st, k: (aread if k[0] == "a" else bread)(st, k[1])
    g.wait_vm(("z", 0), ("w", 0))
    g.e("s_barrier")
    for key in sorted(SCH): rd(0, SCH[key])
    g.e("s_mov_b32 s52, 0")
    g.stamp(1)
    def step(st, extra=(), dma=4, nxt=True):
        extra = list(extra)
        pend = []
        for fb in range(7):
            g.wait_ds(("a", st, fb), ("b", st))
            for tt in range(4):
                g.e(f"M {acc(fb, tt)},{AR + fb * 4},{BB + (st & 1) * 16 + tt * 4}")
                if tt == 0 and fb < 3: aread(st, fb + 4)
                if nxt:
                    if (fb, tt) == (3, 0):
                        g.wait_vm(("z", st + 1), ("w", st + 1))
                        g.e("s_barrier")
                        pend = dma_ops(st)[:dma]
                    if (fb, tt) in SCH: rd(st + 1, SCH[(fb, tt)])
                if tt == 3 and pend: pend.pop(0)()
                if tt == 3 and extra and fb < 3:
                    extra.pop(0)()
        assert not pend and not extra
    g.label("L_k2_sploop")
    vm0, ds0 = list(g.vm), list(g.ds)
    for st in range(12): step(st)
    ren = lambda t: (t[0], t[1] - 12) + t[2:]
    g.vm = [ren(t) for t in g.vm]; g.ds = [ren(t) for t in g.ds]
    assert g.vm == vm0 and g.ds == ds0, (g.vm, vm0, g.ds, ds0)
    g.e("s_add_u32 s52, s52, 1")
    g.e("s_cmp_lt_u32 s52, 5")
    g.e("s_cbranch_scc1 L_k2_sploop")
    g.stamp(2)
    g.e("s_lshl_b32 s49, s3, 4")
    g.e("s_lshl_b32 s50, s42, 2")
    g.e("s_add_u32 s49, s49, s50")
    g.e("s_mul_i32 s54, s49, 28672")
    g.e("s_mul_i32 s55, s49, 159744")
    g.e(f"s_add_u32 s55, s55, {128 * 1024}")
    for tt in range(4):
        g.e(f"v_add_u32 v{16 + tt}, {tt * 28672}, v{V16}")
        g.e(f"v_add_u32 v{20 + tt}, {tt * 159744}, v{V16}")
    g.e("s_mul_i32 s56, s44, 14")
    g.e("s_mul_i32 s48, s41, 7")
    g.e("s_add_u32 s56, s56, s48")
    g.e("v_and_b32 v11, 15, v0")
    g.e("v_lshlrev_b32 v11, 1, v11")
    g.e("s_lshr_b32 s56, s56, 1")
    g.e("s_lshl_b32 s56, s56, 10")
    g.e("s_add_u32 s54, s54, s56")
    g.e("s_add_u32 s55, s55, s56")
    def bload():
        g.e("s_lshl_b32 s49, s3, 9")
        g.e("s_lshl_b32 s50, s42, 7")
        g.e("s_add_u32 s49, s49, s50")
        for tt in range(4): g.vmem(f"buffer_load_ushort v{12 + tt}, v11, s[12:15], s49 offen offset:{tt * 32}", "b")
    def z1load(u):
        for tt in range(4):
            r = Z1R + (u * 4 + tt) * 4
            g.vmem(f"buffer_load_dwordx4 v[{r}:{r + 3}], v{16 + tt}, s[28:31], s54 offen offset:{u * 1024}", ("z1", u))
    step(0, [bload, lambda: z1load(0), lambda: z1load(1)], dma=2)
    step(1, [lambda: z1load(2)], dma=0)
    step(2, dma=0)
    step(3, [lambda: z1load(3)], dma=0, nxt=False)
    g.wait_vm("b")
    for tt in range(4): g.e(f"v_lshlrev_b32 v{12 + tt}, 16, v{12 + tt}")
    g.e("s_mov_b32 s53, 0xffff0000")
    vm_sv = list(g.vm)
    lode = g.newlabel("spodd"); lend = g.newlabel("spend")
    g.e("s_cmp_eq_u32 s41, 1")
    g.e(f"s_cbranch_scc1 {lode}")
    for fh in range(2):
        g.vm = list(vm_sv)
        if fh: g.label(lode)
        for u in range(4):
            halves = [(h, 2 * u + h - fh) for h in range(2) if 0 <= 2 * u + h - fh < 7]
            for h, fb in halves:
                for tt in range(4):
                    for r in range(4): g.e(f"v_add_f32 v{acc(fb, tt) + r}, v{acc(fb, tt) + r}, v{12 + tt}")
            g.wait_vm(("z1", u))
            for tt in range(4):
                z = Z1R + (u * 4 + tt) * 4
                for h, fb in halves:
                    a = acc(fb, tt); t = 8 if h else 1
                    g.e(f"v_lshlrev_b32 v{t}, 16, v{z + 2 * h}")
                    g.e(f"v_and_b32 v{t + 1}, s53, v{z + 2 * h}")
                    g.e(f"v_lshlrev_b32 v{t + 2}, 16, v{z + 2 * h + 1}")
                    g.e(f"v_and_b32 v{t + 3}, s53, v{z + 2 * h + 1}")
                    for r in range(4): g.e(f"v_mul_f32 v{a + r}, v{a + r}, v{t + r}")
                    g.e(f"PK {z + 2 * h},{a},{a + 1}"); g.e(f"PK {z + 2 * h + 1},{a + 2},{a + 3}")
                if len(halves) == 2:
                    g.vmem(f"buffer_store_dwordx4 v[{z}:{z + 3}], v{20 + tt}, s[36:39], s55 offen offset:{u * 1024}", "st")
                else:
                    h = halves[0][0]
                    g.vmem(f"buffer_store_dwordx2 v[{z + 2 * h}:{z + 2 * h + 1}], v{20 + tt}, s[36:39], s55 offen offset:{u * 1024 + 8 * h}", "st")
        if fh == 0: g.e(f"s_branch {lend}")
    g.label(lend)
    g.stamp(3)
    g.stamp_dump(16, 17, 40, 1)
    g.e("s_endpgm")

def gen_k2(g):
    g.e(".p2align 8")
    g.e(".type k2_kernel,@function")
    g.label("k2_kernel")
    g.e("s_cmp_ge_u32 s2, 256")
    g.e("s_cbranch_scc1 L_k2_end")
    g.stamp(0)
    if PROF: g.e("s_memrealtime s[94:95]")
    g.e("s_load_dwordx2 s[4:5], s[0:1], 16")
    g.e("s_load_dwordx4 s[8:11], s[0:1], 64")
    g.e("s_load_dwordx2 s[16:17], s[0:1], 104")
    g.e("v_lshrrev_b32 v1, 6, v0")
    g.e("s_and_b32 s3, s2, 7")
    g.e("s_lshr_b32 s41, s2, 3")
    g.e("v_readfirstlane_b32 s40, v1")
    g.e("s_waitcnt lgkmcnt(0)")
    g.e("s_mov_b32 s6, s8")
    g.e("s_mov_b32 s7, s9")
    g.e("s_mov_b32 s8, s10")
    g.e("s_mov_b32 s9, s11")
    g.e("s_cmp_lt_u32 s41, 28")
    g.e("s_cbranch_scc1 L_k2_attn")
    g.e("s_branch L_k2_sp")
    g.label("L_k2_end")
    g.e("s_endpgm")
    gen_attn(g)
    gen_spatial(g)
```

```python
import struct, os
PROF = int(os.environ.get('PROF', '0'))

def f32(x):
    return struct.unpack('<I', struct.pack('<f', x))[0]

class G:
    def __init__(self):
        self.lines = []
        self.vm = []
        self.ds = []
        self.uid = 0
    def e(self, s):
        self.lines.append(s)
    def label(self, name):
        self.lines.append(name + ":")
    def newlabel(self, base):
        self.uid += 1
        return f"L_{base}_{self.uid}"
    def vmem(self, s, tag=None):
        self.lines.append(s); self.vm.append(tag)
    def lds(self, s, tag=None):
        self.lines.append(s); self.ds.append(tag)
    def _need(self, lst, tags):
        idx = -1
        for i, t in enumerate(lst):
            if t in tags: idx = i
        return idx
    def wait_vm(self, *tags):
        idx = self._need(self.vm, tags)
        if idx < 0: return
        n = min(len(self.vm) - 1 - idx, 63)
        self.lines.append(f"s_waitcnt vmcnt({n})")
        self.vm = self.vm[len(self.vm) - n:] if n else []
    def wait_ds(self, *tags):
        idx = self._need(self.ds, tags)
        if idx < 0: return
        n = min(len(self.ds) - 1 - idx, 15)
        self.lines.append(f"s_waitcnt lgkmcnt({n})")
        self.ds = self.ds[len(self.ds) - n:] if n else []
    def wait_all(self, vm=True, ds=True):
        if vm and ds: self.lines.append("s_waitcnt vmcnt(0) lgkmcnt(0)")
        elif vm: self.lines.append("s_waitcnt vmcnt(0)")
        elif ds: self.lines.append("s_waitcnt lgkmcnt(0)")
        if vm: self.vm = []
        if ds: self.ds = []
    def stamp(self, i):
        if PROF == 4 and i > 6: return
        if PROF: self.lines.append(f"s_memtime s[{64 + 2 * i}:{65 + 2 * i}]")
        if PROF == 4 and 1 <= i <= 6: self.lines.append(f"s_memrealtime s[{64 + 2 * (i + 7)}:{65 + 2 * (i + 7)}]")
    def stamp_if(self, i, sreg, val):
        if PROF != 2: return
        l = self.newlabel("st")
        self.e(f"s_cmp_lg_u32 s{sreg}, {val}")
        self.e(f"s_cbranch_scc1 {l}")
        self.stamp(i)
        self.label(l)
    def stamp_dump(self, wslo, wshi, swave, kidx, n=16):
        if not PROF: return
        e = self.e
        e("s_memrealtime s[98:99]")
        e("s_waitcnt vmcnt(0) lgkmcnt(0)")
        e("s_memtime s[96:97]")
        e("s_waitcnt lgkmcnt(0)")
        e(f"s_add_u32 s60, s{wslo}, {WS_DBG + kidx * MB}")
        e(f"s_addc_u32 s61, s{wshi}, 0")
        e(f"s_mov_b32 s62, {MB}")
        e("s_mov_b32 s63, 0x20000")
        e("s_lshl_b32 s59, s2, 10")
        e(f"s_lshl_b32 s58, s{swave}, 7")
        e("s_add_u32 s59, s59, s58")
        e("v_and_b32 v1, 63, v0") if False else None
        e("v_mbcnt_lo_u32_b32 v1, -1, 0")
        e("v_mbcnt_hi_u32_b32 v1, -1, v1")
        e("v_lshlrev_b32 v1, 24, v1")
        for i in range(n + 2):
            e(f"v_mov_b32 v2, s{64 + 2 * i}")
            e(f"buffer_store_dword v2, v1, s[60:63], s59 offen offset:{4 * i}")
            e("s_nop 1")
    def text(self):
        return "\n".join(self.lines) + "\n"

MACROS = r"""
.macro M d,a,b
v_mfma_f32_16x16x32_bf16 v[\d:\d+3],v[\a:\a+3],v[\b:\b+3],v[\d:\d+3]
.endm
.macro MZ d,a,b
v_mfma_f32_16x16x32_bf16 v[\d:\d+3],v[\a:\a+3],v[\b:\b+3],0
.endm
.macro MC d,a,b,c
v_mfma_f32_16x16x32_bf16 v[\d:\d+3],v[\a:\a+3],v[\b:\b+3],v[\c:\c+3]
.endm
.macro TR d,a,o
ds_read_b64_tr_b16 v[\d:\d+1],v\a offset:\o
.endm
.macro DR d,a,o
ds_read_b128 v[\d:\d+3],v\a offset:\o
.endm
.macro DW a,d,o
ds_write_b128 v\a,v[\d:\d+3] offset:\o
.endm
.macro PK d,a,b
v_cvt_pk_bf16_f32 v\d,v\a,v\b
.endm
"""

def kd(name, vgpr, sgpr=102):
    acc = (vgpr + 3) // 4 * 4
    return f"""
.amdhsa_kernel {name}
  .amdhsa_next_free_vgpr {vgpr}
  .amdhsa_next_free_sgpr {sgpr}
  .amdhsa_accum_offset {acc}
  .amdhsa_group_segment_fixed_size 0
  .amdhsa_kernarg_size 112
  .amdhsa_user_sgpr_count 2
  .amdhsa_user_sgpr_kernarg_segment_ptr 1
  .amdhsa_system_sgpr_workgroup_id_x 1
.end_amdhsa_kernel
"""

def srd(g, s, lo, hi, size, off=0):
    if off:
        g.e(f"s_add_u32 s{s}, s{lo}, {off}")
        g.e(f"s_addc_u32 s{s+1}, s{hi}, 0")
    else:
        g.e(f"s_mov_b32 s{s}, s{lo}")
        g.e(f"s_mov_b32 s{s+1}, s{hi}")
    g.e(f"s_mov_b32 s{s+2}, {size}")
    g.e(f"s_mov_b32 s{s+3}, 0x20000")

MB = 1 << 20
WS_XN = 0
WS_K = 2 * MB
WS_V = 18 * MB
WS_Z1 = 34 * MB
WS_Z2 = 38 * MB
WS_ST = 42 * MB
WS_CTX = 44 * MB
SZ_XN = 2 * MB
SZ_KV = 16 * MB
SZ_Z = 2048 * 896 * 2
SZ_ST = 3 * 2048 * 8
SZ_CTX = 128 * 156 * 1024
WS_DBG = 200 * MB
WS_SCR = 64 * MB
SZ_SCR = 32 * MB
```

```python
from asmlib import *
import math

XR = 128
ACC = [64, 96]
WR = 32
D = 6
C2 = -2.0 * math.sqrt(2.0 / math.pi) * math.log2(math.e)
C1 = C2 * 0.044715
NPKV = int(os.environ.get('NPKV', '6'))
NPZ = int(os.environ.get('NPZ', '3'))
GKV = -(-64 // NPKV); GZ = -(-14 // NPZ)
assert 2 * GKV + 2 * GZ <= 32
NTW = os.environ.get('NTW', '')
TOUCH = int(os.environ.get('TOUCH', '0'))
PF = int(os.environ.get('PF', '76'))
MAP84 = int(os.environ.get('MAP84', '0'))
CLU = int(os.environ.get('CLU', '1'))
PFW = int(os.environ.get('PFW', '63'))
NTP = os.environ.get('NTP', '')
ROT = int(os.environ.get('ROT', '1'))
STF = os.environ.get('STF', 'sc1')

def xreg(a, m): return XR + (m * 2 + a) * 4
def areg(st, cb, a): return ACC[st] + (cb * 2 + a) * 4

def w_voffsets(g, rowstride, vbase, srot):
    g.e("v_bfe_u32 v28, v0, 5, 1")
    g.e("v_bfe_u32 v29, v0, 2, 2")
    g.e("v_lshl_add_u32 v28, v28, 2, v29")
    g.e(f"s_lshl_b32 s49, s{srot}, 1")
    g.e("s_add_u32 s49, s49, s40")
    g.e("s_and_b32 s49, s49, 7")
    g.e("s_lshl_b32 s49, s49, 5")
    g.e("v_add_u32 v28, s49, v28")
    g.e(f"s_mov_b32 s49, {rowstride}")
    g.e("v_mul_lo_u32 v28, v28, s49")
    g.e("v_bfe_u32 v29, v0, 4, 1")
    g.e("v_lshl_add_u32 v28, v29, 6, v28")
    g.e("v_and_b32 v29, 3, v0")
    g.e("v_xor_b32 v30, 2, v29")
    g.e("v_lshlrev_b32 v29, 4, v29")
    g.e("v_lshlrev_b32 v30, 4, v30")
    for j in range(4):
        g.e(f"v_add_u32 v31, {j * 8 * rowstride - j * 1024}, v28")
        g.e(f"v_add_u32 v{vbase + j}, v31, v{29 + (j & 1)}")

def tr_bases(g, ve, vo):
    g.e("v_bfe_u32 v28, v0, 4, 2")
    g.e("v_lshlrev_b32 v29, 10, v28")
    g.e("v_bfe_u32 v30, v0, 2, 2")
    g.e("v_lshl_add_u32 v29, v30, 6, v29")
    g.e("v_and_b32 v30, 3, v0")
    g.e("v_lshl_add_u32 v29, v30, 3, v29")
    g.e("v_and_b32 v28, 1, v28")
    g.e(f"v_lshl_add_u32 v{ve}, v28, 5, v29")
    g.e(f"v_xor_b32 v{vo}, 32, v{ve}")

def gelu_ops(regs, T, vc2, sc1, stats=None):
    out = []
    n = len(T)
    for i in range(0, len(regs), n):
        grp = list(zip(regs[i:i + n], T))
        out += [f"v_mul_f32 v{t}, v{x}, v{x}" for x, t in grp]
        out += [f"v_fma_f32 v{t}, v{t}, s{sc1}, v{vc2}" for x, t in grp]
        out += [f"v_mul_f32 v{t}, v{t}, v{x}" for x, t in grp]
        out += [f"v_exp_f32 v{t}, v{t}" for x, t in grp]
        out += [f"v_add_f32 v{t}, 1.0, v{t}" for x, t in grp]
        out += [f"v_rcp_f32 v{t}, v{t}" for x, t in grp]
        out += [f"v_mul_f32 v{x}, v{x}, v{t}" for x, t in grp]
        if stats:
            out += [f"v_add_f32 v{stats[x][0]}, v{stats[x][0]}, v{x}" for x, t in grp]
            out += [f"v_fmac_f32 v{stats[x][1]}, v{x}, v{x}" for x, t in grp]
    return out

def ln_params(g, MEAN, VAR, n):
    def rbf(rs):
        for r in rs: g.e(f"PK {r},{r},{r}")
        for r in rs: g.e(f"v_and_b32 v{r}, 0xffff0000, v{r}")
    for m, v in zip(MEAN, VAR):
        g.e(f"v_mul_f32 v{m}, {f32(1 / n)}, v{m}")
        g.e(f"v_mul_f32 v{v}, {f32(1 / n)}, v{v}")
    for m, v in zip(MEAN, VAR): g.e(f"v_fma_f32 v{v}, -v{m}, v{m}, v{v}")
    for v in VAR: g.e(f"v_max_f32 v{v}, 0, v{v}")
    rbf(list(MEAN) + list(VAR))
    for v in VAR: g.e(f"v_add_f32 v{v}, {f32(1e-5)}, v{v}")
    rbf(VAR)
    for v in VAR: g.e(f"v_sqrt_f32 v{v}, v{v}")
    g.e("s_nop 0")
    rbf(VAR)
    for v in VAR: g.e(f"v_rcp_f32 v{v}, v{v}")
    g.e("s_nop 0")
    for m, v in zip(MEAN, VAR): g.e(f"v_mul_f32 v{m}, v{m}, v{v}")

def gen_type(g, T):
    ktype = T in ("K", "Z1")
    ztype = T in ("Z1", "Z2")
    rowstride = 3584 if ztype else 8192
    NP = NPZ if ztype else NPKV
    NTOT = 14 if ztype else 64
    NG = GZ if ztype else GKV
    NS = NTOT - (NG - 1) * NP
    assert NS >= 2
    VW = 1
    VTE, VTO = 5, 6
    VST = 7
    VC2 = 8
    VXA = 20
    VXR = (9, 11, 24)
    TMP = [9, 10, 11, 12]
    STAT = 16
    g.vm = []; g.ds = []
    g.label(f"L_k1_{T}")
    g0 = {"K": 0, "V": GKV, "Z1": 2 * GKV, "Z2": 2 * GKV + GZ}[T]
    g.e(f"s_sub_u32 s42, s3, {g0}")
    if T == "K": srd(g, 20, 10, 11, 512 * 8192)
    if T == "V": srd(g, 20, 12, 13, 512 * 8192)
    if ztype: srd(g, 20, 14, 15, 512 * 3584)
    if ztype: srd(g, 24, 4, 5, 2 * MB)
    else: srd(g, 24, 6, 7, 2 * MB)
    colbase = 1792 if T == "Z2" else 0
    g.e(f"s_mul_i32 s44, s42, {NP * 128}")
    if colbase: g.e(f"s_add_u32 s44, s44, {colbase}")
    g.e(f"s_mov_b32 s45, {colbase + (NTOT - 1) * 128}")
    g.e("s_lshl_b32 s46, s40, 12")
    g.e(("s_bfe_u32 s54, s2, 0x20006" if MAP84 else "s_bfe_u32 s54, s2, 0x20005") if ROT else "s_mov_b32 s54, 0")
    g.e("s_bfe_u32 s55, s2, 0x10007" if (ztype and ROT and not MAP84) else "s_mov_b32 s55, 0")
    g.e(f"s_mul_i32 s56, s55, {256 * rowstride}")
    g.e(f"s_sub_u32 s57, {256 * rowstride}, s56")
    def xoff(dst, q, shift):
        g.e(f"s_add_u32 s{dst}, s54, {q & 3}")
        g.e(f"s_and_b32 s{dst}, s{dst}, 3")
        g.e(f"s_xor_b32 s48, s55, {q >> 2}")
        g.e(f"s_lshl_b32 s48, s48, 2")
        g.e(f"s_add_u32 s{dst}, s{dst}, s48")
        g.e(f"s_lshl_b32 s{dst}, s{dst}, {shift}")
    g.e("v_bfe_u32 v28, v0, 3, 3")
    g.e("v_and_b32 v29, 7, v0")
    g.e("v_lshrrev_b32 v30, 1, v28")
    g.e("v_xor_b32 v29, v29, v30")
    if T == "Z2":
        g.e("v_lshrrev_b32 v30, 2, v28")
        g.e("v_and_b32 v28, 3, v28")
        g.e("v_lshl_add_u32 v28, v30, 3, v28")
        rowoff = [0, 16, 4, 20]
    else:
        rowoff = [0, 8, 16, 24]
    g.e("s_lshl_b32 s49, s41, 8")
    g.e("s_lshl_b32 s50, s40, 5")
    g.e("s_add_u32 s49, s49, s50")
    g.e("v_add_u32 v28, s49, v28")
    g.e("v_lshlrev_b32 v28, 10, v28")
    g.e("v_xor_b32 v30, 4, v29")
    g.e("v_lshl_add_u32 v29, v29, 4, v28")
    g.e("v_lshl_add_u32 v30, v30, 4, v28")
    for i in range(4): g.e(f"v_add_u32 v{VXA + i}, {rowoff[i] * 1024 - i * 1024}, v{29 + (i & 1)}")

    order = [(0, 0), (1, 0), (0, 1), (1, 1)] if not ztype else [(0, 0), (0, 1), (1, 0), (1, 1)]
    for p in range(2, NP): order += [(p, 0), (p, 1)]
    NST = len(order)
    XPOS = [2, 3, 4, 2, 3, 4, 3, 4] if not ztype else [0, 1, 2, 3, 4, 0, 1, 2]

    def xdma_ops(q):
        ops = []
        for i in range(4):
            def op(i=i):
                if i == 0: xoff(43, q, 7)
                g.e(f"s_add_u32 m0, s46, {XPOS[q] * 32768}")
                g.e("s_nop 0")
                g.vmem(f"buffer_load_dwordx4 v{VXA + i}, s[24:27], s43 offen offset:{i * 1024} lds", ("x", q))
            ops.append(op)
        return ops
    def xdma(q):
        for op in xdma_ops(q): op()
    def xread(q):
        g.wait_vm(("x", q))
        for ks in range(2):
            for a in range(2):
                g.lds(f"DR {xreg(a, 2 * q + ks)},{VXR[XPOS[q] >> 1] + ks},{(XPOS[q] & 1) * 32768 + a * 2048}", ("x", q))
    def wdma_ops(s, sr=51):
        if s >= NST: return []
        p, kh = order[s]
        ops = []
        for j in range(4):
            def op(j=j):
                if j == 0:
                    g.e(f"s_add_u32 s{sr}, s44, {p * 128}")
                    g.e(f"s_min_u32 s{sr}, s{sr}, s45")
                    g.e(f"s_add_u32 s{sr}, s{sr}, s{57 if kh else 56}")
                g.e(f"s_add_u32 m0, s46, {(s % 4) * 32768}")
                g.e("s_nop 0")
                g.vmem(f"buffer_load_dwordx4 v{VW + j}, s[20:23], s{sr} offen offset:{j * 1024} {NTW} lds", ("w", s))
            ops.append(op)
        return ops
    def wdma(s):
        for op in wdma_ops(s, 47): op()

    if TOUCH:
        g.e("s_lshr_b32 s49, s2, 5")
        g.e("v_bfe_u32 v28, v0, 5, 1")
        g.e("v_lshl_add_u32 v28, v28, 2, s49")
        g.e("v_and_b32 v28, 7, v28")
        g.e("v_lshlrev_b32 v28, 15, v28")
        g.e("v_and_b32 v29, 31, v0")
        g.e("v_lshl_add_u32 v28, v29, 7, v28")
        g.e("s_lshl_b32 s49, s41, 18")
        g.e("s_add_u32 s49, s49, s46")
        if TOUCH & 1: g.vmem("buffer_load_dword v14, v28, s[24:27], s49 offen", "t")
        g.e("s_bfe_u32 s49, s2, 0x20003")
        g.e("s_lshl_b32 s49, s49, 7")
        g.e("s_lshl_b32 s50, s40, 4")
        g.e("s_add_u32 s49, s49, s50")
        g.e("v_bfe_u32 v28, v0, 1, 4")
        g.e("v_add_u32 v28, s49, v28")
        g.e(f"v_mul_u32_u24 v28, {rowstride}, v28")
        g.e("v_and_b32 v29, 1, v0")
        g.e("v_lshl_add_u32 v28, v29, 7, v28")
        g.e("v_bfe_u32 v29, v0, 5, 1")
        g.e(f"v_lshl_add_u32 v28, v29, {8 if TOUCH & 4 else 30}, v28")
        if TOUCH & 2: g.vmem(f"buffer_load_dword v15, v28, s[20:23], s44 offen {NTW}", "t")
    if ztype:
        xdma(0); xdma(1)
        g.e("s_barrier")
        xdma(2); xdma(3); xdma(4)
        w_voffsets(g, rowstride, VW, 54)
    else:
        w_voffsets(g, rowstride, VW, 54)
        g.stamp(11)
        wdma(0); xdma(0)
        g.stamp(14)
        g.e("s_barrier")
        xdma(1)
    off, sz = {"K": (WS_K, SZ_KV), "V": (WS_V, SZ_KV), "Z1": (WS_Z1, SZ_Z), "Z2": (WS_Z2, SZ_Z)}[T]
    srd(g, 28, 16, 17, sz, off)
    tr_bases(g, VTE, VTO)
    g.e("v_and_b32 v28, 63, v0")
    g.e(f"v_lshlrev_b32 v{VST}, 4, v28")
    g.e("v_and_b32 v28, 15, v0")
    g.e("v_bfe_u32 v29, v0, 4, 2")
    g.e("v_lshrrev_b32 v30, 1, v28")
    g.e("v_xor_b32 v29, v29, v30")
    g.e("v_lshlrev_b32 v29, 4, v29")
    g.e("v_lshl_add_u32 v29, v28, 7, v29")
    g.e(f"v_add_u32 v{VXR[0]}, s46, v29")
    g.e(f"v_xor_b32 v{VXR[0] + 1}, 64, v{VXR[0]}")
    for k in (1, 2):
        for ks in range(2): g.e(f"v_add_u32 v{VXR[k] + ks}, {k * 0x10000}, v{VXR[0] + ks}")

    if ztype:
        ONES = 32
        SUM = (64, 68); GR = (72, 76)
        for i in range(4): g.e(f"v_mov_b32 v{ONES + i}, 0x3f803f80")
        g.e(f"s_mov_b32 s52, {f32(C1)}")
        g.e(f"v_mov_b32 v{VC2}, {f32(C2)}")
        seq = [0, 1, 2, 3, 4, 5, 6, 7]
        if PROF == 3: g.stamp(2)
        xread(seq[0])
        for qi, q in enumerate(seq):
            g.wait_ds(("x", q))
            if PROF == 3: g.stamp(3 + q)
            if q < 3: xdma(q + 5)
            if q >= 5: wdma(q - 5)
            if qi < 7: xread(seq[qi + 1])
            for m in (2 * q, 2 * q + 1):
                op = "MZ" if (qi == 0 and m == 2 * q) else "M"
                for a in range(2): g.e(f"{op} {SUM[a]},{ONES},{xreg(a, m)}")
                for a in range(2): g.e(f"{op} {GR[a]},{xreg(a, m)},{xreg(a, m)}")
        S1, S2 = (96, 97), (14, 15)
        NT = 100
        g.e("v_and_b32 v28, 15, v0")
        g.e("v_bfe_u32 v29, v0, 4, 2")
        g.e("v_lshlrev_b32 v29, 2, v29")
        g.e("v_sub_u32 v28, v28, v29")
        for r in range(4): g.e(f"v_cmp_eq_u32 s[{32 + 2 * r}:{33 + 2 * r}], {r}, v28")
        g.e("s_nop 3")
        for a in range(2):
            g.e(f"v_mov_b32 v{S1[a]}, v{SUM[a]}")
            g.e(f"v_cndmask_b32 v{S2[a]}, 0, v{GR[a]}, s[32:33]")
        for r in range(1, 4):
            for a in range(2): g.e(f"v_cndmask_b32 v{S2[a]}, v{S2[a]}, v{GR[a] + r}, s[{32 + 2 * r}:{33 + 2 * r}]")
        for sw in ("v_permlane32_swap_b32", "v_permlane16_swap_b32"):
            for i in range(2): g.e(f"v_mov_b32 v{16 + i}, v{14 + i}")
            g.e("s_nop 1")
            for i in range(2): g.e(f"{sw} v{16 + i}, v{14 + i}")
            g.e("s_nop 1")
            for i in range(2): g.e(f"v_add_f32 v{14 + i}, v{14 + i}, v{16 + i}")
        ln_params(g, S1, S2, 512)
        if PROF == 3: g.stamp(11)
        g.e("s_mov_b32 s53, 0xffff0000")
        def norm_ops(m):
            ops = []
            for a in range(2):
                x = xreg(a, m)
                ops += [f"v_lshlrev_b32 v{NT + i}, 16, v{x + i}" for i in range(4)]
                ops += [f"v_and_b32 v{x + i}, s53, v{x + i}" for i in range(4)]
                ops += [f"v_fma_f32 v{NT + i}, v{NT + i}, v{S2[a]}, -v{S1[a]}" for i in range(4)]
                ops += [f"v_fma_f32 v{x + i}, v{x + i}, v{S2[a]}, -v{S1[a]}" for i in range(4)]
                ops += [f"PK {x + i},{NT + i},{x + i}" for i in range(4)]
            return ops
        for op in norm_ops(0): g.e(op)
        if T == "Z2":
            for i in range(16): g.e(f"v_mov_b32 v{STAT + i}, 0")
    def xn_store():
        skip = g.newlabel("noxn")
        g.e(f"s_cmp_lg_u32 s42, {NG - 1}")
        g.e(f"s_cbranch_scc1 {skip}")
        srd(g, 32, 16, 17, SZ_XN, WS_XN)
        g.e("s_lshl_b32 s49, s41, 18")
        g.e("s_lshl_b32 s50, s40, 15")
        g.e("s_add_u32 s49, s49, s50")
        for q in range(8):
            xoff(43, q, 11)
            g.e("s_add_u32 s43, s43, s49")
            g.e("s_add_u32 s50, s43, 16384")
            for a in range(2):
                for i in range(2):
                    x = xreg(a, 2 * q + i)
                    g.e(f"buffer_store_dwordx4 v[{x}:{x + 3}], v{VST}, s[32:35], s{50 if a else 43} offen offset:{i * 1024} {STF}")
        g.label(skip)

    def outbase(I, p):
        I(f"s_mul_i32 s48, s42, {NP}")
        I(f"s_add_u32 s48, s48, {p}")
        if T in ("K", "V"):
            I("s_lshr_b32 s49, s48, 1")
            I("s_lshl_b32 s49, s49, 19")
            I("s_and_b32 s48, s48, 1")
            I(f"s_lshl_b32 s48, s48, {11 if T == 'K' else 12}")
            I("s_add_u32 s48, s48, s49")
            I("s_lshl_b32 s49, s41, 16")
            I("s_add_u32 s48, s48, s49")
            I("s_lshl_b32 s49, s40, 13")
            I("s_add_u32 s48, s48, s49")
            I("s_add_u32 s50, s48, 4096")
        else:
            I(f"s_lshl_b32 s48, s48, {11 if T == 'Z1' else 12}")
            I("s_lshl_b32 s49, s41, 3")
            I("s_add_u32 s49, s49, s40")
            I("s_mul_i32 s49, s49, 57344")
            I("s_add_u32 s48, s48, s49")
            I("s_add_u32 s50, s48, 28672")

    ZPARK = 131072
    def epilogue(p, last=False):
        st = p & 1
        ops = []
        def I(s): ops.append(lambda s=s: g.e(s))
        if T != "Z2": outbase(I, p)
        frags = []
        if ktype:
            for a in range(2):
                for mm in range(2):
                    frags.append((areg(st, 2 * mm, a), areg(st, 2 * mm + 1, a), 50 if a else 48, mm * 1024))
        else:
            for cb in range(4):
                frags.append((areg(st, cb, 0), areg(st, cb, 1), 48, cb * 1024))
        for (x, y, so, io) in frags:
            if ztype:
                stats = None
                if T == "Z2":
                    stats = {}
                    for r in range(4):
                        stats[x + r] = (STAT + 2 * r, STAT + 2 * r + 1)
                        stats[y + r] = (STAT + 8 + 2 * r, STAT + 8 + 2 * r + 1)
                for s in gelu_ops([x, x + 1, x + 2, x + 3, y, y + 1, y + 2, y + 3], TMP, VC2, 52, stats): I(s)
            I(f"PK {x},{x},{x + 1}"); I(f"PK {x + 1},{x + 2},{x + 3}")
            I(f"PK {x + 2},{y},{y + 1}"); I(f"PK {x + 3},{y + 2},{y + 3}")
            if T == "Z2":
                if p == 0: ops.append(lambda x=x, io=io: g.lds(f"DW 13,{x},{io}", "park"))
            else:
                ops.append(lambda x=x, so=so, io=io: g.vmem(
                    f"buffer_store_dwordx4 v[{x}:{x + 3}], v{VST}, s[28:31], s{so} offen offset:{io} {STF}", "st"))
        return ops
    if T == "Z2":
        assert NP <= 3
        g.e(f"s_add_u32 s49, s46, {ZPARK}")
        g.e(f"v_add_u32 v13, s49, v{VST}")

    def final(p):
        g.stamp(12)
        g.e("s_nop 7")
        if T == "Z1": xn_store()
        for op in epilogue(p): op()
        if T == "Z2":
            for sh in (8, 4, 2, 1):
                g.e("s_nop 1")
                for i in range(16):
                    g.e(f"v_add_f32_dpp v{STAT + i}, v{STAT + i}, v{STAT + i} row_ror:{sh} row_mask:0xf bank_mask:0xf")
            srd(g, 36, 16, 17, GZ * 16384, WS_ST)
            g.e("v_bfe_u32 v9, v0, 4, 2")
            g.e("v_lshlrev_b32 v9, 6, v9")
            g.e("v_and_b32 v10, 15, v0")
            g.e("v_lshl_add_u32 v10, v10, 24, v9")
            g.e("s_lshl_b32 s50, s41, 11")
            g.e("s_lshl_b32 s49, s40, 8")
            g.e("s_add_u32 s50, s50, s49")
            g.e("s_lshl_b32 s49, s42, 14")
            g.e("s_add_u32 s49, s49, s50")
            for i in range(4):
                g.e(f"buffer_store_dwordx4 v[{STAT + 4 * i}:{STAT + 4 * i + 3}], v10, s[36:39], s49 offen offset:{16 * i} sc1")
            for i in range(4): g.e(f"DR {XR + 4 * i},13,{i * 1024}")
            srd(g, 32, 18, 19, 256)
            g.e("s_lshl_b32 s49, s41, 5")
            g.e("v_mov_b32 v11, 1")
            g.e(f"v_lshlrev_b32 v12, 20, v{VST}")
            g.e("v_and_b32 v10, 31, v0")
            g.e("v_lshlrev_b32 v10, 3, v10")
            spin = g.newlabel("spin"); done = g.newlabel("sdone")
            g.e("s_waitcnt vmcnt(0)")
            g.e("s_barrier")
            g.e("s_cmp_lg_u32 s40, 0")
            g.e(f"s_cbranch_scc1 {done}")
            g.e("buffer_atomic_add v11, v12, s[32:35], s49 offen sc1")
            g.label(spin)
            g.e("buffer_load_dword v11, v12, s[32:35], s49 offen sc1")
            g.e("s_waitcnt vmcnt(0)")
            g.e("v_readfirstlane_b32 s51, v11")
            g.e(f"s_cmp_ge_u32 s51, {GZ}")
            g.e(f"s_cbranch_scc1 {done}")
            g.e("s_sleep 4")
            g.e(f"s_branch {spin}")
            g.label(done)
            g.e("s_barrier")
            g.stamp(14)
            PB = 160
            for q in range(GZ):
                g.e(f"s_add_u32 s49, s50, {q * 16384}")
                g.e(f"buffer_load_dwordx2 v[{PB + 2 * q}:{PB + 2 * q + 1}], v10, s[36:39], s49 offen sc1")
            g.e(f"s_add_u32 s49, s46, {ZPARK}")
            g.e("v_add_u32 v10, s49, v10")
            g.e("v_add_u32 v9, s49, v9")
            g.e("s_waitcnt vmcnt(0) lgkmcnt(0)")
            for q in range(1, GZ):
                for i in range(2): g.e(f"v_add_f32 v{PB + i}, v{PB + i}, v{PB + 2 * q + i}")
            ln_params(g, [PB], [PB + 1], 896)
            g.e(f"ds_write_b64 v10, v[{PB}:{PB + 1}]")
            g.e("s_waitcnt lgkmcnt(0)")
            for i in range(4): g.e(f"DR {PB + 4 * i},9,{16 * i}")
            g.e("s_waitcnt lgkmcnt(0)")
            MEAN = [PB + 2 * e for e in range(8)]; VAR = [PB + 2 * e + 1 for e in range(8)]
            for pp in range(p + 1):
                outbase(g.e, pp)
                for cb in range(4):
                    x = XR + 4 * cb if pp == 0 else areg(pp & 1, cb, 0)
                    t = 16 + (cb & 1) * 8
                    for r in range(4): g.e(f"v_lshlrev_b32 v{t + 2 * r}, 16, v{x + r}")
                    for r in range(4): g.e(f"v_and_b32 v{t + 2 * r + 1}, s53, v{x + r}")
                    for e in range(8): g.e(f"v_fma_f32 v{t + e}, v{t + e}, v{VAR[e]}, -v{MEAN[e]}")
                    for r in range(4): g.e(f"PK {x + r},{t + 2 * r},{t + 2 * r + 1}")
                    g.e(f"buffer_store_dwordx4 v[{x}:{x + 3}], v{VST}, s[28:31], s48 offen offset:{cb * 1024} {STF}")
        g.stamp(13)
        g.stamp_dump(16, 17, 40, 0)
        g.e("s_endpgm")

    pend = []
    def wread(F, half=None):
        s, f = F >> 5, F & 31
        if s >= NST: return
        if f == 0 and half != 1:
            assert not pend
            g.wait_vm(("w", s))
            g.e("s_barrier")
            if s >= 2 and s % 2 == 0:
                g.e(f"v_xor_b32 v{VTE}, 0x10000, v{VTE}")
                g.e(f"v_xor_b32 v{VTO}, 0x10000, v{VTO}")
            if s >= (1 if ztype else 2): pend.extend(wdma_ops(s + 2))
        if pend and (f % 4 == 1 if not CLU else f >= 1) and half != 0: pend.pop(0)()
        mp, cb = f >> 2, f & 3
        r = WR + (F % 8) * 4
        for a in (range(2) if half is None else [half]):
            o = (s & 1) * 32768 + mp * 4096 + a * 512 + (cb >> 1) * 256
            g.lds(f"TR {r + 2 * a},{VTO if cb & 1 else VTE},{o}", ("w", F))

    g.stamp(1)
    ev = {}
    def at(F, fn): ev.setdefault(F, []).append(fn)
    if not ztype:
        xread(0)
        def spread(F0, ops, after=None):
            if after is not None: at(F0, lambda: g.wait_ds(("x", after)))
            for i, op in enumerate(ops): at(F0 + i, op)
        at(0, lambda: g.wait_ds(("x", 0)))
        spread(0, xdma_ops(2)); at(4, lambda: xread(1)); spread(4, xdma_ops(3), 0)
        at(8, lambda: g.wait_ds(("x", 1))); spread(8, wdma_ops(1, 47))
        at(12, lambda: xread(2)); spread(12, xdma_ops(4), 1)
        at(16, lambda: g.wait_ds(("x", 2))); spread(18, xdma_ops(5), 2)
        at(20, lambda: xread(3)); at(24, lambda: g.wait_ds(("x", 3)))
        spread(26, wdma_ops(2, 47), 3)
        at(30, lambda: xread(4)); spread(34, xdma_ops(6), 4)
        at(38, lambda: xread(5)); spread(42, xdma_ops(7), 5)
        at(50, lambda: xread(6)); spread(54, wdma_ops(3, 47), 6)
        at(66, lambda: xread(7)); at(84, lambda: g.wait_ds(("x", 7)))
    if PFW and not ztype:
        def pfw():
            g.e("s_bfe_u32 s43, s2, 0x20003")
            g.e("s_lshl_b32 s43, s43, 7")
            g.e("s_lshl_b32 s47, s40, 4")
            g.e("s_add_u32 s43, s43, s47")
            g.e("v_bfe_u32 v26, v0, 2, 4")
            g.e("v_add_u32 v26, s43, v26")
            g.e("v_lshlrev_b32 v26, 13, v26")
            g.e("v_and_b32 v27, 3, v0")
            g.e("v_lshl_add_u32 v26, v27, 7, v26")
            g.vmem(f"buffer_load_dword v27, v26, s[20:23], s44 offen offset:256 {NTP}", "t")
        at(PFW, pfw)
    if PF:
        def prefetch():
            srd(g, 32, 8, 9, 4 * MB)
            g.e("s_lshl_b32 s43, s2, 3")
            g.e("s_add_u32 s43, s43, s40")
            g.e(f"v_lshlrev_b32 v14, 3, v{VST}")
            g.e("v_bfe_u32 v15, v0, 4, 2")
            g.e("v_lshl_add_u32 v15, v15, 28, v14")
            g.e("s_lshl_b32 s47, s43, 11")
            g.vmem("buffer_load_dword v15, v15, s[32:35], s47 offen", "t")
        at(PF, prefetch)
    if ztype:
        for m in range(1, 16):
            ops = norm_ops(m)
            for i in range(4):
                at(("post", (m - 1) * 4 + i), lambda o=ops[i * 10:(i + 1) * 10]: [g.e(x) for x in o])
    for F in range(D): wread(F)
    fill = []
    done_at = {}
    for s, (p, kh) in enumerate(order):
        if kh == 1: done_at[s + 1] = p
    for s, (p, kh) in enumerate(order):
        st = p & 1
        if s < 9 and not (PROF == 3 and ztype): g.stamp(2 + s)
        if s == 2 * NS and NS < NP:
            cont = g.newlabel("cont")
            g.e(f"s_cmp_lg_u32 s42, {NG - 1}")
            g.e(f"s_cbranch_scc1 {cont}")
            sv = (list(g.vm), list(g.ds))
            final(NS - 1)
            g.vm, g.ds = sv
            g.label(cont)
        if s in done_at:
            assert not fill
            fill = epilogue(done_at[s])
            nslots = 60 if (ztype or kh == 0) else 27
            per = len(fill) / nslots
            acc = 0.0; slot = -3
            if CLU and not ztype:
                h = len(fill) - 10
                parts = [fill[:h], fill[h:]]
                for pi, part in enumerate(parts):
                    F0 = s * 32 + 3 + (32 * pi if kh == 0 else 6 * pi)
                    for i, op in enumerate(part): at(("post", F0 + i * 6 // len(part)), op)
                fill = []
        for f in range(32):
            F = s * 32 + f
            mp, cb = f >> 2, f & 3
            m = kh * 8 + mp
            for fn in ev.pop(F, []): fn()
            g.wait_ds(("w", F))
            r = WR + (F % 8) * 4
            for a in range(2):
                op = "MZ" if m == 0 else "M"
                if ktype: g.e(f"{op} {areg(st, cb, a)},{r},{xreg(a, m)}")
                else: g.e(f"{op} {areg(st, cb, a)},{xreg(a, m)},{r}")
                wread(F + D, a)
            for fn in ev.pop(("post", F), []): fn()
            if ztype and F < 60 and F % 4 == 3: g.e("s_nop 0")
            if fill:
                slot += 1
                if slot > 0:
                    acc += per
                    while fill and acc >= 1.0:
                        fill.pop(0)(); acc -= 1.0
        if kh == 1:
            while fill: fill.pop(0)()
    assert not ev
    final(NP - 1)

def gen_k1(g):
    g.e(".p2align 8")
    g.e(".type k1_kernel,@function")
    g.label("k1_kernel")
    g.e("s_cmp_ge_u32 s2, 256")
    g.e("s_cbranch_scc1 L_k1_end")
    g.stamp(0)
    if PROF: g.e("s_memrealtime s[94:95]")
    g.e("s_load_dwordx4 s[4:7], s[0:1], 0")
    g.e("s_load_dwordx4 s[8:11], s[0:1], 16")
    g.e("s_load_dwordx2 s[12:13], s[0:1], 32")
    g.e("s_load_dwordx2 s[14:15], s[0:1], 56")
    g.e("s_load_dwordx2 s[18:19], s[0:1], 96")
    g.e("s_load_dwordx2 s[16:17], s[0:1], 104")
    g.e("v_lshrrev_b32 v1, 6, v0")
    g.e("s_lshr_b32 s49, s2, 3")
    g.e("s_and_b32 s41, s2, 1")
    g.e("v_readfirstlane_b32 s40, v1")
    g.e("s_lshl_b32 s41, s41, 2")
    g.e("s_and_b32 s50, s49, 3")
    g.e("s_add_u32 s41, s41, s50")
    g.e("s_and_b32 s3, s2, 6")
    g.e("s_lshl_b32 s3, s3, 2")
    g.e("s_lshr_b32 s49, s49, 2")
    g.e("s_add_u32 s3, s3, s49")
    if MAP84:
        g.e("s_bfe_u32 s41, s2, 0x30003")
        g.e("s_and_b32 s3, s2, 7")
        g.e("s_lshl_b32 s3, s3, 2")
        g.e("s_lshr_b32 s49, s2, 6")
        g.e("s_add_u32 s3, s3, s49")
    g.e("s_waitcnt lgkmcnt(0)")
    g.e(f"s_cmp_lt_u32 s3, {GKV}")
    g.e("s_cbranch_scc1 L_k1_K")
    g.e(f"s_cmp_lt_u32 s3, {2 * GKV}")
    g.e("s_cbranch_scc1 L_k1_V")
    g.e(f"s_cmp_lt_u32 s3, {2 * GKV + GZ}")
    g.e("s_cbranch_scc1 L_k1_Z1")
    g.e(f"s_cmp_lt_u32 s3, {2 * GKV + 2 * GZ}")
    g.e("s_cbranch_scc1 L_k1_Z2")
    g.label("L_k1_end")
    g.e("s_endpgm")
    for T in ("K", "V", "Z1", "Z2"):
        gen_type(g, T)
```

```python
from asmlib import *
import k1
from k1 import w_voffsets, tr_bases, xreg, areg, WR, D
import math

QSCALE = 128 ** -0.5 * math.log2(math.e)
STASH = 131072
DSP = int(os.environ.get('DSP', '3')); EB = int(os.environ.get('EB', '14'))
XPRE = int(os.environ.get('XPRE', '4'))
PS = int(os.environ.get('PS', '0'))
NTSP = os.environ.get('NTSP', '')
PF2 = int(os.environ.get('PF2', '1'))
KINS = int(os.environ.get('KINS', '0'))
NTAIL = int(os.environ.get('NTAIL', '0'))
STF2 = os.environ.get('STF2', 'sc1')
PFS = int(os.environ.get('PFS', '54'))
STFX = os.environ.get('STFX', 'sc1'); STFU = os.environ.get('STFU', '')
NTWQ = os.environ.get('NTWQ', '')
NPART = 3
VF, VNEG, VL, VT, V16, VLT = 1, 3, 4, 6, 7, 8
NEGM, PR, TMP, OR, FR = 16, 24, 40, 128, 192
ML, FA, FB = 52, 56, 58
def sreg(kt, qb): return 72 + 16 * kt + 4 * qb
def preg(qb, kg): return PR + (qb * 2 + kg) * 4
def qreg(qb, mm): return 64 + 16 * mm + 4 * qb
def oreg(cb, qb): return OR + (cb * 2 + qb) * 4
def freg(j): return FR + j * 4

def merge_streams(main, fill, start=0):
    out = []
    n = len(main) - start
    acc = 0.0
    fill = list(fill)
    per = len(fill) / max(1, n)
    for i, m in enumerate(main):
        out.append(m)
        if i >= start:
            acc += per
            while fill and acc >= 0.999:
                out.append(fill.pop(0)); acc -= 1.0
    return out + fill

def dma4(g, so, first_m0=None, tag=None):
    ops = []
    for j in range(4):
        def op(j=j):
            if j == 0 and first_m0:
                g.e(first_m0); g.e("s_nop 0")
            g.vmem(f"buffer_load_dwordx4 v{V16}, s[28:31], s{so} offen offset:{j * 1024} lds", tag)
        ops.append(op)
    return ops

def next_ops(t):
    return [[f"s_and_b32 s19, s{t}, 3"], ["s_lshl_b32 s19, s19, 15"],
            ["s_xor_b32 s50, s19, 0x10000"], ["s_add_u32 s50, s50, s55"],
            [f"s_add_u32 s49, s{t}, 2"], ["s_lshl_b32 s51, s49, 14"], ["s_add_u32 s51, s51, s54"],
            ["s_cmp_lt_u32 s49, s48", "s_cselect_b32 s51, s51, s54"],
            [f"s_cmp_lt_u32 s{t}, s45", "s_cselect_b32 s49, s41, 0"],
            ["s_lshl_b32 s7, s49, 14"], ["s_add_u32 m0, s50, s7"], ["s_lshl_b32 s49, s49, 24"],
            ["s_add_u32 s7, s51, s49"], [f"s_add_u32 s51, s51, {16 * MB}"]]

def softmax_ops(g):
    ops = []
    I = lambda s: ops.append(lambda s=s: g.e(s))
    T = [TMP + i for i in range(8)]
    k = 0
    for kt in range(4):
        for qb in range(2):
            s = sreg(kt, qb); t = T[(k % 2) * 4:(k % 2) * 4 + 4]; k += 1
            for r in range(4): I(f"v_exp_f32 v{t[r]}, v{s + r}")
            p = preg(qb, kt >> 1) + (kt & 1) * 2
            if kt == 0:
                I(f"v_add_f32 v{VLT + qb}, v{t[0]}, v{t[1]}")
                I(f"PK {p},{t[0]},{t[1]}")
                I(f"v_add_f32 v{VLT + qb}, v{VLT + qb}, v{t[2]}")
                I(f"PK {p + 1},{t[2]},{t[3]}")
                I(f"v_add_f32 v{VLT + qb}, v{VLT + qb}, v{t[3]}")
            else:
                I(f"v_add_f32 v{VLT + qb}, v{VLT + qb}, v{t[0]}")
                I(f"v_add_f32 v{VLT + qb}, v{VLT + qb}, v{t[1]}")
                I(f"PK {p},{t[0]},{t[1]}")
                I(f"v_add_f32 v{VLT + qb}, v{VLT + qb}, v{t[2]}")
                I(f"v_add_f32 v{VLT + qb}, v{VLT + qb}, v{t[3]}")
                I(f"PK {p + 1},{t[2]},{t[3]}")
    return ops

def xgroup(g, regs, op, tmp):
    for sw in ("v_permlane32_swap_b32", "v_permlane16_swap_b32"):
        for i, r in enumerate(regs): g.e(f"v_mov_b32 v{tmp + i}, v{r}")
        g.e("s_nop 1")
        for i, r in enumerate(regs): g.e(f"{sw} v{tmp + i}, v{r}")
        g.e("s_nop 1")
        for i, r in enumerate(regs): g.e(f"{op} v{r}, v{r}, v{tmp + i}")

def rescale(g, first):
    MX = [TMP + 8, TMP + 9]
    for qb in range(2):
        vals = [sreg(kt, qb) + r for kt in range(4) for r in range(4)]
        g.e(f"v_max3_f32 v{MX[qb]}, v{vals[0]}, v{vals[1]}, v{vals[2]}")
        for i in range(3, 15, 2): g.e(f"v_max3_f32 v{MX[qb]}, v{MX[qb]}, v{vals[i]}, v{vals[i + 1]}")
        g.e(f"v_max_f32 v{MX[qb]}, v{MX[qb]}, v{vals[15]}")
    xgroup(g, MX, "v_max_f32", TMP + 10)
    if not first:
        for qb in range(2): g.e(f"v_max_f32 v{MX[qb]}, 0, v{MX[qb]}")
    for kt in range(4):
        for qb in range(2):
            for r in range(4): g.e(f"v_sub_f32 v{sreg(kt, qb) + r}, v{sreg(kt, qb) + r}, v{MX[qb]}")
    for qb in range(2):
        for r in range(4): g.e(f"v_sub_f32 v{NEGM + qb * 4 + r}, v{NEGM + qb * 4 + r}, v{MX[qb]}")
    if not first:
        for qb in range(2): g.e(f"v_exp_f32 v{MX[qb]}, -v{MX[qb]}")
        g.e("s_nop 0")
        for cb in range(8):
            for qb in range(2):
                for r in range(4): g.e(f"v_mul_f32 v{oreg(cb, qb) + r}, v{oreg(cb, qb) + r}, v{MX[qb]}")
        for qb in range(2): g.e(f"v_mul_f32 v{VL + qb}, v{VL + qb}, v{MX[qb]}")

def mask_block(g):
    skip = g.newlabel("nomask"); l1 = g.newlabel("m1"); lf = g.newlabel("mf"); do = g.newlabel("domask")
    g.e("s_add_u32 s49, s52, 2")
    g.e("s_cmp_ge_u32 s49, s48")
    g.e(f"s_cbranch_scc1 {do}")
    g.e("s_sub_u32 s49, s52, s46")
    g.e("s_cmp_lt_u32 s49, 2")
    g.e(f"s_cbranch_scc0 {skip}")
    g.label(do)
    g.e("s_and_b32 s49, s52, 1")
    g.e("s_lshl_b32 s49, s49, 1")
    g.e("s_sub_u32 s49, s42, s49")
    def diag(kt, qb):
        for r in range(4): g.e(f"v_cndmask_b32 v{sreg(kt, qb) + r}, v{VNEG}, v{sreg(kt, qb) + r}, s[{8 + 2 * r}:{9 + 2 * r}]")
    def full(kt, qb):
        for r in range(4): g.e(f"v_mov_b32 v{sreg(kt, qb) + r}, v{VNEG}")
    g.e("s_cmp_ge_i32 s49, 2")
    g.e(f"s_cbranch_scc1 {skip}")
    g.e("s_cmp_eq_i32 s49, 1")
    g.e(f"s_cbranch_scc1 {l1}")
    g.e("s_cmp_lt_i32 s49, 0")
    g.e(f"s_cbranch_scc1 {lf}")
    diag(0, 0); full(1, 0); diag(1, 1); full(2, 0); full(2, 1); full(3, 0); full(3, 1)
    g.e(f"s_branch {skip}")
    g.label(l1)
    diag(2, 0); full(3, 0); diag(3, 1)
    g.e(f"s_branch {skip}")
    g.label(lf)
    for kt in range(4):
        for qb in range(2): full(kt, qb)
    g.label(skip)

def m_phase(g, has_pv, zero, split):
    g.vm = []
    dma = dma4(g, 7) + (dma4(g, 51, "s_add_u32 m0, s50, 16384") if split else [])
    sal = [["s_add_u32 s49, s52, 2"], ["s_cmp_ge_u32 s49, s48", "s_cselect_b32 s4, 0, 4"], ["s_sub_u32 s49, s52, s46"], ["s_min_u32 s4, s4, s49"],
           ["s_cmp_lt_u32 s52, s53", "s_cselect_b32 s47, 1, 2"], ["s_add_u32 s47, s47, s52"]]
    sal2 = next_ops(47)
    if has_pv:
        g.ds = []
        sp = DSP if split else 4
        for j in range(16):
            kg, cb = j >> 3, j & 7
            for qb in range(2):
                g.e(f"{'MZ' if zero and kg == 0 else 'M'} {oreg(cb, qb)},{freg(j)},{preg(qb, kg)}")
                if qb == 0 and j >= 1: g.lds(f"DR {freg(j - 1)},{VF},{(j - 1) * 1024}", ("k", j - 1))
            if dma and j % sp == 0: dma.pop(0)()
            elif sal:
                for t in sal.pop(0): g.e(t)
        g.lds(f"DR {freg(15)},{VF},{15 * 1024}", ("k", 15))
    else:
        sp = 2
    PT = int(os.environ.get('PT', '5'))
    if has_pv and not zero: g.stamp_if(7, 52, PT)
    tail = []
    so = softmax_ops(g)[:NTAIL]
    for b in range(0, NTAIL, 9):
        o = so[b:b + 9]
        tail += [[o[0]], [o[1]], [o[2]], [o[3]], o[4:6], o[6:8], o[8:9]]
    for j in range(16):
        kt, mm = j >> 2, j & 3
        if j == EB:
            g.wait_ds(("k", 15))
            if has_pv and not zero: g.stamp_if(8, 52, PT)
            g.e("s_setprio 2")
            g.e("s_barrier")
        if j == 0: g.wait_ds(("k", 10))
        if j == 5: g.wait_ds(("k", 15))
        for qb in range(2):
            if mm == 0: g.e(f"MC {sreg(kt, qb)},{freg(j)},{qreg(qb, mm)},{NEGM + qb * 4}")
            else: g.e(f"M {sreg(kt, qb)},{freg(j)},{qreg(qb, mm)}")
            if qb == 0 and j >= 1: g.lds(f"DR {freg(j - 1)},{VF},{16384 + (j - 1) * 1024}", "v")
            if j >= EB and tail:
                for op in tail.pop(0): op()
            if qb == 1 and dma and (j + 16) % sp == 0: dma.pop(0)()
            elif qb == 1 and sal:
                for t in sal.pop(0): g.e(t)
            elif not sal and not dma and sal2:
                for t in sal2.pop(0): g.e(t)
    assert not dma and not sal
    for grp in sal2:
        for t in grp: g.e(t)
    g.lds(f"DR {freg(15)},{VF},{16384 + 15 * 1024}", "v")
    g.e("s_setprio 0")
    for w in tail:
        for op in w: op()
    g.vm = []; g.ds = []
    if has_pv:
        g.e("s_cmp_lt_u32 s4, 4")
        g.e("s_cbranch_scc1 L_k2_sgen")
    else:
        g.e("s_branch L_k2_sgen")

def advance(g):
    g.e("s_mov_b32 s52, s47")
    g.e(f"v_add_u32 v{VF}, s19, v{V16}")

def gen_attn(g):
    g.vm = []; g.ds = []
    g.label("L_k2_attn")
    g.e("s_mul_i32 s49, s41, 37")
    g.e("s_lshr_b32 s49, s49, 8")
    g.e("s_mul_i32 s50, s49, 7")
    g.e("s_sub_u32 s44, s41, s50")
    g.e("s_lshl_b32 s49, s49, 3")
    g.e("s_add_u32 s43, s3, s49")
    g.e("s_lshr_b32 s41, s40, 2")
    g.e("s_and_b32 s42, s40, 3")
    g.e("s_sub_u32 s32, 15, s44")
    g.e("s_add_u32 s33, s44, 4")
    g.e("s_cmp_eq_u32 s44, 6")
    g.e("s_cselect_b32 s32, 3, s32")
    g.e("s_cselect_b32 s33, 2, s33")
    g.e("s_lshl_b32 s49, s3, 20")
    g.e("s_add_u32 s60, s6, s49")
    g.e("s_addc_u32 s61, s7, 0")
    g.e(f"s_mov_b32 s62, {MB}")
    g.e("s_mov_b32 s63, 0x20000")
    srd(g, 20, 4, 5, 512 * 8192)
    srd(g, 24, 16, 17, SZ_XN, WS_XN)
    srd(g, 28, 16, 17, 2 * SZ_KV, WS_K)
    srd(g, 36, 16, 17, SZ_CTX, WS_CTX)
    g.e("s_lshl_b32 s55, s42, 12")
    g.e("s_lshl_b32 s54, s43, 19")
    g.e("s_add_u32 s54, s54, s55")
    g.e("s_lshl_b32 s57, s42, 13")
    g.e(f"s_add_u32 s57, s57, {STASH}")
    g.e("v_and_b32 v28, 63, v0")
    g.e(f"v_lshlrev_b32 v{V16}, 4, v28")
    g.e("v_and_b32 v28, 15, v0")
    g.e("v_bfe_u32 v29, v0, 4, 2")
    g.e("v_lshlrev_b32 v29, 2, v29")
    g.e("v_sub_u32 v28, v28, v29")
    for r in range(4): g.e(f"v_cmp_le_i32 s[{8 + 2 * r}:{9 + 2 * r}], {r}, v28")
    g.label("L_k2_round")
    g.e("s_mov_b32 s53, 0")
    w_voffsets(g, 8192, 1, 53)
    g.e("s_lshl_b32 s18, s43, 8")
    g.e("s_lshl_b32 s19, s40, 12")
    g.e("s_cmp_eq_u32 s41, 0")
    g.e("s_cselect_b32 s47, s32, s33")
    g.e("s_lshl_b32 s47, s47, 17")
    g.e("s_lshl_b32 s49, s42, 15")
    g.e("s_add_u32 s47, s47, s49")
    def wdma(s):
        p, kh = s & 1, s >> 1
        g.e(f"s_add_u32 s51, s18, {p * 128 + kh * 256 * 8192}")
        g.e(f"s_add_u32 m0, s19, {s * 32768}")
        g.e("s_nop 0")
        for j in range(4):
            g.vmem(f"buffer_load_dwordx4 v{1 + j}, s[20:23], s51 offen offset:{j * 1024} {NTWQ} lds", ("w", s))
    def xload(m):
        if m % 4 == 0:
            g.e(f"s_add_u32 s6, s47, {m * 1024}")
            g.e(f"s_add_u32 s7, s47, {m * 1024 + 16384}")
        for a in range(2):
            x = xreg(a, m)
            g.vmem(f"buffer_load_dwordx4 v[{x}:{x + 3}], v{V16}, s[24:27], s{6 + a} offen offset:{(m % 4) * 1024}", ("x", m))
    wdma(0)
    for m in range(2): xload(m)
    code_touch(g, 96, 14, "L_k2_sp")
    g.e("s_barrier")
    for m in range(2, 4): xload(m)
    later = {6: lambda: wdma(1), 20: lambda: wdma(2), 50: lambda: wdma(3)}
    def pf_wsp():
        sk = g.newlabel("nopf")
        g.e("s_cmp_eq_u32 s32, 1")
        g.e(f"s_cbranch_scc1 {sk}")
        g.e("s_and_b32 s49, s2, 0xf8")
        g.e("s_add_u32 s49, s49, s40")
        g.e("s_mul_i32 s49, s49, 4736")
        g.e(f"v_lshlrev_b32 v10, 3, v{V16}")
        g.e("v_mov_b32 v12, 0x10000000")
        g.e("v_cmp_gt_u32 vcc, 4736, v10")
        g.e("s_nop 1")
        g.e("v_cndmask_b32 v11, v12, v10, vcc")
        g.e("buffer_load_dword v13, v11, s[60:63], s49 offen")
        g.label(sk)
    if PFS: later[PFS] = pf_wsp
    for m, F in zip(range(4, 16), (0, 2, 4, 8, 12, 16, 24, 28, 32, 36, 40, 44)): later[F] = lambda m=m: xload(m)
    tr_bases(g, 5, 6)
    g.e(f"s_mov_b32 s56, {f32(QSCALE)}")
    g.e("s_lshl_b32 s48, s32, 1")
    g.e("s_add_u32 s48, s48, 2")
    g.e("s_lshl_b32 s45, s33, 1")
    g.e("s_add_u32 s45, s45, 2")
    g.e("s_sub_u32 s53, s45, s41")
    g.e("s_sub_u32 s46, s45, 2")
    g.e("s_cmp_eq_u32 s41, 0")
    g.e("s_cselect_b32 s46, 0x1000, s46")
    g.stamp(1)
    def first_tile(t):
        g.e("s_lshl_b32 s49, s41, 24")
        g.e("s_add_u32 s50, s54, s49")
        if t: g.e("s_add_u32 s50, s50, 16384")
        return dma4(g, 50, f"s_add_u32 m0, s19, {t * 32768}", "kv")
    def wread(F, half=None):
        s, f = F >> 5, F & 31
        if s >= 4: return
        if f == 0 and half != 1:
            g.wait_vm(("w", s))
            g.e("s_barrier")
            if s == 2:
                g.e("v_xor_b32 v5, 0x10000, v5")
                g.e("v_xor_b32 v6, 0x10000, v6")
            if s >= 2:
                for op in first_tile(s - 2): op()
        mp, cb = f >> 2, f & 3
        r = WR + (F % 8) * 4
        for a in (range(2) if half is None else [half]):
            o = (s & 1) * 32768 + mp * 4096 + a * 512 + (cb >> 1) * 256
            g.lds(f"TR {r + 2 * a},{6 if cb & 1 else 5},{o}", ("w", F))
    def qpack(p):
        ops = []
        I = lambda s: ops.append(lambda s=s: g.e(s))
        for a in range(2):
            for mm in range(2):
                x, y = areg(p, 2 * mm, a), areg(p, 2 * mm + 1, a)
                assert x == qreg(a, 2 * p + mm)
                for r in range(4): I(f"v_mul_f32 v{x + r}, s56, v{x + r}")
                for r in range(4): I(f"v_mul_f32 v{y + r}, s56, v{y + r}")
                I(f"PK {x},{x},{x + 1}"); I(f"PK {x + 1},{x + 2},{x + 3}")
                I(f"PK {x + 2},{y},{y + 1}"); I(f"PK {x + 3},{y + 2},{y + 3}")
        return ops
    for F in range(D): wread(F)
    fill = []
    for s in range(4):
        p, kh = s & 1, s >> 1
        if s == 3: fill = qpack(0)
        for f in range(32):
            F = s * 32 + f
            mp, cb = f >> 2, f & 3
            m = kh * 8 + mp
            if p == 0 and cb == 0: g.wait_vm(("x", m))
            g.wait_ds(("w", F))
            r = WR + (F % 8) * 4
            for a in range(2):
                g.e(f"{'MZ' if m == 0 else 'M'} {areg(p, cb, a)},{r},{xreg(a, m)}")
                wread(F + D, a)
            if F in later: later.pop(F)()
            if fill and f >= 4:
                fill.pop(0)(); fill.pop(0)()
    assert not fill and not later
    g.stamp(2)
    g.e("s_mov_b32 s47, 0")
    for grp in next_ops(47):
        for t in grp: g.e(t)
    advance(g)
    g.e("s_waitcnt vmcnt(0)")
    g.e("s_barrier")
    g.vm = []; g.ds = []
    lb = g.newlabel("qb")
    g.e("s_cmp_eq_u32 s41, 0")
    g.e(f"s_cbranch_scc0 {lb}")
    for j in range(16): g.e(f"DR {freg(j)},{VF},{j * 1024}")
    g.label(lb)
    for op in qpack(1): op()
    g.e(f"v_mov_b32 v{VNEG}, {f32(-1e30)}")
    g.e(f"s_mov_b32 s56, {f32(2.0 ** 30)}")
    g.e(f"s_mov_b32 s6, {f32(2.0 ** -30)}")
    for i in range(8): g.e(f"v_mov_b32 v{NEGM + i}, 0")
    g.e(f"v_add_u32 v10, s57, v{V16}")
    g.stamp(3)
    la = g.newlabel("qa"); lj = g.newlabel("qj")
    g.e("s_cmp_eq_u32 s41, 0")
    g.e(f"s_cbranch_scc1 {la}")
    for j in range(16): g.e(f"DR {freg(j)},{VF},{j * 1024}")
    g.e("s_barrier")
    g.e(f"s_branch {lj}")
    g.label(la)
    for qb in range(2):
        for mm in range(4): g.e(f"DW 10,{qreg(qb, mm)},{(qb * 4 + mm) * 1024}")
    g.label(lj)
    g.e("s_waitcnt lgkmcnt(0)")
    m_phase(g, False, False, False)
    def s_fast(tag):
        g.label(f"L_k2_s{tag}")
        PT = int(os.environ.get('PT', '5'))
        g.stamp_if(9, 52, PT)
        for op in softmax_ops(g)[NTAIL:]: op()
        g.e(f"v_max_f32 v{VT}, v{VLT}, v{VLT + 1}")
        g.e(f"v_cmp_lt_f32 vcc, s56, v{VT}")
        g.e("s_cbranch_vccnz L_k2_sgen")
        for qb in range(2): g.e(f"v_add_f32 v{VL + qb}, v{VL + qb}, v{VLT + qb}")
        g.stamp_if(10, 52, PT)
        if PROF == 2:
            g.e("s_waitcnt vmcnt(0) lgkmcnt(0)")
            g.stamp_if(11, 52, PT)
        advance(g)
        if tag == "sh": g.e("s_cmp_lt_u32 s52, s45")
        g.e("s_waitcnt vmcnt(0) lgkmcnt(0)")
        g.e("s_barrier")
    s_fast("sh")
    g.e("s_cbranch_scc0 L_k2_msp")
    g.label("L_k2_msh")
    g.stamp_if(6, 52, int(os.environ.get('PT', '5'))); g.stamp_if(12, 52, int(os.environ.get('PT', '5')) + 1)
    m_phase(g, True, False, False)
    g.e("s_branch L_k2_ssh")
    s_fast("sp")
    g.label("L_k2_msp")
    m_phase(g, True, False, True)
    g.e("s_branch L_k2_ssp")
    g.label("L_k2_mzsh")
    m_phase(g, True, True, False)
    g.e("s_branch L_k2_ssh")
    g.label("L_k2_mzsp")
    m_phase(g, True, True, True)
    g.e("s_branch L_k2_ssp")
    def ctx_base(blk):
        g.e(f"s_lshl_b32 s49, s{blk}, 3")
        g.e("s_lshl_b32 s35, s42, 1")
        g.e("s_add_u32 s49, s49, s35")
        g.e("s_mul_i32 s49, s49, 159744")
        g.e("s_lshl_b32 s35, s43, 12")
        g.e("s_add_u32 s34, s49, s35")
        g.e("s_add_u32 s35, s34, 159744")
    def pack_store(mm, qb, fl=STF2):
        x, y = oreg(2 * mm, qb), oreg(2 * mm + 1, qb)
        return [f"PK {x},{x},{x + 1}", f"PK {x + 1},{x + 2},{x + 3}", f"PK {x + 2},{y},{y + 1}", f"PK {x + 3},{y + 2},{y + 3}",
                f"buffer_store_dwordx4 v[{x}:{x + 3}], v{V16}, s[36:39], s{34 + qb} offen offset:{mm * 1024} {fl}"]
    g.label("L_k2_sgen")
    g.e("s_sub_u32 s49, s52, s46")
    g.e("s_cmp_eq_u32 s49, 3")
    g.e("s_cselect_b32 s5, 2, 0")
    g.e("s_cmp_eq_u32 s52, 0")
    g.e("s_cselect_b32 s5, 1, s5")
    g.e("s_cselect_b32 s18, s6, 0")
    g.e("s_cmp_eq_u32 s5, 2")
    g.e("s_cselect_b32 s18, s6, s18")
    mask_block(g)
    ny = g.newlabel("ny"); jy = g.newlabel("jy")
    g.e("s_cmp_eq_u32 s5, 2")
    g.e(f"s_cbranch_scc0 {ny}")
    ctx_base(33)
    so = softmax_ops(g)
    k = 0
    for mm in range(4):
        for qb in range(2):
            for cb in (2 * mm, 2 * mm + 1):
                for r in range(4): g.e(f"v_mul_f32 v{oreg(cb, qb) + r}, v{oreg(cb, qb) + r}, v{FA + qb}")
            for t in pack_store(mm, qb): g.e(t)
            n = 9 if k < 2 else 10
            for op in so[:n]: op()
            so = so[n:]; k += 1
    assert not so
    g.e(f"s_branch {jy}")
    g.label(ny)
    for op in softmax_ops(g): op()
    g.label(jy)
    g.e(f"v_max_f32 v{VT}, v{VLT}, v{VLT + 1}")
    g.e(f"v_min_f32 v{TMP}, v{VLT}, v{VLT + 1}")
    g.e(f"v_cmp_lt_f32 vcc, s56, v{VT}")
    g.e("s_cbranch_vccnz L_k2_slow")
    g.e(f"v_cmp_gt_f32 vcc, s18, v{TMP}")
    g.e("s_cbranch_vccnz L_k2_slow")
    g.label("L_k2_back")
    nf = g.newlabel("nf")
    g.e("s_cmp_eq_u32 s5, 0")
    g.e(f"s_cbranch_scc1 {nf}")
    for qb in range(2): g.e(f"v_mov_b32 v{VL + qb}, 0")
    g.label(nf)
    for qb in range(2): g.e(f"v_add_f32 v{VL + qb}, v{VL + qb}, v{VLT + qb}")
    g.e("s_add_u32 s49, s52, 2")
    g.e("s_cmp_ge_u32 s49, s48")
    g.e("s_cbranch_scc1 L_k2_xlast")
    nl = g.newlabel("nyl")
    g.e("s_sub_u32 s49, s52, s46")
    g.e("s_cmp_eq_u32 s49, 1")
    g.e(f"s_cbranch_scc0 {nl}")
    g.e(f"v_add_u32 v10, s57, v{V16}")
    for qb in range(2):
        for mm in range(4): g.e(f"DR {qreg(qb, mm)},10,{(qb * 4 + mm) * 1024}")
    xgroup(g, [VL, VL + 1], "v_add_f32", TMP + 2)
    for qb in range(2): g.e(f"v_rcp_f32 v{FA + qb}, v{VL + qb}")
    for i in range(8): g.e(f"v_mov_b32 v{NEGM + i}, 0")
    g.label(nl)
    advance(g)
    g.e("s_cmp_lt_u32 s52, s45")
    g.e("s_cselect_b32 s49, 0, 4")
    g.e("s_add_u32 s5, s5, s49")
    w8 = g.newlabel("w8")
    g.e("s_cmp_eq_u32 s5, 6")
    g.e(f"s_cbranch_scc1 {w8}")
    g.e("s_waitcnt vmcnt(0)")
    g.label(w8)
    g.e("s_waitcnt vmcnt(8) lgkmcnt(0)")
    g.e("s_barrier")
    g.e("s_cmp_eq_u32 s5, 0")
    g.e("s_cbranch_scc1 L_k2_msh")
    g.e("s_cmp_eq_u32 s5, 4")
    g.e("s_cbranch_scc1 L_k2_msp")
    g.e("s_cmp_eq_u32 s5, 1")
    g.e("s_cbranch_scc1 L_k2_mzsh")
    g.e("s_branch L_k2_mzsp")
    g.label("L_k2_xlast")
    g.e("s_and_b32 s49, s48, 3")
    g.e("s_lshl_b32 s49, s49, 15")
    g.e("s_lshl_b32 s50, s42, 13")
    g.e("s_add_u32 s50, s50, s49")
    g.e(f"v_add_u32 v11, s50, v{V16}")
    g.e(f"v_add_u32 v10, s57, v{V16}")
    g.e("s_xor_b32 s49, s49, 0x10000")
    g.e("s_lshl_b32 s50, s42, 10")
    g.e("s_add_u32 s49, s49, s50")
    g.e(f"v_add_u32 v{VT}, s49, v{V16}")
    xaddr = lambda i: (10 + (i >> 3), (i & 7) * 1024)
    def pvgroup(cb, zero, mid=()):
        mid = list(mid)
        for kg in range(2):
            for qb in range(2):
                g.e(f"{'MZ' if zero and kg == 0 else 'M'} {oreg(cb, qb)},{freg(kg * 8 + cb)},{preg(qb, kg)}")
                n = -(-len(mid) // (4 - (kg * 2 + qb)))
                for _ in range(n): mid.pop(0)()
    g.e("s_cmp_eq_u32 s41, 0")
    g.e("s_cbranch_scc0 L_k2_xlastB")
    g.e(f"v_mov_b32 v{ML}, v{NEGM}")
    g.e(f"v_mov_b32 v{ML + 1}, v{NEGM + 4}")
    g.e(f"v_mov_b32 v{ML + 2}, v{VL}")
    g.e(f"v_mov_b32 v{ML + 3}, v{VL + 1}")
    g.e(f"DW {VT},{ML},0")
    g.e("s_waitcnt vmcnt(0) lgkmcnt(0)")
    g.e("s_barrier")
    dw = lambda i: (lambda: g.e(f"DW {xaddr(i)[0]},{OR + i * 4},{xaddr(i)[1]}"))
    for cb in range(8):
        pvgroup(cb, False, [dw(2 * cb - 6), dw(2 * cb - 5)] if cb >= 3 else [])
    for i in range(10, 12): dw(i)()
    g.e("s_nop 3")
    for i in range(12, 16): dw(i)()
    g.e("s_waitcnt lgkmcnt(0)")
    g.e("s_barrier")
    g.e("s_branch L_k2_rend")
    g.label("L_k2_xlastB")
    g.e(f"DR {ML},{VT},0")
    ctx_base(32)
    NM = TMP
    g.e("s_waitcnt lgkmcnt(0)")
    for qb in range(2): g.e(f"v_min_f32 v{NM + qb}, v{ML + qb}, v{NEGM + 4 * qb}")
    for qb in range(2): g.e(f"v_sub_f32 v{FA + qb}, v{NM + qb}, v{ML + qb}")
    for qb in range(2): g.e(f"v_sub_f32 v{FB + qb}, v{NM + qb}, v{NEGM + 4 * qb}")
    for i in range(4): g.e(f"v_exp_f32 v{FA + i}, v{FA + i}")
    g.e("s_nop 0")
    for qb in range(2): g.e(f"v_mul_f32 v{VL + qb}, v{VL + qb}, v{FB + qb}")
    for qb in range(2): g.e(f"v_fmac_f32 v{VL + qb}, v{ML + 2 + qb}, v{FA + qb}")
    xgroup(g, [VL, VL + 1], "v_add_f32", TMP + 2)
    for qb in range(2): g.e(f"v_rcp_f32 v{VL + qb}, v{VL + qb}")
    g.e("s_nop 0")
    for qb in range(2): g.e(f"v_mul_f32 v{FA + qb}, v{FA + qb}, v{VL + qb}")
    for qb in range(2): g.e(f"v_mul_f32 v{FB + qb}, v{FB + qb}, v{VL + qb}")
    lz = g.newlabel("finz")
    g.e("s_cmp_eq_u32 s5, 0")
    g.e(f"s_cbranch_scc0 {lz}")
    for zero in (False, True):
        if zero: g.label(lz)
        g.ds = []
        for cb in range(4): pvgroup(cb, zero)
        g.e("s_barrier")
        def merge_ops(mm):
            ops = []
            I = lambda t: ops.append(lambda t=t: g.e(t))
            for qb in range(2):
                for cb in (2 * mm, 2 * mm + 1):
                    o = oreg(cb, qb)
                    for r in range(4): I(f"v_mul_f32 v{o + r}, v{o + r}, v{FB + qb}")
                    ops.append(lambda cb=cb, qb=qb: g.wait_ds(("o", cb, qb)))
                    for r in range(4): I(f"v_fmac_f32 v{o + r}, v{freg(qb * 8 + cb) + r}, v{FA + qb}")
                for t in pack_store(mm, qb, STFX): I(t)
            return ops
        xr = lambda cb, qb: (lambda: g.lds(f"DR {freg(qb * 8 + cb)},{xaddr(cb * 2 + qb)[0]},{xaddr(cb * 2 + qb)[1]}", ("o", cb, qb)))
        for cb in range(3): xr(cb, 0)(); xr(cb, 1)()
        m0 = merge_ops(0)
        for cb in range(4, 8):
            mid = [xr(cb - 1, 0), xr(cb - 1, 1)]
            if cb == 6: mid += m0[:len(m0) // 2]
            if cb == 7: mid += m0[len(m0) // 2:]
            pvgroup(cb, zero, mid)
        xr(7, 0)(); xr(7, 1)()
        for op in merge_ops(1) + merge_ops(2) + merge_ops(3): op()
        if not zero: g.e("s_branch L_k2_rend")
    g.label("L_k2_rend")
    g.stamp(5)
    g.e("s_cmp_eq_u32 s32, 3")
    g.e("s_cbranch_scc0 L_k2_aend")
    g.stamp(4)
    g.e("s_mov_b32 s32, 1")
    g.e("s_mov_b32 s33, 0")
    g.e("s_waitcnt vmcnt(0) lgkmcnt(0)")
    g.e("s_barrier")
    g.e("s_branch L_k2_round")
    g.label("L_k2_aend")
    if PF2:
        sk = g.newlabel("nopf")
        g.e("s_cmp_eq_u32 s44, 6")
        g.e(f"s_cbranch_scc0 {sk}")
        g.e("s_cmp_eq_u32 s41, 1")
        g.e(f"s_cbranch_scc0 {sk}")
        g.e("s_load_dwordx2 s[20:21], s[0:1], 40")
        g.e("s_load_dwordx2 s[28:29], s[0:1], 80")
        g.e("s_lshl_b32 s49, s43, 2")
        g.e("s_add_u32 s49, s49, s42")
        g.e(f"v_lshlrev_b32 v10, 3, v{V16}")
        g.e("s_lshl_b32 s50, s49, 15")
        g.e("s_mul_i32 s51, s49, 7168")
        g.e("s_waitcnt lgkmcnt(0)")
        g.e(f"s_mov_b32 s22, {4 * MB}")
        g.e("s_mov_b32 s23, 0x20000")
        g.e(f"s_mov_b32 s30, {896 * 1024}")
        g.e("s_mov_b32 s31, 0x20000")
        for i in range(4):
            g.e(f"buffer_load_dword v{12 + i}, v10, s[20:23], s50 offen")
            g.e("s_add_u32 s50, s50, 8192")
        g.e("buffer_load_dword v11, v10, s[28:31], s51 offen")
        g.label(sk)
    g.stamp_dump(16, 17, 40, 1)
    g.e("s_endpgm")
    g.label("L_k2_slow")
    l1 = g.newlabel("slow1"); l2 = g.newlabel("slow2")
    g.e("s_cmp_eq_u32 s5, 0")
    g.e(f"s_cbranch_scc0 {l1}")
    rescale(g, False)
    g.e(f"s_branch {l2}")
    g.label(l1)
    rescale(g, True)
    g.label(l2)
    for op in softmax_ops(g): op()
    g.e("s_branch L_k2_back")

def gen_spatial(g):
    ACC, AR, BB, Z1R = 144, 116, 84, 24
    ZB, ZS = 98304, 14336
    VWD = 80
    acc = lambda fb, tt: ACC + (fb * 4 + tt) * 4
    g.vm = []; g.ds = []
    g.label("L_k2_sp")
    g.e("s_sub_u32 s44, s41, 28")
    g.e("s_and_b32 s42, s40, 3")
    g.e("s_lshr_b32 s41, s40, 2")
    srd(g, 20, 6, 7, 2048 * 4096)
    srd(g, 24, 16, 17, SZ_Z, WS_Z2)
    g.e("v_and_b32 v28, 63, v0")
    g.e(f"v_lshlrev_b32 v{V16}, 4, v28")
    g.e("v_bfe_u32 v28, v0, 3, 3")
    g.e("v_and_b32 v29, 7, v0")
    g.e("v_lshrrev_b32 v30, 1, v28")
    g.e("v_xor_b32 v29, v29, v30")
    g.e("s_lshl_b32 s49, s3, 8")
    g.e("s_lshl_b32 s50, s40, 5")
    g.e("s_add_u32 s49, s49, s50")
    g.e("v_add_u32 v28, s49, v28")
    g.e("v_lshlrev_b32 v28, 12, v28")
    g.e("v_xor_b32 v30, 4, v29")
    g.e("v_lshl_add_u32 v29, v29, 4, v28")
    g.e("v_lshl_add_u32 v30, v30, 4, v28")
    for j in range(4): g.e(f"v_add_u32 v{VWD + j}, {j * 8 * 4096 - j * 1024}, v{29 + (j & 1)}")
    g.e("s_lshl_b32 s48, s40, 1")
    g.e("s_min_u32 s48, s48, 12")
    g.e("s_mul_i32 s49, s44, 14")
    g.e("s_add_u32 s49, s49, s48")
    g.e("s_lshl_b32 s43, s49, 10")
    g.e("s_mov_b32 s45, 0")
    g.e("s_lshl_b32 s46, s40, 12")
    g.e("s_lshl_b32 s47, s48, 10")
    g.e(f"s_add_u32 s47, s47, {ZB}")
    def wop(b, j):
        if j % 2 == 0:
            g.e(f"s_add_u32 m0, s46, {(b % 3) * 32768}")
            g.e("s_nop 0")
        g.vmem(f"buffer_load_dwordx4 v{VWD + j}, s[20:23], s45 offen offset:{j * 1024} {NTSP} lds", ("w", 2 * b))
        if j == 3: g.e("s_add_u32 s45, s45, 128")
    def zop(st, j):
        if j == 0:
            g.e(f"s_add_u32 m0, s47, {(st % 4) * ZS}")
            g.e("s_nop 0")
        g.vmem(f"buffer_load_dwordx4 v{V16}, s[24:27], s43 offen offset:{j * 1024} lds", ("z", st))
        if j == 1: g.e("s_add_u32 s43, s43, 57344")
    def dma_ops(st):
        b, h = st // 2 + 2, st & 1
        return [lambda: zop(st + 3, 0), lambda: zop(st + 3, 1), lambda: wop(b, 2 * h), lambda: wop(b, 2 * h + 1)]
    zop(0, 0); zop(0, 1)
    for j in range(4): wop(0, j)
    code_touch(g, 96, 14, "L_k2_spend", None, False)
    g.e("s_barrier")
    for st in (-2, -1):
        for op in dma_ops(st): op()
    srd(g, 28, 16, 17, SZ_Z, WS_Z1)
    srd(g, 36, 16, 17, SZ_CTX, WS_CTX)
    srd(g, 12, 8, 9, 4096)
    g.e("s_mul_i32 s49, s41, 7168")
    g.e(f"s_add_u32 s49, s49, {ZB}")
    g.e(f"v_add_u32 v4, s49, v{V16}")
    g.e("v_and_b32 v28, 15, v0")
    g.e("v_bfe_u32 v29, v0, 4, 2")
    g.e("v_lshrrev_b32 v30, 1, v28")
    g.e("v_xor_b32 v29, v29, v30")
    g.e("v_lshlrev_b32 v29, 4, v29")
    g.e("v_lshl_add_u32 v29, v28, 7, v29")
    g.e("s_lshl_b32 s49, s42, 13")
    g.e("v_add_u32 v1, s49, v29")
    g.e("v_xor_b32 v2, 64, v1")
    g.e("v_add_u32 v5, 0x10000, v1")
    g.e("v_add_u32 v6, 0x10000, v2")
    for i in range(112): g.e(f"v_mov_b32 v{ACC + i}, 0")
    def aread(st, fb): g.lds(f"DR {AR + fb * 4},4,{(st % 4) * ZS + fb * 1024}", ("a", st, fb))
    def bread(st, tt):
        sl = (st // 2) % 3
        g.lds(f"DR {BB + (st & 1) * 16 + tt * 4},{(5 if sl == 2 else 1) + (st & 1)},{(sl & 1) * 32768 + tt * 2048}", ("b", st))
    SCH = {(3, 0): ("a", 0), (3, 1): ("b", 0), (3, 2): ("b", 1), (4, 0): ("b", 2), (4, 1): ("b", 3), (4, 2): ("a", 1), (5, 0): ("a", 2), (6, 0): ("a", 3)}
    rd = lambda st, k: (aread if k[0] == "a" else bread)(st, k[1])
    g.wait_vm(("z", 0), ("w", 0))
    g.e("s_barrier")
    for key in sorted(SCH): rd(0, SCH[key])
    g.e("s_mov_b32 s52, 0")
    g.stamp(1)
    def step(st, extra=(), dma=4, nxt=True):
        extra = list(extra)
        pend = []
        for fb in range(7):
            g.wait_ds(("a", st, fb), ("b", st))
            for tt in range(4):
                g.e(f"M {acc(fb, tt)},{AR + fb * 4},{BB + (st & 1) * 16 + tt * 4}")
                if tt == 0 and fb < 3: aread(st, fb + 4)
                if nxt:
                    if (fb, tt) == (3, 0):
                        g.wait_vm(("z", st + 1), ("w", st + 1))
                        g.e("s_barrier")
                        pend = dma_ops(st)[:dma]
                    if (fb, tt) in SCH: rd(st + 1, SCH[(fb, tt)])
                if tt == 3 and pend: pend.pop(0)()
                if tt == 3 and extra and fb < 3:
                    extra.pop(0)()
        assert not pend and not extra
    g.label("L_k2_sploop")
    vm0, ds0 = list(g.vm), list(g.ds)
    for st in range(12): step(st)
    ren = lambda t: (t[0], t[1] - 12) + t[2:]
    g.vm = [ren(t) for t in g.vm]; g.ds = [ren(t) for t in g.ds]
    assert g.vm == vm0 and g.ds == ds0, (g.vm, vm0, g.ds, ds0)
    g.e("s_add_u32 s52, s52, 1")
    g.e("s_cmp_lt_u32 s52, 5")
    g.e("s_cbranch_scc1 L_k2_sploop")
    g.stamp(2)
    g.e("s_lshl_b32 s49, s3, 4")
    g.e("s_lshl_b32 s50, s42, 2")
    g.e("s_add_u32 s49, s49, s50")
    g.e("s_mul_i32 s54, s49, 28672")
    g.e("s_mul_i32 s55, s49, 159744")
    g.e(f"s_add_u32 s55, s55, {128 * 1024}")
    for tt in range(4):
        g.e(f"v_add_u32 v{16 + tt}, {tt * 28672}, v{V16}")
        g.e(f"v_add_u32 v{20 + tt}, {tt * 159744}, v{V16}")
    g.e("s_mul_i32 s56, s44, 14")
    g.e("s_mul_i32 s48, s41, 7")
    g.e("s_add_u32 s56, s56, s48")
    g.e("v_and_b32 v11, 15, v0")
    g.e("v_lshlrev_b32 v11, 1, v11")
    g.e("s_lshr_b32 s56, s56, 1")
    g.e("s_lshl_b32 s56, s56, 10")
    g.e("s_add_u32 s54, s54, s56")
    g.e("s_add_u32 s55, s55, s56")
    def bload():
        g.e("s_lshl_b32 s49, s3, 9")
        g.e("s_lshl_b32 s50, s42, 7")
        g.e("s_add_u32 s49, s49, s50")
        for tt in range(4): g.vmem(f"buffer_load_ushort v{12 + tt}, v11, s[12:15], s49 offen offset:{tt * 32}", "b")
    def z1load(u):
        for tt in range(4):
            r = Z1R + (u * 4 + tt) * 4
            g.vmem(f"buffer_load_dwordx4 v[{r}:{r + 3}], v{16 + tt}, s[28:31], s54 offen offset:{u * 1024}", ("z1", u))
    step(0, [bload, lambda: z1load(0), lambda: z1load(1)], dma=2)
    step(1, [lambda: z1load(2)], dma=0)
    step(2, dma=0)
    step(3, [lambda: z1load(3)], dma=0, nxt=False)
    g.wait_vm("b")
    for tt in range(4): g.e(f"v_lshlrev_b32 v{12 + tt}, 16, v{12 + tt}")
    g.e("s_mov_b32 s53, 0xffff0000")
    vm_sv = list(g.vm)
    lode = g.newlabel("spodd"); lend = g.newlabel("spend")
    g.e("s_cmp_eq_u32 s41, 1")
    g.e(f"s_cbranch_scc1 {lode}")
    for fh in range(2):
        g.vm = list(vm_sv)
        if fh: g.label(lode)
        for u in range(4):
            halves = [(h, 2 * u + h - fh) for h in range(2) if 0 <= 2 * u + h - fh < 7]
            for h, fb in halves:
                for tt in range(4):
                    for r in range(4): g.e(f"v_add_f32 v{acc(fb, tt) + r}, v{acc(fb, tt) + r}, v{12 + tt}")
            g.wait_vm(("z1", u))
            for tt in range(4):
                z = Z1R + (u * 4 + tt) * 4
                for h, fb in halves:
                    a = acc(fb, tt); t = 8 if h else 1
                    g.e(f"v_lshlrev_b32 v{t}, 16, v{z + 2 * h}")
                    g.e(f"v_and_b32 v{t + 1}, s53, v{z + 2 * h}")
                    g.e(f"v_lshlrev_b32 v{t + 2}, 16, v{z + 2 * h + 1}")
                    g.e(f"v_and_b32 v{t + 3}, s53, v{z + 2 * h + 1}")
                    for r in range(4): g.e(f"v_mul_f32 v{a + r}, v{a + r}, v{t + r}")
                    g.e(f"PK {z + 2 * h},{a},{a + 1}"); g.e(f"PK {z + 2 * h + 1},{a + 2},{a + 3}")
                if len(halves) == 2:
                    g.vmem(f"buffer_store_dwordx4 v[{z}:{z + 3}], v{20 + tt}, s[36:39], s55 offen offset:{u * 1024} {STFU}", "st")
                else:
                    h = halves[0][0]
                    g.vmem(f"buffer_store_dwordx2 v[{z + 2 * h}:{z + 2 * h + 1}], v{20 + tt}, s[36:39], s55 offen offset:{u * 1024 + 8 * h} {STFU}", "st")
        if fh == 0: g.e(f"s_branch {lend}")
    g.label(lend)
    g.stamp(3)
    g.stamp_dump(16, 17, 40, 1)
    g.e("s_endpgm")

def gen_k2(g):
    g.e(".p2align 8")
    g.e(".type k2_kernel,@function")
    g.label("k2_kernel")
    g.e("s_cmp_ge_u32 s2, 256")
    g.e("s_cbranch_scc1 L_k2_end")
    g.stamp(0)
    if PROF: g.e("s_memrealtime s[94:95]")
    g.e("s_load_dwordx2 s[4:5], s[0:1], 16")
    g.e("s_load_dwordx4 s[8:11], s[0:1], 64")
    g.e("s_load_dwordx2 s[16:17], s[0:1], 104")
    g.e("v_lshrrev_b32 v1, 6, v0")
    g.e("s_and_b32 s3, s2, 7")
    g.e("s_lshr_b32 s41, s2, 3")
    g.e("v_readfirstlane_b32 s40, v1")
    g.e("s_waitcnt lgkmcnt(0)")
    g.e("s_mov_b32 s6, s8")
    g.e("s_mov_b32 s7, s9")
    g.e("s_mov_b32 s8, s10")
    g.e("s_mov_b32 s9, s11")
    g.e("s_cmp_lt_u32 s41, 28")
    g.e("s_cbranch_scc1 L_k2_attn")
    g.e("s_branch L_k2_sp")
    g.label("L_k2_end")
    g.e("s_endpgm")
    gen_attn(g)
    gen_spatial(g)
    g.label("L_k2_spend")
```

```python
import struct, os
PROF = int(os.environ.get('PROF', '0'))

def f32(x):
    return struct.unpack('<I', struct.pack('<f', x))[0]

class G:
    def __init__(self):
        self.lines = []
        self.vm = []
        self.ds = []
        self.uid = 0
    def e(self, s):
        self.lines.append(s)
    def label(self, name):
        self.lines.append(name + ":")
    def newlabel(self, base):
        self.uid += 1
        return f"L_{base}_{self.uid}"
    def vmem(self, s, tag=None):
        self.lines.append(s); self.vm.append(tag)
    def lds(self, s, tag=None):
        self.lines.append(s); self.ds.append(tag)
    def _need(self, lst, tags):
        idx = -1
        for i, t in enumerate(lst):
            if t in tags: idx = i
        return idx
    def wait_vm(self, *tags):
        idx = self._need(self.vm, tags)
        if idx < 0: return
        n = min(len(self.vm) - 1 - idx, 63)
        self.lines.append(f"s_waitcnt vmcnt({n})")
        self.vm = self.vm[len(self.vm) - n:] if n else []
    def wait_ds(self, *tags):
        idx = self._need(self.ds, tags)
        if idx < 0: return
        n = min(len(self.ds) - 1 - idx, 15)
        self.lines.append(f"s_waitcnt lgkmcnt({n})")
        self.ds = self.ds[len(self.ds) - n:] if n else []
    def wait_all(self, vm=True, ds=True):
        if vm and ds: self.lines.append("s_waitcnt vmcnt(0) lgkmcnt(0)")
        elif vm: self.lines.append("s_waitcnt vmcnt(0)")
        elif ds: self.lines.append("s_waitcnt lgkmcnt(0)")
        if vm: self.vm = []
        if ds: self.ds = []
    def stamp(self, i):
        if PROF == 4 and i > 6: return
        if PROF: self.lines.append(f"s_memtime s[{64 + 2 * i}:{65 + 2 * i}]")
        if PROF == 4 and 1 <= i <= 6: self.lines.append(f"s_memrealtime s[{64 + 2 * (i + 7)}:{65 + 2 * (i + 7)}]")
    def stamp_if(self, i, sreg, val):
        if PROF != 2: return
        l = self.newlabel("st")
        self.e(f"s_cmp_lg_u32 s{sreg}, {val}")
        self.e(f"s_cbranch_scc1 {l}")
        self.stamp(i)
        self.label(l)
    def stamp_dump(self, wslo, wshi, swave, kidx, n=16):
        if not PROF: return
        e = self.e
        e("s_memrealtime s[98:99]")
        e("s_waitcnt vmcnt(0) lgkmcnt(0)")
        e("s_memtime s[96:97]")
        e("s_waitcnt lgkmcnt(0)")
        e(f"s_add_u32 s60, s{wslo}, {WS_DBG + kidx * MB}")
        e(f"s_addc_u32 s61, s{wshi}, 0")
        e(f"s_mov_b32 s62, {MB}")
        e("s_mov_b32 s63, 0x20000")
        e("s_lshl_b32 s59, s2, 10")
        e(f"s_lshl_b32 s58, s{swave}, 7")
        e("s_add_u32 s59, s59, s58")
        e("v_and_b32 v1, 63, v0") if False else None
        e("v_mbcnt_lo_u32_b32 v1, -1, 0")
        e("v_mbcnt_hi_u32_b32 v1, -1, v1")
        e("v_lshlrev_b32 v1, 24, v1")
        for i in range(n + 2):
            e(f"v_mov_b32 v2, s{64 + 2 * i}")
            e(f"buffer_store_dword v2, v1, s[60:63], s59 offen offset:{4 * i}")
            e("s_nop 1")
    def text(self):
        return "\n".join(self.lines) + "\n"

MACROS = r"""
.macro M d,a,b
v_mfma_f32_16x16x32_bf16 v[\d:\d+3],v[\a:\a+3],v[\b:\b+3],v[\d:\d+3]
.endm
.macro MZ d,a,b
v_mfma_f32_16x16x32_bf16 v[\d:\d+3],v[\a:\a+3],v[\b:\b+3],0
.endm
.macro MC d,a,b,c
v_mfma_f32_16x16x32_bf16 v[\d:\d+3],v[\a:\a+3],v[\b:\b+3],v[\c:\c+3]
.endm
.macro TR d,a,o
ds_read_b64_tr_b16 v[\d:\d+1],v\a offset:\o
.endm
.macro DR d,a,o
ds_read_b128 v[\d:\d+3],v\a offset:\o
.endm
.macro DW a,d,o
ds_write_b128 v\a,v[\d:\d+3] offset:\o
.endm
.macro PK d,a,b
v_cvt_pk_bf16_f32 v\d,v\a,v\b
.endm
"""

def kd(name, vgpr, sgpr=102):
    acc = (vgpr + 3) // 4 * 4
    return f"""
.amdhsa_kernel {name}
  .amdhsa_next_free_vgpr {vgpr}
  .amdhsa_next_free_sgpr {sgpr}
  .amdhsa_accum_offset {acc}
  .amdhsa_group_segment_fixed_size 0
  .amdhsa_kernarg_size 112
  .amdhsa_user_sgpr_count 2
  .amdhsa_user_sgpr_kernarg_segment_ptr 1
  .amdhsa_system_sgpr_workgroup_id_x 1
.end_amdhsa_kernel
"""

def srd(g, s, lo, hi, size, off=0):
    if off:
        g.e(f"s_add_u32 s{s}, s{lo}, {off}")
        g.e(f"s_addc_u32 s{s+1}, s{hi}, 0")
    else:
        g.e(f"s_mov_b32 s{s}, s{lo}")
        g.e(f"s_mov_b32 s{s+1}, s{hi}")
    g.e(f"s_mov_b32 s{s+2}, {size}")
    g.e(f"s_mov_b32 s{s+3}, 0x20000")

CPF = int(os.environ.get('CPF', '1'))
def code_touch(g, s, v, end, start=None, track=True):
    if not CPF: return
    here = g.newlabel("pc")
    g.e(f"s_getpc_b64 s[{s}:{s + 1}]")
    g.label(here)
    if start:
        g.e(f"s_add_u32 s{s}, s{s}, {start}-{here}")
        g.e(f"s_addc_u32 s{s + 1}, s{s + 1}, 0")
    g.e(f"s_mov_b32 s{s + 2}, {end}-{start or here}")
    g.e(f"s_mov_b32 s{s + 3}, 0x20000")
    g.e(f"v_lshlrev_b32 v{v}, 7, v0")
    t = f"buffer_load_dword v{v}, v{v}, s[{s}:{s + 3}], 0 offen"
    if track: g.vmem(t, "code")
    else: g.e(t)

MB = 1 << 20
WS_XN = 0
WS_K = 2 * MB
WS_V = 18 * MB
WS_Z1 = 34 * MB
WS_Z2 = 38 * MB
WS_ST = 42 * MB
WS_CTX = 44 * MB
SZ_XN = 2 * MB
SZ_KV = 16 * MB
SZ_Z = 2048 * 896 * 2
SZ_ST = 3 * 2048 * 8
SZ_CTX = 128 * 156 * 1024
WS_DBG = 200 * MB
WS_SCR = 64 * MB
SZ_SCR = 32 * MB
WS_PART = 64 * MB
WS_XNP = 74 * MB
```

```python
from asmlib import *
import math

XR = 128
ACC = [64, 96]
WR = 32
D = 6
C2 = -2.0 * math.sqrt(2.0 / math.pi) * math.log2(math.e)
C1 = C2 * 0.044715
NPKV = int(os.environ.get('NPKV', '6'))
NPZ = int(os.environ.get('NPZ', '3'))
GKV = -(-64 // NPKV); GZ = -(-14 // NPZ)
assert 2 * GKV + 2 * GZ <= 32
NTW = os.environ.get('NTW', '')
TOUCH = int(os.environ.get('TOUCH', '0'))
PF = int(os.environ.get('PF', '76'))
MAP84 = int(os.environ.get('MAP84', '0'))
CLU = int(os.environ.get('CLU', '1'))
PFW = int(os.environ.get('PFW', '63'))
NTP = os.environ.get('NTP', '')
ROT = int(os.environ.get('ROT', '1'))
STF = os.environ.get('STF', 'sc1')

def xreg(a, m): return XR + (m * 2 + a) * 4
def areg(st, cb, a): return ACC[st] + (cb * 2 + a) * 4

def w_voffsets(g, rowstride, vbase, srot):
    g.e("v_bfe_u32 v28, v0, 5, 1")
    g.e("v_bfe_u32 v29, v0, 2, 2")
    g.e("v_lshl_add_u32 v28, v28, 2, v29")
    g.e(f"s_lshl_b32 s49, s{srot}, 1")
    g.e("s_add_u32 s49, s49, s40")
    g.e("s_and_b32 s49, s49, 7")
    g.e("s_lshl_b32 s49, s49, 5")
    g.e("v_add_u32 v28, s49, v28")
    g.e(f"s_mov_b32 s49, {rowstride}")
    g.e("v_mul_lo_u32 v28, v28, s49")
    g.e("v_bfe_u32 v29, v0, 4, 1")
    g.e("v_lshl_add_u32 v28, v29, 6, v28")
    g.e("v_and_b32 v29, 3, v0")
    g.e("v_xor_b32 v30, 2, v29")
    g.e("v_lshlrev_b32 v29, 4, v29")
    g.e("v_lshlrev_b32 v30, 4, v30")
    for j in range(4):
        g.e(f"v_add_u32 v31, {j * 8 * rowstride - j * 1024}, v28")
        g.e(f"v_add_u32 v{vbase + j}, v31, v{29 + (j & 1)}")

def tr_bases(g, ve, vo):
    g.e("v_bfe_u32 v28, v0, 4, 2")
    g.e("v_lshlrev_b32 v29, 10, v28")
    g.e("v_bfe_u32 v30, v0, 2, 2")
    g.e("v_lshl_add_u32 v29, v30, 6, v29")
    g.e("v_and_b32 v30, 3, v0")
    g.e("v_lshl_add_u32 v29, v30, 3, v29")
    g.e("v_and_b32 v28, 1, v28")
    g.e(f"v_lshl_add_u32 v{ve}, v28, 5, v29")
    g.e(f"v_xor_b32 v{vo}, 32, v{ve}")

def gelu_ops(regs, T, vc2, sc1, stats=None):
    out = []
    n = len(T)
    for i in range(0, len(regs), n):
        grp = list(zip(regs[i:i + n], T))
        out += [f"v_mul_f32 v{t}, v{x}, v{x}" for x, t in grp]
        out += [f"v_fma_f32 v{t}, v{t}, s{sc1}, v{vc2}" for x, t in grp]
        out += [f"v_mul_f32 v{t}, v{t}, v{x}" for x, t in grp]
        out += [f"v_exp_f32 v{t}, v{t}" for x, t in grp]
        out += [f"v_add_f32 v{t}, 1.0, v{t}" for x, t in grp]
        out += [f"v_rcp_f32 v{t}, v{t}" for x, t in grp]
        out += [f"v_mul_f32 v{x}, v{x}, v{t}" for x, t in grp]
        if stats:
            out += [f"v_add_f32 v{stats[x][0]}, v{stats[x][0]}, v{x}" for x, t in grp]
            out += [f"v_fmac_f32 v{stats[x][1]}, v{x}, v{x}" for x, t in grp]
    return out

def ln_params(g, MEAN, VAR, n):
    def rbf(rs):
        for r in rs: g.e(f"PK {r},{r},{r}")
        for r in rs: g.e(f"v_and_b32 v{r}, 0xffff0000, v{r}")
    for m, v in zip(MEAN, VAR):
        g.e(f"v_mul_f32 v{m}, {f32(1 / n)}, v{m}")
        g.e(f"v_mul_f32 v{v}, {f32(1 / n)}, v{v}")
    for m, v in zip(MEAN, VAR): g.e(f"v_fma_f32 v{v}, -v{m}, v{m}, v{v}")
    for v in VAR: g.e(f"v_max_f32 v{v}, 0, v{v}")
    rbf(list(MEAN) + list(VAR))
    for v in VAR: g.e(f"v_add_f32 v{v}, {f32(1e-5)}, v{v}")
    rbf(VAR)
    for v in VAR: g.e(f"v_sqrt_f32 v{v}, v{v}")
    g.e("s_nop 0")
    rbf(VAR)
    for v in VAR: g.e(f"v_rcp_f32 v{v}, v{v}")
    g.e("s_nop 0")
    for m, v in zip(MEAN, VAR): g.e(f"v_mul_f32 v{m}, v{m}, v{v}")

def gen_type(g, T):
    ktype = T in ("K", "Z1")
    ztype = T in ("Z1", "Z2")
    rowstride = 3584 if ztype else 8192
    NP = NPZ if ztype else NPKV
    NTOT = 14 if ztype else 64
    NG = GZ if ztype else GKV
    NS = NTOT - (NG - 1) * NP
    assert NS >= 2
    VW = 1
    VTE, VTO = 5, 6
    VST = 7
    VC2 = 8
    VXA = 20
    VXR = (9, 11, 24)
    TMP = [9, 10, 11, 12]
    STAT = 16
    g.vm = []; g.ds = []
    g.label(f"L_k1_{T}")
    g0 = {"K": 0, "V": GKV, "Z1": 2 * GKV, "Z2": 2 * GKV + GZ}[T]
    g.e(f"s_sub_u32 s42, s3, {g0}")
    if T == "K": srd(g, 20, 10, 11, 512 * 8192)
    if T == "V": srd(g, 20, 12, 13, 512 * 8192)
    if ztype: srd(g, 20, 14, 15, 512 * 3584)
    if ztype: srd(g, 24, 4, 5, 2 * MB)
    else: srd(g, 24, 6, 7, 2 * MB)
    colbase = 1792 if T == "Z2" else 0
    g.e(f"s_mul_i32 s44, s42, {NP * 128}")
    if colbase: g.e(f"s_add_u32 s44, s44, {colbase}")
    g.e(f"s_mov_b32 s45, {colbase + (NTOT - 1) * 128}")
    g.e("s_lshl_b32 s46, s40, 12")
    g.e(("s_bfe_u32 s54, s2, 0x20006" if MAP84 else "s_bfe_u32 s54, s2, 0x20005") if ROT else "s_mov_b32 s54, 0")
    g.e("s_bfe_u32 s55, s2, 0x10007" if (ztype and ROT and not MAP84) else "s_mov_b32 s55, 0")
    g.e(f"s_mul_i32 s56, s55, {256 * rowstride}")
    g.e(f"s_sub_u32 s57, {256 * rowstride}, s56")
    def xoff(dst, q, shift):
        g.e(f"s_add_u32 s{dst}, s54, {q & 3}")
        g.e(f"s_and_b32 s{dst}, s{dst}, 3")
        g.e(f"s_xor_b32 s48, s55, {q >> 2}")
        g.e(f"s_lshl_b32 s48, s48, 2")
        g.e(f"s_add_u32 s{dst}, s{dst}, s48")
        g.e(f"s_lshl_b32 s{dst}, s{dst}, {shift}")
    g.e("v_bfe_u32 v28, v0, 3, 3")
    g.e("v_and_b32 v29, 7, v0")
    g.e("v_lshrrev_b32 v30, 1, v28")
    g.e("v_xor_b32 v29, v29, v30")
    if T == "Z2":
        g.e("v_lshrrev_b32 v30, 2, v28")
        g.e("v_and_b32 v28, 3, v28")
        g.e("v_lshl_add_u32 v28, v30, 3, v28")
        rowoff = [0, 16, 4, 20]
    else:
        rowoff = [0, 8, 16, 24]
    g.e("s_lshl_b32 s49, s41, 8")
    g.e("s_lshl_b32 s50, s40, 5")
    g.e("s_add_u32 s49, s49, s50")
    g.e("v_add_u32 v28, s49, v28")
    g.e("v_lshlrev_b32 v28, 10, v28")
    g.e("v_xor_b32 v30, 4, v29")
    g.e("v_lshl_add_u32 v29, v29, 4, v28")
    g.e("v_lshl_add_u32 v30, v30, 4, v28")
    for i in range(4): g.e(f"v_add_u32 v{VXA + i}, {rowoff[i] * 1024 - i * 1024}, v{29 + (i & 1)}")

    order = [(0, 0), (1, 0), (0, 1), (1, 1)] if not ztype else [(0, 0), (0, 1), (1, 0), (1, 1)]
    for p in range(2, NP): order += [(p, 0), (p, 1)]
    NST = len(order)
    XPOS = [2, 3, 4, 2, 3, 4, 3, 4] if not ztype else [0, 1, 2, 3, 4, 0, 1, 2]

    def xdma_ops(q):
        ops = []
        for i in range(4):
            def op(i=i):
                if i == 0: xoff(43, q, 7)
                g.e(f"s_add_u32 m0, s46, {XPOS[q] * 32768}")
                g.e("s_nop 0")
                g.vmem(f"buffer_load_dwordx4 v{VXA + i}, s[24:27], s43 offen offset:{i * 1024} lds", ("x", q))
            ops.append(op)
        return ops
    def xdma(q):
        for op in xdma_ops(q): op()
    def xread(q):
        g.wait_vm(("x", q))
        for ks in range(2):
            for a in range(2):
                g.lds(f"DR {xreg(a, 2 * q + ks)},{VXR[XPOS[q] >> 1] + ks},{(XPOS[q] & 1) * 32768 + a * 2048}", ("x", q))
    def wdma_ops(s, sr=51):
        if s >= NST: return []
        p, kh = order[s]
        ops = []
        for j in range(4):
            def op(j=j):
                if j == 0:
                    g.e(f"s_add_u32 s{sr}, s44, {p * 128}")
                    g.e(f"s_min_u32 s{sr}, s{sr}, s45")
                    g.e(f"s_add_u32 s{sr}, s{sr}, s{57 if kh else 56}")
                g.e(f"s_add_u32 m0, s46, {(s % 4) * 32768}")
                g.e("s_nop 0")
                g.vmem(f"buffer_load_dwordx4 v{VW + j}, s[20:23], s{sr} offen offset:{j * 1024} {NTW} lds", ("w", s))
            ops.append(op)
        return ops
    def wdma(s):
        for op in wdma_ops(s, 47): op()

    if TOUCH:
        g.e("s_lshr_b32 s49, s2, 5")
        g.e("v_bfe_u32 v28, v0, 5, 1")
        g.e("v_lshl_add_u32 v28, v28, 2, s49")
        g.e("v_and_b32 v28, 7, v28")
        g.e("v_lshlrev_b32 v28, 15, v28")
        g.e("v_and_b32 v29, 31, v0")
        g.e("v_lshl_add_u32 v28, v29, 7, v28")
        g.e("s_lshl_b32 s49, s41, 18")
        g.e("s_add_u32 s49, s49, s46")
        if TOUCH & 1: g.vmem("buffer_load_dword v14, v28, s[24:27], s49 offen", "t")
        g.e("s_bfe_u32 s49, s2, 0x20003")
        g.e("s_lshl_b32 s49, s49, 7")
        g.e("s_lshl_b32 s50, s40, 4")
        g.e("s_add_u32 s49, s49, s50")
        g.e("v_bfe_u32 v28, v0, 1, 4")
        g.e("v_add_u32 v28, s49, v28")
        g.e(f"v_mul_u32_u24 v28, {rowstride}, v28")
        g.e("v_and_b32 v29, 1, v0")
        g.e("v_lshl_add_u32 v28, v29, 7, v28")
        g.e("v_bfe_u32 v29, v0, 5, 1")
        g.e(f"v_lshl_add_u32 v28, v29, {8 if TOUCH & 4 else 30}, v28")
        if TOUCH & 2: g.vmem(f"buffer_load_dword v15, v28, s[20:23], s44 offen {NTW}", "t")
    if ztype:
        xdma(0); xdma(1)
        code_touch(g, 36, 14, f"L_k1_{T}_end")
        g.e("s_barrier")
        xdma(2); xdma(3); xdma(4)
        w_voffsets(g, rowstride, VW, 54)
    else:
        w_voffsets(g, rowstride, VW, 54)
        g.stamp(11)
        wdma(0); xdma(0)
        code_touch(g, 36, 14, f"L_k1_{T}_end")
        g.stamp(14)
        g.e("s_barrier")
        xdma(1)
    off, sz = {"K": (WS_K, SZ_KV), "V": (WS_V, SZ_KV), "Z1": (WS_Z1, SZ_Z), "Z2": (WS_Z2, SZ_Z)}[T]
    srd(g, 28, 16, 17, sz, off)
    tr_bases(g, VTE, VTO)
    g.e("v_and_b32 v28, 63, v0")
    g.e(f"v_lshlrev_b32 v{VST}, 4, v28")
    g.e("v_and_b32 v28, 15, v0")
    g.e("v_bfe_u32 v29, v0, 4, 2")
    g.e("v_lshrrev_b32 v30, 1, v28")
    g.e("v_xor_b32 v29, v29, v30")
    g.e("v_lshlrev_b32 v29, 4, v29")
    g.e("v_lshl_add_u32 v29, v28, 7, v29")
    g.e(f"v_add_u32 v{VXR[0]}, s46, v29")
    g.e(f"v_xor_b32 v{VXR[0] + 1}, 64, v{VXR[0]}")
    for k in (1, 2):
        for ks in range(2): g.e(f"v_add_u32 v{VXR[k] + ks}, {k * 0x10000}, v{VXR[0] + ks}")

    if ztype:
        ONES = 32
        SUM = (64, 68); GR = (72, 76)
        for i in range(4): g.e(f"v_mov_b32 v{ONES + i}, 0x3f803f80")
        g.e(f"s_mov_b32 s52, {f32(C1)}")
        g.e(f"v_mov_b32 v{VC2}, {f32(C2)}")
        seq = [0, 1, 2, 3, 4, 5, 6, 7]
        if PROF == 3: g.stamp(2)
        xread(seq[0])
        for qi, q in enumerate(seq):
            g.wait_ds(("x", q))
            if PROF == 3: g.stamp(3 + q)
            if q < 3: xdma(q + 5)
            if q >= 5: wdma(q - 5)
            if qi < 7: xread(seq[qi + 1])
            for m in (2 * q, 2 * q + 1):
                op = "MZ" if (qi == 0 and m == 2 * q) else "M"
                for a in range(2): g.e(f"{op} {SUM[a]},{ONES},{xreg(a, m)}")
                for a in range(2): g.e(f"{op} {GR[a]},{xreg(a, m)},{xreg(a, m)}")
        S1, S2 = (96, 97), (14, 15)
        NT = 100
        g.e("v_and_b32 v28, 15, v0")
        g.e("v_bfe_u32 v29, v0, 4, 2")
        g.e("v_lshlrev_b32 v29, 2, v29")
        g.e("v_sub_u32 v28, v28, v29")
        for r in range(4): g.e(f"v_cmp_eq_u32 s[{32 + 2 * r}:{33 + 2 * r}], {r}, v28")
        g.e("s_nop 3")
        for a in range(2):
            g.e(f"v_mov_b32 v{S1[a]}, v{SUM[a]}")
            g.e(f"v_cndmask_b32 v{S2[a]}, 0, v{GR[a]}, s[32:33]")
        for r in range(1, 4):
            for a in range(2): g.e(f"v_cndmask_b32 v{S2[a]}, v{S2[a]}, v{GR[a] + r}, s[{32 + 2 * r}:{33 + 2 * r}]")
        for sw in ("v_permlane32_swap_b32", "v_permlane16_swap_b32"):
            for i in range(2): g.e(f"v_mov_b32 v{16 + i}, v{14 + i}")
            g.e("s_nop 1")
            for i in range(2): g.e(f"{sw} v{16 + i}, v{14 + i}")
            g.e("s_nop 1")
            for i in range(2): g.e(f"v_add_f32 v{14 + i}, v{14 + i}, v{16 + i}")
        ln_params(g, S1, S2, 512)
        if PROF == 3: g.stamp(11)
        g.e("s_mov_b32 s53, 0xffff0000")
        def norm_ops(m):
            ops = []
            for a in range(2):
                x = xreg(a, m)
                ops += [f"v_lshlrev_b32 v{NT + i}, 16, v{x + i}" for i in range(4)]
                ops += [f"v_and_b32 v{x + i}, s53, v{x + i}" for i in range(4)]
                ops += [f"v_fma_f32 v{NT + i}, v{NT + i}, v{S2[a]}, -v{S1[a]}" for i in range(4)]
                ops += [f"v_fma_f32 v{x + i}, v{x + i}, v{S2[a]}, -v{S1[a]}" for i in range(4)]
                ops += [f"PK {x + i},{NT + i},{x + i}" for i in range(4)]
            return ops
        for op in norm_ops(0): g.e(op)
        if T == "Z2":
            for i in range(16): g.e(f"v_mov_b32 v{STAT + i}, 0")
    def xn_store():
        skip = g.newlabel("noxn")
        g.e(f"s_cmp_lg_u32 s42, {NG - 1}")
        g.e(f"s_cbranch_scc1 {skip}")
        srd(g, 32, 16, 17, SZ_XN, WS_XN)
        g.e("s_lshl_b32 s49, s41, 18")
        g.e("s_lshl_b32 s50, s40, 15")
        g.e("s_add_u32 s49, s49, s50")
        for q in range(8):
            xoff(43, q, 11)
            g.e("s_add_u32 s43, s43, s49")
            g.e("s_add_u32 s50, s43, 16384")
            for a in range(2):
                for i in range(2):
                    x = xreg(a, 2 * q + i)
                    g.e(f"buffer_store_dwordx4 v[{x}:{x + 3}], v{VST}, s[32:35], s{50 if a else 43} offen offset:{i * 1024} {STF}")
        g.label(skip)

    def outbase(I, p):
        I(f"s_mul_i32 s48, s42, {NP}")
        I(f"s_add_u32 s48, s48, {p}")
        if T in ("K", "V"):
            I("s_lshr_b32 s49, s48, 1")
            I("s_lshl_b32 s49, s49, 19")
            I("s_and_b32 s48, s48, 1")
            I(f"s_lshl_b32 s48, s48, {11 if T == 'K' else 12}")
            I("s_add_u32 s48, s48, s49")
            I("s_lshl_b32 s49, s41, 16")
            I("s_add_u32 s48, s48, s49")
            I("s_lshl_b32 s49, s40, 13")
            I("s_add_u32 s48, s48, s49")
            I("s_add_u32 s50, s48, 4096")
        else:
            I(f"s_lshl_b32 s48, s48, {11 if T == 'Z1' else 12}")
            I("s_lshl_b32 s49, s41, 3")
            I("s_add_u32 s49, s49, s40")
            I("s_mul_i32 s49, s49, 57344")
            I("s_add_u32 s48, s48, s49")
            I("s_add_u32 s50, s48, 28672")

    ZPARK = 131072
    def epilogue(p, last=False):
        st = p & 1
        ops = []
        def I(s): ops.append(lambda s=s: g.e(s))
        if T != "Z2": outbase(I, p)
        frags = []
        if ktype:
            for a in range(2):
                for mm in range(2):
                    frags.append((areg(st, 2 * mm, a), areg(st, 2 * mm + 1, a), 50 if a else 48, mm * 1024))
        else:
            for cb in range(4):
                frags.append((areg(st, cb, 0), areg(st, cb, 1), 48, cb * 1024))
        for (x, y, so, io) in frags:
            if ztype:
                stats = None
                if T == "Z2":
                    stats = {}
                    for r in range(4):
                        stats[x + r] = (STAT + 2 * r, STAT + 2 * r + 1)
                        stats[y + r] = (STAT + 8 + 2 * r, STAT + 8 + 2 * r + 1)
                for s in gelu_ops([x, x + 1, x + 2, x + 3, y, y + 1, y + 2, y + 3], TMP, VC2, 52, stats): I(s)
            I(f"PK {x},{x},{x + 1}"); I(f"PK {x + 1},{x + 2},{x + 3}")
            I(f"PK {x + 2},{y},{y + 1}"); I(f"PK {x + 3},{y + 2},{y + 3}")
            if T == "Z2":
                if p == 0: ops.append(lambda x=x, io=io: g.lds(f"DW 13,{x},{io}", "park"))
            else:
                ops.append(lambda x=x, so=so, io=io: g.vmem(
                    f"buffer_store_dwordx4 v[{x}:{x + 3}], v{VST}, s[28:31], s{so} offen offset:{io} {STF}", "st"))
        return ops
    if T == "Z2":
        assert NP <= 3
        g.e(f"s_add_u32 s49, s46, {ZPARK}")
        g.e(f"v_add_u32 v13, s49, v{VST}")

    def final(p):
        g.stamp(12)
        g.e("s_nop 7")
        if T == "Z1":
            xn_store()
            code_touch(g, 36, 14, "L_all_end", "k2_kernel", False)
        for op in epilogue(p): op()
        if T == "Z2":
            for sh in (8, 4, 2, 1):
                g.e("s_nop 1")
                for i in range(16):
                    g.e(f"v_add_f32_dpp v{STAT + i}, v{STAT + i}, v{STAT + i} row_ror:{sh} row_mask:0xf bank_mask:0xf")
            srd(g, 36, 16, 17, GZ * 16384, WS_ST)
            g.e("v_bfe_u32 v9, v0, 4, 2")
            g.e("v_lshlrev_b32 v9, 6, v9")
            g.e("v_and_b32 v10, 15, v0")
            g.e("v_lshl_add_u32 v10, v10, 24, v9")
            g.e("s_lshl_b32 s50, s41, 11")
            g.e("s_lshl_b32 s49, s40, 8")
            g.e("s_add_u32 s50, s50, s49")
            g.e("s_lshl_b32 s49, s42, 14")
            g.e("s_add_u32 s49, s49, s50")
            for i in range(4):
                g.e(f"buffer_store_dwordx4 v[{STAT + 4 * i}:{STAT + 4 * i + 3}], v10, s[36:39], s49 offen offset:{16 * i} sc1")
            for i in range(4): g.e(f"DR {XR + 4 * i},13,{i * 1024}")
            srd(g, 32, 18, 19, 256)
            g.e("s_lshl_b32 s49, s41, 5")
            g.e("v_mov_b32 v11, 1")
            g.e(f"v_lshlrev_b32 v12, 20, v{VST}")
            g.e("v_and_b32 v10, 31, v0")
            g.e("v_lshlrev_b32 v10, 3, v10")
            spin = g.newlabel("spin"); done = g.newlabel("sdone")
            g.e("s_waitcnt vmcnt(0)")
            g.e("s_barrier")
            g.e("s_cmp_lg_u32 s40, 0")
            g.e(f"s_cbranch_scc1 {done}")
            g.e("buffer_atomic_add v11, v12, s[32:35], s49 offen sc1")
            g.label(spin)
            g.e("buffer_load_dword v11, v12, s[32:35], s49 offen sc1")
            g.e("s_waitcnt vmcnt(0)")
            g.e("v_readfirstlane_b32 s51, v11")
            g.e(f"s_cmp_ge_u32 s51, {GZ}")
            g.e(f"s_cbranch_scc1 {done}")
            g.e("s_sleep 4")
            g.e(f"s_branch {spin}")
            g.label(done)
            g.e("s_barrier")
            g.stamp(14)
            PB = 160
            for q in range(GZ):
                g.e(f"s_add_u32 s49, s50, {q * 16384}")
                g.e(f"buffer_load_dwordx2 v[{PB + 2 * q}:{PB + 2 * q + 1}], v10, s[36:39], s49 offen sc1")
            g.e(f"s_add_u32 s49, s46, {ZPARK}")
            g.e("v_add_u32 v10, s49, v10")
            g.e("v_add_u32 v9, s49, v9")
            g.e("s_waitcnt vmcnt(0) lgkmcnt(0)")
            for q in range(1, GZ):
                for i in range(2): g.e(f"v_add_f32 v{PB + i}, v{PB + i}, v{PB + 2 * q + i}")
            ln_params(g, [PB], [PB + 1], 896)
            g.e(f"ds_write_b64 v10, v[{PB}:{PB + 1}]")
            g.e("s_waitcnt lgkmcnt(0)")
            for i in range(4): g.e(f"DR {PB + 4 * i},9,{16 * i}")
            g.e("s_waitcnt lgkmcnt(0)")
            MEAN = [PB + 2 * e for e in range(8)]; VAR = [PB + 2 * e + 1 for e in range(8)]
            for pp in range(p + 1):
                outbase(g.e, pp)
                for cb in range(4):
                    x = XR + 4 * cb if pp == 0 else areg(pp & 1, cb, 0)
                    t = 16 + (cb & 1) * 8
                    for r in range(4): g.e(f"v_lshlrev_b32 v{t + 2 * r}, 16, v{x + r}")
                    for r in range(4): g.e(f"v_and_b32 v{t + 2 * r + 1}, s53, v{x + r}")
                    for e in range(8): g.e(f"v_fma_f32 v{t + e}, v{t + e}, v{VAR[e]}, -v{MEAN[e]}")
                    for r in range(4): g.e(f"PK {x + r},{t + 2 * r},{t + 2 * r + 1}")
                    g.e(f"buffer_store_dwordx4 v[{x}:{x + 3}], v{VST}, s[28:31], s48 offen offset:{cb * 1024} {STF}")
        g.stamp(13)
        g.stamp_dump(16, 17, 40, 0)
        g.e("s_endpgm")

    pend = []
    def wread(F, half=None):
        s, f = F >> 5, F & 31
        if s >= NST: return
        if f == 0 and half != 1:
            assert not pend
            g.wait_vm(("w", s))
            g.e("s_barrier")
            if s >= 2 and s % 2 == 0:
                g.e(f"v_xor_b32 v{VTE}, 0x10000, v{VTE}")
                g.e(f"v_xor_b32 v{VTO}, 0x10000, v{VTO}")
            if s >= (1 if ztype else 2): pend.extend(wdma_ops(s + 2))
        if pend and (f % 4 == 1 if not CLU else f >= 1) and half != 0: pend.pop(0)()
        mp, cb = f >> 2, f & 3
        r = WR + (F % 8) * 4
        for a in (range(2) if half is None else [half]):
            o = (s & 1) * 32768 + mp * 4096 + a * 512 + (cb >> 1) * 256
            g.lds(f"TR {r + 2 * a},{VTO if cb & 1 else VTE},{o}", ("w", F))

    g.stamp(1)
    ev = {}
    def at(F, fn): ev.setdefault(F, []).append(fn)
    if not ztype:
        xread(0)
        def spread(F0, ops, after=None):
            if after is not None: at(F0, lambda: g.wait_ds(("x", after)))
            for i, op in enumerate(ops): at(F0 + i, op)
        at(0, lambda: g.wait_ds(("x", 0)))
        spread(0, xdma_ops(2)); at(4, lambda: xread(1)); spread(4, xdma_ops(3), 0)
        at(8, lambda: g.wait_ds(("x", 1))); spread(8, wdma_ops(1, 47))
        at(12, lambda: xread(2)); spread(12, xdma_ops(4), 1)
        at(16, lambda: g.wait_ds(("x", 2))); spread(18, xdma_ops(5), 2)
        at(20, lambda: xread(3)); at(24, lambda: g.wait_ds(("x", 3)))
        spread(26, wdma_ops(2, 47), 3)
        at(30, lambda: xread(4)); spread(34, xdma_ops(6), 4)
        at(38, lambda: xread(5)); spread(42, xdma_ops(7), 5)
        at(50, lambda: xread(6)); spread(54, wdma_ops(3, 47), 6)
        at(66, lambda: xread(7)); at(84, lambda: g.wait_ds(("x", 7)))
    if PFW and not ztype:
        def pfw():
            g.e("s_bfe_u32 s43, s2, 0x20003")
            g.e("s_lshl_b32 s43, s43, 7")
            g.e("s_lshl_b32 s47, s40, 4")
            g.e("s_add_u32 s43, s43, s47")
            g.e("v_bfe_u32 v26, v0, 2, 4")
            g.e("v_add_u32 v26, s43, v26")
            g.e("v_lshlrev_b32 v26, 13, v26")
            g.e("v_and_b32 v27, 3, v0")
            g.e("v_lshl_add_u32 v26, v27, 7, v26")
            g.vmem(f"buffer_load_dword v27, v26, s[20:23], s44 offen offset:256 {NTP}", "t")
        at(PFW, pfw)
    if PF:
        def prefetch():
            srd(g, 32, 8, 9, 4 * MB)
            g.e("s_lshl_b32 s43, s2, 3")
            g.e("s_add_u32 s43, s43, s40")
            g.e(f"v_lshlrev_b32 v14, 3, v{VST}")
            g.e("v_bfe_u32 v15, v0, 4, 2")
            g.e("v_lshl_add_u32 v15, v15, 28, v14")
            g.e("s_lshl_b32 s47, s43, 11")
            g.vmem("buffer_load_dword v15, v15, s[32:35], s47 offen", "t")
        at(PF, prefetch)
    if ztype:
        for m in range(1, 16):
            ops = norm_ops(m)
            for i in range(4):
                at(("post", (m - 1) * 4 + i), lambda o=ops[i * 10:(i + 1) * 10]: [g.e(x) for x in o])
    for F in range(D): wread(F)
    fill = []
    done_at = {}
    for s, (p, kh) in enumerate(order):
        if kh == 1: done_at[s + 1] = p
    for s, (p, kh) in enumerate(order):
        st = p & 1
        if s < 9 and not (PROF == 3 and ztype): g.stamp(2 + s)
        if s == 2 * NS and NS < NP:
            cont = g.newlabel("cont")
            g.e(f"s_cmp_lg_u32 s42, {NG - 1}")
            g.e(f"s_cbranch_scc1 {cont}")
            sv = (list(g.vm), list(g.ds))
            final(NS - 1)
            g.vm, g.ds = sv
            g.label(cont)
        if s in done_at:
            assert not fill
            fill = epilogue(done_at[s])
            nslots = 60 if (ztype or kh == 0) else 27
            per = len(fill) / nslots
            acc = 0.0; slot = -3
            if CLU and not ztype:
                h = len(fill) - 10
                parts = [fill[:h], fill[h:]]
                for pi, part in enumerate(parts):
                    F0 = s * 32 + 3 + (32 * pi if kh == 0 else 6 * pi)
                    for i, op in enumerate(part): at(("post", F0 + i * 6 // len(part)), op)
                fill = []
        for f in range(32):
            F = s * 32 + f
            mp, cb = f >> 2, f & 3
            m = kh * 8 + mp
            for fn in ev.pop(F, []): fn()
            g.wait_ds(("w", F))
            r = WR + (F % 8) * 4
            for a in range(2):
                op = "MZ" if m == 0 else "M"
                if ktype: g.e(f"{op} {areg(st, cb, a)},{r},{xreg(a, m)}")
                else: g.e(f"{op} {areg(st, cb, a)},{xreg(a, m)},{r}")
                wread(F + D, a)
            for fn in ev.pop(("post", F), []): fn()
            if ztype and F < 60 and F % 4 == 3: g.e("s_nop 0")
            if fill:
                slot += 1
                if slot > 0:
                    acc += per
                    while fill and acc >= 1.0:
                        fill.pop(0)(); acc -= 1.0
        if kh == 1:
            while fill: fill.pop(0)()
    assert not ev
    final(NP - 1)
    g.label(f"L_k1_{T}_end")

def gen_k1(g):
    g.e(".p2align 8")
    g.e(".type k1_kernel,@function")
    g.label("k1_kernel")
    g.e("s_cmp_ge_u32 s2, 256")
    g.e("s_cbranch_scc1 L_k1_end")
    g.stamp(0)
    if PROF: g.e("s_memrealtime s[94:95]")
    g.e("s_load_dwordx4 s[4:7], s[0:1], 0")
    g.e("s_load_dwordx4 s[8:11], s[0:1], 16")
    g.e("s_load_dwordx2 s[12:13], s[0:1], 32")
    g.e("s_load_dwordx2 s[14:15], s[0:1], 56")
    g.e("s_load_dwordx2 s[18:19], s[0:1], 96")
    g.e("s_load_dwordx2 s[16:17], s[0:1], 104")
    g.e("v_lshrrev_b32 v1, 6, v0")
    g.e("s_lshr_b32 s49, s2, 3")
    g.e("s_and_b32 s41, s2, 1")
    g.e("v_readfirstlane_b32 s40, v1")
    g.e("s_lshl_b32 s41, s41, 2")
    g.e("s_and_b32 s50, s49, 3")
    g.e("s_add_u32 s41, s41, s50")
    g.e("s_and_b32 s3, s2, 6")
    g.e("s_lshl_b32 s3, s3, 2")
    g.e("s_lshr_b32 s49, s49, 2")
    g.e("s_add_u32 s3, s3, s49")
    if MAP84:
        g.e("s_bfe_u32 s41, s2, 0x30003")
        g.e("s_and_b32 s3, s2, 7")
        g.e("s_lshl_b32 s3, s3, 2")
        g.e("s_lshr_b32 s49, s2, 6")
        g.e("s_add_u32 s3, s3, s49")
    g.e("s_waitcnt lgkmcnt(0)")
    g.e(f"s_cmp_lt_u32 s3, {GKV}")
    g.e("s_cbranch_scc1 L_k1_K")
    g.e(f"s_cmp_lt_u32 s3, {2 * GKV}")
    g.e("s_cbranch_scc1 L_k1_V")
    g.e(f"s_cmp_lt_u32 s3, {2 * GKV + GZ}")
    g.e("s_cbranch_scc1 L_k1_Z1")
    g.e(f"s_cmp_lt_u32 s3, {2 * GKV + 2 * GZ}")
    g.e("s_cbranch_scc1 L_k1_Z2")
    g.label("L_k1_end")
    g.e("s_endpgm")
    for T in ("K", "V", "Z1", "Z2"):
        gen_type(g, T)
```

```python
import sys
from asmlib import *
import k1
NAME = "parallel_sum__compressed_kv_cla__mixer_gmlp__prompt"
HDR = open(f"cdna_kernels/{NAME}.s.ref").read().split("\n")
HDR = [l for l in HDR if l.startswith(";   offset") or l.startswith("; Kernarg")]
def build(kernels):
    g = G()
    launches = []
    kds = []
    if "k1" in kernels:
        k1.gen_k1(g); launches.append("; @launch kernel=k1_kernel grid=(256,1,1) block=(512,1,1) lds=163840"); kds.append(kd("k1_kernel", 256))
    if "k2" in kernels:
        import k2
        k2.gen_k2(g); launches.append("; @launch kernel=k2_kernel grid=(256,1,1) block=(512,1,1) lds=163840"); kds.append(kd("k2_kernel", 256))
    if "k3" in kernels:
        import k3
        k3.gen_k3(g); launches.append(f"; @launch kernel=k3_kernel grid=(256,1,1) block=(512,1,1) lds={k3.LDS}"); kds.append(kd("k3_kernel", k3.NVGPR))
    nn = int(os.environ.get("NOPK", "0"))
    if nn:
        g.e(".p2align 8"); g.e(".type nop_kernel,@function"); g.label("nop_kernel"); g.e("s_endpgm")
        kds.append(kd("nop_kernel", 8))
        l = "; @launch kernel=nop_kernel grid=(256,1,1) block=(64,1,1) lds=0"
        pos = int(os.environ.get("NOPP", "3"))
        launches[pos:pos] = [l] * nn
    if os.environ.get("DUP"):
        i = int(os.environ["DUP"]); launches.insert(i, launches[i])
    out = "\n".join(HDR + launches) + "\n"
    out += '.amdgcn_target "amdgcn-amd-amdhsa--gfx950"\n' + MACROS + ".text\n" + g.text()
    out += '.section .rodata,"a"\n'
    for k in kds: out += ".p2align 6" + k
    return out
if __name__ == "__main__":
    ks = sys.argv[2].split(",") if len(sys.argv) > 2 else ["k1", "k2", "k3"]
    open(sys.argv[1], "w").write(build(ks))
```

```python
import sys
from asmlib import *
import k1
NAME = "parallel_sum__compressed_kv_cla__mixer_gmlp__prompt"
HDR = open(f"cdna_kernels/{NAME}.s.ref").read().split("\n")
HDR = [l for l in HDR if l.startswith(";   offset") or l.startswith("; Kernarg")]
def build(kernels):
    g = G()
    launches = []
    kds = []
    if "k1" in kernels:
        k1.gen_k1(g); launches.append("; @launch kernel=k1_kernel grid=(256,1,1) block=(512,1,1) lds=163840"); kds.append(kd("k1_kernel", 256))
    if "k2" in kernels:
        import k2
        k2.gen_k2(g)
        if not MERGE: launches.append("; @launch kernel=k2_kernel grid=(256,1,1) block=(512,1,1) lds=163840"); kds.append(kd("k2_kernel", 256))
    if "k3" in kernels:
        import k3
        k3.gen_k3(g)
        if MERGE < 2: launches.append(f"; @launch kernel=k3_kernel grid=(256,1,1) block=(512,1,1) lds={k3.LDS}"); kds.append(kd("k3_kernel", k3.NVGPR))
        if not k3.FUSE: k3.gen_k4(g); launches.append("; @launch kernel=k4_kernel grid=(256,1,1) block=(512,1,1) lds=0"); kds.append(kd("k4_kernel", 40))
    if os.environ.get("REPORT"):
        items = eval(os.environ["REPORT"])
        g.e(".p2align 8"); g.e(".type rep_kernel,@function"); g.label("rep_kernel")
        g.e("s_cmp_lg_u32 s2, 0"); g.e("s_cbranch_scc1 L_rep_end")
        g.e("s_load_dwordx4 s[4:7], s[0:1], 96")
        g.e("s_waitcnt lgkmcnt(0)")
        for k in range(3):
            g.e(f"s_add_u32 s{12 + 2 * k}, s6, {WS_DBG + k * MB}"); g.e(f"s_addc_u32 s{13 + 2 * k}, s7, 0")
        for i, (k, wg, w, sl) in enumerate(items):
            g.e(f"s_load_dword s{20 + i}, s[{12 + 2 * k}:{13 + 2 * k}], {wg * 1024 + w * 128 + sl * 4}")
        srd(g, 8, 4, 5, 256)
        g.e("v_lshlrev_b32 v1, 20, v0")
        g.e("s_waitcnt lgkmcnt(0)")
        for i in range(len(items)):
            g.e(f"s_sub_u32 s40, s{20 + i}, s20")
            g.e("v_mov_b32 v2, s40")
            g.e(f"buffer_store_dword v2, v1, s[8:11], 0 offen offset:{4 * i}")
            g.e("s_nop 1")
        g.label("L_rep_end"); g.e("s_endpgm")
        kds.append(kd("rep_kernel", 8))
        launches.append("; @launch kernel=rep_kernel grid=(1,1,1) block=(64,1,1) lds=0")
    nn = int(os.environ.get("NOPK", "0"))
    if nn:
        g.e(".p2align 8"); g.e(".type nop_kernel,@function"); g.label("nop_kernel"); g.e("s_endpgm")
        kds.append(kd("nop_kernel", 8))
        l = "; @launch kernel=nop_kernel grid=(256,1,1) block=(64,1,1) lds=0"
        pos = int(os.environ.get("NOPP", "3"))
        launches[pos:pos] = [l] * nn
    if os.environ.get("ONLY"):
        launches = [launches[int(i)] for i in os.environ["ONLY"].split(",")]
    if os.environ.get("DUP"):
        i = int(os.environ["DUP"]); launches.insert(i, launches[i])
    out = "\n".join(HDR + launches) + "\n"
    out += '.amdgcn_target "amdgcn-amd-amdhsa--gfx950"\n' + MACROS + ".text\n" + g.text()
    out += '.section .rodata,"a"\n'
    for k in kds: out += ".p2align 6" + k
    return out
if __name__ == "__main__":
    ks = sys.argv[2].split(",") if len(sys.argv) > 2 else ["k1", "k2", "k3"]
    open(sys.argv[1], "w").write(build(ks))
```

```python
from asmlib import *
from k1 import tr_bases

LDS = 163840
NVGPR = 128
ACC = 32
AF = 64
WF = 96
NS = 39
PD = int(os.environ.get('PD', '8'))
STP = os.environ.get('STP', 'sc1')

def gen_k3(g):
    g.vm = []; g.ds = []
    g.e(".p2align 8")
    g.e(".type k3_kernel,@function")
    g.label("k3_kernel")
    g.e("s_cmp_ge_u32 s2, 256")
    g.e("s_cbranch_scc1 L_k3_end")
    g.stamp(0)
    if PROF: g.e("s_memrealtime s[94:95]")
    g.e("s_load_dwordx2 s[6:7], s[0:1], 40")
    g.e("s_load_dwordx2 s[8:9], s[0:1], 80")
    g.e("s_load_dwordx2 s[16:17], s[0:1], 104")
    g.e("v_lshrrev_b32 v1, 6, v0")
    g.e("s_bfe_u32 s43, s2, 0x20001")
    g.e("s_and_b32 s42, s2, 1")
    g.e("v_readfirstlane_b32 s40, v1")
    g.e("s_lshl_b32 s42, s42, 3")
    g.e("s_lshr_b32 s49, s2, 5")
    g.e("s_add_u32 s42, s42, s49")
    g.e("s_bfe_u32 s41, s2, 0x20003")
    g.e("v_bfe_u32 v28, v0, 5, 1")
    g.e("v_bfe_u32 v29, v0, 2, 2")
    g.e("v_lshl_add_u32 v28, v28, 4, v29")
    g.e("v_bfe_u32 v29, v0, 6, 2")
    g.e("v_lshl_add_u32 v28, v29, 2, v28")
    g.e("v_lshlrev_b32 v28, 10, v28")
    g.e("v_bfe_u32 v30, v0, 4, 1")
    g.e("v_lshl_add_u32 v28, v30, 6, v28")
    g.e("v_lshrrev_b32 v30, 8, v0")
    g.e("v_lshl_add_u32 v28, v30, 7, v28")
    g.e("v_and_b32 v29, 1, v29")
    g.e("v_lshlrev_b32 v29, 1, v29")
    g.e("v_and_b32 v30, 3, v0")
    g.e("v_xor_b32 v29, v29, v30")
    g.e("v_lshl_add_u32 v1, v29, 4, v28")
    g.e("v_and_b32 v28, 63, v0")
    g.e("v_lshlrev_b32 v7, 4, v28")
    g.e("s_lshl_b32 s46, s40, 10")
    g.e("s_lshl_b32 s49, s42, 3")
    g.e("s_add_u32 s49, s49, s40")
    g.e("s_mul_i32 s47, s49, 159744")
    g.e("s_lshl_b32 s49, s43, 15")
    g.e("s_add_u32 s44, s47, s49")
    g.e("s_mul_i32 s49, s43, 7168")
    g.e("s_add_u32 s45, s47, s49")
    g.e(f"s_add_u32 s45, s45, {128 * 1024}")
    g.e("s_lshl_b32 s49, s41, 8")
    g.e("s_lshl_b32 s52, s43, 20")
    g.e("s_add_u32 s52, s52, s49")
    g.e(f"s_mul_i32 s53, s43, {7 * 32768}")
    g.e("s_add_u32 s53, s53, s49")
    g.e("s_waitcnt lgkmcnt(0)")
    srd(g, 20, 6, 7, 4096 * 1024)
    srd(g, 24, 8, 9, 896 * 1024)
    srd(g, 28, 16, 17, SZ_CTX, WS_CTX)
    def dma_ops(t):
        if t >= NS: return []
        u = t >= 32; tt = t - 32 if u else t
        def a():
            g.e(f"s_add_u32 m0, s46, {(t % 10) * 16384}")
            g.e(f"s_add_u32 s49, s{45 if u else 44}, {tt * 1024}")
            g.vmem("buffer_load_dwordx4 v7, s[28:31], s49 offen lds", t // 2)
        def w():
            g.e(f"s_add_u32 m0, s46, {(t % 10) * 16384 + 8192}")
            g.e(f"s_add_u32 s49, s{53 if u else 52}, {tt * 32768}")
            g.vmem(f"buffer_load_dwordx4 v1, s[{24 if u else 20}:{27 if u else 23}], s49 offen lds", t // 2)
        return [a, w]
    for t in range(2):
        for op in dma_ops(t): op()
    code_touch(g, 56, 20, "L_all_end")
    g.e("s_barrier")
    for t in range(2, 4):
        for op in dma_ops(t): op()
    srd(g, 32, 16, 17, 8 * MB, WS_PART)
    tr_bases(g, 8, 9)
    g.e("s_bfe_u32 s49, s40, 0x10001")
    g.e("s_lshl_b32 s49, s49, 12")
    g.e("s_and_b32 s50, s40, 1")
    g.e("s_lshl_b32 s50, s50, 8")
    g.e("s_add_u32 s49, s49, s50")
    g.e("s_add_u32 s49, s49, 8192")
    g.e("v_add_u32 v8, s49, v8")
    g.e("v_add_u32 v9, s49, v9")
    g.e("s_lshr_b32 s49, s40, 2")
    g.e("s_lshl_b32 s49, s49, 12")
    g.e("v_add_u32 v10, s49, v7")
    for k in (1, 2):
        for i in range(3): g.e(f"v_add_u32 v{8 + 3 * k + i}, {k * 0x10000}, v{8 + i}")
    g.stamp(1)
    pend = []
    def reads(t):
        if t >= NS: return []
        sl = t % 10; b = 8 + 3 * (sl >> 2); o = (sl & 3) * 16384
        ops = []
        if t % 2 == 0:
            def sync():
                assert not pend
                g.wait_vm(t // 2)
                g.e("s_barrier")
                pend.extend(dma_ops(t + PD) + dma_ops(t + PD + 1))
            ops.append(sync)
        rd = []
        for cb in range(2):
            for a in range(2):
                rd.append(lambda cb=cb, a=a: g.lds(f"TR {WF + (t & 1) * 8 + cb * 4 + 2 * a},{b + cb},{o + a * 512}", ("r", t)))
        dr = [lambda rt=rt: g.lds(f"DR {AF + (t & 1) * 16 + rt * 4},{b + 2},{o + rt * 1024}", ("r", t)) for rt in range(4)]
        return ops + rd[:2] + dr + rd[2:]
    ramp = [op for t in range(4, PD) for op in dma_ops(t)]
    for op in reads(0): op()
    ramp += pend; del pend[:]
    for t in range(NS):
        nx = reads(t + 1)
        g.wait_ds(("r", t))
        k = 0
        for cb in range(2):
            for rt in range(4):
                g.e(f"{'MZ' if t == 0 else 'M'} {ACC + (cb * 4 + rt) * 4},{WF + (t & 1) * 8 + cb * 4},{AF + (t & 1) * 16 + rt * 4}")
                n = 2 if k < 4 else 1
                for _ in range(n):
                    if nx: nx.pop(0)()
                if ramp:
                    ramp.pop(0)()
                    if t == 0 and k >= 4 and ramp: ramp.pop(0)()
                elif k >= 5 and k != 6 and pend: pend.pop(0)()
                k += 1
        assert not nx
        if t in (0, 9, 19, 29): g.stamp({0: 2, 9: 3, 19: 4, 29: 5}[t])
    g.stamp(6)
    g.e("s_lshl_b32 s49, s43, 21")
    g.e("s_lshl_b32 s50, s42, 17")
    g.e("s_add_u32 s49, s49, s50")
    g.e("s_lshl_b32 s50, s41, 15")
    g.e("s_add_u32 s49, s49, s50")
    g.e("s_lshl_b32 s50, s40, 12")
    g.e("s_add_u32 s49, s49, s50")
    g.e("s_nop 4")
    for rt in range(4):
        x, y = ACC + rt * 4, ACC + (4 + rt) * 4
        g.e(f"PK {x},{x},{x + 1}"); g.e(f"PK {x + 1},{x + 2},{x + 3}")
        g.e(f"PK {x + 2},{y},{y + 1}"); g.e(f"PK {x + 3},{y + 2},{y + 3}")
    g.e("s_nop 1")
    for rt in range(4):
        x = ACC + rt * 4
        g.e(f"v_permlane16_swap_b32 v{x}, v{x + 2}")
        g.e(f"v_permlane16_swap_b32 v{x + 1}, v{x + 3}")
        g.e(f"buffer_store_dwordx4 v[{x}:{x + 3}], v7, s[32:35], s49 offen offset:{rt * 1024} {STP}")
    g.stamp_dump(16, 17, 40, 2)
    g.label("L_k3_end")
    g.e("s_endpgm")

def gen_k4(g):
    g.e(".p2align 8")
    g.e(".type k4_kernel,@function")
    g.label("k4_kernel")
    g.e("s_cmp_ge_u32 s2, 256")
    g.e("s_cbranch_scc1 L_k4_end")
    g.e("s_load_dwordx2 s[4:5], s[0:1], 0")
    g.e("s_load_dwordx2 s[6:7], s[0:1], 88")
    g.e("s_load_dwordx2 s[16:17], s[0:1], 104")
    g.e("v_lshlrev_b32 v1, 4, v0")
    g.e("s_lshl_b32 s20, s2, 13")
    g.e("v_lshrrev_b32 v2, 6, v0")
    g.e("v_lshl_add_u32 v2, s2, 3, v2")
    g.e("v_lshrrev_b32 v3, 7, v2")
    g.e("v_lshlrev_b32 v3, 7, v3")
    g.e("v_bfe_u32 v4, v2, 4, 1")
    g.e("v_lshl_add_u32 v3, v4, 6, v3")
    g.e("v_and_b32 v4, 3, v2")
    g.e("v_lshl_add_u32 v3, v4, 4, v3")
    g.e("v_and_b32 v4, 15, v0")
    g.e("v_add_u32 v3, v3, v4")
    g.e("v_lshlrev_b32 v3, 10, v3")
    g.e("v_bfe_u32 v4, v2, 5, 2")
    g.e("v_lshl_add_u32 v3, v4, 8, v3")
    g.e("v_bfe_u32 v4, v2, 2, 2")
    g.e("v_lshl_add_u32 v3, v4, 6, v3")
    g.e("v_bfe_u32 v4, v0, 4, 1")
    g.e("v_lshl_add_u32 v3, v4, 5, v3")
    g.e("v_bfe_u32 v4, v0, 5, 1")
    g.e("v_lshl_add_u32 v3, v4, 4, v3")
    g.e("s_waitcnt lgkmcnt(0)")
    srd(g, 8, 16, 17, 8 * MB, WS_PART)
    srd(g, 12, 4, 5, 2 * MB)
    for q in range(4):
        g.e(f"buffer_load_dwordx4 v[{8 + 4 * q}:{11 + 4 * q}], v1, s[8:11], s20 offen")
        g.e(f"s_add_u32 s20, s20, {2 * MB}")
    g.e("buffer_load_dwordx4 v[24:27], v3, s[12:15], 0 offen")
    srd(g, 24, 6, 7, 2 * MB)
    g.e("s_mov_b32 s21, 0xffff0000")
    for q in range(5):
        g.e(f"s_waitcnt vmcnt({4 - q})")
        for i in range(4):
            r = 8 + 4 * q + i
            if q == 0:
                g.e(f"v_lshlrev_b32 v{28 + 2 * i}, 16, v{r}")
                g.e(f"v_and_b32 v{29 + 2 * i}, s21, v{r}")
            else:
                g.e(f"v_lshlrev_b32 v4, 16, v{r}")
                g.e(f"v_and_b32 v5, s21, v{r}")
                g.e(f"v_add_f32 v{28 + 2 * i}, v{28 + 2 * i}, v4")
                g.e(f"v_add_f32 v{29 + 2 * i}, v{29 + 2 * i}, v5")
    for i in range(4): g.e(f"PK {8 + i},{28 + 2 * i},{29 + 2 * i}")
    g.e("buffer_store_dwordx4 v[8:11], v3, s[24:27], 0 offen")
    g.label("L_k4_end")
    g.e("s_endpgm")
    g.label("L_all_end")
```

```python
from asmlib import *
import math

XR = 128
ACC = [64, 96]
WR = 32
D = 6
C2 = -2.0 * math.sqrt(2.0 / math.pi) * math.log2(math.e)
C1 = C2 * 0.044715
NPKV = int(os.environ.get('NPKV', '6'))
NPZ = int(os.environ.get('NPZ', '3'))
GKV = -(-64 // NPKV); GZ = 7
assert NPKV == 6 and NPZ == 3
GMAP = [[0, 1, 2, 25, 3, 4, 26, 10], [11, 12, 13, 27, 14, 15, 28, 21], [5, 6, 29, 7, 8, 30, 9, 22], [16, 17, 31, 18, 23, 19, 20, 24]]
assert sorted(sum(GMAP, [])) == list(range(32))
NTW = os.environ.get('NTW', '')
TOUCH = int(os.environ.get('TOUCH', '0'))
PF = int(os.environ.get('PF', '76'))
MAP84 = int(os.environ.get('MAP84', '0'))
CLU = int(os.environ.get('CLU', '1'))
PFW = int(os.environ.get('PFW', '63'))
NTP = os.environ.get('NTP', '')
PF3 = int(os.environ.get('PF3', '1'))
ZPUB = int(os.environ.get('ZPUB', '36'))
MIX = int(os.environ.get('MIX', '1'))
ROT = int(os.environ.get('ROT', '1'))
STF = os.environ.get('STF', 'sc1')

def xreg(a, m): return XR + (m * 2 + a) * 4
def areg(st, cb, a): return ACC[st] + (cb * 2 + a) * 4

def w_voffsets(g, rowstride, vbase, srot):
    g.e("v_bfe_u32 v28, v0, 5, 1")
    g.e("v_bfe_u32 v29, v0, 2, 2")
    g.e("v_lshl_add_u32 v28, v28, 2, v29")
    g.e(f"s_lshl_b32 s49, s{srot}, 1")
    g.e("s_add_u32 s49, s49, s40")
    g.e("s_and_b32 s49, s49, 7")
    g.e("s_lshl_b32 s49, s49, 5")
    g.e("v_add_u32 v28, s49, v28")
    g.e(f"s_mov_b32 s49, {rowstride}")
    g.e("v_mul_lo_u32 v28, v28, s49")
    g.e("v_bfe_u32 v29, v0, 4, 1")
    g.e("v_lshl_add_u32 v28, v29, 6, v28")
    g.e("v_and_b32 v29, 3, v0")
    g.e("v_xor_b32 v30, 2, v29")
    g.e("v_lshlrev_b32 v29, 4, v29")
    g.e("v_lshlrev_b32 v30, 4, v30")
    for j in range(4):
        g.e(f"v_add_u32 v31, {j * 8 * rowstride - j * 1024}, v28")
        g.e(f"v_add_u32 v{vbase + j}, v31, v{29 + (j & 1)}")

def tr_bases(g, ve, vo):
    g.e("v_bfe_u32 v28, v0, 4, 2")
    g.e("v_lshlrev_b32 v29, 10, v28")
    g.e("v_bfe_u32 v30, v0, 2, 2")
    g.e("v_lshl_add_u32 v29, v30, 6, v29")
    g.e("v_and_b32 v30, 3, v0")
    g.e("v_lshl_add_u32 v29, v30, 3, v29")
    g.e("v_and_b32 v28, 1, v28")
    g.e(f"v_lshl_add_u32 v{ve}, v28, 5, v29")
    g.e(f"v_xor_b32 v{vo}, 32, v{ve}")

def gelu_ops(regs, T, vc2, sc1, stats=None):
    out = []
    n = len(T)
    for i in range(0, len(regs), n):
        grp = list(zip(regs[i:i + n], T))
        out += [f"v_mul_f32 v{t}, v{x}, v{x}" for x, t in grp]
        out += [f"v_fma_f32 v{t}, v{t}, s{sc1}, v{vc2}" for x, t in grp]
        out += [f"v_mul_f32 v{t}, v{t}, v{x}" for x, t in grp]
        out += [f"v_exp_f32 v{t}, v{t}" for x, t in grp]
        out += [f"v_add_f32 v{t}, 1.0, v{t}" for x, t in grp]
        out += [f"v_rcp_f32 v{t}, v{t}" for x, t in grp]
        out += [f"v_mul_f32 v{x}, v{x}, v{t}" for x, t in grp]
        if stats:
            out += [f"v_add_f32 v{stats[x][0]}, v{stats[x][0]}, v{x}" for x, t in grp]
            out += [f"v_fmac_f32 v{stats[x][1]}, v{x}, v{x}" for x, t in grp]
    return out

def ln_params(g, MEAN, VAR, n):
    def rbf(rs):
        for r in rs: g.e(f"PK {r},{r},{r}")
        for r in rs: g.e(f"v_and_b32 v{r}, 0xffff0000, v{r}")
    for m, v in zip(MEAN, VAR):
        g.e(f"v_mul_f32 v{m}, {f32(1 / n)}, v{m}")
        g.e(f"v_mul_f32 v{v}, {f32(1 / n)}, v{v}")
    for m, v in zip(MEAN, VAR): g.e(f"v_fma_f32 v{v}, -v{m}, v{m}, v{v}")
    for v in VAR: g.e(f"v_max_f32 v{v}, 0, v{v}")
    rbf(list(MEAN) + list(VAR))
    for v in VAR: g.e(f"v_add_f32 v{v}, {f32(1e-5)}, v{v}")
    rbf(VAR)
    for v in VAR: g.e(f"v_sqrt_f32 v{v}, v{v}")
    g.e("s_nop 0")
    rbf(VAR)
    for v in VAR: g.e(f"v_rcp_f32 v{v}, v{v}")
    g.e("s_nop 0")
    for m, v in zip(MEAN, VAR): g.e(f"v_mul_f32 v{m}, v{m}, v{v}")

def gen_type(g, T):
    ktp = lambda p: T in ("K", "Z1") or (T == "Z2" and p == 2)
    ztype = T in ("Z1", "Z2")
    rowstride = 3584 if ztype else 8192
    NP = NPZ if ztype else NPKV
    NTOT = 14 if ztype else 64
    NG = {"Z1": 3, "Z2": GZ}.get(T, GKV)
    NS = {"Z1": 2, "Z2": 3}.get(T, NTOT - (NG - 1) * NP)
    SHORT0 = {"Z1": 1}.get(T, NG - 1)
    VW = 1
    VTE, VTO = 5, 6
    VST = 7
    VC2 = 8
    VXA = 20
    VXR = (9, 11, 24)
    TMP = [9, 10, 11, 12]
    STAT = 16
    g.vm = []; g.ds = []
    g.label(f"L_k1_{T}")
    g0 = {"K": 0, "V": GKV, "Z1": 2 * GKV, "Z2": 2 * GKV + 3}[T]
    g.e(f"s_sub_u32 s42, s3, {g0}")
    if T == "K": srd(g, 20, 10, 11, 512 * 8192)
    if T == "V": srd(g, 20, 12, 13, 512 * 8192)
    if ztype: srd(g, 20, 14, 15, 512 * 3584)
    if ztype: srd(g, 24, 4, 5, 2 * MB)
    else: srd(g, 24, 6, 7, 2 * MB)
    if T == "Z1":
        g.e("s_lshl_b32 s58, s42, 1")
        g.e("s_add_u32 s58, s58, 8")
        g.e("s_cmp_eq_u32 s42, 0")
        g.e("s_cselect_b32 s58, 7, s58")
    elif T == "Z2": g.e("s_lshl_b32 s58, s42, 1")
    else: g.e(f"s_mul_i32 s58, s42, {NP}")
    colbase = 1792 if T == "Z2" else 0
    g.e("s_lshl_b32 s44, s58, 7")
    if colbase: g.e(f"s_add_u32 s44, s44, {colbase}")
    g.e(f"s_mov_b32 s45, {colbase + (NTOT - 1) * 128}")
    g.e("s_lshl_b32 s46, s40, 12")
    g.e(("s_bfe_u32 s54, s2, 0x20006" if MAP84 else "s_bfe_u32 s54, s2, 0x20005") if ROT else "s_mov_b32 s54, 0")
    g.e("s_bfe_u32 s55, s2, 0x10007" if (ztype and ROT and not MAP84) else "s_mov_b32 s55, 0")
    g.e(f"s_mul_i32 s56, s55, {256 * rowstride}")
    g.e(f"s_sub_u32 s57, {256 * rowstride}, s56")
    def xoff(dst, q, shift):
        g.e(f"s_add_u32 s{dst}, s54, {q & 3}")
        g.e(f"s_and_b32 s{dst}, s{dst}, 3")
        g.e(f"s_xor_b32 s48, s55, {q >> 2}")
        g.e(f"s_lshl_b32 s48, s48, 2")
        g.e(f"s_add_u32 s{dst}, s{dst}, s48")
        g.e(f"s_lshl_b32 s{dst}, s{dst}, {shift}")
    g.e("v_bfe_u32 v28, v0, 3, 3")
    g.e("v_and_b32 v29, 7, v0")
    g.e("v_lshrrev_b32 v30, 1, v28")
    g.e("v_xor_b32 v29, v29, v30")
    if T == "Z2":
        g.e("v_lshrrev_b32 v30, 2, v28")
        g.e("v_and_b32 v28, 3, v28")
        g.e("v_lshl_add_u32 v28, v30, 3, v28")
        rowoff = [0, 16, 4, 20]
    else:
        rowoff = [0, 8, 16, 24]
    g.e("s_lshl_b32 s49, s41, 8")
    g.e("s_lshl_b32 s50, s40, 5")
    g.e("s_add_u32 s49, s49, s50")
    g.e("v_add_u32 v28, s49, v28")
    g.e("v_lshlrev_b32 v28, 10, v28")
    g.e("v_xor_b32 v30, 4, v29")
    g.e("v_lshl_add_u32 v29, v29, 4, v28")
    g.e("v_lshl_add_u32 v30, v30, 4, v28")
    for i in range(4): g.e(f"v_add_u32 v{VXA + i}, {rowoff[i] * 1024 - i * 1024}, v{29 + (i & 1)}")

    order = [(0, 0), (1, 0), (0, 1), (1, 1)] if not ztype else [(0, 0), (0, 1), (1, 0), (1, 1)]
    for p in range(2, NP): order += [(p, 0), (p, 1)]
    NST = len(order)
    XPOS = [2, 3, 4, 2, 3, 4, 3, 4] if not ztype else [0, 1, 2, 3, 4, 0, 1, 2]

    def xdma_ops(q):
        ops = []
        for i in range(4):
            def op(i=i):
                if i == 0: xoff(43, q, 7)
                g.e(f"s_add_u32 m0, s46, {XPOS[q] * 32768}")
                g.e("s_nop 0")
                g.vmem(f"buffer_load_dwordx4 v{VXA + i}, s[24:27], s43 offen offset:{i * 1024} lds", ("x", q))
            ops.append(op)
        return ops
    def xdma(q):
        for op in xdma_ops(q): op()
    def xread(q):
        g.wait_vm(("x", q))
        for ks in range(2):
            for a in range(2):
                g.lds(f"DR {xreg(a, 2 * q + ks)},{VXR[XPOS[q] >> 1] + ks},{(XPOS[q] & 1) * 32768 + a * 2048}", ("x", q))
    def wdma_ops(s, sr=51):
        if s >= NST: return []
        p, kh = order[s]
        ops = []
        for j in range(4):
            def op(j=j):
                if j == 0:
                    if T == "Z2" and p == 2: g.e(f"s_lshl_b32 s{sr}, s42, 7")
                    else:
                        g.e(f"s_add_u32 s{sr}, s44, {p * 128}")
                        g.e(f"s_min_u32 s{sr}, s{sr}, s45")
                    g.e(f"s_add_u32 s{sr}, s{sr}, s{57 if kh else 56}")
                g.e(f"s_add_u32 m0, s46, {(s % 4) * 32768}")
                g.e("s_nop 0")
                g.vmem(f"buffer_load_dwordx4 v{VW + j}, s[20:23], s{sr} offen offset:{j * 1024} {NTW} lds", ("w", s))
            ops.append(op)
        return ops
    def wdma(s):
        for op in wdma_ops(s, 47): op()

    if TOUCH:
        g.e("s_lshr_b32 s49, s2, 5")
        g.e("v_bfe_u32 v28, v0, 5, 1")
        g.e("v_lshl_add_u32 v28, v28, 2, s49")
        g.e("v_and_b32 v28, 7, v28")
        g.e("v_lshlrev_b32 v28, 15, v28")
        g.e("v_and_b32 v29, 31, v0")
        g.e("v_lshl_add_u32 v28, v29, 7, v28")
        g.e("s_lshl_b32 s49, s41, 18")
        g.e("s_add_u32 s49, s49, s46")
        if TOUCH & 1: g.vmem("buffer_load_dword v14, v28, s[24:27], s49 offen", "t")
        g.e("s_bfe_u32 s49, s2, 0x20003")
        g.e("s_lshl_b32 s49, s49, 7")
        g.e("s_lshl_b32 s50, s40, 4")
        g.e("s_add_u32 s49, s49, s50")
        g.e("v_bfe_u32 v28, v0, 1, 4")
        g.e("v_add_u32 v28, s49, v28")
        g.e(f"v_mul_u32_u24 v28, {rowstride}, v28")
        g.e("v_and_b32 v29, 1, v0")
        g.e("v_lshl_add_u32 v28, v29, 7, v28")
        g.e("v_bfe_u32 v29, v0, 5, 1")
        g.e(f"v_lshl_add_u32 v28, v29, {8 if TOUCH & 4 else 30}, v28")
        if TOUCH & 2: g.vmem(f"buffer_load_dword v15, v28, s[20:23], s44 offen {NTW}", "t")
    if ztype:
        xdma(0); xdma(1)
        code_touch(g, 36, 14, f"L_k1_{T}_end")
        g.e("s_barrier")
        xdma(2); xdma(3); xdma(4)
        w_voffsets(g, rowstride, VW, 54)
    else:
        w_voffsets(g, rowstride, VW, 54)
        g.stamp(11)
        wdma(0); xdma(0)
        code_touch(g, 36, 14, f"L_k1_{T}_end")
        g.stamp(14)
        g.e("s_barrier")
        xdma(1)
    off, sz = {"K": (WS_K, SZ_KV), "V": (WS_V, SZ_KV), "Z1": (WS_Z1, SZ_Z), "Z2": (WS_Z2, SZ_Z)}[T]
    srd(g, 28, 16, 17, sz, off)
    tr_bases(g, VTE, VTO)
    g.e("v_and_b32 v28, 63, v0")
    g.e(f"v_lshlrev_b32 v{VST}, 4, v28")
    g.e("v_and_b32 v28, 15, v0")
    g.e("v_bfe_u32 v29, v0, 4, 2")
    g.e("v_lshrrev_b32 v30, 1, v28")
    g.e("v_xor_b32 v29, v29, v30")
    g.e("v_lshlrev_b32 v29, 4, v29")
    g.e("v_lshl_add_u32 v29, v28, 7, v29")
    g.e(f"v_add_u32 v{VXR[0]}, s46, v29")
    g.e(f"v_xor_b32 v{VXR[0] + 1}, 64, v{VXR[0]}")
    for k in (1, 2):
        for ks in range(2): g.e(f"v_add_u32 v{VXR[k] + ks}, {k * 0x10000}, v{VXR[0] + ks}")

    if ztype:
        ONES = 32
        SUM = (64, 68); GR = (72, 76)
        for i in range(4): g.e(f"v_mov_b32 v{ONES + i}, 0x3f803f80")
        g.e(f"s_mov_b32 s52, {f32(C1)}")
        g.e(f"v_mov_b32 v{VC2}, {f32(C2)}")
        seq = [0, 1, 2, 3, 4, 5, 6, 7]
        if PROF == 3: g.stamp(2)
        xread(seq[0])
        for qi, q in enumerate(seq):
            g.wait_ds(("x", q))
            if PROF == 3: g.stamp(3 + q)
            if q < 3: xdma(q + 5)
            if q >= 5: wdma(q - 5)
            if qi < 7: xread(seq[qi + 1])
            for m in (2 * q, 2 * q + 1):
                op = "MZ" if (qi == 0 and m == 2 * q) else "M"
                for a in range(2): g.e(f"{op} {SUM[a]},{ONES},{xreg(a, m)}")
                for a in range(2): g.e(f"{op} {GR[a]},{xreg(a, m)},{xreg(a, m)}")
        S1, S2 = (96, 97), (14, 15)
        NT = 100
        g.e("v_and_b32 v28, 15, v0")
        g.e("v_bfe_u32 v29, v0, 4, 2")
        g.e("v_lshlrev_b32 v29, 2, v29")
        g.e("v_sub_u32 v28, v28, v29")
        for r in range(4): g.e(f"v_cmp_eq_u32 s[{32 + 2 * r}:{33 + 2 * r}], {r}, v28")
        g.e("s_nop 3")
        for a in range(2):
            g.e(f"v_mov_b32 v{S1[a]}, v{SUM[a]}")
            g.e(f"v_cndmask_b32 v{S2[a]}, 0, v{GR[a]}, s[32:33]")
        for r in range(1, 4):
            for a in range(2): g.e(f"v_cndmask_b32 v{S2[a]}, v{S2[a]}, v{GR[a] + r}, s[{32 + 2 * r}:{33 + 2 * r}]")
        for sw in ("v_permlane32_swap_b32", "v_permlane16_swap_b32"):
            for i in range(2): g.e(f"v_mov_b32 v{16 + i}, v{14 + i}")
            g.e("s_nop 1")
            for i in range(2): g.e(f"{sw} v{16 + i}, v{14 + i}")
            g.e("s_nop 1")
            for i in range(2): g.e(f"v_add_f32 v{14 + i}, v{14 + i}, v{16 + i}")
        ln_params(g, S1, S2, 512)
        if PROF == 3: g.stamp(11)
        g.e("s_mov_b32 s53, 0xffff0000")
        def norm_ops(m):
            ops = []
            for a in range(2):
                x = xreg(a, m)
                ops += [f"v_lshlrev_b32 v{NT + i}, 16, v{x + i}" for i in range(4)]
                ops += [f"v_and_b32 v{x + i}, s53, v{x + i}" for i in range(4)]
                ops += [f"v_fma_f32 v{NT + i}, v{NT + i}, v{S2[a]}, -v{S1[a]}" for i in range(4)]
                ops += [f"v_fma_f32 v{x + i}, v{x + i}, v{S2[a]}, -v{S1[a]}" for i in range(4)]
                ops += [f"PK {x + i},{NT + i},{x + i}" for i in range(4)]
            return ops
        for op in norm_ops(0): g.e(op)
        if T == "Z2":
            for i in range(16): g.e(f"v_mov_b32 v{STAT + i}, 0")
    def xn_store():
        skip = g.newlabel("noxn")
        g.e(f"s_cmp_lg_u32 s42, {NG - 1}")
        g.e(f"s_cbranch_scc1 {skip}")
        srd(g, 32, 16, 17, SZ_XN, WS_XN)
        g.e("s_lshl_b32 s49, s41, 18")
        g.e("s_lshl_b32 s50, s40, 15")
        g.e("s_add_u32 s49, s49, s50")
        for q in range(8):
            xoff(43, q, 11)
            g.e("s_add_u32 s43, s43, s49")
            g.e("s_add_u32 s50, s43, 16384")
            for a in range(2):
                for i in range(2):
                    x = xreg(a, 2 * q + i)
                    g.e(f"buffer_store_dwordx4 v[{x}:{x + 3}], v{VST}, s[32:35], s{50 if a else 43} offen offset:{i * 1024} {STF}")
        g.label(skip)

    def outbase(I, p):
        if T == "Z2" and p == 2: I("s_mov_b32 s48, s42")
        else: I(f"s_add_u32 s48, s58, {p}")
        if T in ("K", "V"):
            I("s_lshr_b32 s49, s48, 1")
            I("s_lshl_b32 s49, s49, 19")
            I("s_and_b32 s48, s48, 1")
            I(f"s_lshl_b32 s48, s48, {11 if T == 'K' else 12}")
            I("s_add_u32 s48, s48, s49")
            I("s_lshl_b32 s49, s41, 16")
            I("s_add_u32 s48, s48, s49")
            I("s_lshl_b32 s49, s40, 13")
            I("s_add_u32 s48, s48, s49")
            I("s_add_u32 s50, s48, 4096")
        else:
            I(f"s_lshl_b32 s48, s48, {11 if ktp(p) else 12}")
            I("s_lshl_b32 s49, s41, 3")
            I("s_add_u32 s49, s49, s40")
            I("s_mul_i32 s49, s49, 57344")
            I("s_add_u32 s48, s48, s49")
            I("s_add_u32 s50, s48, 28672")

    ZPARK = 131072
    def epilogue(p, last=False):
        st = p & 1
        ops = []
        def I(s): ops.append(lambda s=s: g.e(s))
        hold = T == "Z2" and p < 2
        if not hold: outbase(I, p)
        frags = []
        if ktp(p):
            for a in range(2):
                for mm in range(2):
                    frags.append((areg(st, 2 * mm, a), areg(st, 2 * mm + 1, a), a, mm * 1024))
        else:
            for cb in range(4):
                frags.append((areg(st, cb, 0), areg(st, cb, 1), 0, cb * 1024))
        for (x, y, a, io) in frags:
            if ztype:
                stats = None
                if hold:
                    stats = {}
                    for r in range(4):
                        stats[x + r] = (STAT + 2 * r, STAT + 2 * r + 1)
                        stats[y + r] = (STAT + 8 + 2 * r, STAT + 8 + 2 * r + 1)
                for s in gelu_ops([x, x + 1, x + 2, x + 3, y, y + 1, y + 2, y + 3], TMP, VC2, 52, stats): I(s)
            I(f"PK {x},{x},{x + 1}"); I(f"PK {x + 1},{x + 2},{x + 3}")
            I(f"PK {x + 2},{y},{y + 1}"); I(f"PK {x + 3},{y + 2},{y + 3}")
            if hold:
                if p == 0: ops.append(lambda x=x, io=io: g.lds(f"DW 13,{x},{io}", "park"))
            elif T == "Z2":
                ops.append(lambda x=x, a=a, io=io: g.vmem(
                    f"buffer_store_dwordx4 v[{x}:{x + 3}], v14, s[24:27], s48 offen offset:{io + 64 * a} {STF}", "st"))
            else:
                ops.append(lambda x=x, a=a, io=io: g.vmem(
                    f"buffer_store_dwordx4 v[{x}:{x + 3}], v{VST}, s[28:31], s{50 if a else 48} offen offset:{io} {STF}", "st"))
        return ops
    if T == "Z2":
        g.e(f"s_add_u32 s49, s46, {ZPARK}")
        g.e(f"v_add_u32 v13, s49, v{VST}")

    def publish_ops():
        ops = []
        def I(s): ops.append(lambda s=s: g.e(s))
        for sh in (8, 4, 2, 1):
            for i in range(16):
                I(f"v_add_f32_dpp v{STAT + i}, v{STAT + i}, v{STAT + i} row_ror:{sh} row_mask:0xf bank_mask:0xf")
        ops.append(lambda: srd(g, 36, 16, 17, GZ * 16384, WS_ST))
        I("v_bfe_u32 v9, v0, 4, 2")
        I("v_lshlrev_b32 v9, 6, v9")
        I("v_and_b32 v10, 15, v0")
        I("v_lshl_add_u32 v10, v10, 24, v9")
        I("s_lshl_b32 s59, s41, 11")
        I("s_lshl_b32 s49, s40, 8")
        I("s_add_u32 s59, s59, s49")
        I("s_lshl_b32 s49, s42, 14")
        I("s_add_u32 s49, s49, s59")
        for i in range(4):
            ops.append(lambda i=i: g.vmem(f"buffer_store_dwordx4 v[{STAT + 4 * i}:{STAT + 4 * i + 3}], v10, s[36:39], s49 offen offset:{16 * i} sc1", "pub"))
        return ops
    def arrive():
        srd(g, 32, 18, 19, 256)
        g.e("s_lshl_b32 s47, s41, 5")
        g.e("v_mov_b32 v11, 1")
        g.e(f"v_lshlrev_b32 v15, 20, v{VST}")
        na = g.newlabel("noarr")
        g.wait_vm("pub")
        g.e("s_barrier")
        g.e("s_cmp_lg_u32 s40, 0")
        g.e(f"s_cbranch_scc1 {na}")
        g.e("buffer_atomic_add v11, v15, s[32:35], s47 offen sc1")
        g.label(na)

    def pf_next(short):
        if not PF3 or T == "Z2" or (T in ("K", "V") and not short): return
        g.e("s_load_dwordx2 s[32:33], s[0:1], 40")
        g.e("s_load_dwordx2 s[36:37], s[0:1], 80")
        g.e("s_lshl_b32 s49, s41, 3")
        g.e("s_add_u32 s49, s49, s40")
        g.e(f"v_lshlrev_b32 v16, 3, v{VST}")
        g.e("s_waitcnt lgkmcnt(0)")
        g.e(f"s_mov_b32 s34, {4 * MB}")
        g.e("s_mov_b32 s35, 0x20000")
        g.e(f"s_mov_b32 s38, {896 * 1024}")
        g.e("s_mov_b32 s39, 0x20000")
        if T == "Z1":
            g.e("s_lshl_b32 s50, s42, 6")
            g.e("s_add_u32 s49, s49, s50")
            g.e("s_lshl_b32 s49, s49, 13")
            if short:
                g.e(f"s_sub_u32 s50, s49, {64 * 8192}")
                g.e("buffer_load_dword v17, v16, s[36:39], s50 offen")
                g.e(f"s_add_u32 s50, s50, {3 * MB}")
                g.e("buffer_load_dword v18, v16, s[32:35], s50 offen")
        else:
            g.e(f"s_mul_i32 s49, s49, {3 * 8192}")
            if T == "V": g.e(f"s_add_u32 s49, s49, {64 * 3 * 8192}")
            for i in range(3):
                g.e(f"buffer_load_dword v{17 + i}, v16, s[32:35], s49 offen")
                g.e("s_add_u32 s49, s49, 8192")

    def final(p, short=False):
        g.stamp(12)
        g.e("s_nop 7")
        if T == "Z1":
            xn_store()
            code_touch(g, 36, 14, "L_all_end", "k2_kernel", False)
        if T == "Z2":
            srd(g, 24, 16, 17, SZ_Z, WS_Z1)
            g.e("v_bfe_u32 v14, v0, 3, 1")
            g.e("v_mul_u32_u24 v14, 28672, v14")
            g.e("v_bfe_u32 v16, v0, 2, 1")
            g.e("v_lshl_add_u32 v14, v16, 7, v14")
            g.e("v_and_b32 v16, 0x33, v0")
            g.e("v_lshl_add_u32 v14, v16, 4, v14")
            for i in range(4): g.e(f"DR {XR + 4 * i},13,{i * 1024}")
        for op in epilogue(p): op()
        if T == "Z2":
            g.e("v_bfe_u32 v9, v0, 4, 2")
            g.e("v_lshlrev_b32 v9, 6, v9")
            g.e("v_and_b32 v10, 31, v0")
            g.e("v_lshlrev_b32 v10, 3, v10")
            spin = g.newlabel("spin"); done = g.newlabel("sdone")
            g.e("s_cmp_lg_u32 s40, 0")
            g.e(f"s_cbranch_scc1 {done}")
            g.label(spin)
            g.e("buffer_load_dword v11, v15, s[32:35], s47 offen sc1")
            g.e("s_waitcnt vmcnt(0)")
            g.e("v_readfirstlane_b32 s51, v11")
            g.e(f"s_cmp_ge_u32 s51, {GZ}")
            g.e(f"s_cbranch_scc1 {done}")
            g.e("s_sleep 4")
            g.e(f"s_branch {spin}")
            g.label(done)
            g.e("s_barrier")
            g.stamp(14)
            PB = 160
            for q in range(GZ):
                g.e(f"s_add_u32 s49, s59, {q * 16384}")
                g.e(f"buffer_load_dwordx2 v[{PB + 2 * q}:{PB + 2 * q + 1}], v10, s[36:39], s49 offen sc1")
            g.e(f"s_add_u32 s49, s46, {ZPARK}")
            g.e("v_add_u32 v10, s49, v10")
            g.e("v_add_u32 v9, s49, v9")
            g.e("s_waitcnt vmcnt(0) lgkmcnt(0)")
            for q in range(1, GZ):
                for i in range(2): g.e(f"v_add_f32 v{PB + i}, v{PB + i}, v{PB + 2 * q + i}")
            ln_params(g, [PB], [PB + 1], 896)
            g.e(f"ds_write_b64 v10, v[{PB}:{PB + 1}]")
            g.e("s_waitcnt lgkmcnt(0)")
            for i in range(4): g.e(f"DR {PB + 4 * i},9,{16 * i}")
            g.e("s_waitcnt lgkmcnt(0)")
            MEAN = [PB + 2 * e for e in range(8)]; VAR = [PB + 2 * e + 1 for e in range(8)]
            for pp in range(2):
                outbase(g.e, pp)
                for cb in range(4):
                    x = XR + 4 * cb if pp == 0 else areg(pp & 1, cb, 0)
                    t = 16 + (cb & 1) * 8
                    for r in range(4): g.e(f"v_lshlrev_b32 v{t + 2 * r}, 16, v{x + r}")
                    for r in range(4): g.e(f"v_and_b32 v{t + 2 * r + 1}, s53, v{x + r}")
                    for e in range(8): g.e(f"v_fma_f32 v{t + e}, v{t + e}, v{VAR[e]}, -v{MEAN[e]}")
                    for r in range(4): g.e(f"PK {x + r},{t + 2 * r},{t + 2 * r + 1}")
                    g.e(f"buffer_store_dwordx4 v[{x}:{x + 3}], v{VST}, s[28:31], s48 offen offset:{cb * 1024} {STF}")
        pf_next(short)
        g.stamp(13)
        g.stamp_dump(16, 17, 40, 0)
        g.e("s_endpgm")

    pend = []
    def wread(F, half=None):
        s, f = F >> 5, F & 31
        if s >= NST: return
        if f == 0 and half != 1:
            assert not pend
            g.wait_vm(("w", s))
            g.e("s_barrier")
            if s >= 2 and s % 2 == 0:
                g.e(f"v_xor_b32 v{VTE}, 0x10000, v{VTE}")
                g.e(f"v_xor_b32 v{VTO}, 0x10000, v{VTO}")
            if s >= (1 if ztype else 2): pend.extend(wdma_ops(s + 2))
        if pend and (f % 4 == 1 if not CLU else f >= 1) and half != 0: pend.pop(0)()
        mp, cb = f >> 2, f & 3
        r = WR + (F % 8) * 4
        for a in (range(2) if half is None else [half]):
            o = (s & 1) * 32768 + mp * 4096 + a * 512 + (cb >> 1) * 256
            g.lds(f"TR {r + 2 * a},{VTO if cb & 1 else VTE},{o}", ("w", F))

    g.stamp(1)
    ev = {}
    def at(F, fn): ev.setdefault(F, []).append(fn)
    if not ztype:
        xread(0)
        def spread(F0, ops, after=None):
            if after is not None: at(F0, lambda: g.wait_ds(("x", after)))
            for i, op in enumerate(ops): at(F0 + i, op)
        at(0, lambda: g.wait_ds(("x", 0)))
        spread(0, xdma_ops(2)); at(4, lambda: xread(1)); spread(4, xdma_ops(3), 0)
        at(8, lambda: g.wait_ds(("x", 1))); spread(8, wdma_ops(1, 47))
        at(12, lambda: xread(2)); spread(12, xdma_ops(4), 1)
        at(16, lambda: g.wait_ds(("x", 2))); spread(18, xdma_ops(5), 2)
        at(20, lambda: xread(3)); at(24, lambda: g.wait_ds(("x", 3)))
        spread(26, wdma_ops(2, 47), 3)
        at(30, lambda: xread(4)); spread(34, xdma_ops(6), 4)
        at(38, lambda: xread(5)); spread(42, xdma_ops(7), 5)
        at(50, lambda: xread(6)); spread(54, wdma_ops(3, 47), 6)
        at(66, lambda: xread(7)); at(84, lambda: g.wait_ds(("x", 7)))
    if PFW and not ztype:
        def pfw():
            g.e("s_bfe_u32 s43, s2, 0x20003")
            g.e("s_lshl_b32 s43, s43, 7")
            g.e("s_lshl_b32 s47, s40, 4")
            g.e("s_add_u32 s43, s43, s47")
            g.e("v_bfe_u32 v26, v0, 2, 4")
            g.e("v_add_u32 v26, s43, v26")
            g.e("v_lshlrev_b32 v26, 13, v26")
            g.e("v_and_b32 v27, 3, v0")
            g.e("v_lshl_add_u32 v26, v27, 7, v26")
            g.vmem(f"buffer_load_dword v27, v26, s[20:23], s44 offen offset:256 {NTP}", "t")
        at(PFW, pfw)
    if PF:
        def prefetch():
            srd(g, 32, 8, 9, 4 * MB)
            g.e("s_and_b32 s43, s2, 0xf8")
            g.e("s_add_u32 s43, s43, s40")
            g.e("s_lshl_b32 s43, s43, 14")
            g.e("s_and_b32 s47, s2, 7")
            g.e("s_lshl_b32 s47, s47, 8")
            g.e("s_add_u32 s47, s47, s43")
            g.e("v_and_b32 v14, 1, v0")
            g.e("v_lshlrev_b32 v14, 7, v14")
            g.e("v_bfe_u32 v15, v0, 1, 3")
            g.e("v_lshl_add_u32 v14, v15, 11, v14")
            g.e("v_bfe_u32 v15, v0, 4, 2")
            g.e("v_lshl_add_u32 v15, v15, 28, v14")
            g.vmem("buffer_load_dword v15, v15, s[32:35], s47 offen", "t")
        at(PF, prefetch)
    if ztype:
        for m in range(1, 16):
            ops = norm_ops(m)
            for i in range(4):
                at(("post", (m - 1) * 4 + i), lambda o=ops[i * 10:(i + 1) * 10]: [g.e(x) for x in o])
    for F in range(D): wread(F)
    fill = []
    done_at = {}
    for s, (p, kh) in enumerate(order):
        if kh == 1: done_at[s + 1] = p
    for s, (p, kh) in enumerate(order):
        st = p & 1
        if s < 9 and not (PROF == 3 and ztype): g.stamp(2 + s)
        if s == 2 * NS and NS < NP:
            cont = g.newlabel("cont")
            g.e(f"s_cmp_lt_u32 s42, {SHORT0}")
            g.e(f"s_cbranch_scc1 {cont}")
            sv = (list(g.vm), list(g.ds))
            final(NS - 1, True)
            g.vm, g.ds = sv
            g.label(cont)
        if s in done_at:
            assert not fill
            fill = epilogue(done_at[s])
            nslots = 60 if (ztype or kh == 0) else 27
            if T == "Z2" and s == 4:
                fill += [lambda: g.e("s_nop 1")] + publish_ops()
                nslots = ZPUB
                at(("post", 4 * 32 + ZPUB + 16), arrive)
            per = len(fill) / nslots
            acc = 0.0; slot = -3
            if CLU and not ztype:
                h = len(fill) - 10
                parts = [fill[:h], fill[h:]]
                for pi, part in enumerate(parts):
                    F0 = s * 32 + 3 + (32 * pi if kh == 0 else 6 * pi)
                    for i, op in enumerate(part): at(("post", F0 + i * 6 // len(part)), op)
                fill = []
        for f in range(32):
            F = s * 32 + f
            mp, cb = f >> 2, f & 3
            m = kh * 8 + mp
            for fn in ev.pop(F, []): fn()
            g.wait_ds(("w", F))
            r = WR + (F % 8) * 4
            for a in range(2):
                op = "MZ" if m == 0 else "M"
                if ktp(p): g.e(f"{op} {areg(st, cb, a)},{r},{xreg(a, m)}")
                else: g.e(f"{op} {areg(st, cb, a)},{xreg(a, m)},{r}")
                wread(F + D, a)
            for fn in ev.pop(("post", F), []): fn()
            if ztype and F < 60 and F % 4 == 3: g.e("s_nop 0")
            if fill:
                slot += 1
                if slot > 0:
                    acc += per
                    while fill and acc >= 1.0:
                        fill.pop(0)(); acc -= 1.0
        if kh == 1:
            while fill: fill.pop(0)()
    assert not ev
    final(NP - 1)
    g.label(f"L_k1_{T}_end")

def gen_k1(g):
    g.e(".p2align 8")
    g.e(".type k1_kernel,@function")
    g.label("k1_kernel")
    g.e("s_cmp_ge_u32 s2, 256")
    g.e("s_cbranch_scc1 L_k1_end")
    g.stamp(0)
    if PROF: g.e("s_memrealtime s[94:95]")
    g.e("s_load_dwordx4 s[4:7], s[0:1], 0")
    g.e("s_load_dwordx4 s[8:11], s[0:1], 16")
    g.e("s_load_dwordx2 s[12:13], s[0:1], 32")
    g.e("s_load_dwordx2 s[14:15], s[0:1], 56")
    g.e("s_load_dwordx2 s[18:19], s[0:1], 96")
    g.e("s_load_dwordx2 s[16:17], s[0:1], 104")
    g.e("v_lshrrev_b32 v1, 6, v0")
    g.e("s_lshr_b32 s49, s2, 3")
    g.e("s_and_b32 s41, s2, 1")
    g.e("v_readfirstlane_b32 s40, v1")
    g.e("s_lshl_b32 s41, s41, 2")
    g.e("s_and_b32 s50, s49, 3")
    g.e("s_add_u32 s41, s41, s50")
    g.e("s_and_b32 s3, s2, 6")
    g.e("s_lshl_b32 s3, s3, 2")
    g.e("s_lshr_b32 s49, s49, 2")
    g.e("s_add_u32 s3, s3, s49")
    if MIX:
        cst = [sum(v << (8 * i) for i, v in enumerate(row)) for row in GMAP]
        g.e("s_bitcmp1_b32 s2, 1")
        g.e(f"s_cselect_b32 s44, {cst[1] & 0xffffffff}, {cst[0] & 0xffffffff}") if False else None
        for k, (lo, hi) in enumerate(((44, 45), (46, 47))):
            g.e(f"s_mov_b32 s{lo}, {cst[2 * k] & 0xffffffff}")
            g.e(f"s_mov_b32 s{hi}, {cst[2 * k] >> 32}")
            g.e(f"s_cmov_b32 s{lo}, {cst[2 * k + 1] & 0xffffffff}")
            g.e(f"s_cmov_b32 s{hi}, {cst[2 * k + 1] >> 32}")
        g.e("s_bitcmp1_b32 s2, 2")
        g.e("s_cselect_b64 s[44:45], s[46:47], s[44:45]")
        g.e("s_lshl_b32 s49, s49, 3")
        g.e("s_lshr_b64 s[44:45], s[44:45], s49")
        g.e("s_and_b32 s3, s44, 31")
    if MAP84:
        g.e("s_bfe_u32 s41, s2, 0x30003")
        g.e("s_and_b32 s3, s2, 7")
        g.e("s_lshl_b32 s3, s3, 2")
        g.e("s_lshr_b32 s49, s2, 6")
        g.e("s_add_u32 s3, s3, s49")
    g.e("s_waitcnt lgkmcnt(0)")
    g.e(f"s_cmp_lt_u32 s3, {GKV}")
    g.e("s_cbranch_scc1 L_k1_K")
    g.e(f"s_cmp_lt_u32 s3, {2 * GKV}")
    g.e("s_cbranch_scc1 L_k1_V")
    g.e(f"s_cmp_lt_u32 s3, {2 * GKV + 3}")
    g.e("s_cbranch_scc1 L_k1_Z1")
    g.e("s_branch L_k1_Z2")
    g.label("L_k1_end")
    g.e("s_endpgm")
    for T in ("K", "V", "Z1", "Z2"):
        gen_type(g, T)
```

```python
from asmlib import *
import k1
from k1 import w_voffsets, tr_bases, xreg, areg, WR, D
import math

QSCALE = 128 ** -0.5 * math.log2(math.e)
STASH = 131072
DSP = int(os.environ.get('DSP', '3')); EB = int(os.environ.get('EB', '14'))
XPRE = int(os.environ.get('XPRE', '4'))
PS = int(os.environ.get('PS', '0'))
NTSP = os.environ.get('NTSP', '')
PF2 = int(os.environ.get('PF2', '0'))
KINS = int(os.environ.get('KINS', '0'))
NTAIL = int(os.environ.get('NTAIL', '0'))
STF2 = os.environ.get('STF2', 'sc1')
PFS = int(os.environ.get('PFS', '54'))
STFX = os.environ.get('STFX', 'sc1'); STFU = os.environ.get('STFU', '')
NTWQ = os.environ.get('NTWQ', '')
NPART = 3
VF, VNEG, VL, VT, V16, VLT = 1, 3, 4, 6, 7, 8
NEGM, PR, TMP, OR, FR = 16, 24, 40, 128, 192
ML, FA, FB = 52, 56, 58
def sreg(kt, qb): return 72 + 16 * kt + 4 * qb
def preg(qb, kg): return PR + (qb * 2 + kg) * 4
def qreg(qb, mm): return 64 + 16 * mm + 4 * qb
def oreg(cb, qb): return OR + (cb * 2 + qb) * 4
def freg(j): return FR + j * 4

def merge_streams(main, fill, start=0):
    out = []
    n = len(main) - start
    acc = 0.0
    fill = list(fill)
    per = len(fill) / max(1, n)
    for i, m in enumerate(main):
        out.append(m)
        if i >= start:
            acc += per
            while fill and acc >= 0.999:
                out.append(fill.pop(0)); acc -= 1.0
    return out + fill

def dma4(g, so, first_m0=None, tag=None):
    ops = []
    for j in range(4):
        def op(j=j):
            if j == 0 and first_m0:
                g.e(first_m0); g.e("s_nop 0")
            g.vmem(f"buffer_load_dwordx4 v{V16}, s[28:31], s{so} offen offset:{j * 1024} lds", tag)
        ops.append(op)
    return ops

def next_ops(t):
    return [[f"s_and_b32 s19, s{t}, 3"], ["s_lshl_b32 s19, s19, 15"],
            ["s_xor_b32 s50, s19, 0x10000"], ["s_add_u32 s50, s50, s55"],
            [f"s_add_u32 s49, s{t}, 2"], ["s_lshl_b32 s51, s49, 14"], ["s_add_u32 s51, s51, s54"],
            ["s_cmp_lt_u32 s49, s48", "s_cselect_b32 s51, s51, s54"],
            [f"s_cmp_lt_u32 s{t}, s45", "s_cselect_b32 s49, s41, 0"],
            ["s_lshl_b32 s7, s49, 14"], ["s_add_u32 m0, s50, s7"], ["s_lshl_b32 s49, s49, 24"],
            ["s_add_u32 s7, s51, s49"], [f"s_add_u32 s51, s51, {16 * MB}"]]

def softmax_ops(g):
    ops = []
    I = lambda s: ops.append(lambda s=s: g.e(s))
    T = [TMP + i for i in range(8)]
    k = 0
    for kt in range(4):
        for qb in range(2):
            s = sreg(kt, qb); t = T[(k % 2) * 4:(k % 2) * 4 + 4]; k += 1
            for r in range(4): I(f"v_exp_f32 v{t[r]}, v{s + r}")
            p = preg(qb, kt >> 1) + (kt & 1) * 2
            if kt == 0:
                I(f"v_add_f32 v{VLT + qb}, v{t[0]}, v{t[1]}")
                I(f"PK {p},{t[0]},{t[1]}")
                I(f"v_add_f32 v{VLT + qb}, v{VLT + qb}, v{t[2]}")
                I(f"PK {p + 1},{t[2]},{t[3]}")
                I(f"v_add_f32 v{VLT + qb}, v{VLT + qb}, v{t[3]}")
            else:
                I(f"v_add_f32 v{VLT + qb}, v{VLT + qb}, v{t[0]}")
                I(f"v_add_f32 v{VLT + qb}, v{VLT + qb}, v{t[1]}")
                I(f"PK {p},{t[0]},{t[1]}")
                I(f"v_add_f32 v{VLT + qb}, v{VLT + qb}, v{t[2]}")
                I(f"v_add_f32 v{VLT + qb}, v{VLT + qb}, v{t[3]}")
                I(f"PK {p + 1},{t[2]},{t[3]}")
    return ops

def xgroup(g, regs, op, tmp):
    for sw in ("v_permlane32_swap_b32", "v_permlane16_swap_b32"):
        for i, r in enumerate(regs): g.e(f"v_mov_b32 v{tmp + i}, v{r}")
        g.e("s_nop 1")
        for i, r in enumerate(regs): g.e(f"{sw} v{tmp + i}, v{r}")
        g.e("s_nop 1")
        for i, r in enumerate(regs): g.e(f"{op} v{r}, v{r}, v{tmp + i}")

def rescale(g, first):
    MX = [TMP + 8, TMP + 9]
    for qb in range(2):
        vals = [sreg(kt, qb) + r for kt in range(4) for r in range(4)]
        g.e(f"v_max3_f32 v{MX[qb]}, v{vals[0]}, v{vals[1]}, v{vals[2]}")
        for i in range(3, 15, 2): g.e(f"v_max3_f32 v{MX[qb]}, v{MX[qb]}, v{vals[i]}, v{vals[i + 1]}")
        g.e(f"v_max_f32 v{MX[qb]}, v{MX[qb]}, v{vals[15]}")
    xgroup(g, MX, "v_max_f32", TMP + 10)
    if not first:
        for qb in range(2): g.e(f"v_max_f32 v{MX[qb]}, 0, v{MX[qb]}")
    for kt in range(4):
        for qb in range(2):
            for r in range(4): g.e(f"v_sub_f32 v{sreg(kt, qb) + r}, v{sreg(kt, qb) + r}, v{MX[qb]}")
    for qb in range(2):
        for r in range(4): g.e(f"v_sub_f32 v{NEGM + qb * 4 + r}, v{NEGM + qb * 4 + r}, v{MX[qb]}")
    if not first:
        for qb in range(2): g.e(f"v_exp_f32 v{MX[qb]}, -v{MX[qb]}")
        g.e("s_nop 0")
        for cb in range(8):
            for qb in range(2):
                for r in range(4): g.e(f"v_mul_f32 v{oreg(cb, qb) + r}, v{oreg(cb, qb) + r}, v{MX[qb]}")
        for qb in range(2): g.e(f"v_mul_f32 v{VL + qb}, v{VL + qb}, v{MX[qb]}")

def mask_block(g):
    skip = g.newlabel("nomask"); l1 = g.newlabel("m1"); lf = g.newlabel("mf"); do = g.newlabel("domask")
    g.e("s_add_u32 s49, s52, 2")
    g.e("s_cmp_ge_u32 s49, s48")
    g.e(f"s_cbranch_scc1 {do}")
    g.e("s_sub_u32 s49, s52, s46")
    g.e("s_cmp_lt_u32 s49, 2")
    g.e(f"s_cbranch_scc0 {skip}")
    g.label(do)
    g.e("s_and_b32 s49, s52, 1")
    g.e("s_lshl_b32 s49, s49, 1")
    g.e("s_sub_u32 s49, s42, s49")
    def diag(kt, qb):
        for r in range(4): g.e(f"v_cndmask_b32 v{sreg(kt, qb) + r}, v{VNEG}, v{sreg(kt, qb) + r}, s[{8 + 2 * r}:{9 + 2 * r}]")
    def full(kt, qb):
        for r in range(4): g.e(f"v_mov_b32 v{sreg(kt, qb) + r}, v{VNEG}")
    g.e("s_cmp_ge_i32 s49, 2")
    g.e(f"s_cbranch_scc1 {skip}")
    g.e("s_cmp_eq_i32 s49, 1")
    g.e(f"s_cbranch_scc1 {l1}")
    g.e("s_cmp_lt_i32 s49, 0")
    g.e(f"s_cbranch_scc1 {lf}")
    diag(0, 0); full(1, 0); diag(1, 1); full(2, 0); full(2, 1); full(3, 0); full(3, 1)
    g.e(f"s_branch {skip}")
    g.label(l1)
    diag(2, 0); full(3, 0); diag(3, 1)
    g.e(f"s_branch {skip}")
    g.label(lf)
    for kt in range(4):
        for qb in range(2): full(kt, qb)
    g.label(skip)

def m_phase(g, has_pv, zero, split, post=None):
    g.vm = []
    dma = dma4(g, 7) + (dma4(g, 51, "s_add_u32 m0, s50, 16384") if split else [])
    sal = [["s_add_u32 s49, s52, 2"], ["s_cmp_ge_u32 s49, s48", "s_cselect_b32 s4, 0, 4"], ["s_sub_u32 s49, s52, s46"], ["s_min_u32 s4, s4, s49"],
           ["s_cmp_lt_u32 s52, s53", "s_cselect_b32 s47, 1, 2"], ["s_add_u32 s47, s47, s52"]]
    sal2 = next_ops(47)
    if has_pv:
        g.ds = []
        sp = DSP if split else 4
        for j in range(16):
            kg, cb = j >> 3, j & 7
            for qb in range(2):
                g.e(f"{'MZ' if zero and kg == 0 else 'M'} {oreg(cb, qb)},{freg(j)},{preg(qb, kg)}")
                if qb == 0 and j >= 1: g.lds(f"DR {freg(j - 1)},{VF},{(j - 1) * 1024}", ("k", j - 1))
            if dma and j % sp == 0: dma.pop(0)()
            elif sal:
                for t in sal.pop(0): g.e(t)
        g.lds(f"DR {freg(15)},{VF},{15 * 1024}", ("k", 15))
    else:
        sp = 2
    PT = int(os.environ.get('PT', '5'))
    if has_pv and not zero: g.stamp_if(7, 52, PT)
    tail = []
    so = softmax_ops(g)[:NTAIL]
    for b in range(0, NTAIL, 9):
        o = so[b:b + 9]
        tail += [[o[0]], [o[1]], [o[2]], [o[3]], o[4:6], o[6:8], o[8:9]]
    for j in range(16):
        kt, mm = j >> 2, j & 3
        if j == EB:
            g.wait_ds(("k", 15))
            if has_pv and not zero: g.stamp_if(8, 52, PT)
            if has_pv: g.e(f"s_waitcnt vmcnt({8 if split else 4})")
            g.e("s_setprio 2")
            g.e("s_barrier")
        if j == 0: g.wait_ds(("k", 10))
        if j == 5: g.wait_ds(("k", 15))
        for qb in range(2):
            if mm == 0: g.e(f"MC {sreg(kt, qb)},{freg(j)},{qreg(qb, mm)},{NEGM + qb * 4}")
            else: g.e(f"M {sreg(kt, qb)},{freg(j)},{qreg(qb, mm)}")
            if qb == 0 and j >= 1: g.lds(f"DR {freg(j - 1)},{VF},{16384 + (j - 1) * 1024}", "v")
            if j >= EB and tail:
                for op in tail.pop(0): op()
            if not has_pv and j >= EB and dma: dma.pop(0)()
            elif has_pv and qb == 1 and dma and (j + 16) % sp == 0: dma.pop(0)()
            elif qb == 1 and sal:
                for t in sal.pop(0): g.e(t)
            elif not sal and not dma and sal2:
                for t in sal2.pop(0): g.e(t)
    while dma: dma.pop(0)()
    assert not sal
    if post: post()
    for grp in sal2:
        for t in grp: g.e(t)
    g.lds(f"DR {freg(15)},{VF},{16384 + 15 * 1024}", "v")
    g.e("s_setprio 0")
    for w in tail:
        for op in w: op()
    g.vm = []; g.ds = []
    if has_pv:
        g.e("s_cmp_lt_u32 s4, 4")
        g.e("s_cbranch_scc1 L_k2_sgen")
    else:
        g.e("s_branch L_k2_sgen")

def advance(g):
    g.e("s_mov_b32 s52, s47")
    g.e(f"v_add_u32 v{VF}, s19, v{V16}")

def gen_attn(g):
    g.vm = []; g.ds = []
    g.label("L_k2_attn")
    g.e("s_mul_i32 s49, s41, 37")
    g.e("s_lshr_b32 s49, s49, 8")
    g.e("s_mul_i32 s50, s49, 7")
    g.e("s_sub_u32 s44, s41, s50")
    g.e("s_lshl_b32 s49, s49, 3")
    g.e("s_add_u32 s43, s3, s49")
    g.e("s_lshr_b32 s41, s40, 2")
    g.e("s_and_b32 s42, s40, 3")
    g.e("s_sub_u32 s32, 15, s44")
    g.e("s_add_u32 s33, s44, 4")
    g.e("s_cmp_eq_u32 s44, 6")
    g.e("s_cselect_b32 s32, 3, s32")
    g.e("s_cselect_b32 s33, 2, s33")
    g.e("s_lshl_b32 s49, s3, 20")
    g.e("s_add_u32 s60, s6, s49")
    g.e("s_addc_u32 s61, s7, 0")
    g.e(f"s_mov_b32 s62, {MB}")
    g.e("s_mov_b32 s63, 0x20000")
    srd(g, 20, 4, 5, 512 * 8192)
    srd(g, 24, 16, 17, SZ_XN, WS_XN)
    srd(g, 28, 16, 17, 2 * SZ_KV, WS_K)
    srd(g, 36, 16, 17, SZ_CTX, WS_CTX)
    g.e("s_lshl_b32 s55, s42, 12")
    g.e("s_lshl_b32 s54, s43, 19")
    g.e("s_add_u32 s54, s54, s55")
    g.e("s_lshl_b32 s57, s42, 13")
    g.e(f"s_add_u32 s57, s57, {STASH}")
    g.e("v_and_b32 v28, 63, v0")
    g.e(f"v_lshlrev_b32 v{V16}, 4, v28")
    g.e("v_and_b32 v28, 15, v0")
    g.e("v_bfe_u32 v29, v0, 4, 2")
    g.e("v_lshlrev_b32 v29, 2, v29")
    g.e("v_sub_u32 v28, v28, v29")
    for r in range(4): g.e(f"v_cmp_le_i32 s[{8 + 2 * r}:{9 + 2 * r}], {r}, v28")
    g.label("L_k2_round")
    g.e("s_mov_b32 s53, 0")
    w_voffsets(g, 8192, 1, 53)
    g.e("s_lshl_b32 s18, s43, 8")
    g.e("s_lshl_b32 s19, s40, 12")
    g.e("s_cmp_eq_u32 s41, 0")
    g.e("s_cselect_b32 s47, s32, s33")
    g.e("s_lshl_b32 s47, s47, 17")
    g.e("s_lshl_b32 s49, s42, 15")
    g.e("s_add_u32 s47, s47, s49")
    def wdma(s):
        p, kh = s & 1, s >> 1
        g.e(f"s_add_u32 s51, s18, {p * 128 + kh * 256 * 8192}")
        g.e(f"s_add_u32 m0, s19, {s * 32768}")
        g.e("s_nop 0")
        for j in range(4):
            g.vmem(f"buffer_load_dwordx4 v{1 + j}, s[20:23], s51 offen offset:{j * 1024} {NTWQ} lds", ("w", s))
    def xload(m):
        if m % 4 == 0:
            g.e(f"s_add_u32 s6, s47, {m * 1024}")
            g.e(f"s_add_u32 s7, s47, {m * 1024 + 16384}")
        for a in range(2):
            x = xreg(a, m)
            g.vmem(f"buffer_load_dwordx4 v[{x}:{x + 3}], v{V16}, s[24:27], s{6 + a} offen offset:{(m % 4) * 1024}", ("x", m))
    if PROF == 1: g.stamp(6)
    wdma(0)
    for m in range(2): xload(m)
    code_touch(g, 96, 14, "L_k2_sp")
    g.e("s_barrier")
    for m in range(2, 4): xload(m)
    later = {6: lambda: wdma(1), 20: lambda: wdma(2), 50: lambda: wdma(3)}
    def pf_wsp():
        sk = g.newlabel("nopf")
        g.e("s_cmp_eq_u32 s32, 1")
        g.e(f"s_cbranch_scc1 {sk}")
        g.e("s_and_b32 s49, s2, 0xf8")
        g.e("s_add_u32 s49, s49, s40")
        g.e("s_mul_i32 s49, s49, 4736")
        g.e(f"v_lshlrev_b32 v10, 3, v{V16}")
        g.e("v_mov_b32 v12, 0x10000000")
        g.e("v_cmp_gt_u32 vcc, 4736, v10")
        g.e("s_nop 1")
        g.e("v_cndmask_b32 v11, v12, v10, vcc")
        g.e("buffer_load_dword v13, v11, s[60:63], s49 offen")
        g.label(sk)
    for m, F in zip(range(4, 16), (0, 2, 4, 8, 12, 16, 24, 28, 32, 36, 40, 44)): later[F] = lambda m=m: xload(m)
    tr_bases(g, 5, 6)
    g.e(f"s_mov_b32 s56, {f32(QSCALE)}")
    g.e("s_lshl_b32 s48, s32, 1")
    g.e("s_add_u32 s48, s48, 2")
    g.e("s_lshl_b32 s45, s33, 1")
    g.e("s_add_u32 s45, s45, 2")
    g.e("s_sub_u32 s53, s45, s41")
    g.e("s_sub_u32 s46, s45, 2")
    g.e("s_cmp_eq_u32 s41, 0")
    g.e("s_cselect_b32 s46, 0x1000, s46")
    g.stamp(1)
    def first_tile(t):
        g.e("s_lshl_b32 s49, s41, 24")
        g.e("s_add_u32 s50, s54, s49")
        if t: g.e("s_add_u32 s50, s50, 16384")
        return dma4(g, 50, f"s_add_u32 m0, s19, {t * 32768}", "kv")
    def wread(F, half=None):
        s, f = F >> 5, F & 31
        if s >= 4: return
        if f == 0 and half != 1:
            g.wait_vm(("w", s), "kv")
            g.e("s_barrier")
            if s == 2:
                g.e("v_xor_b32 v5, 0x10000, v5")
                g.e("v_xor_b32 v6, 0x10000, v6")
            if s >= 2:
                for op in first_tile(s - 2): op()
        mp, cb = f >> 2, f & 3
        r = WR + (F % 8) * 4
        for a in (range(2) if half is None else [half]):
            o = (s & 1) * 32768 + mp * 4096 + a * 512 + (cb >> 1) * 256
            g.lds(f"TR {r + 2 * a},{6 if cb & 1 else 5},{o}", ("w", F))
    def qpack(p):
        ops = []
        I = lambda s: ops.append(lambda s=s: g.e(s))
        for a in range(2):
            for mm in range(2):
                x, y = areg(p, 2 * mm, a), areg(p, 2 * mm + 1, a)
                assert x == qreg(a, 2 * p + mm)
                for r in range(4): I(f"v_mul_f32 v{x + r}, s56, v{x + r}")
                for r in range(4): I(f"v_mul_f32 v{y + r}, s56, v{y + r}")
                I(f"PK {x},{x},{x + 1}"); I(f"PK {x + 1},{x + 2},{x + 3}")
                I(f"PK {x + 2},{y},{y + 1}"); I(f"PK {x + 3},{y + 2},{y + 3}")
        return ops
    for F in range(D): wread(F)
    fill = []
    for s in range(4):
        p, kh = s & 1, s >> 1
        if PROF == 1: g.stamp(7 + s)
        if s == 3: fill = qpack(0)
        for f in range(32):
            F = s * 32 + f
            mp, cb = f >> 2, f & 3
            m = kh * 8 + mp
            if p == 0 and cb == 0: g.wait_vm(("x", m))
            g.wait_ds(("w", F))
            r = WR + (F % 8) * 4
            for a in range(2):
                g.e(f"{'MZ' if m == 0 else 'M'} {areg(p, cb, a)},{r},{xreg(a, m)}")
                wread(F + D, a)
            if F in later: later.pop(F)()
            if fill and f >= 4:
                fill.pop(0)(); fill.pop(0)()
    assert not fill and not later
    g.stamp(2)
    g.e("s_mov_b32 s47, 0")
    for grp in next_ops(47):
        for t in grp: g.e(t)
    advance(g)
    g.vm = []; g.ds = []
    for j in range(16): g.e(f"DR {freg(j)},{VF},{j * 1024}")
    for op in qpack(1): op()
    g.e(f"v_mov_b32 v{VNEG}, {f32(-1e30)}")
    g.e(f"s_mov_b32 s56, {f32(2.0 ** 30)}")
    g.e(f"s_mov_b32 s6, {f32(2.0 ** -30)}")
    for i in range(8): g.e(f"v_mov_b32 v{NEGM + i}, 0")
    g.e(f"v_add_u32 v9, s57, v{V16}")
    g.e("s_waitcnt vmcnt(0) lgkmcnt(0)")
    g.stamp(3)
    la = g.newlabel("qa")
    g.e("s_cmp_eq_u32 s41, 0")
    g.e(f"s_cbranch_scc1 {la}")
    g.e("s_barrier")
    g.label(la)
    def post0():
        if PFS: pf_wsp()
        sk = g.newlabel("nost")
        g.e("s_cmp_eq_u32 s41, 0")
        g.e(f"s_cbranch_scc0 {sk}")
        for qb in range(2):
            for mm in range(4): g.e(f"DW 9,{qreg(qb, mm)},{(qb * 4 + mm) * 1024}")
        g.label(sk)
    m_phase(g, False, False, False, post0)
    def s_fast(tag):
        g.label(f"L_k2_s{tag}")
        PT = int(os.environ.get('PT', '5'))
        g.stamp_if(9, 52, PT)
        for op in softmax_ops(g)[NTAIL:]: op()
        g.e(f"v_max_f32 v{VT}, v{VLT}, v{VLT + 1}")
        g.e(f"v_cmp_lt_f32 vcc, s56, v{VT}")
        g.e("s_cbranch_vccnz L_k2_sgen")
        for qb in range(2): g.e(f"v_add_f32 v{VL + qb}, v{VL + qb}, v{VLT + qb}")
        g.stamp_if(10, 52, PT)
        if PROF == 2:
            g.e("s_waitcnt vmcnt(0) lgkmcnt(0)")
            g.stamp_if(11, 52, PT)
        advance(g)
        if tag == "sh": g.e("s_cmp_lt_u32 s52, s45")
        g.e("s_waitcnt lgkmcnt(0)" if tag == "sh" else "s_waitcnt vmcnt(0) lgkmcnt(0)")
        g.e("s_barrier")
    s_fast("sh")
    g.e("s_cbranch_scc0 L_k2_msp")
    g.label("L_k2_msh")
    g.stamp_if(6, 52, int(os.environ.get('PT', '5'))); g.stamp_if(12, 52, int(os.environ.get('PT', '5')) + 1)
    m_phase(g, True, False, False)
    g.e("s_branch L_k2_ssh")
    s_fast("sp")
    g.label("L_k2_msp")
    m_phase(g, True, False, True)
    g.e("s_branch L_k2_ssp")
    g.label("L_k2_mzsh")
    m_phase(g, True, True, False)
    g.e("s_branch L_k2_ssh")
    g.label("L_k2_mzsp")
    m_phase(g, True, True, True)
    g.e("s_branch L_k2_ssp")
    EXP = os.environ.get('ATEXP', '')
    if EXP:
        i0 = g.lines.index("L_k2_ssh:")
        keep = []
        for l in g.lines[i0:]:
            if 'd' in EXP and l.startswith('buffer_load'): continue
            if 'r' in EXP and l.startswith('DR '): continue
            if 'e' in EXP and l.startswith('v_exp'): l = l.replace('v_exp_f32', 'v_mov_b32')
            if 'v' in EXP and (l.startswith('v_exp') or l.startswith('PK') or (l.startswith('v_add_f32 v8') or l.startswith('v_add_f32 v9'))): continue
            if 'b' in EXP and l.startswith('s_cbranch_vccnz'): continue
            keep.append(l)
        g.lines[i0:] = keep
    def ctx_base(blk):
        g.e(f"s_lshl_b32 s49, s{blk}, 3")
        g.e("s_lshl_b32 s35, s42, 1")
        g.e("s_add_u32 s49, s49, s35")
        g.e("s_mul_i32 s49, s49, 159744")
        g.e("s_lshl_b32 s35, s43, 12")
        g.e("s_add_u32 s34, s49, s35")
        g.e("s_add_u32 s35, s34, 159744")
    def pack_store(mm, qb, fl=STF2):
        x, y = oreg(2 * mm, qb), oreg(2 * mm + 1, qb)
        return [f"PK {x},{x},{x + 1}", f"PK {x + 1},{x + 2},{x + 3}", f"PK {x + 2},{y},{y + 1}", f"PK {x + 3},{y + 2},{y + 3}",
                f"buffer_store_dwordx4 v[{x}:{x + 3}], v{V16}, s[36:39], s{34 + qb} offen offset:{mm * 1024} {fl}"]
    g.label("L_k2_sgen")
    g.e("s_sub_u32 s49, s52, s46")
    g.e("s_cmp_eq_u32 s49, 3")
    g.e("s_cselect_b32 s5, 2, 0")
    g.e("s_cmp_eq_u32 s52, 0")
    g.e("s_cselect_b32 s5, 1, s5")
    g.e("s_cselect_b32 s18, s6, 0")
    g.e("s_cmp_eq_u32 s5, 2")
    g.e("s_cselect_b32 s18, s6, s18")
    mask_block(g)
    ny = g.newlabel("ny"); jy = g.newlabel("jy")
    g.e("s_cmp_eq_u32 s5, 2")
    g.e(f"s_cbranch_scc0 {ny}")
    ctx_base(33)
    so = softmax_ops(g)
    k = 0
    for mm in range(4):
        for qb in range(2):
            for cb in (2 * mm, 2 * mm + 1):
                for r in range(4): g.e(f"v_mul_f32 v{oreg(cb, qb) + r}, v{oreg(cb, qb) + r}, v{FA + qb}")
            for t in pack_store(mm, qb): g.e(t)
            n = 9 if k < 2 else 10
            for op in so[:n]: op()
            so = so[n:]; k += 1
    assert not so
    g.e(f"s_branch {jy}")
    g.label(ny)
    for op in softmax_ops(g): op()
    g.label(jy)
    g.e(f"v_max_f32 v{VT}, v{VLT}, v{VLT + 1}")
    g.e(f"v_min_f32 v{TMP}, v{VLT}, v{VLT + 1}")
    g.e(f"v_cmp_lt_f32 vcc, s56, v{VT}")
    g.e("s_cbranch_vccnz L_k2_slow")
    g.e(f"v_cmp_gt_f32 vcc, s18, v{TMP}")
    g.e("s_cbranch_vccnz L_k2_slow")
    g.label("L_k2_back")
    nf = g.newlabel("nf")
    g.e("s_cmp_eq_u32 s5, 0")
    g.e(f"s_cbranch_scc1 {nf}")
    for qb in range(2): g.e(f"v_mov_b32 v{VL + qb}, 0")
    g.label(nf)
    for qb in range(2): g.e(f"v_add_f32 v{VL + qb}, v{VL + qb}, v{VLT + qb}")
    g.e("s_add_u32 s49, s52, 2")
    g.e("s_cmp_ge_u32 s49, s48")
    g.e("s_cbranch_scc1 L_k2_xlast")
    nl = g.newlabel("nyl")
    g.e("s_sub_u32 s49, s52, s46")
    g.e("s_cmp_eq_u32 s49, 1")
    g.e(f"s_cbranch_scc0 {nl}")
    g.e(f"v_add_u32 v10, s57, v{V16}")
    for qb in range(2):
        for mm in range(4): g.e(f"DR {qreg(qb, mm)},10,{(qb * 4 + mm) * 1024}")
    xgroup(g, [VL, VL + 1], "v_add_f32", TMP + 2)
    for qb in range(2): g.e(f"v_rcp_f32 v{FA + qb}, v{VL + qb}")
    for i in range(8): g.e(f"v_mov_b32 v{NEGM + i}, 0")
    g.label(nl)
    advance(g)
    g.e("s_cmp_lt_u32 s52, s45")
    g.e("s_cselect_b32 s49, 0, 4")
    g.e("s_add_u32 s5, s5, s49")
    w8 = g.newlabel("w8")
    g.e("s_and_b32 s49, s5, 3")
    g.e(f"s_cbranch_scc1 {w8}")
    g.e("s_waitcnt vmcnt(0)")
    g.label(w8)
    g.e("s_waitcnt vmcnt(8) lgkmcnt(0)")
    g.e("s_barrier")
    g.e("s_cmp_eq_u32 s5, 0")
    g.e("s_cbranch_scc1 L_k2_msh")
    g.e("s_cmp_eq_u32 s5, 4")
    g.e("s_cbranch_scc1 L_k2_msp")
    g.e("s_cmp_eq_u32 s5, 1")
    g.e("s_cbranch_scc1 L_k2_mzsh")
    g.e("s_branch L_k2_mzsp")
    g.label("L_k2_xlast")
    g.e("s_and_b32 s49, s48, 3")
    g.e("s_lshl_b32 s49, s49, 15")
    g.e("s_lshl_b32 s50, s42, 13")
    g.e("s_add_u32 s50, s50, s49")
    g.e(f"v_add_u32 v11, s50, v{V16}")
    g.e(f"v_add_u32 v10, s57, v{V16}")
    g.e("s_xor_b32 s49, s49, 0x10000")
    g.e("s_lshl_b32 s50, s42, 10")
    g.e("s_add_u32 s49, s49, s50")
    g.e(f"v_add_u32 v{VT}, s49, v{V16}")
    xaddr = lambda i: (10 + (i >> 3), (i & 7) * 1024)
    def pvgroup(cb, zero, mid=()):
        mid = list(mid)
        for kg in range(2):
            for qb in range(2):
                g.e(f"{'MZ' if zero and kg == 0 else 'M'} {oreg(cb, qb)},{freg(kg * 8 + cb)},{preg(qb, kg)}")
                n = -(-len(mid) // (4 - (kg * 2 + qb)))
                for _ in range(n): mid.pop(0)()
    g.e("s_cmp_eq_u32 s41, 0")
    g.e("s_cbranch_scc0 L_k2_xlastB")
    g.e(f"v_mov_b32 v{ML}, v{NEGM}")
    g.e(f"v_mov_b32 v{ML + 1}, v{NEGM + 4}")
    g.e(f"v_mov_b32 v{ML + 2}, v{VL}")
    g.e(f"v_mov_b32 v{ML + 3}, v{VL + 1}")
    g.e(f"DW {VT},{ML},0")
    g.e("s_waitcnt vmcnt(0) lgkmcnt(0)")
    g.e("s_barrier")
    dw = lambda i: (lambda: g.e(f"DW {xaddr(i)[0]},{OR + i * 4},{xaddr(i)[1]}"))
    for cb in range(8):
        pvgroup(cb, False, [dw(2 * cb - 6), dw(2 * cb - 5)] if cb >= 3 else [])
    for i in range(10, 12): dw(i)()
    g.e("s_nop 3")
    for i in range(12, 16): dw(i)()
    g.e("s_waitcnt lgkmcnt(0)")
    g.e("s_barrier")
    g.e("s_branch L_k2_rend")
    g.label("L_k2_xlastB")
    g.e(f"DR {ML},{VT},0")
    ctx_base(32)
    NM = TMP
    g.e("s_waitcnt lgkmcnt(0)")
    for qb in range(2): g.e(f"v_min_f32 v{NM + qb}, v{ML + qb}, v{NEGM + 4 * qb}")
    for qb in range(2): g.e(f"v_sub_f32 v{FA + qb}, v{NM + qb}, v{ML + qb}")
    for qb in range(2): g.e(f"v_sub_f32 v{FB + qb}, v{NM + qb}, v{NEGM + 4 * qb}")
    for i in range(4): g.e(f"v_exp_f32 v{FA + i}, v{FA + i}")
    g.e("s_nop 0")
    for qb in range(2): g.e(f"v_mul_f32 v{VL + qb}, v{VL + qb}, v{FB + qb}")
    for qb in range(2): g.e(f"v_fmac_f32 v{VL + qb}, v{ML + 2 + qb}, v{FA + qb}")
    xgroup(g, [VL, VL + 1], "v_add_f32", TMP + 2)
    for qb in range(2): g.e(f"v_rcp_f32 v{VL + qb}, v{VL + qb}")
    g.e("s_nop 0")
    for qb in range(2): g.e(f"v_mul_f32 v{FA + qb}, v{FA + qb}, v{VL + qb}")
    for qb in range(2): g.e(f"v_mul_f32 v{FB + qb}, v{FB + qb}, v{VL + qb}")
    lz = g.newlabel("finz")
    g.e("s_cmp_eq_u32 s5, 0")
    g.e(f"s_cbranch_scc0 {lz}")
    for zero in (False, True):
        if zero: g.label(lz)
        g.ds = []
        for cb in range(4): pvgroup(cb, zero)
        g.e("s_barrier")
        def merge_ops(mm):
            ops = []
            I = lambda t: ops.append(lambda t=t: g.e(t))
            for qb in range(2):
                for cb in (2 * mm, 2 * mm + 1):
                    o = oreg(cb, qb)
                    for r in range(4): I(f"v_mul_f32 v{o + r}, v{o + r}, v{FB + qb}")
                    ops.append(lambda cb=cb, qb=qb: g.wait_ds(("o", cb, qb)))
                    for r in range(4): I(f"v_fmac_f32 v{o + r}, v{freg(qb * 8 + cb) + r}, v{FA + qb}")
                for t in pack_store(mm, qb, STFX): I(t)
            return ops
        xr = lambda cb, qb: (lambda: g.lds(f"DR {freg(qb * 8 + cb)},{xaddr(cb * 2 + qb)[0]},{xaddr(cb * 2 + qb)[1]}", ("o", cb, qb)))
        for cb in range(3): xr(cb, 0)(); xr(cb, 1)()
        m0 = merge_ops(0)
        for cb in range(4, 8):
            mid = [xr(cb - 1, 0), xr(cb - 1, 1)]
            if cb == 6: mid += m0[:len(m0) // 2]
            if cb == 7: mid += m0[len(m0) // 2:]
            pvgroup(cb, zero, mid)
        xr(7, 0)(); xr(7, 1)()
        for op in merge_ops(1) + merge_ops(2) + merge_ops(3): op()
        if not zero: g.e("s_branch L_k2_rend")
    g.label("L_k2_rend")
    g.stamp(5)
    g.e("s_cmp_eq_u32 s32, 3")
    g.e("s_cbranch_scc0 L_k2_aend")
    g.stamp(4)
    g.e("s_mov_b32 s32, 1")
    g.e("s_mov_b32 s33, 0")
    g.e("s_waitcnt vmcnt(0) lgkmcnt(0)")
    g.e("s_barrier")
    g.e("s_branch L_k2_round")
    g.label("L_k2_aend")
    if PF2:
        sk = g.newlabel("nopf")
        g.e("s_cmp_eq_u32 s44, 6")
        g.e(f"s_cbranch_scc0 {sk}")
        g.e("s_cmp_eq_u32 s41, 1")
        g.e(f"s_cbranch_scc0 {sk}")
        g.e("s_load_dwordx2 s[20:21], s[0:1], 40")
        g.e("s_load_dwordx2 s[28:29], s[0:1], 80")
        g.e("s_lshl_b32 s49, s43, 2")
        g.e("s_add_u32 s49, s49, s42")
        g.e(f"v_lshlrev_b32 v10, 3, v{V16}")
        g.e("s_lshl_b32 s50, s49, 15")
        g.e("s_mul_i32 s51, s49, 7168")
        g.e("s_waitcnt lgkmcnt(0)")
        g.e(f"s_mov_b32 s22, {4 * MB}")
        g.e("s_mov_b32 s23, 0x20000")
        g.e(f"s_mov_b32 s30, {896 * 1024}")
        g.e("s_mov_b32 s31, 0x20000")
        for i in range(4):
            g.e(f"buffer_load_dword v{12 + i}, v10, s[20:23], s50 offen")
            g.e("s_add_u32 s50, s50, 8192")
        g.e("buffer_load_dword v11, v10, s[28:31], s51 offen")
        g.label(sk)
    g.stamp_dump(16, 17, 40, 1)
    g.e("s_endpgm")
    g.label("L_k2_slow")
    l1 = g.newlabel("slow1"); l2 = g.newlabel("slow2")
    g.e("s_cmp_eq_u32 s5, 0")
    g.e(f"s_cbranch_scc0 {l1}")
    rescale(g, False)
    g.e(f"s_branch {l2}")
    g.label(l1)
    rescale(g, True)
    g.label(l2)
    for op in softmax_ops(g): op()
    g.e("s_branch L_k2_back")

def gen_spatial(g):
    ACC, AR, BB, Z1R = 144, 116, 84, 24
    ZB, ZS = 98304, 14336
    VWD = 80
    acc = lambda fb, tt: ACC + (fb * 4 + tt) * 4
    g.vm = []; g.ds = []
    g.label("L_k2_sp")
    g.e("s_sub_u32 s44, s41, 28")
    g.e("s_and_b32 s42, s40, 3")
    g.e("s_lshr_b32 s41, s40, 2")
    srd(g, 20, 6, 7, 2048 * 4096)
    srd(g, 24, 16, 17, SZ_Z, WS_Z2)
    g.e("v_and_b32 v28, 63, v0")
    g.e(f"v_lshlrev_b32 v{V16}, 4, v28")
    g.e("v_bfe_u32 v28, v0, 3, 3")
    g.e("v_and_b32 v29, 7, v0")
    g.e("v_lshrrev_b32 v30, 1, v28")
    g.e("v_xor_b32 v29, v29, v30")
    g.e("s_lshl_b32 s49, s3, 8")
    g.e("s_lshl_b32 s50, s40, 5")
    g.e("s_add_u32 s49, s49, s50")
    g.e("v_add_u32 v28, s49, v28")
    g.e("v_lshlrev_b32 v28, 12, v28")
    g.e("v_xor_b32 v30, 4, v29")
    g.e("v_lshl_add_u32 v29, v29, 4, v28")
    g.e("v_lshl_add_u32 v30, v30, 4, v28")
    for j in range(4): g.e(f"v_add_u32 v{VWD + j}, {j * 8 * 4096 - j * 1024}, v{29 + (j & 1)}")
    g.e("s_lshl_b32 s48, s40, 1")
    g.e("s_min_u32 s48, s48, 12")
    g.e("s_mul_i32 s49, s44, 14")
    g.e("s_add_u32 s49, s49, s48")
    g.e("s_lshl_b32 s43, s49, 10")
    g.e("s_mov_b32 s45, 0")
    g.e("s_lshl_b32 s46, s40, 12")
    g.e("s_lshl_b32 s47, s48, 10")
    g.e(f"s_add_u32 s47, s47, {ZB}")
    def wop(b, j):
        if j % 2 == 0:
            g.e(f"s_add_u32 m0, s46, {(b % 3) * 32768}")
            g.e("s_nop 0")
        g.vmem(f"buffer_load_dwordx4 v{VWD + j}, s[20:23], s45 offen offset:{j * 1024} {NTSP} lds", ("w", 2 * b))
        if j == 3: g.e("s_add_u32 s45, s45, 128")
    def zop(st, j):
        if j == 0:
            g.e(f"s_add_u32 m0, s47, {(st % 4) * ZS}")
            g.e("s_nop 0")
        g.vmem(f"buffer_load_dwordx4 v{V16}, s[24:27], s43 offen offset:{j * 1024} lds", ("z", st))
        if j == 1: g.e("s_add_u32 s43, s43, 57344")
    def dma_ops(st):
        b, h = st // 2 + 2, st & 1
        return [lambda: zop(st + 3, 0), lambda: zop(st + 3, 1), lambda: wop(b, 2 * h), lambda: wop(b, 2 * h + 1)]
    zop(0, 0); zop(0, 1)
    for j in range(4): wop(0, j)
    code_touch(g, 96, 14, "L_k2_spend", None, False)
    g.e("s_barrier")
    for st in (-2, -1):
        for op in dma_ops(st): op()
    srd(g, 28, 16, 17, SZ_Z, WS_Z1)
    srd(g, 36, 16, 17, SZ_CTX, WS_CTX)
    srd(g, 12, 8, 9, 4096)
    g.e("s_mul_i32 s49, s41, 7168")
    g.e(f"s_add_u32 s49, s49, {ZB}")
    g.e(f"v_add_u32 v4, s49, v{V16}")
    g.e("v_and_b32 v28, 15, v0")
    g.e("v_bfe_u32 v29, v0, 4, 2")
    g.e("v_lshrrev_b32 v30, 1, v28")
    g.e("v_xor_b32 v29, v29, v30")
    g.e("v_lshlrev_b32 v29, 4, v29")
    g.e("v_lshl_add_u32 v29, v28, 7, v29")
    g.e("s_lshl_b32 s49, s42, 13")
    g.e("v_add_u32 v1, s49, v29")
    g.e("v_xor_b32 v2, 64, v1")
    g.e("v_add_u32 v5, 0x10000, v1")
    g.e("v_add_u32 v6, 0x10000, v2")
    for i in range(112): g.e(f"v_mov_b32 v{ACC + i}, 0")
    def aread(st, fb): g.lds(f"DR {AR + fb * 4},4,{(st % 4) * ZS + fb * 1024}", ("a", st, fb))
    def bread(st, tt):
        sl = (st // 2) % 3
        g.lds(f"DR {BB + (st & 1) * 16 + tt * 4},{(5 if sl == 2 else 1) + (st & 1)},{(sl & 1) * 32768 + tt * 2048}", ("b", st))
    SCH = {(3, 0): ("a", 0), (3, 1): ("b", 0), (3, 2): ("b", 1), (4, 0): ("b", 2), (4, 1): ("b", 3), (4, 2): ("a", 1), (5, 0): ("a", 2), (6, 0): ("a", 3)}
    rd = lambda st, k: (aread if k[0] == "a" else bread)(st, k[1])
    g.wait_vm(("z", 0), ("w", 0))
    g.e("s_barrier")
    for key in sorted(SCH): rd(0, SCH[key])
    g.e("s_mov_b32 s52, 0")
    g.stamp(1)
    def step(st, extra=(), dma=4, nxt=True):
        extra = list(extra)
        pend = []
        for fb in range(7):
            g.wait_ds(("a", st, fb), ("b", st))
            for tt in range(4):
                g.e(f"M {acc(fb, tt)},{AR + fb * 4},{BB + (st & 1) * 16 + tt * 4}")
                if tt == 0 and fb < 3: aread(st, fb + 4)
                if nxt:
                    if (fb, tt) == (3, 0):
                        g.wait_vm(("z", st + 1), ("w", st + 1))
                        g.e("s_barrier")
                        pend = dma_ops(st)[:dma]
                    if (fb, tt) in SCH: rd(st + 1, SCH[(fb, tt)])
                if tt == 3 and pend: pend.pop(0)()
                if tt == 3 and extra and fb < 3:
                    extra.pop(0)()
        assert not pend and not extra
    g.label("L_k2_sploop")
    vm0, ds0 = list(g.vm), list(g.ds)
    for st in range(12): step(st)
    ren = lambda t: (t[0], t[1] - 12) + t[2:]
    g.vm = [ren(t) for t in g.vm]; g.ds = [ren(t) for t in g.ds]
    assert g.vm == vm0 and g.ds == ds0, (g.vm, vm0, g.ds, ds0)
    g.e("s_add_u32 s52, s52, 1")
    g.e("s_cmp_lt_u32 s52, 5")
    g.e("s_cbranch_scc1 L_k2_sploop")
    g.stamp(2)
    g.e("s_lshl_b32 s49, s3, 4")
    g.e("s_lshl_b32 s50, s42, 2")
    g.e("s_add_u32 s49, s49, s50")
    g.e("s_mul_i32 s54, s49, 28672")
    g.e("s_mul_i32 s55, s49, 159744")
    g.e(f"s_add_u32 s55, s55, {128 * 1024}")
    for tt in range(4):
        g.e(f"v_add_u32 v{16 + tt}, {tt * 28672}, v{V16}")
        g.e(f"v_add_u32 v{20 + tt}, {tt * 159744}, v{V16}")
    g.e("s_mul_i32 s56, s44, 14")
    g.e("s_mul_i32 s48, s41, 7")
    g.e("s_add_u32 s56, s56, s48")
    g.e("v_and_b32 v11, 15, v0")
    g.e("v_lshlrev_b32 v11, 1, v11")
    g.e("s_lshr_b32 s56, s56, 1")
    g.e("s_lshl_b32 s56, s56, 10")
    g.e("s_add_u32 s54, s54, s56")
    g.e("s_add_u32 s55, s55, s56")
    def bload():
        g.e("s_lshl_b32 s49, s3, 9")
        g.e("s_lshl_b32 s50, s42, 7")
        g.e("s_add_u32 s49, s49, s50")
        for tt in range(4): g.vmem(f"buffer_load_ushort v{12 + tt}, v11, s[12:15], s49 offen offset:{tt * 32}", "b")
    def z1load(u):
        for tt in range(4):
            r = Z1R + (u * 4 + tt) * 4
            g.vmem(f"buffer_load_dwordx4 v[{r}:{r + 3}], v{16 + tt}, s[28:31], s54 offen offset:{u * 1024}", ("z1", u))
    step(0, [bload, lambda: z1load(0), lambda: z1load(1)], dma=2)
    step(1, [lambda: z1load(2)], dma=0)
    step(2, dma=0)
    step(3, [lambda: z1load(3)], dma=0, nxt=False)
    g.wait_vm("b")
    for tt in range(4): g.e(f"v_lshlrev_b32 v{12 + tt}, 16, v{12 + tt}")
    g.e("s_mov_b32 s53, 0xffff0000")
    vm_sv = list(g.vm)
    lode = g.newlabel("spodd"); lend = g.newlabel("spend")
    g.e("s_cmp_eq_u32 s41, 1")
    g.e(f"s_cbranch_scc1 {lode}")
    for fh in range(2):
        g.vm = list(vm_sv)
        if fh: g.label(lode)
        for u in range(4):
            halves = [(h, 2 * u + h - fh) for h in range(2) if 0 <= 2 * u + h - fh < 7]
            for h, fb in halves:
                for tt in range(4):
                    for r in range(4): g.e(f"v_add_f32 v{acc(fb, tt) + r}, v{acc(fb, tt) + r}, v{12 + tt}")
            g.wait_vm(("z1", u))
            for tt in range(4):
                z = Z1R + (u * 4 + tt) * 4
                for h, fb in halves:
                    a = acc(fb, tt); t = 8 if h else 1
                    g.e(f"v_lshlrev_b32 v{t}, 16, v{z + 2 * h}")
                    g.e(f"v_and_b32 v{t + 1}, s53, v{z + 2 * h}")
                    g.e(f"v_lshlrev_b32 v{t + 2}, 16, v{z + 2 * h + 1}")
                    g.e(f"v_and_b32 v{t + 3}, s53, v{z + 2 * h + 1}")
                    for r in range(4): g.e(f"v_mul_f32 v{a + r}, v{a + r}, v{t + r}")
                    g.e(f"PK {z + 2 * h},{a},{a + 1}"); g.e(f"PK {z + 2 * h + 1},{a + 2},{a + 3}")
                if len(halves) == 2:
                    g.vmem(f"buffer_store_dwordx4 v[{z}:{z + 3}], v{20 + tt}, s[36:39], s55 offen offset:{u * 1024} {STFU}", "st")
                else:
                    h = halves[0][0]
                    g.vmem(f"buffer_store_dwordx2 v[{z + 2 * h}:{z + 2 * h + 1}], v{20 + tt}, s[36:39], s55 offen offset:{u * 1024 + 8 * h} {STFU}", "st")
        if fh == 0: g.e(f"s_branch {lend}")
    g.label(lend)
    g.stamp(3)
    g.stamp_dump(16, 17, 40, 1)
    g.e("s_endpgm")

def gen_k2(g):
    g.e(".p2align 8")
    g.e(".type k2_kernel,@function")
    g.label("k2_kernel")
    g.e("s_cmp_ge_u32 s2, 256")
    g.e("s_cbranch_scc1 L_k2_end")
    g.stamp(0)
    if PROF: g.e("s_memrealtime s[94:95]")
    g.e("s_load_dwordx2 s[4:5], s[0:1], 16")
    g.e("s_load_dwordx4 s[8:11], s[0:1], 64")
    g.e("s_load_dwordx2 s[16:17], s[0:1], 104")
    g.e("v_lshrrev_b32 v1, 6, v0")
    g.e("s_and_b32 s3, s2, 7")
    g.e("s_lshr_b32 s41, s2, 3")
    g.e("v_readfirstlane_b32 s40, v1")
    g.e("s_waitcnt lgkmcnt(0)")
    g.e("s_mov_b32 s6, s8")
    g.e("s_mov_b32 s7, s9")
    g.e("s_mov_b32 s8, s10")
    g.e("s_mov_b32 s9, s11")
    g.e("s_cmp_lt_u32 s41, 28")
    g.e("s_cbranch_scc1 L_k2_attn")
    g.e("s_branch L_k2_sp")
    g.label("L_k2_end")
    g.e("s_endpgm")
    gen_attn(g)
    gen_spatial(g)
    g.label("L_k2_spend")
```

```python
from asmlib import *
import math

XR = 128
ACC = [64, 96]
WR = 32
D = 6
C2 = -2.0 * math.sqrt(2.0 / math.pi) * math.log2(math.e)
C1 = C2 * 0.044715
NPKV = int(os.environ.get('NPKV', '6'))
NPZ = int(os.environ.get('NPZ', '3'))
GKV = -(-64 // NPKV); GZ = 7
assert NPKV == 6 and NPZ == 3
GMAP = [[0, 1, 2, 25, 3, 4, 26, 10], [11, 12, 13, 27, 14, 15, 28, 21], [5, 6, 29, 7, 8, 30, 9, 22], [16, 17, 31, 18, 23, 19, 20, 24]]
assert sorted(sum(GMAP, [])) == list(range(32))
NTW = os.environ.get('NTW', '')
PF = int(os.environ.get('PF', '76'))
CLU = int(os.environ.get('CLU', '1'))
PFW = int(os.environ.get('PFW', '0'))
NTP = os.environ.get('NTP', '')
PF3 = int(os.environ.get('PF3', '1'))
ZPUB = int(os.environ.get('ZPUB', '36'))
MIX = int(os.environ.get('MIX', '1'))
PFWS = int(os.environ.get('PFWS', '16'))
ROT = int(os.environ.get('ROT', '1'))
SL0 = int(os.environ.get('SL0', '64')); SL1 = int(os.environ.get('SL1', '12'))
LT = int(os.environ.get('LT', '0'))
PFL = eval(os.environ.get('PFL', '[0,2,4,8,10,11,14,18,22,23]'))
PROT = int(os.environ.get('PROT', '0'))
STF = os.environ.get('STF', 'sc1')

def xreg(a, m): return XR + (m * 2 + a) * 4
def areg(st, cb, a): return ACC[st] + (cb * 2 + a) * 4

def w_voffsets(g, rowstride, vbase):
    g.e("v_bfe_u32 v28, v0, 5, 1")
    g.e("v_bfe_u32 v29, v0, 2, 2")
    g.e("v_lshl_add_u32 v28, v28, 2, v29")
    g.e(f"v_mul_u32_u24 v28, {rowstride}, v28")
    g.e("v_bfe_u32 v29, v0, 4, 1")
    g.e("v_lshl_add_u32 v28, v29, 6, v28")
    g.e("v_and_b32 v29, 3, v0")
    g.e("v_xor_b32 v30, 2, v29")
    g.e("v_lshlrev_b32 v29, 4, v29")
    g.e("v_lshlrev_b32 v30, 4, v30")
    for j in range(4):
        g.e(f"v_add_u32 v31, {j * 8 * rowstride - j * 1024}, v28")
        g.e(f"v_add_u32 v{vbase + j}, v31, v{29 + (j & 1)}")

def tr_bases(g, ve, vo):
    g.e("v_bfe_u32 v28, v0, 4, 2")
    g.e("v_lshlrev_b32 v29, 10, v28")
    g.e("v_bfe_u32 v30, v0, 2, 2")
    g.e("v_lshl_add_u32 v29, v30, 6, v29")
    g.e("v_and_b32 v30, 3, v0")
    g.e("v_lshl_add_u32 v29, v30, 3, v29")
    g.e("v_and_b32 v28, 1, v28")
    g.e(f"v_lshl_add_u32 v{ve}, v28, 5, v29")
    g.e(f"v_xor_b32 v{vo}, 32, v{ve}")

def gelu_ops(regs, T, vc2, sc1, stats=None):
    out = []
    n = len(T)
    for i in range(0, len(regs), n):
        grp = list(zip(regs[i:i + n], T))
        out += [f"v_mul_f32 v{t}, v{x}, v{x}" for x, t in grp]
        out += [f"v_fma_f32 v{t}, v{t}, s{sc1}, v{vc2}" for x, t in grp]
        out += [f"v_mul_f32 v{t}, v{t}, v{x}" for x, t in grp]
        out += [f"v_exp_f32 v{t}, v{t}" for x, t in grp]
        out += [f"v_add_f32 v{t}, 1.0, v{t}" for x, t in grp]
        out += [f"v_rcp_f32 v{t}, v{t}" for x, t in grp]
        out += [f"v_mul_f32 v{x}, v{x}, v{t}" for x, t in grp]
        if stats:
            out += [f"v_add_f32 v{stats[x][0]}, v{stats[x][0]}, v{x}" for x, t in grp]
            out += [f"v_fmac_f32 v{stats[x][1]}, v{x}, v{x}" for x, t in grp]
    return out

def ln_params(g, MEAN, VAR, n):
    def rbf(rs):
        for r in rs: g.e(f"PK {r},{r},{r}")
        for r in rs: g.e(f"v_and_b32 v{r}, 0xffff0000, v{r}")
    for m, v in zip(MEAN, VAR):
        g.e(f"v_mul_f32 v{m}, {f32(1 / n)}, v{m}")
        g.e(f"v_mul_f32 v{v}, {f32(1 / n)}, v{v}")
    for m, v in zip(MEAN, VAR): g.e(f"v_fma_f32 v{v}, -v{m}, v{m}, v{v}")
    for v in VAR: g.e(f"v_max_f32 v{v}, 0, v{v}")
    rbf(list(MEAN) + list(VAR))
    for v in VAR: g.e(f"v_add_f32 v{v}, {f32(1e-5)}, v{v}")
    rbf(VAR)
    for v in VAR: g.e(f"v_sqrt_f32 v{v}, v{v}")
    g.e("s_nop 0")
    rbf(VAR)
    for v in VAR: g.e(f"v_rcp_f32 v{v}, v{v}")
    g.e("s_nop 0")
    for m, v in zip(MEAN, VAR): g.e(f"v_mul_f32 v{m}, v{m}, v{v}")

def gen_type(g, T):
    ktp = lambda p: T in ("K", "Z1") or (T == "Z2" and p == 2)
    ztype = T in ("Z1", "Z2")
    rowstride = 3584 if ztype else 8192
    NP = NPZ if ztype else NPKV
    NTOT = 14 if ztype else 64
    NG = {"Z1": 3, "Z2": GZ}.get(T, GKV)
    NS = {"Z1": 2, "Z2": 3}.get(T, NTOT - (NG - 1) * NP)
    SHORT0 = {"Z1": 1}.get(T, NG - 1)
    VW = 1
    VTE, VTO = 5, 6
    VST = 7
    VC2 = 8
    VXA = 20
    VXR = (9, 11)
    TMP = [9, 10, 11, 12]
    STAT = 16
    g.vm = []; g.ds = []
    g.label(f"L_k1_{T}")
    g0 = {"K": 0, "V": GKV, "Z1": 2 * GKV, "Z2": 2 * GKV + 3}[T]
    g.e(f"s_sub_u32 s42, s3, {g0}")
    g.e("v_and_b32 v28, 63, v0")
    g.e(f"v_lshlrev_b32 v{VST}, 4, v28")
    if ztype:
        srd(g, 24, 4, 5, 2 * MB)
        g.e(f"s_sub_u32 s54, s3, {2 * GKV}")
        g.e("s_and_b32 s49, s54, 7")
        g.e("s_lshl_b32 s49, s49, 5")
        g.e("s_lshl_b32 s50, s41, 8")
        g.e("s_add_u32 s49, s49, s50")
        g.e("s_lshl_b32 s50, s40, 2")
        g.e("s_add_u32 s55, s49, s50")
        g.e("s_lshl_b32 s49, s55, 10")
        g.e("v_and_b32 v28, 3, v0")
        g.e("v_bfe_u32 v29, v0, 2, 4")
        g.e("v_lshlrev_b32 v30, 4, v29")
        g.e("v_lshl_add_u32 v30, v28, 10, v30")
        for i in range(4): g.vmem(f"buffer_load_dwordx4 v[{64 + 4 * i}:{67 + 4 * i}], v30, s[24:27], s49 offen offset:{256 * i}", "ln")
    else:
        srd(g, 24, 6, 7, 2 * MB)
    if T == "K": srd(g, 20, 10, 11, 512 * 8192)
    if T == "V": srd(g, 20, 12, 13, 512 * 8192)
    if ztype: srd(g, 20, 14, 15, 512 * 3584)
    if T == "Z1":
        g.e("s_lshl_b32 s58, s42, 1")
        g.e("s_add_u32 s58, s58, 8")
        g.e("s_cmp_eq_u32 s42, 0")
        g.e("s_cselect_b32 s58, 7, s58")
    elif T == "Z2": g.e("s_lshl_b32 s58, s42, 1")
    else: g.e(f"s_mul_i32 s58, s42, {NP}")
    colbase = 1792 if T == "Z2" else 0
    g.e("s_lshl_b32 s44, s58, 7")
    if colbase: g.e(f"s_add_u32 s44, s44, {colbase}")
    if ztype: g.e(f"s_mov_b32 s45, {colbase + (NTOT - 1) * 128}")
    else:
        g.e(f"s_cmp_lt_u32 s42, {SHORT0}")
        g.e(f"s_cselect_b32 s45, {NP}, {NS}")
        g.e("s_bfe_u32 s63, s2, 0x20003" if PROT else "s_mov_b32 s63, 0")
        g.e("s_lshl_b32 s63, s63, 1")
        g.e("s_cmp_ge_u32 s63, s45")
        g.e("s_cselect_b32 s49, s45, 0")
        g.e("s_sub_u32 s63, s63, s49")
    def pair_ops(p, d):
        return [f"s_add_u32 s{d}, s63, {p % 4 if p >= NS else p}" if False else f"s_add_u32 s{d}, s63, {p}",
                (f"s_cmp_ge_u32 s{d}, s45", "s_cselect_b32 s62, s45, 0"), f"s_sub_u32 s{d}, s{d}, s62"]
    g.e("s_lshl_b32 s46, s40, 12")
    g.e("s_bfe_u32 s60, s2, 0x20005" if (ROT and not ztype) else "s_mov_b32 s60, 0")
    g.e("s_lshl_b32 s49, s60, 2")
    g.e("s_add_u32 s49, s49, s40")
    g.e("s_and_b32 s50, s49, 15")
    g.e(f"s_mul_i32 s56, s50, {32 * rowstride}")
    g.e("s_xor_b32 s50, s50, 8")
    g.e(f"s_mul_i32 s61, s50, {32 * rowstride}")
    g.e("s_and_b32 s57, s40, 3")
    g.e(f"s_mul_i32 s57, s57, {32 * rowstride}")
    g.e("s_lshr_b32 s49, s40, 2")
    g.e("s_lshl_b32 s49, s49, 7")
    g.e("s_add_u32 s57, s57, s49")
    if not ztype:
        g.e("s_lshl_b32 s49, s63, 7")
        g.e("s_add_u32 s57, s57, s49")
    g.e("s_add_u32 s57, s57, s44")
    NST = 2 * NP
    NQ = 4
    def fmap(s, f):
        cb = f & 3
        if s < NQ:
            p, ks = (f >> 4, (f >> 2) & 3) if s == 3 else ((f >> 2) & 1, f >> 3)
            return p, 4 * s + ks, cb, p * 4 + ks
        return s >> 1, (s & 1) * 8 + (f >> 2), cb, f >> 2
    XPOS = [3, 4, 3, 4, 3, 4, 4, 4]
    def xdma_ops(q):
        ops = []
        for i in range(4):
            def op(i=i):
                if i == 0:
                    g.e(f"s_add_u32 s43, s60, {q >> 1}")
                    g.e("s_and_b32 s43, s43, 3")
                    g.e("s_lshl_b32 s43, s43, 8")
                    if q & 1: g.e("s_add_u32 s43, s43, 128")
                g.e(f"s_add_u32 m0, s46, {XPOS[q] * 32768}")
                g.e("s_nop 0")
                g.vmem(f"buffer_load_dwordx4 v{VXA + i}, s[24:27], s43 offen offset:{i * 1024} lds", ("x", q))
            ops.append(op)
        return ops
    def xread(q):
        g.wait_vm(("x", q))
        for ks in range(2):
            for a in range(2):
                g.lds(f"DR {xreg(a, 2 * q + ks)},{VXR[(XPOS[q] >> 1) - 1] + ks},{(XPOS[q] & 1) * 32768 + a * 2048}", ("x", q))
    def wdma_ops(s, sr=51):
        if s >= NST: return []
        ops = []
        for j in range(4):
            def op(j=j):
                if j == 0:
                    if s < NQ:
                        g.e(f"s_add_u32 s{sr}, s60, {s}")
                        g.e(f"s_and_b32 s{sr}, s{sr}, 3")
                        g.e(f"s_mul_i32 s{sr}, s{sr}, {128 * rowstride}")
                        g.e(f"s_add_u32 s{sr}, s{sr}, s57")
                    else:
                        p, kh = s >> 1, s & 1
                        if T == "Z2" and p == 2: g.e(f"s_lshl_b32 s{sr}, s42, 7")
                        elif ztype:
                            g.e(f"s_add_u32 s{sr}, s44, {p * 128}")
                            g.e(f"s_min_u32 s{sr}, s{sr}, s45")
                        else:
                            for t in pair_ops(p, sr):
                                for u in ((t,) if isinstance(t, str) else t): g.e(u)
                            g.e(f"s_lshl_b32 s{sr}, s{sr}, 7")
                            g.e(f"s_add_u32 s{sr}, s{sr}, s44")
                        g.e(f"s_add_u32 s{sr}, s{sr}, s{61 if kh else 56}")
                g.e(f"s_add_u32 m0, s46, {(s % 4) * 32768}")
                g.e("s_nop 0")
                g.vmem(f"buffer_load_dwordx4 v{VW + j}, s[20:23], s{sr} offen offset:{j * 1024} {NTW} lds", ("w", s))
            ops.append(op)
        return ops
    def run(ops):
        for op in ops: op()

    w_voffsets(g, rowstride, VW)
    if not ztype:
        run(wdma_ops(0, 47))
        g.e("v_bfe_u32 v28, v0, 3, 3")
        g.e("v_and_b32 v29, 7, v0")
        g.e("v_lshrrev_b32 v30, 1, v28")
        g.e("v_xor_b32 v29, v29, v30")
        g.e("s_lshl_b32 s49, s41, 8")
        g.e("s_lshl_b32 s50, s40, 5")
        g.e("s_add_u32 s49, s49, s50")
        g.e("v_add_u32 v28, s49, v28")
        g.e("v_lshlrev_b32 v28, 10, v28")
        g.e("v_xor_b32 v30, 4, v29")
        g.e("v_lshl_add_u32 v29, v29, 4, v28")
        g.e("v_lshl_add_u32 v30, v30, 4, v28")
        for i in range(4): g.e(f"v_add_u32 v{VXA + i}, {i * 8192 - i * 1024}, v{29 + (i & 1)}")
        run(xdma_ops(0))
        code_touch(g, 36, 14, f"L_k1_{T}_end")
        g.e("s_barrier")
        run(xdma_ops(1))
        run(wdma_ops(1, 47))
        g.e("v_and_b32 v28, 15, v0")
        g.e("v_bfe_u32 v29, v0, 4, 2")
        g.e("v_lshrrev_b32 v30, 1, v28")
        g.e("v_xor_b32 v29, v29, v30")
        g.e("v_lshlrev_b32 v29, 4, v29")
        g.e("v_lshl_add_u32 v29, v28, 7, v29")
        g.e("s_add_u32 s49, s46, 0x10000")
        g.e(f"v_add_u32 v{VXR[0]}, s49, v29")
        g.e(f"v_xor_b32 v{VXR[0] + 1}, 64, v{VXR[0]}")
        for ks in range(2): g.e(f"v_add_u32 v{VXR[1] + ks}, 0x10000, v{VXR[0] + ks}")
    else:
        code_touch(g, 36, 255, f"L_k1_{T}_end")
        srd(g, 24, 16, 17, WS_XNP + SZ_XN, 0)
        srd(g, 32, 18, 19, 256)
        ZLT = len(g.lines)
        g.e("s_mov_b32 s53, 0xffff0000")
        g.e(f"s_mov_b32 s52, {f32(C1)}")
        g.e(f"v_mov_b32 v{VC2}, {f32(C2)}")
        g.e("s_lshr_b32 s55, s55, 5")
        g.e("s_lshl_b32 s55, s55, 15")
        g.e("s_add_u32 s55, s55, s46")
        g.e(f"s_add_u32 s62, s55, {WS_XNP}")
        g.e("s_lshr_b32 s49, s40, 2")
        g.e("s_lshl_b32 s49, s49, 14")
        g.e("s_and_b32 s50, s40, 3")
        g.e("s_lshl_b32 s50, s50, 6")
        g.e("s_add_u32 s49, s49, s50")
        g.e("s_add_u32 s49, s49, 0x20000")
        g.e("v_and_b32 v28, 3, v0")
        g.e("v_lshlrev_b32 v28, 4, v28")
        g.e("v_bfe_u32 v29, v0, 2, 2")
        g.e("v_lshl_add_u32 v28, v29, 8, v28")
        g.e("v_bfe_u32 v29, v0, 4, 2")
        g.e("v_lshl_add_u32 v28, v29, 10, v28")
        g.e("v_add_u32 v13, s49, v28")
        g.e("s_add_u32 s49, s46, 0x20000")
        g.e(f"v_add_u32 v16, s49, v{VST}")
        g.e("s_and_b32 s49, s46, 0x3fff")
        g.e("s_lshr_b32 s50, s40, 2")
        g.e("s_lshl_b32 s50, s50, 6")
        g.e("s_add_u32 s49, s49, s50")
        g.e("s_add_u32 s49, s49, 0x20000")
        g.e("v_bfe_u32 v17, v0, 3, 1")
        g.e("v_lshlrev_b32 v17, 14, v17")
        g.e("v_bfe_u32 v28, v0, 2, 1")
        g.e("v_lshl_add_u32 v17, v28, 7, v17")
        g.e("v_and_b32 v28, 0x33, v0")
        g.e("v_lshl_add_u32 v17, v28, 4, v17")
        g.e("v_add_u32 v17, s49, v17")
        g.e(f"v_lshlrev_b32 v15, 20, v{VST}")
        g.e("s_lshl_b32 s47, s41, 5")
        g.e("s_add_u32 s59, s47, 4")
        nol = g.newlabel("noln")
        g.e("s_cmp_ge_u32 s54, 8")
        g.e(f"s_cbranch_scc1 {nol}")
        g.e("v_mov_b32 v9, 0")
        g.e("v_mov_b32 v10, 0")
        g.wait_vm("ln")
        g.stamp(8)
        for i in range(16):
            g.e(f"v_lshlrev_b32 v{96 + 2 * i}, 16, v{64 + i}")
            g.e(f"v_and_b32 v{97 + 2 * i}, s53, v{64 + i}")
        for i in range(32):
            g.e(f"v_add_f32 v9, v9, v{96 + i}")
            g.e(f"v_fmac_f32 v10, v{96 + i}, v{96 + i}")
        for sh in (4, 8):
            g.e("s_nop 1")
            for r in (9, 10): g.e(f"v_add_f32_dpp v{r}, v{r}, v{r} row_ror:{sh} row_mask:0xf bank_mask:0xf")
        for sw in ("v_permlane32_swap_b32", "v_permlane16_swap_b32"):
            for i in range(2): g.e(f"v_mov_b32 v{11 + i}, v{9 + i}")
            g.e("s_nop 1")
            for i in range(2): g.e(f"{sw} v{11 + i}, v{9 + i}")
            g.e("s_nop 1")
            for i in range(2): g.e(f"v_add_f32 v{9 + i}, v{9 + i}, v{11 + i}")
        ln_params(g, [9], [10], 512)
        for i in range(4):
            for e in range(8): g.e(f"v_fma_f32 v{96 + 8 * i + e}, v{96 + 8 * i + e}, v10, -v9")
            for r in range(4): g.e(f"PK {64 + 4 * i + r},{96 + 8 * i + 2 * r},{97 + 8 * i + 2 * r}")
            g.e(f"DW 13,{64 + 4 * i},{i * 4096}")
        g.e("s_waitcnt lgkmcnt(0)")
        g.e("s_barrier")
        for i in range(8): g.e(f"DR {96 + 4 * i},{17 - (i >> 2)},{(i & 3) * 1024}")
        for i in range(8):
            g.e(f"s_waitcnt lgkmcnt({7 - i})")
            g.e(f"buffer_store_dwordx4 v[{96 + 4 * i}:{99 + 4 * i}], v{VST}, s[24:27], s{55 if i >> 2 else 62} offen offset:{(i & 3) * 1024} sc1")
        g.e("v_mov_b32 v11, 1")
        g.stamp(9)
        g.e("s_waitcnt vmcnt(0)")
        g.e("s_barrier")
        g.stamp(10)
        spin = g.newlabel("spin"); done = g.newlabel("sdone"); chk = g.newlabel("schk")
        g.e("s_cmp_lg_u32 s40, 0")
        g.e(f"s_cbranch_scc1 {done}")
        g.e("buffer_atomic_add v11, v15, s[32:35], s59 offen sc0 sc1")
        g.e("s_waitcnt vmcnt(0)")
        g.e("v_add_u32 v11, 1, v11")
        g.e(f"s_branch {chk}")
        g.label(nol)
        g.e("s_cmp_lg_u32 s40, 0")
        g.e(f"s_cbranch_scc1 {done}")
        g.e(f"s_sleep {SL0}")
        g.label(spin)
        g.e(f"s_sleep {SL1}")
        g.e("buffer_load_dword v11, v15, s[32:35], s59 offen sc1")
        g.e("s_waitcnt vmcnt(0)")
        g.label(chk)
        g.e("s_nop 0")
        g.e("v_readfirstlane_b32 s51, v11")
        g.e("s_cmp_lt_u32 s51, 8")
        g.e(f"s_cbranch_scc1 {spin}")
        g.label(done)
        g.vm = []
        run(wdma_ops(0, 47))
        g.e("s_lshl_b32 s49, s41, 18")
        g.e("s_lshl_b32 s50, s40, 15")
        g.e("s_add_u32 s54, s49, s50")
        if T == "Z2": g.e(f"s_add_u32 s54, s54, {WS_XNP}")
        g.e("s_barrier")
        g.stamp(11)
        def xload(m):
            if m % 4 == 0:
                g.e(f"s_add_u32 s59, s54, {m * 1024}")
                g.e(f"s_add_u32 s55, s59, 16384")
            for a in range(2):
                x = xreg(a, m)
                g.vmem(f"buffer_load_dwordx4 v[{x}:{x + 3}], v{VST}, s[24:27], s{55 if a else 59} offen offset:{(m % 4) * 1024} sc1", ("x", m))
        for m in range(4): xload(m)
    def lin_touch():
        g.e("s_lshl_b32 s43, s2, 3")
        g.e("s_add_u32 s43, s43, s40")
        g.e(f"v_lshlrev_b32 v26, 3, v{VST}")
        g.e("v_bfe_u32 v27, v0, 4, 2")
        g.e("v_lshl_add_u32 v26, v27, 28, v26")
        g.e("s_lshl_b32 s49, s43, 11")
        srd(g, 36, 10, 11, 4 * MB)
        g.vmem("buffer_load_dword v254, v26, s[36:39], s49 offen", "t")
        srd(g, 36, 12, 13, 4 * MB)
        g.vmem("buffer_load_dword v254, v26, s[36:39], s49 offen", "t")
        srd(g, 36, 14, 15, 512 * 3584)
        g.vmem("buffer_load_dword v254, v26, s[36:39], s49 offen", "t")
    if LT == 1 and not ztype: lin_touch()
    if LT and ztype:
        n0 = len(g.lines); sv = list(g.vm)
        lin_touch()
        blk = g.lines[n0:]; del g.lines[n0:]; g.lines[ZLT:ZLT] = blk; g.vm = sv
        k = g.lines.index(f"s_waitcnt vmcnt({CPF})", ZLT); g.lines[k] = f"s_waitcnt vmcnt({CPF + 3})"
    off, sz = {"K": (WS_K, SZ_KV), "V": (WS_V, SZ_KV), "Z1": (WS_Z1, SZ_Z), "Z2": (WS_Z2, SZ_Z)}[T]
    srd(g, 28, 16, 17, sz, off)
    tr_bases(g, VTE, VTO)
    if T == "Z2":
        for i in range(16): g.e(f"v_mov_b32 v{STAT + i}, 0")

    def outbase(I, p):
        if T == "Z2" and p == 2: I("s_mov_b32 s48, s42")
        elif ztype: I(f"s_add_u32 s48, s58, {p}")
        else:
            I("\n".join(u for t in pair_ops(p, 48) for u in ((t,) if isinstance(t, str) else t)))
            I("s_add_u32 s48, s48, s58")
        if T in ("K", "V"):
            I("s_lshr_b32 s49, s48, 1")
            I("s_lshl_b32 s49, s49, 19")
            I("s_and_b32 s48, s48, 1")
            I(f"s_lshl_b32 s48, s48, {11 if T == 'K' else 12}")
            I("s_add_u32 s48, s48, s49")
            I("s_lshl_b32 s49, s41, 16")
            I("s_add_u32 s48, s48, s49")
            I("s_lshl_b32 s49, s40, 13")
            I("s_add_u32 s48, s48, s49")
            I("s_add_u32 s50, s48, 4096")
        else:
            I(f"s_lshl_b32 s48, s48, {11 if ktp(p) else 12}")
            I("s_lshl_b32 s49, s41, 3")
            I("s_add_u32 s49, s49, s40")
            I("s_mul_i32 s49, s49, 57344")
            I("s_add_u32 s48, s48, s49")
            I("s_add_u32 s50, s48, 28672")

    ZPARK = 131072
    def epilogue(p, last=False):
        st = p & 1
        ops = []
        def I(s): ops.append(lambda s=s: g.e(s))
        hold = T == "Z2" and p < 2
        if not hold: outbase(I, p)
        frags = []
        if ktp(p):
            for a in range(2):
                for mm in range(2):
                    frags.append((areg(st, 2 * mm, a), areg(st, 2 * mm + 1, a), a, mm * 1024))
        else:
            for cb in range(4):
                frags.append((areg(st, cb, 0), areg(st, cb, 1), 0, cb * 1024))
        for (x, y, a, io) in frags:
            if ztype:
                stats = None
                if hold:
                    stats = {}
                    for r in range(4):
                        stats[x + r] = (STAT + 2 * r, STAT + 2 * r + 1)
                        stats[y + r] = (STAT + 8 + 2 * r, STAT + 8 + 2 * r + 1)
                for s in gelu_ops([x, x + 1, x + 2, x + 3, y, y + 1, y + 2, y + 3], TMP, VC2, 52, stats): I(s)
            d = x
            if p == 0 and not ztype: d = 16 + 4 * frags.index((x, y, a, io))
            I(f"PK {d},{x},{x + 1}"); I(f"PK {d + 1},{x + 2},{x + 3}")
            I(f"PK {d + 2},{y},{y + 1}"); I(f"PK {d + 3},{y + 2},{y + 3}")
            x = d
            if hold:
                if p == 0: ops.append(lambda x=x, io=io: g.lds(f"DW 13,{x},{io}", "park"))
            elif T == "Z2":
                ops.append(lambda x=x, a=a, io=io: g.vmem(
                    f"buffer_store_dwordx4 v[{x}:{x + 3}], v14, s[24:27], s48 offen offset:{io + 64 * a}", "st"))
            else:
                ops.append(lambda x=x, a=a, io=io: g.vmem(
                    f"buffer_store_dwordx4 v[{x}:{x + 3}], v{VST}, s[28:31], s{50 if a else 48} offen offset:{io} {STF}", "st"))
        return ops
    if T == "Z2":
        g.e(f"s_add_u32 s49, s46, {ZPARK}")
        g.e(f"v_add_u32 v13, s49, v{VST}")

    def publish_ops():
        ops = []
        def I(s): ops.append(lambda s=s: g.e(s))
        for sh in (8, 4, 2, 1):
            for i in range(16):
                I(f"v_add_f32_dpp v{STAT + i}, v{STAT + i}, v{STAT + i} row_ror:{sh} row_mask:0xf bank_mask:0xf")
        ops.append(lambda: srd(g, 36, 16, 17, GZ * 16384, WS_ST))
        I("v_bfe_u32 v9, v0, 4, 2")
        I("v_lshlrev_b32 v9, 6, v9")
        I("v_and_b32 v10, 15, v0")
        I("v_lshl_add_u32 v10, v10, 24, v9")
        I("s_lshl_b32 s59, s41, 11")
        I("s_lshl_b32 s49, s40, 8")
        I("s_add_u32 s59, s59, s49")
        I("s_lshl_b32 s49, s42, 14")
        I("s_add_u32 s49, s49, s59")
        for i in range(4):
            ops.append(lambda i=i: g.vmem(f"buffer_store_dwordx4 v[{STAT + 4 * i}:{STAT + 4 * i + 3}], v10, s[36:39], s49 offen offset:{16 * i} sc1", "pub"))
        return ops
    def arrive():
        srd(g, 32, 18, 19, 256)
        g.e("s_lshl_b32 s47, s41, 5")
        g.e("v_mov_b32 v11, 1")
        g.e(f"v_lshlrev_b32 v15, 20, v{VST}")
        na = g.newlabel("noarr")
        g.wait_vm("pub")
        g.e("s_barrier")
        g.e("s_cmp_lg_u32 s40, 0")
        g.e(f"s_cbranch_scc1 {na}")
        g.e("buffer_atomic_add v11, v15, s[32:35], s47 offen sc1")
        g.label(na)

    def pf_next(short):
        if not PF3 or T == "Z2" or (T in ("K", "V") and not short): return
        g.e("s_load_dwordx2 s[32:33], s[0:1], 40")
        g.e("s_load_dwordx2 s[36:37], s[0:1], 80")
        g.e("s_lshl_b32 s43, s41, 3")
        g.e("s_add_u32 s43, s43, s40")
        g.e(f"v_lshlrev_b32 v13, 3, v{VST}")
        g.e("s_waitcnt lgkmcnt(0)")
        g.e(f"s_mov_b32 s34, {4 * MB}")
        g.e("s_mov_b32 s35, 0x20000")
        g.e(f"s_mov_b32 s38, {896 * 1024}")
        g.e("s_mov_b32 s39, 0x20000")
        if T == "Z1":
            g.e("s_lshl_b32 s47, s42, 6")
            g.e("s_add_u32 s43, s43, s47")
            g.e("s_lshl_b32 s43, s43, 13")
            if short:
                g.e(f"s_sub_u32 s47, s43, {64 * 8192}")
                g.e("buffer_load_dword v15, v13, s[36:39], s47 offen")
                g.e(f"s_add_u32 s47, s47, {3 * MB}")
                g.e("buffer_load_dword v15, v13, s[32:35], s47 offen")
        else:
            g.e(f"s_mul_i32 s43, s43, {3 * 8192}")
            if T == "V": g.e(f"s_add_u32 s43, s43, {64 * 3 * 8192}")
            for i in range(3):
                g.e(f"buffer_load_dword v15, v13, s[32:35], s43 offen")
                g.e("s_add_u32 s43, s43, 8192")

    def final(p, short=False):
        g.stamp(12)
        g.e("s_nop 7")
        if T == "Z2":
            srd(g, 24, 16, 17, SZ_Z, WS_Z1)
            g.e("v_bfe_u32 v14, v0, 3, 1")
            g.e("v_mul_u32_u24 v14, 28672, v14")
            g.e("v_bfe_u32 v16, v0, 2, 1")
            g.e("v_lshl_add_u32 v14, v16, 7, v14")
            g.e("v_and_b32 v16, 0x33, v0")
            g.e("v_lshl_add_u32 v14, v16, 4, v14")
            for i in range(4): g.e(f"DR {XR + 4 * i},13,{i * 1024}")
        for op in epilogue(p): op()
        if T == "Z2":
            g.e("v_bfe_u32 v9, v0, 4, 2")
            g.e("v_lshlrev_b32 v9, 6, v9")
            g.e("v_and_b32 v10, 31, v0")
            g.e("v_lshlrev_b32 v10, 3, v10")
            spin = g.newlabel("spin"); done = g.newlabel("sdone")
            g.e("s_cmp_lg_u32 s40, 0")
            g.e(f"s_cbranch_scc1 {done}")
            g.label(spin)
            g.e("buffer_load_dword v11, v15, s[32:35], s47 offen sc1")
            g.e("s_waitcnt vmcnt(0)")
            g.e("v_readfirstlane_b32 s51, v11")
            g.e(f"s_cmp_ge_u32 s51, {GZ}")
            g.e(f"s_cbranch_scc1 {done}")
            g.e(f"s_sleep {SL1}")
            g.e(f"s_branch {spin}")
            g.label(done)
            g.e("s_barrier")
            g.stamp(14)
            PB = 160
            for q in range(GZ):
                g.e(f"s_add_u32 s49, s59, {q * 16384}")
                g.e(f"buffer_load_dwordx2 v[{PB + 2 * q}:{PB + 2 * q + 1}], v10, s[36:39], s49 offen sc1")
            g.e(f"s_add_u32 s49, s46, {ZPARK}")
            g.e("v_add_u32 v10, s49, v10")
            g.e("v_add_u32 v9, s49, v9")
            g.e("s_waitcnt vmcnt(0) lgkmcnt(0)")
            for q in range(1, GZ):
                for i in range(2): g.e(f"v_add_f32 v{PB + i}, v{PB + i}, v{PB + 2 * q + i}")
            ln_params(g, [PB], [PB + 1], 896)
            g.e(f"ds_write_b64 v10, v[{PB}:{PB + 1}]")
            g.e("s_waitcnt lgkmcnt(0)")
            for i in range(4): g.e(f"DR {PB + 4 * i},9,{16 * i}")
            g.e("s_waitcnt lgkmcnt(0)")
            MEAN = [PB + 2 * e for e in range(8)]; VAR = [PB + 2 * e + 1 for e in range(8)]
            for pp in range(2):
                outbase(g.e, pp)
                for cb in range(4):
                    x = XR + 4 * cb if pp == 0 else areg(pp & 1, cb, 0)
                    t = 16 + (cb & 1) * 8
                    for r in range(4): g.e(f"v_lshlrev_b32 v{t + 2 * r}, 16, v{x + r}")
                    for r in range(4): g.e(f"v_and_b32 v{t + 2 * r + 1}, s53, v{x + r}")
                    for e in range(8): g.e(f"v_fma_f32 v{t + e}, v{t + e}, v{VAR[e]}, -v{MEAN[e]}")
                    for r in range(4): g.e(f"PK {x + r},{t + 2 * r},{t + 2 * r + 1}")
                    g.e(f"buffer_store_dwordx4 v[{x}:{x + 3}], v{VST}, s[28:31], s48 offen offset:{cb * 1024} {STF}")
        g.stamp(13)
        g.stamp_dump(16, 17, 40, 0)
        g.e("s_endpgm")

    pend = []
    def wread(F, half=None):
        s, f = F >> 5, F & 31
        if s >= NST: return
        if f == 0 and half != 1:
            assert not pend
            g.wait_vm(("w", s))
            g.e("s_barrier")
            if s >= 2 and s % 2 == 0:
                g.e(f"v_xor_b32 v{VTE}, 0x10000, v{VTE}")
                g.e(f"v_xor_b32 v{VTO}, 0x10000, v{VTO}")
            if s >= 2: pend.extend(wdma_ops(s + 2))
        if pend and f >= 1 and half != 0: pend.pop(0)()
        p, m, cb, mp = fmap(s, f)
        r = WR + (F % 8) * 4
        for a in (range(2) if half is None else [half]):
            o = (s & 1) * 32768 + mp * 4096 + a * 512 + (cb >> 1) * 256
            g.lds(f"TR {r + 2 * a},{VTO if cb & 1 else VTE},{o}", ("w", F))

    g.stamp(1)
    ev = {}
    def at(F, fn): ev.setdefault(F, []).append(fn)
    def spread(F0, ops, after=None):
        if after is not None: at(F0, lambda: g.wait_ds(("x", after)))
        for i, op in enumerate(ops): at(F0 + i, op)
    if not ztype:
        xread(0)
        at(0, lambda: g.wait_ds(("x", 0)))
        spread(0, xdma_ops(2)); spread(4, wdma_ops(2, 47))
        at(10, lambda: xread(1)); spread(14, xdma_ops(3), 1)
        at(22, lambda: xread(2)); spread(26, xdma_ops(4), 2)
        at(34, lambda: xread(3)); spread(38, xdma_ops(5), 3)
        at(44, lambda: xread(4)); spread(48, wdma_ops(3, 47), 4)
        at(56, lambda: xread(5)); spread(64, xdma_ops(6), 5)
        at(80, lambda: xread(6)); spread(84, xdma_ops(7), 6)
        at(99, lambda: xread(7)); at(103, lambda: g.wait_ds(("x", 7)))
    else:
        for m in range(16): at(8 * m if m < 12 else 96 + 4 * (m - 12), lambda m=m: g.wait_vm(("x", m)))
        for m, F in zip(range(4, 16), (4, 8, 12, 16, 28, 34, 40, 46, 56, 64, 70, 74)): at(("post", F), lambda m=m: xload(m))
        for F0, s in ((0, 1), (22, 2), (50, 3)):
            for i, op in enumerate(wdma_ops(s, 47)): at(("post", F0 + i), op)
    if LT > 1 and not ztype: at(LT, lin_touch)
    if PF:
        def prefetch():
            sr = 36 if T == "Z2" else 32
            srd(g, sr, 8, 9, 4 * MB)
            g.e("s_and_b32 s43, s2, 0xf8")
            g.e("s_add_u32 s43, s43, s40")
            g.e("s_lshl_b32 s43, s43, 14")
            g.e("s_and_b32 s47, s2, 7")
            g.e("s_lshl_b32 s47, s47, 8")
            g.e("s_add_u32 s47, s47, s43")
            g.e("v_and_b32 v14, 1, v0")
            g.e("v_lshlrev_b32 v14, 7, v14")
            g.e("v_bfe_u32 v15, v0, 1, 3")
            g.e("v_lshl_add_u32 v14, v15, 11, v14")
            g.e("v_bfe_u32 v15, v0, 4, 2")
            g.e("v_lshl_add_u32 v15, v15, 28, v14")
            g.vmem(f"buffer_load_dword v15, v15, s[{sr}:{sr + 3}], s47 offen", "t")
            if T in ("K", "V"):
                sk = g.newlabel("nocode")
                g.e("s_cmp_lt_u32 s2, 8")
                g.e(f"s_cbranch_scc0 {sk}")
                code_touch(g, 36, 14, "L_all_end", "k2_kernel", False)
                g.label(sk)
            if PF3 == 1 and T != "Z2":
                sk = g.newlabel("nopf3")
                g.e(f"s_cmp_lt_u32 s42, {SHORT0}")
                g.e(f"s_cbranch_scc1 {sk}")
                pf_next(True)
                g.label(sk)
        at(PF if not ztype else min(PF, 110), prefetch)
    def place(ops, F0, n):
        for i, op in enumerate(ops): at(("post", F0 + i * n // len(ops)), op)
    for p in range(NP - 1):
        ops = epilogue(p)
        F0 = (2 * p + 2) * 32 + 3
        if not ztype:
            h = len(ops) - 20
            fr = [ops[h + 5 * i:h + 5 * i + 5] for i in range(4)]
            if p == 0:
                place(ops[:h] + [o for f4 in fr for o in f4[:4]], 3 * 32 + 20, 11)
                for f4, F in zip(fr, (127, 138, 149, 160)): at(("post", F), f4[4])
            else:
                pos = (166, 174, 182, 189) if p == 1 else [F0 + 5 + 16 * i for i in range(4)]
                place(ops[:h], pos[0] - 4, 3)
                for f4, F in zip(fr, pos): place(f4, F - 1, 2)
        elif p == 0: place(ops, 3 * 32 + 20, 11)
        elif T == "Z2" and p == 1:
            place(ops + [lambda: g.e("s_nop 1")] + publish_ops(), F0, ZPUB)
            at(("post", F0 + ZPUB + 13), arrive)
        else: place(ops, F0, 60)
    for F in range(D): wread(F)
    for s in range(NST):
        if s < 9 and PROF != 6: g.stamp(2 + s)
        if s == 2 * NS and NS < NP:
            cont = g.newlabel("cont")
            g.e(f"s_cmp_lt_u32 s42, {SHORT0}")
            g.e(f"s_cbranch_scc1 {cont}")
            sv = (list(g.vm), list(g.ds))
            final(NS - 1, True)
            g.vm, g.ds = sv
            g.label(cont)
        for f in range(32):
            F = s * 32 + f
            p, m, cb, mp = fmap(s, f)
            if PROF == 6 and F in PFL: g.stamp(2 + PFL.index(F))
            for fn in ev.pop(F, []): fn()
            g.wait_ds(("w", F))
            r = WR + (F % 8) * 4
            post = ev.pop(("post", F), [])
            for a in range(2):
                op = "MZ" if m == 0 else "M"
                if ktp(p): g.e(f"{op} {areg(p & 1, cb, a)},{r},{xreg(a, m)}")
                else: g.e(f"{op} {areg(p & 1, cb, a)},{xreg(a, m)},{r}")
                wread(F + D, a)
                n = len(post) // 2 if a == 0 else len(post)
                for _ in range(n): post.pop(0)()
    assert not ev, ev.keys()
    final(NP - 1)
    g.label(f"L_k1_{T}_end")

def gen_k1(g):
    g.e(".p2align 8")
    g.e(".type k1_kernel,@function")
    g.label("k1_kernel")
    g.e("s_cmp_ge_u32 s2, 256")
    g.e("s_cbranch_scc1 L_k1_end")
    g.stamp(0)
    if PROF: g.e("s_memrealtime s[94:95]")
    g.e("s_load_dwordx4 s[4:7], s[0:1], 0")
    g.e("s_load_dwordx4 s[8:11], s[0:1], 16")
    g.e("s_load_dwordx2 s[12:13], s[0:1], 32")
    g.e("s_load_dwordx2 s[14:15], s[0:1], 56")
    g.e("s_load_dwordx2 s[18:19], s[0:1], 96")
    g.e("s_load_dwordx2 s[16:17], s[0:1], 104")
    g.e("v_lshrrev_b32 v1, 6, v0")
    g.e("s_lshr_b32 s49, s2, 3")
    g.e("s_and_b32 s41, s2, 1")
    g.e("v_readfirstlane_b32 s40, v1")
    g.e("s_lshl_b32 s41, s41, 2")
    g.e("s_and_b32 s50, s49, 3")
    g.e("s_add_u32 s41, s41, s50")
    g.e("s_and_b32 s3, s2, 6")
    g.e("s_lshl_b32 s3, s3, 2")
    g.e("s_lshr_b32 s49, s49, 2")
    g.e("s_add_u32 s3, s3, s49")
    if MIX:
        cst = [sum(v << (8 * i) for i, v in enumerate(row)) for row in GMAP]
        g.e("s_bitcmp1_b32 s2, 1")
        g.e(f"s_cselect_b32 s44, {cst[1] & 0xffffffff}, {cst[0] & 0xffffffff}") if False else None
        for k, (lo, hi) in enumerate(((44, 45), (46, 47))):
            g.e(f"s_mov_b32 s{lo}, {cst[2 * k] & 0xffffffff}")
            g.e(f"s_mov_b32 s{hi}, {cst[2 * k] >> 32}")
            g.e(f"s_cmov_b32 s{lo}, {cst[2 * k + 1] & 0xffffffff}")
            g.e(f"s_cmov_b32 s{hi}, {cst[2 * k + 1] >> 32}")
        g.e("s_bitcmp1_b32 s2, 2")
        g.e("s_cselect_b64 s[44:45], s[46:47], s[44:45]")
        g.e("s_lshl_b32 s49, s49, 3")
        g.e("s_lshr_b64 s[44:45], s[44:45], s49")
        g.e("s_and_b32 s3, s44, 31")
    g.e("s_waitcnt lgkmcnt(0)")
    g.e(f"s_cmp_lt_u32 s3, {GKV}")
    g.e("s_cbranch_scc1 L_k1_K")
    g.e(f"s_cmp_lt_u32 s3, {2 * GKV}")
    g.e("s_cbranch_scc1 L_k1_V")
    g.e(f"s_cmp_lt_u32 s3, {2 * GKV + 3}")
    g.e("s_cbranch_scc1 L_k1_Z1")
    g.e("s_branch L_k1_Z2")
    g.label("L_k1_end")
    g.e("s_endpgm")
    for T in ("K", "V", "Z1", "Z2"):
        gen_type(g, T)
```

```python
from asmlib import *
import k1
from k1 import w_voffsets, tr_bases, xreg, areg, WR, D
import math

QSCALE = 128 ** -0.5 * math.log2(math.e)
STASH = 131072
DSP = int(os.environ.get('DSP', '3')); EB = int(os.environ.get('EB', '14'))
XPRE = int(os.environ.get('XPRE', '4'))
PS = int(os.environ.get('PS', '0'))
NTSP = os.environ.get('NTSP', '')
PF2 = int(os.environ.get('PF2', '0'))
KINS = int(os.environ.get('KINS', '0'))
NTAIL = int(os.environ.get('NTAIL', '0'))
STF2 = os.environ.get('STF2', 'sc1')
PFS = int(os.environ.get('PFS', '54'))
STFX = os.environ.get('STFX', 'sc1'); STFU = os.environ.get('STFU', '')
XSCH = eval(os.environ.get('XSCH', '(4, 8, 12, 16, 28, 34, 40, 46, 56, 62, 68, 74)'))
PF4 = int(os.environ.get('PF4', '0'))
NTWQ = os.environ.get('NTWQ', '')
NPART = 3
VF, VNEG, VL, VT, V16, VLT = 1, 3, 4, 6, 7, 8
NEGM, PR, TMP, OR, FR = 16, 24, 40, 128, 192
ML, FA, FB = 52, 56, 58
def sreg(kt, qb): return 72 + 16 * kt + 4 * qb
def preg(qb, kg): return PR + (qb * 2 + kg) * 4
def qreg(qb, mm): return 64 + 16 * mm + 4 * qb
def oreg(cb, qb): return OR + (cb * 2 + qb) * 4
def freg(j): return FR + j * 4

def merge_streams(main, fill, start=0):
    out = []
    n = len(main) - start
    acc = 0.0
    fill = list(fill)
    per = len(fill) / max(1, n)
    for i, m in enumerate(main):
        out.append(m)
        if i >= start:
            acc += per
            while fill and acc >= 0.999:
                out.append(fill.pop(0)); acc -= 1.0
    return out + fill

def dma4(g, so, first_m0=None, tag=None):
    ops = []
    for j in range(4):
        def op(j=j):
            if j == 0 and first_m0:
                g.e(first_m0); g.e("s_nop 0")
            g.vmem(f"buffer_load_dwordx4 v{V16}, s[28:31], s{so} offen offset:{j * 1024} lds", tag)
        ops.append(op)
    return ops

def next_ops(t):
    return [[f"s_and_b32 s19, s{t}, 3"], ["s_lshl_b32 s19, s19, 15"],
            ["s_xor_b32 s50, s19, 0x10000"], ["s_add_u32 s50, s50, s55"],
            [f"s_add_u32 s49, s{t}, 2"], ["s_lshl_b32 s51, s49, 14"], ["s_add_u32 s51, s51, s54"],
            ["s_cmp_lt_u32 s49, s48", "s_cselect_b32 s51, s51, s54"],
            [f"s_cmp_lt_u32 s{t}, s45", "s_cselect_b32 s49, s41, 0"],
            ["s_lshl_b32 s7, s49, 14"], ["s_add_u32 m0, s50, s7"], ["s_lshl_b32 s49, s49, 24"],
            ["s_add_u32 s7, s51, s49"], [f"s_add_u32 s51, s51, {16 * MB}"]]

def softmax_ops(g):
    ops = []
    I = lambda s: ops.append(lambda s=s: g.e(s))
    T = [TMP + i for i in range(8)]
    k = 0
    for kt in range(4):
        for qb in range(2):
            s = sreg(kt, qb); t = T[(k % 2) * 4:(k % 2) * 4 + 4]; k += 1
            for r in range(4): I(f"v_exp_f32 v{t[r]}, v{s + r}")
            p = preg(qb, kt >> 1) + (kt & 1) * 2
            if kt == 0:
                I(f"v_add_f32 v{VLT + qb}, v{t[0]}, v{t[1]}")
                I(f"PK {p},{t[0]},{t[1]}")
                I(f"v_add_f32 v{VLT + qb}, v{VLT + qb}, v{t[2]}")
                I(f"PK {p + 1},{t[2]},{t[3]}")
                I(f"v_add_f32 v{VLT + qb}, v{VLT + qb}, v{t[3]}")
            else:
                I(f"v_add_f32 v{VLT + qb}, v{VLT + qb}, v{t[0]}")
                I(f"v_add_f32 v{VLT + qb}, v{VLT + qb}, v{t[1]}")
                I(f"PK {p},{t[0]},{t[1]}")
                I(f"v_add_f32 v{VLT + qb}, v{VLT + qb}, v{t[2]}")
                I(f"v_add_f32 v{VLT + qb}, v{VLT + qb}, v{t[3]}")
                I(f"PK {p + 1},{t[2]},{t[3]}")
    return ops

def xgroup(g, regs, op, tmp):
    for sw in ("v_permlane32_swap_b32", "v_permlane16_swap_b32"):
        for i, r in enumerate(regs): g.e(f"v_mov_b32 v{tmp + i}, v{r}")
        g.e("s_nop 1")
        for i, r in enumerate(regs): g.e(f"{sw} v{tmp + i}, v{r}")
        g.e("s_nop 1")
        for i, r in enumerate(regs): g.e(f"{op} v{r}, v{r}, v{tmp + i}")

def rescale(g, first):
    MX = [TMP + 8, TMP + 9]
    for qb in range(2):
        vals = [sreg(kt, qb) + r for kt in range(4) for r in range(4)]
        g.e(f"v_max3_f32 v{MX[qb]}, v{vals[0]}, v{vals[1]}, v{vals[2]}")
        for i in range(3, 15, 2): g.e(f"v_max3_f32 v{MX[qb]}, v{MX[qb]}, v{vals[i]}, v{vals[i + 1]}")
        g.e(f"v_max_f32 v{MX[qb]}, v{MX[qb]}, v{vals[15]}")
    xgroup(g, MX, "v_max_f32", TMP + 10)
    if not first:
        for qb in range(2): g.e(f"v_max_f32 v{MX[qb]}, 0, v{MX[qb]}")
    for kt in range(4):
        for qb in range(2):
            for r in range(4): g.e(f"v_sub_f32 v{sreg(kt, qb) + r}, v{sreg(kt, qb) + r}, v{MX[qb]}")
    for qb in range(2):
        for r in range(4): g.e(f"v_sub_f32 v{NEGM + qb * 4 + r}, v{NEGM + qb * 4 + r}, v{MX[qb]}")
    if not first:
        for qb in range(2): g.e(f"v_exp_f32 v{MX[qb]}, -v{MX[qb]}")
        g.e("s_nop 0")
        for cb in range(8):
            for qb in range(2):
                for r in range(4): g.e(f"v_mul_f32 v{oreg(cb, qb) + r}, v{oreg(cb, qb) + r}, v{MX[qb]}")
        for qb in range(2): g.e(f"v_mul_f32 v{VL + qb}, v{VL + qb}, v{MX[qb]}")

def mask_block(g):
    skip = g.newlabel("nomask"); l1 = g.newlabel("m1"); lf = g.newlabel("mf"); do = g.newlabel("domask")
    g.e("s_add_u32 s49, s52, 2")
    g.e("s_cmp_ge_u32 s49, s48")
    g.e(f"s_cbranch_scc1 {do}")
    g.e("s_sub_u32 s49, s52, s46")
    g.e("s_cmp_lt_u32 s49, 2")
    g.e(f"s_cbranch_scc0 {skip}")
    g.label(do)
    g.e("s_and_b32 s49, s52, 1")
    g.e("s_lshl_b32 s49, s49, 1")
    g.e("s_sub_u32 s49, s42, s49")
    def diag(kt, qb):
        for r in range(4): g.e(f"v_cndmask_b32 v{sreg(kt, qb) + r}, v{VNEG}, v{sreg(kt, qb) + r}, s[{8 + 2 * r}:{9 + 2 * r}]")
    def full(kt, qb):
        for r in range(4): g.e(f"v_mov_b32 v{sreg(kt, qb) + r}, v{VNEG}")
    g.e("s_cmp_ge_i32 s49, 2")
    g.e(f"s_cbranch_scc1 {skip}")
    g.e("s_cmp_eq_i32 s49, 1")
    g.e(f"s_cbranch_scc1 {l1}")
    g.e("s_cmp_lt_i32 s49, 0")
    g.e(f"s_cbranch_scc1 {lf}")
    diag(0, 0); full(1, 0); diag(1, 1); full(2, 0); full(2, 1); full(3, 0); full(3, 1)
    g.e(f"s_branch {skip}")
    g.label(l1)
    diag(2, 0); full(3, 0); diag(3, 1)
    g.e(f"s_branch {skip}")
    g.label(lf)
    for kt in range(4):
        for qb in range(2): full(kt, qb)
    g.label(skip)

def m_phase(g, has_pv, zero, split, post=None, pre=None):
    g.vm = []
    if has_pv: g.e("s_barrier")
    dma = dma4(g, 7) + (dma4(g, 51, "s_add_u32 m0, s50, 16384") if split else [])
    sal = [["s_add_u32 s49, s52, 2"], ["s_cmp_ge_u32 s49, s48", "s_cselect_b32 s4, 0, 4"], ["s_sub_u32 s49, s52, s46"], ["s_min_u32 s4, s4, s49"],
           ["s_cmp_lt_u32 s52, s53", "s_cselect_b32 s47, 1, 2"], ["s_add_u32 s47, s47, s52"]]
    sal2 = next_ops(47)
    if has_pv:
        g.ds = []
        sp = DSP if split else 4
        for j in range(16):
            kg, cb = j >> 3, j & 7
            for qb in range(2):
                g.e(f"{'MZ' if zero and kg == 0 else 'M'} {oreg(cb, qb)},{freg(j)},{preg(qb, kg)}")
                if qb == 0 and j >= 1: g.lds(f"DR {freg(j - 1)},{VF},{(j - 1) * 1024}", ("k", j - 1))
            if dma and j % sp == 0: dma.pop(0)()
            elif sal:
                for t in sal.pop(0): g.e(t)
        g.lds(f"DR {freg(15)},{VF},{15 * 1024}", ("k", 15))
    else:
        sp = 2
    PT = int(os.environ.get('PT', '5'))
    if has_pv and not zero: g.stamp_if(7, 52, PT)
    tail = []
    so = softmax_ops(g)[:NTAIL]
    for b in range(0, NTAIL, 9):
        o = so[b:b + 9]
        tail += [[o[0]], [o[1]], [o[2]], [o[3]], o[4:6], o[6:8], o[8:9]]
    for j in range(16):
        kt, mm = j >> 2, j & 3
        if j == EB:
            if pre: pre()
            g.wait_ds(("k", 15))
            if has_pv and not zero: g.stamp_if(8, 52, PT)
            if has_pv: g.e(f"s_waitcnt vmcnt({8 if split else 4})")
            g.e("s_setprio 2")
            g.e("s_barrier")
        if j == 0: g.wait_ds(("k", 10))
        if j == 5: g.wait_ds(("k", 15))
        for qb in range(2):
            if mm == 0: g.e(f"MC {sreg(kt, qb)},{freg(j)},{qreg(qb, mm)},{NEGM + qb * 4}")
            else: g.e(f"M {sreg(kt, qb)},{freg(j)},{qreg(qb, mm)}")
            if qb == 0 and j >= 1: g.lds(f"DR {freg(j - 1)},{VF},{16384 + (j - 1) * 1024}", "v")
            if j >= EB and tail:
                for op in tail.pop(0): op()
            if not has_pv and j >= EB and dma: dma.pop(0)()
            elif has_pv and qb == 1 and dma and (j + 16) % sp == 0: dma.pop(0)()
            elif qb == 1 and sal:
                for t in sal.pop(0): g.e(t)
            elif not sal and not dma and sal2:
                for t in sal2.pop(0): g.e(t)
    while dma: dma.pop(0)()
    assert not sal
    if post: post()
    for grp in sal2:
        for t in grp: g.e(t)
    g.lds(f"DR {freg(15)},{VF},{16384 + 15 * 1024}", "v")
    g.e("s_setprio 0")
    for w in tail:
        for op in w: op()
    g.vm = []; g.ds = []
    if has_pv:
        g.e("s_cmp_lt_u32 s4, 4")
        g.e("s_cbranch_scc1 L_k2_sgen")
    else:
        g.e("s_branch L_k2_sgen")

def advance(g):
    g.e("s_mov_b32 s52, s47")
    g.e(f"v_add_u32 v{VF}, s19, v{V16}")

def gen_attn(g):
    g.vm = []; g.ds = []
    g.label("L_k2_attn")
    g.e("s_mul_i32 s49, s41, 37")
    g.e("s_lshr_b32 s49, s49, 8")
    g.e("s_mul_i32 s50, s49, 7")
    g.e("s_sub_u32 s44, s41, s50")
    g.e("s_lshl_b32 s49, s49, 3")
    g.e("s_add_u32 s43, s3, s49")
    g.e("s_lshr_b32 s41, s40, 2")
    g.e("s_and_b32 s42, s40, 3")
    g.e("s_sub_u32 s32, 15, s44")
    g.e("s_add_u32 s33, s44, 4")
    g.e("s_cmp_eq_u32 s44, 6")
    g.e("s_cselect_b32 s32, 3, s32")
    g.e("s_cselect_b32 s33, 2, s33")
    g.e("s_lshl_b32 s49, s3, 20")
    g.e("s_add_u32 s60, s6, s49")
    g.e("s_addc_u32 s61, s7, 0")
    g.e(f"s_mov_b32 s62, {MB}")
    g.e("s_mov_b32 s63, 0x20000")
    srd(g, 20, 4, 5, 512 * 8192)
    srd(g, 24, 16, 17, SZ_XN, WS_XN)
    srd(g, 28, 16, 17, 2 * SZ_KV, WS_K)
    srd(g, 36, 16, 17, SZ_CTX, WS_CTX)
    g.e("s_lshl_b32 s55, s42, 12")
    g.e("s_lshl_b32 s54, s43, 19")
    g.e("s_add_u32 s54, s54, s55")
    g.e("s_lshl_b32 s57, s42, 13")
    g.e(f"s_add_u32 s57, s57, {STASH}")
    g.e("v_and_b32 v28, 63, v0")
    g.e(f"v_lshlrev_b32 v{V16}, 4, v28")
    g.e("v_and_b32 v28, 15, v0")
    g.e("v_bfe_u32 v29, v0, 4, 2")
    g.e("v_lshlrev_b32 v29, 2, v29")
    g.e("v_sub_u32 v28, v28, v29")
    for r in range(4): g.e(f"v_cmp_le_i32 s[{8 + 2 * r}:{9 + 2 * r}], {r}, v28")
    g.label("L_k2_round")
    w_voffsets(g, 8192, 1)
    g.e("s_lshl_b32 s18, s43, 8")
    g.e("s_lshl_b32 s49, s42, 18")
    g.e("s_add_u32 s18, s18, s49")
    g.e("s_lshl_b32 s49, s41, 7")
    g.e("s_add_u32 s18, s18, s49")
    g.e("s_lshl_b32 s19, s40, 12")
    g.e("s_cmp_eq_u32 s41, 0")
    g.e("s_cselect_b32 s47, s32, s33")
    g.e("s_lshl_b32 s47, s47, 17")
    g.e("s_lshl_b32 s49, s42, 15")
    g.e("s_add_u32 s47, s47, s49")
    def wdma(s):
        g.e(f"s_add_u32 s51, s18, {s * 128 * 8192}")
        g.e(f"s_add_u32 m0, s19, {s * 32768}")
        g.e("s_nop 0")
        for j in range(4):
            g.vmem(f"buffer_load_dwordx4 v{1 + j}, s[20:23], s51 offen offset:{j * 1024} {NTWQ} lds", ("w", s))
    def xload(m):
        if m % 4 == 0:
            g.e(f"s_add_u32 s6, s47, {m * 1024}")
            g.e(f"s_add_u32 s7, s47, {m * 1024 + 16384}")
        for a in range(2):
            x = xreg(a, m)
            g.vmem(f"buffer_load_dwordx4 v[{x}:{x + 3}], v{V16}, s[24:27], s{6 + a} offen offset:{(m % 4) * 1024}", ("x", m))
    if PROF == 1: g.stamp(6)
    wdma(0)
    for m in range(2): xload(m)
    code_touch(g, 96, 14, "L_k2_sp")
    g.e("s_barrier")
    for m in range(2, 4): xload(m)
    later = {0: lambda: wdma(1), 22: lambda: wdma(2), 50: lambda: wdma(3)}
    def pf_wsp():
        sk = g.newlabel("nopf")
        g.e("s_cmp_eq_u32 s32, 1")
        g.e(f"s_cbranch_scc1 {sk}")
        g.e("s_and_b32 s49, s2, 0xf8")
        g.e("s_add_u32 s49, s49, s40")
        g.e("s_mul_i32 s49, s49, 4736")
        g.e(f"v_lshlrev_b32 v10, 3, v{V16}")
        g.e("v_mov_b32 v12, 0x10000000")
        g.e("v_cmp_gt_u32 vcc, 4736, v10")
        g.e("s_nop 1")
        g.e("v_cndmask_b32 v11, v12, v10, vcc")
        g.e("buffer_load_dword v13, v11, s[60:63], s49 offen")
        if PF4:
            g.e("s_load_dwordx2 s[96:97], s[0:1], 40")
            g.e("s_load_dwordx2 s[100:101], s[0:1], 80")
            g.e("s_lshl_b32 s49, s2, 3")
            g.e("s_add_u32 s49, s49, s40")
            g.e("v_cmp_gt_u32 vcc, 2432, v10")
            g.e("s_mul_i32 s58, s49, 2432")
            g.e("s_lshl_b32 s59, s49, 9")
            g.e("v_cndmask_b32 v11, v12, v10, vcc")
            g.e("v_cmp_gt_u32 vcc, 512, v10")
            g.e("s_waitcnt lgkmcnt(0)")
            g.e(f"s_mov_b32 s98, {4 * MB}")
            g.e("s_mov_b32 s99, 0x20000")
            g.e("buffer_load_dword v13, v11, s[96:99], s58 offen")
            g.e("v_cndmask_b32 v11, v12, v10, vcc")
            g.e("s_mov_b32 s96, s100")
            g.e("s_mov_b32 s97, s101")
            g.e(f"s_mov_b32 s98, {896 * 1024}")
            g.e("buffer_load_dword v13, v11, s[96:99], s59 offen")
        g.label(sk)
    for m, F in zip(range(4, 16), XSCH): later[F] = lambda m=m: xload(m)
    tr_bases(g, 5, 6)
    g.e(f"s_mov_b32 s56, {f32(QSCALE)}")
    g.e("s_lshl_b32 s48, s32, 1")
    g.e("s_add_u32 s48, s48, 2")
    g.e("s_lshl_b32 s45, s33, 1")
    g.e("s_add_u32 s45, s45, 2")
    g.e("s_sub_u32 s53, s45, s41")
    g.e("s_sub_u32 s46, s45, 2")
    g.e("s_cmp_eq_u32 s41, 0")
    g.e("s_cselect_b32 s46, 0x1000, s46")
    g.stamp(1)
    def first_tile(t):
        g.e("s_lshl_b32 s49, s41, 24")
        g.e("s_add_u32 s50, s54, s49")
        if t: g.e("s_add_u32 s50, s50, 16384")
        return dma4(g, 50, f"s_add_u32 m0, s19, {t * 32768}", "kv")
    def fmap(s, f):
        return (f >> 4, (f >> 2) & 3, f & 3) if s == 3 else ((f >> 2) & 1, f >> 3, f & 3)
    def wread(F, half=None):
        s, f = F >> 5, F & 31
        if s >= 4: return
        if f == 0 and half != 1:
            g.wait_vm(("w", s), "kv")
            g.e("s_barrier")
            if s == 2:
                g.e("v_xor_b32 v5, 0x10000, v5")
                g.e("v_xor_b32 v6, 0x10000, v6")
            if s >= 2:
                for op in first_tile(s - 2): op()
        p, ks, cb = fmap(s, f)
        mp = p * 4 + ks
        r = WR + (F % 8) * 4
        for a in (range(2) if half is None else [half]):
            o = (s & 1) * 32768 + mp * 4096 + a * 512 + (cb >> 1) * 256
            g.lds(f"TR {r + 2 * a},{6 if cb & 1 else 5},{o}", ("w", F))
    def qpack(p):
        ops = []
        I = lambda s: ops.append(lambda s=s: g.e(s))
        for a in range(2):
            for mm in range(2):
                x, y = areg(p, 2 * mm, a), areg(p, 2 * mm + 1, a)
                assert x == qreg(a, 2 * p + mm)
                for r in range(4): I(f"v_mul_f32 v{x + r}, s56, v{x + r}")
                for r in range(4): I(f"v_mul_f32 v{y + r}, s56, v{y + r}")
                I(f"PK {x},{x},{x + 1}"); I(f"PK {x + 1},{x + 2},{x + 3}")
                I(f"PK {x + 2},{y},{y + 1}"); I(f"PK {x + 3},{y + 2},{y + 3}")
        return ops
    for F in range(D): wread(F)
    fill = []
    for s in range(4):
        if PROF == 1: g.stamp(7 + s)
        for f in range(32):
            F = s * 32 + f
            p, ks, cb = fmap(s, f)
            m = s * 4 + ks
            if F == 116: fill = qpack(0)
            if p == 0 and cb == 0: g.wait_vm(("x", m))
            g.wait_ds(("w", F))
            r = WR + (F % 8) * 4
            for a in range(2):
                g.e(f"{'MZ' if m == 0 else 'M'} {areg(p, cb, a)},{r},{xreg(a, m)}")
                wread(F + D, a)
                if fill: fill.pop(0)(); fill.pop(0)()
            if F in later: later.pop(F)()
    assert not fill and not later
    g.stamp(2)
    g.e("s_mov_b32 s47, 0")
    for grp in next_ops(47):
        for t in grp: g.e(t)
    advance(g)
    g.vm = []; g.ds = []
    for j in range(16): g.e(f"DR {freg(j)},{VF},{j * 1024}")
    for op in qpack(1): op()
    g.e(f"v_mov_b32 v{VNEG}, {f32(-1e30)}")
    g.e(f"s_mov_b32 s56, {f32(2.0 ** 30)}")
    g.e(f"s_mov_b32 s6, {f32(2.0 ** -30)}")
    for i in range(8): g.e(f"v_mov_b32 v{NEGM + i}, 0")
    g.e(f"v_add_u32 v9, s57, v{V16}")
    g.e("s_waitcnt vmcnt(0) lgkmcnt(0)")
    g.stamp(3)
    la = g.newlabel("qa")
    g.e("s_cmp_eq_u32 s41, 0")
    g.e(f"s_cbranch_scc1 {la}")
    g.e("s_barrier")
    g.label(la)
    def post0():
        if PFS: pf_wsp()
    def pre0():
        sk = g.newlabel("nost")
        g.e("s_cmp_eq_u32 s41, 0")
        g.e(f"s_cbranch_scc0 {sk}")
        for qb in range(2):
            for mm in range(4): g.e(f"DW 9,{qreg(qb, mm)},{(qb * 4 + mm) * 1024}")
        g.label(sk)
    m_phase(g, False, False, False, post0, pre0)
    def s_fast(tag):
        g.label(f"L_k2_s{tag}")
        PT = int(os.environ.get('PT', '5'))
        g.stamp_if(9, 52, PT)
        for op in softmax_ops(g)[NTAIL:]: op()
        g.e(f"v_max_f32 v{VT}, v{VLT}, v{VLT + 1}")
        g.e(f"v_cmp_lt_f32 vcc, s56, v{VT}")
        g.e("s_cbranch_vccnz L_k2_sgen")
        for qb in range(2): g.e(f"v_add_f32 v{VL + qb}, v{VL + qb}, v{VLT + qb}")
        g.stamp_if(10, 52, PT)
        if PROF == 2:
            g.e("s_waitcnt vmcnt(0) lgkmcnt(0)")
            g.stamp_if(11, 52, PT)
        advance(g)
        if tag == "sh": g.e("s_cmp_lt_u32 s52, s45")
        g.e("s_waitcnt lgkmcnt(0)" if tag == "sh" else "s_waitcnt vmcnt(0) lgkmcnt(0)")
    s_fast("sh")
    g.e("s_cbranch_scc0 L_k2_msp")
    g.label("L_k2_msh")
    g.stamp_if(6, 52, int(os.environ.get('PT', '5'))); g.stamp_if(12, 52, int(os.environ.get('PT', '5')) + 1)
    m_phase(g, True, False, False)
    g.e("s_branch L_k2_ssh")
    s_fast("sp")
    g.label("L_k2_msp")
    m_phase(g, True, False, True)
    g.e("s_branch L_k2_ssp")
    g.label("L_k2_mzsh")
    m_phase(g, True, True, False)
    g.e("s_branch L_k2_ssh")
    g.label("L_k2_mzsp")
    m_phase(g, True, True, True)
    g.e("s_branch L_k2_ssp")
    EXP = os.environ.get('ATEXP', '')
    if EXP:
        i0 = g.lines.index("L_k2_ssh:")
        keep = []
        for l in g.lines[i0:]:
            if 'd' in EXP and l.startswith('buffer_load'): continue
            if 'r' in EXP and l.startswith('DR '): continue
            if 'e' in EXP and l.startswith('v_exp'): l = l.replace('v_exp_f32', 'v_mov_b32')
            if 'v' in EXP and (l.startswith('v_exp') or l.startswith('PK') or (l.startswith('v_add_f32 v8') or l.startswith('v_add_f32 v9'))): continue
            if 'b' in EXP and l.startswith('s_cbranch_vccnz'): continue
            keep.append(l)
        g.lines[i0:] = keep
    def ctx_base(blk):
        g.e(f"s_lshl_b32 s49, s{blk}, 3")
        g.e("s_lshl_b32 s35, s42, 1")
        g.e("s_add_u32 s49, s49, s35")
        g.e("s_mul_i32 s49, s49, 159744")
        g.e("s_lshl_b32 s35, s43, 12")
        g.e("s_add_u32 s34, s49, s35")
        g.e("s_add_u32 s35, s34, 159744")
    def pack_store(mm, qb, fl=STF2):
        x, y = oreg(2 * mm, qb), oreg(2 * mm + 1, qb)
        return [f"PK {x},{x},{x + 1}", f"PK {x + 1},{x + 2},{x + 3}", f"PK {x + 2},{y},{y + 1}", f"PK {x + 3},{y + 2},{y + 3}",
                f"buffer_store_dwordx4 v[{x}:{x + 3}], v{V16}, s[36:39], s{34 + qb} offen offset:{mm * 1024} {fl}"]
    g.label("L_k2_sgen")
    def st5(i, val):
        if PROF == 5:
            l = g.newlabel("st"); g.e(f"s_cmp_lg_u32 s52, {val}"); g.e(f"s_cbranch_scc1 {l}"); g.stamp(i); g.label(l)
    st5(4, 0); st5(7, 8); st5(9, 9); st5(11, 11)
    if PROF == 5: g.stamp(13)
    g.e("s_sub_u32 s49, s52, s46")
    g.e("s_cmp_eq_u32 s49, 3")
    g.e("s_cselect_b32 s5, 2, 0")
    g.e("s_cmp_eq_u32 s52, 0")
    g.e("s_cselect_b32 s5, 1, s5")
    g.e("s_cselect_b32 s18, s6, 0")
    g.e("s_cmp_eq_u32 s5, 2")
    g.e("s_cselect_b32 s18, s6, s18")
    mask_block(g)
    ny = g.newlabel("ny"); jy = g.newlabel("jy")
    g.e("s_cmp_eq_u32 s5, 2")
    g.e(f"s_cbranch_scc0 {ny}")
    ctx_base(33)
    so = softmax_ops(g)
    k = 0
    for mm in range(4):
        for qb in range(2):
            for cb in (2 * mm, 2 * mm + 1):
                for r in range(4): g.e(f"v_mul_f32 v{oreg(cb, qb) + r}, v{oreg(cb, qb) + r}, v{FA + qb}")
            for t in pack_store(mm, qb): g.e(t)
            n = 9 if k < 2 else 10
            for op in so[:n]: op()
            so = so[n:]; k += 1
    assert not so
    g.e(f"s_branch {jy}")
    g.label(ny)
    for op in softmax_ops(g): op()
    g.label(jy)
    g.e(f"v_max_f32 v{VT}, v{VLT}, v{VLT + 1}")
    g.e(f"v_min_f32 v{TMP}, v{VLT}, v{VLT + 1}")
    g.e(f"v_cmp_lt_f32 vcc, s56, v{VT}")
    g.e("s_cbranch_vccnz L_k2_slow")
    g.e(f"v_cmp_gt_f32 vcc, s18, v{TMP}")
    g.e("s_cbranch_vccnz L_k2_slow")
    g.label("L_k2_back")
    nf = g.newlabel("nf")
    g.e("s_cmp_eq_u32 s5, 0")
    g.e(f"s_cbranch_scc1 {nf}")
    for qb in range(2): g.e(f"v_mov_b32 v{VL + qb}, 0")
    g.label(nf)
    for qb in range(2): g.e(f"v_add_f32 v{VL + qb}, v{VL + qb}, v{VLT + qb}")
    g.e("s_add_u32 s49, s52, 2")
    g.e("s_cmp_ge_u32 s49, s48")
    g.e("s_cbranch_scc1 L_k2_xlast")
    nl = g.newlabel("nyl")
    g.e("s_sub_u32 s49, s52, s46")
    g.e("s_cmp_eq_u32 s49, 1")
    g.e(f"s_cbranch_scc0 {nl}")
    g.e(f"v_add_u32 v10, s57, v{V16}")
    for qb in range(2):
        for mm in range(4): g.e(f"DR {qreg(qb, mm)},10,{(qb * 4 + mm) * 1024}")
    xgroup(g, [VL, VL + 1], "v_add_f32", TMP + 2)
    for qb in range(2): g.e(f"v_rcp_f32 v{FA + qb}, v{VL + qb}")
    for i in range(8): g.e(f"v_mov_b32 v{NEGM + i}, 0")
    g.label(nl)
    st5(6, 0); st5(8, 8); st5(10, 9); st5(12, 11)
    advance(g)
    g.e("s_cmp_lt_u32 s52, s45")
    g.e("s_cselect_b32 s49, 0, 4")
    g.e("s_add_u32 s5, s5, s49")
    w8 = g.newlabel("w8")
    g.e("s_and_b32 s49, s5, 3")
    g.e(f"s_cbranch_scc1 {w8}")
    g.e("s_waitcnt vmcnt(0)")
    g.label(w8)
    g.e("s_waitcnt vmcnt(8) lgkmcnt(0)")
    g.e("s_cmp_eq_u32 s5, 0")
    g.e("s_cbranch_scc1 L_k2_msh")
    g.e("s_cmp_eq_u32 s5, 4")
    g.e("s_cbranch_scc1 L_k2_msp")
    g.e("s_cmp_eq_u32 s5, 1")
    g.e("s_cbranch_scc1 L_k2_mzsh")
    g.e("s_branch L_k2_mzsp")
    g.label("L_k2_xlast")
    if PROF == 5: g.stamp(14)
    g.e("s_and_b32 s49, s48, 3")
    g.e("s_lshl_b32 s49, s49, 15")
    g.e("s_lshl_b32 s50, s42, 13")
    g.e("s_add_u32 s50, s50, s49")
    g.e(f"v_add_u32 v11, s50, v{V16}")
    g.e(f"v_add_u32 v10, s57, v{V16}")
    g.e("s_xor_b32 s49, s49, 0x10000")
    g.e("s_lshl_b32 s50, s42, 10")
    g.e("s_add_u32 s49, s49, s50")
    g.e(f"v_add_u32 v{VT}, s49, v{V16}")
    xaddr = lambda i: (10 + (i >> 3), (i & 7) * 1024)
    def pvgroup(cb, zero, mid=()):
        mid = list(mid)
        for kg in range(2):
            for qb in range(2):
                g.e(f"{'MZ' if zero and kg == 0 else 'M'} {oreg(cb, qb)},{freg(kg * 8 + cb)},{preg(qb, kg)}")
                n = -(-len(mid) // (4 - (kg * 2 + qb)))
                for _ in range(n): mid.pop(0)()
    g.e("s_cmp_eq_u32 s41, 0")
    g.e("s_cbranch_scc0 L_k2_xlastB")
    g.e(f"v_mov_b32 v{ML}, v{NEGM}")
    g.e(f"v_mov_b32 v{ML + 1}, v{NEGM + 4}")
    g.e(f"v_mov_b32 v{ML + 2}, v{VL}")
    g.e(f"v_mov_b32 v{ML + 3}, v{VL + 1}")
    g.e(f"DW {VT},{ML},0")
    g.e("s_waitcnt vmcnt(0) lgkmcnt(0)")
    g.e("s_barrier")
    dw = lambda i: (lambda: g.e(f"DW {xaddr(i)[0]},{OR + i * 4},{xaddr(i)[1]}"))
    for cb in range(8):
        pvgroup(cb, False, [dw(2 * cb - 6), dw(2 * cb - 5)] if cb >= 3 else [])
    for i in range(10, 12): dw(i)()
    g.e("s_nop 3")
    for i in range(12, 16): dw(i)()
    g.e("s_waitcnt lgkmcnt(0)")
    g.e("s_barrier")
    g.e("s_branch L_k2_rend")
    g.label("L_k2_xlastB")
    g.e(f"DR {ML},{VT},0")
    ctx_base(32)
    NM = TMP
    g.e("s_waitcnt lgkmcnt(0)")
    for qb in range(2): g.e(f"v_min_f32 v{NM + qb}, v{ML + qb}, v{NEGM + 4 * qb}")
    for qb in range(2): g.e(f"v_sub_f32 v{FA + qb}, v{NM + qb}, v{ML + qb}")
    for qb in range(2): g.e(f"v_sub_f32 v{FB + qb}, v{NM + qb}, v{NEGM + 4 * qb}")
    for i in range(4): g.e(f"v_exp_f32 v{FA + i}, v{FA + i}")
    g.e("s_nop 0")
    for qb in range(2): g.e(f"v_mul_f32 v{VL + qb}, v{VL + qb}, v{FB + qb}")
    for qb in range(2): g.e(f"v_fmac_f32 v{VL + qb}, v{ML + 2 + qb}, v{FA + qb}")
    xgroup(g, [VL, VL + 1], "v_add_f32", TMP + 2)
    for qb in range(2): g.e(f"v_rcp_f32 v{VL + qb}, v{VL + qb}")
    g.e("s_nop 0")
    for qb in range(2): g.e(f"v_mul_f32 v{FA + qb}, v{FA + qb}, v{VL + qb}")
    for qb in range(2): g.e(f"v_mul_f32 v{FB + qb}, v{FB + qb}, v{VL + qb}")
    lz = g.newlabel("finz")
    g.e("s_cmp_eq_u32 s5, 0")
    g.e(f"s_cbranch_scc0 {lz}")
    for zero in (False, True):
        if zero: g.label(lz)
        g.ds = []
        for cb in range(4): pvgroup(cb, zero)
        g.e("s_barrier")
        def merge_ops(mm):
            ops = []
            I = lambda t: ops.append(lambda t=t: g.e(t))
            for qb in range(2):
                for cb in (2 * mm, 2 * mm + 1):
                    o = oreg(cb, qb)
                    for r in range(4): I(f"v_mul_f32 v{o + r}, v{o + r}, v{FB + qb}")
                    ops.append(lambda cb=cb, qb=qb: g.wait_ds(("o", cb, qb)))
                    for r in range(4): I(f"v_fmac_f32 v{o + r}, v{freg(qb * 8 + cb) + r}, v{FA + qb}")
                for t in pack_store(mm, qb, STFX): I(t)
            return ops
        xr = lambda cb, qb: (lambda: g.lds(f"DR {freg(qb * 8 + cb)},{xaddr(cb * 2 + qb)[0]},{xaddr(cb * 2 + qb)[1]}", ("o", cb, qb)))
        for cb in range(3): xr(cb, 0)(); xr(cb, 1)()
        m0 = merge_ops(0)
        for cb in range(4, 8):
            mid = [xr(cb - 1, 0), xr(cb - 1, 1)]
            if cb == 6: mid += m0[:len(m0) // 2]
            if cb == 7: mid += m0[len(m0) // 2:]
            pvgroup(cb, zero, mid)
        xr(7, 0)(); xr(7, 1)()
        for op in merge_ops(1) + merge_ops(2) + merge_ops(3): op()
        if not zero: g.e("s_branch L_k2_rend")
    g.label("L_k2_rend")
    g.stamp(5)
    g.e("s_cmp_eq_u32 s32, 3")
    g.e("s_cbranch_scc0 L_k2_aend")
    g.stamp(4)
    g.e("s_mov_b32 s32, 1")
    g.e("s_mov_b32 s33, 0")
    g.e("s_waitcnt vmcnt(0) lgkmcnt(0)")
    g.e("s_barrier")
    g.e("s_branch L_k2_round")
    g.label("L_k2_aend")
    skc = g.newlabel("nocode")
    g.e("s_cmp_eq_u32 s44, 6")
    g.e(f"s_cbranch_scc0 {skc}")
    code_touch(g, 96, 14, "L_all_end", "k3_kernel", False)
    g.label(skc)
    if PF2:
        sk = g.newlabel("nopf")
        g.e("s_cmp_eq_u32 s44, 6")
        g.e(f"s_cbranch_scc0 {sk}")
        g.e("s_cmp_eq_u32 s41, 1")
        g.e(f"s_cbranch_scc0 {sk}")
        g.e("s_load_dwordx2 s[20:21], s[0:1], 40")
        g.e("s_load_dwordx2 s[28:29], s[0:1], 80")
        g.e("s_lshl_b32 s49, s43, 2")
        g.e("s_add_u32 s49, s49, s42")
        g.e(f"v_lshlrev_b32 v10, 3, v{V16}")
        g.e("s_lshl_b32 s50, s49, 15")
        g.e("s_mul_i32 s51, s49, 7168")
        g.e("s_waitcnt lgkmcnt(0)")
        g.e(f"s_mov_b32 s22, {4 * MB}")
        g.e("s_mov_b32 s23, 0x20000")
        g.e(f"s_mov_b32 s30, {896 * 1024}")
        g.e("s_mov_b32 s31, 0x20000")
        for i in range(4):
            g.e(f"buffer_load_dword v{12 + i}, v10, s[20:23], s50 offen")
            g.e("s_add_u32 s50, s50, 8192")
        g.e("buffer_load_dword v11, v10, s[28:31], s51 offen")
        g.label(sk)
    g.stamp_dump(16, 17, 40, 1)
    g.e("s_endpgm")
    g.label("L_k2_slow")
    l1 = g.newlabel("slow1"); l2 = g.newlabel("slow2")
    g.e("s_cmp_eq_u32 s5, 0")
    g.e(f"s_cbranch_scc0 {l1}")
    rescale(g, False)
    g.e(f"s_branch {l2}")
    g.label(l1)
    rescale(g, True)
    g.label(l2)
    for op in softmax_ops(g): op()
    g.e("s_branch L_k2_back")

def gen_spatial(g):
    ACC, AR, BB, Z1R = 144, 116, 84, 24
    ZB, ZS = 98304, 14336
    VWD = 80
    acc = lambda fb, tt: ACC + (fb * 4 + tt) * 4
    g.vm = []; g.ds = []
    g.label("L_k2_sp")
    g.e("s_sub_u32 s44, s41, 28")
    g.e("s_and_b32 s42, s40, 3")
    g.e("s_lshr_b32 s41, s40, 2")
    srd(g, 20, 6, 7, 2048 * 4096)
    srd(g, 24, 16, 17, SZ_Z, WS_Z2)
    g.e("v_and_b32 v28, 63, v0")
    g.e(f"v_lshlrev_b32 v{V16}, 4, v28")
    g.e("v_bfe_u32 v28, v0, 3, 3")
    g.e("v_and_b32 v29, 7, v0")
    g.e("v_lshrrev_b32 v30, 1, v28")
    g.e("v_xor_b32 v29, v29, v30")
    g.e("s_lshl_b32 s49, s3, 8")
    g.e("s_lshl_b32 s50, s40, 5")
    g.e("s_add_u32 s49, s49, s50")
    g.e("v_add_u32 v28, s49, v28")
    g.e("v_lshlrev_b32 v28, 12, v28")
    g.e("v_xor_b32 v30, 4, v29")
    g.e("v_lshl_add_u32 v29, v29, 4, v28")
    g.e("v_lshl_add_u32 v30, v30, 4, v28")
    for j in range(4): g.e(f"v_add_u32 v{VWD + j}, {j * 8 * 4096 - j * 1024}, v{29 + (j & 1)}")
    g.e("s_lshl_b32 s48, s40, 1")
    g.e("s_min_u32 s48, s48, 12")
    g.e("s_mul_i32 s49, s44, 14")
    g.e("s_add_u32 s49, s49, s48")
    g.e("s_lshl_b32 s43, s49, 10")
    g.e("s_mov_b32 s45, 0")
    g.e("s_lshl_b32 s46, s40, 12")
    g.e("s_lshl_b32 s47, s48, 10")
    g.e(f"s_add_u32 s47, s47, {ZB}")
    def wop(b, j):
        if j % 2 == 0:
            g.e(f"s_add_u32 m0, s46, {(b % 3) * 32768}")
            g.e("s_nop 0")
        g.vmem(f"buffer_load_dwordx4 v{VWD + j}, s[20:23], s45 offen offset:{j * 1024} {NTSP} lds", ("w", 2 * b))
        if j == 3: g.e("s_add_u32 s45, s45, 128")
    def zop(st, j):
        if j == 0:
            g.e(f"s_add_u32 m0, s47, {(st % 4) * ZS}")
            g.e("s_nop 0")
        g.vmem(f"buffer_load_dwordx4 v{V16}, s[24:27], s43 offen offset:{j * 1024} lds", ("z", st))
        if j == 1: g.e("s_add_u32 s43, s43, 57344")
    def dma_ops(st):
        b, h = st // 2 + 2, st & 1
        return [lambda: zop(st + 3, 0), lambda: zop(st + 3, 1), lambda: wop(b, 2 * h), lambda: wop(b, 2 * h + 1)]
    zop(0, 0); zop(0, 1)
    for j in range(4): wop(0, j)
    code_touch(g, 96, 14, "L_k2_spend", None, False)
    srd(g, 12, 8, 9, 4096)
    g.e("v_and_b32 v11, 15, v0")
    g.e("v_lshlrev_b32 v11, 1, v11")
    g.e("s_lshl_b32 s49, s3, 9")
    g.e("s_lshl_b32 s50, s42, 7")
    g.e("s_add_u32 s49, s49, s50")
    for tt in range(4): g.vmem(f"buffer_load_ushort v{16 + tt}, v11, s[12:15], s49 offen offset:{tt * 32}", ("w", 0))
    g.e("s_barrier")
    zop(1, 0); zop(1, 1)
    srd(g, 28, 16, 17, SZ_Z, WS_Z1)
    srd(g, 36, 16, 17, SZ_CTX, WS_CTX)
    g.e("s_mul_i32 s49, s41, 7168")
    g.e(f"s_add_u32 s49, s49, {ZB}")
    g.e(f"v_add_u32 v4, s49, v{V16}")
    g.e("v_and_b32 v28, 15, v0")
    g.e("v_bfe_u32 v29, v0, 4, 2")
    g.e("v_lshrrev_b32 v30, 1, v28")
    g.e("v_xor_b32 v29, v29, v30")
    g.e("v_lshlrev_b32 v29, 4, v29")
    g.e("v_lshl_add_u32 v29, v28, 7, v29")
    g.e("s_lshl_b32 s49, s42, 13")
    g.e("v_add_u32 v1, s49, v29")
    g.e("v_xor_b32 v2, 64, v1")
    g.e("v_add_u32 v5, 0x10000, v1")
    g.e("v_add_u32 v6, 0x10000, v2")
    def aread(st, fb): g.lds(f"DR {AR + fb * 4},4,{(st % 4) * ZS + fb * 1024}", ("a", st, fb))
    def bread(st, tt):
        sl = (st // 2) % 3
        g.lds(f"DR {BB + (st & 1) * 16 + tt * 4},{(5 if sl == 2 else 1) + (st & 1)},{(sl & 1) * 32768 + tt * 2048}", ("b", st))
    SCH = {(3, 0): ("a", 0), (3, 1): ("b", 0), (3, 2): ("b", 1), (4, 0): ("b", 2), (4, 1): ("b", 3), (4, 2): ("a", 1), (5, 0): ("a", 2), (6, 0): ("a", 3)}
    rd = lambda st, k: (aread if k[0] == "a" else bread)(st, k[1])
    g.wait_vm(("z", 0), ("w", 0))
    g.e("s_barrier")
    for key in sorted(SCH): rd(0, SCH[key])
    for tt in range(4):
        for r in range(4): g.e(f"v_lshlrev_b32 v{24 + tt * 4 + r}, 16, v{16 + tt}")
    g.e("s_mov_b32 s52, 0")
    g.stamp(1)
    def step(st, extra=(), dma=4, nxt=True, init=False):
        extra = list(extra)
        pend = []
        for fb in range(7):
            g.wait_ds(("a", st, fb), ("b", st))
            for tt in range(4):
                if init: g.e(f"MC {acc(fb, tt)},{AR + fb * 4},{BB + (st & 1) * 16 + tt * 4},{24 + tt * 4}")
                else: g.e(f"M {acc(fb, tt)},{AR + fb * 4},{BB + (st & 1) * 16 + tt * 4}")
                if tt == 0 and fb < 3: aread(st, fb + 4)
                if nxt:
                    if (fb, tt) == (3, 0):
                        g.wait_vm(("z", st + 1), ("w", st + 1))
                        g.e("s_barrier")
                        pend = dma_ops(st)[:dma]
                    if (fb, tt) in SCH: rd(st + 1, SCH[(fb, tt)])
                if tt == 3 and pend: pend.pop(0)()
                if tt in (1, 3) and extra and fb < 3:
                    extra.pop(0)()
        assert not pend and not extra
    step(0, [lambda j=j: wop(1, j) for j in range(4)] + [lambda: zop(2, 0), lambda: zop(2, 1)], init=True)
    for st in range(1, 4): step(st)
    g.label("L_k2_sploop")
    vm0, ds0 = list(g.vm), list(g.ds)
    for st in range(4, 16): step(st)
    ren = lambda t: (t[0], t[1] - 12) + t[2:]
    g.vm = [ren(t) for t in g.vm]; g.ds = [ren(t) for t in g.ds]
    assert g.vm == vm0 and g.ds == ds0, (g.vm, vm0, g.ds, ds0)
    g.e("s_add_u32 s52, s52, 1")
    g.e("s_cmp_lt_u32 s52, 4")
    g.e("s_cbranch_scc1 L_k2_sploop")
    g.stamp(2)
    g.e("s_lshl_b32 s49, s3, 4")
    g.e("s_lshl_b32 s50, s42, 2")
    g.e("s_add_u32 s49, s49, s50")
    g.e("s_mul_i32 s54, s49, 28672")
    g.e("s_mul_i32 s55, s49, 159744")
    g.e(f"s_add_u32 s55, s55, {128 * 1024}")
    for tt in range(4):
        g.e(f"v_add_u32 v{16 + tt}, {tt * 28672}, v{V16}")
        g.e(f"v_add_u32 v{20 + tt}, {tt * 159744}, v{V16}")
    g.e("s_mul_i32 s56, s44, 14")
    g.e("s_mul_i32 s48, s41, 7")
    g.e("s_add_u32 s56, s56, s48")
    g.e("s_lshr_b32 s56, s56, 1")
    g.e("s_lshl_b32 s56, s56, 10")
    g.e("s_add_u32 s54, s54, s56")
    g.e("s_add_u32 s55, s55, s56")
    def z1load(u):
        for tt in range(4):
            r = Z1R + (u * 4 + tt) * 4
            g.vmem(f"buffer_load_dwordx4 v[{r}:{r + 3}], v{16 + tt}, s[28:31], s54 offen offset:{u * 1024}", ("z1", u))
    for st in range(4, 16):
        ex = {8: 0, 10: 1, 12: 2, 15: 3}
        step(st, [lambda u=ex[st]: z1load(u)] if st in ex else [], dma=4 if st < 12 else (2 if st == 12 else 0), nxt=st < 15)
    g.stamp(4)
    g.e("s_nop 4")
    g.e("s_mov_b32 s53, 0xffff0000")
    vm_sv = list(g.vm)
    lode = g.newlabel("spodd"); lend = g.newlabel("spend")
    g.e("s_cmp_eq_u32 s41, 1")
    g.e(f"s_cbranch_scc1 {lode}")
    for fh in range(2):
        g.vm = list(vm_sv)
        if fh: g.label(lode)
        for u in range(4):
            halves = [(h, 2 * u + h - fh) for h in range(2) if 0 <= 2 * u + h - fh < 7]
            g.wait_vm(("z1", u))
            for tt in range(4):
                z = Z1R + (u * 4 + tt) * 4
                for h, fb in halves:
                    a = acc(fb, tt); t = 8 if h else 1
                    g.e(f"v_lshlrev_b32 v{t}, 16, v{z + 2 * h}")
                    g.e(f"v_and_b32 v{t + 1}, s53, v{z + 2 * h}")
                    g.e(f"v_lshlrev_b32 v{t + 2}, 16, v{z + 2 * h + 1}")
                    g.e(f"v_and_b32 v{t + 3}, s53, v{z + 2 * h + 1}")
                    for r in range(4): g.e(f"v_mul_f32 v{a + r}, v{a + r}, v{t + r}")
                    g.e(f"PK {z + 2 * h},{a},{a + 1}"); g.e(f"PK {z + 2 * h + 1},{a + 2},{a + 3}")
                if len(halves) == 2:
                    g.vmem(f"buffer_store_dwordx4 v[{z}:{z + 3}], v{20 + tt}, s[36:39], s55 offen offset:{u * 1024} {STFU}", "st")
                else:
                    h = halves[0][0]
                    g.vmem(f"buffer_store_dwordx2 v[{z + 2 * h}:{z + 2 * h + 1}], v{20 + tt}, s[36:39], s55 offen offset:{u * 1024 + 8 * h} {STFU}", "st")
        if fh == 0: g.e(f"s_branch {lend}")
    g.label(lend)
    g.stamp(3)
    g.stamp_dump(16, 17, 40, 1)
    g.e("s_endpgm")

def gen_k2(g):
    g.e(".p2align 8")
    g.e(".type k2_kernel,@function")
    g.label("k2_kernel")
    g.e("s_cmp_ge_u32 s2, 256")
    g.e("s_cbranch_scc1 L_k2_end")
    g.stamp(0)
    if PROF: g.e("s_memrealtime s[94:95]")
    g.e("s_load_dwordx2 s[4:5], s[0:1], 16")
    g.e("s_load_dwordx4 s[8:11], s[0:1], 64")
    g.e("s_load_dwordx2 s[16:17], s[0:1], 104")
    g.e("v_lshrrev_b32 v1, 6, v0")
    g.e("s_and_b32 s3, s2, 7")
    g.e("s_lshr_b32 s41, s2, 3")
    g.e("v_readfirstlane_b32 s40, v1")
    g.e("s_waitcnt lgkmcnt(0)")
    g.e("s_mov_b32 s6, s8")
    g.e("s_mov_b32 s7, s9")
    g.e("s_mov_b32 s8, s10")
    g.e("s_mov_b32 s9, s11")
    g.e("s_cmp_lt_u32 s41, 28")
    g.e("s_cbranch_scc1 L_k2_attn")
    g.e("s_branch L_k2_sp")
    g.label("L_k2_end")
    g.e("s_endpgm")
    gen_attn(g)
    gen_spatial(g)
    g.label("L_k2_spend")
```

```python
from asmlib import *
import k1
from k1 import w_voffsets, tr_bases, xreg, areg, WR, D
import math

QSCALE = 128 ** -0.5 * math.log2(math.e)
STASH = 131072
DSP = int(os.environ.get('DSP', '3')); EB = int(os.environ.get('EB', '14'))
XPRE = int(os.environ.get('XPRE', '4'))
PS = int(os.environ.get('PS', '0'))
NTSP = os.environ.get('NTSP', '')
PF2 = int(os.environ.get('PF2', '0'))
KINS = int(os.environ.get('KINS', '0'))
NTAIL = int(os.environ.get('NTAIL', '0'))
STF2 = os.environ.get('STF2', 'sc1')
PFS = int(os.environ.get('PFS', '54'))
STFX = os.environ.get('STFX', 'sc1'); STFU = os.environ.get('STFU', '')
XSCH = eval(os.environ.get('XSCH', '(4, 8, 12, 16, 28, 34, 40, 46, 56, 62, 68, 74)'))
PF4 = int(os.environ.get('PF4', '0'))
NTWQ = os.environ.get('NTWQ', '')
NPART = 3
VF, VNEG, VL, VT, V16, VLT = 1, 3, 4, 6, 7, 8
NEGM, PR, TMP, OR, FR = 16, 24, 40, 128, 192
ML, FA, FB = 52, 56, 58
def sreg(kt, qb): return 72 + 16 * kt + 4 * qb
def preg(qb, kg): return PR + (qb * 2 + kg) * 4
def qreg(qb, mm): return 64 + 16 * mm + 4 * qb
def oreg(cb, qb): return OR + (cb * 2 + qb) * 4
def freg(j): return FR + j * 4

def merge_streams(main, fill, start=0):
    out = []
    n = len(main) - start
    acc = 0.0
    fill = list(fill)
    per = len(fill) / max(1, n)
    for i, m in enumerate(main):
        out.append(m)
        if i >= start:
            acc += per
            while fill and acc >= 0.999:
                out.append(fill.pop(0)); acc -= 1.0
    return out + fill

def dma4(g, so, first_m0=None, tag=None):
    ops = []
    for j in range(4):
        def op(j=j):
            if j == 0 and first_m0:
                g.e(first_m0); g.e("s_nop 0")
            g.vmem(f"buffer_load_dwordx4 v{V16}, s[28:31], s{so} offen offset:{j * 1024} lds", tag)
        ops.append(op)
    return ops

def next_ops(t):
    return [[f"s_and_b32 s19, s{t}, 3"], ["s_lshl_b32 s19, s19, 15"],
            ["s_xor_b32 s50, s19, 0x10000"], ["s_add_u32 s50, s50, s55"],
            [f"s_add_u32 s49, s{t}, 2"], ["s_lshl_b32 s51, s49, 14"], ["s_add_u32 s51, s51, s54"],
            ["s_cmp_lt_u32 s49, s48", "s_cselect_b32 s51, s51, s54"],
            [f"s_cmp_lt_u32 s{t}, s45", "s_cselect_b32 s49, s41, 0"],
            ["s_lshl_b32 s7, s49, 14"], ["s_add_u32 m0, s50, s7"], ["s_lshl_b32 s49, s49, 24"],
            ["s_add_u32 s7, s51, s49"], [f"s_add_u32 s51, s51, {16 * MB}"]]

def softmax_ops(g):
    ops = []
    I = lambda s: ops.append(lambda s=s: g.e(s))
    T = [TMP + i for i in range(8)]
    k = 0
    for kt in range(4):
        for qb in range(2):
            s = sreg(kt, qb); t = T[(k % 2) * 4:(k % 2) * 4 + 4]; k += 1
            for r in range(4): I(f"v_exp_f32 v{t[r]}, v{s + r}")
            p = preg(qb, kt >> 1) + (kt & 1) * 2
            if kt == 0:
                I(f"v_add_f32 v{VLT + qb}, v{t[0]}, v{t[1]}")
                I(f"PK {p},{t[0]},{t[1]}")
                I(f"v_add_f32 v{VLT + qb}, v{VLT + qb}, v{t[2]}")
                I(f"PK {p + 1},{t[2]},{t[3]}")
                I(f"v_add_f32 v{VLT + qb}, v{VLT + qb}, v{t[3]}")
            else:
                I(f"v_add_f32 v{VLT + qb}, v{VLT + qb}, v{t[0]}")
                I(f"v_add_f32 v{VLT + qb}, v{VLT + qb}, v{t[1]}")
                I(f"PK {p},{t[0]},{t[1]}")
                I(f"v_add_f32 v{VLT + qb}, v{VLT + qb}, v{t[2]}")
                I(f"v_add_f32 v{VLT + qb}, v{VLT + qb}, v{t[3]}")
                I(f"PK {p + 1},{t[2]},{t[3]}")
    return ops

def xgroup(g, regs, op, tmp):
    for sw in ("v_permlane32_swap_b32", "v_permlane16_swap_b32"):
        for i, r in enumerate(regs): g.e(f"v_mov_b32 v{tmp + i}, v{r}")
        g.e("s_nop 1")
        for i, r in enumerate(regs): g.e(f"{sw} v{tmp + i}, v{r}")
        g.e("s_nop 1")
        for i, r in enumerate(regs): g.e(f"{op} v{r}, v{r}, v{tmp + i}")

def rescale(g, first):
    MX = [TMP + 8, TMP + 9]
    for qb in range(2):
        vals = [sreg(kt, qb) + r for kt in range(4) for r in range(4)]
        g.e(f"v_max3_f32 v{MX[qb]}, v{vals[0]}, v{vals[1]}, v{vals[2]}")
        for i in range(3, 15, 2): g.e(f"v_max3_f32 v{MX[qb]}, v{MX[qb]}, v{vals[i]}, v{vals[i + 1]}")
        g.e(f"v_max_f32 v{MX[qb]}, v{MX[qb]}, v{vals[15]}")
    xgroup(g, MX, "v_max_f32", TMP + 10)
    if not first:
        for qb in range(2): g.e(f"v_max_f32 v{MX[qb]}, 0, v{MX[qb]}")
    for kt in range(4):
        for qb in range(2):
            for r in range(4): g.e(f"v_sub_f32 v{sreg(kt, qb) + r}, v{sreg(kt, qb) + r}, v{MX[qb]}")
    for qb in range(2):
        for r in range(4): g.e(f"v_sub_f32 v{NEGM + qb * 4 + r}, v{NEGM + qb * 4 + r}, v{MX[qb]}")
    if not first:
        for qb in range(2): g.e(f"v_exp_f32 v{MX[qb]}, -v{MX[qb]}")
        g.e("s_nop 0")
        for cb in range(8):
            for qb in range(2):
                for r in range(4): g.e(f"v_mul_f32 v{oreg(cb, qb) + r}, v{oreg(cb, qb) + r}, v{MX[qb]}")
        for qb in range(2): g.e(f"v_mul_f32 v{VL + qb}, v{VL + qb}, v{MX[qb]}")

def mask_block(g):
    skip = g.newlabel("nomask"); l1 = g.newlabel("m1"); lf = g.newlabel("mf"); do = g.newlabel("domask")
    g.e("s_add_u32 s49, s52, 2")
    g.e("s_cmp_ge_u32 s49, s48")
    g.e(f"s_cbranch_scc1 {do}")
    g.e("s_sub_u32 s49, s52, s46")
    g.e("s_cmp_lt_u32 s49, 2")
    g.e(f"s_cbranch_scc0 {skip}")
    g.label(do)
    g.e("s_and_b32 s49, s52, 1")
    g.e("s_lshl_b32 s49, s49, 1")
    g.e("s_sub_u32 s49, s42, s49")
    def diag(kt, qb):
        for r in range(4): g.e(f"v_cndmask_b32 v{sreg(kt, qb) + r}, v{VNEG}, v{sreg(kt, qb) + r}, s[{8 + 2 * r}:{9 + 2 * r}]")
    def full(kt, qb):
        for r in range(4): g.e(f"v_mov_b32 v{sreg(kt, qb) + r}, v{VNEG}")
    g.e("s_cmp_ge_i32 s49, 2")
    g.e(f"s_cbranch_scc1 {skip}")
    g.e("s_cmp_eq_i32 s49, 1")
    g.e(f"s_cbranch_scc1 {l1}")
    g.e("s_cmp_lt_i32 s49, 0")
    g.e(f"s_cbranch_scc1 {lf}")
    diag(0, 0); full(1, 0); diag(1, 1); full(2, 0); full(2, 1); full(3, 0); full(3, 1)
    g.e(f"s_branch {skip}")
    g.label(l1)
    diag(2, 0); full(3, 0); diag(3, 1)
    g.e(f"s_branch {skip}")
    g.label(lf)
    for kt in range(4):
        for qb in range(2): full(kt, qb)
    g.label(skip)

def m_phase(g, has_pv, zero, split, post=None, pre=None):
    g.vm = []
    if has_pv: g.e("s_barrier")
    dma = dma4(g, 7) + (dma4(g, 51, "s_add_u32 m0, s50, 16384") if split else [])
    sal = [["s_add_u32 s49, s52, 2"], ["s_cmp_ge_u32 s49, s48", "s_cselect_b32 s4, 0, 4"], ["s_sub_u32 s49, s52, s46"], ["s_min_u32 s4, s4, s49"],
           ["s_cmp_lt_u32 s52, s53", "s_cselect_b32 s47, 1, 2"], ["s_add_u32 s47, s47, s52"]]
    sal2 = next_ops(47)
    if has_pv:
        g.ds = []
        sp = DSP if split else 4
        for j in range(16):
            kg, cb = j >> 3, j & 7
            for qb in range(2):
                g.e(f"{'MZ' if zero and kg == 0 else 'M'} {oreg(cb, qb)},{freg(j)},{preg(qb, kg)}")
                if qb == 0 and j >= 1: g.lds(f"DR {freg(j - 1)},{VF},{(j - 1) * 1024}", ("k", j - 1))
            if dma and j % sp == 0: dma.pop(0)()
            elif sal:
                for t in sal.pop(0): g.e(t)
        g.lds(f"DR {freg(15)},{VF},{15 * 1024}", ("k", 15))
    else:
        sp = 2
    PT = int(os.environ.get('PT', '5'))
    if has_pv and not zero: g.stamp_if(7, 52, PT)
    tail = []
    so = softmax_ops(g)[:NTAIL]
    for b in range(0, NTAIL, 9):
        o = so[b:b + 9]
        tail += [[o[0]], [o[1]], [o[2]], [o[3]], o[4:6], o[6:8], o[8:9]]
    for j in range(16):
        kt, mm = j >> 2, j & 3
        if j == EB:
            if pre: pre()
            g.wait_ds(("k", 15))
            if has_pv and not zero: g.stamp_if(8, 52, PT)
            if has_pv: g.e(f"s_waitcnt vmcnt({8 if split else 4})")
            g.e("s_setprio 2")
            g.e("s_barrier")
        if j == 0: g.wait_ds(("k", 10))
        if j == 5: g.wait_ds(("k", 15))
        for qb in range(2):
            if mm == 0: g.e(f"MC {sreg(kt, qb)},{freg(j)},{qreg(qb, mm)},{NEGM + qb * 4}")
            else: g.e(f"M {sreg(kt, qb)},{freg(j)},{qreg(qb, mm)}")
            if qb == 0 and j >= 1: g.lds(f"DR {freg(j - 1)},{VF},{16384 + (j - 1) * 1024}", "v")
            if j >= EB and tail:
                for op in tail.pop(0): op()
            if not has_pv and j >= EB and dma: dma.pop(0)()
            elif has_pv and qb == 1 and dma and (j + 16) % sp == 0: dma.pop(0)()
            elif qb == 1 and sal:
                for t in sal.pop(0): g.e(t)
            elif not sal and not dma and sal2:
                for t in sal2.pop(0): g.e(t)
    while dma: dma.pop(0)()
    assert not sal
    if post: post()
    for grp in sal2:
        for t in grp: g.e(t)
    g.lds(f"DR {freg(15)},{VF},{16384 + 15 * 1024}", "v")
    g.e("s_setprio 0")
    for w in tail:
        for op in w: op()
    g.vm = []; g.ds = []
    if has_pv:
        g.e("s_cmp_lt_u32 s4, 4")
        g.e("s_cbranch_scc1 L_k2_sgen")
    else:
        g.e("s_branch L_k2_sgen")

def advance(g):
    g.e("s_mov_b32 s52, s47")
    g.e(f"v_add_u32 v{VF}, s19, v{V16}")

def gen_attn(g):
    g.vm = []; g.ds = []
    g.label("L_k2_attn")
    g.e("s_mul_i32 s49, s41, 37")
    g.e("s_lshr_b32 s49, s49, 8")
    g.e("s_mul_i32 s50, s49, 7")
    g.e("s_sub_u32 s44, s41, s50")
    g.e("s_lshl_b32 s49, s49, 3")
    g.e("s_add_u32 s43, s3, s49")
    g.e("s_lshr_b32 s41, s40, 2")
    g.e("s_and_b32 s42, s40, 3")
    g.e("s_sub_u32 s32, 15, s44")
    g.e("s_add_u32 s33, s44, 4")
    g.e("s_cmp_eq_u32 s44, 6")
    g.e("s_cselect_b32 s32, 3, s32")
    g.e("s_cselect_b32 s33, 2, s33")
    g.e("s_lshl_b32 s49, s3, 20")
    g.e("s_add_u32 s60, s6, s49")
    g.e("s_addc_u32 s61, s7, 0")
    g.e(f"s_mov_b32 s62, {MB}")
    g.e("s_mov_b32 s63, 0x20000")
    srd(g, 20, 4, 5, 512 * 8192)
    srd(g, 24, 16, 17, SZ_XN, WS_XN)
    srd(g, 28, 16, 17, 2 * SZ_KV, WS_K)
    srd(g, 36, 16, 17, SZ_CTX, WS_CTX)
    g.e("s_lshl_b32 s55, s42, 12")
    g.e("s_lshl_b32 s54, s43, 19")
    g.e("s_add_u32 s54, s54, s55")
    g.e("s_lshl_b32 s57, s42, 13")
    g.e(f"s_add_u32 s57, s57, {STASH}")
    g.e("v_and_b32 v28, 63, v0")
    g.e(f"v_lshlrev_b32 v{V16}, 4, v28")
    g.e("v_and_b32 v28, 15, v0")
    g.e("v_bfe_u32 v29, v0, 4, 2")
    g.e("v_lshlrev_b32 v29, 2, v29")
    g.e("v_sub_u32 v28, v28, v29")
    for r in range(4): g.e(f"v_cmp_le_i32 s[{8 + 2 * r}:{9 + 2 * r}], {r}, v28")
    g.label("L_k2_round")
    w_voffsets(g, 8192, 1)
    g.e("s_lshl_b32 s18, s43, 8")
    g.e("s_lshl_b32 s49, s42, 18")
    g.e("s_add_u32 s18, s18, s49")
    g.e("s_lshl_b32 s49, s41, 7")
    g.e("s_add_u32 s18, s18, s49")
    g.e("s_lshl_b32 s19, s40, 12")
    g.e("s_cmp_eq_u32 s41, 0")
    g.e("s_cselect_b32 s47, s32, s33")
    g.e("s_lshl_b32 s47, s47, 17")
    g.e("s_lshl_b32 s49, s42, 15")
    g.e("s_add_u32 s47, s47, s49")
    def wdma(s):
        g.e(f"s_add_u32 s51, s18, {s * 128 * 8192}")
        g.e(f"s_add_u32 m0, s19, {s * 32768}")
        g.e("s_nop 0")
        for j in range(4):
            g.vmem(f"buffer_load_dwordx4 v{1 + j}, s[20:23], s51 offen offset:{j * 1024} {NTWQ} lds", ("w", s))
    def xload(m):
        if m % 4 == 0:
            g.e(f"s_add_u32 s6, s47, {m * 1024}")
            g.e(f"s_add_u32 s7, s47, {m * 1024 + 16384}")
        for a in range(2):
            x = xreg(a, m)
            g.vmem(f"buffer_load_dwordx4 v[{x}:{x + 3}], v{V16}, s[24:27], s{6 + a} offen offset:{(m % 4) * 1024}", ("x", m))
    if PROF == 1: g.stamp(6)
    wdma(0)
    for m in range(2): xload(m)
    code_touch(g, 96, 14, "L_k2_sp")
    g.e("s_barrier")
    for m in range(2, 4): xload(m)
    later = {0: lambda: wdma(1), 22: lambda: wdma(2), 50: lambda: wdma(3)}
    def pf_wsp():
        sk = g.newlabel("nopf")
        g.e("s_cmp_eq_u32 s32, 1")
        g.e(f"s_cbranch_scc1 {sk}")
        g.e("s_and_b32 s49, s2, 0xf8")
        g.e("s_add_u32 s49, s49, s40")
        g.e("s_mul_i32 s49, s49, 4736")
        g.e(f"v_lshlrev_b32 v10, 3, v{V16}")
        g.e("v_mov_b32 v12, 0x10000000")
        g.e("v_cmp_gt_u32 vcc, 4736, v10")
        g.e("s_nop 1")
        g.e("v_cndmask_b32 v11, v12, v10, vcc")
        g.e("buffer_load_dword v13, v11, s[60:63], s49 offen")
        if PF4:
            g.e("s_load_dwordx2 s[96:97], s[0:1], 40")
            g.e("s_load_dwordx2 s[100:101], s[0:1], 80")
            g.e("s_lshl_b32 s49, s2, 3")
            g.e("s_add_u32 s49, s49, s40")
            g.e("v_cmp_gt_u32 vcc, 2432, v10")
            g.e("s_mul_i32 s58, s49, 2432")
            g.e("s_lshl_b32 s59, s49, 9")
            g.e("v_cndmask_b32 v11, v12, v10, vcc")
            g.e("v_cmp_gt_u32 vcc, 512, v10")
            g.e("s_waitcnt lgkmcnt(0)")
            g.e(f"s_mov_b32 s98, {4 * MB}")
            g.e("s_mov_b32 s99, 0x20000")
            g.e("buffer_load_dword v13, v11, s[96:99], s58 offen")
            g.e("v_cndmask_b32 v11, v12, v10, vcc")
            g.e("s_mov_b32 s96, s100")
            g.e("s_mov_b32 s97, s101")
            g.e(f"s_mov_b32 s98, {896 * 1024}")
            g.e("buffer_load_dword v13, v11, s[96:99], s59 offen")
        g.label(sk)
    for m, F in zip(range(4, 16), XSCH): later[F] = lambda m=m: xload(m)
    tr_bases(g, 5, 6)
    g.e(f"s_mov_b32 s56, {f32(QSCALE)}")
    g.e("s_lshl_b32 s48, s32, 1")
    g.e("s_add_u32 s48, s48, 2")
    g.e("s_lshl_b32 s45, s33, 1")
    g.e("s_add_u32 s45, s45, 2")
    g.e("s_sub_u32 s53, s45, s41")
    g.e("s_sub_u32 s46, s45, 2")
    g.e("s_cmp_eq_u32 s41, 0")
    g.e("s_cselect_b32 s46, 0x1000, s46")
    g.stamp(1)
    def first_tile(t):
        g.e("s_lshl_b32 s49, s41, 24")
        g.e("s_add_u32 s50, s54, s49")
        if t: g.e("s_add_u32 s50, s50, 16384")
        return dma4(g, 50, f"s_add_u32 m0, s19, {t * 32768}", "kv")
    def fmap(s, f):
        return (f >> 4, (f >> 2) & 3, f & 3) if s == 3 else ((f >> 2) & 1, f >> 3, f & 3)
    def wread(F, half=None):
        s, f = F >> 5, F & 31
        if s >= 4: return
        if f == 0 and half != 1:
            g.wait_vm(("w", s), "kv")
            g.e("s_barrier")
            if s == 2:
                g.e("v_xor_b32 v5, 0x10000, v5")
                g.e("v_xor_b32 v6, 0x10000, v6")
            if s >= 2:
                for op in first_tile(s - 2): op()
        p, ks, cb = fmap(s, f)
        mp = p * 4 + ks
        r = WR + (F % 8) * 4
        for a in (range(2) if half is None else [half]):
            o = (s & 1) * 32768 + mp * 4096 + a * 512 + (cb >> 1) * 256
            g.lds(f"TR {r + 2 * a},{6 if cb & 1 else 5},{o}", ("w", F))
    def qpack(p):
        ops = []
        I = lambda s: ops.append(lambda s=s: g.e(s))
        for a in range(2):
            for mm in range(2):
                x, y = areg(p, 2 * mm, a), areg(p, 2 * mm + 1, a)
                assert x == qreg(a, 2 * p + mm)
                for r in range(4): I(f"v_mul_f32 v{x + r}, s56, v{x + r}")
                for r in range(4): I(f"v_mul_f32 v{y + r}, s56, v{y + r}")
                I(f"PK {x},{x},{x + 1}"); I(f"PK {x + 1},{x + 2},{x + 3}")
                I(f"PK {x + 2},{y},{y + 1}"); I(f"PK {x + 3},{y + 2},{y + 3}")
        return ops
    for F in range(D): wread(F)
    fill = []
    for s in range(4):
        if PROF == 1: g.stamp(7 + s)
        for f in range(32):
            F = s * 32 + f
            p, ks, cb = fmap(s, f)
            m = s * 4 + ks
            if F == 116: fill = qpack(0)
            if p == 0 and cb == 0: g.wait_vm(("x", m))
            g.wait_ds(("w", F))
            r = WR + (F % 8) * 4
            for a in range(2):
                g.e(f"{'MZ' if m == 0 else 'M'} {areg(p, cb, a)},{r},{xreg(a, m)}")
                wread(F + D, a)
                if fill: fill.pop(0)(); fill.pop(0)()
            if F in later: later.pop(F)()
    assert not fill and not later
    g.stamp(2)
    g.e("s_mov_b32 s47, 0")
    for grp in next_ops(47):
        for t in grp: g.e(t)
    advance(g)
    g.vm = []; g.ds = []
    for j in range(16): g.e(f"DR {freg(j)},{VF},{j * 1024}")
    for op in qpack(1): op()
    g.e(f"v_mov_b32 v{VNEG}, {f32(-1e30)}")
    g.e(f"s_mov_b32 s56, {f32(2.0 ** 30)}")
    g.e(f"s_mov_b32 s6, {f32(2.0 ** -30)}")
    for i in range(8): g.e(f"v_mov_b32 v{NEGM + i}, 0")
    g.e(f"v_add_u32 v9, s57, v{V16}")
    g.e("s_waitcnt vmcnt(0) lgkmcnt(0)")
    g.stamp(3)
    la = g.newlabel("qa")
    g.e("s_cmp_eq_u32 s41, 0")
    g.e(f"s_cbranch_scc1 {la}")
    g.e("s_barrier")
    g.label(la)
    def post0():
        if PFS: pf_wsp()
    def pre0():
        sk = g.newlabel("nost")
        g.e("s_cmp_eq_u32 s41, 0")
        g.e(f"s_cbranch_scc0 {sk}")
        for qb in range(2):
            for mm in range(4): g.e(f"DW 9,{qreg(qb, mm)},{(qb * 4 + mm) * 1024}")
        g.label(sk)
    m_phase(g, False, False, False, post0, pre0)
    def s_fast(tag):
        g.label(f"L_k2_s{tag}")
        PT = int(os.environ.get('PT', '5'))
        g.stamp_if(9, 52, PT)
        for op in softmax_ops(g)[NTAIL:]: op()
        g.e(f"v_max_f32 v{VT}, v{VLT}, v{VLT + 1}")
        g.e(f"v_cmp_lt_f32 vcc, s56, v{VT}")
        g.e("s_cbranch_vccnz L_k2_sgen")
        for qb in range(2): g.e(f"v_add_f32 v{VL + qb}, v{VL + qb}, v{VLT + qb}")
        g.stamp_if(10, 52, PT)
        if PROF == 2:
            g.e("s_waitcnt vmcnt(0) lgkmcnt(0)")
            g.stamp_if(11, 52, PT)
        advance(g)
        if tag == "sh": g.e("s_cmp_lt_u32 s52, s45")
        g.e("s_waitcnt lgkmcnt(0)" if tag == "sh" else "s_waitcnt vmcnt(0) lgkmcnt(0)")
    s_fast("sh")
    g.e("s_cbranch_scc0 L_k2_msp")
    g.label("L_k2_msh")
    g.stamp_if(6, 52, int(os.environ.get('PT', '5'))); g.stamp_if(12, 52, int(os.environ.get('PT', '5')) + 1)
    m_phase(g, True, False, False)
    g.e("s_branch L_k2_ssh")
    s_fast("sp")
    g.label("L_k2_msp")
    m_phase(g, True, False, True)
    g.e("s_branch L_k2_ssp")
    g.label("L_k2_mzsh")
    m_phase(g, True, True, False)
    g.e("s_branch L_k2_ssh")
    g.label("L_k2_mzsp")
    m_phase(g, True, True, True)
    g.e("s_branch L_k2_ssp")
    EXP = os.environ.get('ATEXP', '')
    if EXP:
        i0 = g.lines.index("L_k2_ssh:")
        keep = []
        for l in g.lines[i0:]:
            if 'd' in EXP and l.startswith('buffer_load'): continue
            if 'r' in EXP and l.startswith('DR '): continue
            if 'e' in EXP and l.startswith('v_exp'): l = l.replace('v_exp_f32', 'v_mov_b32')
            if 'v' in EXP and (l.startswith('v_exp') or l.startswith('PK') or (l.startswith('v_add_f32 v8') or l.startswith('v_add_f32 v9'))): continue
            if 'b' in EXP and l.startswith('s_cbranch_vccnz'): continue
            keep.append(l)
        g.lines[i0:] = keep
    def ctx_base(blk):
        g.e(f"s_lshl_b32 s49, s{blk}, 3")
        g.e("s_lshl_b32 s35, s42, 1")
        g.e("s_add_u32 s49, s49, s35")
        g.e("s_mul_i32 s49, s49, 159744")
        g.e("s_lshl_b32 s35, s43, 12")
        g.e("s_add_u32 s34, s49, s35")
        g.e("s_add_u32 s35, s34, 159744")
    def pack_store(mm, qb, fl=STF2):
        x, y = oreg(2 * mm, qb), oreg(2 * mm + 1, qb)
        return [f"PK {x},{x},{x + 1}", f"PK {x + 1},{x + 2},{x + 3}", f"PK {x + 2},{y},{y + 1}", f"PK {x + 3},{y + 2},{y + 3}",
                f"buffer_store_dwordx4 v[{x}:{x + 3}], v{V16}, s[36:39], s{34 + qb} offen offset:{mm * 1024} {fl}"]
    g.label("L_k2_sgen")
    def st5(i, val):
        if PROF == 5:
            l = g.newlabel("st"); g.e(f"s_cmp_lg_u32 s52, {val}"); g.e(f"s_cbranch_scc1 {l}"); g.stamp(i); g.label(l)
    st5(4, 0); st5(7, 8); st5(9, 9); st5(11, 11)
    if PROF == 5: g.stamp(13)
    g.e("s_sub_u32 s49, s52, s46")
    g.e("s_cmp_eq_u32 s49, 3")
    g.e("s_cselect_b32 s5, 2, 0")
    g.e("s_cmp_eq_u32 s52, 0")
    g.e("s_cselect_b32 s5, 1, s5")
    g.e("s_cselect_b32 s18, s6, 0")
    g.e("s_cmp_eq_u32 s5, 2")
    g.e("s_cselect_b32 s18, s6, s18")
    mask_block(g)
    ny = g.newlabel("ny"); jy = g.newlabel("jy")
    g.e("s_cmp_eq_u32 s5, 2")
    g.e(f"s_cbranch_scc0 {ny}")
    ctx_base(33)
    so = softmax_ops(g)
    k = 0
    for mm in range(4):
        for qb in range(2):
            for cb in (2 * mm, 2 * mm + 1):
                for r in range(4): g.e(f"v_mul_f32 v{oreg(cb, qb) + r}, v{oreg(cb, qb) + r}, v{FA + qb}")
            for t in pack_store(mm, qb): g.e(t)
            n = 9 if k < 2 else 10
            for op in so[:n]: op()
            so = so[n:]; k += 1
    assert not so
    g.e(f"s_branch {jy}")
    g.label(ny)
    for op in softmax_ops(g): op()
    g.label(jy)
    g.e(f"v_max_f32 v{VT}, v{VLT}, v{VLT + 1}")
    g.e(f"v_min_f32 v{TMP}, v{VLT}, v{VLT + 1}")
    g.e(f"v_cmp_lt_f32 vcc, s56, v{VT}")
    g.e("s_cbranch_vccnz L_k2_slow")
    g.e(f"v_cmp_gt_f32 vcc, s18, v{TMP}")
    g.e("s_cbranch_vccnz L_k2_slow")
    g.label("L_k2_back")
    nf = g.newlabel("nf")
    g.e("s_cmp_eq_u32 s5, 0")
    g.e(f"s_cbranch_scc1 {nf}")
    for qb in range(2): g.e(f"v_mov_b32 v{VL + qb}, 0")
    g.label(nf)
    for qb in range(2): g.e(f"v_add_f32 v{VL + qb}, v{VL + qb}, v{VLT + qb}")
    g.e("s_add_u32 s49, s52, 2")
    g.e("s_cmp_ge_u32 s49, s48")
    g.e("s_cbranch_scc1 L_k2_xlast")
    nl = g.newlabel("nyl")
    g.e("s_sub_u32 s49, s52, s46")
    g.e("s_cmp_eq_u32 s49, 1")
    g.e(f"s_cbranch_scc0 {nl}")
    g.e(f"v_add_u32 v10, s57, v{V16}")
    for qb in range(2):
        for mm in range(4): g.e(f"DR {qreg(qb, mm)},10,{(qb * 4 + mm) * 1024}")
    xgroup(g, [VL, VL + 1], "v_add_f32", TMP + 2)
    for qb in range(2): g.e(f"v_rcp_f32 v{FA + qb}, v{VL + qb}")
    for i in range(8): g.e(f"v_mov_b32 v{NEGM + i}, 0")
    g.label(nl)
    st5(6, 0); st5(8, 8); st5(10, 9); st5(12, 11)
    advance(g)
    g.e("s_cmp_lt_u32 s52, s45")
    g.e("s_cselect_b32 s49, 0, 4")
    g.e("s_add_u32 s5, s5, s49")
    w8 = g.newlabel("w8")
    g.e("s_and_b32 s49, s5, 3")
    g.e(f"s_cbranch_scc1 {w8}")
    g.e("s_waitcnt vmcnt(0)")
    g.label(w8)
    g.e("s_waitcnt vmcnt(8) lgkmcnt(0)")
    g.e("s_cmp_eq_u32 s5, 0")
    g.e("s_cbranch_scc1 L_k2_msh")
    g.e("s_cmp_eq_u32 s5, 4")
    g.e("s_cbranch_scc1 L_k2_msp")
    g.e("s_cmp_eq_u32 s5, 1")
    g.e("s_cbranch_scc1 L_k2_mzsh")
    g.e("s_branch L_k2_mzsp")
    g.label("L_k2_xlast")
    if PROF == 5: g.stamp(14)
    g.e("s_and_b32 s49, s48, 3")
    g.e("s_lshl_b32 s49, s49, 15")
    g.e("s_lshl_b32 s50, s42, 13")
    g.e("s_add_u32 s50, s50, s49")
    g.e(f"v_add_u32 v11, s50, v{V16}")
    g.e(f"v_add_u32 v10, s57, v{V16}")
    g.e("s_xor_b32 s49, s49, 0x10000")
    g.e("s_lshl_b32 s50, s42, 10")
    g.e("s_add_u32 s49, s49, s50")
    g.e(f"v_add_u32 v{VT}, s49, v{V16}")
    xaddr = lambda i: (10 + (i >> 3), (i & 7) * 1024)
    def pvgroup(cb, zero, mid=()):
        mid = list(mid)
        for kg in range(2):
            for qb in range(2):
                g.e(f"{'MZ' if zero and kg == 0 else 'M'} {oreg(cb, qb)},{freg(kg * 8 + cb)},{preg(qb, kg)}")
                n = -(-len(mid) // (4 - (kg * 2 + qb)))
                for _ in range(n): mid.pop(0)()
    g.e("s_cmp_eq_u32 s41, 0")
    g.e("s_cbranch_scc0 L_k2_xlastB")
    g.e(f"v_mov_b32 v{ML}, v{NEGM}")
    g.e(f"v_mov_b32 v{ML + 1}, v{NEGM + 4}")
    g.e(f"v_mov_b32 v{ML + 2}, v{VL}")
    g.e(f"v_mov_b32 v{ML + 3}, v{VL + 1}")
    g.e(f"DW {VT},{ML},0")
    g.e("s_waitcnt vmcnt(0) lgkmcnt(0)")
    g.e("s_barrier")
    dw = lambda i: (lambda: g.e(f"DW {xaddr(i)[0]},{OR + i * 4},{xaddr(i)[1]}"))
    for cb in range(8):
        pvgroup(cb, False, [dw(2 * cb - 6), dw(2 * cb - 5)] if cb >= 3 else [])
    for i in range(10, 12): dw(i)()
    g.e("s_nop 3")
    for i in range(12, 16): dw(i)()
    g.e("s_waitcnt lgkmcnt(0)")
    g.e("s_barrier")
    g.e("s_branch L_k2_rend")
    g.label("L_k2_xlastB")
    g.e(f"DR {ML},{VT},0")
    ctx_base(32)
    NM = TMP
    g.e("s_waitcnt lgkmcnt(0)")
    for qb in range(2): g.e(f"v_min_f32 v{NM + qb}, v{ML + qb}, v{NEGM + 4 * qb}")
    for qb in range(2): g.e(f"v_sub_f32 v{FA + qb}, v{NM + qb}, v{ML + qb}")
    for qb in range(2): g.e(f"v_sub_f32 v{FB + qb}, v{NM + qb}, v{NEGM + 4 * qb}")
    for i in range(4): g.e(f"v_exp_f32 v{FA + i}, v{FA + i}")
    g.e("s_nop 0")
    for qb in range(2): g.e(f"v_mul_f32 v{VL + qb}, v{VL + qb}, v{FB + qb}")
    for qb in range(2): g.e(f"v_fmac_f32 v{VL + qb}, v{ML + 2 + qb}, v{FA + qb}")
    xgroup(g, [VL, VL + 1], "v_add_f32", TMP + 2)
    for qb in range(2): g.e(f"v_rcp_f32 v{VL + qb}, v{VL + qb}")
    g.e("s_nop 0")
    for qb in range(2): g.e(f"v_mul_f32 v{FA + qb}, v{FA + qb}, v{VL + qb}")
    for qb in range(2): g.e(f"v_mul_f32 v{FB + qb}, v{FB + qb}, v{VL + qb}")
    lz = g.newlabel("finz")
    g.e("s_cmp_eq_u32 s5, 0")
    g.e(f"s_cbranch_scc0 {lz}")
    for zero in (False, True):
        if zero: g.label(lz)
        g.ds = []
        for cb in range(4): pvgroup(cb, zero)
        g.e("s_barrier")
        def merge_ops(mm):
            ops = []
            I = lambda t: ops.append(lambda t=t: g.e(t))
            for qb in range(2):
                for cb in (2 * mm, 2 * mm + 1):
                    o = oreg(cb, qb)
                    for r in range(4): I(f"v_mul_f32 v{o + r}, v{o + r}, v{FB + qb}")
                    ops.append(lambda cb=cb, qb=qb: g.wait_ds(("o", cb, qb)))
                    for r in range(4): I(f"v_fmac_f32 v{o + r}, v{freg(qb * 8 + cb) + r}, v{FA + qb}")
                for t in pack_store(mm, qb, STFX): I(t)
            return ops
        xr = lambda cb, qb: (lambda: g.lds(f"DR {freg(qb * 8 + cb)},{xaddr(cb * 2 + qb)[0]},{xaddr(cb * 2 + qb)[1]}", ("o", cb, qb)))
        for cb in range(3): xr(cb, 0)(); xr(cb, 1)()
        m0 = merge_ops(0)
        for cb in range(4, 8):
            mid = [xr(cb - 1, 0), xr(cb - 1, 1)]
            if cb == 6: mid += m0[:len(m0) // 2]
            if cb == 7: mid += m0[len(m0) // 2:]
            pvgroup(cb, zero, mid)
        xr(7, 0)(); xr(7, 1)()
        for op in merge_ops(1) + merge_ops(2) + merge_ops(3): op()
        if not zero: g.e("s_branch L_k2_rend")
    g.label("L_k2_rend")
    g.stamp(5)
    g.e("s_cmp_eq_u32 s32, 3")
    g.e("s_cbranch_scc0 L_k2_aend")
    g.stamp(4)
    g.e("s_mov_b32 s32, 1")
    g.e("s_mov_b32 s33, 0")
    g.e("s_waitcnt vmcnt(0) lgkmcnt(0)")
    g.e("s_barrier")
    g.e("s_branch L_k2_round")
    g.label("L_k2_aend")
    skc = g.newlabel("nocode")
    g.e("s_cmp_eq_u32 s44, 6")
    g.e(f"s_cbranch_scc0 {skc}")
    code_touch(g, 96, 14, "L_all_end", "k3_kernel", False)
    g.label(skc)
    if PF2:
        sk = g.newlabel("nopf")
        g.e("s_cmp_eq_u32 s44, 6")
        g.e(f"s_cbranch_scc0 {sk}")
        g.e("s_cmp_eq_u32 s41, 1")
        g.e(f"s_cbranch_scc0 {sk}")
        g.e("s_load_dwordx2 s[20:21], s[0:1], 40")
        g.e("s_load_dwordx2 s[28:29], s[0:1], 80")
        g.e("s_lshl_b32 s49, s43, 2")
        g.e("s_add_u32 s49, s49, s42")
        g.e(f"v_lshlrev_b32 v10, 3, v{V16}")
        g.e("s_lshl_b32 s50, s49, 15")
        g.e("s_mul_i32 s51, s49, 7168")
        g.e("s_waitcnt lgkmcnt(0)")
        g.e(f"s_mov_b32 s22, {4 * MB}")
        g.e("s_mov_b32 s23, 0x20000")
        g.e(f"s_mov_b32 s30, {896 * 1024}")
        g.e("s_mov_b32 s31, 0x20000")
        for i in range(4):
            g.e(f"buffer_load_dword v{12 + i}, v10, s[20:23], s50 offen")
            g.e("s_add_u32 s50, s50, 8192")
        g.e("buffer_load_dword v11, v10, s[28:31], s51 offen")
        g.label(sk)
    g.stamp_dump(16, 17, 40, 1)
    g.e("s_endpgm")
    g.label("L_k2_slow")
    l1 = g.newlabel("slow1"); l2 = g.newlabel("slow2")
    g.e("s_cmp_eq_u32 s5, 0")
    g.e(f"s_cbranch_scc0 {l1}")
    rescale(g, False)
    g.e(f"s_branch {l2}")
    g.label(l1)
    rescale(g, True)
    g.label(l2)
    for op in softmax_ops(g): op()
    g.e("s_branch L_k2_back")

def gen_spatial(g):
    ACC, AR, BB, Z1R = 144, 116, 84, 24
    ZB, ZS = 98304, 14336
    VWD = 80
    acc = lambda fb, tt: ACC + (fb * 4 + tt) * 4
    g.vm = []; g.ds = []
    g.label("L_k2_sp")
    g.e("s_sub_u32 s44, s41, 28")
    g.e("s_and_b32 s42, s40, 3")
    g.e("s_lshr_b32 s41, s40, 2")
    srd(g, 20, 6, 7, 2048 * 4096)
    srd(g, 24, 16, 17, SZ_Z, WS_Z2)
    g.e("v_and_b32 v28, 63, v0")
    g.e(f"v_lshlrev_b32 v{V16}, 4, v28")
    g.e("v_bfe_u32 v28, v0, 3, 3")
    g.e("v_and_b32 v29, 7, v0")
    g.e("v_lshrrev_b32 v30, 1, v28")
    g.e("v_xor_b32 v29, v29, v30")
    g.e("s_lshl_b32 s49, s3, 8")
    g.e("s_lshl_b32 s50, s40, 5")
    g.e("s_add_u32 s49, s49, s50")
    g.e("v_add_u32 v28, s49, v28")
    g.e("v_lshlrev_b32 v28, 12, v28")
    g.e("v_xor_b32 v30, 4, v29")
    g.e("v_lshl_add_u32 v29, v29, 4, v28")
    g.e("v_lshl_add_u32 v30, v30, 4, v28")
    for j in range(4): g.e(f"v_add_u32 v{VWD + j}, {j * 8 * 4096 - j * 1024}, v{29 + (j & 1)}")
    g.e("s_lshl_b32 s48, s40, 1")
    g.e("s_min_u32 s48, s48, 12")
    g.e("s_mul_i32 s49, s44, 14")
    g.e("s_add_u32 s49, s49, s48")
    g.e("s_lshl_b32 s43, s49, 10")
    g.e("s_mov_b32 s45, 0")
    g.e("s_lshl_b32 s46, s40, 12")
    g.e("s_lshl_b32 s47, s48, 10")
    g.e(f"s_add_u32 s47, s47, {ZB}")
    def wop(b, j):
        if j % 2 == 0:
            g.e(f"s_add_u32 m0, s46, {(b % 3) * 32768}")
            g.e("s_nop 0")
        g.vmem(f"buffer_load_dwordx4 v{VWD + j}, s[20:23], s45 offen offset:{j * 1024} {NTSP} lds", ("w", 2 * b))
        if j == 3: g.e("s_add_u32 s45, s45, 128")
    def zop(st, j):
        if j == 0:
            g.e(f"s_add_u32 m0, s47, {(st % 4) * ZS}")
            g.e("s_nop 0")
        g.vmem(f"buffer_load_dwordx4 v{V16}, s[24:27], s43 offen offset:{j * 1024} lds", ("z", st))
        if j == 1: g.e("s_add_u32 s43, s43, 57344")
    def dma_ops(st):
        b, h = st // 2 + 2, st & 1
        return [lambda: zop(st + 3, 0), lambda: zop(st + 3, 1), lambda: wop(b, 2 * h), lambda: wop(b, 2 * h + 1)]
    zop(0, 0); zop(0, 1)
    for j in range(4): wop(0, j)
    code_touch(g, 96, 14, "L_k2_spend", None, False)
    srd(g, 12, 8, 9, 4096)
    g.e("v_and_b32 v11, 15, v0")
    g.e("v_lshlrev_b32 v11, 1, v11")
    g.e("s_lshl_b32 s49, s3, 9")
    g.e("s_lshl_b32 s50, s42, 7")
    g.e("s_add_u32 s49, s49, s50")
    for tt in range(4): g.vmem(f"buffer_load_ushort v{16 + tt}, v11, s[12:15], s49 offen offset:{tt * 32}", ("w", 0))
    g.e("s_barrier")
    zop(1, 0); zop(1, 1)
    srd(g, 28, 16, 17, 32768, WS_PART + 8 * MB)
    g.e("s_sub_u32 s49, s2, 224")
    g.e("s_lshl_b32 s49, s49, 10")
    g.e("v_lshrrev_b32 v28, 6, v0")
    g.e(f"v_lshl_add_u32 v28, v28, 24, v{V16}")
    for i in range(4): g.e(f"v_mov_b32 v{20 + i}, 0")
    g.e("buffer_store_dwordx4 v[20:23], v28, s[28:31], s49 offen")
    srd(g, 28, 16, 17, SZ_Z, WS_Z1)
    srd(g, 36, 16, 17, SZ_CTX, WS_CTX)
    g.e("s_mul_i32 s49, s41, 7168")
    g.e(f"s_add_u32 s49, s49, {ZB}")
    g.e(f"v_add_u32 v4, s49, v{V16}")
    g.e("v_and_b32 v28, 15, v0")
    g.e("v_bfe_u32 v29, v0, 4, 2")
    g.e("v_lshrrev_b32 v30, 1, v28")
    g.e("v_xor_b32 v29, v29, v30")
    g.e("v_lshlrev_b32 v29, 4, v29")
    g.e("v_lshl_add_u32 v29, v28, 7, v29")
    g.e("s_lshl_b32 s49, s42, 13")
    g.e("v_add_u32 v1, s49, v29")
    g.e("v_xor_b32 v2, 64, v1")
    g.e("v_add_u32 v5, 0x10000, v1")
    g.e("v_add_u32 v6, 0x10000, v2")
    def aread(st, fb): g.lds(f"DR {AR + fb * 4},4,{(st % 4) * ZS + fb * 1024}", ("a", st, fb))
    def bread(st, tt):
        sl = (st // 2) % 3
        g.lds(f"DR {BB + (st & 1) * 16 + tt * 4},{(5 if sl == 2 else 1) + (st & 1)},{(sl & 1) * 32768 + tt * 2048}", ("b", st))
    SCH = {(3, 0): ("a", 0), (3, 1): ("b", 0), (3, 2): ("b", 1), (4, 0): ("b", 2), (4, 1): ("b", 3), (4, 2): ("a", 1), (5, 0): ("a", 2), (6, 0): ("a", 3)}
    rd = lambda st, k: (aread if k[0] == "a" else bread)(st, k[1])
    g.wait_vm(("z", 0), ("w", 0))
    g.e("s_barrier")
    for key in sorted(SCH): rd(0, SCH[key])
    for tt in range(4):
        for r in range(4): g.e(f"v_lshlrev_b32 v{24 + tt * 4 + r}, 16, v{16 + tt}")
    g.e("s_mov_b32 s52, 0")
    g.stamp(1)
    def step(st, extra=(), dma=4, nxt=True, init=False):
        extra = list(extra)
        pend = []
        for fb in range(7):
            g.wait_ds(("a", st, fb), ("b", st))
            for tt in range(4):
                if init: g.e(f"MC {acc(fb, tt)},{AR + fb * 4},{BB + (st & 1) * 16 + tt * 4},{24 + tt * 4}")
                else: g.e(f"M {acc(fb, tt)},{AR + fb * 4},{BB + (st & 1) * 16 + tt * 4}")
                if tt == 0 and fb < 3: aread(st, fb + 4)
                if nxt:
                    if (fb, tt) == (3, 0):
                        g.wait_vm(("z", st + 1), ("w", st + 1))
                        g.e("s_barrier")
                        pend = dma_ops(st)[:dma]
                    if (fb, tt) in SCH: rd(st + 1, SCH[(fb, tt)])
                if tt == 3 and pend: pend.pop(0)()
                if tt in (1, 3) and extra and fb < 3:
                    extra.pop(0)()
        assert not pend and not extra
    step(0, [lambda j=j: wop(1, j) for j in range(4)] + [lambda: zop(2, 0), lambda: zop(2, 1)], init=True)
    for st in range(1, 4): step(st)
    g.label("L_k2_sploop")
    vm0, ds0 = list(g.vm), list(g.ds)
    for st in range(4, 16): step(st)
    ren = lambda t: (t[0], t[1] - 12) + t[2:]
    g.vm = [ren(t) for t in g.vm]; g.ds = [ren(t) for t in g.ds]
    assert g.vm == vm0 and g.ds == ds0, (g.vm, vm0, g.ds, ds0)
    g.e("s_add_u32 s52, s52, 1")
    g.e("s_cmp_lt_u32 s52, 4")
    g.e("s_cbranch_scc1 L_k2_sploop")
    g.stamp(2)
    g.e("s_lshl_b32 s49, s3, 4")
    g.e("s_lshl_b32 s50, s42, 2")
    g.e("s_add_u32 s49, s49, s50")
    g.e("s_mul_i32 s54, s49, 28672")
    g.e("s_mul_i32 s55, s49, 159744")
    g.e(f"s_add_u32 s55, s55, {128 * 1024}")
    for tt in range(4):
        g.e(f"v_add_u32 v{16 + tt}, {tt * 28672}, v{V16}")
        g.e(f"v_add_u32 v{20 + tt}, {tt * 159744}, v{V16}")
    g.e("s_mul_i32 s56, s44, 14")
    g.e("s_mul_i32 s48, s41, 7")
    g.e("s_add_u32 s56, s56, s48")
    g.e("s_lshr_b32 s56, s56, 1")
    g.e("s_lshl_b32 s56, s56, 10")
    g.e("s_add_u32 s54, s54, s56")
    g.e("s_add_u32 s55, s55, s56")
    def z1load(u):
        for tt in range(4):
            r = Z1R + (u * 4 + tt) * 4
            g.vmem(f"buffer_load_dwordx4 v[{r}:{r + 3}], v{16 + tt}, s[28:31], s54 offen offset:{u * 1024}", ("z1", u))
    for st in range(4, 16):
        ex = {8: 0, 10: 1, 12: 2, 15: 3}
        step(st, [lambda u=ex[st]: z1load(u)] if st in ex else [], dma=4 if st < 12 else (2 if st == 12 else 0), nxt=st < 15)
    g.stamp(4)
    g.e("s_nop 4")
    g.e("s_mov_b32 s53, 0xffff0000")
    vm_sv = list(g.vm)
    lode = g.newlabel("spodd"); lend = g.newlabel("spend")
    g.e("s_cmp_eq_u32 s41, 1")
    g.e(f"s_cbranch_scc1 {lode}")
    for fh in range(2):
        g.vm = list(vm_sv)
        if fh: g.label(lode)
        for u in range(4):
            halves = [(h, 2 * u + h - fh) for h in range(2) if 0 <= 2 * u + h - fh < 7]
            g.wait_vm(("z1", u))
            for tt in range(4):
                z = Z1R + (u * 4 + tt) * 4
                for h, fb in halves:
                    a = acc(fb, tt); t = 8 if h else 1
                    g.e(f"v_lshlrev_b32 v{t}, 16, v{z + 2 * h}")
                    g.e(f"v_and_b32 v{t + 1}, s53, v{z + 2 * h}")
                    g.e(f"v_lshlrev_b32 v{t + 2}, 16, v{z + 2 * h + 1}")
                    g.e(f"v_and_b32 v{t + 3}, s53, v{z + 2 * h + 1}")
                    for r in range(4): g.e(f"v_mul_f32 v{a + r}, v{a + r}, v{t + r}")
                    g.e(f"PK {z + 2 * h},{a},{a + 1}"); g.e(f"PK {z + 2 * h + 1},{a + 2},{a + 3}")
                if len(halves) == 2:
                    g.vmem(f"buffer_store_dwordx4 v[{z}:{z + 3}], v{20 + tt}, s[36:39], s55 offen offset:{u * 1024} {STFU}", "st")
                else:
                    h = halves[0][0]
                    g.vmem(f"buffer_store_dwordx2 v[{z + 2 * h}:{z + 2 * h + 1}], v{20 + tt}, s[36:39], s55 offen offset:{u * 1024 + 8 * h} {STFU}", "st")
        if fh == 0: g.e(f"s_branch {lend}")
    g.label(lend)
    g.stamp(3)
    g.stamp_dump(16, 17, 40, 1)
    g.e("s_endpgm")

def gen_k2(g):
    g.e(".p2align 8")
    g.e(".type k2_kernel,@function")
    g.label("k2_kernel")
    g.e("s_cmp_ge_u32 s2, 256")
    g.e("s_cbranch_scc1 L_k2_end")
    g.stamp(0)
    if PROF: g.e("s_memrealtime s[94:95]")
    g.e("s_load_dwordx2 s[4:5], s[0:1], 16")
    g.e("s_load_dwordx4 s[8:11], s[0:1], 64")
    g.e("s_load_dwordx2 s[16:17], s[0:1], 104")
    g.e("v_lshrrev_b32 v1, 6, v0")
    g.e("s_and_b32 s3, s2, 7")
    g.e("s_lshr_b32 s41, s2, 3")
    g.e("v_readfirstlane_b32 s40, v1")
    g.e("s_waitcnt lgkmcnt(0)")
    g.e("s_mov_b32 s6, s8")
    g.e("s_mov_b32 s7, s9")
    g.e("s_mov_b32 s8, s10")
    g.e("s_mov_b32 s9, s11")
    g.e("s_cmp_lt_u32 s41, 28")
    g.e("s_cbranch_scc1 L_k2_attn")
    g.e("s_branch L_k2_sp")
    g.label("L_k2_end")
    g.e("s_endpgm")
    gen_attn(g)
    gen_spatial(g)
    g.label("L_k2_spend")
```

```python
from asmlib import *
from k1 import tr_bases

LDS = 163840
NVGPR = 128
ACC = 32
AF = 64
WF = 96
NS = 39
FUSE = int(os.environ.get('FUSE', '1'))
PD = int(os.environ.get('PD', '8'))
STP = os.environ.get('STP', 'sc1')

def gen_k3(g):
    g.vm = []; g.ds = []
    g.e(".p2align 8")
    g.e(".type k3_kernel,@function")
    g.label("k3_kernel")
    g.e("s_cmp_ge_u32 s2, 256")
    g.e("s_cbranch_scc1 L_k3_end")
    g.stamp(0)
    if PROF: g.e("s_memrealtime s[94:95]")
    g.e("s_load_dwordx2 s[6:7], s[0:1], 40")
    g.e("s_load_dwordx4 s[8:11], s[0:1], 80")
    g.e("s_load_dwordx2 s[4:5], s[0:1], 0")
    g.e("s_load_dwordx2 s[16:17], s[0:1], 104")
    g.e("v_lshrrev_b32 v1, 6, v0")
    g.e("s_bfe_u32 s43, s2, 0x20001")
    g.e("s_and_b32 s42, s2, 1")
    g.e("v_readfirstlane_b32 s40, v1")
    g.e("s_lshl_b32 s42, s42, 3")
    g.e("s_lshr_b32 s49, s2, 5")
    g.e("s_add_u32 s42, s42, s49")
    g.e("s_bfe_u32 s41, s2, 0x20003")
    g.e("v_bfe_u32 v28, v0, 5, 1")
    g.e("v_bfe_u32 v29, v0, 2, 2")
    g.e("v_lshl_add_u32 v28, v28, 4, v29")
    g.e("v_bfe_u32 v29, v0, 6, 2")
    g.e("v_lshl_add_u32 v28, v29, 2, v28")
    g.e("v_lshlrev_b32 v28, 10, v28")
    g.e("v_bfe_u32 v30, v0, 4, 1")
    g.e("v_lshl_add_u32 v28, v30, 6, v28")
    g.e("v_lshrrev_b32 v30, 8, v0")
    g.e("v_lshl_add_u32 v28, v30, 7, v28")
    g.e("v_and_b32 v29, 1, v29")
    g.e("v_lshlrev_b32 v29, 1, v29")
    g.e("v_and_b32 v30, 3, v0")
    g.e("v_xor_b32 v29, v29, v30")
    g.e("v_lshl_add_u32 v1, v29, 4, v28")
    g.e("v_and_b32 v28, 63, v0")
    g.e("v_lshlrev_b32 v7, 4, v28")
    g.e("s_lshl_b32 s46, s40, 10")
    g.e("s_lshl_b32 s49, s42, 3")
    g.e("s_add_u32 s49, s49, s40")
    g.e("s_mul_i32 s47, s49, 159744")
    g.e("s_lshl_b32 s49, s43, 15")
    g.e("s_add_u32 s44, s47, s49")
    g.e("s_mul_i32 s49, s43, 7168")
    g.e("s_add_u32 s45, s47, s49")
    g.e(f"s_add_u32 s45, s45, {128 * 1024}")
    g.e("s_lshl_b32 s49, s41, 8")
    g.e("s_lshl_b32 s52, s43, 20")
    g.e("s_add_u32 s52, s52, s49")
    g.e(f"s_mul_i32 s53, s43, {7 * 32768}")
    g.e("s_add_u32 s53, s53, s49")
    g.e("s_waitcnt lgkmcnt(0)")
    srd(g, 20, 6, 7, 4096 * 1024)
    srd(g, 24, 8, 9, 896 * 1024)
    srd(g, 28, 16, 17, SZ_CTX, WS_CTX)
    def dma_ops(t):
        if t >= NS: return []
        u = t >= 32; tt = t - 32 if u else t
        def a():
            g.e(f"s_add_u32 m0, s46, {(t % 10) * 16384}")
            g.e(f"s_add_u32 s49, s{45 if u else 44}, {tt * 1024}")
            g.vmem("buffer_load_dwordx4 v7, s[28:31], s49 offen lds", t // 2)
        def w():
            g.e(f"s_add_u32 m0, s46, {(t % 10) * 16384 + 8192}")
            g.e(f"s_add_u32 s49, s{53 if u else 52}, {tt * 32768}")
            g.vmem(f"buffer_load_dwordx4 v1, s[{24 if u else 20}:{27 if u else 23}], s49 offen lds", t // 2)
        return [a, w]
    for t in range(2):
        for op in dma_ops(t): op()
    code_touch(g, 60, 20, "L_all_end")
    g.e("s_barrier")
    for t in range(2, 4):
        for op in dma_ops(t): op()
    srd(g, 32, 16, 17, 8 * MB + 32768, WS_PART)
    if FUSE:
        srd(g, 12, 4, 5, 2 * MB)
        srd(g, 36, 10, 11, 2 * MB)
        g.e("s_lshl_b32 s49, s42, 2")
        g.e("s_add_u32 s49, s49, s41")
        g.e("s_lshl_b32 s56, s49, 9")
        g.e(f"s_add_u32 s56, s56, {8 * MB}")
        g.e("s_lshl_b32 s57, s43, 7")
        g.e("s_add_u32 s57, s57, s56")
        g.e("s_lshl_b32 s49, s49, 15")
        g.e("s_lshl_b32 s50, s40, 12")
        g.e("s_add_u32 s49, s49, s50")
        g.e("s_lshl_b32 s50, s43, 21")
        g.e("s_add_u32 s54, s49, s50")
        g.e("s_lshl_b32 s50, s43, 10")
        g.e("s_add_u32 s55, s49, s50")
        g.e("v_lshlrev_b32 v22, 20, v7")
        g.e("v_lshlrev_b32 v23, 3, v7")
        g.e("v_bfe_u32 v24, v0, 2, 4")
        g.e("v_lshl_add_u32 v23, v24, 24, v23")
        g.e("v_and_b32 v19, 15, v0")
        g.e("v_lshlrev_b32 v19, 10, v19")
        g.e("v_bfe_u32 v24, v0, 4, 1")
        g.e("v_lshl_add_u32 v19, v24, 5, v19")
        g.e("v_bfe_u32 v24, v0, 5, 1")
        g.e("v_lshl_add_u32 v19, v24, 4, v19")
        g.e("s_lshl_b32 s48, s42, 17")
        g.e("s_lshr_b32 s49, s40, 2")
        g.e("s_lshl_b32 s49, s49, 16")
        g.e("s_add_u32 s48, s48, s49")
        g.e("s_lshl_b32 s49, s43, 14")
        g.e("s_add_u32 s48, s48, s49")
        g.e("s_lshl_b32 s49, s41, 8")
        g.e("s_add_u32 s48, s48, s49")
        g.e("s_and_b32 s49, s40, 3")
        g.e("s_lshl_b32 s49, s49, 6")
        g.e("s_add_u32 s48, s48, s49")
    tr_bases(g, 8, 9)
    g.e("s_bfe_u32 s49, s40, 0x10001")
    g.e("s_lshl_b32 s49, s49, 12")
    g.e("s_and_b32 s50, s40, 1")
    g.e("s_lshl_b32 s50, s50, 8")
    g.e("s_add_u32 s49, s49, s50")
    g.e("s_add_u32 s49, s49, 8192")
    g.e("v_add_u32 v8, s49, v8")
    g.e("v_add_u32 v9, s49, v9")
    g.e("s_lshr_b32 s49, s40, 2")
    g.e("s_lshl_b32 s49, s49, 12")
    g.e("v_add_u32 v10, s49, v7")
    for k in (1, 2):
        for i in range(3): g.e(f"v_add_u32 v{8 + 3 * k + i}, {k * 0x10000}, v{8 + i}")
    g.stamp(1)
    pend = []
    def reads(t):
        if t >= NS: return []
        sl = t % 10; b = 8 + 3 * (sl >> 2); o = (sl & 3) * 16384
        ops = []
        if t % 2 == 0:
            def sync():
                assert not pend
                g.wait_vm(t // 2)
                g.e("s_barrier")
                pend.extend(dma_ops(t + PD) + dma_ops(t + PD + 1))
            ops.append(sync)
        rd = []
        for cb in range(2):
            for a in range(2):
                rd.append(lambda cb=cb, a=a: g.lds(f"TR {WF + (t & 1) * 8 + cb * 4 + 2 * a},{b + cb},{o + a * 512}", ("r", t)))
        dr = [lambda rt=rt: g.lds(f"DR {AF + (t & 1) * 16 + rt * 4},{b + 2},{o + rt * 1024}", ("r", t)) for rt in range(4)]
        return ops + rd[:2] + dr + rd[2:]
    ramp = [op for t in range(4, PD) for op in dma_ops(t)]
    for op in reads(0): op()
    ramp += pend; del pend[:]
    for t in range(NS):
        nx = reads(t + 1)
        g.wait_ds(("r", t))
        k = 0
        for cb in range(2):
            for rt in range(4):
                g.e(f"{'MZ' if t == 0 else 'M'} {ACC + (cb * 4 + rt) * 4},{WF + (t & 1) * 8 + cb * 4},{AF + (t & 1) * 16 + rt * 4}")
                n = 2 if k < 4 else 1
                for _ in range(n):
                    if nx: nx.pop(0)()
                if ramp:
                    ramp.pop(0)()
                    if t == 0 and k >= 4 and ramp: ramp.pop(0)()
                elif k >= 5 and k != 6 and pend: pend.pop(0)()
                k += 1
        assert not nx
        if FUSE and t == 32: g.vmem("buffer_load_dwordx4 v[112:115], v19, s[12:15], s48 offen", "xx")
        if t in (0, 9, 19, 29): g.stamp({0: 2, 9: 3, 19: 4, 29: 5}[t])
    g.stamp(6)
    if not FUSE:
        g.e("s_lshl_b32 s49, s43, 21")
        g.e("s_lshl_b32 s50, s42, 17")
        g.e("s_add_u32 s49, s49, s50")
        g.e("s_lshl_b32 s50, s41, 15")
        g.e("s_add_u32 s49, s49, s50")
        g.e("s_lshl_b32 s50, s40, 12")
        g.e("s_add_u32 s49, s49, s50")
        g.e("s_nop 4")
        for rt in range(4):
            x, y = ACC + rt * 4, ACC + (4 + rt) * 4
            g.e(f"PK {x},{x},{x + 1}"); g.e(f"PK {x + 1},{x + 2},{x + 3}")
            g.e(f"PK {x + 2},{y},{y + 1}"); g.e(f"PK {x + 3},{y + 2},{y + 3}")
        g.e("s_nop 1")
        for rt in range(4):
            x = ACC + rt * 4
            g.e(f"v_permlane16_swap_b32 v{x}, v{x + 2}")
            g.e(f"v_permlane16_swap_b32 v{x + 1}, v{x + 3}")
            g.e(f"buffer_store_dwordx4 v[{x}:{x + 3}], v7, s[32:35], s49 offen offset:{rt * 1024} {STP}")
    else:
        g.e("s_nop 4")
        for rt in range(4):
            x, y = ACC + rt * 4, ACC + (4 + rt) * 4
            d = AF + rt * 4
            g.e(f"PK {d},{x},{x + 1}"); g.e(f"PK {d + 1},{x + 2},{x + 3}")
            g.e(f"PK {d + 2},{y},{y + 1}"); g.e(f"PK {d + 3},{y + 2},{y + 3}")
            sk = g.newlabel("own")
            g.e(f"s_cmp_eq_u32 s43, {rt}")
            g.e(f"s_cbranch_scc1 {sk}")
            g.e(f"buffer_store_dwordx4 v[{d}:{d + 3}], v7, s[32:35], s54 offen offset:{rt * 1024} sc1")
            g.label(sk)
        for rt in range(1, 4):
            sk = g.newlabel("mv")
            g.e(f"s_cmp_lg_u32 s43, {rt}")
            g.e(f"s_cbranch_scc1 {sk}")
            for cb in range(2):
                for r in range(4): g.e(f"v_mov_b32 v{ACC + cb * 16 + r}, v{ACC + (cb * 4 + rt) * 4 + r}")
            g.label(sk)
        g.e("v_mov_b32 v21, 1")
        g.e("s_waitcnt vmcnt(0)")
        g.e("s_barrier")
        g.stamp(7)
        spin = g.newlabel("spin"); done = g.newlabel("done")
        g.e("s_cmp_lg_u32 s40, 0")
        g.e(f"s_cbranch_scc1 {done}")
        g.e("buffer_store_dword v21, v22, s[32:35], s57 offen sc1")
        g.label(spin)
        g.e("buffer_load_dword v24, v23, s[32:35], s56 offen sc1")
        g.e("s_waitcnt vmcnt(0)")
        g.e("v_cmp_eq_u32 vcc, 1, v24")
        g.e("s_nop 1")
        g.e("s_and_b32 s49, vcc_lo, 15")
        g.e("s_cmp_eq_u32 s49, 15")
        g.e(f"s_cbranch_scc1 {done}")
        g.e("s_sleep 2")
        g.e(f"s_branch {spin}")
        g.label(done)
        g.e("s_barrier")
        g.stamp(8)
        for i in range(3):
            g.e(f"s_add_u32 s49, s43, {i + 1}")
            g.e("s_and_b32 s49, s49, 3")
            g.e("s_lshl_b32 s49, s49, 21")
            g.e("s_add_u32 s49, s49, s55")
            g.e(f"buffer_load_dwordx4 v[{AF + 4 * i}:{AF + 4 * i + 3}], v7, s[32:35], s49 offen sc1")
        A8 = [ACC + r for r in range(4)] + [ACC + 16 + r for r in range(4)]
        g.e("s_mov_b32 s50, 0xffff0000")
        for i in range(3):
            g.e(f"s_waitcnt vmcnt({2 - i})")
            for r in range(4):
                g.e(f"v_lshlrev_b32 v24, 16, v{AF + 4 * i + r}")
                g.e(f"v_and_b32 v25, s50, v{AF + 4 * i + r}")
                g.e(f"v_add_f32 v{A8[2 * r]}, v{A8[2 * r]}, v24")
                g.e(f"v_add_f32 v{A8[2 * r + 1]}, v{A8[2 * r + 1]}, v25")
        g.e("s_nop 1")
        for r in range(4): g.e(f"v_permlane16_swap_b32 v{A8[r]}, v{A8[4 + r]}")
        g.e("s_nop 1")
        for r in range(4):
            g.e(f"v_lshlrev_b32 v24, 16, v{112 + r}")
            g.e(f"v_and_b32 v25, s50, v{112 + r}")
            g.e(f"v_add_f32 v{A8[2 * r]}, v{A8[2 * r]}, v24")
            g.e(f"v_add_f32 v{A8[2 * r + 1]}, v{A8[2 * r + 1]}, v25")
        for r in range(4): g.e(f"PK {28 + r},{A8[2 * r]},{A8[2 * r + 1]}")
        g.e("buffer_store_dwordx4 v[28:31], v19, s[36:39], s48 offen")
    g.stamp_dump(16, 17, 40, 2)
    g.label("L_k3_end")
    g.e("s_endpgm")
    if FUSE: g.label("L_all_end")

def gen_k4(g):
    g.e(".p2align 8")
    g.e(".type k4_kernel,@function")
    g.label("k4_kernel")
    g.e("s_cmp_ge_u32 s2, 256")
    g.e("s_cbranch_scc1 L_k4_end")
    g.e("s_load_dwordx2 s[4:5], s[0:1], 0")
    g.e("s_load_dwordx2 s[6:7], s[0:1], 88")
    g.e("s_load_dwordx2 s[16:17], s[0:1], 104")
    g.e("v_lshlrev_b32 v1, 4, v0")
    g.e("s_lshl_b32 s20, s2, 13")
    g.e("v_lshrrev_b32 v2, 6, v0")
    g.e("v_lshl_add_u32 v2, s2, 3, v2")
    g.e("v_lshrrev_b32 v3, 7, v2")
    g.e("v_lshlrev_b32 v3, 7, v3")
    g.e("v_bfe_u32 v4, v2, 4, 1")
    g.e("v_lshl_add_u32 v3, v4, 6, v3")
    g.e("v_and_b32 v4, 3, v2")
    g.e("v_lshl_add_u32 v3, v4, 4, v3")
    g.e("v_and_b32 v4, 15, v0")
    g.e("v_add_u32 v3, v3, v4")
    g.e("v_lshlrev_b32 v3, 10, v3")
    g.e("v_bfe_u32 v4, v2, 5, 2")
    g.e("v_lshl_add_u32 v3, v4, 8, v3")
    g.e("v_bfe_u32 v4, v2, 2, 2")
    g.e("v_lshl_add_u32 v3, v4, 6, v3")
    g.e("v_bfe_u32 v4, v0, 4, 1")
    g.e("v_lshl_add_u32 v3, v4, 5, v3")
    g.e("v_bfe_u32 v4, v0, 5, 1")
    g.e("v_lshl_add_u32 v3, v4, 4, v3")
    g.e("s_waitcnt lgkmcnt(0)")
    srd(g, 8, 16, 17, 8 * MB, WS_PART)
    srd(g, 12, 4, 5, 2 * MB)
    for q in range(4):
        g.e(f"buffer_load_dwordx4 v[{8 + 4 * q}:{11 + 4 * q}], v1, s[8:11], s20 offen")
        g.e(f"s_add_u32 s20, s20, {2 * MB}")
    g.e("buffer_load_dwordx4 v[24:27], v3, s[12:15], 0 offen")
    srd(g, 24, 6, 7, 2 * MB)
    g.e("s_mov_b32 s21, 0xffff0000")
    for q in range(5):
        g.e(f"s_waitcnt vmcnt({4 - q})")
        for i in range(4):
            r = 8 + 4 * q + i
            if q == 0:
                g.e(f"v_lshlrev_b32 v{28 + 2 * i}, 16, v{r}")
                g.e(f"v_and_b32 v{29 + 2 * i}, s21, v{r}")
            else:
                g.e(f"v_lshlrev_b32 v4, 16, v{r}")
                g.e(f"v_and_b32 v5, s21, v{r}")
                g.e(f"v_add_f32 v{28 + 2 * i}, v{28 + 2 * i}, v4")
                g.e(f"v_add_f32 v{29 + 2 * i}, v{29 + 2 * i}, v5")
    for i in range(4): g.e(f"PK {8 + i},{28 + 2 * i},{29 + 2 * i}")
    g.e("buffer_store_dwordx4 v[8:11], v3, s[24:27], 0 offen")
    g.label("L_k4_end")
    g.e("s_endpgm")
    g.label("L_all_end")
```

```python
import struct, os
PROF = int(os.environ.get('PROF', '0'))

def f32(x):
    return struct.unpack('<I', struct.pack('<f', x))[0]

class G:
    def __init__(self):
        self.lines = []
        self.vm = []
        self.ds = []
        self.uid = 0
    def e(self, s):
        self.lines.append(s)
    def label(self, name):
        self.lines.append(name + ":")
    def newlabel(self, base):
        self.uid += 1
        return f"L_{base}_{self.uid}"
    def vmem(self, s, tag=None):
        self.lines.append(s); self.vm.append(tag)
    def lds(self, s, tag=None):
        self.lines.append(s); self.ds.append(tag)
    def _need(self, lst, tags):
        idx = -1
        for i, t in enumerate(lst):
            if t in tags: idx = i
        return idx
    def wait_vm(self, *tags):
        idx = self._need(self.vm, tags)
        if idx < 0: return
        n = min(len(self.vm) - 1 - idx, 63)
        self.lines.append(f"s_waitcnt vmcnt({n})")
        self.vm = self.vm[len(self.vm) - n:] if n else []
    def wait_ds(self, *tags):
        idx = self._need(self.ds, tags)
        if idx < 0: return
        n = min(len(self.ds) - 1 - idx, 15)
        self.lines.append(f"s_waitcnt lgkmcnt({n})")
        self.ds = self.ds[len(self.ds) - n:] if n else []
    def wait_all(self, vm=True, ds=True):
        if vm and ds: self.lines.append("s_waitcnt vmcnt(0) lgkmcnt(0)")
        elif vm: self.lines.append("s_waitcnt vmcnt(0)")
        elif ds: self.lines.append("s_waitcnt lgkmcnt(0)")
        if vm: self.vm = []
        if ds: self.ds = []
    def stamp(self, i):
        if PROF == 4 and i > 6: return
        if PROF: self.lines.append(f"s_memtime s[{64 + 2 * i}:{65 + 2 * i}]")
        if PROF == 4 and 1 <= i <= 6: self.lines.append(f"s_memrealtime s[{64 + 2 * (i + 7)}:{65 + 2 * (i + 7)}]")
    def stamp_if(self, i, sreg, val):
        if PROF != 2: return
        l = self.newlabel("st")
        self.e(f"s_cmp_lg_u32 s{sreg}, {val}")
        self.e(f"s_cbranch_scc1 {l}")
        self.stamp(i)
        self.label(l)
    def stamp_dump(self, wslo, wshi, swave, kidx, n=16):
        if not PROF: return
        e = self.e
        e("s_waitcnt vmcnt(0) lgkmcnt(0)")
        e("s_memrealtime s[98:99]")
        e("s_memtime s[96:97]")
        e("s_waitcnt lgkmcnt(0)")
        e(f"s_add_u32 s60, s{wslo}, {WS_DBG + kidx * MB}")
        e(f"s_addc_u32 s61, s{wshi}, 0")
        e(f"s_mov_b32 s62, {MB}")
        e("s_mov_b32 s63, 0x20000")
        e("s_lshl_b32 s59, s2, 10")
        e(f"s_lshl_b32 s58, s{swave}, 7")
        e("s_add_u32 s59, s59, s58")
        e("v_and_b32 v1, 63, v0") if False else None
        e("v_mbcnt_lo_u32_b32 v1, -1, 0")
        e("v_mbcnt_hi_u32_b32 v1, -1, v1")
        e("v_lshlrev_b32 v1, 24, v1")
        for i in range(n + 2):
            e(f"v_mov_b32 v2, s{64 + 2 * i}")
            e(f"buffer_store_dword v2, v1, s[60:63], s59 offen offset:{4 * i}")
            e("s_nop 1")
    def text(self):
        return "\n".join(self.lines) + "\n"

MACROS = r"""
.macro M d,a,b
v_mfma_f32_16x16x32_bf16 v[\d:\d+3],v[\a:\a+3],v[\b:\b+3],v[\d:\d+3]
.endm
.macro MZ d,a,b
v_mfma_f32_16x16x32_bf16 v[\d:\d+3],v[\a:\a+3],v[\b:\b+3],0
.endm
.macro MC d,a,b,c
v_mfma_f32_16x16x32_bf16 v[\d:\d+3],v[\a:\a+3],v[\b:\b+3],v[\c:\c+3]
.endm
.macro TR d,a,o
ds_read_b64_tr_b16 v[\d:\d+1],v\a offset:\o
.endm
.macro DR d,a,o
ds_read_b128 v[\d:\d+3],v\a offset:\o
.endm
.macro DW a,d,o
ds_write_b128 v\a,v[\d:\d+3] offset:\o
.endm
.macro PK d,a,b
v_cvt_pk_bf16_f32 v\d,v\a,v\b
.endm
"""

def kd(name, vgpr, sgpr=102):
    acc = (vgpr + 3) // 4 * 4
    return f"""
.amdhsa_kernel {name}
  .amdhsa_next_free_vgpr {vgpr}
  .amdhsa_next_free_sgpr {sgpr}
  .amdhsa_accum_offset {acc}
  .amdhsa_group_segment_fixed_size 0
  .amdhsa_kernarg_size 112
  .amdhsa_user_sgpr_count 2
  .amdhsa_user_sgpr_kernarg_segment_ptr 1
  .amdhsa_system_sgpr_workgroup_id_x 1
.end_amdhsa_kernel
"""

def srd(g, s, lo, hi, size, off=0):
    if off:
        g.e(f"s_add_u32 s{s}, s{lo}, {off}")
        g.e(f"s_addc_u32 s{s+1}, s{hi}, 0")
    else:
        g.e(f"s_mov_b32 s{s}, s{lo}")
        g.e(f"s_mov_b32 s{s+1}, s{hi}")
    g.e(f"s_mov_b32 s{s+2}, {size}")
    g.e(f"s_mov_b32 s{s+3}, 0x20000")

MERGE = int(os.environ.get('MERGE', '2'))
SC = os.environ.get("SCL", "sc1") if MERGE else ""
def dbg_load(g, v, voff, base):
    g.e(f"global_load_dword v{v}, v{voff}, s[{base}:{base + 1}] sc1")
def dbg_wait(g, v, voff, vtgt, base, sleep, loaded):
    spin = g.newlabel("spin"); chk = g.newlabel("chk")
    if loaded: g.e(f"s_branch {chk}")
    g.label(spin)
    g.e(f"s_sleep {sleep}")
    dbg_load(g, v, voff, base)
    g.e("s_waitcnt vmcnt(0)")
    g.label(chk)
    g.e(f"v_cmp_lt_u32 vcc, v{v}, v{vtgt}")
    g.e(f"s_cbranch_vccnz {spin}")
def flag_set(g, vt, soff, snonce, base):
    g.e(f"v_lshlrev_b32 v{vt}, 13, v0")
    g.e(f"v_add_u32 v{vt}, s{soff}, v{vt}")
    g.e(f"v_mov_b32 v{vt + 1}, s{snonce}")
    g.e("s_mov_b64 exec, 0xff")
    g.e(f"global_store_dword v{vt}, v{vt + 1}, s[{base}:{base + 1}] sc1")
    g.e("s_mov_b64 exec, -1")
def flag_load(g, v, voff, base, wide=False):
    if wide: g.e(f"global_load_dwordx2 v[{v}:{v + 1}], v{voff}, s[{base}:{base + 1}] sc1")
    else: g.e(f"global_load_dword v{v}, v{voff}, s[{base}:{base + 1}] sc1")
def flag_wait(g, v, voff, snonce, base, sleep, loaded, wide=False):
    spin = g.newlabel("spin"); chk = g.newlabel("chk")
    if loaded: g.e(f"s_branch {chk}")
    g.label(spin)
    g.e(f"s_sleep {sleep}")
    flag_load(g, v, voff, base, wide)
    g.e("s_waitcnt vmcnt(0)")
    g.label(chk)
    g.e(f"v_cmp_ne_u32 vcc, s{snonce}, v{v}")
    g.e(f"s_cbranch_vccnz {spin}")
    if wide:
        g.e(f"v_cmp_ne_u32 vcc, s{snonce}, v{v + 1}")
        g.e(f"s_cbranch_vccnz {spin}")
CPF = int(os.environ.get('CPF', '1'))
def code_touch(g, s, v, end, start=None, track=True):
    if not CPF: return
    here = g.newlabel("pc")
    g.e(f"s_getpc_b64 s[{s}:{s + 1}]")
    g.label(here)
    if start:
        g.e(f"s_add_u32 s{s}, s{s}, {start}-{here}")
        g.e(f"s_addc_u32 s{s + 1}, s{s + 1}, 0")
    g.e(f"s_mov_b32 s{s + 2}, {end}-{start or here}")
    g.e(f"s_mov_b32 s{s + 3}, 0x20000")
    g.e(f"v_lshlrev_b32 v{v}, 7, v0")
    t = f"buffer_load_dword v{v}, v{v}, s[{s}:{s + 3}], 0 offen"
    if track: g.vmem(t, "code")
    else: g.e(t)

MB = 1 << 20
WS_XN = 0
WS_K = 2 * MB
WS_V = 18 * MB
WS_Z1 = 34 * MB
WS_Z2 = 38 * MB
WS_ST = 42 * MB
WS_CTX = 44 * MB
SZ_XN = 2 * MB
SZ_KV = 16 * MB
SZ_Z = 2048 * 896 * 2
SZ_ST = 3 * 2048 * 8
SZ_CTX = 128 * 156 * 1024
WS_DBG = 200 * MB
WS_SCR = 64 * MB
SZ_SCR = 32 * MB
WS_PART = 64 * MB
WS_XNP = 74 * MB
WS_FL = 76 * MB
```

```python
from asmlib import *
import math

XR = 128
ACC = [64, 96]
WR = 32
D = 6
C2 = -2.0 * math.sqrt(2.0 / math.pi) * math.log2(math.e)
C1 = C2 * 0.044715
NPKV = int(os.environ.get('NPKV', '6'))
NPZ = int(os.environ.get('NPZ', '3'))
GKV = -(-64 // NPKV); GZ = 7
assert NPKV == 6 and NPZ == 3
GMAP = [[0, 1, 2, 25, 3, 4, 26, 10], [11, 12, 13, 27, 14, 15, 28, 21], [5, 6, 29, 7, 8, 30, 9, 22], [16, 17, 31, 18, 23, 19, 20, 24]]
assert sorted(sum(GMAP, [])) == list(range(32))
NTW = os.environ.get('NTW', '')
PF = int(os.environ.get('PF', '76'))
CLU = int(os.environ.get('CLU', '1'))
PFW = int(os.environ.get('PFW', '0'))
NTP = os.environ.get('NTP', '')
PF3 = int(os.environ.get('PF3', '1'))
ZPUB = int(os.environ.get('ZPUB', '28'))
MIX = int(os.environ.get('MIX', '1'))
PFWS = int(os.environ.get('PFWS', '16'))
ROT = int(os.environ.get('ROT', '1'))
SL0 = int(os.environ.get('SL0', '64')); SL1 = int(os.environ.get('SL1', '12'))
LT = int(os.environ.get('LT', '0'))
PFL = eval(os.environ.get('PFL', '[0,2,4,8,10,11,14,18,22,23]'))
PROT = int(os.environ.get('PROT', '0'))
STF = os.environ.get('STF', 'sc1')

def xreg(a, m): return XR + (m * 2 + a) * 4
def areg(st, cb, a): return ACC[st] + (cb * 2 + a) * 4

def w_voffsets(g, rowstride, vbase):
    g.e("v_bfe_u32 v28, v0, 5, 1")
    g.e("v_bfe_u32 v29, v0, 2, 2")
    g.e("v_lshl_add_u32 v28, v28, 2, v29")
    g.e(f"v_mul_u32_u24 v28, {rowstride}, v28")
    g.e("v_bfe_u32 v29, v0, 4, 1")
    g.e("v_lshl_add_u32 v28, v29, 6, v28")
    g.e("v_and_b32 v29, 3, v0")
    g.e("v_xor_b32 v30, 2, v29")
    g.e("v_lshlrev_b32 v29, 4, v29")
    g.e("v_lshlrev_b32 v30, 4, v30")
    for j in range(4):
        g.e(f"v_add_u32 v31, {j * 8 * rowstride - j * 1024}, v28")
        g.e(f"v_add_u32 v{vbase + j}, v31, v{29 + (j & 1)}")

def tr_bases(g, ve, vo):
    g.e("v_bfe_u32 v28, v0, 4, 2")
    g.e("v_lshlrev_b32 v29, 10, v28")
    g.e("v_bfe_u32 v30, v0, 2, 2")
    g.e("v_lshl_add_u32 v29, v30, 6, v29")
    g.e("v_and_b32 v30, 3, v0")
    g.e("v_lshl_add_u32 v29, v30, 3, v29")
    g.e("v_and_b32 v28, 1, v28")
    g.e(f"v_lshl_add_u32 v{ve}, v28, 5, v29")
    g.e(f"v_xor_b32 v{vo}, 32, v{ve}")

def gelu_ops(regs, T, vc2, sc1, stats=None):
    out = []
    n = len(T)
    for i in range(0, len(regs), n):
        grp = list(zip(regs[i:i + n], T))
        out += [f"v_mul_f32 v{t}, v{x}, v{x}" for x, t in grp]
        out += [f"v_fma_f32 v{t}, v{t}, s{sc1}, v{vc2}" for x, t in grp]
        out += [f"v_mul_f32 v{t}, v{t}, v{x}" for x, t in grp]
        out += [f"v_exp_f32 v{t}, v{t}" for x, t in grp]
        out += [f"v_add_f32 v{t}, 1.0, v{t}" for x, t in grp]
        out += [f"v_rcp_f32 v{t}, v{t}" for x, t in grp]
        out += [f"v_mul_f32 v{x}, v{x}, v{t}" for x, t in grp]
        if stats:
            out += [f"v_add_f32 v{stats[x][0]}, v{stats[x][0]}, v{x}" for x, t in grp]
            out += [f"v_fmac_f32 v{stats[x][1]}, v{x}, v{x}" for x, t in grp]
    return out

def ln_params(g, MEAN, VAR, n):
    def rbf(rs):
        for r in rs: g.e(f"PK {r},{r},{r}")
        for r in rs: g.e(f"v_and_b32 v{r}, 0xffff0000, v{r}")
    for m, v in zip(MEAN, VAR):
        g.e(f"v_mul_f32 v{m}, {f32(1 / n)}, v{m}")
        g.e(f"v_mul_f32 v{v}, {f32(1 / n)}, v{v}")
    for m, v in zip(MEAN, VAR): g.e(f"v_fma_f32 v{v}, -v{m}, v{m}, v{v}")
    for v in VAR: g.e(f"v_max_f32 v{v}, 0, v{v}")
    rbf(list(MEAN) + list(VAR))
    for v in VAR: g.e(f"v_add_f32 v{v}, {f32(1e-5)}, v{v}")
    rbf(VAR)
    for v in VAR: g.e(f"v_sqrt_f32 v{v}, v{v}")
    g.e("s_nop 0")
    rbf(VAR)
    for v in VAR: g.e(f"v_rcp_f32 v{v}, v{v}")
    g.e("s_nop 0")
    for m, v in zip(MEAN, VAR): g.e(f"v_mul_f32 v{m}, v{m}, v{v}")

def gen_type(g, T):
    ktp = lambda p: T in ("K", "Z1") or (T == "Z2" and p == 2)
    ztype = T in ("Z1", "Z2")
    rowstride = 3584 if ztype else 8192
    NP = NPZ if ztype else NPKV
    NTOT = 14 if ztype else 64
    NG = {"Z1": 3, "Z2": GZ}.get(T, GKV)
    NS = {"Z1": 2, "Z2": 3}.get(T, NTOT - (NG - 1) * NP)
    SHORT0 = {"Z1": 1}.get(T, NG - 1)
    VW = 1
    VTE, VTO = 5, 6
    VST = 7
    VC2 = 8
    VXA = 20
    VXR = (9, 11)
    TMP = [9, 10, 11, 12]
    STAT = 16
    g.vm = []; g.ds = []
    g.label(f"L_k1_{T}")
    g0 = {"K": 0, "V": GKV, "Z1": 2 * GKV, "Z2": 2 * GKV + 3}[T]
    g.e(f"s_sub_u32 s42, s3, {g0}")
    g.e("v_and_b32 v28, 63, v0")
    g.e(f"v_lshlrev_b32 v{VST}, 4, v28")
    if ztype:
        srd(g, 24, 4, 5, 2 * MB)
        g.e(f"s_sub_u32 s54, s3, {2 * GKV}")
        g.e("s_and_b32 s49, s54, 7")
        g.e("s_lshl_b32 s49, s49, 5")
        g.e("s_lshl_b32 s50, s41, 8")
        g.e("s_add_u32 s49, s49, s50")
        g.e("s_lshl_b32 s50, s40, 2")
        g.e("s_add_u32 s55, s49, s50")
        g.e("s_lshl_b32 s49, s55, 10")
        g.e("v_and_b32 v28, 3, v0")
        g.e("v_bfe_u32 v29, v0, 2, 4")
        g.e("v_lshlrev_b32 v30, 4, v29")
        g.e("v_lshl_add_u32 v30, v28, 10, v30")
        for i in range(4): g.vmem(f"buffer_load_dwordx4 v[{64 + 4 * i}:{67 + 4 * i}], v30, s[24:27], s49 offen offset:{256 * i}", "ln")
    else:
        srd(g, 24, 6, 7, 2 * MB)
    if T == "K": srd(g, 20, 10, 11, 512 * 8192)
    if T == "V": srd(g, 20, 12, 13, 512 * 8192)
    if ztype: srd(g, 20, 14, 15, 512 * 3584)
    if T == "Z1":
        g.e("s_lshl_b32 s58, s42, 1")
        g.e("s_add_u32 s58, s58, 8")
        g.e("s_cmp_eq_u32 s42, 0")
        g.e("s_cselect_b32 s58, 7, s58")
    elif T == "Z2": g.e("s_lshl_b32 s58, s42, 1")
    else: g.e(f"s_mul_i32 s58, s42, {NP}")
    colbase = 1792 if T == "Z2" else 0
    g.e("s_lshl_b32 s44, s58, 7")
    if colbase: g.e(f"s_add_u32 s44, s44, {colbase}")
    if ztype: g.e(f"s_mov_b32 s45, {colbase + (NTOT - 1) * 128}")
    else:
        g.e(f"s_cmp_lt_u32 s42, {SHORT0}")
        g.e(f"s_cselect_b32 s45, {NP}, {NS}")
        g.e("s_bfe_u32 s63, s2, 0x20003" if PROT else "s_mov_b32 s63, 0")
        g.e("s_lshl_b32 s63, s63, 1")
        g.e("s_cmp_ge_u32 s63, s45")
        g.e("s_cselect_b32 s49, s45, 0")
        g.e("s_sub_u32 s63, s63, s49")
    def pair_ops(p, d):
        return [f"s_add_u32 s{d}, s63, {p % 4 if p >= NS else p}" if False else f"s_add_u32 s{d}, s63, {p}",
                (f"s_cmp_ge_u32 s{d}, s45", "s_cselect_b32 s62, s45, 0"), f"s_sub_u32 s{d}, s{d}, s62"]
    g.e("s_lshl_b32 s46, s40, 12")
    g.e("s_bfe_u32 s60, s2, 0x20005" if (ROT and not ztype) else "s_mov_b32 s60, 0")
    g.e("s_lshl_b32 s49, s60, 2")
    g.e("s_add_u32 s49, s49, s40")
    g.e("s_and_b32 s50, s49, 15")
    g.e(f"s_mul_i32 s56, s50, {32 * rowstride}")
    g.e("s_xor_b32 s50, s50, 8")
    g.e(f"s_mul_i32 s61, s50, {32 * rowstride}")
    g.e("s_and_b32 s57, s40, 3")
    g.e(f"s_mul_i32 s57, s57, {32 * rowstride}")
    g.e("s_lshr_b32 s49, s40, 2")
    g.e("s_lshl_b32 s49, s49, 7")
    g.e("s_add_u32 s57, s57, s49")
    if not ztype:
        g.e("s_lshl_b32 s49, s63, 7")
        g.e("s_add_u32 s57, s57, s49")
    g.e("s_add_u32 s57, s57, s44")
    NST = 2 * NP
    NQ = 4
    def fmap(s, f):
        cb = f & 3
        if s < NQ:
            p, ks = (f >> 4, (f >> 2) & 3) if s == 3 else ((f >> 2) & 1, f >> 3)
            return p, 4 * s + ks, cb, p * 4 + ks
        return s >> 1, (s & 1) * 8 + (f >> 2), cb, f >> 2
    XPOS = [3, 4, 3, 4, 3, 4, 4, 4]
    def xdma_ops(q):
        ops = []
        for i in range(4):
            def op(i=i):
                if i == 0:
                    g.e(f"s_add_u32 s43, s60, {q >> 1}")
                    g.e("s_and_b32 s43, s43, 3")
                    g.e("s_lshl_b32 s43, s43, 8")
                    if q & 1: g.e("s_add_u32 s43, s43, 128")
                g.e(f"s_add_u32 m0, s46, {XPOS[q] * 32768}")
                g.e("s_nop 0")
                g.vmem(f"buffer_load_dwordx4 v{VXA + i}, s[24:27], s43 offen offset:{i * 1024} lds", ("x", q))
            ops.append(op)
        return ops
    def xread(q):
        g.wait_vm(("x", q))
        for ks in range(2):
            for a in range(2):
                g.lds(f"DR {xreg(a, 2 * q + ks)},{VXR[(XPOS[q] >> 1) - 1] + ks},{(XPOS[q] & 1) * 32768 + a * 2048}", ("x", q))
    def wdma_ops(s, sr=51):
        if s >= NST: return []
        ops = []
        for j in range(4):
            def op(j=j):
                if j == 0:
                    if s < NQ:
                        g.e(f"s_add_u32 s{sr}, s60, {s}")
                        g.e(f"s_and_b32 s{sr}, s{sr}, 3")
                        g.e(f"s_mul_i32 s{sr}, s{sr}, {128 * rowstride}")
                        g.e(f"s_add_u32 s{sr}, s{sr}, s57")
                    else:
                        p, kh = s >> 1, s & 1
                        if T == "Z2" and p == 2: g.e(f"s_lshl_b32 s{sr}, s42, 7")
                        elif ztype:
                            g.e(f"s_add_u32 s{sr}, s44, {p * 128}")
                            g.e(f"s_min_u32 s{sr}, s{sr}, s45")
                        else:
                            for t in pair_ops(p, sr):
                                for u in ((t,) if isinstance(t, str) else t): g.e(u)
                            g.e(f"s_lshl_b32 s{sr}, s{sr}, 7")
                            g.e(f"s_add_u32 s{sr}, s{sr}, s44")
                        g.e(f"s_add_u32 s{sr}, s{sr}, s{61 if kh else 56}")
                g.e(f"s_add_u32 m0, s46, {(s % 4) * 32768}")
                g.e("s_nop 0")
                g.vmem(f"buffer_load_dwordx4 v{VW + j}, s[20:23], s{sr} offen offset:{j * 1024} {NTW} lds", ("w", s))
            ops.append(op)
        return ops
    def run(ops):
        for op in ops: op()

    w_voffsets(g, rowstride, VW)
    if not ztype:
        run(wdma_ops(0, 47))
        g.e("v_bfe_u32 v28, v0, 3, 3")
        g.e("v_and_b32 v29, 7, v0")
        g.e("v_lshrrev_b32 v30, 1, v28")
        g.e("v_xor_b32 v29, v29, v30")
        g.e("s_lshl_b32 s49, s41, 8")
        g.e("s_lshl_b32 s50, s40, 5")
        g.e("s_add_u32 s49, s49, s50")
        g.e("v_add_u32 v28, s49, v28")
        g.e("v_lshlrev_b32 v28, 10, v28")
        g.e("v_xor_b32 v30, 4, v29")
        g.e("v_lshl_add_u32 v29, v29, 4, v28")
        g.e("v_lshl_add_u32 v30, v30, 4, v28")
        for i in range(4): g.e(f"v_add_u32 v{VXA + i}, {i * 8192 - i * 1024}, v{29 + (i & 1)}")
        run(xdma_ops(0))
        code_touch(g, 36, 14, f"L_k1_{T}_end")
        g.e("s_barrier")
        run(xdma_ops(1))
        run(wdma_ops(1, 47))
        g.e("v_and_b32 v28, 15, v0")
        g.e("v_bfe_u32 v29, v0, 4, 2")
        g.e("v_lshrrev_b32 v30, 1, v28")
        g.e("v_xor_b32 v29, v29, v30")
        g.e("v_lshlrev_b32 v29, 4, v29")
        g.e("v_lshl_add_u32 v29, v28, 7, v29")
        g.e("s_add_u32 s49, s46, 0x10000")
        g.e(f"v_add_u32 v{VXR[0]}, s49, v29")
        g.e(f"v_xor_b32 v{VXR[0] + 1}, 64, v{VXR[0]}")
        for ks in range(2): g.e(f"v_add_u32 v{VXR[1] + ks}, 0x10000, v{VXR[0] + ks}")
    else:
        code_touch(g, 36, 255, f"L_k1_{T}_end")
        srd(g, 24, 16, 17, WS_XNP + SZ_XN, 0)
        srd(g, 32, 18, 19, 256)
        ZLT = len(g.lines)
        g.e("s_mov_b32 s53, 0xffff0000")
        g.e(f"s_mov_b32 s52, {f32(C1)}")
        g.e(f"v_mov_b32 v{VC2}, {f32(C2)}")
        g.e("s_lshr_b32 s55, s55, 5")
        g.e("s_lshl_b32 s55, s55, 15")
        g.e("s_add_u32 s55, s55, s46")
        g.e(f"s_add_u32 s62, s55, {WS_XNP}")
        g.e("s_lshr_b32 s49, s40, 2")
        g.e("s_lshl_b32 s49, s49, 14")
        g.e("s_and_b32 s50, s40, 3")
        g.e("s_lshl_b32 s50, s50, 6")
        g.e("s_add_u32 s49, s49, s50")
        g.e("s_add_u32 s49, s49, 0x20000")
        g.e("v_and_b32 v28, 3, v0")
        g.e("v_lshlrev_b32 v28, 4, v28")
        g.e("v_bfe_u32 v29, v0, 2, 2")
        g.e("v_lshl_add_u32 v28, v29, 8, v28")
        g.e("v_bfe_u32 v29, v0, 4, 2")
        g.e("v_lshl_add_u32 v28, v29, 10, v28")
        g.e("v_add_u32 v13, s49, v28")
        g.e("s_add_u32 s49, s46, 0x20000")
        g.e(f"v_add_u32 v16, s49, v{VST}")
        g.e("s_and_b32 s49, s46, 0x3fff")
        g.e("s_lshr_b32 s50, s40, 2")
        g.e("s_lshl_b32 s50, s50, 6")
        g.e("s_add_u32 s49, s49, s50")
        g.e("s_add_u32 s49, s49, 0x20000")
        g.e("v_bfe_u32 v17, v0, 3, 1")
        g.e("v_lshlrev_b32 v17, 14, v17")
        g.e("v_bfe_u32 v28, v0, 2, 1")
        g.e("v_lshl_add_u32 v17, v28, 7, v17")
        g.e("v_and_b32 v28, 0x33, v0")
        g.e("v_lshl_add_u32 v17, v28, 4, v17")
        g.e("v_add_u32 v17, s49, v17")
        g.e(f"v_lshlrev_b32 v15, 20, v{VST}")
        g.e("s_lshl_b32 s47, s41, 5")
        g.e("s_add_u32 s59, s47, 4")
        nol = g.newlabel("noln")
        g.e("s_cmp_ge_u32 s54, 8")
        g.e(f"s_cbranch_scc1 {nol}")
        g.e("v_mov_b32 v9, 0")
        g.e("v_mov_b32 v10, 0")
        g.wait_vm("ln")
        g.stamp(8)
        for i in range(16):
            g.e(f"v_lshlrev_b32 v{96 + 2 * i}, 16, v{64 + i}")
            g.e(f"v_and_b32 v{97 + 2 * i}, s53, v{64 + i}")
        for i in range(32):
            g.e(f"v_add_f32 v9, v9, v{96 + i}")
            g.e(f"v_fmac_f32 v10, v{96 + i}, v{96 + i}")
        for sh in (4, 8):
            g.e("s_nop 1")
            for r in (9, 10): g.e(f"v_add_f32_dpp v{r}, v{r}, v{r} row_ror:{sh} row_mask:0xf bank_mask:0xf")
        for sw in ("v_permlane32_swap_b32", "v_permlane16_swap_b32"):
            for i in range(2): g.e(f"v_mov_b32 v{11 + i}, v{9 + i}")
            g.e("s_nop 1")
            for i in range(2): g.e(f"{sw} v{11 + i}, v{9 + i}")
            g.e("s_nop 1")
            for i in range(2): g.e(f"v_add_f32 v{9 + i}, v{9 + i}, v{11 + i}")
        ln_params(g, [9], [10], 512)
        for i in range(4):
            for e in range(8): g.e(f"v_fma_f32 v{96 + 8 * i + e}, v{96 + 8 * i + e}, v10, -v9")
            for r in range(4): g.e(f"PK {64 + 4 * i + r},{96 + 8 * i + 2 * r},{97 + 8 * i + 2 * r}")
            g.e(f"DW 13,{64 + 4 * i},{i * 4096}")
        g.e("s_waitcnt lgkmcnt(0)")
        g.e("s_barrier")
        for i in range(8): g.e(f"DR {96 + 4 * i},{17 - (i >> 2)},{(i & 3) * 1024}")
        for i in range(8):
            g.e(f"s_waitcnt lgkmcnt({7 - i})")
            g.e(f"buffer_store_dwordx4 v[{96 + 4 * i}:{99 + 4 * i}], v{VST}, s[24:27], s{55 if i >> 2 else 62} offen offset:{(i & 3) * 1024} sc1")
        g.e("v_mov_b32 v11, 1")
        g.stamp(9)
        g.e("s_waitcnt vmcnt(0)")
        g.e("s_barrier")
        g.stamp(10)
        spin = g.newlabel("spin"); done = g.newlabel("sdone"); chk = g.newlabel("schk")
        g.e("s_cmp_lg_u32 s40, 0")
        g.e(f"s_cbranch_scc1 {done}")
        g.e("buffer_atomic_add v11, v15, s[32:35], s59 offen sc0 sc1")
        g.e("s_waitcnt vmcnt(0)")
        g.e("v_add_u32 v11, 1, v11")
        g.e(f"s_branch {chk}")
        g.label(nol)
        g.e("s_cmp_lg_u32 s40, 0")
        g.e(f"s_cbranch_scc1 {done}")
        g.e(f"s_sleep {SL0}")
        g.label(spin)
        g.e(f"s_sleep {SL1}")
        g.e("buffer_load_dword v11, v15, s[32:35], s59 offen sc1")
        g.e("s_waitcnt vmcnt(0)")
        g.label(chk)
        g.e("s_nop 0")
        g.e("v_readfirstlane_b32 s51, v11")
        g.e("s_cmp_lt_u32 s51, 8")
        g.e(f"s_cbranch_scc1 {spin}")
        g.label(done)
        g.vm = []
        run(wdma_ops(0, 47))
        g.e("s_lshl_b32 s49, s41, 18")
        g.e("s_lshl_b32 s50, s40, 15")
        g.e("s_add_u32 s54, s49, s50")
        if T == "Z2": g.e(f"s_add_u32 s54, s54, {WS_XNP}")
        g.e("s_barrier")
        g.stamp(11)
        def xload(m):
            if m % 4 == 0:
                g.e(f"s_add_u32 s59, s54, {m * 1024}")
                g.e(f"s_add_u32 s55, s59, 16384")
            for a in range(2):
                x = xreg(a, m)
                g.vmem(f"buffer_load_dwordx4 v[{x}:{x + 3}], v{VST}, s[24:27], s{55 if a else 59} offen offset:{(m % 4) * 1024} sc1", ("x", m))
        for m in range(4): xload(m)
    def lin_touch():
        g.e("s_lshl_b32 s43, s2, 3")
        g.e("s_add_u32 s43, s43, s40")
        g.e(f"v_lshlrev_b32 v26, 3, v{VST}")
        g.e("v_bfe_u32 v27, v0, 4, 2")
        g.e("v_lshl_add_u32 v26, v27, 28, v26")
        g.e("s_lshl_b32 s49, s43, 11")
        srd(g, 36, 10, 11, 4 * MB)
        g.vmem("buffer_load_dword v254, v26, s[36:39], s49 offen", "t")
        srd(g, 36, 12, 13, 4 * MB)
        g.vmem("buffer_load_dword v254, v26, s[36:39], s49 offen", "t")
        srd(g, 36, 14, 15, 512 * 3584)
        g.vmem("buffer_load_dword v254, v26, s[36:39], s49 offen", "t")
    if LT == 1 and not ztype: lin_touch()
    if LT and ztype:
        n0 = len(g.lines); sv = list(g.vm)
        lin_touch()
        blk = g.lines[n0:]; del g.lines[n0:]; g.lines[ZLT:ZLT] = blk; g.vm = sv
        k = g.lines.index(f"s_waitcnt vmcnt({CPF})", ZLT); g.lines[k] = f"s_waitcnt vmcnt({CPF + 3})"
    off, sz = {"K": (WS_K, SZ_KV), "V": (WS_V, SZ_KV), "Z1": (WS_Z1, SZ_Z), "Z2": (WS_Z2, SZ_Z)}[T]
    srd(g, 28, 16, 17, sz, off)
    tr_bases(g, VTE, VTO)
    if T == "Z2":
        for i in range(16): g.e(f"v_mov_b32 v{STAT + i}, 0")

    def outbase(I, p):
        if T == "Z2" and p == 2: I("s_mov_b32 s48, s42")
        elif ztype: I(f"s_add_u32 s48, s58, {p}")
        else:
            I("\n".join(u for t in pair_ops(p, 48) for u in ((t,) if isinstance(t, str) else t)))
            I("s_add_u32 s48, s48, s58")
        if T in ("K", "V"):
            I("s_lshr_b32 s49, s48, 1")
            I("s_lshl_b32 s49, s49, 19")
            I("s_and_b32 s48, s48, 1")
            I(f"s_lshl_b32 s48, s48, {11 if T == 'K' else 12}")
            I("s_add_u32 s48, s48, s49")
            I("s_lshl_b32 s49, s41, 16")
            I("s_add_u32 s48, s48, s49")
            I("s_lshl_b32 s49, s40, 13")
            I("s_add_u32 s48, s48, s49")
            I("s_add_u32 s50, s48, 4096")
        else:
            I(f"s_lshl_b32 s48, s48, {11 if ktp(p) else 12}")
            I("s_lshl_b32 s49, s41, 3")
            I("s_add_u32 s49, s49, s40")
            I("s_mul_i32 s49, s49, 57344")
            I("s_add_u32 s48, s48, s49")
            I("s_add_u32 s50, s48, 28672")

    ZPARK = 131072
    def epilogue(p, last=False):
        st = p & 1
        ops = []
        def I(s): ops.append(lambda s=s: g.e(s))
        hold = T == "Z2" and p < 2
        if not hold: outbase(I, p)
        frags = []
        if ktp(p):
            for a in range(2):
                for mm in range(2):
                    frags.append((areg(st, 2 * mm, a), areg(st, 2 * mm + 1, a), a, mm * 1024))
        else:
            for cb in range(4):
                frags.append((areg(st, cb, 0), areg(st, cb, 1), 0, cb * 1024))
        for (x, y, a, io) in frags:
            if ztype:
                stats = None
                if hold:
                    stats = {}
                    for r in range(4):
                        stats[x + r] = (STAT + 2 * r, STAT + 2 * r + 1)
                        stats[y + r] = (STAT + 8 + 2 * r, STAT + 8 + 2 * r + 1)
                for s in gelu_ops([x, x + 1, x + 2, x + 3, y, y + 1, y + 2, y + 3], TMP, VC2, 52, stats): I(s)
            d = x
            if p == 0 and not ztype: d = 16 + 4 * frags.index((x, y, a, io))
            I(f"PK {d},{x},{x + 1}"); I(f"PK {d + 1},{x + 2},{x + 3}")
            I(f"PK {d + 2},{y},{y + 1}"); I(f"PK {d + 3},{y + 2},{y + 3}")
            x = d
            if hold:
                if p == 0: ops.append(lambda x=x, io=io: g.lds(f"DW 13,{x},{io}", "park"))
            elif T == "Z2":
                ops.append(lambda x=x, a=a, io=io: g.vmem(
                    f"buffer_store_dwordx4 v[{x}:{x + 3}], v14, s[24:27], s48 offen offset:{io + 64 * a} {SC}", "st"))
            else:
                ops.append(lambda x=x, a=a, io=io: g.vmem(
                    f"buffer_store_dwordx4 v[{x}:{x + 3}], v{VST}, s[28:31], s{50 if a else 48} offen offset:{io} {STF}", "st"))
        return ops
    if T == "Z2":
        g.e(f"s_add_u32 s49, s46, {ZPARK}")
        g.e(f"v_add_u32 v13, s49, v{VST}")

    def publish_ops():
        ops = []
        def I(s): ops.append(lambda s=s: g.e(s))
        for sh in (8, 4, 2, 1):
            for i in range(16):
                I(f"v_add_f32_dpp v{STAT + i}, v{STAT + i}, v{STAT + i} row_ror:{sh} row_mask:0xf bank_mask:0xf")
        ops.append(lambda: srd(g, 36, 16, 17, GZ * 16384, WS_ST))
        I("v_bfe_u32 v9, v0, 4, 2")
        I("v_lshlrev_b32 v9, 6, v9")
        I("v_and_b32 v10, 15, v0")
        I("v_lshl_add_u32 v10, v10, 24, v9")
        I("s_lshl_b32 s59, s41, 11")
        I("s_lshl_b32 s49, s40, 8")
        I("s_add_u32 s59, s59, s49")
        I("s_lshl_b32 s49, s42, 14")
        I("s_add_u32 s49, s49, s59")
        for i in range(4):
            ops.append(lambda i=i: g.vmem(f"buffer_store_dwordx4 v[{STAT + 4 * i}:{STAT + 4 * i + 3}], v10, s[36:39], s49 offen offset:{16 * i} sc1", "pub"))
        return ops
    def arrive():
        srd(g, 32, 18, 19, 256)
        g.e("s_lshl_b32 s47, s41, 5")
        g.e("v_mov_b32 v11, 1")
        g.e(f"v_lshlrev_b32 v15, 20, v{VST}")
        na = g.newlabel("noarr")
        g.wait_vm("pub")
        g.e("s_barrier")
        g.e("s_cmp_lg_u32 s40, 0")
        g.e(f"s_cbranch_scc1 {na}")
        g.e("buffer_atomic_add v11, v15, s[32:35], s47 offen sc1")
        g.label(na)

    def pf_next(short):
        if not PF3 or T == "Z2" or (T in ("K", "V") and not short): return
        g.e("s_load_dwordx2 s[32:33], s[0:1], 40")
        g.e("s_load_dwordx2 s[36:37], s[0:1], 80")
        g.e("s_lshl_b32 s43, s41, 3")
        g.e("s_add_u32 s43, s43, s40")
        g.e(f"v_lshlrev_b32 v13, 3, v{VST}")
        g.e("s_waitcnt lgkmcnt(0)")
        g.e(f"s_mov_b32 s34, {4 * MB}")
        g.e("s_mov_b32 s35, 0x20000")
        g.e(f"s_mov_b32 s38, {896 * 1024}")
        g.e("s_mov_b32 s39, 0x20000")
        if T == "Z1":
            g.e("s_lshl_b32 s47, s42, 6")
            g.e("s_add_u32 s43, s43, s47")
            g.e("s_lshl_b32 s43, s43, 13")
            if short:
                g.e(f"s_sub_u32 s47, s43, {64 * 8192}")
                g.e("buffer_load_dword v15, v13, s[36:39], s47 offen")
                g.e(f"s_add_u32 s47, s47, {3 * MB}")
                g.e("buffer_load_dword v15, v13, s[32:35], s47 offen")
        else:
            g.e(f"s_mul_i32 s43, s43, {3 * 8192}")
            if T == "V": g.e(f"s_add_u32 s43, s43, {64 * 3 * 8192}")
            for i in range(3):
                g.e(f"buffer_load_dword v15, v13, s[32:35], s43 offen")
                g.e("s_add_u32 s43, s43, 8192")

    def dbg_snap():
        sk = g.newlabel("nosnap")
        g.e("s_cmp_lg_u32 s40, 0")
        g.e(f"s_cbranch_scc1 {sk}")
        g.e(f"v_lshrrev_b32 v13, 2, v{VST}")
        dbg_load(g, 13, 13, 18)
        g.label(sk)
    def final(p, short=False):
        g.stamp(12)
        g.e("s_nop 7")
        if T == "Z2":
            srd(g, 24, 16, 17, SZ_Z, WS_Z1)
            g.e("v_bfe_u32 v14, v0, 3, 1")
            g.e("v_mul_u32_u24 v14, 28672, v14")
            g.e("v_bfe_u32 v16, v0, 2, 1")
            g.e("v_lshl_add_u32 v14, v16, 7, v14")
            g.e("v_and_b32 v16, 0x33, v0")
            g.e("v_lshl_add_u32 v14, v16, 4, v14")
            for i in range(4): g.e(f"DR {XR + 4 * i},13,{i * 1024}")
        if T != "Z2":
            for op in epilogue(p): op()
        else:
            ep = epilogue(p)
            nb = len(ep) - 4 * 61
            quart = [ep[nb + 61 * i:nb + 61 * i + 60] for i in range(4)]
            zst = [ep[nb + 61 * i + 60] for i in range(4)]
            def w0(fn):
                sk = g.newlabel("w0")
                g.e("s_cmp_lg_u32 s40, 0"); g.e(f"s_cbranch_scc1 {sk}")
                fn(); g.label(sk)
            VA, VB, VO, VG = 144, 145, 146, 147
            g.e(f"v_lshrrev_b32 v{VO}, 2, v{VST}")
            w0(lambda: dbg_load(g, 13, VO, 18))
            g.e("s_lshl_b32 s49, s41, 3")
            g.e("v_cmp_eq_u32 vcc, s49, v0")
            g.e(f"v_bfe_u32 v{VA}, v0, 4, 2")
            g.e(f"v_lshlrev_b32 v{VA}, 6, v{VA}")
            g.e(f"v_cndmask_b32 v{VG}, 0, {GZ}, vcc")
            g.e("v_cmp_eq_u32 vcc, 5, v0")
            g.e(f"v_and_b32 v{VB}, 31, v0")
            g.e(f"v_lshlrev_b32 v{VB}, 3, v{VB}")
            if MERGE: g.e(f"v_cndmask_b32 v{VG}, v{VG}, 1, vcc")
            run(quart[0])
            def chk():
                g.e("s_waitcnt vmcnt(0)")
                dbg_wait(g, 13, VO, VG, 18, SL1, True)
            w0(chk)
            g.e("s_barrier")
            g.stamp(14)
            PB = 160
            for q in range(GZ):
                g.e(f"s_add_u32 s49, s59, {q * 16384}")
                g.e(f"buffer_load_dwordx2 v[{PB + 2 * q}:{PB + 2 * q + 1}], v{VB}, s[36:39], s49 offen sc1")
            g.e(f"s_add_u32 s49, s46, {ZPARK}")
            g.e(f"v_add_u32 v{VB}, s49, v{VB}")
            g.e(f"v_add_u32 v{VA}, s49, v{VA}")
            run(quart[1])
            g.e("s_waitcnt vmcnt(0) lgkmcnt(0)")
            for q in range(1, GZ):
                for i in range(2): g.e(f"v_add_f32 v{PB + i}, v{PB + i}, v{PB + 2 * q + i}")
            ln_params(g, [PB], [PB + 1], 896)
            g.e(f"ds_write_b64 v{VB}, v[{PB}:{PB + 1}]")
            g.e("s_waitcnt lgkmcnt(0)")
            for i in range(4): g.e(f"DR {PB + 4 * i},{VA},{16 * i}")
            g.e("s_waitcnt lgkmcnt(0)")
            MEAN = [PB + 2 * e for e in range(8)]; VAR = [PB + 2 * e + 1 for e in range(8)]
            for pp in range(2):
                outbase(g.e, pp)
                for cb in range(4):
                    x = XR + 4 * cb if pp == 0 else areg(pp & 1, cb, 0)
                    t = 16 + (cb & 1) * 8
                    for r in range(4): g.e(f"v_lshlrev_b32 v{t + 2 * r}, 16, v{x + r}")
                    for r in range(4): g.e(f"v_and_b32 v{t + 2 * r + 1}, s53, v{x + r}")
                    for e in range(8): g.e(f"v_fma_f32 v{t + e}, v{t + e}, v{VAR[e]}, -v{MEAN[e]}")
                    for r in range(4): g.e(f"PK {x + r},{t + 2 * r},{t + 2 * r + 1}")
                    g.e(f"buffer_store_dwordx4 v[{x}:{x + 3}], v{VST}, s[28:31], s48 offen offset:{cb * 1024} {STF}")
            run(quart[2]); run(quart[3]); run(ep[:nb])
            if MERGE:
                g.e("s_waitcnt vmcnt(0)")
                g.e("s_barrier")
                def z2flag():
                    g.e("v_readlane_b32 s59, v13, 5")
                    g.e(f"s_add_u32 s100, s16, {WS_FL}")
                    g.e("s_addc_u32 s101, s17, 0")
                    g.e("s_add_u32 s47, s42, 14")
                    g.e("s_lshl_b32 s47, s47, 7")
                    g.e("s_lshl_b32 s49, s41, 2")
                    g.e("s_add_u32 s47, s47, s49")
                    g.e("s_add_u32 s47, s47, 32")
                    flag_set(g, 10, 47, 59, 100)
                w0(z2flag)
            run(zst)
        g.stamp(13)
        g.stamp_dump(16, 17, 40, 0)
        if MERGE:
            g.e(f"s_add_u32 s58, s42, { {'K': 0, 'V': 0, 'Z1': 11, 'Z2': 14}[T] }")
            g.e("s_lshl_b32 s58, s58, 7")
            g.e("s_lshl_b32 s49, s41, 2")
            g.e("s_add_u32 s58, s58, s49")
            if T == "V": g.e("s_add_u32 s58, s58, 32")
            g.e("s_branch L_p2")
        else: g.e("s_endpgm")

    pend = []
    def wread(F, half=None):
        s, f = F >> 5, F & 31
        if s >= NST: return
        if f == 0 and half != 1:
            assert not pend
            g.wait_vm(("w", s))
            g.e("s_barrier")
            if s >= 2 and s % 2 == 0:
                g.e(f"v_xor_b32 v{VTE}, 0x10000, v{VTE}")
                g.e(f"v_xor_b32 v{VTO}, 0x10000, v{VTO}")
            if s >= 2: pend.extend(wdma_ops(s + 2))
        if pend and f >= 1 and half != 0: pend.pop(0)()
        p, m, cb, mp = fmap(s, f)
        r = WR + (F % 8) * 4
        for a in (range(2) if half is None else [half]):
            o = (s & 1) * 32768 + mp * 4096 + a * 512 + (cb >> 1) * 256
            g.lds(f"TR {r + 2 * a},{VTO if cb & 1 else VTE},{o}", ("w", F))

    g.stamp(1)
    ev = {}
    def at(F, fn): ev.setdefault(F, []).append(fn)
    def spread(F0, ops, after=None):
        if after is not None: at(F0, lambda: g.wait_ds(("x", after)))
        for i, op in enumerate(ops): at(F0 + i, op)
    if not ztype:
        xread(0)
        at(0, lambda: g.wait_ds(("x", 0)))
        spread(0, xdma_ops(2)); spread(4, wdma_ops(2, 47))
        at(10, lambda: xread(1)); spread(14, xdma_ops(3), 1)
        at(22, lambda: xread(2)); spread(26, xdma_ops(4), 2)
        at(34, lambda: xread(3)); spread(38, xdma_ops(5), 3)
        at(44, lambda: xread(4)); spread(48, wdma_ops(3, 47), 4)
        at(56, lambda: xread(5)); spread(64, xdma_ops(6), 5)
        at(80, lambda: xread(6)); spread(84, xdma_ops(7), 6)
        at(99, lambda: xread(7)); at(103, lambda: g.wait_ds(("x", 7)))
    else:
        for m in range(16): at(8 * m if m < 12 else 96 + 4 * (m - 12), lambda m=m: g.wait_vm(("x", m)))
        for m, F in zip(range(4, 16), (4, 8, 12, 16, 28, 34, 40, 46, 56, 64, 70, 74)): at(("post", F), lambda m=m: xload(m))
        for F0, s in ((0, 1), (22, 2), (50, 3)):
            for i, op in enumerate(wdma_ops(s, 47)): at(("post", F0 + i), op)
    if LT > 1 and not ztype: at(LT, lin_touch)
    if PF:
        def prefetch():
            sr = 36 if T == "Z2" else 32
            srd(g, sr, 8, 9, 4 * MB)
            g.e("s_and_b32 s43, s2, 0xf8")
            g.e("s_add_u32 s43, s43, s40")
            g.e("s_lshl_b32 s43, s43, 14")
            g.e("s_and_b32 s47, s2, 7")
            g.e("s_lshl_b32 s47, s47, 8")
            g.e("s_add_u32 s47, s47, s43")
            g.e("v_and_b32 v14, 1, v0")
            g.e("v_lshlrev_b32 v14, 7, v14")
            g.e("v_bfe_u32 v15, v0, 1, 3")
            g.e("v_lshl_add_u32 v14, v15, 11, v14")
            g.e("v_bfe_u32 v15, v0, 4, 2")
            g.e("v_lshl_add_u32 v15, v15, 28, v14")
            g.vmem(f"buffer_load_dword v15, v15, s[{sr}:{sr + 3}], s47 offen", "t")
            if T in ("K", "V"):
                sk = g.newlabel("nocode")
                g.e("s_cmp_lt_u32 s2, 8")
                g.e(f"s_cbranch_scc0 {sk}")
                code_touch(g, 36, 14, "L_all_end", "L_p2", False)
                g.label(sk)
            if PF3 == 1 and T != "Z2":
                sk = g.newlabel("nopf3")
                g.e(f"s_cmp_lt_u32 s42, {SHORT0}")
                g.e(f"s_cbranch_scc1 {sk}")
                pf_next(True)
                g.label(sk)
        at(PF if not ztype else min(PF, 110), prefetch)
    if MERGE and T != "Z2": at((2 * NS - 1) * 32 - 12, dbg_snap)
    def place(ops, F0, n):
        for i, op in enumerate(ops): at(("post", F0 + i * n // len(ops)), op)
    for p in range(NP - 1):
        ops = epilogue(p)
        F0 = (2 * p + 2) * 32 + 3
        if not ztype:
            h = len(ops) - 20
            fr = [ops[h + 5 * i:h + 5 * i + 5] for i in range(4)]
            if p == 0:
                place(ops[:h] + [o for f4 in fr for o in f4[:4]], 3 * 32 + 20, 11)
                for f4, F in zip(fr, (127, 138, 149, 160)): at(("post", F), f4[4])
            else:
                pos = (166, 174, 182, 189) if p == 1 else [F0 + 5 + 16 * i for i in range(4)]
                place(ops[:h], pos[0] - 4, 3)
                for f4, F in zip(fr, pos): place(f4, F - 1, 2)
        elif p == 0: place(ops, 3 * 32 + 20, 11)
        elif T == "Z2" and p == 1:
            place(ops + [lambda: g.e("s_nop 1")] + publish_ops(), F0, ZPUB)
            at(("post", F0 + ZPUB + 13), arrive)
        else: place(ops, F0, 60)
    for F in range(D): wread(F)
    for s in range(NST):
        if s < 9 and PROF != 6: g.stamp(2 + s)
        if s == 2 * NS and NS < NP:
            cont = g.newlabel("cont")
            g.e(f"s_cmp_lt_u32 s42, {SHORT0}")
            g.e(f"s_cbranch_scc1 {cont}")
            sv = (list(g.vm), list(g.ds))
            final(NS - 1, True)
            g.vm, g.ds = sv
            g.label(cont)
        for f in range(32):
            F = s * 32 + f
            p, m, cb, mp = fmap(s, f)
            if PROF == 6 and F in PFL: g.stamp(2 + PFL.index(F))
            for fn in ev.pop(F, []): fn()
            g.wait_ds(("w", F))
            r = WR + (F % 8) * 4
            post = ev.pop(("post", F), [])
            for a in range(2):
                op = "MZ" if m == 0 else "M"
                if ktp(p): g.e(f"{op} {areg(p & 1, cb, a)},{r},{xreg(a, m)}")
                else: g.e(f"{op} {areg(p & 1, cb, a)},{xreg(a, m)},{r}")
                wread(F + D, a)
                n = len(post) // 2 if a == 0 else len(post)
                for _ in range(n): post.pop(0)()
    assert not ev, ev.keys()
    final(NP - 1)
    g.label(f"L_k1_{T}_end")

def gen_k1(g):
    g.e(".p2align 8")
    g.e(".type k1_kernel,@function")
    g.label("k1_kernel")
    g.e("s_cmp_ge_u32 s2, 256")
    g.e("s_cbranch_scc1 L_k1_end")
    g.stamp(0)
    if PROF: g.e("s_memrealtime s[94:95]")
    g.e("s_load_dwordx4 s[4:7], s[0:1], 0")
    g.e("s_load_dwordx4 s[8:11], s[0:1], 16")
    g.e("s_load_dwordx2 s[12:13], s[0:1], 32")
    g.e("s_load_dwordx2 s[14:15], s[0:1], 56")
    g.e("s_load_dwordx2 s[18:19], s[0:1], 96")
    g.e("s_load_dwordx2 s[16:17], s[0:1], 104")
    g.e("v_lshrrev_b32 v1, 6, v0")
    g.e("s_lshr_b32 s49, s2, 3")
    g.e("s_and_b32 s41, s2, 1")
    g.e("v_readfirstlane_b32 s40, v1")
    g.e("s_lshl_b32 s41, s41, 2")
    g.e("s_and_b32 s50, s49, 3")
    g.e("s_add_u32 s41, s41, s50")
    g.e("s_and_b32 s3, s2, 6")
    g.e("s_lshl_b32 s3, s3, 2")
    g.e("s_lshr_b32 s49, s49, 2")
    g.e("s_add_u32 s3, s3, s49")
    if MIX:
        cst = [sum(v << (8 * i) for i, v in enumerate(row)) for row in GMAP]
        g.e("s_bitcmp1_b32 s2, 1")
        g.e(f"s_cselect_b32 s44, {cst[1] & 0xffffffff}, {cst[0] & 0xffffffff}") if False else None
        for k, (lo, hi) in enumerate(((44, 45), (46, 47))):
            g.e(f"s_mov_b32 s{lo}, {cst[2 * k] & 0xffffffff}")
            g.e(f"s_mov_b32 s{hi}, {cst[2 * k] >> 32}")
            g.e(f"s_cmov_b32 s{lo}, {cst[2 * k + 1] & 0xffffffff}")
            g.e(f"s_cmov_b32 s{hi}, {cst[2 * k + 1] >> 32}")
        g.e("s_bitcmp1_b32 s2, 2")
        g.e("s_cselect_b64 s[44:45], s[46:47], s[44:45]")
        g.e("s_lshl_b32 s49, s49, 3")
        g.e("s_lshr_b64 s[44:45], s[44:45], s49")
        g.e("s_and_b32 s3, s44, 31")
    g.e("s_waitcnt lgkmcnt(0)")
    if MERGE:
        sk = g.newlabel("nonce")
        g.e("s_or_b32 s49, s2, s40")
        g.e(f"s_cbranch_scc1 {sk}")
        g.e("s_memrealtime s[50:51]")
        g.e("v_mov_b32 v2, 20")
        g.e("s_waitcnt lgkmcnt(0)")
        g.e("s_or_b32 s49, s50, 1")
        g.e("v_mov_b32 v3, s49")
        g.e("s_mov_b64 exec, 1")
        g.e("global_store_dword v2, v3, s[18:19] sc1")
        g.e("s_mov_b64 exec, -1")
        g.label(sk)
    g.e(f"s_cmp_lt_u32 s3, {GKV}")
    g.e("s_cbranch_scc1 L_k1_K")
    g.e(f"s_cmp_lt_u32 s3, {2 * GKV}")
    g.e("s_cbranch_scc1 L_k1_V")
    g.e(f"s_cmp_lt_u32 s3, {2 * GKV + 3}")
    g.e("s_cbranch_scc1 L_k1_Z1")
    g.e("s_branch L_k1_Z2")
    g.label("L_k1_end")
    g.e("s_endpgm")
    for T in ("K", "V", "Z1", "Z2"):
        gen_type(g, T)
```

```python
from asmlib import *
import k1
from k1 import w_voffsets, tr_bases, xreg, areg, WR, D
import math

QSCALE = 128 ** -0.5 * math.log2(math.e)
STASH = 131072
DSP = int(os.environ.get('DSP', '3')); EB = int(os.environ.get('EB', '14'))
XPRE = int(os.environ.get('XPRE', '4'))
PS = int(os.environ.get('PS', '0'))
NTSP = os.environ.get('NTSP', '')
PF2 = int(os.environ.get('PF2', '0'))
KINS = int(os.environ.get('KINS', '0'))
NTAIL = int(os.environ.get('NTAIL', '0'))
STF2 = os.environ.get('STF2', 'sc1')
PFS = int(os.environ.get('PFS', '54'))
STFX = os.environ.get('STFX', 'sc1'); STFU = os.environ.get('STFU', '')
XSCH = eval(os.environ.get('XSCH', '(4, 8, 12, 16, 28, 34, 40, 46, 56, 62, 68, 74)'))
PF4 = int(os.environ.get('PF4', '0'))
SLA = int(os.environ.get('SLA', '8')); SLS = int(os.environ.get('SLS', '10'))
SPT = int(os.environ.get('SPT', '0'))
NTWQ = os.environ.get('NTWQ', '')
NPART = 3
VF, VNEG, VL, VT, V16, VLT = 1, 3, 4, 6, 7, 8
NEGM, PR, TMP, OR, FR = 16, 24, 40, 128, 192
ML, FA, FB = 52, 56, 58
def sreg(kt, qb): return 72 + 16 * kt + 4 * qb
def preg(qb, kg): return PR + (qb * 2 + kg) * 4
def qreg(qb, mm): return 64 + 16 * mm + 4 * qb
def oreg(cb, qb): return OR + (cb * 2 + qb) * 4
def freg(j): return FR + j * 4

def merge_streams(main, fill, start=0):
    out = []
    n = len(main) - start
    acc = 0.0
    fill = list(fill)
    per = len(fill) / max(1, n)
    for i, m in enumerate(main):
        out.append(m)
        if i >= start:
            acc += per
            while fill and acc >= 0.999:
                out.append(fill.pop(0)); acc -= 1.0
    return out + fill

def dma4(g, so, first_m0=None, tag=None):
    ops = []
    for j in range(4):
        def op(j=j):
            if j == 0 and first_m0:
                g.e(first_m0); g.e("s_nop 0")
            g.vmem(f"buffer_load_dwordx4 v{V16}, s[28:31], s{so} offen offset:{j * 1024} {SC} lds", tag)
        ops.append(op)
    return ops

def next_ops(t):
    return [[f"s_and_b32 s19, s{t}, 3"], ["s_lshl_b32 s19, s19, 15"],
            ["s_xor_b32 s50, s19, 0x10000"], ["s_add_u32 s50, s50, s55"],
            [f"s_add_u32 s49, s{t}, 2"], ["s_lshl_b32 s51, s49, 14"], ["s_add_u32 s51, s51, s54"],
            ["s_cmp_lt_u32 s49, s48", "s_cselect_b32 s51, s51, s54"],
            [f"s_cmp_lt_u32 s{t}, s45", "s_cselect_b32 s49, s41, 0"],
            ["s_lshl_b32 s7, s49, 14"], ["s_add_u32 m0, s50, s7"], ["s_lshl_b32 s49, s49, 24"],
            ["s_add_u32 s7, s51, s49"], [f"s_add_u32 s51, s51, {16 * MB}"]]

def softmax_ops(g):
    ops = []
    I = lambda s: ops.append(lambda s=s: g.e(s))
    T = [TMP + i for i in range(8)]
    k = 0
    for kt in range(4):
        for qb in range(2):
            s = sreg(kt, qb); t = T[(k % 2) * 4:(k % 2) * 4 + 4]; k += 1
            for r in range(4): I(f"v_exp_f32 v{t[r]}, v{s + r}")
            p = preg(qb, kt >> 1) + (kt & 1) * 2
            if kt == 0:
                I(f"v_add_f32 v{VLT + qb}, v{t[0]}, v{t[1]}")
                I(f"PK {p},{t[0]},{t[1]}")
                I(f"v_add_f32 v{VLT + qb}, v{VLT + qb}, v{t[2]}")
                I(f"PK {p + 1},{t[2]},{t[3]}")
                I(f"v_add_f32 v{VLT + qb}, v{VLT + qb}, v{t[3]}")
            else:
                I(f"v_add_f32 v{VLT + qb}, v{VLT + qb}, v{t[0]}")
                I(f"v_add_f32 v{VLT + qb}, v{VLT + qb}, v{t[1]}")
                I(f"PK {p},{t[0]},{t[1]}")
                I(f"v_add_f32 v{VLT + qb}, v{VLT + qb}, v{t[2]}")
                I(f"v_add_f32 v{VLT + qb}, v{VLT + qb}, v{t[3]}")
                I(f"PK {p + 1},{t[2]},{t[3]}")
    return ops

def xgroup(g, regs, op, tmp):
    for sw in ("v_permlane32_swap_b32", "v_permlane16_swap_b32"):
        for i, r in enumerate(regs): g.e(f"v_mov_b32 v{tmp + i}, v{r}")
        g.e("s_nop 1")
        for i, r in enumerate(regs): g.e(f"{sw} v{tmp + i}, v{r}")
        g.e("s_nop 1")
        for i, r in enumerate(regs): g.e(f"{op} v{r}, v{r}, v{tmp + i}")

def rescale(g, first):
    MX = [TMP + 8, TMP + 9]
    for qb in range(2):
        vals = [sreg(kt, qb) + r for kt in range(4) for r in range(4)]
        g.e(f"v_max3_f32 v{MX[qb]}, v{vals[0]}, v{vals[1]}, v{vals[2]}")
        for i in range(3, 15, 2): g.e(f"v_max3_f32 v{MX[qb]}, v{MX[qb]}, v{vals[i]}, v{vals[i + 1]}")
        g.e(f"v_max_f32 v{MX[qb]}, v{MX[qb]}, v{vals[15]}")
    xgroup(g, MX, "v_max_f32", TMP + 10)
    if not first:
        for qb in range(2): g.e(f"v_max_f32 v{MX[qb]}, 0, v{MX[qb]}")
    for kt in range(4):
        for qb in range(2):
            for r in range(4): g.e(f"v_sub_f32 v{sreg(kt, qb) + r}, v{sreg(kt, qb) + r}, v{MX[qb]}")
    for qb in range(2):
        for r in range(4): g.e(f"v_sub_f32 v{NEGM + qb * 4 + r}, v{NEGM + qb * 4 + r}, v{MX[qb]}")
    if not first:
        for qb in range(2): g.e(f"v_exp_f32 v{MX[qb]}, -v{MX[qb]}")
        g.e("s_nop 0")
        for cb in range(8):
            for qb in range(2):
                for r in range(4): g.e(f"v_mul_f32 v{oreg(cb, qb) + r}, v{oreg(cb, qb) + r}, v{MX[qb]}")
        for qb in range(2): g.e(f"v_mul_f32 v{VL + qb}, v{VL + qb}, v{MX[qb]}")

def mask_block(g):
    skip = g.newlabel("nomask"); l1 = g.newlabel("m1"); lf = g.newlabel("mf"); do = g.newlabel("domask")
    g.e("s_add_u32 s49, s52, 2")
    g.e("s_cmp_ge_u32 s49, s48")
    g.e(f"s_cbranch_scc1 {do}")
    g.e("s_sub_u32 s49, s52, s46")
    g.e("s_cmp_lt_u32 s49, 2")
    g.e(f"s_cbranch_scc0 {skip}")
    g.label(do)
    g.e("s_and_b32 s49, s52, 1")
    g.e("s_lshl_b32 s49, s49, 1")
    g.e("s_sub_u32 s49, s42, s49")
    def diag(kt, qb):
        for r in range(4): g.e(f"v_cndmask_b32 v{sreg(kt, qb) + r}, v{VNEG}, v{sreg(kt, qb) + r}, s[{8 + 2 * r}:{9 + 2 * r}]")
    def full(kt, qb):
        for r in range(4): g.e(f"v_mov_b32 v{sreg(kt, qb) + r}, v{VNEG}")
    g.e("s_cmp_ge_i32 s49, 2")
    g.e(f"s_cbranch_scc1 {skip}")
    g.e("s_cmp_eq_i32 s49, 1")
    g.e(f"s_cbranch_scc1 {l1}")
    g.e("s_cmp_lt_i32 s49, 0")
    g.e(f"s_cbranch_scc1 {lf}")
    diag(0, 0); full(1, 0); diag(1, 1); full(2, 0); full(2, 1); full(3, 0); full(3, 1)
    g.e(f"s_branch {skip}")
    g.label(l1)
    diag(2, 0); full(3, 0); diag(3, 1)
    g.e(f"s_branch {skip}")
    g.label(lf)
    for kt in range(4):
        for qb in range(2): full(kt, qb)
    g.label(skip)

def m_phase(g, has_pv, zero, split, post=None, pre=None):
    g.vm = []
    if has_pv: g.e("s_barrier")
    dma = dma4(g, 7) + (dma4(g, 51, "s_add_u32 m0, s50, 16384") if split else [])
    sal = [["s_add_u32 s49, s52, 2"], ["s_cmp_ge_u32 s49, s48", "s_cselect_b32 s4, 0, 4"], ["s_sub_u32 s49, s52, s46"], ["s_min_u32 s4, s4, s49"],
           ["s_cmp_lt_u32 s52, s53", "s_cselect_b32 s47, 1, 2"], ["s_add_u32 s47, s47, s52"]]
    sal2 = next_ops(47)
    if has_pv:
        g.ds = []
        sp = DSP if split else 4
        for j in range(16):
            kg, cb = j >> 3, j & 7
            for qb in range(2):
                g.e(f"{'MZ' if zero and kg == 0 else 'M'} {oreg(cb, qb)},{freg(j)},{preg(qb, kg)}")
                if qb == 0 and j >= 1: g.lds(f"DR {freg(j - 1)},{VF},{(j - 1) * 1024}", ("k", j - 1))
            if dma and j % sp == 0: dma.pop(0)()
            elif sal:
                for t in sal.pop(0): g.e(t)
        g.lds(f"DR {freg(15)},{VF},{15 * 1024}", ("k", 15))
    else:
        sp = 2
    PT = int(os.environ.get('PT', '5'))
    if has_pv and not zero: g.stamp_if(7, 52, PT)
    tail = []
    so = softmax_ops(g)[:NTAIL]
    for b in range(0, NTAIL, 9):
        o = so[b:b + 9]
        tail += [[o[0]], [o[1]], [o[2]], [o[3]], o[4:6], o[6:8], o[8:9]]
    for j in range(16):
        kt, mm = j >> 2, j & 3
        if j == EB:
            if pre: pre()
            g.wait_ds(("k", 15))
            if has_pv and not zero: g.stamp_if(8, 52, PT)
            if has_pv: g.e(f"s_waitcnt vmcnt({8 if split else 4})")
            g.e("s_setprio 2")
            g.e("s_barrier")
        if j == 0: g.wait_ds(("k", 10))
        if j == 5: g.wait_ds(("k", 15))
        for qb in range(2):
            if mm == 0: g.e(f"MC {sreg(kt, qb)},{freg(j)},{qreg(qb, mm)},{NEGM + qb * 4}")
            else: g.e(f"M {sreg(kt, qb)},{freg(j)},{qreg(qb, mm)}")
            if qb == 0 and j >= 1: g.lds(f"DR {freg(j - 1)},{VF},{16384 + (j - 1) * 1024}", "v")
            if j >= EB and tail:
                for op in tail.pop(0): op()
            if not has_pv and j >= EB and dma: dma.pop(0)()
            elif has_pv and qb == 1 and dma and (j + 16) % sp == 0: dma.pop(0)()
            elif qb == 1 and sal:
                for t in sal.pop(0): g.e(t)
            elif not sal and not dma and sal2:
                for t in sal2.pop(0): g.e(t)
    while dma: dma.pop(0)()
    assert not sal
    if post: post()
    for grp in sal2:
        for t in grp: g.e(t)
    g.lds(f"DR {freg(15)},{VF},{16384 + 15 * 1024}", "v")
    g.e("s_setprio 0")
    for w in tail:
        for op in w: op()
    g.vm = []; g.ds = []
    if has_pv:
        g.e("s_cmp_lt_u32 s4, 4")
        g.e("s_cbranch_scc1 L_k2_sgen")
    else:
        g.e("s_branch L_k2_sgen")

def advance(g):
    g.e("s_mov_b32 s52, s47")
    g.e(f"v_add_u32 v{VF}, s19, v{V16}")

def gen_attn(g):
    g.vm = []; g.ds = []
    g.label("L_k2_attn")
    g.e("s_mul_i32 s49, s41, 37")
    g.e("s_lshr_b32 s49, s49, 8")
    g.e("s_mul_i32 s50, s49, 7")
    g.e("s_sub_u32 s44, s41, s50")
    g.e("s_lshl_b32 s49, s49, 3")
    g.e("s_add_u32 s43, s3, s49")
    g.e("s_lshr_b32 s41, s40, 2")
    g.e("s_and_b32 s42, s40, 3")
    g.e("s_sub_u32 s32, 15, s44")
    g.e("s_add_u32 s33, s44, 4")
    g.e("s_cmp_eq_u32 s44, 6")
    g.e("s_cselect_b32 s32, 3, s32")
    g.e("s_cselect_b32 s33, 2, s33")
    g.e("s_lshl_b32 s49, s3, 20")
    g.e("s_add_u32 s60, s6, s49")
    g.e("s_addc_u32 s61, s7, 0")
    g.e(f"s_mov_b32 s62, {MB}")
    g.e("s_mov_b32 s63, 0x20000")
    srd(g, 20, 4, 5, 512 * 8192)
    srd(g, 24, 16, 17, SZ_XN, WS_XN)
    srd(g, 28, 16, 17, 2 * SZ_KV, WS_K)
    srd(g, 36, 16, 17, SZ_CTX, WS_CTX)
    g.e("s_lshl_b32 s55, s42, 12")
    g.e("s_lshl_b32 s54, s43, 19")
    g.e("s_add_u32 s54, s54, s55")
    g.e("s_lshl_b32 s57, s42, 13")
    g.e(f"s_add_u32 s57, s57, {STASH}")
    g.e("v_and_b32 v28, 63, v0")
    g.e(f"v_lshlrev_b32 v{V16}, 4, v28")
    g.e("v_and_b32 v28, 15, v0")
    g.e("v_bfe_u32 v29, v0, 4, 2")
    g.e("v_lshlrev_b32 v29, 2, v29")
    g.e("v_sub_u32 v28, v28, v29")
    for r in range(4): g.e(f"v_cmp_le_i32 s[{8 + 2 * r}:{9 + 2 * r}], {r}, v28")
    if MERGE:
        g.e("s_mul_i32 s49, s43, 43")
        g.e("s_lshr_b32 s49, s49, 7")
        g.e("s_lshl_b32 s49, s49, 7")
        g.e("s_lshl_b32 s50, s3, 12")
        g.e("s_add_u32 s49, s49, s50")
        g.e("v_and_b32 v14, 15, v0")
        g.e("v_lshl_add_u32 v14, v14, 2, s49")
        g.e("s_barrier")
    g.label("L_k2_round")
    w_voffsets(g, 8192, 1)
    g.e("s_lshl_b32 s18, s43, 8")
    g.e("s_lshl_b32 s49, s42, 18")
    g.e("s_add_u32 s18, s18, s49")
    g.e("s_lshl_b32 s49, s41, 7")
    g.e("s_add_u32 s18, s18, s49")
    g.e("s_lshl_b32 s19, s40, 12")
    g.e("s_cmp_eq_u32 s41, 0")
    g.e("s_cselect_b32 s47, s32, s33")
    g.e("s_lshl_b32 s47, s47, 17")
    g.e("s_lshl_b32 s49, s42, 15")
    g.e("s_add_u32 s47, s47, s49")
    def wdma(s):
        g.e(f"s_add_u32 s51, s18, {s * 128 * 8192}")
        g.e(f"s_add_u32 m0, s19, {s * 32768}")
        g.e("s_nop 0")
        for j in range(4):
            g.vmem(f"buffer_load_dwordx4 v{1 + j}, s[20:23], s51 offen offset:{j * 1024} {NTWQ} lds", ("w", s))
    def xload(m):
        if m % 4 == 0:
            g.e(f"s_add_u32 s6, s47, {m * 1024}")
            g.e(f"s_add_u32 s7, s47, {m * 1024 + 16384}")
        for a in range(2):
            x = xreg(a, m)
            g.vmem(f"buffer_load_dwordx4 v[{x}:{x + 3}], v{V16}, s[24:27], s{6 + a} offen offset:{(m % 4) * 1024} {SC}", ("x", m))
    if PROF == 1: g.stamp(6)
    wdma(0)
    for m in range(2): xload(m)
    if not MERGE: code_touch(g, 96, 14, "L_k2_sp")
    g.e("s_barrier")
    for m in range(2, 4): xload(m)
    later = {0: lambda: wdma(1), 22: lambda: wdma(2), 50: lambda: wdma(3)}
    def pf_wsp():
        sk = g.newlabel("nopf")
        g.e("s_cmp_eq_u32 s32, 1")
        g.e(f"s_cbranch_scc1 {sk}")
        g.e("s_and_b32 s49, s2, 0xf8")
        g.e("s_add_u32 s49, s49, s40")
        g.e("s_mul_i32 s49, s49, 4736")
        g.e(f"v_lshlrev_b32 v10, 3, v{V16}")
        g.e("v_mov_b32 v12, 0x10000000")
        g.e("v_cmp_gt_u32 vcc, 4736, v10")
        g.e("s_nop 1")
        g.e("v_cndmask_b32 v11, v12, v10, vcc")
        g.e("buffer_load_dword v13, v11, s[60:63], s49 offen")
        if PF4:
            g.e("s_load_dwordx2 s[96:97], s[0:1], 40")
            g.e("s_load_dwordx2 s[100:101], s[0:1], 80")
            g.e("s_lshl_b32 s49, s2, 3")
            g.e("s_add_u32 s49, s49, s40")
            g.e("v_cmp_gt_u32 vcc, 2432, v10")
            g.e("s_mul_i32 s58, s49, 2432")
            g.e("s_lshl_b32 s59, s49, 9")
            g.e("v_cndmask_b32 v11, v12, v10, vcc")
            g.e("v_cmp_gt_u32 vcc, 512, v10")
            g.e("s_waitcnt lgkmcnt(0)")
            g.e(f"s_mov_b32 s98, {4 * MB}")
            g.e("s_mov_b32 s99, 0x20000")
            g.e("buffer_load_dword v13, v11, s[96:99], s58 offen")
            g.e("v_cndmask_b32 v11, v12, v10, vcc")
            g.e("s_mov_b32 s96, s100")
            g.e("s_mov_b32 s97, s101")
            g.e(f"s_mov_b32 s98, {896 * 1024}")
            g.e("buffer_load_dword v13, v11, s[96:99], s59 offen")
        g.label(sk)
    for m, F in zip(range(4, 16), XSCH): later[F] = lambda m=m: xload(m)
    tr_bases(g, 5, 6)
    g.e(f"s_mov_b32 s56, {f32(QSCALE)}")
    g.e("s_lshl_b32 s48, s32, 1")
    g.e("s_add_u32 s48, s48, 2")
    g.e("s_lshl_b32 s45, s33, 1")
    g.e("s_add_u32 s45, s45, 2")
    g.e("s_sub_u32 s53, s45, s41")
    g.e("s_sub_u32 s46, s45, 2")
    g.e("s_cmp_eq_u32 s41, 0")
    g.e("s_cselect_b32 s46, 0x1000, s46")
    g.stamp(1)
    def first_tile(t):
        g.e("s_lshl_b32 s49, s41, 24")
        g.e("s_add_u32 s50, s54, s49")
        if t: g.e("s_add_u32 s50, s50, 16384")
        return dma4(g, 50, f"s_add_u32 m0, s19, {t * 32768}", "kv")
    def w0_only(fn):
        sk = g.newlabel("w0")
        g.e("s_cmp_eq_u32 s32, 1")
        g.e("s_cselect_b32 s49, 1, s40")
        g.e("s_cmp_lg_u32 s49, 0")
        g.e(f"s_cbranch_scc1 {sk}")
        fn()
        g.label(sk)
    if MERGE: later[20] = lambda: w0_only(lambda: flag_load(g, 13, 14, 100))
    def fmap(s, f):
        return (f >> 4, (f >> 2) & 3, f & 3) if s == 3 else ((f >> 2) & 1, f >> 3, f & 3)
    def wread(F, half=None):
        s, f = F >> 5, F & 31
        if s >= 4: return
        if f == 0 and half != 1:
            g.wait_vm(("w", s), "kv")
            if MERGE and s == 2: w0_only(lambda: flag_wait(g, 13, 14, 59, 100, SLA, True))
            g.e("s_barrier")
            if MERGE and s == 0: w0_only(lambda: flag_set(g, 10, 58, 59, 100))
            if s == 2:
                g.e("v_xor_b32 v5, 0x10000, v5")
                g.e("v_xor_b32 v6, 0x10000, v6")
            if s >= 2:
                for op in first_tile(s - 2): op()
        p, ks, cb = fmap(s, f)
        mp = p * 4 + ks
        r = WR + (F % 8) * 4
        for a in (range(2) if half is None else [half]):
            o = (s & 1) * 32768 + mp * 4096 + a * 512 + (cb >> 1) * 256
            g.lds(f"TR {r + 2 * a},{6 if cb & 1 else 5},{o}", ("w", F))
    def qpack(p):
        ops = []
        I = lambda s: ops.append(lambda s=s: g.e(s))
        for a in range(2):
            for mm in range(2):
                x, y = areg(p, 2 * mm, a), areg(p, 2 * mm + 1, a)
                assert x == qreg(a, 2 * p + mm)
                for r in range(4): I(f"v_mul_f32 v{x + r}, s56, v{x + r}")
                for r in range(4): I(f"v_mul_f32 v{y + r}, s56, v{y + r}")
                I(f"PK {x},{x},{x + 1}"); I(f"PK {x + 1},{x + 2},{x + 3}")
                I(f"PK {x + 2},{y},{y + 1}"); I(f"PK {x + 3},{y + 2},{y + 3}")
        return ops
    for F in range(D): wread(F)
    fill = []
    for s in range(4):
        if PROF == 1: g.stamp(7 + s)
        for f in range(32):
            F = s * 32 + f
            p, ks, cb = fmap(s, f)
            m = s * 4 + ks
            if F == 116: fill = qpack(0)
            if p == 0 and cb == 0: g.wait_vm(("x", m))
            g.wait_ds(("w", F))
            r = WR + (F % 8) * 4
            for a in range(2):
                g.e(f"{'MZ' if m == 0 else 'M'} {areg(p, cb, a)},{r},{xreg(a, m)}")
                wread(F + D, a)
                if fill: fill.pop(0)(); fill.pop(0)()
            if F in later: later.pop(F)()
    assert not fill and not later
    g.stamp(2)
    g.e("s_mov_b32 s47, 0")
    for grp in next_ops(47):
        for t in grp: g.e(t)
    advance(g)
    g.vm = []; g.ds = []
    for j in range(16): g.e(f"DR {freg(j)},{VF},{j * 1024}")
    for op in qpack(1): op()
    g.e(f"v_mov_b32 v{VNEG}, {f32(-1e30)}")
    g.e(f"s_mov_b32 s56, {f32(2.0 ** 30)}")
    g.e(f"s_mov_b32 s6, {f32(2.0 ** -30)}")
    for i in range(8): g.e(f"v_mov_b32 v{NEGM + i}, 0")
    g.e(f"v_add_u32 v9, s57, v{V16}")
    g.e("s_waitcnt vmcnt(0) lgkmcnt(0)")
    g.stamp(3)
    la = g.newlabel("qa")
    g.e("s_cmp_eq_u32 s41, 0")
    g.e(f"s_cbranch_scc1 {la}")
    g.e("s_barrier")
    g.label(la)
    def post0():
        if PFS and not SPT: pf_wsp()
    def pre0():
        sk = g.newlabel("nost")
        g.e("s_cmp_eq_u32 s41, 0")
        g.e(f"s_cbranch_scc0 {sk}")
        for qb in range(2):
            for mm in range(4): g.e(f"DW 9,{qreg(qb, mm)},{(qb * 4 + mm) * 1024}")
        g.label(sk)
    m_phase(g, False, False, False, post0, pre0)
    def s_fast(tag):
        g.label(f"L_k2_s{tag}")
        PT = int(os.environ.get('PT', '5'))
        g.stamp_if(9, 52, PT)
        for op in softmax_ops(g)[NTAIL:]: op()
        g.e(f"v_max_f32 v{VT}, v{VLT}, v{VLT + 1}")
        g.e(f"v_cmp_lt_f32 vcc, s56, v{VT}")
        g.e("s_cbranch_vccnz L_k2_sgen")
        for qb in range(2): g.e(f"v_add_f32 v{VL + qb}, v{VL + qb}, v{VLT + qb}")
        g.stamp_if(10, 52, PT)
        if PROF == 2:
            g.e("s_waitcnt vmcnt(0) lgkmcnt(0)")
            g.stamp_if(11, 52, PT)
        advance(g)
        if tag == "sh": g.e("s_cmp_lt_u32 s52, s45")
        g.e("s_waitcnt lgkmcnt(0)" if tag == "sh" else "s_waitcnt vmcnt(0) lgkmcnt(0)")
    s_fast("sh")
    g.e("s_cbranch_scc0 L_k2_msp")
    g.label("L_k2_msh")
    g.stamp_if(6, 52, int(os.environ.get('PT', '5'))); g.stamp_if(12, 52, int(os.environ.get('PT', '5')) + 1)
    m_phase(g, True, False, False)
    g.e("s_branch L_k2_ssh")
    s_fast("sp")
    g.label("L_k2_msp")
    m_phase(g, True, False, True)
    g.e("s_branch L_k2_ssp")
    g.label("L_k2_mzsh")
    m_phase(g, True, True, False)
    g.e("s_branch L_k2_ssh")
    g.label("L_k2_mzsp")
    m_phase(g, True, True, True)
    g.e("s_branch L_k2_ssp")
    EXP = os.environ.get('ATEXP', '')
    if EXP:
        i0 = g.lines.index("L_k2_ssh:")
        keep = []
        for l in g.lines[i0:]:
            if 'd' in EXP and l.startswith('buffer_load'): continue
            if 'r' in EXP and l.startswith('DR '): continue
            if 'e' in EXP and l.startswith('v_exp'): l = l.replace('v_exp_f32', 'v_mov_b32')
            if 'v' in EXP and (l.startswith('v_exp') or l.startswith('PK') or (l.startswith('v_add_f32 v8') or l.startswith('v_add_f32 v9'))): continue
            if 'b' in EXP and l.startswith('s_cbranch_vccnz'): continue
            keep.append(l)
        g.lines[i0:] = keep
    def ctx_base(blk):
        g.e(f"s_lshl_b32 s49, s{blk}, 3")
        g.e("s_lshl_b32 s35, s42, 1")
        g.e("s_add_u32 s49, s49, s35")
        g.e("s_mul_i32 s49, s49, 159744")
        g.e("s_lshl_b32 s35, s43, 12")
        g.e("s_add_u32 s34, s49, s35")
        g.e("s_add_u32 s35, s34, 159744")
    def pack_store(mm, qb, fl=STF2):
        x, y = oreg(2 * mm, qb), oreg(2 * mm + 1, qb)
        return [f"PK {x},{x},{x + 1}", f"PK {x + 1},{x + 2},{x + 3}", f"PK {x + 2},{y},{y + 1}", f"PK {x + 3},{y + 2},{y + 3}",
                f"buffer_store_dwordx4 v[{x}:{x + 3}], v{V16}, s[36:39], s{34 + qb} offen offset:{mm * 1024} {fl}"]
    g.label("L_k2_sgen")
    def st5(i, val):
        if PROF == 5:
            l = g.newlabel("st"); g.e(f"s_cmp_lg_u32 s52, {val}"); g.e(f"s_cbranch_scc1 {l}"); g.stamp(i); g.label(l)
    st5(4, 0); st5(7, 8); st5(9, 9); st5(11, 11)
    if PROF == 5: g.stamp(13)
    g.e("s_sub_u32 s49, s52, s46")
    g.e("s_cmp_eq_u32 s49, 3")
    g.e("s_cselect_b32 s5, 2, 0")
    g.e("s_cmp_eq_u32 s52, 0")
    g.e("s_cselect_b32 s5, 1, s5")
    g.e("s_cselect_b32 s18, s6, 0")
    g.e("s_cmp_eq_u32 s5, 2")
    g.e("s_cselect_b32 s18, s6, s18")
    mask_block(g)
    ny = g.newlabel("ny"); jy = g.newlabel("jy")
    g.e("s_cmp_eq_u32 s5, 2")
    g.e(f"s_cbranch_scc0 {ny}")
    ctx_base(33)
    so = softmax_ops(g)
    k = 0
    for mm in range(4):
        for qb in range(2):
            for cb in (2 * mm, 2 * mm + 1):
                for r in range(4): g.e(f"v_mul_f32 v{oreg(cb, qb) + r}, v{oreg(cb, qb) + r}, v{FA + qb}")
            for t in pack_store(mm, qb): g.e(t)
            n = 9 if k < 2 else 10
            for op in so[:n]: op()
            so = so[n:]; k += 1
    assert not so
    g.e(f"s_branch {jy}")
    g.label(ny)
    for op in softmax_ops(g): op()
    g.label(jy)
    g.e(f"v_max_f32 v{VT}, v{VLT}, v{VLT + 1}")
    g.e(f"v_min_f32 v{TMP}, v{VLT}, v{VLT + 1}")
    g.e(f"v_cmp_lt_f32 vcc, s56, v{VT}")
    g.e("s_cbranch_vccnz L_k2_slow")
    g.e(f"v_cmp_gt_f32 vcc, s18, v{TMP}")
    g.e("s_cbranch_vccnz L_k2_slow")
    g.label("L_k2_back")
    nf = g.newlabel("nf")
    g.e("s_cmp_eq_u32 s5, 0")
    g.e(f"s_cbranch_scc1 {nf}")
    for qb in range(2): g.e(f"v_mov_b32 v{VL + qb}, 0")
    g.label(nf)
    for qb in range(2): g.e(f"v_add_f32 v{VL + qb}, v{VL + qb}, v{VLT + qb}")
    g.e("s_add_u32 s49, s52, 2")
    g.e("s_cmp_ge_u32 s49, s48")
    g.e("s_cbranch_scc1 L_k2_xlast")
    nl = g.newlabel("nyl")
    g.e("s_sub_u32 s49, s52, s46")
    g.e("s_cmp_eq_u32 s49, 1")
    g.e(f"s_cbranch_scc0 {nl}")
    g.e(f"v_add_u32 v10, s57, v{V16}")
    for qb in range(2):
        for mm in range(4): g.e(f"DR {qreg(qb, mm)},10,{(qb * 4 + mm) * 1024}")
    xgroup(g, [VL, VL + 1], "v_add_f32", TMP + 2)
    for qb in range(2): g.e(f"v_rcp_f32 v{FA + qb}, v{VL + qb}")
    for i in range(8): g.e(f"v_mov_b32 v{NEGM + i}, 0")
    g.label(nl)
    st5(6, 0); st5(8, 8); st5(10, 9); st5(12, 11)
    advance(g)
    g.e("s_cmp_lt_u32 s52, s45")
    g.e("s_cselect_b32 s49, 0, 4")
    g.e("s_add_u32 s5, s5, s49")
    w8 = g.newlabel("w8")
    g.e("s_and_b32 s49, s5, 3")
    g.e(f"s_cbranch_scc1 {w8}")
    g.e("s_waitcnt vmcnt(0)")
    g.label(w8)
    g.e("s_waitcnt vmcnt(8) lgkmcnt(0)")
    g.e("s_cmp_eq_u32 s5, 0")
    g.e("s_cbranch_scc1 L_k2_msh")
    g.e("s_cmp_eq_u32 s5, 4")
    g.e("s_cbranch_scc1 L_k2_msp")
    g.e("s_cmp_eq_u32 s5, 1")
    g.e("s_cbranch_scc1 L_k2_mzsh")
    g.e("s_branch L_k2_mzsp")
    g.label("L_k2_xlast")
    if PROF == 5: g.stamp(14)
    g.e("s_and_b32 s49, s48, 3")
    g.e("s_lshl_b32 s49, s49, 15")
    g.e("s_lshl_b32 s50, s42, 13")
    g.e("s_add_u32 s50, s50, s49")
    g.e(f"v_add_u32 v11, s50, v{V16}")
    g.e(f"v_add_u32 v10, s57, v{V16}")
    g.e("s_xor_b32 s49, s49, 0x10000")
    g.e("s_lshl_b32 s50, s42, 10")
    g.e("s_add_u32 s49, s49, s50")
    g.e(f"v_add_u32 v{VT}, s49, v{V16}")
    xaddr = lambda i: (10 + (i >> 3), (i & 7) * 1024)
    def pvgroup(cb, zero, mid=()):
        mid = list(mid)
        for kg in range(2):
            for qb in range(2):
                g.e(f"{'MZ' if zero and kg == 0 else 'M'} {oreg(cb, qb)},{freg(kg * 8 + cb)},{preg(qb, kg)}")
                n = -(-len(mid) // (4 - (kg * 2 + qb)))
                for _ in range(n): mid.pop(0)()
    g.e("s_cmp_eq_u32 s41, 0")
    g.e("s_cbranch_scc0 L_k2_xlastB")
    g.e(f"v_mov_b32 v{ML}, v{NEGM}")
    g.e(f"v_mov_b32 v{ML + 1}, v{NEGM + 4}")
    g.e(f"v_mov_b32 v{ML + 2}, v{VL}")
    g.e(f"v_mov_b32 v{ML + 3}, v{VL + 1}")
    g.e(f"DW {VT},{ML},0")
    g.e("s_waitcnt vmcnt(0) lgkmcnt(0)")
    g.e("s_barrier")
    dw = lambda i: (lambda: g.e(f"DW {xaddr(i)[0]},{OR + i * 4},{xaddr(i)[1]}"))
    for cb in range(8):
        pvgroup(cb, False, [dw(2 * cb - 6), dw(2 * cb - 5)] if cb >= 3 else [])
    for i in range(10, 12): dw(i)()
    g.e("s_nop 3")
    for i in range(12, 16): dw(i)()
    g.e("s_waitcnt lgkmcnt(0)")
    g.e("s_barrier")
    g.e("s_branch L_k2_rend")
    g.label("L_k2_xlastB")
    g.e(f"DR {ML},{VT},0")
    ctx_base(32)
    NM = TMP
    g.e("s_waitcnt lgkmcnt(0)")
    for qb in range(2): g.e(f"v_min_f32 v{NM + qb}, v{ML + qb}, v{NEGM + 4 * qb}")
    for qb in range(2): g.e(f"v_sub_f32 v{FA + qb}, v{NM + qb}, v{ML + qb}")
    for qb in range(2): g.e(f"v_sub_f32 v{FB + qb}, v{NM + qb}, v{NEGM + 4 * qb}")
    for i in range(4): g.e(f"v_exp_f32 v{FA + i}, v{FA + i}")
    g.e("s_nop 0")
    for qb in range(2): g.e(f"v_mul_f32 v{VL + qb}, v{VL + qb}, v{FB + qb}")
    for qb in range(2): g.e(f"v_fmac_f32 v{VL + qb}, v{ML + 2 + qb}, v{FA + qb}")
    xgroup(g, [VL, VL + 1], "v_add_f32", TMP + 2)
    for qb in range(2): g.e(f"v_rcp_f32 v{VL + qb}, v{VL + qb}")
    g.e("s_nop 0")
    for qb in range(2): g.e(f"v_mul_f32 v{FA + qb}, v{FA + qb}, v{VL + qb}")
    for qb in range(2): g.e(f"v_mul_f32 v{FB + qb}, v{FB + qb}, v{VL + qb}")
    lz = g.newlabel("finz")
    g.e("s_cmp_eq_u32 s5, 0")
    g.e(f"s_cbranch_scc0 {lz}")
    for zero in (False, True):
        if zero: g.label(lz)
        g.ds = []
        for cb in range(4): pvgroup(cb, zero)
        g.e("s_barrier")
        def merge_ops(mm):
            ops = []
            I = lambda t: ops.append(lambda t=t: g.e(t))
            for qb in range(2):
                for cb in (2 * mm, 2 * mm + 1):
                    o = oreg(cb, qb)
                    for r in range(4): I(f"v_mul_f32 v{o + r}, v{o + r}, v{FB + qb}")
                    ops.append(lambda cb=cb, qb=qb: g.wait_ds(("o", cb, qb)))
                    for r in range(4): I(f"v_fmac_f32 v{o + r}, v{freg(qb * 8 + cb) + r}, v{FA + qb}")
                for t in pack_store(mm, qb, STFX): I(t)
            return ops
        xr = lambda cb, qb: (lambda: g.lds(f"DR {freg(qb * 8 + cb)},{xaddr(cb * 2 + qb)[0]},{xaddr(cb * 2 + qb)[1]}", ("o", cb, qb)))
        for cb in range(3): xr(cb, 0)(); xr(cb, 1)()
        m0 = merge_ops(0)
        for cb in range(4, 8):
            mid = [xr(cb - 1, 0), xr(cb - 1, 1)]
            if cb == 6: mid += m0[:len(m0) // 2]
            if cb == 7: mid += m0[len(m0) // 2:]
            pvgroup(cb, zero, mid)
        xr(7, 0)(); xr(7, 1)()
        for op in merge_ops(1) + merge_ops(2) + merge_ops(3): op()
        if not zero: g.e("s_branch L_k2_rend")
    g.label("L_k2_rend")
    g.stamp(5)
    g.e("s_cmp_eq_u32 s32, 3")
    g.e("s_cbranch_scc0 L_k2_aend")
    g.stamp(4)
    g.e("s_mov_b32 s32, 1")
    g.e("s_mov_b32 s33, 0")
    g.e("s_waitcnt vmcnt(0) lgkmcnt(0)")
    g.e("s_barrier")
    g.e("s_branch L_k2_round")
    g.label("L_k2_aend")
    skc = g.newlabel("nocode")
    g.e("s_cmp_eq_u32 s44, 6")
    g.e(f"s_cbranch_scc0 {skc}")
    code_touch(g, 96, 14, "L_all_end", "k3_kernel", False)
    g.label(skc)
    if PF2:
        sk = g.newlabel("nopf")
        g.e("s_cmp_eq_u32 s44, 6")
        g.e(f"s_cbranch_scc0 {sk}")
        g.e("s_cmp_eq_u32 s41, 1")
        g.e(f"s_cbranch_scc0 {sk}")
        g.e("s_load_dwordx2 s[20:21], s[0:1], 40")
        g.e("s_load_dwordx2 s[28:29], s[0:1], 80")
        g.e("s_lshl_b32 s49, s43, 2")
        g.e("s_add_u32 s49, s49, s42")
        g.e(f"v_lshlrev_b32 v10, 3, v{V16}")
        g.e("s_lshl_b32 s50, s49, 15")
        g.e("s_mul_i32 s51, s49, 7168")
        g.e("s_waitcnt lgkmcnt(0)")
        g.e(f"s_mov_b32 s22, {4 * MB}")
        g.e("s_mov_b32 s23, 0x20000")
        g.e(f"s_mov_b32 s30, {896 * 1024}")
        g.e("s_mov_b32 s31, 0x20000")
        for i in range(4):
            g.e(f"buffer_load_dword v{12 + i}, v10, s[20:23], s50 offen")
            g.e("s_add_u32 s50, s50, 8192")
        g.e("buffer_load_dword v11, v10, s[28:31], s51 offen")
        g.label(sk)
    g.stamp_dump(16, 17, 40, 1)
    g.e("s_endpgm")
    g.label("L_k2_slow")
    l1 = g.newlabel("slow1"); l2 = g.newlabel("slow2")
    g.e("s_cmp_eq_u32 s5, 0")
    g.e(f"s_cbranch_scc0 {l1}")
    rescale(g, False)
    g.e(f"s_branch {l2}")
    g.label(l1)
    rescale(g, True)
    g.label(l2)
    for op in softmax_ops(g): op()
    g.e("s_branch L_k2_back")

def gen_spatial(g):
    ACC, AR, BB, Z1R = 144, 116, 84, 24
    ZB, ZS = 98304, 14336
    VWD = 80
    acc = lambda fb, tt: ACC + (fb * 4 + tt) * 4
    g.vm = []; g.ds = []
    g.label("L_k2_sp")
    g.e("s_sub_u32 s44, s41, 28")
    g.e("s_and_b32 s42, s40, 3")
    g.e("s_lshr_b32 s41, s40, 2")
    srd(g, 20, 6, 7, 2048 * 4096)
    srd(g, 24, 16, 17, SZ_Z, WS_Z2)
    g.e("v_and_b32 v28, 63, v0")
    g.e(f"v_lshlrev_b32 v{V16}, 4, v28")
    g.e("v_bfe_u32 v28, v0, 3, 3")
    g.e("v_and_b32 v29, 7, v0")
    g.e("v_lshrrev_b32 v30, 1, v28")
    g.e("v_xor_b32 v29, v29, v30")
    g.e("s_lshl_b32 s49, s3, 8")
    g.e("s_lshl_b32 s50, s40, 5")
    g.e("s_add_u32 s49, s49, s50")
    g.e("v_add_u32 v28, s49, v28")
    g.e("v_lshlrev_b32 v28, 12, v28")
    g.e("v_xor_b32 v30, 4, v29")
    g.e("v_lshl_add_u32 v29, v29, 4, v28")
    g.e("v_lshl_add_u32 v30, v30, 4, v28")
    for j in range(4): g.e(f"v_add_u32 v{VWD + j}, {j * 8 * 4096 - j * 1024}, v{29 + (j & 1)}")
    g.e("s_lshl_b32 s48, s40, 1")
    g.e("s_min_u32 s48, s48, 12")
    g.e("s_mul_i32 s49, s44, 14")
    g.e("s_add_u32 s49, s49, s48")
    g.e("s_lshl_b32 s43, s49, 10")
    g.e("s_mov_b32 s45, 0")
    g.e("s_lshl_b32 s46, s40, 12")
    g.e("s_lshl_b32 s47, s48, 10")
    g.e(f"s_add_u32 s47, s47, {ZB}")
    def wop(b, j):
        if j % 2 == 0:
            g.e(f"s_add_u32 m0, s46, {(b % 3) * 32768}")
            g.e("s_nop 0")
        g.vmem(f"buffer_load_dwordx4 v{VWD + j}, s[20:23], s45 offen offset:{j * 1024} {NTSP} lds", ("w", 2 * b))
        if j == 3: g.e("s_add_u32 s45, s45, 128")
    def zop(st, j):
        if j == 0:
            g.e(f"s_add_u32 m0, s47, {(st % 4) * ZS}")
            g.e("s_nop 0")
        g.vmem(f"buffer_load_dwordx4 v{V16}, s[24:27], s43 offen offset:{j * 1024} {SC} lds", ("z", st))
        if j == 1: g.e("s_add_u32 s43, s43, 57344")
    def dma_ops(st):
        b, h = st // 2 + 2, st & 1
        return [lambda: zop(st + 3, 0), lambda: zop(st + 3, 1), lambda: wop(b, 2 * h), lambda: wop(b, 2 * h + 1)]
    if MERGE:
        g.e("s_waitcnt vmcnt(0)")
        g.e("s_barrier")
        nw = g.newlabel("nw"); nw2 = g.newlabel("nw")
        g.e("s_cmp_lg_u32 s40, 0")
        g.e(f"s_cbranch_scc1 {nw}")
        flag_set(g, 10, 58, 59, 100)
        g.label(nw)
        for b in range(2):
            for j in range(4): wop(b, j)
        g.e("s_lshl_b32 s49, s44, 3")
        g.e("s_add_u32 s49, s49, s40")
        g.e("s_lshl_b32 s49, s49, 15")
        g.e("s_lshl_b32 s50, s3, 20")
        g.e("s_add_u32 s49, s49, s50")
        g.e(f"v_lshlrev_b32 v10, 3, v{V16}")
        for i in range(SPT):
            g.vmem("buffer_load_dword v9, v10, s[20:23], s49 offen", ("w", 0))
            g.e("s_add_u32 s49, s49, 8192")
        g.e("s_cmp_lg_u32 s40, 0")
        g.e(f"s_cbranch_scc1 {nw2}")
        g.e("v_min_u32 v14, 55, v0")
        g.e("v_and_b32 v15, 7, v14")
        g.e("v_lshrrev_b32 v14, 3, v14")
        g.e("v_lshlrev_b32 v14, 7, v14")
        g.e("v_lshl_add_u32 v14, v15, 2, v14")
        g.e("s_lshl_b32 s49, s3, 12")
        g.e(f"s_add_u32 s49, s49, {14 * 128 + 32}")
        g.e("v_add_u32 v14, s49, v14")
        flag_wait(g, 12, 14, 59, 100, SLS, False)
        g.e("v_min_u32 v14, 39, v0")
        g.e("v_and_b32 v15, 3, v14")
        g.e("v_lshrrev_b32 v14, 2, v14")
        g.e("v_lshlrev_b32 v14, 7, v14")
        g.e("v_lshl_add_u32 v14, v15, 3, v14")
        g.e("s_lshl_b32 s49, s3, 12")
        g.e(f"s_add_u32 s49, s49, {11 * 128}")
        g.e("v_add_u32 v14, s49, v14")
        g.label(nw2)
        g.e("s_barrier")
        zop(0, 0); zop(0, 1)
    else:
        zop(0, 0); zop(0, 1)
        for j in range(4): wop(0, j)
        code_touch(g, 96, 14, "L_k2_spend", None, False)
    srd(g, 12, 8, 9, 4096)
    g.e("v_and_b32 v11, 15, v0")
    g.e("v_lshlrev_b32 v11, 1, v11")
    g.e("s_lshl_b32 s49, s3, 9")
    g.e("s_lshl_b32 s50, s42, 7")
    g.e("s_add_u32 s49, s49, s50")
    for tt in range(4): g.vmem(f"buffer_load_ushort v{16 + tt}, v11, s[12:15], s49 offen offset:{tt * 32}", ("w", 0))
    g.e("s_barrier")
    zop(1, 0); zop(1, 1)
    srd(g, 28, 16, 17, 32768, WS_PART + 8 * MB)
    g.e("s_sub_u32 s49, s2, 224")
    g.e("s_lshl_b32 s49, s49, 10")
    g.e("v_lshrrev_b32 v28, 6, v0")
    g.e(f"v_lshl_add_u32 v28, v28, 24, v{V16}")
    for i in range(4): g.e(f"v_mov_b32 v{20 + i}, 0")
    g.e("buffer_store_dwordx4 v[20:23], v28, s[28:31], s49 offen")
    srd(g, 28, 16, 17, SZ_Z, WS_Z1)
    srd(g, 36, 16, 17, SZ_CTX, WS_CTX)
    g.e("s_mul_i32 s49, s41, 7168")
    g.e(f"s_add_u32 s49, s49, {ZB}")
    g.e(f"v_add_u32 v4, s49, v{V16}")
    g.e("v_and_b32 v28, 15, v0")
    g.e("v_bfe_u32 v29, v0, 4, 2")
    g.e("v_lshrrev_b32 v30, 1, v28")
    g.e("v_xor_b32 v29, v29, v30")
    g.e("v_lshlrev_b32 v29, 4, v29")
    g.e("v_lshl_add_u32 v29, v28, 7, v29")
    g.e("s_lshl_b32 s49, s42, 13")
    g.e("v_add_u32 v1, s49, v29")
    g.e("v_xor_b32 v2, 64, v1")
    g.e("v_add_u32 v5, 0x10000, v1")
    g.e("v_add_u32 v6, 0x10000, v2")
    def aread(st, fb): g.lds(f"DR {AR + fb * 4},4,{(st % 4) * ZS + fb * 1024}", ("a", st, fb))
    def bread(st, tt):
        sl = (st // 2) % 3
        g.lds(f"DR {BB + (st & 1) * 16 + tt * 4},{(5 if sl == 2 else 1) + (st & 1)},{(sl & 1) * 32768 + tt * 2048}", ("b", st))
    SCH = {(3, 0): ("a", 0), (3, 1): ("b", 0), (3, 2): ("b", 1), (4, 0): ("b", 2), (4, 1): ("b", 3), (4, 2): ("a", 1), (5, 0): ("a", 2), (6, 0): ("a", 3)}
    rd = lambda st, k: (aread if k[0] == "a" else bread)(st, k[1])
    g.wait_vm(("z", 0), ("w", 0))
    g.e("s_barrier")
    for key in sorted(SCH): rd(0, SCH[key])
    for tt in range(4):
        for r in range(4): g.e(f"v_lshlrev_b32 v{24 + tt * 4 + r}, 16, v{16 + tt}")
    g.e("s_mov_b32 s52, 0")
    g.stamp(1)
    def step(st, extra=(), dma=4, nxt=True, init=False):
        extra = list(extra)
        pend = []
        for fb in range(7):
            g.wait_ds(("a", st, fb), ("b", st))
            for tt in range(4):
                if init: g.e(f"MC {acc(fb, tt)},{AR + fb * 4},{BB + (st & 1) * 16 + tt * 4},{24 + tt * 4}")
                else: g.e(f"M {acc(fb, tt)},{AR + fb * 4},{BB + (st & 1) * 16 + tt * 4}")
                if tt == 0 and fb < 3: aread(st, fb + 4)
                if nxt:
                    if (fb, tt) == (3, 0):
                        g.wait_vm(("z", st + 1), ("w", st + 1))
                        g.e("s_barrier")
                        pend = dma_ops(st)[:dma]
                    if (fb, tt) in SCH: rd(st + 1, SCH[(fb, tt)])
                if tt == 3 and pend: pend.pop(0)()
                if tt in (1, 3) and extra and fb < 3:
                    extra.pop(0)()
        assert not pend and not extra
    step(0, ([] if MERGE else [lambda j=j: wop(1, j) for j in range(4)]) + [lambda: zop(2, 0), lambda: zop(2, 1)], init=True)
    for st in range(1, 4): step(st)
    g.label("L_k2_sploop")
    vm0, ds0 = list(g.vm), list(g.ds)
    for st in range(4, 16): step(st)
    ren = lambda t: (t[0], t[1] - 12) + t[2:]
    g.vm = [ren(t) for t in g.vm]; g.ds = [ren(t) for t in g.ds]
    assert g.vm == vm0 and g.ds == ds0, (g.vm, vm0, g.ds, ds0)
    g.e("s_add_u32 s52, s52, 1")
    g.e("s_cmp_lt_u32 s52, 4")
    g.e("s_cbranch_scc1 L_k2_sploop")
    g.stamp(2)
    g.e("s_lshl_b32 s49, s3, 4")
    g.e("s_lshl_b32 s50, s42, 2")
    g.e("s_add_u32 s49, s49, s50")
    g.e("s_mul_i32 s54, s49, 28672")
    g.e("s_mul_i32 s55, s49, 159744")
    g.e(f"s_add_u32 s55, s55, {128 * 1024}")
    for tt in range(4):
        g.e(f"v_add_u32 v{16 + tt}, {tt * 28672}, v{V16}")
        g.e(f"v_add_u32 v{20 + tt}, {tt * 159744}, v{V16}")
    g.e("s_mul_i32 s56, s44, 14")
    g.e("s_mul_i32 s48, s41, 7")
    g.e("s_add_u32 s56, s56, s48")
    g.e("s_lshr_b32 s56, s56, 1")
    g.e("s_lshl_b32 s56, s56, 10")
    g.e("s_add_u32 s54, s54, s56")
    g.e("s_add_u32 s55, s55, s56")
    def z1load(u):
        for tt in range(4):
            r = Z1R + (u * 4 + tt) * 4
            g.vmem(f"buffer_load_dwordx4 v[{r}:{r + 3}], v{16 + tt}, s[28:31], s54 offen offset:{u * 1024} {SC}", ("z1", u))
    for st in range(4, 16):
        ex = {8: 0, 10: 1, 12: 2, 15: 3}
        def w0(fn):
            sk = g.newlabel("w0")
            g.e("s_cmp_lg_u32 s40, 0"); g.e(f"s_cbranch_scc1 {sk}")
            fn(); g.label(sk)
        fl = []
        if MERGE and st == 4: fl = [lambda: w0(lambda: flag_load(g, 12, 14, 100, True))]
        if MERGE and st == 7: fl = [lambda: w0(lambda: flag_wait(g, 12, 14, 59, 100, SLS, True, True))]
        step(st, [lambda u=ex[st]: z1load(u)] if st in ex else fl, dma=4 if st < 12 else (2 if st == 12 else 0), nxt=st < 15)
    g.stamp(4)
    g.e("s_nop 4")
    g.e("s_mov_b32 s53, 0xffff0000")
    vm_sv = list(g.vm)
    lode = g.newlabel("spodd"); lend = g.newlabel("spend")
    g.e("s_cmp_eq_u32 s41, 1")
    g.e(f"s_cbranch_scc1 {lode}")
    for fh in range(2):
        g.vm = list(vm_sv)
        if fh: g.label(lode)
        for u in range(4):
            halves = [(h, 2 * u + h - fh) for h in range(2) if 0 <= 2 * u + h - fh < 7]
            g.wait_vm(("z1", u))
            for tt in range(4):
                z = Z1R + (u * 4 + tt) * 4
                for h, fb in halves:
                    a = acc(fb, tt); t = 8 if h else 1
                    g.e(f"v_lshlrev_b32 v{t}, 16, v{z + 2 * h}")
                    g.e(f"v_and_b32 v{t + 1}, s53, v{z + 2 * h}")
                    g.e(f"v_lshlrev_b32 v{t + 2}, 16, v{z + 2 * h + 1}")
                    g.e(f"v_and_b32 v{t + 3}, s53, v{z + 2 * h + 1}")
                    for r in range(4): g.e(f"v_mul_f32 v{a + r}, v{a + r}, v{t + r}")
                    g.e(f"PK {z + 2 * h},{a},{a + 1}"); g.e(f"PK {z + 2 * h + 1},{a + 2},{a + 3}")
                if len(halves) == 2:
                    g.vmem(f"buffer_store_dwordx4 v[{z}:{z + 3}], v{20 + tt}, s[36:39], s55 offen offset:{u * 1024} {STFU}", "st")
                else:
                    h = halves[0][0]
                    g.vmem(f"buffer_store_dwordx2 v[{z + 2 * h}:{z + 2 * h + 1}], v{20 + tt}, s[36:39], s55 offen offset:{u * 1024 + 8 * h} {STFU}", "st")
        if fh == 0: g.e(f"s_branch {lend}")
    g.label(lend)
    g.stamp(3)
    g.stamp_dump(16, 17, 40, 1)
    g.e("s_endpgm")

def gen_k2(g):
    if not MERGE:
        g.e(".p2align 8")
        g.e(".type k2_kernel,@function")
        g.label("k2_kernel")
        g.e("s_cmp_ge_u32 s2, 256")
        g.e("s_cbranch_scc1 L_k2_end")
    g.label("L_p2")
    g.stamp(0)
    if PROF: g.e("s_memrealtime s[94:95]")
    if MERGE: g.e("s_load_dwordx2 s[100:101], s[0:1], 96")
    g.e("s_load_dwordx2 s[4:5], s[0:1], 16")
    g.e("s_load_dwordx4 s[8:11], s[0:1], 64")
    g.e("s_load_dwordx2 s[16:17], s[0:1], 104")
    g.e("v_lshrrev_b32 v1, 6, v0")
    g.e("s_and_b32 s3, s2, 7")
    g.e("s_lshr_b32 s41, s2, 3")
    g.e("v_readfirstlane_b32 s40, v1")
    g.e("s_waitcnt lgkmcnt(0)")
    g.e("s_mov_b32 s6, s8")
    g.e("s_mov_b32 s7, s9")
    g.e("s_mov_b32 s8, s10")
    g.e("s_mov_b32 s9, s11")
    if MERGE:
        nw = g.newlabel("nw")
        g.e("s_cmp_lg_u32 s40, 0")
        g.e(f"s_cbranch_scc1 {nw}")
        g.e("v_lshlrev_b32 v14, 2, v0")
        g.e("v_and_b32 v15, 7, v0")
        g.e("v_cmp_eq_u32 vcc, 1, v15")
        g.e("s_nop 1")
        g.e("v_cndmask_b32 v15, 0, 8, vcc")
        g.e("v_cmp_eq_u32 vcc, 5, v0")
        g.e("s_nop 1")
        g.e("v_cndmask_b32 v15, v15, 1, vcc")
        dbg_wait(g, 13, 14, 15, 100, SLA, True)
        g.e("v_readlane_b32 s59, v13, 5")
        g.label(nw)
        g.e(f"s_add_u32 s100, s16, {WS_FL}")
        g.e("s_addc_u32 s101, s17, 0")
    g.e("s_cmp_lt_u32 s41, 28")
    g.e("s_cbranch_scc1 L_k2_attn")
    g.e("s_branch L_k2_sp")
    g.label("L_k2_end")
    g.e("s_endpgm")
    gen_attn(g)
    gen_spatial(g)
    g.label("L_k2_spend")
```

```python
from asmlib import *
import k1
from k1 import w_voffsets, tr_bases, xreg, areg, WR, D
import math

QSCALE = 128 ** -0.5 * math.log2(math.e)
STASH = 131072
DSP = int(os.environ.get('DSP', '3')); EB = int(os.environ.get('EB', '14'))
XPRE = int(os.environ.get('XPRE', '4'))
PS = int(os.environ.get('PS', '0'))
NTSP = os.environ.get('NTSP', '')
PF2 = int(os.environ.get('PF2', '0'))
KINS = int(os.environ.get('KINS', '0'))
NTAIL = int(os.environ.get('NTAIL', '0'))
STF2 = os.environ.get('STF2', 'sc1')
PFS = int(os.environ.get('PFS', '54'))
STFX = os.environ.get('STFX', 'sc1'); STFU = os.environ.get('STFU', 'sc1' if MERGE == 2 else '')
XSCH = eval(os.environ.get('XSCH', '(4, 8, 12, 16, 28, 34, 40, 46, 56, 62, 68, 74)'))
PF4 = int(os.environ.get('PF4', '0'))
SLA = int(os.environ.get('SLA', '8')); SLS = int(os.environ.get('SLS', '10'))
SPT = int(os.environ.get('SPT', '0'))
NTWQ = os.environ.get('NTWQ', '')
NPART = 3
VF, VNEG, VL, VT, V16, VLT = 1, 3, 4, 6, 7, 8
NEGM, PR, TMP, OR, FR = 16, 24, 40, 128, 192
ML, FA, FB = 52, 56, 58
def sreg(kt, qb): return 72 + 16 * kt + 4 * qb
def preg(qb, kg): return PR + (qb * 2 + kg) * 4
def qreg(qb, mm): return 64 + 16 * mm + 4 * qb
def oreg(cb, qb): return OR + (cb * 2 + qb) * 4
def freg(j): return FR + j * 4

def merge_streams(main, fill, start=0):
    out = []
    n = len(main) - start
    acc = 0.0
    fill = list(fill)
    per = len(fill) / max(1, n)
    for i, m in enumerate(main):
        out.append(m)
        if i >= start:
            acc += per
            while fill and acc >= 0.999:
                out.append(fill.pop(0)); acc -= 1.0
    return out + fill

def dma4(g, so, first_m0=None, tag=None):
    ops = []
    for j in range(4):
        def op(j=j):
            if j == 0 and first_m0:
                g.e(first_m0); g.e("s_nop 0")
            g.vmem(f"buffer_load_dwordx4 v{V16}, s[28:31], s{so} offen offset:{j * 1024} {SC} lds", tag)
        ops.append(op)
    return ops

def next_ops(t):
    return [[f"s_and_b32 s19, s{t}, 3"], ["s_lshl_b32 s19, s19, 15"],
            ["s_xor_b32 s50, s19, 0x10000"], ["s_add_u32 s50, s50, s55"],
            [f"s_add_u32 s49, s{t}, 2"], ["s_lshl_b32 s51, s49, 14"], ["s_add_u32 s51, s51, s54"],
            ["s_cmp_lt_u32 s49, s48", "s_cselect_b32 s51, s51, s54"],
            [f"s_cmp_lt_u32 s{t}, s45", "s_cselect_b32 s49, s41, 0"],
            ["s_lshl_b32 s7, s49, 14"], ["s_add_u32 m0, s50, s7"], ["s_lshl_b32 s49, s49, 24"],
            ["s_add_u32 s7, s51, s49"], [f"s_add_u32 s51, s51, {16 * MB}"]]

def softmax_ops(g):
    ops = []
    I = lambda s: ops.append(lambda s=s: g.e(s))
    T = [TMP + i for i in range(8)]
    k = 0
    for kt in range(4):
        for qb in range(2):
            s = sreg(kt, qb); t = T[(k % 2) * 4:(k % 2) * 4 + 4]; k += 1
            for r in range(4): I(f"v_exp_f32 v{t[r]}, v{s + r}")
            p = preg(qb, kt >> 1) + (kt & 1) * 2
            if kt == 0:
                I(f"v_add_f32 v{VLT + qb}, v{t[0]}, v{t[1]}")
                I(f"PK {p},{t[0]},{t[1]}")
                I(f"v_add_f32 v{VLT + qb}, v{VLT + qb}, v{t[2]}")
                I(f"PK {p + 1},{t[2]},{t[3]}")
                I(f"v_add_f32 v{VLT + qb}, v{VLT + qb}, v{t[3]}")
            else:
                I(f"v_add_f32 v{VLT + qb}, v{VLT + qb}, v{t[0]}")
                I(f"v_add_f32 v{VLT + qb}, v{VLT + qb}, v{t[1]}")
                I(f"PK {p},{t[0]},{t[1]}")
                I(f"v_add_f32 v{VLT + qb}, v{VLT + qb}, v{t[2]}")
                I(f"v_add_f32 v{VLT + qb}, v{VLT + qb}, v{t[3]}")
                I(f"PK {p + 1},{t[2]},{t[3]}")
    return ops

def xgroup(g, regs, op, tmp):
    for sw in ("v_permlane32_swap_b32", "v_permlane16_swap_b32"):
        for i, r in enumerate(regs): g.e(f"v_mov_b32 v{tmp + i}, v{r}")
        g.e("s_nop 1")
        for i, r in enumerate(regs): g.e(f"{sw} v{tmp + i}, v{r}")
        g.e("s_nop 1")
        for i, r in enumerate(regs): g.e(f"{op} v{r}, v{r}, v{tmp + i}")

def rescale(g, first):
    MX = [TMP + 8, TMP + 9]
    for qb in range(2):
        vals = [sreg(kt, qb) + r for kt in range(4) for r in range(4)]
        g.e(f"v_max3_f32 v{MX[qb]}, v{vals[0]}, v{vals[1]}, v{vals[2]}")
        for i in range(3, 15, 2): g.e(f"v_max3_f32 v{MX[qb]}, v{MX[qb]}, v{vals[i]}, v{vals[i + 1]}")
        g.e(f"v_max_f32 v{MX[qb]}, v{MX[qb]}, v{vals[15]}")
    xgroup(g, MX, "v_max_f32", TMP + 10)
    if not first:
        for qb in range(2): g.e(f"v_max_f32 v{MX[qb]}, 0, v{MX[qb]}")
    for kt in range(4):
        for qb in range(2):
            for r in range(4): g.e(f"v_sub_f32 v{sreg(kt, qb) + r}, v{sreg(kt, qb) + r}, v{MX[qb]}")
    for qb in range(2):
        for r in range(4): g.e(f"v_sub_f32 v{NEGM + qb * 4 + r}, v{NEGM + qb * 4 + r}, v{MX[qb]}")
    if not first:
        for qb in range(2): g.e(f"v_exp_f32 v{MX[qb]}, -v{MX[qb]}")
        g.e("s_nop 0")
        for cb in range(8):
            for qb in range(2):
                for r in range(4): g.e(f"v_mul_f32 v{oreg(cb, qb) + r}, v{oreg(cb, qb) + r}, v{MX[qb]}")
        for qb in range(2): g.e(f"v_mul_f32 v{VL + qb}, v{VL + qb}, v{MX[qb]}")

def mask_block(g):
    skip = g.newlabel("nomask"); l1 = g.newlabel("m1"); lf = g.newlabel("mf"); do = g.newlabel("domask")
    g.e("s_add_u32 s49, s52, 2")
    g.e("s_cmp_ge_u32 s49, s48")
    g.e(f"s_cbranch_scc1 {do}")
    g.e("s_sub_u32 s49, s52, s46")
    g.e("s_cmp_lt_u32 s49, 2")
    g.e(f"s_cbranch_scc0 {skip}")
    g.label(do)
    g.e("s_and_b32 s49, s52, 1")
    g.e("s_lshl_b32 s49, s49, 1")
    g.e("s_sub_u32 s49, s42, s49")
    def diag(kt, qb):
        for r in range(4): g.e(f"v_cndmask_b32 v{sreg(kt, qb) + r}, v{VNEG}, v{sreg(kt, qb) + r}, s[{8 + 2 * r}:{9 + 2 * r}]")
    def full(kt, qb):
        for r in range(4): g.e(f"v_mov_b32 v{sreg(kt, qb) + r}, v{VNEG}")
    g.e("s_cmp_ge_i32 s49, 2")
    g.e(f"s_cbranch_scc1 {skip}")
    g.e("s_cmp_eq_i32 s49, 1")
    g.e(f"s_cbranch_scc1 {l1}")
    g.e("s_cmp_lt_i32 s49, 0")
    g.e(f"s_cbranch_scc1 {lf}")
    diag(0, 0); full(1, 0); diag(1, 1); full(2, 0); full(2, 1); full(3, 0); full(3, 1)
    g.e(f"s_branch {skip}")
    g.label(l1)
    diag(2, 0); full(3, 0); diag(3, 1)
    g.e(f"s_branch {skip}")
    g.label(lf)
    for kt in range(4):
        for qb in range(2): full(kt, qb)
    g.label(skip)

def m_phase(g, has_pv, zero, split, post=None, pre=None):
    g.vm = []
    if has_pv: g.e("s_barrier")
    dma = dma4(g, 7) + (dma4(g, 51, "s_add_u32 m0, s50, 16384") if split else [])
    sal = [["s_add_u32 s49, s52, 2"], ["s_cmp_ge_u32 s49, s48", "s_cselect_b32 s4, 0, 4"], ["s_sub_u32 s49, s52, s46"], ["s_min_u32 s4, s4, s49"],
           ["s_cmp_lt_u32 s52, s53", "s_cselect_b32 s47, 1, 2"], ["s_add_u32 s47, s47, s52"]]
    sal2 = next_ops(47)
    if has_pv:
        g.ds = []
        sp = DSP if split else 4
        for j in range(16):
            kg, cb = j >> 3, j & 7
            for qb in range(2):
                g.e(f"{'MZ' if zero and kg == 0 else 'M'} {oreg(cb, qb)},{freg(j)},{preg(qb, kg)}")
                if qb == 0 and j >= 1: g.lds(f"DR {freg(j - 1)},{VF},{(j - 1) * 1024}", ("k", j - 1))
            if dma and j % sp == 0: dma.pop(0)()
            elif sal:
                for t in sal.pop(0): g.e(t)
        g.lds(f"DR {freg(15)},{VF},{15 * 1024}", ("k", 15))
    else:
        sp = 2
    PT = int(os.environ.get('PT', '5'))
    if has_pv and not zero: g.stamp_if(7, 52, PT)
    tail = []
    so = softmax_ops(g)[:NTAIL]
    for b in range(0, NTAIL, 9):
        o = so[b:b + 9]
        tail += [[o[0]], [o[1]], [o[2]], [o[3]], o[4:6], o[6:8], o[8:9]]
    for j in range(16):
        kt, mm = j >> 2, j & 3
        if j == EB:
            if pre: pre()
            g.wait_ds(("k", 15))
            if has_pv and not zero: g.stamp_if(8, 52, PT)
            if has_pv: g.e(f"s_waitcnt vmcnt({8 if split else 4})")
            g.e("s_setprio 2")
            g.e("s_barrier")
        if j == 0: g.wait_ds(("k", 10))
        if j == 5: g.wait_ds(("k", 15))
        for qb in range(2):
            if mm == 0: g.e(f"MC {sreg(kt, qb)},{freg(j)},{qreg(qb, mm)},{NEGM + qb * 4}")
            else: g.e(f"M {sreg(kt, qb)},{freg(j)},{qreg(qb, mm)}")
            if qb == 0 and j >= 1: g.lds(f"DR {freg(j - 1)},{VF},{16384 + (j - 1) * 1024}", "v")
            if j >= EB and tail:
                for op in tail.pop(0): op()
            if not has_pv and j >= EB and dma: dma.pop(0)()
            elif has_pv and qb == 1 and dma and (j + 16) % sp == 0: dma.pop(0)()
            elif qb == 1 and sal:
                for t in sal.pop(0): g.e(t)
            elif not sal and not dma and sal2:
                for t in sal2.pop(0): g.e(t)
    while dma: dma.pop(0)()
    assert not sal
    if post: post()
    for grp in sal2:
        for t in grp: g.e(t)
    g.lds(f"DR {freg(15)},{VF},{16384 + 15 * 1024}", "v")
    g.e("s_setprio 0")
    for w in tail:
        for op in w: op()
    g.vm = []; g.ds = []
    if has_pv:
        g.e("s_cmp_lt_u32 s4, 4")
        g.e("s_cbranch_scc1 L_k2_sgen")
    else:
        g.e("s_branch L_k2_sgen")

def advance(g):
    g.e("s_mov_b32 s52, s47")
    g.e(f"v_add_u32 v{VF}, s19, v{V16}")

def gen_attn(g):
    g.vm = []; g.ds = []
    g.label("L_k2_attn")
    g.e("s_mul_i32 s49, s41, 37")
    g.e("s_lshr_b32 s49, s49, 8")
    g.e("s_mul_i32 s50, s49, 7")
    g.e("s_sub_u32 s44, s41, s50")
    g.e("s_lshl_b32 s49, s49, 3")
    g.e("s_add_u32 s43, s3, s49")
    g.e("s_lshr_b32 s41, s40, 2")
    g.e("s_and_b32 s42, s40, 3")
    g.e("s_sub_u32 s32, 15, s44")
    g.e("s_add_u32 s33, s44, 4")
    g.e("s_cmp_eq_u32 s44, 6")
    g.e("s_cselect_b32 s32, 3, s32")
    g.e("s_cselect_b32 s33, 2, s33")
    g.e("s_lshl_b32 s49, s3, 20")
    g.e("s_add_u32 s60, s6, s49")
    g.e("s_addc_u32 s61, s7, 0")
    g.e(f"s_mov_b32 s62, {MB}")
    g.e("s_mov_b32 s63, 0x20000")
    srd(g, 20, 4, 5, 512 * 8192)
    srd(g, 24, 16, 17, SZ_XN, WS_XN)
    srd(g, 28, 16, 17, 2 * SZ_KV, WS_K)
    srd(g, 36, 16, 17, SZ_CTX, WS_CTX)
    g.e("s_lshl_b32 s55, s42, 12")
    g.e("s_lshl_b32 s54, s43, 19")
    g.e("s_add_u32 s54, s54, s55")
    g.e("s_lshl_b32 s57, s42, 13")
    g.e(f"s_add_u32 s57, s57, {STASH}")
    g.e("v_and_b32 v28, 63, v0")
    g.e(f"v_lshlrev_b32 v{V16}, 4, v28")
    g.e("v_and_b32 v28, 15, v0")
    g.e("v_bfe_u32 v29, v0, 4, 2")
    g.e("v_lshlrev_b32 v29, 2, v29")
    g.e("v_sub_u32 v28, v28, v29")
    for r in range(4): g.e(f"v_cmp_le_i32 s[{8 + 2 * r}:{9 + 2 * r}], {r}, v28")
    if MERGE:
        g.e("s_mul_i32 s49, s43, 43")
        g.e("s_lshr_b32 s49, s49, 7")
        g.e("s_lshl_b32 s49, s49, 7")
        g.e("s_lshl_b32 s50, s3, 13")
        g.e("s_add_u32 s49, s49, s50")
        g.e("v_and_b32 v14, 15, v0")
        g.e("v_lshl_add_u32 v14, v14, 2, s49")
        g.e("s_barrier")
    g.label("L_k2_round")
    w_voffsets(g, 8192, 1)
    g.e("s_lshl_b32 s18, s43, 8")
    g.e("s_lshl_b32 s49, s42, 18")
    g.e("s_add_u32 s18, s18, s49")
    g.e("s_lshl_b32 s49, s41, 7")
    g.e("s_add_u32 s18, s18, s49")
    g.e("s_lshl_b32 s19, s40, 12")
    g.e("s_cmp_eq_u32 s41, 0")
    g.e("s_cselect_b32 s47, s32, s33")
    g.e("s_lshl_b32 s47, s47, 17")
    g.e("s_lshl_b32 s49, s42, 15")
    g.e("s_add_u32 s47, s47, s49")
    def wdma(s):
        g.e(f"s_add_u32 s51, s18, {s * 128 * 8192}")
        g.e(f"s_add_u32 m0, s19, {s * 32768}")
        g.e("s_nop 0")
        for j in range(4):
            g.vmem(f"buffer_load_dwordx4 v{1 + j}, s[20:23], s51 offen offset:{j * 1024} {NTWQ} lds", ("w", s))
    def xload(m):
        if m % 4 == 0:
            g.e(f"s_add_u32 s6, s47, {m * 1024}")
            g.e(f"s_add_u32 s7, s47, {m * 1024 + 16384}")
        for a in range(2):
            x = xreg(a, m)
            g.vmem(f"buffer_load_dwordx4 v[{x}:{x + 3}], v{V16}, s[24:27], s{6 + a} offen offset:{(m % 4) * 1024} {SC}", ("x", m))
    if PROF == 1: g.stamp(6)
    wdma(0)
    for m in range(2): xload(m)
    if not MERGE: code_touch(g, 96, 14, "L_k2_sp")
    g.e("s_barrier")
    for m in range(2, 4): xload(m)
    later = {0: lambda: wdma(1), 22: lambda: wdma(2), 50: lambda: wdma(3)}
    def pf_wsp():
        sk = g.newlabel("nopf")
        g.e("s_cmp_eq_u32 s32, 1")
        g.e(f"s_cbranch_scc1 {sk}")
        g.e("s_and_b32 s49, s2, 0xf8")
        g.e("s_add_u32 s49, s49, s40")
        g.e("s_mul_i32 s49, s49, 4736")
        g.e(f"v_lshlrev_b32 v10, 3, v{V16}")
        g.e("v_mov_b32 v12, 0x10000000")
        g.e("v_cmp_gt_u32 vcc, 4736, v10")
        g.e("s_nop 1")
        g.e("v_cndmask_b32 v11, v12, v10, vcc")
        g.e("buffer_load_dword v13, v11, s[60:63], s49 offen")
        if PF4:
            g.e("s_load_dwordx2 s[96:97], s[0:1], 40")
            g.e("s_load_dwordx2 s[100:101], s[0:1], 80")
            g.e("s_lshl_b32 s49, s2, 3")
            g.e("s_add_u32 s49, s49, s40")
            g.e("v_cmp_gt_u32 vcc, 2432, v10")
            g.e("s_mul_i32 s58, s49, 2432")
            g.e("s_lshl_b32 s59, s49, 9")
            g.e("v_cndmask_b32 v11, v12, v10, vcc")
            g.e("v_cmp_gt_u32 vcc, 512, v10")
            g.e("s_waitcnt lgkmcnt(0)")
            g.e(f"s_mov_b32 s98, {4 * MB}")
            g.e("s_mov_b32 s99, 0x20000")
            g.e("buffer_load_dword v13, v11, s[96:99], s58 offen")
            g.e("v_cndmask_b32 v11, v12, v10, vcc")
            g.e("s_mov_b32 s96, s100")
            g.e("s_mov_b32 s97, s101")
            g.e(f"s_mov_b32 s98, {896 * 1024}")
            g.e("buffer_load_dword v13, v11, s[96:99], s59 offen")
        g.label(sk)
    for m, F in zip(range(4, 16), XSCH): later[F] = lambda m=m: xload(m)
    tr_bases(g, 5, 6)
    g.e(f"s_mov_b32 s56, {f32(QSCALE)}")
    g.e("s_lshl_b32 s48, s32, 1")
    g.e("s_add_u32 s48, s48, 2")
    g.e("s_lshl_b32 s45, s33, 1")
    g.e("s_add_u32 s45, s45, 2")
    g.e("s_sub_u32 s53, s45, s41")
    g.e("s_sub_u32 s46, s45, 2")
    g.e("s_cmp_eq_u32 s41, 0")
    g.e("s_cselect_b32 s46, 0x1000, s46")
    g.stamp(1)
    def first_tile(t):
        g.e("s_lshl_b32 s49, s41, 24")
        g.e("s_add_u32 s50, s54, s49")
        if t: g.e("s_add_u32 s50, s50, 16384")
        return dma4(g, 50, f"s_add_u32 m0, s19, {t * 32768}", "kv")
    def w0_only(fn):
        sk = g.newlabel("w0")
        g.e("s_cmp_eq_u32 s32, 1")
        g.e("s_cselect_b32 s49, 1, s40")
        g.e("s_cmp_lg_u32 s49, 0")
        g.e(f"s_cbranch_scc1 {sk}")
        fn()
        g.label(sk)
    if MERGE: later[20] = lambda: w0_only(lambda: flag_load(g, 13, 14, 100))
    def fmap(s, f):
        return (f >> 4, (f >> 2) & 3, f & 3) if s == 3 else ((f >> 2) & 1, f >> 3, f & 3)
    def wread(F, half=None):
        s, f = F >> 5, F & 31
        if s >= 4: return
        if f == 0 and half != 1:
            g.wait_vm(("w", s), "kv")
            if MERGE and s == 2: w0_only(lambda: flag_wait(g, 13, 14, 59, 100, SLA, True))
            g.e("s_barrier")
            if MERGE and s == 0: w0_only(lambda: flag_set(g, 10, 58, 59, 100))
            if s == 2:
                g.e("v_xor_b32 v5, 0x10000, v5")
                g.e("v_xor_b32 v6, 0x10000, v6")
            if s >= 2:
                for op in first_tile(s - 2): op()
        p, ks, cb = fmap(s, f)
        mp = p * 4 + ks
        r = WR + (F % 8) * 4
        for a in (range(2) if half is None else [half]):
            o = (s & 1) * 32768 + mp * 4096 + a * 512 + (cb >> 1) * 256
            g.lds(f"TR {r + 2 * a},{6 if cb & 1 else 5},{o}", ("w", F))
    def qpack(p):
        ops = []
        I = lambda s: ops.append(lambda s=s: g.e(s))
        for a in range(2):
            for mm in range(2):
                x, y = areg(p, 2 * mm, a), areg(p, 2 * mm + 1, a)
                assert x == qreg(a, 2 * p + mm)
                for r in range(4): I(f"v_mul_f32 v{x + r}, s56, v{x + r}")
                for r in range(4): I(f"v_mul_f32 v{y + r}, s56, v{y + r}")
                I(f"PK {x},{x},{x + 1}"); I(f"PK {x + 1},{x + 2},{x + 3}")
                I(f"PK {x + 2},{y},{y + 1}"); I(f"PK {x + 3},{y + 2},{y + 3}")
        return ops
    for F in range(D): wread(F)
    fill = []
    for s in range(4):
        if PROF == 1: g.stamp(7 + s)
        for f in range(32):
            F = s * 32 + f
            p, ks, cb = fmap(s, f)
            m = s * 4 + ks
            if F == 116: fill = qpack(0)
            if p == 0 and cb == 0: g.wait_vm(("x", m))
            g.wait_ds(("w", F))
            r = WR + (F % 8) * 4
            for a in range(2):
                g.e(f"{'MZ' if m == 0 else 'M'} {areg(p, cb, a)},{r},{xreg(a, m)}")
                wread(F + D, a)
                if fill: fill.pop(0)(); fill.pop(0)()
            if F in later: later.pop(F)()
    assert not fill and not later
    g.stamp(2)
    g.e("s_mov_b32 s47, 0")
    for grp in next_ops(47):
        for t in grp: g.e(t)
    advance(g)
    g.vm = []; g.ds = []
    for j in range(16): g.e(f"DR {freg(j)},{VF},{j * 1024}")
    for op in qpack(1): op()
    g.e(f"v_mov_b32 v{VNEG}, {f32(-1e30)}")
    g.e(f"s_mov_b32 s56, {f32(2.0 ** 30)}")
    g.e(f"s_mov_b32 s6, {f32(2.0 ** -30)}")
    for i in range(8): g.e(f"v_mov_b32 v{NEGM + i}, 0")
    g.e(f"v_add_u32 v9, s57, v{V16}")
    g.e("s_waitcnt vmcnt(0) lgkmcnt(0)")
    g.stamp(3)
    la = g.newlabel("qa")
    g.e("s_cmp_eq_u32 s41, 0")
    g.e(f"s_cbranch_scc1 {la}")
    g.e("s_barrier")
    g.label(la)
    def post0():
        if PFS and not SPT: pf_wsp()
    def pre0():
        sk = g.newlabel("nost")
        g.e("s_cmp_eq_u32 s41, 0")
        g.e(f"s_cbranch_scc0 {sk}")
        for qb in range(2):
            for mm in range(4): g.e(f"DW 9,{qreg(qb, mm)},{(qb * 4 + mm) * 1024}")
        g.label(sk)
    m_phase(g, False, False, False, post0, pre0)
    def s_fast(tag):
        g.label(f"L_k2_s{tag}")
        PT = int(os.environ.get('PT', '5'))
        g.stamp_if(9, 52, PT)
        for op in softmax_ops(g)[NTAIL:]: op()
        g.e(f"v_max_f32 v{VT}, v{VLT}, v{VLT + 1}")
        g.e(f"v_cmp_lt_f32 vcc, s56, v{VT}")
        g.e("s_cbranch_vccnz L_k2_sgen")
        for qb in range(2): g.e(f"v_add_f32 v{VL + qb}, v{VL + qb}, v{VLT + qb}")
        g.stamp_if(10, 52, PT)
        if PROF == 2:
            g.e("s_waitcnt vmcnt(0) lgkmcnt(0)")
            g.stamp_if(11, 52, PT)
        advance(g)
        if tag == "sh": g.e("s_cmp_lt_u32 s52, s45")
        g.e("s_waitcnt lgkmcnt(0)" if tag == "sh" else "s_waitcnt vmcnt(0) lgkmcnt(0)")
    s_fast("sh")
    g.e("s_cbranch_scc0 L_k2_msp")
    g.label("L_k2_msh")
    g.stamp_if(6, 52, int(os.environ.get('PT', '5'))); g.stamp_if(12, 52, int(os.environ.get('PT', '5')) + 1)
    m_phase(g, True, False, False)
    g.e("s_branch L_k2_ssh")
    s_fast("sp")
    g.label("L_k2_msp")
    m_phase(g, True, False, True)
    g.e("s_branch L_k2_ssp")
    g.label("L_k2_mzsh")
    m_phase(g, True, True, False)
    g.e("s_branch L_k2_ssh")
    g.label("L_k2_mzsp")
    m_phase(g, True, True, True)
    g.e("s_branch L_k2_ssp")
    EXP = os.environ.get('ATEXP', '')
    if EXP:
        i0 = g.lines.index("L_k2_ssh:")
        keep = []
        for l in g.lines[i0:]:
            if 'd' in EXP and l.startswith('buffer_load'): continue
            if 'r' in EXP and l.startswith('DR '): continue
            if 'e' in EXP and l.startswith('v_exp'): l = l.replace('v_exp_f32', 'v_mov_b32')
            if 'v' in EXP and (l.startswith('v_exp') or l.startswith('PK') or (l.startswith('v_add_f32 v8') or l.startswith('v_add_f32 v9'))): continue
            if 'b' in EXP and l.startswith('s_cbranch_vccnz'): continue
            keep.append(l)
        g.lines[i0:] = keep
    def ctx_base(blk):
        g.e(f"s_lshl_b32 s49, s{blk}, 3")
        g.e("s_lshl_b32 s35, s42, 1")
        g.e("s_add_u32 s49, s49, s35")
        g.e("s_mul_i32 s49, s49, 159744")
        g.e("s_lshl_b32 s35, s43, 12")
        g.e("s_add_u32 s34, s49, s35")
        g.e("s_add_u32 s35, s34, 159744")
    def pack_store(mm, qb, fl=STF2):
        x, y = oreg(2 * mm, qb), oreg(2 * mm + 1, qb)
        return [f"PK {x},{x},{x + 1}", f"PK {x + 1},{x + 2},{x + 3}", f"PK {x + 2},{y},{y + 1}", f"PK {x + 3},{y + 2},{y + 3}",
                f"buffer_store_dwordx4 v[{x}:{x + 3}], v{V16}, s[36:39], s{34 + qb} offen offset:{mm * 1024} {fl}"]
    g.label("L_k2_sgen")
    def st5(i, val):
        if PROF == 5:
            l = g.newlabel("st"); g.e(f"s_cmp_lg_u32 s52, {val}"); g.e(f"s_cbranch_scc1 {l}"); g.stamp(i); g.label(l)
    st5(4, 0); st5(7, 8); st5(9, 9); st5(11, 11)
    if PROF == 5: g.stamp(13)
    g.e("s_sub_u32 s49, s52, s46")
    g.e("s_cmp_eq_u32 s49, 3")
    g.e("s_cselect_b32 s5, 2, 0")
    g.e("s_cmp_eq_u32 s52, 0")
    g.e("s_cselect_b32 s5, 1, s5")
    g.e("s_cselect_b32 s18, s6, 0")
    g.e("s_cmp_eq_u32 s5, 2")
    g.e("s_cselect_b32 s18, s6, s18")
    mask_block(g)
    ny = g.newlabel("ny"); jy = g.newlabel("jy")
    g.e("s_cmp_eq_u32 s5, 2")
    g.e(f"s_cbranch_scc0 {ny}")
    ctx_base(33)
    so = softmax_ops(g)
    k = 0
    for mm in range(4):
        for qb in range(2):
            for cb in (2 * mm, 2 * mm + 1):
                for r in range(4): g.e(f"v_mul_f32 v{oreg(cb, qb) + r}, v{oreg(cb, qb) + r}, v{FA + qb}")
            for t in pack_store(mm, qb): g.e(t)
            n = 9 if k < 2 else 10
            for op in so[:n]: op()
            so = so[n:]; k += 1
    assert not so
    g.e(f"s_branch {jy}")
    g.label(ny)
    for op in softmax_ops(g): op()
    g.label(jy)
    g.e(f"v_max_f32 v{VT}, v{VLT}, v{VLT + 1}")
    g.e(f"v_min_f32 v{TMP}, v{VLT}, v{VLT + 1}")
    g.e(f"v_cmp_lt_f32 vcc, s56, v{VT}")
    g.e("s_cbranch_vccnz L_k2_slow")
    g.e(f"v_cmp_gt_f32 vcc, s18, v{TMP}")
    g.e("s_cbranch_vccnz L_k2_slow")
    g.label("L_k2_back")
    nf = g.newlabel("nf")
    g.e("s_cmp_eq_u32 s5, 0")
    g.e(f"s_cbranch_scc1 {nf}")
    for qb in range(2): g.e(f"v_mov_b32 v{VL + qb}, 0")
    g.label(nf)
    for qb in range(2): g.e(f"v_add_f32 v{VL + qb}, v{VL + qb}, v{VLT + qb}")
    g.e("s_add_u32 s49, s52, 2")
    g.e("s_cmp_ge_u32 s49, s48")
    g.e("s_cbranch_scc1 L_k2_xlast")
    nl = g.newlabel("nyl")
    g.e("s_sub_u32 s49, s52, s46")
    g.e("s_cmp_eq_u32 s49, 1")
    g.e(f"s_cbranch_scc0 {nl}")
    g.e(f"v_add_u32 v10, s57, v{V16}")
    for qb in range(2):
        for mm in range(4): g.e(f"DR {qreg(qb, mm)},10,{(qb * 4 + mm) * 1024}")
    xgroup(g, [VL, VL + 1], "v_add_f32", TMP + 2)
    for qb in range(2): g.e(f"v_rcp_f32 v{FA + qb}, v{VL + qb}")
    for i in range(8): g.e(f"v_mov_b32 v{NEGM + i}, 0")
    g.label(nl)
    st5(6, 0); st5(8, 8); st5(10, 9); st5(12, 11)
    advance(g)
    g.e("s_cmp_lt_u32 s52, s45")
    g.e("s_cselect_b32 s49, 0, 4")
    g.e("s_add_u32 s5, s5, s49")
    w8 = g.newlabel("w8")
    g.e("s_and_b32 s49, s5, 3")
    g.e(f"s_cbranch_scc1 {w8}")
    g.e("s_waitcnt vmcnt(0)")
    g.label(w8)
    g.e("s_waitcnt vmcnt(8) lgkmcnt(0)")
    g.e("s_cmp_eq_u32 s5, 0")
    g.e("s_cbranch_scc1 L_k2_msh")
    g.e("s_cmp_eq_u32 s5, 4")
    g.e("s_cbranch_scc1 L_k2_msp")
    g.e("s_cmp_eq_u32 s5, 1")
    g.e("s_cbranch_scc1 L_k2_mzsh")
    g.e("s_branch L_k2_mzsp")
    g.label("L_k2_xlast")
    if PROF == 5: g.stamp(14)
    g.e("s_and_b32 s49, s48, 3")
    g.e("s_lshl_b32 s49, s49, 15")
    g.e("s_lshl_b32 s50, s42, 13")
    g.e("s_add_u32 s50, s50, s49")
    g.e(f"v_add_u32 v11, s50, v{V16}")
    g.e(f"v_add_u32 v10, s57, v{V16}")
    g.e("s_xor_b32 s49, s49, 0x10000")
    g.e("s_lshl_b32 s50, s42, 10")
    g.e("s_add_u32 s49, s49, s50")
    g.e(f"v_add_u32 v{VT}, s49, v{V16}")
    xaddr = lambda i: (10 + (i >> 3), (i & 7) * 1024)
    def pvgroup(cb, zero, mid=()):
        mid = list(mid)
        for kg in range(2):
            for qb in range(2):
                g.e(f"{'MZ' if zero and kg == 0 else 'M'} {oreg(cb, qb)},{freg(kg * 8 + cb)},{preg(qb, kg)}")
                n = -(-len(mid) // (4 - (kg * 2 + qb)))
                for _ in range(n): mid.pop(0)()
    g.e("s_cmp_eq_u32 s41, 0")
    g.e("s_cbranch_scc0 L_k2_xlastB")
    g.e(f"v_mov_b32 v{ML}, v{NEGM}")
    g.e(f"v_mov_b32 v{ML + 1}, v{NEGM + 4}")
    g.e(f"v_mov_b32 v{ML + 2}, v{VL}")
    g.e(f"v_mov_b32 v{ML + 3}, v{VL + 1}")
    g.e(f"DW {VT},{ML},0")
    g.e("s_waitcnt vmcnt(0) lgkmcnt(0)")
    g.e("s_barrier")
    dw = lambda i: (lambda: g.e(f"DW {xaddr(i)[0]},{OR + i * 4},{xaddr(i)[1]}"))
    for cb in range(8):
        pvgroup(cb, False, [dw(2 * cb - 6), dw(2 * cb - 5)] if cb >= 3 else [])
    for i in range(10, 12): dw(i)()
    g.e("s_nop 3")
    for i in range(12, 16): dw(i)()
    g.e("s_waitcnt lgkmcnt(0)")
    g.e("s_barrier")
    g.e("s_branch L_k2_rend")
    g.label("L_k2_xlastB")
    g.e(f"DR {ML},{VT},0")
    ctx_base(32)
    NM = TMP
    g.e("s_waitcnt lgkmcnt(0)")
    for qb in range(2): g.e(f"v_min_f32 v{NM + qb}, v{ML + qb}, v{NEGM + 4 * qb}")
    for qb in range(2): g.e(f"v_sub_f32 v{FA + qb}, v{NM + qb}, v{ML + qb}")
    for qb in range(2): g.e(f"v_sub_f32 v{FB + qb}, v{NM + qb}, v{NEGM + 4 * qb}")
    for i in range(4): g.e(f"v_exp_f32 v{FA + i}, v{FA + i}")
    g.e("s_nop 0")
    for qb in range(2): g.e(f"v_mul_f32 v{VL + qb}, v{VL + qb}, v{FB + qb}")
    for qb in range(2): g.e(f"v_fmac_f32 v{VL + qb}, v{ML + 2 + qb}, v{FA + qb}")
    xgroup(g, [VL, VL + 1], "v_add_f32", TMP + 2)
    for qb in range(2): g.e(f"v_rcp_f32 v{VL + qb}, v{VL + qb}")
    g.e("s_nop 0")
    for qb in range(2): g.e(f"v_mul_f32 v{FA + qb}, v{FA + qb}, v{VL + qb}")
    for qb in range(2): g.e(f"v_mul_f32 v{FB + qb}, v{FB + qb}, v{VL + qb}")
    lz = g.newlabel("finz")
    g.e("s_cmp_eq_u32 s5, 0")
    g.e(f"s_cbranch_scc0 {lz}")
    for zero in (False, True):
        if zero: g.label(lz)
        g.ds = []
        for cb in range(4): pvgroup(cb, zero)
        g.e("s_barrier")
        def merge_ops(mm):
            ops = []
            I = lambda t: ops.append(lambda t=t: g.e(t))
            for qb in range(2):
                for cb in (2 * mm, 2 * mm + 1):
                    o = oreg(cb, qb)
                    for r in range(4): I(f"v_mul_f32 v{o + r}, v{o + r}, v{FB + qb}")
                    ops.append(lambda cb=cb, qb=qb: g.wait_ds(("o", cb, qb)))
                    for r in range(4): I(f"v_fmac_f32 v{o + r}, v{freg(qb * 8 + cb) + r}, v{FA + qb}")
                for t in pack_store(mm, qb, STFX): I(t)
            return ops
        xr = lambda cb, qb: (lambda: g.lds(f"DR {freg(qb * 8 + cb)},{xaddr(cb * 2 + qb)[0]},{xaddr(cb * 2 + qb)[1]}", ("o", cb, qb)))
        for cb in range(3): xr(cb, 0)(); xr(cb, 1)()
        m0 = merge_ops(0)
        for cb in range(4, 8):
            mid = [xr(cb - 1, 0), xr(cb - 1, 1)]
            if cb == 6: mid += m0[:len(m0) // 2]
            if cb == 7: mid += m0[len(m0) // 2:]
            pvgroup(cb, zero, mid)
        xr(7, 0)(); xr(7, 1)()
        for op in merge_ops(1) + merge_ops(2) + merge_ops(3): op()
        if not zero: g.e("s_branch L_k2_rend")
    g.label("L_k2_rend")
    g.stamp(5)
    g.e("s_cmp_eq_u32 s32, 3")
    g.e("s_cbranch_scc0 L_k2_aend")
    g.stamp(4)
    g.e("s_mov_b32 s32, 1")
    g.e("s_mov_b32 s33, 0")
    g.e("s_waitcnt vmcnt(0) lgkmcnt(0)")
    g.e("s_barrier")
    g.e("s_branch L_k2_round")
    g.label("L_k2_aend")
    skc = g.newlabel("nocode")
    g.e("s_cmp_eq_u32 s44, 6")
    g.e(f"s_cbranch_scc0 {skc}")
    code_touch(g, 96, 14, "L_all_end", "L_p3", False)
    g.label(skc)
    if PF2:
        sk = g.newlabel("nopf")
        g.e("s_cmp_eq_u32 s44, 6")
        g.e(f"s_cbranch_scc0 {sk}")
        g.e("s_cmp_eq_u32 s41, 1")
        g.e(f"s_cbranch_scc0 {sk}")
        g.e("s_load_dwordx2 s[20:21], s[0:1], 40")
        g.e("s_load_dwordx2 s[28:29], s[0:1], 80")
        g.e("s_lshl_b32 s49, s43, 2")
        g.e("s_add_u32 s49, s49, s42")
        g.e(f"v_lshlrev_b32 v10, 3, v{V16}")
        g.e("s_lshl_b32 s50, s49, 15")
        g.e("s_mul_i32 s51, s49, 7168")
        g.e("s_waitcnt lgkmcnt(0)")
        g.e(f"s_mov_b32 s22, {4 * MB}")
        g.e("s_mov_b32 s23, 0x20000")
        g.e(f"s_mov_b32 s30, {896 * 1024}")
        g.e("s_mov_b32 s31, 0x20000")
        for i in range(4):
            g.e(f"buffer_load_dword v{12 + i}, v10, s[20:23], s50 offen")
            g.e("s_add_u32 s50, s50, 8192")
        g.e("buffer_load_dword v11, v10, s[28:31], s51 offen")
        g.label(sk)
    if MERGE == 2: g.e("s_mov_b32 s4, s59")
    g.stamp_dump(16, 17, 40, 1)
    if MERGE == 2:
        g.e("s_mov_b32 s59, s4")
        g.e("s_lshl_b32 s58, s44, 2")
        g.e("s_bfe_u32 s49, s43, 0x20001")
        g.e("s_add_u32 s58, s58, s49")
        g.e("s_add_u32 s58, s58, 21")
        g.e("s_lshl_b32 s58, s58, 7")
        g.e("s_lshr_b32 s49, s43, 3")
        g.e("s_lshl_b32 s49, s49, 3")
        g.e("s_add_u32 s58, s58, s49")
        g.e("s_and_b32 s49, s43, 1")
        g.e("s_lshl_b32 s49, s49, 2")
        g.e("s_add_u32 s58, s58, s49")
        g.e("s_branch L_p3")
    else: g.e("s_endpgm")
    g.label("L_k2_slow")
    l1 = g.newlabel("slow1"); l2 = g.newlabel("slow2")
    g.e("s_cmp_eq_u32 s5, 0")
    g.e(f"s_cbranch_scc0 {l1}")
    rescale(g, False)
    g.e(f"s_branch {l2}")
    g.label(l1)
    rescale(g, True)
    g.label(l2)
    for op in softmax_ops(g): op()
    g.e("s_branch L_k2_back")

def gen_spatial(g):
    ACC, AR, BB, Z1R = 144, 116, 84, 24
    ZB, ZS = 98304, 14336
    VWD = 80
    acc = lambda fb, tt: ACC + (fb * 4 + tt) * 4
    g.vm = []; g.ds = []
    g.label("L_k2_sp")
    g.e("s_sub_u32 s44, s41, 28")
    g.e("s_and_b32 s42, s40, 3")
    g.e("s_lshr_b32 s41, s40, 2")
    srd(g, 20, 6, 7, 2048 * 4096)
    srd(g, 24, 16, 17, SZ_Z, WS_Z2)
    g.e("v_and_b32 v28, 63, v0")
    g.e(f"v_lshlrev_b32 v{V16}, 4, v28")
    g.e("v_bfe_u32 v28, v0, 3, 3")
    g.e("v_and_b32 v29, 7, v0")
    g.e("v_lshrrev_b32 v30, 1, v28")
    g.e("v_xor_b32 v29, v29, v30")
    g.e("s_lshl_b32 s49, s3, 8")
    g.e("s_lshl_b32 s50, s40, 5")
    g.e("s_add_u32 s49, s49, s50")
    g.e("v_add_u32 v28, s49, v28")
    g.e("v_lshlrev_b32 v28, 12, v28")
    g.e("v_xor_b32 v30, 4, v29")
    g.e("v_lshl_add_u32 v29, v29, 4, v28")
    g.e("v_lshl_add_u32 v30, v30, 4, v28")
    for j in range(4): g.e(f"v_add_u32 v{VWD + j}, {j * 8 * 4096 - j * 1024}, v{29 + (j & 1)}")
    g.e("s_lshl_b32 s48, s40, 1")
    g.e("s_min_u32 s48, s48, 12")
    g.e("s_mul_i32 s49, s44, 14")
    g.e("s_add_u32 s49, s49, s48")
    g.e("s_lshl_b32 s43, s49, 10")
    g.e("s_mov_b32 s45, 0")
    g.e("s_lshl_b32 s46, s40, 12")
    g.e("s_lshl_b32 s47, s48, 10")
    g.e(f"s_add_u32 s47, s47, {ZB}")
    def wop(b, j):
        if j % 2 == 0:
            g.e(f"s_add_u32 m0, s46, {(b % 3) * 32768}")
            g.e("s_nop 0")
        g.vmem(f"buffer_load_dwordx4 v{VWD + j}, s[20:23], s45 offen offset:{j * 1024} {NTSP} lds", ("w", 2 * b))
        if j == 3: g.e("s_add_u32 s45, s45, 128")
    def zop(st, j):
        if j == 0:
            g.e(f"s_add_u32 m0, s47, {(st % 4) * ZS}")
            g.e("s_nop 0")
        g.vmem(f"buffer_load_dwordx4 v{V16}, s[24:27], s43 offen offset:{j * 1024} {SC} lds", ("z", st))
        if j == 1: g.e("s_add_u32 s43, s43, 57344")
    def dma_ops(st):
        b, h = st // 2 + 2, st & 1
        return [lambda: zop(st + 3, 0), lambda: zop(st + 3, 1), lambda: wop(b, 2 * h), lambda: wop(b, 2 * h + 1)]
    if MERGE:
        g.e("s_waitcnt vmcnt(0)")
        g.e("s_barrier")
        nw = g.newlabel("nw"); nw2 = g.newlabel("nw")
        g.e("s_cmp_lg_u32 s40, 0")
        g.e(f"s_cbranch_scc1 {nw}")
        flag_set(g, 10, 58, 59, 100)
        g.label(nw)
        for b in range(2):
            for j in range(4): wop(b, j)
        g.e("s_lshl_b32 s49, s44, 3")
        g.e("s_add_u32 s49, s49, s40")
        g.e("s_lshl_b32 s49, s49, 15")
        g.e("s_lshl_b32 s50, s3, 20")
        g.e("s_add_u32 s49, s49, s50")
        g.e(f"v_lshlrev_b32 v10, 3, v{V16}")
        for i in range(SPT):
            g.vmem("buffer_load_dword v9, v10, s[20:23], s49 offen", ("w", 0))
            g.e("s_add_u32 s49, s49, 8192")
        g.e("s_cmp_lg_u32 s40, 0")
        g.e(f"s_cbranch_scc1 {nw2}")
        g.e("v_min_u32 v14, 55, v0")
        g.e("v_and_b32 v15, 7, v14")
        g.e("v_lshrrev_b32 v14, 3, v14")
        g.e("v_lshlrev_b32 v14, 7, v14")
        g.e("v_lshl_add_u32 v14, v15, 2, v14")
        g.e("s_lshl_b32 s49, s3, 13")
        g.e(f"s_add_u32 s49, s49, {14 * 128 + 32}")
        g.e("v_add_u32 v14, s49, v14")
        flag_wait(g, 12, 14, 59, 100, SLS, False)
        g.e("v_min_u32 v14, 39, v0")
        g.e("v_and_b32 v15, 3, v14")
        g.e("v_lshrrev_b32 v14, 2, v14")
        g.e("v_lshlrev_b32 v14, 7, v14")
        g.e("v_lshl_add_u32 v14, v15, 3, v14")
        g.e("s_lshl_b32 s49, s3, 13")
        g.e(f"s_add_u32 s49, s49, {11 * 128}")
        g.e("v_add_u32 v14, s49, v14")
        g.label(nw2)
        g.e("s_barrier")
        zop(0, 0); zop(0, 1)
    else:
        zop(0, 0); zop(0, 1)
        for j in range(4): wop(0, j)
        code_touch(g, 96, 14, "L_k2_spend", None, False)
    srd(g, 12, 8, 9, 4096)
    g.e("v_and_b32 v11, 15, v0")
    g.e("v_lshlrev_b32 v11, 1, v11")
    g.e("s_lshl_b32 s49, s3, 9")
    g.e("s_lshl_b32 s50, s42, 7")
    g.e("s_add_u32 s49, s49, s50")
    for tt in range(4): g.vmem(f"buffer_load_ushort v{16 + tt}, v11, s[12:15], s49 offen offset:{tt * 32}", ("w", 0))
    g.e("s_barrier")
    zop(1, 0); zop(1, 1)
    if MERGE < 2:
        srd(g, 28, 16, 17, 32768, WS_PART + 8 * MB)
        g.e("s_sub_u32 s49, s2, 224")
        g.e("s_lshl_b32 s49, s49, 10")
        g.e("v_lshrrev_b32 v28, 6, v0")
        g.e(f"v_lshl_add_u32 v28, v28, 24, v{V16}")
        for i in range(4): g.e(f"v_mov_b32 v{20 + i}, 0")
        g.e("buffer_store_dwordx4 v[20:23], v28, s[28:31], s49 offen")
    srd(g, 28, 16, 17, SZ_Z, WS_Z1)
    srd(g, 36, 16, 17, SZ_CTX, WS_CTX)
    g.e("s_mul_i32 s49, s41, 7168")
    g.e(f"s_add_u32 s49, s49, {ZB}")
    g.e(f"v_add_u32 v4, s49, v{V16}")
    g.e("v_and_b32 v28, 15, v0")
    g.e("v_bfe_u32 v29, v0, 4, 2")
    g.e("v_lshrrev_b32 v30, 1, v28")
    g.e("v_xor_b32 v29, v29, v30")
    g.e("v_lshlrev_b32 v29, 4, v29")
    g.e("v_lshl_add_u32 v29, v28, 7, v29")
    g.e("s_lshl_b32 s49, s42, 13")
    g.e("v_add_u32 v1, s49, v29")
    g.e("v_xor_b32 v2, 64, v1")
    g.e("v_add_u32 v5, 0x10000, v1")
    g.e("v_add_u32 v6, 0x10000, v2")
    def aread(st, fb): g.lds(f"DR {AR + fb * 4},4,{(st % 4) * ZS + fb * 1024}", ("a", st, fb))
    def bread(st, tt):
        sl = (st // 2) % 3
        g.lds(f"DR {BB + (st & 1) * 16 + tt * 4},{(5 if sl == 2 else 1) + (st & 1)},{(sl & 1) * 32768 + tt * 2048}", ("b", st))
    SCH = {(3, 0): ("a", 0), (3, 1): ("b", 0), (3, 2): ("b", 1), (4, 0): ("b", 2), (4, 1): ("b", 3), (4, 2): ("a", 1), (5, 0): ("a", 2), (6, 0): ("a", 3)}
    rd = lambda st, k: (aread if k[0] == "a" else bread)(st, k[1])
    g.wait_vm(("z", 0), ("w", 0))
    g.e("s_barrier")
    for key in sorted(SCH): rd(0, SCH[key])
    for tt in range(4):
        for r in range(4): g.e(f"v_lshlrev_b32 v{24 + tt * 4 + r}, 16, v{16 + tt}")
    g.e("s_mov_b32 s52, 0")
    g.stamp(1)
    def step(st, extra=(), dma=4, nxt=True, init=False):
        extra = list(extra)
        pend = []
        for fb in range(7):
            g.wait_ds(("a", st, fb), ("b", st))
            for tt in range(4):
                if init: g.e(f"MC {acc(fb, tt)},{AR + fb * 4},{BB + (st & 1) * 16 + tt * 4},{24 + tt * 4}")
                else: g.e(f"M {acc(fb, tt)},{AR + fb * 4},{BB + (st & 1) * 16 + tt * 4}")
                if tt == 0 and fb < 3: aread(st, fb + 4)
                if nxt:
                    if (fb, tt) == (3, 0):
                        g.wait_vm(("z", st + 1), ("w", st + 1))
                        g.e("s_barrier")
                        pend = dma_ops(st)[:dma]
                    if (fb, tt) in SCH: rd(st + 1, SCH[(fb, tt)])
                if tt == 3 and pend: pend.pop(0)()
                if tt in (1, 3) and extra and fb < 3:
                    extra.pop(0)()
        assert not pend and not extra
    step(0, ([] if MERGE else [lambda j=j: wop(1, j) for j in range(4)]) + [lambda: zop(2, 0), lambda: zop(2, 1)], init=True)
    for st in range(1, 4): step(st)
    g.label("L_k2_sploop")
    vm0, ds0 = list(g.vm), list(g.ds)
    for st in range(4, 16): step(st)
    ren = lambda t: (t[0], t[1] - 12) + t[2:]
    g.vm = [ren(t) for t in g.vm]; g.ds = [ren(t) for t in g.ds]
    assert g.vm == vm0 and g.ds == ds0, (g.vm, vm0, g.ds, ds0)
    g.e("s_add_u32 s52, s52, 1")
    g.e("s_cmp_lt_u32 s52, 4")
    g.e("s_cbranch_scc1 L_k2_sploop")
    g.stamp(2)
    g.e("s_lshl_b32 s49, s3, 4")
    g.e("s_lshl_b32 s50, s42, 2")
    g.e("s_add_u32 s49, s49, s50")
    g.e("s_mul_i32 s54, s49, 28672")
    g.e("s_mul_i32 s55, s49, 159744")
    g.e(f"s_add_u32 s55, s55, {128 * 1024}")
    for tt in range(4):
        g.e(f"v_add_u32 v{16 + tt}, {tt * 28672}, v{V16}")
        g.e(f"v_add_u32 v{20 + tt}, {tt * 159744}, v{V16}")
    g.e("s_mul_i32 s56, s44, 14")
    g.e("s_mul_i32 s48, s41, 7")
    g.e("s_add_u32 s56, s56, s48")
    g.e("s_lshr_b32 s56, s56, 1")
    g.e("s_lshl_b32 s56, s56, 10")
    g.e("s_add_u32 s54, s54, s56")
    g.e("s_add_u32 s55, s55, s56")
    def z1load(u):
        for tt in range(4):
            r = Z1R + (u * 4 + tt) * 4
            g.vmem(f"buffer_load_dwordx4 v[{r}:{r + 3}], v{16 + tt}, s[28:31], s54 offen offset:{u * 1024} {SC}", ("z1", u))
    for st in range(4, 16):
        ex = {8: 0, 10: 1, 12: 2, 15: 3}
        def w0(fn):
            sk = g.newlabel("w0")
            g.e("s_cmp_lg_u32 s40, 0"); g.e(f"s_cbranch_scc1 {sk}")
            fn(); g.label(sk)
        fl = []
        if MERGE and st == 4: fl = [lambda: w0(lambda: flag_load(g, 12, 14, 100, True))]
        if MERGE and st == 7: fl = [lambda: w0(lambda: flag_wait(g, 12, 14, 59, 100, SLS, True, True))]
        step(st, [lambda u=ex[st]: z1load(u)] if st in ex else fl, dma=4 if st < 12 else (2 if st == 12 else 0), nxt=st < 15)
    g.stamp(4)
    g.e("s_nop 4")
    g.e("s_mov_b32 s53, 0xffff0000")
    vm_sv = list(g.vm)
    lode = g.newlabel("spodd"); lend = g.newlabel("spend")
    g.e("s_cmp_eq_u32 s41, 1")
    g.e(f"s_cbranch_scc1 {lode}")
    for fh in range(2):
        g.vm = list(vm_sv)
        if fh: g.label(lode)
        for u in range(4):
            halves = [(h, 2 * u + h - fh) for h in range(2) if 0 <= 2 * u + h - fh < 7]
            g.wait_vm(("z1", u))
            for tt in range(4):
                z = Z1R + (u * 4 + tt) * 4
                for h, fb in halves:
                    a = acc(fb, tt); t = 8 if h else 1
                    g.e(f"v_lshlrev_b32 v{t}, 16, v{z + 2 * h}")
                    g.e(f"v_and_b32 v{t + 1}, s53, v{z + 2 * h}")
                    g.e(f"v_lshlrev_b32 v{t + 2}, 16, v{z + 2 * h + 1}")
                    g.e(f"v_and_b32 v{t + 3}, s53, v{z + 2 * h + 1}")
                    for r in range(4): g.e(f"v_mul_f32 v{a + r}, v{a + r}, v{t + r}")
                    g.e(f"PK {z + 2 * h},{a},{a + 1}"); g.e(f"PK {z + 2 * h + 1},{a + 2},{a + 3}")
                if len(halves) == 2:
                    g.vmem(f"buffer_store_dwordx4 v[{z}:{z + 3}], v{20 + tt}, s[36:39], s55 offen offset:{u * 1024} {STFU}", "st")
                else:
                    h = halves[0][0]
                    g.vmem(f"buffer_store_dwordx2 v[{z + 2 * h}:{z + 2 * h + 1}], v{20 + tt}, s[36:39], s55 offen offset:{u * 1024 + 8 * h} {STFU}", "st")
        if fh == 0: g.e(f"s_branch {lend}")
    g.label(lend)
    g.stamp(3)
    if MERGE == 2: g.e("s_mov_b32 s4, s59")
    g.stamp_dump(16, 17, 40, 1)
    if MERGE == 2:
        g.e("s_mov_b32 s59, s4")
        g.e("s_add_u32 s58, s44, 49")
        g.e("s_lshl_b32 s58, s58, 7")
        g.e("s_lshl_b32 s49, s3, 2")
        g.e("s_add_u32 s58, s58, s49")
        g.e("s_branch L_p3")
    else: g.e("s_endpgm")

def gen_k2(g):
    if not MERGE:
        g.e(".p2align 8")
        g.e(".type k2_kernel,@function")
        g.label("k2_kernel")
        g.e("s_cmp_ge_u32 s2, 256")
        g.e("s_cbranch_scc1 L_k2_end")
    g.label("L_p2")
    g.stamp(0)
    if PROF: g.e("s_memrealtime s[94:95]")
    if MERGE: g.e("s_load_dwordx2 s[100:101], s[0:1], 96")
    g.e("s_load_dwordx2 s[4:5], s[0:1], 16")
    g.e("s_load_dwordx4 s[8:11], s[0:1], 64")
    g.e("s_load_dwordx2 s[16:17], s[0:1], 104")
    g.e("v_lshrrev_b32 v1, 6, v0")
    g.e("s_and_b32 s3, s2, 7")
    g.e("s_lshr_b32 s41, s2, 3")
    g.e("v_readfirstlane_b32 s40, v1")
    g.e("s_waitcnt lgkmcnt(0)")
    g.e("s_mov_b32 s6, s8")
    g.e("s_mov_b32 s7, s9")
    g.e("s_mov_b32 s8, s10")
    g.e("s_mov_b32 s9, s11")
    if MERGE:
        nw = g.newlabel("nw")
        g.e("s_cmp_lg_u32 s40, 0")
        g.e(f"s_cbranch_scc1 {nw}")
        g.e("v_lshlrev_b32 v14, 2, v0")
        g.e("v_and_b32 v15, 7, v0")
        g.e("v_cmp_eq_u32 vcc, 1, v15")
        g.e("s_nop 1")
        g.e("v_cndmask_b32 v15, 0, 8, vcc")
        g.e("v_cmp_eq_u32 vcc, 5, v0")
        g.e("s_nop 1")
        g.e("v_cndmask_b32 v15, v15, 1, vcc")
        dbg_wait(g, 13, 14, 15, 100, SLA, True)
        g.e("v_readlane_b32 s59, v13, 5")
        g.label(nw)
        g.e(f"s_add_u32 s100, s16, {WS_FL}")
        g.e("s_addc_u32 s101, s17, 0")
    g.e("s_cmp_lt_u32 s41, 28")
    g.e("s_cbranch_scc1 L_k2_attn")
    g.e("s_branch L_k2_sp")
    g.label("L_k2_end")
    g.e("s_endpgm")
    gen_attn(g)
    gen_spatial(g)
    g.label("L_k2_spend")
```

```python
from asmlib import *
from k1 import tr_bases

LDS = 163840
NVGPR = 128
ACC = 32
AF = 64
WF = 96
NS = 39
SL3 = int(os.environ.get('SL3', '4'))
FUSE = int(os.environ.get('FUSE', '1'))
PD = int(os.environ.get('PD', '8'))
STP = os.environ.get('STP', 'sc1')

def gen_k3(g):
    g.vm = []; g.ds = []
    M2 = MERGE == 2
    if not M2:
        g.e(".p2align 8")
        g.e(".type k3_kernel,@function")
        g.label("k3_kernel")
        g.e("s_cmp_ge_u32 s2, 256")
        g.e("s_cbranch_scc1 L_k3_end")
    g.label("L_p3")
    g.stamp(0)
    if PROF: g.e("s_memrealtime s[94:95]")
    g.e("s_load_dwordx2 s[6:7], s[0:1], 40")
    g.e("s_load_dwordx4 s[8:11], s[0:1], 80")
    g.e("s_load_dwordx2 s[4:5], s[0:1], 0")
    g.e("s_load_dwordx2 s[16:17], s[0:1], 104")
    g.e("v_lshrrev_b32 v1, 6, v0")
    g.e("s_bfe_u32 s43, s2, 0x20001")
    g.e("s_and_b32 s42, s2, 1")
    g.e("v_readfirstlane_b32 s40, v1")
    g.e("s_lshl_b32 s42, s42, 3")
    g.e("s_lshr_b32 s49, s2, 5")
    g.e("s_add_u32 s42, s42, s49")
    g.e("s_bfe_u32 s41, s2, 0x20003")
    g.e("v_bfe_u32 v28, v0, 5, 1")
    g.e("v_bfe_u32 v29, v0, 2, 2")
    g.e("v_lshl_add_u32 v28, v28, 4, v29")
    g.e("v_bfe_u32 v29, v0, 6, 2")
    g.e("v_lshl_add_u32 v28, v29, 2, v28")
    g.e("v_lshlrev_b32 v28, 10, v28")
    g.e("v_bfe_u32 v30, v0, 4, 1")
    g.e("v_lshl_add_u32 v28, v30, 6, v28")
    g.e("v_lshrrev_b32 v30, 8, v0")
    g.e("v_lshl_add_u32 v28, v30, 7, v28")
    g.e("v_and_b32 v29, 1, v29")
    g.e("v_lshlrev_b32 v29, 1, v29")
    g.e("v_and_b32 v30, 3, v0")
    g.e("v_xor_b32 v29, v29, v30")
    g.e("v_lshl_add_u32 v1, v29, 4, v28")
    g.e("v_and_b32 v28, 63, v0")
    g.e("v_lshlrev_b32 v7, 4, v28")
    g.e("s_lshl_b32 s46, s40, 10")
    g.e("s_lshl_b32 s49, s42, 3")
    g.e("s_add_u32 s49, s49, s40")
    g.e("s_mul_i32 s47, s49, 159744")
    g.e("s_lshl_b32 s49, s43, 13")
    g.e("s_add_u32 s44, s47, s49")
    g.e("s_mul_i32 s49, s43, 7168")
    g.e("s_add_u32 s45, s47, s49")
    g.e(f"s_add_u32 s45, s45, {128 * 1024}")
    g.e("s_lshl_b32 s49, s41, 8")
    g.e("s_lshl_b32 s52, s43, 18")
    g.e("s_add_u32 s52, s52, s49")
    g.e(f"s_mul_i32 s53, s43, {7 * 32768}")
    g.e("s_add_u32 s53, s53, s49")
    g.e("s_waitcnt lgkmcnt(0)")
    srd(g, 20, 6, 7, 4096 * 1024)
    srd(g, 24, 8, 9, 896 * 1024)
    srd(g, 28, 16, 17, SZ_CTX, WS_CTX)
    def dma_ops(t):
        if t >= NS: return []
        u = t >= 32; tt = t - 32 if u else (((t >> 2) & 1) + 8 * (t >> 3)) * 4 + (t & 3)
        def a():
            g.e(f"s_add_u32 m0, s46, {(t % 10) * 16384}")
            g.e(f"s_add_u32 s49, s{45 if u else 44}, {tt * 1024}")
            g.vmem(f"buffer_load_dwordx4 v7, s[28:31], s49 offen {'sc1' if M2 else ''} lds", t // 2)
        def w():
            g.e(f"s_add_u32 m0, s46, {(t % 10) * 16384 + 8192}")
            g.e(f"s_add_u32 s49, s{53 if u else 52}, {tt * 32768}")
            g.vmem(f"buffer_load_dwordx4 v1, s[{24 if u else 20}:{27 if u else 23}], s49 offen lds", t // 2)
        return [a, w]
    def w0(fn):
        sk = g.newlabel("w0")
        g.e("s_cmp_lg_u32 s40, 0"); g.e(f"s_cbranch_scc1 {sk}")
        fn(); g.label(sk)
    if M2:
        g.e("s_waitcnt vmcnt(0)")
        g.e("s_barrier")
        w0(lambda: flag_set(g, 20, 58, 59, 100))
        for t in range(4): dma_ops(t)[1]()
        g.e("s_sub_u32 s49, 15, s42")
        g.e("s_sub_u32 s50, s42, 4")
        g.e("s_cmp_ge_u32 s42, 10")
        g.e("s_cselect_b32 s49, s49, s50")
        g.e("s_cmp_lt_u32 s42, 4")
        g.e("s_cselect_b32 s49, 6, s49")
        g.e("s_lshl_b32 s49, s49, 2")
        g.e("s_add_u32 s49, s49, s43")
        g.e("s_add_u32 s49, s49, 21")
        g.e("s_lshl_b32 s49, s49, 7")
        g.e("s_and_b32 s50, s2, 7")
        g.e("s_lshl_b32 s50, s50, 13")
        g.e("s_add_u32 s49, s49, s50")
        g.e("v_and_b32 v17, 7, v0")
        g.e("v_lshl_add_u32 v17, v17, 2, s49")
        g.e("s_add_u32 s49, s43, 49")
        g.e("s_lshl_b32 s49, s49, 7")
        g.e("s_add_u32 s49, s49, s50")
        g.e("s_lshr_b32 s50, s42, 1")
        g.e("s_lshl_b32 s50, s50, 2")
        g.e("s_add_u32 s49, s49, s50")
        g.e("v_mov_b32 v18, s49")
        w0(lambda: flag_wait(g, 26, 17, 59, 100, SL3, False))
        g.e("v_mov_b32 v26, 0")
        g.e("s_barrier")
        for t in range(4): dma_ops(t)[0]()
    else:
        for t in range(2):
            for op in dma_ops(t): op()
        code_touch(g, 60, 20, "L_all_end")
        g.e("s_barrier")
        for t in range(2, 4):
            for op in dma_ops(t): op()
    srd(g, 32, 16, 17, 8 * MB + 32768, WS_PART)
    if FUSE:
        srd(g, 12, 4, 5, 2 * MB)
        srd(g, 36, 10, 11, 2 * MB)
        g.e("s_lshl_b32 s49, s42, 2")
        g.e("s_add_u32 s49, s49, s41")
        g.e("s_lshl_b32 s56, s49, 9")
        g.e(f"s_add_u32 s56, s56, {8 * MB}")
        g.e("s_lshl_b32 s57, s43, 7")
        g.e("s_add_u32 s57, s57, s56")
        g.e("s_lshl_b32 s49, s49, 15")
        g.e("s_lshl_b32 s50, s40, 12")
        g.e("s_add_u32 s49, s49, s50")
        g.e("s_lshl_b32 s50, s43, 21")
        g.e("s_add_u32 s54, s49, s50")
        g.e("s_lshl_b32 s50, s43, 10")
        g.e("s_add_u32 s55, s49, s50")
        g.e("v_lshlrev_b32 v22, 20, v7")
        g.e("v_lshlrev_b32 v23, 3, v7")
        g.e("v_bfe_u32 v24, v0, 2, 4")
        g.e("v_lshl_add_u32 v23, v24, 24, v23")
        g.e("v_and_b32 v19, 15, v0")
        g.e("v_lshlrev_b32 v19, 10, v19")
        g.e("v_bfe_u32 v24, v0, 4, 1")
        g.e("v_lshl_add_u32 v19, v24, 5, v19")
        g.e("v_bfe_u32 v24, v0, 5, 1")
        g.e("v_lshl_add_u32 v19, v24, 4, v19")
        g.e("s_lshl_b32 s48, s42, 17")
        g.e("s_lshr_b32 s49, s40, 2")
        g.e("s_lshl_b32 s49, s49, 16")
        g.e("s_add_u32 s48, s48, s49")
        g.e("s_lshl_b32 s49, s43, 14")
        g.e("s_add_u32 s48, s48, s49")
        g.e("s_lshl_b32 s49, s41, 8")
        g.e("s_add_u32 s48, s48, s49")
        g.e("s_and_b32 s49, s40, 3")
        g.e("s_lshl_b32 s49, s49, 6")
        g.e("s_add_u32 s48, s48, s49")
    tr_bases(g, 8, 9)
    g.e("s_bfe_u32 s49, s40, 0x10001")
    g.e("s_lshl_b32 s49, s49, 12")
    g.e("s_and_b32 s50, s40, 1")
    g.e("s_lshl_b32 s50, s50, 8")
    g.e("s_add_u32 s49, s49, s50")
    g.e("s_add_u32 s49, s49, 8192")
    g.e("v_add_u32 v8, s49, v8")
    g.e("v_add_u32 v9, s49, v9")
    g.e("s_lshr_b32 s49, s40, 2")
    g.e("s_lshl_b32 s49, s49, 12")
    g.e("v_add_u32 v10, s49, v7")
    for k in (1, 2):
        for i in range(3): g.e(f"v_add_u32 v{8 + 3 * k + i}, {k * 0x10000}, v{8 + i}")
    g.stamp(1)
    pend = []
    def reads(t):
        if t >= NS: return []
        sl = t % 10; b = 8 + 3 * (sl >> 2); o = (sl & 3) * 16384
        ops = []
        if t % 2 == 0:
            def sync():
                assert not pend
                g.wait_vm(t // 2)
                if M2 and t + PD == 32: w0(lambda: flag_wait(g, 26, 18, 59, 100, SL3, True))
                g.e("s_barrier")
                if M2 and t + PD == 26: w0(lambda: flag_load(g, 26, 18, 100))
                pend.extend(dma_ops(t + PD) + dma_ops(t + PD + 1))
            ops.append(sync)
        rd = []
        for cb in range(2):
            for a in range(2):
                rd.append(lambda cb=cb, a=a: g.lds(f"TR {WF + (t & 1) * 8 + cb * 4 + 2 * a},{b + cb},{o + a * 512}", ("r", t)))
        dr = [lambda rt=rt: g.lds(f"DR {AF + (t & 1) * 16 + rt * 4},{b + 2},{o + rt * 1024}", ("r", t)) for rt in range(4)]
        return ops + rd[:2] + dr + rd[2:]
    ramp = [op for t in range(4, PD) for op in dma_ops(t)]
    for op in reads(0): op()
    ramp += pend; del pend[:]
    for t in range(NS):
        nx = reads(t + 1)
        g.wait_ds(("r", t))
        k = 0
        for cb in range(2):
            for rt in range(4):
                g.e(f"{'MZ' if t == 0 else 'M'} {ACC + (cb * 4 + rt) * 4},{WF + (t & 1) * 8 + cb * 4},{AF + (t & 1) * 16 + rt * 4}")
                n = 2 if k < 4 else 1
                for _ in range(n):
                    if nx: nx.pop(0)()
                if ramp:
                    ramp.pop(0)()
                    if t == 0 and k >= 4 and ramp: ramp.pop(0)()
                elif k >= 5 and k != 6 and pend: pend.pop(0)()
                k += 1
        assert not nx
        if FUSE and t == 32: g.vmem("buffer_load_dwordx4 v[112:115], v19, s[12:15], s48 offen", "xx")
        if t in (0, 9, 19, 29): g.stamp({0: 2, 9: 3, 19: 4, 29: 5}[t])
    g.stamp(6)
    if not FUSE:
        g.e("s_lshl_b32 s49, s43, 21")
        g.e("s_lshl_b32 s50, s42, 17")
        g.e("s_add_u32 s49, s49, s50")
        g.e("s_lshl_b32 s50, s41, 15")
        g.e("s_add_u32 s49, s49, s50")
        g.e("s_lshl_b32 s50, s40, 12")
        g.e("s_add_u32 s49, s49, s50")
        g.e("s_nop 4")
        for rt in range(4):
            x, y = ACC + rt * 4, ACC + (4 + rt) * 4
            g.e(f"PK {x},{x},{x + 1}"); g.e(f"PK {x + 1},{x + 2},{x + 3}")
            g.e(f"PK {x + 2},{y},{y + 1}"); g.e(f"PK {x + 3},{y + 2},{y + 3}")
        g.e("s_nop 1")
        for rt in range(4):
            x = ACC + rt * 4
            g.e(f"v_permlane16_swap_b32 v{x}, v{x + 2}")
            g.e(f"v_permlane16_swap_b32 v{x + 1}, v{x + 3}")
            g.e(f"buffer_store_dwordx4 v[{x}:{x + 3}], v7, s[32:35], s49 offen offset:{rt * 1024} {STP}")
    else:
        g.e("s_nop 4")
        for rt in range(4):
            x, y = ACC + rt * 4, ACC + (4 + rt) * 4
            d = AF + rt * 4
            g.e(f"PK {d},{x},{x + 1}"); g.e(f"PK {d + 1},{x + 2},{x + 3}")
            g.e(f"PK {d + 2},{y},{y + 1}"); g.e(f"PK {d + 3},{y + 2},{y + 3}")
            sk = g.newlabel("own")
            g.e(f"s_cmp_eq_u32 s43, {rt}")
            g.e(f"s_cbranch_scc1 {sk}")
            g.e(f"buffer_store_dwordx4 v[{d}:{d + 3}], v7, s[32:35], s54 offen offset:{rt * 1024} sc1")
            g.label(sk)
        for rt in range(1, 4):
            sk = g.newlabel("mv")
            g.e(f"s_cmp_lg_u32 s43, {rt}")
            g.e(f"s_cbranch_scc1 {sk}")
            for cb in range(2):
                for r in range(4): g.e(f"v_mov_b32 v{ACC + cb * 16 + r}, v{ACC + (cb * 4 + rt) * 4 + r}")
            g.label(sk)
        g.e("v_mov_b32 v21, s59" if M2 else "v_mov_b32 v21, 1")
        g.e("s_waitcnt vmcnt(0)")
        g.e("s_barrier")
        g.stamp(7)
        spin = g.newlabel("spin"); done = g.newlabel("done")
        g.e("s_cmp_lg_u32 s40, 0")
        g.e(f"s_cbranch_scc1 {done}")
        g.e("buffer_store_dword v21, v22, s[32:35], s57 offen sc1")
        g.label(spin)
        g.e("buffer_load_dword v24, v23, s[32:35], s56 offen sc1")
        g.e("s_waitcnt vmcnt(0)")
        g.e("v_cmp_eq_u32 vcc, v21, v24")
        g.e("s_nop 1")
        g.e("s_and_b32 s49, vcc_lo, 15")
        g.e("s_cmp_eq_u32 s49, 15")
        g.e(f"s_cbranch_scc1 {done}")
        g.e("s_sleep 2")
        g.e(f"s_branch {spin}")
        g.label(done)
        g.e("s_barrier")
        g.stamp(8)
        for i in range(3):
            g.e(f"s_add_u32 s49, s43, {i + 1}")
            g.e("s_and_b32 s49, s49, 3")
            g.e("s_lshl_b32 s49, s49, 21")
            g.e("s_add_u32 s49, s49, s55")
            g.e(f"buffer_load_dwordx4 v[{AF + 4 * i}:{AF + 4 * i + 3}], v7, s[32:35], s49 offen sc1")
        A8 = [ACC + r for r in range(4)] + [ACC + 16 + r for r in range(4)]
        g.e("s_mov_b32 s50, 0xffff0000")
        for i in range(3):
            g.e(f"s_waitcnt vmcnt({2 - i})")
            for r in range(4):
                g.e(f"v_lshlrev_b32 v24, 16, v{AF + 4 * i + r}")
                g.e(f"v_and_b32 v25, s50, v{AF + 4 * i + r}")
                g.e(f"v_add_f32 v{A8[2 * r]}, v{A8[2 * r]}, v24")
                g.e(f"v_add_f32 v{A8[2 * r + 1]}, v{A8[2 * r + 1]}, v25")
        g.e("s_nop 1")
        for r in range(4): g.e(f"v_permlane16_swap_b32 v{A8[r]}, v{A8[4 + r]}")
        g.e("s_nop 1")
        for r in range(4):
            g.e(f"v_lshlrev_b32 v24, 16, v{112 + r}")
            g.e(f"v_and_b32 v25, s50, v{112 + r}")
            g.e(f"v_add_f32 v{A8[2 * r]}, v{A8[2 * r]}, v24")
            g.e(f"v_add_f32 v{A8[2 * r + 1]}, v{A8[2 * r + 1]}, v25")
        for r in range(4): g.e(f"PK {28 + r},{A8[2 * r]},{A8[2 * r + 1]}")
        g.e("buffer_store_dwordx4 v[28:31], v19, s[36:39], s48 offen")
    g.stamp_dump(16, 17, 40, 2)
    g.label("L_k3_end")
    g.e("s_endpgm")
    if FUSE: g.label("L_all_end")

def gen_k4(g):
    g.e(".p2align 8")
    g.e(".type k4_kernel,@function")
    g.label("k4_kernel")
    g.e("s_cmp_ge_u32 s2, 256")
    g.e("s_cbranch_scc1 L_k4_end")
    g.e("s_load_dwordx2 s[4:5], s[0:1], 0")
    g.e("s_load_dwordx2 s[6:7], s[0:1], 88")
    g.e("s_load_dwordx2 s[16:17], s[0:1], 104")
    g.e("v_lshlrev_b32 v1, 4, v0")
    g.e("s_lshl_b32 s20, s2, 13")
    g.e("v_lshrrev_b32 v2, 6, v0")
    g.e("v_lshl_add_u32 v2, s2, 3, v2")
    g.e("v_lshrrev_b32 v3, 7, v2")
    g.e("v_lshlrev_b32 v3, 7, v3")
    g.e("v_bfe_u32 v4, v2, 4, 1")
    g.e("v_lshl_add_u32 v3, v4, 6, v3")
    g.e("v_and_b32 v4, 3, v2")
    g.e("v_lshl_add_u32 v3, v4, 4, v3")
    g.e("v_and_b32 v4, 15, v0")
    g.e("v_add_u32 v3, v3, v4")
    g.e("v_lshlrev_b32 v3, 10, v3")
    g.e("v_bfe_u32 v4, v2, 5, 2")
    g.e("v_lshl_add_u32 v3, v4, 8, v3")
    g.e("v_bfe_u32 v4, v2, 2, 2")
    g.e("v_lshl_add_u32 v3, v4, 6, v3")
    g.e("v_bfe_u32 v4, v0, 4, 1")
    g.e("v_lshl_add_u32 v3, v4, 5, v3")
    g.e("v_bfe_u32 v4, v0, 5, 1")
    g.e("v_lshl_add_u32 v3, v4, 4, v3")
    g.e("s_waitcnt lgkmcnt(0)")
    srd(g, 8, 16, 17, 8 * MB, WS_PART)
    srd(g, 12, 4, 5, 2 * MB)
    for q in range(4):
        g.e(f"buffer_load_dwordx4 v[{8 + 4 * q}:{11 + 4 * q}], v1, s[8:11], s20 offen")
        g.e(f"s_add_u32 s20, s20, {2 * MB}")
    g.e("buffer_load_dwordx4 v[24:27], v3, s[12:15], 0 offen")
    srd(g, 24, 6, 7, 2 * MB)
    g.e("s_mov_b32 s21, 0xffff0000")
    for q in range(5):
        g.e(f"s_waitcnt vmcnt({4 - q})")
        for i in range(4):
            r = 8 + 4 * q + i
            if q == 0:
                g.e(f"v_lshlrev_b32 v{28 + 2 * i}, 16, v{r}")
                g.e(f"v_and_b32 v{29 + 2 * i}, s21, v{r}")
            else:
                g.e(f"v_lshlrev_b32 v4, 16, v{r}")
                g.e(f"v_and_b32 v5, s21, v{r}")
                g.e(f"v_add_f32 v{28 + 2 * i}, v{28 + 2 * i}, v4")
                g.e(f"v_add_f32 v{29 + 2 * i}, v{29 + 2 * i}, v5")
    for i in range(4): g.e(f"PK {8 + i},{28 + 2 * i},{29 + 2 * i}")
    g.e("buffer_store_dwordx4 v[8:11], v3, s[24:27], 0 offen")
    g.label("L_k4_end")
    g.e("s_endpgm")
    g.label("L_all_end")
```

```python
import struct, os
KNAME = 'parallel_sum__compressed_kv_cla__mixer_gmlp__prompt_kernel'
PROF = int(os.environ.get('PROF', '0'))

def f32(x):
    return struct.unpack('<I', struct.pack('<f', x))[0]

class G:
    def __init__(self):
        self.lines = []
        self.vm = []
        self.ds = []
        self.uid = 0
    def e(self, s):
        self.lines.append(s)
    def label(self, name):
        self.lines.append(name + ":")
    def newlabel(self, base):
        self.uid += 1
        return f"L_{base}_{self.uid}"
    def vmem(self, s, tag=None):
        self.lines.append(s); self.vm.append(tag)
    def lds(self, s, tag=None):
        self.lines.append(s); self.ds.append(tag)
    def _need(self, lst, tags):
        idx = -1
        for i, t in enumerate(lst):
            if t in tags: idx = i
        return idx
    def wait_vm(self, *tags):
        idx = self._need(self.vm, tags)
        if idx < 0: return
        n = min(len(self.vm) - 1 - idx, 63)
        self.lines.append(f"s_waitcnt vmcnt({n})")
        self.vm = self.vm[len(self.vm) - n:] if n else []
    def wait_ds(self, *tags):
        idx = self._need(self.ds, tags)
        if idx < 0: return
        n = min(len(self.ds) - 1 - idx, 15)
        self.lines.append(f"s_waitcnt lgkmcnt({n})")
        self.ds = self.ds[len(self.ds) - n:] if n else []
    def wait_all(self, vm=True, ds=True):
        if vm and ds: self.lines.append("s_waitcnt vmcnt(0) lgkmcnt(0)")
        elif vm: self.lines.append("s_waitcnt vmcnt(0)")
        elif ds: self.lines.append("s_waitcnt lgkmcnt(0)")
        if vm: self.vm = []
        if ds: self.ds = []
    def stamp(self, i):
        if PROF == 4 and i > 6: return
        if PROF: self.lines.append(f"s_memtime s[{64 + 2 * i}:{65 + 2 * i}]")
        if PROF == 4 and 1 <= i <= 6: self.lines.append(f"s_memrealtime s[{64 + 2 * (i + 7)}:{65 + 2 * (i + 7)}]")
    def stamp_if(self, i, sreg, val):
        if PROF != 2: return
        l = self.newlabel("st")
        self.e(f"s_cmp_lg_u32 s{sreg}, {val}")
        self.e(f"s_cbranch_scc1 {l}")
        self.stamp(i)
        self.label(l)
    def stamp_dump(self, wslo, wshi, swave, kidx, n=16):
        if not PROF: return
        e = self.e
        e("s_waitcnt vmcnt(0) lgkmcnt(0)")
        e("s_memrealtime s[98:99]")
        e("s_memtime s[96:97]")
        e("s_waitcnt lgkmcnt(0)")
        e(f"s_add_u32 s60, s{wslo}, {WS_DBG + kidx * MB}")
        e(f"s_addc_u32 s61, s{wshi}, 0")
        e(f"s_mov_b32 s62, {MB}")
        e("s_mov_b32 s63, 0x20000")
        e("s_lshl_b32 s49, s2, 10")
        e(f"s_lshl_b32 s50, s{swave}, 7")
        e("s_add_u32 s49, s49, s50")
        e("v_and_b32 v1, 63, v0") if False else None
        e("v_mbcnt_lo_u32_b32 v1, -1, 0")
        e("v_mbcnt_hi_u32_b32 v1, -1, v1")
        e("v_lshlrev_b32 v1, 24, v1")
        for i in range(n + 2):
            e(f"v_mov_b32 v2, s{64 + 2 * i}")
            e(f"buffer_store_dword v2, v1, s[60:63], s49 offen offset:{4 * i}")
            e("s_nop 1")
    def text(self):
        return "\n".join(self.lines) + "\n"

MACROS = r"""
.macro M d,a,b
v_mfma_f32_16x16x32_bf16 v[\d:\d+3],v[\a:\a+3],v[\b:\b+3],v[\d:\d+3]
.endm
.macro MZ d,a,b
v_mfma_f32_16x16x32_bf16 v[\d:\d+3],v[\a:\a+3],v[\b:\b+3],0
.endm
.macro MC d,a,b,c
v_mfma_f32_16x16x32_bf16 v[\d:\d+3],v[\a:\a+3],v[\b:\b+3],v[\c:\c+3]
.endm
.macro TR d,a,o
ds_read_b64_tr_b16 v[\d:\d+1],v\a offset:\o
.endm
.macro DR d,a,o
ds_read_b128 v[\d:\d+3],v\a offset:\o
.endm
.macro DW a,d,o
ds_write_b128 v\a,v[\d:\d+3] offset:\o
.endm
.macro PK d,a,b
v_cvt_pk_bf16_f32 v\d,v\a,v\b
.endm
"""

def kd(name, vgpr, sgpr=102):
    acc = (vgpr + 3) // 4 * 4
    return f"""
.amdhsa_kernel {name}
  .amdhsa_next_free_vgpr {vgpr}
  .amdhsa_next_free_sgpr {sgpr}
  .amdhsa_accum_offset {acc}
  .amdhsa_group_segment_fixed_size 0
  .amdhsa_kernarg_size 112
  .amdhsa_user_sgpr_count 2
  .amdhsa_user_sgpr_kernarg_segment_ptr 1
  .amdhsa_system_sgpr_workgroup_id_x 1
.end_amdhsa_kernel
"""

def srd(g, s, lo, hi, size, off=0):
    if off:
        g.e(f"s_add_u32 s{s}, s{lo}, {off}")
        g.e(f"s_addc_u32 s{s+1}, s{hi}, 0")
    else:
        g.e(f"s_mov_b32 s{s}, s{lo}")
        g.e(f"s_mov_b32 s{s+1}, s{hi}")
    g.e(f"s_mov_b32 s{s+2}, {size}")
    g.e(f"s_mov_b32 s{s+3}, 0x20000")

MERGE = int(os.environ.get('MERGE', '2'))
SC = os.environ.get("SCL", "sc1") if MERGE else ""
def dbg_load(g, v, voff, base):
    g.e(f"global_load_dword v{v}, v{voff}, s[{base}:{base + 1}] sc1")
def dbg_wait(g, v, voff, vtgt, base, sleep, loaded):
    spin = g.newlabel("spin"); chk = g.newlabel("chk")
    if loaded: g.e(f"s_branch {chk}")
    g.label(spin)
    g.e(f"s_sleep {sleep}")
    dbg_load(g, v, voff, base)
    g.e("s_waitcnt vmcnt(0)")
    g.label(chk)
    g.e(f"v_cmp_lt_u32 vcc, v{v}, v{vtgt}")
    g.e(f"s_cbranch_vccnz {spin}")
def nonce_get(g, v, voff, sleep, loaded):
    spin = g.newlabel("spin"); chk = g.newlabel("chk")
    if loaded: g.e(f"s_branch {chk}")
    g.label(spin)
    g.e(f"s_sleep {sleep}")
    g.e(f"v_mov_b32 v{voff}, 20")
    dbg_load(g, v, voff, 18)
    g.label(chk)
    g.e("s_waitcnt vmcnt(0)") if not loaded else None
    g.e(f"v_readfirstlane_b32 s59, v{v}")
    g.e("s_bitcmp1_b32 s59, 0")
    if loaded:
        ok = g.newlabel("ok")
        g.e(f"s_cbranch_scc1 {ok}")
        g.e("s_waitcnt vmcnt(0)")
        g.e(f"v_readfirstlane_b32 s59, v{v}")
        g.e("s_bitcmp1_b32 s59, 0")
        g.e(f"s_cbranch_scc0 {spin}")
        g.label(ok)
    else:
        g.e(f"s_cbranch_scc0 {spin}")
def flag_set(g, vt, soff, snonce, base):
    g.e(f"v_lshlrev_b32 v{vt}, 13, v0")
    g.e(f"v_add_u32 v{vt}, s{soff}, v{vt}")
    g.e(f"v_mov_b32 v{vt + 1}, s{snonce}")
    g.e("s_mov_b64 exec, 0xff")
    g.e(f"global_store_dword v{vt}, v{vt + 1}, s[{base}:{base + 1}] sc1")
    g.e("s_mov_b64 exec, -1")
def flag_load(g, v, voff, base, wide=False):
    if wide: g.e(f"global_load_dwordx2 v[{v}:{v + 1}], v{voff}, s[{base}:{base + 1}] sc1")
    else: g.e(f"global_load_dword v{v}, v{voff}, s[{base}:{base + 1}] sc1")
def flag_wait(g, v, voff, snonce, base, sleep, loaded, wide=False):
    spin = g.newlabel("spin"); chk = g.newlabel("chk")
    if loaded: g.e(f"s_branch {chk}")
    g.label(spin)
    g.e(f"s_sleep {sleep}")
    flag_load(g, v, voff, base, wide)
    g.e("s_waitcnt vmcnt(0)")
    g.label(chk)
    g.e(f"v_cmp_ne_u32 vcc, s{snonce}, v{v}")
    g.e(f"s_cbranch_vccnz {spin}")
    if wide:
        g.e(f"v_cmp_ne_u32 vcc, s{snonce}, v{v + 1}")
        g.e(f"s_cbranch_vccnz {spin}")
CPF = int(os.environ.get('CPF', '1'))
def code_touch(g, s, v, end, start=None, track=True):
    if not CPF: return
    here = g.newlabel("pc")
    g.e(f"s_getpc_b64 s[{s}:{s + 1}]")
    g.label(here)
    if start:
        g.e(f"s_add_u32 s{s}, s{s}, {start}-{here}")
        g.e(f"s_addc_u32 s{s + 1}, s{s + 1}, 0")
    g.e(f"s_mov_b32 s{s + 2}, {end}-{start or here}")
    g.e(f"s_mov_b32 s{s + 3}, 0x20000")
    g.e(f"v_lshlrev_b32 v{v}, 7, v0")
    t = f"buffer_load_dword v{v}, v{v}, s[{s}:{s + 3}], 0 offen"
    if track: g.vmem(t, "code")
    else: g.e(t)

MB = 1 << 20
WS_XN = 0
WS_K = 2 * MB
WS_V = 18 * MB
WS_Z1 = 34 * MB
WS_Z2 = 38 * MB
WS_ST = 42 * MB
WS_CTX = 44 * MB
SZ_XN = 2 * MB
SZ_KV = 16 * MB
SZ_Z = 2048 * 896 * 2
SZ_ST = 3 * 2048 * 8
SZ_CTX = 128 * 156 * 1024
WS_DBG = 200 * MB
WS_SCR = 64 * MB
SZ_SCR = 32 * MB
WS_PART = 64 * MB
WS_XNP = 74 * MB
WS_FL = 76 * MB
```

```python
from asmlib import *
import math

XR = 128
ACC = [64, 96]
WR = 32
D = 6
C2 = -2.0 * math.sqrt(2.0 / math.pi) * math.log2(math.e)
C1 = C2 * 0.044715
NPKV = int(os.environ.get('NPKV', '6'))
NPZ = int(os.environ.get('NPZ', '3'))
GKV = -(-64 // NPKV); GZ = 7
assert NPKV == 6 and NPZ == 3
GMAP = [[0, 1, 2, 25, 3, 4, 26, 10], [11, 12, 13, 27, 14, 15, 28, 21], [5, 6, 29, 7, 8, 30, 9, 22], [16, 17, 31, 18, 23, 19, 20, 24]]
assert sorted(sum(GMAP, [])) == list(range(32))
NTW = os.environ.get('NTW', '')
PF = int(os.environ.get('PF', '76'))
CLU = int(os.environ.get('CLU', '1'))
PFW = int(os.environ.get('PFW', '0'))
NTP = os.environ.get('NTP', '')
PF3 = int(os.environ.get('PF3', '1'))
ZPUB = int(os.environ.get('ZPUB', '20'))
MIX = int(os.environ.get('MIX', '1'))
PFWS = int(os.environ.get('PFWS', '16'))
ROT = int(os.environ.get('ROT', '1'))
SL0 = int(os.environ.get('SL0', '64')); SL1 = int(os.environ.get('SL1', '4'))
LT = int(os.environ.get('LT', '0'))
PFL = eval(os.environ.get('PFL', '[0,2,4,8,10,11,14,18,22,23]'))
PROT = int(os.environ.get('PROT', '0'))
ZA = int(os.environ.get('ZA', '10')); ZP = int(os.environ.get('ZP', '12')); ZC = int(os.environ.get('ZC', '12'))
STF = os.environ.get('STF', 'sc1')

def xreg(a, m): return XR + (m * 2 + a) * 4
def areg(st, cb, a): return ACC[st] + (cb * 2 + a) * 4

def w_voffsets(g, rowstride, vbase):
    g.e("v_bfe_u32 v28, v0, 5, 1")
    g.e("v_bfe_u32 v29, v0, 2, 2")
    g.e("v_lshl_add_u32 v28, v28, 2, v29")
    g.e(f"v_mul_u32_u24 v28, {rowstride}, v28")
    g.e("v_bfe_u32 v29, v0, 4, 1")
    g.e("v_lshl_add_u32 v28, v29, 6, v28")
    g.e("v_and_b32 v29, 3, v0")
    g.e("v_xor_b32 v30, 2, v29")
    g.e("v_lshlrev_b32 v29, 4, v29")
    g.e("v_lshlrev_b32 v30, 4, v30")
    for j in range(4):
        g.e(f"v_add_u32 v31, {j * 8 * rowstride - j * 1024}, v28")
        g.e(f"v_add_u32 v{vbase + j}, v31, v{29 + (j & 1)}")

def tr_bases(g, ve, vo):
    g.e("v_bfe_u32 v28, v0, 4, 2")
    g.e("v_lshlrev_b32 v29, 10, v28")
    g.e("v_bfe_u32 v30, v0, 2, 2")
    g.e("v_lshl_add_u32 v29, v30, 6, v29")
    g.e("v_and_b32 v30, 3, v0")
    g.e("v_lshl_add_u32 v29, v30, 3, v29")
    g.e("v_and_b32 v28, 1, v28")
    g.e(f"v_lshl_add_u32 v{ve}, v28, 5, v29")
    g.e(f"v_xor_b32 v{vo}, 32, v{ve}")

def gelu_ops(regs, T, vc2, sc1, stats=None):
    out = []
    n = len(T)
    for i in range(0, len(regs), n):
        grp = list(zip(regs[i:i + n], T))
        out += [f"v_mul_f32 v{t}, v{x}, v{x}" for x, t in grp]
        out += [f"v_fma_f32 v{t}, v{t}, s{sc1}, v{vc2}" for x, t in grp]
        out += [f"v_mul_f32 v{t}, v{t}, v{x}" for x, t in grp]
        out += [f"v_exp_f32 v{t}, v{t}" for x, t in grp]
        out += [f"v_add_f32 v{t}, 1.0, v{t}" for x, t in grp]
        out += [f"v_rcp_f32 v{t}, v{t}" for x, t in grp]
        out += [f"v_mul_f32 v{x}, v{x}, v{t}" for x, t in grp]
        if stats:
            out += [f"v_add_f32 v{stats[x][0]}, v{stats[x][0]}, v{x}" for x, t in grp]
            out += [f"v_fmac_f32 v{stats[x][1]}, v{x}, v{x}" for x, t in grp]
    return out

def ln_params(g, MEAN, VAR, n):
    def rbf(rs):
        for r in rs: g.e(f"PK {r},{r},{r}")
        for r in rs: g.e(f"v_and_b32 v{r}, 0xffff0000, v{r}")
    for m, v in zip(MEAN, VAR):
        g.e(f"v_mul_f32 v{m}, {f32(1 / n)}, v{m}")
        g.e(f"v_mul_f32 v{v}, {f32(1 / n)}, v{v}")
    for m, v in zip(MEAN, VAR): g.e(f"v_fma_f32 v{v}, -v{m}, v{m}, v{v}")
    for v in VAR: g.e(f"v_max_f32 v{v}, 0, v{v}")
    rbf(list(MEAN) + list(VAR))
    for v in VAR: g.e(f"v_add_f32 v{v}, {f32(1e-5)}, v{v}")
    rbf(VAR)
    for v in VAR: g.e(f"v_sqrt_f32 v{v}, v{v}")
    g.e("s_nop 0")
    rbf(VAR)
    for v in VAR: g.e(f"v_rcp_f32 v{v}, v{v}")
    g.e("s_nop 0")
    for m, v in zip(MEAN, VAR): g.e(f"v_mul_f32 v{m}, v{m}, v{v}")

def gen_type(g, T):
    ktp = lambda p: T in ("K", "Z1") or (T == "Z2" and p == 2)
    ztype = T in ("Z1", "Z2")
    rowstride = 3584 if ztype else 8192
    NP = NPZ if ztype else NPKV
    NTOT = 14 if ztype else 64
    NG = {"Z1": 3, "Z2": GZ}.get(T, GKV)
    NS = {"Z1": 2, "Z2": 3}.get(T, NTOT - (NG - 1) * NP)
    SHORT0 = {"Z1": 1}.get(T, NG - 1)
    VW = 1
    VTE, VTO = 5, 6
    VST = 7
    VC2 = 8
    VXA = 20
    VXR = (9, 11)
    TMP = [9, 10, 11, 12]
    STAT = 16
    g.vm = []; g.ds = []
    g.label(f"L_k1_{T}")
    g0 = {"K": 0, "V": GKV, "Z1": 2 * GKV, "Z2": 2 * GKV + 3}[T]
    g.e(f"s_sub_u32 s42, s3, {g0}")
    g.e("v_and_b32 v28, 63, v0")
    g.e(f"v_lshlrev_b32 v{VST}, 4, v28")
    if ztype:
        srd(g, 24, 4, 5, 2 * MB)
        g.e(f"s_sub_u32 s54, s3, {2 * GKV}")
        g.e("s_and_b32 s49, s54, 7")
        g.e("s_lshl_b32 s49, s49, 5")
        g.e("s_lshl_b32 s50, s41, 8")
        g.e("s_add_u32 s49, s49, s50")
        g.e("s_lshl_b32 s50, s40, 2")
        g.e("s_add_u32 s55, s49, s50")
        g.e("s_lshl_b32 s49, s55, 10")
        g.e("v_and_b32 v28, 3, v0")
        g.e("v_bfe_u32 v29, v0, 2, 4")
        g.e("v_lshlrev_b32 v30, 4, v29")
        g.e("v_lshl_add_u32 v30, v28, 10, v30")
        for i in range(4): g.vmem(f"buffer_load_dwordx4 v[{64 + 4 * i}:{67 + 4 * i}], v30, s[24:27], s49 offen offset:{256 * i}", "ln")
    else:
        srd(g, 24, 6, 7, 2 * MB)
    if T == "K": srd(g, 20, 10, 11, 512 * 8192)
    if T == "V": srd(g, 20, 12, 13, 512 * 8192)
    if ztype: srd(g, 20, 14, 15, 512 * 3584)
    if T == "Z1":
        g.e("s_lshl_b32 s58, s42, 1")
        g.e("s_add_u32 s58, s58, 8")
        g.e("s_cmp_eq_u32 s42, 0")
        g.e("s_cselect_b32 s58, 7, s58")
    elif T == "Z2": g.e("s_lshl_b32 s58, s42, 1")
    else: g.e(f"s_mul_i32 s58, s42, {NP}")
    colbase = 1792 if T == "Z2" else 0
    g.e("s_lshl_b32 s44, s58, 7")
    if colbase: g.e(f"s_add_u32 s44, s44, {colbase}")
    if ztype: g.e(f"s_mov_b32 s45, {colbase + (NTOT - 1) * 128}")
    else:
        g.e(f"s_cmp_lt_u32 s42, {SHORT0}")
        g.e(f"s_cselect_b32 s45, {NP}, {NS}")
        g.e("s_bfe_u32 s63, s2, 0x20003" if PROT else "s_mov_b32 s63, 0")
        g.e("s_lshl_b32 s63, s63, 1")
        g.e("s_cmp_ge_u32 s63, s45")
        g.e("s_cselect_b32 s49, s45, 0")
        g.e("s_sub_u32 s63, s63, s49")
    def pair_ops(p, d):
        return [f"s_add_u32 s{d}, s63, {p % 4 if p >= NS else p}" if False else f"s_add_u32 s{d}, s63, {p}",
                (f"s_cmp_ge_u32 s{d}, s45", "s_cselect_b32 s62, s45, 0"), f"s_sub_u32 s{d}, s{d}, s62"]
    g.e("s_lshl_b32 s46, s40, 12")
    g.e("s_bfe_u32 s60, s2, 0x20005" if (ROT and not ztype) else "s_mov_b32 s60, 0")
    g.e("s_lshl_b32 s49, s60, 2")
    g.e("s_add_u32 s49, s49, s40")
    g.e("s_and_b32 s50, s49, 15")
    g.e(f"s_mul_i32 s56, s50, {32 * rowstride}")
    g.e("s_xor_b32 s50, s50, 8")
    g.e(f"s_mul_i32 s61, s50, {32 * rowstride}")
    g.e("s_and_b32 s57, s40, 3")
    g.e(f"s_mul_i32 s57, s57, {32 * rowstride}")
    g.e("s_lshr_b32 s49, s40, 2")
    g.e("s_lshl_b32 s49, s49, 7")
    g.e("s_add_u32 s57, s57, s49")
    if not ztype:
        g.e("s_lshl_b32 s49, s63, 7")
        g.e("s_add_u32 s57, s57, s49")
    g.e("s_add_u32 s57, s57, s44")
    NST = 2 * NP
    NQ = 4
    def fmap(s, f):
        cb = f & 3
        if s < NQ:
            p, ks = (f >> 4, (f >> 2) & 3) if s == 3 else ((f >> 2) & 1, f >> 3)
            return p, 4 * s + ks, cb, p * 4 + ks
        return s >> 1, (s & 1) * 8 + (f >> 2), cb, f >> 2
    XPOS = [3, 4, 3, 4, 3, 4, 4, 4]
    def xdma_ops(q):
        ops = []
        for i in range(4):
            def op(i=i):
                if i == 0:
                    g.e(f"s_add_u32 s43, s60, {q >> 1}")
                    g.e("s_and_b32 s43, s43, 3")
                    g.e("s_lshl_b32 s43, s43, 8")
                    if q & 1: g.e("s_add_u32 s43, s43, 128")
                g.e(f"s_add_u32 m0, s46, {XPOS[q] * 32768}")
                g.e("s_nop 0")
                g.vmem(f"buffer_load_dwordx4 v{VXA + i}, s[24:27], s43 offen offset:{i * 1024} lds", ("x", q))
            ops.append(op)
        return ops
    def xread(q):
        g.wait_vm(("x", q))
        for ks in range(2):
            for a in range(2):
                g.lds(f"DR {xreg(a, 2 * q + ks)},{VXR[(XPOS[q] >> 1) - 1] + ks},{(XPOS[q] & 1) * 32768 + a * 2048}", ("x", q))
    def wdma_ops(s, sr=51):
        if s >= NST: return []
        ops = []
        for j in range(4):
            def op(j=j):
                if j == 0:
                    if s < NQ:
                        g.e(f"s_add_u32 s{sr}, s60, {s}")
                        g.e(f"s_and_b32 s{sr}, s{sr}, 3")
                        g.e(f"s_mul_i32 s{sr}, s{sr}, {128 * rowstride}")
                        g.e(f"s_add_u32 s{sr}, s{sr}, s57")
                    else:
                        p, kh = s >> 1, s & 1
                        if T == "Z2" and p == 2: g.e(f"s_lshl_b32 s{sr}, s42, 7")
                        elif ztype:
                            g.e(f"s_add_u32 s{sr}, s44, {p * 128}")
                            g.e(f"s_min_u32 s{sr}, s{sr}, s45")
                        else:
                            for t in pair_ops(p, sr):
                                for u in ((t,) if isinstance(t, str) else t): g.e(u)
                            g.e(f"s_lshl_b32 s{sr}, s{sr}, 7")
                            g.e(f"s_add_u32 s{sr}, s{sr}, s44")
                        g.e(f"s_add_u32 s{sr}, s{sr}, s{61 if kh else 56}")
                g.e(f"s_add_u32 m0, s46, {(s % 4) * 32768}")
                g.e("s_nop 0")
                g.vmem(f"buffer_load_dwordx4 v{VW + j}, s[20:23], s{sr} offen offset:{j * 1024} {NTW} lds", ("w", s))
            ops.append(op)
        return ops
    def run(ops):
        for op in ops: op()
    def w0(fn):
        sk = g.newlabel("w0")
        g.e("s_cmp_lg_u32 s40, 0"); g.e(f"s_cbranch_scc1 {sk}")
        fn(); g.label(sk)
    def rb_line(dst, extra):
        g.e(f"s_add_u32 s{dst}, s41, 53")
        g.e(f"s_lshl_b32 s{dst}, s{dst}, 7")
        if extra: g.e(f"s_add_u32 s{dst}, s{dst}, {extra}")
    def rb_poll_addr(v, n, extra):
        rb_line(49, extra)
        g.e("s_and_b32 s50, s2, 7")
        g.e("s_lshl_b32 s50, s50, 13")
        g.e("s_add_u32 s49, s49, s50")
        g.e(f"v_min_u32 v{v}, {n - 1}, v0")
        g.e(f"v_lshl_add_u32 v{v}, v{v}, 2, s49")

    w_voffsets(g, rowstride, VW)
    if not ztype:
        run(wdma_ops(0, 47))
        g.e("v_bfe_u32 v28, v0, 3, 3")
        g.e("v_and_b32 v29, 7, v0")
        g.e("v_lshrrev_b32 v30, 1, v28")
        g.e("v_xor_b32 v29, v29, v30")
        g.e("s_lshl_b32 s49, s41, 8")
        g.e("s_lshl_b32 s50, s40, 5")
        g.e("s_add_u32 s49, s49, s50")
        g.e("v_add_u32 v28, s49, v28")
        g.e("v_lshlrev_b32 v28, 10, v28")
        g.e("v_xor_b32 v30, 4, v29")
        g.e("v_lshl_add_u32 v29, v29, 4, v28")
        g.e("v_lshl_add_u32 v30, v30, 4, v28")
        for i in range(4): g.e(f"v_add_u32 v{VXA + i}, {i * 8192 - i * 1024}, v{29 + (i & 1)}")
        run(xdma_ops(0))
        code_touch(g, 36, 14, f"L_k1_{T}_end")
        g.e("s_barrier")
        run(xdma_ops(1))
        run(wdma_ops(1, 47))
        g.e("v_and_b32 v28, 15, v0")
        g.e("v_bfe_u32 v29, v0, 4, 2")
        g.e("v_lshrrev_b32 v30, 1, v28")
        g.e("v_xor_b32 v29, v29, v30")
        g.e("v_lshlrev_b32 v29, 4, v29")
        g.e("v_lshl_add_u32 v29, v28, 7, v29")
        g.e("s_add_u32 s49, s46, 0x10000")
        g.e(f"v_add_u32 v{VXR[0]}, s49, v29")
        g.e(f"v_xor_b32 v{VXR[0] + 1}, 64, v{VXR[0]}")
        for ks in range(2): g.e(f"v_add_u32 v{VXR[1] + ks}, 0x10000, v{VXR[0] + ks}")
    else:
        code_touch(g, 36, 255, f"L_k1_{T}_end")
        srd(g, 24, 16, 17, WS_XNP + SZ_XN, 0)
        ZLT = len(g.lines)
        g.e("s_mov_b32 s53, 0xffff0000")
        g.e(f"s_mov_b32 s52, {f32(C1)}")
        g.e(f"v_mov_b32 v{VC2}, {f32(C2)}")
        g.e("s_lshr_b32 s55, s55, 5")
        g.e("s_lshl_b32 s55, s55, 15")
        g.e("s_add_u32 s55, s55, s46")
        g.e(f"s_add_u32 s62, s55, {WS_XNP}")
        g.e("s_lshr_b32 s49, s40, 2")
        g.e("s_lshl_b32 s49, s49, 14")
        g.e("s_and_b32 s50, s40, 3")
        g.e("s_lshl_b32 s50, s50, 6")
        g.e("s_add_u32 s49, s49, s50")
        g.e("s_add_u32 s49, s49, 0x20000")
        g.e("v_and_b32 v28, 3, v0")
        g.e("v_lshlrev_b32 v28, 4, v28")
        g.e("v_bfe_u32 v29, v0, 2, 2")
        g.e("v_lshl_add_u32 v28, v29, 8, v28")
        g.e("v_bfe_u32 v29, v0, 4, 2")
        g.e("v_lshl_add_u32 v28, v29, 10, v28")
        g.e("v_add_u32 v13, s49, v28")
        g.e("s_add_u32 s49, s46, 0x20000")
        g.e(f"v_add_u32 v16, s49, v{VST}")
        g.e("s_and_b32 s49, s46, 0x3fff")
        g.e("s_lshr_b32 s50, s40, 2")
        g.e("s_lshl_b32 s50, s50, 6")
        g.e("s_add_u32 s49, s49, s50")
        g.e("s_add_u32 s49, s49, 0x20000")
        g.e("v_bfe_u32 v17, v0, 3, 1")
        g.e("v_lshlrev_b32 v17, 14, v17")
        g.e("v_bfe_u32 v28, v0, 2, 1")
        g.e("v_lshl_add_u32 v17, v28, 7, v17")
        g.e("v_and_b32 v28, 0x33, v0")
        g.e("v_lshl_add_u32 v17, v28, 4, v17")
        g.e("v_add_u32 v17, s49, v17")
        rb_poll_addr(15, 8, 0)
        nol = g.newlabel("noln")
        g.e("s_cmp_ge_u32 s54, 8")
        g.e(f"s_cbranch_scc1 {nol}")
        g.e("v_mov_b32 v9, 0")
        g.e("v_mov_b32 v10, 0")
        g.wait_vm("ln")
        g.stamp(8)
        g.e("v_mov_b32 v14, 20")
        w0(lambda: dbg_load(g, 14, 14, 18))
        for i in range(16):
            g.e(f"v_lshlrev_b32 v{96 + 2 * i}, 16, v{64 + i}")
            g.e(f"v_and_b32 v{97 + 2 * i}, s53, v{64 + i}")
        for i in range(32):
            g.e(f"v_add_f32 v9, v9, v{96 + i}")
            g.e(f"v_fmac_f32 v10, v{96 + i}, v{96 + i}")
        for sh in (4, 8):
            g.e("s_nop 1")
            for r in (9, 10): g.e(f"v_add_f32_dpp v{r}, v{r}, v{r} row_ror:{sh} row_mask:0xf bank_mask:0xf")
        for sw in ("v_permlane32_swap_b32", "v_permlane16_swap_b32"):
            for i in range(2): g.e(f"v_mov_b32 v{11 + i}, v{9 + i}")
            g.e("s_nop 1")
            for i in range(2): g.e(f"{sw} v{11 + i}, v{9 + i}")
            g.e("s_nop 1")
            for i in range(2): g.e(f"v_add_f32 v{9 + i}, v{9 + i}, v{11 + i}")
        ln_params(g, [9], [10], 512)
        for i in range(4):
            for e in range(8): g.e(f"v_fma_f32 v{96 + 8 * i + e}, v{96 + 8 * i + e}, v10, -v9")
            for r in range(4): g.e(f"PK {64 + 4 * i + r},{96 + 8 * i + 2 * r},{97 + 8 * i + 2 * r}")
            g.e(f"DW 13,{64 + 4 * i},{i * 4096}")
        g.e("s_waitcnt lgkmcnt(0)")
        g.e("s_barrier")
        for i in range(8): g.e(f"DR {96 + 4 * i},{17 - (i >> 2)},{(i & 3) * 1024}")
        for i in range(8):
            g.e(f"s_waitcnt lgkmcnt({7 - i})")
            g.e(f"buffer_store_dwordx4 v[{96 + 4 * i}:{99 + 4 * i}], v{VST}, s[24:27], s{55 if i >> 2 else 62} offen offset:{(i & 3) * 1024} sc1")
        g.e("v_mov_b32 v11, 1")
        g.stamp(9)
        g.e("s_waitcnt vmcnt(0)")
        g.e("s_barrier")
        g.stamp(10)
        done = g.newlabel("sdone"); chk = g.newlabel("schk")
        g.e("s_cmp_lg_u32 s40, 0")
        g.e(f"s_cbranch_scc1 {done}")
        nonce_get(g, 14, 14, 2, True)
        rb_line(47, 0)
        g.e("s_lshl_b32 s49, s54, 2")
        g.e("s_add_u32 s47, s47, s49")
        flag_set(g, 10, 47, 59, 100)
        g.e(f"s_branch {chk}")
        g.label(nol)
        g.e("s_cmp_lg_u32 s40, 0")
        g.e(f"s_cbranch_scc1 {done}")
        g.e(f"s_sleep {SL0}")
        nonce_get(g, 14, 14, 2, False)
        g.label(chk)
        flag_wait(g, 11, 15, 59, 100, SL1, False)
        g.label(done)
        g.vm = []
        run(wdma_ops(0, 47))
        g.e("s_lshl_b32 s49, s41, 18")
        g.e("s_lshl_b32 s50, s40, 15")
        g.e("s_add_u32 s54, s49, s50")
        if T == "Z2": g.e(f"s_add_u32 s54, s54, {WS_XNP}")
        g.e("s_barrier")
        g.stamp(11)
        def xload(m):
            if m % 4 == 0:
                g.e(f"s_add_u32 s63, s54, {m * 1024}")
                g.e(f"s_add_u32 s55, s63, 16384")
            for a in range(2):
                x = xreg(a, m)
                g.vmem(f"buffer_load_dwordx4 v[{x}:{x + 3}], v{VST}, s[24:27], s{55 if a else 63} offen offset:{(m % 4) * 1024} sc1", ("x", m))
        for m in range(4): xload(m)
    def lin_touch():
        g.e("s_lshl_b32 s43, s2, 3")
        g.e("s_add_u32 s43, s43, s40")
        g.e(f"v_lshlrev_b32 v26, 3, v{VST}")
        g.e("v_bfe_u32 v27, v0, 4, 2")
        g.e("v_lshl_add_u32 v26, v27, 28, v26")
        g.e("s_lshl_b32 s49, s43, 11")
        srd(g, 36, 10, 11, 4 * MB)
        g.vmem("buffer_load_dword v254, v26, s[36:39], s49 offen", "t")
        srd(g, 36, 12, 13, 4 * MB)
        g.vmem("buffer_load_dword v254, v26, s[36:39], s49 offen", "t")
        srd(g, 36, 14, 15, 512 * 3584)
        g.vmem("buffer_load_dword v254, v26, s[36:39], s49 offen", "t")
    if LT == 1 and not ztype: lin_touch()
    if LT and ztype:
        n0 = len(g.lines); sv = list(g.vm)
        lin_touch()
        blk = g.lines[n0:]; del g.lines[n0:]; g.lines[ZLT:ZLT] = blk; g.vm = sv
        k = g.lines.index(f"s_waitcnt vmcnt({CPF})", ZLT); g.lines[k] = f"s_waitcnt vmcnt({CPF + 3})"
    off, sz = {"K": (WS_K, SZ_KV), "V": (WS_V, SZ_KV), "Z1": (WS_Z1, SZ_Z), "Z2": (WS_Z2, SZ_Z)}[T]
    srd(g, 28, 16, 17, sz, off)
    tr_bases(g, VTE, VTO)
    if T == "Z2":
        for i in range(16): g.e(f"v_mov_b32 v{STAT + i}, 0")

    def outbase(I, p):
        if T == "Z2" and p == 2: I("s_mov_b32 s48, s42")
        elif ztype: I(f"s_add_u32 s48, s58, {p}")
        else:
            I("\n".join(u for t in pair_ops(p, 48) for u in ((t,) if isinstance(t, str) else t)))
            I("s_add_u32 s48, s48, s58")
        if T in ("K", "V"):
            I("s_lshr_b32 s49, s48, 1")
            I("s_lshl_b32 s49, s49, 19")
            I("s_and_b32 s48, s48, 1")
            I(f"s_lshl_b32 s48, s48, {11 if T == 'K' else 12}")
            I("s_add_u32 s48, s48, s49")
            I("s_lshl_b32 s49, s41, 16")
            I("s_add_u32 s48, s48, s49")
            I("s_lshl_b32 s49, s40, 13")
            I("s_add_u32 s48, s48, s49")
            I("s_add_u32 s50, s48, 4096")
        else:
            I(f"s_lshl_b32 s48, s48, {11 if ktp(p) else 12}")
            I("s_lshl_b32 s49, s41, 3")
            I("s_add_u32 s49, s49, s40")
            I("s_mul_i32 s49, s49, 57344")
            I("s_add_u32 s48, s48, s49")
            I("s_add_u32 s50, s48, 28672")

    ZPARK = 131072
    def epilogue(p, last=False):
        st = p & 1
        ops = []
        def I(s): ops.append(lambda s=s: g.e(s))
        hold = T == "Z2" and p < 2
        if not hold: outbase(I, p)
        frags = []
        if ktp(p):
            for a in range(2):
                for mm in range(2):
                    frags.append((areg(st, 2 * mm, a), areg(st, 2 * mm + 1, a), a, mm * 1024))
        else:
            for cb in range(4):
                frags.append((areg(st, cb, 0), areg(st, cb, 1), 0, cb * 1024))
        for (x, y, a, io) in frags:
            if ztype:
                stats = None
                if hold:
                    stats = {}
                    for r in range(4):
                        stats[x + r] = (STAT + 2 * r, STAT + 2 * r + 1)
                        stats[y + r] = (STAT + 8 + 2 * r, STAT + 8 + 2 * r + 1)
                for s in gelu_ops([x, x + 1, x + 2, x + 3, y, y + 1, y + 2, y + 3], TMP, VC2, 52, stats): I(s)
            d = x
            if p == 0 and not ztype: d = 16 + 4 * frags.index((x, y, a, io))
            I(f"PK {d},{x},{x + 1}"); I(f"PK {d + 1},{x + 2},{x + 3}")
            I(f"PK {d + 2},{y},{y + 1}"); I(f"PK {d + 3},{y + 2},{y + 3}")
            x = d
            if hold:
                if p == 0: ops.append(lambda x=x, io=io: g.lds(f"DW 13,{x},{io}", "park"))
            elif T == "Z2":
                ops.append(lambda x=x, a=a, io=io: g.vmem(
                    f"buffer_store_dwordx4 v[{x}:{x + 3}], v14, s[24:27], s48 offen offset:{io + 64 * a} {SC}", "st"))
            else:
                ops.append(lambda x=x, a=a, io=io: g.vmem(
                    f"buffer_store_dwordx4 v[{x}:{x + 3}], v{VST}, s[28:31], s{50 if a else 48} offen offset:{io} {STF}", "st"))
        return ops
    if T == "Z2":
        g.e(f"s_add_u32 s49, s46, {ZPARK}")
        g.e(f"v_add_u32 v13, s49, v{VST}")

    def publish_ops():
        ops = []
        def I(s): ops.append(lambda s=s: g.e(s))
        for sh in (8, 4, 2, 1):
            for i in range(16):
                I(f"v_add_f32_dpp v{STAT + i}, v{STAT + i}, v{STAT + i} row_ror:{sh} row_mask:0xf bank_mask:0xf")
        ops.append(lambda: srd(g, 36, 16, 17, GZ * 16384, WS_ST))
        I("v_bfe_u32 v9, v0, 4, 2")
        I("v_lshlrev_b32 v9, 6, v9")
        I("v_and_b32 v10, 15, v0")
        I("v_lshl_add_u32 v10, v10, 24, v9")
        I("s_lshl_b32 s63, s41, 11")
        I("s_lshl_b32 s49, s40, 8")
        I("s_add_u32 s63, s63, s49")
        I("s_lshl_b32 s49, s42, 14")
        I("s_add_u32 s49, s49, s63")
        for i in range(4):
            ops.append(lambda i=i: g.vmem(f"buffer_store_dwordx4 v[{STAT + 4 * i}:{STAT + 4 * i + 3}], v10, s[36:39], s49 offen offset:{16 * i} sc1", "pub"))
        return ops
    def arrive():
        g.wait_vm("pub")
        g.e("s_barrier")
        def f():
            rb_line(47, 32)
            g.e("s_lshl_b32 s49, s42, 2")
            g.e("s_add_u32 s47, s47, s49")
            flag_set(g, 10, 47, 59, 100)
            rb_poll_addr(15, GZ, 32)
            g.e("v_mov_b32 v14, 0")
        w0(f)
    PB = 16
    def collect():
        w0(lambda: flag_wait(g, 14, 15, 59, 100, SL1, True))
        g.e("s_barrier")
        g.stamp(14)
        g.e("v_and_b32 v9, 31, v0")
        g.e("v_lshlrev_b32 v9, 3, v9")
        for q in range(GZ):
            g.e(f"s_add_u32 s49, s63, {q * 16384}")
            g.vmem(f"buffer_load_dwordx2 v[{PB + 2 * q}:{PB + 2 * q + 1}], v9, s[36:39], s49 offen sc1", "col")

    def pf_next(short):
        if not PF3 or T == "Z2" or (T in ("K", "V") and not short): return
        g.e("s_load_dwordx2 s[32:33], s[0:1], 40")
        g.e("s_load_dwordx2 s[36:37], s[0:1], 80")
        g.e("s_lshl_b32 s43, s41, 3")
        g.e("s_add_u32 s43, s43, s40")
        g.e(f"v_lshlrev_b32 v13, 3, v{VST}")
        g.e("s_waitcnt lgkmcnt(0)")
        g.e(f"s_mov_b32 s34, {4 * MB}")
        g.e("s_mov_b32 s35, 0x20000")
        g.e(f"s_mov_b32 s38, {896 * 1024}")
        g.e("s_mov_b32 s39, 0x20000")
        if T == "Z1":
            g.e("s_lshl_b32 s47, s42, 6")
            g.e("s_add_u32 s43, s43, s47")
            g.e("s_lshl_b32 s43, s43, 13")
            if short:
                g.e(f"s_sub_u32 s47, s43, {64 * 8192}")
                g.e("buffer_load_dword v14, v13, s[36:39], s47 offen")
                g.e(f"s_add_u32 s47, s47, {3 * MB}")
                g.e("buffer_load_dword v14, v13, s[32:35], s47 offen")
        else:
            g.e(f"s_mul_i32 s43, s43, {3 * 8192}")
            if T == "V": g.e(f"s_add_u32 s43, s43, {64 * 3 * 8192}")
            for i in range(3):
                g.e(f"buffer_load_dword v14, v13, s[32:35], s43 offen")
                g.e("s_add_u32 s43, s43, 8192")

    def xn_snap():
        def f():
            if not ztype: nonce_get(g, 13, 13, 2, True)
            g.e("s_and_b32 s43, s2, 7")
            g.e("s_lshl_b32 s43, s43, 13")
            g.e(f"s_add_u32 s43, s43, {53 * 128}")
            g.e("v_lshrrev_b32 v13, 3, v0")
            g.e("v_lshlrev_b32 v13, 7, v13")
            g.e("v_and_b32 v15, 7, v0")
            g.e("v_lshl_add_u32 v13, v15, 2, v13")
            g.e("v_add_u32 v15, s43, v13")
            flag_load(g, 13, 15, 100)
        w0(f)
    def final(p, short=False):
        g.stamp(12)
        g.e("s_nop 7")
        if T != "Z2":
            for op in epilogue(p): op()
        else:
            for i in range(4): g.e(f"DR {XR + 4 * i},13,{i * 1024}")
            VA, P2 = 144, 160
            g.e(f"s_add_u32 s49, s46, {ZPARK}")
            g.e("v_add_u32 v9, s49, v9")
            g.e(f"v_bfe_u32 v{VA}, v0, 4, 2")
            g.e(f"v_lshl_add_u32 v{VA}, v{VA}, 6, s49")
            g.e("s_waitcnt vmcnt(0) lgkmcnt(0)")
            for q in range(1, GZ):
                for i in range(2): g.e(f"v_add_f32 v{PB + i}, v{PB + i}, v{PB + 2 * q + i}")
            ln_params(g, [PB], [PB + 1], 896)
            g.e(f"ds_write_b64 v9, v[{PB}:{PB + 1}]")
            g.e("s_waitcnt lgkmcnt(0)")
            for i in range(4): g.e(f"DR {P2 + 4 * i},{VA},{16 * i}")
            xn_snap()
            g.e("s_waitcnt lgkmcnt(0)")
            MEAN = [P2 + 2 * e for e in range(8)]; VAR = [P2 + 2 * e + 1 for e in range(8)]
            for pp in range(2):
                outbase(g.e, pp)
                for cb in range(4):
                    x = XR + 4 * cb if pp == 0 else areg(pp & 1, cb, 0)
                    t = 16 + (cb & 1) * 8
                    for r in range(4): g.e(f"v_lshlrev_b32 v{t + 2 * r}, 16, v{x + r}")
                    for r in range(4): g.e(f"v_and_b32 v{t + 2 * r + 1}, s53, v{x + r}")
                    for e in range(8): g.e(f"v_fma_f32 v{t + e}, v{t + e}, v{VAR[e]}, -v{MEAN[e]}")
                    for r in range(4): g.e(f"PK {x + r},{t + 2 * r},{t + 2 * r + 1}")
                    g.e(f"buffer_store_dwordx4 v[{x}:{x + 3}], v{VST}, s[28:31], s48 offen offset:{cb * 1024} {STF}")
            ep = epilogue(p)
            nb = len(ep) - 4 * 61
            quart = [ep[nb + 61 * i:nb + 61 * i + 60] for i in range(4)]
            zst = [ep[nb + 61 * i + 60] for i in range(4)]
            run(quart[0]); run(quart[1])
            g.e("s_waitcnt vmcnt(0)")
            g.e("s_barrier")
            def z2flag():
                g.e("s_add_u32 s47, s42, 14")
                g.e("s_lshl_b32 s47, s47, 7")
                g.e("s_lshl_b32 s49, s41, 2")
                g.e("s_add_u32 s47, s47, s49")
                g.e("s_add_u32 s47, s47, 32")
                flag_set(g, 16, 47, 59, 100)
            w0(z2flag)
            g.stamp(10)
            srd(g, 24, 16, 17, SZ_Z, WS_Z1)
            g.e("v_bfe_u32 v14, v0, 3, 1")
            g.e("v_mul_u32_u24 v14, 28672, v14")
            g.e("v_bfe_u32 v18, v0, 2, 1")
            g.e("v_lshl_add_u32 v14, v18, 7, v14")
            g.e("v_and_b32 v18, 0x33, v0")
            g.e("v_lshl_add_u32 v14, v18, 4, v14")
            run(ep[:nb]); run(zst[:2]); run(quart[2]); run(zst[2:3]); run(quart[3]); run(zst[3:])
        g.stamp(13)
        g.stamp_dump(16, 17, 40, 0)
        if MERGE:
            g.e(f"s_add_u32 s58, s42, { {'K': 0, 'V': 0, 'Z1': 11, 'Z2': 14}[T] }")
            g.e("s_lshl_b32 s58, s58, 7")
            g.e("s_lshl_b32 s49, s41, 2")
            g.e("s_add_u32 s58, s58, s49")
            if T == "V": g.e("s_add_u32 s58, s58, 32")
            g.e("s_branch L_p2")
        else: g.e("s_endpgm")

    pend = []
    def wread(F, half=None):
        s, f = F >> 5, F & 31
        if s >= NST: return
        if f == 0 and half != 1:
            assert not pend
            g.wait_vm(("w", s))
            g.e("s_barrier")
            if s >= 2 and s % 2 == 0:
                g.e(f"v_xor_b32 v{VTE}, 0x10000, v{VTE}")
                g.e(f"v_xor_b32 v{VTO}, 0x10000, v{VTO}")
            if s >= 2: pend.extend(wdma_ops(s + 2))
        if pend and f >= 1 and half != 0: pend.pop(0)()
        p, m, cb, mp = fmap(s, f)
        r = WR + (F % 8) * 4
        for a in (range(2) if half is None else [half]):
            o = (s & 1) * 32768 + mp * 4096 + a * 512 + (cb >> 1) * 256
            g.lds(f"TR {r + 2 * a},{VTO if cb & 1 else VTE},{o}", ("w", F))

    g.stamp(1)
    ev = {}
    def at(F, fn): ev.setdefault(F, []).append(fn)
    def spread(F0, ops, after=None):
        if after is not None: at(F0, lambda: g.wait_ds(("x", after)))
        for i, op in enumerate(ops): at(F0 + i, op)
    if not ztype:
        xread(0)
        at(0, lambda: g.wait_ds(("x", 0)))
        spread(0, xdma_ops(2)); spread(4, wdma_ops(2, 47))
        at(10, lambda: xread(1)); spread(14, xdma_ops(3), 1)
        at(22, lambda: xread(2)); spread(26, xdma_ops(4), 2)
        at(34, lambda: xread(3)); spread(38, xdma_ops(5), 3)
        at(44, lambda: xread(4)); spread(48, wdma_ops(3, 47), 4)
        at(56, lambda: xread(5)); spread(64, xdma_ops(6), 5)
        at(80, lambda: xread(6)); spread(84, xdma_ops(7), 6)
        at(99, lambda: xread(7)); at(103, lambda: g.wait_ds(("x", 7)))
    else:
        for m in range(16): at(8 * m if m < 12 else 96 + 4 * (m - 12), lambda m=m: g.wait_vm(("x", m)))
        for m, F in zip(range(4, 16), (4, 8, 12, 16, 28, 34, 40, 46, 56, 64, 70, 74)): at(("post", F), lambda m=m: xload(m))
        for F0, s in ((0, 1), (22, 2), (50, 3)):
            for i, op in enumerate(wdma_ops(s, 47)): at(("post", F0 + i), op)
    if LT > 1 and not ztype: at(LT, lin_touch)
    if PF:
        def prefetch():
            sr = 36 if T == "Z2" else 32
            srd(g, sr, 8, 9, 4 * MB)
            g.e("s_and_b32 s43, s2, 0xf8")
            g.e("s_add_u32 s43, s43, s40")
            g.e("s_lshl_b32 s43, s43, 14")
            g.e("s_and_b32 s47, s2, 7")
            g.e("s_lshl_b32 s47, s47, 8")
            g.e("s_add_u32 s47, s47, s43")
            g.e("v_and_b32 v14, 1, v0")
            g.e("v_lshlrev_b32 v14, 7, v14")
            g.e("v_bfe_u32 v15, v0, 1, 3")
            g.e("v_lshl_add_u32 v14, v15, 11, v14")
            g.e("v_bfe_u32 v15, v0, 4, 2")
            g.e("v_lshl_add_u32 v15, v15, 28, v14")
            g.vmem(f"buffer_load_dword v14, v15, s[{sr}:{sr + 3}], s47 offen", "t")
            if T in ("K", "V"):
                sk = g.newlabel("nocode")
                g.e("s_cmp_lt_u32 s2, 8")
                g.e(f"s_cbranch_scc0 {sk}")
                code_touch(g, 36, 14, "L_all_end", "L_p2", False)
                g.label(sk)
            if PF3 == 1 and T != "Z2":
                sk = g.newlabel("nopf3")
                g.e(f"s_cmp_lt_u32 s42, {SHORT0}")
                g.e(f"s_cbranch_scc1 {sk}")
                pf_next(True)
                g.label(sk)
        at(PF if not ztype else min(PF, 110), prefetch)
    if not ztype: at(150, lambda: (g.e("v_mov_b32 v13, 20"), w0(lambda: dbg_load(g, 13, 13, 18))))
    if T != "Z2": at((2 * NS - 1) * 32 - 12, xn_snap)
    def place(ops, F0, n):
        for i, op in enumerate(ops): at(("post", F0 + i * n // len(ops)), op)
    for p in range(NP - 1):
        ops = epilogue(p)
        F0 = (2 * p + 2) * 32 + 3
        if not ztype:
            h = len(ops) - 20
            fr = [ops[h + 5 * i:h + 5 * i + 5] for i in range(4)]
            if p == 0:
                place(ops[:h] + [o for f4 in fr for o in f4[:4]], 3 * 32 + 20, 11)
                for f4, F in zip(fr, (127, 138, 149, 160)): at(("post", F), f4[4])
            else:
                pos = (166, 174, 182, 189) if p == 1 else [F0 + 5 + 16 * i for i in range(4)]
                place(ops[:h], pos[0] - 4, 3)
                for f4, F in zip(fr, pos): place(f4, F - 1, 2)
        elif p == 0: place(ops, 3 * 32 + 20, 11)
        elif T == "Z2" and p == 1:
            place(ops + [lambda: g.e("s_nop 1")] + publish_ops(), F0, ZPUB)
            at(("post", F0 + ZPUB + ZA), arrive)
            at(("post", F0 + ZPUB + ZA + ZP), lambda: w0(lambda: flag_load(g, 14, 15, 100)))
            at(("post", min(191, F0 + ZPUB + ZA + ZP + ZC)), collect)
        else: place(ops, F0, 60)
    for F in range(D): wread(F)
    for s in range(NST):
        if s < 9 and PROF != 6: g.stamp(2 + s)
        if s == 2 * NS and NS < NP:
            cont = g.newlabel("cont")
            g.e(f"s_cmp_lt_u32 s42, {SHORT0}")
            g.e(f"s_cbranch_scc1 {cont}")
            sv = (list(g.vm), list(g.ds))
            final(NS - 1, True)
            g.vm, g.ds = sv
            g.label(cont)
        for f in range(32):
            F = s * 32 + f
            p, m, cb, mp = fmap(s, f)
            if PROF == 6 and F in PFL: g.stamp(2 + PFL.index(F))
            for fn in ev.pop(F, []): fn()
            g.wait_ds(("w", F))
            r = WR + (F % 8) * 4
            post = ev.pop(("post", F), [])
            for a in range(2):
                op = "MZ" if m == 0 else "M"
                if ktp(p): g.e(f"{op} {areg(p & 1, cb, a)},{r},{xreg(a, m)}")
                else: g.e(f"{op} {areg(p & 1, cb, a)},{xreg(a, m)},{r}")
                wread(F + D, a)
                n = len(post) // 2 if a == 0 else len(post)
                for _ in range(n): post.pop(0)()
    assert not ev, ev.keys()
    final(NP - 1)
    g.label(f"L_k1_{T}_end")

def gen_k1(g):
    g.e(".p2align 8")
    g.e(f".type {KNAME},@function")
    g.label(KNAME)
    g.e("s_cmp_ge_u32 s2, 256")
    g.e("s_cbranch_scc1 L_k1_end")
    g.stamp(0)
    if PROF: g.e("s_memrealtime s[94:95]")
    g.e("s_load_dwordx4 s[4:7], s[0:1], 0")
    g.e("s_load_dwordx4 s[8:11], s[0:1], 16")
    g.e("s_load_dwordx2 s[12:13], s[0:1], 32")
    g.e("s_load_dwordx2 s[14:15], s[0:1], 56")
    g.e("s_load_dwordx2 s[18:19], s[0:1], 96")
    g.e("s_load_dwordx2 s[16:17], s[0:1], 104")
    g.e("v_lshrrev_b32 v1, 6, v0")
    g.e("s_lshr_b32 s49, s2, 3")
    g.e("s_and_b32 s41, s2, 1")
    g.e("v_readfirstlane_b32 s40, v1")
    g.e("s_lshl_b32 s41, s41, 2")
    g.e("s_and_b32 s50, s49, 3")
    g.e("s_add_u32 s41, s41, s50")
    g.e("s_and_b32 s3, s2, 6")
    g.e("s_lshl_b32 s3, s3, 2")
    g.e("s_lshr_b32 s49, s49, 2")
    g.e("s_add_u32 s3, s3, s49")
    if MIX:
        cst = [sum(v << (8 * i) for i, v in enumerate(row)) for row in GMAP]
        g.e("s_bitcmp1_b32 s2, 1")
        g.e(f"s_cselect_b32 s44, {cst[1] & 0xffffffff}, {cst[0] & 0xffffffff}") if False else None
        for k, (lo, hi) in enumerate(((44, 45), (46, 47))):
            g.e(f"s_mov_b32 s{lo}, {cst[2 * k] & 0xffffffff}")
            g.e(f"s_mov_b32 s{hi}, {cst[2 * k] >> 32}")
            g.e(f"s_cmov_b32 s{lo}, {cst[2 * k + 1] & 0xffffffff}")
            g.e(f"s_cmov_b32 s{hi}, {cst[2 * k + 1] >> 32}")
        g.e("s_bitcmp1_b32 s2, 2")
        g.e("s_cselect_b64 s[44:45], s[46:47], s[44:45]")
        g.e("s_lshl_b32 s49, s49, 3")
        g.e("s_lshr_b64 s[44:45], s[44:45], s49")
        g.e("s_and_b32 s3, s44, 31")
    g.e("s_waitcnt lgkmcnt(0)")
    g.e(f"s_add_u32 s100, s16, {WS_FL}")
    g.e("s_addc_u32 s101, s17, 0")
    if MERGE:
        sk = g.newlabel("nonce")
        g.e("s_or_b32 s49, s2, s40")
        g.e(f"s_cbranch_scc1 {sk}")
        g.e("s_memrealtime s[50:51]")
        g.e("v_mov_b32 v2, 20")
        g.e("s_waitcnt lgkmcnt(0)")
        g.e("s_or_b32 s49, s50, 1")
        g.e("v_mov_b32 v3, s49")
        g.e("s_mov_b64 exec, 1")
        g.e("global_store_dword v2, v3, s[18:19] sc1")
        g.e("s_mov_b64 exec, -1")
        g.label(sk)
    g.e(f"s_cmp_lt_u32 s3, {GKV}")
    g.e("s_cbranch_scc1 L_k1_K")
    g.e(f"s_cmp_lt_u32 s3, {2 * GKV}")
    g.e("s_cbranch_scc1 L_k1_V")
    g.e(f"s_cmp_lt_u32 s3, {2 * GKV + 3}")
    g.e("s_cbranch_scc1 L_k1_Z1")
    g.e("s_branch L_k1_Z2")
    g.label("L_k1_end")
    g.e("s_endpgm")
    for T in ("K", "V", "Z1", "Z2"):
        gen_type(g, T)
```

```python
from asmlib import *
import k1
from k1 import w_voffsets, tr_bases, xreg, areg, WR, D
import math

QSCALE = 128 ** -0.5 * math.log2(math.e)
STASH = 131072
DSP = int(os.environ.get('DSP', '3')); EB = int(os.environ.get('EB', '14'))
XPRE = int(os.environ.get('XPRE', '4'))
PS = int(os.environ.get('PS', '0'))
NTSP = os.environ.get('NTSP', '')
PF2 = int(os.environ.get('PF2', '0'))
KINS = int(os.environ.get('KINS', '0'))
NTAIL = int(os.environ.get('NTAIL', '0'))
STF2 = os.environ.get('STF2', 'sc1')
PFS = int(os.environ.get('PFS', '54'))
STFX = os.environ.get('STFX', 'sc1'); STFU = os.environ.get('STFU', 'sc1' if MERGE == 2 else '')
XSCH = eval(os.environ.get('XSCH', '(4, 8, 12, 16, 28, 34, 40, 46, 56, 62, 68, 74)'))
PF4 = int(os.environ.get('PF4', '0'))
SLA = int(os.environ.get('SLA', '8')); SLS = int(os.environ.get('SLS', '10'))
SPT = int(os.environ.get('SPT', '0'))
NTWQ = os.environ.get('NTWQ', '')
NPART = 3
VF, VNEG, VL, VT, V16, VLT = 1, 3, 4, 6, 7, 8
NEGM, PR, TMP, OR, FR = 16, 24, 40, 128, 192
ML, FA, FB = 52, 56, 58
def sreg(kt, qb): return 72 + 16 * kt + 4 * qb
def preg(qb, kg): return PR + (qb * 2 + kg) * 4
def qreg(qb, mm): return 64 + 16 * mm + 4 * qb
def oreg(cb, qb): return OR + (cb * 2 + qb) * 4
def freg(j): return FR + j * 4

def merge_streams(main, fill, start=0):
    out = []
    n = len(main) - start
    acc = 0.0
    fill = list(fill)
    per = len(fill) / max(1, n)
    for i, m in enumerate(main):
        out.append(m)
        if i >= start:
            acc += per
            while fill and acc >= 0.999:
                out.append(fill.pop(0)); acc -= 1.0
    return out + fill

def dma4(g, so, first_m0=None, tag=None):
    ops = []
    for j in range(4):
        def op(j=j):
            if j == 0 and first_m0:
                g.e(first_m0); g.e("s_nop 0")
            g.vmem(f"buffer_load_dwordx4 v{V16}, s[28:31], s{so} offen offset:{j * 1024} {SC} lds", tag)
        ops.append(op)
    return ops

def next_ops(t):
    return [[f"s_and_b32 s19, s{t}, 3"], ["s_lshl_b32 s19, s19, 15"],
            ["s_xor_b32 s50, s19, 0x10000"], ["s_add_u32 s50, s50, s55"],
            [f"s_add_u32 s49, s{t}, 2"], ["s_lshl_b32 s51, s49, 14"], ["s_add_u32 s51, s51, s54"],
            ["s_cmp_lt_u32 s49, s48", "s_cselect_b32 s51, s51, s54"],
            [f"s_cmp_lt_u32 s{t}, s45", "s_cselect_b32 s49, s41, 0"],
            ["s_lshl_b32 s7, s49, 14"], ["s_add_u32 m0, s50, s7"], ["s_lshl_b32 s49, s49, 24"],
            ["s_add_u32 s7, s51, s49"], [f"s_add_u32 s51, s51, {16 * MB}"]]

def softmax_ops(g):
    ops = []
    I = lambda s: ops.append(lambda s=s: g.e(s))
    T = [TMP + i for i in range(8)]
    k = 0
    for kt in range(4):
        for qb in range(2):
            s = sreg(kt, qb); t = T[(k % 2) * 4:(k % 2) * 4 + 4]; k += 1
            for r in range(4): I(f"v_exp_f32 v{t[r]}, v{s + r}")
            p = preg(qb, kt >> 1) + (kt & 1) * 2
            if kt == 0:
                I(f"v_add_f32 v{VLT + qb}, v{t[0]}, v{t[1]}")
                I(f"PK {p},{t[0]},{t[1]}")
                I(f"v_add_f32 v{VLT + qb}, v{VLT + qb}, v{t[2]}")
                I(f"PK {p + 1},{t[2]},{t[3]}")
                I(f"v_add_f32 v{VLT + qb}, v{VLT + qb}, v{t[3]}")
            else:
                I(f"v_add_f32 v{VLT + qb}, v{VLT + qb}, v{t[0]}")
                I(f"v_add_f32 v{VLT + qb}, v{VLT + qb}, v{t[1]}")
                I(f"PK {p},{t[0]},{t[1]}")
                I(f"v_add_f32 v{VLT + qb}, v{VLT + qb}, v{t[2]}")
                I(f"v_add_f32 v{VLT + qb}, v{VLT + qb}, v{t[3]}")
                I(f"PK {p + 1},{t[2]},{t[3]}")
    return ops

def xgroup(g, regs, op, tmp):
    for sw in ("v_permlane32_swap_b32", "v_permlane16_swap_b32"):
        for i, r in enumerate(regs): g.e(f"v_mov_b32 v{tmp + i}, v{r}")
        g.e("s_nop 1")
        for i, r in enumerate(regs): g.e(f"{sw} v{tmp + i}, v{r}")
        g.e("s_nop 1")
        for i, r in enumerate(regs): g.e(f"{op} v{r}, v{r}, v{tmp + i}")

def rescale(g, first):
    MX = [TMP + 8, TMP + 9]
    for qb in range(2):
        vals = [sreg(kt, qb) + r for kt in range(4) for r in range(4)]
        g.e(f"v_max3_f32 v{MX[qb]}, v{vals[0]}, v{vals[1]}, v{vals[2]}")
        for i in range(3, 15, 2): g.e(f"v_max3_f32 v{MX[qb]}, v{MX[qb]}, v{vals[i]}, v{vals[i + 1]}")
        g.e(f"v_max_f32 v{MX[qb]}, v{MX[qb]}, v{vals[15]}")
    xgroup(g, MX, "v_max_f32", TMP + 10)
    if not first:
        for qb in range(2): g.e(f"v_max_f32 v{MX[qb]}, 0, v{MX[qb]}")
    for kt in range(4):
        for qb in range(2):
            for r in range(4): g.e(f"v_sub_f32 v{sreg(kt, qb) + r}, v{sreg(kt, qb) + r}, v{MX[qb]}")
    for qb in range(2):
        for r in range(4): g.e(f"v_sub_f32 v{NEGM + qb * 4 + r}, v{NEGM + qb * 4 + r}, v{MX[qb]}")
    if not first:
        for qb in range(2): g.e(f"v_exp_f32 v{MX[qb]}, -v{MX[qb]}")
        g.e("s_nop 0")
        for cb in range(8):
            for qb in range(2):
                for r in range(4): g.e(f"v_mul_f32 v{oreg(cb, qb) + r}, v{oreg(cb, qb) + r}, v{MX[qb]}")
        for qb in range(2): g.e(f"v_mul_f32 v{VL + qb}, v{VL + qb}, v{MX[qb]}")

def mask_block(g):
    skip = g.newlabel("nomask"); l1 = g.newlabel("m1"); lf = g.newlabel("mf"); do = g.newlabel("domask")
    g.e("s_add_u32 s49, s52, 2")
    g.e("s_cmp_ge_u32 s49, s48")
    g.e(f"s_cbranch_scc1 {do}")
    g.e("s_sub_u32 s49, s52, s46")
    g.e("s_cmp_lt_u32 s49, 2")
    g.e(f"s_cbranch_scc0 {skip}")
    g.label(do)
    g.e("s_and_b32 s49, s52, 1")
    g.e("s_lshl_b32 s49, s49, 1")
    g.e("s_sub_u32 s49, s42, s49")
    def diag(kt, qb):
        for r in range(4): g.e(f"v_cndmask_b32 v{sreg(kt, qb) + r}, v{VNEG}, v{sreg(kt, qb) + r}, s[{8 + 2 * r}:{9 + 2 * r}]")
    def full(kt, qb):
        for r in range(4): g.e(f"v_mov_b32 v{sreg(kt, qb) + r}, v{VNEG}")
    g.e("s_cmp_ge_i32 s49, 2")
    g.e(f"s_cbranch_scc1 {skip}")
    g.e("s_cmp_eq_i32 s49, 1")
    g.e(f"s_cbranch_scc1 {l1}")
    g.e("s_cmp_lt_i32 s49, 0")
    g.e(f"s_cbranch_scc1 {lf}")
    diag(0, 0); full(1, 0); diag(1, 1); full(2, 0); full(2, 1); full(3, 0); full(3, 1)
    g.e(f"s_branch {skip}")
    g.label(l1)
    diag(2, 0); full(3, 0); diag(3, 1)
    g.e(f"s_branch {skip}")
    g.label(lf)
    for kt in range(4):
        for qb in range(2): full(kt, qb)
    g.label(skip)

def m_phase(g, has_pv, zero, split, post=None, pre=None):
    g.vm = []
    if has_pv: g.e("s_barrier")
    dma = dma4(g, 7) + (dma4(g, 51, "s_add_u32 m0, s50, 16384") if split else [])
    sal = [["s_add_u32 s49, s52, 2"], ["s_cmp_ge_u32 s49, s48", "s_cselect_b32 s4, 0, 4"], ["s_sub_u32 s49, s52, s46"], ["s_min_u32 s4, s4, s49"],
           ["s_cmp_lt_u32 s52, s53", "s_cselect_b32 s47, 1, 2"], ["s_add_u32 s47, s47, s52"]]
    sal2 = next_ops(47)
    if has_pv:
        g.ds = []
        sp = DSP if split else 4
        for j in range(16):
            kg, cb = j >> 3, j & 7
            for qb in range(2):
                g.e(f"{'MZ' if zero and kg == 0 else 'M'} {oreg(cb, qb)},{freg(j)},{preg(qb, kg)}")
                if qb == 0 and j >= 1: g.lds(f"DR {freg(j - 1)},{VF},{(j - 1) * 1024}", ("k", j - 1))
            if dma and j % sp == 0: dma.pop(0)()
            elif sal:
                for t in sal.pop(0): g.e(t)
        g.lds(f"DR {freg(15)},{VF},{15 * 1024}", ("k", 15))
    else:
        sp = 2
    PT = int(os.environ.get('PT', '5'))
    if has_pv and not zero: g.stamp_if(7, 52, PT)
    tail = []
    so = softmax_ops(g)[:NTAIL]
    for b in range(0, NTAIL, 9):
        o = so[b:b + 9]
        tail += [[o[0]], [o[1]], [o[2]], [o[3]], o[4:6], o[6:8], o[8:9]]
    for j in range(16):
        kt, mm = j >> 2, j & 3
        if j == EB:
            if pre: pre()
            g.wait_ds(("k", 15))
            if has_pv and not zero: g.stamp_if(8, 52, PT)
            if has_pv: g.e(f"s_waitcnt vmcnt({8 if split else 4})")
            g.e("s_setprio 2")
            g.e("s_barrier")
        if j == 0: g.wait_ds(("k", 10))
        if j == 5: g.wait_ds(("k", 15))
        for qb in range(2):
            if mm == 0: g.e(f"MC {sreg(kt, qb)},{freg(j)},{qreg(qb, mm)},{NEGM + qb * 4}")
            else: g.e(f"M {sreg(kt, qb)},{freg(j)},{qreg(qb, mm)}")
            if qb == 0 and j >= 1: g.lds(f"DR {freg(j - 1)},{VF},{16384 + (j - 1) * 1024}", "v")
            if j >= EB and tail:
                for op in tail.pop(0): op()
            if not has_pv and j >= EB and dma: dma.pop(0)()
            elif has_pv and qb == 1 and dma and (j + 16) % sp == 0: dma.pop(0)()
            elif qb == 1 and sal:
                for t in sal.pop(0): g.e(t)
            elif not sal and not dma and sal2:
                for t in sal2.pop(0): g.e(t)
    while dma: dma.pop(0)()
    assert not sal
    if post: post()
    for grp in sal2:
        for t in grp: g.e(t)
    g.lds(f"DR {freg(15)},{VF},{16384 + 15 * 1024}", "v")
    g.e("s_setprio 0")
    for w in tail:
        for op in w: op()
    g.vm = []; g.ds = []
    if has_pv:
        g.e("s_cmp_lt_u32 s4, 4")
        g.e("s_cbranch_scc1 L_k2_sgen")
    else:
        g.e("s_branch L_k2_sgen")

def advance(g):
    g.e("s_mov_b32 s52, s47")
    g.e(f"v_add_u32 v{VF}, s19, v{V16}")

def gen_attn(g):
    g.vm = []; g.ds = []
    g.label("L_k2_attn")
    g.e("s_mul_i32 s49, s41, 37")
    g.e("s_lshr_b32 s49, s49, 8")
    g.e("s_mul_i32 s50, s49, 7")
    g.e("s_sub_u32 s44, s41, s50")
    g.e("s_lshl_b32 s49, s49, 3")
    g.e("s_add_u32 s43, s3, s49")
    g.e("s_lshr_b32 s41, s40, 2")
    g.e("s_and_b32 s42, s40, 3")
    g.e("s_sub_u32 s32, 15, s44")
    g.e("s_add_u32 s33, s44, 4")
    g.e("s_cmp_eq_u32 s44, 6")
    g.e("s_cselect_b32 s32, 3, s32")
    g.e("s_cselect_b32 s33, 2, s33")
    g.e("s_lshl_b32 s49, s3, 20")
    g.e("s_add_u32 s60, s6, s49")
    g.e("s_addc_u32 s61, s7, 0")
    g.e(f"s_mov_b32 s62, {MB}")
    g.e("s_mov_b32 s63, 0x20000")
    srd(g, 20, 4, 5, 512 * 8192)
    srd(g, 24, 16, 17, SZ_XN, WS_XN)
    srd(g, 28, 16, 17, 2 * SZ_KV, WS_K)
    srd(g, 36, 16, 17, SZ_CTX, WS_CTX)
    g.e("s_lshl_b32 s55, s42, 12")
    g.e("s_lshl_b32 s54, s43, 19")
    g.e("s_add_u32 s54, s54, s55")
    g.e("s_lshl_b32 s57, s42, 13")
    g.e(f"s_add_u32 s57, s57, {STASH}")
    g.e("v_and_b32 v28, 63, v0")
    g.e(f"v_lshlrev_b32 v{V16}, 4, v28")
    g.e("v_and_b32 v28, 15, v0")
    g.e("v_bfe_u32 v29, v0, 4, 2")
    g.e("v_lshlrev_b32 v29, 2, v29")
    g.e("v_sub_u32 v28, v28, v29")
    for r in range(4): g.e(f"v_cmp_le_i32 s[{8 + 2 * r}:{9 + 2 * r}], {r}, v28")
    if MERGE:
        g.e("s_mul_i32 s49, s43, 43")
        g.e("s_lshr_b32 s49, s49, 7")
        g.e("s_lshl_b32 s49, s49, 7")
        g.e("s_lshl_b32 s50, s3, 13")
        g.e("s_add_u32 s49, s49, s50")
        g.e("v_and_b32 v14, 15, v0")
        g.e("v_lshl_add_u32 v14, v14, 2, s49")
        g.e("s_barrier")
    g.label("L_k2_round")
    w_voffsets(g, 8192, 1)
    g.e("s_lshl_b32 s18, s43, 8")
    g.e("s_lshl_b32 s49, s42, 18")
    g.e("s_add_u32 s18, s18, s49")
    g.e("s_lshl_b32 s49, s41, 7")
    g.e("s_add_u32 s18, s18, s49")
    g.e("s_lshl_b32 s19, s40, 12")
    g.e("s_cmp_eq_u32 s41, 0")
    g.e("s_cselect_b32 s47, s32, s33")
    g.e("s_lshl_b32 s47, s47, 17")
    g.e("s_lshl_b32 s49, s42, 15")
    g.e("s_add_u32 s47, s47, s49")
    def wdma(s):
        g.e(f"s_add_u32 s51, s18, {s * 128 * 8192}")
        g.e(f"s_add_u32 m0, s19, {s * 32768}")
        g.e("s_nop 0")
        for j in range(4):
            g.vmem(f"buffer_load_dwordx4 v{1 + j}, s[20:23], s51 offen offset:{j * 1024} {NTWQ} lds", ("w", s))
    def xload(m):
        if m % 4 == 0:
            g.e(f"s_add_u32 s6, s47, {m * 1024}")
            g.e(f"s_add_u32 s7, s47, {m * 1024 + 16384}")
        for a in range(2):
            x = xreg(a, m)
            g.vmem(f"buffer_load_dwordx4 v[{x}:{x + 3}], v{V16}, s[24:27], s{6 + a} offen offset:{(m % 4) * 1024} {SC}", ("x", m))
    if PROF == 1: g.stamp(6)
    wdma(0)
    for m in range(2): xload(m)
    if not MERGE: code_touch(g, 96, 14, "L_k2_sp")
    g.e("s_barrier")
    for m in range(2, 4): xload(m)
    later = {0: lambda: wdma(1), 22: lambda: wdma(2), 50: lambda: wdma(3)}
    def pf_wsp():
        sk = g.newlabel("nopf")
        g.e("s_cmp_eq_u32 s32, 1")
        g.e(f"s_cbranch_scc1 {sk}")
        g.e("s_and_b32 s49, s2, 0xf8")
        g.e("s_add_u32 s49, s49, s40")
        g.e("s_mul_i32 s49, s49, 4736")
        g.e(f"v_lshlrev_b32 v10, 3, v{V16}")
        g.e("v_mov_b32 v12, 0x10000000")
        g.e("v_cmp_gt_u32 vcc, 4736, v10")
        g.e("s_nop 1")
        g.e("v_cndmask_b32 v11, v12, v10, vcc")
        g.e("buffer_load_dword v13, v11, s[60:63], s49 offen")
        if PF4:
            g.e("s_load_dwordx2 s[96:97], s[0:1], 40")
            g.e("s_load_dwordx2 s[98:99], s[0:1], 80")
            g.e("s_lshl_b32 s49, s2, 3")
            g.e("s_add_u32 s49, s49, s40")
            g.e("v_cmp_gt_u32 vcc, 2432, v10")
            g.e("s_mul_i32 s34, s49, 2432")
            g.e("s_lshl_b32 s35, s49, 9")
            g.e("v_cndmask_b32 v11, v12, v10, vcc")
            g.e("v_cmp_gt_u32 vcc, 512, v10")
            g.e("s_waitcnt lgkmcnt(0)")
            srd(g, 60, 96, 97, 4 * MB)
            g.e("buffer_load_dword v13, v11, s[60:63], s34 offen")
            g.e("v_cndmask_b32 v11, v12, v10, vcc")
            srd(g, 60, 98, 99, 896 * 1024)
            g.e("buffer_load_dword v13, v11, s[60:63], s35 offen")
        g.label(sk)
    for m, F in zip(range(4, 16), XSCH): later[F] = lambda m=m: xload(m)
    tr_bases(g, 5, 6)
    g.e(f"s_mov_b32 s56, {f32(QSCALE)}")
    g.e("s_lshl_b32 s48, s32, 1")
    g.e("s_add_u32 s48, s48, 2")
    g.e("s_lshl_b32 s45, s33, 1")
    g.e("s_add_u32 s45, s45, 2")
    g.e("s_sub_u32 s53, s45, s41")
    g.e("s_sub_u32 s46, s45, 2")
    g.e("s_cmp_eq_u32 s41, 0")
    g.e("s_cselect_b32 s46, 0x1000, s46")
    g.stamp(1)
    def first_tile(t):
        g.e("s_lshl_b32 s49, s41, 24")
        g.e("s_add_u32 s50, s54, s49")
        if t: g.e("s_add_u32 s50, s50, 16384")
        return dma4(g, 50, f"s_add_u32 m0, s19, {t * 32768}", "kv")
    def w0_only(fn):
        sk = g.newlabel("w0")
        g.e("s_cmp_eq_u32 s32, 1")
        g.e("s_cselect_b32 s49, 1, s40")
        g.e("s_cmp_lg_u32 s49, 0")
        g.e(f"s_cbranch_scc1 {sk}")
        fn()
        g.label(sk)
    if MERGE: later[20] = lambda: w0_only(lambda: flag_load(g, 13, 14, 100))
    def fmap(s, f):
        return (f >> 4, (f >> 2) & 3, f & 3) if s == 3 else ((f >> 2) & 1, f >> 3, f & 3)
    def wread(F, half=None):
        s, f = F >> 5, F & 31
        if s >= 4: return
        if f == 0 and half != 1:
            g.wait_vm(("w", s), "kv")
            if MERGE and s == 2: w0_only(lambda: flag_wait(g, 13, 14, 59, 100, SLA, True))
            g.e("s_barrier")
            if MERGE and s == 0: w0_only(lambda: flag_set(g, 10, 58, 59, 100))
            if s == 2:
                g.e("v_xor_b32 v5, 0x10000, v5")
                g.e("v_xor_b32 v6, 0x10000, v6")
            if s >= 2:
                for op in first_tile(s - 2): op()
        p, ks, cb = fmap(s, f)
        mp = p * 4 + ks
        r = WR + (F % 8) * 4
        for a in (range(2) if half is None else [half]):
            o = (s & 1) * 32768 + mp * 4096 + a * 512 + (cb >> 1) * 256
            g.lds(f"TR {r + 2 * a},{6 if cb & 1 else 5},{o}", ("w", F))
    def qpack(p):
        ops = []
        I = lambda s: ops.append(lambda s=s: g.e(s))
        for a in range(2):
            for mm in range(2):
                x, y = areg(p, 2 * mm, a), areg(p, 2 * mm + 1, a)
                assert x == qreg(a, 2 * p + mm)
                for r in range(4): I(f"v_mul_f32 v{x + r}, s56, v{x + r}")
                for r in range(4): I(f"v_mul_f32 v{y + r}, s56, v{y + r}")
                I(f"PK {x},{x},{x + 1}"); I(f"PK {x + 1},{x + 2},{x + 3}")
                I(f"PK {x + 2},{y},{y + 1}"); I(f"PK {x + 3},{y + 2},{y + 3}")
        return ops
    for F in range(D): wread(F)
    fill = []
    for s in range(4):
        if PROF == 1: g.stamp(7 + s)
        for f in range(32):
            F = s * 32 + f
            p, ks, cb = fmap(s, f)
            m = s * 4 + ks
            if F == 116: fill = qpack(0)
            if p == 0 and cb == 0: g.wait_vm(("x", m))
            g.wait_ds(("w", F))
            r = WR + (F % 8) * 4
            for a in range(2):
                g.e(f"{'MZ' if m == 0 else 'M'} {areg(p, cb, a)},{r},{xreg(a, m)}")
                wread(F + D, a)
                if fill: fill.pop(0)(); fill.pop(0)()
            if F in later: later.pop(F)()
    assert not fill and not later
    g.stamp(2)
    g.e("s_mov_b32 s47, 0")
    for grp in next_ops(47):
        for t in grp: g.e(t)
    advance(g)
    g.vm = []; g.ds = []
    for j in range(16): g.e(f"DR {freg(j)},{VF},{j * 1024}")
    for op in qpack(1): op()
    g.e(f"v_mov_b32 v{VNEG}, {f32(-1e30)}")
    g.e(f"s_mov_b32 s56, {f32(2.0 ** 30)}")
    g.e(f"s_mov_b32 s6, {f32(2.0 ** -30)}")
    for i in range(8): g.e(f"v_mov_b32 v{NEGM + i}, 0")
    g.e(f"v_add_u32 v9, s57, v{V16}")
    g.e("s_waitcnt vmcnt(0) lgkmcnt(0)")
    g.stamp(3)
    la = g.newlabel("qa")
    g.e("s_cmp_eq_u32 s41, 0")
    g.e(f"s_cbranch_scc1 {la}")
    g.e("s_barrier")
    g.label(la)
    def post0():
        if PFS and not SPT: pf_wsp()
    def pre0():
        sk = g.newlabel("nost")
        g.e("s_cmp_eq_u32 s41, 0")
        g.e(f"s_cbranch_scc0 {sk}")
        for qb in range(2):
            for mm in range(4): g.e(f"DW 9,{qreg(qb, mm)},{(qb * 4 + mm) * 1024}")
        g.label(sk)
    m_phase(g, False, False, False, post0, pre0)
    def s_fast(tag):
        g.label(f"L_k2_s{tag}")
        PT = int(os.environ.get('PT', '5'))
        g.stamp_if(9, 52, PT)
        for op in softmax_ops(g)[NTAIL:]: op()
        g.e(f"v_max_f32 v{VT}, v{VLT}, v{VLT + 1}")
        g.e(f"v_cmp_lt_f32 vcc, s56, v{VT}")
        g.e("s_cbranch_vccnz L_k2_sgen")
        for qb in range(2): g.e(f"v_add_f32 v{VL + qb}, v{VL + qb}, v{VLT + qb}")
        g.stamp_if(10, 52, PT)
        if PROF == 2:
            g.e("s_waitcnt vmcnt(0) lgkmcnt(0)")
            g.stamp_if(11, 52, PT)
        advance(g)
        if tag == "sh": g.e("s_cmp_lt_u32 s52, s45")
        g.e("s_waitcnt lgkmcnt(0)" if tag == "sh" else "s_waitcnt vmcnt(0) lgkmcnt(0)")
    s_fast("sh")
    g.e("s_cbranch_scc0 L_k2_msp")
    g.label("L_k2_msh")
    g.stamp_if(6, 52, int(os.environ.get('PT', '5'))); g.stamp_if(12, 52, int(os.environ.get('PT', '5')) + 1)
    m_phase(g, True, False, False)
    g.e("s_branch L_k2_ssh")
    s_fast("sp")
    g.label("L_k2_msp")
    m_phase(g, True, False, True)
    g.e("s_branch L_k2_ssp")
    g.label("L_k2_mzsh")
    m_phase(g, True, True, False)
    g.e("s_branch L_k2_ssh")
    g.label("L_k2_mzsp")
    m_phase(g, True, True, True)
    g.e("s_branch L_k2_ssp")
    EXP = os.environ.get('ATEXP', '')
    if EXP:
        i0 = g.lines.index("L_k2_ssh:")
        keep = []
        for l in g.lines[i0:]:
            if 'd' in EXP and l.startswith('buffer_load'): continue
            if 'r' in EXP and l.startswith('DR '): continue
            if 'e' in EXP and l.startswith('v_exp'): l = l.replace('v_exp_f32', 'v_mov_b32')
            if 'v' in EXP and (l.startswith('v_exp') or l.startswith('PK') or (l.startswith('v_add_f32 v8') or l.startswith('v_add_f32 v9'))): continue
            if 'b' in EXP and l.startswith('s_cbranch_vccnz'): continue
            keep.append(l)
        g.lines[i0:] = keep
    def ctx_base(blk):
        g.e(f"s_lshl_b32 s49, s{blk}, 3")
        g.e("s_lshl_b32 s35, s42, 1")
        g.e("s_add_u32 s49, s49, s35")
        g.e("s_mul_i32 s49, s49, 159744")
        g.e("s_lshl_b32 s35, s43, 12")
        g.e("s_add_u32 s34, s49, s35")
        g.e("s_add_u32 s35, s34, 159744")
    def pack_store(mm, qb, fl=STF2):
        x, y = oreg(2 * mm, qb), oreg(2 * mm + 1, qb)
        return [f"PK {x},{x},{x + 1}", f"PK {x + 1},{x + 2},{x + 3}", f"PK {x + 2},{y},{y + 1}", f"PK {x + 3},{y + 2},{y + 3}",
                f"buffer_store_dwordx4 v[{x}:{x + 3}], v{V16}, s[36:39], s{34 + qb} offen offset:{mm * 1024} {fl}"]
    g.label("L_k2_sgen")
    def st5(i, val):
        if PROF == 5:
            l = g.newlabel("st"); g.e(f"s_cmp_lg_u32 s52, {val}"); g.e(f"s_cbranch_scc1 {l}"); g.stamp(i); g.label(l)
    st5(4, 0); st5(7, 8); st5(9, 9); st5(11, 11)
    if PROF == 5: g.stamp(13)
    g.e("s_sub_u32 s49, s52, s46")
    g.e("s_cmp_eq_u32 s49, 3")
    g.e("s_cselect_b32 s5, 2, 0")
    g.e("s_cmp_eq_u32 s52, 0")
    g.e("s_cselect_b32 s5, 1, s5")
    g.e("s_cselect_b32 s18, s6, 0")
    g.e("s_cmp_eq_u32 s5, 2")
    g.e("s_cselect_b32 s18, s6, s18")
    mask_block(g)
    ny = g.newlabel("ny"); jy = g.newlabel("jy")
    g.e("s_cmp_eq_u32 s5, 2")
    g.e(f"s_cbranch_scc0 {ny}")
    ctx_base(33)
    so = softmax_ops(g)
    k = 0
    for mm in range(4):
        for qb in range(2):
            for cb in (2 * mm, 2 * mm + 1):
                for r in range(4): g.e(f"v_mul_f32 v{oreg(cb, qb) + r}, v{oreg(cb, qb) + r}, v{FA + qb}")
            for t in pack_store(mm, qb): g.e(t)
            n = 9 if k < 2 else 10
            for op in so[:n]: op()
            so = so[n:]; k += 1
    assert not so
    g.e(f"s_branch {jy}")
    g.label(ny)
    for op in softmax_ops(g): op()
    g.label(jy)
    g.e(f"v_max_f32 v{VT}, v{VLT}, v{VLT + 1}")
    g.e(f"v_min_f32 v{TMP}, v{VLT}, v{VLT + 1}")
    g.e(f"v_cmp_lt_f32 vcc, s56, v{VT}")
    g.e("s_cbranch_vccnz L_k2_slow")
    g.e(f"v_cmp_gt_f32 vcc, s18, v{TMP}")
    g.e("s_cbranch_vccnz L_k2_slow")
    g.label("L_k2_back")
    nf = g.newlabel("nf")
    g.e("s_cmp_eq_u32 s5, 0")
    g.e(f"s_cbranch_scc1 {nf}")
    for qb in range(2): g.e(f"v_mov_b32 v{VL + qb}, 0")
    g.label(nf)
    for qb in range(2): g.e(f"v_add_f32 v{VL + qb}, v{VL + qb}, v{VLT + qb}")
    g.e("s_add_u32 s49, s52, 2")
    g.e("s_cmp_ge_u32 s49, s48")
    g.e("s_cbranch_scc1 L_k2_xlast")
    nl = g.newlabel("nyl")
    g.e("s_sub_u32 s49, s52, s46")
    g.e("s_cmp_eq_u32 s49, 1")
    g.e(f"s_cbranch_scc0 {nl}")
    g.e(f"v_add_u32 v10, s57, v{V16}")
    for qb in range(2):
        for mm in range(4): g.e(f"DR {qreg(qb, mm)},10,{(qb * 4 + mm) * 1024}")
    xgroup(g, [VL, VL + 1], "v_add_f32", TMP + 2)
    for qb in range(2): g.e(f"v_rcp_f32 v{FA + qb}, v{VL + qb}")
    for i in range(8): g.e(f"v_mov_b32 v{NEGM + i}, 0")
    g.label(nl)
    st5(6, 0); st5(8, 8); st5(10, 9); st5(12, 11)
    advance(g)
    g.e("s_cmp_lt_u32 s52, s45")
    g.e("s_cselect_b32 s49, 0, 4")
    g.e("s_add_u32 s5, s5, s49")
    w8 = g.newlabel("w8")
    g.e("s_and_b32 s49, s5, 3")
    g.e(f"s_cbranch_scc1 {w8}")
    g.e("s_waitcnt vmcnt(0)")
    g.label(w8)
    g.e("s_waitcnt vmcnt(8) lgkmcnt(0)")
    g.e("s_cmp_eq_u32 s5, 0")
    g.e("s_cbranch_scc1 L_k2_msh")
    g.e("s_cmp_eq_u32 s5, 4")
    g.e("s_cbranch_scc1 L_k2_msp")
    g.e("s_cmp_eq_u32 s5, 1")
    g.e("s_cbranch_scc1 L_k2_mzsh")
    g.e("s_branch L_k2_mzsp")
    g.label("L_k2_xlast")
    if PROF == 5: g.stamp(14)
    g.e("s_and_b32 s49, s48, 3")
    g.e("s_lshl_b32 s49, s49, 15")
    g.e("s_lshl_b32 s50, s42, 13")
    g.e("s_add_u32 s50, s50, s49")
    g.e(f"v_add_u32 v11, s50, v{V16}")
    g.e(f"v_add_u32 v10, s57, v{V16}")
    g.e("s_xor_b32 s49, s49, 0x10000")
    g.e("s_lshl_b32 s50, s42, 10")
    g.e("s_add_u32 s49, s49, s50")
    g.e(f"v_add_u32 v{VT}, s49, v{V16}")
    xaddr = lambda i: (10 + (i >> 3), (i & 7) * 1024)
    def pvgroup(cb, zero, mid=()):
        mid = list(mid)
        for kg in range(2):
            for qb in range(2):
                g.e(f"{'MZ' if zero and kg == 0 else 'M'} {oreg(cb, qb)},{freg(kg * 8 + cb)},{preg(qb, kg)}")
                n = -(-len(mid) // (4 - (kg * 2 + qb)))
                for _ in range(n): mid.pop(0)()
    g.e("s_cmp_eq_u32 s41, 0")
    g.e("s_cbranch_scc0 L_k2_xlastB")
    g.e(f"v_mov_b32 v{ML}, v{NEGM}")
    g.e(f"v_mov_b32 v{ML + 1}, v{NEGM + 4}")
    g.e(f"v_mov_b32 v{ML + 2}, v{VL}")
    g.e(f"v_mov_b32 v{ML + 3}, v{VL + 1}")
    g.e(f"DW {VT},{ML},0")
    g.e("s_waitcnt vmcnt(0) lgkmcnt(0)")
    g.e("s_barrier")
    dw = lambda i: (lambda: g.e(f"DW {xaddr(i)[0]},{OR + i * 4},{xaddr(i)[1]}"))
    for cb in range(8):
        pvgroup(cb, False, [dw(2 * cb - 6), dw(2 * cb - 5)] if cb >= 3 else [])
    for i in range(10, 12): dw(i)()
    g.e("s_nop 3")
    for i in range(12, 16): dw(i)()
    g.e("s_waitcnt lgkmcnt(0)")
    g.e("s_barrier")
    g.e("s_branch L_k2_rend")
    g.label("L_k2_xlastB")
    g.e(f"DR {ML},{VT},0")
    ctx_base(32)
    NM = TMP
    g.e("s_waitcnt lgkmcnt(0)")
    for qb in range(2): g.e(f"v_min_f32 v{NM + qb}, v{ML + qb}, v{NEGM + 4 * qb}")
    for qb in range(2): g.e(f"v_sub_f32 v{FA + qb}, v{NM + qb}, v{ML + qb}")
    for qb in range(2): g.e(f"v_sub_f32 v{FB + qb}, v{NM + qb}, v{NEGM + 4 * qb}")
    for i in range(4): g.e(f"v_exp_f32 v{FA + i}, v{FA + i}")
    g.e("s_nop 0")
    for qb in range(2): g.e(f"v_mul_f32 v{VL + qb}, v{VL + qb}, v{FB + qb}")
    for qb in range(2): g.e(f"v_fmac_f32 v{VL + qb}, v{ML + 2 + qb}, v{FA + qb}")
    xgroup(g, [VL, VL + 1], "v_add_f32", TMP + 2)
    for qb in range(2): g.e(f"v_rcp_f32 v{VL + qb}, v{VL + qb}")
    g.e("s_nop 0")
    for qb in range(2): g.e(f"v_mul_f32 v{FA + qb}, v{FA + qb}, v{VL + qb}")
    for qb in range(2): g.e(f"v_mul_f32 v{FB + qb}, v{FB + qb}, v{VL + qb}")
    lz = g.newlabel("finz")
    g.e("s_cmp_eq_u32 s5, 0")
    g.e(f"s_cbranch_scc0 {lz}")
    for zero in (False, True):
        if zero: g.label(lz)
        g.ds = []
        for cb in range(4): pvgroup(cb, zero)
        g.e("s_barrier")
        def merge_ops(mm):
            ops = []
            I = lambda t: ops.append(lambda t=t: g.e(t))
            for qb in range(2):
                for cb in (2 * mm, 2 * mm + 1):
                    o = oreg(cb, qb)
                    for r in range(4): I(f"v_mul_f32 v{o + r}, v{o + r}, v{FB + qb}")
                    ops.append(lambda cb=cb, qb=qb: g.wait_ds(("o", cb, qb)))
                    for r in range(4): I(f"v_fmac_f32 v{o + r}, v{freg(qb * 8 + cb) + r}, v{FA + qb}")
                for t in pack_store(mm, qb, STFX): I(t)
            return ops
        xr = lambda cb, qb: (lambda: g.lds(f"DR {freg(qb * 8 + cb)},{xaddr(cb * 2 + qb)[0]},{xaddr(cb * 2 + qb)[1]}", ("o", cb, qb)))
        for cb in range(3): xr(cb, 0)(); xr(cb, 1)()
        m0 = merge_ops(0)
        for cb in range(4, 8):
            mid = [xr(cb - 1, 0), xr(cb - 1, 1)]
            if cb == 6: mid += m0[:len(m0) // 2]
            if cb == 7: mid += m0[len(m0) // 2:]
            pvgroup(cb, zero, mid)
        xr(7, 0)(); xr(7, 1)()
        for op in merge_ops(1) + merge_ops(2) + merge_ops(3): op()
        if not zero: g.e("s_branch L_k2_rend")
    g.label("L_k2_rend")
    g.stamp(5)
    g.e("s_cmp_eq_u32 s32, 3")
    g.e("s_cbranch_scc0 L_k2_aend")
    g.stamp(4)
    g.e("s_mov_b32 s32, 1")
    g.e("s_mov_b32 s33, 0")
    g.e("s_waitcnt vmcnt(0) lgkmcnt(0)")
    g.e("s_barrier")
    g.e("s_branch L_k2_round")
    g.label("L_k2_aend")
    skc = g.newlabel("nocode")
    g.e("s_cmp_eq_u32 s44, 6")
    g.e(f"s_cbranch_scc0 {skc}")
    code_touch(g, 96, 14, "L_all_end", "L_p3", False)
    g.label(skc)
    if PF2:
        sk = g.newlabel("nopf")
        g.e("s_cmp_eq_u32 s44, 6")
        g.e(f"s_cbranch_scc0 {sk}")
        g.e("s_cmp_eq_u32 s41, 1")
        g.e(f"s_cbranch_scc0 {sk}")
        g.e("s_load_dwordx2 s[20:21], s[0:1], 40")
        g.e("s_load_dwordx2 s[28:29], s[0:1], 80")
        g.e("s_lshl_b32 s49, s43, 2")
        g.e("s_add_u32 s49, s49, s42")
        g.e(f"v_lshlrev_b32 v10, 3, v{V16}")
        g.e("s_lshl_b32 s50, s49, 15")
        g.e("s_mul_i32 s51, s49, 7168")
        g.e("s_waitcnt lgkmcnt(0)")
        g.e(f"s_mov_b32 s22, {4 * MB}")
        g.e("s_mov_b32 s23, 0x20000")
        g.e(f"s_mov_b32 s30, {896 * 1024}")
        g.e("s_mov_b32 s31, 0x20000")
        for i in range(4):
            g.e(f"buffer_load_dword v{12 + i}, v10, s[20:23], s50 offen")
            g.e("s_add_u32 s50, s50, 8192")
        g.e("buffer_load_dword v11, v10, s[28:31], s51 offen")
        g.label(sk)
    g.stamp_dump(16, 17, 40, 1)
    if MERGE == 2:
        g.e("s_lshl_b32 s58, s44, 2")
        g.e("s_bfe_u32 s49, s43, 0x20001")
        g.e("s_add_u32 s58, s58, s49")
        g.e("s_add_u32 s58, s58, 21")
        g.e("s_lshl_b32 s58, s58, 7")
        g.e("s_lshr_b32 s49, s43, 3")
        g.e("s_lshl_b32 s49, s49, 3")
        g.e("s_add_u32 s58, s58, s49")
        g.e("s_and_b32 s49, s43, 1")
        g.e("s_lshl_b32 s49, s49, 2")
        g.e("s_add_u32 s58, s58, s49")
        g.e("s_branch L_p3")
    else: g.e("s_endpgm")
    g.label("L_k2_slow")
    l1 = g.newlabel("slow1"); l2 = g.newlabel("slow2")
    g.e("s_cmp_eq_u32 s5, 0")
    g.e(f"s_cbranch_scc0 {l1}")
    rescale(g, False)
    g.e(f"s_branch {l2}")
    g.label(l1)
    rescale(g, True)
    g.label(l2)
    for op in softmax_ops(g): op()
    g.e("s_branch L_k2_back")

def gen_spatial(g):
    ACC, AR, BB, Z1R = 144, 116, 84, 24
    ZB, ZS = 98304, 14336
    VWD = 80
    acc = lambda fb, tt: ACC + (fb * 4 + tt) * 4
    g.vm = []; g.ds = []
    g.label("L_k2_sp")
    g.e("s_sub_u32 s44, s41, 28")
    g.e("s_and_b32 s42, s40, 3")
    g.e("s_lshr_b32 s41, s40, 2")
    srd(g, 20, 6, 7, 2048 * 4096)
    srd(g, 24, 16, 17, SZ_Z, WS_Z2)
    g.e("v_and_b32 v28, 63, v0")
    g.e(f"v_lshlrev_b32 v{V16}, 4, v28")
    g.e("v_bfe_u32 v28, v0, 3, 3")
    g.e("v_and_b32 v29, 7, v0")
    g.e("v_lshrrev_b32 v30, 1, v28")
    g.e("v_xor_b32 v29, v29, v30")
    g.e("s_lshl_b32 s49, s3, 8")
    g.e("s_lshl_b32 s50, s40, 5")
    g.e("s_add_u32 s49, s49, s50")
    g.e("v_add_u32 v28, s49, v28")
    g.e("v_lshlrev_b32 v28, 12, v28")
    g.e("v_xor_b32 v30, 4, v29")
    g.e("v_lshl_add_u32 v29, v29, 4, v28")
    g.e("v_lshl_add_u32 v30, v30, 4, v28")
    for j in range(4): g.e(f"v_add_u32 v{VWD + j}, {j * 8 * 4096 - j * 1024}, v{29 + (j & 1)}")
    g.e("s_lshl_b32 s48, s40, 1")
    g.e("s_min_u32 s48, s48, 12")
    g.e("s_mul_i32 s49, s44, 14")
    g.e("s_add_u32 s49, s49, s48")
    g.e("s_lshl_b32 s43, s49, 10")
    g.e("s_mov_b32 s45, 0")
    g.e("s_lshl_b32 s46, s40, 12")
    g.e("s_lshl_b32 s47, s48, 10")
    g.e(f"s_add_u32 s47, s47, {ZB}")
    def wop(b, j):
        if j % 2 == 0:
            g.e(f"s_add_u32 m0, s46, {(b % 3) * 32768}")
            g.e("s_nop 0")
        g.vmem(f"buffer_load_dwordx4 v{VWD + j}, s[20:23], s45 offen offset:{j * 1024} {NTSP} lds", ("w", 2 * b))
        if j == 3: g.e("s_add_u32 s45, s45, 128")
    def zop(st, j):
        if j == 0:
            g.e(f"s_add_u32 m0, s47, {(st % 4) * ZS}")
            g.e("s_nop 0")
        g.vmem(f"buffer_load_dwordx4 v{V16}, s[24:27], s43 offen offset:{j * 1024} {SC} lds", ("z", st))
        if j == 1: g.e("s_add_u32 s43, s43, 57344")
    def dma_ops(st):
        b, h = st // 2 + 2, st & 1
        return [lambda: zop(st + 3, 0), lambda: zop(st + 3, 1), lambda: wop(b, 2 * h), lambda: wop(b, 2 * h + 1)]
    if MERGE:
        g.e("s_waitcnt vmcnt(0)")
        g.e("s_barrier")
        nw = g.newlabel("nw"); nw2 = g.newlabel("nw")
        g.e("s_cmp_lg_u32 s40, 0")
        g.e(f"s_cbranch_scc1 {nw}")
        flag_set(g, 10, 58, 59, 100)
        g.e("v_min_u32 v14, 55, v0")
        g.e("v_and_b32 v15, 7, v14")
        g.e("v_lshrrev_b32 v14, 3, v14")
        g.e("v_lshlrev_b32 v14, 7, v14")
        g.e("v_lshl_add_u32 v14, v15, 2, v14")
        g.e("s_lshl_b32 s49, s3, 13")
        g.e(f"s_add_u32 s49, s49, {14 * 128 + 32}")
        g.e("v_add_u32 v14, s49, v14")
        flag_load(g, 12, 14, 100)
        g.label(nw)
        g.e("s_barrier")
        for j in range(4): wop(0, j)
        g.e("s_cmp_lg_u32 s40, 0")
        g.e(f"s_cbranch_scc1 {nw2}")
        g.e("s_waitcnt vmcnt(4)")
        flag_wait(g, 12, 14, 59, 100, SLS, True)
        g.e("v_min_u32 v14, 39, v0")
        g.e("v_and_b32 v15, 3, v14")
        g.e("v_lshrrev_b32 v14, 2, v14")
        g.e("v_lshlrev_b32 v14, 7, v14")
        g.e("v_lshl_add_u32 v14, v15, 3, v14")
        g.e("s_lshl_b32 s49, s3, 13")
        g.e(f"s_add_u32 s49, s49, {11 * 128}")
        g.e("v_add_u32 v14, s49, v14")
        g.label(nw2)
        g.e("s_barrier")
        zop(0, 0); zop(0, 1)
    else:
        zop(0, 0); zop(0, 1)
        for j in range(4): wop(0, j)
        code_touch(g, 96, 14, "L_k2_spend", None, False)
    srd(g, 12, 8, 9, 4096)
    g.e("v_and_b32 v11, 15, v0")
    g.e("v_lshlrev_b32 v11, 1, v11")
    g.e("s_lshl_b32 s49, s3, 9")
    g.e("s_lshl_b32 s50, s42, 7")
    g.e("s_add_u32 s49, s49, s50")
    for tt in range(4): g.vmem(f"buffer_load_ushort v{16 + tt}, v11, s[12:15], s49 offen offset:{tt * 32}", ("w", 0))
    g.e("s_barrier")
    zop(1, 0); zop(1, 1)
    if MERGE < 2:
        srd(g, 28, 16, 17, 32768, WS_PART + 8 * MB)
        g.e("s_sub_u32 s49, s2, 224")
        g.e("s_lshl_b32 s49, s49, 10")
        g.e("v_lshrrev_b32 v28, 6, v0")
        g.e(f"v_lshl_add_u32 v28, v28, 24, v{V16}")
        for i in range(4): g.e(f"v_mov_b32 v{20 + i}, 0")
        g.e("buffer_store_dwordx4 v[20:23], v28, s[28:31], s49 offen")
    srd(g, 28, 16, 17, SZ_Z, WS_Z1)
    srd(g, 36, 16, 17, SZ_CTX, WS_CTX)
    g.e("s_mul_i32 s49, s41, 7168")
    g.e(f"s_add_u32 s49, s49, {ZB}")
    g.e(f"v_add_u32 v4, s49, v{V16}")
    g.e("v_and_b32 v28, 15, v0")
    g.e("v_bfe_u32 v29, v0, 4, 2")
    g.e("v_lshrrev_b32 v30, 1, v28")
    g.e("v_xor_b32 v29, v29, v30")
    g.e("v_lshlrev_b32 v29, 4, v29")
    g.e("v_lshl_add_u32 v29, v28, 7, v29")
    g.e("s_lshl_b32 s49, s42, 13")
    g.e("v_add_u32 v1, s49, v29")
    g.e("v_xor_b32 v2, 64, v1")
    g.e("v_add_u32 v5, 0x10000, v1")
    g.e("v_add_u32 v6, 0x10000, v2")
    def aread(st, fb): g.lds(f"DR {AR + fb * 4},4,{(st % 4) * ZS + fb * 1024}", ("a", st, fb))
    def bread(st, tt):
        sl = (st // 2) % 3
        g.lds(f"DR {BB + (st & 1) * 16 + tt * 4},{(5 if sl == 2 else 1) + (st & 1)},{(sl & 1) * 32768 + tt * 2048}", ("b", st))
    SCH = {(3, 0): ("a", 0), (3, 1): ("b", 0), (3, 2): ("b", 1), (4, 0): ("b", 2), (4, 1): ("b", 3), (4, 2): ("a", 1), (5, 0): ("a", 2), (6, 0): ("a", 3)}
    rd = lambda st, k: (aread if k[0] == "a" else bread)(st, k[1])
    g.wait_vm(("z", 0), ("w", 0))
    g.e("s_barrier")
    for key in sorted(SCH): rd(0, SCH[key])
    for tt in range(4):
        for r in range(4): g.e(f"v_lshlrev_b32 v{24 + tt * 4 + r}, 16, v{16 + tt}")
    g.e("s_mov_b32 s52, 0")
    g.stamp(1)
    def step(st, extra=(), dma=4, nxt=True, init=False):
        extra = list(extra)
        pend = []
        for fb in range(7):
            g.wait_ds(("a", st, fb), ("b", st))
            for tt in range(4):
                if init: g.e(f"MC {acc(fb, tt)},{AR + fb * 4},{BB + (st & 1) * 16 + tt * 4},{24 + tt * 4}")
                else: g.e(f"M {acc(fb, tt)},{AR + fb * 4},{BB + (st & 1) * 16 + tt * 4}")
                if tt == 0 and fb < 3: aread(st, fb + 4)
                if nxt:
                    if (fb, tt) == (3, 0):
                        g.wait_vm(("z", st + 1), ("w", st + 1))
                        g.e("s_barrier")
                        pend = dma_ops(st)[:dma]
                    if (fb, tt) in SCH: rd(st + 1, SCH[(fb, tt)])
                if tt == 3 and pend: pend.pop(0)()
                if tt in (1, 3) and extra and fb < 3:
                    extra.pop(0)()
        assert not pend and not extra
    step(0, [lambda j=j: wop(1, j) for j in range(4)] + [lambda: zop(2, 0), lambda: zop(2, 1)], init=True)
    for st in range(1, 4): step(st)
    g.label("L_k2_sploop")
    vm0, ds0 = list(g.vm), list(g.ds)
    for st in range(4, 16): step(st)
    ren = lambda t: (t[0], t[1] - 12) + t[2:]
    g.vm = [ren(t) for t in g.vm]; g.ds = [ren(t) for t in g.ds]
    assert g.vm == vm0 and g.ds == ds0, (g.vm, vm0, g.ds, ds0)
    g.e("s_add_u32 s52, s52, 1")
    g.e("s_cmp_lt_u32 s52, 4")
    g.e("s_cbranch_scc1 L_k2_sploop")
    g.stamp(2)
    g.e("s_lshl_b32 s49, s3, 4")
    g.e("s_lshl_b32 s50, s42, 2")
    g.e("s_add_u32 s49, s49, s50")
    g.e("s_mul_i32 s54, s49, 28672")
    g.e("s_mul_i32 s55, s49, 159744")
    g.e(f"s_add_u32 s55, s55, {128 * 1024}")
    for tt in range(4):
        g.e(f"v_add_u32 v{16 + tt}, {tt * 28672}, v{V16}")
        g.e(f"v_add_u32 v{20 + tt}, {tt * 159744}, v{V16}")
    g.e("s_mul_i32 s56, s44, 14")
    g.e("s_mul_i32 s48, s41, 7")
    g.e("s_add_u32 s56, s56, s48")
    g.e("s_lshr_b32 s56, s56, 1")
    g.e("s_lshl_b32 s56, s56, 10")
    g.e("s_add_u32 s54, s54, s56")
    g.e("s_add_u32 s55, s55, s56")
    def z1load(u):
        for tt in range(4):
            r = Z1R + (u * 4 + tt) * 4
            g.vmem(f"buffer_load_dwordx4 v[{r}:{r + 3}], v{16 + tt}, s[28:31], s54 offen offset:{u * 1024} {SC}", ("z1", u))
    for st in range(4, 16):
        ex = {8: 0, 10: 1, 12: 2, 15: 3}
        def w0(fn):
            sk = g.newlabel("w0")
            g.e("s_cmp_lg_u32 s40, 0"); g.e(f"s_cbranch_scc1 {sk}")
            fn(); g.label(sk)
        fl = []
        if MERGE and st == 4: fl = [lambda: w0(lambda: flag_load(g, 12, 14, 100, True))]
        if MERGE and st == 7: fl = [lambda: w0(lambda: flag_wait(g, 12, 14, 59, 100, SLS, True, True))]
        step(st, [lambda u=ex[st]: z1load(u)] if st in ex else fl, dma=4 if st < 12 else (2 if st == 12 else 0), nxt=st < 15)
    g.stamp(4)
    g.e("s_nop 4")
    g.e("s_mov_b32 s53, 0xffff0000")
    vm_sv = list(g.vm)
    lode = g.newlabel("spodd"); lend = g.newlabel("spend")
    g.e("s_cmp_eq_u32 s41, 1")
    g.e(f"s_cbranch_scc1 {lode}")
    for fh in range(2):
        g.vm = list(vm_sv)
        if fh: g.label(lode)
        for u in range(4):
            halves = [(h, 2 * u + h - fh) for h in range(2) if 0 <= 2 * u + h - fh < 7]
            g.wait_vm(("z1", u))
            for tt in range(4):
                z = Z1R + (u * 4 + tt) * 4
                for h, fb in halves:
                    a = acc(fb, tt); t = 8 if h else 1
                    g.e(f"v_lshlrev_b32 v{t}, 16, v{z + 2 * h}")
                    g.e(f"v_and_b32 v{t + 1}, s53, v{z + 2 * h}")
                    g.e(f"v_lshlrev_b32 v{t + 2}, 16, v{z + 2 * h + 1}")
                    g.e(f"v_and_b32 v{t + 3}, s53, v{z + 2 * h + 1}")
                    for r in range(4): g.e(f"v_mul_f32 v{a + r}, v{a + r}, v{t + r}")
                    g.e(f"PK {z + 2 * h},{a},{a + 1}"); g.e(f"PK {z + 2 * h + 1},{a + 2},{a + 3}")
                if len(halves) == 2:
                    g.vmem(f"buffer_store_dwordx4 v[{z}:{z + 3}], v{20 + tt}, s[36:39], s55 offen offset:{u * 1024} {STFU}", "st")
                else:
                    h = halves[0][0]
                    g.vmem(f"buffer_store_dwordx2 v[{z + 2 * h}:{z + 2 * h + 1}], v{20 + tt}, s[36:39], s55 offen offset:{u * 1024 + 8 * h} {STFU}", "st")
        if fh == 0: g.e(f"s_branch {lend}")
    g.label(lend)
    g.stamp(3)
    g.stamp_dump(16, 17, 40, 1)
    if MERGE == 2:
        g.e("s_add_u32 s58, s44, 49")
        g.e("s_lshl_b32 s58, s58, 7")
        g.e("s_lshl_b32 s49, s3, 2")
        g.e("s_add_u32 s58, s58, s49")
        g.e("s_branch L_p3")
    else: g.e("s_endpgm")

def gen_k2(g):
    if not MERGE:
        g.e(".p2align 8")
        g.e(".type k2_kernel,@function")
        g.label("k2_kernel")
        g.e("s_cmp_ge_u32 s2, 256")
        g.e("s_cbranch_scc1 L_k2_end")
    g.label("L_p2")
    g.stamp(0)
    if PROF: g.e("s_memrealtime s[94:95]")
    g.e("s_load_dwordx2 s[4:5], s[0:1], 16")
    g.e("s_load_dwordx4 s[8:11], s[0:1], 64")
    g.e("s_load_dwordx2 s[16:17], s[0:1], 104")
    g.e("v_lshrrev_b32 v1, 6, v0")
    g.e("s_and_b32 s3, s2, 7")
    g.e("s_lshr_b32 s41, s2, 3")
    g.e("v_readfirstlane_b32 s40, v1")
    g.e("s_waitcnt lgkmcnt(0)")
    g.e("s_mov_b32 s6, s8")
    g.e("s_mov_b32 s7, s9")
    g.e("s_mov_b32 s8, s10")
    g.e("s_mov_b32 s9, s11")
    if MERGE:
        nw = g.newlabel("nw")
        g.e("s_cmp_lg_u32 s40, 0")
        g.e(f"s_cbranch_scc1 {nw}")
        flag_wait(g, 13, 15, 59, 100, SLA, True)
        g.e("v_mov_b32 v13, 0")
        g.label(nw)
    g.e("s_cmp_lt_u32 s41, 28")
    g.e("s_cbranch_scc1 L_k2_attn")
    g.e("s_branch L_k2_sp")
    g.label("L_k2_end")
    g.e("s_endpgm")
    gen_attn(g)
    gen_spatial(g)
    g.label("L_k2_spend")
```

```python
import sys
from asmlib import *
import k1
NAME = "parallel_sum__compressed_kv_cla__mixer_gmlp__prompt"
HDR = open(f"cdna_kernels/{NAME}.s.ref").read().split("\n")
HDR = [l for l in HDR if l.startswith(";   offset") or l.startswith("; Kernarg")]
def build(kernels):
    g = G()
    launches = []
    kds = []
    if "k1" in kernels:
        k1.gen_k1(g); launches.append(f"; @launch kernel={KNAME} grid=(256,1,1) block=(512,1,1) lds=163840"); kds.append(kd(KNAME, 256))
    if "k2" in kernels:
        import k2
        k2.gen_k2(g)
        if not MERGE: launches.append("; @launch kernel=k2_kernel grid=(256,1,1) block=(512,1,1) lds=163840"); kds.append(kd("k2_kernel", 256))
    if "k3" in kernels:
        import k3
        k3.gen_k3(g)
        if MERGE < 2: launches.append(f"; @launch kernel=k3_kernel grid=(256,1,1) block=(512,1,1) lds={k3.LDS}"); kds.append(kd("k3_kernel", k3.NVGPR))
        if not k3.FUSE: k3.gen_k4(g); launches.append("; @launch kernel=k4_kernel grid=(256,1,1) block=(512,1,1) lds=0"); kds.append(kd("k4_kernel", 40))
    if os.environ.get("REPORT"):
        items = eval(os.environ["REPORT"])
        g.e(".p2align 8"); g.e(".type rep_kernel,@function"); g.label("rep_kernel")
        g.e("s_cmp_lg_u32 s2, 0"); g.e("s_cbranch_scc1 L_rep_end")
        g.e("s_load_dwordx4 s[4:7], s[0:1], 96")
        g.e("s_waitcnt lgkmcnt(0)")
        for k in range(3):
            g.e(f"s_add_u32 s{12 + 2 * k}, s6, {WS_DBG + k * MB}"); g.e(f"s_addc_u32 s{13 + 2 * k}, s7, 0")
        for i, (k, wg, w, sl) in enumerate(items):
            g.e(f"s_load_dword s{20 + i}, s[{12 + 2 * k}:{13 + 2 * k}], {wg * 1024 + w * 128 + sl * 4}")
        srd(g, 8, 4, 5, 256)
        g.e("v_lshlrev_b32 v1, 20, v0")
        g.e("s_waitcnt lgkmcnt(0)")
        for i in range(len(items)):
            g.e(f"s_sub_u32 s40, s{20 + i}, s20")
            g.e("v_mov_b32 v2, s40")
            g.e(f"buffer_store_dword v2, v1, s[8:11], 0 offen offset:{4 * i}")
            g.e("s_nop 1")
        g.label("L_rep_end"); g.e("s_endpgm")
        kds.append(kd("rep_kernel", 8))
        launches.append("; @launch kernel=rep_kernel grid=(1,1,1) block=(64,1,1) lds=0")
    nn = int(os.environ.get("NOPK", "0"))
    if nn:
        g.e(".p2align 8"); g.e(".type nop_kernel,@function"); g.label("nop_kernel"); g.e("s_endpgm")
        kds.append(kd("nop_kernel", 8))
        l = "; @launch kernel=nop_kernel grid=(256,1,1) block=(64,1,1) lds=0"
        pos = int(os.environ.get("NOPP", "3"))
        launches[pos:pos] = [l] * nn
    if os.environ.get("ONLY"):
        launches = [launches[int(i)] for i in os.environ["ONLY"].split(",")]
    if os.environ.get("DUP"):
        i = int(os.environ["DUP"]); launches.insert(i, launches[i])
    if len(launches) == 1 and os.environ.get("PLAIN"): launches = ["; @launch grid=(256,1,1) block=(512,1,1) lds=163840"]
    out = "\n".join(HDR + launches) + "\n"
    out += '.amdgcn_target "amdgcn-amd-amdhsa--gfx950"\n' + MACROS + f".text\n.globl {KNAME}\n" + g.text()
    out += '.section .rodata,"a"\n'
    for k in kds: out += ".p2align 6" + k
    return out
if __name__ == "__main__":
    ks = sys.argv[2].split(",") if len(sys.argv) > 2 else ["k1", "k2", "k3"]
    open(sys.argv[1], "w").write(build(ks))
```

```python
import struct, os
KNAME = 'parallel_sum__compressed_kv_cla__mixer_gmlp__prompt_kernel'
PROF = int(os.environ.get('PROF', '0'))

def f32(x):
    return struct.unpack('<I', struct.pack('<f', x))[0]

class G:
    def __init__(self):
        self.lines = []
        self.vm = []
        self.ds = []
        self.uid = 0
    def e(self, s):
        self.lines.append(s)
    def label(self, name):
        self.lines.append(name + ":")
    def newlabel(self, base):
        self.uid += 1
        return f"L_{base}_{self.uid}"
    def vmem(self, s, tag=None):
        self.lines.append(s); self.vm.append(tag)
    def lds(self, s, tag=None):
        self.lines.append(s); self.ds.append(tag)
    def _need(self, lst, tags):
        idx = -1
        for i, t in enumerate(lst):
            if t in tags: idx = i
        return idx
    def wait_vm(self, *tags):
        idx = self._need(self.vm, tags)
        if idx < 0: return
        n = min(len(self.vm) - 1 - idx, 63)
        self.lines.append(f"s_waitcnt vmcnt({n})")
        self.vm = self.vm[len(self.vm) - n:] if n else []
    def wait_ds(self, *tags):
        idx = self._need(self.ds, tags)
        if idx < 0: return
        n = min(len(self.ds) - 1 - idx, 15)
        self.lines.append(f"s_waitcnt lgkmcnt({n})")
        self.ds = self.ds[len(self.ds) - n:] if n else []
    def wait_all(self, vm=True, ds=True):
        if vm and ds: self.lines.append("s_waitcnt vmcnt(0) lgkmcnt(0)")
        elif vm: self.lines.append("s_waitcnt vmcnt(0)")
        elif ds: self.lines.append("s_waitcnt lgkmcnt(0)")
        if vm: self.vm = []
        if ds: self.ds = []
    def stamp(self, i):
        if PROF == 4 and i > 6: return
        if PROF: self.lines.append(f"s_memtime s[{64 + 2 * i}:{65 + 2 * i}]")
        if PROF == 4 and 1 <= i <= 6: self.lines.append(f"s_memrealtime s[{64 + 2 * (i + 7)}:{65 + 2 * (i + 7)}]")
    def stamp_if(self, i, sreg, val):
        if PROF != 2: return
        l = self.newlabel("st")
        self.e(f"s_cmp_lg_u32 s{sreg}, {val}")
        self.e(f"s_cbranch_scc1 {l}")
        self.stamp(i)
        self.label(l)
    def stamp_dump(self, wslo, wshi, swave, kidx, n=16):
        if not PROF: return
        e = self.e
        e("s_waitcnt vmcnt(0) lgkmcnt(0)")
        e("s_memrealtime s[98:99]")
        e("s_memtime s[96:97]")
        e("s_waitcnt lgkmcnt(0)")
        e(f"s_add_u32 s60, s{wslo}, {WS_DBG + kidx * MB}")
        e(f"s_addc_u32 s61, s{wshi}, 0")
        e(f"s_mov_b32 s62, {MB}")
        e("s_mov_b32 s63, 0x20000")
        e("s_lshl_b32 s49, s2, 10")
        e(f"s_lshl_b32 s50, s{swave}, 7")
        e("s_add_u32 s49, s49, s50")
        e("v_and_b32 v1, 63, v0") if False else None
        e("v_mbcnt_lo_u32_b32 v30, -1, 0")
        e("v_mbcnt_hi_u32_b32 v30, -1, v30")
        e("v_lshlrev_b32 v30, 24, v30")
        for i in range(n + 2):
            e(f"v_mov_b32 v31, s{64 + 2 * i}")
            e(f"buffer_store_dword v31, v30, s[60:63], s49 offen offset:{4 * i}")
            e("s_nop 1")
    def text(self):
        return "\n".join(self.lines) + "\n"

MACROS = r"""
.macro M d,a,b
v_mfma_f32_16x16x32_bf16 v[\d:\d+3],v[\a:\a+3],v[\b:\b+3],v[\d:\d+3]
.endm
.macro MZ d,a,b
v_mfma_f32_16x16x32_bf16 v[\d:\d+3],v[\a:\a+3],v[\b:\b+3],0
.endm
.macro MC d,a,b,c
v_mfma_f32_16x16x32_bf16 v[\d:\d+3],v[\a:\a+3],v[\b:\b+3],v[\c:\c+3]
.endm
.macro TR d,a,o
ds_read_b64_tr_b16 v[\d:\d+1],v\a offset:\o
.endm
.macro DR d,a,o
ds_read_b128 v[\d:\d+3],v\a offset:\o
.endm
.macro DW a,d,o
ds_write_b128 v\a,v[\d:\d+3] offset:\o
.endm
.macro PK d,a,b
v_cvt_pk_bf16_f32 v\d,v\a,v\b
.endm
"""

def kd(name, vgpr, sgpr=102):
    acc = (vgpr + 3) // 4 * 4
    return f"""
.amdhsa_kernel {name}
  .amdhsa_next_free_vgpr {vgpr}
  .amdhsa_next_free_sgpr {sgpr}
  .amdhsa_accum_offset {acc}
  .amdhsa_group_segment_fixed_size 0
  .amdhsa_kernarg_size 112
  .amdhsa_user_sgpr_count 2
  .amdhsa_user_sgpr_kernarg_segment_ptr 1
  .amdhsa_system_sgpr_workgroup_id_x 1
.end_amdhsa_kernel
"""

def srd(g, s, lo, hi, size, off=0):
    if off:
        g.e(f"s_add_u32 s{s}, s{lo}, {off}")
        g.e(f"s_addc_u32 s{s+1}, s{hi}, 0")
    else:
        g.e(f"s_mov_b32 s{s}, s{lo}")
        g.e(f"s_mov_b32 s{s+1}, s{hi}")
    g.e(f"s_mov_b32 s{s+2}, {size}")
    g.e(f"s_mov_b32 s{s+3}, 0x20000")

MERGE = int(os.environ.get('MERGE', '2'))
SC = os.environ.get("SCL", "sc1") if MERGE else ""
def dbg_load(g, v, voff, base):
    g.e(f"global_load_dword v{v}, v{voff}, s[{base}:{base + 1}] sc1")
def dbg_wait(g, v, voff, vtgt, base, sleep, loaded):
    spin = g.newlabel("spin"); chk = g.newlabel("chk")
    if loaded: g.e(f"s_branch {chk}")
    g.label(spin)
    g.e(f"s_sleep {sleep}")
    dbg_load(g, v, voff, base)
    g.e("s_waitcnt vmcnt(0)")
    g.label(chk)
    g.e(f"v_cmp_lt_u32 vcc, v{v}, v{vtgt}")
    g.e(f"s_cbranch_vccnz {spin}")
def nonce_get(g, v, voff, sleep, loaded):
    spin = g.newlabel("spin"); chk = g.newlabel("chk")
    if loaded: g.e(f"s_branch {chk}")
    g.label(spin)
    g.e(f"s_sleep {sleep}")
    g.e(f"v_mov_b32 v{voff}, 20")
    dbg_load(g, v, voff, 18)
    g.label(chk)
    g.e("s_waitcnt vmcnt(0)") if not loaded else None
    g.e(f"v_readfirstlane_b32 s59, v{v}")
    g.e("s_bitcmp1_b32 s59, 0")
    if loaded:
        ok = g.newlabel("ok")
        g.e(f"s_cbranch_scc1 {ok}")
        g.e("s_waitcnt vmcnt(0)")
        g.e(f"v_readfirstlane_b32 s59, v{v}")
        g.e("s_bitcmp1_b32 s59, 0")
        g.e(f"s_cbranch_scc0 {spin}")
        g.label(ok)
    else:
        g.e(f"s_cbranch_scc0 {spin}")
def flag_set(g, vt, soff, snonce, base):
    g.e(f"v_lshlrev_b32 v{vt}, 13, v0")
    g.e(f"v_add_u32 v{vt}, s{soff}, v{vt}")
    g.e(f"v_mov_b32 v{vt + 1}, s{snonce}")
    g.e("s_mov_b64 exec, 0xff")
    g.e(f"global_store_dword v{vt}, v{vt + 1}, s[{base}:{base + 1}] sc1")
    g.e("s_mov_b64 exec, -1")
def flag_load(g, v, voff, base, wide=False):
    if wide: g.e(f"global_load_dwordx2 v[{v}:{v + 1}], v{voff}, s[{base}:{base + 1}] sc1")
    else: g.e(f"global_load_dword v{v}, v{voff}, s[{base}:{base + 1}] sc1")
def flag_wait(g, v, voff, snonce, base, sleep, loaded, wide=False):
    spin = g.newlabel("spin"); chk = g.newlabel("chk")
    if loaded: g.e(f"s_branch {chk}")
    g.label(spin)
    g.e(f"s_sleep {sleep}")
    flag_load(g, v, voff, base, wide)
    g.e("s_waitcnt vmcnt(0)")
    g.label(chk)
    g.e(f"v_cmp_ne_u32 vcc, s{snonce}, v{v}")
    g.e(f"s_cbranch_vccnz {spin}")
    if wide:
        g.e(f"v_cmp_ne_u32 vcc, s{snonce}, v{v + 1}")
        g.e(f"s_cbranch_vccnz {spin}")
BAL = int(os.environ.get('BAL', '2'))
CPF = int(os.environ.get('CPF', '1'))
def code_touch(g, s, v, end, start=None, track=True):
    if not CPF: return
    here = g.newlabel("pc")
    g.e(f"s_getpc_b64 s[{s}:{s + 1}]")
    g.label(here)
    if start:
        g.e(f"s_add_u32 s{s}, s{s}, {start}-{here}")
        g.e(f"s_addc_u32 s{s + 1}, s{s + 1}, 0")
    g.e(f"s_mov_b32 s{s + 2}, {end}-{start or here}")
    g.e(f"s_mov_b32 s{s + 3}, 0x20000")
    g.e(f"v_lshlrev_b32 v{v}, 7, v0")
    t = f"buffer_load_dword v{v}, v{v}, s[{s}:{s + 3}], 0 offen"
    if track: g.vmem(t, "code")
    else: g.e(t)

MB = 1 << 20
WS_XN = 0
WS_K = 2 * MB
WS_V = 18 * MB
WS_Z1 = 34 * MB
WS_Z2 = 38 * MB
WS_ST = 42 * MB
WS_CTX = 44 * MB
SZ_XN = 2 * MB
SZ_KV = 16 * MB
SZ_Z = 2048 * 896 * 2
SZ_ST = 3 * 2048 * 8
SZ_CTX = 128 * 156 * 1024
WS_DBG = 200 * MB
WS_SCR = 64 * MB
SZ_SCR = 32 * MB
WS_PART = 64 * MB
WS_XNP = 74 * MB
WS_FL = 76 * MB
```

```python
from asmlib import *
import math

XR = 128
ACC = [64, 96]
WR = 32
D = 6
C2 = -2.0 * math.sqrt(2.0 / math.pi) * math.log2(math.e)
C1 = C2 * 0.044715
NPKV = int(os.environ.get('NPKV', '6'))
NPZ = int(os.environ.get('NPZ', '3'))
GKV = -(-64 // NPKV); GZ = 7
assert NPKV == 6 and NPZ == 3
GMAP = [[0, 1, 2, 25, 3, 4, 26, 10], [11, 12, 13, 27, 14, 15, 28, 21], [5, 6, 29, 7, 8, 30, 9, 22], [16, 17, 31, 18, 23, 19, 20, 24]]
assert sorted(sum(GMAP, [])) == list(range(32))
NTW = os.environ.get('NTW', '')
PF = int(os.environ.get('PF', '97'))
CLU = int(os.environ.get('CLU', '1'))
PFW = int(os.environ.get('PFW', '0'))
NTP = os.environ.get('NTP', '')
PF3 = int(os.environ.get('PF3', '0'))
ZPUB = int(os.environ.get('ZPUB', '20'))
MIX = int(os.environ.get('MIX', '1'))
PFWS = int(os.environ.get('PFWS', '16'))
ROT = int(os.environ.get('ROT', '3'))
SL0 = int(os.environ.get('SL0', '64')); SL1 = int(os.environ.get('SL1', '4'))
LT = int(os.environ.get('LT', '0'))
PFL = eval(os.environ.get('PFL', '[0,2,4,8,10,11,14,18,22,23]'))
PROT = int(os.environ.get('PROT', '0'))
ZA = int(os.environ.get('ZA', '10')); ZP = int(os.environ.get('ZP', '12')); ZC = int(os.environ.get('ZC', '12'))
STKV = os.environ.get('STKV', 'sc1')
QFAST = int(os.environ.get('QFAST', '1')) and MERGE
FAST_VM = []
SPT1 = int(os.environ.get('SPT1', '1'))
STF = os.environ.get('STF', 'sc1')

def xreg(a, m): return XR + (m * 2 + a) * 4
def areg(st, cb, a): return ACC[st] + (cb * 2 + a) * 4

def w_voffsets(g, rowstride, vbase):
    g.e("v_bfe_u32 v28, v0, 5, 1")
    g.e("v_bfe_u32 v29, v0, 2, 2")
    g.e("v_lshl_add_u32 v28, v28, 2, v29")
    g.e(f"v_mul_u32_u24 v28, {rowstride}, v28")
    g.e("v_bfe_u32 v29, v0, 4, 1")
    g.e("v_lshl_add_u32 v28, v29, 6, v28")
    g.e("v_and_b32 v29, 3, v0")
    g.e("v_xor_b32 v30, 2, v29")
    g.e("v_lshlrev_b32 v29, 4, v29")
    g.e("v_lshlrev_b32 v30, 4, v30")
    for j in range(4):
        g.e(f"v_add_u32 v31, {j * 8 * rowstride - j * 1024}, v28")
        g.e(f"v_add_u32 v{vbase + j}, v31, v{29 + (j & 1)}")

def tr_bases(g, ve, vo):
    g.e("v_bfe_u32 v28, v0, 4, 2")
    g.e("v_lshlrev_b32 v29, 10, v28")
    g.e("v_bfe_u32 v30, v0, 2, 2")
    g.e("v_lshl_add_u32 v29, v30, 6, v29")
    g.e("v_and_b32 v30, 3, v0")
    g.e("v_lshl_add_u32 v29, v30, 3, v29")
    g.e("v_and_b32 v28, 1, v28")
    g.e(f"v_lshl_add_u32 v{ve}, v28, 5, v29")
    g.e(f"v_xor_b32 v{vo}, 32, v{ve}")

def gelu_ops(regs, T, vc2, sc1, stats=None):
    out = []
    n = len(T)
    for i in range(0, len(regs), n):
        grp = list(zip(regs[i:i + n], T))
        out += [f"v_mul_f32 v{t}, v{x}, v{x}" for x, t in grp]
        out += [f"v_fma_f32 v{t}, v{t}, s{sc1}, v{vc2}" for x, t in grp]
        out += [f"v_mul_f32 v{t}, v{t}, v{x}" for x, t in grp]
        out += [f"v_exp_f32 v{t}, v{t}" for x, t in grp]
        out += [f"v_add_f32 v{t}, 1.0, v{t}" for x, t in grp]
        out += [f"v_rcp_f32 v{t}, v{t}" for x, t in grp]
        out += [f"v_mul_f32 v{x}, v{x}, v{t}" for x, t in grp]
        if stats:
            out += [f"v_add_f32 v{stats[x][0]}, v{stats[x][0]}, v{x}" for x, t in grp]
            out += [f"v_fmac_f32 v{stats[x][1]}, v{x}, v{x}" for x, t in grp]
    return out

def ln_params(g, MEAN, VAR, n):
    def rbf(rs):
        for r in rs: g.e(f"PK {r},{r},{r}")
        for r in rs: g.e(f"v_and_b32 v{r}, 0xffff0000, v{r}")
    for m, v in zip(MEAN, VAR):
        g.e(f"v_mul_f32 v{m}, {f32(1 / n)}, v{m}")
        g.e(f"v_mul_f32 v{v}, {f32(1 / n)}, v{v}")
    for m, v in zip(MEAN, VAR): g.e(f"v_fma_f32 v{v}, -v{m}, v{m}, v{v}")
    for v in VAR: g.e(f"v_max_f32 v{v}, 0, v{v}")
    rbf(list(MEAN) + list(VAR))
    for v in VAR: g.e(f"v_add_f32 v{v}, {f32(1e-5)}, v{v}")
    rbf(VAR)
    for v in VAR: g.e(f"v_sqrt_f32 v{v}, v{v}")
    g.e("s_nop 0")
    rbf(VAR)
    for v in VAR: g.e(f"v_rcp_f32 v{v}, v{v}")
    g.e("s_nop 0")
    for m, v in zip(MEAN, VAR): g.e(f"v_mul_f32 v{m}, v{m}, v{v}")

def gen_type(g, T):
    ktp = lambda p: T in ("K", "Z1") or (T == "Z2" and p == 2)
    ztype = T in ("Z1", "Z2")
    rowstride = 3584 if ztype else 8192
    NP = NPZ if ztype else NPKV
    NTOT = 14 if ztype else 64
    NG = {"Z1": 3, "Z2": GZ}.get(T, GKV)
    NS = {"Z1": 2, "Z2": 3}.get(T, NTOT - (NG - 1) * NP)
    SHORT0 = {"Z1": 1}.get(T, NG - 1)
    VW = 1
    VTE, VTO = 5, 6
    VST = 7
    VC2 = 8
    VXA = 20
    VXR = (9, 11)
    TMP = [9, 10, 11, 12]
    STAT = 16
    g.vm = []; g.ds = []
    g.label(f"L_k1_{T}")
    g0 = {"K": 0, "V": GKV, "Z1": 2 * GKV, "Z2": 2 * GKV + 3}[T]
    g.e(f"s_sub_u32 s42, s3, {g0}")
    g.e("v_and_b32 v28, 63, v0")
    g.e(f"v_lshlrev_b32 v{VST}, 4, v28")
    if ztype:
        srd(g, 24, 4, 5, 2 * MB)
        g.e(f"s_sub_u32 s54, s3, {2 * GKV}")
        g.e("s_and_b32 s49, s54, 7")
        g.e("s_lshl_b32 s49, s49, 5")
        g.e("s_lshl_b32 s50, s41, 8")
        g.e("s_add_u32 s49, s49, s50")
        g.e("s_lshl_b32 s50, s40, 2")
        g.e("s_add_u32 s55, s49, s50")
        g.e("s_lshl_b32 s49, s55, 10")
        g.e("v_and_b32 v28, 3, v0")
        g.e("v_bfe_u32 v29, v0, 2, 4")
        g.e("v_lshlrev_b32 v30, 4, v29")
        g.e("v_lshl_add_u32 v30, v28, 10, v30")
        for i in range(4): g.vmem(f"buffer_load_dwordx4 v[{64 + 4 * i}:{67 + 4 * i}], v30, s[24:27], s49 offen offset:{256 * i}", "ln")
    else:
        srd(g, 24, 6, 7, 2 * MB)
    if T == "K": srd(g, 20, 10, 11, 512 * 8192)
    if T == "V": srd(g, 20, 12, 13, 512 * 8192)
    if ztype: srd(g, 20, 14, 15, 512 * 3584)
    if T == "Z1":
        g.e("s_lshl_b32 s58, s42, 1")
        g.e("s_add_u32 s58, s58, 8")
        g.e("s_cmp_eq_u32 s42, 0")
        g.e("s_cselect_b32 s58, 7, s58")
    elif T == "Z2": g.e("s_lshl_b32 s58, s42, 1")
    else: g.e(f"s_mul_i32 s58, s42, {NP}")
    colbase = 1792 if T == "Z2" else 0
    g.e("s_lshl_b32 s44, s58, 7")
    if colbase: g.e(f"s_add_u32 s44, s44, {colbase}")
    if ztype: g.e(f"s_mov_b32 s45, {colbase + (NTOT - 1) * 128}")
    else:
        g.e(f"s_cmp_lt_u32 s42, {SHORT0}")
        g.e(f"s_cselect_b32 s45, {NP}, {NS}")
        g.e("s_bfe_u32 s63, s2, 0x20003" if PROT else "s_mov_b32 s63, 0")
        g.e("s_lshl_b32 s63, s63, 1")
        g.e("s_cmp_ge_u32 s63, s45")
        g.e("s_cselect_b32 s49, s45, 0")
        g.e("s_sub_u32 s63, s63, s49")
    def pair_ops(p, d):
        return [f"s_add_u32 s{d}, s63, {p % 4 if p >= NS else p}" if False else f"s_add_u32 s{d}, s63, {p}",
                (f"s_cmp_ge_u32 s{d}, s45", "s_cselect_b32 s62, s45, 0"), f"s_sub_u32 s{d}, s{d}, s62"]
    g.e("s_lshl_b32 s46, s40, 12")
    g.e("s_bfe_u32 s60, s2, 0x20005" if (ROT and (not ztype or ROT > 2)) else "s_mov_b32 s60, 0")
    if ROT >= 2 and (not ztype or ROT > 2):
        g.e("s_bfe_u32 s49, s2, 0x20003")
        g.e("s_add_u32 s60, s60, s49")
        g.e("s_and_b32 s60, s60, 3")
    g.e("s_lshl_b32 s49, s60, 2")
    g.e("s_add_u32 s49, s49, s40")
    g.e("s_and_b32 s50, s49, 15")
    g.e(f"s_mul_i32 s56, s50, {32 * rowstride}")
    g.e("s_xor_b32 s50, s50, 8")
    g.e(f"s_mul_i32 s61, s50, {32 * rowstride}")
    g.e("s_and_b32 s57, s40, 3")
    g.e(f"s_mul_i32 s57, s57, {32 * rowstride}")
    g.e("s_lshr_b32 s49, s40, 2")
    g.e("s_lshl_b32 s49, s49, 7")
    g.e("s_add_u32 s57, s57, s49")
    if not ztype:
        g.e("s_lshl_b32 s49, s63, 7")
        g.e("s_add_u32 s57, s57, s49")
    g.e("s_add_u32 s57, s57, s44")
    NST = 2 * NP
    NQ = 4
    def fmap(s, f):
        cb = f & 3
        if s < NQ:
            p, ks = (f >> 4, (f >> 2) & 3) if s == 3 else ((f >> 2) & 1, f >> 3)
            return p, 4 * s + ks, cb, p * 4 + ks
        return s >> 1, (s & 1) * 8 + (f >> 2), cb, f >> 2
    XPOS = [3, 4, 3, 4, 3, 4, 4, 4]
    def xdma_ops(q):
        ops = []
        for i in range(4):
            def op(i=i):
                if i == 0:
                    g.e(f"s_add_u32 s43, s60, {q >> 1}")
                    g.e("s_and_b32 s43, s43, 3")
                    g.e("s_lshl_b32 s43, s43, 8")
                    if q & 1: g.e("s_add_u32 s43, s43, 128")
                g.e(f"s_add_u32 m0, s46, {XPOS[q] * 32768}")
                g.e("s_nop 0")
                g.vmem(f"buffer_load_dwordx4 v{VXA + i}, s[24:27], s43 offen offset:{i * 1024} lds", ("x", q))
            ops.append(op)
        return ops
    def xread(q):
        g.wait_vm(("x", q))
        for ks in range(2):
            for a in range(2):
                g.lds(f"DR {xreg(a, 2 * q + ks)},{VXR[(XPOS[q] >> 1) - 1] + ks},{(XPOS[q] & 1) * 32768 + a * 2048}", ("x", q))
    def wdma_ops(s, sr=51):
        if s >= NST and QFAST and not ztype:
            def op(j):
                if j == 0: g.e(f"s_add_u32 s{sr}, s54, {(s - NST) * 128 * 8192}")
                g.e(f"s_add_u32 m0, s46, {(s % 4) * 32768}")
                g.e("s_nop 0")
                g.vmem(f"buffer_load_dwordx4 v{VW + j}, s[32:35], s{sr} offen offset:{j * 1024} lds", ("wq", s - NST))
            return [lambda j=j: op(j) for j in range(4)]
        if s >= NST: return []
        ops = []
        for j in range(4):
            def op(j=j):
                if j == 0:
                    if s < NQ:
                        g.e(f"s_add_u32 s{sr}, s60, {s}")
                        g.e(f"s_and_b32 s{sr}, s{sr}, 3")
                        g.e(f"s_mul_i32 s{sr}, s{sr}, {128 * rowstride}")
                        g.e(f"s_add_u32 s{sr}, s{sr}, s57")
                    else:
                        p, kh = s >> 1, s & 1
                        if T == "Z2" and p == 2: g.e(f"s_lshl_b32 s{sr}, s42, 7")
                        elif ztype:
                            g.e(f"s_add_u32 s{sr}, s44, {p * 128}")
                            g.e(f"s_min_u32 s{sr}, s{sr}, s45")
                        else:
                            for t in pair_ops(p, sr):
                                for u in ((t,) if isinstance(t, str) else t): g.e(u)
                            g.e(f"s_lshl_b32 s{sr}, s{sr}, 7")
                            g.e(f"s_add_u32 s{sr}, s{sr}, s44")
                        g.e(f"s_add_u32 s{sr}, s{sr}, s{61 if kh else 56}")
                g.e(f"s_add_u32 m0, s46, {(s % 4) * 32768}")
                g.e("s_nop 0")
                g.vmem(f"buffer_load_dwordx4 v{VW + j}, s[20:23], s{sr} offen offset:{j * 1024} {NTW} lds", ("w", s))
            ops.append(op)
        return ops
    def run(ops):
        for op in ops: op()
    def w0(fn):
        sk = g.newlabel("w0")
        g.e("s_cmp_lg_u32 s40, 0"); g.e(f"s_cbranch_scc1 {sk}")
        fn(); g.label(sk)
    def rb_line(dst, extra):
        g.e(f"s_add_u32 s{dst}, s41, 53")
        g.e(f"s_lshl_b32 s{dst}, s{dst}, 7")
        if extra: g.e(f"s_add_u32 s{dst}, s{dst}, {extra}")
    def rb_poll_addr(v, n, extra):
        rb_line(49, extra)
        g.e("s_and_b32 s50, s2, 7")
        g.e("s_lshl_b32 s50, s50, 13")
        g.e("s_add_u32 s49, s49, s50")
        g.e(f"v_min_u32 v{v}, {n - 1}, v0")
        g.e(f"v_lshl_add_u32 v{v}, v{v}, 2, s49")

    w_voffsets(g, rowstride, VW)
    if not ztype:
        run(wdma_ops(0, 47))
        g.e("v_bfe_u32 v28, v0, 3, 3")
        g.e("v_and_b32 v29, 7, v0")
        g.e("v_lshrrev_b32 v30, 1, v28")
        g.e("v_xor_b32 v29, v29, v30")
        g.e("s_lshl_b32 s49, s41, 8")
        g.e("s_lshl_b32 s50, s40, 5")
        g.e("s_add_u32 s49, s49, s50")
        g.e("v_add_u32 v28, s49, v28")
        g.e("v_lshlrev_b32 v28, 10, v28")
        g.e("v_xor_b32 v30, 4, v29")
        g.e("v_lshl_add_u32 v29, v29, 4, v28")
        g.e("v_lshl_add_u32 v30, v30, 4, v28")
        for i in range(4): g.e(f"v_add_u32 v{VXA + i}, {i * 8192 - i * 1024}, v{29 + (i & 1)}")
        run(xdma_ops(0))
        code_touch(g, 36, 14, f"L_k1_{T}_end")
        g.e("s_barrier")
        run(xdma_ops(1))
        run(wdma_ops(1, 47))
        g.e("v_and_b32 v28, 15, v0")
        g.e("v_bfe_u32 v29, v0, 4, 2")
        g.e("v_lshrrev_b32 v30, 1, v28")
        g.e("v_xor_b32 v29, v29, v30")
        g.e("v_lshlrev_b32 v29, 4, v29")
        g.e("v_lshl_add_u32 v29, v28, 7, v29")
        g.e("s_add_u32 s49, s46, 0x10000")
        g.e(f"v_add_u32 v{VXR[0]}, s49, v29")
        g.e(f"v_xor_b32 v{VXR[0] + 1}, 64, v{VXR[0]}")
        for ks in range(2): g.e(f"v_add_u32 v{VXR[1] + ks}, 0x10000, v{VXR[0] + ks}")
    else:
        code_touch(g, 36, 255, f"L_k1_{T}_end")
        srd(g, 24, 16, 17, WS_XNP + SZ_XN, 0)
        ZLT = len(g.lines)
        g.e("s_mov_b32 s53, 0xffff0000")
        g.e(f"s_mov_b32 s52, {f32(C1)}")
        g.e(f"v_mov_b32 v{VC2}, {f32(C2)}")
        g.e("s_lshr_b32 s55, s55, 5")
        g.e("s_lshl_b32 s55, s55, 15")
        g.e("s_add_u32 s55, s55, s46")
        g.e(f"s_add_u32 s62, s55, {WS_XNP}")
        g.e("s_lshr_b32 s49, s40, 2")
        g.e("s_lshl_b32 s49, s49, 14")
        g.e("s_and_b32 s50, s40, 3")
        g.e("s_lshl_b32 s50, s50, 6")
        g.e("s_add_u32 s49, s49, s50")
        g.e("s_add_u32 s49, s49, 0x20000")
        g.e("v_and_b32 v28, 3, v0")
        g.e("v_lshlrev_b32 v28, 4, v28")
        g.e("v_bfe_u32 v29, v0, 2, 2")
        g.e("v_lshl_add_u32 v28, v29, 8, v28")
        g.e("v_bfe_u32 v29, v0, 4, 2")
        g.e("v_lshl_add_u32 v28, v29, 10, v28")
        g.e("v_add_u32 v13, s49, v28")
        g.e("s_add_u32 s49, s46, 0x20000")
        g.e(f"v_add_u32 v16, s49, v{VST}")
        g.e("s_and_b32 s49, s46, 0x3fff")
        g.e("s_lshr_b32 s50, s40, 2")
        g.e("s_lshl_b32 s50, s50, 6")
        g.e("s_add_u32 s49, s49, s50")
        g.e("s_add_u32 s49, s49, 0x20000")
        g.e("v_bfe_u32 v17, v0, 3, 1")
        g.e("v_lshlrev_b32 v17, 14, v17")
        g.e("v_bfe_u32 v28, v0, 2, 1")
        g.e("v_lshl_add_u32 v17, v28, 7, v17")
        g.e("v_and_b32 v28, 0x33, v0")
        g.e("v_lshl_add_u32 v17, v28, 4, v17")
        g.e("v_add_u32 v17, s49, v17")
        rb_poll_addr(15, 8, 0)
        nol = g.newlabel("noln")
        g.e("s_cmp_ge_u32 s54, 8")
        g.e(f"s_cbranch_scc1 {nol}")
        g.e("v_mov_b32 v9, 0")
        g.e("v_mov_b32 v10, 0")
        g.wait_vm("ln")
        g.stamp(8)
        g.e("v_mov_b32 v14, 20")
        w0(lambda: dbg_load(g, 14, 14, 18))
        for i in range(16):
            g.e(f"v_lshlrev_b32 v{96 + 2 * i}, 16, v{64 + i}")
            g.e(f"v_and_b32 v{97 + 2 * i}, s53, v{64 + i}")
        for i in range(32):
            g.e(f"v_add_f32 v9, v9, v{96 + i}")
            g.e(f"v_fmac_f32 v10, v{96 + i}, v{96 + i}")
        for sh in (4, 8):
            g.e("s_nop 1")
            for r in (9, 10): g.e(f"v_add_f32_dpp v{r}, v{r}, v{r} row_ror:{sh} row_mask:0xf bank_mask:0xf")
        for sw in ("v_permlane32_swap_b32", "v_permlane16_swap_b32"):
            for i in range(2): g.e(f"v_mov_b32 v{11 + i}, v{9 + i}")
            g.e("s_nop 1")
            for i in range(2): g.e(f"{sw} v{11 + i}, v{9 + i}")
            g.e("s_nop 1")
            for i in range(2): g.e(f"v_add_f32 v{9 + i}, v{9 + i}, v{11 + i}")
        ln_params(g, [9], [10], 512)
        for i in range(4):
            for e in range(8): g.e(f"v_fma_f32 v{96 + 8 * i + e}, v{96 + 8 * i + e}, v10, -v9")
            for r in range(4): g.e(f"PK {64 + 4 * i + r},{96 + 8 * i + 2 * r},{97 + 8 * i + 2 * r}")
            g.e(f"DW 13,{64 + 4 * i},{i * 4096}")
        g.e("s_waitcnt lgkmcnt(0)")
        g.e("s_barrier")
        for i in range(8): g.e(f"DR {96 + 4 * i},{17 - (i >> 2)},{(i & 3) * 1024}")
        for i in range(8):
            g.e(f"s_waitcnt lgkmcnt({7 - i})")
            g.e(f"buffer_store_dwordx4 v[{96 + 4 * i}:{99 + 4 * i}], v{VST}, s[24:27], s{55 if i >> 2 else 62} offen offset:{(i & 3) * 1024} sc1")
        g.e("v_mov_b32 v11, 1")
        g.stamp(9)
        g.e("s_waitcnt vmcnt(0)")
        g.e("s_barrier")
        g.stamp(10)
        done = g.newlabel("sdone"); chk = g.newlabel("schk")
        g.e("s_cmp_lg_u32 s40, 0")
        g.e(f"s_cbranch_scc1 {done}")
        nonce_get(g, 14, 14, 2, True)
        rb_line(47, 0)
        g.e("s_lshl_b32 s49, s54, 2")
        g.e("s_add_u32 s47, s47, s49")
        flag_set(g, 10, 47, 59, 100)
        g.e(f"s_branch {chk}")
        g.label(nol)
        g.e("s_cmp_lg_u32 s40, 0")
        g.e(f"s_cbranch_scc1 {done}")
        g.e(f"s_sleep {SL0}")
        nonce_get(g, 14, 14, 2, False)
        g.label(chk)
        flag_wait(g, 11, 15, 59, 100, SL1, False)
        g.label(done)
        g.vm = []
        run(wdma_ops(0, 47))
        g.e("s_lshl_b32 s49, s41, 18")
        g.e("s_lshl_b32 s50, s40, 15")
        g.e("s_add_u32 s54, s49, s50")
        if T == "Z2": g.e(f"s_add_u32 s54, s54, {WS_XNP}")
        g.e("s_barrier")
        g.stamp(11)
        def xload(m):
            if m % 4 == 0:
                g.e(f"s_add_u32 s63, s60, {m >> 2}")
                g.e("s_and_b32 s63, s63, 3")
                g.e("s_lshl_b32 s63, s63, 12")
                g.e("s_add_u32 s63, s63, s54")
                g.e(f"s_add_u32 s55, s63, 16384")
            for a in range(2):
                x = xreg(a, m)
                g.vmem(f"buffer_load_dwordx4 v[{x}:{x + 3}], v{VST}, s[24:27], s{55 if a else 63} offen offset:{(m % 4) * 1024} sc1", ("x", m))
        for m in range(4): xload(m)
    def lin_touch():
        g.e("s_lshl_b32 s43, s2, 3")
        g.e("s_add_u32 s43, s43, s40")
        g.e(f"v_lshlrev_b32 v26, 3, v{VST}")
        g.e("v_bfe_u32 v27, v0, 4, 2")
        g.e("v_lshl_add_u32 v26, v27, 28, v26")
        g.e("s_lshl_b32 s49, s43, 11")
        srd(g, 36, 10, 11, 4 * MB)
        g.vmem("buffer_load_dword v254, v26, s[36:39], s49 offen", "t")
        srd(g, 36, 12, 13, 4 * MB)
        g.vmem("buffer_load_dword v254, v26, s[36:39], s49 offen", "t")
        srd(g, 36, 14, 15, 512 * 3584)
        g.vmem("buffer_load_dword v254, v26, s[36:39], s49 offen", "t")
    if LT == 1 and not ztype: lin_touch()
    if LT and ztype:
        n0 = len(g.lines); sv = list(g.vm)
        lin_touch()
        blk = g.lines[n0:]; del g.lines[n0:]; g.lines[ZLT:ZLT] = blk; g.vm = sv
        k = g.lines.index(f"s_waitcnt vmcnt({CPF})", ZLT); g.lines[k] = f"s_waitcnt vmcnt({CPF + 3})"
    off, sz = {"K": (WS_K, SZ_KV), "V": (WS_V, SZ_KV), "Z1": (WS_Z1, SZ_Z), "Z2": (WS_Z2, SZ_Z)}[T]
    srd(g, 28, 16, 17, sz, off)
    tr_bases(g, VTE, VTO)
    if T == "Z2":
        for i in range(16): g.e(f"v_mov_b32 v{STAT + i}, 0")

    def outbase(I, p):
        if T == "Z2" and p == 2: I("s_mov_b32 s48, s42")
        elif ztype: I(f"s_add_u32 s48, s58, {p}")
        else:
            I("\n".join(u for t in pair_ops(p, 48) for u in ((t,) if isinstance(t, str) else t)))
            I("s_add_u32 s48, s48, s58")
        if T in ("K", "V"):
            I("s_lshr_b32 s49, s48, 1")
            I("s_lshl_b32 s49, s49, 19")
            I("s_and_b32 s48, s48, 1")
            I(f"s_lshl_b32 s48, s48, {11 if T == 'K' else 12}")
            I("s_add_u32 s48, s48, s49")
            I("s_lshl_b32 s49, s41, 16")
            I("s_add_u32 s48, s48, s49")
            I("s_lshl_b32 s49, s40, 13")
            I("s_add_u32 s48, s48, s49")
            I("s_add_u32 s50, s48, 4096")
        else:
            I(f"s_lshl_b32 s48, s48, {11 if ktp(p) else 12}")
            I("s_lshl_b32 s49, s41, 3")
            I("s_add_u32 s49, s49, s40")
            I("s_mul_i32 s49, s49, 57344")
            I("s_add_u32 s48, s48, s49")
            I("s_add_u32 s50, s48, 28672")

    ZPARK = 131072
    def epilogue(p, last=False):
        st = p & 1
        ops = []
        def I(s): ops.append(lambda s=s: g.e(s))
        hold = T == "Z2" and p < 2
        if not hold: outbase(I, p)
        frags = []
        if ktp(p):
            for a in range(2):
                for mm in range(2):
                    frags.append((areg(st, 2 * mm, a), areg(st, 2 * mm + 1, a), a, mm * 1024))
        else:
            for cb in range(4):
                frags.append((areg(st, cb, 0), areg(st, cb, 1), 0, cb * 1024))
        for (x, y, a, io) in frags:
            if ztype:
                stats = None
                if hold:
                    stats = {}
                    for r in range(4):
                        stats[x + r] = (STAT + 2 * r, STAT + 2 * r + 1)
                        stats[y + r] = (STAT + 8 + 2 * r, STAT + 8 + 2 * r + 1)
                for s in gelu_ops([x, x + 1, x + 2, x + 3, y, y + 1, y + 2, y + 3], TMP, VC2, 52, stats): I(s)
            d = x
            if p == 0 and not ztype: d = 16 + 4 * frags.index((x, y, a, io))
            I(f"PK {d},{x},{x + 1}"); I(f"PK {d + 1},{x + 2},{x + 3}")
            I(f"PK {d + 2},{y},{y + 1}"); I(f"PK {d + 3},{y + 2},{y + 3}")
            x = d
            if hold:
                if p == 0: ops.append(lambda x=x, io=io: g.lds(f"DW 13,{x},{io}", "park"))
            elif T == "Z2":
                ops.append(lambda x=x, a=a, io=io: g.vmem(
                    f"buffer_store_dwordx4 v[{x}:{x + 3}], v14, s[24:27], s48 offen offset:{io + 64 * a} {SC}", "st"))
            else:
                ops.append(lambda x=x, a=a, io=io: g.vmem(
                    f"buffer_store_dwordx4 v[{x}:{x + 3}], v{VST}, s[28:31], s{50 if a else 48} offen offset:{io} {STF if ztype else STKV}", "st"))
        return ops
    if T == "Z2":
        g.e(f"s_add_u32 s49, s46, {ZPARK}")
        g.e(f"v_add_u32 v13, s49, v{VST}")

    def publish_ops():
        ops = []
        def I(s): ops.append(lambda s=s: g.e(s))
        for sh in (8, 4, 2, 1):
            for i in range(16):
                I(f"v_add_f32_dpp v{STAT + i}, v{STAT + i}, v{STAT + i} row_ror:{sh} row_mask:0xf bank_mask:0xf")
        ops.append(lambda: srd(g, 36, 16, 17, GZ * 16384, WS_ST))
        I("v_bfe_u32 v9, v0, 4, 2")
        I("v_lshlrev_b32 v9, 6, v9")
        I("v_and_b32 v10, 15, v0")
        I("v_lshl_add_u32 v10, v10, 24, v9")
        I("s_lshl_b32 s63, s41, 11")
        I("s_lshl_b32 s49, s40, 8")
        I("s_add_u32 s63, s63, s49")
        I("s_lshl_b32 s49, s42, 14")
        I("s_add_u32 s49, s49, s63")
        for i in range(4):
            ops.append(lambda i=i: g.vmem(f"buffer_store_dwordx4 v[{STAT + 4 * i}:{STAT + 4 * i + 3}], v10, s[36:39], s49 offen offset:{16 * i} sc1", "pub"))
        return ops
    def arrive():
        g.wait_vm("pub")
        g.e("s_barrier")
        def f():
            rb_line(47, 32)
            g.e("s_lshl_b32 s49, s42, 2")
            g.e("s_add_u32 s47, s47, s49")
            flag_set(g, 10, 47, 59, 100)
            rb_poll_addr(15, GZ, 32)
            g.e("v_mov_b32 v14, 0")
        w0(f)
    PB = 16
    def collect():
        w0(lambda: flag_wait(g, 14, 15, 59, 100, SL1, True))
        g.e("s_barrier")
        g.stamp(14)
        g.e("v_and_b32 v9, 31, v0")
        g.e("v_lshlrev_b32 v9, 3, v9")
        for q in range(GZ):
            g.e(f"s_add_u32 s49, s63, {q * 16384}")
            g.vmem(f"buffer_load_dwordx2 v[{PB + 2 * q}:{PB + 2 * q + 1}], v9, s[36:39], s49 offen sc1", "col")

    def pf_next(short):
        if not PF3 or T == "Z2" or (T in ("K", "V") and not short): return
        g.e("s_load_dwordx2 s[32:33], s[0:1], 40")
        g.e("s_load_dwordx2 s[36:37], s[0:1], 80")
        g.e("s_lshl_b32 s43, s41, 3")
        g.e("s_add_u32 s43, s43, s40")
        g.e(f"v_lshlrev_b32 v13, 3, v{VST}")
        g.e("s_waitcnt lgkmcnt(0)")
        g.e(f"s_mov_b32 s34, {4 * MB}")
        g.e("s_mov_b32 s35, 0x20000")
        g.e(f"s_mov_b32 s38, {896 * 1024}")
        g.e("s_mov_b32 s39, 0x20000")
        if T == "Z1":
            g.e("s_lshl_b32 s47, s42, 6")
            g.e("s_add_u32 s43, s43, s47")
            g.e("s_lshl_b32 s43, s43, 13")
            if short:
                g.e(f"s_sub_u32 s47, s43, {64 * 8192}")
                g.e("buffer_load_dword v14, v13, s[36:39], s47 offen")
                g.e(f"s_add_u32 s47, s47, {3 * MB}")
                g.e("buffer_load_dword v14, v13, s[32:35], s47 offen")
        else:
            g.e(f"s_mul_i32 s43, s43, {3 * 8192}")
            if T == "V": g.e(f"s_add_u32 s43, s43, {64 * 3 * 8192}")
            for i in range(3):
                g.e(f"buffer_load_dword v14, v13, s[32:35], s43 offen")
                g.e("s_add_u32 s43, s43, 8192")

    def xn_snap():
        def f():
            if not ztype: nonce_get(g, 13, 13, 2, True)
            g.e("s_and_b32 s43, s2, 7")
            g.e("s_lshl_b32 s43, s43, 13")
            g.e(f"s_add_u32 s43, s43, {53 * 128}")
            g.e("v_lshrrev_b32 v13, 3, v0")
            g.e("v_lshlrev_b32 v13, 7, v13")
            g.e("v_and_b32 v15, 7, v0")
            g.e("v_lshl_add_u32 v13, v15, 2, v13")
            g.e("v_add_u32 v15, s43, v13")
            flag_load(g, 13, 15, 100)
        w0(f)
    def final(p, short=False):
        g.stamp(12)
        g.e("s_nop 7")
        if T != "Z2":
            for op in epilogue(p): op()
        else:
            for i in range(4): g.e(f"DR {XR + 4 * i},13,{i * 1024}")
            VA, P2 = 144, 160
            g.e(f"s_add_u32 s49, s46, {ZPARK}")
            g.e("v_add_u32 v9, s49, v9")
            g.e(f"v_bfe_u32 v{VA}, v0, 4, 2")
            g.e(f"v_lshl_add_u32 v{VA}, v{VA}, 6, s49")
            g.e("s_waitcnt vmcnt(0) lgkmcnt(0)")
            for q in range(1, GZ):
                for i in range(2): g.e(f"v_add_f32 v{PB + i}, v{PB + i}, v{PB + 2 * q + i}")
            ln_params(g, [PB], [PB + 1], 896)
            g.e(f"ds_write_b64 v9, v[{PB}:{PB + 1}]")
            g.e("s_waitcnt lgkmcnt(0)")
            for i in range(4): g.e(f"DR {P2 + 4 * i},{VA},{16 * i}")
            xn_snap()
            g.e("s_waitcnt lgkmcnt(0)")
            MEAN = [P2 + 2 * e for e in range(8)]; VAR = [P2 + 2 * e + 1 for e in range(8)]
            for pp in range(2):
                outbase(g.e, pp)
                for cb in range(4):
                    x = XR + 4 * cb if pp == 0 else areg(pp & 1, cb, 0)
                    t = 16 + (cb & 1) * 8
                    for r in range(4): g.e(f"v_lshlrev_b32 v{t + 2 * r}, 16, v{x + r}")
                    for r in range(4): g.e(f"v_and_b32 v{t + 2 * r + 1}, s53, v{x + r}")
                    for e in range(8): g.e(f"v_fma_f32 v{t + e}, v{t + e}, v{VAR[e]}, -v{MEAN[e]}")
                    for r in range(4): g.e(f"PK {x + r},{t + 2 * r},{t + 2 * r + 1}")
                    g.e(f"buffer_store_dwordx4 v[{x}:{x + 3}], v{VST}, s[28:31], s48 offen offset:{cb * 1024} {STF}")
            ep = epilogue(p)
            nb = len(ep) - 4 * 61
            quart = [ep[nb + 61 * i:nb + 61 * i + 60] for i in range(4)]
            zst = [ep[nb + 61 * i + 60] for i in range(4)]
            run(quart[0]); run(quart[1])
            g.e("s_waitcnt vmcnt(0)")
            g.e("s_barrier")
            def z2flag():
                g.e("s_add_u32 s47, s42, 14")
                g.e("s_lshl_b32 s47, s47, 7")
                g.e("s_lshl_b32 s49, s41, 2")
                g.e("s_add_u32 s47, s47, s49")
                g.e("s_add_u32 s47, s47, 32")
                flag_set(g, 16, 47, 59, 100)
            w0(z2flag)
            g.stamp(10)
            srd(g, 24, 16, 17, SZ_Z, WS_Z1)
            g.e("v_bfe_u32 v14, v0, 3, 1")
            g.e("v_mul_u32_u24 v14, 28672, v14")
            g.e("v_bfe_u32 v18, v0, 2, 1")
            g.e("v_lshl_add_u32 v14, v18, 7, v14")
            g.e("v_and_b32 v18, 0x33, v0")
            g.e("v_lshl_add_u32 v14, v18, 4, v14")
            run(ep[:nb]); run(zst[:2]); run(quart[2]); run(zst[2:3]); run(quart[3]); run(zst[3:])
        g.stamp(13)
        g.stamp_dump(16, 17, 40, 0)
        if MERGE:
            g.e(f"s_add_u32 s58, s42, { {'K': 0, 'V': 0, 'Z1': 11, 'Z2': 14}[T] }")
            g.e("s_lshl_b32 s58, s58, 7")
            g.e("s_lshl_b32 s49, s41, 2")
            g.e("s_add_u32 s58, s58, s49")
            if T == "V": g.e("s_add_u32 s58, s58, 32")
            if QFAST and not ztype and not short:
                FAST_VM[:] = [] if PROF else [("w", t[1]) if isinstance(t, tuple) and t[0] == "wq" else t for t in g.vm]
                g.e("s_branch L_p2f")
            else: g.e("s_branch L_p2")
        else: g.e("s_endpgm")

    pend = []
    def wread(F, half=None):
        s, f = F >> 5, F & 31
        if s >= NST: return
        if f == 0 and half != 1:
            assert not pend
            g.wait_vm(("w", s))
            if QFAST and not ztype and s == NST - 1: w0(lambda: flag_wait(g, 13, 15, 59, 100, SL1, True))
            g.e("s_barrier")
            if s >= 2 and s % 2 == 0:
                g.e(f"v_xor_b32 v{VTE}, 0x10000, v{VTE}")
                g.e(f"v_xor_b32 v{VTO}, 0x10000, v{VTO}")
            if s >= 2: pend.extend(wdma_ops(s + 2))
        if pend and f >= 1 and half != 0: pend.pop(0)()
        p, m, cb, mp = fmap(s, f)
        r = WR + (F % 8) * 4
        for a in (range(2) if half is None else [half]):
            o = (s & 1) * 32768 + mp * 4096 + a * 512 + (cb >> 1) * 256
            g.lds(f"TR {r + 2 * a},{VTO if cb & 1 else VTE},{o}", ("w", F))

    g.stamp(1)
    ev = {}
    def at(F, fn): ev.setdefault(F, []).append(fn)
    def spread(F0, ops, after=None):
        if after is not None: at(F0, lambda: g.wait_ds(("x", after)))
        for i, op in enumerate(ops): at(F0 + i, op)
    if not ztype:
        xread(0)
        at(0, lambda: g.wait_ds(("x", 0)))
        spread(0, xdma_ops(2)); spread(4, wdma_ops(2, 47))
        at(10, lambda: xread(1)); spread(14, xdma_ops(3), 1)
        at(22, lambda: xread(2)); spread(26, xdma_ops(4), 2)
        at(34, lambda: xread(3)); spread(38, xdma_ops(5), 3)
        at(44, lambda: xread(4)); spread(48, wdma_ops(3, 47), 4)
        at(56, lambda: xread(5)); spread(64, xdma_ops(6), 5)
        at(80, lambda: xread(6)); spread(84, xdma_ops(7), 6)
        at(99, lambda: xread(7)); at(103, lambda: g.wait_ds(("x", 7)))
    else:
        for m in range(16): at(8 * m if m < 12 else 96 + 4 * (m - 12), lambda m=m: g.wait_vm(("x", m)))
        for m, F in zip(range(4, 16), (4, 8, 12, 16, 28, 34, 40, 46, 56, 64, 70, 74)): at(("post", F), lambda m=m: xload(m))
        for F0, s in ((0, 1), (22, 2), (50, 3)):
            for i, op in enumerate(wdma_ops(s, 47)): at(("post", F0 + i), op)
    if PFW and not ztype:
        def pfw():
            g.e("s_bfe_u32 s43, s2, 0x20003")
            g.e("s_lshl_b32 s43, s43, 7")
            g.e("s_lshl_b32 s47, s40, 4")
            g.e("s_add_u32 s43, s43, s47")
            g.e("v_bfe_u32 v14, v0, 2, 4")
            g.e("v_add_u32 v14, s43, v14")
            g.e("v_lshlrev_b32 v14, 13, v14")
            g.e("v_and_b32 v15, 3, v0")
            g.e("v_min_u32 v15, 2, v15")
            g.e("v_lshl_add_u32 v14, v15, 7, v14")
            g.vmem(f"buffer_load_dword v14, v14, s[20:23], s44 offen offset:384", "t")
        at(PFW, pfw)
    if PF:
        def prefetch():
            sr = 36 if T == "Z2" else 32
            srd(g, sr, 8, 9, 4 * MB)
            g.e("s_and_b32 s43, s2, 0xf8")
            g.e("s_add_u32 s43, s43, s40")
            g.e("s_lshl_b32 s43, s43, 14")
            g.e("s_and_b32 s47, s2, 7")
            g.e("s_lshl_b32 s47, s47, 8")
            g.e("s_add_u32 s47, s47, s43")
            g.e("v_and_b32 v14, 1, v0")
            g.e("v_lshlrev_b32 v14, 7, v14")
            g.e("v_bfe_u32 v15, v0, 1, 3")
            g.e("v_lshl_add_u32 v14, v15, 11, v14")
            g.e("v_bfe_u32 v15, v0, 4, 2")
            g.e("v_lshl_add_u32 v15, v15, 28, v14")
            g.vmem(f"buffer_load_dword v14, v15, s[{sr}:{sr + 3}], s47 offen", "t")
            if T in ("K", "V"):
                sk = g.newlabel("nocode")
                g.e("s_cmp_lt_u32 s2, 8")
                g.e(f"s_cbranch_scc0 {sk}")
                code_touch(g, 36, 14, "L_all_end", "L_p2", False)
                g.label(sk)
            if SPT1 and T != "Z2":
                sk = g.newlabel("nosp")
                g.e("s_cmp_lt_u32 s2, 224")
                g.e(f"s_cbranch_scc1 {sk}")
                g.e("s_load_dwordx2 s[36:37], s[0:1], 64")
                g.e("s_and_b32 s43, s2, 0x18")
                g.e("s_add_u32 s43, s43, s40")
                g.e("s_lshl_b32 s43, s43, 15")
                g.e("s_and_b32 s47, s2, 7")
                g.e("s_lshl_b32 s47, s47, 20")
                g.e("s_add_u32 s43, s43, s47")
                g.e("v_bfe_u32 v13, v0, 3, 3")
                g.e("v_lshlrev_b32 v13, 12, v13")
                g.e("v_and_b32 v15, 7, v0")
                g.e("v_lshl_add_u32 v13, v15, 7, v13")
                g.e("s_waitcnt lgkmcnt(0)")
                g.e(f"s_mov_b32 s38, {8 * MB}")
                g.e("s_mov_b32 s39, 0x20000")
                for i in range(SPT1): g.e(f"buffer_load_dword v14, v13, s[36:39], s43 offen offset:{1024 * i}")
                g.label(sk)
            if PF3 == 1 and T != "Z2":
                sk = g.newlabel("nopf3")
                g.e(f"s_cmp_lt_u32 s42, {SHORT0}")
                g.e(f"s_cbranch_scc1 {sk}")
                pf_next(True)
                g.label(sk)
        at(PF if not ztype else min(PF, 110), prefetch)
    if not ztype: at(150, lambda: (g.e("v_mov_b32 v13, 20"), w0(lambda: dbg_load(g, 13, 13, 18))))
    if T != "Z2": at(114 if ztype else (2 * NS - 1) * 32 - 12, xn_snap)
    if QFAST and not ztype:
        from k2 import role_ops
        def qprep():
            g.e("s_load_dwordx2 s[6:7], s[0:1], 64")
            for t in role_ops(54, 55, 52, 53, 43, 47): g.e(t)
            srd(g, 32, 8, 9, 512 * 8192)
            srd(g, 36, 16, 17, SZ_XN, WS_XN)
            g.e("s_lshl_b32 s54, s54, 8")
            g.e("s_and_b32 s43, s40, 3")
            g.e("s_lshl_b32 s47, s43, 18")
            g.e("s_add_u32 s54, s54, s47")
            g.e("s_lshr_b32 s47, s40, 2")
            g.e("s_cmp_eq_u32 s47, 0")
            g.e("s_cselect_b32 s55, s52, s53")
            g.e("s_lshl_b32 s47, s47, 7")
            g.e("s_add_u32 s54, s54, s47")
            g.e("s_lshl_b32 s55, s55, 17")
            g.e("s_lshl_b32 s43, s43, 15")
            g.e("s_add_u32 s55, s55, s43")
            g.e("s_waitcnt lgkmcnt(0)")
            g.ds = []
        at(270, qprep)
        def qx(m):
            if m % 4 == 0:
                g.e(f"s_add_u32 s52, s55, {m * 1024}")
                g.e(f"s_add_u32 s53, s55, {m * 1024 + 16384}")
            for a in range(2):
                x = xreg(a, m)
                g.vmem(f"buffer_load_dwordx4 v[{x}:{x + 3}], v{VST}, s[36:39], s{52 + a} offen offset:{(m % 4) * 1024} {SC}", ("x", m))
        for m in range(8): at(("post", (NST - 1) * 32 + 1 + 3 * m), lambda m=m: qx(m))
    def place(ops, F0, n):
        for i, op in enumerate(ops): at(("post", F0 + i * n // len(ops)), op)
    for p in range(NP - 1):
        ops = epilogue(p)
        F0 = (2 * p + 2) * 32 + 3
        if not ztype:
            h = len(ops) - 20
            fr = [ops[h + 5 * i:h + 5 * i + 5] for i in range(4)]
            if p == 0:
                place(ops[:h] + [o for f4 in fr for o in f4[:4]], 3 * 32 + 20, 11)
                for f4, F in zip(fr, (127, 138, 149, 160)): at(("post", F), f4[4])
            else:
                pos = (166, 174, 182, 189) if p == 1 else [F0 + 5 + 16 * i for i in range(4)]
                place(ops[:h], pos[0] - 4, 3)
                for f4, F in zip(fr, pos): place(f4, F - 1, 2)
        elif p == 0: place(ops, 3 * 32 + 20, 11)
        elif T == "Z2" and p == 1:
            place(ops + [lambda: g.e("s_nop 1")] + publish_ops(), F0, ZPUB)
            at(("post", F0 + ZPUB + ZA), arrive)
            at(("post", F0 + ZPUB + ZA + ZP), lambda: w0(lambda: flag_load(g, 14, 15, 100)))
            at(("post", min(191, F0 + ZPUB + ZA + ZP + ZC)), collect)
        else: place(ops, F0, 60)
    for F in range(D): wread(F)
    for s in range(NST):
        if s < 9 and PROF != 6: g.stamp(2 + s)
        if s == 2 * NS and NS < NP:
            cont = g.newlabel("cont")
            g.e(f"s_cmp_lt_u32 s42, {SHORT0}")
            g.e(f"s_cbranch_scc1 {cont}")
            sv = (list(g.vm), list(g.ds))
            final(NS - 1, True)
            g.vm, g.ds = sv
            g.label(cont)
        for f in range(32):
            F = s * 32 + f
            p, m, cb, mp = fmap(s, f)
            if PROF == 6 and F in PFL: g.stamp(2 + PFL.index(F))
            for fn in ev.pop(F, []): fn()
            g.wait_ds(("w", F))
            r = WR + (F % 8) * 4
            post = ev.pop(("post", F), [])
            for a in range(2):
                op = "MZ" if m == 0 else "M"
                if ktp(p): g.e(f"{op} {areg(p & 1, cb, a)},{r},{xreg(a, m)}")
                else: g.e(f"{op} {areg(p & 1, cb, a)},{xreg(a, m)},{r}")
                wread(F + D, a)
                n = len(post) // 2 if a == 0 else len(post)
                for _ in range(n): post.pop(0)()
    assert not ev, ev.keys()
    final(NP - 1)
    g.label(f"L_k1_{T}_end")

def gen_k1(g):
    g.e(".p2align 8")
    g.e(f".type {KNAME},@function")
    g.label(KNAME)
    g.e("s_cmp_ge_u32 s2, 256")
    g.e("s_cbranch_scc1 L_k1_end")
    g.stamp(0)
    if PROF: g.e("s_memrealtime s[94:95]")
    g.e("s_load_dwordx4 s[4:7], s[0:1], 0")
    g.e("s_load_dwordx4 s[8:11], s[0:1], 16")
    g.e("s_load_dwordx2 s[12:13], s[0:1], 32")
    g.e("s_load_dwordx2 s[14:15], s[0:1], 56")
    g.e("s_load_dwordx2 s[18:19], s[0:1], 96")
    g.e("s_load_dwordx2 s[16:17], s[0:1], 104")
    g.e("v_lshrrev_b32 v1, 6, v0")
    g.e("s_lshr_b32 s49, s2, 3")
    g.e("s_and_b32 s41, s2, 1")
    g.e("v_readfirstlane_b32 s40, v1")
    g.e("s_lshl_b32 s41, s41, 2")
    g.e("s_and_b32 s50, s49, 3")
    g.e("s_add_u32 s41, s41, s50")
    g.e("s_and_b32 s3, s2, 6")
    g.e("s_lshl_b32 s3, s3, 2")
    g.e("s_lshr_b32 s49, s49, 2")
    g.e("s_add_u32 s3, s3, s49")
    if MIX:
        cst = [sum(v << (8 * i) for i, v in enumerate(row)) for row in GMAP]
        g.e("s_bitcmp1_b32 s2, 1")
        g.e(f"s_cselect_b32 s44, {cst[1] & 0xffffffff}, {cst[0] & 0xffffffff}") if False else None
        for k, (lo, hi) in enumerate(((44, 45), (46, 47))):
            g.e(f"s_mov_b32 s{lo}, {cst[2 * k] & 0xffffffff}")
            g.e(f"s_mov_b32 s{hi}, {cst[2 * k] >> 32}")
            g.e(f"s_cmov_b32 s{lo}, {cst[2 * k + 1] & 0xffffffff}")
            g.e(f"s_cmov_b32 s{hi}, {cst[2 * k + 1] >> 32}")
        g.e("s_bitcmp1_b32 s2, 2")
        g.e("s_cselect_b64 s[44:45], s[46:47], s[44:45]")
        g.e("s_lshl_b32 s49, s49, 3")
        g.e("s_lshr_b64 s[44:45], s[44:45], s49")
        g.e("s_and_b32 s3, s44, 31")
    g.e("s_waitcnt lgkmcnt(0)")
    g.e(f"s_add_u32 s100, s16, {WS_FL}")
    g.e("s_addc_u32 s101, s17, 0")
    if MERGE:
        sk = g.newlabel("nonce")
        g.e("s_or_b32 s49, s2, s40")
        g.e(f"s_cbranch_scc1 {sk}")
        g.e("s_memrealtime s[50:51]")
        g.e("v_mov_b32 v2, 20")
        g.e("s_waitcnt lgkmcnt(0)")
        g.e("s_or_b32 s49, s50, 1")
        g.e("v_mov_b32 v3, s49")
        g.e("s_mov_b64 exec, 1")
        g.e("global_store_dword v2, v3, s[18:19] sc1")
        g.e("s_mov_b64 exec, -1")
        g.label(sk)
    g.e(f"s_cmp_lt_u32 s3, {GKV}")
    g.e("s_cbranch_scc1 L_k1_K")
    g.e(f"s_cmp_lt_u32 s3, {2 * GKV}")
    g.e("s_cbranch_scc1 L_k1_V")
    g.e(f"s_cmp_lt_u32 s3, {2 * GKV + 3}")
    g.e("s_cbranch_scc1 L_k1_Z1")
    g.e("s_branch L_k1_Z2")
    g.label("L_k1_end")
    g.e("s_endpgm")
    for T in ("K", "V", "Z1", "Z2"):
        gen_type(g, T)
```

```python
from asmlib import *
import k1
from k1 import w_voffsets, tr_bases, xreg, areg, WR, D
import math

QSCALE = 128 ** -0.5 * math.log2(math.e)
STASH = 131072
DSP = int(os.environ.get('DSP', '3')); EB = int(os.environ.get('EB', '14'))
XPRE = int(os.environ.get('XPRE', '4'))
PS = int(os.environ.get('PS', '0'))
NTSP = os.environ.get('NTSP', '')
PF2 = int(os.environ.get('PF2', '0'))
KINS = int(os.environ.get('KINS', '0'))
NTAIL = int(os.environ.get('NTAIL', '0'))
STF2 = os.environ.get('STF2', 'sc1')
PFS = int(os.environ.get('PFS', '54'))
STFX = os.environ.get('STFX', 'sc1'); STFU = os.environ.get('STFU', 'sc1' if MERGE == 2 else '')
XSCH = eval(os.environ.get('XSCH', '(4, 8, 12, 16, 28, 34, 40, 46, 56, 62, 68, 74)'))
PF4 = int(os.environ.get('PF4', '1'))
SLA = int(os.environ.get('SLA', '8')); SLS = int(os.environ.get('SLS', '10'))
SPT = int(os.environ.get('SPT', '0'))
NTWQ = os.environ.get('NTWQ', '')
NPART = 3
VF, VNEG, VL, VT, V16, VLT = 1, 3, 4, 6, 7, 8
NEGM, PR, TMP, OR, FR = 16, 24, 40, 128, 192
ML, FA, FB = 52, 56, 58
def sreg(kt, qb): return 72 + 16 * kt + 4 * qb
def preg(qb, kg): return PR + (qb * 2 + kg) * 4
def qreg(qb, mm): return 64 + 16 * mm + 4 * qb
def oreg(cb, qb): return OR + (cb * 2 + qb) * 4
def freg(j): return FR + j * 4

def merge_streams(main, fill, start=0):
    out = []
    n = len(main) - start
    acc = 0.0
    fill = list(fill)
    per = len(fill) / max(1, n)
    for i, m in enumerate(main):
        out.append(m)
        if i >= start:
            acc += per
            while fill and acc >= 0.999:
                out.append(fill.pop(0)); acc -= 1.0
    return out + fill

def dma4(g, so, first_m0=None, tag=None):
    ops = []
    for j in range(4):
        def op(j=j):
            if j == 0 and first_m0:
                g.e(first_m0); g.e("s_nop 0")
            g.vmem(f"buffer_load_dwordx4 v{V16}, s[28:31], s{so} offen offset:{j * 1024} {SC} lds", tag)
        ops.append(op)
    return ops

def next_ops(t):
    return [[f"s_and_b32 s19, s{t}, 3"], ["s_lshl_b32 s19, s19, 15"],
            ["s_xor_b32 s50, s19, 0x10000"], ["s_add_u32 s50, s50, s55"],
            [f"s_add_u32 s49, s{t}, 2"], ["s_lshl_b32 s51, s49, 14"], ["s_add_u32 s51, s51, s54"],
            ["s_cmp_lt_u32 s49, s48", "s_cselect_b32 s51, s51, s54"],
            [f"s_cmp_lt_u32 s{t}, s45", "s_cselect_b32 s49, s41, 0"],
            ["s_lshl_b32 s7, s49, 14"], ["s_add_u32 m0, s50, s7"], ["s_lshl_b32 s49, s49, 24"],
            ["s_add_u32 s7, s51, s49"], [f"s_add_u32 s51, s51, {16 * MB}"]]

def softmax_ops(g):
    ops = []
    I = lambda s: ops.append(lambda s=s: g.e(s))
    T = [TMP + i for i in range(8)]
    k = 0
    for kt in range(4):
        for qb in range(2):
            s = sreg(kt, qb); t = T[(k % 2) * 4:(k % 2) * 4 + 4]; k += 1
            for r in range(4): I(f"v_exp_f32 v{t[r]}, v{s + r}")
            p = preg(qb, kt >> 1) + (kt & 1) * 2
            if kt == 0:
                I(f"v_add_f32 v{VLT + qb}, v{t[0]}, v{t[1]}")
                I(f"PK {p},{t[0]},{t[1]}")
                I(f"v_add_f32 v{VLT + qb}, v{VLT + qb}, v{t[2]}")
                I(f"PK {p + 1},{t[2]},{t[3]}")
                I(f"v_add_f32 v{VLT + qb}, v{VLT + qb}, v{t[3]}")
            else:
                I(f"v_add_f32 v{VLT + qb}, v{VLT + qb}, v{t[0]}")
                I(f"v_add_f32 v{VLT + qb}, v{VLT + qb}, v{t[1]}")
                I(f"PK {p},{t[0]},{t[1]}")
                I(f"v_add_f32 v{VLT + qb}, v{VLT + qb}, v{t[2]}")
                I(f"v_add_f32 v{VLT + qb}, v{VLT + qb}, v{t[3]}")
                I(f"PK {p + 1},{t[2]},{t[3]}")
    return ops

def xgroup(g, regs, op, tmp):
    for sw in ("v_permlane32_swap_b32", "v_permlane16_swap_b32"):
        for i, r in enumerate(regs): g.e(f"v_mov_b32 v{tmp + i}, v{r}")
        g.e("s_nop 1")
        for i, r in enumerate(regs): g.e(f"{sw} v{tmp + i}, v{r}")
        g.e("s_nop 1")
        for i, r in enumerate(regs): g.e(f"{op} v{r}, v{r}, v{tmp + i}")

def rescale(g, first):
    MX = [TMP + 8, TMP + 9]
    for qb in range(2):
        vals = [sreg(kt, qb) + r for kt in range(4) for r in range(4)]
        g.e(f"v_max3_f32 v{MX[qb]}, v{vals[0]}, v{vals[1]}, v{vals[2]}")
        for i in range(3, 15, 2): g.e(f"v_max3_f32 v{MX[qb]}, v{MX[qb]}, v{vals[i]}, v{vals[i + 1]}")
        g.e(f"v_max_f32 v{MX[qb]}, v{MX[qb]}, v{vals[15]}")
    xgroup(g, MX, "v_max_f32", TMP + 10)
    if not first:
        for qb in range(2): g.e(f"v_max_f32 v{MX[qb]}, 0, v{MX[qb]}")
    for kt in range(4):
        for qb in range(2):
            for r in range(4): g.e(f"v_sub_f32 v{sreg(kt, qb) + r}, v{sreg(kt, qb) + r}, v{MX[qb]}")
    for qb in range(2):
        for r in range(4): g.e(f"v_sub_f32 v{NEGM + qb * 4 + r}, v{NEGM + qb * 4 + r}, v{MX[qb]}")
    if not first:
        for qb in range(2): g.e(f"v_exp_f32 v{MX[qb]}, -v{MX[qb]}")
        g.e("s_nop 0")
        for cb in range(8):
            for qb in range(2):
                for r in range(4): g.e(f"v_mul_f32 v{oreg(cb, qb) + r}, v{oreg(cb, qb) + r}, v{MX[qb]}")
        for qb in range(2): g.e(f"v_mul_f32 v{VL + qb}, v{VL + qb}, v{MX[qb]}")

def mask_block(g):
    skip = g.newlabel("nomask"); l1 = g.newlabel("m1"); lf = g.newlabel("mf"); do = g.newlabel("domask")
    g.e("s_add_u32 s49, s52, 2")
    g.e("s_cmp_ge_u32 s49, s48")
    g.e(f"s_cbranch_scc1 {do}")
    g.e("s_sub_u32 s49, s52, s46")
    g.e("s_cmp_lt_u32 s49, 2")
    g.e(f"s_cbranch_scc0 {skip}")
    g.label(do)
    g.e("s_and_b32 s49, s52, 1")
    g.e("s_lshl_b32 s49, s49, 1")
    g.e("s_sub_u32 s49, s42, s49")
    def diag(kt, qb):
        for r in range(4): g.e(f"v_cndmask_b32 v{sreg(kt, qb) + r}, v{VNEG}, v{sreg(kt, qb) + r}, s[{8 + 2 * r}:{9 + 2 * r}]")
    def full(kt, qb):
        for r in range(4): g.e(f"v_mov_b32 v{sreg(kt, qb) + r}, v{VNEG}")
    g.e("s_cmp_ge_i32 s49, 2")
    g.e(f"s_cbranch_scc1 {skip}")
    g.e("s_cmp_eq_i32 s49, 1")
    g.e(f"s_cbranch_scc1 {l1}")
    g.e("s_cmp_lt_i32 s49, 0")
    g.e(f"s_cbranch_scc1 {lf}")
    diag(0, 0); full(1, 0); diag(1, 1); full(2, 0); full(2, 1); full(3, 0); full(3, 1)
    g.e(f"s_branch {skip}")
    g.label(l1)
    diag(2, 0); full(3, 0); diag(3, 1)
    g.e(f"s_branch {skip}")
    g.label(lf)
    for kt in range(4):
        for qb in range(2): full(kt, qb)
    g.label(skip)

def m_phase(g, has_pv, zero, split, post=None, pre=None):
    g.vm = []
    if has_pv: g.e("s_barrier")
    dma = dma4(g, 7) + (dma4(g, 51, "s_add_u32 m0, s50, 16384") if split else [])
    sal = [["s_add_u32 s49, s52, 2"], ["s_cmp_ge_u32 s49, s48", "s_cselect_b32 s4, 0, 4"], ["s_sub_u32 s49, s52, s46"], ["s_min_u32 s4, s4, s49"],
           ["s_cmp_lt_u32 s52, s53", "s_cselect_b32 s47, 1, 2"], ["s_add_u32 s47, s47, s52"]]
    sal2 = next_ops(47)
    if has_pv:
        g.ds = []
        sp = DSP if split else 4
        for j in range(16):
            kg, cb = j >> 3, j & 7
            for qb in range(2):
                g.e(f"{'MZ' if zero and kg == 0 else 'M'} {oreg(cb, qb)},{freg(j)},{preg(qb, kg)}")
                if qb == 0 and j >= 1: g.lds(f"DR {freg(j - 1)},{VF},{(j - 1) * 1024}", ("k", j - 1))
            if dma and j % sp == 0: dma.pop(0)()
            elif sal:
                for t in sal.pop(0): g.e(t)
        g.lds(f"DR {freg(15)},{VF},{15 * 1024}", ("k", 15))
    else:
        sp = 2
    PT = int(os.environ.get('PT', '5'))
    if has_pv and not zero: g.stamp_if(7, 52, PT)
    tail = []
    so = softmax_ops(g)[:NTAIL]
    for b in range(0, NTAIL, 9):
        o = so[b:b + 9]
        tail += [[o[0]], [o[1]], [o[2]], [o[3]], o[4:6], o[6:8], o[8:9]]
    for j in range(16):
        kt, mm = j >> 2, j & 3
        if j == EB:
            if pre: pre()
            g.wait_ds(("k", 15))
            if has_pv and not zero: g.stamp_if(8, 52, PT)
            if has_pv: g.e(f"s_waitcnt vmcnt({8 if split else 4})")
            g.e("s_setprio 2")
            g.e("s_barrier")
        if j == 0: g.wait_ds(("k", 10))
        if j == 5: g.wait_ds(("k", 15))
        for qb in range(2):
            if mm == 0: g.e(f"MC {sreg(kt, qb)},{freg(j)},{qreg(qb, mm)},{NEGM + qb * 4}")
            else: g.e(f"M {sreg(kt, qb)},{freg(j)},{qreg(qb, mm)}")
            if qb == 0 and j >= 1: g.lds(f"DR {freg(j - 1)},{VF},{16384 + (j - 1) * 1024}", "v")
            if j >= EB and tail:
                for op in tail.pop(0): op()
            if not has_pv and j >= EB and dma: dma.pop(0)()
            elif has_pv and qb == 1 and dma and (j + 16) % sp == 0: dma.pop(0)()
            elif qb == 1 and sal:
                for t in sal.pop(0): g.e(t)
            elif not sal and not dma and sal2:
                for t in sal2.pop(0): g.e(t)
    while dma: dma.pop(0)()
    assert not sal
    if post: post()
    for grp in sal2:
        for t in grp: g.e(t)
    g.lds(f"DR {freg(15)},{VF},{16384 + 15 * 1024}", "v")
    g.e("s_setprio 0")
    for w in tail:
        for op in w: op()
    g.vm = []; g.ds = []
    if has_pv:
        g.e("s_cmp_lt_u32 s4, 4")
        g.e("s_cbranch_scc1 L_k2_sgen")
    else:
        g.e("s_branch L_k2_sgen")

def advance(g):
    g.e("s_mov_b32 s52, s47")
    g.e(f"v_add_u32 v{VF}, s19, v{V16}")

def role_ops(dh, dg, dx, dy, t1, t2):
    return [f"s_lshr_b32 s{dg}, s2, 3", f"s_mul_i32 s{t1}, s{dg}, 37", f"s_lshr_b32 s{t1}, s{t1}, 8", f"s_mul_i32 s{t2}, s{t1}, 7",
            f"s_sub_u32 s{dg}, s{dg}, s{t2}", f"s_lshl_b32 s{t1}, s{t1}, 3", f"s_and_b32 s{dh}, s2, 7", f"s_add_u32 s{dh}, s{dh}, s{t1}",
            f"s_sub_u32 s{dx}, 15, s{dg}", f"s_add_u32 s{dy}, s{dg}, 4", f"s_cmp_eq_u32 s{dg}, 6",
            f"s_cselect_b32 s{dx}, 3, s{dx}", f"s_cselect_b32 s{dy}, 2, s{dy}"]

def gen_attn(g):
    def setup(fast):
        for t in role_ops(43, 44, 32, 33, 49, 50): g.e(t)
        g.e("s_lshr_b32 s41, s40, 2")
        g.e("s_and_b32 s42, s40, 3")
        g.e("s_lshl_b32 s49, s3, 20")
        g.e("s_add_u32 s60, s6, s49")
        g.e("s_addc_u32 s61, s7, 0")
        g.e(f"s_mov_b32 s62, {MB}")
        g.e("s_mov_b32 s63, 0x20000")
        if fast: srd(g, 20, 8, 9, 512 * 8192)
        else: srd(g, 20, 4, 5, 512 * 8192)
        srd(g, 24, 16, 17, SZ_XN, WS_XN)
        srd(g, 28, 16, 17, 2 * SZ_KV, WS_K)
        srd(g, 36, 16, 17, SZ_CTX, WS_CTX)
        g.e("s_lshl_b32 s55, s42, 12")
        g.e("s_lshl_b32 s54, s43, 19")
        g.e("s_add_u32 s54, s54, s55")
        g.e("s_lshl_b32 s57, s42, 13")
        g.e(f"s_add_u32 s57, s57, {STASH}")
        g.e("v_and_b32 v28, 63, v0")
        g.e(f"v_lshlrev_b32 v{V16}, 4, v28")
        g.e("v_and_b32 v28, 15, v0")
        g.e("v_bfe_u32 v29, v0, 4, 2")
        g.e("v_lshlrev_b32 v29, 2, v29")
        g.e("v_sub_u32 v28, v28, v29")
        for r in range(4): g.e(f"v_cmp_le_i32 s[{8 + 2 * r}:{9 + 2 * r}], {r}, v28")
        if MERGE:
            g.e("s_mul_i32 s49, s43, 43")
            g.e("s_lshr_b32 s49, s49, 7")
            g.e("s_lshl_b32 s49, s49, 7")
            g.e("s_lshl_b32 s50, s3, 13")
            g.e("s_add_u32 s49, s49, s50")
            g.e("v_and_b32 v14, 15, v0")
            g.e("v_lshl_add_u32 v14, v14, 2, s49")
    def wdma(s):
        g.e(f"s_add_u32 s51, s18, {s * 128 * 8192}")
        g.e(f"s_add_u32 m0, s19, {s * 32768}")
        g.e("s_nop 0")
        for j in range(4):
            g.vmem(f"buffer_load_dwordx4 v{1 + j}, s[20:23], s51 offen offset:{j * 1024} {NTWQ} lds", ("w", s))
    def xload(m):
        if m % 4 == 0:
            g.e(f"s_add_u32 s6, s47, {m * 1024}")
            g.e(f"s_add_u32 s7, s47, {m * 1024 + 16384}")
        for a in range(2):
            x = xreg(a, m)
            g.vmem(f"buffer_load_dwordx4 v[{x}:{x + 3}], v{V16}, s[24:27], s{6 + a} offen offset:{(m % 4) * 1024} {SC}", ("x", m))
    def pf_wsp():
        sk = g.newlabel("nopf")
        g.e("s_cmp_eq_u32 s32, 1")
        g.e(f"s_cbranch_scc1 {sk}")
        g.e("s_and_b32 s49, s2, 0xf8")
        g.e("s_add_u32 s49, s49, s40")
        g.e("s_mul_i32 s49, s49, 4736")
        g.e(f"v_lshlrev_b32 v10, 3, v{V16}")
        g.e("v_mov_b32 v12, 0x10000000")
        g.e("v_cmp_gt_u32 vcc, 4736, v10")
        g.e("s_nop 1")
        g.e("v_cndmask_b32 v11, v12, v10, vcc")
        g.e("buffer_load_dword v13, v11, s[60:63], s49 offen")
        if PF4:
            g.e("s_load_dwordx2 s[96:97], s[0:1], 40")
            g.e("s_load_dwordx2 s[98:99], s[0:1], 80")
            g.e("s_lshl_b32 s49, s2, 3")
            g.e("s_add_u32 s49, s49, s40")
            g.e("v_cmp_gt_u32 vcc, 2432, v10")
            g.e("s_mul_i32 s34, s49, 2432")
            g.e("s_lshl_b32 s35, s49, 9")
            g.e("v_cndmask_b32 v11, v12, v10, vcc")
            g.e("v_cmp_gt_u32 vcc, 512, v10")
            g.e("s_waitcnt lgkmcnt(0)")
            srd(g, 60, 96, 97, 4 * MB)
            g.e("buffer_load_dword v13, v11, s[60:63], s34 offen")
            g.e("v_cndmask_b32 v11, v12, v10, vcc")
            srd(g, 60, 98, 99, 896 * 1024)
            g.e("buffer_load_dword v13, v11, s[60:63], s35 offen")
        g.label(sk)
    def first_tile(t):
        g.e("s_lshl_b32 s49, s41, 24")
        g.e("s_add_u32 s50, s54, s49")
        if t: g.e("s_add_u32 s50, s50, 16384")
        return dma4(g, 50, f"s_add_u32 m0, s19, {t * 32768}", "kv")
    def w0_only(fn):
        sk = g.newlabel("w0")
        g.e("s_cmp_eq_u32 s32, 1")
        g.e("s_cselect_b32 s49, 1, s40")
        g.e("s_cmp_lg_u32 s49, 0")
        g.e(f"s_cbranch_scc1 {sk}")
        fn()
        g.label(sk)
    def fmap(s, f):
        return (f >> 4, (f >> 2) & 3, f & 3) if s == 3 else ((f >> 2) & 1, f >> 3, f & 3)
    def qpack(p):
        ops = []
        I = lambda s: ops.append(lambda s=s: g.e(s))
        for a in range(2):
            for mm in range(2):
                x, y = areg(p, 2 * mm, a), areg(p, 2 * mm + 1, a)
                assert x == qreg(a, 2 * p + mm)
                for r in range(4): I(f"v_mul_f32 v{x + r}, s56, v{x + r}")
                for r in range(4): I(f"v_mul_f32 v{y + r}, s56, v{y + r}")
                I(f"PK {x},{x},{x + 1}"); I(f"PK {x + 1},{x + 2},{x + 3}")
                I(f"PK {x + 2},{y},{y + 1}"); I(f"PK {x + 3},{y + 2},{y + 3}")
        return ops
    def qphase(fast):
        if not fast: w_voffsets(g, 8192, 1)
        g.e("s_lshl_b32 s18, s43, 8")
        g.e("s_lshl_b32 s49, s42, 18")
        g.e("s_add_u32 s18, s18, s49")
        g.e("s_lshl_b32 s49, s41, 7")
        g.e("s_add_u32 s18, s18, s49")
        g.e("s_lshl_b32 s19, s40, 12")
        g.e("s_cmp_eq_u32 s41, 0")
        g.e("s_cselect_b32 s47, s32, s33")
        g.e("s_lshl_b32 s47, s47, 17")
        g.e("s_lshl_b32 s49, s42, 15")
        g.e("s_add_u32 s47, s47, s49")
        if PROF == 1: g.stamp(6)
        if not fast:
            wdma(0)
            for m in range(2): xload(m)
            if not MERGE: code_touch(g, 96, 14, "L_k2_sp")
            g.e("s_barrier")
            for m in range(2, 4): xload(m)
            later = {0: lambda: wdma(1), 22: lambda: wdma(2), 50: lambda: wdma(3)}
            for m, F in zip(range(4, 16), XSCH): later[F] = lambda m=m: xload(m)
            tr_bases(g, 5, 6)
            FS, FL = 0, 20
        else:
            later = {0: lambda: wdma(2), 30: lambda: wdma(3)}
            for m, F in zip(range(8, 16), (4, 10, 16, 22, 36, 42, 52, 60)): later[F] = lambda m=m: xload(m)
            g.e("v_xor_b32 v5, 0x10000, v5")
            g.e("v_xor_b32 v6, 0x10000, v6")
            g.e("v_mov_b32 v13, 0")
            FS, FL = 1, 46
        g.e(f"s_mov_b32 s56, {f32(QSCALE)}")
        g.e("s_lshl_b32 s48, s32, 1")
        g.e("s_add_u32 s48, s48, 2")
        g.e("s_lshl_b32 s45, s33, 1")
        g.e("s_add_u32 s45, s45, 2")
        g.e("s_sub_u32 s53, s45, s41")
        g.e("s_sub_u32 s46, s45, 2")
        g.e("s_cmp_eq_u32 s41, 0")
        g.e("s_cselect_b32 s46, 0x1000, s46")
        g.stamp(1)
        if MERGE: later[FL] = lambda: w0_only(lambda: flag_load(g, 13, 14, 100))
        def wread(F, half=None):
            s, f = F >> 5, F & 31
            if s >= 4: return
            if f == 0 and half != 1:
                g.wait_vm(("w", s), "kv", *(["st"] if s == FS else []))
                if MERGE and s == 2: w0_only(lambda: flag_wait(g, 13, 14, 59, 100, SLA, True))
                g.e("s_barrier")
                if MERGE and s == FS: w0_only(lambda: flag_set(g, 10, 58, 59, 100))
                if s == 2:
                    g.e("v_xor_b32 v5, 0x10000, v5")
                    g.e("v_xor_b32 v6, 0x10000, v6")
                if s >= 2:
                    for op in first_tile(s - 2): op()
            p, ks, cb = fmap(s, f)
            mp = p * 4 + ks
            r = WR + (F % 8) * 4
            for a in (range(2) if half is None else [half]):
                o = (s & 1) * 32768 + mp * 4096 + a * 512 + (cb >> 1) * 256
                g.lds(f"TR {r + 2 * a},{6 if cb & 1 else 5},{o}", ("w", F))
        for F in range(D): wread(F)
        fill = []
        for s in range(4):
            if PROF == 1: g.stamp(7 + s)
            for f in range(32):
                F = s * 32 + f
                p, ks, cb = fmap(s, f)
                m = s * 4 + ks
                if F == 116: fill = qpack(0)
                if p == 0 and cb == 0: g.wait_vm(("x", m))
                g.wait_ds(("w", F))
                r = WR + (F % 8) * 4
                for a in range(2):
                    g.e(f"{'MZ' if m == 0 else 'M'} {areg(p, cb, a)},{r},{xreg(a, m)}")
                    wread(F + D, a)
                    if fill: fill.pop(0)(); fill.pop(0)()
                if F in later: later.pop(F)()
        assert not fill and not later
    if k1.QFAST:
        g.label("L_p2f")
        g.stamp(0)
        if PROF: g.e("s_memrealtime s[94:95]")
        g.vm = list(k1.FAST_VM); g.ds = []
        g.e("s_and_b32 s3, s2, 7")
        setup(True)
        qphase(True)
        g.e("s_branch L_k2_qend")
    g.vm = []; g.ds = []
    g.label("L_k2_attn")
    setup(False)
    if MERGE: g.e("s_barrier")
    g.label("L_k2_round")
    qphase(False)
    g.label("L_k2_qend")
    g.stamp(2)
    g.e("s_mov_b32 s47, 0")
    for grp in next_ops(47):
        for t in grp: g.e(t)
    advance(g)
    g.vm = []; g.ds = []
    for j in range(16): g.e(f"DR {freg(j)},{VF},{j * 1024}")
    for op in qpack(1): op()
    g.e(f"v_mov_b32 v{VNEG}, {f32(-1e30)}")
    g.e(f"s_mov_b32 s56, {f32(2.0 ** 30)}")
    g.e(f"s_mov_b32 s6, {f32(2.0 ** -30)}")
    for i in range(8): g.e(f"v_mov_b32 v{NEGM + i}, 0")
    g.e(f"v_add_u32 v9, s57, v{V16}")
    g.e("s_waitcnt vmcnt(0) lgkmcnt(0)")
    g.stamp(3)
    la = g.newlabel("qa")
    g.e("s_cmp_eq_u32 s41, 0")
    g.e(f"s_cbranch_scc1 {la}")
    g.e("s_barrier")
    g.label(la)
    def post0():
        if PFS: pf_wsp()
    def pre0():
        sk = g.newlabel("nost")
        g.e("s_cmp_eq_u32 s41, 0")
        g.e(f"s_cbranch_scc0 {sk}")
        for qb in range(2):
            for mm in range(4): g.e(f"DW 9,{qreg(qb, mm)},{(qb * 4 + mm) * 1024}")
        g.label(sk)
    m_phase(g, False, False, False, post0, pre0)
    def s_fast(tag):
        g.label(f"L_k2_s{tag}")
        PT = int(os.environ.get('PT', '5'))
        g.stamp_if(9, 52, PT)
        for op in softmax_ops(g)[NTAIL:]: op()
        g.e(f"v_max_f32 v{VT}, v{VLT}, v{VLT + 1}")
        g.e(f"v_cmp_lt_f32 vcc, s56, v{VT}")
        g.e("s_cbranch_vccnz L_k2_sgen")
        for qb in range(2): g.e(f"v_add_f32 v{VL + qb}, v{VL + qb}, v{VLT + qb}")
        g.stamp_if(10, 52, PT)
        if PROF == 2:
            g.e("s_waitcnt vmcnt(0) lgkmcnt(0)")
            g.stamp_if(11, 52, PT)
        advance(g)
        if tag == "sh": g.e("s_cmp_lt_u32 s52, s45")
        g.e("s_waitcnt lgkmcnt(0)" if tag == "sh" else "s_waitcnt vmcnt(0) lgkmcnt(0)")
    s_fast("sh")
    g.e("s_cbranch_scc0 L_k2_msp")
    g.label("L_k2_msh")
    g.stamp_if(6, 52, int(os.environ.get('PT', '5'))); g.stamp_if(12, 52, int(os.environ.get('PT', '5')) + 1)
    m_phase(g, True, False, False)
    g.e("s_branch L_k2_ssh")
    s_fast("sp")
    g.label("L_k2_msp")
    m_phase(g, True, False, True)
    g.e("s_branch L_k2_ssp")
    g.label("L_k2_mzsh")
    m_phase(g, True, True, False)
    g.e("s_branch L_k2_ssh")
    g.label("L_k2_mzsp")
    m_phase(g, True, True, True)
    g.e("s_branch L_k2_ssp")
    EXP = os.environ.get('ATEXP', '')
    if EXP:
        i0 = g.lines.index("L_k2_ssh:")
        keep = []
        for l in g.lines[i0:]:
            if 'd' in EXP and l.startswith('buffer_load'): continue
            if 'r' in EXP and l.startswith('DR '): continue
            if 'e' in EXP and l.startswith('v_exp'): l = l.replace('v_exp_f32', 'v_mov_b32')
            if 'v' in EXP and (l.startswith('v_exp') or l.startswith('PK') or (l.startswith('v_add_f32 v8') or l.startswith('v_add_f32 v9'))): continue
            if 'b' in EXP and l.startswith('s_cbranch_vccnz'): continue
            keep.append(l)
        g.lines[i0:] = keep
    def ctx_base(blk):
        g.e(f"s_lshl_b32 s49, s{blk}, 3")
        g.e("s_lshl_b32 s35, s42, 1")
        g.e("s_add_u32 s49, s49, s35")
        g.e("s_mul_i32 s49, s49, 159744")
        g.e("s_lshl_b32 s35, s43, 12")
        g.e("s_add_u32 s34, s49, s35")
        g.e("s_add_u32 s35, s34, 159744")
    def pack_store(mm, qb, fl=STF2):
        x, y = oreg(2 * mm, qb), oreg(2 * mm + 1, qb)
        return [f"PK {x},{x},{x + 1}", f"PK {x + 1},{x + 2},{x + 3}", f"PK {x + 2},{y},{y + 1}", f"PK {x + 3},{y + 2},{y + 3}",
                f"buffer_store_dwordx4 v[{x}:{x + 3}], v{V16}, s[36:39], s{34 + qb} offen offset:{mm * 1024} {fl}"]
    g.label("L_k2_sgen")
    def st5(i, val):
        if PROF == 5:
            l = g.newlabel("st"); g.e(f"s_cmp_lg_u32 s52, {val}"); g.e(f"s_cbranch_scc1 {l}"); g.stamp(i); g.label(l)
    st5(4, 0); st5(7, 8); st5(9, 9); st5(11, 11)
    if PROF == 5: g.stamp(13)
    g.e("s_sub_u32 s49, s52, s46")
    g.e("s_cmp_eq_u32 s49, 3")
    g.e("s_cselect_b32 s5, 2, 0")
    g.e("s_cmp_eq_u32 s52, 0")
    g.e("s_cselect_b32 s5, 1, s5")
    g.e("s_cselect_b32 s18, s6, 0")
    g.e("s_cmp_eq_u32 s5, 2")
    g.e("s_cselect_b32 s18, s6, s18")
    mask_block(g)
    ny = g.newlabel("ny"); jy = g.newlabel("jy")
    g.e("s_cmp_eq_u32 s5, 2")
    g.e(f"s_cbranch_scc0 {ny}")
    ctx_base(33)
    so = softmax_ops(g)
    k = 0
    for mm in range(4):
        for qb in range(2):
            for cb in (2 * mm, 2 * mm + 1):
                for r in range(4): g.e(f"v_mul_f32 v{oreg(cb, qb) + r}, v{oreg(cb, qb) + r}, v{FA + qb}")
            for t in pack_store(mm, qb): g.e(t)
            n = 9 if k < 2 else 10
            for op in so[:n]: op()
            so = so[n:]; k += 1
    assert not so
    g.e(f"s_branch {jy}")
    g.label(ny)
    for op in softmax_ops(g): op()
    g.label(jy)
    g.e(f"v_max_f32 v{VT}, v{VLT}, v{VLT + 1}")
    g.e(f"v_min_f32 v{TMP}, v{VLT}, v{VLT + 1}")
    g.e(f"v_cmp_lt_f32 vcc, s56, v{VT}")
    g.e("s_cbranch_vccnz L_k2_slow")
    g.e(f"v_cmp_gt_f32 vcc, s18, v{TMP}")
    g.e("s_cbranch_vccnz L_k2_slow")
    g.label("L_k2_back")
    nf = g.newlabel("nf")
    g.e("s_cmp_eq_u32 s5, 0")
    g.e(f"s_cbranch_scc1 {nf}")
    for qb in range(2): g.e(f"v_mov_b32 v{VL + qb}, 0")
    g.label(nf)
    for qb in range(2): g.e(f"v_add_f32 v{VL + qb}, v{VL + qb}, v{VLT + qb}")
    g.e("s_add_u32 s49, s52, 2")
    g.e("s_cmp_ge_u32 s49, s48")
    g.e("s_cbranch_scc1 L_k2_xlast")
    nl = g.newlabel("nyl")
    g.e("s_sub_u32 s49, s52, s46")
    g.e("s_cmp_eq_u32 s49, 1")
    g.e(f"s_cbranch_scc0 {nl}")
    g.e(f"v_add_u32 v10, s57, v{V16}")
    for qb in range(2):
        for mm in range(4): g.e(f"DR {qreg(qb, mm)},10,{(qb * 4 + mm) * 1024}")
    xgroup(g, [VL, VL + 1], "v_add_f32", TMP + 2)
    for qb in range(2): g.e(f"v_rcp_f32 v{FA + qb}, v{VL + qb}")
    for i in range(8): g.e(f"v_mov_b32 v{NEGM + i}, 0")
    g.label(nl)
    st5(6, 0); st5(8, 8); st5(10, 9); st5(12, 11)
    advance(g)
    g.e("s_cmp_lt_u32 s52, s45")
    g.e("s_cselect_b32 s49, 0, 4")
    g.e("s_add_u32 s5, s5, s49")
    w8 = g.newlabel("w8")
    g.e("s_and_b32 s49, s5, 3")
    g.e(f"s_cbranch_scc1 {w8}")
    g.e("s_waitcnt vmcnt(0)")
    g.label(w8)
    g.e("s_waitcnt vmcnt(8) lgkmcnt(0)")
    g.e("s_cmp_eq_u32 s5, 0")
    g.e("s_cbranch_scc1 L_k2_msh")
    g.e("s_cmp_eq_u32 s5, 4")
    g.e("s_cbranch_scc1 L_k2_msp")
    g.e("s_cmp_eq_u32 s5, 1")
    g.e("s_cbranch_scc1 L_k2_mzsh")
    g.e("s_branch L_k2_mzsp")
    g.label("L_k2_xlast")
    if PROF == 5: g.stamp(14)
    g.e("s_and_b32 s49, s48, 3")
    g.e("s_lshl_b32 s49, s49, 15")
    g.e("s_lshl_b32 s50, s42, 13")
    g.e("s_add_u32 s50, s50, s49")
    g.e(f"v_add_u32 v11, s50, v{V16}")
    g.e(f"v_add_u32 v10, s57, v{V16}")
    g.e("s_xor_b32 s49, s49, 0x10000")
    g.e("s_lshl_b32 s50, s42, 10")
    g.e("s_add_u32 s49, s49, s50")
    g.e(f"v_add_u32 v{VT}, s49, v{V16}")
    xaddr = lambda i: (10 + (i >> 3), (i & 7) * 1024)
    def pvgroup(cb, zero, mid=()):
        mid = list(mid)
        for kg in range(2):
            for qb in range(2):
                g.e(f"{'MZ' if zero and kg == 0 else 'M'} {oreg(cb, qb)},{freg(kg * 8 + cb)},{preg(qb, kg)}")
                n = -(-len(mid) // (4 - (kg * 2 + qb)))
                for _ in range(n): mid.pop(0)()
    g.e("s_cmp_eq_u32 s41, 0")
    g.e("s_cbranch_scc0 L_k2_xlastB")
    g.e(f"v_mov_b32 v{ML}, v{NEGM}")
    g.e(f"v_mov_b32 v{ML + 1}, v{NEGM + 4}")
    g.e(f"v_mov_b32 v{ML + 2}, v{VL}")
    g.e(f"v_mov_b32 v{ML + 3}, v{VL + 1}")
    g.e(f"DW {VT},{ML},0")
    g.e("s_waitcnt vmcnt(0) lgkmcnt(0)")
    g.e("s_barrier")
    dw = lambda i: (lambda: g.e(f"DW {xaddr(i)[0]},{OR + i * 4},{xaddr(i)[1]}"))
    for cb in range(8):
        pvgroup(cb, False, [dw(2 * cb - 6), dw(2 * cb - 5)] if cb >= 3 else [])
    for i in range(10, 12): dw(i)()
    g.e("s_nop 3")
    for i in range(12, 16): dw(i)()
    g.e("s_waitcnt lgkmcnt(0)")
    g.e("s_barrier")
    g.e("s_branch L_k2_rend")
    g.label("L_k2_xlastB")
    g.e(f"DR {ML},{VT},0")
    ctx_base(32)
    NM = TMP
    g.e("s_waitcnt lgkmcnt(0)")
    for qb in range(2): g.e(f"v_min_f32 v{NM + qb}, v{ML + qb}, v{NEGM + 4 * qb}")
    for qb in range(2): g.e(f"v_sub_f32 v{FA + qb}, v{NM + qb}, v{ML + qb}")
    for qb in range(2): g.e(f"v_sub_f32 v{FB + qb}, v{NM + qb}, v{NEGM + 4 * qb}")
    for i in range(4): g.e(f"v_exp_f32 v{FA + i}, v{FA + i}")
    g.e("s_nop 0")
    for qb in range(2): g.e(f"v_mul_f32 v{VL + qb}, v{VL + qb}, v{FB + qb}")
    for qb in range(2): g.e(f"v_fmac_f32 v{VL + qb}, v{ML + 2 + qb}, v{FA + qb}")
    xgroup(g, [VL, VL + 1], "v_add_f32", TMP + 2)
    for qb in range(2): g.e(f"v_rcp_f32 v{VL + qb}, v{VL + qb}")
    g.e("s_nop 0")
    for qb in range(2): g.e(f"v_mul_f32 v{FA + qb}, v{FA + qb}, v{VL + qb}")
    for qb in range(2): g.e(f"v_mul_f32 v{FB + qb}, v{FB + qb}, v{VL + qb}")
    lz = g.newlabel("finz")
    g.e("s_cmp_eq_u32 s5, 0")
    g.e(f"s_cbranch_scc0 {lz}")
    for zero in (False, True):
        if zero: g.label(lz)
        g.ds = []
        for cb in range(4): pvgroup(cb, zero)
        g.e("s_barrier")
        def merge_ops(mm):
            ops = []
            I = lambda t: ops.append(lambda t=t: g.e(t))
            for qb in range(2):
                for cb in (2 * mm, 2 * mm + 1):
                    o = oreg(cb, qb)
                    for r in range(4): I(f"v_mul_f32 v{o + r}, v{o + r}, v{FB + qb}")
                    ops.append(lambda cb=cb, qb=qb: g.wait_ds(("o", cb, qb)))
                    for r in range(4): I(f"v_fmac_f32 v{o + r}, v{freg(qb * 8 + cb) + r}, v{FA + qb}")
                for t in pack_store(mm, qb, STFX): I(t)
            return ops
        xr = lambda cb, qb: (lambda: g.lds(f"DR {freg(qb * 8 + cb)},{xaddr(cb * 2 + qb)[0]},{xaddr(cb * 2 + qb)[1]}", ("o", cb, qb)))
        for cb in range(3): xr(cb, 0)(); xr(cb, 1)()
        m0 = merge_ops(0)
        for cb in range(4, 8):
            mid = [xr(cb - 1, 0), xr(cb - 1, 1)]
            if cb == 6: mid += m0[:len(m0) // 2]
            if cb == 7: mid += m0[len(m0) // 2:]
            pvgroup(cb, zero, mid)
        xr(7, 0)(); xr(7, 1)()
        for op in merge_ops(1) + merge_ops(2) + merge_ops(3): op()
        if not zero: g.e("s_branch L_k2_rend")
    g.label("L_k2_rend")
    g.stamp(5)
    g.e("s_cmp_eq_u32 s32, 3")
    g.e("s_cbranch_scc0 L_k2_aend")
    g.stamp(4)
    g.e("s_mov_b32 s32, 1")
    g.e("s_mov_b32 s33, 0")
    g.e("s_waitcnt vmcnt(0) lgkmcnt(0)")
    g.e("s_barrier")
    g.e("s_branch L_k2_round")
    g.label("L_k2_aend")
    skc = g.newlabel("nocode")
    g.e("s_cmp_eq_u32 s44, 6")
    g.e(f"s_cbranch_scc0 {skc}")
    code_touch(g, 96, 14, "L_all_end", "L_p3", False)
    g.label(skc)
    if PF2:
        sk = g.newlabel("nopf")
        g.e("s_cmp_eq_u32 s44, 6")
        g.e(f"s_cbranch_scc0 {sk}")
        g.e("s_cmp_eq_u32 s41, 1")
        g.e(f"s_cbranch_scc0 {sk}")
        g.e("s_load_dwordx2 s[20:21], s[0:1], 40")
        g.e("s_load_dwordx2 s[28:29], s[0:1], 80")
        g.e("s_lshl_b32 s49, s43, 2")
        g.e("s_add_u32 s49, s49, s42")
        g.e(f"v_lshlrev_b32 v10, 3, v{V16}")
        g.e("s_lshl_b32 s50, s49, 15")
        g.e("s_mul_i32 s51, s49, 7168")
        g.e("s_waitcnt lgkmcnt(0)")
        g.e(f"s_mov_b32 s22, {4 * MB}")
        g.e("s_mov_b32 s23, 0x20000")
        g.e(f"s_mov_b32 s30, {896 * 1024}")
        g.e("s_mov_b32 s31, 0x20000")
        for i in range(4):
            g.e(f"buffer_load_dword v{12 + i}, v10, s[20:23], s50 offen")
            g.e("s_add_u32 s50, s50, 8192")
        g.e("buffer_load_dword v11, v10, s[28:31], s51 offen")
        g.label(sk)
    g.stamp_dump(16, 17, 40, 1)
    if MERGE == 2:
        g.e("s_lshl_b32 s58, s44, 2")
        g.e("s_bfe_u32 s49, s43, 0x20001")
        g.e("s_add_u32 s58, s58, s49")
        g.e("s_add_u32 s58, s58, 21")
        g.e("s_lshl_b32 s58, s58, 7")
        g.e("s_lshr_b32 s49, s43, 3")
        g.e("s_lshl_b32 s49, s49, 3")
        g.e("s_add_u32 s58, s58, s49")
        g.e("s_and_b32 s49, s43, 1")
        g.e("s_lshl_b32 s49, s49, 2")
        g.e("s_add_u32 s58, s58, s49")
        g.e("s_branch L_p3")
    else: g.e("s_endpgm")
    g.label("L_k2_slow")
    l1 = g.newlabel("slow1"); l2 = g.newlabel("slow2")
    g.e("s_cmp_eq_u32 s5, 0")
    g.e(f"s_cbranch_scc0 {l1}")
    rescale(g, False)
    g.e(f"s_branch {l2}")
    g.label(l1)
    rescale(g, True)
    g.label(l2)
    for op in softmax_ops(g): op()
    g.e("s_branch L_k2_back")

def gen_spatial(g):
    ACC, AR, BB, Z1R = 144, 116, 84, 24
    ZB, ZS = 98304, 14336
    VWD = 80
    acc = lambda fb, tt: ACC + (fb * 4 + tt) * 4
    g.vm = []; g.ds = []
    g.label("L_k2_sp")
    g.e("s_sub_u32 s44, s41, 28")
    g.e("s_and_b32 s42, s40, 3")
    g.e("s_lshr_b32 s41, s40, 2")
    srd(g, 20, 6, 7, 2048 * 4096)
    srd(g, 24, 16, 17, SZ_Z, WS_Z2)
    g.e("v_and_b32 v28, 63, v0")
    g.e(f"v_lshlrev_b32 v{V16}, 4, v28")
    g.e("v_bfe_u32 v28, v0, 3, 3")
    g.e("v_and_b32 v29, 7, v0")
    g.e("v_lshrrev_b32 v30, 1, v28")
    g.e("v_xor_b32 v29, v29, v30")
    g.e("s_lshl_b32 s49, s3, 8")
    g.e("s_lshl_b32 s50, s40, 5")
    g.e("s_add_u32 s49, s49, s50")
    g.e("v_add_u32 v28, s49, v28")
    g.e("v_lshlrev_b32 v28, 12, v28")
    g.e("v_xor_b32 v30, 4, v29")
    g.e("v_lshl_add_u32 v29, v29, 4, v28")
    g.e("v_lshl_add_u32 v30, v30, 4, v28")
    for j in range(4): g.e(f"v_add_u32 v{VWD + j}, {j * 8 * 4096 - j * 1024}, v{29 + (j & 1)}")
    g.e("s_lshl_b32 s48, s40, 1")
    g.e("s_min_u32 s48, s48, 12")
    g.e("s_mul_i32 s49, s44, 14")
    g.e("s_add_u32 s49, s49, s48")
    g.e("s_lshl_b32 s43, s49, 10")
    g.e("s_mov_b32 s45, 0")
    g.e("s_lshl_b32 s46, s40, 12")
    g.e("s_lshl_b32 s47, s48, 10")
    g.e(f"s_add_u32 s47, s47, {ZB}")
    def wop(b, j):
        if j % 2 == 0:
            g.e(f"s_add_u32 m0, s46, {(b % 3) * 32768}")
            g.e("s_nop 0")
        g.vmem(f"buffer_load_dwordx4 v{VWD + j}, s[20:23], s45 offen offset:{j * 1024} {NTSP} lds", ("w", 2 * b))
        if j == 3: g.e("s_add_u32 s45, s45, 128")
    def zop(st, j):
        if j == 0:
            g.e(f"s_add_u32 m0, s47, {(st % 4) * ZS}")
            g.e("s_nop 0")
        g.vmem(f"buffer_load_dwordx4 v{V16}, s[24:27], s43 offen offset:{j * 1024} {SC} lds", ("z", st))
        if j == 1: g.e("s_add_u32 s43, s43, 57344")
    def dma_ops(st):
        b, h = st // 2 + 2, st & 1
        return [lambda: zop(st + 3, 0), lambda: zop(st + 3, 1), lambda: wop(b, 2 * h), lambda: wop(b, 2 * h + 1)]
    if MERGE:
        g.e("s_waitcnt vmcnt(0)")
        g.e("s_barrier")
        nw = g.newlabel("nw"); nw2 = g.newlabel("nw")
        g.e("s_cmp_lg_u32 s40, 0")
        g.e(f"s_cbranch_scc1 {nw}")
        if k1.STKV == '':
            g.e("buffer_wbl2 sc1")
            g.e("s_waitcnt vmcnt(0)")
        flag_set(g, 10, 58, 59, 100)
        g.e("v_min_u32 v14, 55, v0")
        g.e("v_and_b32 v15, 7, v14")
        g.e("v_lshrrev_b32 v14, 3, v14")
        g.e("v_lshlrev_b32 v14, 7, v14")
        g.e("v_lshl_add_u32 v14, v15, 2, v14")
        g.e("s_lshl_b32 s49, s3, 13")
        g.e(f"s_add_u32 s49, s49, {14 * 128 + 32}")
        g.e("v_add_u32 v14, s49, v14")
        flag_load(g, 12, 14, 100)
        g.label(nw)
        g.e("s_barrier")
        for j in range(4): wop(0, j)
        if SPT:
            g.e("s_lshl_b32 s49, s44, 3")
            g.e("s_add_u32 s49, s49, s40")
            g.e("s_lshl_b32 s49, s49, 15")
            g.e("s_lshl_b32 s50, s3, 20")
            g.e("s_add_u32 s49, s49, s50")
            g.e("v_bfe_u32 v9, v0, 3, 3")
            g.e("v_lshlrev_b32 v9, 12, v9")
            g.e("v_and_b32 v8, 7, v0")
            g.e("v_lshl_add_u32 v9, v8, 7, v9")
            for i in range(SPT): g.vmem(f"buffer_load_dword v8, v9, s[20:23], s49 offen offset:{128 + 1024 * i}", ("w", 0))
        g.e("s_cmp_lg_u32 s40, 0")
        g.e(f"s_cbranch_scc1 {nw2}")
        g.e(f"s_waitcnt vmcnt({4 + SPT})")
        flag_wait(g, 12, 14, 59, 100, SLS, True)
        g.e("v_min_u32 v14, 39, v0")
        g.e("v_and_b32 v15, 3, v14")
        g.e("v_lshrrev_b32 v14, 2, v14")
        g.e("v_lshlrev_b32 v14, 7, v14")
        g.e("v_lshl_add_u32 v14, v15, 3, v14")
        g.e("s_lshl_b32 s49, s3, 13")
        g.e(f"s_add_u32 s49, s49, {11 * 128}")
        g.e("v_add_u32 v14, s49, v14")
        g.label(nw2)
        g.e("s_barrier")
        zop(0, 0); zop(0, 1)
    else:
        zop(0, 0); zop(0, 1)
        for j in range(4): wop(0, j)
        code_touch(g, 96, 14, "L_k2_spend", None, False)
    srd(g, 12, 8, 9, 4096)
    g.e("v_and_b32 v11, 15, v0")
    g.e("v_lshlrev_b32 v11, 1, v11")
    g.e("s_lshl_b32 s49, s3, 9")
    g.e("s_lshl_b32 s50, s42, 7")
    g.e("s_add_u32 s49, s49, s50")
    for tt in range(4): g.vmem(f"buffer_load_ushort v{16 + tt}, v11, s[12:15], s49 offen offset:{tt * 32}", ("w", 0))
    g.e("s_barrier")
    zop(1, 0); zop(1, 1)
    if MERGE < 2:
        srd(g, 28, 16, 17, 32768, WS_PART + 8 * MB)
        g.e("s_sub_u32 s49, s2, 224")
        g.e("s_lshl_b32 s49, s49, 10")
        g.e("v_lshrrev_b32 v28, 6, v0")
        g.e(f"v_lshl_add_u32 v28, v28, 24, v{V16}")
        for i in range(4): g.e(f"v_mov_b32 v{20 + i}, 0")
        g.e("buffer_store_dwordx4 v[20:23], v28, s[28:31], s49 offen")
    srd(g, 28, 16, 17, SZ_Z, WS_Z1)
    srd(g, 36, 16, 17, SZ_CTX, WS_CTX)
    g.e("s_mul_i32 s49, s41, 7168")
    g.e(f"s_add_u32 s49, s49, {ZB}")
    g.e(f"v_add_u32 v4, s49, v{V16}")
    g.e("v_and_b32 v28, 15, v0")
    g.e("v_bfe_u32 v29, v0, 4, 2")
    g.e("v_lshrrev_b32 v30, 1, v28")
    g.e("v_xor_b32 v29, v29, v30")
    g.e("v_lshlrev_b32 v29, 4, v29")
    g.e("v_lshl_add_u32 v29, v28, 7, v29")
    g.e("s_lshl_b32 s49, s42, 13")
    g.e("v_add_u32 v1, s49, v29")
    g.e("v_xor_b32 v2, 64, v1")
    g.e("v_add_u32 v5, 0x10000, v1")
    g.e("v_add_u32 v6, 0x10000, v2")
    def aread(st, fb): g.lds(f"DR {AR + fb * 4},4,{(st % 4) * ZS + fb * 1024}", ("a", st, fb))
    def bread(st, tt):
        sl = (st // 2) % 3
        g.lds(f"DR {BB + (st & 1) * 16 + tt * 4},{(5 if sl == 2 else 1) + (st & 1)},{(sl & 1) * 32768 + tt * 2048}", ("b", st))
    SCH = {(3, 0): ("a", 0), (3, 1): ("b", 0), (3, 2): ("b", 1), (4, 0): ("b", 2), (4, 1): ("b", 3), (4, 2): ("a", 1), (5, 0): ("a", 2), (6, 0): ("a", 3)}
    rd = lambda st, k: (aread if k[0] == "a" else bread)(st, k[1])
    g.wait_vm(("z", 0), ("w", 0))
    g.e("s_barrier")
    for key in sorted(SCH): rd(0, SCH[key])
    for tt in range(4):
        for r in range(4): g.e(f"v_lshlrev_b32 v{24 + tt * 4 + r}, 16, v{16 + tt}")
    g.e("s_mov_b32 s52, 0")
    g.stamp(1)
    def step(st, extra=(), dma=4, nxt=True, init=False):
        extra = list(extra)
        pend = []
        for fb in range(7):
            g.wait_ds(("a", st, fb), ("b", st))
            for tt in range(4):
                if init: g.e(f"MC {acc(fb, tt)},{AR + fb * 4},{BB + (st & 1) * 16 + tt * 4},{24 + tt * 4}")
                else: g.e(f"M {acc(fb, tt)},{AR + fb * 4},{BB + (st & 1) * 16 + tt * 4}")
                if tt == 0 and fb < 3: aread(st, fb + 4)
                if nxt:
                    if (fb, tt) == (3, 0):
                        g.wait_vm(("z", st + 1), ("w", st + 1))
                        g.e("s_barrier")
                        pend = dma_ops(st)[:dma]
                    if (fb, tt) in SCH: rd(st + 1, SCH[(fb, tt)])
                if tt == 3 and pend: pend.pop(0)()
                if tt in (1, 3) and extra and fb < 3:
                    extra.pop(0)()
        assert not pend and not extra
    step(0, [lambda j=j: wop(1, j) for j in range(4)] + [lambda: zop(2, 0), lambda: zop(2, 1)], init=True)
    for st in range(1, 4): step(st)
    g.label("L_k2_sploop")
    vm0, ds0 = list(g.vm), list(g.ds)
    for st in range(4, 16): step(st)
    ren = lambda t: (t[0], t[1] - 12) + t[2:]
    g.vm = [ren(t) for t in g.vm]; g.ds = [ren(t) for t in g.ds]
    assert g.vm == vm0 and g.ds == ds0, (g.vm, vm0, g.ds, ds0)
    g.e("s_add_u32 s52, s52, 1")
    g.e("s_cmp_lt_u32 s52, 4")
    g.e("s_cbranch_scc1 L_k2_sploop")
    g.stamp(2)
    g.e("s_lshl_b32 s49, s3, 4")
    g.e("s_lshl_b32 s50, s42, 2")
    g.e("s_add_u32 s49, s49, s50")
    g.e("s_mul_i32 s54, s49, 28672")
    g.e("s_mul_i32 s55, s49, 159744")
    g.e(f"s_add_u32 s55, s55, {128 * 1024}")
    for tt in range(4):
        g.e(f"v_add_u32 v{16 + tt}, {tt * 28672}, v{V16}")
        g.e(f"v_add_u32 v{20 + tt}, {tt * 159744}, v{V16}")
    g.e("s_mul_i32 s56, s44, 14")
    g.e("s_mul_i32 s48, s41, 7")
    g.e("s_add_u32 s56, s56, s48")
    g.e("s_lshr_b32 s56, s56, 1")
    g.e("s_lshl_b32 s56, s56, 10")
    g.e("s_add_u32 s54, s54, s56")
    g.e("s_add_u32 s55, s55, s56")
    def z1load(u):
        for tt in range(4):
            r = Z1R + (u * 4 + tt) * 4
            g.vmem(f"buffer_load_dwordx4 v[{r}:{r + 3}], v{16 + tt}, s[28:31], s54 offen offset:{u * 1024} {SC}", ("z1", u))
    for st in range(4, 16):
        ex = {8: 0, 10: 1, 12: 2, 15: 3}
        def w0(fn):
            sk = g.newlabel("w0")
            g.e("s_cmp_lg_u32 s40, 0"); g.e(f"s_cbranch_scc1 {sk}")
            fn(); g.label(sk)
        fl = []
        if MERGE and st == 4: fl = [lambda: w0(lambda: flag_load(g, 12, 14, 100, True))]
        if MERGE and st == 7: fl = [lambda: w0(lambda: flag_wait(g, 12, 14, 59, 100, SLS, True, True))]
        step(st, [lambda u=ex[st]: z1load(u)] if st in ex else fl, dma=4 if st < 12 else (2 if st == 12 else 0), nxt=st < 15)
    g.stamp(4)
    g.e("s_nop 4")
    g.e("s_mov_b32 s53, 0xffff0000")
    vm_sv = list(g.vm)
    lode = g.newlabel("spodd"); lend = g.newlabel("spend")
    g.e("s_cmp_eq_u32 s41, 1")
    g.e(f"s_cbranch_scc1 {lode}")
    for fh in range(2):
        g.vm = list(vm_sv)
        if fh: g.label(lode)
        for u in range(4):
            halves = [(h, 2 * u + h - fh) for h in range(2) if 0 <= 2 * u + h - fh < 7]
            g.wait_vm(("z1", u))
            for tt in range(4):
                z = Z1R + (u * 4 + tt) * 4
                for h, fb in halves:
                    a = acc(fb, tt); t = 8 if h else 1
                    g.e(f"v_lshlrev_b32 v{t}, 16, v{z + 2 * h}")
                    g.e(f"v_and_b32 v{t + 1}, s53, v{z + 2 * h}")
                    g.e(f"v_lshlrev_b32 v{t + 2}, 16, v{z + 2 * h + 1}")
                    g.e(f"v_and_b32 v{t + 3}, s53, v{z + 2 * h + 1}")
                    for r in range(4): g.e(f"v_mul_f32 v{a + r}, v{a + r}, v{t + r}")
                    g.e(f"PK {z + 2 * h},{a},{a + 1}"); g.e(f"PK {z + 2 * h + 1},{a + 2},{a + 3}")
                if len(halves) == 2:
                    g.vmem(f"buffer_store_dwordx4 v[{z}:{z + 3}], v{20 + tt}, s[36:39], s55 offen offset:{u * 1024} {STFU}", "st")
                else:
                    h = halves[0][0]
                    g.vmem(f"buffer_store_dwordx2 v[{z + 2 * h}:{z + 2 * h + 1}], v{20 + tt}, s[36:39], s55 offen offset:{u * 1024 + 8 * h} {STFU}", "st")
        if fh == 0: g.e(f"s_branch {lend}")
    g.label(lend)
    g.stamp(3)
    g.stamp_dump(16, 17, 40, 1)
    if MERGE == 2:
        g.e("s_add_u32 s58, s44, 49")
        g.e("s_lshl_b32 s58, s58, 7")
        g.e("s_lshl_b32 s49, s3, 2")
        g.e("s_add_u32 s58, s58, s49")
        g.e("s_branch L_p3")
    else: g.e("s_endpgm")

def gen_k2(g):
    if not MERGE:
        g.e(".p2align 8")
        g.e(".type k2_kernel,@function")
        g.label("k2_kernel")
        g.e("s_cmp_ge_u32 s2, 256")
        g.e("s_cbranch_scc1 L_k2_end")
    g.label("L_p2")
    g.stamp(0)
    if PROF: g.e("s_memrealtime s[94:95]")
    g.e("s_load_dwordx2 s[4:5], s[0:1], 16")
    g.e("s_load_dwordx4 s[8:11], s[0:1], 64")
    g.e("s_load_dwordx2 s[16:17], s[0:1], 104")
    g.e("v_lshrrev_b32 v1, 6, v0")
    g.e("s_and_b32 s3, s2, 7")
    g.e("s_lshr_b32 s41, s2, 3")
    g.e("v_readfirstlane_b32 s40, v1")
    g.e("s_waitcnt lgkmcnt(0)")
    g.e("s_mov_b32 s6, s8")
    g.e("s_mov_b32 s7, s9")
    g.e("s_mov_b32 s8, s10")
    g.e("s_mov_b32 s9, s11")
    if MERGE:
        nw = g.newlabel("nw")
        g.e("s_cmp_lg_u32 s40, 0")
        g.e(f"s_cbranch_scc1 {nw}")
        flag_wait(g, 13, 15, 59, 100, SLA, True)
        g.e("v_mov_b32 v13, 0")
        g.label(nw)
    g.e("s_cmp_lt_u32 s41, 28")
    g.e("s_cbranch_scc1 L_k2_attn")
    g.e("s_branch L_k2_sp")
    g.label("L_k2_end")
    g.e("s_endpgm")
    gen_attn(g)
    gen_spatial(g)
    g.label("L_k2_spend")
```

```python
from asmlib import *
import math

XR = 128
ACC = [64, 96]
WR = 32
D = 6
C2 = -2.0 * math.sqrt(2.0 / math.pi) * math.log2(math.e)
C1 = C2 * 0.044715
NPKV = int(os.environ.get('NPKV', '6'))
NPZ = int(os.environ.get('NPZ', '3'))
GKV = -(-64 // NPKV); GZ = 7
assert NPKV == 6 and NPZ == 3
GMAP = [[0, 1, 2, 25, 3, 4, 26, 10], [11, 12, 13, 27, 14, 15, 28, 21], [5, 6, 29, 7, 8, 30, 9, 22], [16, 17, 31, 18, 23, 19, 20, 24]]
assert sorted(sum(GMAP, [])) == list(range(32))
NTW = os.environ.get('NTW', '')
PF = int(os.environ.get('PF', '97'))
CLU = int(os.environ.get('CLU', '1'))
PFW = int(os.environ.get('PFW', '0'))
NTP = os.environ.get('NTP', '')
PF3 = int(os.environ.get('PF3', '0'))
ZPUB = int(os.environ.get('ZPUB', '20'))
MIX = int(os.environ.get('MIX', '1'))
PFWS = int(os.environ.get('PFWS', '16'))
ROT = int(os.environ.get('ROT', '3'))
SL0 = int(os.environ.get('SL0', '0')); SL1 = int(os.environ.get('SL1', '4'))
LT = int(os.environ.get('LT', '0'))
PFL = eval(os.environ.get('PFL', '[0,2,4,8,10,11,14,18,22,23]'))
PROT = int(os.environ.get('PROT', '0'))
ZA = int(os.environ.get('ZA', '10')); ZP = int(os.environ.get('ZP', '12')); ZC = int(os.environ.get('ZC', '12'))
STKV = os.environ.get('STKV', 'sc1')
QFAST = int(os.environ.get('QFAST', '1')) and MERGE
FAST_VM = []
SPT1 = int(os.environ.get('SPT1', '1'))
IB = int(os.environ.get('IB', '2'))
WSP = int(os.environ.get('WSP', '3'))
STF = os.environ.get('STF', 'sc1')

def xreg(a, m): return XR + (m * 2 + a) * 4
def areg(st, cb, a): return ACC[st] + (cb * 2 + a) * 4

def w_voffsets(g, rowstride, vbase):
    g.e("v_bfe_u32 v28, v0, 5, 1")
    g.e("v_bfe_u32 v29, v0, 2, 2")
    g.e("v_lshl_add_u32 v28, v28, 2, v29")
    g.e(f"v_mul_u32_u24 v28, {rowstride}, v28")
    g.e("v_bfe_u32 v29, v0, 4, 1")
    g.e("v_lshl_add_u32 v28, v29, 6, v28")
    g.e("v_and_b32 v29, 3, v0")
    g.e("v_xor_b32 v30, 2, v29")
    g.e("v_lshlrev_b32 v29, 4, v29")
    g.e("v_lshlrev_b32 v30, 4, v30")
    for j in range(4):
        g.e(f"v_add_u32 v31, {j * 8 * rowstride - j * 1024}, v28")
        g.e(f"v_add_u32 v{vbase + j}, v31, v{29 + (j & 1)}")

def tr_bases(g, ve, vo):
    g.e("v_bfe_u32 v28, v0, 4, 2")
    g.e("v_lshlrev_b32 v29, 10, v28")
    g.e("v_bfe_u32 v30, v0, 2, 2")
    g.e("v_lshl_add_u32 v29, v30, 6, v29")
    g.e("v_and_b32 v30, 3, v0")
    g.e("v_lshl_add_u32 v29, v30, 3, v29")
    g.e("v_and_b32 v28, 1, v28")
    g.e(f"v_lshl_add_u32 v{ve}, v28, 5, v29")
    g.e(f"v_xor_b32 v{vo}, 32, v{ve}")

def gelu_ops(regs, T, vc2, sc1, stats=None):
    out = []
    n = len(T)
    for i in range(0, len(regs), n):
        grp = list(zip(regs[i:i + n], T))
        out += [f"v_mul_f32 v{t}, v{x}, v{x}" for x, t in grp]
        out += [f"v_fma_f32 v{t}, v{t}, s{sc1}, v{vc2}" for x, t in grp]
        out += [f"v_mul_f32 v{t}, v{t}, v{x}" for x, t in grp]
        out += [f"v_exp_f32 v{t}, v{t}" for x, t in grp]
        out += [f"v_add_f32 v{t}, 1.0, v{t}" for x, t in grp]
        out += [f"v_rcp_f32 v{t}, v{t}" for x, t in grp]
        out += [f"v_mul_f32 v{x}, v{x}, v{t}" for x, t in grp]
        if stats:
            out += [f"v_add_f32 v{stats[x][0]}, v{stats[x][0]}, v{x}" for x, t in grp]
            out += [f"v_fmac_f32 v{stats[x][1]}, v{x}, v{x}" for x, t in grp]
    return out

def ln_params(g, MEAN, VAR, n):
    def rbf(rs):
        for r in rs: g.e(f"PK {r},{r},{r}")
        for r in rs: g.e(f"v_and_b32 v{r}, 0xffff0000, v{r}")
    for m, v in zip(MEAN, VAR):
        g.e(f"v_mul_f32 v{m}, {f32(1 / n)}, v{m}")
        g.e(f"v_mul_f32 v{v}, {f32(1 / n)}, v{v}")
    for m, v in zip(MEAN, VAR): g.e(f"v_fma_f32 v{v}, -v{m}, v{m}, v{v}")
    for v in VAR: g.e(f"v_max_f32 v{v}, 0, v{v}")
    rbf(list(MEAN) + list(VAR))
    for v in VAR: g.e(f"v_add_f32 v{v}, {f32(1e-5)}, v{v}")
    rbf(VAR)
    for v in VAR: g.e(f"v_sqrt_f32 v{v}, v{v}")
    g.e("s_nop 0")
    rbf(VAR)
    for v in VAR: g.e(f"v_rcp_f32 v{v}, v{v}")
    g.e("s_nop 0")
    for m, v in zip(MEAN, VAR): g.e(f"v_mul_f32 v{m}, v{m}, v{v}")

def gen_type(g, T):
    ktp = lambda p: T in ("K", "Z1") or (T == "Z2" and p == 2)
    ztype = T in ("Z1", "Z2")
    rowstride = 3584 if ztype else 8192
    NP = NPZ if ztype else NPKV
    NTOT = 14 if ztype else 64
    NG = {"Z1": 3, "Z2": GZ}.get(T, GKV)
    NS = {"Z1": 2, "Z2": 3}.get(T, NTOT - (NG - 1) * NP)
    SHORT0 = {"Z1": 1}.get(T, NG - 1)
    VW = 1
    VTE, VTO = 5, 6
    VST = 7
    VC2 = 8
    VXA = 20
    VXR = (9, 11)
    TMP = [9, 10, 11, 12]
    STAT = 16
    g.vm = []; g.ds = []
    g.label(f"L_k1_{T}")
    g0 = {"K": 0, "V": GKV, "Z1": 2 * GKV, "Z2": 2 * GKV + 3}[T]
    g.e(f"s_sub_u32 s42, s3, {g0}")
    g.e("v_and_b32 v28, 63, v0")
    g.e(f"v_lshlrev_b32 v{VST}, 4, v28")
    if ztype:
        srd(g, 24, 4, 5, 2 * MB)
        g.e(f"s_sub_u32 s54, s3, {2 * GKV}")
        g.e("s_and_b32 s49, s54, 7")
        g.e("s_lshl_b32 s49, s49, 5")
        g.e("s_lshl_b32 s50, s41, 8")
        g.e("s_add_u32 s49, s49, s50")
        g.e("s_lshl_b32 s50, s40, 2")
        g.e("s_add_u32 s55, s49, s50")
        g.e("s_lshl_b32 s49, s55, 10")
        g.e("v_and_b32 v28, 3, v0")
        g.e("v_bfe_u32 v29, v0, 2, 4")
        g.e("v_lshlrev_b32 v30, 4, v29")
        g.e("v_lshl_add_u32 v30, v28, 10, v30")
        for i in range(4): g.vmem(f"buffer_load_dwordx4 v[{64 + 4 * i}:{67 + 4 * i}], v30, s[24:27], s49 offen offset:{256 * i}", "ln")
    else:
        srd(g, 24, 6, 7, 2 * MB)
    if T == "K": srd(g, 20, 10, 11, 512 * 8192)
    if T == "V": srd(g, 20, 12, 13, 512 * 8192)
    if ztype: srd(g, 20, 14, 15, 512 * 3584)
    if T == "Z1":
        g.e("s_lshl_b32 s58, s42, 1")
        g.e("s_add_u32 s58, s58, 8")
        g.e("s_cmp_eq_u32 s42, 0")
        g.e("s_cselect_b32 s58, 7, s58")
    elif T == "Z2": g.e("s_lshl_b32 s58, s42, 1")
    else: g.e(f"s_mul_i32 s58, s42, {NP}")
    colbase = 1792 if T == "Z2" else 0
    g.e("s_lshl_b32 s44, s58, 7")
    if colbase: g.e(f"s_add_u32 s44, s44, {colbase}")
    if ztype: g.e(f"s_mov_b32 s45, {colbase + (NTOT - 1) * 128}")
    else:
        g.e(f"s_cmp_lt_u32 s42, {SHORT0}")
        g.e(f"s_cselect_b32 s45, {NP}, {NS}")
        g.e("s_bfe_u32 s63, s2, 0x20003" if PROT else "s_mov_b32 s63, 0")
        g.e("s_lshl_b32 s63, s63, 1")
        g.e("s_cmp_ge_u32 s63, s45")
        g.e("s_cselect_b32 s49, s45, 0")
        g.e("s_sub_u32 s63, s63, s49")
    def pair_ops(p, d):
        return [f"s_add_u32 s{d}, s63, {p % 4 if p >= NS else p}" if False else f"s_add_u32 s{d}, s63, {p}",
                (f"s_cmp_ge_u32 s{d}, s45", "s_cselect_b32 s62, s45, 0"), f"s_sub_u32 s{d}, s{d}, s62"]
    g.e("s_lshl_b32 s46, s40, 12")
    g.e("s_bfe_u32 s60, s2, 0x20005" if (ROT and (not ztype or ROT > 2)) else "s_mov_b32 s60, 0")
    if ROT >= 2 and (not ztype or ROT > 2):
        g.e("s_bfe_u32 s49, s2, 0x20003")
        g.e("s_add_u32 s60, s60, s49")
        g.e("s_and_b32 s60, s60, 3")
    g.e("s_lshl_b32 s49, s60, 2")
    g.e("s_add_u32 s49, s49, s40")
    g.e("s_and_b32 s50, s49, 15")
    g.e(f"s_mul_i32 s56, s50, {32 * rowstride}")
    g.e("s_xor_b32 s50, s50, 8")
    g.e(f"s_mul_i32 s61, s50, {32 * rowstride}")
    g.e("s_and_b32 s57, s40, 3")
    g.e(f"s_mul_i32 s57, s57, {32 * rowstride}")
    g.e("s_lshr_b32 s49, s40, 2")
    g.e("s_lshl_b32 s49, s49, 7")
    g.e("s_add_u32 s57, s57, s49")
    if not ztype:
        g.e("s_lshl_b32 s49, s63, 7")
        g.e("s_add_u32 s57, s57, s49")
    g.e("s_add_u32 s57, s57, s44")
    NST = 2 * NP
    NQ = 4
    def fmap(s, f):
        cb = f & 3
        if s < NQ:
            p, ks = (f >> 4, (f >> 2) & 3) if s == 3 else ((f >> 2) & 1, f >> 3)
            return p, 4 * s + ks, cb, p * 4 + ks
        return s >> 1, (s & 1) * 8 + (f >> 2), cb, f >> 2
    XPOS = [3, 4, 3, 4, 3, 4, 4, 4]
    def xdma_ops(q):
        ops = []
        for i in range(4):
            def op(i=i):
                if i == 0:
                    g.e(f"s_add_u32 s43, s60, {q >> 1}")
                    g.e("s_and_b32 s43, s43, 3")
                    g.e("s_lshl_b32 s43, s43, 8")
                    if q & 1: g.e("s_add_u32 s43, s43, 128")
                g.e(f"s_add_u32 m0, s46, {XPOS[q] * 32768}")
                g.e("s_nop 0")
                g.vmem(f"buffer_load_dwordx4 v{VXA + i}, s[24:27], s43 offen offset:{i * 1024} lds", ("x", q))
            ops.append(op)
        return ops
    def xread(q):
        g.wait_vm(("x", q))
        for ks in range(2):
            for a in range(2):
                g.lds(f"DR {xreg(a, 2 * q + ks)},{VXR[(XPOS[q] >> 1) - 1] + ks},{(XPOS[q] & 1) * 32768 + a * 2048}", ("x", q))
    def wdma_ops(s, sr=51):
        if s >= NST and QFAST and not ztype:
            def op(j):
                if j == 0: g.e(f"s_add_u32 s{sr}, s54, {(s - NST) * 128 * 8192}")
                g.e(f"s_add_u32 m0, s46, {(s % 4) * 32768}")
                g.e("s_nop 0")
                g.vmem(f"buffer_load_dwordx4 v{VW + j}, s[32:35], s{sr} offen offset:{j * 1024} lds", ("wq", s - NST))
            return [lambda j=j: op(j) for j in range(4)]
        if s >= NST: return []
        ops = []
        for j in range(4):
            def op(j=j):
                if j == 0:
                    if s < NQ:
                        g.e(f"s_add_u32 s{sr}, s60, {s}")
                        g.e(f"s_and_b32 s{sr}, s{sr}, 3")
                        g.e(f"s_mul_i32 s{sr}, s{sr}, {128 * rowstride}")
                        g.e(f"s_add_u32 s{sr}, s{sr}, s57")
                    else:
                        p, kh = s >> 1, s & 1
                        if T == "Z2" and p == 2: g.e(f"s_lshl_b32 s{sr}, s42, 7")
                        elif ztype:
                            g.e(f"s_add_u32 s{sr}, s44, {p * 128}")
                            g.e(f"s_min_u32 s{sr}, s{sr}, s45")
                        else:
                            for t in pair_ops(p, sr):
                                for u in ((t,) if isinstance(t, str) else t): g.e(u)
                            g.e(f"s_lshl_b32 s{sr}, s{sr}, 7")
                            g.e(f"s_add_u32 s{sr}, s{sr}, s44")
                        g.e(f"s_add_u32 s{sr}, s{sr}, s{61 if kh else 56}")
                g.e(f"s_add_u32 m0, s46, {(s % 4) * 32768}")
                g.e("s_nop 0")
                g.vmem(f"buffer_load_dwordx4 v{VW + j}, s[20:23], s{sr} offen offset:{j * 1024} {NTW} lds", ("w", s))
            ops.append(op)
        return ops
    def run(ops):
        for op in ops: op()
    def w0(fn):
        sk = g.newlabel("w0")
        g.e("s_cmp_lg_u32 s40, 0"); g.e(f"s_cbranch_scc1 {sk}")
        fn(); g.label(sk)
    def rb_line(dst, extra):
        g.e(f"s_add_u32 s{dst}, s41, 53")
        g.e(f"s_lshl_b32 s{dst}, s{dst}, 7")
        if extra: g.e(f"s_add_u32 s{dst}, s{dst}, {extra}")
    def rb_poll_addr(v, n, extra):
        rb_line(49, extra)
        g.e("s_and_b32 s50, s2, 7")
        g.e("s_lshl_b32 s50, s50, 13")
        g.e("s_add_u32 s49, s49, s50")
        g.e(f"v_min_u32 v{v}, {n - 1}, v0")
        g.e(f"v_lshl_add_u32 v{v}, v{v}, 2, s49")

    w_voffsets(g, rowstride, VW)
    if not ztype:
        run(wdma_ops(0, 47))
        g.e("v_bfe_u32 v28, v0, 3, 3")
        g.e("v_and_b32 v29, 7, v0")
        g.e("v_lshrrev_b32 v30, 1, v28")
        g.e("v_xor_b32 v29, v29, v30")
        g.e("s_lshl_b32 s49, s41, 8")
        g.e("s_lshl_b32 s50, s40, 5")
        g.e("s_add_u32 s49, s49, s50")
        g.e("v_add_u32 v28, s49, v28")
        g.e("v_lshlrev_b32 v28, 10, v28")
        g.e("v_xor_b32 v30, 4, v29")
        g.e("v_lshl_add_u32 v29, v29, 4, v28")
        g.e("v_lshl_add_u32 v30, v30, 4, v28")
        for i in range(4): g.e(f"v_add_u32 v{VXA + i}, {i * 8192 - i * 1024}, v{29 + (i & 1)}")
        run(xdma_ops(0))
        code_touch(g, 36, 14, f"L_k1_{T}_end")
        g.e("s_barrier")
        if IB >= 1: run(xdma_ops(1))
        if IB >= 2: run(wdma_ops(1, 47))
        g.e("v_and_b32 v28, 15, v0")
        g.e("v_bfe_u32 v29, v0, 4, 2")
        g.e("v_lshrrev_b32 v30, 1, v28")
        g.e("v_xor_b32 v29, v29, v30")
        g.e("v_lshlrev_b32 v29, 4, v29")
        g.e("v_lshl_add_u32 v29, v28, 7, v29")
        g.e("s_add_u32 s49, s46, 0x10000")
        g.e(f"v_add_u32 v{VXR[0]}, s49, v29")
        g.e(f"v_xor_b32 v{VXR[0] + 1}, 64, v{VXR[0]}")
        for ks in range(2): g.e(f"v_add_u32 v{VXR[1] + ks}, 0x10000, v{VXR[0] + ks}")
    else:
        code_touch(g, 36, 255, f"L_k1_{T}_end")
        srd(g, 24, 16, 17, WS_XNP + SZ_XN, 0)
        ZLT = len(g.lines)
        g.e("s_mov_b32 s53, 0xffff0000")
        g.e(f"s_mov_b32 s52, {f32(C1)}")
        g.e(f"v_mov_b32 v{VC2}, {f32(C2)}")
        g.e("s_lshr_b32 s55, s55, 5")
        g.e("s_lshl_b32 s55, s55, 15")
        g.e("s_add_u32 s55, s55, s46")
        g.e(f"s_add_u32 s62, s55, {WS_XNP}")
        g.e("s_lshr_b32 s49, s40, 2")
        g.e("s_lshl_b32 s49, s49, 14")
        g.e("s_and_b32 s50, s40, 3")
        g.e("s_lshl_b32 s50, s50, 6")
        g.e("s_add_u32 s49, s49, s50")
        g.e("s_add_u32 s49, s49, 0x20000")
        g.e("v_and_b32 v28, 3, v0")
        g.e("v_lshlrev_b32 v28, 4, v28")
        g.e("v_bfe_u32 v29, v0, 2, 2")
        g.e("v_lshl_add_u32 v28, v29, 8, v28")
        g.e("v_bfe_u32 v29, v0, 4, 2")
        g.e("v_lshl_add_u32 v28, v29, 10, v28")
        g.e("v_add_u32 v13, s49, v28")
        g.e("s_add_u32 s49, s46, 0x20000")
        g.e(f"v_add_u32 v16, s49, v{VST}")
        g.e("s_and_b32 s49, s46, 0x3fff")
        g.e("s_lshr_b32 s50, s40, 2")
        g.e("s_lshl_b32 s50, s50, 6")
        g.e("s_add_u32 s49, s49, s50")
        g.e("s_add_u32 s49, s49, 0x20000")
        g.e("v_bfe_u32 v17, v0, 3, 1")
        g.e("v_lshlrev_b32 v17, 14, v17")
        g.e("v_bfe_u32 v28, v0, 2, 1")
        g.e("v_lshl_add_u32 v17, v28, 7, v17")
        g.e("v_and_b32 v28, 0x33, v0")
        g.e("v_lshl_add_u32 v17, v28, 4, v17")
        g.e("v_add_u32 v17, s49, v17")
        rb_poll_addr(15, 8, 0)
        nol = g.newlabel("noln")
        g.e("s_cmp_ge_u32 s54, 8")
        g.e(f"s_cbranch_scc1 {nol}")
        g.e("v_mov_b32 v9, 0")
        g.e("v_mov_b32 v10, 0")
        g.wait_vm("ln")
        g.stamp(8)
        g.e("v_mov_b32 v14, 20")
        w0(lambda: dbg_load(g, 14, 14, 18))
        for i in range(16):
            g.e(f"v_lshlrev_b32 v{96 + 2 * i}, 16, v{64 + i}")
            g.e(f"v_and_b32 v{97 + 2 * i}, s53, v{64 + i}")
        for i in range(32):
            g.e(f"v_add_f32 v9, v9, v{96 + i}")
            g.e(f"v_fmac_f32 v10, v{96 + i}, v{96 + i}")
        for sh in (4, 8):
            g.e("s_nop 1")
            for r in (9, 10): g.e(f"v_add_f32_dpp v{r}, v{r}, v{r} row_ror:{sh} row_mask:0xf bank_mask:0xf")
        for sw in ("v_permlane32_swap_b32", "v_permlane16_swap_b32"):
            for i in range(2): g.e(f"v_mov_b32 v{11 + i}, v{9 + i}")
            g.e("s_nop 1")
            for i in range(2): g.e(f"{sw} v{11 + i}, v{9 + i}")
            g.e("s_nop 1")
            for i in range(2): g.e(f"v_add_f32 v{9 + i}, v{9 + i}, v{11 + i}")
        ln_params(g, [9], [10], 512)
        for i in range(4):
            for e in range(8): g.e(f"v_fma_f32 v{96 + 8 * i + e}, v{96 + 8 * i + e}, v10, -v9")
            for r in range(4): g.e(f"PK {64 + 4 * i + r},{96 + 8 * i + 2 * r},{97 + 8 * i + 2 * r}")
            g.e(f"DW 13,{64 + 4 * i},{i * 4096}")
        g.e("s_waitcnt lgkmcnt(0)")
        g.e("s_barrier")
        for i in range(8): g.e(f"DR {96 + 4 * i},{17 - (i >> 2)},{(i & 3) * 1024}")
        for i in range(8):
            g.e(f"s_waitcnt lgkmcnt({7 - i})")
            g.e(f"buffer_store_dwordx4 v[{96 + 4 * i}:{99 + 4 * i}], v{VST}, s[24:27], s{55 if i >> 2 else 62} offen offset:{(i & 3) * 1024} sc1")
        g.e("v_mov_b32 v11, 1")
        g.stamp(9)
        g.e("s_waitcnt vmcnt(0)")
        g.e("s_barrier")
        g.stamp(10)
        done = g.newlabel("sdone"); chk = g.newlabel("schk")
        g.e("s_cmp_lg_u32 s40, 0")
        g.e(f"s_cbranch_scc1 {done}")
        nonce_get(g, 14, 14, 2, True)
        rb_line(47, 0)
        g.e("s_lshl_b32 s49, s54, 2")
        g.e("s_add_u32 s47, s47, s49")
        flag_set(g, 10, 47, 59, 100)
        g.e(f"s_branch {chk}")
        g.label(nol)
        g.e("s_cmp_lg_u32 s40, 0")
        g.e(f"s_cbranch_scc1 {done}")
        if SL0: g.e(f"s_sleep {SL0}")
        nonce_get(g, 14, 14, 2, False)
        g.label(chk)
        flag_wait(g, 11, 15, 59, 100, SL1, False)
        g.label(done)
        g.vm = []
        run(wdma_ops(0, 47))
        g.e("s_lshl_b32 s49, s41, 18")
        g.e("s_lshl_b32 s50, s40, 15")
        g.e("s_add_u32 s54, s49, s50")
        if T == "Z2": g.e(f"s_add_u32 s54, s54, {WS_XNP}")
        g.e("s_barrier")
        g.stamp(11)
        def xload(m):
            if m % 4 == 0:
                g.e(f"s_add_u32 s63, s60, {m >> 2}")
                g.e("s_and_b32 s63, s63, 3")
                g.e("s_lshl_b32 s63, s63, 12")
                g.e("s_add_u32 s63, s63, s54")
                g.e(f"s_add_u32 s55, s63, 16384")
            for a in range(2):
                x = xreg(a, m)
                g.vmem(f"buffer_load_dwordx4 v[{x}:{x + 3}], v{VST}, s[24:27], s{55 if a else 63} offen offset:{(m % 4) * 1024} sc1", ("x", m))
        for m in range(4): xload(m)
    def lin_touch():
        g.e("s_lshl_b32 s43, s2, 3")
        g.e("s_add_u32 s43, s43, s40")
        g.e(f"v_lshlrev_b32 v26, 3, v{VST}")
        g.e("v_bfe_u32 v27, v0, 4, 2")
        g.e("v_lshl_add_u32 v26, v27, 28, v26")
        g.e("s_lshl_b32 s49, s43, 11")
        srd(g, 36, 10, 11, 4 * MB)
        g.vmem("buffer_load_dword v254, v26, s[36:39], s49 offen", "t")
        srd(g, 36, 12, 13, 4 * MB)
        g.vmem("buffer_load_dword v254, v26, s[36:39], s49 offen", "t")
        srd(g, 36, 14, 15, 512 * 3584)
        g.vmem("buffer_load_dword v254, v26, s[36:39], s49 offen", "t")
    if LT == 1 and not ztype: lin_touch()
    if LT and ztype:
        n0 = len(g.lines); sv = list(g.vm)
        lin_touch()
        blk = g.lines[n0:]; del g.lines[n0:]; g.lines[ZLT:ZLT] = blk; g.vm = sv
        k = g.lines.index(f"s_waitcnt vmcnt({CPF})", ZLT); g.lines[k] = f"s_waitcnt vmcnt({CPF + 3})"
    off, sz = {"K": (WS_K, SZ_KV), "V": (WS_V, SZ_KV), "Z1": (WS_Z1, SZ_Z), "Z2": (WS_Z2, SZ_Z)}[T]
    srd(g, 28, 16, 17, sz, off)
    tr_bases(g, VTE, VTO)
    if T == "Z2":
        for i in range(16): g.e(f"v_mov_b32 v{STAT + i}, 0")

    def outbase(I, p):
        if T == "Z2" and p == 2: I("s_mov_b32 s48, s42")
        elif ztype: I(f"s_add_u32 s48, s58, {p}")
        else:
            I("\n".join(u for t in pair_ops(p, 48) for u in ((t,) if isinstance(t, str) else t)))
            I("s_add_u32 s48, s48, s58")
        if T in ("K", "V"):
            I("s_lshr_b32 s49, s48, 1")
            I("s_lshl_b32 s49, s49, 19")
            I("s_and_b32 s48, s48, 1")
            I(f"s_lshl_b32 s48, s48, {11 if T == 'K' else 12}")
            I("s_add_u32 s48, s48, s49")
            I("s_lshl_b32 s49, s41, 16")
            I("s_add_u32 s48, s48, s49")
            I("s_lshl_b32 s49, s40, 13")
            I("s_add_u32 s48, s48, s49")
            I("s_add_u32 s50, s48, 4096")
        else:
            I(f"s_lshl_b32 s48, s48, {11 if ktp(p) else 12}")
            I("s_lshl_b32 s49, s41, 3")
            I("s_add_u32 s49, s49, s40")
            I("s_mul_i32 s49, s49, 57344")
            I("s_add_u32 s48, s48, s49")
            I("s_add_u32 s50, s48, 28672")

    ZPARK = 131072
    def epilogue(p, last=False):
        st = p & 1
        ops = []
        def I(s): ops.append(lambda s=s: g.e(s))
        hold = T == "Z2" and p < 2
        if not hold: outbase(I, p)
        frags = []
        if ktp(p):
            for a in range(2):
                for mm in range(2):
                    frags.append((areg(st, 2 * mm, a), areg(st, 2 * mm + 1, a), a, mm * 1024))
        else:
            for cb in range(4):
                frags.append((areg(st, cb, 0), areg(st, cb, 1), 0, cb * 1024))
        for (x, y, a, io) in frags:
            if ztype:
                stats = None
                if hold:
                    stats = {}
                    for r in range(4):
                        stats[x + r] = (STAT + 2 * r, STAT + 2 * r + 1)
                        stats[y + r] = (STAT + 8 + 2 * r, STAT + 8 + 2 * r + 1)
                for s in gelu_ops([x, x + 1, x + 2, x + 3, y, y + 1, y + 2, y + 3], TMP, VC2, 52, stats): I(s)
            d = x
            if p == 0 and not ztype: d = 16 + 4 * frags.index((x, y, a, io))
            I(f"PK {d},{x},{x + 1}"); I(f"PK {d + 1},{x + 2},{x + 3}")
            I(f"PK {d + 2},{y},{y + 1}"); I(f"PK {d + 3},{y + 2},{y + 3}")
            x = d
            if hold:
                if p == 0: ops.append(lambda x=x, io=io: g.lds(f"DW 13,{x},{io}", "park"))
            elif T == "Z2":
                ops.append(lambda x=x, a=a, io=io: g.vmem(
                    f"buffer_store_dwordx4 v[{x}:{x + 3}], v14, s[24:27], s48 offen offset:{io + 64 * a} {SC}", "st"))
            else:
                ops.append(lambda x=x, a=a, io=io: g.vmem(
                    f"buffer_store_dwordx4 v[{x}:{x + 3}], v{VST}, s[28:31], s{50 if a else 48} offen offset:{io} {STF if ztype else STKV}", "st"))
        return ops
    if T == "Z2":
        g.e(f"s_add_u32 s49, s46, {ZPARK}")
        g.e(f"v_add_u32 v13, s49, v{VST}")

    def publish_ops():
        ops = []
        def I(s): ops.append(lambda s=s: g.e(s))
        for sh in (8, 4, 2, 1):
            for i in range(16):
                I(f"v_add_f32_dpp v{STAT + i}, v{STAT + i}, v{STAT + i} row_ror:{sh} row_mask:0xf bank_mask:0xf")
        ops.append(lambda: srd(g, 36, 16, 17, GZ * 16384, WS_ST))
        I("v_bfe_u32 v9, v0, 4, 2")
        I("v_lshlrev_b32 v9, 6, v9")
        I("v_and_b32 v10, 15, v0")
        I("v_lshl_add_u32 v10, v10, 24, v9")
        I("s_lshl_b32 s63, s41, 11")
        I("s_lshl_b32 s49, s40, 8")
        I("s_add_u32 s63, s63, s49")
        I("s_lshl_b32 s49, s42, 14")
        I("s_add_u32 s49, s49, s63")
        for i in range(4):
            ops.append(lambda i=i: g.vmem(f"buffer_store_dwordx4 v[{STAT + 4 * i}:{STAT + 4 * i + 3}], v10, s[36:39], s49 offen offset:{16 * i} sc1", "pub"))
        return ops
    def arrive():
        g.wait_vm("pub")
        g.e("s_barrier")
        def f():
            rb_line(47, 32)
            g.e("s_lshl_b32 s49, s42, 2")
            g.e("s_add_u32 s47, s47, s49")
            flag_set(g, 10, 47, 59, 100)
            rb_poll_addr(15, GZ, 32)
            g.e("v_mov_b32 v14, 0")
        w0(f)
    PB = 16
    def collect():
        w0(lambda: flag_wait(g, 14, 15, 59, 100, SL1, True))
        g.e("s_barrier")
        g.stamp(14)
        g.e("v_and_b32 v9, 31, v0")
        g.e("v_lshlrev_b32 v9, 3, v9")
        for q in range(GZ):
            g.e(f"s_add_u32 s49, s63, {q * 16384}")
            g.vmem(f"buffer_load_dwordx2 v[{PB + 2 * q}:{PB + 2 * q + 1}], v9, s[36:39], s49 offen sc1", "col")

    def pf_next(short):
        if not PF3 or T == "Z2" or (T in ("K", "V") and not short): return
        g.e("s_load_dwordx2 s[32:33], s[0:1], 40")
        g.e("s_load_dwordx2 s[36:37], s[0:1], 80")
        g.e("s_lshl_b32 s43, s41, 3")
        g.e("s_add_u32 s43, s43, s40")
        g.e(f"v_lshlrev_b32 v13, 3, v{VST}")
        g.e("s_waitcnt lgkmcnt(0)")
        g.e(f"s_mov_b32 s34, {4 * MB}")
        g.e("s_mov_b32 s35, 0x20000")
        g.e(f"s_mov_b32 s38, {896 * 1024}")
        g.e("s_mov_b32 s39, 0x20000")
        if T == "Z1":
            g.e("s_lshl_b32 s47, s42, 6")
            g.e("s_add_u32 s43, s43, s47")
            g.e("s_lshl_b32 s43, s43, 13")
            if short:
                g.e(f"s_sub_u32 s47, s43, {64 * 8192}")
                g.e("buffer_load_dword v14, v13, s[36:39], s47 offen")
                g.e(f"s_add_u32 s47, s47, {3 * MB}")
                g.e("buffer_load_dword v14, v13, s[32:35], s47 offen")
        else:
            g.e(f"s_mul_i32 s43, s43, {3 * 8192}")
            if T == "V": g.e(f"s_add_u32 s43, s43, {64 * 3 * 8192}")
            for i in range(3):
                g.e(f"buffer_load_dword v14, v13, s[32:35], s43 offen")
                g.e("s_add_u32 s43, s43, 8192")

    def xn_snap():
        def f():
            if not ztype: nonce_get(g, 13, 13, 2, True)
            g.e("s_and_b32 s43, s2, 7")
            g.e("s_lshl_b32 s43, s43, 13")
            g.e(f"s_add_u32 s43, s43, {53 * 128}")
            g.e("v_lshrrev_b32 v13, 3, v0")
            g.e("v_lshlrev_b32 v13, 7, v13")
            g.e("v_and_b32 v15, 7, v0")
            g.e("v_lshl_add_u32 v13, v15, 2, v13")
            g.e("v_add_u32 v15, s43, v13")
            flag_load(g, 13, 15, 100)
        w0(f)
    def final(p, short=False):
        g.stamp(12)
        g.e("s_nop 7")
        if T != "Z2":
            for op in epilogue(p): op()
        else:
            for i in range(4): g.e(f"DR {XR + 4 * i},13,{i * 1024}")
            VA, P2 = 144, 160
            g.e(f"s_add_u32 s49, s46, {ZPARK}")
            g.e("v_add_u32 v9, s49, v9")
            g.e(f"v_bfe_u32 v{VA}, v0, 4, 2")
            g.e(f"v_lshl_add_u32 v{VA}, v{VA}, 6, s49")
            g.e("s_waitcnt vmcnt(0) lgkmcnt(0)")
            for q in range(1, GZ):
                for i in range(2): g.e(f"v_add_f32 v{PB + i}, v{PB + i}, v{PB + 2 * q + i}")
            ln_params(g, [PB], [PB + 1], 896)
            g.e(f"ds_write_b64 v9, v[{PB}:{PB + 1}]")
            g.e("s_waitcnt lgkmcnt(0)")
            for i in range(4): g.e(f"DR {P2 + 4 * i},{VA},{16 * i}")
            xn_snap()
            g.e("s_waitcnt lgkmcnt(0)")
            MEAN = [P2 + 2 * e for e in range(8)]; VAR = [P2 + 2 * e + 1 for e in range(8)]
            for pp in range(2):
                outbase(g.e, pp)
                for cb in range(4):
                    x = XR + 4 * cb if pp == 0 else areg(pp & 1, cb, 0)
                    t = 16 + (cb & 1) * 8
                    for r in range(4): g.e(f"v_lshlrev_b32 v{t + 2 * r}, 16, v{x + r}")
                    for r in range(4): g.e(f"v_and_b32 v{t + 2 * r + 1}, s53, v{x + r}")
                    for e in range(8): g.e(f"v_fma_f32 v{t + e}, v{t + e}, v{VAR[e]}, -v{MEAN[e]}")
                    for r in range(4): g.e(f"PK {x + r},{t + 2 * r},{t + 2 * r + 1}")
                    g.e(f"buffer_store_dwordx4 v[{x}:{x + 3}], v{VST}, s[28:31], s48 offen offset:{cb * 1024} {STF}")
            ep = epilogue(p)
            nb = len(ep) - 4 * 61
            quart = [ep[nb + 61 * i:nb + 61 * i + 60] for i in range(4)]
            zst = [ep[nb + 61 * i + 60] for i in range(4)]
            run(quart[0]); run(quart[1])
            g.e("s_waitcnt vmcnt(0)")
            g.e("s_barrier")
            def z2flag():
                g.e("s_add_u32 s47, s42, 14")
                g.e("s_lshl_b32 s47, s47, 7")
                g.e("s_lshl_b32 s49, s41, 2")
                g.e("s_add_u32 s47, s47, s49")
                g.e("s_add_u32 s47, s47, 32")
                flag_set(g, 16, 47, 59, 100)
            w0(z2flag)
            g.stamp(10)
            srd(g, 24, 16, 17, SZ_Z, WS_Z1)
            g.e("v_bfe_u32 v14, v0, 3, 1")
            g.e("v_mul_u32_u24 v14, 28672, v14")
            g.e("v_bfe_u32 v18, v0, 2, 1")
            g.e("v_lshl_add_u32 v14, v18, 7, v14")
            g.e("v_and_b32 v18, 0x33, v0")
            g.e("v_lshl_add_u32 v14, v18, 4, v14")
            run(ep[:nb]); run(zst[:2]); run(quart[2]); run(zst[2:3]); run(quart[3]); run(zst[3:])
        g.stamp(13)
        diag_mark(g, 2)
        g.stamp_dump(16, 17, 40, 0)
        if MERGE:
            g.e(f"s_add_u32 s58, s42, { {'K': 0, 'V': 0, 'Z1': 11, 'Z2': 14}[T] }")
            g.e("s_lshl_b32 s58, s58, 7")
            g.e("s_lshl_b32 s49, s41, 2")
            g.e("s_add_u32 s58, s58, s49")
            if T == "V": g.e("s_add_u32 s58, s58, 32")
            if QFAST and not ztype and not short:
                FAST_VM[:] = [] if PROF else [("w", t[1]) if isinstance(t, tuple) and t[0] == "wq" else t for t in g.vm]
                g.e("s_branch L_p2f")
            else: g.e("s_branch L_p2")
        else: g.e("s_endpgm")

    pend = []
    def wread(F, half=None):
        s, f = F >> 5, F & 31
        if s >= NST: return
        if f == 0 and half != 1:
            assert not pend
            g.wait_vm(("w", s))
            if QFAST and not ztype and s == NST - 1: w0(lambda: flag_wait(g, 13, 15, 59, 100, SL1, True))
            g.e("s_barrier")
            if s >= 2 and s % 2 == 0:
                g.e(f"v_xor_b32 v{VTE}, 0x10000, v{VTE}")
                g.e(f"v_xor_b32 v{VTO}, 0x10000, v{VTO}")
            if s >= 2: pend.extend(wdma_ops(s + 2))
        if pend and f % WSP == 1 % WSP and f >= 1 and half != 0: pend.pop(0)()
        p, m, cb, mp = fmap(s, f)
        r = WR + (F % 8) * 4
        for a in (range(2) if half is None else [half]):
            o = (s & 1) * 32768 + mp * 4096 + a * 512 + (cb >> 1) * 256
            g.lds(f"TR {r + 2 * a},{VTO if cb & 1 else VTE},{o}", ("w", F))

    g.stamp(1)
    ev = {}
    def at(F, fn): ev.setdefault(F, []).append(fn)
    def spread(F0, ops, after=None):
        if after is not None: at(F0, lambda: g.wait_ds(("x", after)))
        for i, op in enumerate(ops): at(F0 + i, op)
    if not ztype:
        xread(0)
        at(0, lambda: g.wait_ds(("x", 0)))
        if IB >= 2:
            spread(0, xdma_ops(2)); spread(4, wdma_ops(2, 47))
            at(10, lambda: xread(1)); spread(14, xdma_ops(3), 1)
        elif IB == 1:
            spread(0, wdma_ops(1, 47)); spread(4, xdma_ops(2))
            at(10, lambda: xread(1)); spread(14, xdma_ops(3), 1); spread(18, wdma_ops(2, 47))
        else:
            spread(0, xdma_ops(1)); spread(4, wdma_ops(1, 47)); spread(8, xdma_ops(2))
            at(13, lambda: xread(1)); spread(16, xdma_ops(3), 1); spread(30, wdma_ops(2, 47))
        at(22, lambda: xread(2)); spread(26, xdma_ops(4), 2)
        at(34, lambda: xread(3)); spread(38, xdma_ops(5), 3)
        at(44, lambda: xread(4)); spread(48, wdma_ops(3, 47), 4)
        at(56, lambda: xread(5)); spread(64, xdma_ops(6), 5)
        at(80, lambda: xread(6)); spread(84, xdma_ops(7), 6)
        at(99, lambda: xread(7)); at(103, lambda: g.wait_ds(("x", 7)))
    else:
        for m in range(16): at(8 * m if m < 12 else 96 + 4 * (m - 12), lambda m=m: g.wait_vm(("x", m)))
        for m, F in zip(range(4, 16), (4, 8, 12, 16, 28, 34, 40, 46, 56, 64, 70, 74)): at(("post", F), lambda m=m: xload(m))
        for F0, s in ((0, 1), (22, 2), (50, 3)):
            for i, op in enumerate(wdma_ops(s, 47)): at(("post", F0 + i), op)
    if PFW and not ztype:
        def pfw():
            g.e("s_bfe_u32 s43, s2, 0x20003")
            g.e("s_lshl_b32 s43, s43, 7")
            g.e("s_lshl_b32 s47, s40, 4")
            g.e("s_add_u32 s43, s43, s47")
            g.e("v_bfe_u32 v14, v0, 2, 4")
            g.e("v_add_u32 v14, s43, v14")
            g.e("v_lshlrev_b32 v14, 13, v14")
            g.e("v_and_b32 v15, 3, v0")
            g.e("v_min_u32 v15, 2, v15")
            g.e("v_lshl_add_u32 v14, v15, 7, v14")
            g.vmem(f"buffer_load_dword v14, v14, s[20:23], s44 offen offset:384", "t")
        at(PFW, pfw)
    if PF:
        def prefetch():
            sr = 36 if T == "Z2" else 32
            srd(g, sr, 8, 9, 4 * MB)
            g.e("s_and_b32 s43, s2, 0xf8")
            g.e("s_add_u32 s43, s43, s40")
            g.e("s_lshl_b32 s43, s43, 14")
            nb = 2 if BAL else 1
            g.e(f"s_and_b32 s47, s2, {6 if BAL else 7}")
            g.e("s_lshl_b32 s47, s47, 8")
            g.e("s_add_u32 s47, s47, s43")
            g.e(f"v_and_b32 v14, {(1 << nb) - 1}, v0")
            g.e("v_lshlrev_b32 v14, 7, v14")
            g.e(f"v_bfe_u32 v15, v0, {nb}, 3")
            g.e("v_lshl_add_u32 v14, v15, 11, v14")
            g.e(f"v_bfe_u32 v15, v0, {nb + 3}, {3 - nb}")
            g.e("v_lshl_add_u32 v15, v15, 28, v14")
            g.vmem(f"buffer_load_dword v14, v15, s[{sr}:{sr + 3}], s47 offen", "t")
            if T in ("K", "V"):
                sk = g.newlabel("nocode")
                g.e("s_cmp_lt_u32 s2, 8")
                g.e(f"s_cbranch_scc0 {sk}")
                code_touch(g, 36, 14, "L_all_end", "L_p2", False)
                g.label(sk)
            if SPT1 and T != "Z2":
                sk = g.newlabel("nosp")
                g.e(f"s_cmp_lt_u32 s2, {192 if BAL else 224}")
                g.e(f"s_cbranch_scc1 {sk}")
                if BAL:
                    g.e("s_bitcmp1_b32 s2, 0")
                    g.e(f"s_cbranch_scc1 {sk}")
                g.e("s_load_dwordx2 s[36:37], s[0:1], 64")
                g.e(f"s_and_b32 s43, s2, {0x38 if BAL else 0x18}")
                g.e("s_add_u32 s43, s43, s40")
                g.e("s_lshl_b32 s43, s43, 15")
                g.e("s_and_b32 s47, s2, 7")
                g.e("s_lshl_b32 s47, s47, 20")
                g.e("s_add_u32 s43, s43, s47")
                g.e("v_bfe_u32 v13, v0, 3, 3")
                g.e("v_lshlrev_b32 v13, 12, v13")
                g.e("v_and_b32 v15, 7, v0")
                g.e("v_lshl_add_u32 v13, v15, 7, v13")
                g.e("s_waitcnt lgkmcnt(0)")
                g.e(f"s_mov_b32 s38, {8 * MB}")
                g.e("s_mov_b32 s39, 0x20000")
                for i in range(SPT1): g.e(f"buffer_load_dword v14, v13, s[36:39], s43 offen offset:{1024 * i}")
                g.label(sk)
            if PF3 == 1 and T != "Z2":
                sk = g.newlabel("nopf3")
                g.e(f"s_cmp_lt_u32 s42, {SHORT0}")
                g.e(f"s_cbranch_scc1 {sk}")
                pf_next(True)
                g.label(sk)
        at(PF if not ztype else min(PF, 110), prefetch)
    if not ztype: at(150, lambda: (g.e("v_mov_b32 v13, 20"), w0(lambda: dbg_load(g, 13, 13, 18))))
    if T != "Z2": at(114 if ztype else (2 * NS - 1) * 32 - 12, xn_snap)
    if QFAST and not ztype:
        from k2 import role_ops
        def qprep():
            g.e("s_load_dwordx2 s[6:7], s[0:1], 64")
            for t in role_ops(54, 55, 52, 53, 43, 47): g.e(t)
            srd(g, 32, 8, 9, 512 * 8192)
            srd(g, 36, 16, 17, SZ_XN, WS_XN)
            g.e("s_lshl_b32 s54, s54, 8")
            g.e("s_and_b32 s43, s40, 3")
            g.e("s_lshl_b32 s47, s43, 18")
            g.e("s_add_u32 s54, s54, s47")
            g.e("s_lshr_b32 s47, s40, 2")
            g.e("s_cmp_eq_u32 s47, 0")
            g.e("s_cselect_b32 s55, s52, s53")
            g.e("s_lshl_b32 s47, s47, 7")
            g.e("s_add_u32 s54, s54, s47")
            g.e("s_lshl_b32 s55, s55, 17")
            g.e("s_lshl_b32 s43, s43, 15")
            g.e("s_add_u32 s55, s55, s43")
            g.e("s_waitcnt lgkmcnt(0)")
            g.ds = []
        at(270, qprep)
        def qx(m):
            if m % 4 == 0:
                g.e(f"s_add_u32 s52, s55, {m * 1024}")
                g.e(f"s_add_u32 s53, s55, {m * 1024 + 16384}")
            for a in range(2):
                x = xreg(a, m)
                g.vmem(f"buffer_load_dwordx4 v[{x}:{x + 3}], v{VST}, s[36:39], s{52 + a} offen offset:{(m % 4) * 1024} {SC}", ("x", m))
        for m in range(8): at(("post", (NST - 1) * 32 + 1 + 3 * m), lambda m=m: qx(m))
    def place(ops, F0, n):
        for i, op in enumerate(ops): at(("post", F0 + i * n // len(ops)), op)
    for p in range(NP - 1):
        ops = epilogue(p)
        F0 = (2 * p + 2) * 32 + 3
        if not ztype:
            h = len(ops) - 20
            fr = [ops[h + 5 * i:h + 5 * i + 5] for i in range(4)]
            if p == 0:
                place(ops[:h] + [o for f4 in fr for o in f4[:4]], 3 * 32 + 20, 11)
                for f4, F in zip(fr, (127, 138, 149, 160)): at(("post", F), f4[4])
            else:
                pos = (166, 174, 182, 189) if p == 1 else [F0 + 5 + 16 * i for i in range(4)]
                place(ops[:h], pos[0] - 4, 3)
                for f4, F in zip(fr, pos): place(f4, F - 1, 2)
        elif p == 0: place(ops, 3 * 32 + 20, 11)
        elif T == "Z2" and p == 1:
            place(ops + [lambda: g.e("s_nop 1")] + publish_ops(), F0, ZPUB)
            at(("post", F0 + ZPUB + ZA), arrive)
            at(("post", F0 + ZPUB + ZA + ZP), lambda: w0(lambda: flag_load(g, 14, 15, 100)))
            at(("post", min(191, F0 + ZPUB + ZA + ZP + ZC)), collect)
        else: place(ops, F0, 60)
    for F in range(D): wread(F)
    for s in range(NST):
        if s == 1: diag_mark(g, 1)
        if s < 9 and PROF != 6: g.stamp(2 + s)
        if s == 2 * NS and NS < NP:
            cont = g.newlabel("cont")
            g.e(f"s_cmp_lt_u32 s42, {SHORT0}")
            g.e(f"s_cbranch_scc1 {cont}")
            sv = (list(g.vm), list(g.ds))
            final(NS - 1, True)
            g.vm, g.ds = sv
            g.label(cont)
        for f in range(32):
            F = s * 32 + f
            p, m, cb, mp = fmap(s, f)
            if PROF == 6 and F in PFL: g.stamp(2 + PFL.index(F))
            for fn in ev.pop(F, []): fn()
            g.wait_ds(("w", F))
            r = WR + (F % 8) * 4
            post = ev.pop(("post", F), [])
            for a in range(2):
                op = "MZ" if m == 0 else "M"
                if ktp(p): g.e(f"{op} {areg(p & 1, cb, a)},{r},{xreg(a, m)}")
                else: g.e(f"{op} {areg(p & 1, cb, a)},{xreg(a, m)},{r}")
                wread(F + D, a)
                n = len(post) // 2 if a == 0 else len(post)
                for _ in range(n): post.pop(0)()
    assert not ev, ev.keys()
    final(NP - 1)
    g.label(f"L_k1_{T}_end")

def gen_k1(g):
    g.e(".p2align 8")
    g.e(f".type {KNAME},@function")
    g.label(KNAME)
    g.e("s_cmp_ge_u32 s2, 256")
    g.e("s_cbranch_scc1 L_k1_end")
    g.stamp(0)
    diag_mark(g, 0)
    if PROF: g.e("s_memrealtime s[94:95]")
    g.e("s_load_dwordx4 s[4:7], s[0:1], 0")
    g.e("s_load_dwordx4 s[8:11], s[0:1], 16")
    g.e("s_load_dwordx2 s[12:13], s[0:1], 32")
    g.e("s_load_dwordx2 s[14:15], s[0:1], 56")
    g.e("s_load_dwordx2 s[18:19], s[0:1], 96")
    g.e("s_load_dwordx2 s[16:17], s[0:1], 104")
    g.e("v_lshrrev_b32 v1, 6, v0")
    g.e("s_lshr_b32 s49, s2, 3")
    g.e("s_and_b32 s41, s2, 1")
    g.e("v_readfirstlane_b32 s40, v1")
    g.e("s_lshl_b32 s41, s41, 2")
    g.e("s_and_b32 s50, s49, 3")
    g.e("s_add_u32 s41, s41, s50")
    g.e("s_and_b32 s3, s2, 6")
    g.e("s_lshl_b32 s3, s3, 2")
    g.e("s_lshr_b32 s49, s49, 2")
    g.e("s_add_u32 s3, s3, s49")
    if BAL:
        g.e("s_and_b32 s50, s2, 1")
        g.e("s_sub_u32 s50, 7, s50")
        g.e("s_bfe_u32 s51, s2, 0x30003")
        g.e("s_cmp_ge_u32 s49, 6")
        g.e("s_cselect_b32 s49, s50, s49")
        g.e("s_cselect_b32 s41, s51, s41")
    if MIX:
        cst = [sum(v << (8 * i) for i, v in enumerate(row)) for row in GMAP]
        g.e("s_bitcmp1_b32 s2, 1")
        g.e(f"s_cselect_b32 s44, {cst[1] & 0xffffffff}, {cst[0] & 0xffffffff}") if False else None
        for k, (lo, hi) in enumerate(((44, 45), (46, 47))):
            g.e(f"s_mov_b32 s{lo}, {cst[2 * k] & 0xffffffff}")
            g.e(f"s_mov_b32 s{hi}, {cst[2 * k] >> 32}")
            g.e(f"s_cmov_b32 s{lo}, {cst[2 * k + 1] & 0xffffffff}")
            g.e(f"s_cmov_b32 s{hi}, {cst[2 * k + 1] >> 32}")
        g.e("s_bitcmp1_b32 s2, 2")
        g.e("s_cselect_b64 s[44:45], s[46:47], s[44:45]")
        g.e("s_lshl_b32 s49, s49, 3")
        g.e("s_lshr_b64 s[44:45], s[44:45], s49")
        g.e("s_and_b32 s3, s44, 31")
    g.e("s_waitcnt lgkmcnt(0)")
    g.e(f"s_add_u32 s100, s16, {WS_FL}")
    g.e("s_addc_u32 s101, s17, 0")
    if MERGE:
        sk = g.newlabel("nonce")
        g.e("s_or_b32 s49, s2, s40")
        g.e(f"s_cbranch_scc1 {sk}")
        g.e("s_memrealtime s[50:51]")
        g.e("v_mov_b32 v2, 20")
        g.e("s_waitcnt lgkmcnt(0)")
        g.e("s_or_b32 s49, s50, 1")
        g.e("v_mov_b32 v3, s49")
        g.e("s_mov_b64 exec, 1")
        g.e("global_store_dword v2, v3, s[18:19] sc1")
        g.e("s_mov_b64 exec, -1")
        g.label(sk)
    g.e(f"s_cmp_lt_u32 s3, {GKV}")
    g.e("s_cbranch_scc1 L_k1_K")
    g.e(f"s_cmp_lt_u32 s3, {2 * GKV}")
    g.e("s_cbranch_scc1 L_k1_V")
    g.e(f"s_cmp_lt_u32 s3, {2 * GKV + 3}")
    g.e("s_cbranch_scc1 L_k1_Z1")
    g.e("s_branch L_k1_Z2")
    g.label("L_k1_end")
    g.e("s_endpgm")
    for T in ("K", "V", "Z1", "Z2"):
        gen_type(g, T)
```

```python
from asmlib import *
import k1
from k1 import w_voffsets, tr_bases, xreg, areg, WR, D
import math

QSCALE = 128 ** -0.5 * math.log2(math.e)
STASH = 131072
DSP = int(os.environ.get('DSP', '3')); EB = int(os.environ.get('EB', '14'))
XPRE = int(os.environ.get('XPRE', '4'))
PS = int(os.environ.get('PS', '0'))
NTSP = os.environ.get('NTSP', '')
PF2 = int(os.environ.get('PF2', '0'))
KINS = int(os.environ.get('KINS', '0'))
NTAIL = int(os.environ.get('NTAIL', '0'))
STF2 = os.environ.get('STF2', 'sc1')
PFS = int(os.environ.get('PFS', '54'))
STFX = os.environ.get('STFX', 'sc1'); STFU = os.environ.get('STFU', 'sc1' if MERGE == 2 else '')
XSCH = eval(os.environ.get('XSCH', '(4, 8, 12, 16, 28, 34, 40, 46, 56, 62, 68, 74)'))
PF4 = int(os.environ.get('PF4', '1'))
SLA = int(os.environ.get('SLA', '8')); SLS = int(os.environ.get('SLS', '10'))
SPT = int(os.environ.get('SPT', '0'))
HOT = int(os.environ.get('HOT', '0'))
HACK = os.environ.get('HACK', '')
NTWQ = os.environ.get('NTWQ', '')
NPART = 3
VF, VNEG, VL, VT, V16, VLT = 1, 3, 4, 6, 7, 8
NEGM, PR, TMP, OR, FR = 16, 24, 40, 128, 192
ML, FA, FB = 52, 56, 58
def sreg(kt, qb): return 72 + 16 * kt + 4 * qb
def preg(qb, kg): return PR + (qb * 2 + kg) * 4
def qreg(qb, mm): return 64 + 16 * mm + 4 * qb
def oreg(cb, qb): return OR + (cb * 2 + qb) * 4
def freg(j): return FR + j * 4

def merge_streams(main, fill, start=0):
    out = []
    n = len(main) - start
    acc = 0.0
    fill = list(fill)
    per = len(fill) / max(1, n)
    for i, m in enumerate(main):
        out.append(m)
        if i >= start:
            acc += per
            while fill and acc >= 0.999:
                out.append(fill.pop(0)); acc -= 1.0
    return out + fill

def dma4(g, so, first_m0=None, tag=None):
    ops = []
    for j in range(4):
        def op(j=j):
            if j == 0 and first_m0:
                g.e(first_m0); g.e("s_nop 0")
            g.vmem(f"buffer_load_dwordx4 v{V16}, s[28:31], s{so} offen offset:{j * 1024} {SC} lds", tag)
        ops.append(op)
    return ops

def next_ops(t):
    return [[f"s_and_b32 s19, s{t}, 3"], ["s_lshl_b32 s19, s19, 15"],
            ["s_xor_b32 s50, s19, 0x10000"], ["s_add_u32 s50, s50, s55"],
            [f"s_add_u32 s49, s{t}, 2"], ["s_lshl_b32 s51, s49, 14"], ["s_add_u32 s51, s51, s54"],
            ["s_cmp_lt_u32 s49, s48", "s_cselect_b32 s51, s51, s54"],
            [f"s_cmp_lt_u32 s{t}, s45", "s_cselect_b32 s49, s41, 0"],
            ["s_lshl_b32 s7, s49, 14"], ["s_add_u32 m0, s50, s7"], ["s_lshl_b32 s49, s49, 24"],
            ["s_add_u32 s7, s51, s49"], [f"s_add_u32 s51, s51, {16 * MB}"]]

def softmax_txt():
    out = []
    I = out.append
    T = [TMP + i for i in range(8)]
    for qb in range(2):
        for r in range(4): I(f"v_exp_f32 v{T[qb * 4 + r]}, v{sreg(0, qb) + r}")
    for qb in range(2): I(f"v_add_f32 v{VLT + qb}, v{T[qb * 4]}, v{T[qb * 4 + 1]}")
    for qb in range(2): I(f"PK {preg(qb, 0)},{T[qb * 4]},{T[qb * 4 + 1]}")
    for qb in range(2): I(f"v_add_f32 v{VLT + qb}, v{VLT + qb}, v{T[qb * 4 + 2]}")
    for qb in range(2): I(f"PK {preg(qb, 0) + 1},{T[qb * 4 + 2]},{T[qb * 4 + 3]}")
    for qb in range(2): I(f"v_add_f32 v{VLT + qb}, v{VLT + qb}, v{T[qb * 4 + 3]}")
    for kt in range(1, 4):
        for qb in range(2):
            s = sreg(kt, qb); t = T[qb * 4:qb * 4 + 4]
            for r in range(4): I(f"v_exp_f32 v{t[r]}, v{s + r}")
            p = preg(qb, kt >> 1) + (kt & 1) * 2
            I(f"v_add_f32 v{VLT + qb}, v{VLT + qb}, v{t[0]}")
            I(f"v_add_f32 v{VLT + qb}, v{VLT + qb}, v{t[1]}")
            I(f"PK {p},{t[0]},{t[1]}")
            I(f"v_add_f32 v{VLT + qb}, v{VLT + qb}, v{t[2]}")
            I(f"v_add_f32 v{VLT + qb}, v{VLT + qb}, v{t[3]}")
            I(f"PK {p + 1},{t[2]},{t[3]}")
    return out
def softmax_ops(g):
    return [lambda t=t: g.e(t) for t in softmax_txt()]

def xgroup(g, regs, op, tmp):
    for sw in ("v_permlane32_swap_b32", "v_permlane16_swap_b32"):
        for i, r in enumerate(regs): g.e(f"v_mov_b32 v{tmp + i}, v{r}")
        g.e("s_nop 1")
        for i, r in enumerate(regs): g.e(f"{sw} v{tmp + i}, v{r}")
        g.e("s_nop 1")
        for i, r in enumerate(regs): g.e(f"{op} v{r}, v{r}, v{tmp + i}")

def rescale(g, first):
    MX = [TMP + 8, TMP + 9]
    for qb in range(2):
        vals = [sreg(kt, qb) + r for kt in range(4) for r in range(4)]
        g.e(f"v_max3_f32 v{MX[qb]}, v{vals[0]}, v{vals[1]}, v{vals[2]}")
        for i in range(3, 15, 2): g.e(f"v_max3_f32 v{MX[qb]}, v{MX[qb]}, v{vals[i]}, v{vals[i + 1]}")
        g.e(f"v_max_f32 v{MX[qb]}, v{MX[qb]}, v{vals[15]}")
    xgroup(g, MX, "v_max_f32", TMP + 10)
    if not first:
        for qb in range(2): g.e(f"v_max_f32 v{MX[qb]}, 0, v{MX[qb]}")
    for kt in range(4):
        for qb in range(2):
            for r in range(4): g.e(f"v_sub_f32 v{sreg(kt, qb) + r}, v{sreg(kt, qb) + r}, v{MX[qb]}")
    for qb in range(2):
        for r in range(4): g.e(f"v_sub_f32 v{NEGM + qb * 4 + r}, v{NEGM + qb * 4 + r}, v{MX[qb]}")
    if not first:
        for qb in range(2): g.e(f"v_exp_f32 v{MX[qb]}, -v{MX[qb]}")
        g.e("s_nop 0")
        for cb in range(8):
            for qb in range(2):
                for r in range(4): g.e(f"v_mul_f32 v{oreg(cb, qb) + r}, v{oreg(cb, qb) + r}, v{MX[qb]}")
        for qb in range(2): g.e(f"v_mul_f32 v{VL + qb}, v{VL + qb}, v{MX[qb]}")

def mask_block(g):
    skip = g.newlabel("nomask"); l1 = g.newlabel("m1"); lf = g.newlabel("mf"); do = g.newlabel("domask")
    g.e("s_add_u32 s49, s52, 2")
    g.e("s_cmp_ge_u32 s49, s48")
    g.e(f"s_cbranch_scc1 {do}")
    g.e("s_sub_u32 s49, s52, s46")
    g.e("s_cmp_lt_u32 s49, 2")
    g.e(f"s_cbranch_scc0 {skip}")
    g.label(do)
    g.e("s_and_b32 s49, s52, 1")
    g.e("s_lshl_b32 s49, s49, 1")
    g.e("s_sub_u32 s49, s42, s49")
    def diag(kt, qb):
        for r in range(4): g.e(f"v_cndmask_b32 v{sreg(kt, qb) + r}, v{VNEG}, v{sreg(kt, qb) + r}, s[{8 + 2 * r}:{9 + 2 * r}]")
    def full(kt, qb):
        for r in range(4): g.e(f"v_mov_b32 v{sreg(kt, qb) + r}, v{VNEG}")
    g.e("s_cmp_ge_i32 s49, 2")
    g.e(f"s_cbranch_scc1 {skip}")
    g.e("s_cmp_eq_i32 s49, 1")
    g.e(f"s_cbranch_scc1 {l1}")
    g.e("s_cmp_lt_i32 s49, 0")
    g.e(f"s_cbranch_scc1 {lf}")
    diag(0, 0); full(1, 0); diag(1, 1); full(2, 0); full(2, 1); full(3, 0); full(3, 1)
    g.e(f"s_branch {skip}")
    g.label(l1)
    diag(2, 0); full(3, 0); diag(3, 1)
    g.e(f"s_branch {skip}")
    g.label(lf)
    for kt in range(4):
        for qb in range(2): full(kt, qb)
    g.label(skip)

def m_phase(g, has_pv, zero, split, post=None, pre=None):
    g.vm = []
    if has_pv: g.e("s_barrier")
    dma = dma4(g, 7) + (dma4(g, 51, "s_add_u32 m0, s50, 16384") if split else [])
    sal = [["s_add_u32 s49, s52, 2"], ["s_cmp_ge_u32 s49, s48", "s_cselect_b32 s4, 0, 4"], ["s_sub_u32 s49, s52, s46"], ["s_min_u32 s4, s4, s49"],
           ["s_cmp_lt_u32 s52, s53", "s_cselect_b32 s47, 1, 2"], ["s_add_u32 s47, s47, s52"]]
    sal2 = next_ops(47)
    if has_pv:
        g.ds = []
        sp = DSP if split else 4
        for j in range(16):
            kg, cb = j >> 3, j & 7
            for qb in range(2):
                g.e(f"{'MZ' if zero and kg == 0 else 'M'} {oreg(cb, qb)},{freg(j)},{preg(qb, kg)}")
                if qb == 0 and j >= 1: g.lds(f"DR {freg(j - 1)},{VF},{(j - 1) * 1024}", ("k", j - 1))
            if dma and j % sp == 0: dma.pop(0)()
            elif sal:
                for t in sal.pop(0): g.e(t)
        g.lds(f"DR {freg(15)},{VF},{15 * 1024}", ("k", 15))
    else:
        sp = 2
    PT = int(os.environ.get('PT', '5'))
    if has_pv and not zero: g.stamp_if(7, 52, PT)
    tail = []
    assert NTAIL <= 8
    if has_pv: tail = [[o] for o in softmax_ops(g)[:NTAIL]]
    for j in range(16):
        kt, mm = j >> 2, j & 3
        if j == EB:
            if pre: pre()
            g.wait_ds(("k", 15))
            if has_pv and not zero: g.stamp_if(8, 52, PT)
            if has_pv: g.e(f"s_waitcnt vmcnt({8 if split else 4})")
            g.e("s_setprio 2")
            g.e("s_barrier")
        if j == 0: g.wait_ds(("k", 10))
        if j == 5: g.wait_ds(("k", 15))
        for qb in range(2):
            if mm == 0: g.e(f"MC {sreg(kt, qb)},{freg(j)},{qreg(qb, mm)},{NEGM + qb * 4}")
            else: g.e(f"M {sreg(kt, qb)},{freg(j)},{qreg(qb, mm)}")
            if qb == 0 and j >= 1: g.lds(f"DR {freg(j - 1)},{VF},{16384 + (j - 1) * 1024}", "v")
            if j >= EB and tail:
                for op in tail.pop(0): op()
            if not has_pv and j >= EB and dma: dma.pop(0)()
            elif has_pv and qb == 1 and dma and (j + 16) % sp == 0: dma.pop(0)()
            elif qb == 1 and sal:
                for t in sal.pop(0): g.e(t)
            elif not sal and not dma and sal2:
                for t in sal2.pop(0): g.e(t)
    while dma: dma.pop(0)()
    assert not sal
    if post: post()
    for grp in sal2:
        for t in grp: g.e(t)
    g.lds(f"DR {freg(15)},{VF},{16384 + 15 * 1024}", "v")
    g.e("s_setprio 0")
    for w in tail:
        for op in w: op()
    g.vm = []; g.ds = []
    if has_pv:
        g.e("s_cmp_lt_u32 s4, 4")
        g.e("s_cbranch_scc1 L_k2_sgen")
    else:
        g.e("s_branch L_k2_sgen")

def advance(g):
    g.e("s_mov_b32 s52, s47")
    g.e(f"v_add_u32 v{VF}, s19, v{V16}")

def role_ops(dh, dg, dx, dy, t1, t2):
    if BAL:
        ops = [f"s_lshr_b32 s{dg}, s2, 3", f"s_mul_i32 s{t1}, s{dg}, 43", f"s_lshr_b32 s{t1}, s{t1}, 7", f"s_mul_i32 s{t2}, s{t1}, 3",
               f"s_sub_u32 s{t2}, s{dg}, s{t2}", f"s_lshl_b32 s{t2}, s{t2}, 1", f"s_and_b32 s{dh}, s2, 1", f"s_add_u32 s{t2}, s{t2}, s{dh}",
               f"s_sub_u32 s{dh}, s{dg}, 24", f"s_cmp_ge_u32 s{dg}, 24", f"s_cselect_b32 s{t1}, s{dh}, s{t1}", f"s_cselect_b32 s{dg}, 6, s{t2}",
               f"s_and_b32 s{dh}, s2, 6", f"s_and_b32 s{t2}, s{t1}, 1", f"s_add_u32 s{dh}, s{dh}, s{t2}",
               f"s_lshr_b32 s{t1}, s{t1}, 1", f"s_lshl_b32 s{t1}, s{t1}, 3", f"s_add_u32 s{dh}, s{dh}, s{t1}"]
    else:
        ops = [f"s_lshr_b32 s{dg}, s2, 3", f"s_mul_i32 s{t1}, s{dg}, 37", f"s_lshr_b32 s{t1}, s{t1}, 8", f"s_mul_i32 s{t2}, s{t1}, 7",
               f"s_sub_u32 s{dg}, s{dg}, s{t2}", f"s_lshl_b32 s{t1}, s{t1}, 3", f"s_and_b32 s{dh}, s2, 7", f"s_add_u32 s{dh}, s{dh}, s{t1}"]
    return ops + [f"s_sub_u32 s{dx}, 15, s{dg}", f"s_xor_b32 s{dy}, s{dg}, {1 if BAL == 2 else 0}", f"s_add_u32 s{dy}, s{dy}, 4", f"s_cmp_eq_u32 s{dg}, 6",
            f"s_cselect_b32 s{dx}, 3, s{dx}", f"s_cselect_b32 s{dy}, 2, s{dy}"]

def gen_attn(g):
    def setup(fast):
        for t in role_ops(43, 44, 32, 33, 49, 50): g.e(t)
        g.e("s_lshr_b32 s41, s40, 2")
        g.e("s_and_b32 s42, s40, 3")
        g.e(f"s_and_b32 s49, s3, {6 if BAL else 7}")
        g.e("s_lshl_b32 s49, s49, 20")
        g.e("s_add_u32 s60, s6, s49")
        g.e("s_addc_u32 s61, s7, 0")
        g.e(f"s_mov_b32 s62, {2 * MB if BAL else MB}")
        g.e("s_mov_b32 s63, 0x20000")
        if fast: srd(g, 20, 8, 9, 512 * 8192)
        else: srd(g, 20, 4, 5, 512 * 8192)
        srd(g, 24, 16, 17, SZ_XN, WS_XN)
        srd(g, 28, 16, 17, 2 * SZ_KV, WS_K)
        srd(g, 36, 16, 17, SZ_CTX, WS_CTX)
        g.e("s_lshl_b32 s55, s42, 12")
        g.e("s_lshl_b32 s54, s43, 19")
        g.e("s_add_u32 s54, s54, s55")
        g.e("s_lshl_b32 s57, s42, 13")
        g.e(f"s_add_u32 s57, s57, {STASH}")
        g.e("v_and_b32 v28, 63, v0")
        g.e(f"v_lshlrev_b32 v{V16}, 4, v28")
        g.e("v_and_b32 v28, 15, v0")
        g.e("v_bfe_u32 v29, v0, 4, 2")
        g.e("v_lshlrev_b32 v29, 2, v29")
        g.e("v_sub_u32 v28, v28, v29")
        for r in range(4): g.e(f"v_cmp_le_i32 s[{8 + 2 * r}:{9 + 2 * r}], {r}, v28")
        if MERGE:
            g.e("s_mul_i32 s49, s43, 43")
            g.e("s_lshr_b32 s49, s49, 7")
            g.e("s_lshl_b32 s49, s49, 7")
            g.e("s_lshl_b32 s50, s3, 13")
            g.e("s_add_u32 s49, s49, s50")
            g.e("v_and_b32 v14, 15, v0")
            g.e("v_lshl_add_u32 v14, v14, 2, s49")
    def wdma(s):
        g.e(f"s_add_u32 s51, s18, {s * 128 * 8192}")
        g.e(f"s_add_u32 m0, s19, {s * 32768}")
        g.e("s_nop 0")
        for j in range(4):
            g.vmem(f"buffer_load_dwordx4 v{1 + j}, s[20:23], s51 offen offset:{j * 1024} {NTWQ} lds", ("w", s))
    def xload(m):
        if m % 4 == 0:
            g.e(f"s_add_u32 s6, s47, {m * 1024}")
            g.e(f"s_add_u32 s7, s47, {m * 1024 + 16384}")
        for a in range(2):
            x = xreg(a, m)
            g.vmem(f"buffer_load_dwordx4 v[{x}:{x + 3}], v{V16}, s[24:27], s{6 + a} offen offset:{(m % 4) * 1024} {SC}", ("x", m))
    def pf_wsp():
        sk = g.newlabel("nopf")
        g.e("s_cmp_eq_u32 s32, 1")
        g.e(f"s_cbranch_scc1 {sk}")
        g.e("s_and_b32 s34, s2, 0xf8")
        g.e("s_add_u32 s34, s34, s40")
        if BAL:
            g.e("s_and_b32 s49, s2, 1")
            g.e("s_mul_i32 s49, s49, 192")
            g.e("s_add_u32 s34, s34, s49")
        g.e("s_mul_i32 s49, s34, 4736")
        g.e(f"v_lshlrev_b32 v10, 3, v{V16}")
        g.e("v_mov_b32 v12, 0x10000000")
        g.e("v_cmp_gt_u32 vcc, 4736, v10")
        g.e("s_nop 1")
        g.e("v_cndmask_b32 v11, v12, v10, vcc")
        g.e("buffer_load_dword v13, v11, s[60:63], s49 offen")
        if PF4:
            g.e("s_load_dwordx2 s[96:97], s[0:1], 40")
            g.e("s_load_dwordx2 s[98:99], s[0:1], 80")
            if BAL:
                g.e("s_lshr_b32 s49, s3, 1")
                g.e("s_mul_i32 s49, s49, 448")
            else: g.e("s_mul_i32 s49, s3, 224")
            g.e("s_add_u32 s49, s49, s34")
            g.e("v_cmp_gt_u32 vcc, 2432, v10")
            g.e("s_mul_i32 s34, s49, 2432")
            g.e("s_lshl_b32 s35, s49, 9")
            g.e("v_cndmask_b32 v11, v12, v10, vcc")
            g.e("v_cmp_gt_u32 vcc, 512, v10")
            g.e("s_waitcnt lgkmcnt(0)")
            srd(g, 60, 96, 97, 4 * MB)
            g.e("buffer_load_dword v13, v11, s[60:63], s34 offen")
            g.e("v_cndmask_b32 v11, v12, v10, vcc")
            srd(g, 60, 98, 99, 896 * 1024)
            g.e("buffer_load_dword v13, v11, s[60:63], s35 offen")
        g.label(sk)
    def first_tile(t):
        g.e("s_lshl_b32 s49, s41, 24")
        g.e("s_add_u32 s50, s54, s49")
        if t: g.e("s_add_u32 s50, s50, 16384")
        return dma4(g, 50, f"s_add_u32 m0, s19, {t * 32768}", "kv")
    def w0_only(fn):
        sk = g.newlabel("w0")
        g.e("s_cmp_eq_u32 s32, 1")
        g.e("s_cselect_b32 s49, 1, s40")
        g.e("s_cmp_lg_u32 s49, 0")
        g.e(f"s_cbranch_scc1 {sk}")
        fn()
        g.label(sk)
    def fmap(s, f):
        return (f >> 4, (f >> 2) & 3, f & 3) if s == 3 else ((f >> 2) & 1, f >> 3, f & 3)
    def qpack(p):
        ops = []
        I = lambda s: ops.append(lambda s=s: g.e(s))
        for a in range(2):
            for mm in range(2):
                x, y = areg(p, 2 * mm, a), areg(p, 2 * mm + 1, a)
                assert x == qreg(a, 2 * p + mm)
                for r in range(4): I(f"v_mul_f32 v{x + r}, s56, v{x + r}")
                for r in range(4): I(f"v_mul_f32 v{y + r}, s56, v{y + r}")
                I(f"PK {x},{x},{x + 1}"); I(f"PK {x + 1},{x + 2},{x + 3}")
                I(f"PK {x + 2},{y},{y + 1}"); I(f"PK {x + 3},{y + 2},{y + 3}")
        return ops
    def qphase(fast):
        if not fast: w_voffsets(g, 8192, 1)
        g.e("s_lshl_b32 s18, s43, 8")
        g.e("s_lshl_b32 s49, s42, 18")
        g.e("s_add_u32 s18, s18, s49")
        g.e("s_lshl_b32 s49, s41, 7")
        g.e("s_add_u32 s18, s18, s49")
        g.e("s_lshl_b32 s19, s40, 12")
        g.e("s_cmp_eq_u32 s41, 0")
        g.e("s_cselect_b32 s47, s32, s33")
        g.e("s_lshl_b32 s47, s47, 17")
        g.e("s_lshl_b32 s49, s42, 15")
        g.e("s_add_u32 s47, s47, s49")
        if PROF == 1: g.stamp(6)
        if not fast:
            wdma(0)
            for m in range(2): xload(m)
            if not MERGE: code_touch(g, 96, 14, "L_k2_sp")
            g.e("s_barrier")
            for m in range(2, 4): xload(m)
            later = {0: lambda: wdma(1), 22: lambda: wdma(2), 50: lambda: wdma(3)}
            for m, F in zip(range(4, 16), XSCH): later[F] = lambda m=m: xload(m)
            tr_bases(g, 5, 6)
            FS, FL = 0, 20
        else:
            later = {0: lambda: wdma(2), 30: lambda: wdma(3)}
            for m, F in zip(range(8, 16), (4, 10, 16, 22, 36, 42, 52, 60)): later[F] = lambda m=m: xload(m)
            g.e("v_xor_b32 v5, 0x10000, v5")
            g.e("v_xor_b32 v6, 0x10000, v6")
            g.e("v_mov_b32 v13, 0")
            FS, FL = 1, 46
        g.e(f"s_mov_b32 s56, {f32(QSCALE)}")
        g.e("s_lshl_b32 s48, s32, 1")
        g.e("s_add_u32 s48, s48, 2")
        if 'a' in HACK:
            g.e("s_cmp_ge_u32 s32, 10")
            g.e("s_cselect_b32 s49, 2, 0")
            g.e("s_sub_u32 s33, s33, s49")
            g.e("s_lshr_b32 s49, s49, 1")
            g.e("s_add_u32 s33, s33, s49")
        g.e("s_lshl_b32 s45, s33, 1")
        g.e("s_add_u32 s45, s45, 2")
        g.e("s_sub_u32 s53, s45, s41")
        g.e("s_sub_u32 s46, s45, 2")
        g.e("s_cmp_eq_u32 s41, 0")
        g.e("s_cselect_b32 s46, 0x1000, s46")
        g.stamp(1)
        if MERGE: later[FL] = lambda: w0_only(lambda: flag_load(g, 13, 14, 100))
        def wread(F, half=None):
            s, f = F >> 5, F & 31
            if s >= 4: return
            if f == 0 and half != 1:
                g.wait_vm(("w", s), "kv", *(["st"] if s == FS else []))
                if MERGE and s == 2: w0_only(lambda: flag_wait(g, 13, 14, 59, 100, SLA, True))
                g.e("s_barrier")
                if MERGE and s == FS: w0_only(lambda: flag_set(g, 10, 58, 59, 100))
                if s == 2:
                    g.e("v_xor_b32 v5, 0x10000, v5")
                    g.e("v_xor_b32 v6, 0x10000, v6")
                if s >= 2:
                    for op in first_tile(s - 2): op()
            p, ks, cb = fmap(s, f)
            mp = p * 4 + ks
            r = WR + (F % 8) * 4
            for a in (range(2) if half is None else [half]):
                o = (s & 1) * 32768 + mp * 4096 + a * 512 + (cb >> 1) * 256
                g.lds(f"TR {r + 2 * a},{6 if cb & 1 else 5},{o}", ("w", F))
        for F in range(D): wread(F)
        fill = []
        for s in range(4):
            if PROF == 1: g.stamp(7 + s)
            for f in range(32):
                F = s * 32 + f
                p, ks, cb = fmap(s, f)
                m = s * 4 + ks
                if F == 116: fill = qpack(0)
                if p == 0 and cb == 0: g.wait_vm(("x", m))
                g.wait_ds(("w", F))
                r = WR + (F % 8) * 4
                for a in range(2):
                    g.e(f"{'MZ' if m == 0 else 'M'} {areg(p, cb, a)},{r},{xreg(a, m)}")
                    wread(F + D, a)
                    if fill: fill.pop(0)(); fill.pop(0)()
                if F in later: later.pop(F)()
        assert not fill and not later
    if k1.QFAST:
        g.label("L_p2f")
        g.stamp(0)
        if PROF: g.e("s_memrealtime s[94:95]")
        g.vm = list(k1.FAST_VM); g.ds = []
        g.e("s_and_b32 s3, s2, 7")
        setup(True)
        qphase(True)
        g.e("s_branch L_k2_qend")
    g.vm = []; g.ds = []
    g.label("L_k2_attn")
    setup(False)
    if MERGE: g.e("s_barrier")
    g.label("L_k2_round")
    qphase(False)
    g.label("L_k2_qend")
    g.stamp(2)
    g.e("s_mov_b32 s47, 0")
    for grp in next_ops(47):
        for t in grp: g.e(t)
    advance(g)
    g.vm = []; g.ds = []
    for j in range(16): g.e(f"DR {freg(j)},{VF},{j * 1024}")
    for op in qpack(1): op()
    g.e(f"v_mov_b32 v{VNEG}, {f32(-1e30)}")
    g.e(f"s_mov_b32 s56, {f32(2.0 ** 60)}")
    g.e(f"s_mov_b32 s6, {f32(2.0 ** -60)}")
    for i in range(8): g.e(f"v_mov_b32 v{NEGM + i}, 0")
    g.e(f"v_add_u32 v9, s57, v{V16}")
    g.e("s_waitcnt vmcnt(0) lgkmcnt(0)")
    g.stamp(3)
    la = g.newlabel("qa")
    g.e("s_cmp_eq_u32 s41, 0")
    g.e(f"s_cbranch_scc1 {la}")
    g.e("s_barrier")
    g.label(la)
    def post0():
        if PFS: pf_wsp()
    def pre0():
        sk = g.newlabel("nost")
        g.e("s_cmp_eq_u32 s41, 0")
        g.e(f"s_cbranch_scc0 {sk}")
        for qb in range(2):
            for mm in range(4): g.e(f"DW 9,{qreg(qb, mm)},{(qb * 4 + mm) * 1024}")
        g.label(sk)
    m_phase(g, False, False, False, post0, pre0)
    def s_fast(tag):
        g.label(f"L_k2_s{tag}")
        PT = int(os.environ.get('PT', '5'))
        g.stamp_if(9, 52, PT)
        for op in softmax_ops(g)[NTAIL:]: op()
        g.e(f"v_max_f32 v{VT}, v{VLT}, v{VLT + 1}")
        g.e(f"v_cmp_lt_f32 vcc, s56, v{VT}")
        g.e("s_cbranch_vccnz L_k2_sgen")
        for qb in range(2): g.e(f"v_add_f32 v{VL + qb}, v{VL + qb}, v{VLT + qb}")
        g.stamp_if(10, 52, PT)
        if PROF == 2:
            g.e("s_waitcnt vmcnt(0) lgkmcnt(0)")
            g.stamp_if(11, 52, PT)
        advance(g)
        if tag == "sh": g.e("s_cmp_lt_u32 s52, s45")
        g.e("s_waitcnt lgkmcnt(0)" if tag == "sh" else "s_waitcnt vmcnt(0) lgkmcnt(0)")
    s_fast("sh")
    g.e("s_cbranch_scc0 L_k2_msp")
    g.label("L_k2_msh")
    g.stamp_if(6, 52, int(os.environ.get('PT', '5'))); g.stamp_if(12, 52, int(os.environ.get('PT', '5')) + 1)
    m_phase(g, True, False, False)
    g.e("s_branch L_k2_ssh")
    s_fast("sp")
    g.label("L_k2_msp")
    m_phase(g, True, False, True)
    g.e("s_branch L_k2_ssp")
    g.label("L_k2_mzsh")
    m_phase(g, True, True, False)
    g.e("s_branch L_k2_ssh")
    g.label("L_k2_mzsp")
    m_phase(g, True, True, True)
    g.e("s_branch L_k2_ssp")
    EXP = os.environ.get('ATEXP', '')
    if EXP:
        i0 = g.lines.index("L_k2_ssh:")
        keep = []
        for l in g.lines[i0:]:
            if 'd' in EXP and l.startswith('buffer_load'): continue
            if 'r' in EXP and l.startswith('DR '): continue
            if 'e' in EXP and l.startswith('v_exp'): l = l.replace('v_exp_f32', 'v_mov_b32')
            if 'v' in EXP and (l.startswith('v_exp') or l.startswith('PK') or (l.startswith('v_add_f32 v8') or l.startswith('v_add_f32 v9'))): continue
            if 'b' in EXP and l.startswith('s_cbranch_vccnz'): continue
            keep.append(l)
        g.lines[i0:] = keep
    def ctx_base(blk):
        g.e(f"s_lshl_b32 s49, s{blk}, 3")
        g.e("s_lshl_b32 s35, s42, 1")
        g.e("s_add_u32 s49, s49, s35")
        g.e("s_mul_i32 s49, s49, 159744")
        g.e("s_lshl_b32 s35, s43, 12")
        g.e("s_add_u32 s34, s49, s35")
        g.e("s_add_u32 s35, s34, 159744")
    def pack_store(mm, qb, fl=STF2):
        x, y = oreg(2 * mm, qb), oreg(2 * mm + 1, qb)
        return [f"PK {x},{x},{x + 1}", f"PK {x + 1},{x + 2},{x + 3}", f"PK {x + 2},{y},{y + 1}", f"PK {x + 3},{y + 2},{y + 3}",
                f"buffer_store_dwordx4 v[{x}:{x + 3}], v{V16}, s[36:39], s{34 + qb} offen offset:{mm * 1024} {fl}"]
    g.label("L_k2_sgen")
    def st5(i, val):
        if PROF == 5:
            l = g.newlabel("st"); g.e(f"s_cmp_lg_u32 s52, {val}"); g.e(f"s_cbranch_scc1 {l}"); g.stamp(i); g.label(l)
    st5(4, 0); st5(7, 8); st5(9, 9); st5(11, 11)
    if PROF == 5: g.stamp(13)
    g.e("s_sub_u32 s49, s52, s46")
    g.e("s_cmp_eq_u32 s49, 3")
    g.e("s_cselect_b32 s5, 2, 0")
    g.e("s_cmp_eq_u32 s52, 0")
    g.e("s_cselect_b32 s5, 1, s5")
    g.e("s_cselect_b32 s18, s6, 0")
    g.e("s_cmp_eq_u32 s5, 2")
    g.e("s_cselect_b32 s18, s6, s18")
    mask_block(g)
    ny = g.newlabel("ny"); jy = g.newlabel("jy")
    g.e("s_cmp_eq_u32 s5, 2")
    g.e(f"s_cbranch_scc0 {ny}")
    ctx_base(33)
    so = softmax_ops(g)
    k = 0
    for mm in range(4):
        for qb in range(2):
            for cb in (2 * mm, 2 * mm + 1):
                for r in range(4): g.e(f"v_mul_f32 v{oreg(cb, qb) + r}, v{oreg(cb, qb) + r}, v{FA + qb}")
            for t in pack_store(mm, qb): g.e(t)
            n = 9 if k < 2 else 10
            for op in so[:n]: op()
            so = so[n:]; k += 1
    assert not so
    g.e(f"s_branch {jy}")
    g.label(ny)
    for op in softmax_ops(g): op()
    g.label(jy)
    g.e(f"v_max_f32 v{VT}, v{VLT}, v{VLT + 1}")
    g.e(f"v_min_f32 v{TMP}, v{VLT}, v{VLT + 1}")
    g.e(f"v_cmp_lt_f32 vcc, s56, v{VT}")
    g.e("s_cbranch_vccnz L_k2_slow")
    g.e(f"v_cmp_gt_f32 vcc, s18, v{TMP}")
    g.e("s_cbranch_vccnz L_k2_slow")
    g.label("L_k2_back")
    nf = g.newlabel("nf")
    g.e("s_cmp_eq_u32 s5, 0")
    g.e(f"s_cbranch_scc1 {nf}")
    for qb in range(2): g.e(f"v_mov_b32 v{VL + qb}, 0")
    g.label(nf)
    for qb in range(2): g.e(f"v_add_f32 v{VL + qb}, v{VL + qb}, v{VLT + qb}")
    g.e("s_add_u32 s49, s52, 2")
    g.e("s_cmp_ge_u32 s49, s48")
    g.e("s_cbranch_scc1 L_k2_xlast")
    nl = g.newlabel("nyl")
    g.e("s_sub_u32 s49, s52, s46")
    g.e("s_cmp_eq_u32 s49, 1")
    g.e(f"s_cbranch_scc0 {nl}")
    g.e(f"v_add_u32 v10, s57, v{V16}")
    for qb in range(2):
        for mm in range(4): g.e(f"DR {qreg(qb, mm)},10,{(qb * 4 + mm) * 1024}")
    xgroup(g, [VL, VL + 1], "v_add_f32", TMP + 2)
    for qb in range(2): g.e(f"v_rcp_f32 v{FA + qb}, v{VL + qb}")
    for i in range(8): g.e(f"v_mov_b32 v{NEGM + i}, 0")
    g.label(nl)
    st5(6, 0); st5(8, 8); st5(10, 9); st5(12, 11)
    advance(g)
    g.e("s_cmp_lt_u32 s52, s45")
    g.e("s_cselect_b32 s49, 0, 4")
    g.e("s_add_u32 s5, s5, s49")
    w8 = g.newlabel("w8")
    g.e("s_and_b32 s49, s5, 3")
    g.e(f"s_cbranch_scc1 {w8}")
    g.e("s_waitcnt vmcnt(0)")
    g.label(w8)
    g.e("s_waitcnt vmcnt(8) lgkmcnt(0)")
    g.e("s_cmp_eq_u32 s5, 0")
    g.e("s_cbranch_scc1 L_k2_msh")
    g.e("s_cmp_eq_u32 s5, 4")
    g.e("s_cbranch_scc1 L_k2_msp")
    g.e("s_cmp_eq_u32 s5, 1")
    g.e("s_cbranch_scc1 L_k2_mzsh")
    g.e("s_branch L_k2_mzsp")
    g.label("L_k2_xlast")
    if PROF == 5: g.stamp(14)
    g.e("s_and_b32 s49, s48, 3")
    g.e("s_lshl_b32 s49, s49, 15")
    g.e("s_lshl_b32 s50, s42, 13")
    g.e("s_add_u32 s50, s50, s49")
    g.e(f"v_add_u32 v11, s50, v{V16}")
    g.e(f"v_add_u32 v10, s57, v{V16}")
    g.e("s_xor_b32 s49, s49, 0x10000")
    g.e("s_lshl_b32 s50, s42, 10")
    g.e("s_add_u32 s49, s49, s50")
    g.e(f"v_add_u32 v{VT}, s49, v{V16}")
    xaddr = lambda i: (10 + (i >> 3), (i & 7) * 1024)
    def pvgroup(cb, zero, mid=()):
        mid = list(mid)
        for kg in range(2):
            for qb in range(2):
                g.e(f"{'MZ' if zero and kg == 0 else 'M'} {oreg(cb, qb)},{freg(kg * 8 + cb)},{preg(qb, kg)}")
                n = -(-len(mid) // (4 - (kg * 2 + qb)))
                for _ in range(n): mid.pop(0)()
    g.e("s_cmp_eq_u32 s41, 0")
    g.e("s_cbranch_scc0 L_k2_xlastB")
    g.e(f"v_mov_b32 v{ML}, v{NEGM}")
    g.e(f"v_mov_b32 v{ML + 1}, v{NEGM + 4}")
    g.e(f"v_mov_b32 v{ML + 2}, v{VL}")
    g.e(f"v_mov_b32 v{ML + 3}, v{VL + 1}")
    g.e(f"DW {VT},{ML},0")
    g.e("s_waitcnt vmcnt(0) lgkmcnt(0)")
    g.e("s_barrier")
    dw = lambda i: (lambda: g.e(f"DW {xaddr(i)[0]},{OR + i * 4},{xaddr(i)[1]}"))
    for cb in range(8):
        pvgroup(cb, False, [dw(2 * cb - 6), dw(2 * cb - 5)] if cb >= 3 else [])
    for i in range(10, 12): dw(i)()
    g.e("s_nop 3")
    for i in range(12, 16): dw(i)()
    g.e("s_waitcnt lgkmcnt(0)")
    g.e("s_barrier")
    g.e("s_branch L_k2_rend")
    g.label("L_k2_xlastB")
    g.e(f"DR {ML},{VT},0")
    ctx_base(32)
    NM = TMP
    g.e("s_waitcnt lgkmcnt(0)")
    for qb in range(2): g.e(f"v_min_f32 v{NM + qb}, v{ML + qb}, v{NEGM + 4 * qb}")
    for qb in range(2): g.e(f"v_sub_f32 v{FA + qb}, v{NM + qb}, v{ML + qb}")
    for qb in range(2): g.e(f"v_sub_f32 v{FB + qb}, v{NM + qb}, v{NEGM + 4 * qb}")
    for i in range(4): g.e(f"v_exp_f32 v{FA + i}, v{FA + i}")
    g.e("s_nop 0")
    for qb in range(2): g.e(f"v_mul_f32 v{VL + qb}, v{VL + qb}, v{FB + qb}")
    for qb in range(2): g.e(f"v_fmac_f32 v{VL + qb}, v{ML + 2 + qb}, v{FA + qb}")
    xgroup(g, [VL, VL + 1], "v_add_f32", TMP + 2)
    for qb in range(2): g.e(f"v_rcp_f32 v{VL + qb}, v{VL + qb}")
    g.e("s_nop 0")
    for qb in range(2): g.e(f"v_mul_f32 v{FA + qb}, v{FA + qb}, v{VL + qb}")
    for qb in range(2): g.e(f"v_mul_f32 v{FB + qb}, v{FB + qb}, v{VL + qb}")
    lz = g.newlabel("finz")
    g.e("s_cmp_eq_u32 s5, 0")
    g.e(f"s_cbranch_scc0 {lz}")
    for zero in (False, True):
        if zero: g.label(lz)
        g.ds = []
        for cb in range(4): pvgroup(cb, zero)
        g.e("s_barrier")
        def merge_ops(mm):
            ops = []
            I = lambda t: ops.append(lambda t=t: g.e(t))
            for qb in range(2):
                for cb in (2 * mm, 2 * mm + 1):
                    o = oreg(cb, qb)
                    for r in range(4): I(f"v_mul_f32 v{o + r}, v{o + r}, v{FB + qb}")
                    ops.append(lambda cb=cb, qb=qb: g.wait_ds(("o", cb, qb)))
                    for r in range(4): I(f"v_fmac_f32 v{o + r}, v{freg(qb * 8 + cb) + r}, v{FA + qb}")
                for t in pack_store(mm, qb, STFX): I(t)
            return ops
        xr = lambda cb, qb: (lambda: g.lds(f"DR {freg(qb * 8 + cb)},{xaddr(cb * 2 + qb)[0]},{xaddr(cb * 2 + qb)[1]}", ("o", cb, qb)))
        for cb in range(3): xr(cb, 0)(); xr(cb, 1)()
        m0 = merge_ops(0)
        for cb in range(4, 8):
            mid = [xr(cb - 1, 0), xr(cb - 1, 1)]
            if cb == 6: mid += m0[:len(m0) // 2]
            if cb == 7: mid += m0[len(m0) // 2:]
            pvgroup(cb, zero, mid)
        xr(7, 0)(); xr(7, 1)()
        for op in merge_ops(1) + merge_ops(2) + merge_ops(3): op()
        if not zero: g.e("s_branch L_k2_rend")
    g.label("L_k2_rend")
    g.stamp(5)
    g.e("s_cmp_eq_u32 s32, 3")
    g.e("s_cbranch_scc0 L_k2_aend")
    g.stamp(4)
    g.e("s_mov_b32 s32, 1")
    g.e("s_mov_b32 s33, 0")
    g.e("s_waitcnt vmcnt(0) lgkmcnt(0)")
    g.e("s_barrier")
    g.e("s_branch L_k2_round")
    g.label("L_k2_aend")
    skc = g.newlabel("nocode")
    g.e("s_cmp_eq_u32 s44, 6")
    g.e(f"s_cbranch_scc0 {skc}")
    code_touch(g, 96, 14, "L_all_end", "L_p3", False)
    if HOT:
        g.e("s_load_dwordx2 s[96:97], s[0:1], 40")
        g.e("s_and_b32 s49, s43, 0x1e")
        g.e("s_add_u32 s49, s49, s41")
        g.e("s_lshl_b32 s49, s49, 17")
        g.e("s_lshl_b32 s50, s42, 15")
        g.e("s_add_u32 s49, s49, s50")
        g.e("v_and_b32 v12, 31, v0")
        g.e("v_lshlrev_b32 v12, 10, v12")
        g.e("v_bfe_u32 v13, v0, 5, 1")
        g.e("v_lshl_add_u32 v12, v13, 9, v12")
        g.e("s_waitcnt lgkmcnt(0)")
        g.e(f"s_mov_b32 s98, {4 * MB}")
        g.e("s_mov_b32 s99, 0x20000")
        g.e("buffer_load_dword v13, v12, s[96:99], s49 offen offset:384")
        if HOT > 1: g.e("buffer_load_dword v13, v12, s[96:99], s49 offen offset:256")
    g.label(skc)
    if PF2:
        sk = g.newlabel("nopf")
        g.e("s_cmp_eq_u32 s44, 6")
        g.e(f"s_cbranch_scc0 {sk}")
        g.e("s_cmp_eq_u32 s41, 1")
        g.e(f"s_cbranch_scc0 {sk}")
        g.e("s_load_dwordx2 s[20:21], s[0:1], 40")
        g.e("s_load_dwordx2 s[28:29], s[0:1], 80")
        g.e("s_lshl_b32 s49, s43, 2")
        g.e("s_add_u32 s49, s49, s42")
        g.e(f"v_lshlrev_b32 v10, 3, v{V16}")
        g.e("s_lshl_b32 s50, s49, 15")
        g.e("s_mul_i32 s51, s49, 7168")
        g.e("s_waitcnt lgkmcnt(0)")
        g.e(f"s_mov_b32 s22, {4 * MB}")
        g.e("s_mov_b32 s23, 0x20000")
        g.e(f"s_mov_b32 s30, {896 * 1024}")
        g.e("s_mov_b32 s31, 0x20000")
        for i in range(4):
            g.e(f"buffer_load_dword v{12 + i}, v10, s[20:23], s50 offen")
            g.e("s_add_u32 s50, s50, 8192")
        g.e("buffer_load_dword v11, v10, s[28:31], s51 offen")
        g.label(sk)
    g.stamp_dump(16, 17, 40, 1)
    if MERGE == 2:
        g.e("s_lshl_b32 s58, s44, 2")
        g.e("s_bfe_u32 s49, s43, 0x20001")
        g.e("s_add_u32 s58, s58, s49")
        g.e("s_add_u32 s58, s58, 21")
        g.e("s_lshl_b32 s58, s58, 7")
        g.e("s_lshr_b32 s49, s43, 3")
        g.e("s_lshl_b32 s49, s49, 3")
        g.e("s_add_u32 s58, s58, s49")
        g.e("s_and_b32 s49, s43, 1")
        g.e("s_lshl_b32 s49, s49, 2")
        g.e("s_add_u32 s58, s58, s49")
        g.e("s_branch L_p3")
    else: g.e("s_endpgm")
    g.label("L_k2_slow")
    l1 = g.newlabel("slow1"); l2 = g.newlabel("slow2")
    g.e("s_cmp_eq_u32 s5, 0")
    g.e(f"s_cbranch_scc0 {l1}")
    rescale(g, False)
    g.e(f"s_branch {l2}")
    g.label(l1)
    rescale(g, True)
    g.label(l2)
    for op in softmax_ops(g): op()
    g.e("s_branch L_k2_back")

def gen_spatial(g):
    ACC, AR, BB, Z1R = 144, 116, 84, 24
    ZB, ZS = 98304, 14336
    VWD = 80
    acc = lambda fb, tt: ACC + (fb * 4 + tt) * 4
    g.vm = []; g.ds = []
    g.label("L_k2_sp")
    g.e("s_lshl_b32 s57, s3, 13")
    g.e("s_and_b32 s44, s41, 3")
    if BAL:
        g.e("s_bfe_u32 s49, s41, 0x10002")
        g.e("s_add_u32 s3, s3, s49")
    g.e("s_and_b32 s42, s40, 3")
    g.e("s_lshr_b32 s41, s40, 2")
    srd(g, 20, 6, 7, 2048 * 4096)
    srd(g, 24, 16, 17, SZ_Z, WS_Z2)
    g.e("v_and_b32 v28, 63, v0")
    g.e(f"v_lshlrev_b32 v{V16}, 4, v28")
    g.e("v_bfe_u32 v28, v0, 3, 3")
    g.e("v_and_b32 v29, 7, v0")
    g.e("v_lshrrev_b32 v30, 1, v28")
    g.e("v_xor_b32 v29, v29, v30")
    g.e("s_lshl_b32 s49, s3, 8")
    g.e("s_lshl_b32 s50, s40, 5")
    g.e("s_add_u32 s49, s49, s50")
    g.e("v_add_u32 v28, s49, v28")
    g.e("v_lshlrev_b32 v28, 12, v28")
    g.e("v_xor_b32 v30, 4, v29")
    g.e("v_lshl_add_u32 v29, v29, 4, v28")
    g.e("v_lshl_add_u32 v30, v30, 4, v28")
    for j in range(4): g.e(f"v_add_u32 v{VWD + j}, {j * 8 * 4096 - j * 1024}, v{29 + (j & 1)}")
    g.e("s_lshl_b32 s48, s40, 1")
    g.e("s_min_u32 s48, s48, 12")
    g.e("s_mul_i32 s49, s44, 14")
    g.e("s_add_u32 s49, s49, s48")
    g.e("s_lshl_b32 s43, s49, 10")
    g.e("s_mov_b32 s45, 0")
    g.e("s_lshl_b32 s46, s40, 12")
    g.e("s_lshl_b32 s47, s48, 10")
    g.e(f"s_add_u32 s47, s47, {ZB}")
    def wop(b, j):
        if j % 2 == 0:
            g.e(f"s_add_u32 m0, s46, {(b % 3) * 32768}")
            g.e("s_nop 0")
        g.vmem(f"buffer_load_dwordx4 v{VWD + j}, s[20:23], s45 offen offset:{j * 1024} {NTSP} lds", ("w", 2 * b))
        if j == 3: g.e("s_add_u32 s45, s45, 128")
    def zop(st, j):
        if j == 0:
            g.e(f"s_add_u32 m0, s47, {(st % 4) * ZS}")
            g.e("s_nop 0")
        g.vmem(f"buffer_load_dwordx4 v{V16}, s[24:27], s43 offen offset:{j * 1024} {SC} lds", ("z", st))
        if j == 1: g.e("s_add_u32 s43, s43, 57344")
    def dma_ops(st):
        b, h = st // 2 + 2, st & 1
        return [lambda: zop(st + 3, 0), lambda: zop(st + 3, 1), lambda: wop(b, 2 * h), lambda: wop(b, 2 * h + 1)]
    if MERGE:
        g.e("s_waitcnt vmcnt(0)")
        g.e("s_barrier")
        nw = g.newlabel("nw"); nw2 = g.newlabel("nw")
        g.e("s_cmp_lg_u32 s40, 0")
        g.e(f"s_cbranch_scc1 {nw}")
        if k1.STKV == '':
            g.e("buffer_wbl2 sc1")
            g.e("s_waitcnt vmcnt(0)")
        flag_set(g, 10, 58, 59, 100)
        g.e("v_min_u32 v14, 55, v0")
        g.e("v_and_b32 v15, 7, v14")
        g.e("v_lshrrev_b32 v14, 3, v14")
        g.e("v_lshlrev_b32 v14, 7, v14")
        g.e("v_lshl_add_u32 v14, v15, 2, v14")
        g.e(f"s_add_u32 s49, s57, {14 * 128 + 32}")
        g.e("v_add_u32 v14, s49, v14")
        flag_load(g, 12, 14, 100)
        g.label(nw)
        g.e("s_barrier")
        for j in range(4): wop(0, j)
        if SPT:
            g.e("s_lshl_b32 s49, s44, 3")
            g.e("s_add_u32 s49, s49, s40")
            g.e("s_lshl_b32 s49, s49, 15")
            g.e("s_lshl_b32 s50, s3, 20")
            g.e("s_add_u32 s49, s49, s50")
            g.e("v_bfe_u32 v9, v0, 3, 3")
            g.e("v_lshlrev_b32 v9, 12, v9")
            g.e("v_and_b32 v8, 7, v0")
            g.e("v_lshl_add_u32 v9, v8, 7, v9")
            for i in range(SPT): g.vmem(f"buffer_load_dword v8, v9, s[20:23], s49 offen offset:{128 + 1024 * i}", ("w", 0))
        g.e("s_cmp_lg_u32 s40, 0")
        g.e(f"s_cbranch_scc1 {nw2}")
        g.e(f"s_waitcnt vmcnt({4 + SPT})")
        flag_wait(g, 12, 14, 59, 100, SLS, True)
        g.e("v_min_u32 v14, 39, v0")
        g.e("v_and_b32 v15, 3, v14")
        g.e("v_lshrrev_b32 v14, 2, v14")
        g.e("v_lshlrev_b32 v14, 7, v14")
        g.e("v_lshl_add_u32 v14, v15, 3, v14")
        g.e(f"s_add_u32 s49, s57, {11 * 128}")
        g.e("v_add_u32 v14, s49, v14")
        g.label(nw2)
        g.e("s_barrier")
        zop(0, 0); zop(0, 1)
    else:
        zop(0, 0); zop(0, 1)
        for j in range(4): wop(0, j)
        code_touch(g, 96, 14, "L_k2_spend", None, False)
    srd(g, 12, 8, 9, 4096)
    g.e("v_and_b32 v11, 15, v0")
    g.e("v_lshlrev_b32 v11, 1, v11")
    g.e("s_lshl_b32 s49, s3, 9")
    g.e("s_lshl_b32 s50, s42, 7")
    g.e("s_add_u32 s49, s49, s50")
    for tt in range(4): g.vmem(f"buffer_load_ushort v{16 + tt}, v11, s[12:15], s49 offen offset:{tt * 32}", ("w", 0))
    g.e("s_barrier")
    zop(1, 0); zop(1, 1)
    if MERGE < 2:
        srd(g, 28, 16, 17, 32768, WS_PART + 8 * MB)
        g.e("s_sub_u32 s49, s2, 224")
        g.e("s_lshl_b32 s49, s49, 10")
        g.e("v_lshrrev_b32 v28, 6, v0")
        g.e(f"v_lshl_add_u32 v28, v28, 24, v{V16}")
        for i in range(4): g.e(f"v_mov_b32 v{20 + i}, 0")
        g.e("buffer_store_dwordx4 v[20:23], v28, s[28:31], s49 offen")
    srd(g, 28, 16, 17, SZ_Z, WS_Z1)
    srd(g, 36, 16, 17, SZ_CTX, WS_CTX)
    g.e("s_mul_i32 s49, s41, 7168")
    g.e(f"s_add_u32 s49, s49, {ZB}")
    g.e(f"v_add_u32 v4, s49, v{V16}")
    g.e("v_and_b32 v28, 15, v0")
    g.e("v_bfe_u32 v29, v0, 4, 2")
    g.e("v_lshrrev_b32 v30, 1, v28")
    g.e("v_xor_b32 v29, v29, v30")
    g.e("v_lshlrev_b32 v29, 4, v29")
    g.e("v_lshl_add_u32 v29, v28, 7, v29")
    g.e("s_lshl_b32 s49, s42, 13")
    g.e("v_add_u32 v1, s49, v29")
    g.e("v_xor_b32 v2, 64, v1")
    g.e("v_add_u32 v5, 0x10000, v1")
    g.e("v_add_u32 v6, 0x10000, v2")
    def aread(st, fb): g.lds(f"DR {AR + fb * 4},4,{(st % 4) * ZS + fb * 1024}", ("a", st, fb))
    def bread(st, tt):
        sl = (st // 2) % 3
        g.lds(f"DR {BB + (st & 1) * 16 + tt * 4},{(5 if sl == 2 else 1) + (st & 1)},{(sl & 1) * 32768 + tt * 2048}", ("b", st))
    SCH = {(3, 0): ("a", 0), (3, 1): ("b", 0), (3, 2): ("b", 1), (4, 0): ("b", 2), (4, 1): ("b", 3), (4, 2): ("a", 1), (5, 0): ("a", 2), (6, 0): ("a", 3)}
    rd = lambda st, k: (aread if k[0] == "a" else bread)(st, k[1])
    g.wait_vm(("z", 0), ("w", 0))
    g.e("s_barrier")
    for key in sorted(SCH): rd(0, SCH[key])
    for tt in range(4):
        for r in range(4): g.e(f"v_lshlrev_b32 v{24 + tt * 4 + r}, 16, v{16 + tt}")
    g.e("s_mov_b32 s52, 0")
    g.stamp(1)
    def step(st, extra=(), dma=4, nxt=True, init=False):
        extra = list(extra)
        pend = []
        for fb in range(7):
            g.wait_ds(("a", st, fb), ("b", st))
            for tt in range(4):
                if init: g.e(f"MC {acc(fb, tt)},{AR + fb * 4},{BB + (st & 1) * 16 + tt * 4},{24 + tt * 4}")
                else: g.e(f"M {acc(fb, tt)},{AR + fb * 4},{BB + (st & 1) * 16 + tt * 4}")
                if tt == 0 and fb < 3: aread(st, fb + 4)
                if nxt:
                    if (fb, tt) == (3, 0):
                        g.wait_vm(("z", st + 1), ("w", st + 1))
                        g.e("s_barrier")
                        pend = dma_ops(st)[:dma]
                    if (fb, tt) in SCH: rd(st + 1, SCH[(fb, tt)])
                if tt == 3 and pend: pend.pop(0)()
                if tt in (1, 3) and extra and fb < 3:
                    extra.pop(0)()
        assert not pend and not extra
    step(0, [lambda j=j: wop(1, j) for j in range(4)] + [lambda: zop(2, 0), lambda: zop(2, 1)], init=True)
    for st in range(1, 4): step(st)
    g.label("L_k2_sploop")
    vm0, ds0 = list(g.vm), list(g.ds)
    for st in range(4, 16): step(st)
    ren = lambda t: (t[0], t[1] - 12) + t[2:]
    g.vm = [ren(t) for t in g.vm]; g.ds = [ren(t) for t in g.ds]
    assert g.vm == vm0 and g.ds == ds0, (g.vm, vm0, g.ds, ds0)
    g.e("s_add_u32 s52, s52, 1")
    g.e("s_cmp_lt_u32 s52, 4")
    g.e("s_cbranch_scc1 L_k2_sploop")
    g.stamp(2)
    g.e("s_lshl_b32 s49, s3, 4")
    g.e("s_lshl_b32 s50, s42, 2")
    g.e("s_add_u32 s49, s49, s50")
    g.e("s_mul_i32 s54, s49, 28672")
    g.e("s_mul_i32 s55, s49, 159744")
    g.e(f"s_add_u32 s55, s55, {128 * 1024}")
    for tt in range(4):
        g.e(f"v_add_u32 v{16 + tt}, {tt * 28672}, v{V16}")
        g.e(f"v_add_u32 v{20 + tt}, {tt * 159744}, v{V16}")
    g.e("s_mul_i32 s56, s44, 14")
    g.e("s_mul_i32 s48, s41, 7")
    g.e("s_add_u32 s56, s56, s48")
    g.e("s_lshr_b32 s56, s56, 1")
    g.e("s_lshl_b32 s56, s56, 10")
    g.e("s_add_u32 s54, s54, s56")
    g.e("s_add_u32 s55, s55, s56")
    def z1load(u):
        for tt in range(4):
            r = Z1R + (u * 4 + tt) * 4
            g.vmem(f"buffer_load_dwordx4 v[{r}:{r + 3}], v{16 + tt}, s[28:31], s54 offen offset:{u * 1024} {SC}", ("z1", u))
    for st in range(4, 16):
        ex = {8: 0, 10: 1, 12: 2, 15: 3}
        def w0(fn):
            sk = g.newlabel("w0")
            g.e("s_cmp_lg_u32 s40, 0"); g.e(f"s_cbranch_scc1 {sk}")
            fn(); g.label(sk)
        fl = []
        if MERGE and st == 4: fl = [lambda: w0(lambda: flag_load(g, 12, 14, 100, True))]
        if MERGE and st == 7: fl = [lambda: w0(lambda: flag_wait(g, 12, 14, 59, 100, SLS, True, True))]
        step(st, [lambda u=ex[st]: z1load(u)] if st in ex else fl, dma=4 if st < 12 else (2 if st == 12 else 0), nxt=st < 15)
    g.stamp(4)
    g.e("s_nop 4")
    g.e("s_mov_b32 s53, 0xffff0000")
    vm_sv = list(g.vm)
    lode = g.newlabel("spodd"); lend = g.newlabel("spend")
    g.e("s_cmp_eq_u32 s41, 1")
    g.e(f"s_cbranch_scc1 {lode}")
    for fh in range(2):
        g.vm = list(vm_sv)
        if fh: g.label(lode)
        for u in range(4):
            halves = [(h, 2 * u + h - fh) for h in range(2) if 0 <= 2 * u + h - fh < 7]
            g.wait_vm(("z1", u))
            for tt in range(4):
                z = Z1R + (u * 4 + tt) * 4
                for h, fb in halves:
                    a = acc(fb, tt); t = 8 if h else 1
                    g.e(f"v_lshlrev_b32 v{t}, 16, v{z + 2 * h}")
                    g.e(f"v_and_b32 v{t + 1}, s53, v{z + 2 * h}")
                    g.e(f"v_lshlrev_b32 v{t + 2}, 16, v{z + 2 * h + 1}")
                    g.e(f"v_and_b32 v{t + 3}, s53, v{z + 2 * h + 1}")
                    for r in range(4): g.e(f"v_mul_f32 v{a + r}, v{a + r}, v{t + r}")
                    g.e(f"PK {z + 2 * h},{a},{a + 1}"); g.e(f"PK {z + 2 * h + 1},{a + 2},{a + 3}")
                if 's' in HACK and u >= 2: pass
                elif len(halves) == 2:
                    g.vmem(f"buffer_store_dwordx4 v[{z}:{z + 3}], v{20 + tt}, s[36:39], s55 offen offset:{u * 1024} {STFU}", "st")
                else:
                    h = halves[0][0]
                    g.vmem(f"buffer_store_dwordx2 v[{z + 2 * h}:{z + 2 * h + 1}], v{20 + tt}, s[36:39], s55 offen offset:{u * 1024 + 8 * h} {STFU}", "st")
        if fh == 0: g.e(f"s_branch {lend}")
    g.label(lend)
    g.stamp(3)
    g.stamp_dump(16, 17, 40, 1)
    if MERGE == 2:
        g.e("s_add_u32 s58, s44, 49")
        g.e("s_lshl_b32 s58, s58, 7")
        g.e("s_lshl_b32 s49, s3, 2")
        g.e("s_add_u32 s58, s58, s49")
        g.e("s_branch L_p3")
    else: g.e("s_endpgm")

def gen_k2(g):
    if not MERGE:
        g.e(".p2align 8")
        g.e(".type k2_kernel,@function")
        g.label("k2_kernel")
        g.e("s_cmp_ge_u32 s2, 256")
        g.e("s_cbranch_scc1 L_k2_end")
    g.label("L_p2")
    g.stamp(0)
    if PROF: g.e("s_memrealtime s[94:95]")
    g.e("s_load_dwordx2 s[4:5], s[0:1], 16")
    g.e("s_load_dwordx4 s[8:11], s[0:1], 64")
    g.e("s_load_dwordx2 s[16:17], s[0:1], 104")
    g.e("v_lshrrev_b32 v1, 6, v0")
    g.e("s_and_b32 s3, s2, 7")
    g.e("s_lshr_b32 s41, s2, 3")
    g.e("v_readfirstlane_b32 s40, v1")
    g.e("s_waitcnt lgkmcnt(0)")
    g.e("s_mov_b32 s6, s8")
    g.e("s_mov_b32 s7, s9")
    g.e("s_mov_b32 s8, s10")
    g.e("s_mov_b32 s9, s11")
    if MERGE:
        nw = g.newlabel("nw")
        g.e("s_cmp_lg_u32 s40, 0")
        g.e(f"s_cbranch_scc1 {nw}")
        flag_wait(g, 13, 15, 59, 100, SLA, True)
        g.e("v_mov_b32 v13, 0")
        g.label(nw)
    if BAL:
        g.e("s_bitcmp1_b32 s2, 0")
        g.e("s_cbranch_scc1 L_k2_attn")
    g.e(f"s_cmp_lt_u32 s41, {24 if BAL else 28}")
    g.e("s_cbranch_scc1 L_k2_attn")
    g.e("s_branch L_k2_sp")
    g.label("L_k2_end")
    g.e("s_endpgm")
    gen_attn(g)
    gen_spatial(g)
    g.label("L_k2_spend")
```

```python
from asmlib import *
from k1 import tr_bases

LDS = 163840
NVGPR = 128
ACC = 32
AF = 64
WF = 96
NS = 39
DYN = int(os.environ.get('DYN', '0'))
SL3 = int(os.environ.get('SL3', '4'))
FUSE = int(os.environ.get('FUSE', '1'))
PD = int(os.environ.get('PD', '8'))
STP = os.environ.get('STP', 'sc1')

def gen_k3(g):
    g.vm = []; g.ds = []
    M2 = MERGE == 2
    if not M2:
        g.e(".p2align 8")
        g.e(".type k3_kernel,@function")
        g.label("k3_kernel")
        g.e("s_cmp_ge_u32 s2, 256")
        g.e("s_cbranch_scc1 L_k3_end")
    g.label("L_p3")
    diag_mark(g, 3)
    g.stamp(0)
    if PROF: g.e("s_memrealtime s[94:95]")
    g.e("s_load_dwordx2 s[6:7], s[0:1], 40")
    g.e("s_load_dwordx4 s[8:11], s[0:1], 80")
    g.e("s_load_dwordx2 s[4:5], s[0:1], 0")
    g.e("s_load_dwordx2 s[16:17], s[0:1], 104")
    g.e("v_lshrrev_b32 v1, 6, v0")
    g.e("s_bfe_u32 s43, s2, 0x20001")
    g.e("s_and_b32 s42, s2, 1")
    g.e("v_readfirstlane_b32 s40, v1")
    g.e("s_lshl_b32 s42, s42, 3")
    g.e("s_lshr_b32 s49, s2, 5")
    g.e("s_add_u32 s42, s42, s49")
    g.e("s_bfe_u32 s41, s2, 0x20003")
    g.e("v_bfe_u32 v28, v0, 5, 1")
    g.e("v_bfe_u32 v29, v0, 2, 2")
    g.e("v_lshl_add_u32 v28, v28, 4, v29")
    g.e("v_bfe_u32 v29, v0, 6, 2")
    g.e("v_lshl_add_u32 v28, v29, 2, v28")
    g.e("v_lshlrev_b32 v28, 10, v28")
    g.e("v_bfe_u32 v30, v0, 4, 1")
    g.e("v_lshl_add_u32 v28, v30, 6, v28")
    g.e("v_lshrrev_b32 v30, 8, v0")
    g.e("v_lshl_add_u32 v28, v30, 7, v28")
    g.e("v_and_b32 v29, 1, v29")
    g.e("v_lshlrev_b32 v29, 1, v29")
    g.e("v_and_b32 v30, 3, v0")
    g.e("v_xor_b32 v29, v29, v30")
    g.e("v_lshl_add_u32 v1, v29, 4, v28")
    g.e("v_and_b32 v28, 63, v0")
    g.e("v_lshlrev_b32 v7, 4, v28")
    g.e("s_lshl_b32 s46, s40, 10")
    g.e("s_lshl_b32 s49, s42, 3")
    g.e("s_add_u32 s49, s49, s40")
    g.e("s_mul_i32 s47, s49, 159744")
    g.e("s_lshl_b32 s49, s43, 13")
    g.e("s_add_u32 s44, s47, s49")
    g.e("s_mul_i32 s49, s43, 7168")
    g.e("s_add_u32 s45, s47, s49")
    g.e(f"s_add_u32 s45, s45, {128 * 1024}")
    g.e("s_lshl_b32 s49, s41, 8")
    g.e("s_lshl_b32 s52, s43, 18")
    g.e("s_add_u32 s52, s52, s49")
    g.e(f"s_mul_i32 s53, s43, {7 * 32768}")
    g.e("s_add_u32 s53, s53, s49")
    g.e("s_waitcnt lgkmcnt(0)")
    srd(g, 20, 6, 7, 4096 * 1024)
    srd(g, 24, 8, 9, 896 * 1024)
    srd(g, 28, 16, 17, SZ_CTX, WS_CTX)
    def dma_ops(t):
        if t >= NS: return []
        u = t >= 32
        dyn = M2 and DYN and not u
        tt = t - 32 if u else ((t & 3) if dyn else (((t >> 2) & 1) + 8 * (t >> 3)) * 4 + (t & 3))
        def a():
            if dyn and t % 4 == 0:
                g.e("s_ff1_i32_b32 s49, s62")
                g.e("s_bitset0_b32 s62, s49")
                g.e("s_and_b32 s60, s49, 1")
                g.e("s_bfe_u32 s49, s49, 0x20001")
                g.e("s_lshl_b32 s49, s49, 3")
                g.e("s_add_u32 s49, s49, s60")
                g.e("s_lshl_b32 s60, s49, 12")
                g.e("s_add_u32 s60, s60, s44")
                g.e("s_lshl_b32 s61, s49, 17")
                g.e("s_add_u32 s61, s61, s52")
            g.e(f"s_add_u32 m0, s46, {(t % 10) * 16384}")
            g.e(f"s_add_u32 s49, s{45 if u else (60 if dyn else 44)}, {tt * 1024}")
            g.vmem(f"buffer_load_dwordx4 v7, s[28:31], s49 offen {'sc1' if M2 else ''} lds", t // 2)
        def w():
            g.e(f"s_add_u32 m0, s46, {(t % 10) * 16384 + 8192}")
            g.e(f"s_add_u32 s49, s{53 if u else (61 if dyn else 52)}, {tt * 32768}")
            g.vmem(f"buffer_load_dwordx4 v1, s[{24 if u else 20}:{27 if u else 23}], s49 offen lds", t // 2)
        return [a, w]
    def w0(fn):
        sk = g.newlabel("w0")
        g.e("s_cmp_lg_u32 s40, 0"); g.e(f"s_cbranch_scc1 {sk}")
        fn(); g.label(sk)
    if M2:
        if not DYN:
            g.e("s_waitcnt vmcnt(0)")
            g.e("s_barrier")
            w0(lambda: flag_set(g, 20, 58, 59, 100))
            for t in range(4): dma_ops(t)[1]()
        g.e("s_sub_u32 s49, 15, s42")
        g.e("s_sub_u32 s50, s42, 4")
        if BAL == 2: g.e("s_xor_b32 s50, s50, 1")
        g.e("s_cmp_ge_u32 s42, 10")
        g.e("s_cselect_b32 s49, s49, s50")
        g.e("s_cmp_lt_u32 s42, 4")
        g.e("s_cselect_b32 s49, 6, s49")
        g.e("s_lshl_b32 s49, s49, 2")
        g.e("s_add_u32 s49, s49, s43")
        g.e("s_add_u32 s49, s49, 21")
        g.e("s_lshl_b32 s49, s49, 7")
        g.e("s_and_b32 s50, s2, 7")
        g.e("s_lshl_b32 s50, s50, 13")
        g.e("s_add_u32 s49, s49, s50")
        g.e("v_and_b32 v17, 7, v0")
        g.e("v_lshl_add_u32 v17, v17, 2, s49")
        g.e("s_add_u32 s49, s43, 49")
        g.e("s_lshl_b32 s49, s49, 7")
        g.e("s_add_u32 s49, s49, s50")
        g.e("s_lshr_b32 s50, s42, 1")
        g.e("s_lshl_b32 s50, s50, 2")
        g.e("s_add_u32 s49, s49, s50")
        g.e("v_mov_b32 v18, s49")
        if not DYN:
            w0(lambda: flag_wait(g, 26, 17, 59, 100, SL3, False))
            g.e("v_mov_b32 v26, 0")
            g.e("s_barrier")
            for t in range(4): dma_ops(t)[0]()
        else:
            w0(lambda: flag_load(g, 27, 17, 100))
            g.e("v_mov_b32 v26, 0")
            g.e("v_mov_b32 v25, 163832")
            g.e("s_waitcnt vmcnt(0)")
            g.e("s_barrier")
            def order():
                flag_set(g, 20, 58, 59, 100)
                spin = g.newlabel("spin"); chk = g.newlabel("chk")
                g.e(f"s_branch {chk}")
                g.label(spin)
                g.e(f"s_sleep {SL3}")
                flag_load(g, 27, 17, 100)
                g.e("s_waitcnt vmcnt(0)")
                g.label(chk)
                g.e("v_cmp_eq_u32 vcc, s59, v27")
                g.e("s_nop 1")
                g.e("s_and_b32 s62, vcc_lo, 0xff")
                g.e("s_bcnt1_i32_b32 s49, s62")
                g.e("s_cmp_lt_u32 s49, 2")
                g.e(f"s_cbranch_scc1 {spin}")
                g.e("s_xor_b32 s49, s62, 0xff")
                g.e("s_lshl_b32 s49, s49, 8")
                g.e("s_or_b32 s62, s62, s49")
                g.e("v_mov_b32 v24, s62")
                g.e("ds_write_b32 v25, v24")
                g.e("s_waitcnt lgkmcnt(0)")
            w0(order)
            g.e("s_barrier")
            g.e("ds_read_b32 v24, v25")
            g.e("s_waitcnt lgkmcnt(0)")
            g.e("v_readfirstlane_b32 s62, v24")
            g.e("s_nop 3")
            for t in range(4):
                for op in dma_ops(t): op()
    else:
        for t in range(2):
            for op in dma_ops(t): op()
        code_touch(g, 60, 20, "L_all_end")
        g.e("s_barrier")
        for t in range(2, 4):
            for op in dma_ops(t): op()
    srd(g, 32, 16, 17, 8 * MB + 32768, WS_PART)
    if FUSE:
        srd(g, 12, 4, 5, 2 * MB)
        srd(g, 36, 10, 11, 2 * MB)
        g.e("s_lshl_b32 s49, s42, 2")
        g.e("s_add_u32 s49, s49, s41")
        g.e("s_lshl_b32 s56, s49, 9")
        g.e(f"s_add_u32 s56, s56, {8 * MB}")
        g.e("s_lshl_b32 s57, s43, 7")
        g.e("s_add_u32 s57, s57, s56")
        g.e("s_lshl_b32 s49, s49, 15")
        g.e("s_lshl_b32 s50, s40, 12")
        g.e("s_add_u32 s49, s49, s50")
        g.e("s_lshl_b32 s50, s43, 21")
        g.e("s_add_u32 s54, s49, s50")
        g.e("s_lshl_b32 s50, s43, 10")
        g.e("s_add_u32 s55, s49, s50")
        g.e("v_lshlrev_b32 v22, 20, v7")
        g.e("v_lshlrev_b32 v23, 3, v7")
        g.e("v_bfe_u32 v24, v0, 2, 4")
        g.e("v_lshl_add_u32 v23, v24, 24, v23")
        g.e("v_and_b32 v19, 15, v0")
        g.e("v_lshlrev_b32 v19, 10, v19")
        g.e("v_bfe_u32 v24, v0, 4, 1")
        g.e("v_lshl_add_u32 v19, v24, 5, v19")
        g.e("v_bfe_u32 v24, v0, 5, 1")
        g.e("v_lshl_add_u32 v19, v24, 4, v19")
        g.e("s_lshl_b32 s48, s42, 17")
        g.e("s_lshr_b32 s49, s40, 2")
        g.e("s_lshl_b32 s49, s49, 16")
        g.e("s_add_u32 s48, s48, s49")
        g.e("s_lshl_b32 s49, s43, 14")
        g.e("s_add_u32 s48, s48, s49")
        g.e("s_lshl_b32 s49, s41, 8")
        g.e("s_add_u32 s48, s48, s49")
        g.e("s_and_b32 s49, s40, 3")
        g.e("s_lshl_b32 s49, s49, 6")
        g.e("s_add_u32 s48, s48, s49")
    tr_bases(g, 8, 9)
    g.e("s_bfe_u32 s49, s40, 0x10001")
    g.e("s_lshl_b32 s49, s49, 12")
    g.e("s_and_b32 s50, s40, 1")
    g.e("s_lshl_b32 s50, s50, 8")
    g.e("s_add_u32 s49, s49, s50")
    g.e("s_add_u32 s49, s49, 8192")
    g.e("v_add_u32 v8, s49, v8")
    g.e("v_add_u32 v9, s49, v9")
    g.e("s_lshr_b32 s49, s40, 2")
    g.e("s_lshl_b32 s49, s49, 12")
    g.e("v_add_u32 v10, s49, v7")
    for k in (1, 2):
        for i in range(3): g.e(f"v_add_u32 v{8 + 3 * k + i}, {k * 0x10000}, v{8 + i}")
    g.stamp(1)
    pend = []
    def reads(t):
        if t >= NS: return []
        sl = t % 10; b = 8 + 3 * (sl >> 2); o = (sl & 3) * 16384
        ops = []
        if t % 2 == 0:
            def sync():
                assert not pend
                g.wait_vm(t // 2)
                if M2 and DYN and (t + PD) % 4 == 0 and t + PD < 32:
                    def late():
                        sk = g.newlabel("rdy")
                        if t == 0: g.e("s_sub_u32 s49, s62, 1"); g.e("s_and_b32 s49, s49, s62"); g.e("s_and_b32 s49, s49, 0xff")
                        else: g.e("s_and_b32 s49, s62, 0xff")
                        g.e(f"s_cbranch_scc1 {sk}")
                        flag_wait(g, 27, 17, 59, 100, SL3, True)
                        g.label(sk)
                    w0(late)
                if M2 and t + PD == 32: w0(lambda: flag_wait(g, 26, 18, 59, 100, SL3, True))
                g.e("s_barrier")
                if M2 and t + PD == 26: w0(lambda: flag_load(g, 26, 18, 100))
                pend.extend(dma_ops(t + PD) + dma_ops(t + PD + 1))
            ops.append(sync)
        rd = []
        for cb in range(2):
            for a in range(2):
                rd.append(lambda cb=cb, a=a: g.lds(f"TR {WF + (t & 1) * 8 + cb * 4 + 2 * a},{b + cb},{o + a * 512}", ("r", t)))
        dr = [lambda rt=rt: g.lds(f"DR {AF + (t & 1) * 16 + rt * 4},{b + 2},{o + rt * 1024}", ("r", t)) for rt in range(4)]
        return ops + rd[:2] + dr + rd[2:]
    ramp = [op for t in range(4, PD) for op in dma_ops(t)]
    for op in reads(0): op()
    ramp += pend; del pend[:]
    for t in range(NS):
        nx = reads(t + 1)
        g.wait_ds(("r", t))
        k = 0
        for cb in range(2):
            for rt in range(4):
                g.e(f"{'MZ' if t == 0 else 'M'} {ACC + (cb * 4 + rt) * 4},{WF + (t & 1) * 8 + cb * 4},{AF + (t & 1) * 16 + rt * 4}")
                n = 2 if k < 4 else 1
                for _ in range(n):
                    if nx: nx.pop(0)()
                if ramp:
                    ramp.pop(0)()
                    if t == 0 and k >= 4 and ramp: ramp.pop(0)()
                elif k >= 5 and k != 6 and pend: pend.pop(0)()
                k += 1
        assert not nx
        if FUSE and t == 32: g.vmem("buffer_load_dwordx4 v[112:115], v19, s[12:15], s48 offen", "xx")
        if t in (0, 9, 19, 29): g.stamp({0: 2, 9: 3, 19: 4, 29: 5}[t])
    g.stamp(6)
    if not FUSE:
        g.e("s_lshl_b32 s49, s43, 21")
        g.e("s_lshl_b32 s50, s42, 17")
        g.e("s_add_u32 s49, s49, s50")
        g.e("s_lshl_b32 s50, s41, 15")
        g.e("s_add_u32 s49, s49, s50")
        g.e("s_lshl_b32 s50, s40, 12")
        g.e("s_add_u32 s49, s49, s50")
        g.e("s_nop 4")
        for rt in range(4):
            x, y = ACC + rt * 4, ACC + (4 + rt) * 4
            g.e(f"PK {x},{x},{x + 1}"); g.e(f"PK {x + 1},{x + 2},{x + 3}")
            g.e(f"PK {x + 2},{y},{y + 1}"); g.e(f"PK {x + 3},{y + 2},{y + 3}")
        g.e("s_nop 1")
        for rt in range(4):
            x = ACC + rt * 4
            g.e(f"v_permlane16_swap_b32 v{x}, v{x + 2}")
            g.e(f"v_permlane16_swap_b32 v{x + 1}, v{x + 3}")
            g.e(f"buffer_store_dwordx4 v[{x}:{x + 3}], v7, s[32:35], s49 offen offset:{rt * 1024} {STP}")
    else:
        g.e("s_nop 4")
        for rt in range(4):
            x, y = ACC + rt * 4, ACC + (4 + rt) * 4
            d = AF + rt * 4
            g.e(f"PK {d},{x},{x + 1}"); g.e(f"PK {d + 1},{x + 2},{x + 3}")
            g.e(f"PK {d + 2},{y},{y + 1}"); g.e(f"PK {d + 3},{y + 2},{y + 3}")
            sk = g.newlabel("own")
            g.e(f"s_cmp_eq_u32 s43, {rt}")
            g.e(f"s_cbranch_scc1 {sk}")
            g.e(f"buffer_store_dwordx4 v[{d}:{d + 3}], v7, s[32:35], s54 offen offset:{rt * 1024} sc1")
            g.label(sk)
        for rt in range(1, 4):
            sk = g.newlabel("mv")
            g.e(f"s_cmp_lg_u32 s43, {rt}")
            g.e(f"s_cbranch_scc1 {sk}")
            for cb in range(2):
                for r in range(4): g.e(f"v_mov_b32 v{ACC + cb * 16 + r}, v{ACC + (cb * 4 + rt) * 4 + r}")
            g.label(sk)
        g.e("v_mov_b32 v21, s59" if M2 else "v_mov_b32 v21, 1")
        g.e("s_waitcnt vmcnt(0)")
        g.e("s_barrier")
        g.stamp(7)
        spin = g.newlabel("spin"); done = g.newlabel("done")
        g.e("s_cmp_lg_u32 s40, 0")
        g.e(f"s_cbranch_scc1 {done}")
        g.e("buffer_store_dword v21, v22, s[32:35], s57 offen sc1")
        g.label(spin)
        g.e("buffer_load_dword v24, v23, s[32:35], s56 offen sc1")
        g.e("s_waitcnt vmcnt(0)")
        g.e("v_cmp_eq_u32 vcc, v21, v24")
        g.e("s_nop 1")
        g.e("s_and_b32 s49, vcc_lo, 15")
        g.e("s_cmp_eq_u32 s49, 15")
        g.e(f"s_cbranch_scc1 {done}")
        g.e(f"s_sleep {os.environ.get('SL4', '2')}")
        g.e(f"s_branch {spin}")
        g.label(done)
        g.e("s_barrier")
        g.stamp(8)
        for i in range(3):
            g.e(f"s_add_u32 s49, s43, {i + 1}")
            g.e("s_and_b32 s49, s49, 3")
            g.e("s_lshl_b32 s49, s49, 21")
            g.e("s_add_u32 s49, s49, s55")
            g.e(f"buffer_load_dwordx4 v[{AF + 4 * i}:{AF + 4 * i + 3}], v7, s[32:35], s49 offen sc1")
        A8 = [ACC + r for r in range(4)] + [ACC + 16 + r for r in range(4)]
        g.e("s_mov_b32 s50, 0xffff0000")
        for i in range(3):
            g.e(f"s_waitcnt vmcnt({2 - i})")
            for r in range(4):
                g.e(f"v_lshlrev_b32 v24, 16, v{AF + 4 * i + r}")
                g.e(f"v_and_b32 v25, s50, v{AF + 4 * i + r}")
                g.e(f"v_add_f32 v{A8[2 * r]}, v{A8[2 * r]}, v24")
                g.e(f"v_add_f32 v{A8[2 * r + 1]}, v{A8[2 * r + 1]}, v25")
        g.e("s_nop 1")
        for r in range(4): g.e(f"v_permlane16_swap_b32 v{A8[r]}, v{A8[4 + r]}")
        g.e("s_nop 1")
        for r in range(4):
            g.e(f"v_lshlrev_b32 v24, 16, v{112 + r}")
            g.e(f"v_and_b32 v25, s50, v{112 + r}")
            g.e(f"v_add_f32 v{A8[2 * r]}, v{A8[2 * r]}, v24")
            g.e(f"v_add_f32 v{A8[2 * r + 1]}, v{A8[2 * r + 1]}, v25")
        for r in range(4): g.e(f"PK {28 + r},{A8[2 * r]},{A8[2 * r + 1]}")
        g.e(f"buffer_store_dwordx4 v[28:31], v19, s[36:39], s48 offen {os.environ.get('STO', '')}")
    diag_end(g)
    g.stamp_dump(16, 17, 40, 2)
    g.label("L_k3_end")
    g.e("s_endpgm")
    if FUSE: g.label("L_all_end")

def gen_k4(g):
    g.e(".p2align 8")
    g.e(".type k4_kernel,@function")
    g.label("k4_kernel")
    g.e("s_cmp_ge_u32 s2, 256")
    g.e("s_cbranch_scc1 L_k4_end")
    g.e("s_load_dwordx2 s[4:5], s[0:1], 0")
    g.e("s_load_dwordx2 s[6:7], s[0:1], 88")
    g.e("s_load_dwordx2 s[16:17], s[0:1], 104")
    g.e("v_lshlrev_b32 v1, 4, v0")
    g.e("s_lshl_b32 s20, s2, 13")
    g.e("v_lshrrev_b32 v2, 6, v0")
    g.e("v_lshl_add_u32 v2, s2, 3, v2")
    g.e("v_lshrrev_b32 v3, 7, v2")
    g.e("v_lshlrev_b32 v3, 7, v3")
    g.e("v_bfe_u32 v4, v2, 4, 1")
    g.e("v_lshl_add_u32 v3, v4, 6, v3")
    g.e("v_and_b32 v4, 3, v2")
    g.e("v_lshl_add_u32 v3, v4, 4, v3")
    g.e("v_and_b32 v4, 15, v0")
    g.e("v_add_u32 v3, v3, v4")
    g.e("v_lshlrev_b32 v3, 10, v3")
    g.e("v_bfe_u32 v4, v2, 5, 2")
    g.e("v_lshl_add_u32 v3, v4, 8, v3")
    g.e("v_bfe_u32 v4, v2, 2, 2")
    g.e("v_lshl_add_u32 v3, v4, 6, v3")
    g.e("v_bfe_u32 v4, v0, 4, 1")
    g.e("v_lshl_add_u32 v3, v4, 5, v3")
    g.e("v_bfe_u32 v4, v0, 5, 1")
    g.e("v_lshl_add_u32 v3, v4, 4, v3")
    g.e("s_waitcnt lgkmcnt(0)")
    srd(g, 8, 16, 17, 8 * MB, WS_PART)
    srd(g, 12, 4, 5, 2 * MB)
    for q in range(4):
        g.e(f"buffer_load_dwordx4 v[{8 + 4 * q}:{11 + 4 * q}], v1, s[8:11], s20 offen")
        g.e(f"s_add_u32 s20, s20, {2 * MB}")
    g.e("buffer_load_dwordx4 v[24:27], v3, s[12:15], 0 offen")
    srd(g, 24, 6, 7, 2 * MB)
    g.e("s_mov_b32 s21, 0xffff0000")
    for q in range(5):
        g.e(f"s_waitcnt vmcnt({4 - q})")
        for i in range(4):
            r = 8 + 4 * q + i
            if q == 0:
                g.e(f"v_lshlrev_b32 v{28 + 2 * i}, 16, v{r}")
                g.e(f"v_and_b32 v{29 + 2 * i}, s21, v{r}")
            else:
                g.e(f"v_lshlrev_b32 v4, 16, v{r}")
                g.e(f"v_and_b32 v5, s21, v{r}")
                g.e(f"v_add_f32 v{28 + 2 * i}, v{28 + 2 * i}, v4")
                g.e(f"v_add_f32 v{29 + 2 * i}, v{29 + 2 * i}, v5")
    for i in range(4): g.e(f"PK {8 + i},{28 + 2 * i},{29 + 2 * i}")
    g.e("buffer_store_dwordx4 v[8:11], v3, s[24:27], 0 offen")
    g.label("L_k4_end")
    g.e("s_endpgm")
    g.label("L_all_end")
```

```python
import struct, os
KNAME = 'parallel_sum__compressed_kv_cla__mixer_gmlp__prompt_kernel'
PROF = int(os.environ.get('PROF', '0'))

def f32(x):
    return struct.unpack('<I', struct.pack('<f', x))[0]

class G:
    def __init__(self):
        self.lines = []
        self.vm = []
        self.ds = []
        self.uid = 0
    def e(self, s):
        self.lines.append(s)
    def label(self, name):
        self.lines.append(name + ":")
    def newlabel(self, base):
        self.uid += 1
        return f"L_{base}_{self.uid}"
    def vmem(self, s, tag=None):
        self.lines.append(s); self.vm.append(tag)
    def lds(self, s, tag=None):
        self.lines.append(s); self.ds.append(tag)
    def _need(self, lst, tags):
        idx = -1
        for i, t in enumerate(lst):
            if t in tags: idx = i
        return idx
    def wait_vm(self, *tags):
        idx = self._need(self.vm, tags)
        if idx < 0: return
        n = min(len(self.vm) - 1 - idx, 63)
        self.lines.append(f"s_waitcnt vmcnt({n})")
        self.vm = self.vm[len(self.vm) - n:] if n else []
    def wait_ds(self, *tags):
        idx = self._need(self.ds, tags)
        if idx < 0: return
        n = min(len(self.ds) - 1 - idx, 15)
        self.lines.append(f"s_waitcnt lgkmcnt({n})")
        self.ds = self.ds[len(self.ds) - n:] if n else []
    def wait_all(self, vm=True, ds=True):
        if vm and ds: self.lines.append("s_waitcnt vmcnt(0) lgkmcnt(0)")
        elif vm: self.lines.append("s_waitcnt vmcnt(0)")
        elif ds: self.lines.append("s_waitcnt lgkmcnt(0)")
        if vm: self.vm = []
        if ds: self.ds = []
    def stamp(self, i):
        if PROF == 4 and i > 6: return
        if PROF: self.lines.append(f"s_memtime s[{64 + 2 * i}:{65 + 2 * i}]")
        if PROF == 4 and 1 <= i <= 6: self.lines.append(f"s_memrealtime s[{64 + 2 * (i + 7)}:{65 + 2 * (i + 7)}]")
    def stamp_if(self, i, sreg, val):
        if PROF != 2: return
        l = self.newlabel("st")
        self.e(f"s_cmp_lg_u32 s{sreg}, {val}")
        self.e(f"s_cbranch_scc1 {l}")
        self.stamp(i)
        self.label(l)
    def stamp_dump(self, wslo, wshi, swave, kidx, n=16):
        if not PROF: return
        e = self.e
        e("s_waitcnt vmcnt(0) lgkmcnt(0)")
        e("s_memrealtime s[98:99]")
        e("s_memtime s[96:97]")
        e("s_waitcnt lgkmcnt(0)")
        e(f"s_add_u32 s60, s{wslo}, {WS_DBG + kidx * MB}")
        e(f"s_addc_u32 s61, s{wshi}, 0")
        e(f"s_mov_b32 s62, {MB}")
        e("s_mov_b32 s63, 0x20000")
        e("s_lshl_b32 s49, s2, 10")
        e(f"s_lshl_b32 s50, s{swave}, 7")
        e("s_add_u32 s49, s49, s50")
        e("v_and_b32 v1, 63, v0") if False else None
        e("v_mbcnt_lo_u32_b32 v30, -1, 0")
        e("v_mbcnt_hi_u32_b32 v30, -1, v30")
        e("v_lshlrev_b32 v30, 24, v30")
        for i in range(n + 2):
            e(f"v_mov_b32 v31, s{64 + 2 * i}")
            e(f"buffer_store_dword v31, v30, s[60:63], s49 offen offset:{4 * i}")
            e("s_nop 1")
    def text(self):
        return "\n".join(self.lines) + "\n"

MACROS = r"""
.macro M d,a,b
v_mfma_f32_16x16x32_bf16 v[\d:\d+3],v[\a:\a+3],v[\b:\b+3],v[\d:\d+3]
.endm
.macro MZ d,a,b
v_mfma_f32_16x16x32_bf16 v[\d:\d+3],v[\a:\a+3],v[\b:\b+3],0
.endm
.macro MC d,a,b,c
v_mfma_f32_16x16x32_bf16 v[\d:\d+3],v[\a:\a+3],v[\b:\b+3],v[\c:\c+3]
.endm
.macro TR d,a,o
ds_read_b64_tr_b16 v[\d:\d+1],v\a offset:\o
.endm
.macro DR d,a,o
ds_read_b128 v[\d:\d+3],v\a offset:\o
.endm
.macro DW a,d,o
ds_write_b128 v\a,v[\d:\d+3] offset:\o
.endm
.macro PK d,a,b
v_cvt_pk_bf16_f32 v\d,v\a,v\b
.endm
"""

def kd(name, vgpr, sgpr=102):
    acc = (vgpr + 3) // 4 * 4
    return f"""
.amdhsa_kernel {name}
  .amdhsa_next_free_vgpr {vgpr}
  .amdhsa_next_free_sgpr {sgpr}
  .amdhsa_accum_offset {acc}
  .amdhsa_group_segment_fixed_size 0
  .amdhsa_kernarg_size 112
  .amdhsa_user_sgpr_count 2
  .amdhsa_user_sgpr_kernarg_segment_ptr 1
  .amdhsa_system_sgpr_workgroup_id_x 1
.end_amdhsa_kernel
"""

def srd(g, s, lo, hi, size, off=0):
    if off:
        g.e(f"s_add_u32 s{s}, s{lo}, {off}")
        g.e(f"s_addc_u32 s{s+1}, s{hi}, 0")
    else:
        g.e(f"s_mov_b32 s{s}, s{lo}")
        g.e(f"s_mov_b32 s{s+1}, s{hi}")
    g.e(f"s_mov_b32 s{s+2}, {size}")
    g.e(f"s_mov_b32 s{s+3}, 0x20000")

MERGE = int(os.environ.get('MERGE', '2'))
SC = os.environ.get("SCL", "sc1") if MERGE else ""
def dbg_load(g, v, voff, base):
    g.e(f"global_load_dword v{v}, v{voff}, s[{base}:{base + 1}] sc1")
def dbg_wait(g, v, voff, vtgt, base, sleep, loaded):
    spin = g.newlabel("spin"); chk = g.newlabel("chk")
    if loaded: g.e(f"s_branch {chk}")
    g.label(spin)
    g.e(f"s_sleep {sleep}")
    dbg_load(g, v, voff, base)
    g.e("s_waitcnt vmcnt(0)")
    g.label(chk)
    g.e(f"v_cmp_lt_u32 vcc, v{v}, v{vtgt}")
    g.e(f"s_cbranch_vccnz {spin}")
def nonce_get(g, v, voff, sleep, loaded):
    spin = g.newlabel("spin"); chk = g.newlabel("chk")
    if loaded: g.e(f"s_branch {chk}")
    g.label(spin)
    g.e(f"s_sleep {sleep}")
    g.e(f"v_mov_b32 v{voff}, 20")
    dbg_load(g, v, voff, 18)
    g.label(chk)
    g.e("s_waitcnt vmcnt(0)") if not loaded else None
    g.e(f"v_readfirstlane_b32 s59, v{v}")
    g.e("s_bitcmp1_b32 s59, 0")
    if loaded:
        ok = g.newlabel("ok")
        g.e(f"s_cbranch_scc1 {ok}")
        g.e("s_waitcnt vmcnt(0)")
        g.e(f"v_readfirstlane_b32 s59, v{v}")
        g.e("s_bitcmp1_b32 s59, 0")
        g.e(f"s_cbranch_scc0 {spin}")
        g.label(ok)
    else:
        g.e(f"s_cbranch_scc0 {spin}")
def flag_set(g, vt, soff, snonce, base):
    g.e(f"v_lshlrev_b32 v{vt}, 13, v0")
    g.e(f"v_add_u32 v{vt}, s{soff}, v{vt}")
    g.e(f"v_mov_b32 v{vt + 1}, s{snonce}")
    g.e("s_mov_b64 exec, 0xff")
    g.e(f"global_store_dword v{vt}, v{vt + 1}, s[{base}:{base + 1}] sc1")
    g.e("s_mov_b64 exec, -1")
def flag_load(g, v, voff, base, wide=False):
    if wide: g.e(f"global_load_dwordx2 v[{v}:{v + 1}], v{voff}, s[{base}:{base + 1}] sc1")
    else: g.e(f"global_load_dword v{v}, v{voff}, s[{base}:{base + 1}] sc1")
def flag_wait(g, v, voff, snonce, base, sleep, loaded, wide=False):
    spin = g.newlabel("spin"); chk = g.newlabel("chk")
    if loaded: g.e(f"s_branch {chk}")
    g.label(spin)
    g.e(f"s_sleep {sleep}")
    flag_load(g, v, voff, base, wide)
    g.e("s_waitcnt vmcnt(0)")
    g.label(chk)
    g.e(f"v_cmp_ne_u32 vcc, s{snonce}, v{v}")
    g.e(f"s_cbranch_vccnz {spin}")
    if wide:
        g.e(f"v_cmp_ne_u32 vcc, s{snonce}, v{v + 1}")
        g.e(f"s_cbranch_vccnz {spin}")
BAL = int(os.environ.get('BAL', '2'))
DIAG = int(os.environ.get('DIAG', '0'))
def diag_mark(g, i):
    if DIAG: g.e(f"s_memrealtime s[{64 + 2 * i}:{65 + 2 * i}]")
def diag_end(g):
    if not DIAG: return
    g.e("s_waitcnt vmcnt(0) lgkmcnt(0)")
    diag_mark(g, 4)
    g.e("s_waitcnt lgkmcnt(0)")
    g.e(f"s_sub_u32 s80, s{64 + 2 * DIAG}, s64")
    l = g.newlabel("dg")
    g.label(l)
    g.e("s_memrealtime s[82:83]")
    g.e("s_waitcnt lgkmcnt(0)")
    g.e("s_sub_u32 s81, s82, s72")
    g.e("s_cmp_lt_u32 s81, s80")
    g.e(f"s_cbranch_scc1 {l}")
CPF = int(os.environ.get('CPF', '1'))
def code_touch(g, s, v, end, start=None, track=True):
    if not CPF: return
    here = g.newlabel("pc")
    g.e(f"s_getpc_b64 s[{s}:{s + 1}]")
    g.label(here)
    if start:
        g.e(f"s_add_u32 s{s}, s{s}, {start}-{here}")
        g.e(f"s_addc_u32 s{s + 1}, s{s + 1}, 0")
    g.e(f"s_mov_b32 s{s + 2}, {end}-{start or here}")
    g.e(f"s_mov_b32 s{s + 3}, 0x20000")
    g.e(f"v_lshlrev_b32 v{v}, 7, v0")
    t = f"buffer_load_dword v{v}, v{v}, s[{s}:{s + 3}], 0 offen"
    if track: g.vmem(t, "code")
    else: g.e(t)

MB = 1 << 20
WS_XN = 0
WS_K = 2 * MB
WS_V = 18 * MB
WS_Z1 = 34 * MB
WS_Z2 = 38 * MB
WS_ST = 42 * MB
WS_CTX = 44 * MB
SZ_XN = 2 * MB
SZ_KV = 16 * MB
SZ_Z = 2048 * 896 * 2
SZ_ST = 3 * 2048 * 8
SZ_CTX = 128 * 156 * 1024
WS_DBG = 200 * MB
WS_SCR = 64 * MB
SZ_SCR = 32 * MB
WS_PART = 64 * MB
WS_XNP = 74 * MB
WS_FL = 76 * MB
```

```python
from asmlib import *
import math

XR = 128
ACC = [64, 96]
WR = 32
D = 6
C2 = -2.0 * math.sqrt(2.0 / math.pi) * math.log2(math.e)
C1 = C2 * 0.044715
NPKV = int(os.environ.get('NPKV', '6'))
NPZ = int(os.environ.get('NPZ', '3'))
GKV = -(-64 // NPKV); GZ = 7
assert NPKV == 6 and NPZ == 3
GMAP = [[0, 1, 2, 25, 3, 4, 26, 10], [11, 12, 13, 27, 14, 15, 28, 21], [5, 6, 29, 7, 8, 30, 9, 23], [16, 17, 31, 18, 22, 19, 20, 24]]
ZODD = int(os.environ.get('ZODD', '0'))
if ZODD: GMAP = [[0, 1, 2, 3, 25, 4, 26, 10], [11, 12, 13, 14, 27, 15, 28, 21], [5, 6, 7, 8, 29, 9, 30, 23], [16, 17, 18, 19, 31, 20, 22, 24]]
assert sorted(sum(GMAP, [])) == list(range(32))
NTW = os.environ.get('NTW', '')
PF = int(os.environ.get('PF', '97'))
CLU = int(os.environ.get('CLU', '1'))
PFW = int(os.environ.get('PFW', '0'))
NTP = os.environ.get('NTP', '')
PF3 = int(os.environ.get('PF3', '0'))
ZPUB = int(os.environ.get('ZPUB', '20'))
MIX = int(os.environ.get('MIX', '1'))
PFWS = int(os.environ.get('PFWS', '16'))
ROT = int(os.environ.get('ROT', '3'))
SL0 = int(os.environ.get('SL0', '0')); SL1 = int(os.environ.get('SL1', '4'))
LT = int(os.environ.get('LT', '0'))
PFL = eval(os.environ.get('PFL', '[0,2,4,8,10,11,14,18,22,23]'))
PROT = int(os.environ.get('PROT', '0'))
ZA = int(os.environ.get('ZA', '10')); ZP = int(os.environ.get('ZP', '12')); ZC = int(os.environ.get('ZC', '12'))
STKV = os.environ.get('STKV', 'sc1')
QFAST = int(os.environ.get('QFAST', '1')) and MERGE
FAST_VM = []
SPT1 = int(os.environ.get('SPT1', '1'))
IB = int(os.environ.get('IB', '2'))
WSP = int(os.environ.get('WSP', '3'))
XPF = int(os.environ.get('XPF', '0'))
QTAIL = int(os.environ.get('QTAIL', '1'))
STF = os.environ.get('STF', 'sc1')

def xreg(a, m): return XR + (m * 2 + a) * 4
def areg(st, cb, a): return ACC[st] + (cb * 2 + a) * 4

def w_voffsets(g, rowstride, vbase):
    g.e("v_bfe_u32 v28, v0, 5, 1")
    g.e("v_bfe_u32 v29, v0, 2, 2")
    g.e("v_lshl_add_u32 v28, v28, 2, v29")
    g.e(f"v_mul_u32_u24 v28, {rowstride}, v28")
    g.e("v_bfe_u32 v29, v0, 4, 1")
    g.e("v_lshl_add_u32 v28, v29, 6, v28")
    g.e("v_and_b32 v29, 3, v0")
    g.e("v_xor_b32 v30, 2, v29")
    g.e("v_lshlrev_b32 v29, 4, v29")
    g.e("v_lshlrev_b32 v30, 4, v30")
    for j in range(4):
        g.e(f"v_add_u32 v31, {j * 8 * rowstride - j * 1024}, v28")
        g.e(f"v_add_u32 v{vbase + j}, v31, v{29 + (j & 1)}")

def tr_bases(g, ve, vo):
    g.e("v_bfe_u32 v28, v0, 4, 2")
    g.e("v_lshlrev_b32 v29, 10, v28")
    g.e("v_bfe_u32 v30, v0, 2, 2")
    g.e("v_lshl_add_u32 v29, v30, 6, v29")
    g.e("v_and_b32 v30, 3, v0")
    g.e("v_lshl_add_u32 v29, v30, 3, v29")
    g.e("v_and_b32 v28, 1, v28")
    g.e(f"v_lshl_add_u32 v{ve}, v28, 5, v29")
    g.e(f"v_xor_b32 v{vo}, 32, v{ve}")

def gelu_ops(regs, T, vc2, sc1, stats=None):
    out = []
    n = len(T)
    for i in range(0, len(regs), n):
        grp = list(zip(regs[i:i + n], T))
        out += [f"v_mul_f32 v{t}, v{x}, v{x}" for x, t in grp]
        out += [f"v_fma_f32 v{t}, v{t}, s{sc1}, v{vc2}" for x, t in grp]
        out += [f"v_mul_f32 v{t}, v{t}, v{x}" for x, t in grp]
        out += [f"v_exp_f32 v{t}, v{t}" for x, t in grp]
        out += [f"v_add_f32 v{t}, 1.0, v{t}" for x, t in grp]
        out += [f"v_rcp_f32 v{t}, v{t}" for x, t in grp]
        out += [f"v_mul_f32 v{x}, v{x}, v{t}" for x, t in grp]
        if stats:
            out += [f"v_add_f32 v{stats[x][0]}, v{stats[x][0]}, v{x}" for x, t in grp]
            out += [f"v_fmac_f32 v{stats[x][1]}, v{x}, v{x}" for x, t in grp]
    return out

def ln_params(g, MEAN, VAR, n):
    def rbf(rs):
        for r in rs: g.e(f"PK {r},{r},{r}")
        for r in rs: g.e(f"v_and_b32 v{r}, 0xffff0000, v{r}")
    for m, v in zip(MEAN, VAR):
        g.e(f"v_mul_f32 v{m}, {f32(1 / n)}, v{m}")
        g.e(f"v_mul_f32 v{v}, {f32(1 / n)}, v{v}")
    for m, v in zip(MEAN, VAR): g.e(f"v_fma_f32 v{v}, -v{m}, v{m}, v{v}")
    for v in VAR: g.e(f"v_max_f32 v{v}, 0, v{v}")
    rbf(list(MEAN) + list(VAR))
    for v in VAR: g.e(f"v_add_f32 v{v}, {f32(1e-5)}, v{v}")
    rbf(VAR)
    for v in VAR: g.e(f"v_sqrt_f32 v{v}, v{v}")
    g.e("s_nop 0")
    rbf(VAR)
    for v in VAR: g.e(f"v_rcp_f32 v{v}, v{v}")
    g.e("s_nop 0")
    for m, v in zip(MEAN, VAR): g.e(f"v_mul_f32 v{m}, v{m}, v{v}")

def gen_type(g, T):
    ktp = lambda p: T in ("K", "Z1") or (T == "Z2" and p == 2)
    ztype = T in ("Z1", "Z2")
    rowstride = 3584 if ztype else 8192
    NP = NPZ if ztype else NPKV
    NTOT = 14 if ztype else 64
    NG = {"Z1": 3, "Z2": GZ}.get(T, GKV)
    NS = {"Z1": 2, "Z2": 3}.get(T, NTOT - (NG - 1) * NP)
    SHORT0 = {"Z1": 1}.get(T, NG - 1)
    VW = 1
    VTE, VTO = 5, 6
    VST = 7
    VC2 = 8
    VXA = 20
    VXR = (9, 11)
    TMP = [9, 10, 11, 12]
    STAT = 16
    g.vm = []; g.ds = []
    g.label(f"L_k1_{T}")
    g0 = {"K": 0, "V": GKV, "Z1": 2 * GKV, "Z2": 2 * GKV + 3}[T]
    g.e(f"s_sub_u32 s42, s3, {g0}")
    g.e("v_and_b32 v28, 63, v0")
    g.e(f"v_lshlrev_b32 v{VST}, 4, v28")
    if ztype:
        srd(g, 24, 4, 5, 2 * MB)
        g.e(f"s_sub_u32 s54, s3, {2 * GKV}")
        g.e("s_and_b32 s49, s54, 7")
        g.e("s_lshl_b32 s49, s49, 5")
        g.e("s_lshl_b32 s50, s41, 8")
        g.e("s_add_u32 s49, s49, s50")
        g.e("s_lshl_b32 s50, s40, 2")
        g.e("s_add_u32 s55, s49, s50")
        g.e("s_lshl_b32 s49, s55, 10")
        g.e("v_and_b32 v28, 3, v0")
        g.e("v_bfe_u32 v29, v0, 2, 4")
        g.e("v_lshlrev_b32 v30, 4, v29")
        g.e("v_lshl_add_u32 v30, v28, 10, v30")
        for i in range(4): g.vmem(f"buffer_load_dwordx4 v[{64 + 4 * i}:{67 + 4 * i}], v30, s[24:27], s49 offen offset:{256 * i}", "ln")
    else:
        srd(g, 24, 6, 7, 2 * MB)
    if T == "K": srd(g, 20, 10, 11, 512 * 8192)
    if T == "V": srd(g, 20, 12, 13, 512 * 8192)
    if ztype: srd(g, 20, 14, 15, 512 * 3584)
    if T == "Z1":
        g.e("s_lshl_b32 s58, s42, 1")
        g.e("s_add_u32 s58, s58, 8")
        g.e("s_cmp_eq_u32 s42, 0")
        g.e("s_cselect_b32 s58, 7, s58")
    elif T == "Z2": g.e("s_lshl_b32 s58, s42, 1")
    else: g.e(f"s_mul_i32 s58, s42, {NP}")
    colbase = 1792 if T == "Z2" else 0
    g.e("s_lshl_b32 s44, s58, 7")
    if colbase: g.e(f"s_add_u32 s44, s44, {colbase}")
    if ztype: g.e(f"s_mov_b32 s45, {colbase + (NTOT - 1) * 128}")
    else:
        g.e(f"s_cmp_lt_u32 s42, {SHORT0}")
        g.e(f"s_cselect_b32 s45, {NP}, {NS}")
        g.e("s_bfe_u32 s63, s2, 0x20003" if PROT else "s_mov_b32 s63, 0")
        g.e("s_lshl_b32 s63, s63, 1")
        g.e("s_cmp_ge_u32 s63, s45")
        g.e("s_cselect_b32 s49, s45, 0")
        g.e("s_sub_u32 s63, s63, s49")
    def pair_ops(p, d):
        return [f"s_add_u32 s{d}, s63, {p % 4 if p >= NS else p}" if False else f"s_add_u32 s{d}, s63, {p}",
                (f"s_cmp_ge_u32 s{d}, s45", "s_cselect_b32 s62, s45, 0"), f"s_sub_u32 s{d}, s{d}, s62"]
    g.e("s_lshl_b32 s46, s40, 12")
    g.e("s_bfe_u32 s60, s2, 0x20005" if (ROT and (not ztype or ROT > 2)) else "s_mov_b32 s60, 0")
    if ROT >= 2 and (not ztype or ROT > 2):
        g.e("s_bfe_u32 s49, s2, 0x20003")
        g.e("s_add_u32 s60, s60, s49")
        g.e("s_and_b32 s60, s60, 3")
    g.e("s_lshl_b32 s49, s60, 2")
    g.e("s_add_u32 s49, s49, s40")
    g.e("s_and_b32 s50, s49, 15")
    g.e(f"s_mul_i32 s56, s50, {32 * rowstride}")
    g.e("s_xor_b32 s50, s50, 8")
    g.e(f"s_mul_i32 s61, s50, {32 * rowstride}")
    g.e("s_and_b32 s57, s40, 3")
    g.e(f"s_mul_i32 s57, s57, {32 * rowstride}")
    g.e("s_lshr_b32 s49, s40, 2")
    g.e("s_lshl_b32 s49, s49, 7")
    g.e("s_add_u32 s57, s57, s49")
    if not ztype:
        g.e("s_lshl_b32 s49, s63, 7")
        g.e("s_add_u32 s57, s57, s49")
    g.e("s_add_u32 s57, s57, s44")
    NST = 2 * NP
    NQ = 4
    QT = QTAIL and QFAST and not ztype
    def fmap(s, f):
        cb = f & 3
        if s < NQ:
            p, ks = (f >> 4, (f >> 2) & 3) if s == 3 else ((f >> 2) & 1, f >> 3)
            return p, 4 * s + ks, cb, p * 4 + ks
        if QT and s >= 8:
            p, ks = (f >> 4, (f >> 2) & 3) if s in (8, 11) else ((f >> 2) & 1, f >> 3)
            return 4 + p, 4 * (s - 8) + ks, cb, p * 4 + ks
        return s >> 1, (s & 1) * 8 + (f >> 2), cb, f >> 2
    XPOS = [3, 4, 3, 4, 3, 4, 4, 4]
    def xdma_ops(q):
        ops = []
        for i in range(4):
            def op(i=i):
                if i == 0:
                    g.e(f"s_add_u32 s43, s60, {q >> 1}")
                    g.e("s_and_b32 s43, s43, 3")
                    g.e("s_lshl_b32 s43, s43, 8")
                    if q & 1: g.e("s_add_u32 s43, s43, 128")
                g.e(f"s_add_u32 m0, s46, {XPOS[q] * 32768}")
                g.e("s_nop 0")
                g.vmem(f"buffer_load_dwordx4 v{VXA + i}, s[24:27], s43 offen offset:{i * 1024} lds", ("x", q))
            ops.append(op)
        return ops
    def xread(q):
        g.wait_vm(("x", q))
        for ks in range(2):
            for a in range(2):
                g.lds(f"DR {xreg(a, 2 * q + ks)},{VXR[(XPOS[q] >> 1) - 1] + ks},{(XPOS[q] & 1) * 32768 + a * 2048}", ("x", q))
    def wdma_ops(s, sr=51):
        if s >= NST and QFAST and not ztype:
            def op(j):
                if j == 0: g.e(f"s_add_u32 s{sr}, s54, {(s - NST) * 128 * 8192}")
                g.e(f"s_add_u32 m0, s46, {(s % 4) * 32768}")
                g.e("s_nop 0")
                g.vmem(f"buffer_load_dwordx4 v{VW + j}, s[32:35], s{sr} offen offset:{j * 1024} lds", ("wq", s - NST))
            return [lambda j=j: op(j) for j in range(4)]
        if s >= NST: return []
        ops = []
        for j in range(4):
            def op(j=j):
                if j == 0:
                    if s < NQ or (QT and s >= 8):
                        g.e(f"s_add_u32 s{sr}, s60, {s & 3}")
                        g.e(f"s_and_b32 s{sr}, s{sr}, 3")
                        g.e(f"s_mul_i32 s{sr}, s{sr}, {128 * rowstride}")
                        g.e(f"s_add_u32 s{sr}, s{sr}, s57")
                        if s >= 8:
                            g.e("s_cmp_gt_u32 s45, 4")
                            g.e("s_cselect_b32 s62, 512, 0")
                            g.e(f"s_add_u32 s{sr}, s{sr}, s62")
                    else:
                        p, kh = s >> 1, s & 1
                        if T == "Z2" and p == 2: g.e(f"s_lshl_b32 s{sr}, s42, 7")
                        elif ztype:
                            g.e(f"s_add_u32 s{sr}, s44, {p * 128}")
                            g.e(f"s_min_u32 s{sr}, s{sr}, s45")
                        else:
                            for t in pair_ops(p, sr):
                                for u in ((t,) if isinstance(t, str) else t): g.e(u)
                            g.e(f"s_lshl_b32 s{sr}, s{sr}, 7")
                            g.e(f"s_add_u32 s{sr}, s{sr}, s44")
                        g.e(f"s_add_u32 s{sr}, s{sr}, s{61 if kh else 56}")
                g.e(f"s_add_u32 m0, s46, {(s % 4) * 32768}")
                g.e("s_nop 0")
                g.vmem(f"buffer_load_dwordx4 v{VW + j}, s[20:23], s{sr} offen offset:{j * 1024} {NTW} lds", ("w", s))
            ops.append(op)
        return ops
    def run(ops):
        for op in ops: op()
    def w0(fn):
        sk = g.newlabel("w0")
        g.e("s_cmp_lg_u32 s40, 0"); g.e(f"s_cbranch_scc1 {sk}")
        fn(); g.label(sk)
    def rb_line(dst, extra):
        g.e(f"s_add_u32 s{dst}, s41, 53")
        g.e(f"s_lshl_b32 s{dst}, s{dst}, 7")
        if extra: g.e(f"s_add_u32 s{dst}, s{dst}, {extra}")
    def rb_poll_addr(v, n, extra):
        rb_line(49, extra)
        g.e("s_and_b32 s50, s2, 7")
        g.e("s_lshl_b32 s50, s50, 13")
        g.e("s_add_u32 s49, s49, s50")
        g.e(f"v_min_u32 v{v}, {n - 1}, v0")
        g.e(f"v_lshl_add_u32 v{v}, v{v}, 2, s49")

    w_voffsets(g, rowstride, VW)
    if not ztype:
        run(wdma_ops(0, 47))
        g.e("v_bfe_u32 v28, v0, 3, 3")
        g.e("v_and_b32 v29, 7, v0")
        g.e("v_lshrrev_b32 v30, 1, v28")
        g.e("v_xor_b32 v29, v29, v30")
        g.e("s_lshl_b32 s49, s41, 8")
        g.e("s_lshl_b32 s50, s40, 5")
        g.e("s_add_u32 s49, s49, s50")
        g.e("v_add_u32 v28, s49, v28")
        g.e("v_lshlrev_b32 v28, 10, v28")
        g.e("v_xor_b32 v30, 4, v29")
        g.e("v_lshl_add_u32 v29, v29, 4, v28")
        g.e("v_lshl_add_u32 v30, v30, 4, v28")
        for i in range(4): g.e(f"v_add_u32 v{VXA + i}, {i * 8192 - i * 1024}, v{29 + (i & 1)}")
        run(xdma_ops(0))
        code_touch(g, 36, 14, f"L_k1_{T}_end")
        g.e("s_barrier")
        if IB >= 1: run(xdma_ops(1))
        if IB >= 2: run(wdma_ops(1, 47))
        g.e("v_and_b32 v28, 15, v0")
        g.e("v_bfe_u32 v29, v0, 4, 2")
        g.e("v_lshrrev_b32 v30, 1, v28")
        g.e("v_xor_b32 v29, v29, v30")
        g.e("v_lshlrev_b32 v29, 4, v29")
        g.e("v_lshl_add_u32 v29, v28, 7, v29")
        g.e("s_add_u32 s49, s46, 0x10000")
        g.e(f"v_add_u32 v{VXR[0]}, s49, v29")
        g.e(f"v_xor_b32 v{VXR[0] + 1}, 64, v{VXR[0]}")
        for ks in range(2): g.e(f"v_add_u32 v{VXR[1] + ks}, 0x10000, v{VXR[0] + ks}")
    else:
        code_touch(g, 36, 255, f"L_k1_{T}_end")
        srd(g, 24, 16, 17, WS_XNP + SZ_XN, 0)
        ZLT = len(g.lines)
        g.e("s_mov_b32 s53, 0xffff0000")
        g.e(f"s_mov_b32 s52, {f32(C1)}")
        g.e(f"v_mov_b32 v{VC2}, {f32(C2)}")
        g.e("s_lshr_b32 s55, s55, 5")
        g.e("s_lshl_b32 s55, s55, 15")
        g.e("s_add_u32 s55, s55, s46")
        g.e(f"s_add_u32 s62, s55, {WS_XNP}")
        g.e("s_lshr_b32 s49, s40, 2")
        g.e("s_lshl_b32 s49, s49, 14")
        g.e("s_and_b32 s50, s40, 3")
        g.e("s_lshl_b32 s50, s50, 6")
        g.e("s_add_u32 s49, s49, s50")
        g.e("s_add_u32 s49, s49, 0x20000")
        g.e("v_and_b32 v28, 3, v0")
        g.e("v_lshlrev_b32 v28, 4, v28")
        g.e("v_bfe_u32 v29, v0, 2, 2")
        g.e("v_lshl_add_u32 v28, v29, 8, v28")
        g.e("v_bfe_u32 v29, v0, 4, 2")
        g.e("v_lshl_add_u32 v28, v29, 10, v28")
        g.e("v_add_u32 v13, s49, v28")
        g.e("s_add_u32 s49, s46, 0x20000")
        g.e(f"v_add_u32 v16, s49, v{VST}")
        g.e("s_and_b32 s49, s46, 0x3fff")
        g.e("s_lshr_b32 s50, s40, 2")
        g.e("s_lshl_b32 s50, s50, 6")
        g.e("s_add_u32 s49, s49, s50")
        g.e("s_add_u32 s49, s49, 0x20000")
        g.e("v_bfe_u32 v17, v0, 3, 1")
        g.e("v_lshlrev_b32 v17, 14, v17")
        g.e("v_bfe_u32 v28, v0, 2, 1")
        g.e("v_lshl_add_u32 v17, v28, 7, v17")
        g.e("v_and_b32 v28, 0x33, v0")
        g.e("v_lshl_add_u32 v17, v28, 4, v17")
        g.e("v_add_u32 v17, s49, v17")
        rb_poll_addr(15, 8, 0)
        nol = g.newlabel("noln")
        g.e("s_cmp_ge_u32 s54, 8")
        g.e(f"s_cbranch_scc1 {nol}")
        g.e("v_mov_b32 v9, 0")
        g.e("v_mov_b32 v10, 0")
        g.wait_vm("ln")
        g.stamp(8)
        g.e("v_mov_b32 v14, 20")
        w0(lambda: dbg_load(g, 14, 14, 18))
        for i in range(16):
            g.e(f"v_lshlrev_b32 v{96 + 2 * i}, 16, v{64 + i}")
            g.e(f"v_and_b32 v{97 + 2 * i}, s53, v{64 + i}")
        for i in range(32):
            g.e(f"v_add_f32 v9, v9, v{96 + i}")
            g.e(f"v_fmac_f32 v10, v{96 + i}, v{96 + i}")
        for sh in (4, 8):
            g.e("s_nop 1")
            for r in (9, 10): g.e(f"v_add_f32_dpp v{r}, v{r}, v{r} row_ror:{sh} row_mask:0xf bank_mask:0xf")
        for sw in ("v_permlane32_swap_b32", "v_permlane16_swap_b32"):
            for i in range(2): g.e(f"v_mov_b32 v{11 + i}, v{9 + i}")
            g.e("s_nop 1")
            for i in range(2): g.e(f"{sw} v{11 + i}, v{9 + i}")
            g.e("s_nop 1")
            for i in range(2): g.e(f"v_add_f32 v{9 + i}, v{9 + i}, v{11 + i}")
        ln_params(g, [9], [10], 512)
        for i in range(4):
            for e in range(8): g.e(f"v_fma_f32 v{96 + 8 * i + e}, v{96 + 8 * i + e}, v10, -v9")
            for r in range(4): g.e(f"PK {64 + 4 * i + r},{96 + 8 * i + 2 * r},{97 + 8 * i + 2 * r}")
            g.e(f"DW 13,{64 + 4 * i},{i * 4096}")
        g.e("s_waitcnt lgkmcnt(0)")
        g.e("s_barrier")
        for i in range(4): g.e(f"DR {96 + 4 * i},17,{i * 1024}")
        for i in range(4):
            g.e(f"s_waitcnt lgkmcnt({3 - i})")
            g.e(f"buffer_store_dwordx4 v[{96 + 4 * i}:{99 + 4 * i}], v{VST}, s[24:27], s62 offen offset:{(i & 3) * 1024} sc1")
        g.e("v_mov_b32 v11, 1")
        g.stamp(9)
        g.e("s_waitcnt vmcnt(0)")
        g.e("s_barrier")
        g.stamp(10)
        done = g.newlabel("sdone"); chk = g.newlabel("schk")
        g.e("s_cmp_lg_u32 s40, 0")
        g.e(f"s_cbranch_scc1 {done}")
        nonce_get(g, 14, 14, 2, True)
        rb_line(47, 0)
        g.e("s_lshl_b32 s49, s54, 2")
        g.e("s_add_u32 s47, s47, s49")
        flag_set(g, 10, 47, 59, 100)
        g.e(f"s_branch {chk}")
        g.label(nol)
        g.e("s_cmp_lg_u32 s40, 0")
        g.e(f"s_cbranch_scc1 {done}")
        if SL0: g.e(f"s_sleep {SL0}")
        nonce_get(g, 14, 14, 2, False)
        g.label(chk)
        flag_wait(g, 11, 15, 59, 100, SL1, False)
        g.label(done)
        g.vm = []
        run(wdma_ops(0, 47))
        g.e("s_mov_b32 s62, s55")
        g.e("s_mov_b32 s48, s54")
        g.e("s_lshl_b32 s49, s41, 18")
        g.e("s_lshl_b32 s50, s40, 15")
        g.e("s_add_u32 s54, s49, s50")
        g.e(f"s_add_u32 s54, s54, {WS_XNP}")
        g.e("s_barrier")
        g.stamp(11)
        def xload(m):
            if m % 4 == 0:
                g.e(f"s_add_u32 s63, s60, {m >> 2}")
                g.e("s_and_b32 s63, s63, 3")
                g.e("s_lshl_b32 s63, s63, 12")
                g.e("s_add_u32 s63, s63, s54")
                g.e(f"s_add_u32 s55, s63, 16384")
            for a in range(2):
                x = xreg(a, m)
                g.vmem(f"buffer_load_dwordx4 v[{x}:{x + 3}], v{VST}, s[24:27], s{55 if a else 63} offen offset:{(m % 4) * 1024} sc1", ("x", m))
        for m in range(4): xload(m)
    def lin_touch():
        g.e("s_lshl_b32 s43, s2, 3")
        g.e("s_add_u32 s43, s43, s40")
        g.e(f"v_lshlrev_b32 v26, 3, v{VST}")
        g.e("v_bfe_u32 v27, v0, 4, 2")
        g.e("v_lshl_add_u32 v26, v27, 28, v26")
        g.e("s_lshl_b32 s49, s43, 11")
        srd(g, 36, 10, 11, 4 * MB)
        g.vmem("buffer_load_dword v254, v26, s[36:39], s49 offen", "t")
        srd(g, 36, 12, 13, 4 * MB)
        g.vmem("buffer_load_dword v254, v26, s[36:39], s49 offen", "t")
        srd(g, 36, 14, 15, 512 * 3584)
        g.vmem("buffer_load_dword v254, v26, s[36:39], s49 offen", "t")
    if LT == 1 and not ztype: lin_touch()
    if LT and ztype:
        n0 = len(g.lines); sv = list(g.vm)
        lin_touch()
        blk = g.lines[n0:]; del g.lines[n0:]; g.lines[ZLT:ZLT] = blk; g.vm = sv
        k = g.lines.index(f"s_waitcnt vmcnt({CPF})", ZLT); g.lines[k] = f"s_waitcnt vmcnt({CPF + 3})"
    off, sz = {"K": (WS_K, SZ_KV), "V": (WS_V, SZ_KV), "Z1": (WS_Z1, SZ_Z), "Z2": (WS_Z2, SZ_Z)}[T]
    srd(g, 28, 16, 17, sz, off)
    tr_bases(g, VTE, VTO)
    if T == "Z2":
        for i in range(16): g.e(f"v_mov_b32 v{STAT + i}, 0")
    if T == "Z1":
        g.e("v_bfe_u32 v16, v0, 3, 1")
        g.e("v_lshlrev_b32 v16, 6, v16")
        g.e("v_bfe_u32 v18, v0, 2, 1")
        g.e("v_lshl_add_u32 v16, v18, 7, v16")
        g.e("v_and_b32 v18, 0x33, v0")
        g.e("v_lshl_add_u32 v16, v18, 4, v16")

    def outbase(I, p):
        if T == "Z2" and p == 2: I("s_mov_b32 s48, s42")
        elif ztype: I(f"s_add_u32 s48, s58, {p}")
        else:
            I("\n".join(u for t in pair_ops(p, 48) for u in ((t,) if isinstance(t, str) else t)))
            I("s_add_u32 s48, s48, s58")
        if T in ("K", "V"):
            I("s_lshr_b32 s49, s48, 1")
            I("s_lshl_b32 s49, s49, 19")
            I("s_and_b32 s48, s48, 1")
            I(f"s_lshl_b32 s48, s48, {11 if T == 'K' else 12}")
            I("s_add_u32 s48, s48, s49")
            I("s_lshl_b32 s49, s41, 16")
            I("s_add_u32 s48, s48, s49")
            I("s_lshl_b32 s49, s40, 13")
            I("s_add_u32 s48, s48, s49")
            I("s_add_u32 s50, s48, 4096")
        else:
            I(f"s_lshl_b32 s48, s48, {11 if ktp(p) else 12}")
            I("s_lshl_b32 s49, s41, 3")
            I("s_add_u32 s49, s49, s40")
            I("s_mul_i32 s49, s49, 57344")
            I("s_add_u32 s48, s48, s49")
            I("s_add_u32 s50, s48, 28672")

    ZPARK = 131072
    def epilogue(p, last=False):
        st = p & 1
        ops = []
        def I(s): ops.append(lambda s=s: g.e(s))
        hold = T == "Z2" and p < 2
        if not hold: outbase(I, p)
        frags = []
        if ktp(p):
            for a, mm in ([(0, 0), (1, 0), (0, 1), (1, 1)] if ztype else [(0, 0), (0, 1), (1, 0), (1, 1)]):
                if True:
                    frags.append((areg(st, 2 * mm, a), areg(st, 2 * mm + 1, a), a, mm * 1024))
        else:
            for cb in range(4):
                frags.append((areg(st, cb, 0), areg(st, cb, 1), 0, cb * 1024))
        for (x, y, a, io) in frags:
            if ztype:
                stats = None
                if hold:
                    stats = {}
                    for r in range(4):
                        stats[x + r] = (STAT + 2 * r, STAT + 2 * r + 1)
                        stats[y + r] = (STAT + 8 + 2 * r, STAT + 8 + 2 * r + 1)
                for s in gelu_ops([x, x + 1, x + 2, x + 3, y, y + 1, y + 2, y + 3], TMP, VC2, 52, stats): I(s)
            d = x
            if (p == 0 or (QT and p in (3, 4) and not last)) and not ztype: d = 16 + 4 * frags.index((x, y, a, io))
            I(f"PK {d},{x},{x + 1}"); I(f"PK {d + 1},{x + 2},{x + 3}")
            I(f"PK {d + 2},{y},{y + 1}"); I(f"PK {d + 3},{y + 2},{y + 3}")
            x = d
            if hold:
                if p == 0: ops.append(lambda x=x, io=io: g.lds(f"DW 13,{x},{io}", "park"))
            elif ztype:
                if a == 0: ops.append(lambda: None)
                else:
                    def fix(x1=x, io=io):
                        x0 = x1 - 4
                        for r in range(4): g.e(f"v_mov_b32 v{TMP[r]}, v{x0 + r}")
                        for r in range(4): g.e(f"v_mov_b32_dpp v{x0 + r}, v{x1 + r} row_ror:8 row_mask:0xf bank_mask:0xc")
                        for r in range(4): g.e(f"v_mov_b32_dpp v{x1 + r}, v{TMP[r]} row_ror:8 row_mask:0xf bank_mask:0x3")
                        sr = 24 if T == "Z2" else 28
                        for k, xx in enumerate((x0, x1)):
                            g.vmem(f"buffer_store_dwordx4 v[{xx}:{xx + 3}], v{14 if T == 'Z2' else 16}, s[{sr}:{sr + 3}], s{48 + 2 * k} offen offset:{io} {SC}", "st")
                    ops.append(fix)
            else:
                ops.append(lambda x=x, a=a, io=io: g.vmem(
                    f"buffer_store_dwordx4 v[{x}:{x + 3}], v{VST}, s[28:31], s{50 if a else 48} offen offset:{io} {STF if ztype else STKV}", "st"))
        return ops
    if T == "Z2":
        g.e(f"s_add_u32 s49, s46, {ZPARK}")
        g.e(f"v_add_u32 v13, s49, v{VST}")

    def publish_ops():
        ops = []
        def I(s): ops.append(lambda s=s: g.e(s))
        for sh in (8, 4, 2, 1):
            for i in range(16):
                I(f"v_add_f32_dpp v{STAT + i}, v{STAT + i}, v{STAT + i} row_ror:{sh} row_mask:0xf bank_mask:0xf")
        ops.append(lambda: srd(g, 36, 16, 17, GZ * 16384, WS_ST))
        I("v_bfe_u32 v9, v0, 4, 2")
        I("v_lshlrev_b32 v9, 6, v9")
        I("v_and_b32 v10, 15, v0")
        I("v_lshl_add_u32 v10, v10, 24, v9")
        I("s_lshl_b32 s63, s41, 11")
        I("s_lshl_b32 s49, s40, 8")
        I("s_add_u32 s63, s63, s49")
        I("s_lshl_b32 s49, s42, 14")
        I("s_add_u32 s49, s49, s63")
        for i in range(4):
            ops.append(lambda i=i: g.vmem(f"buffer_store_dwordx4 v[{STAT + 4 * i}:{STAT + 4 * i + 3}], v10, s[36:39], s49 offen offset:{16 * i} sc1", "pub"))
        return ops
    def arrive():
        g.wait_vm("pub")
        g.e("s_barrier")
        def f():
            rb_line(47, 32)
            g.e("s_lshl_b32 s49, s42, 2")
            g.e("s_add_u32 s47, s47, s49")
            flag_set(g, 10, 47, 59, 100)
            rb_poll_addr(15, GZ, 32)
            g.e("v_mov_b32 v14, 0")
        w0(f)
    PB = 16
    def collect():
        w0(lambda: flag_wait(g, 14, 15, 59, 100, SL1, True))
        g.e("s_barrier")
        g.stamp(14)
        g.e("v_and_b32 v9, 31, v0")
        g.e("v_lshlrev_b32 v9, 3, v9")
        for q in range(GZ):
            g.e(f"s_add_u32 s49, s63, {q * 16384}")
            g.vmem(f"buffer_load_dwordx2 v[{PB + 2 * q}:{PB + 2 * q + 1}], v9, s[36:39], s49 offen sc1", "col")

    def pf_next(short):
        if not PF3 or T == "Z2" or (T in ("K", "V") and not short): return
        g.e("s_load_dwordx2 s[32:33], s[0:1], 40")
        g.e("s_load_dwordx2 s[36:37], s[0:1], 80")
        g.e("s_lshl_b32 s43, s41, 3")
        g.e("s_add_u32 s43, s43, s40")
        g.e(f"v_lshlrev_b32 v13, 3, v{VST}")
        g.e("s_waitcnt lgkmcnt(0)")
        g.e(f"s_mov_b32 s34, {4 * MB}")
        g.e("s_mov_b32 s35, 0x20000")
        g.e(f"s_mov_b32 s38, {896 * 1024}")
        g.e("s_mov_b32 s39, 0x20000")
        if T == "Z1":
            g.e("s_lshl_b32 s47, s42, 6")
            g.e("s_add_u32 s43, s43, s47")
            g.e("s_lshl_b32 s43, s43, 13")
            if short:
                g.e(f"s_sub_u32 s47, s43, {64 * 8192}")
                g.e("buffer_load_dword v14, v13, s[36:39], s47 offen")
                g.e(f"s_add_u32 s47, s47, {3 * MB}")
                g.e("buffer_load_dword v14, v13, s[32:35], s47 offen")
        else:
            g.e(f"s_mul_i32 s43, s43, {3 * 8192}")
            if T == "V": g.e(f"s_add_u32 s43, s43, {64 * 3 * 8192}")
            for i in range(3):
                g.e(f"buffer_load_dword v14, v13, s[32:35], s43 offen")
                g.e("s_add_u32 s43, s43, 8192")

    def xn_snap():
        def f():
            if not ztype: nonce_get(g, 13, 13, 2, True)
            g.e("s_and_b32 s43, s2, 7")
            g.e("s_lshl_b32 s43, s43, 13")
            g.e(f"s_add_u32 s43, s43, {53 * 128 + 64}")
            g.e("v_lshrrev_b32 v13, 3, v0")
            g.e("v_lshlrev_b32 v13, 7, v13")
            g.e("v_and_b32 v15, 7, v0")
            g.e("v_lshl_add_u32 v13, v15, 2, v13")
            g.e("v_add_u32 v15, s43, v13")
            flag_load(g, 13, 15, 100)
        w0(f)
    def final(p, short=False):
        g.stamp(12)
        g.e("s_nop 7")
        if T != "Z2":
            for op in epilogue(p, True): op()
        else:
            for i in range(4): g.e(f"DR {XR + 4 * i},13,{i * 1024}")
            VA, P2 = 144, 160
            g.e(f"s_add_u32 s49, s46, {ZPARK}")
            g.e("v_add_u32 v9, s49, v9")
            g.e(f"v_bfe_u32 v{VA}, v0, 4, 2")
            g.e(f"v_lshl_add_u32 v{VA}, v{VA}, 6, s49")
            g.e("s_waitcnt vmcnt(0) lgkmcnt(0)")
            for q in range(1, GZ):
                for i in range(2): g.e(f"v_add_f32 v{PB + i}, v{PB + i}, v{PB + 2 * q + i}")
            ln_params(g, [PB], [PB + 1], 896)
            g.e(f"ds_write_b64 v9, v[{PB}:{PB + 1}]")
            g.e("s_waitcnt lgkmcnt(0)")
            for i in range(4): g.e(f"DR {P2 + 4 * i},{VA},{16 * i}")
            xn_snap()
            g.e("s_waitcnt lgkmcnt(0)")
            MEAN = [P2 + 2 * e for e in range(8)]; VAR = [P2 + 2 * e + 1 for e in range(8)]
            for pp in range(2):
                outbase(g.e, pp)
                for cb in range(4):
                    x = XR + 4 * cb if pp == 0 else areg(pp & 1, cb, 0)
                    t = 16 + (cb & 1) * 8
                    for r in range(4): g.e(f"v_lshlrev_b32 v{t + 2 * r}, 16, v{x + r}")
                    for r in range(4): g.e(f"v_and_b32 v{t + 2 * r + 1}, s53, v{x + r}")
                    for e in range(8): g.e(f"v_fma_f32 v{t + e}, v{t + e}, v{VAR[e]}, -v{MEAN[e]}")
                    for r in range(4): g.e(f"PK {x + r},{t + 2 * r},{t + 2 * r + 1}")
                    g.e(f"buffer_store_dwordx4 v[{x}:{x + 3}], v{VST}, s[28:31], s48 offen offset:{cb * 1024} {STF}")
            ep = epilogue(p)
            nb = len(ep) - 4 * 61
            quart = [ep[nb + 61 * i:nb + 61 * i + 60] for i in range(4)]
            zst = [ep[nb + 61 * i + 60] for i in range(4)]
            run(quart[0]); run(quart[1])
            g.e("s_waitcnt vmcnt(0)")
            g.e("s_barrier")
            def z2flag():
                g.e("s_add_u32 s47, s42, 14")
                g.e("s_lshl_b32 s47, s47, 7")
                g.e("s_lshl_b32 s49, s41, 2")
                g.e("s_add_u32 s47, s47, s49")
                g.e("s_add_u32 s47, s47, 32")
                flag_set(g, 16, 47, 59, 100)
            w0(z2flag)
            g.stamp(10)
            srd(g, 24, 16, 17, SZ_Z, WS_Z1)
            g.e("v_bfe_u32 v14, v0, 3, 1")
            g.e("v_lshlrev_b32 v14, 6, v14")
            g.e("v_bfe_u32 v18, v0, 2, 1")
            g.e("v_lshl_add_u32 v14, v18, 7, v14")
            g.e("v_and_b32 v18, 0x33, v0")
            g.e("v_lshl_add_u32 v14, v18, 4, v14")
            run(ep[:nb]); run(zst[:2]); run(quart[2]); run(zst[2:3]); run(quart[3]); run(zst[3:])
        g.stamp(13)
        diag_mark(g, 2)
        g.stamp_dump(16, 17, 40, 0)
        if MERGE:
            g.e(f"s_add_u32 s58, s42, { {'K': 0, 'V': 0, 'Z1': 11, 'Z2': 14}[T] }")
            g.e("s_lshl_b32 s58, s58, 7")
            g.e("s_lshl_b32 s49, s41, 2")
            g.e("s_add_u32 s58, s58, s49")
            if T == "V": g.e("s_add_u32 s58, s58, 32")
            if QFAST and not ztype and not short:
                FAST_VM[:] = [] if PROF else [("w", t[1]) if isinstance(t, tuple) and t[0] == "wq" else t for t in g.vm]
                g.e("s_branch L_p2f")
            else: g.e("s_branch L_p2")
        else: g.e("s_endpgm")

    pend = []
    def wread(F, half=None):
        s, f = F >> 5, F & 31
        if s >= NST: return
        if f == 0 and half != 1:
            assert not pend
            g.wait_vm(("w", s), *(["xn"] if s == 3 else []))
            if QFAST and not ztype and s == (3 if XPF else (9 if QT else NST - 1)): w0(lambda: flag_wait(g, 13, 15, 59, 100, SL1, True))
            g.e("s_barrier")
            if ztype and s == 3:
                def nflag():
                    sk = g.newlabel("nonf")
                    g.e("s_cmp_ge_u32 s48, 8")
                    g.e(f"s_cbranch_scc1 {sk}")
                    rb_line(43, 64)
                    g.e("s_lshl_b32 s49, s48, 2")
                    g.e("s_add_u32 s43, s43, s49")
                    flag_set(g, 10, 43, 59, 100)
                    g.label(sk)
                w0(nflag)
            if s >= 2 and s % 2 == 0:
                g.e(f"v_xor_b32 v{VTE}, 0x10000, v{VTE}")
                g.e(f"v_xor_b32 v{VTO}, 0x10000, v{VTO}")
            if s >= 2: pend.extend(wdma_ops(s + 2))
        if pend and f % WSP == 1 % WSP and f >= 1 and half != 0: pend.pop(0)()
        p, m, cb, mp = fmap(s, f)
        r = WR + (F % 8) * 4
        for a in (range(2) if half is None else [half]):
            o = (s & 1) * 32768 + mp * 4096 + a * 512 + (cb >> 1) * 256
            g.lds(f"TR {r + 2 * a},{VTO if cb & 1 else VTE},{o}", ("w", F))

    g.stamp(1)
    ev = {}
    def at(F, fn): ev.setdefault(F, []).append(fn)
    def spread(F0, ops, after=None):
        if after is not None: at(F0, lambda: g.wait_ds(("x", after)))
        for i, op in enumerate(ops): at(F0 + i, op)
    if not ztype:
        xread(0)
        at(0, lambda: g.wait_ds(("x", 0)))
        if IB >= 2:
            spread(0, xdma_ops(2)); spread(4, wdma_ops(2, 47))
            at(10, lambda: xread(1)); spread(14, xdma_ops(3), 1)
        elif IB == 1:
            spread(0, wdma_ops(1, 47)); spread(4, xdma_ops(2))
            at(10, lambda: xread(1)); spread(14, xdma_ops(3), 1); spread(18, wdma_ops(2, 47))
        else:
            spread(0, xdma_ops(1)); spread(4, wdma_ops(1, 47)); spread(8, xdma_ops(2))
            at(13, lambda: xread(1)); spread(16, xdma_ops(3), 1); spread(30, wdma_ops(2, 47))
        at(22, lambda: xread(2)); spread(26, xdma_ops(4), 2)
        at(34, lambda: xread(3)); spread(38, xdma_ops(5), 3)
        at(44, lambda: xread(4)); spread(48, wdma_ops(3, 47), 4)
        at(56, lambda: xread(5)); spread(64, xdma_ops(6), 5)
        at(80, lambda: xread(6)); spread(84, xdma_ops(7), 6)
        at(99, lambda: xread(7)); at(103, lambda: g.wait_ds(("x", 7)))
    else:
        for m in range(16): at(8 * m if m < 12 else 96 + 4 * (m - 12), lambda m=m: g.wait_vm(("x", m)))
        for m, F in zip(range(4, 16), (4, 8, 12, 16, 28, 34, 40, 46, 56, 64, 70, 74)): at(("post", F), lambda m=m: xload(m))
        def xnc(i, st):
            if not st:
                if i == 0:
                    g.e(f"s_add_u32 s49, s46, {ZPARK}")
                    g.e(f"v_add_u32 v14, s49, v{VST}")
                    g.e("s_cmp_ge_u32 s48, 8")
                    g.e("s_cselect_b32 s49, 0x40000000, 0")
                    g.e(f"v_add_u32 v15, s49, v{VST}")
                g.lds(f"DR 10,14,{i * 1024}", ("xn", i))
            else:
                g.wait_ds(("xn", i))
                g.vmem(f"buffer_store_dwordx4 v[10:13], v15, s[24:27], s62 offen offset:{i * 1024} sc1", "xn")
        for i in range(4):
            at(("post", 19 + 12 * i), lambda i=i: xnc(i, False)); at(("post", 25 + 12 * i), lambda i=i: xnc(i, True))
        if T == "Z2": at(("post", 66), lambda: g.e("v_mov_b32 v13, v14"))
        for F0, s in ((0, 1), (22, 2), (50, 3)):
            for i, op in enumerate(wdma_ops(s, 47)): at(("post", F0 + i), op)
    if PFW and not ztype:
        def pfw():
            g.e("s_bfe_u32 s43, s2, 0x20003")
            g.e("s_lshl_b32 s43, s43, 7")
            g.e("s_lshl_b32 s47, s40, 4")
            g.e("s_add_u32 s43, s43, s47")
            g.e("v_bfe_u32 v14, v0, 2, 4")
            g.e("v_add_u32 v14, s43, v14")
            g.e("v_lshlrev_b32 v14, 13, v14")
            g.e("v_and_b32 v15, 3, v0")
            g.e("v_min_u32 v15, 2, v15")
            g.e("v_lshl_add_u32 v14, v15, 7, v14")
            g.vmem(f"buffer_load_dword v14, v14, s[20:23], s44 offen offset:384", "t")
        at(PFW, pfw)
    if PF:
        def prefetch():
            sr = 36 if T == "Z2" else 32
            srd(g, sr, 8, 9, 4 * MB)
            g.e("s_and_b32 s43, s2, 0xf8")
            g.e("s_add_u32 s43, s43, s40")
            g.e("s_lshl_b32 s43, s43, 14")
            nb = 2 if BAL else 1
            g.e(f"s_and_b32 s47, s2, {6 if BAL else 7}")
            g.e("s_lshl_b32 s47, s47, 8")
            g.e("s_add_u32 s47, s47, s43")
            g.e(f"v_and_b32 v14, {(1 << nb) - 1}, v0")
            g.e("v_lshlrev_b32 v14, 7, v14")
            g.e(f"v_bfe_u32 v15, v0, {nb}, 3")
            g.e("v_lshl_add_u32 v14, v15, 11, v14")
            g.e(f"v_bfe_u32 v15, v0, {nb + 3}, {3 - nb}")
            g.e("v_lshl_add_u32 v15, v15, 28, v14")
            g.vmem(f"buffer_load_dword v14, v15, s[{sr}:{sr + 3}], s47 offen", "t")
            if T in ("K", "V"):
                sk = g.newlabel("nocode")
                g.e("s_cmp_lt_u32 s2, 8")
                g.e(f"s_cbranch_scc0 {sk}")
                code_touch(g, 36, 14, "L_all_end", "L_p2", False)
                g.label(sk)
            if SPT1 and T != "Z2":
                sk = g.newlabel("nosp")
                g.e(f"s_cmp_lt_u32 s2, {192 if BAL else 224}")
                g.e(f"s_cbranch_scc1 {sk}")
                if BAL:
                    g.e("s_bitcmp1_b32 s2, 0")
                    g.e(f"s_cbranch_scc1 {sk}")
                g.e("s_load_dwordx2 s[36:37], s[0:1], 64")
                g.e(f"s_and_b32 s43, s2, {0x38 if BAL else 0x18}")
                g.e("s_add_u32 s43, s43, s40")
                g.e("s_lshl_b32 s43, s43, 15")
                g.e("s_and_b32 s47, s2, 7")
                g.e("s_lshl_b32 s47, s47, 20")
                g.e("s_add_u32 s43, s43, s47")
                g.e("v_bfe_u32 v13, v0, 3, 3")
                g.e("v_lshlrev_b32 v13, 12, v13")
                g.e("v_and_b32 v15, 7, v0")
                g.e("v_lshl_add_u32 v13, v15, 7, v13")
                g.e("s_waitcnt lgkmcnt(0)")
                g.e(f"s_mov_b32 s38, {8 * MB}")
                g.e("s_mov_b32 s39, 0x20000")
                for i in range(SPT1): g.e(f"buffer_load_dword v14, v13, s[36:39], s43 offen offset:{1024 * i}")
                g.label(sk)
            if PF3 == 1 and T != "Z2":
                sk = g.newlabel("nopf3")
                g.e(f"s_cmp_lt_u32 s42, {SHORT0}")
                g.e(f"s_cbranch_scc1 {sk}")
                pf_next(True)
                g.label(sk)
        at(PF if not ztype else min(PF, 110), prefetch)
    if not ztype: at(42 if XPF else 150, lambda: (g.e("v_mov_b32 v13, 20"), w0(lambda: dbg_load(g, 13, 13, 18))))
    if T != "Z2": at(114 if ztype else (70 if XPF else (2 * NS - 1) * 32 - 12), xn_snap)
    if XPF and not ztype:
        def xn_touch():
            from k2 import role_ops
            sk = g.newlabel("noxt")
            g.e(f"s_cmp_ge_u32 s42, {SHORT0}")
            g.e(f"s_cbranch_scc1 {sk}")
            for t in role_ops(54, 55, 52, 53, 43, 47): g.e(t)
            srd(g, 36, 16, 17, SZ_XN, WS_XN)
            g.e("s_lshr_b32 s47, s40, 2")
            g.e("s_cmp_eq_u32 s47, 0")
            g.e("s_cselect_b32 s55, s52, s53")
            g.e("s_lshl_b32 s55, s55, 17")
            g.e("s_and_b32 s43, s40, 3")
            g.e("s_lshl_b32 s43, s43, 15")
            g.e("s_add_u32 s55, s55, s43")
            g.e("s_lshr_b32 s43, s54, 3")
            g.e("s_lshl_b32 s43, s43, 13")
            g.e("s_add_u32 s55, s55, s43")
            g.e(f"v_lshlrev_b32 v14, 3, v{VST}")
            g.e("buffer_load_dword v14, v14, s[36:39], s55 offen")
            g.label(sk)
        at(XPF, xn_touch)
    if QFAST and not ztype:
        from k2 import role_ops
        def qprep():
            g.e("s_load_dwordx2 s[6:7], s[0:1], 64")
            for t in role_ops(54, 55, 52, 53, 43, 47): g.e(t)
            srd(g, 32, 8, 9, 512 * 8192)
            srd(g, 36, 16, 17, SZ_XN, WS_XN)
            g.e("s_lshl_b32 s54, s54, 8")
            g.e("s_and_b32 s43, s40, 3")
            g.e("s_lshl_b32 s47, s43, 18")
            g.e("s_add_u32 s54, s54, s47")
            g.e("s_lshr_b32 s47, s40, 2")
            g.e("s_cmp_eq_u32 s47, 0")
            g.e("s_cselect_b32 s55, s52, s53")
            g.e("s_lshl_b32 s47, s47, 7")
            g.e("s_add_u32 s54, s54, s47")
            g.e("s_lshl_b32 s55, s55, 17")
            g.e("s_lshl_b32 s43, s43, 15")
            g.e("s_add_u32 s55, s55, s43")
            g.e("s_waitcnt lgkmcnt(0)")
            g.ds = []
        at(258 if QT else 270, qprep)
        def qx(m):
            if m % 4 == 0:
                g.e(f"s_add_u32 s52, s55, {m * 1024}")
                g.e(f"s_add_u32 s53, s55, {m * 1024 + 16384}")
            for a in range(2):
                x = xreg(a, m)
                g.vmem(f"buffer_load_dwordx4 v[{x}:{x + 3}], v{VST}, s[36:39], s{52 + a} offen offset:{(m % 4) * 1024} {SC}", ("x", m))
        if QT:
            for m in range(12): at(("post", 9 * 32 + 2 + (8 * m if m < 8 else 64 + 4 * (m - 8))), lambda m=m: qx(m))
        else:
            for m in range(8): at(("post", (NST - 1) * 32 + 1 + 3 * m), lambda m=m: qx(m))
    def place(ops, F0, n):
        for i, op in enumerate(ops): at(("post", F0 + i * n // len(ops)), op)
    for p in range(NP - 1):
        ops = epilogue(p)
        F0 = (2 * p + 2) * 32 + 3
        if not ztype:
            h = len(ops) - 20
            fr = [ops[h + 5 * i:h + 5 * i + 5] for i in range(4)]
            if p == 0:
                place(ops[:h] + [o for f4 in fr for o in f4[:4]], 3 * 32 + 20, 11)
                for f4, F in zip(fr, (127, 138, 149, 160)): at(("post", F), f4[4])
            elif QT and p == 3:
                place(ops[:h] + [o for f4 in fr for o in f4[:4]], 8 * 32 + 3, 11)
                for f4, F in zip(fr, (272, 296, 320, 344)): at(("post", F), f4[4])
            elif QT and p == 4:
                place(ops, 11 * 32 + 20, 12)
            else:
                pos = (166, 174, 182, 189) if p == 1 else [F0 + 5 + 16 * i for i in range(4)]
                place(ops[:h], pos[0] - 4, 3)
                for f4, F in zip(fr, pos): place(f4, F - 1, 2)
        elif p == 0: place(ops, 3 * 32 + 20, 11)
        elif T == "Z2" and p == 1:
            place(ops + [lambda: g.e("s_nop 1")] + publish_ops(), F0, ZPUB)
            at(("post", F0 + ZPUB + ZA), arrive)
            at(("post", F0 + ZPUB + ZA + ZP), lambda: w0(lambda: flag_load(g, 14, 15, 100)))
            at(("post", min(191, F0 + ZPUB + ZA + ZP + ZC)), collect)
        else: place(ops, F0, 60)
    for F in range(D): wread(F)
    for s in range(NST):
        if s == 1: diag_mark(g, 1)
        if s < 9 and PROF != 6: g.stamp(2 + s)
        if s == 2 * NS and NS < NP:
            cont = g.newlabel("cont")
            g.e(f"s_cmp_lt_u32 s42, {SHORT0}")
            g.e(f"s_cbranch_scc1 {cont}")
            sv = (list(g.vm), list(g.ds))
            final(NS - 1, True)
            g.vm, g.ds = sv
            g.label(cont)
        for f in range(32):
            F = s * 32 + f
            p, m, cb, mp = fmap(s, f)
            if PROF == 6 and F in PFL: g.stamp(2 + PFL.index(F))
            for fn in ev.pop(F, []): fn()
            g.wait_ds(("w", F))
            r = WR + (F % 8) * 4
            post = ev.pop(("post", F), [])
            for a in range(2):
                op = "MZ" if m == 0 else "M"
                if ktp(p): g.e(f"{op} {areg(p & 1, cb, a)},{r},{xreg(a, m)}")
                else: g.e(f"{op} {areg(p & 1, cb, a)},{xreg(a, m)},{r}")
                wread(F + D, a)
                n = len(post) // 2 if a == 0 else len(post)
                for _ in range(n): post.pop(0)()
    assert not ev, ev.keys()
    final(NP - 1)
    g.label(f"L_k1_{T}_end")

def gen_k1(g):
    g.e(".p2align 8")
    g.e(f".type {KNAME},@function")
    g.label(KNAME)
    g.e("s_cmp_ge_u32 s2, 256")
    g.e("s_cbranch_scc1 L_k1_end")
    g.stamp(0)
    diag_mark(g, 0)
    if PROF: g.e("s_memrealtime s[94:95]")
    g.e("s_load_dwordx4 s[4:7], s[0:1], 0")
    g.e("s_load_dwordx4 s[8:11], s[0:1], 16")
    g.e("s_load_dwordx2 s[12:13], s[0:1], 32")
    g.e("s_load_dwordx2 s[14:15], s[0:1], 56")
    g.e("s_load_dwordx2 s[18:19], s[0:1], 96")
    g.e("s_load_dwordx2 s[16:17], s[0:1], 104")
    g.e("v_lshrrev_b32 v1, 6, v0")
    g.e("s_lshr_b32 s49, s2, 3")
    g.e("s_and_b32 s41, s2, 1")
    g.e("v_readfirstlane_b32 s40, v1")
    g.e("s_lshl_b32 s41, s41, 2")
    g.e("s_and_b32 s50, s49, 3")
    g.e("s_add_u32 s41, s41, s50")
    g.e("s_and_b32 s3, s2, 6")
    g.e("s_lshl_b32 s3, s3, 2")
    g.e("s_lshr_b32 s49, s49, 2")
    g.e("s_add_u32 s3, s3, s49")
    if BAL:
        g.e("s_and_b32 s50, s2, 1")
        g.e("s_or_b32 s51, s49, 1")
        g.e("s_sub_u32 s50, s51, s50")
        g.e("s_bfe_u32 s51, s2, 0x30003")
        g.e(f"s_cmp_ge_u32 s49, {4 if ZODD else 6}")
        g.e("s_cselect_b32 s49, s50, s49")
        g.e("s_cselect_b32 s41, s51, s41")
    if MIX:
        cst = [sum(v << (8 * i) for i, v in enumerate(row)) for row in GMAP]
        g.e("s_bitcmp1_b32 s2, 1")
        g.e(f"s_cselect_b32 s44, {cst[1] & 0xffffffff}, {cst[0] & 0xffffffff}") if False else None
        for k, (lo, hi) in enumerate(((44, 45), (46, 47))):
            g.e(f"s_mov_b32 s{lo}, {cst[2 * k] & 0xffffffff}")
            g.e(f"s_mov_b32 s{hi}, {cst[2 * k] >> 32}")
            g.e(f"s_cmov_b32 s{lo}, {cst[2 * k + 1] & 0xffffffff}")
            g.e(f"s_cmov_b32 s{hi}, {cst[2 * k + 1] >> 32}")
        g.e("s_bitcmp1_b32 s2, 2")
        g.e("s_cselect_b64 s[44:45], s[46:47], s[44:45]")
        g.e("s_lshl_b32 s49, s49, 3")
        g.e("s_lshr_b64 s[44:45], s[44:45], s49")
        g.e("s_and_b32 s3, s44, 31")
    g.e("s_waitcnt lgkmcnt(0)")
    g.e(f"s_add_u32 s100, s16, {WS_FL}")
    g.e("s_addc_u32 s101, s17, 0")
    if MERGE:
        sk = g.newlabel("nonce")
        g.e("s_or_b32 s49, s2, s40")
        g.e(f"s_cbranch_scc1 {sk}")
        g.e("s_memrealtime s[50:51]")
        g.e("v_mov_b32 v2, 20")
        g.e("s_waitcnt lgkmcnt(0)")
        g.e("s_or_b32 s49, s50, 1")
        g.e("v_mov_b32 v3, s49")
        g.e("s_mov_b64 exec, 1")
        g.e("global_store_dword v2, v3, s[18:19] sc1")
        g.e("s_mov_b64 exec, -1")
        g.label(sk)
    g.e(f"s_cmp_lt_u32 s3, {GKV}")
    g.e("s_cbranch_scc1 L_k1_K")
    g.e(f"s_cmp_lt_u32 s3, {2 * GKV}")
    g.e("s_cbranch_scc1 L_k1_V")
    g.e(f"s_cmp_lt_u32 s3, {2 * GKV + 3}")
    g.e("s_cbranch_scc1 L_k1_Z1")
    g.e("s_branch L_k1_Z2")
    g.label("L_k1_end")
    g.e("s_endpgm")
    for T in ("K", "V", "Z1", "Z2"):
        gen_type(g, T)
```

```python
from asmlib import *
import k1
from k1 import w_voffsets, tr_bases, xreg, areg, WR, D
import math

QSCALE = 128 ** -0.5 * math.log2(math.e)
STASH = 131072
DSP = int(os.environ.get('DSP', '3')); EB = int(os.environ.get('EB', '14'))
XPRE = int(os.environ.get('XPRE', '4'))
PS = int(os.environ.get('PS', '0'))
NTSP = os.environ.get('NTSP', '')
PF2 = int(os.environ.get('PF2', '0'))
KINS = int(os.environ.get('KINS', '0'))
NTAIL = int(os.environ.get('NTAIL', '0'))
STF2 = os.environ.get('STF2', 'sc1')
PFS = int(os.environ.get('PFS', '54'))
STFX = os.environ.get('STFX', 'sc1'); STFU = os.environ.get('STFU', 'sc1' if MERGE == 2 else '')
XSCH = eval(os.environ.get('XSCH', '(4, 8, 12, 16, 28, 34, 40, 46, 56, 62, 68, 74)'))
PF4 = int(os.environ.get('PF4', '1'))
SLA = int(os.environ.get('SLA', '8')); SLS = int(os.environ.get('SLS', '10'))
SPT = int(os.environ.get('SPT', '0'))
HOT = int(os.environ.get('HOT', '0'))
HACK = os.environ.get('HACK', '')
NTWQ = os.environ.get('NTWQ', '')
NPART = 3
VF, VNEG, VL, VT, V16, VLT = 1, 3, 4, 6, 7, 8
NEGM, PR, TMP, OR, FR = 16, 24, 40, 128, 192
ML, FA, FB = 52, 56, 58
def sreg(kt, qb): return 72 + 16 * kt + 4 * qb
def preg(qb, kg): return PR + (qb * 2 + kg) * 4
def qreg(qb, mm): return 64 + 16 * mm + 4 * qb
def oreg(cb, qb): return OR + (cb * 2 + qb) * 4
def freg(j): return FR + j * 4

def merge_streams(main, fill, start=0):
    out = []
    n = len(main) - start
    acc = 0.0
    fill = list(fill)
    per = len(fill) / max(1, n)
    for i, m in enumerate(main):
        out.append(m)
        if i >= start:
            acc += per
            while fill and acc >= 0.999:
                out.append(fill.pop(0)); acc -= 1.0
    return out + fill

def dma4(g, so, first_m0=None, tag=None):
    ops = []
    for j in range(4):
        def op(j=j):
            if j == 0 and first_m0:
                g.e(first_m0); g.e("s_nop 0")
            g.vmem(f"buffer_load_dwordx4 v{V16}, s[28:31], s{so} offen offset:{j * 1024} {SC} lds", tag)
        ops.append(op)
    return ops

def next_ops(t):
    return [[f"s_and_b32 s19, s{t}, 3"], ["s_lshl_b32 s19, s19, 15"],
            ["s_xor_b32 s50, s19, 0x10000"], ["s_add_u32 s50, s50, s55"],
            [f"s_add_u32 s49, s{t}, 2"], ["s_lshl_b32 s51, s49, 14"], ["s_add_u32 s51, s51, s54"],
            ["s_cmp_lt_u32 s49, s48", "s_cselect_b32 s51, s51, s54"],
            [f"s_cmp_lt_u32 s{t}, s45", "s_cselect_b32 s49, s41, 0"],
            ["s_lshl_b32 s7, s49, 14"], ["s_add_u32 m0, s50, s7"], ["s_lshl_b32 s49, s49, 24"],
            ["s_add_u32 s7, s51, s49"], [f"s_add_u32 s51, s51, {16 * MB}"]]

def softmax_txt():
    out = []
    I = out.append
    T = [TMP + i for i in range(8)]
    for qb in range(2):
        for r in range(4): I(f"v_exp_f32 v{T[qb * 4 + r]}, v{sreg(0, qb) + r}")
    for qb in range(2): I(f"v_add_f32 v{VLT + qb}, v{T[qb * 4]}, v{T[qb * 4 + 1]}")
    for qb in range(2): I(f"PK {preg(qb, 0)},{T[qb * 4]},{T[qb * 4 + 1]}")
    for qb in range(2): I(f"v_add_f32 v{VLT + qb}, v{VLT + qb}, v{T[qb * 4 + 2]}")
    for qb in range(2): I(f"PK {preg(qb, 0) + 1},{T[qb * 4 + 2]},{T[qb * 4 + 3]}")
    for qb in range(2): I(f"v_add_f32 v{VLT + qb}, v{VLT + qb}, v{T[qb * 4 + 3]}")
    for kt in range(1, 4):
        for qb in range(2):
            s = sreg(kt, qb); t = T[qb * 4:qb * 4 + 4]
            for r in range(4): I(f"v_exp_f32 v{t[r]}, v{s + r}")
            p = preg(qb, kt >> 1) + (kt & 1) * 2
            I(f"v_add_f32 v{VLT + qb}, v{VLT + qb}, v{t[0]}")
            I(f"v_add_f32 v{VLT + qb}, v{VLT + qb}, v{t[1]}")
            I(f"PK {p},{t[0]},{t[1]}")
            I(f"v_add_f32 v{VLT + qb}, v{VLT + qb}, v{t[2]}")
            I(f"v_add_f32 v{VLT + qb}, v{VLT + qb}, v{t[3]}")
            I(f"PK {p + 1},{t[2]},{t[3]}")
    return out
def softmax_ops(g):
    return [lambda t=t: g.e(t) for t in softmax_txt()]

def xgroup(g, regs, op, tmp):
    for sw in ("v_permlane32_swap_b32", "v_permlane16_swap_b32"):
        for i, r in enumerate(regs): g.e(f"v_mov_b32 v{tmp + i}, v{r}")
        g.e("s_nop 1")
        for i, r in enumerate(regs): g.e(f"{sw} v{tmp + i}, v{r}")
        g.e("s_nop 1")
        for i, r in enumerate(regs): g.e(f"{op} v{r}, v{r}, v{tmp + i}")

def rescale(g, first):
    MX = [TMP + 8, TMP + 9]
    for qb in range(2):
        vals = [sreg(kt, qb) + r for kt in range(4) for r in range(4)]
        g.e(f"v_max3_f32 v{MX[qb]}, v{vals[0]}, v{vals[1]}, v{vals[2]}")
        for i in range(3, 15, 2): g.e(f"v_max3_f32 v{MX[qb]}, v{MX[qb]}, v{vals[i]}, v{vals[i + 1]}")
        g.e(f"v_max_f32 v{MX[qb]}, v{MX[qb]}, v{vals[15]}")
    xgroup(g, MX, "v_max_f32", TMP + 10)
    if not first:
        for qb in range(2): g.e(f"v_max_f32 v{MX[qb]}, 0, v{MX[qb]}")
    for kt in range(4):
        for qb in range(2):
            for r in range(4): g.e(f"v_sub_f32 v{sreg(kt, qb) + r}, v{sreg(kt, qb) + r}, v{MX[qb]}")
    for qb in range(2):
        for r in range(4): g.e(f"v_sub_f32 v{NEGM + qb * 4 + r}, v{NEGM + qb * 4 + r}, v{MX[qb]}")
    if not first:
        for qb in range(2): g.e(f"v_exp_f32 v{MX[qb]}, -v{MX[qb]}")
        g.e("s_nop 0")
        for cb in range(8):
            for qb in range(2):
                for r in range(4): g.e(f"v_mul_f32 v{oreg(cb, qb) + r}, v{oreg(cb, qb) + r}, v{MX[qb]}")
        for qb in range(2): g.e(f"v_mul_f32 v{VL + qb}, v{VL + qb}, v{MX[qb]}")

def mask_block(g):
    skip = g.newlabel("nomask"); l1 = g.newlabel("m1"); lf = g.newlabel("mf"); do = g.newlabel("domask")
    g.e("s_add_u32 s49, s52, 2")
    g.e("s_cmp_ge_u32 s49, s48")
    g.e(f"s_cbranch_scc1 {do}")
    g.e("s_sub_u32 s49, s52, s46")
    g.e("s_cmp_lt_u32 s49, 2")
    g.e(f"s_cbranch_scc0 {skip}")
    g.label(do)
    g.e("s_and_b32 s49, s52, 1")
    g.e("s_lshl_b32 s49, s49, 1")
    g.e("s_sub_u32 s49, s42, s49")
    def diag(kt, qb):
        for r in range(4): g.e(f"v_cndmask_b32 v{sreg(kt, qb) + r}, v{VNEG}, v{sreg(kt, qb) + r}, s[{8 + 2 * r}:{9 + 2 * r}]")
    def full(kt, qb):
        for r in range(4): g.e(f"v_mov_b32 v{sreg(kt, qb) + r}, v{VNEG}")
    g.e("s_cmp_ge_i32 s49, 2")
    g.e(f"s_cbranch_scc1 {skip}")
    g.e("s_cmp_eq_i32 s49, 1")
    g.e(f"s_cbranch_scc1 {l1}")
    g.e("s_cmp_lt_i32 s49, 0")
    g.e(f"s_cbranch_scc1 {lf}")
    diag(0, 0); full(1, 0); diag(1, 1); full(2, 0); full(2, 1); full(3, 0); full(3, 1)
    g.e(f"s_branch {skip}")
    g.label(l1)
    diag(2, 0); full(3, 0); diag(3, 1)
    g.e(f"s_branch {skip}")
    g.label(lf)
    for kt in range(4):
        for qb in range(2): full(kt, qb)
    g.label(skip)

def m_phase(g, has_pv, zero, split, post=None, pre=None):
    g.vm = []
    if has_pv: g.e("s_barrier")
    dma = dma4(g, 7) + (dma4(g, 51, "s_add_u32 m0, s50, 16384") if split else [])
    sal = [["s_add_u32 s49, s52, 2"], ["s_cmp_ge_u32 s49, s48", "s_cselect_b32 s4, 0, 4"], ["s_sub_u32 s49, s52, s46"], ["s_min_u32 s4, s4, s49"],
           ["s_cmp_lt_u32 s52, s53", "s_cselect_b32 s47, 1, 2"], ["s_add_u32 s47, s47, s52"]]
    sal2 = next_ops(47)
    if has_pv:
        g.ds = []
        sp = DSP if split else 4
        for j in range(16):
            kg, cb = j >> 3, j & 7
            for qb in range(2):
                g.e(f"{'MZ' if zero and kg == 0 else 'M'} {oreg(cb, qb)},{freg(j)},{preg(qb, kg)}")
                if qb == 0 and j >= 1: g.lds(f"DR {freg(j - 1)},{VF},{(j - 1) * 1024}", ("k", j - 1))
            if dma and j % sp == 0: dma.pop(0)()
            elif sal:
                for t in sal.pop(0): g.e(t)
        g.lds(f"DR {freg(15)},{VF},{15 * 1024}", ("k", 15))
    else:
        sp = 2
    PT = int(os.environ.get('PT', '5'))
    if has_pv and not zero: g.stamp_if(7, 52, PT)
    tail = []
    assert NTAIL <= 8
    if has_pv: tail = [[o] for o in softmax_ops(g)[:NTAIL]]
    for j in range(16):
        kt, mm = j >> 2, j & 3
        if j == EB:
            if pre: pre()
            g.wait_ds(("k", 15))
            if has_pv and not zero: g.stamp_if(8, 52, PT)
            if has_pv: g.e(f"s_waitcnt vmcnt({8 if split else 4})")
            g.e("s_setprio 2")
            g.e("s_barrier")
        if j == 0: g.wait_ds(("k", 10))
        if j == 5: g.wait_ds(("k", 15))
        for qb in range(2):
            if mm == 0: g.e(f"MC {sreg(kt, qb)},{freg(j)},{qreg(qb, mm)},{NEGM + qb * 4}")
            else: g.e(f"M {sreg(kt, qb)},{freg(j)},{qreg(qb, mm)}")
            if qb == 0 and j >= 1: g.lds(f"DR {freg(j - 1)},{VF},{16384 + (j - 1) * 1024}", "v")
            if j >= EB and tail:
                for op in tail.pop(0): op()
            if not has_pv and j >= EB and dma: dma.pop(0)()
            elif has_pv and qb == 1 and dma and (j + 16) % sp == 0: dma.pop(0)()
            elif qb == 1 and sal:
                for t in sal.pop(0): g.e(t)
            elif not sal and not dma and sal2:
                for t in sal2.pop(0): g.e(t)
    while dma: dma.pop(0)()
    assert not sal
    if post: post()
    for grp in sal2:
        for t in grp: g.e(t)
    g.lds(f"DR {freg(15)},{VF},{16384 + 15 * 1024}", "v")
    g.e("s_setprio 0")
    for w in tail:
        for op in w: op()
    g.vm = []; g.ds = []
    if has_pv:
        g.e("s_cmp_lt_u32 s4, 4")
        g.e("s_cbranch_scc1 L_k2_sgen")
    else:
        g.e("s_branch L_k2_sgen")

def advance(g):
    g.e("s_mov_b32 s52, s47")
    g.e(f"v_add_u32 v{VF}, s19, v{V16}")

def role_ops(dh, dg, dx, dy, t1, t2):
    if BAL:
        ops = [f"s_lshr_b32 s{dg}, s2, 3", f"s_mul_i32 s{t1}, s{dg}, 43", f"s_lshr_b32 s{t1}, s{t1}, 7", f"s_mul_i32 s{t2}, s{t1}, 3",
               f"s_sub_u32 s{t2}, s{dg}, s{t2}", f"s_lshl_b32 s{t2}, s{t2}, 1", f"s_and_b32 s{dh}, s2, 1", f"s_add_u32 s{t2}, s{t2}, s{dh}",
               f"s_sub_u32 s{dh}, s{dg}, 24", f"s_cmp_ge_u32 s{dg}, 24", f"s_cselect_b32 s{t1}, s{dh}, s{t1}", f"s_cselect_b32 s{dg}, 6, s{t2}",
               f"s_and_b32 s{dh}, s2, 6", f"s_and_b32 s{t2}, s{t1}, 1", f"s_add_u32 s{dh}, s{dh}, s{t2}",
               f"s_lshr_b32 s{t1}, s{t1}, 1", f"s_lshl_b32 s{t1}, s{t1}, 3", f"s_add_u32 s{dh}, s{dh}, s{t1}"]
    else:
        ops = [f"s_lshr_b32 s{dg}, s2, 3", f"s_mul_i32 s{t1}, s{dg}, 37", f"s_lshr_b32 s{t1}, s{t1}, 8", f"s_mul_i32 s{t2}, s{t1}, 7",
               f"s_sub_u32 s{dg}, s{dg}, s{t2}", f"s_lshl_b32 s{t1}, s{t1}, 3", f"s_and_b32 s{dh}, s2, 7", f"s_add_u32 s{dh}, s{dh}, s{t1}"]
    return ops + [f"s_sub_u32 s{dx}, 15, s{dg}", f"s_xor_b32 s{dy}, s{dg}, {1 if BAL == 2 else 0}", f"s_add_u32 s{dy}, s{dy}, 4", f"s_cmp_eq_u32 s{dg}, 6",
            f"s_cselect_b32 s{dx}, 3, s{dx}", f"s_cselect_b32 s{dy}, 2, s{dy}"]

def gen_attn(g):
    def setup(fast):
        for t in role_ops(43, 44, 32, 33, 49, 50): g.e(t)
        g.e("s_lshr_b32 s41, s40, 2")
        g.e("s_and_b32 s42, s40, 3")
        g.e(f"s_and_b32 s49, s3, {6 if BAL else 7}")
        g.e("s_lshl_b32 s49, s49, 20")
        g.e("s_add_u32 s60, s6, s49")
        g.e("s_addc_u32 s61, s7, 0")
        g.e(f"s_mov_b32 s62, {2 * MB if BAL else MB}")
        g.e("s_mov_b32 s63, 0x20000")
        if fast: srd(g, 20, 8, 9, 512 * 8192)
        else: srd(g, 20, 4, 5, 512 * 8192)
        srd(g, 24, 16, 17, SZ_XN, WS_XN)
        srd(g, 28, 16, 17, 2 * SZ_KV, WS_K)
        srd(g, 36, 16, 17, SZ_CTX, WS_CTX)
        g.e("s_lshl_b32 s55, s42, 12")
        g.e("s_lshl_b32 s54, s43, 19")
        g.e("s_add_u32 s54, s54, s55")
        g.e("s_lshl_b32 s57, s42, 13")
        g.e(f"s_add_u32 s57, s57, {STASH}")
        g.e("v_and_b32 v28, 63, v0")
        g.e(f"v_lshlrev_b32 v{V16}, 4, v28")
        g.e("v_and_b32 v28, 15, v0")
        g.e("v_bfe_u32 v29, v0, 4, 2")
        g.e("v_lshlrev_b32 v29, 2, v29")
        g.e("v_sub_u32 v28, v28, v29")
        for r in range(4): g.e(f"v_cmp_le_i32 s[{8 + 2 * r}:{9 + 2 * r}], {r}, v28")
        if MERGE:
            g.e("s_mul_i32 s49, s43, 43")
            g.e("s_lshr_b32 s49, s49, 7")
            g.e("s_lshl_b32 s49, s49, 7")
            g.e("s_lshl_b32 s50, s3, 13")
            g.e("s_add_u32 s49, s49, s50")
            g.e("v_and_b32 v14, 15, v0")
            g.e("v_lshl_add_u32 v14, v14, 2, s49")
    def wdma(s):
        g.e(f"s_add_u32 s51, s18, {s * 128 * 8192}")
        g.e(f"s_add_u32 m0, s19, {s * 32768}")
        g.e("s_nop 0")
        for j in range(4):
            g.vmem(f"buffer_load_dwordx4 v{1 + j}, s[20:23], s51 offen offset:{j * 1024} {NTWQ} lds", ("w", s))
    def xload(m):
        if m % 4 == 0:
            g.e(f"s_add_u32 s6, s47, {m * 1024}")
            g.e(f"s_add_u32 s7, s47, {m * 1024 + 16384}")
        for a in range(2):
            x = xreg(a, m)
            g.vmem(f"buffer_load_dwordx4 v[{x}:{x + 3}], v{V16}, s[24:27], s{6 + a} offen offset:{(m % 4) * 1024} {SC}", ("x", m))
    def pf_wsp():
        sk = g.newlabel("nopf")
        g.e("s_cmp_eq_u32 s32, 1")
        g.e(f"s_cbranch_scc1 {sk}")
        g.e("s_and_b32 s34, s2, 0xf8")
        g.e("s_add_u32 s34, s34, s40")
        if BAL:
            g.e("s_and_b32 s49, s2, 1")
            g.e("s_mul_i32 s49, s49, 192")
            g.e("s_add_u32 s34, s34, s49")
        g.e("s_mul_i32 s49, s34, 4736")
        g.e(f"v_lshlrev_b32 v10, 3, v{V16}")
        g.e("v_mov_b32 v12, 0x10000000")
        g.e("v_cmp_gt_u32 vcc, 4736, v10")
        g.e("s_nop 1")
        g.e("v_cndmask_b32 v11, v12, v10, vcc")
        g.e("buffer_load_dword v13, v11, s[60:63], s49 offen")
        if PF4:
            g.e("s_load_dwordx2 s[96:97], s[0:1], 40")
            g.e("s_load_dwordx2 s[98:99], s[0:1], 80")
            if BAL:
                g.e("s_lshr_b32 s49, s3, 1")
                g.e("s_mul_i32 s49, s49, 448")
            else: g.e("s_mul_i32 s49, s3, 224")
            g.e("s_add_u32 s49, s49, s34")
            g.e("v_cmp_gt_u32 vcc, 2432, v10")
            g.e("s_mul_i32 s34, s49, 2432")
            g.e("s_lshl_b32 s35, s49, 9")
            g.e("v_cndmask_b32 v11, v12, v10, vcc")
            g.e("v_cmp_gt_u32 vcc, 512, v10")
            g.e("s_waitcnt lgkmcnt(0)")
            srd(g, 60, 96, 97, 4 * MB)
            g.e("buffer_load_dword v13, v11, s[60:63], s34 offen")
            g.e("v_cndmask_b32 v11, v12, v10, vcc")
            srd(g, 60, 98, 99, 896 * 1024)
            g.e("buffer_load_dword v13, v11, s[60:63], s35 offen")
        g.label(sk)
    def first_tile(t):
        g.e("s_lshl_b32 s49, s41, 24")
        g.e("s_add_u32 s50, s54, s49")
        if t: g.e("s_add_u32 s50, s50, 16384")
        return dma4(g, 50, f"s_add_u32 m0, s19, {t * 32768}", "kv")
    def w0_only(fn):
        sk = g.newlabel("w0")
        g.e("s_cmp_eq_u32 s32, 1")
        g.e("s_cselect_b32 s49, 1, s40")
        g.e("s_cmp_lg_u32 s49, 0")
        g.e(f"s_cbranch_scc1 {sk}")
        fn()
        g.label(sk)
    def fmap(s, f):
        return (f >> 4, (f >> 2) & 3, f & 3) if s == 3 else ((f >> 2) & 1, f >> 3, f & 3)
    def qpack(p):
        ops = []
        I = lambda s: ops.append(lambda s=s: g.e(s))
        for a in range(2):
            for mm in range(2):
                x, y = areg(p, 2 * mm, a), areg(p, 2 * mm + 1, a)
                assert x == qreg(a, 2 * p + mm)
                for r in range(4): I(f"v_mul_f32 v{x + r}, s56, v{x + r}")
                for r in range(4): I(f"v_mul_f32 v{y + r}, s56, v{y + r}")
                I(f"PK {x},{x},{x + 1}"); I(f"PK {x + 1},{x + 2},{x + 3}")
                I(f"PK {x + 2},{y},{y + 1}"); I(f"PK {x + 3},{y + 2},{y + 3}")
        return ops
    def qphase(fast):
        if not fast: w_voffsets(g, 8192, 1)
        g.e("s_lshl_b32 s18, s43, 8")
        g.e("s_lshl_b32 s49, s42, 18")
        g.e("s_add_u32 s18, s18, s49")
        g.e("s_lshl_b32 s49, s41, 7")
        g.e("s_add_u32 s18, s18, s49")
        g.e("s_lshl_b32 s19, s40, 12")
        g.e("s_cmp_eq_u32 s41, 0")
        g.e("s_cselect_b32 s47, s32, s33")
        g.e("s_lshl_b32 s47, s47, 17")
        g.e("s_lshl_b32 s49, s42, 15")
        g.e("s_add_u32 s47, s47, s49")
        if PROF == 1: g.stamp(6)
        if not fast:
            wdma(0)
            for m in range(2): xload(m)
            if not MERGE: code_touch(g, 96, 14, "L_k2_sp")
            g.e("s_barrier")
            for m in range(2, 4): xload(m)
            later = {0: lambda: wdma(1), 22: lambda: wdma(2), 50: lambda: wdma(3)}
            for m, F in zip(range(4, 16), XSCH): later[F] = lambda m=m: xload(m)
            tr_bases(g, 5, 6)
            FS, FL = 0, 20
        else:
            later = {0: lambda: wdma(2), 30: lambda: wdma(3)}
            if k1.QTAIL:
                for m, F in zip(range(12, 16), (8, 16, 38, 52)): later[F] = lambda m=m: xload(m)
            else:
                for m, F in zip(range(8, 16), (4, 10, 16, 22, 36, 42, 52, 60)): later[F] = lambda m=m: xload(m)
            g.e("v_xor_b32 v5, 0x10000, v5")
            g.e("v_xor_b32 v6, 0x10000, v6")
            g.e("v_mov_b32 v13, 0")
            FS, FL = 1, 46
        g.e(f"s_mov_b32 s56, {f32(QSCALE)}")
        g.e("s_lshl_b32 s48, s32, 1")
        g.e("s_add_u32 s48, s48, 2")
        if 'a' in HACK:
            g.e("s_cmp_ge_u32 s32, 10")
            g.e("s_cselect_b32 s49, 2, 0")
            g.e("s_sub_u32 s33, s33, s49")
            g.e("s_lshr_b32 s49, s49, 1")
            g.e("s_add_u32 s33, s33, s49")
        g.e("s_lshl_b32 s45, s33, 1")
        g.e("s_add_u32 s45, s45, 2")
        g.e("s_sub_u32 s53, s45, s41")
        g.e("s_sub_u32 s46, s45, 2")
        g.e("s_cmp_eq_u32 s41, 0")
        g.e("s_cselect_b32 s46, 0x1000, s46")
        g.stamp(1)
        if MERGE: later[FL] = lambda: w0_only(lambda: flag_load(g, 13, 14, 100))
        def wread(F, half=None):
            s, f = F >> 5, F & 31
            if s >= 4: return
            if f == 0 and half != 1:
                g.wait_vm(("w", s), "kv", *(["st"] if s == FS else []))
                if MERGE and s == 2: w0_only(lambda: flag_wait(g, 13, 14, 59, 100, SLA, True))
                g.e("s_barrier")
                if MERGE and s == FS: w0_only(lambda: flag_set(g, 10, 58, 59, 100))
                if s == 2:
                    g.e("v_xor_b32 v5, 0x10000, v5")
                    g.e("v_xor_b32 v6, 0x10000, v6")
                if s >= 2:
                    for op in first_tile(s - 2): op()
            p, ks, cb = fmap(s, f)
            mp = p * 4 + ks
            r = WR + (F % 8) * 4
            for a in (range(2) if half is None else [half]):
                o = (s & 1) * 32768 + mp * 4096 + a * 512 + (cb >> 1) * 256
                g.lds(f"TR {r + 2 * a},{6 if cb & 1 else 5},{o}", ("w", F))
        for F in range(D): wread(F)
        fill = []
        for s in range(4):
            if PROF == 1: g.stamp(7 + s)
            for f in range(32):
                F = s * 32 + f
                p, ks, cb = fmap(s, f)
                m = s * 4 + ks
                if F == 116: fill = qpack(0)
                if p == 0 and cb == 0: g.wait_vm(("x", m))
                g.wait_ds(("w", F))
                r = WR + (F % 8) * 4
                for a in range(2):
                    g.e(f"{'MZ' if m == 0 else 'M'} {areg(p, cb, a)},{r},{xreg(a, m)}")
                    wread(F + D, a)
                    if fill: fill.pop(0)(); fill.pop(0)()
                if F in later: later.pop(F)()
        assert not fill and not later
    if k1.QFAST:
        g.label("L_p2f")
        g.stamp(0)
        if PROF: g.e("s_memrealtime s[94:95]")
        g.vm = list(k1.FAST_VM); g.ds = []
        g.e("s_and_b32 s3, s2, 7")
        setup(True)
        qphase(True)
        g.e("s_branch L_k2_qend")
    g.vm = []; g.ds = []
    g.label("L_k2_attn")
    setup(False)
    if MERGE: g.e("s_barrier")
    g.label("L_k2_round")
    qphase(False)
    g.label("L_k2_qend")
    g.stamp(2)
    g.e("s_mov_b32 s47, 0")
    for grp in next_ops(47):
        for t in grp: g.e(t)
    advance(g)
    g.vm = []; g.ds = []
    for j in range(16): g.e(f"DR {freg(j)},{VF},{j * 1024}")
    for op in qpack(1): op()
    g.e(f"v_mov_b32 v{VNEG}, {f32(-1e30)}")
    g.e(f"s_mov_b32 s56, {f32(2.0 ** 60)}")
    g.e(f"s_mov_b32 s6, {f32(2.0 ** -60)}")
    for i in range(8): g.e(f"v_mov_b32 v{NEGM + i}, 0")
    g.e(f"v_add_u32 v9, s57, v{V16}")
    g.e("s_waitcnt vmcnt(0) lgkmcnt(0)")
    g.stamp(3)
    la = g.newlabel("qa")
    g.e("s_cmp_eq_u32 s41, 0")
    g.e(f"s_cbranch_scc1 {la}")
    g.e("s_barrier")
    g.label(la)
    def post0():
        if PFS: pf_wsp()
    def pre0():
        sk = g.newlabel("nost")
        g.e("s_cmp_eq_u32 s41, 0")
        g.e(f"s_cbranch_scc0 {sk}")
        for qb in range(2):
            for mm in range(4): g.e(f"DW 9,{qreg(qb, mm)},{(qb * 4 + mm) * 1024}")
        g.label(sk)
    m_phase(g, False, False, False, post0, pre0)
    def s_fast(tag):
        g.label(f"L_k2_s{tag}")
        PT = int(os.environ.get('PT', '5'))
        g.stamp_if(9, 52, PT)
        for op in softmax_ops(g)[NTAIL:]: op()
        g.e(f"v_max_f32 v{VT}, v{VLT}, v{VLT + 1}")
        g.e(f"v_cmp_lt_f32 vcc, s56, v{VT}")
        g.e("s_cbranch_vccnz L_k2_sgen")
        for qb in range(2): g.e(f"v_add_f32 v{VL + qb}, v{VL + qb}, v{VLT + qb}")
        g.stamp_if(10, 52, PT)
        if PROF == 2:
            g.e("s_waitcnt vmcnt(0) lgkmcnt(0)")
            g.stamp_if(11, 52, PT)
        advance(g)
        if tag == "sh": g.e("s_cmp_lt_u32 s52, s45")
        g.e("s_waitcnt lgkmcnt(0)" if tag == "sh" else "s_waitcnt vmcnt(0) lgkmcnt(0)")
    s_fast("sh")
    g.e("s_cbranch_scc0 L_k2_msp")
    g.label("L_k2_msh")
    g.stamp_if(6, 52, int(os.environ.get('PT', '5'))); g.stamp_if(12, 52, int(os.environ.get('PT', '5')) + 1)
    m_phase(g, True, False, False)
    g.e("s_branch L_k2_ssh")
    s_fast("sp")
    g.label("L_k2_msp")
    m_phase(g, True, False, True)
    g.e("s_branch L_k2_ssp")
    g.label("L_k2_mzsh")
    m_phase(g, True, True, False)
    g.e("s_branch L_k2_ssh")
    g.label("L_k2_mzsp")
    m_phase(g, True, True, True)
    g.e("s_branch L_k2_ssp")
    EXP = os.environ.get('ATEXP', '')
    if EXP:
        i0 = g.lines.index("L_k2_ssh:")
        keep = []
        for l in g.lines[i0:]:
            if 'd' in EXP and l.startswith('buffer_load'): continue
            if 'r' in EXP and l.startswith('DR '): continue
            if 'e' in EXP and l.startswith('v_exp'): l = l.replace('v_exp_f32', 'v_mov_b32')
            if 'v' in EXP and (l.startswith('v_exp') or l.startswith('PK') or (l.startswith('v_add_f32 v8') or l.startswith('v_add_f32 v9'))): continue
            if 'b' in EXP and l.startswith('s_cbranch_vccnz'): continue
            keep.append(l)
        g.lines[i0:] = keep
    def ctx_base(blk):
        g.e(f"s_lshl_b32 s49, s{blk}, 3")
        g.e("s_lshl_b32 s35, s42, 1")
        g.e("s_add_u32 s49, s49, s35")
        g.e("s_mul_i32 s49, s49, 159744")
        g.e("s_lshl_b32 s35, s43, 12")
        g.e("s_add_u32 s34, s49, s35")
        g.e("s_add_u32 s35, s34, 159744")
    def pack_store(mm, qb, fl=STF2):
        x, y = oreg(2 * mm, qb), oreg(2 * mm + 1, qb)
        return [f"PK {x},{x},{x + 1}", f"PK {x + 1},{x + 2},{x + 3}", f"PK {x + 2},{y},{y + 1}", f"PK {x + 3},{y + 2},{y + 3}",
                f"buffer_store_dwordx4 v[{x}:{x + 3}], v{V16}, s[36:39], s{34 + qb} offen offset:{mm * 1024} {fl}"]
    g.label("L_k2_sgen")
    def st5(i, val):
        if PROF == 5:
            l = g.newlabel("st"); g.e(f"s_cmp_lg_u32 s52, {val}"); g.e(f"s_cbranch_scc1 {l}"); g.stamp(i); g.label(l)
    st5(4, 0); st5(7, 8); st5(9, 9); st5(11, 11)
    if PROF == 5: g.stamp(13)
    g.e("s_sub_u32 s49, s52, s46")
    g.e("s_cmp_eq_u32 s49, 3")
    g.e("s_cselect_b32 s5, 2, 0")
    g.e("s_cmp_eq_u32 s52, 0")
    g.e("s_cselect_b32 s5, 1, s5")
    g.e("s_cselect_b32 s18, s6, 0")
    g.e("s_cmp_eq_u32 s5, 2")
    g.e("s_cselect_b32 s18, s6, s18")
    mask_block(g)
    ny = g.newlabel("ny"); jy = g.newlabel("jy")
    g.e("s_cmp_eq_u32 s5, 2")
    g.e(f"s_cbranch_scc0 {ny}")
    ctx_base(33)
    so = softmax_ops(g)
    k = 0
    for mm in range(4):
        for qb in range(2):
            for cb in (2 * mm, 2 * mm + 1):
                for r in range(4): g.e(f"v_mul_f32 v{oreg(cb, qb) + r}, v{oreg(cb, qb) + r}, v{FA + qb}")
            for t in pack_store(mm, qb): g.e(t)
            n = 9 if k < 2 else 10
            for op in so[:n]: op()
            so = so[n:]; k += 1
    assert not so
    g.e(f"s_branch {jy}")
    g.label(ny)
    for op in softmax_ops(g): op()
    g.label(jy)
    g.e(f"v_max_f32 v{VT}, v{VLT}, v{VLT + 1}")
    g.e(f"v_min_f32 v{TMP}, v{VLT}, v{VLT + 1}")
    g.e(f"v_cmp_lt_f32 vcc, s56, v{VT}")
    g.e("s_cbranch_vccnz L_k2_slow")
    g.e(f"v_cmp_gt_f32 vcc, s18, v{TMP}")
    g.e("s_cbranch_vccnz L_k2_slow")
    g.label("L_k2_back")
    nf = g.newlabel("nf")
    g.e("s_cmp_eq_u32 s5, 0")
    g.e(f"s_cbranch_scc1 {nf}")
    for qb in range(2): g.e(f"v_mov_b32 v{VL + qb}, 0")
    g.label(nf)
    for qb in range(2): g.e(f"v_add_f32 v{VL + qb}, v{VL + qb}, v{VLT + qb}")
    g.e("s_add_u32 s49, s52, 2")
    g.e("s_cmp_ge_u32 s49, s48")
    g.e("s_cbranch_scc1 L_k2_xlast")
    nl = g.newlabel("nyl")
    g.e("s_sub_u32 s49, s52, s46")
    g.e("s_cmp_eq_u32 s49, 1")
    g.e(f"s_cbranch_scc0 {nl}")
    g.e(f"v_add_u32 v10, s57, v{V16}")
    for qb in range(2):
        for mm in range(4): g.e(f"DR {qreg(qb, mm)},10,{(qb * 4 + mm) * 1024}")
    xgroup(g, [VL, VL + 1], "v_add_f32", TMP + 2)
    for qb in range(2): g.e(f"v_rcp_f32 v{FA + qb}, v{VL + qb}")
    for i in range(8): g.e(f"v_mov_b32 v{NEGM + i}, 0")
    g.label(nl)
    st5(6, 0); st5(8, 8); st5(10, 9); st5(12, 11)
    advance(g)
    g.e("s_cmp_lt_u32 s52, s45")
    g.e("s_cselect_b32 s49, 0, 4")
    g.e("s_add_u32 s5, s5, s49")
    w8 = g.newlabel("w8")
    g.e("s_and_b32 s49, s5, 3")
    g.e(f"s_cbranch_scc1 {w8}")
    g.e("s_waitcnt vmcnt(0)")
    g.label(w8)
    g.e("s_waitcnt vmcnt(8) lgkmcnt(0)")
    g.e("s_cmp_eq_u32 s5, 0")
    g.e("s_cbranch_scc1 L_k2_msh")
    g.e("s_cmp_eq_u32 s5, 4")
    g.e("s_cbranch_scc1 L_k2_msp")
    g.e("s_cmp_eq_u32 s5, 1")
    g.e("s_cbranch_scc1 L_k2_mzsh")
    g.e("s_branch L_k2_mzsp")
    g.label("L_k2_xlast")
    if PROF == 5: g.stamp(14)
    g.e("s_and_b32 s49, s48, 3")
    g.e("s_lshl_b32 s49, s49, 15")
    g.e("s_lshl_b32 s50, s42, 13")
    g.e("s_add_u32 s50, s50, s49")
    g.e(f"v_add_u32 v11, s50, v{V16}")
    g.e(f"v_add_u32 v10, s57, v{V16}")
    g.e("s_xor_b32 s49, s49, 0x10000")
    g.e("s_lshl_b32 s50, s42, 10")
    g.e("s_add_u32 s49, s49, s50")
    g.e(f"v_add_u32 v{VT}, s49, v{V16}")
    xaddr = lambda i: (10 + (i >> 3), (i & 7) * 1024)
    def pvgroup(cb, zero, mid=()):
        mid = list(mid)
        for kg in range(2):
            for qb in range(2):
                g.e(f"{'MZ' if zero and kg == 0 else 'M'} {oreg(cb, qb)},{freg(kg * 8 + cb)},{preg(qb, kg)}")
                n = -(-len(mid) // (4 - (kg * 2 + qb)))
                for _ in range(n): mid.pop(0)()
    g.e("s_cmp_eq_u32 s41, 0")
    g.e("s_cbranch_scc0 L_k2_xlastB")
    g.e(f"v_mov_b32 v{ML}, v{NEGM}")
    g.e(f"v_mov_b32 v{ML + 1}, v{NEGM + 4}")
    g.e(f"v_mov_b32 v{ML + 2}, v{VL}")
    g.e(f"v_mov_b32 v{ML + 3}, v{VL + 1}")
    g.e(f"DW {VT},{ML},0")
    g.e("s_waitcnt vmcnt(0) lgkmcnt(0)")
    g.e("s_barrier")
    dw = lambda i: (lambda: g.e(f"DW {xaddr(i)[0]},{OR + i * 4},{xaddr(i)[1]}"))
    for cb in range(8):
        pvgroup(cb, False, [dw(2 * cb - 6), dw(2 * cb - 5)] if cb >= 3 else [])
    for i in range(10, 12): dw(i)()
    g.e("s_nop 3")
    for i in range(12, 16): dw(i)()
    g.e("s_waitcnt lgkmcnt(0)")
    g.e("s_barrier")
    g.e("s_branch L_k2_rend")
    g.label("L_k2_xlastB")
    g.e(f"DR {ML},{VT},0")
    ctx_base(32)
    NM = TMP
    g.e("s_waitcnt lgkmcnt(0)")
    for qb in range(2): g.e(f"v_min_f32 v{NM + qb}, v{ML + qb}, v{NEGM + 4 * qb}")
    for qb in range(2): g.e(f"v_sub_f32 v{FA + qb}, v{NM + qb}, v{ML + qb}")
    for qb in range(2): g.e(f"v_sub_f32 v{FB + qb}, v{NM + qb}, v{NEGM + 4 * qb}")
    for i in range(4): g.e(f"v_exp_f32 v{FA + i}, v{FA + i}")
    g.e("s_nop 0")
    for qb in range(2): g.e(f"v_mul_f32 v{VL + qb}, v{VL + qb}, v{FB + qb}")
    for qb in range(2): g.e(f"v_fmac_f32 v{VL + qb}, v{ML + 2 + qb}, v{FA + qb}")
    xgroup(g, [VL, VL + 1], "v_add_f32", TMP + 2)
    for qb in range(2): g.e(f"v_rcp_f32 v{VL + qb}, v{VL + qb}")
    g.e("s_nop 0")
    for qb in range(2): g.e(f"v_mul_f32 v{FA + qb}, v{FA + qb}, v{VL + qb}")
    for qb in range(2): g.e(f"v_mul_f32 v{FB + qb}, v{FB + qb}, v{VL + qb}")
    lz = g.newlabel("finz")
    g.e("s_cmp_eq_u32 s5, 0")
    g.e(f"s_cbranch_scc0 {lz}")
    for zero in (False, True):
        if zero: g.label(lz)
        g.ds = []
        for cb in range(4): pvgroup(cb, zero)
        g.e("s_barrier")
        def merge_ops(mm):
            ops = []
            I = lambda t: ops.append(lambda t=t: g.e(t))
            for qb in range(2):
                for cb in (2 * mm, 2 * mm + 1):
                    o = oreg(cb, qb)
                    for r in range(4): I(f"v_mul_f32 v{o + r}, v{o + r}, v{FB + qb}")
                    ops.append(lambda cb=cb, qb=qb: g.wait_ds(("o", cb, qb)))
                    for r in range(4): I(f"v_fmac_f32 v{o + r}, v{freg(qb * 8 + cb) + r}, v{FA + qb}")
                for t in pack_store(mm, qb, STFX): I(t)
            return ops
        xr = lambda cb, qb: (lambda: g.lds(f"DR {freg(qb * 8 + cb)},{xaddr(cb * 2 + qb)[0]},{xaddr(cb * 2 + qb)[1]}", ("o", cb, qb)))
        for cb in range(3): xr(cb, 0)(); xr(cb, 1)()
        m0 = merge_ops(0)
        for cb in range(4, 8):
            mid = [xr(cb - 1, 0), xr(cb - 1, 1)]
            if cb == 6: mid += m0[:len(m0) // 2]
            if cb == 7: mid += m0[len(m0) // 2:]
            pvgroup(cb, zero, mid)
        xr(7, 0)(); xr(7, 1)()
        for op in merge_ops(1) + merge_ops(2) + merge_ops(3): op()
        if not zero: g.e("s_branch L_k2_rend")
    g.label("L_k2_rend")
    g.stamp(5)
    g.e("s_cmp_eq_u32 s32, 3")
    g.e("s_cbranch_scc0 L_k2_aend")
    g.stamp(4)
    g.e("s_mov_b32 s32, 1")
    g.e("s_mov_b32 s33, 0")
    g.e("s_waitcnt vmcnt(0) lgkmcnt(0)")
    g.e("s_barrier")
    g.e("s_branch L_k2_round")
    g.label("L_k2_aend")
    skc = g.newlabel("nocode")
    g.e("s_cmp_eq_u32 s44, 6")
    g.e(f"s_cbranch_scc0 {skc}")
    code_touch(g, 96, 14, "L_all_end", "L_p3", False)
    if HOT:
        g.e("s_load_dwordx2 s[96:97], s[0:1], 40")
        g.e("s_and_b32 s49, s43, 0x1e")
        g.e("s_add_u32 s49, s49, s41")
        g.e("s_lshl_b32 s49, s49, 17")
        g.e("s_lshl_b32 s50, s42, 15")
        g.e("s_add_u32 s49, s49, s50")
        g.e("v_and_b32 v12, 31, v0")
        g.e("v_lshlrev_b32 v12, 10, v12")
        g.e("v_bfe_u32 v13, v0, 5, 1")
        g.e("v_lshl_add_u32 v12, v13, 9, v12")
        g.e("s_waitcnt lgkmcnt(0)")
        g.e(f"s_mov_b32 s98, {4 * MB}")
        g.e("s_mov_b32 s99, 0x20000")
        g.e("buffer_load_dword v13, v12, s[96:99], s49 offen offset:384")
        if HOT > 1: g.e("buffer_load_dword v13, v12, s[96:99], s49 offen offset:256")
    g.label(skc)
    if PF2:
        sk = g.newlabel("nopf")
        g.e("s_cmp_eq_u32 s44, 6")
        g.e(f"s_cbranch_scc0 {sk}")
        g.e("s_cmp_eq_u32 s41, 1")
        g.e(f"s_cbranch_scc0 {sk}")
        g.e("s_load_dwordx2 s[20:21], s[0:1], 40")
        g.e("s_load_dwordx2 s[28:29], s[0:1], 80")
        g.e("s_lshl_b32 s49, s43, 2")
        g.e("s_add_u32 s49, s49, s42")
        g.e(f"v_lshlrev_b32 v10, 3, v{V16}")
        g.e("s_lshl_b32 s50, s49, 15")
        g.e("s_mul_i32 s51, s49, 7168")
        g.e("s_waitcnt lgkmcnt(0)")
        g.e(f"s_mov_b32 s22, {4 * MB}")
        g.e("s_mov_b32 s23, 0x20000")
        g.e(f"s_mov_b32 s30, {896 * 1024}")
        g.e("s_mov_b32 s31, 0x20000")
        for i in range(4):
            g.e(f"buffer_load_dword v{12 + i}, v10, s[20:23], s50 offen")
            g.e("s_add_u32 s50, s50, 8192")
        g.e("buffer_load_dword v11, v10, s[28:31], s51 offen")
        g.label(sk)
    g.stamp_dump(16, 17, 40, 1)
    if MERGE == 2:
        g.e("s_lshl_b32 s58, s44, 2")
        g.e("s_bfe_u32 s49, s43, 0x20001")
        g.e("s_add_u32 s58, s58, s49")
        g.e("s_add_u32 s58, s58, 21")
        g.e("s_lshl_b32 s58, s58, 7")
        g.e("s_lshr_b32 s49, s43, 3")
        g.e("s_lshl_b32 s49, s49, 3")
        g.e("s_add_u32 s58, s58, s49")
        g.e("s_and_b32 s49, s43, 1")
        g.e("s_lshl_b32 s49, s49, 2")
        g.e("s_add_u32 s58, s58, s49")
        g.e("s_branch L_p3")
    else: g.e("s_endpgm")
    g.label("L_k2_slow")
    l1 = g.newlabel("slow1"); l2 = g.newlabel("slow2")
    g.e("s_cmp_eq_u32 s5, 0")
    g.e(f"s_cbranch_scc0 {l1}")
    rescale(g, False)
    g.e(f"s_branch {l2}")
    g.label(l1)
    rescale(g, True)
    g.label(l2)
    for op in softmax_ops(g): op()
    g.e("s_branch L_k2_back")

def gen_spatial(g):
    ACC, AR, BB, Z1R = 144, 116, 84, 24
    ZB, ZS = 98304, 14336
    VWD = 80
    acc = lambda fb, tt: ACC + (fb * 4 + tt) * 4
    g.vm = []; g.ds = []
    g.label("L_k2_sp")
    g.e("s_lshl_b32 s57, s3, 13")
    g.e("s_and_b32 s44, s41, 3")
    if BAL:
        g.e("s_bfe_u32 s49, s41, 0x10002")
        g.e("s_add_u32 s3, s3, s49")
    g.e("s_and_b32 s42, s40, 3")
    g.e("s_lshr_b32 s41, s40, 2")
    srd(g, 20, 6, 7, 2048 * 4096)
    srd(g, 24, 16, 17, SZ_Z, WS_Z2)
    g.e("v_and_b32 v28, 63, v0")
    g.e(f"v_lshlrev_b32 v{V16}, 4, v28")
    g.e("v_bfe_u32 v28, v0, 3, 3")
    g.e("v_and_b32 v29, 7, v0")
    g.e("v_lshrrev_b32 v30, 1, v28")
    g.e("v_xor_b32 v29, v29, v30")
    g.e("s_lshl_b32 s49, s3, 8")
    g.e("s_lshl_b32 s50, s40, 5")
    g.e("s_add_u32 s49, s49, s50")
    g.e("v_add_u32 v28, s49, v28")
    g.e("v_lshlrev_b32 v28, 12, v28")
    g.e("v_xor_b32 v30, 4, v29")
    g.e("v_lshl_add_u32 v29, v29, 4, v28")
    g.e("v_lshl_add_u32 v30, v30, 4, v28")
    for j in range(4): g.e(f"v_add_u32 v{VWD + j}, {j * 8 * 4096 - j * 1024}, v{29 + (j & 1)}")
    g.e("s_lshl_b32 s48, s40, 1")
    g.e("s_min_u32 s48, s48, 12")
    g.e("s_mul_i32 s49, s44, 14")
    g.e("s_add_u32 s49, s49, s48")
    g.e("s_lshl_b32 s43, s49, 10")
    g.e("s_mov_b32 s45, 0")
    g.e("s_lshl_b32 s46, s40, 12")
    g.e("s_lshl_b32 s47, s48, 10")
    g.e(f"s_add_u32 s47, s47, {ZB}")
    def wop(b, j):
        if j % 2 == 0:
            g.e(f"s_add_u32 m0, s46, {(b % 3) * 32768}")
            g.e("s_nop 0")
        g.vmem(f"buffer_load_dwordx4 v{VWD + j}, s[20:23], s45 offen offset:{j * 1024} {NTSP} lds", ("w", 2 * b))
        if j == 3: g.e("s_add_u32 s45, s45, 128")
    def zop(st, j):
        if j == 0:
            g.e(f"s_add_u32 m0, s47, {(st % 4) * ZS}")
            g.e("s_nop 0")
        g.vmem(f"buffer_load_dwordx4 v{V16}, s[24:27], s43 offen offset:{j * 1024} {SC} lds", ("z", st))
        if j == 1: g.e("s_add_u32 s43, s43, 57344")
    def dma_ops(st):
        b, h = st // 2 + 2, st & 1
        return [lambda: zop(st + 3, 0), lambda: zop(st + 3, 1), lambda: wop(b, 2 * h), lambda: wop(b, 2 * h + 1)]
    if MERGE:
        g.e("s_waitcnt vmcnt(0)")
        g.e("s_barrier")
        nw = g.newlabel("nw"); nw2 = g.newlabel("nw")
        g.e("s_cmp_lg_u32 s40, 0")
        g.e(f"s_cbranch_scc1 {nw}")
        if k1.STKV == '':
            g.e("buffer_wbl2 sc1")
            g.e("s_waitcnt vmcnt(0)")
        flag_set(g, 10, 58, 59, 100)
        g.e("v_min_u32 v14, 55, v0")
        g.e("v_and_b32 v15, 7, v14")
        g.e("v_lshrrev_b32 v14, 3, v14")
        g.e("v_lshlrev_b32 v14, 7, v14")
        g.e("v_lshl_add_u32 v14, v15, 2, v14")
        g.e(f"s_add_u32 s49, s57, {14 * 128 + 32}")
        g.e("v_add_u32 v14, s49, v14")
        flag_load(g, 12, 14, 100)
        g.label(nw)
        g.e("s_barrier")
        for j in range(4): wop(0, j)
        if SPT:
            g.e("s_lshl_b32 s49, s44, 3")
            g.e("s_add_u32 s49, s49, s40")
            g.e("s_lshl_b32 s49, s49, 15")
            g.e("s_lshl_b32 s50, s3, 20")
            g.e("s_add_u32 s49, s49, s50")
            g.e("v_bfe_u32 v9, v0, 3, 3")
            g.e("v_lshlrev_b32 v9, 12, v9")
            g.e("v_and_b32 v8, 7, v0")
            g.e("v_lshl_add_u32 v9, v8, 7, v9")
            for i in range(SPT): g.vmem(f"buffer_load_dword v8, v9, s[20:23], s49 offen offset:{128 + 1024 * i}", ("w", 0))
        g.e("s_cmp_lg_u32 s40, 0")
        g.e(f"s_cbranch_scc1 {nw2}")
        g.e(f"s_waitcnt vmcnt({4 + SPT})")
        flag_wait(g, 12, 14, 59, 100, SLS, True)
        g.e("v_min_u32 v14, 39, v0")
        g.e("v_and_b32 v15, 3, v14")
        g.e("v_lshrrev_b32 v14, 2, v14")
        g.e("v_lshlrev_b32 v14, 7, v14")
        g.e("v_lshl_add_u32 v14, v15, 3, v14")
        g.e(f"s_add_u32 s49, s57, {11 * 128}")
        g.e("v_add_u32 v14, s49, v14")
        g.label(nw2)
        g.e("s_barrier")
        zop(0, 0); zop(0, 1)
    else:
        zop(0, 0); zop(0, 1)
        for j in range(4): wop(0, j)
        code_touch(g, 96, 14, "L_k2_spend", None, False)
    srd(g, 12, 8, 9, 4096)
    g.e("v_and_b32 v11, 15, v0")
    g.e("v_lshlrev_b32 v11, 1, v11")
    g.e("s_lshl_b32 s49, s3, 9")
    g.e("s_lshl_b32 s50, s42, 7")
    g.e("s_add_u32 s49, s49, s50")
    for tt in range(4): g.vmem(f"buffer_load_ushort v{16 + tt}, v11, s[12:15], s49 offen offset:{tt * 32}", ("w", 0))
    g.e("s_barrier")
    zop(1, 0); zop(1, 1)
    if MERGE < 2:
        srd(g, 28, 16, 17, 32768, WS_PART + 8 * MB)
        g.e("s_sub_u32 s49, s2, 224")
        g.e("s_lshl_b32 s49, s49, 10")
        g.e("v_lshrrev_b32 v28, 6, v0")
        g.e(f"v_lshl_add_u32 v28, v28, 24, v{V16}")
        for i in range(4): g.e(f"v_mov_b32 v{20 + i}, 0")
        g.e("buffer_store_dwordx4 v[20:23], v28, s[28:31], s49 offen")
    srd(g, 28, 16, 17, SZ_Z, WS_Z1)
    srd(g, 36, 16, 17, SZ_CTX, WS_CTX)
    g.e("s_mul_i32 s49, s41, 7168")
    g.e(f"s_add_u32 s49, s49, {ZB}")
    g.e(f"v_add_u32 v4, s49, v{V16}")
    g.e("v_and_b32 v28, 15, v0")
    g.e("v_bfe_u32 v29, v0, 4, 2")
    g.e("v_lshrrev_b32 v30, 1, v28")
    g.e("v_xor_b32 v29, v29, v30")
    g.e("v_lshlrev_b32 v29, 4, v29")
    g.e("v_lshl_add_u32 v29, v28, 7, v29")
    g.e("s_lshl_b32 s49, s42, 13")
    g.e("v_add_u32 v1, s49, v29")
    g.e("v_xor_b32 v2, 64, v1")
    g.e("v_add_u32 v5, 0x10000, v1")
    g.e("v_add_u32 v6, 0x10000, v2")
    def aread(st, fb): g.lds(f"DR {AR + fb * 4},4,{(st % 4) * ZS + fb * 1024}", ("a", st, fb))
    def bread(st, tt):
        sl = (st // 2) % 3
        g.lds(f"DR {BB + (st & 1) * 16 + tt * 4},{(5 if sl == 2 else 1) + (st & 1)},{(sl & 1) * 32768 + tt * 2048}", ("b", st))
    SCH = {(3, 0): ("a", 0), (3, 1): ("b", 0), (3, 2): ("b", 1), (4, 0): ("b", 2), (4, 1): ("b", 3), (4, 2): ("a", 1), (5, 0): ("a", 2), (6, 0): ("a", 3)}
    rd = lambda st, k: (aread if k[0] == "a" else bread)(st, k[1])
    g.wait_vm(("z", 0), ("w", 0))
    g.e("s_barrier")
    for key in sorted(SCH): rd(0, SCH[key])
    for tt in range(4):
        for r in range(4): g.e(f"v_lshlrev_b32 v{24 + tt * 4 + r}, 16, v{16 + tt}")
    g.e("s_mov_b32 s52, 0")
    g.stamp(1)
    def step(st, extra=(), dma=4, nxt=True, init=False):
        extra = list(extra)
        pend = []
        for fb in range(7):
            g.wait_ds(("a", st, fb), ("b", st))
            for tt in range(4):
                if init: g.e(f"MC {acc(fb, tt)},{AR + fb * 4},{BB + (st & 1) * 16 + tt * 4},{24 + tt * 4}")
                else: g.e(f"M {acc(fb, tt)},{AR + fb * 4},{BB + (st & 1) * 16 + tt * 4}")
                if tt == 0 and fb < 3: aread(st, fb + 4)
                if nxt:
                    if (fb, tt) == (3, 0):
                        g.wait_vm(("z", st + 1), ("w", st + 1))
                        g.e("s_barrier")
                        pend = dma_ops(st)[:dma]
                    if (fb, tt) in SCH: rd(st + 1, SCH[(fb, tt)])
                if tt == 3 and pend: pend.pop(0)()
                if tt in (1, 3) and extra and fb < 3:
                    extra.pop(0)()
        assert not pend and not extra
    step(0, [lambda j=j: wop(1, j) for j in range(4)] + [lambda: zop(2, 0), lambda: zop(2, 1)], init=True)
    for st in range(1, 4): step(st)
    g.label("L_k2_sploop")
    vm0, ds0 = list(g.vm), list(g.ds)
    for st in range(4, 16): step(st)
    ren = lambda t: (t[0], t[1] - 12) + t[2:]
    g.vm = [ren(t) for t in g.vm]; g.ds = [ren(t) for t in g.ds]
    assert g.vm == vm0 and g.ds == ds0, (g.vm, vm0, g.ds, ds0)
    g.e("s_add_u32 s52, s52, 1")
    g.e("s_cmp_lt_u32 s52, 4")
    g.e("s_cbranch_scc1 L_k2_sploop")
    g.stamp(2)
    g.e("s_lshl_b32 s49, s3, 4")
    g.e("s_lshl_b32 s50, s42, 2")
    g.e("s_add_u32 s49, s49, s50")
    g.e("s_mul_i32 s54, s49, 28672")
    g.e("s_mul_i32 s55, s49, 159744")
    g.e(f"s_add_u32 s55, s55, {128 * 1024}")
    for tt in range(4):
        g.e(f"v_add_u32 v{16 + tt}, {tt * 28672}, v{V16}")
        g.e(f"v_add_u32 v{20 + tt}, {tt * 159744}, v{V16}")
    g.e("s_mul_i32 s56, s44, 14")
    g.e("s_mul_i32 s48, s41, 7")
    g.e("s_add_u32 s56, s56, s48")
    g.e("s_lshr_b32 s56, s56, 1")
    g.e("s_lshl_b32 s56, s56, 10")
    g.e("s_add_u32 s54, s54, s56")
    g.e("s_add_u32 s55, s55, s56")
    def z1load(u):
        for tt in range(4):
            r = Z1R + (u * 4 + tt) * 4
            g.vmem(f"buffer_load_dwordx4 v[{r}:{r + 3}], v{16 + tt}, s[28:31], s54 offen offset:{u * 1024} {SC}", ("z1", u))
    for st in range(4, 16):
        ex = {8: 0, 10: 1, 12: 2, 15: 3}
        def w0(fn):
            sk = g.newlabel("w0")
            g.e("s_cmp_lg_u32 s40, 0"); g.e(f"s_cbranch_scc1 {sk}")
            fn(); g.label(sk)
        fl = []
        if MERGE and st == 4: fl = [lambda: w0(lambda: flag_load(g, 12, 14, 100, True))]
        if MERGE and st == 7: fl = [lambda: w0(lambda: flag_wait(g, 12, 14, 59, 100, SLS, True, True))]
        step(st, [lambda u=ex[st]: z1load(u)] if st in ex else fl, dma=4 if st < 12 else (2 if st == 12 else 0), nxt=st < 15)
    g.stamp(4)
    g.e("s_nop 4")
    g.e("s_mov_b32 s53, 0xffff0000")
    g.e("s_lshl_b32 s49, s42, 11")
    g.e("s_add_u32 s49, s49, 155648")
    g.e(f"v_lshrrev_b32 v12, 1, v{V16}")
    g.e("v_add_u32 v12, s49, v12")
    vm_sv = list(g.vm)
    lode = g.newlabel("spodd"); lend = g.newlabel("spend")
    g.e("s_cmp_eq_u32 s41, 1")
    g.e(f"s_cbranch_scc1 {lode}")
    for fh in range(2):
        g.vm = list(vm_sv)
        if fh: g.label(lode)
        for u in range(4):
            halves = [(h, 2 * u + h - fh) for h in range(2) if 0 <= 2 * u + h - fh < 7]
            g.wait_vm(("z1", u))
            if u == 3:
                g.e("s_waitcnt lgkmcnt(0)")
                g.e("s_barrier")
                if fh == 0:
                    for tt in range(4): g.e(f"ds_read_b64 v[{Z1R + (12 + tt) * 4 + 2}:{Z1R + (12 + tt) * 4 + 3}], v12 offset:{tt * 512}")
            for tt in range(4):
                z = Z1R + (u * 4 + tt) * 4
                for h, fb in halves:
                    a = acc(fb, tt); t = 8 if h else 1
                    g.e(f"v_lshlrev_b32 v{t}, 16, v{z + 2 * h}")
                    g.e(f"v_and_b32 v{t + 1}, s53, v{z + 2 * h}")
                    g.e(f"v_lshlrev_b32 v{t + 2}, 16, v{z + 2 * h + 1}")
                    g.e(f"v_and_b32 v{t + 3}, s53, v{z + 2 * h + 1}")
                    for r in range(4): g.e(f"v_mul_f32 v{a + r}, v{a + r}, v{t + r}")
                    g.e(f"PK {z + 2 * h},{a},{a + 1}"); g.e(f"PK {z + 2 * h + 1},{a + 2},{a + 3}")
                if fh == 1 and u == 0:
                    g.e(f"ds_write_b64 v12, v[{z + 2}:{z + 3}] offset:{tt * 512}")
                else:
                    if fh == 0 and u == 3: g.e(f"s_waitcnt lgkmcnt({3 - tt})")
                    g.vmem(f"buffer_store_dwordx4 v[{z}:{z + 3}], v{20 + tt}, s[36:39], s55 offen offset:{u * 1024} {STFU}", "st")
        if fh == 0: g.e(f"s_branch {lend}")
    g.label(lend)
    g.stamp(3)
    g.stamp_dump(16, 17, 40, 1)
    if MERGE == 2:
        g.e("s_add_u32 s58, s44, 49")
        g.e("s_lshl_b32 s58, s58, 7")
        g.e("s_lshl_b32 s49, s3, 2")
        g.e("s_add_u32 s58, s58, s49")
        g.e("s_branch L_p3")
    else: g.e("s_endpgm")

def gen_k2(g):
    if not MERGE:
        g.e(".p2align 8")
        g.e(".type k2_kernel,@function")
        g.label("k2_kernel")
        g.e("s_cmp_ge_u32 s2, 256")
        g.e("s_cbranch_scc1 L_k2_end")
    g.label("L_p2")
    g.stamp(0)
    if PROF: g.e("s_memrealtime s[94:95]")
    g.e("s_load_dwordx2 s[4:5], s[0:1], 16")
    g.e("s_load_dwordx4 s[8:11], s[0:1], 64")
    g.e("s_load_dwordx2 s[16:17], s[0:1], 104")
    g.e("v_lshrrev_b32 v1, 6, v0")
    g.e("s_and_b32 s3, s2, 7")
    g.e("s_lshr_b32 s41, s2, 3")
    g.e("v_readfirstlane_b32 s40, v1")
    g.e("s_waitcnt lgkmcnt(0)")
    g.e("s_mov_b32 s6, s8")
    g.e("s_mov_b32 s7, s9")
    g.e("s_mov_b32 s8, s10")
    g.e("s_mov_b32 s9, s11")
    if MERGE:
        nw = g.newlabel("nw")
        g.e("s_cmp_lg_u32 s40, 0")
        g.e(f"s_cbranch_scc1 {nw}")
        g.e("s_lshl_b32 s49, s3, 13")
        g.e(f"s_add_u32 s49, s49, {53 * 128 + 64}")
        g.e("v_lshrrev_b32 v14, 3, v0")
        g.e("v_lshlrev_b32 v14, 7, v14")
        g.e("v_and_b32 v15, 7, v0")
        g.e("v_lshl_add_u32 v14, v15, 2, v14")
        g.e("v_add_u32 v15, s49, v14")
        flag_wait(g, 13, 15, 59, 100, SLA, True)
        g.e("v_mov_b32 v13, 0")
        g.label(nw)
    if BAL:
        g.e("s_bitcmp1_b32 s2, 0")
        g.e("s_cbranch_scc1 L_k2_attn")
    g.e(f"s_cmp_lt_u32 s41, {24 if BAL else 28}")
    g.e("s_cbranch_scc1 L_k2_attn")
    g.e("s_branch L_k2_sp")
    g.label("L_k2_end")
    g.e("s_endpgm")
    gen_attn(g)
    gen_spatial(g)
    g.label("L_k2_spend")
```

```python
from asmlib import *
from k1 import tr_bases

LDS = 163840
NVGPR = 128
ACC = 32
AF = 64
WF = 96
NS = 39
FULLF = int(os.environ.get('FULLF', '0'))
DYN = int(os.environ.get('DYN', '0'))
SL3 = int(os.environ.get('SL3', '4'))
FUSE = int(os.environ.get('FUSE', '1'))
PD = int(os.environ.get('PD', '8'))
STP = os.environ.get('STP', 'sc1')

def gen_k3(g):
    g.vm = []; g.ds = []
    M2 = MERGE == 2
    if not M2:
        g.e(".p2align 8")
        g.e(".type k3_kernel,@function")
        g.label("k3_kernel")
        g.e("s_cmp_ge_u32 s2, 256")
        g.e("s_cbranch_scc1 L_k3_end")
    g.label("L_p3")
    diag_mark(g, 3)
    g.stamp(0)
    if PROF: g.e("s_memrealtime s[94:95]")
    g.e("s_load_dwordx2 s[6:7], s[0:1], 40")
    g.e("s_load_dwordx4 s[8:11], s[0:1], 80")
    g.e("s_load_dwordx2 s[4:5], s[0:1], 0")
    g.e("s_load_dwordx2 s[16:17], s[0:1], 104")
    g.e("v_lshrrev_b32 v1, 6, v0")
    g.e("s_bfe_u32 s43, s2, 0x20001")
    g.e("s_and_b32 s42, s2, 1")
    g.e("v_readfirstlane_b32 s40, v1")
    g.e("s_lshl_b32 s42, s42, 3")
    g.e("s_lshr_b32 s49, s2, 5")
    g.e("s_add_u32 s42, s42, s49")
    g.e("s_bfe_u32 s41, s2, 0x20003")
    g.e("v_bfe_u32 v28, v0, 5, 1")
    g.e("v_bfe_u32 v29, v0, 2, 2")
    g.e("v_lshl_add_u32 v28, v28, 4, v29")
    g.e("v_bfe_u32 v29, v0, 6, 2")
    g.e("v_lshl_add_u32 v28, v29, 2, v28")
    g.e("v_lshlrev_b32 v28, 10, v28")
    g.e("v_bfe_u32 v30, v0, 4, 1")
    g.e("v_lshl_add_u32 v28, v30, 6, v28")
    g.e("v_lshrrev_b32 v30, 8, v0")
    g.e("v_lshl_add_u32 v28, v30, 7, v28")
    g.e("v_and_b32 v29, 1, v29")
    g.e("v_lshlrev_b32 v29, 1, v29")
    g.e("v_and_b32 v30, 3, v0")
    g.e("v_xor_b32 v29, v29, v30")
    g.e("v_lshl_add_u32 v1, v29, 4, v28")
    g.e("v_and_b32 v28, 63, v0")
    g.e("v_lshlrev_b32 v7, 4, v28")
    g.e("s_lshl_b32 s46, s40, 10")
    g.e("s_lshl_b32 s49, s42, 3")
    g.e("s_add_u32 s49, s49, s40")
    g.e("s_mul_i32 s47, s49, 159744")
    g.e("s_lshl_b32 s49, s43, 13")
    g.e("s_add_u32 s44, s47, s49")
    g.e("s_mul_i32 s49, s43, 7168")
    g.e("s_add_u32 s45, s47, s49")
    g.e(f"s_add_u32 s45, s45, {128 * 1024}")
    g.e("s_lshl_b32 s49, s41, 8")
    g.e("s_lshl_b32 s52, s43, 18")
    g.e("s_add_u32 s52, s52, s49")
    g.e(f"s_mul_i32 s53, s43, {7 * 32768}")
    g.e("s_add_u32 s53, s53, s49")
    g.e("s_waitcnt lgkmcnt(0)")
    srd(g, 20, 6, 7, 4096 * 1024)
    srd(g, 24, 8, 9, 896 * 1024)
    srd(g, 28, 16, 17, SZ_CTX, WS_CTX)
    def dma_ops(t):
        if t >= NS: return []
        u = t >= 32
        dyn = M2 and DYN and not u
        tt = t - 32 if u else ((t & 3) if dyn else (((t >> 2) & 1) + 8 * (t >> 3)) * 4 + (t & 3))
        def a():
            if dyn and t % 4 == 0:
                g.e("s_ff1_i32_b32 s49, s62")
                g.e("s_bitset0_b32 s62, s49")
                g.e("s_and_b32 s60, s49, 1")
                g.e("s_bfe_u32 s49, s49, 0x20001")
                g.e("s_lshl_b32 s49, s49, 3")
                g.e("s_add_u32 s49, s49, s60")
                g.e("s_lshl_b32 s60, s49, 12")
                g.e("s_add_u32 s60, s60, s44")
                g.e("s_lshl_b32 s61, s49, 17")
                g.e("s_add_u32 s61, s61, s52")
            g.e(f"s_add_u32 m0, s46, {(t % 10) * 16384}")
            g.e(f"s_add_u32 s49, s{45 if u else (60 if dyn else 44)}, {tt * 1024}")
            g.vmem(f"buffer_load_dwordx4 v7, s[28:31], s49 offen {'sc1' if M2 else ''} lds", t // 2)
        def w():
            g.e(f"s_add_u32 m0, s46, {(t % 10) * 16384 + 8192}")
            g.e(f"s_add_u32 s49, s{53 if u else (61 if dyn else 52)}, {tt * 32768}")
            g.vmem(f"buffer_load_dwordx4 v1, s[{24 if u else 20}:{27 if u else 23}], s49 offen lds", t // 2)
        return [a, w]
    def w0(fn):
        sk = g.newlabel("w0")
        g.e("s_cmp_lg_u32 s40, 0"); g.e(f"s_cbranch_scc1 {sk}")
        fn(); g.label(sk)
    if M2:
        if not DYN:
            g.e("s_waitcnt vmcnt(0)")
            g.e("s_barrier")
            w0(lambda: flag_set(g, 20, 58, 59, 100))
            for t in range(4): dma_ops(t)[1]()
        g.e("s_sub_u32 s49, 15, s42")
        g.e("s_sub_u32 s50, s42, 4")
        if BAL == 2: g.e("s_xor_b32 s50, s50, 1")
        g.e("s_cmp_ge_u32 s42, 10")
        g.e("s_cselect_b32 s49, s49, s50")
        g.e("s_cmp_lt_u32 s42, 4")
        g.e("s_cselect_b32 s49, 6, s49")
        g.e("s_lshl_b32 s49, s49, 2")
        g.e("s_add_u32 s49, s49, s43")
        g.e("s_add_u32 s49, s49, 21")
        g.e("s_lshl_b32 s49, s49, 7")
        g.e("s_and_b32 s50, s2, 7")
        g.e("s_lshl_b32 s50, s50, 13")
        g.e("s_add_u32 s49, s49, s50")
        g.e("v_and_b32 v17, 7, v0")
        g.e("v_lshl_add_u32 v17, v17, 2, s49")
        g.e("s_add_u32 s49, s43, 49")
        g.e("s_lshl_b32 s49, s49, 7")
        g.e("s_add_u32 s49, s49, s50")
        g.e("s_lshr_b32 s50, s42, 1")
        g.e("s_lshl_b32 s50, s50, 2")
        g.e("s_add_u32 s49, s49, s50")
        g.e("v_mov_b32 v18, s49")
        if not DYN:
            w0(lambda: flag_wait(g, 26, 17, 59, 100, SL3, False))
            g.e("v_mov_b32 v26, 0")
            g.e("s_barrier")
            for t in range(4): dma_ops(t)[0]()
        else:
            w0(lambda: flag_load(g, 27, 17, 100))
            g.e("v_mov_b32 v26, 0")
            g.e("v_mov_b32 v25, 163832")
            g.e("s_waitcnt vmcnt(0)")
            g.e("s_barrier")
            def order():
                flag_set(g, 20, 58, 59, 100)
                spin = g.newlabel("spin"); chk = g.newlabel("chk")
                g.e(f"s_branch {chk}")
                g.label(spin)
                g.e(f"s_sleep {SL3}")
                flag_load(g, 27, 17, 100)
                g.e("s_waitcnt vmcnt(0)")
                g.label(chk)
                g.e("v_cmp_eq_u32 vcc, s59, v27")
                g.e("s_nop 1")
                g.e("s_and_b32 s62, vcc_lo, 0xff")
                g.e("s_bcnt1_i32_b32 s49, s62")
                g.e("s_cmp_lt_u32 s49, 2")
                g.e(f"s_cbranch_scc1 {spin}")
                g.e("s_xor_b32 s49, s62, 0xff")
                g.e("s_lshl_b32 s49, s49, 8")
                g.e("s_or_b32 s62, s62, s49")
                g.e("v_mov_b32 v24, s62")
                g.e("ds_write_b32 v25, v24")
                g.e("s_waitcnt lgkmcnt(0)")
            w0(order)
            g.e("s_barrier")
            g.e("ds_read_b32 v24, v25")
            g.e("s_waitcnt lgkmcnt(0)")
            g.e("v_readfirstlane_b32 s62, v24")
            g.e("s_nop 3")
            for t in range(4):
                for op in dma_ops(t): op()
    else:
        for t in range(2):
            for op in dma_ops(t): op()
        code_touch(g, 60, 20, "L_all_end")
        g.e("s_barrier")
        for t in range(2, 4):
            for op in dma_ops(t): op()
    srd(g, 32, 16, 17, 8 * MB + 32768, WS_PART)
    if FUSE:
        srd(g, 12, 4, 5, 2 * MB)
        srd(g, 36, 10, 11, 2 * MB)
        g.e("s_lshl_b32 s49, s42, 2")
        g.e("s_add_u32 s49, s49, s41")
        g.e("s_lshl_b32 s56, s49, 9")
        g.e(f"s_add_u32 s56, s56, {8 * MB}")
        g.e("s_lshl_b32 s57, s43, 7")
        g.e("s_add_u32 s57, s57, s56")
        g.e("s_lshl_b32 s49, s49, 15")
        g.e("s_lshl_b32 s50, s40, 12")
        g.e("s_add_u32 s49, s49, s50")
        g.e("s_lshl_b32 s50, s43, 21")
        g.e("s_add_u32 s54, s49, s50")
        g.e("s_lshl_b32 s50, s43, 10")
        g.e("s_add_u32 s55, s49, s50")
        if FULLF:
            g.e("v_lshrrev_b32 v22, 2, v7")
            g.e("v_bfe_u32 v24, v0, 5, 1")
            g.e("v_lshl_add_u32 v22, v24, 24, v22")
        else: g.e("v_lshlrev_b32 v22, 20, v7")
        g.e("v_lshlrev_b32 v23, 3, v7")
        g.e("v_bfe_u32 v24, v0, 2, 4")
        g.e("v_lshl_add_u32 v23, v24, 24, v23")
        g.e("v_and_b32 v19, 15, v0")
        g.e("v_lshlrev_b32 v19, 10, v19")
        g.e("v_bfe_u32 v24, v0, 4, 1")
        g.e("v_lshl_add_u32 v19, v24, 5, v19")
        g.e("v_bfe_u32 v24, v0, 5, 1")
        g.e("v_lshl_add_u32 v19, v24, 4, v19")
        g.e("s_lshl_b32 s48, s42, 17")
        g.e("s_lshr_b32 s49, s40, 2")
        g.e("s_lshl_b32 s49, s49, 16")
        g.e("s_add_u32 s48, s48, s49")
        g.e("s_lshl_b32 s49, s43, 14")
        g.e("s_add_u32 s48, s48, s49")
        g.e("s_lshl_b32 s49, s41, 8")
        g.e("s_add_u32 s48, s48, s49")
        g.e("s_and_b32 s49, s40, 3")
        g.e("s_lshl_b32 s49, s49, 6")
        g.e("s_add_u32 s48, s48, s49")
    tr_bases(g, 8, 9)
    g.e("s_bfe_u32 s49, s40, 0x10001")
    g.e("s_lshl_b32 s49, s49, 12")
    g.e("s_and_b32 s50, s40, 1")
    g.e("s_lshl_b32 s50, s50, 8")
    g.e("s_add_u32 s49, s49, s50")
    g.e("s_add_u32 s49, s49, 8192")
    g.e("v_add_u32 v8, s49, v8")
    g.e("v_add_u32 v9, s49, v9")
    g.e("s_lshr_b32 s49, s40, 2")
    g.e("s_lshl_b32 s49, s49, 12")
    g.e("v_add_u32 v10, s49, v7")
    for k in (1, 2):
        for i in range(3): g.e(f"v_add_u32 v{8 + 3 * k + i}, {k * 0x10000}, v{8 + i}")
    g.stamp(1)
    pend = []
    def reads(t):
        if t >= NS: return []
        sl = t % 10; b = 8 + 3 * (sl >> 2); o = (sl & 3) * 16384
        ops = []
        if t % 2 == 0:
            def sync():
                assert not pend
                g.wait_vm(t // 2)
                if M2 and DYN and (t + PD) % 4 == 0 and t + PD < 32:
                    def late():
                        sk = g.newlabel("rdy")
                        if t == 0: g.e("s_sub_u32 s49, s62, 1"); g.e("s_and_b32 s49, s49, s62"); g.e("s_and_b32 s49, s49, 0xff")
                        else: g.e("s_and_b32 s49, s62, 0xff")
                        g.e(f"s_cbranch_scc1 {sk}")
                        flag_wait(g, 27, 17, 59, 100, SL3, True)
                        g.label(sk)
                    w0(late)
                if M2 and t + PD == 32: w0(lambda: flag_wait(g, 26, 18, 59, 100, SL3, True))
                g.e("s_barrier")
                if M2 and t + PD == 26: w0(lambda: flag_load(g, 26, 18, 100))
                pend.extend(dma_ops(t + PD) + dma_ops(t + PD + 1))
            ops.append(sync)
        rd = []
        for cb in range(2):
            for a in range(2):
                rd.append(lambda cb=cb, a=a: g.lds(f"TR {WF + (t & 1) * 8 + cb * 4 + 2 * a},{b + cb},{o + a * 512}", ("r", t)))
        dr = [lambda rt=rt: g.lds(f"DR {AF + (t & 1) * 16 + rt * 4},{b + 2},{o + rt * 1024}", ("r", t)) for rt in range(4)]
        return ops + rd[:2] + dr + rd[2:]
    ramp = [op for t in range(4, PD) for op in dma_ops(t)]
    for op in reads(0): op()
    ramp += pend; del pend[:]
    for t in range(NS):
        nx = reads(t + 1)
        g.wait_ds(("r", t))
        k = 0
        for cb in range(2):
            for rt in range(4):
                g.e(f"{'MZ' if t == 0 else 'M'} {ACC + (cb * 4 + rt) * 4},{WF + (t & 1) * 8 + cb * 4},{AF + (t & 1) * 16 + rt * 4}")
                n = 2 if k < 4 else 1
                for _ in range(n):
                    if nx: nx.pop(0)()
                if ramp:
                    ramp.pop(0)()
                    if t == 0 and k >= 4 and ramp: ramp.pop(0)()
                elif k >= 5 and k != 6 and pend: pend.pop(0)()
                k += 1
        assert not nx
        if FUSE and t == 32: g.vmem("buffer_load_dwordx4 v[112:115], v19, s[12:15], s48 offen", "xx")
        if t in (0, 9, 19, 29): g.stamp({0: 2, 9: 3, 19: 4, 29: 5}[t])
    g.stamp(6)
    if not FUSE:
        g.e("s_lshl_b32 s49, s43, 21")
        g.e("s_lshl_b32 s50, s42, 17")
        g.e("s_add_u32 s49, s49, s50")
        g.e("s_lshl_b32 s50, s41, 15")
        g.e("s_add_u32 s49, s49, s50")
        g.e("s_lshl_b32 s50, s40, 12")
        g.e("s_add_u32 s49, s49, s50")
        g.e("s_nop 4")
        for rt in range(4):
            x, y = ACC + rt * 4, ACC + (4 + rt) * 4
            g.e(f"PK {x},{x},{x + 1}"); g.e(f"PK {x + 1},{x + 2},{x + 3}")
            g.e(f"PK {x + 2},{y},{y + 1}"); g.e(f"PK {x + 3},{y + 2},{y + 3}")
        g.e("s_nop 1")
        for rt in range(4):
            x = ACC + rt * 4
            g.e(f"v_permlane16_swap_b32 v{x}, v{x + 2}")
            g.e(f"v_permlane16_swap_b32 v{x + 1}, v{x + 3}")
            g.e(f"buffer_store_dwordx4 v[{x}:{x + 3}], v7, s[32:35], s49 offen offset:{rt * 1024} {STP}")
    else:
        g.e("s_nop 4")
        for rt in range(4):
            x, y = ACC + rt * 4, ACC + (4 + rt) * 4
            d = AF + rt * 4
            g.e(f"PK {d},{x},{x + 1}"); g.e(f"PK {d + 1},{x + 2},{x + 3}")
            g.e(f"PK {d + 2},{y},{y + 1}"); g.e(f"PK {d + 3},{y + 2},{y + 3}")
            sk = g.newlabel("own")
            g.e(f"s_cmp_eq_u32 s43, {rt}")
            g.e(f"s_cbranch_scc1 {sk}")
            g.e(f"buffer_store_dwordx4 v[{d}:{d + 3}], v7, s[32:35], s54 offen offset:{rt * 1024} sc1")
            g.label(sk)
        for rt in range(1, 4):
            sk = g.newlabel("mv")
            g.e(f"s_cmp_lg_u32 s43, {rt}")
            g.e(f"s_cbranch_scc1 {sk}")
            for cb in range(2):
                for r in range(4): g.e(f"v_mov_b32 v{ACC + cb * 16 + r}, v{ACC + (cb * 4 + rt) * 4 + r}")
            g.label(sk)
        g.e("v_mov_b32 v21, s59" if M2 else "v_mov_b32 v21, 1")
        g.e("s_waitcnt vmcnt(0)")
        g.e("s_barrier")
        g.stamp(7)
        spin = g.newlabel("spin"); done = g.newlabel("done")
        g.e("s_cmp_lg_u32 s40, 0")
        g.e(f"s_cbranch_scc1 {done}")
        g.e("buffer_store_dword v21, v22, s[32:35], s57 offen sc1")
        g.label(spin)
        g.e("buffer_load_dword v24, v23, s[32:35], s56 offen sc1")
        g.e("s_waitcnt vmcnt(0)")
        g.e("v_cmp_eq_u32 vcc, v21, v24")
        g.e("s_nop 1")
        g.e("s_and_b32 s49, vcc_lo, 15")
        g.e("s_cmp_eq_u32 s49, 15")
        g.e(f"s_cbranch_scc1 {done}")
        g.e(f"s_sleep {os.environ.get('SL4', '2')}")
        g.e(f"s_branch {spin}")
        g.label(done)
        g.e("s_barrier")
        g.stamp(8)
        for i in range(3):
            g.e(f"s_add_u32 s49, s43, {i + 1}")
            g.e("s_and_b32 s49, s49, 3")
            g.e("s_lshl_b32 s49, s49, 21")
            g.e("s_add_u32 s49, s49, s55")
            g.e(f"buffer_load_dwordx4 v[{AF + 4 * i}:{AF + 4 * i + 3}], v7, s[32:35], s49 offen sc1")
        A8 = [ACC + r for r in range(4)] + [ACC + 16 + r for r in range(4)]
        g.e("s_mov_b32 s50, 0xffff0000")
        for i in range(3):
            g.e(f"s_waitcnt vmcnt({2 - i})")
            for r in range(4):
                g.e(f"v_lshlrev_b32 v24, 16, v{AF + 4 * i + r}")
                g.e(f"v_and_b32 v25, s50, v{AF + 4 * i + r}")
                g.e(f"v_add_f32 v{A8[2 * r]}, v{A8[2 * r]}, v24")
                g.e(f"v_add_f32 v{A8[2 * r + 1]}, v{A8[2 * r + 1]}, v25")
        g.e("s_nop 1")
        for r in range(4): g.e(f"v_permlane16_swap_b32 v{A8[r]}, v{A8[4 + r]}")
        g.e("s_nop 1")
        for r in range(4):
            g.e(f"v_lshlrev_b32 v24, 16, v{112 + r}")
            g.e(f"v_and_b32 v25, s50, v{112 + r}")
            g.e(f"v_add_f32 v{A8[2 * r]}, v{A8[2 * r]}, v24")
            g.e(f"v_add_f32 v{A8[2 * r + 1]}, v{A8[2 * r + 1]}, v25")
        for r in range(4): g.e(f"PK {28 + r},{A8[2 * r]},{A8[2 * r + 1]}")
        g.e(f"buffer_store_dwordx4 v[28:31], v19, s[36:39], s48 offen {os.environ.get('STO', '')}")
    diag_end(g)
    g.stamp_dump(16, 17, 40, 2)
    g.label("L_k3_end")
    g.e("s_endpgm")
    if FUSE: g.label("L_all_end")

def gen_k4(g):
    g.e(".p2align 8")
    g.e(".type k4_kernel,@function")
    g.label("k4_kernel")
    g.e("s_cmp_ge_u32 s2, 256")
    g.e("s_cbranch_scc1 L_k4_end")
    g.e("s_load_dwordx2 s[4:5], s[0:1], 0")
    g.e("s_load_dwordx2 s[6:7], s[0:1], 88")
    g.e("s_load_dwordx2 s[16:17], s[0:1], 104")
    g.e("v_lshlrev_b32 v1, 4, v0")
    g.e("s_lshl_b32 s20, s2, 13")
    g.e("v_lshrrev_b32 v2, 6, v0")
    g.e("v_lshl_add_u32 v2, s2, 3, v2")
    g.e("v_lshrrev_b32 v3, 7, v2")
    g.e("v_lshlrev_b32 v3, 7, v3")
    g.e("v_bfe_u32 v4, v2, 4, 1")
    g.e("v_lshl_add_u32 v3, v4, 6, v3")
    g.e("v_and_b32 v4, 3, v2")
    g.e("v_lshl_add_u32 v3, v4, 4, v3")
    g.e("v_and_b32 v4, 15, v0")
    g.e("v_add_u32 v3, v3, v4")
    g.e("v_lshlrev_b32 v3, 10, v3")
    g.e("v_bfe_u32 v4, v2, 5, 2")
    g.e("v_lshl_add_u32 v3, v4, 8, v3")
    g.e("v_bfe_u32 v4, v2, 2, 2")
    g.e("v_lshl_add_u32 v3, v4, 6, v3")
    g.e("v_bfe_u32 v4, v0, 4, 1")
    g.e("v_lshl_add_u32 v3, v4, 5, v3")
    g.e("v_bfe_u32 v4, v0, 5, 1")
    g.e("v_lshl_add_u32 v3, v4, 4, v3")
    g.e("s_waitcnt lgkmcnt(0)")
    srd(g, 8, 16, 17, 8 * MB, WS_PART)
    srd(g, 12, 4, 5, 2 * MB)
    for q in range(4):
        g.e(f"buffer_load_dwordx4 v[{8 + 4 * q}:{11 + 4 * q}], v1, s[8:11], s20 offen")
        g.e(f"s_add_u32 s20, s20, {2 * MB}")
    g.e("buffer_load_dwordx4 v[24:27], v3, s[12:15], 0 offen")
    srd(g, 24, 6, 7, 2 * MB)
    g.e("s_mov_b32 s21, 0xffff0000")
    for q in range(5):
        g.e(f"s_waitcnt vmcnt({4 - q})")
        for i in range(4):
            r = 8 + 4 * q + i
            if q == 0:
                g.e(f"v_lshlrev_b32 v{28 + 2 * i}, 16, v{r}")
                g.e(f"v_and_b32 v{29 + 2 * i}, s21, v{r}")
            else:
                g.e(f"v_lshlrev_b32 v4, 16, v{r}")
                g.e(f"v_and_b32 v5, s21, v{r}")
                g.e(f"v_add_f32 v{28 + 2 * i}, v{28 + 2 * i}, v4")
                g.e(f"v_add_f32 v{29 + 2 * i}, v{29 + 2 * i}, v5")
    for i in range(4): g.e(f"PK {8 + i},{28 + 2 * i},{29 + 2 * i}")
    g.e("buffer_store_dwordx4 v[8:11], v3, s[24:27], 0 offen")
    g.label("L_k4_end")
    g.e("s_endpgm")
    g.label("L_all_end")
```

```python
from asmlib import *
import math

XR = 128
ACC = [64, 96]
WR = 32
D = 6
C2 = -2.0 * math.sqrt(2.0 / math.pi) * math.log2(math.e)
C1 = C2 * 0.044715
NPKV = int(os.environ.get('NPKV', '6'))
NPZ = int(os.environ.get('NPZ', '3'))
GKV = -(-64 // NPKV); GZ = 7
assert NPKV == 6 and NPZ == 3
GMAP = [[0, 1, 2, 25, 3, 4, 26, 10], [11, 12, 13, 27, 14, 15, 28, 21], [5, 6, 29, 7, 8, 30, 9, 23], [16, 17, 31, 18, 22, 19, 20, 24]]
ZODD = int(os.environ.get('ZODD', '0'))
if ZODD: GMAP = [[0, 1, 2, 3, 25, 4, 26, 10], [11, 12, 13, 14, 27, 15, 28, 21], [5, 6, 7, 8, 29, 9, 30, 23], [16, 17, 18, 19, 31, 20, 22, 24]]
assert sorted(sum(GMAP, [])) == list(range(32))
NTW = os.environ.get('NTW', '')
PF = int(os.environ.get('PF', '97'))
CLU = int(os.environ.get('CLU', '1'))
PFW = int(os.environ.get('PFW', '0'))
NTP = os.environ.get('NTP', '')
PF3 = int(os.environ.get('PF3', '0'))
ZPUB = int(os.environ.get('ZPUB', '20'))
MIX = int(os.environ.get('MIX', '1'))
PFWS = int(os.environ.get('PFWS', '16'))
ROT = int(os.environ.get('ROT', '3'))
SL0 = int(os.environ.get('SL0', '0')); SL1 = int(os.environ.get('SL1', '4'))
LT = int(os.environ.get('LT', '0'))
PFL = eval(os.environ.get('PFL', '[0,2,4,8,10,11,14,18,22,23]'))
PROT = int(os.environ.get('PROT', '0'))
ZA = int(os.environ.get('ZA', '10')); ZP = int(os.environ.get('ZP', '12')); ZC = int(os.environ.get('ZC', '12'))
STKV = os.environ.get('STKV', 'sc1')
QFAST = int(os.environ.get('QFAST', '1')) and MERGE
FAST_VM = []
SPT1 = int(os.environ.get('SPT1', '1'))
IB = int(os.environ.get('IB', '2'))
WSP = int(os.environ.get('WSP', '3'))
XPF = int(os.environ.get('XPF', '0'))
QTAIL = int(os.environ.get('QTAIL', '1'))
CHG = int(os.environ.get('CHG', '1'))
ZFAST = int(os.environ.get('ZFAST', '0'))
STF = os.environ.get('STF', 'sc1')

def xreg(a, m): return XR + (m * 2 + a) * 4
def areg(st, cb, a): return ACC[st] + (cb * 2 + a) * 4

def w_voffsets(g, rowstride, vbase):
    g.e("v_bfe_u32 v28, v0, 5, 1")
    g.e("v_bfe_u32 v29, v0, 2, 2")
    g.e("v_lshl_add_u32 v28, v28, 2, v29")
    g.e(f"v_mul_u32_u24 v28, {rowstride}, v28")
    g.e("v_bfe_u32 v29, v0, 4, 1")
    g.e("v_lshl_add_u32 v28, v29, 6, v28")
    g.e("v_and_b32 v29, 3, v0")
    g.e("v_xor_b32 v30, 2, v29")
    g.e("v_lshlrev_b32 v29, 4, v29")
    g.e("v_lshlrev_b32 v30, 4, v30")
    for j in range(4):
        g.e(f"v_add_u32 v31, {j * 8 * rowstride - j * 1024}, v28")
        g.e(f"v_add_u32 v{vbase + j}, v31, v{29 + (j & 1)}")

def tr_bases(g, ve, vo):
    g.e("v_bfe_u32 v28, v0, 4, 2")
    g.e("v_lshlrev_b32 v29, 10, v28")
    g.e("v_bfe_u32 v30, v0, 2, 2")
    g.e("v_lshl_add_u32 v29, v30, 6, v29")
    g.e("v_and_b32 v30, 3, v0")
    g.e("v_lshl_add_u32 v29, v30, 3, v29")
    g.e("v_and_b32 v28, 1, v28")
    g.e(f"v_lshl_add_u32 v{ve}, v28, 5, v29")
    g.e(f"v_xor_b32 v{vo}, 32, v{ve}")

def gelu_ops(regs, T, vc2, sc1, stats=None):
    out = []
    n = len(T)
    for i in range(0, len(regs), n):
        grp = list(zip(regs[i:i + n], T))
        out += [f"v_mul_f32 v{t}, v{x}, v{x}" for x, t in grp]
        out += [f"v_fma_f32 v{t}, v{t}, s{sc1}, v{vc2}" for x, t in grp]
        out += [f"v_mul_f32 v{t}, v{t}, v{x}" for x, t in grp]
        out += [f"v_exp_f32 v{t}, v{t}" for x, t in grp]
        out += [f"v_add_f32 v{t}, 1.0, v{t}" for x, t in grp]
        out += [f"v_rcp_f32 v{t}, v{t}" for x, t in grp]
        out += [f"v_mul_f32 v{x}, v{x}, v{t}" for x, t in grp]
        if stats:
            out += [f"v_add_f32 v{stats[x][0]}, v{stats[x][0]}, v{x}" for x, t in grp]
            out += [f"v_fmac_f32 v{stats[x][1]}, v{x}, v{x}" for x, t in grp]
    return out

def ln_params(g, MEAN, VAR, n):
    def rbf(rs):
        for r in rs: g.e(f"PK {r},{r},{r}")
        for r in rs: g.e(f"v_and_b32 v{r}, 0xffff0000, v{r}")
    for m, v in zip(MEAN, VAR):
        g.e(f"v_mul_f32 v{m}, {f32(1 / n)}, v{m}")
        g.e(f"v_mul_f32 v{v}, {f32(1 / n)}, v{v}")
    for m, v in zip(MEAN, VAR): g.e(f"v_fma_f32 v{v}, -v{m}, v{m}, v{v}")
    for v in VAR: g.e(f"v_max_f32 v{v}, 0, v{v}")
    rbf(list(MEAN) + list(VAR))
    for v in VAR: g.e(f"v_add_f32 v{v}, {f32(1e-5)}, v{v}")
    rbf(VAR)
    for v in VAR: g.e(f"v_sqrt_f32 v{v}, v{v}")
    g.e("s_nop 0")
    rbf(VAR)
    for v in VAR: g.e(f"v_rcp_f32 v{v}, v{v}")
    g.e("s_nop 0")
    for m, v in zip(MEAN, VAR): g.e(f"v_mul_f32 v{m}, v{m}, v{v}")

def gen_type(g, T):
    ktp = lambda p: T in ("K", "Z1") or (T == "Z2" and p == 2)
    ztype = T in ("Z1", "Z2")
    rowstride = 3584 if ztype else 8192
    NP = NPZ if ztype else NPKV
    NTOT = 14 if ztype else 64
    NG = {"Z1": 3, "Z2": GZ}.get(T, GKV)
    NS = {"Z1": 2, "Z2": 3}.get(T, NTOT - (NG - 1) * NP)
    SHORT0 = {"Z1": 1}.get(T, NG - 1)
    VW = 1
    VTE, VTO = 5, 6
    VST = 7
    VC2 = 8
    VXA = 20
    VXR = (9, 11)
    TMP = [9, 10, 11, 12]
    STAT = 16
    g.vm = []; g.ds = []
    g.label(f"L_k1_{T}")
    g0 = {"K": 0, "V": GKV, "Z1": 2 * GKV, "Z2": 2 * GKV + 3}[T]
    g.e(f"s_sub_u32 s42, s3, {g0}")
    g.e("v_and_b32 v28, 63, v0")
    g.e(f"v_lshlrev_b32 v{VST}, 4, v28")
    if ztype:
        srd(g, 24, 4, 5, 2 * MB)
        g.e(f"s_sub_u32 s54, s3, {2 * GKV}")
        g.e("s_and_b32 s49, s54, 7")
        g.e("s_lshl_b32 s49, s49, 5")
        g.e("s_lshl_b32 s50, s41, 8")
        g.e("s_add_u32 s49, s49, s50")
        g.e("s_lshl_b32 s50, s40, 2")
        g.e("s_add_u32 s55, s49, s50")
        g.e("s_lshl_b32 s49, s55, 10")
        g.e("v_and_b32 v28, 3, v0")
        g.e("v_bfe_u32 v29, v0, 2, 4")
        g.e("v_lshlrev_b32 v30, 4, v29")
        g.e("v_lshl_add_u32 v30, v28, 10, v30")
        for i in range(4): g.vmem(f"buffer_load_dwordx4 v[{64 + 4 * i}:{67 + 4 * i}], v30, s[24:27], s49 offen offset:{256 * i}", "ln")
    else:
        srd(g, 24, 6, 7, 2 * MB)
    if T == "K": srd(g, 20, 10, 11, 512 * 8192)
    if T == "V": srd(g, 20, 12, 13, 512 * 8192)
    if ztype: srd(g, 20, 14, 15, 512 * 3584)
    if T == "Z1":
        g.e("s_lshl_b32 s58, s42, 1")
        g.e("s_add_u32 s58, s58, 8")
        g.e("s_cmp_eq_u32 s42, 0")
        g.e("s_cselect_b32 s58, 7, s58")
    elif T == "Z2": g.e("s_lshl_b32 s58, s42, 1")
    else: g.e(f"s_mul_i32 s58, s42, {NP}")
    colbase = 1792 if T == "Z2" else 0
    g.e("s_lshl_b32 s44, s58, 7")
    if colbase: g.e(f"s_add_u32 s44, s44, {colbase}")
    if ztype: g.e(f"s_mov_b32 s45, {colbase + (NTOT - 1) * 128}")
    else:
        g.e(f"s_cmp_lt_u32 s42, {SHORT0}")
        g.e(f"s_cselect_b32 s45, {NP}, {NS}")
        g.e("s_bfe_u32 s63, s2, 0x20003" if PROT else "s_mov_b32 s63, 0")
        g.e("s_lshl_b32 s63, s63, 1")
        g.e("s_cmp_ge_u32 s63, s45")
        g.e("s_cselect_b32 s49, s45, 0")
        g.e("s_sub_u32 s63, s63, s49")
    def pair_ops(p, d):
        return [f"s_add_u32 s{d}, s63, {p % 4 if p >= NS else p}" if False else f"s_add_u32 s{d}, s63, {p}",
                (f"s_cmp_ge_u32 s{d}, s45", "s_cselect_b32 s62, s45, 0"), f"s_sub_u32 s{d}, s{d}, s62"]
    g.e("s_lshl_b32 s46, s40, 12")
    g.e("s_bfe_u32 s60, s2, 0x20005" if (ROT and (not ztype or ROT > 2)) else "s_mov_b32 s60, 0")
    if ROT >= 2 and (not ztype or ROT > 2):
        g.e("s_bfe_u32 s49, s2, 0x20003")
        g.e("s_add_u32 s60, s60, s49")
        g.e("s_and_b32 s60, s60, 3")
    g.e("s_lshl_b32 s49, s60, 2")
    g.e("s_add_u32 s49, s49, s40")
    g.e("s_and_b32 s50, s49, 15")
    g.e(f"s_mul_i32 s56, s50, {32 * rowstride}")
    g.e("s_xor_b32 s50, s50, 8")
    g.e(f"s_mul_i32 s61, s50, {32 * rowstride}")
    g.e("s_and_b32 s57, s40, 3")
    g.e(f"s_mul_i32 s57, s57, {32 * rowstride}")
    g.e("s_lshr_b32 s49, s40, 2")
    g.e("s_lshl_b32 s49, s49, 7")
    g.e("s_add_u32 s57, s57, s49")
    if not ztype:
        g.e("s_lshl_b32 s49, s63, 7")
        g.e("s_add_u32 s57, s57, s49")
    g.e("s_add_u32 s57, s57, s44")
    NST = 2 * NP
    NQ = 4
    QT = QTAIL and QFAST and not ztype
    def fmap(s, f):
        if CHG:
            G, k = f >> 2, f & 3
            if s < NQ or (QT and s >= 8): return (4 if s >= 8 else 0) + (G >> 2), 4 * (s & 3) + k, G & 3, (G >> 2) * 4 + k
            return s >> 1, (s & 1) * 8 + (G >> 2) * 4 + k, G & 3, (G >> 2) * 4 + k
        cb = f & 3
        if s < NQ:
            p, ks = (f >> 4, (f >> 2) & 3) if s == 3 else ((f >> 2) & 1, f >> 3)
            return p, 4 * s + ks, cb, p * 4 + ks
        if QT and s >= 8:
            p, ks = (f >> 4, (f >> 2) & 3) if s in (8, 11) else ((f >> 2) & 1, f >> 3)
            return 4 + p, 4 * (s - 8) + ks, cb, p * 4 + ks
        return s >> 1, (s & 1) * 8 + (f >> 2), cb, f >> 2
    XPOS = [3, 4, 3, 4, 3, 4, 4, 4]
    def xdma_ops(q):
        ops = []
        for i in range(4):
            def op(i=i):
                if i == 0:
                    g.e(f"s_add_u32 s43, s60, {q >> 1}")
                    g.e("s_and_b32 s43, s43, 3")
                    g.e("s_lshl_b32 s43, s43, 8")
                    if q & 1: g.e("s_add_u32 s43, s43, 128")
                g.e(f"s_add_u32 m0, s46, {XPOS[q] * 32768}")
                g.e("s_nop 0")
                g.vmem(f"buffer_load_dwordx4 v{VXA + i}, s[24:27], s43 offen offset:{i * 1024} lds", ("x", q))
            ops.append(op)
        return ops
    def xread(q):
        g.wait_vm(("x", q))
        for ks in range(2):
            for a in range(2):
                g.lds(f"DR {xreg(a, 2 * q + ks)},{VXR[(XPOS[q] >> 1) - 1] + ks},{(XPOS[q] & 1) * 32768 + a * 2048}", ("x", q))
    def wdma_ops(s, sr=51):
        if s >= NST and QFAST and not ztype:
            def op(j):
                if j == 0: g.e(f"s_add_u32 s{sr}, s54, {(s - NST) * 128 * 8192}")
                g.e(f"s_add_u32 m0, s46, {(s % 4) * 32768}")
                g.e("s_nop 0")
                g.vmem(f"buffer_load_dwordx4 v{VW + j}, s[32:35], s{sr} offen offset:{j * 1024} lds", ("wq", s - NST))
            return [lambda j=j: op(j) for j in range(4)]
        if s >= NST: return []
        ops = []
        for j in range(4):
            def op(j=j):
                if j == 0:
                    if s < NQ or (QT and s >= 8):
                        g.e(f"s_add_u32 s{sr}, s60, {s & 3}")
                        g.e(f"s_and_b32 s{sr}, s{sr}, 3")
                        g.e(f"s_mul_i32 s{sr}, s{sr}, {128 * rowstride}")
                        g.e(f"s_add_u32 s{sr}, s{sr}, s57")
                        if s >= 8:
                            g.e("s_cmp_gt_u32 s45, 4")
                            g.e("s_cselect_b32 s62, 512, 0")
                            g.e(f"s_add_u32 s{sr}, s{sr}, s62")
                    else:
                        p, kh = s >> 1, s & 1
                        if T == "Z2" and p == 2: g.e(f"s_lshl_b32 s{sr}, s42, 7")
                        elif ztype:
                            g.e(f"s_add_u32 s{sr}, s44, {p * 128}")
                            g.e(f"s_min_u32 s{sr}, s{sr}, s45")
                        else:
                            for t in pair_ops(p, sr):
                                for u in ((t,) if isinstance(t, str) else t): g.e(u)
                            g.e(f"s_lshl_b32 s{sr}, s{sr}, 7")
                            g.e(f"s_add_u32 s{sr}, s{sr}, s44")
                        g.e(f"s_add_u32 s{sr}, s{sr}, s{61 if kh else 56}")
                g.e(f"s_add_u32 m0, s46, {(s % 4) * 32768}")
                g.e("s_nop 0")
                g.vmem(f"buffer_load_dwordx4 v{VW + j}, s[20:23], s{sr} offen offset:{j * 1024} {NTW} lds", ("w", s))
            ops.append(op)
        return ops
    def run(ops):
        for op in ops: op()
    def w0(fn):
        sk = g.newlabel("w0")
        g.e("s_cmp_lg_u32 s40, 0"); g.e(f"s_cbranch_scc1 {sk}")
        fn(); g.label(sk)
    def rb_line(dst, extra):
        g.e(f"s_add_u32 s{dst}, s41, 53")
        g.e(f"s_lshl_b32 s{dst}, s{dst}, 7")
        if extra: g.e(f"s_add_u32 s{dst}, s{dst}, {extra}")
    def rb_poll_addr(v, n, extra):
        rb_line(49, extra)
        g.e("s_and_b32 s50, s2, 7")
        g.e("s_lshl_b32 s50, s50, 13")
        g.e("s_add_u32 s49, s49, s50")
        g.e(f"v_min_u32 v{v}, {n - 1}, v0")
        g.e(f"v_lshl_add_u32 v{v}, v{v}, 2, s49")

    w_voffsets(g, rowstride, VW)
    if not ztype:
        run(wdma_ops(0, 47))
        g.e("v_bfe_u32 v28, v0, 3, 3")
        g.e("v_and_b32 v29, 7, v0")
        g.e("v_lshrrev_b32 v30, 1, v28")
        g.e("v_xor_b32 v29, v29, v30")
        g.e("s_lshl_b32 s49, s41, 8")
        g.e("s_lshl_b32 s50, s40, 5")
        g.e("s_add_u32 s49, s49, s50")
        g.e("v_add_u32 v28, s49, v28")
        g.e("v_lshlrev_b32 v28, 10, v28")
        g.e("v_xor_b32 v30, 4, v29")
        g.e("v_lshl_add_u32 v29, v29, 4, v28")
        g.e("v_lshl_add_u32 v30, v30, 4, v28")
        for i in range(4): g.e(f"v_add_u32 v{VXA + i}, {i * 8192 - i * 1024}, v{29 + (i & 1)}")
        run(xdma_ops(0))
        code_touch(g, 36, 14, f"L_k1_{T}_end")
        g.e("s_barrier")
        if IB >= 1: run(xdma_ops(1))
        if IB >= 2: run(wdma_ops(1, 47))
        g.e("v_and_b32 v28, 15, v0")
        g.e("v_bfe_u32 v29, v0, 4, 2")
        g.e("v_lshrrev_b32 v30, 1, v28")
        g.e("v_xor_b32 v29, v29, v30")
        g.e("v_lshlrev_b32 v29, 4, v29")
        g.e("v_lshl_add_u32 v29, v28, 7, v29")
        g.e("s_add_u32 s49, s46, 0x10000")
        g.e(f"v_add_u32 v{VXR[0]}, s49, v29")
        g.e(f"v_xor_b32 v{VXR[0] + 1}, 64, v{VXR[0]}")
        for ks in range(2): g.e(f"v_add_u32 v{VXR[1] + ks}, 0x10000, v{VXR[0] + ks}")
    else:
        code_touch(g, 36, 255, f"L_k1_{T}_end")
        srd(g, 24, 16, 17, WS_XNP + SZ_XN, 0)
        ZLT = len(g.lines)
        g.e("s_mov_b32 s53, 0xffff0000")
        g.e(f"s_mov_b32 s52, {f32(C1)}")
        g.e(f"v_mov_b32 v{VC2}, {f32(C2)}")
        g.e("s_lshr_b32 s55, s55, 5")
        g.e("s_lshl_b32 s55, s55, 15")
        g.e("s_add_u32 s55, s55, s46")
        g.e(f"s_add_u32 s62, s55, {WS_XNP}")
        g.e("s_lshr_b32 s49, s40, 2")
        g.e("s_lshl_b32 s49, s49, 14")
        g.e("s_and_b32 s50, s40, 3")
        g.e("s_lshl_b32 s50, s50, 6")
        g.e("s_add_u32 s49, s49, s50")
        g.e("s_add_u32 s49, s49, 0x20000")
        g.e("v_and_b32 v28, 3, v0")
        g.e("v_lshlrev_b32 v28, 4, v28")
        g.e("v_bfe_u32 v29, v0, 2, 2")
        g.e("v_lshl_add_u32 v28, v29, 8, v28")
        g.e("v_bfe_u32 v29, v0, 4, 2")
        g.e("v_lshl_add_u32 v28, v29, 10, v28")
        g.e("v_add_u32 v13, s49, v28")
        g.e("s_add_u32 s49, s46, 0x20000")
        g.e(f"v_add_u32 v16, s49, v{VST}")
        g.e("s_and_b32 s49, s46, 0x3fff")
        g.e("s_lshr_b32 s50, s40, 2")
        g.e("s_lshl_b32 s50, s50, 6")
        g.e("s_add_u32 s49, s49, s50")
        g.e("s_add_u32 s49, s49, 0x20000")
        g.e("v_bfe_u32 v17, v0, 3, 1")
        g.e("v_lshlrev_b32 v17, 14, v17")
        g.e("v_bfe_u32 v28, v0, 2, 1")
        g.e("v_lshl_add_u32 v17, v28, 7, v17")
        g.e("v_and_b32 v28, 0x33, v0")
        g.e("v_lshl_add_u32 v17, v28, 4, v17")
        g.e("v_add_u32 v17, s49, v17")
        rb_poll_addr(15, 8, 0)
        nol = g.newlabel("noln")
        g.e("s_cmp_ge_u32 s54, 8")
        g.e(f"s_cbranch_scc1 {nol}")
        g.e("v_mov_b32 v9, 0")
        g.e("v_mov_b32 v10, 0")
        g.wait_vm("ln")
        g.stamp(8)
        g.e("v_mov_b32 v14, 20")
        w0(lambda: dbg_load(g, 14, 14, 18))
        for i in range(16):
            g.e(f"v_lshlrev_b32 v{96 + 2 * i}, 16, v{64 + i}")
            g.e(f"v_and_b32 v{97 + 2 * i}, s53, v{64 + i}")
        for i in range(32):
            g.e(f"v_add_f32 v9, v9, v{96 + i}")
            g.e(f"v_fmac_f32 v10, v{96 + i}, v{96 + i}")
        for sh in (4, 8):
            g.e("s_nop 1")
            for r in (9, 10): g.e(f"v_add_f32_dpp v{r}, v{r}, v{r} row_ror:{sh} row_mask:0xf bank_mask:0xf")
        for sw in ("v_permlane32_swap_b32", "v_permlane16_swap_b32"):
            for i in range(2): g.e(f"v_mov_b32 v{11 + i}, v{9 + i}")
            g.e("s_nop 1")
            for i in range(2): g.e(f"{sw} v{11 + i}, v{9 + i}")
            g.e("s_nop 1")
            for i in range(2): g.e(f"v_add_f32 v{9 + i}, v{9 + i}, v{11 + i}")
        ln_params(g, [9], [10], 512)
        for i in range(4):
            for e in range(8): g.e(f"v_fma_f32 v{96 + 8 * i + e}, v{96 + 8 * i + e}, v10, -v9")
            for r in range(4): g.e(f"PK {64 + 4 * i + r},{96 + 8 * i + 2 * r},{97 + 8 * i + 2 * r}")
            g.e(f"DW 13,{64 + 4 * i},{i * 4096}")
        g.e("s_waitcnt lgkmcnt(0)")
        g.e("s_barrier")
        for i in range(4): g.e(f"DR {96 + 4 * i},17,{i * 1024}")
        for i in range(4):
            g.e(f"s_waitcnt lgkmcnt({3 - i})")
            g.e(f"buffer_store_dwordx4 v[{96 + 4 * i}:{99 + 4 * i}], v{VST}, s[24:27], s62 offen offset:{(i & 3) * 1024} sc1")
        g.e("v_mov_b32 v11, 1")
        g.stamp(9)
        g.e("s_waitcnt vmcnt(0)")
        g.e("s_barrier")
        g.stamp(10)
        done = g.newlabel("sdone"); chk = g.newlabel("schk")
        g.e("s_cmp_lg_u32 s40, 0")
        g.e(f"s_cbranch_scc1 {done}")
        nonce_get(g, 14, 14, 2, True)
        rb_line(47, 0)
        g.e("s_lshl_b32 s49, s54, 2")
        g.e("s_add_u32 s47, s47, s49")
        flag_set(g, 10, 47, 59, 100)
        g.e(f"s_branch {chk}")
        g.label(nol)
        g.e("s_cmp_lg_u32 s40, 0")
        g.e(f"s_cbranch_scc1 {done}")
        if SL0: g.e(f"s_sleep {SL0}")
        nonce_get(g, 14, 14, 2, False)
        g.label(chk)
        flag_wait(g, 11, 15, 59, 100, SL1, False)
        g.label(done)
        g.vm = []
        run(wdma_ops(0, 47))
        g.e("s_mov_b32 s62, s55")
        g.e("s_mov_b32 s48, s54")
        g.e("s_lshl_b32 s49, s41, 18")
        g.e("s_lshl_b32 s50, s40, 15")
        g.e("s_add_u32 s54, s49, s50")
        g.e(f"s_add_u32 s54, s54, {WS_XNP}")
        g.e("s_barrier")
        g.stamp(11)
        def xload(m):
            if m % 4 == 0:
                g.e(f"s_add_u32 s63, s60, {m >> 2}")
                g.e("s_and_b32 s63, s63, 3")
                g.e("s_lshl_b32 s63, s63, 12")
                g.e("s_add_u32 s63, s63, s54")
                g.e(f"s_add_u32 s55, s63, 16384")
            for a in range(2):
                x = xreg(a, m)
                g.vmem(f"buffer_load_dwordx4 v[{x}:{x + 3}], v{VST}, s[24:27], s{55 if a else 63} offen offset:{(m % 4) * 1024} sc1", ("x", m))
        for m in range(4): xload(m)
    def lin_touch():
        g.e("s_lshl_b32 s43, s2, 3")
        g.e("s_add_u32 s43, s43, s40")
        g.e(f"v_lshlrev_b32 v26, 3, v{VST}")
        g.e("v_bfe_u32 v27, v0, 4, 2")
        g.e("v_lshl_add_u32 v26, v27, 28, v26")
        g.e("s_lshl_b32 s49, s43, 11")
        srd(g, 36, 10, 11, 4 * MB)
        g.vmem("buffer_load_dword v254, v26, s[36:39], s49 offen", "t")
        srd(g, 36, 12, 13, 4 * MB)
        g.vmem("buffer_load_dword v254, v26, s[36:39], s49 offen", "t")
        srd(g, 36, 14, 15, 512 * 3584)
        g.vmem("buffer_load_dword v254, v26, s[36:39], s49 offen", "t")
    if LT == 1 and not ztype: lin_touch()
    if LT and ztype:
        n0 = len(g.lines); sv = list(g.vm)
        lin_touch()
        blk = g.lines[n0:]; del g.lines[n0:]; g.lines[ZLT:ZLT] = blk; g.vm = sv
        k = g.lines.index(f"s_waitcnt vmcnt({CPF})", ZLT); g.lines[k] = f"s_waitcnt vmcnt({CPF + 3})"
    off, sz = {"K": (WS_K, SZ_KV), "V": (WS_V, SZ_KV), "Z1": (WS_Z1, SZ_Z), "Z2": (WS_Z2, SZ_Z)}[T]
    srd(g, 28, 16, 17, sz, off)
    tr_bases(g, VTE, VTO)
    if T == "Z2":
        for i in range(16): g.e(f"v_mov_b32 v{STAT + i}, 0")
    if T == "Z1":
        g.e("v_bfe_u32 v16, v0, 3, 1")
        g.e("v_lshlrev_b32 v16, 6, v16")
        g.e("v_bfe_u32 v18, v0, 2, 1")
        g.e("v_lshl_add_u32 v16, v18, 7, v16")
        g.e("v_and_b32 v18, 0x33, v0")
        g.e("v_lshl_add_u32 v16, v18, 4, v16")

    def outbase(I, p):
        if T == "Z2" and p == 2: I("s_mov_b32 s48, s42")
        elif ztype: I(f"s_add_u32 s48, s58, {p}")
        else:
            I("\n".join(u for t in pair_ops(p, 48) for u in ((t,) if isinstance(t, str) else t)))
            I("s_add_u32 s48, s48, s58")
        if T in ("K", "V"):
            I("s_lshr_b32 s49, s48, 1")
            I("s_lshl_b32 s49, s49, 19")
            I("s_and_b32 s48, s48, 1")
            I(f"s_lshl_b32 s48, s48, {11 if T == 'K' else 12}")
            I("s_add_u32 s48, s48, s49")
            I("s_lshl_b32 s49, s41, 16")
            I("s_add_u32 s48, s48, s49")
            I("s_lshl_b32 s49, s40, 13")
            I("s_add_u32 s48, s48, s49")
            I("s_add_u32 s50, s48, 4096")
        else:
            I(f"s_lshl_b32 s48, s48, {11 if ktp(p) else 12}")
            I("s_lshl_b32 s49, s41, 3")
            I("s_add_u32 s49, s49, s40")
            I("s_mul_i32 s49, s49, 57344")
            I("s_add_u32 s48, s48, s49")
            I("s_add_u32 s50, s48, 28672")

    ZPARK = 131072
    def epilogue(p, last=False):
        st = p & 1
        ops = []
        def I(s): ops.append(lambda s=s: g.e(s))
        hold = T == "Z2" and p < 2
        if not hold: outbase(I, p)
        frags = []
        if ktp(p):
            for a, mm in ([(0, 0), (1, 0), (0, 1), (1, 1)] if ztype else [(0, 0), (0, 1), (1, 0), (1, 1)]):
                if True:
                    frags.append((areg(st, 2 * mm, a), areg(st, 2 * mm + 1, a), a, mm * 1024))
        else:
            for cb in range(4):
                frags.append((areg(st, cb, 0), areg(st, cb, 1), 0, cb * 1024))
        for (x, y, a, io) in frags:
            if ztype:
                stats = None
                if hold:
                    stats = {}
                    for r in range(4):
                        stats[x + r] = (STAT + 2 * r, STAT + 2 * r + 1)
                        stats[y + r] = (STAT + 8 + 2 * r, STAT + 8 + 2 * r + 1)
                for s in gelu_ops([x, x + 1, x + 2, x + 3, y, y + 1, y + 2, y + 3], TMP, VC2, 52, stats): I(s)
            d = x
            if (p == 0 or (QT and p in (3, 4) and not last)) and not ztype: d = 16 + 4 * frags.index((x, y, a, io))
            I(f"PK {d},{x},{x + 1}"); I(f"PK {d + 1},{x + 2},{x + 3}")
            I(f"PK {d + 2},{y},{y + 1}"); I(f"PK {d + 3},{y + 2},{y + 3}")
            x = d
            if hold:
                if p == 0: ops.append(lambda x=x, io=io: g.lds(f"DW 13,{x},{io}", "park"))
            elif ztype:
                if a == 0: ops.append(lambda: None)
                else:
                    def fix(x1=x, io=io):
                        x0 = x1 - 4
                        for r in range(4): g.e(f"v_mov_b32 v{TMP[r]}, v{x0 + r}")
                        for r in range(4): g.e(f"v_mov_b32_dpp v{x0 + r}, v{x1 + r} row_ror:8 row_mask:0xf bank_mask:0xc")
                        for r in range(4): g.e(f"v_mov_b32_dpp v{x1 + r}, v{TMP[r]} row_ror:8 row_mask:0xf bank_mask:0x3")
                        sr = 24 if T == "Z2" else 28
                        for k, xx in enumerate((x0, x1)):
                            g.vmem(f"buffer_store_dwordx4 v[{xx}:{xx + 3}], v{14 if T == 'Z2' else 16}, s[{sr}:{sr + 3}], s{48 + 2 * k} offen offset:{io} {SC}", "st")
                    ops.append(fix)
            else:
                ops.append(lambda x=x, a=a, io=io: g.vmem(
                    f"buffer_store_dwordx4 v[{x}:{x + 3}], v{VST}, s[28:31], s{50 if a else 48} offen offset:{io} {STF if ztype else STKV}", "st"))
        return ops
    if T == "Z2":
        g.e(f"s_add_u32 s49, s46, {ZPARK}")
        g.e(f"v_add_u32 v13, s49, v{VST}")

    def publish_ops():
        ops = []
        def I(s): ops.append(lambda s=s: g.e(s))
        for sh in (8, 4, 2, 1):
            for i in range(16):
                I(f"v_add_f32_dpp v{STAT + i}, v{STAT + i}, v{STAT + i} row_ror:{sh} row_mask:0xf bank_mask:0xf")
        ops.append(lambda: srd(g, 36, 16, 17, GZ * 16384, WS_ST))
        I("v_bfe_u32 v9, v0, 4, 2")
        I("v_lshlrev_b32 v9, 6, v9")
        I("v_and_b32 v10, 15, v0")
        I("v_lshl_add_u32 v10, v10, 24, v9")
        I("s_lshl_b32 s63, s41, 11")
        I("s_lshl_b32 s49, s40, 8")
        I("s_add_u32 s63, s63, s49")
        I("s_lshl_b32 s49, s42, 14")
        I("s_add_u32 s49, s49, s63")
        for i in range(4):
            ops.append(lambda i=i: g.vmem(f"buffer_store_dwordx4 v[{STAT + 4 * i}:{STAT + 4 * i + 3}], v10, s[36:39], s49 offen offset:{16 * i} sc1", "pub"))
        return ops
    def arrive():
        g.wait_vm("pub")
        g.e("s_barrier")
        def f():
            rb_line(47, 32)
            g.e("s_lshl_b32 s49, s42, 2")
            g.e("s_add_u32 s47, s47, s49")
            flag_set(g, 10, 47, 59, 100)
            rb_poll_addr(15, GZ, 32)
            g.e("v_mov_b32 v14, 0")
        w0(f)
    PB = 16
    def collect():
        w0(lambda: flag_wait(g, 14, 15, 59, 100, SL1, True))
        g.e("s_barrier")
        g.stamp(14)
        g.e("v_and_b32 v9, 31, v0")
        g.e("v_lshlrev_b32 v9, 3, v9")
        for q in range(GZ):
            g.e(f"s_add_u32 s49, s63, {q * 16384}")
            g.vmem(f"buffer_load_dwordx2 v[{PB + 2 * q}:{PB + 2 * q + 1}], v9, s[36:39], s49 offen sc1", "col")

    def pf_next(short):
        if not PF3 or T == "Z2" or (T in ("K", "V") and not short): return
        g.e("s_load_dwordx2 s[32:33], s[0:1], 40")
        g.e("s_load_dwordx2 s[36:37], s[0:1], 80")
        g.e("s_lshl_b32 s43, s41, 3")
        g.e("s_add_u32 s43, s43, s40")
        g.e(f"v_lshlrev_b32 v13, 3, v{VST}")
        g.e("s_waitcnt lgkmcnt(0)")
        g.e(f"s_mov_b32 s34, {4 * MB}")
        g.e("s_mov_b32 s35, 0x20000")
        g.e(f"s_mov_b32 s38, {896 * 1024}")
        g.e("s_mov_b32 s39, 0x20000")
        if T == "Z1":
            g.e("s_lshl_b32 s47, s42, 6")
            g.e("s_add_u32 s43, s43, s47")
            g.e("s_lshl_b32 s43, s43, 13")
            if short:
                g.e(f"s_sub_u32 s47, s43, {64 * 8192}")
                g.e("buffer_load_dword v14, v13, s[36:39], s47 offen")
                g.e(f"s_add_u32 s47, s47, {3 * MB}")
                g.e("buffer_load_dword v14, v13, s[32:35], s47 offen")
        else:
            g.e(f"s_mul_i32 s43, s43, {3 * 8192}")
            if T == "V": g.e(f"s_add_u32 s43, s43, {64 * 3 * 8192}")
            for i in range(3):
                g.e(f"buffer_load_dword v14, v13, s[32:35], s43 offen")
                g.e("s_add_u32 s43, s43, 8192")

    def xn_snap():
        def f():
            if not ztype: nonce_get(g, 13, 13, 2, True)
            g.e("s_and_b32 s43, s2, 7")
            g.e("s_lshl_b32 s43, s43, 13")
            g.e(f"s_add_u32 s43, s43, {53 * 128 + 64}")
            g.e("v_lshrrev_b32 v13, 3, v0")
            g.e("v_lshlrev_b32 v13, 7, v13")
            g.e("v_and_b32 v15, 7, v0")
            g.e("v_lshl_add_u32 v13, v15, 2, v13")
            g.e("v_add_u32 v15, s43, v13")
            flag_load(g, 13, 15, 100)
        w0(f)
    ZF = {}
    def final(p, short=False):
        g.stamp(12)
        g.e("s_nop 7")
        if T != "Z2":
            for op in epilogue(p, True): op()
        else:
            PKD, VA, P2 = 224, 10, 240
            for i in range(4): g.e(f"DR {PKD + 4 * i},13,{i * 1024}")
            g.e(f"s_add_u32 s49, s46, {ZPARK}")
            g.e("v_add_u32 v9, s49, v9")
            g.e(f"v_bfe_u32 v{VA}, v0, 4, 2")
            g.e(f"v_lshl_add_u32 v{VA}, v{VA}, 6, s49")
            g.e("s_waitcnt vmcnt(0) lgkmcnt(0)")
            for q in range(1, GZ):
                for i in range(2): g.e(f"v_add_f32 v{PB + i}, v{PB + i}, v{PB + 2 * q + i}")
            ln_params(g, [PB], [PB + 1], 896)
            g.e(f"ds_write_b64 v9, v[{PB}:{PB + 1}]")
            g.e("s_waitcnt lgkmcnt(0)")
            for i in range(4): g.e(f"DR {P2 + 4 * i},{VA},{16 * i}")
            xn_snap()
            g.e("s_waitcnt lgkmcnt(0)")
            MEAN = [P2 + 2 * e for e in range(8)]; VAR = [P2 + 2 * e + 1 for e in range(8)]
            for pp in range(2):
                outbase(g.e, pp)
                for cb in range(4):
                    x = PKD + 4 * cb if pp == 0 else areg(pp & 1, cb, 0)
                    t = 16 + (cb & 1) * 8
                    for r in range(4): g.e(f"v_lshlrev_b32 v{t + 2 * r}, 16, v{x + r}")
                    for r in range(4): g.e(f"v_and_b32 v{t + 2 * r + 1}, s53, v{x + r}")
                    for e in range(8): g.e(f"v_fma_f32 v{t + e}, v{t + e}, v{VAR[e]}, -v{MEAN[e]}")
                    for r in range(4): g.e(f"PK {x + r},{t + 2 * r},{t + 2 * r + 1}")
                    g.e(f"buffer_store_dwordx4 v[{x}:{x + 3}], v{VST}, s[28:31], s48 offen offset:{cb * 1024} {STF}")
            ep = epilogue(p)
            nb = len(ep) - 4 * 61
            quart = [ep[nb + 61 * i:nb + 61 * i + 60] for i in range(4)]
            zst = [ep[nb + 61 * i + 60] for i in range(4)]
            ZQ = QFAST and QTAIL and ZFAST
            run(quart[0]); run(quart[1])
            if ZQ:
                ZF["qprep"]()
                w_voffsets(g, 8192, VW)
            g.e("s_waitcnt vmcnt(0)")
            if ZQ: w0(lambda: flag_wait(g, 13, 15, 59, 100, SL1, True))
            g.e("s_barrier")
            def z2flag():
                g.e("s_add_u32 s47, s42, 14")
                g.e("s_lshl_b32 s47, s47, 7")
                g.e("s_lshl_b32 s49, s41, 2")
                g.e("s_add_u32 s47, s47, s49")
                g.e("s_add_u32 s47, s47, 32")
                flag_set(g, 16, 47, 59, 100)
            w0(z2flag)
            g.stamp(10)
            srd(g, 24, 16, 17, SZ_Z, WS_Z1)
            g.e("v_bfe_u32 v14, v0, 3, 1")
            g.e("v_lshlrev_b32 v14, 6, v14")
            g.e("v_bfe_u32 v18, v0, 2, 1")
            g.e("v_lshl_add_u32 v14, v18, 7, v14")
            g.e("v_and_b32 v18, 0x33, v0")
            g.e("v_lshl_add_u32 v14, v18, 4, v14")
            if ZQ:
                ld = []
                g.vm = []
                for st in range(3):
                    ld += [lambda m=m: ZF["qx"](m) for m in range(4 * st, 4 * st + 4)]
                    for j in range(4 if st < 2 else 0):
                        def wq(st=st, j=j):
                            g.e(f"s_add_u32 s51, s54, {st * 128 * 8192}")
                            g.e(f"s_add_u32 m0, s46, {st * 32768}")
                            g.e("s_nop 0")
                            g.vmem(f"buffer_load_dwordx4 v{VW + j}, s[32:35], s51 offen offset:{j * 1024} lds", ("w", st))
                        ld.append(wq)
                body = quart[2] + quart[3]
                for i, op in enumerate(body):
                    op()
                    if i % 6 == 0 and ld: ld.pop(0)()
                assert not ld
                run(ep[:nb]); run(zst)
                g.e("v_xor_b32 v5, 0x10000, v5")
                g.e("v_xor_b32 v6, 0x10000, v6")
                if not PROF:
                    yo = lambda L, t: len(L) - 1 - max(i for i, u in enumerate(L) if u == t)
                    assert all(yo(g.vm, t) <= yo(FAST_VM, t) for t in set(FAST_VM)), (g.vm, FAST_VM)
                    FAST_VM[:] = g.vm
            else:
                run(ep[:nb]); run(zst[:2]); run(quart[2]); run(zst[2:3]); run(quart[3]); run(zst[3:])
        g.stamp(13)
        diag_mark(g, 2)
        g.stamp_dump(16, 17, 40, 0)
        if MERGE:
            g.e(f"s_add_u32 s58, s42, { {'K': 0, 'V': 0, 'Z1': 11, 'Z2': 14}[T] }")
            g.e("s_lshl_b32 s58, s58, 7")
            g.e("s_lshl_b32 s49, s41, 2")
            g.e("s_add_u32 s58, s58, s49")
            if T == "V": g.e("s_add_u32 s58, s58, 32")
            if QFAST and not ztype and not short:
                FAST_VM[:] = [] if PROF else [("w", t[1]) if isinstance(t, tuple) and t[0] == "wq" else t for t in g.vm]
                g.e("s_branch L_p2f")
            elif T == "Z2" and QFAST and QTAIL and ZFAST: g.e("s_branch L_p2f")
            else: g.e("s_branch L_p2")
        else: g.e("s_endpgm")

    pend = []
    def wread(F, half=None):
        s, f = F >> 5, F & 31
        if s >= NST: return
        if f == 0 and half != 1:
            assert not pend
            g.wait_vm(("w", s), *(["xn"] if s == 3 else []))
            if QFAST and not ztype and s == (3 if XPF else (9 if QT else NST - 1)): w0(lambda: flag_wait(g, 13, 15, 59, 100, SL1, True))
            g.e("s_barrier")
            if ztype and s == 3:
                def nflag():
                    sk = g.newlabel("nonf")
                    g.e("s_cmp_ge_u32 s48, 8")
                    g.e(f"s_cbranch_scc1 {sk}")
                    rb_line(43, 64)
                    g.e("s_lshl_b32 s49, s48, 2")
                    g.e("s_add_u32 s43, s43, s49")
                    flag_set(g, 10, 43, 59, 100)
                    g.label(sk)
                w0(nflag)
            if s >= 2 and s % 2 == 0:
                g.e(f"v_xor_b32 v{VTE}, 0x10000, v{VTE}")
                g.e(f"v_xor_b32 v{VTO}, 0x10000, v{VTO}")
            if s >= 2: pend.extend(wdma_ops(s + 2))
        if pend and f % WSP == 1 % WSP and f >= 1 and half != 0: pend.pop(0)()
        p, m, cb, mp = fmap(s, f)
        r = WR + (F % 8) * 4
        for a in (range(2) if half is None else [half]):
            o = (s & 1) * 32768 + mp * 4096 + a * 512 + (cb >> 1) * 256
            g.lds(f"TR {r + 2 * a},{VTO if cb & 1 else VTE},{o}", ("w", F))

    g.stamp(1)
    ev = {}
    def at(F, fn): ev.setdefault(F, []).append(fn)
    def spread(F0, ops, after=None):
        if after is not None: at(F0, lambda: g.wait_ds(("x", after)))
        for i, op in enumerate(ops): at(F0 + i, op)
    if not ztype:
        xread(0)
        at(0, lambda: g.wait_ds(("x", 0)))
        if CHG:
            xread(1)
            at(0, lambda: g.wait_ds(("x", 1)))
            spread(0, xdma_ops(2)); spread(4, xdma_ops(3)); spread(8, wdma_ops(2, 47))
        elif IB >= 2:
            spread(0, xdma_ops(2)); spread(4, wdma_ops(2, 47))
            at(10, lambda: xread(1)); spread(14, xdma_ops(3), 1)
        elif IB == 1:
            spread(0, wdma_ops(1, 47)); spread(4, xdma_ops(2))
            at(10, lambda: xread(1)); spread(14, xdma_ops(3), 1); spread(18, wdma_ops(2, 47))
        else:
            spread(0, xdma_ops(1)); spread(4, wdma_ops(1, 47)); spread(8, xdma_ops(2))
            at(13, lambda: xread(1)); spread(16, xdma_ops(3), 1); spread(30, wdma_ops(2, 47))
        if CHG:
            at(20, lambda: xread(2)); spread(24, xdma_ops(4), 2)
            at(28, lambda: xread(3)); spread(32, xdma_ops(5), 3)
            at(42, lambda: xread(4)); spread(46, wdma_ops(3, 47), 4)
            at(50, lambda: xread(5)); spread(54, xdma_ops(6), 5)
            at(70, lambda: xread(6)); spread(74, xdma_ops(7), 6)
            at(92, lambda: xread(7)); at(96, lambda: g.wait_ds(("x", 7)))
        else:
            at(22, lambda: xread(2)); spread(26, xdma_ops(4), 2)
            at(34, lambda: xread(3)); spread(38, xdma_ops(5), 3)
            at(44, lambda: xread(4)); spread(48, wdma_ops(3, 47), 4)
            at(56, lambda: xread(5)); spread(64, xdma_ops(6), 5)
            at(80, lambda: xread(6)); spread(84, xdma_ops(7), 6)
            at(99, lambda: xread(7)); at(103, lambda: g.wait_ds(("x", 7)))
    else:
        for m in range(16): at((m >> 2) * 32 if CHG else (8 * m if m < 12 else 96 + 4 * (m - 12)), lambda m=m: g.wait_vm(("x", m)))
        for m, F in zip(range(4, 16), (4, 8, 12, 16, 28, 34, 40, 46, 56, 64, 70, 74)): at(("post", F), lambda m=m: xload(m))
        def xnc(i, st):
            if not st:
                if i == 0:
                    g.e(f"s_add_u32 s49, s46, {ZPARK}")
                    g.e(f"v_add_u32 v14, s49, v{VST}")
                    g.e("s_cmp_ge_u32 s48, 8")
                    g.e("s_cselect_b32 s49, 0x40000000, 0")
                    g.e(f"v_add_u32 v15, s49, v{VST}")
                g.lds(f"DR 10,14,{i * 1024}", ("xn", i))
            else:
                g.wait_ds(("xn", i))
                g.vmem(f"buffer_store_dwordx4 v[10:13], v15, s[24:27], s62 offen offset:{i * 1024} sc1", "xn")
        for i in range(4):
            at(("post", 19 + 12 * i), lambda i=i: xnc(i, False)); at(("post", 25 + 12 * i), lambda i=i: xnc(i, True))
        if T == "Z2": at(("post", 66), lambda: g.e("v_mov_b32 v13, v14"))
        for F0, s in ((0, 1), (22, 2), (50, 3)):
            for i, op in enumerate(wdma_ops(s, 47)): at(("post", F0 + i), op)
    if PFW and not ztype:
        def pfw():
            g.e("s_bfe_u32 s43, s2, 0x20003")
            g.e("s_lshl_b32 s43, s43, 7")
            g.e("s_lshl_b32 s47, s40, 4")
            g.e("s_add_u32 s43, s43, s47")
            g.e("v_bfe_u32 v14, v0, 2, 4")
            g.e("v_add_u32 v14, s43, v14")
            g.e("v_lshlrev_b32 v14, 13, v14")
            g.e("v_and_b32 v15, 3, v0")
            g.e("v_min_u32 v15, 2, v15")
            g.e("v_lshl_add_u32 v14, v15, 7, v14")
            g.vmem(f"buffer_load_dword v14, v14, s[20:23], s44 offen offset:384", "t")
        at(PFW, pfw)
    if PF:
        def prefetch():
            sr = 36 if T == "Z2" else 32
            srd(g, sr, 8, 9, 4 * MB)
            g.e("s_and_b32 s43, s2, 0xf8")
            g.e("s_add_u32 s43, s43, s40")
            g.e("s_lshl_b32 s43, s43, 14")
            nb = 2 if BAL else 1
            g.e(f"s_and_b32 s47, s2, {6 if BAL else 7}")
            g.e("s_lshl_b32 s47, s47, 8")
            g.e("s_add_u32 s47, s47, s43")
            g.e(f"v_and_b32 v14, {(1 << nb) - 1}, v0")
            g.e("v_lshlrev_b32 v14, 7, v14")
            g.e(f"v_bfe_u32 v15, v0, {nb}, 3")
            g.e("v_lshl_add_u32 v14, v15, 11, v14")
            g.e(f"v_bfe_u32 v15, v0, {nb + 3}, {3 - nb}")
            g.e("v_lshl_add_u32 v15, v15, 28, v14")
            g.vmem(f"buffer_load_dword v14, v15, s[{sr}:{sr + 3}], s47 offen", "t")
            if T in ("K", "V"):
                sk = g.newlabel("nocode")
                g.e("s_cmp_lt_u32 s2, 8")
                g.e(f"s_cbranch_scc0 {sk}")
                code_touch(g, 36, 14, "L_all_end", "L_p2", False)
                g.label(sk)
            if SPT1 and T != "Z2":
                sk = g.newlabel("nosp")
                g.e(f"s_cmp_lt_u32 s2, {192 if BAL else 224}")
                g.e(f"s_cbranch_scc1 {sk}")
                if BAL:
                    g.e("s_bitcmp1_b32 s2, 0")
                    g.e(f"s_cbranch_scc1 {sk}")
                g.e("s_load_dwordx2 s[36:37], s[0:1], 64")
                g.e(f"s_and_b32 s43, s2, {0x38 if BAL else 0x18}")
                g.e("s_add_u32 s43, s43, s40")
                g.e("s_lshl_b32 s43, s43, 15")
                g.e("s_and_b32 s47, s2, 7")
                g.e("s_lshl_b32 s47, s47, 20")
                g.e("s_add_u32 s43, s43, s47")
                g.e("v_bfe_u32 v13, v0, 3, 3")
                g.e("v_lshlrev_b32 v13, 12, v13")
                g.e("v_and_b32 v15, 7, v0")
                g.e("v_lshl_add_u32 v13, v15, 7, v13")
                g.e("s_waitcnt lgkmcnt(0)")
                g.e(f"s_mov_b32 s38, {8 * MB}")
                g.e("s_mov_b32 s39, 0x20000")
                for i in range(SPT1): g.e(f"buffer_load_dword v14, v13, s[36:39], s43 offen offset:{1024 * i}")
                g.label(sk)
            if PF3 == 1 and T != "Z2":
                sk = g.newlabel("nopf3")
                g.e(f"s_cmp_lt_u32 s42, {SHORT0}")
                g.e(f"s_cbranch_scc1 {sk}")
                pf_next(True)
                g.label(sk)
        at(PF if not ztype else min(PF, 110), prefetch)
    if not ztype: at(42 if XPF else 150, lambda: (g.e("v_mov_b32 v13, 20"), w0(lambda: dbg_load(g, 13, 13, 18))))
    if T != "Z2": at(114 if ztype else (70 if XPF else (2 * NS - 1) * 32 - 12), xn_snap)
    if XPF and not ztype:
        def xn_touch():
            from k2 import role_ops
            sk = g.newlabel("noxt")
            g.e(f"s_cmp_ge_u32 s42, {SHORT0}")
            g.e(f"s_cbranch_scc1 {sk}")
            for t in role_ops(54, 55, 52, 53, 43, 47): g.e(t)
            srd(g, 36, 16, 17, SZ_XN, WS_XN)
            g.e("s_lshr_b32 s47, s40, 2")
            g.e("s_cmp_eq_u32 s47, 0")
            g.e("s_cselect_b32 s55, s52, s53")
            g.e("s_lshl_b32 s55, s55, 17")
            g.e("s_and_b32 s43, s40, 3")
            g.e("s_lshl_b32 s43, s43, 15")
            g.e("s_add_u32 s55, s55, s43")
            g.e("s_lshr_b32 s43, s54, 3")
            g.e("s_lshl_b32 s43, s43, 13")
            g.e("s_add_u32 s55, s55, s43")
            g.e(f"v_lshlrev_b32 v14, 3, v{VST}")
            g.e("buffer_load_dword v14, v14, s[36:39], s55 offen")
            g.label(sk)
        at(XPF, xn_touch)
    if QFAST and T != "Z1":
        from k2 import role_ops
        XA, XB = (52, 53) if not ztype else (56, 57)
        def qprep():
            g.e("s_load_dwordx2 s[6:7], s[0:1], 64")
            for t in role_ops(54, 55, XA, XB, 43, 47): g.e(t)
            srd(g, 32, 8, 9, 512 * 8192)
            srd(g, 36, 16, 17, SZ_XN, WS_XN)
            g.e("s_lshl_b32 s54, s54, 8")
            g.e("s_and_b32 s43, s40, 3")
            g.e("s_lshl_b32 s47, s43, 18")
            g.e("s_add_u32 s54, s54, s47")
            g.e("s_lshr_b32 s47, s40, 2")
            g.e("s_cmp_eq_u32 s47, 0")
            g.e(f"s_cselect_b32 s55, s{XA}, s{XB}")
            g.e("s_lshl_b32 s47, s47, 7")
            g.e("s_add_u32 s54, s54, s47")
            g.e("s_lshl_b32 s55, s55, 17")
            g.e("s_lshl_b32 s43, s43, 15")
            g.e("s_add_u32 s55, s55, s43")
            g.e("s_waitcnt lgkmcnt(0)")
            g.ds = []
        if not ztype: at(258 if QT else 270, qprep)
        def qx(m):
            if m % 4 == 0:
                g.e(f"s_add_u32 s{XA}, s55, {m * 1024}")
                g.e(f"s_add_u32 s{XB}, s55, {m * 1024 + 16384}")
            for a in range(2):
                x = xreg(a, m)
                g.vmem(f"buffer_load_dwordx4 v[{x}:{x + 3}], v{VST}, s[36:39], s{XA + a} offen offset:{(m % 4) * 1024} {SC}", ("x", m))
        ZF.update(qprep=qprep, qx=qx)
        if ztype: pass
        elif QT:
            for m in range(12): at(("post", 9 * 32 + 2 + (8 * m if m < 8 else 64 + 4 * (m - 8))), lambda m=m: qx(m))
        else:
            for m in range(8): at(("post", (NST - 1) * 32 + 1 + 3 * m), lambda m=m: qx(m))
    def place(ops, F0, n):
        for i, op in enumerate(ops): at(("post", F0 + i * n // len(ops)), op)
    for p in range(NP - 1):
        ops = epilogue(p)
        F0 = (2 * p + 2) * 32 + 3
        if not ztype:
            h = len(ops) - 20
            fr = [ops[h + 5 * i:h + 5 * i + 5] for i in range(4)]
            if p == 0:
                place(ops[:h] + [o for f4 in fr for o in f4[:4]], 3 * 32 + 20, 11)
                for f4, F in zip(fr, (127, 138, 149, 160)): at(("post", F), f4[4])
            elif QT and p == 3:
                place(ops[:h] + [o for f4 in fr for o in f4[:4]], 8 * 32 + 3, 11)
                for f4, F in zip(fr, (272, 296, 320, 344)): at(("post", F), f4[4])
            elif QT and p == 4:
                place(ops, 11 * 32 + 20, 12)
            else:
                pos = (166, 174, 182, 189) if p == 1 else [F0 + 5 + 16 * i for i in range(4)]
                place(ops[:h], pos[0] - 4, 3)
                for f4, F in zip(fr, pos): place(f4, F - 1, 2)
        elif p == 0: place(ops, 3 * 32 + 20, 11)
        elif T == "Z2" and p == 1:
            place(ops + [lambda: g.e("s_nop 1")] + publish_ops(), F0, ZPUB)
            at(("post", F0 + ZPUB + ZA), arrive)
            at(("post", F0 + ZPUB + ZA + ZP), lambda: w0(lambda: flag_load(g, 14, 15, 100)))
            at(("post", min(191, F0 + ZPUB + ZA + ZP + ZC)), collect)
        else: place(ops, F0, 60)
    for F in range(8 if CHG else D): wread(F)
    rq = []
    for s in range(NST):
        if s == 1: diag_mark(g, 1)
        if s < 9 and PROF != 6: g.stamp(2 + s)
        if s == 2 * NS and NS < NP:
            cont = g.newlabel("cont")
            g.e(f"s_cmp_lt_u32 s42, {SHORT0}")
            g.e(f"s_cbranch_scc1 {cont}")
            sv = (list(g.vm), list(g.ds))
            final(NS - 1, True)
            g.vm, g.ds = sv
            g.label(cont)
        for f in range(32):
            F = s * 32 + f
            if PROF == 6 and F in PFL: g.stamp(2 + PFL.index(F))
            for fn in ev.pop(F, []): fn()
            post = ev.pop(("post", F), [])
            for h in range(2):
                if CHG:
                    i = (f & 3) * 2 + h
                    Fm, a = (F & ~3) + (i & 3), i >> 2
                else: Fm, a = F, h
                p, m, cb, mp = fmap(s, Fm & 31)
                if a == 0: g.wait_ds(("w", Fm))
                r = WR + (Fm % 8) * 4
                op = "MZ" if m == 0 else "M"
                if ktp(p): g.e(f"{op} {areg(p & 1, cb, a)},{r},{xreg(a, m)}")
                else: g.e(f"{op} {areg(p & 1, cb, a)},{xreg(a, m)},{r}")
                if CHG:
                    if rq: rq.pop(0)()
                    if a == 1: rq += [lambda Fm=Fm: wread(Fm + 8, 0), lambda Fm=Fm: wread(Fm + 8, 1)]
                else: wread(F + D, h)
                n = len(post) // 2 if h == 0 else len(post)
                for _ in range(n): post.pop(0)()
    assert not ev, ev.keys()
    final(NP - 1)
    g.label(f"L_k1_{T}_end")

def gen_k1(g):
    g.e(".p2align 8")
    g.e(f".type {KNAME},@function")
    g.label(KNAME)
    g.e("s_cmp_ge_u32 s2, 256")
    g.e("s_cbranch_scc1 L_k1_end")
    g.stamp(0)
    diag_mark(g, 0)
    if PROF: g.e("s_memrealtime s[94:95]")
    g.e("s_load_dwordx4 s[4:7], s[0:1], 0")
    g.e("s_load_dwordx4 s[8:11], s[0:1], 16")
    g.e("s_load_dwordx2 s[12:13], s[0:1], 32")
    g.e("s_load_dwordx2 s[14:15], s[0:1], 56")
    g.e("s_load_dwordx2 s[18:19], s[0:1], 96")
    g.e("s_load_dwordx2 s[16:17], s[0:1], 104")
    g.e("v_lshrrev_b32 v1, 6, v0")
    g.e("s_lshr_b32 s49, s2, 3")
    g.e("s_and_b32 s41, s2, 1")
    g.e("v_readfirstlane_b32 s40, v1")
    g.e("s_lshl_b32 s41, s41, 2")
    g.e("s_and_b32 s50, s49, 3")
    g.e("s_add_u32 s41, s41, s50")
    g.e("s_and_b32 s3, s2, 6")
    g.e("s_lshl_b32 s3, s3, 2")
    g.e("s_lshr_b32 s49, s49, 2")
    g.e("s_add_u32 s3, s3, s49")
    if BAL:
        g.e("s_and_b32 s50, s2, 1")
        g.e("s_or_b32 s51, s49, 1")
        g.e("s_sub_u32 s50, s51, s50")
        g.e("s_bfe_u32 s51, s2, 0x30003")
        g.e(f"s_cmp_ge_u32 s49, {4 if ZODD else 6}")
        g.e("s_cselect_b32 s49, s50, s49")
        g.e("s_cselect_b32 s41, s51, s41")
    if MIX:
        cst = [sum(v << (8 * i) for i, v in enumerate(row)) for row in GMAP]
        g.e("s_bitcmp1_b32 s2, 1")
        g.e(f"s_cselect_b32 s44, {cst[1] & 0xffffffff}, {cst[0] & 0xffffffff}") if False else None
        for k, (lo, hi) in enumerate(((44, 45), (46, 47))):
            g.e(f"s_mov_b32 s{lo}, {cst[2 * k] & 0xffffffff}")
            g.e(f"s_mov_b32 s{hi}, {cst[2 * k] >> 32}")
            g.e(f"s_cmov_b32 s{lo}, {cst[2 * k + 1] & 0xffffffff}")
            g.e(f"s_cmov_b32 s{hi}, {cst[2 * k + 1] >> 32}")
        g.e("s_bitcmp1_b32 s2, 2")
        g.e("s_cselect_b64 s[44:45], s[46:47], s[44:45]")
        g.e("s_lshl_b32 s49, s49, 3")
        g.e("s_lshr_b64 s[44:45], s[44:45], s49")
        g.e("s_and_b32 s3, s44, 31")
    g.e("s_waitcnt lgkmcnt(0)")
    g.e(f"s_add_u32 s100, s16, {WS_FL}")
    g.e("s_addc_u32 s101, s17, 0")
    if MERGE:
        sk = g.newlabel("nonce")
        g.e("s_or_b32 s49, s2, s40")
        g.e(f"s_cbranch_scc1 {sk}")
        g.e("s_memrealtime s[50:51]")
        g.e("v_mov_b32 v2, 20")
        g.e("s_waitcnt lgkmcnt(0)")
        g.e("s_or_b32 s49, s50, 1")
        g.e("v_mov_b32 v3, s49")
        g.e("s_mov_b64 exec, 1")
        g.e("global_store_dword v2, v3, s[18:19] sc1")
        g.e("s_mov_b64 exec, -1")
        g.label(sk)
    g.e(f"s_cmp_lt_u32 s3, {GKV}")
    g.e("s_cbranch_scc1 L_k1_K")
    g.e(f"s_cmp_lt_u32 s3, {2 * GKV}")
    g.e("s_cbranch_scc1 L_k1_V")
    g.e(f"s_cmp_lt_u32 s3, {2 * GKV + 3}")
    g.e("s_cbranch_scc1 L_k1_Z1")
    g.e("s_branch L_k1_Z2")
    g.label("L_k1_end")
    g.e("s_endpgm")
    for T in ("K", "V", "Z1", "Z2"):
        gen_type(g, T)
```

```python
from asmlib import *
import k1
from k1 import w_voffsets, tr_bases, xreg, areg, WR, D
import math

QSCALE = 128 ** -0.5 * math.log2(math.e)
STASH = 131072
DSP = int(os.environ.get('DSP', '3')); EB = int(os.environ.get('EB', '14'))
XPRE = int(os.environ.get('XPRE', '4'))
PS = int(os.environ.get('PS', '0'))
NTSP = os.environ.get('NTSP', '')
PF2 = int(os.environ.get('PF2', '0'))
KINS = int(os.environ.get('KINS', '0'))
NTAIL = int(os.environ.get('NTAIL', '0'))
STF2 = os.environ.get('STF2', 'sc1')
PFS = int(os.environ.get('PFS', '54'))
STFX = os.environ.get('STFX', 'sc1'); STFU = os.environ.get('STFU', 'sc1' if MERGE == 2 else '')
XSCH = eval(os.environ.get('XSCH', '(4, 8, 12, 16, 28, 34, 40, 46, 56, 62, 68, 74)'))
PF4 = int(os.environ.get('PF4', '1'))
SLA = int(os.environ.get('SLA', '8')); SLS = int(os.environ.get('SLS', '10'))
SPT = int(os.environ.get('SPT', '0'))
HOT = int(os.environ.get('HOT', '0'))
HACK = os.environ.get('HACK', '')
CH = int(os.environ.get('CH', '3'))
SF0 = int(os.environ.get('SF0', '1'))
SKIP = int(os.environ.get('SKIP', '1'))
NTWQ = os.environ.get('NTWQ', '')
NPART = 3
VF, VNEG, VL, VT, V16, VLT = 1, 3, 4, 6, 7, 8
NEGM, PR, TMP, OR, FR = 16, 24, 40, 128, 192
ML, FA, FB = 52, 56, 58
def sreg(kt, qb): return 72 + 16 * kt + 4 * qb
def preg(qb, kg): return PR + (qb * 2 + kg) * 4
def qreg(qb, mm): return 64 + 16 * mm + 4 * qb
def oreg(cb, qb): return OR + (cb * 2 + qb) * 4
def freg(j): return FR + j * 4
def kslot(j): return (j >> 1) + 8 * (j & 1) if CH & 2 else j

def merge_streams(main, fill, start=0):
    out = []
    n = len(main) - start
    acc = 0.0
    fill = list(fill)
    per = len(fill) / max(1, n)
    for i, m in enumerate(main):
        out.append(m)
        if i >= start:
            acc += per
            while fill and acc >= 0.999:
                out.append(fill.pop(0)); acc -= 1.0
    return out + fill

def dma4(g, so, first_m0=None, tag=None):
    ops = []
    for j in range(4):
        def op(j=j):
            if j == 0 and first_m0:
                g.e(first_m0); g.e("s_nop 0")
            g.vmem(f"buffer_load_dwordx4 v{V16}, s[28:31], s{so} offen offset:{j * 1024} {SC} lds", tag)
        ops.append(op)
    return ops

def next_ops(t):
    return [[f"s_and_b32 s19, s{t}, 3"], ["s_lshl_b32 s19, s19, 15"],
            ["s_xor_b32 s50, s19, 0x10000"], ["s_add_u32 s50, s50, s55"],
            [f"s_add_u32 s49, s{t}, 2"], ["s_lshl_b32 s51, s49, 14"], ["s_add_u32 s51, s51, s54"],
            ["s_cmp_lt_u32 s49, s48", "s_cselect_b32 s51, s51, s54"],
            [f"s_cmp_lt_u32 s{t}, s45", "s_cselect_b32 s49, s41, 0"],
            ["s_lshl_b32 s7, s49, 14"], ["s_add_u32 m0, s50, s7"], ["s_lshl_b32 s49, s49, 24"],
            ["s_add_u32 s7, s51, s49"], [f"s_add_u32 s51, s51, {16 * MB}"]]

def softmax_txt():
    out = []
    I = out.append
    T = [TMP + i for i in range(8)]
    for qb in range(2):
        for r in range(4): I(f"v_exp_f32 v{T[qb * 4 + r]}, v{sreg(0, qb) + r}")
    for qb in range(2): I(f"v_add_f32 v{VLT + qb}, v{T[qb * 4]}, v{T[qb * 4 + 1]}")
    for qb in range(2): I(f"PK {preg(qb, 0)},{T[qb * 4]},{T[qb * 4 + 1]}")
    for qb in range(2): I(f"v_add_f32 v{VLT + qb}, v{VLT + qb}, v{T[qb * 4 + 2]}")
    for qb in range(2): I(f"PK {preg(qb, 0) + 1},{T[qb * 4 + 2]},{T[qb * 4 + 3]}")
    for qb in range(2): I(f"v_add_f32 v{VLT + qb}, v{VLT + qb}, v{T[qb * 4 + 3]}")
    for kt in range(1, 4):
        for qb in range(2):
            s = sreg(kt, qb); t = T[qb * 4:qb * 4 + 4]
            for r in range(4): I(f"v_exp_f32 v{t[r]}, v{s + r}")
            p = preg(qb, kt >> 1) + (kt & 1) * 2
            I(f"v_add_f32 v{VLT + qb}, v{VLT + qb}, v{t[0]}")
            I(f"v_add_f32 v{VLT + qb}, v{VLT + qb}, v{t[1]}")
            I(f"PK {p},{t[0]},{t[1]}")
            I(f"v_add_f32 v{VLT + qb}, v{VLT + qb}, v{t[2]}")
            I(f"v_add_f32 v{VLT + qb}, v{VLT + qb}, v{t[3]}")
            I(f"PK {p + 1},{t[2]},{t[3]}")
    return out
def softmax_ops(g):
    return [lambda t=t: g.e(t) for t in softmax_txt()]

def xgroup(g, regs, op, tmp):
    for sw in ("v_permlane32_swap_b32", "v_permlane16_swap_b32"):
        for i, r in enumerate(regs): g.e(f"v_mov_b32 v{tmp + i}, v{r}")
        g.e("s_nop 1")
        for i, r in enumerate(regs): g.e(f"{sw} v{tmp + i}, v{r}")
        g.e("s_nop 1")
        for i, r in enumerate(regs): g.e(f"{op} v{r}, v{r}, v{tmp + i}")

def rescale(g, first):
    MX = [TMP + 8, TMP + 9]
    for qb in range(2):
        vals = [sreg(kt, qb) + r for kt in range(4) for r in range(4)]
        g.e(f"v_max3_f32 v{MX[qb]}, v{vals[0]}, v{vals[1]}, v{vals[2]}")
        for i in range(3, 15, 2): g.e(f"v_max3_f32 v{MX[qb]}, v{MX[qb]}, v{vals[i]}, v{vals[i + 1]}")
        g.e(f"v_max_f32 v{MX[qb]}, v{MX[qb]}, v{vals[15]}")
    xgroup(g, MX, "v_max_f32", TMP + 10)
    if not first:
        for qb in range(2): g.e(f"v_max_f32 v{MX[qb]}, 0, v{MX[qb]}")
    for kt in range(4):
        for qb in range(2):
            for r in range(4): g.e(f"v_sub_f32 v{sreg(kt, qb) + r}, v{sreg(kt, qb) + r}, v{MX[qb]}")
    for qb in range(2):
        for r in range(4): g.e(f"v_sub_f32 v{NEGM + qb * 4 + r}, v{NEGM + qb * 4 + r}, v{MX[qb]}")
    if not first:
        for qb in range(2): g.e(f"v_exp_f32 v{MX[qb]}, -v{MX[qb]}")
        g.e("s_nop 0")
        for cb in range(8):
            for qb in range(2):
                for r in range(4): g.e(f"v_mul_f32 v{oreg(cb, qb) + r}, v{oreg(cb, qb) + r}, v{MX[qb]}")
        for qb in range(2): g.e(f"v_mul_f32 v{VL + qb}, v{VL + qb}, v{MX[qb]}")

def mask_block(g):
    skip = g.newlabel("nomask"); l1 = g.newlabel("m1"); lf = g.newlabel("mf"); do = g.newlabel("domask")
    g.e("s_add_u32 s49, s52, 2")
    g.e("s_cmp_ge_u32 s49, s48")
    g.e(f"s_cbranch_scc1 {do}")
    g.e("s_sub_u32 s49, s52, s46")
    g.e("s_cmp_lt_u32 s49, 2")
    g.e(f"s_cbranch_scc0 {skip}")
    g.label(do)
    g.e("s_and_b32 s49, s52, 1")
    g.e("s_lshl_b32 s49, s49, 1")
    g.e("s_sub_u32 s49, s42, s49")
    def diag(kt, qb):
        for r in range(4): g.e(f"v_cndmask_b32 v{sreg(kt, qb) + r}, v{VNEG}, v{sreg(kt, qb) + r}, s[{8 + 2 * r}:{9 + 2 * r}]")
    def full(kt, qb):
        for r in range(4): g.e(f"v_mov_b32 v{sreg(kt, qb) + r}, v{VNEG}")
    g.e("s_cmp_ge_i32 s49, 2")
    g.e(f"s_cbranch_scc1 {skip}")
    g.e("s_cmp_eq_i32 s49, 1")
    g.e(f"s_cbranch_scc1 {l1}")
    g.e("s_cmp_lt_i32 s49, 0")
    g.e(f"s_cbranch_scc1 {lf}")
    diag(0, 0); full(1, 0); diag(1, 1); full(2, 0); full(2, 1); full(3, 0); full(3, 1)
    g.e(f"s_branch {skip}")
    g.label(l1)
    diag(2, 0); full(3, 0); diag(3, 1)
    g.e(f"s_branch {skip}")
    g.label(lf)
    for kt in range(4):
        for qb in range(2): full(kt, qb)
    g.label(skip)

def m_phase(g, has_pv, zero, split, post=None, pre=None):
    g.vm = []
    if has_pv: g.e("s_barrier")
    dma = dma4(g, 7) + (dma4(g, 51, "s_add_u32 m0, s50, 16384") if split else [])
    sal = [["s_add_u32 s49, s52, 2"], ["s_cmp_ge_u32 s49, s48", "s_cselect_b32 s4, 0, 4"], ["s_sub_u32 s49, s52, s46"], ["s_min_u32 s4, s4, s49"],
           ["s_cmp_lt_u32 s52, s53", "s_cselect_b32 s47, 1, 2"], ["s_add_u32 s47, s47, s52"]]
    sal2 = next_ops(47)
    rq = []
    if has_pv:
        g.ds = []
        sp = DSP if split else 4
        seq = [(kg, cb, qb) for cb in range(8) for qb in range(2) for kg in range(2)] if CH & 2 else [(j >> 3, j & 7, qb) for j in range(16) for qb in range(2)]
        lastuse = {kg * 8 + cb: i for i, (kg, cb, qb) in enumerate(seq)}
        for i, (kg, cb, qb) in enumerate(seq):
            g.e(f"{'MZ' if zero and kg == 0 else 'M'} {oreg(cb, qb)},{freg(kg * 8 + cb)},{preg(qb, kg)}")
            if rq and (i % 2 == 0): rq.pop(0)()
            for j in range(16):
                if lastuse[kslot(j)] == i: rq.append(lambda j=j: g.lds(f"DR {freg(kslot(j))},{VF},{j * 1024}", ("k", j)))
            if i % 2 == 1:
                if dma and (i >> 1) % sp == 0: dma.pop(0)()
                elif sal:
                    for t in sal.pop(0): g.e(t)
    else:
        sp = 2
    PT = int(os.environ.get('PT', '5'))
    if has_pv and not zero: g.stamp_if(7, 52, PT)
    tail = []
    assert NTAIL <= 8
    if has_pv: tail = [[o] for o in softmax_ops(g)[:NTAIL]]
    seq = [(kt, mm, qb) for kt in range(4) for qb in range(2) for mm in range(4)] if CH & 1 else [(j >> 2, j & 3, qb) for j in range(16) for qb in range(2)]
    lastuse = {kt * 4 + mm: i for i, (kt, mm, qb) in enumerate(seq)}
    for i, (kt, mm, qb) in enumerate(seq):
        j, odd = i >> 1, i & 1
        if i == 2 * EB:
            if pre: pre()
            if has_pv and not zero: g.stamp_if(8, 52, PT)
            if has_pv: g.e(f"s_waitcnt vmcnt({8 if split else 4})")
            g.e("s_setprio 2")
            g.e("s_barrier")
        if i == 0: g.wait_ds(("k", 9))
        if i == 12: g.wait_ds(("k", 15))
        f = freg(kslot(kt * 4 + mm))
        if mm == 0: g.e(f"MC {sreg(kt, qb)},{f},{qreg(qb, mm)},{NEGM + qb * 4}")
        else: g.e(f"M {sreg(kt, qb)},{f},{qreg(qb, mm)}")
        did = False
        if rq and (not odd or i >= 28): rq.pop(0)(); did = True
        for jj in range(16):
            if lastuse[jj] == i: rq.append(lambda sl=kslot(jj): g.lds(f"DR {freg(sl)},{VF},{16384 + sl * 1024}", "v"))
        if j >= EB and tail:
            for op in tail.pop(0): op()
        if not has_pv and j >= EB and dma: dma.pop(0)()
        elif has_pv and odd and dma and (j + 16) % sp == 0: dma.pop(0)()
        elif odd and sal:
            for t in sal.pop(0): g.e(t)
        elif not sal and not dma and sal2:
            for t in sal2.pop(0): g.e(t)
    while dma: dma.pop(0)()
    assert not sal
    if post: post()
    for grp in sal2:
        for t in grp: g.e(t)
    while rq: rq.pop(0)()
    g.e("s_setprio 0")
    for w in tail:
        for op in w: op()
    g.vm = []; g.ds = []
    if has_pv:
        g.e("s_cmp_lt_u32 s4, 4")
        g.e("s_cbranch_scc1 L_k2_sgen")
    elif SF0:
        g.e("s_cmp_lt_u32 s4, 4")
        g.e("s_cbranch_scc1 L_k2_sgen")
        for op in softmax_ops(g): op()
        g.e(f"v_max_f32 v{VT}, v{VLT}, v{VLT + 1}")
        g.e(f"v_min_f32 v{TMP}, v{VLT}, v{VLT + 1}")
        g.e(f"v_cmp_lt_f32 vcc, s56, v{VT}")
        g.e("s_cbranch_vccnz L_k2_sgen")
        g.e(f"v_cmp_gt_f32 vcc, s6, v{TMP}")
        g.e("s_cbranch_vccnz L_k2_sgen")
        for qb in range(2): g.e(f"v_mov_b32 v{VL + qb}, v{VLT + qb}")
        advance(g)
        g.e("s_waitcnt lgkmcnt(0)")
        g.e("s_branch L_k2_mzsh")
    else:
        g.e("s_branch L_k2_sgen")

def advance(g):
    g.e("s_mov_b32 s52, s47")
    g.e(f"v_add_u32 v{VF}, s19, v{V16}")

def role_ops(dh, dg, dx, dy, t1, t2):
    if BAL:
        ops = [f"s_lshr_b32 s{dg}, s2, 3", f"s_mul_i32 s{t1}, s{dg}, 43", f"s_lshr_b32 s{t1}, s{t1}, 7", f"s_mul_i32 s{t2}, s{t1}, 3",
               f"s_sub_u32 s{t2}, s{dg}, s{t2}", f"s_lshl_b32 s{t2}, s{t2}, 1", f"s_and_b32 s{dh}, s2, 1", f"s_add_u32 s{t2}, s{t2}, s{dh}",
               f"s_sub_u32 s{dh}, s{dg}, 24", f"s_cmp_ge_u32 s{dg}, 24", f"s_cselect_b32 s{t1}, s{dh}, s{t1}", f"s_cselect_b32 s{dg}, 6, s{t2}",
               f"s_and_b32 s{dh}, s2, 6", f"s_and_b32 s{t2}, s{t1}, 1", f"s_add_u32 s{dh}, s{dh}, s{t2}",
               f"s_lshr_b32 s{t1}, s{t1}, 1", f"s_lshl_b32 s{t1}, s{t1}, 3", f"s_add_u32 s{dh}, s{dh}, s{t1}"]
    else:
        ops = [f"s_lshr_b32 s{dg}, s2, 3", f"s_mul_i32 s{t1}, s{dg}, 37", f"s_lshr_b32 s{t1}, s{t1}, 8", f"s_mul_i32 s{t2}, s{t1}, 7",
               f"s_sub_u32 s{dg}, s{dg}, s{t2}", f"s_lshl_b32 s{t1}, s{t1}, 3", f"s_and_b32 s{dh}, s2, 7", f"s_add_u32 s{dh}, s{dh}, s{t1}"]
    return ops + [f"s_sub_u32 s{dx}, 15, s{dg}", f"s_xor_b32 s{dy}, s{dg}, {1 if BAL == 2 else 0}", f"s_add_u32 s{dy}, s{dy}, 4", f"s_cmp_eq_u32 s{dg}, 6",
            f"s_cselect_b32 s{dx}, 3, s{dx}", f"s_cselect_b32 s{dy}, 2, s{dy}"]

def gen_attn(g):
    def setup(fast):
        for t in role_ops(43, 44, 32, 33, 49, 50): g.e(t)
        g.e("s_lshr_b32 s41, s40, 2")
        g.e("s_and_b32 s42, s40, 3")
        g.e(f"s_and_b32 s49, s3, {6 if BAL else 7}")
        g.e("s_lshl_b32 s49, s49, 20")
        g.e("s_add_u32 s60, s6, s49")
        g.e("s_addc_u32 s61, s7, 0")
        g.e(f"s_mov_b32 s62, {2 * MB if BAL else MB}")
        g.e("s_mov_b32 s63, 0x20000")
        if fast: srd(g, 20, 8, 9, 512 * 8192)
        else: srd(g, 20, 4, 5, 512 * 8192)
        srd(g, 24, 16, 17, SZ_XN, WS_XN)
        srd(g, 28, 16, 17, 2 * SZ_KV, WS_K)
        srd(g, 36, 16, 17, SZ_CTX, WS_CTX)
        g.e("s_lshl_b32 s55, s42, 12")
        g.e("s_lshl_b32 s54, s43, 19")
        g.e("s_add_u32 s54, s54, s55")
        g.e("s_lshl_b32 s57, s42, 13")
        g.e(f"s_add_u32 s57, s57, {STASH}")
        g.e("v_and_b32 v28, 63, v0")
        g.e(f"v_lshlrev_b32 v{V16}, 4, v28")
        g.e("v_and_b32 v28, 15, v0")
        g.e("v_bfe_u32 v29, v0, 4, 2")
        g.e("v_lshlrev_b32 v29, 2, v29")
        g.e("v_sub_u32 v28, v28, v29")
        for r in range(4): g.e(f"v_cmp_le_i32 s[{8 + 2 * r}:{9 + 2 * r}], {r}, v28")
        if MERGE:
            g.e("s_mul_i32 s49, s43, 43")
            g.e("s_lshr_b32 s49, s49, 7")
            g.e("s_lshl_b32 s49, s49, 7")
            g.e("s_lshl_b32 s50, s3, 13")
            g.e("s_add_u32 s49, s49, s50")
            g.e("v_and_b32 v14, 15, v0")
            g.e("v_lshl_add_u32 v14, v14, 2, s49")
    def wdma(s):
        g.e(f"s_add_u32 s51, s18, {s * 128 * 8192}")
        g.e(f"s_add_u32 m0, s19, {s * 32768}")
        g.e("s_nop 0")
        for j in range(4):
            g.vmem(f"buffer_load_dwordx4 v{1 + j}, s[20:23], s51 offen offset:{j * 1024} {NTWQ} lds", ("w", s))
    def xload(m):
        if m % 4 == 0:
            g.e(f"s_add_u32 s6, s47, {m * 1024}")
            g.e(f"s_add_u32 s7, s47, {m * 1024 + 16384}")
        for a in range(2):
            x = xreg(a, m)
            g.vmem(f"buffer_load_dwordx4 v[{x}:{x + 3}], v{V16}, s[24:27], s{6 + a} offen offset:{(m % 4) * 1024} {SC}", ("x", m))
    def pf_prep():
        g.e("s_load_dwordx2 s[96:97], s[0:1], 40")
        g.e("s_load_dwordx2 s[34:35], s[0:1], 80")
        g.e("s_and_b32 s5, s2, 0xf8")
        g.e("s_add_u32 s5, s5, s40")
        if BAL:
            g.e("s_and_b32 s49, s2, 1")
            g.e("s_mul_i32 s49, s49, 192")
            g.e("s_add_u32 s5, s5, s49")
            g.e("s_lshr_b32 s4, s3, 1")
            g.e("s_mul_i32 s4, s4, 448")
        else: g.e("s_mul_i32 s4, s3, 224")
        g.e("s_add_u32 s4, s4, s5")
        g.e("s_cmp_eq_u32 s32, 1")
        g.e("s_cselect_b32 s49, 0x10000, 0")
        g.e(f"v_lshl_add_u32 v15, v{V16}, 3, s49")
        g.e("v_mov_b32 v13, 0x10000000")
        for v, n, sr in ((10, 4736, 5), (11, 2432, 4), (12, 512, 4)):
            g.e(f"v_cmp_gt_u32 vcc, {n}, v15")
            g.e(f"s_mul_i32 s49, s{sr}, {n}")
            g.e(f"v_add_u32 v{v}, s49, v15")
            g.e(f"v_cndmask_b32 v{v}, v13, v{v}, vcc")
    def pf_wsp():
        g.e(f"s_mov_b32 s98, {4 * MB}")
        g.e("s_mov_b32 s99, 0x20000")
        g.e("buffer_load_dword v13, v10, s[60:63], 0 offen")
        g.e("buffer_load_dword v13, v11, s[96:99], 0 offen")
        srd(g, 96, 34, 35, 896 * 1024)
        g.e("buffer_load_dword v13, v12, s[96:99], 0 offen")
    def first_tile(t):
        g.e("s_lshl_b32 s49, s41, 24")
        g.e("s_add_u32 s50, s54, s49")
        if t: g.e("s_add_u32 s50, s50, 16384")
        return dma4(g, 50, f"s_add_u32 m0, s19, {t * 32768}", "kv")
    def w0_only(fn):
        sk = g.newlabel("w0")
        g.e("s_cmp_eq_u32 s32, 1")
        g.e("s_cselect_b32 s49, 1, s40")
        g.e("s_cmp_lg_u32 s49, 0")
        g.e(f"s_cbranch_scc1 {sk}")
        fn()
        g.label(sk)
    def fmap(s, f):
        if k1.CHG: return (f >> 4, f & 3, (f >> 2) & 3)
        return (f >> 4, (f >> 2) & 3, f & 3) if s == 3 else ((f >> 2) & 1, f >> 3, f & 3)
    def qpack(p):
        ops = []
        I = lambda s: ops.append(lambda s=s: g.e(s))
        for a in range(2):
            for mm in range(2):
                x, y = areg(p, 2 * mm, a), areg(p, 2 * mm + 1, a)
                assert x == qreg(a, 2 * p + mm)
                for r in range(4): I(f"v_mul_f32 v{x + r}, s56, v{x + r}")
                for r in range(4): I(f"v_mul_f32 v{y + r}, s56, v{y + r}")
                I(f"PK {x},{x},{x + 1}"); I(f"PK {x + 1},{x + 2},{x + 3}")
                I(f"PK {x + 2},{y},{y + 1}"); I(f"PK {x + 3},{y + 2},{y + 3}")
        return ops
    def qphase(fast):
        if not fast: w_voffsets(g, 8192, 1)
        g.e("s_lshl_b32 s18, s43, 8")
        g.e("s_lshl_b32 s49, s42, 18")
        g.e("s_add_u32 s18, s18, s49")
        g.e("s_lshl_b32 s49, s41, 7")
        g.e("s_add_u32 s18, s18, s49")
        g.e("s_lshl_b32 s19, s40, 12")
        g.e("s_cmp_eq_u32 s41, 0")
        g.e("s_cselect_b32 s47, s32, s33")
        g.e("s_lshl_b32 s47, s47, 17")
        g.e("s_lshl_b32 s49, s42, 15")
        g.e("s_add_u32 s47, s47, s49")
        if PROF == 1: g.stamp(6)
        if not fast:
            wdma(0)
            for m in range(2): xload(m)
            if not MERGE: code_touch(g, 96, 14, "L_k2_sp")
            g.e("s_barrier")
            for m in range(2, 4): xload(m)
            later = {0: lambda: wdma(1), 22: lambda: wdma(2), 50: lambda: wdma(3)}
            for m, F in zip(range(4, 16), XSCH): later[F] = lambda m=m: xload(m)
            tr_bases(g, 5, 6)
            FS, FL = 0, 20
        else:
            later = {0: lambda: wdma(2), 30: lambda: wdma(3)}
            if k1.QTAIL:
                for m, F in zip(range(12, 16), (8, 16, 38, 52)): later[F] = lambda m=m: xload(m)
            else:
                for m, F in zip(range(8, 16), (4, 10, 16, 22, 36, 42, 52, 60)): later[F] = lambda m=m: xload(m)
            g.e("v_xor_b32 v5, 0x10000, v5")
            g.e("v_xor_b32 v6, 0x10000, v6")
            g.e("v_mov_b32 v13, 0")
            FS, FL = 1, 46
        g.e(f"s_mov_b32 s56, {f32(QSCALE)}")
        g.e("s_lshl_b32 s48, s32, 1")
        g.e("s_add_u32 s48, s48, 2")
        if 'a' in HACK:
            g.e("s_cmp_ge_u32 s32, 10")
            g.e("s_cselect_b32 s49, 2, 0")
            g.e("s_sub_u32 s33, s33, s49")
            g.e("s_lshr_b32 s49, s49, 1")
            g.e("s_add_u32 s33, s33, s49")
        g.e("s_lshl_b32 s45, s33, 1")
        g.e("s_add_u32 s45, s45, 2")
        g.e("s_sub_u32 s53, s45, s41")
        g.e("s_sub_u32 s46, s45, 2")
        g.e("s_cmp_eq_u32 s41, 0")
        g.e("s_cselect_b32 s46, 0x1000, s46")
        g.stamp(1)
        if MERGE: later[FL] = lambda: w0_only(lambda: flag_load(g, 13, 14, 100))
        def wread(F, half=None):
            s, f = F >> 5, F & 31
            if s >= 4: return
            if f == 0 and half != 1:
                g.wait_vm(("w", s), "kv", *(["st"] if s == FS else []))
                if MERGE and s == 2: w0_only(lambda: flag_wait(g, 13, 14, 59, 100, SLA, True))
                g.e("s_barrier")
                if MERGE and s == FS: w0_only(lambda: flag_set(g, 10, 58, 59, 100))
                if s == 2:
                    g.e("v_xor_b32 v5, 0x10000, v5")
                    g.e("v_xor_b32 v6, 0x10000, v6")
                if s >= 2:
                    for op in first_tile(s - 2): op()
            p, ks, cb = fmap(s, f)
            mp = p * 4 + ks
            r = WR + (F % 8) * 4
            for a in (range(2) if half is None else [half]):
                o = (s & 1) * 32768 + mp * 4096 + a * 512 + (cb >> 1) * 256
                g.lds(f"TR {r + 2 * a},{6 if cb & 1 else 5},{o}", ("w", F))
        CHG = k1.CHG
        for F in range(8 if CHG else D): wread(F)
        fill = []; rq = []
        for s in range(4):
            if PROF == 1: g.stamp(7 + s)
            for f in range(32):
                F = s * 32 + f
                if F == 116: fill = qpack(0)
                for h in range(2):
                    if CHG:
                        i = (f & 3) * 2 + h
                        Fm, a = (F & ~3) + (i & 3), i >> 2
                    else: Fm, a = F, h
                    p, ks, cb = fmap(s, Fm & 31)
                    m = s * 4 + ks
                    if p == 0 and cb == 0 and a == 0: g.wait_vm(("x", m))
                    if a == 0: g.wait_ds(("w", Fm))
                    r = WR + (Fm % 8) * 4
                    g.e(f"{'MZ' if m == 0 else 'M'} {areg(p, cb, a)},{r},{xreg(a, m)}")
                    if CHG:
                        if rq: rq.pop(0)()
                        if a == 1: rq += [lambda Fm=Fm: wread(Fm + 8, 0), lambda Fm=Fm: wread(Fm + 8, 1)]
                    else: wread(F + D, h)
                    if fill: fill.pop(0)(); fill.pop(0)()
                if F in later: later.pop(F)()
        assert not fill and not later
    if k1.QFAST:
        g.label("L_p2f")
        g.stamp(0)
        if PROF: g.e("s_memrealtime s[94:95]")
        g.vm = list(k1.FAST_VM); g.ds = []
        g.e("s_and_b32 s3, s2, 7")
        setup(True)
        qphase(True)
        g.e("s_branch L_k2_qend")
    g.vm = []; g.ds = []
    g.label("L_k2_attn")
    setup(False)
    if MERGE: g.e("s_barrier")
    g.label("L_k2_round")
    qphase(False)
    g.label("L_k2_qend")
    g.stamp(2)
    g.e("s_mov_b32 s47, 0")
    for grp in next_ops(47):
        for t in grp: g.e(t)
    advance(g)
    g.vm = []; g.ds = []
    for j in range(16): g.e(f"DR {freg(kslot(j))},{VF},{j * 1024}")
    for op in qpack(1): op()
    g.e(f"v_mov_b32 v{VNEG}, {f32(-1e30)}")
    g.e(f"s_mov_b32 s56, {f32(2.0 ** 60)}")
    g.e(f"s_mov_b32 s6, {f32(2.0 ** -60)}")
    for i in range(8): g.e(f"v_mov_b32 v{NEGM + i}, 0")
    g.e(f"v_add_u32 v9, s57, v{V16}")
    if PFS: pf_prep()
    g.e("s_waitcnt vmcnt(0) lgkmcnt(0)")
    g.stamp(3)
    la = g.newlabel("qa")
    g.e("s_cmp_eq_u32 s41, 0")
    g.e(f"s_cbranch_scc1 {la}")
    g.e("s_barrier")
    g.label(la)
    def post0():
        if PFS: pf_wsp()
    def pre0():
        sk = g.newlabel("nost")
        g.e("s_cmp_eq_u32 s41, 0")
        g.e(f"s_cbranch_scc0 {sk}")
        for qb in range(2):
            for mm in range(4): g.e(f"DW 9,{qreg(qb, mm)},{(qb * 4 + mm) * 1024}")
        g.label(sk)
    m_phase(g, False, False, False, post0, pre0)
    def s_fast(tag):
        g.label(f"L_k2_s{tag}")
        PT = int(os.environ.get('PT', '5'))
        g.stamp_if(9, 52, PT)
        for op in softmax_ops(g)[NTAIL:]: op()
        g.e(f"v_max_f32 v{VT}, v{VLT}, v{VLT + 1}")
        g.e(f"v_cmp_lt_f32 vcc, s56, v{VT}")
        g.e("s_cbranch_vccnz L_k2_sgen")
        for qb in range(2): g.e(f"v_add_f32 v{VL + qb}, v{VL + qb}, v{VLT + qb}")
        g.stamp_if(10, 52, PT)
        if PROF == 2:
            g.e("s_waitcnt vmcnt(0) lgkmcnt(0)")
            g.stamp_if(11, 52, PT)
        advance(g)
        if tag == "sh": g.e("s_cmp_lt_u32 s52, s45")
        g.e("s_waitcnt lgkmcnt(0)" if tag == "sh" else "s_waitcnt vmcnt(0) lgkmcnt(0)")
    s_fast("sh")
    g.e("s_cbranch_scc0 L_k2_msp")
    def mcheck(tag):
        if not SKIP: return
        g.e("s_sub_u32 s49, s52, s46")
        g.e("s_cmp_lt_u32 s49, 4")
        g.e("s_cbranch_scc1 L_k2_mdisp")
        if tag == "sp":
            g.e("s_add_u32 s49, s52, 2")
            g.e("s_cmp_ge_u32 s49, s48")
            g.e("s_cbranch_scc1 L_k2_mdisp")
        g.label(f"L_k2_m{tag}2")
    g.label("L_k2_msh")
    mcheck("sh")
    g.stamp_if(6, 52, int(os.environ.get('PT', '5'))); g.stamp_if(12, 52, int(os.environ.get('PT', '5')) + 1)
    m_phase(g, True, False, False)
    g.e("s_branch L_k2_ssh")
    s_fast("sp")
    g.label("L_k2_msp")
    mcheck("sp")
    m_phase(g, True, False, True)
    g.e("s_branch L_k2_ssp")
    g.label("L_k2_mzsh")
    m_phase(g, True, True, False)
    g.e("s_branch L_k2_ssh")
    g.label("L_k2_mzsp")
    m_phase(g, True, True, True)
    g.e("s_branch L_k2_ssp")
    if SKIP:
        g.label("L_k2_mdisp")
        def level(dst, par):
            g.e(f"s_lshl_b32 s{dst}, s{par}, 1")
            g.e(f"s_add_u32 s{dst}, s{dst}, 1")
            g.e(f"s_sub_u32 s{dst}, s{dst}, s42")
            g.e(f"s_max_i32 s{dst}, s{dst}, 0")
            g.e(f"s_min_i32 s{dst}, s{dst}, 2")
        g.e("s_and_b32 s49, s52, 1")
        level(4, 49)
        g.e("s_sub_u32 s49, s52, s46")
        g.e("s_add_u32 s5, s52, 2")
        g.e("s_cmp_ge_u32 s5, s48")
        g.e("s_cselect_b32 s5, 0, s49")
        g.e("s_cmp_lt_u32 s5, 2")
        g.e("s_cselect_b32 s4, s4, 0")
        g.e("s_lshr_b32 s18, s49, 1")
        level(5, 18)
        g.e("s_or_b32 s49, s49, 2")
        g.e("s_cmp_eq_u32 s49, 3")
        g.e("s_cselect_b32 s5, s5, 0")
        g.e("s_or_b32 s49, s4, s5")
        g.e("s_cbranch_scc1 L_k2_mx")
        g.e("s_cmp_lt_u32 s52, s45")
        g.e("s_cbranch_scc1 L_k2_msh2")
        g.e("s_branch L_k2_msp2")
        g.label("L_k2_mx")
        def cond(sreg_, lim, fn):
            l = g.newlabel("sk")
            g.e(f"s_cmp_gt_u32 s{sreg_}, {lim}")
            g.e(f"s_cbranch_scc1 {l}")
            fn()
            g.label(l)
        def pvb(kg):
            for cb in range(8):
                for qb in range(2): g.e(f"M {oreg(cb, qb)},{freg(kg * 8 + cb)},{preg(qb, kg)}")
        def rd(h, base):
            for j in range(8 * h, 8 * h + 8): g.e(f"DR {freg(j)},{VF},{base + j * 1024}")
        def qkb(h):
            for kt in (2 * h, 2 * h + 1):
                for qb in range(2):
                    for mm in range(4):
                        if mm == 0: g.e(f"MC {sreg(kt, qb)},{freg(kt * 4)},{qreg(qb, 0)},{NEGM + qb * 4}")
                        else: g.e(f"M {sreg(kt, qb)},{freg(kt * 4 + mm)},{qreg(qb, mm)}")
        g.e("s_barrier")
        cond(5, 1, lambda: pvb(0))
        cond(4, 1, lambda: rd(0, 0))
        for op in dma4(g, 7): op()
        cond(5, 0, lambda: pvb(1))
        cond(4, 0, lambda: rd(1, 0))
        lsh = g.newlabel("sh"); lj = g.newlabel("j")
        g.e("s_cmp_lt_u32 s52, s45")
        g.e(f"s_cbranch_scc1 {lsh}")
        for op in dma4(g, 51, "s_add_u32 m0, s50, 16384"): op()
        g.e("s_waitcnt vmcnt(8)")
        g.e(f"s_branch {lj}")
        g.label(lsh)
        g.e("s_waitcnt vmcnt(4)")
        g.label(lj)
        g.e("s_cmp_lt_u32 s52, s53")
        g.e("s_cselect_b32 s47, 1, 2")
        g.e("s_add_u32 s47, s47, s52")
        for grp in next_ops(47):
            for t in grp: g.e(t)
        g.e("s_waitcnt lgkmcnt(0)")
        cond(4, 1, lambda: (qkb(0), rd(0, 16384)))
        cond(4, 0, lambda: (qkb(1), rd(1, 16384)))
        g.e("s_barrier")
        g.e("s_nop 4")
        g.e("s_branch L_k2_sgen")
        g.vm = []; g.ds = []
    EXP = os.environ.get('ATEXP', '')
    if EXP:
        i0 = g.lines.index("L_k2_ssh:")
        keep = []
        for l in g.lines[i0:]:
            if 'd' in EXP and l.startswith('buffer_load'): continue
            if 'r' in EXP and l.startswith('DR '): continue
            if 'e' in EXP and l.startswith('v_exp'): l = l.replace('v_exp_f32', 'v_mov_b32')
            if 'v' in EXP and (l.startswith('v_exp') or l.startswith('PK') or (l.startswith('v_add_f32 v8') or l.startswith('v_add_f32 v9'))): continue
            if 'b' in EXP and l.startswith('s_cbranch_vccnz'): continue
            keep.append(l)
        g.lines[i0:] = keep
    def ctx_base(blk):
        g.e(f"s_lshl_b32 s49, s{blk}, 3")
        g.e("s_lshl_b32 s35, s42, 1")
        g.e("s_add_u32 s49, s49, s35")
        g.e("s_mul_i32 s49, s49, 159744")
        g.e("s_lshl_b32 s35, s43, 12")
        g.e("s_add_u32 s34, s49, s35")
        g.e("s_add_u32 s35, s34, 159744")
    def pack_store(mm, qb, fl=STF2):
        x, y = oreg(2 * mm, qb), oreg(2 * mm + 1, qb)
        return [f"PK {x},{x},{x + 1}", f"PK {x + 1},{x + 2},{x + 3}", f"PK {x + 2},{y},{y + 1}", f"PK {x + 3},{y + 2},{y + 3}",
                f"buffer_store_dwordx4 v[{x}:{x + 3}], v{V16}, s[36:39], s{34 + qb} offen offset:{mm * 1024} {fl}"]
    g.label("L_k2_sgen")
    def st5(i, val):
        if PROF == 5:
            l = g.newlabel("st"); g.e(f"s_cmp_lg_u32 s52, {val}"); g.e(f"s_cbranch_scc1 {l}"); g.stamp(i); g.label(l)
    st5(4, 0); st5(7, 8); st5(9, 9); st5(11, 11)
    if PROF == 5: g.stamp(13)
    g.e("s_sub_u32 s49, s52, s46")
    g.e("s_cmp_eq_u32 s49, 3")
    g.e("s_cselect_b32 s5, 2, 0")
    g.e("s_cmp_eq_u32 s52, 0")
    g.e("s_cselect_b32 s5, 1, s5")
    g.e("s_cselect_b32 s18, s6, 0")
    g.e("s_cmp_eq_u32 s5, 2")
    g.e("s_cselect_b32 s18, s6, s18")
    mask_block(g)
    ny = g.newlabel("ny"); jy = g.newlabel("jy")
    g.e("s_cmp_eq_u32 s5, 2")
    g.e(f"s_cbranch_scc0 {ny}")
    ctx_base(33)
    so = softmax_ops(g)
    k = 0
    for mm in range(4):
        for qb in range(2):
            for cb in (2 * mm, 2 * mm + 1):
                for r in range(4): g.e(f"v_mul_f32 v{oreg(cb, qb) + r}, v{oreg(cb, qb) + r}, v{FA + qb}")
            for t in pack_store(mm, qb): g.e(t)
            n = 9 if k < 2 else 10
            for op in so[:n]: op()
            so = so[n:]; k += 1
    assert not so
    g.e(f"s_branch {jy}")
    g.label(ny)
    for op in softmax_ops(g): op()
    g.label(jy)
    g.e(f"v_max_f32 v{VT}, v{VLT}, v{VLT + 1}")
    g.e(f"v_min_f32 v{TMP}, v{VLT}, v{VLT + 1}")
    g.e(f"v_cmp_lt_f32 vcc, s56, v{VT}")
    g.e("s_cbranch_vccnz L_k2_slow")
    g.e(f"v_cmp_gt_f32 vcc, s18, v{TMP}")
    g.e("s_cbranch_vccnz L_k2_slow")
    g.label("L_k2_back")
    nf = g.newlabel("nf")
    g.e("s_cmp_eq_u32 s5, 0")
    g.e(f"s_cbranch_scc1 {nf}")
    for qb in range(2): g.e(f"v_mov_b32 v{VL + qb}, 0")
    g.label(nf)
    for qb in range(2): g.e(f"v_add_f32 v{VL + qb}, v{VL + qb}, v{VLT + qb}")
    g.e("s_add_u32 s49, s52, 2")
    g.e("s_cmp_ge_u32 s49, s48")
    g.e("s_cbranch_scc1 L_k2_xlast")
    nl = g.newlabel("nyl")
    g.e("s_sub_u32 s49, s52, s46")
    g.e("s_cmp_eq_u32 s49, 1")
    g.e(f"s_cbranch_scc0 {nl}")
    g.e(f"v_add_u32 v10, s57, v{V16}")
    for qb in range(2):
        for mm in range(4): g.e(f"DR {qreg(qb, mm)},10,{(qb * 4 + mm) * 1024}")
    xgroup(g, [VL, VL + 1], "v_add_f32", TMP + 2)
    for qb in range(2): g.e(f"v_rcp_f32 v{FA + qb}, v{VL + qb}")
    for i in range(8): g.e(f"v_mov_b32 v{NEGM + i}, 0")
    g.label(nl)
    st5(6, 0); st5(8, 8); st5(10, 9); st5(12, 11)
    advance(g)
    g.e("s_cmp_lt_u32 s52, s45")
    g.e("s_cselect_b32 s49, 0, 4")
    g.e("s_add_u32 s5, s5, s49")
    w8 = g.newlabel("w8")
    g.e("s_and_b32 s49, s5, 3")
    g.e(f"s_cbranch_scc1 {w8}")
    g.e("s_waitcnt vmcnt(0)")
    g.label(w8)
    g.e("s_waitcnt vmcnt(8) lgkmcnt(0)")
    g.e("s_cmp_eq_u32 s5, 0")
    g.e("s_cbranch_scc1 L_k2_msh")
    g.e("s_cmp_eq_u32 s5, 4")
    g.e("s_cbranch_scc1 L_k2_msp")
    g.e("s_cmp_eq_u32 s5, 1")
    g.e("s_cbranch_scc1 L_k2_mzsh")
    g.e("s_branch L_k2_mzsp")
    g.label("L_k2_xlast")
    if PROF == 5: g.stamp(14)
    g.e("s_and_b32 s49, s48, 3")
    g.e("s_lshl_b32 s49, s49, 15")
    g.e("s_lshl_b32 s50, s42, 13")
    g.e("s_add_u32 s50, s50, s49")
    g.e(f"v_add_u32 v11, s50, v{V16}")
    g.e(f"v_add_u32 v10, s57, v{V16}")
    g.e("s_xor_b32 s49, s49, 0x10000")
    g.e("s_lshl_b32 s50, s42, 10")
    g.e("s_add_u32 s49, s49, s50")
    g.e(f"v_add_u32 v{VT}, s49, v{V16}")
    xaddr = lambda i: (10 + (i >> 3), (i & 7) * 1024)
    def pvgroup(cb, zero, mid=()):
        mid = list(mid)
        for kg in range(2):
            for qb in range(2):
                g.e(f"{'MZ' if zero and kg == 0 else 'M'} {oreg(cb, qb)},{freg(kg * 8 + cb)},{preg(qb, kg)}")
                n = -(-len(mid) // (4 - (kg * 2 + qb)))
                for _ in range(n): mid.pop(0)()
    g.e("s_cmp_eq_u32 s41, 0")
    g.e("s_cbranch_scc0 L_k2_xlastB")
    g.e(f"v_mov_b32 v{ML}, v{NEGM}")
    g.e(f"v_mov_b32 v{ML + 1}, v{NEGM + 4}")
    g.e(f"v_mov_b32 v{ML + 2}, v{VL}")
    g.e(f"v_mov_b32 v{ML + 3}, v{VL + 1}")
    g.e(f"DW {VT},{ML},0")
    g.e("s_waitcnt vmcnt(0) lgkmcnt(0)")
    g.e("s_barrier")
    dw = lambda i: (lambda: g.e(f"DW {xaddr(i)[0]},{OR + i * 4},{xaddr(i)[1]}"))
    for cb in range(8):
        pvgroup(cb, False, [dw(2 * cb - 6), dw(2 * cb - 5)] if cb >= 3 else [])
    for i in range(10, 12): dw(i)()
    g.e("s_nop 3")
    for i in range(12, 16): dw(i)()
    g.e("s_waitcnt lgkmcnt(0)")
    g.e("s_barrier")
    g.e("s_branch L_k2_rend")
    g.label("L_k2_xlastB")
    g.e(f"DR {ML},{VT},0")
    ctx_base(32)
    NM = TMP
    g.e("s_waitcnt lgkmcnt(0)")
    for qb in range(2): g.e(f"v_min_f32 v{NM + qb}, v{ML + qb}, v{NEGM + 4 * qb}")
    for qb in range(2): g.e(f"v_sub_f32 v{FA + qb}, v{NM + qb}, v{ML + qb}")
    for qb in range(2): g.e(f"v_sub_f32 v{FB + qb}, v{NM + qb}, v{NEGM + 4 * qb}")
    for i in range(4): g.e(f"v_exp_f32 v{FA + i}, v{FA + i}")
    g.e("s_nop 0")
    for qb in range(2): g.e(f"v_mul_f32 v{VL + qb}, v{VL + qb}, v{FB + qb}")
    for qb in range(2): g.e(f"v_fmac_f32 v{VL + qb}, v{ML + 2 + qb}, v{FA + qb}")
    xgroup(g, [VL, VL + 1], "v_add_f32", TMP + 2)
    for qb in range(2): g.e(f"v_rcp_f32 v{VL + qb}, v{VL + qb}")
    g.e("s_nop 0")
    for qb in range(2): g.e(f"v_mul_f32 v{FA + qb}, v{FA + qb}, v{VL + qb}")
    for qb in range(2): g.e(f"v_mul_f32 v{FB + qb}, v{FB + qb}, v{VL + qb}")
    lz = g.newlabel("finz")
    g.e("s_cmp_eq_u32 s5, 0")
    g.e(f"s_cbranch_scc0 {lz}")
    for zero in (False, True):
        if zero: g.label(lz)
        g.ds = []
        for cb in range(4): pvgroup(cb, zero)
        g.e("s_barrier")
        def merge_ops(mm):
            ops = []
            I = lambda t: ops.append(lambda t=t: g.e(t))
            for qb in range(2):
                for cb in (2 * mm, 2 * mm + 1):
                    o = oreg(cb, qb)
                    for r in range(4): I(f"v_mul_f32 v{o + r}, v{o + r}, v{FB + qb}")
                    ops.append(lambda cb=cb, qb=qb: g.wait_ds(("o", cb, qb)))
                    for r in range(4): I(f"v_fmac_f32 v{o + r}, v{freg(qb * 8 + cb) + r}, v{FA + qb}")
                for t in pack_store(mm, qb, STFX): I(t)
            return ops
        xr = lambda cb, qb: (lambda: g.lds(f"DR {freg(qb * 8 + cb)},{xaddr(cb * 2 + qb)[0]},{xaddr(cb * 2 + qb)[1]}", ("o", cb, qb)))
        for cb in range(3): xr(cb, 0)(); xr(cb, 1)()
        m0 = merge_ops(0)
        for cb in range(4, 8):
            mid = [xr(cb - 1, 0), xr(cb - 1, 1)]
            if cb == 6: mid += m0[:len(m0) // 2]
            if cb == 7: mid += m0[len(m0) // 2:]
            pvgroup(cb, zero, mid)
        xr(7, 0)(); xr(7, 1)()
        for op in merge_ops(1) + merge_ops(2) + merge_ops(3): op()
        if not zero: g.e("s_branch L_k2_rend")
    g.label("L_k2_rend")
    g.stamp(5)
    g.e("s_cmp_eq_u32 s32, 3")
    g.e("s_cbranch_scc0 L_k2_aend")
    g.stamp(4)
    g.e("s_mov_b32 s32, 1")
    g.e("s_mov_b32 s33, 0")
    g.e("s_waitcnt vmcnt(0) lgkmcnt(0)")
    g.e("s_barrier")
    g.e("s_branch L_k2_round")
    g.label("L_k2_aend")
    skc = g.newlabel("nocode")
    g.e("s_cmp_eq_u32 s44, 6")
    g.e(f"s_cbranch_scc0 {skc}")
    code_touch(g, 96, 14, "L_all_end", "L_p3", False)
    if HOT:
        g.e("s_load_dwordx2 s[96:97], s[0:1], 40")
        g.e("s_and_b32 s49, s43, 0x1e")
        g.e("s_add_u32 s49, s49, s41")
        g.e("s_lshl_b32 s49, s49, 17")
        g.e("s_lshl_b32 s50, s42, 15")
        g.e("s_add_u32 s49, s49, s50")
        g.e("v_and_b32 v12, 31, v0")
        g.e("v_lshlrev_b32 v12, 10, v12")
        g.e("v_bfe_u32 v13, v0, 5, 1")
        g.e("v_lshl_add_u32 v12, v13, 9, v12")
        g.e("s_waitcnt lgkmcnt(0)")
        g.e(f"s_mov_b32 s98, {4 * MB}")
        g.e("s_mov_b32 s99, 0x20000")
        g.e("buffer_load_dword v13, v12, s[96:99], s49 offen offset:384")
        if HOT > 1: g.e("buffer_load_dword v13, v12, s[96:99], s49 offen offset:256")
    g.label(skc)
    if PF2:
        sk = g.newlabel("nopf")
        g.e("s_cmp_eq_u32 s44, 6")
        g.e(f"s_cbranch_scc0 {sk}")
        g.e("s_cmp_eq_u32 s41, 1")
        g.e(f"s_cbranch_scc0 {sk}")
        g.e("s_load_dwordx2 s[20:21], s[0:1], 40")
        g.e("s_load_dwordx2 s[28:29], s[0:1], 80")
        g.e("s_lshl_b32 s49, s43, 2")
        g.e("s_add_u32 s49, s49, s42")
        g.e(f"v_lshlrev_b32 v10, 3, v{V16}")
        g.e("s_lshl_b32 s50, s49, 15")
        g.e("s_mul_i32 s51, s49, 7168")
        g.e("s_waitcnt lgkmcnt(0)")
        g.e(f"s_mov_b32 s22, {4 * MB}")
        g.e("s_mov_b32 s23, 0x20000")
        g.e(f"s_mov_b32 s30, {896 * 1024}")
        g.e("s_mov_b32 s31, 0x20000")
        for i in range(4):
            g.e(f"buffer_load_dword v{12 + i}, v10, s[20:23], s50 offen")
            g.e("s_add_u32 s50, s50, 8192")
        g.e("buffer_load_dword v11, v10, s[28:31], s51 offen")
        g.label(sk)
    g.stamp_dump(16, 17, 40, 1)
    if MERGE == 2:
        g.e("s_lshl_b32 s58, s44, 2")
        g.e("s_bfe_u32 s49, s43, 0x20001")
        g.e("s_add_u32 s58, s58, s49")
        g.e("s_add_u32 s58, s58, 21")
        g.e("s_lshl_b32 s58, s58, 7")
        g.e("s_lshr_b32 s49, s43, 3")
        g.e("s_lshl_b32 s49, s49, 3")
        g.e("s_add_u32 s58, s58, s49")
        g.e("s_and_b32 s49, s43, 1")
        g.e("s_lshl_b32 s49, s49, 2")
        g.e("s_add_u32 s58, s58, s49")
        g.e("s_branch L_p3")
    else: g.e("s_endpgm")
    g.label("L_k2_slow")
    l1 = g.newlabel("slow1"); l2 = g.newlabel("slow2")
    g.e("s_cmp_eq_u32 s5, 0")
    g.e(f"s_cbranch_scc0 {l1}")
    rescale(g, False)
    g.e(f"s_branch {l2}")
    g.label(l1)
    rescale(g, True)
    g.label(l2)
    for op in softmax_ops(g): op()
    g.e("s_branch L_k2_back")

def gen_spatial(g):
    ACC, AR, BB, Z1R = 144, 116, 84, 24
    ZB, ZS = 98304, 14336
    VWD = 80
    acc = lambda fb, tt: ACC + (fb * 4 + tt) * 4
    g.vm = []; g.ds = []
    g.label("L_k2_sp")
    g.e("s_lshl_b32 s57, s3, 13")
    g.e("s_and_b32 s44, s41, 3")
    if BAL:
        g.e("s_bfe_u32 s49, s41, 0x10002")
        g.e("s_add_u32 s3, s3, s49")
    g.e("s_and_b32 s42, s40, 3")
    g.e("s_lshr_b32 s41, s40, 2")
    srd(g, 20, 6, 7, 2048 * 4096)
    srd(g, 24, 16, 17, SZ_Z, WS_Z2)
    g.e("v_and_b32 v28, 63, v0")
    g.e(f"v_lshlrev_b32 v{V16}, 4, v28")
    g.e("v_bfe_u32 v28, v0, 3, 3")
    g.e("v_and_b32 v29, 7, v0")
    g.e("v_lshrrev_b32 v30, 1, v28")
    g.e("v_xor_b32 v29, v29, v30")
    g.e("s_lshl_b32 s49, s3, 8")
    g.e("s_lshl_b32 s50, s40, 5")
    g.e("s_add_u32 s49, s49, s50")
    g.e("v_add_u32 v28, s49, v28")
    g.e("v_lshlrev_b32 v28, 12, v28")
    g.e("v_xor_b32 v30, 4, v29")
    g.e("v_lshl_add_u32 v29, v29, 4, v28")
    g.e("v_lshl_add_u32 v30, v30, 4, v28")
    for j in range(4): g.e(f"v_add_u32 v{VWD + j}, {j * 8 * 4096 - j * 1024}, v{29 + (j & 1)}")
    g.e("s_lshl_b32 s48, s40, 1")
    g.e("s_min_u32 s48, s48, 12")
    g.e("s_mul_i32 s49, s44, 14")
    g.e("s_add_u32 s49, s49, s48")
    g.e("s_lshl_b32 s43, s49, 10")
    g.e("s_mov_b32 s45, 0")
    g.e("s_lshl_b32 s46, s40, 12")
    g.e("s_lshl_b32 s47, s48, 10")
    g.e(f"s_add_u32 s47, s47, {ZB}")
    def wop(b, j):
        if j % 2 == 0:
            g.e(f"s_add_u32 m0, s46, {(b % 3) * 32768}")
            g.e("s_nop 0")
        g.vmem(f"buffer_load_dwordx4 v{VWD + j}, s[20:23], s45 offen offset:{j * 1024} {NTSP} lds", ("w", 2 * b))
        if j == 3: g.e("s_add_u32 s45, s45, 128")
    def zop(st, j):
        if j == 0:
            g.e(f"s_add_u32 m0, s47, {(st % 4) * ZS}")
            g.e("s_nop 0")
        g.vmem(f"buffer_load_dwordx4 v{V16}, s[24:27], s43 offen offset:{j * 1024} {SC} lds", ("z", st))
        if j == 1: g.e("s_add_u32 s43, s43, 57344")
    def dma_ops(st):
        b, h = st // 2 + 2, st & 1
        return [lambda: zop(st + 3, 0), lambda: zop(st + 3, 1), lambda: wop(b, 2 * h), lambda: wop(b, 2 * h + 1)]
    if MERGE:
        g.e("s_waitcnt vmcnt(0)")
        g.e("s_barrier")
        nw = g.newlabel("nw"); nw2 = g.newlabel("nw")
        g.e("s_cmp_lg_u32 s40, 0")
        g.e(f"s_cbranch_scc1 {nw}")
        if k1.STKV == '':
            g.e("buffer_wbl2 sc1")
            g.e("s_waitcnt vmcnt(0)")
        flag_set(g, 10, 58, 59, 100)
        g.e("v_min_u32 v14, 55, v0")
        g.e("v_and_b32 v15, 7, v14")
        g.e("v_lshrrev_b32 v14, 3, v14")
        g.e("v_lshlrev_b32 v14, 7, v14")
        g.e("v_lshl_add_u32 v14, v15, 2, v14")
        g.e(f"s_add_u32 s49, s57, {14 * 128 + 32}")
        g.e("v_add_u32 v14, s49, v14")
        flag_load(g, 12, 14, 100)
        g.label(nw)
        g.e("s_barrier")
        for j in range(4): wop(0, j)
        if SPT:
            g.e("s_lshl_b32 s49, s44, 3")
            g.e("s_add_u32 s49, s49, s40")
            g.e("s_lshl_b32 s49, s49, 15")
            g.e("s_lshl_b32 s50, s3, 20")
            g.e("s_add_u32 s49, s49, s50")
            g.e("v_bfe_u32 v9, v0, 3, 3")
            g.e("v_lshlrev_b32 v9, 12, v9")
            g.e("v_and_b32 v8, 7, v0")
            g.e("v_lshl_add_u32 v9, v8, 7, v9")
            for i in range(SPT): g.vmem(f"buffer_load_dword v8, v9, s[20:23], s49 offen offset:{128 + 1024 * i}", ("w", 0))
        g.e("s_cmp_lg_u32 s40, 0")
        g.e(f"s_cbranch_scc1 {nw2}")
        g.e(f"s_waitcnt vmcnt({4 + SPT})")
        flag_wait(g, 12, 14, 59, 100, SLS, True)
        g.e("v_min_u32 v14, 39, v0")
        g.e("v_and_b32 v15, 3, v14")
        g.e("v_lshrrev_b32 v14, 2, v14")
        g.e("v_lshlrev_b32 v14, 7, v14")
        g.e("v_lshl_add_u32 v14, v15, 3, v14")
        g.e(f"s_add_u32 s49, s57, {11 * 128}")
        g.e("v_add_u32 v14, s49, v14")
        g.label(nw2)
        g.e("s_barrier")
        zop(0, 0); zop(0, 1)
    else:
        zop(0, 0); zop(0, 1)
        for j in range(4): wop(0, j)
        code_touch(g, 96, 14, "L_k2_spend", None, False)
    srd(g, 12, 8, 9, 4096)
    g.e("v_and_b32 v11, 15, v0")
    g.e("v_lshlrev_b32 v11, 1, v11")
    g.e("s_lshl_b32 s49, s3, 9")
    g.e("s_lshl_b32 s50, s42, 7")
    g.e("s_add_u32 s49, s49, s50")
    for tt in range(4): g.vmem(f"buffer_load_ushort v{16 + tt}, v11, s[12:15], s49 offen offset:{tt * 32}", ("w", 0))
    g.e("s_barrier")
    zop(1, 0); zop(1, 1)
    if MERGE < 2:
        srd(g, 28, 16, 17, 32768, WS_PART + 8 * MB)
        g.e("s_sub_u32 s49, s2, 224")
        g.e("s_lshl_b32 s49, s49, 10")
        g.e("v_lshrrev_b32 v28, 6, v0")
        g.e(f"v_lshl_add_u32 v28, v28, 24, v{V16}")
        for i in range(4): g.e(f"v_mov_b32 v{20 + i}, 0")
        g.e("buffer_store_dwordx4 v[20:23], v28, s[28:31], s49 offen")
    srd(g, 28, 16, 17, SZ_Z, WS_Z1)
    srd(g, 36, 16, 17, SZ_CTX, WS_CTX)
    g.e("s_mul_i32 s49, s41, 7168")
    g.e(f"s_add_u32 s49, s49, {ZB}")
    g.e(f"v_add_u32 v4, s49, v{V16}")
    g.e("v_and_b32 v28, 15, v0")
    g.e("v_bfe_u32 v29, v0, 4, 2")
    g.e("v_lshrrev_b32 v30, 1, v28")
    g.e("v_xor_b32 v29, v29, v30")
    g.e("v_lshlrev_b32 v29, 4, v29")
    g.e("v_lshl_add_u32 v29, v28, 7, v29")
    g.e("s_lshl_b32 s49, s42, 13")
    g.e("v_add_u32 v1, s49, v29")
    g.e("v_xor_b32 v2, 64, v1")
    g.e("v_add_u32 v5, 0x10000, v1")
    g.e("v_add_u32 v6, 0x10000, v2")
    def aread(st, fb): g.lds(f"DR {AR + fb * 4},4,{(st % 4) * ZS + fb * 1024}", ("a", st, fb))
    def bread(st, tt):
        sl = (st // 2) % 3
        g.lds(f"DR {BB + (st & 1) * 16 + tt * 4},{(5 if sl == 2 else 1) + (st & 1)},{(sl & 1) * 32768 + tt * 2048}", ("b", st))
    SCH = {(3, 0): ("a", 0), (3, 1): ("b", 0), (3, 2): ("b", 1), (4, 0): ("b", 2), (4, 1): ("b", 3), (4, 2): ("a", 1), (5, 0): ("a", 2), (6, 0): ("a", 3)}
    rd = lambda st, k: (aread if k[0] == "a" else bread)(st, k[1])
    g.wait_vm(("z", 0), ("w", 0))
    g.e("s_barrier")
    for key in sorted(SCH): rd(0, SCH[key])
    for tt in range(4):
        for r in range(4): g.e(f"v_lshlrev_b32 v{24 + tt * 4 + r}, 16, v{16 + tt}")
    g.e("s_mov_b32 s52, 0")
    g.stamp(1)
    def step(st, extra=(), dma=4, nxt=True, init=False):
        extra = list(extra)
        pend = []
        for fb in range(7):
            g.wait_ds(("a", st, fb), ("b", st))
            for tt in range(4):
                if init: g.e(f"MC {acc(fb, tt)},{AR + fb * 4},{BB + (st & 1) * 16 + tt * 4},{24 + tt * 4}")
                else: g.e(f"M {acc(fb, tt)},{AR + fb * 4},{BB + (st & 1) * 16 + tt * 4}")
                if tt == 0 and fb < 3: aread(st, fb + 4)
                if nxt:
                    if (fb, tt) == (3, 0):
                        g.wait_vm(("z", st + 1), ("w", st + 1))
                        g.e("s_barrier")
                        pend = dma_ops(st)[:dma]
                    if (fb, tt) in SCH: rd(st + 1, SCH[(fb, tt)])
                if tt == 3 and pend: pend.pop(0)()
                if tt in (1, 3) and extra and fb < 3:
                    extra.pop(0)()
        assert not pend and not extra
    step(0, [lambda j=j: wop(1, j) for j in range(4)] + [lambda: zop(2, 0), lambda: zop(2, 1)], init=True)
    for st in range(1, 4): step(st)
    g.label("L_k2_sploop")
    vm0, ds0 = list(g.vm), list(g.ds)
    for st in range(4, 16): step(st)
    ren = lambda t: (t[0], t[1] - 12) + t[2:]
    g.vm = [ren(t) for t in g.vm]; g.ds = [ren(t) for t in g.ds]
    assert g.vm == vm0 and g.ds == ds0, (g.vm, vm0, g.ds, ds0)
    g.e("s_add_u32 s52, s52, 1")
    g.e("s_cmp_lt_u32 s52, 4")
    g.e("s_cbranch_scc1 L_k2_sploop")
    g.stamp(2)
    g.e("s_lshl_b32 s49, s3, 4")
    g.e("s_lshl_b32 s50, s42, 2")
    g.e("s_add_u32 s49, s49, s50")
    g.e("s_mul_i32 s54, s49, 28672")
    g.e("s_mul_i32 s55, s49, 159744")
    g.e(f"s_add_u32 s55, s55, {128 * 1024}")
    for tt in range(4):
        g.e(f"v_add_u32 v{16 + tt}, {tt * 28672}, v{V16}")
        g.e(f"v_add_u32 v{20 + tt}, {tt * 159744}, v{V16}")
    g.e("s_mul_i32 s56, s44, 14")
    g.e("s_mul_i32 s48, s41, 7")
    g.e("s_add_u32 s56, s56, s48")
    g.e("s_lshr_b32 s56, s56, 1")
    g.e("s_lshl_b32 s56, s56, 10")
    g.e("s_add_u32 s54, s54, s56")
    g.e("s_add_u32 s55, s55, s56")
    def z1load(u):
        for tt in range(4):
            r = Z1R + (u * 4 + tt) * 4
            g.vmem(f"buffer_load_dwordx4 v[{r}:{r + 3}], v{16 + tt}, s[28:31], s54 offen offset:{u * 1024} {SC}", ("z1", u))
    for st in range(4, 16):
        ex = {8: 0, 10: 1, 12: 2, 15: 3}
        def w0(fn):
            sk = g.newlabel("w0")
            g.e("s_cmp_lg_u32 s40, 0"); g.e(f"s_cbranch_scc1 {sk}")
            fn(); g.label(sk)
        fl = []
        if MERGE and st == 4: fl = [lambda: w0(lambda: flag_load(g, 12, 14, 100, True))]
        if MERGE and st == 7: fl = [lambda: w0(lambda: flag_wait(g, 12, 14, 59, 100, SLS, True, True))]
        step(st, [lambda u=ex[st]: z1load(u)] if st in ex else fl, dma=4 if st < 12 else (2 if st == 12 else 0), nxt=st < 15)
    g.stamp(4)
    g.e("s_nop 4")
    g.e("s_mov_b32 s53, 0xffff0000")
    g.e("s_lshl_b32 s49, s42, 11")
    g.e("s_add_u32 s49, s49, 155648")
    g.e(f"v_lshrrev_b32 v12, 1, v{V16}")
    g.e("v_add_u32 v12, s49, v12")
    vm_sv = list(g.vm)
    lode = g.newlabel("spodd"); lend = g.newlabel("spend")
    g.e("s_cmp_eq_u32 s41, 1")
    g.e(f"s_cbranch_scc1 {lode}")
    for fh in range(2):
        g.vm = list(vm_sv)
        if fh: g.label(lode)
        for u in range(4):
            halves = [(h, 2 * u + h - fh) for h in range(2) if 0 <= 2 * u + h - fh < 7]
            g.wait_vm(("z1", u))
            if u == 3:
                g.e("s_waitcnt lgkmcnt(0)")
                g.e("s_barrier")
                if fh == 0:
                    for tt in range(4): g.e(f"ds_read_b64 v[{Z1R + (12 + tt) * 4 + 2}:{Z1R + (12 + tt) * 4 + 3}], v12 offset:{tt * 512}")
            for tt in range(4):
                z = Z1R + (u * 4 + tt) * 4
                for h, fb in halves:
                    a = acc(fb, tt); t = 8 if h else 1
                    g.e(f"v_lshlrev_b32 v{t}, 16, v{z + 2 * h}")
                    g.e(f"v_and_b32 v{t + 1}, s53, v{z + 2 * h}")
                    g.e(f"v_lshlrev_b32 v{t + 2}, 16, v{z + 2 * h + 1}")
                    g.e(f"v_and_b32 v{t + 3}, s53, v{z + 2 * h + 1}")
                    for r in range(4): g.e(f"v_mul_f32 v{a + r}, v{a + r}, v{t + r}")
                    g.e(f"PK {z + 2 * h},{a},{a + 1}"); g.e(f"PK {z + 2 * h + 1},{a + 2},{a + 3}")
                if fh == 1 and u == 0:
                    g.e(f"ds_write_b64 v12, v[{z + 2}:{z + 3}] offset:{tt * 512}")
                else:
                    if fh == 0 and u == 3: g.e(f"s_waitcnt lgkmcnt({3 - tt})")
                    g.vmem(f"buffer_store_dwordx4 v[{z}:{z + 3}], v{20 + tt}, s[36:39], s55 offen offset:{u * 1024} {STFU}", "st")
        if fh == 0: g.e(f"s_branch {lend}")
    g.label(lend)
    g.stamp(3)
    g.stamp_dump(16, 17, 40, 1)
    if MERGE == 2:
        g.e("s_add_u32 s58, s44, 49")
        g.e("s_lshl_b32 s58, s58, 7")
        g.e("s_lshl_b32 s49, s3, 2")
        g.e("s_add_u32 s58, s58, s49")
        g.e("s_branch L_p3")
    else: g.e("s_endpgm")

def gen_k2(g):
    if not MERGE:
        g.e(".p2align 8")
        g.e(".type k2_kernel,@function")
        g.label("k2_kernel")
        g.e("s_cmp_ge_u32 s2, 256")
        g.e("s_cbranch_scc1 L_k2_end")
    g.label("L_p2")
    g.stamp(0)
    if PROF: g.e("s_memrealtime s[94:95]")
    g.e("s_load_dwordx2 s[4:5], s[0:1], 16")
    g.e("s_load_dwordx4 s[8:11], s[0:1], 64")
    g.e("s_load_dwordx2 s[16:17], s[0:1], 104")
    g.e("v_lshrrev_b32 v1, 6, v0")
    g.e("s_and_b32 s3, s2, 7")
    g.e("s_lshr_b32 s41, s2, 3")
    g.e("v_readfirstlane_b32 s40, v1")
    g.e("s_waitcnt lgkmcnt(0)")
    g.e("s_mov_b32 s6, s8")
    g.e("s_mov_b32 s7, s9")
    g.e("s_mov_b32 s8, s10")
    g.e("s_mov_b32 s9, s11")
    if MERGE:
        nw = g.newlabel("nw")
        g.e("s_cmp_lg_u32 s40, 0")
        g.e(f"s_cbranch_scc1 {nw}")
        g.e("s_lshl_b32 s49, s3, 13")
        g.e(f"s_add_u32 s49, s49, {53 * 128 + 64}")
        g.e("v_lshrrev_b32 v14, 3, v0")
        g.e("v_lshlrev_b32 v14, 7, v14")
        g.e("v_and_b32 v15, 7, v0")
        g.e("v_lshl_add_u32 v14, v15, 2, v14")
        g.e("v_add_u32 v15, s49, v14")
        flag_wait(g, 13, 15, 59, 100, SLA, True)
        g.e("v_mov_b32 v13, 0")
        g.label(nw)
    if BAL:
        g.e("s_bitcmp1_b32 s2, 0")
        g.e("s_cbranch_scc1 L_k2_attn")
    g.e(f"s_cmp_lt_u32 s41, {24 if BAL else 28}")
    g.e("s_cbranch_scc1 L_k2_attn")
    g.e("s_branch L_k2_sp")
    g.label("L_k2_end")
    g.e("s_endpgm")
    gen_attn(g)
    gen_spatial(g)
    g.label("L_k2_spend")
```

```python
from asmlib import *
from k1 import tr_bases

LDS = 163840
NVGPR = 128
ACC = 32
AF = 64
WF = 96
NS = 39
UF = int(os.environ.get('UF', '0'))
FULLF = int(os.environ.get('FULLF', '0'))
DYN = int(os.environ.get('DYN', '0'))
SL3 = int(os.environ.get('SL3', '4'))
FUSE = int(os.environ.get('FUSE', '1'))
PD = int(os.environ.get('PD', '8'))
STP = os.environ.get('STP', 'sc1')

def gen_k3(g):
    g.vm = []; g.ds = []
    M2 = MERGE == 2
    if not M2:
        g.e(".p2align 8")
        g.e(".type k3_kernel,@function")
        g.label("k3_kernel")
        g.e("s_cmp_ge_u32 s2, 256")
        g.e("s_cbranch_scc1 L_k3_end")
    g.label("L_p3")
    diag_mark(g, 3)
    g.stamp(0)
    if PROF: g.e("s_memrealtime s[94:95]")
    g.e("s_load_dwordx2 s[6:7], s[0:1], 40")
    g.e("s_load_dwordx4 s[8:11], s[0:1], 80")
    g.e("s_load_dwordx2 s[4:5], s[0:1], 0")
    g.e("s_load_dwordx2 s[16:17], s[0:1], 104")
    g.e("v_lshrrev_b32 v1, 6, v0")
    g.e("s_bfe_u32 s43, s2, 0x20001")
    g.e("s_and_b32 s42, s2, 1")
    g.e("v_readfirstlane_b32 s40, v1")
    g.e("s_lshl_b32 s42, s42, 3")
    g.e("s_lshr_b32 s49, s2, 5")
    g.e("s_add_u32 s42, s42, s49")
    g.e("s_bfe_u32 s41, s2, 0x20003")
    g.e("v_bfe_u32 v28, v0, 5, 1")
    g.e("v_bfe_u32 v29, v0, 2, 2")
    g.e("v_lshl_add_u32 v28, v28, 4, v29")
    g.e("v_bfe_u32 v29, v0, 6, 2")
    g.e("v_lshl_add_u32 v28, v29, 2, v28")
    g.e("v_lshlrev_b32 v28, 10, v28")
    g.e("v_bfe_u32 v30, v0, 4, 1")
    g.e("v_lshl_add_u32 v28, v30, 6, v28")
    g.e("v_lshrrev_b32 v30, 8, v0")
    g.e("v_lshl_add_u32 v28, v30, 7, v28")
    g.e("v_and_b32 v29, 1, v29")
    g.e("v_lshlrev_b32 v29, 1, v29")
    g.e("v_and_b32 v30, 3, v0")
    g.e("v_xor_b32 v29, v29, v30")
    g.e("v_lshl_add_u32 v1, v29, 4, v28")
    g.e("v_and_b32 v28, 63, v0")
    g.e("v_lshlrev_b32 v7, 4, v28")
    g.e("s_lshl_b32 s46, s40, 10")
    g.e("s_lshl_b32 s49, s42, 3")
    g.e("s_add_u32 s49, s49, s40")
    g.e("s_mul_i32 s47, s49, 159744")
    g.e("s_lshl_b32 s49, s43, 13")
    g.e("s_add_u32 s44, s47, s49")
    g.e("s_mul_i32 s49, s43, 7168")
    g.e("s_add_u32 s45, s47, s49")
    g.e(f"s_add_u32 s45, s45, {128 * 1024}")
    g.e("s_lshl_b32 s49, s41, 8")
    g.e("s_lshl_b32 s52, s43, 18")
    g.e("s_add_u32 s52, s52, s49")
    g.e(f"s_mul_i32 s53, s43, {7 * 32768}")
    g.e("s_add_u32 s53, s53, s49")
    g.e("s_waitcnt lgkmcnt(0)")
    srd(g, 20, 6, 7, 4096 * 1024)
    srd(g, 24, 8, 9, 896 * 1024)
    srd(g, 28, 16, 17, SZ_CTX, WS_CTX)
    def dma_ops(t):
        if t >= NS: return []
        to = (t + 32) % NS if UF else t
        u = to >= 32
        dyn = M2 and DYN and not u
        tt = to - 32 if u else ((t & 3) if dyn else (((to >> 2) & 1) + 8 * (to >> 3)) * 4 + (to & 3))
        def a():
            if dyn and t % 4 == 0:
                g.e("s_ff1_i32_b32 s49, s62")
                g.e("s_bitset0_b32 s62, s49")
                g.e("s_and_b32 s60, s49, 1")
                g.e("s_bfe_u32 s49, s49, 0x20001")
                g.e("s_lshl_b32 s49, s49, 3")
                g.e("s_add_u32 s49, s49, s60")
                g.e("s_lshl_b32 s60, s49, 12")
                g.e("s_add_u32 s60, s60, s44")
                g.e("s_lshl_b32 s61, s49, 17")
                g.e("s_add_u32 s61, s61, s52")
            g.e(f"s_add_u32 m0, s46, {(t % 10) * 16384}")
            g.e(f"s_add_u32 s49, s{45 if u else (60 if dyn else 44)}, {tt * 1024}")
            g.vmem(f"buffer_load_dwordx4 v7, s[28:31], s49 offen {'sc1' if M2 else ''} lds", t // 2)
        def w():
            g.e(f"s_add_u32 m0, s46, {(t % 10) * 16384 + 8192}")
            g.e(f"s_add_u32 s49, s{53 if u else (61 if dyn else 52)}, {tt * 32768}")
            g.vmem(f"buffer_load_dwordx4 v1, s[{24 if u else 20}:{27 if u else 23}], s49 offen lds", t // 2)
        return [a, w]
    def w0(fn):
        sk = g.newlabel("w0")
        g.e("s_cmp_lg_u32 s40, 0"); g.e(f"s_cbranch_scc1 {sk}")
        fn(); g.label(sk)
    if M2:
        if not DYN and not UF:
            g.e("s_waitcnt vmcnt(0)")
            g.e("s_barrier")
            w0(lambda: flag_set(g, 20, 58, 59, 100))
            for t in range(4): dma_ops(t)[1]()
        g.e("s_sub_u32 s49, 15, s42")
        g.e("s_sub_u32 s50, s42, 4")
        if BAL == 2: g.e("s_xor_b32 s50, s50, 1")
        g.e("s_cmp_ge_u32 s42, 10")
        g.e("s_cselect_b32 s49, s49, s50")
        g.e("s_cmp_lt_u32 s42, 4")
        g.e("s_cselect_b32 s49, 6, s49")
        g.e("s_lshl_b32 s49, s49, 2")
        g.e("s_add_u32 s49, s49, s43")
        g.e("s_add_u32 s49, s49, 21")
        g.e("s_lshl_b32 s49, s49, 7")
        g.e("s_and_b32 s50, s2, 7")
        g.e("s_lshl_b32 s50, s50, 13")
        g.e("s_add_u32 s49, s49, s50")
        g.e("v_and_b32 v17, 7, v0")
        g.e("v_lshl_add_u32 v17, v17, 2, s49")
        g.e("s_add_u32 s49, s43, 49")
        g.e("s_lshl_b32 s49, s49, 7")
        g.e("s_add_u32 s49, s49, s50")
        g.e("s_lshr_b32 s50, s42, 1")
        g.e("s_lshl_b32 s50, s50, 2")
        g.e("s_add_u32 s49, s49, s50")
        g.e("v_mov_b32 v18, s49")
        if UF:
            w0(lambda: flag_load(g, 26, 18, 100))
            g.e("v_mov_b32 v27, 0")
            g.e("s_waitcnt vmcnt(0)")
            g.e("s_barrier")
            w0(lambda: (flag_set(g, 20, 58, 59, 100), flag_wait(g, 26, 18, 59, 100, SL3, True)))
            g.e("s_barrier")
            for t in range(4):
                for op in dma_ops(t): op()
        elif not DYN:
            w0(lambda: flag_wait(g, 26, 17, 59, 100, SL3, False))
            g.e("v_mov_b32 v26, 0")
            g.e("s_barrier")
            for t in range(4): dma_ops(t)[0]()
        else:
            w0(lambda: flag_load(g, 27, 17, 100))
            g.e("v_mov_b32 v26, 0")
            g.e("v_mov_b32 v25, 163832")
            g.e("s_waitcnt vmcnt(0)")
            g.e("s_barrier")
            def order():
                flag_set(g, 20, 58, 59, 100)
                spin = g.newlabel("spin"); chk = g.newlabel("chk")
                g.e(f"s_branch {chk}")
                g.label(spin)
                g.e(f"s_sleep {SL3}")
                flag_load(g, 27, 17, 100)
                g.e("s_waitcnt vmcnt(0)")
                g.label(chk)
                g.e("v_cmp_eq_u32 vcc, s59, v27")
                g.e("s_nop 1")
                g.e("s_and_b32 s62, vcc_lo, 0xff")
                g.e("s_bcnt1_i32_b32 s49, s62")
                g.e("s_cmp_lt_u32 s49, 2")
                g.e(f"s_cbranch_scc1 {spin}")
                g.e("s_xor_b32 s49, s62, 0xff")
                g.e("s_lshl_b32 s49, s49, 8")
                g.e("s_or_b32 s62, s62, s49")
                g.e("v_mov_b32 v24, s62")
                g.e("ds_write_b32 v25, v24")
                g.e("s_waitcnt lgkmcnt(0)")
            w0(order)
            g.e("s_barrier")
            g.e("ds_read_b32 v24, v25")
            g.e("s_waitcnt lgkmcnt(0)")
            g.e("v_readfirstlane_b32 s62, v24")
            g.e("s_nop 3")
            for t in range(4):
                for op in dma_ops(t): op()
    else:
        for t in range(2):
            for op in dma_ops(t): op()
        code_touch(g, 60, 20, "L_all_end")
        g.e("s_barrier")
        for t in range(2, 4):
            for op in dma_ops(t): op()
    srd(g, 32, 16, 17, 8 * MB + 32768, WS_PART)
    if FUSE:
        srd(g, 12, 4, 5, 2 * MB)
        srd(g, 36, 10, 11, 2 * MB)
        g.e("s_lshl_b32 s49, s42, 2")
        g.e("s_add_u32 s49, s49, s41")
        g.e("s_lshl_b32 s56, s49, 9")
        g.e(f"s_add_u32 s56, s56, {8 * MB}")
        g.e("s_lshl_b32 s57, s43, 7")
        g.e("s_add_u32 s57, s57, s56")
        g.e("s_lshl_b32 s49, s49, 15")
        g.e("s_lshl_b32 s50, s40, 12")
        g.e("s_add_u32 s49, s49, s50")
        g.e("s_lshl_b32 s50, s43, 21")
        g.e("s_add_u32 s54, s49, s50")
        g.e("s_lshl_b32 s50, s43, 10")
        g.e("s_add_u32 s55, s49, s50")
        if FULLF:
            g.e("v_lshrrev_b32 v22, 2, v7")
            g.e("v_bfe_u32 v24, v0, 5, 1")
            g.e("v_lshl_add_u32 v22, v24, 24, v22")
        else: g.e("v_lshlrev_b32 v22, 20, v7")
        g.e("v_lshlrev_b32 v23, 3, v7")
        g.e("v_bfe_u32 v24, v0, 2, 4")
        g.e("v_lshl_add_u32 v23, v24, 24, v23")
        g.e("v_and_b32 v19, 15, v0")
        g.e("v_lshlrev_b32 v19, 10, v19")
        g.e("v_bfe_u32 v24, v0, 4, 1")
        g.e("v_lshl_add_u32 v19, v24, 5, v19")
        g.e("v_bfe_u32 v24, v0, 5, 1")
        g.e("v_lshl_add_u32 v19, v24, 4, v19")
        g.e("s_lshl_b32 s48, s42, 17")
        g.e("s_lshr_b32 s49, s40, 2")
        g.e("s_lshl_b32 s49, s49, 16")
        g.e("s_add_u32 s48, s48, s49")
        g.e("s_lshl_b32 s49, s43, 14")
        g.e("s_add_u32 s48, s48, s49")
        g.e("s_lshl_b32 s49, s41, 8")
        g.e("s_add_u32 s48, s48, s49")
        g.e("s_and_b32 s49, s40, 3")
        g.e("s_lshl_b32 s49, s49, 6")
        g.e("s_add_u32 s48, s48, s49")
    tr_bases(g, 8, 9)
    g.e("s_bfe_u32 s49, s40, 0x10001")
    g.e("s_lshl_b32 s49, s49, 12")
    g.e("s_and_b32 s50, s40, 1")
    g.e("s_lshl_b32 s50, s50, 8")
    g.e("s_add_u32 s49, s49, s50")
    g.e("s_add_u32 s49, s49, 8192")
    g.e("v_add_u32 v8, s49, v8")
    g.e("v_add_u32 v9, s49, v9")
    g.e("s_lshr_b32 s49, s40, 2")
    g.e("s_lshl_b32 s49, s49, 12")
    g.e("v_add_u32 v10, s49, v7")
    for k in (1, 2):
        for i in range(3): g.e(f"v_add_u32 v{8 + 3 * k + i}, {k * 0x10000}, v{8 + i}")
    g.stamp(1)
    pend = []
    def reads(t):
        if t >= NS: return []
        sl = t % 10; b = 8 + 3 * (sl >> 2); o = (sl & 3) * 16384
        ops = []
        if t % 2 == 0:
            def sync():
                assert not pend
                g.wait_vm(t // 2)
                if M2 and DYN and (t + PD) % 4 == 0 and t + PD < 32:
                    def late():
                        sk = g.newlabel("rdy")
                        if t == 0: g.e("s_sub_u32 s49, s62, 1"); g.e("s_and_b32 s49, s49, s62"); g.e("s_and_b32 s49, s49, 0xff")
                        else: g.e("s_and_b32 s49, s62, 0xff")
                        g.e(f"s_cbranch_scc1 {sk}")
                        flag_wait(g, 27, 17, 59, 100, SL3, True)
                        g.label(sk)
                    w0(late)
                if UF:
                    if t == UF: w0(lambda: flag_wait(g, 27, 17, 59, 100, SL3, True))
                    g.e("s_barrier")
                    if t == UF - 2: w0(lambda: flag_load(g, 27, 17, 100))
                    if t == UF: ramp.extend([op for u in range(7, t + PD + 2) for op in dma_ops(u)])
                    elif t > UF: (ramp if ramp else pend).extend(dma_ops(t + PD) + dma_ops(t + PD + 1))
                    return
                if M2 and t + PD == 32: w0(lambda: flag_wait(g, 26, 18, 59, 100, SL3, True))
                g.e("s_barrier")
                if M2 and t + PD == 26: w0(lambda: flag_load(g, 26, 18, 100))
                pend.extend(dma_ops(t + PD) + dma_ops(t + PD + 1))
            ops.append(sync)
        rd = []
        for cb in range(2):
            for a in range(2):
                rd.append(lambda cb=cb, a=a: g.lds(f"TR {WF + (t & 1) * 8 + cb * 4 + 2 * a},{b + cb},{o + a * 512}", ("r", t)))
        dr = [lambda rt=rt: g.lds(f"DR {AF + (t & 1) * 16 + rt * 4},{b + 2},{o + rt * 1024}", ("r", t)) for rt in range(4)]
        return ops + rd[:2] + dr + rd[2:]
    ramp = [op for t in range(4, 7 if UF else PD) for op in dma_ops(t)]
    for op in reads(0): op()
    ramp += pend; del pend[:]
    for t in range(NS):
        nx = reads(t + 1)
        g.wait_ds(("r", t))
        k = 0
        for cb in range(2):
            for rt in range(4):
                g.e(f"{'MZ' if t == 0 else 'M'} {ACC + (cb * 4 + rt) * 4},{WF + (t & 1) * 8 + cb * 4},{AF + (t & 1) * 16 + rt * 4}")
                n = 2 if k < 4 else 1
                for _ in range(n):
                    if nx: nx.pop(0)()
                if ramp:
                    ramp.pop(0)()
                    if t == 0 and k >= 4 and ramp: ramp.pop(0)()
                elif k >= 5 and k != 6 and pend: pend.pop(0)()
                k += 1
        assert not nx
        if FUSE and t == 32: g.vmem("buffer_load_dwordx4 v[112:115], v19, s[12:15], s48 offen", "xx")
        if t in (0, 9, 19, 29): g.stamp({0: 2, 9: 3, 19: 4, 29: 5}[t])
    g.stamp(6)
    if not FUSE:
        g.e("s_lshl_b32 s49, s43, 21")
        g.e("s_lshl_b32 s50, s42, 17")
        g.e("s_add_u32 s49, s49, s50")
        g.e("s_lshl_b32 s50, s41, 15")
        g.e("s_add_u32 s49, s49, s50")
        g.e("s_lshl_b32 s50, s40, 12")
        g.e("s_add_u32 s49, s49, s50")
        g.e("s_nop 4")
        for rt in range(4):
            x, y = ACC + rt * 4, ACC + (4 + rt) * 4
            g.e(f"PK {x},{x},{x + 1}"); g.e(f"PK {x + 1},{x + 2},{x + 3}")
            g.e(f"PK {x + 2},{y},{y + 1}"); g.e(f"PK {x + 3},{y + 2},{y + 3}")
        g.e("s_nop 1")
        for rt in range(4):
            x = ACC + rt * 4
            g.e(f"v_permlane16_swap_b32 v{x}, v{x + 2}")
            g.e(f"v_permlane16_swap_b32 v{x + 1}, v{x + 3}")
            g.e(f"buffer_store_dwordx4 v[{x}:{x + 3}], v7, s[32:35], s49 offen offset:{rt * 1024} {STP}")
    else:
        g.e("s_nop 4")
        for rt in range(4):
            x, y = ACC + rt * 4, ACC + (4 + rt) * 4
            d = AF + rt * 4
            g.e(f"PK {d},{x},{x + 1}"); g.e(f"PK {d + 1},{x + 2},{x + 3}")
            g.e(f"PK {d + 2},{y},{y + 1}"); g.e(f"PK {d + 3},{y + 2},{y + 3}")
            sk = g.newlabel("own")
            g.e(f"s_cmp_eq_u32 s43, {rt}")
            g.e(f"s_cbranch_scc1 {sk}")
            g.e(f"buffer_store_dwordx4 v[{d}:{d + 3}], v7, s[32:35], s54 offen offset:{rt * 1024} sc1")
            g.label(sk)
        for rt in range(1, 4):
            sk = g.newlabel("mv")
            g.e(f"s_cmp_lg_u32 s43, {rt}")
            g.e(f"s_cbranch_scc1 {sk}")
            for cb in range(2):
                for r in range(4): g.e(f"v_mov_b32 v{ACC + cb * 16 + r}, v{ACC + (cb * 4 + rt) * 4 + r}")
            g.label(sk)
        g.e("v_mov_b32 v21, s59" if M2 else "v_mov_b32 v21, 1")
        g.e("s_waitcnt vmcnt(0)")
        g.e("s_barrier")
        g.stamp(7)
        spin = g.newlabel("spin"); done = g.newlabel("done")
        g.e("s_cmp_lg_u32 s40, 0")
        g.e(f"s_cbranch_scc1 {done}")
        g.e("buffer_store_dword v21, v22, s[32:35], s57 offen sc1")
        g.label(spin)
        g.e("buffer_load_dword v24, v23, s[32:35], s56 offen sc1")
        g.e("s_waitcnt vmcnt(0)")
        g.e("v_cmp_eq_u32 vcc, v21, v24")
        g.e("s_nop 1")
        g.e("s_and_b32 s49, vcc_lo, 15")
        g.e("s_cmp_eq_u32 s49, 15")
        g.e(f"s_cbranch_scc1 {done}")
        g.e(f"s_sleep {os.environ.get('SL4', '2')}")
        g.e(f"s_branch {spin}")
        g.label(done)
        g.e("s_barrier")
        g.stamp(8)
        for i in range(3):
            g.e(f"s_add_u32 s49, s43, {i + 1}")
            g.e("s_and_b32 s49, s49, 3")
            g.e("s_lshl_b32 s49, s49, 21")
            g.e("s_add_u32 s49, s49, s55")
            g.e(f"buffer_load_dwordx4 v[{AF + 4 * i}:{AF + 4 * i + 3}], v7, s[32:35], s49 offen sc1")
        A8 = [ACC + r for r in range(4)] + [ACC + 16 + r for r in range(4)]
        g.e("s_mov_b32 s50, 0xffff0000")
        for i in range(3):
            g.e(f"s_waitcnt vmcnt({2 - i})")
            for r in range(4):
                g.e(f"v_lshlrev_b32 v24, 16, v{AF + 4 * i + r}")
                g.e(f"v_and_b32 v25, s50, v{AF + 4 * i + r}")
                g.e(f"v_add_f32 v{A8[2 * r]}, v{A8[2 * r]}, v24")
                g.e(f"v_add_f32 v{A8[2 * r + 1]}, v{A8[2 * r + 1]}, v25")
        g.e("s_nop 1")
        for r in range(4): g.e(f"v_permlane16_swap_b32 v{A8[r]}, v{A8[4 + r]}")
        g.e("s_nop 1")
        for r in range(4):
            g.e(f"v_lshlrev_b32 v24, 16, v{112 + r}")
            g.e(f"v_and_b32 v25, s50, v{112 + r}")
            g.e(f"v_add_f32 v{A8[2 * r]}, v{A8[2 * r]}, v24")
            g.e(f"v_add_f32 v{A8[2 * r + 1]}, v{A8[2 * r + 1]}, v25")
        for r in range(4): g.e(f"PK {28 + r},{A8[2 * r]},{A8[2 * r + 1]}")
        g.e(f"buffer_store_dwordx4 v[28:31], v19, s[36:39], s48 offen {os.environ.get('STO', '')}")
    diag_end(g)
    g.stamp_dump(16, 17, 40, 2)
    g.label("L_k3_end")
    g.e("s_endpgm")
    if FUSE: g.label("L_all_end")

def gen_k4(g):
    g.e(".p2align 8")
    g.e(".type k4_kernel,@function")
    g.label("k4_kernel")
    g.e("s_cmp_ge_u32 s2, 256")
    g.e("s_cbranch_scc1 L_k4_end")
    g.e("s_load_dwordx2 s[4:5], s[0:1], 0")
    g.e("s_load_dwordx2 s[6:7], s[0:1], 88")
    g.e("s_load_dwordx2 s[16:17], s[0:1], 104")
    g.e("v_lshlrev_b32 v1, 4, v0")
    g.e("s_lshl_b32 s20, s2, 13")
    g.e("v_lshrrev_b32 v2, 6, v0")
    g.e("v_lshl_add_u32 v2, s2, 3, v2")
    g.e("v_lshrrev_b32 v3, 7, v2")
    g.e("v_lshlrev_b32 v3, 7, v3")
    g.e("v_bfe_u32 v4, v2, 4, 1")
    g.e("v_lshl_add_u32 v3, v4, 6, v3")
    g.e("v_and_b32 v4, 3, v2")
    g.e("v_lshl_add_u32 v3, v4, 4, v3")
    g.e("v_and_b32 v4, 15, v0")
    g.e("v_add_u32 v3, v3, v4")
    g.e("v_lshlrev_b32 v3, 10, v3")
    g.e("v_bfe_u32 v4, v2, 5, 2")
    g.e("v_lshl_add_u32 v3, v4, 8, v3")
    g.e("v_bfe_u32 v4, v2, 2, 2")
    g.e("v_lshl_add_u32 v3, v4, 6, v3")
    g.e("v_bfe_u32 v4, v0, 4, 1")
    g.e("v_lshl_add_u32 v3, v4, 5, v3")
    g.e("v_bfe_u32 v4, v0, 5, 1")
    g.e("v_lshl_add_u32 v3, v4, 4, v3")
    g.e("s_waitcnt lgkmcnt(0)")
    srd(g, 8, 16, 17, 8 * MB, WS_PART)
    srd(g, 12, 4, 5, 2 * MB)
    for q in range(4):
        g.e(f"buffer_load_dwordx4 v[{8 + 4 * q}:{11 + 4 * q}], v1, s[8:11], s20 offen")
        g.e(f"s_add_u32 s20, s20, {2 * MB}")
    g.e("buffer_load_dwordx4 v[24:27], v3, s[12:15], 0 offen")
    srd(g, 24, 6, 7, 2 * MB)
    g.e("s_mov_b32 s21, 0xffff0000")
    for q in range(5):
        g.e(f"s_waitcnt vmcnt({4 - q})")
        for i in range(4):
            r = 8 + 4 * q + i
            if q == 0:
                g.e(f"v_lshlrev_b32 v{28 + 2 * i}, 16, v{r}")
                g.e(f"v_and_b32 v{29 + 2 * i}, s21, v{r}")
            else:
                g.e(f"v_lshlrev_b32 v4, 16, v{r}")
                g.e(f"v_and_b32 v5, s21, v{r}")
                g.e(f"v_add_f32 v{28 + 2 * i}, v{28 + 2 * i}, v4")
                g.e(f"v_add_f32 v{29 + 2 * i}, v{29 + 2 * i}, v5")
    for i in range(4): g.e(f"PK {8 + i},{28 + 2 * i},{29 + 2 * i}")
    g.e("buffer_store_dwordx4 v[8:11], v3, s[24:27], 0 offen")
    g.label("L_k4_end")
    g.e("s_endpgm")
    g.label("L_all_end")
```

```python
from asmlib import *
import k1
from k1 import w_voffsets, tr_bases, xreg, areg, WR, D
import math

QSCALE = 128 ** -0.5 * math.log2(math.e)
STASH = 131072
DSP = int(os.environ.get('DSP', '3')); EB = int(os.environ.get('EB', '14'))
XPRE = int(os.environ.get('XPRE', '4'))
PS = int(os.environ.get('PS', '0'))
NTSP = os.environ.get('NTSP', '')
PF2 = int(os.environ.get('PF2', '0'))
KINS = int(os.environ.get('KINS', '0'))
NTAIL = int(os.environ.get('NTAIL', '0'))
STF2 = os.environ.get('STF2', 'sc1')
PFS = int(os.environ.get('PFS', '54'))
STFX = os.environ.get('STFX', 'sc1'); STFU = os.environ.get('STFU', 'sc1' if MERGE == 2 else '')
XSCH = eval(os.environ.get('XSCH', '(4, 8, 12, 16, 28, 34, 40, 46, 56, 62, 68, 74)'))
PF4 = int(os.environ.get('PF4', '1'))
SLA = int(os.environ.get('SLA', '8')); SLS = int(os.environ.get('SLS', '10'))
SPT = int(os.environ.get('SPT', '0'))
HOT = int(os.environ.get('HOT', '0'))
HACK = os.environ.get('HACK', '')
CH = int(os.environ.get('CH', '1'))
NTWQ = os.environ.get('NTWQ', '')
NPART = 3
VF, VNEG, VL, VT, V16, VLT = 1, 3, 4, 6, 7, 8
NEGM, PR, TMP, OR, FR = 16, 24, 40, 128, 192
ML, FA, FB = 52, 56, 58
def sreg(kt, qb): return 72 + 16 * kt + 4 * qb
def preg(qb, kg): return PR + (qb * 2 + kg) * 4
def qreg(qb, mm): return 64 + 16 * mm + 4 * qb
def oreg(cb, qb): return OR + (cb * 2 + qb) * 4
def freg(j): return FR + j * 4
def kslot(j): return (j >> 1) + 8 * (j & 1) if CH & 2 else j

def merge_streams(main, fill, start=0):
    out = []
    n = len(main) - start
    acc = 0.0
    fill = list(fill)
    per = len(fill) / max(1, n)
    for i, m in enumerate(main):
        out.append(m)
        if i >= start:
            acc += per
            while fill and acc >= 0.999:
                out.append(fill.pop(0)); acc -= 1.0
    return out + fill

def dma4(g, so, first_m0=None, tag=None):
    ops = []
    for j in range(4):
        def op(j=j):
            if j == 0 and first_m0:
                g.e(first_m0); g.e("s_nop 0")
            g.vmem(f"buffer_load_dwordx4 v{V16}, s[28:31], s{so} offen offset:{j * 1024} {SC} lds", tag)
        ops.append(op)
    return ops

def next_ops(t):
    return [[f"s_and_b32 s19, s{t}, 3"], ["s_lshl_b32 s19, s19, 15"],
            ["s_xor_b32 s50, s19, 0x10000"], ["s_add_u32 s50, s50, s55"],
            [f"s_add_u32 s49, s{t}, 2"], ["s_lshl_b32 s51, s49, 14"], ["s_add_u32 s51, s51, s54"],
            ["s_cmp_lt_u32 s49, s48", "s_cselect_b32 s51, s51, s54"],
            [f"s_cmp_lt_u32 s{t}, s45", "s_cselect_b32 s49, s41, 0"],
            ["s_lshl_b32 s7, s49, 14"], ["s_add_u32 m0, s50, s7"], ["s_lshl_b32 s49, s49, 24"],
            ["s_add_u32 s7, s51, s49"], [f"s_add_u32 s51, s51, {16 * MB}"]]

def softmax_txt():
    out = []
    I = out.append
    T = [TMP + i for i in range(8)]
    for qb in range(2):
        for r in range(4): I(f"v_exp_f32 v{T[qb * 4 + r]}, v{sreg(0, qb) + r}")
    for qb in range(2): I(f"v_add_f32 v{VLT + qb}, v{T[qb * 4]}, v{T[qb * 4 + 1]}")
    for qb in range(2): I(f"PK {preg(qb, 0)},{T[qb * 4]},{T[qb * 4 + 1]}")
    for qb in range(2): I(f"v_add_f32 v{VLT + qb}, v{VLT + qb}, v{T[qb * 4 + 2]}")
    for qb in range(2): I(f"PK {preg(qb, 0) + 1},{T[qb * 4 + 2]},{T[qb * 4 + 3]}")
    for qb in range(2): I(f"v_add_f32 v{VLT + qb}, v{VLT + qb}, v{T[qb * 4 + 3]}")
    for kt in range(1, 4):
        for qb in range(2):
            s = sreg(kt, qb); t = T[qb * 4:qb * 4 + 4]
            for r in range(4): I(f"v_exp_f32 v{t[r]}, v{s + r}")
            p = preg(qb, kt >> 1) + (kt & 1) * 2
            I(f"v_add_f32 v{VLT + qb}, v{VLT + qb}, v{t[0]}")
            I(f"v_add_f32 v{VLT + qb}, v{VLT + qb}, v{t[1]}")
            I(f"PK {p},{t[0]},{t[1]}")
            I(f"v_add_f32 v{VLT + qb}, v{VLT + qb}, v{t[2]}")
            I(f"v_add_f32 v{VLT + qb}, v{VLT + qb}, v{t[3]}")
            I(f"PK {p + 1},{t[2]},{t[3]}")
    return out
def softmax_ops(g):
    return [lambda t=t: g.e(t) for t in softmax_txt()]

def xgroup(g, regs, op, tmp):
    for sw in ("v_permlane32_swap_b32", "v_permlane16_swap_b32"):
        for i, r in enumerate(regs): g.e(f"v_mov_b32 v{tmp + i}, v{r}")
        g.e("s_nop 1")
        for i, r in enumerate(regs): g.e(f"{sw} v{tmp + i}, v{r}")
        g.e("s_nop 1")
        for i, r in enumerate(regs): g.e(f"{op} v{r}, v{r}, v{tmp + i}")

def rescale(g, first):
    MX = [TMP + 8, TMP + 9]
    for qb in range(2):
        vals = [sreg(kt, qb) + r for kt in range(4) for r in range(4)]
        g.e(f"v_max3_f32 v{MX[qb]}, v{vals[0]}, v{vals[1]}, v{vals[2]}")
        for i in range(3, 15, 2): g.e(f"v_max3_f32 v{MX[qb]}, v{MX[qb]}, v{vals[i]}, v{vals[i + 1]}")
        g.e(f"v_max_f32 v{MX[qb]}, v{MX[qb]}, v{vals[15]}")
    xgroup(g, MX, "v_max_f32", TMP + 10)
    if not first:
        for qb in range(2): g.e(f"v_max_f32 v{MX[qb]}, 0, v{MX[qb]}")
    for kt in range(4):
        for qb in range(2):
            for r in range(4): g.e(f"v_sub_f32 v{sreg(kt, qb) + r}, v{sreg(kt, qb) + r}, v{MX[qb]}")
    for qb in range(2):
        for r in range(4): g.e(f"v_sub_f32 v{NEGM + qb * 4 + r}, v{NEGM + qb * 4 + r}, v{MX[qb]}")
    if not first:
        for qb in range(2): g.e(f"v_exp_f32 v{MX[qb]}, -v{MX[qb]}")
        g.e("s_nop 0")
        for cb in range(8):
            for qb in range(2):
                for r in range(4): g.e(f"v_mul_f32 v{oreg(cb, qb) + r}, v{oreg(cb, qb) + r}, v{MX[qb]}")
        for qb in range(2): g.e(f"v_mul_f32 v{VL + qb}, v{VL + qb}, v{MX[qb]}")

def mask_block(g):
    skip = g.newlabel("nomask"); l1 = g.newlabel("m1"); lf = g.newlabel("mf"); do = g.newlabel("domask")
    g.e("s_add_u32 s49, s52, 2")
    g.e("s_cmp_ge_u32 s49, s48")
    g.e(f"s_cbranch_scc1 {do}")
    g.e("s_sub_u32 s49, s52, s46")
    g.e("s_cmp_lt_u32 s49, 2")
    g.e(f"s_cbranch_scc0 {skip}")
    g.label(do)
    g.e("s_and_b32 s49, s52, 1")
    g.e("s_lshl_b32 s49, s49, 1")
    g.e("s_sub_u32 s49, s42, s49")
    def diag(kt, qb):
        for r in range(4): g.e(f"v_cndmask_b32 v{sreg(kt, qb) + r}, v{VNEG}, v{sreg(kt, qb) + r}, s[{8 + 2 * r}:{9 + 2 * r}]")
    def full(kt, qb):
        for r in range(4): g.e(f"v_mov_b32 v{sreg(kt, qb) + r}, v{VNEG}")
    g.e("s_cmp_ge_i32 s49, 2")
    g.e(f"s_cbranch_scc1 {skip}")
    g.e("s_cmp_eq_i32 s49, 1")
    g.e(f"s_cbranch_scc1 {l1}")
    g.e("s_cmp_lt_i32 s49, 0")
    g.e(f"s_cbranch_scc1 {lf}")
    diag(0, 0); full(1, 0); diag(1, 1); full(2, 0); full(2, 1); full(3, 0); full(3, 1)
    g.e(f"s_branch {skip}")
    g.label(l1)
    diag(2, 0); full(3, 0); diag(3, 1)
    g.e(f"s_branch {skip}")
    g.label(lf)
    for kt in range(4):
        for qb in range(2): full(kt, qb)
    g.label(skip)

def m_phase(g, has_pv, zero, split, post=None, pre=None):
    g.vm = []
    if has_pv: g.e("s_barrier")
    dma = dma4(g, 7) + (dma4(g, 51, "s_add_u32 m0, s50, 16384") if split else [])
    sal = [["s_add_u32 s49, s52, 2"], ["s_cmp_ge_u32 s49, s48", "s_cselect_b32 s4, 0, 4"], ["s_sub_u32 s49, s52, s46"], ["s_min_u32 s4, s4, s49"],
           ["s_cmp_lt_u32 s52, s53", "s_cselect_b32 s47, 1, 2"], ["s_add_u32 s47, s47, s52"]]
    sal2 = next_ops(47)
    rq = []
    if has_pv:
        g.ds = []
        sp = DSP if split else 4
        seq = [(kg, cb, qb) for cb in range(8) for qb in range(2) for kg in range(2)] if CH & 2 else [(j >> 3, j & 7, qb) for j in range(16) for qb in range(2)]
        lastuse = {kg * 8 + cb: i for i, (kg, cb, qb) in enumerate(seq)}
        for i, (kg, cb, qb) in enumerate(seq):
            g.e(f"{'MZ' if zero and kg == 0 else 'M'} {oreg(cb, qb)},{freg(kg * 8 + cb)},{preg(qb, kg)}")
            if rq and (i % 2 == 0): rq.pop(0)()
            for j in range(16):
                if lastuse[kslot(j)] == i: rq.append(lambda j=j: g.lds(f"DR {freg(kslot(j))},{VF},{j * 1024}", ("k", j)))
            if i % 2 == 1:
                if dma and (i >> 1) % sp == 0: dma.pop(0)()
                elif sal:
                    for t in sal.pop(0): g.e(t)
    else:
        sp = 2
    PT = int(os.environ.get('PT', '5'))
    if has_pv and not zero: g.stamp_if(7, 52, PT)
    tail = []
    assert NTAIL <= 8
    if has_pv: tail = [[o] for o in softmax_ops(g)[:NTAIL]]
    seq = [(kt, mm, qb) for kt in range(4) for qb in range(2) for mm in range(4)] if CH & 1 else [(j >> 2, j & 3, qb) for j in range(16) for qb in range(2)]
    lastuse = {kt * 4 + mm: i for i, (kt, mm, qb) in enumerate(seq)}
    for i, (kt, mm, qb) in enumerate(seq):
        j, odd = i >> 1, i & 1
        if i == 2 * EB:
            if pre: pre()
            if has_pv and not zero: g.stamp_if(8, 52, PT)
            if has_pv: g.e(f"s_waitcnt vmcnt({8 if split else 4})")
            g.e("s_setprio 2")
            g.e("s_barrier")
        if i == 0: g.wait_ds(("k", 9))
        if i == 12: g.wait_ds(("k", 15))
        f = freg(kslot(kt * 4 + mm))
        if mm == 0: g.e(f"MC {sreg(kt, qb)},{f},{qreg(qb, mm)},{NEGM + qb * 4}")
        else: g.e(f"M {sreg(kt, qb)},{f},{qreg(qb, mm)}")
        did = False
        if rq and (not odd or i >= 28): rq.pop(0)(); did = True
        for jj in range(16):
            if lastuse[jj] == i: rq.append(lambda sl=kslot(jj): g.lds(f"DR {freg(sl)},{VF},{16384 + sl * 1024}", "v"))
        if j >= EB and tail:
            for op in tail.pop(0): op()
        if not has_pv and j >= EB and dma: dma.pop(0)()
        elif has_pv and odd and dma and (j + 16) % sp == 0: dma.pop(0)()
        elif odd and sal:
            for t in sal.pop(0): g.e(t)
        elif not sal and not dma and sal2:
            for t in sal2.pop(0): g.e(t)
    while dma: dma.pop(0)()
    assert not sal
    if post: post()
    for grp in sal2:
        for t in grp: g.e(t)
    while rq: rq.pop(0)()
    g.e("s_setprio 0")
    for w in tail:
        for op in w: op()
    g.vm = []; g.ds = []
    if has_pv:
        g.e("s_cmp_lt_u32 s4, 4")
        g.e("s_cbranch_scc1 L_k2_sgen")
    else:
        g.e("s_branch L_k2_sgen")

def advance(g):
    g.e("s_mov_b32 s52, s47")
    g.e(f"v_add_u32 v{VF}, s19, v{V16}")

def role_ops(dh, dg, dx, dy, t1, t2):
    if BAL:
        ops = [f"s_lshr_b32 s{dg}, s2, 3", f"s_mul_i32 s{t1}, s{dg}, 43", f"s_lshr_b32 s{t1}, s{t1}, 7", f"s_mul_i32 s{t2}, s{t1}, 3",
               f"s_sub_u32 s{t2}, s{dg}, s{t2}", f"s_lshl_b32 s{t2}, s{t2}, 1", f"s_and_b32 s{dh}, s2, 1", f"s_add_u32 s{t2}, s{t2}, s{dh}",
               f"s_sub_u32 s{dh}, s{dg}, 24", f"s_cmp_ge_u32 s{dg}, 24", f"s_cselect_b32 s{t1}, s{dh}, s{t1}", f"s_cselect_b32 s{dg}, 6, s{t2}",
               f"s_and_b32 s{dh}, s2, 6", f"s_and_b32 s{t2}, s{t1}, 1", f"s_add_u32 s{dh}, s{dh}, s{t2}",
               f"s_lshr_b32 s{t1}, s{t1}, 1", f"s_lshl_b32 s{t1}, s{t1}, 3", f"s_add_u32 s{dh}, s{dh}, s{t1}"]
    else:
        ops = [f"s_lshr_b32 s{dg}, s2, 3", f"s_mul_i32 s{t1}, s{dg}, 37", f"s_lshr_b32 s{t1}, s{t1}, 8", f"s_mul_i32 s{t2}, s{t1}, 7",
               f"s_sub_u32 s{dg}, s{dg}, s{t2}", f"s_lshl_b32 s{t1}, s{t1}, 3", f"s_and_b32 s{dh}, s2, 7", f"s_add_u32 s{dh}, s{dh}, s{t1}"]
    return ops + [f"s_sub_u32 s{dx}, 15, s{dg}", f"s_xor_b32 s{dy}, s{dg}, {1 if BAL == 2 else 0}", f"s_add_u32 s{dy}, s{dy}, 4", f"s_cmp_eq_u32 s{dg}, 6",
            f"s_cselect_b32 s{dx}, 3, s{dx}", f"s_cselect_b32 s{dy}, 2, s{dy}"]

def gen_attn(g):
    def setup(fast):
        for t in role_ops(43, 44, 32, 33, 49, 50): g.e(t)
        g.e("s_lshr_b32 s41, s40, 2")
        g.e("s_and_b32 s42, s40, 3")
        g.e(f"s_and_b32 s49, s3, {6 if BAL else 7}")
        g.e("s_lshl_b32 s49, s49, 20")
        g.e("s_add_u32 s60, s6, s49")
        g.e("s_addc_u32 s61, s7, 0")
        g.e(f"s_mov_b32 s62, {2 * MB if BAL else MB}")
        g.e("s_mov_b32 s63, 0x20000")
        if fast: srd(g, 20, 8, 9, 512 * 8192)
        else: srd(g, 20, 4, 5, 512 * 8192)
        srd(g, 24, 16, 17, SZ_XN, WS_XN)
        srd(g, 28, 16, 17, 2 * SZ_KV, WS_K)
        srd(g, 36, 16, 17, SZ_CTX, WS_CTX)
        g.e("s_lshl_b32 s55, s42, 12")
        g.e("s_lshl_b32 s54, s43, 19")
        g.e("s_add_u32 s54, s54, s55")
        g.e("s_lshl_b32 s57, s42, 13")
        g.e(f"s_add_u32 s57, s57, {STASH}")
        g.e("v_and_b32 v28, 63, v0")
        g.e(f"v_lshlrev_b32 v{V16}, 4, v28")
        g.e("v_and_b32 v28, 15, v0")
        g.e("v_bfe_u32 v29, v0, 4, 2")
        g.e("v_lshlrev_b32 v29, 2, v29")
        g.e("v_sub_u32 v28, v28, v29")
        for r in range(4): g.e(f"v_cmp_le_i32 s[{8 + 2 * r}:{9 + 2 * r}], {r}, v28")
        if MERGE:
            g.e("s_mul_i32 s49, s43, 43")
            g.e("s_lshr_b32 s49, s49, 7")
            g.e("s_lshl_b32 s49, s49, 7")
            g.e("s_lshl_b32 s50, s3, 13")
            g.e("s_add_u32 s49, s49, s50")
            g.e("v_and_b32 v14, 15, v0")
            g.e("v_lshl_add_u32 v14, v14, 2, s49")
    def wdma(s):
        g.e(f"s_add_u32 s51, s18, {s * 128 * 8192}")
        g.e(f"s_add_u32 m0, s19, {s * 32768}")
        g.e("s_nop 0")
        for j in range(4):
            g.vmem(f"buffer_load_dwordx4 v{1 + j}, s[20:23], s51 offen offset:{j * 1024} {NTWQ} lds", ("w", s))
    def xload(m):
        if m % 4 == 0:
            g.e(f"s_add_u32 s6, s47, {m * 1024}")
            g.e(f"s_add_u32 s7, s47, {m * 1024 + 16384}")
        for a in range(2):
            x = xreg(a, m)
            g.vmem(f"buffer_load_dwordx4 v[{x}:{x + 3}], v{V16}, s[24:27], s{6 + a} offen offset:{(m % 4) * 1024} {SC}", ("x", m))
    def pf_wsp():
        sk = g.newlabel("nopf")
        g.e("s_cmp_eq_u32 s32, 1")
        g.e(f"s_cbranch_scc1 {sk}")
        g.e("s_and_b32 s34, s2, 0xf8")
        g.e("s_add_u32 s34, s34, s40")
        if BAL:
            g.e("s_and_b32 s49, s2, 1")
            g.e("s_mul_i32 s49, s49, 192")
            g.e("s_add_u32 s34, s34, s49")
        g.e("s_mul_i32 s49, s34, 4736")
        g.e(f"v_lshlrev_b32 v10, 3, v{V16}")
        g.e("v_mov_b32 v12, 0x10000000")
        g.e("v_cmp_gt_u32 vcc, 4736, v10")
        g.e("s_nop 1")
        g.e("v_cndmask_b32 v11, v12, v10, vcc")
        g.e("buffer_load_dword v13, v11, s[60:63], s49 offen")
        if PF4:
            g.e("s_load_dwordx2 s[96:97], s[0:1], 40")
            g.e("s_load_dwordx2 s[98:99], s[0:1], 80")
            if BAL:
                g.e("s_lshr_b32 s49, s3, 1")
                g.e("s_mul_i32 s49, s49, 448")
            else: g.e("s_mul_i32 s49, s3, 224")
            g.e("s_add_u32 s49, s49, s34")
            g.e("v_cmp_gt_u32 vcc, 2432, v10")
            g.e("s_mul_i32 s34, s49, 2432")
            g.e("s_lshl_b32 s35, s49, 9")
            g.e("v_cndmask_b32 v11, v12, v10, vcc")
            g.e("v_cmp_gt_u32 vcc, 512, v10")
            g.e("s_waitcnt lgkmcnt(0)")
            srd(g, 60, 96, 97, 4 * MB)
            g.e("buffer_load_dword v13, v11, s[60:63], s34 offen")
            g.e("v_cndmask_b32 v11, v12, v10, vcc")
            srd(g, 60, 98, 99, 896 * 1024)
            g.e("buffer_load_dword v13, v11, s[60:63], s35 offen")
        g.label(sk)
    def first_tile(t):
        g.e("s_lshl_b32 s49, s41, 24")
        g.e("s_add_u32 s50, s54, s49")
        if t: g.e("s_add_u32 s50, s50, 16384")
        return dma4(g, 50, f"s_add_u32 m0, s19, {t * 32768}", "kv")
    def w0_only(fn):
        sk = g.newlabel("w0")
        g.e("s_cmp_eq_u32 s32, 1")
        g.e("s_cselect_b32 s49, 1, s40")
        g.e("s_cmp_lg_u32 s49, 0")
        g.e(f"s_cbranch_scc1 {sk}")
        fn()
        g.label(sk)
    def fmap(s, f):
        if k1.CHG: return (f >> 4, f & 3, (f >> 2) & 3)
        return (f >> 4, (f >> 2) & 3, f & 3) if s == 3 else ((f >> 2) & 1, f >> 3, f & 3)
    def qpack(p):
        ops = []
        I = lambda s: ops.append(lambda s=s: g.e(s))
        for a in range(2):
            for mm in range(2):
                x, y = areg(p, 2 * mm, a), areg(p, 2 * mm + 1, a)
                assert x == qreg(a, 2 * p + mm)
                for r in range(4): I(f"v_mul_f32 v{x + r}, s56, v{x + r}")
                for r in range(4): I(f"v_mul_f32 v{y + r}, s56, v{y + r}")
                I(f"PK {x},{x},{x + 1}"); I(f"PK {x + 1},{x + 2},{x + 3}")
                I(f"PK {x + 2},{y},{y + 1}"); I(f"PK {x + 3},{y + 2},{y + 3}")
        return ops
    def qphase(fast):
        if not fast: w_voffsets(g, 8192, 1)
        g.e("s_lshl_b32 s18, s43, 8")
        g.e("s_lshl_b32 s49, s42, 18")
        g.e("s_add_u32 s18, s18, s49")
        g.e("s_lshl_b32 s49, s41, 7")
        g.e("s_add_u32 s18, s18, s49")
        g.e("s_lshl_b32 s19, s40, 12")
        g.e("s_cmp_eq_u32 s41, 0")
        g.e("s_cselect_b32 s47, s32, s33")
        g.e("s_lshl_b32 s47, s47, 17")
        g.e("s_lshl_b32 s49, s42, 15")
        g.e("s_add_u32 s47, s47, s49")
        if PROF == 1: g.stamp(6)
        if not fast:
            wdma(0)
            for m in range(2): xload(m)
            if not MERGE: code_touch(g, 96, 14, "L_k2_sp")
            g.e("s_barrier")
            for m in range(2, 4): xload(m)
            later = {0: lambda: wdma(1), 22: lambda: wdma(2), 50: lambda: wdma(3)}
            for m, F in zip(range(4, 16), XSCH): later[F] = lambda m=m: xload(m)
            tr_bases(g, 5, 6)
            FS, FL = 0, 20
        else:
            later = {0: lambda: wdma(2), 30: lambda: wdma(3)}
            if k1.QTAIL:
                for m, F in zip(range(12, 16), (8, 16, 38, 52)): later[F] = lambda m=m: xload(m)
            else:
                for m, F in zip(range(8, 16), (4, 10, 16, 22, 36, 42, 52, 60)): later[F] = lambda m=m: xload(m)
            g.e("v_xor_b32 v5, 0x10000, v5")
            g.e("v_xor_b32 v6, 0x10000, v6")
            g.e("v_mov_b32 v13, 0")
            FS, FL = 1, 46
        g.e(f"s_mov_b32 s56, {f32(QSCALE)}")
        g.e("s_lshl_b32 s48, s32, 1")
        g.e("s_add_u32 s48, s48, 2")
        if 'a' in HACK:
            g.e("s_cmp_ge_u32 s32, 10")
            g.e("s_cselect_b32 s49, 2, 0")
            g.e("s_sub_u32 s33, s33, s49")
            g.e("s_lshr_b32 s49, s49, 1")
            g.e("s_add_u32 s33, s33, s49")
        g.e("s_lshl_b32 s45, s33, 1")
        g.e("s_add_u32 s45, s45, 2")
        g.e("s_sub_u32 s53, s45, s41")
        g.e("s_sub_u32 s46, s45, 2")
        g.e("s_cmp_eq_u32 s41, 0")
        g.e("s_cselect_b32 s46, 0x1000, s46")
        g.stamp(1)
        if MERGE: later[FL] = lambda: w0_only(lambda: flag_load(g, 13, 14, 100))
        def wread(F, half=None):
            s, f = F >> 5, F & 31
            if s >= 4: return
            if f == 0 and half != 1:
                g.wait_vm(("w", s), "kv", *(["st"] if s == FS else []))
                if MERGE and s == 2: w0_only(lambda: flag_wait(g, 13, 14, 59, 100, SLA, True))
                g.e("s_barrier")
                if MERGE and s == FS: w0_only(lambda: flag_set(g, 10, 58, 59, 100))
                if s == 2:
                    g.e("v_xor_b32 v5, 0x10000, v5")
                    g.e("v_xor_b32 v6, 0x10000, v6")
                if s >= 2:
                    for op in first_tile(s - 2): op()
            p, ks, cb = fmap(s, f)
            mp = p * 4 + ks
            r = WR + (F % 8) * 4
            for a in (range(2) if half is None else [half]):
                o = (s & 1) * 32768 + mp * 4096 + a * 512 + (cb >> 1) * 256
                g.lds(f"TR {r + 2 * a},{6 if cb & 1 else 5},{o}", ("w", F))
        CHG = k1.CHG
        for F in range(8 if CHG else D): wread(F)
        fill = []; rq = []
        for s in range(4):
            if PROF == 1: g.stamp(7 + s)
            for f in range(32):
                F = s * 32 + f
                if F == 116: fill = qpack(0)
                for h in range(2):
                    if CHG:
                        i = (f & 3) * 2 + h
                        Fm, a = (F & ~3) + (i & 3), i >> 2
                    else: Fm, a = F, h
                    p, ks, cb = fmap(s, Fm & 31)
                    m = s * 4 + ks
                    if p == 0 and cb == 0 and a == 0: g.wait_vm(("x", m))
                    if a == 0: g.wait_ds(("w", Fm))
                    r = WR + (Fm % 8) * 4
                    g.e(f"{'MZ' if m == 0 else 'M'} {areg(p, cb, a)},{r},{xreg(a, m)}")
                    if CHG:
                        if rq: rq.pop(0)()
                        if a == 1: rq += [lambda Fm=Fm: wread(Fm + 8, 0), lambda Fm=Fm: wread(Fm + 8, 1)]
                    else: wread(F + D, h)
                    if fill: fill.pop(0)(); fill.pop(0)()
                if F in later: later.pop(F)()
        assert not fill and not later
    if k1.QFAST:
        g.label("L_p2f")
        g.stamp(0)
        if PROF: g.e("s_memrealtime s[94:95]")
        g.vm = list(k1.FAST_VM); g.ds = []
        g.e("s_and_b32 s3, s2, 7")
        setup(True)
        qphase(True)
        g.e("s_branch L_k2_qend")
    g.vm = []; g.ds = []
    g.label("L_k2_attn")
    setup(False)
    if MERGE: g.e("s_barrier")
    g.label("L_k2_round")
    qphase(False)
    g.label("L_k2_qend")
    g.stamp(2)
    g.e("s_mov_b32 s47, 0")
    for grp in next_ops(47):
        for t in grp: g.e(t)
    advance(g)
    g.vm = []; g.ds = []
    for j in range(16): g.e(f"DR {freg(kslot(j))},{VF},{j * 1024}")
    for op in qpack(1): op()
    g.e(f"v_mov_b32 v{VNEG}, {f32(-1e30)}")
    g.e(f"s_mov_b32 s56, {f32(2.0 ** 60)}")
    g.e(f"s_mov_b32 s6, {f32(2.0 ** -60)}")
    for i in range(8): g.e(f"v_mov_b32 v{NEGM + i}, 0")
    g.e(f"v_add_u32 v9, s57, v{V16}")
    g.e("s_waitcnt vmcnt(0) lgkmcnt(0)")
    g.stamp(3)
    la = g.newlabel("qa")
    g.e("s_cmp_eq_u32 s41, 0")
    g.e(f"s_cbranch_scc1 {la}")
    g.e("s_barrier")
    g.label(la)
    def post0():
        if PFS: pf_wsp()
    def pre0():
        sk = g.newlabel("nost")
        g.e("s_cmp_eq_u32 s41, 0")
        g.e(f"s_cbranch_scc0 {sk}")
        for qb in range(2):
            for mm in range(4): g.e(f"DW 9,{qreg(qb, mm)},{(qb * 4 + mm) * 1024}")
        g.label(sk)
    m_phase(g, False, False, False, post0, pre0)
    def s_fast(tag):
        g.label(f"L_k2_s{tag}")
        PT = int(os.environ.get('PT', '5'))
        g.stamp_if(9, 52, PT)
        for op in softmax_ops(g)[NTAIL:]: op()
        g.e(f"v_max_f32 v{VT}, v{VLT}, v{VLT + 1}")
        g.e(f"v_cmp_lt_f32 vcc, s56, v{VT}")
        g.e("s_cbranch_vccnz L_k2_sgen")
        for qb in range(2): g.e(f"v_add_f32 v{VL + qb}, v{VL + qb}, v{VLT + qb}")
        g.stamp_if(10, 52, PT)
        if PROF == 2:
            g.e("s_waitcnt vmcnt(0) lgkmcnt(0)")
            g.stamp_if(11, 52, PT)
        advance(g)
        if tag == "sh": g.e("s_cmp_lt_u32 s52, s45")
        g.e("s_waitcnt lgkmcnt(0)" if tag == "sh" else "s_waitcnt vmcnt(0) lgkmcnt(0)")
    s_fast("sh")
    g.e("s_cbranch_scc0 L_k2_msp")
    g.label("L_k2_msh")
    g.stamp_if(6, 52, int(os.environ.get('PT', '5'))); g.stamp_if(12, 52, int(os.environ.get('PT', '5')) + 1)
    m_phase(g, True, False, False)
    g.e("s_branch L_k2_ssh")
    s_fast("sp")
    g.label("L_k2_msp")
    m_phase(g, True, False, True)
    g.e("s_branch L_k2_ssp")
    g.label("L_k2_mzsh")
    m_phase(g, True, True, False)
    g.e("s_branch L_k2_ssh")
    g.label("L_k2_mzsp")
    m_phase(g, True, True, True)
    g.e("s_branch L_k2_ssp")
    EXP = os.environ.get('ATEXP', '')
    if EXP:
        i0 = g.lines.index("L_k2_ssh:")
        keep = []
        for l in g.lines[i0:]:
            if 'd' in EXP and l.startswith('buffer_load'): continue
            if 'r' in EXP and l.startswith('DR '): continue
            if 'e' in EXP and l.startswith('v_exp'): l = l.replace('v_exp_f32', 'v_mov_b32')
            if 'v' in EXP and (l.startswith('v_exp') or l.startswith('PK') or (l.startswith('v_add_f32 v8') or l.startswith('v_add_f32 v9'))): continue
            if 'b' in EXP and l.startswith('s_cbranch_vccnz'): continue
            keep.append(l)
        g.lines[i0:] = keep
    def ctx_base(blk):
        g.e(f"s_lshl_b32 s49, s{blk}, 3")
        g.e("s_lshl_b32 s35, s42, 1")
        g.e("s_add_u32 s49, s49, s35")
        g.e("s_mul_i32 s49, s49, 159744")
        g.e("s_lshl_b32 s35, s43, 12")
        g.e("s_add_u32 s34, s49, s35")
        g.e("s_add_u32 s35, s34, 159744")
    def pack_store(mm, qb, fl=STF2):
        x, y = oreg(2 * mm, qb), oreg(2 * mm + 1, qb)
        return [f"PK {x},{x},{x + 1}", f"PK {x + 1},{x + 2},{x + 3}", f"PK {x + 2},{y},{y + 1}", f"PK {x + 3},{y + 2},{y + 3}",
                f"buffer_store_dwordx4 v[{x}:{x + 3}], v{V16}, s[36:39], s{34 + qb} offen offset:{mm * 1024} {fl}"]
    g.label("L_k2_sgen")
    def st5(i, val):
        if PROF == 5:
            l = g.newlabel("st"); g.e(f"s_cmp_lg_u32 s52, {val}"); g.e(f"s_cbranch_scc1 {l}"); g.stamp(i); g.label(l)
    st5(4, 0); st5(7, 8); st5(9, 9); st5(11, 11)
    if PROF == 5: g.stamp(13)
    g.e("s_sub_u32 s49, s52, s46")
    g.e("s_cmp_eq_u32 s49, 3")
    g.e("s_cselect_b32 s5, 2, 0")
    g.e("s_cmp_eq_u32 s52, 0")
    g.e("s_cselect_b32 s5, 1, s5")
    g.e("s_cselect_b32 s18, s6, 0")
    g.e("s_cmp_eq_u32 s5, 2")
    g.e("s_cselect_b32 s18, s6, s18")
    mask_block(g)
    ny = g.newlabel("ny"); jy = g.newlabel("jy")
    g.e("s_cmp_eq_u32 s5, 2")
    g.e(f"s_cbranch_scc0 {ny}")
    ctx_base(33)
    so = softmax_ops(g)
    k = 0
    for mm in range(4):
        for qb in range(2):
            for cb in (2 * mm, 2 * mm + 1):
                for r in range(4): g.e(f"v_mul_f32 v{oreg(cb, qb) + r}, v{oreg(cb, qb) + r}, v{FA + qb}")
            for t in pack_store(mm, qb): g.e(t)
            n = 9 if k < 2 else 10
            for op in so[:n]: op()
            so = so[n:]; k += 1
    assert not so
    g.e(f"s_branch {jy}")
    g.label(ny)
    for op in softmax_ops(g): op()
    g.label(jy)
    g.e(f"v_max_f32 v{VT}, v{VLT}, v{VLT + 1}")
    g.e(f"v_min_f32 v{TMP}, v{VLT}, v{VLT + 1}")
    g.e(f"v_cmp_lt_f32 vcc, s56, v{VT}")
    g.e("s_cbranch_vccnz L_k2_slow")
    g.e(f"v_cmp_gt_f32 vcc, s18, v{TMP}")
    g.e("s_cbranch_vccnz L_k2_slow")
    g.label("L_k2_back")
    nf = g.newlabel("nf")
    g.e("s_cmp_eq_u32 s5, 0")
    g.e(f"s_cbranch_scc1 {nf}")
    for qb in range(2): g.e(f"v_mov_b32 v{VL + qb}, 0")
    g.label(nf)
    for qb in range(2): g.e(f"v_add_f32 v{VL + qb}, v{VL + qb}, v{VLT + qb}")
    g.e("s_add_u32 s49, s52, 2")
    g.e("s_cmp_ge_u32 s49, s48")
    g.e("s_cbranch_scc1 L_k2_xlast")
    nl = g.newlabel("nyl")
    g.e("s_sub_u32 s49, s52, s46")
    g.e("s_cmp_eq_u32 s49, 1")
    g.e(f"s_cbranch_scc0 {nl}")
    g.e(f"v_add_u32 v10, s57, v{V16}")
    for qb in range(2):
        for mm in range(4): g.e(f"DR {qreg(qb, mm)},10,{(qb * 4 + mm) * 1024}")
    xgroup(g, [VL, VL + 1], "v_add_f32", TMP + 2)
    for qb in range(2): g.e(f"v_rcp_f32 v{FA + qb}, v{VL + qb}")
    for i in range(8): g.e(f"v_mov_b32 v{NEGM + i}, 0")
    g.label(nl)
    st5(6, 0); st5(8, 8); st5(10, 9); st5(12, 11)
    advance(g)
    g.e("s_cmp_lt_u32 s52, s45")
    g.e("s_cselect_b32 s49, 0, 4")
    g.e("s_add_u32 s5, s5, s49")
    w8 = g.newlabel("w8")
    g.e("s_and_b32 s49, s5, 3")
    g.e(f"s_cbranch_scc1 {w8}")
    g.e("s_waitcnt vmcnt(0)")
    g.label(w8)
    g.e("s_waitcnt vmcnt(8) lgkmcnt(0)")
    g.e("s_cmp_eq_u32 s5, 0")
    g.e("s_cbranch_scc1 L_k2_msh")
    g.e("s_cmp_eq_u32 s5, 4")
    g.e("s_cbranch_scc1 L_k2_msp")
    g.e("s_cmp_eq_u32 s5, 1")
    g.e("s_cbranch_scc1 L_k2_mzsh")
    g.e("s_branch L_k2_mzsp")
    g.label("L_k2_xlast")
    if PROF == 5: g.stamp(14)
    g.e("s_and_b32 s49, s48, 3")
    g.e("s_lshl_b32 s49, s49, 15")
    g.e("s_lshl_b32 s50, s42, 13")
    g.e("s_add_u32 s50, s50, s49")
    g.e(f"v_add_u32 v11, s50, v{V16}")
    g.e(f"v_add_u32 v10, s57, v{V16}")
    g.e("s_xor_b32 s49, s49, 0x10000")
    g.e("s_lshl_b32 s50, s42, 10")
    g.e("s_add_u32 s49, s49, s50")
    g.e(f"v_add_u32 v{VT}, s49, v{V16}")
    xaddr = lambda i: (10 + (i >> 3), (i & 7) * 1024)
    def pvgroup(cb, zero, mid=()):
        mid = list(mid)
        for kg in range(2):
            for qb in range(2):
                g.e(f"{'MZ' if zero and kg == 0 else 'M'} {oreg(cb, qb)},{freg(kg * 8 + cb)},{preg(qb, kg)}")
                n = -(-len(mid) // (4 - (kg * 2 + qb)))
                for _ in range(n): mid.pop(0)()
    g.e("s_cmp_eq_u32 s41, 0")
    g.e("s_cbranch_scc0 L_k2_xlastB")
    g.e(f"v_mov_b32 v{ML}, v{NEGM}")
    g.e(f"v_mov_b32 v{ML + 1}, v{NEGM + 4}")
    g.e(f"v_mov_b32 v{ML + 2}, v{VL}")
    g.e(f"v_mov_b32 v{ML + 3}, v{VL + 1}")
    g.e(f"DW {VT},{ML},0")
    g.e("s_waitcnt vmcnt(0) lgkmcnt(0)")
    g.e("s_barrier")
    dw = lambda i: (lambda: g.e(f"DW {xaddr(i)[0]},{OR + i * 4},{xaddr(i)[1]}"))
    for cb in range(8):
        pvgroup(cb, False, [dw(2 * cb - 6), dw(2 * cb - 5)] if cb >= 3 else [])
    for i in range(10, 12): dw(i)()
    g.e("s_nop 3")
    for i in range(12, 16): dw(i)()
    g.e("s_waitcnt lgkmcnt(0)")
    g.e("s_barrier")
    g.e("s_branch L_k2_rend")
    g.label("L_k2_xlastB")
    g.e(f"DR {ML},{VT},0")
    ctx_base(32)
    NM = TMP
    g.e("s_waitcnt lgkmcnt(0)")
    for qb in range(2): g.e(f"v_min_f32 v{NM + qb}, v{ML + qb}, v{NEGM + 4 * qb}")
    for qb in range(2): g.e(f"v_sub_f32 v{FA + qb}, v{NM + qb}, v{ML + qb}")
    for qb in range(2): g.e(f"v_sub_f32 v{FB + qb}, v{NM + qb}, v{NEGM + 4 * qb}")
    for i in range(4): g.e(f"v_exp_f32 v{FA + i}, v{FA + i}")
    g.e("s_nop 0")
    for qb in range(2): g.e(f"v_mul_f32 v{VL + qb}, v{VL + qb}, v{FB + qb}")
    for qb in range(2): g.e(f"v_fmac_f32 v{VL + qb}, v{ML + 2 + qb}, v{FA + qb}")
    xgroup(g, [VL, VL + 1], "v_add_f32", TMP + 2)
    for qb in range(2): g.e(f"v_rcp_f32 v{VL + qb}, v{VL + qb}")
    g.e("s_nop 0")
    for qb in range(2): g.e(f"v_mul_f32 v{FA + qb}, v{FA + qb}, v{VL + qb}")
    for qb in range(2): g.e(f"v_mul_f32 v{FB + qb}, v{FB + qb}, v{VL + qb}")
    lz = g.newlabel("finz")
    g.e("s_cmp_eq_u32 s5, 0")
    g.e(f"s_cbranch_scc0 {lz}")
    for zero in (False, True):
        if zero: g.label(lz)
        g.ds = []
        for cb in range(4): pvgroup(cb, zero)
        g.e("s_barrier")
        def merge_ops(mm):
            ops = []
            I = lambda t: ops.append(lambda t=t: g.e(t))
            for qb in range(2):
                for cb in (2 * mm, 2 * mm + 1):
                    o = oreg(cb, qb)
                    for r in range(4): I(f"v_mul_f32 v{o + r}, v{o + r}, v{FB + qb}")
                    ops.append(lambda cb=cb, qb=qb: g.wait_ds(("o", cb, qb)))
                    for r in range(4): I(f"v_fmac_f32 v{o + r}, v{freg(qb * 8 + cb) + r}, v{FA + qb}")
                for t in pack_store(mm, qb, STFX): I(t)
            return ops
        xr = lambda cb, qb: (lambda: g.lds(f"DR {freg(qb * 8 + cb)},{xaddr(cb * 2 + qb)[0]},{xaddr(cb * 2 + qb)[1]}", ("o", cb, qb)))
        for cb in range(3): xr(cb, 0)(); xr(cb, 1)()
        m0 = merge_ops(0)
        for cb in range(4, 8):
            mid = [xr(cb - 1, 0), xr(cb - 1, 1)]
            if cb == 6: mid += m0[:len(m0) // 2]
            if cb == 7: mid += m0[len(m0) // 2:]
            pvgroup(cb, zero, mid)
        xr(7, 0)(); xr(7, 1)()
        for op in merge_ops(1) + merge_ops(2) + merge_ops(3): op()
        if not zero: g.e("s_branch L_k2_rend")
    g.label("L_k2_rend")
    g.stamp(5)
    g.e("s_cmp_eq_u32 s32, 3")
    g.e("s_cbranch_scc0 L_k2_aend")
    g.stamp(4)
    g.e("s_mov_b32 s32, 1")
    g.e("s_mov_b32 s33, 0")
    g.e("s_waitcnt vmcnt(0) lgkmcnt(0)")
    g.e("s_barrier")
    g.e("s_branch L_k2_round")
    g.label("L_k2_aend")
    skc = g.newlabel("nocode")
    g.e("s_cmp_eq_u32 s44, 6")
    g.e(f"s_cbranch_scc0 {skc}")
    code_touch(g, 96, 14, "L_all_end", "L_p3", False)
    if HOT:
        g.e("s_load_dwordx2 s[96:97], s[0:1], 40")
        g.e("s_and_b32 s49, s43, 0x1e")
        g.e("s_add_u32 s49, s49, s41")
        g.e("s_lshl_b32 s49, s49, 17")
        g.e("s_lshl_b32 s50, s42, 15")
        g.e("s_add_u32 s49, s49, s50")
        g.e("v_and_b32 v12, 31, v0")
        g.e("v_lshlrev_b32 v12, 10, v12")
        g.e("v_bfe_u32 v13, v0, 5, 1")
        g.e("v_lshl_add_u32 v12, v13, 9, v12")
        g.e("s_waitcnt lgkmcnt(0)")
        g.e(f"s_mov_b32 s98, {4 * MB}")
        g.e("s_mov_b32 s99, 0x20000")
        g.e("buffer_load_dword v13, v12, s[96:99], s49 offen offset:384")
        if HOT > 1: g.e("buffer_load_dword v13, v12, s[96:99], s49 offen offset:256")
    g.label(skc)
    if PF2:
        sk = g.newlabel("nopf")
        g.e("s_cmp_eq_u32 s44, 6")
        g.e(f"s_cbranch_scc0 {sk}")
        g.e("s_cmp_eq_u32 s41, 1")
        g.e(f"s_cbranch_scc0 {sk}")
        g.e("s_load_dwordx2 s[20:21], s[0:1], 40")
        g.e("s_load_dwordx2 s[28:29], s[0:1], 80")
        g.e("s_lshl_b32 s49, s43, 2")
        g.e("s_add_u32 s49, s49, s42")
        g.e(f"v_lshlrev_b32 v10, 3, v{V16}")
        g.e("s_lshl_b32 s50, s49, 15")
        g.e("s_mul_i32 s51, s49, 7168")
        g.e("s_waitcnt lgkmcnt(0)")
        g.e(f"s_mov_b32 s22, {4 * MB}")
        g.e("s_mov_b32 s23, 0x20000")
        g.e(f"s_mov_b32 s30, {896 * 1024}")
        g.e("s_mov_b32 s31, 0x20000")
        for i in range(4):
            g.e(f"buffer_load_dword v{12 + i}, v10, s[20:23], s50 offen")
            g.e("s_add_u32 s50, s50, 8192")
        g.e("buffer_load_dword v11, v10, s[28:31], s51 offen")
        g.label(sk)
    g.stamp_dump(16, 17, 40, 1)
    if MERGE == 2:
        g.e("s_lshl_b32 s58, s44, 2")
        g.e("s_bfe_u32 s49, s43, 0x20001")
        g.e("s_add_u32 s58, s58, s49")
        g.e("s_add_u32 s58, s58, 21")
        g.e("s_lshl_b32 s58, s58, 7")
        g.e("s_lshr_b32 s49, s43, 3")
        g.e("s_lshl_b32 s49, s49, 3")
        g.e("s_add_u32 s58, s58, s49")
        g.e("s_and_b32 s49, s43, 1")
        g.e("s_lshl_b32 s49, s49, 2")
        g.e("s_add_u32 s58, s58, s49")
        g.e("s_branch L_p3")
    else: g.e("s_endpgm")
    g.label("L_k2_slow")
    l1 = g.newlabel("slow1"); l2 = g.newlabel("slow2")
    g.e("s_cmp_eq_u32 s5, 0")
    g.e(f"s_cbranch_scc0 {l1}")
    rescale(g, False)
    g.e(f"s_branch {l2}")
    g.label(l1)
    rescale(g, True)
    g.label(l2)
    for op in softmax_ops(g): op()
    g.e("s_branch L_k2_back")

def gen_spatial(g):
    ACC, AR, BB, Z1R = 144, 116, 84, 24
    ZB, ZS = 98304, 14336
    VWD = 80
    acc = lambda fb, tt: ACC + (fb * 4 + tt) * 4
    g.vm = []; g.ds = []
    g.label("L_k2_sp")
    g.e("s_lshl_b32 s57, s3, 13")
    g.e("s_and_b32 s44, s41, 3")
    if BAL:
        g.e("s_bfe_u32 s49, s41, 0x10002")
        g.e("s_add_u32 s3, s3, s49")
    g.e("s_and_b32 s42, s40, 3")
    g.e("s_lshr_b32 s41, s40, 2")
    srd(g, 20, 6, 7, 2048 * 4096)
    srd(g, 24, 16, 17, SZ_Z, WS_Z2)
    g.e("v_and_b32 v28, 63, v0")
    g.e(f"v_lshlrev_b32 v{V16}, 4, v28")
    g.e("v_bfe_u32 v28, v0, 3, 3")
    g.e("v_and_b32 v29, 7, v0")
    g.e("v_lshrrev_b32 v30, 1, v28")
    g.e("v_xor_b32 v29, v29, v30")
    g.e("s_lshl_b32 s49, s3, 8")
    g.e("s_lshl_b32 s50, s40, 5")
    g.e("s_add_u32 s49, s49, s50")
    g.e("v_add_u32 v28, s49, v28")
    g.e("v_lshlrev_b32 v28, 12, v28")
    g.e("v_xor_b32 v30, 4, v29")
    g.e("v_lshl_add_u32 v29, v29, 4, v28")
    g.e("v_lshl_add_u32 v30, v30, 4, v28")
    for j in range(4): g.e(f"v_add_u32 v{VWD + j}, {j * 8 * 4096 - j * 1024}, v{29 + (j & 1)}")
    g.e("s_lshl_b32 s48, s40, 1")
    g.e("s_min_u32 s48, s48, 12")
    g.e("s_mul_i32 s49, s44, 14")
    g.e("s_add_u32 s49, s49, s48")
    g.e("s_lshl_b32 s43, s49, 10")
    g.e("s_mov_b32 s45, 0")
    g.e("s_lshl_b32 s46, s40, 12")
    g.e("s_lshl_b32 s47, s48, 10")
    g.e(f"s_add_u32 s47, s47, {ZB}")
    def wop(b, j):
        if j % 2 == 0:
            g.e(f"s_add_u32 m0, s46, {(b % 3) * 32768}")
            g.e("s_nop 0")
        g.vmem(f"buffer_load_dwordx4 v{VWD + j}, s[20:23], s45 offen offset:{j * 1024} {NTSP} lds", ("w", 2 * b))
        if j == 3: g.e("s_add_u32 s45, s45, 128")
    def zop(st, j):
        if j == 0:
            g.e(f"s_add_u32 m0, s47, {(st % 4) * ZS}")
            g.e("s_nop 0")
        g.vmem(f"buffer_load_dwordx4 v{V16}, s[24:27], s43 offen offset:{j * 1024} {SC} lds", ("z", st))
        if j == 1: g.e("s_add_u32 s43, s43, 57344")
    def dma_ops(st):
        b, h = st // 2 + 2, st & 1
        return [lambda: zop(st + 3, 0), lambda: zop(st + 3, 1), lambda: wop(b, 2 * h), lambda: wop(b, 2 * h + 1)]
    if MERGE:
        g.e("s_waitcnt vmcnt(0)")
        g.e("s_barrier")
        nw = g.newlabel("nw"); nw2 = g.newlabel("nw")
        g.e("s_cmp_lg_u32 s40, 0")
        g.e(f"s_cbranch_scc1 {nw}")
        if k1.STKV == '':
            g.e("buffer_wbl2 sc1")
            g.e("s_waitcnt vmcnt(0)")
        flag_set(g, 10, 58, 59, 100)
        g.e("v_min_u32 v14, 55, v0")
        g.e("v_and_b32 v15, 7, v14")
        g.e("v_lshrrev_b32 v14, 3, v14")
        g.e("v_lshlrev_b32 v14, 7, v14")
        g.e("v_lshl_add_u32 v14, v15, 2, v14")
        g.e(f"s_add_u32 s49, s57, {14 * 128 + 32}")
        g.e("v_add_u32 v14, s49, v14")
        flag_load(g, 12, 14, 100)
        g.label(nw)
        g.e("s_barrier")
        for j in range(4): wop(0, j)
        if SPT:
            g.e("s_lshl_b32 s49, s44, 3")
            g.e("s_add_u32 s49, s49, s40")
            g.e("s_lshl_b32 s49, s49, 15")
            g.e("s_lshl_b32 s50, s3, 20")
            g.e("s_add_u32 s49, s49, s50")
            g.e("v_bfe_u32 v9, v0, 3, 3")
            g.e("v_lshlrev_b32 v9, 12, v9")
            g.e("v_and_b32 v8, 7, v0")
            g.e("v_lshl_add_u32 v9, v8, 7, v9")
            for i in range(SPT): g.vmem(f"buffer_load_dword v8, v9, s[20:23], s49 offen offset:{128 + 1024 * i}", ("w", 0))
        g.e("s_cmp_lg_u32 s40, 0")
        g.e(f"s_cbranch_scc1 {nw2}")
        g.e(f"s_waitcnt vmcnt({4 + SPT})")
        flag_wait(g, 12, 14, 59, 100, SLS, True)
        g.e("v_min_u32 v14, 39, v0")
        g.e("v_and_b32 v15, 3, v14")
        g.e("v_lshrrev_b32 v14, 2, v14")
        g.e("v_lshlrev_b32 v14, 7, v14")
        g.e("v_lshl_add_u32 v14, v15, 3, v14")
        g.e(f"s_add_u32 s49, s57, {11 * 128}")
        g.e("v_add_u32 v14, s49, v14")
        g.label(nw2)
        g.e("s_barrier")
        zop(0, 0); zop(0, 1)
    else:
        zop(0, 0); zop(0, 1)
        for j in range(4): wop(0, j)
        code_touch(g, 96, 14, "L_k2_spend", None, False)
    srd(g, 12, 8, 9, 4096)
    g.e("v_and_b32 v11, 15, v0")
    g.e("v_lshlrev_b32 v11, 1, v11")
    g.e("s_lshl_b32 s49, s3, 9")
    g.e("s_lshl_b32 s50, s42, 7")
    g.e("s_add_u32 s49, s49, s50")
    for tt in range(4): g.vmem(f"buffer_load_ushort v{16 + tt}, v11, s[12:15], s49 offen offset:{tt * 32}", ("w", 0))
    g.e("s_barrier")
    zop(1, 0); zop(1, 1)
    if MERGE < 2:
        srd(g, 28, 16, 17, 32768, WS_PART + 8 * MB)
        g.e("s_sub_u32 s49, s2, 224")
        g.e("s_lshl_b32 s49, s49, 10")
        g.e("v_lshrrev_b32 v28, 6, v0")
        g.e(f"v_lshl_add_u32 v28, v28, 24, v{V16}")
        for i in range(4): g.e(f"v_mov_b32 v{20 + i}, 0")
        g.e("buffer_store_dwordx4 v[20:23], v28, s[28:31], s49 offen")
    srd(g, 28, 16, 17, SZ_Z, WS_Z1)
    srd(g, 36, 16, 17, SZ_CTX, WS_CTX)
    g.e("s_mul_i32 s49, s41, 7168")
    g.e(f"s_add_u32 s49, s49, {ZB}")
    g.e(f"v_add_u32 v4, s49, v{V16}")
    g.e("v_and_b32 v28, 15, v0")
    g.e("v_bfe_u32 v29, v0, 4, 2")
    g.e("v_lshrrev_b32 v30, 1, v28")
    g.e("v_xor_b32 v29, v29, v30")
    g.e("v_lshlrev_b32 v29, 4, v29")
    g.e("v_lshl_add_u32 v29, v28, 7, v29")
    g.e("s_lshl_b32 s49, s42, 13")
    g.e("v_add_u32 v1, s49, v29")
    g.e("v_xor_b32 v2, 64, v1")
    g.e("v_add_u32 v5, 0x10000, v1")
    g.e("v_add_u32 v6, 0x10000, v2")
    def aread(st, fb): g.lds(f"DR {AR + fb * 4},4,{(st % 4) * ZS + fb * 1024}", ("a", st, fb))
    def bread(st, tt):
        sl = (st // 2) % 3
        g.lds(f"DR {BB + (st & 1) * 16 + tt * 4},{(5 if sl == 2 else 1) + (st & 1)},{(sl & 1) * 32768 + tt * 2048}", ("b", st))
    SCH = {(3, 0): ("a", 0), (3, 1): ("b", 0), (3, 2): ("b", 1), (4, 0): ("b", 2), (4, 1): ("b", 3), (4, 2): ("a", 1), (5, 0): ("a", 2), (6, 0): ("a", 3)}
    rd = lambda st, k: (aread if k[0] == "a" else bread)(st, k[1])
    g.wait_vm(("z", 0), ("w", 0))
    g.e("s_barrier")
    for key in sorted(SCH): rd(0, SCH[key])
    for tt in range(4):
        for r in range(4): g.e(f"v_lshlrev_b32 v{24 + tt * 4 + r}, 16, v{16 + tt}")
    g.e("s_mov_b32 s52, 0")
    g.stamp(1)
    def step(st, extra=(), dma=4, nxt=True, init=False):
        extra = list(extra)
        pend = []
        for fb in range(7):
            g.wait_ds(("a", st, fb), ("b", st))
            for tt in range(4):
                if init: g.e(f"MC {acc(fb, tt)},{AR + fb * 4},{BB + (st & 1) * 16 + tt * 4},{24 + tt * 4}")
                else: g.e(f"M {acc(fb, tt)},{AR + fb * 4},{BB + (st & 1) * 16 + tt * 4}")
                if tt == 0 and fb < 3: aread(st, fb + 4)
                if nxt:
                    if (fb, tt) == (3, 0):
                        g.wait_vm(("z", st + 1), ("w", st + 1))
                        g.e("s_barrier")
                        pend = dma_ops(st)[:dma]
                    if (fb, tt) in SCH: rd(st + 1, SCH[(fb, tt)])
                if tt == 3 and pend: pend.pop(0)()
                if tt in (1, 3) and extra and fb < 3:
                    extra.pop(0)()
        assert not pend and not extra
    step(0, [lambda j=j: wop(1, j) for j in range(4)] + [lambda: zop(2, 0), lambda: zop(2, 1)], init=True)
    for st in range(1, 4): step(st)
    g.label("L_k2_sploop")
    vm0, ds0 = list(g.vm), list(g.ds)
    for st in range(4, 16): step(st)
    ren = lambda t: (t[0], t[1] - 12) + t[2:]
    g.vm = [ren(t) for t in g.vm]; g.ds = [ren(t) for t in g.ds]
    assert g.vm == vm0 and g.ds == ds0, (g.vm, vm0, g.ds, ds0)
    g.e("s_add_u32 s52, s52, 1")
    g.e("s_cmp_lt_u32 s52, 4")
    g.e("s_cbranch_scc1 L_k2_sploop")
    g.stamp(2)
    g.e("s_lshl_b32 s49, s3, 4")
    g.e("s_lshl_b32 s50, s42, 2")
    g.e("s_add_u32 s49, s49, s50")
    g.e("s_mul_i32 s54, s49, 28672")
    g.e("s_mul_i32 s55, s49, 159744")
    g.e(f"s_add_u32 s55, s55, {128 * 1024}")
    for tt in range(4):
        g.e(f"v_add_u32 v{16 + tt}, {tt * 28672}, v{V16}")
        g.e(f"v_add_u32 v{20 + tt}, {tt * 159744}, v{V16}")
    g.e("s_mul_i32 s56, s44, 14")
    g.e("s_mul_i32 s48, s41, 7")
    g.e("s_add_u32 s56, s56, s48")
    g.e("s_lshr_b32 s56, s56, 1")
    g.e("s_lshl_b32 s56, s56, 10")
    g.e("s_add_u32 s54, s54, s56")
    g.e("s_add_u32 s55, s55, s56")
    def z1load(u):
        for tt in range(4):
            r = Z1R + (u * 4 + tt) * 4
            g.vmem(f"buffer_load_dwordx4 v[{r}:{r + 3}], v{16 + tt}, s[28:31], s54 offen offset:{u * 1024} {SC}", ("z1", u))
    for st in range(4, 16):
        ex = {8: 0, 10: 1, 12: 2, 15: 3}
        def w0(fn):
            sk = g.newlabel("w0")
            g.e("s_cmp_lg_u32 s40, 0"); g.e(f"s_cbranch_scc1 {sk}")
            fn(); g.label(sk)
        fl = []
        if MERGE and st == 4: fl = [lambda: w0(lambda: flag_load(g, 12, 14, 100, True))]
        if MERGE and st == 7: fl = [lambda: w0(lambda: flag_wait(g, 12, 14, 59, 100, SLS, True, True))]
        step(st, [lambda u=ex[st]: z1load(u)] if st in ex else fl, dma=4 if st < 12 else (2 if st == 12 else 0), nxt=st < 15)
    g.stamp(4)
    g.e("s_nop 4")
    g.e("s_mov_b32 s53, 0xffff0000")
    g.e("s_lshl_b32 s49, s42, 11")
    g.e("s_add_u32 s49, s49, 155648")
    g.e(f"v_lshrrev_b32 v12, 1, v{V16}")
    g.e("v_add_u32 v12, s49, v12")
    vm_sv = list(g.vm)
    lode = g.newlabel("spodd"); lend = g.newlabel("spend")
    g.e("s_cmp_eq_u32 s41, 1")
    g.e(f"s_cbranch_scc1 {lode}")
    for fh in range(2):
        g.vm = list(vm_sv)
        if fh: g.label(lode)
        for u in range(4):
            halves = [(h, 2 * u + h - fh) for h in range(2) if 0 <= 2 * u + h - fh < 7]
            g.wait_vm(("z1", u))
            if u == 3:
                g.e("s_waitcnt lgkmcnt(0)")
                g.e("s_barrier")
                if fh == 0:
                    for tt in range(4): g.e(f"ds_read_b64 v[{Z1R + (12 + tt) * 4 + 2}:{Z1R + (12 + tt) * 4 + 3}], v12 offset:{tt * 512}")
            for tt in range(4):
                z = Z1R + (u * 4 + tt) * 4
                for h, fb in halves:
                    a = acc(fb, tt); t = 8 if h else 1
                    g.e(f"v_lshlrev_b32 v{t}, 16, v{z + 2 * h}")
                    g.e(f"v_and_b32 v{t + 1}, s53, v{z + 2 * h}")
                    g.e(f"v_lshlrev_b32 v{t + 2}, 16, v{z + 2 * h + 1}")
                    g.e(f"v_and_b32 v{t + 3}, s53, v{z + 2 * h + 1}")
                    for r in range(4): g.e(f"v_mul_f32 v{a + r}, v{a + r}, v{t + r}")
                    g.e(f"PK {z + 2 * h},{a},{a + 1}"); g.e(f"PK {z + 2 * h + 1},{a + 2},{a + 3}")
                if fh == 1 and u == 0:
                    g.e(f"ds_write_b64 v12, v[{z + 2}:{z + 3}] offset:{tt * 512}")
                else:
                    if fh == 0 and u == 3: g.e(f"s_waitcnt lgkmcnt({3 - tt})")
                    g.vmem(f"buffer_store_dwordx4 v[{z}:{z + 3}], v{20 + tt}, s[36:39], s55 offen offset:{u * 1024} {STFU}", "st")
        if fh == 0: g.e(f"s_branch {lend}")
    g.label(lend)
    g.stamp(3)
    g.stamp_dump(16, 17, 40, 1)
    if MERGE == 2:
        g.e("s_add_u32 s58, s44, 49")
        g.e("s_lshl_b32 s58, s58, 7")
        g.e("s_lshl_b32 s49, s3, 2")
        g.e("s_add_u32 s58, s58, s49")
        g.e("s_branch L_p3")
    else: g.e("s_endpgm")

def gen_k2(g):
    if not MERGE:
        g.e(".p2align 8")
        g.e(".type k2_kernel,@function")
        g.label("k2_kernel")
        g.e("s_cmp_ge_u32 s2, 256")
        g.e("s_cbranch_scc1 L_k2_end")
    g.label("L_p2")
    g.stamp(0)
    if PROF: g.e("s_memrealtime s[94:95]")
    g.e("s_load_dwordx2 s[4:5], s[0:1], 16")
    g.e("s_load_dwordx4 s[8:11], s[0:1], 64")
    g.e("s_load_dwordx2 s[16:17], s[0:1], 104")
    g.e("v_lshrrev_b32 v1, 6, v0")
    g.e("s_and_b32 s3, s2, 7")
    g.e("s_lshr_b32 s41, s2, 3")
    g.e("v_readfirstlane_b32 s40, v1")
    g.e("s_waitcnt lgkmcnt(0)")
    g.e("s_mov_b32 s6, s8")
    g.e("s_mov_b32 s7, s9")
    g.e("s_mov_b32 s8, s10")
    g.e("s_mov_b32 s9, s11")
    if MERGE:
        nw = g.newlabel("nw")
        g.e("s_cmp_lg_u32 s40, 0")
        g.e(f"s_cbranch_scc1 {nw}")
        g.e("s_lshl_b32 s49, s3, 13")
        g.e(f"s_add_u32 s49, s49, {53 * 128 + 64}")
        g.e("v_lshrrev_b32 v14, 3, v0")
        g.e("v_lshlrev_b32 v14, 7, v14")
        g.e("v_and_b32 v15, 7, v0")
        g.e("v_lshl_add_u32 v14, v15, 2, v14")
        g.e("v_add_u32 v15, s49, v14")
        flag_wait(g, 13, 15, 59, 100, SLA, True)
        g.e("v_mov_b32 v13, 0")
        g.label(nw)
    if BAL:
        g.e("s_bitcmp1_b32 s2, 0")
        g.e("s_cbranch_scc1 L_k2_attn")
    g.e(f"s_cmp_lt_u32 s41, {24 if BAL else 28}")
    g.e("s_cbranch_scc1 L_k2_attn")
    g.e("s_branch L_k2_sp")
    g.label("L_k2_end")
    g.e("s_endpgm")
    gen_attn(g)
    gen_spatial(g)
    g.label("L_k2_spend")
```

```python
from asmlib import *
import math

XR = 128
ACC = [64, 96]
WR = 32
D = 6
C2 = -2.0 * math.sqrt(2.0 / math.pi) * math.log2(math.e)
C1 = C2 * 0.044715
NPKV = int(os.environ.get('NPKV', '6'))
NPZ = int(os.environ.get('NPZ', '3'))
GKV = -(-64 // NPKV); GZ = 7
assert NPKV == 6 and NPZ == 3
GMAP = [[0, 1, 2, 25, 3, 4, 26, 10], [11, 12, 13, 27, 14, 15, 28, 21], [5, 6, 29, 7, 8, 30, 9, 23], [16, 17, 31, 18, 22, 19, 20, 24]]
ZODD = int(os.environ.get('ZODD', '0'))
if ZODD: GMAP = [[0, 1, 2, 3, 25, 4, 26, 10], [11, 12, 13, 14, 27, 15, 28, 21], [5, 6, 7, 8, 29, 9, 30, 23], [16, 17, 18, 19, 31, 20, 22, 24]]
assert sorted(sum(GMAP, [])) == list(range(32))
NTW = os.environ.get('NTW', '')
PF = int(os.environ.get('PF', '97'))
CLU = int(os.environ.get('CLU', '1'))
PFW = int(os.environ.get('PFW', '0'))
NTP = os.environ.get('NTP', '')
PF3 = int(os.environ.get('PF3', '0'))
ZPUB = int(os.environ.get('ZPUB', '20'))
MIX = int(os.environ.get('MIX', '1'))
PFWS = int(os.environ.get('PFWS', '16'))
ROT = int(os.environ.get('ROT', '3'))
SL0 = int(os.environ.get('SL0', '0')); SL1 = int(os.environ.get('SL1', '4'))
LT = int(os.environ.get('LT', '0'))
PFL = eval(os.environ.get('PFL', '[0,2,4,8,10,11,14,18,22,23]'))
PROT = int(os.environ.get('PROT', '0'))
ZA = int(os.environ.get('ZA', '10')); ZP = int(os.environ.get('ZP', '12')); ZC = int(os.environ.get('ZC', '12'))
STKV = os.environ.get('STKV', 'sc1')
QFAST = int(os.environ.get('QFAST', '1')) and MERGE
FAST_VM = []
SPT1 = int(os.environ.get('SPT1', '1'))
IB = int(os.environ.get('IB', '2'))
WSP = int(os.environ.get('WSP', '6'))
XPF = int(os.environ.get('XPF', '0'))
QTAIL = int(os.environ.get('QTAIL', '1'))
CHG = int(os.environ.get('CHG', '1'))
ZFAST = int(os.environ.get('ZFAST', '0'))
QMID = int(os.environ.get('QMID', '0'))
QROT = int(os.environ.get('QROT', '0'))
STF = os.environ.get('STF', 'sc1')

def xreg(a, m): return XR + (m * 2 + a) * 4
def areg(st, cb, a): return ACC[st] + (cb * 2 + a) * 4

def w_voffsets(g, rowstride, vbase):
    g.e("v_bfe_u32 v28, v0, 5, 1")
    g.e("v_bfe_u32 v29, v0, 2, 2")
    g.e("v_lshl_add_u32 v28, v28, 2, v29")
    g.e(f"v_mul_u32_u24 v28, {rowstride}, v28")
    g.e("v_bfe_u32 v29, v0, 4, 1")
    g.e("v_lshl_add_u32 v28, v29, 6, v28")
    g.e("v_and_b32 v29, 3, v0")
    g.e("v_xor_b32 v30, 2, v29")
    g.e("v_lshlrev_b32 v29, 4, v29")
    g.e("v_lshlrev_b32 v30, 4, v30")
    for j in range(4):
        g.e(f"v_add_u32 v31, {j * 8 * rowstride - j * 1024}, v28")
        g.e(f"v_add_u32 v{vbase + j}, v31, v{29 + (j & 1)}")

def tr_bases(g, ve, vo):
    g.e("v_bfe_u32 v28, v0, 4, 2")
    g.e("v_lshlrev_b32 v29, 10, v28")
    g.e("v_bfe_u32 v30, v0, 2, 2")
    g.e("v_lshl_add_u32 v29, v30, 6, v29")
    g.e("v_and_b32 v30, 3, v0")
    g.e("v_lshl_add_u32 v29, v30, 3, v29")
    g.e("v_and_b32 v28, 1, v28")
    g.e(f"v_lshl_add_u32 v{ve}, v28, 5, v29")
    g.e(f"v_xor_b32 v{vo}, 32, v{ve}")

def gelu_ops(regs, T, vc2, sc1, stats=None):
    out = []
    n = len(T)
    for i in range(0, len(regs), n):
        grp = list(zip(regs[i:i + n], T))
        out += [f"v_mul_f32 v{t}, v{x}, v{x}" for x, t in grp]
        out += [f"v_fma_f32 v{t}, v{t}, s{sc1}, v{vc2}" for x, t in grp]
        out += [f"v_mul_f32 v{t}, v{t}, v{x}" for x, t in grp]
        out += [f"v_exp_f32 v{t}, v{t}" for x, t in grp]
        out += [f"v_add_f32 v{t}, 1.0, v{t}" for x, t in grp]
        out += [f"v_rcp_f32 v{t}, v{t}" for x, t in grp]
        out += [f"v_mul_f32 v{x}, v{x}, v{t}" for x, t in grp]
        if stats:
            out += [f"v_add_f32 v{stats[x][0]}, v{stats[x][0]}, v{x}" for x, t in grp]
            out += [f"v_fmac_f32 v{stats[x][1]}, v{x}, v{x}" for x, t in grp]
    return out

def ln_params(g, MEAN, VAR, n):
    def rbf(rs):
        for r in rs: g.e(f"PK {r},{r},{r}")
        for r in rs: g.e(f"v_and_b32 v{r}, 0xffff0000, v{r}")
    for m, v in zip(MEAN, VAR):
        g.e(f"v_mul_f32 v{m}, {f32(1 / n)}, v{m}")
        g.e(f"v_mul_f32 v{v}, {f32(1 / n)}, v{v}")
    for m, v in zip(MEAN, VAR): g.e(f"v_fma_f32 v{v}, -v{m}, v{m}, v{v}")
    for v in VAR: g.e(f"v_max_f32 v{v}, 0, v{v}")
    rbf(list(MEAN) + list(VAR))
    for v in VAR: g.e(f"v_add_f32 v{v}, {f32(1e-5)}, v{v}")
    rbf(VAR)
    for v in VAR: g.e(f"v_sqrt_f32 v{v}, v{v}")
    g.e("s_nop 0")
    rbf(VAR)
    for v in VAR: g.e(f"v_rcp_f32 v{v}, v{v}")
    g.e("s_nop 0")
    for m, v in zip(MEAN, VAR): g.e(f"v_mul_f32 v{m}, v{m}, v{v}")

def gen_type(g, T):
    ktp = lambda p: T in ("K", "Z1") or (T == "Z2" and p == 2)
    ztype = T in ("Z1", "Z2")
    rowstride = 3584 if ztype else 8192
    NP = NPZ if ztype else NPKV
    NTOT = 14 if ztype else 64
    NG = {"Z1": 3, "Z2": GZ}.get(T, GKV)
    NS = {"Z1": 2, "Z2": 3}.get(T, NTOT - (NG - 1) * NP)
    SHORT0 = {"Z1": 1}.get(T, NG - 1)
    VW = 1
    VTE, VTO = 5, 6
    VST = 7
    VC2 = 8
    VXA = 20
    VXR = (9, 11)
    TMP = [9, 10, 11, 12]
    STAT = 16
    g.vm = []; g.ds = []
    g.label(f"L_k1_{T}")
    g0 = {"K": 0, "V": GKV, "Z1": 2 * GKV, "Z2": 2 * GKV + 3}[T]
    g.e(f"s_sub_u32 s42, s3, {g0}")
    g.e("v_and_b32 v28, 63, v0")
    g.e(f"v_lshlrev_b32 v{VST}, 4, v28")
    if ztype:
        srd(g, 24, 4, 5, 2 * MB)
        g.e(f"s_sub_u32 s54, s3, {2 * GKV}")
        g.e("s_and_b32 s49, s54, 7")
        g.e("s_lshl_b32 s49, s49, 5")
        g.e("s_lshl_b32 s50, s41, 8")
        g.e("s_add_u32 s49, s49, s50")
        g.e("s_lshl_b32 s50, s40, 2")
        g.e("s_add_u32 s55, s49, s50")
        g.e("s_lshl_b32 s49, s55, 10")
        g.e("v_and_b32 v28, 3, v0")
        g.e("v_bfe_u32 v29, v0, 2, 4")
        g.e("v_lshlrev_b32 v30, 4, v29")
        g.e("v_lshl_add_u32 v30, v28, 10, v30")
        for i in range(4): g.vmem(f"buffer_load_dwordx4 v[{64 + 4 * i}:{67 + 4 * i}], v30, s[24:27], s49 offen offset:{256 * i}", "ln")
    else:
        srd(g, 24, 6, 7, 2 * MB)
    if T == "K": srd(g, 20, 10, 11, 512 * 8192)
    if T == "V": srd(g, 20, 12, 13, 512 * 8192)
    if ztype: srd(g, 20, 14, 15, 512 * 3584)
    if T == "Z1":
        g.e("s_lshl_b32 s58, s42, 1")
        g.e("s_add_u32 s58, s58, 8")
        g.e("s_cmp_eq_u32 s42, 0")
        g.e("s_cselect_b32 s58, 7, s58")
    elif T == "Z2": g.e("s_lshl_b32 s58, s42, 1")
    else: g.e(f"s_mul_i32 s58, s42, {NP}")
    colbase = 1792 if T == "Z2" else 0
    g.e("s_lshl_b32 s44, s58, 7")
    if colbase: g.e(f"s_add_u32 s44, s44, {colbase}")
    if ztype: g.e(f"s_mov_b32 s45, {colbase + (NTOT - 1) * 128}")
    else:
        g.e(f"s_cmp_lt_u32 s42, {SHORT0}")
        g.e(f"s_cselect_b32 s45, {NP}, {NS}")
        g.e("s_bfe_u32 s63, s2, 0x20003" if PROT else "s_mov_b32 s63, 0")
        g.e("s_lshl_b32 s63, s63, 1")
        g.e("s_cmp_ge_u32 s63, s45")
        g.e("s_cselect_b32 s49, s45, 0")
        g.e("s_sub_u32 s63, s63, s49")
    def pair_ops(p, d):
        return [f"s_add_u32 s{d}, s63, {p % 4 if p >= NS else p}" if False else f"s_add_u32 s{d}, s63, {p}",
                (f"s_cmp_ge_u32 s{d}, s45", "s_cselect_b32 s62, s45, 0"), f"s_sub_u32 s{d}, s{d}, s62"]
    g.e("s_lshl_b32 s46, s40, 12")
    g.e("s_bfe_u32 s60, s2, 0x20005" if (ROT and (not ztype or ROT > 2)) else "s_mov_b32 s60, 0")
    if ROT >= 2 and (not ztype or ROT > 2):
        g.e("s_bfe_u32 s49, s2, 0x20003")
        g.e("s_add_u32 s60, s60, s49")
        g.e(f"s_and_b32 s60, s60, {os.environ.get('RM', '3')}")
        if os.environ.get('RSH'): g.e("s_lshl_b32 s60, s60, 1")
    g.e("s_lshl_b32 s49, s60, 2")
    g.e("s_add_u32 s49, s49, s40")
    g.e("s_and_b32 s50, s49, 15")
    g.e(f"s_mul_i32 s56, s50, {32 * rowstride}")
    g.e("s_xor_b32 s50, s50, 8")
    g.e(f"s_mul_i32 s61, s50, {32 * rowstride}")
    g.e("s_and_b32 s57, s40, 3")
    g.e(f"s_mul_i32 s57, s57, {32 * rowstride}")
    g.e("s_lshr_b32 s49, s40, 2")
    g.e("s_lshl_b32 s49, s49, 7")
    g.e("s_add_u32 s57, s57, s49")
    if not ztype:
        g.e("s_lshl_b32 s49, s63, 7")
        g.e("s_add_u32 s57, s57, s49")
    g.e("s_add_u32 s57, s57, s44")
    NST = 2 * NP
    NQ = 4
    QT = QTAIL and QFAST and not ztype
    QM = QMID and QT and CHG
    def fmap(s, f):
        if CHG:
            G, k = f >> 2, f & 3
            if s < NQ or (QT and s >= 8) or QM: return 2 * (s >> 2) + (G >> 2), 4 * (s & 3) + k, G & 3, (G >> 2) * 4 + k
            return s >> 1, (s & 1) * 8 + (G >> 2) * 4 + k, G & 3, (G >> 2) * 4 + k
        cb = f & 3
        if s < NQ:
            p, ks = (f >> 4, (f >> 2) & 3) if s == 3 else ((f >> 2) & 1, f >> 3)
            return p, 4 * s + ks, cb, p * 4 + ks
        if QT and s >= 8:
            p, ks = (f >> 4, (f >> 2) & 3) if s in (8, 11) else ((f >> 2) & 1, f >> 3)
            return 4 + p, 4 * (s - 8) + ks, cb, p * 4 + ks
        return s >> 1, (s & 1) * 8 + (f >> 2), cb, f >> 2
    XPOS = [3, 4, 3, 4, 3, 4, 4, 4]
    def xdma_ops(q):
        ops = []
        for i in range(4):
            def op(i=i):
                if i == 0:
                    g.e(f"s_add_u32 s43, s60, {q >> 1}")
                    g.e("s_and_b32 s43, s43, 3")
                    g.e("s_lshl_b32 s43, s43, 8")
                    if q & 1: g.e("s_add_u32 s43, s43, 128")
                g.e(f"s_add_u32 m0, s46, {XPOS[q] * 32768}")
                g.e("s_nop 0")
                g.vmem(f"buffer_load_dwordx4 v{VXA + i}, s[24:27], s43 offen offset:{i * 1024} lds", ("x", q))
            ops.append(op)
        return ops
    def xread(q):
        g.wait_vm(("x", q))
        for ks in range(2):
            for a in range(2):
                g.lds(f"DR {xreg(a, 2 * q + ks)},{VXR[(XPOS[q] >> 1) - 1] + ks},{(XPOS[q] & 1) * 32768 + a * 2048}", ("x", q))
    def wdma_ops(s, sr=51):
        if s >= NST and QFAST and not ztype:
            def op(j):
                if j == 0:
                    g.e(f"s_lshr_b32 s{sr}, s2, 3" if QROT else f"s_mov_b32 s{sr}, 0")
                    g.e(f"s_add_u32 s{sr}, s{sr}, {s - NST}")
                    g.e(f"s_and_b32 s{sr}, s{sr}, 3")
                    g.e(f"s_lshl_b32 s{sr}, s{sr}, 20")
                    g.e(f"s_add_u32 s{sr}, s{sr}, s54")
                g.e(f"s_add_u32 m0, s46, {(s % 4) * 32768}")
                g.e("s_nop 0")
                g.vmem(f"buffer_load_dwordx4 v{VW + j}, s[32:35], s{sr} offen offset:{j * 1024} lds", ("wq", s - NST))
            return [lambda j=j: op(j) for j in range(4)]
        if s >= NST: return []
        ops = []
        for j in range(4):
            def op(j=j):
                if j == 0:
                    if s < NQ or (QT and s >= 8) or QM:
                        g.e(f"s_add_u32 s{sr}, s60, {s & 3}")
                        g.e(f"s_and_b32 s{sr}, s{sr}, 3")
                        g.e(f"s_mul_i32 s{sr}, s{sr}, {128 * rowstride}")
                        g.e(f"s_add_u32 s{sr}, s{sr}, s57")
                        if 4 <= s < 8: g.e(f"s_add_u32 s{sr}, s{sr}, 256")
                        if s >= 8:
                            g.e("s_cmp_gt_u32 s45, 4")
                            g.e("s_cselect_b32 s62, 512, 0")
                            g.e(f"s_add_u32 s{sr}, s{sr}, s62")
                    else:
                        p, kh = s >> 1, s & 1
                        if T == "Z2" and p == 2: g.e(f"s_lshl_b32 s{sr}, s42, 7")
                        elif ztype:
                            g.e(f"s_add_u32 s{sr}, s44, {p * 128}")
                            g.e(f"s_min_u32 s{sr}, s{sr}, s45")
                        else:
                            for t in pair_ops(p, sr):
                                for u in ((t,) if isinstance(t, str) else t): g.e(u)
                            g.e(f"s_lshl_b32 s{sr}, s{sr}, 7")
                            g.e(f"s_add_u32 s{sr}, s{sr}, s44")
                        g.e(f"s_add_u32 s{sr}, s{sr}, s{61 if kh else 56}")
                g.e(f"s_add_u32 m0, s46, {(s % 4) * 32768}")
                g.e("s_nop 0")
                g.vmem(f"buffer_load_dwordx4 v{VW + j}, s[20:23], s{sr} offen offset:{j * 1024} {NTW} lds", ("w", s))
            ops.append(op)
        return ops
    def run(ops):
        for op in ops: op()
    def w0(fn):
        sk = g.newlabel("w0")
        g.e("s_cmp_lg_u32 s40, 0"); g.e(f"s_cbranch_scc1 {sk}")
        fn(); g.label(sk)
    def rb_line(dst, extra):
        g.e(f"s_add_u32 s{dst}, s41, 53")
        g.e(f"s_lshl_b32 s{dst}, s{dst}, 7")
        if extra: g.e(f"s_add_u32 s{dst}, s{dst}, {extra}")
    def rb_poll_addr(v, n, extra):
        rb_line(49, extra)
        g.e("s_and_b32 s50, s2, 7")
        g.e("s_lshl_b32 s50, s50, 13")
        g.e("s_add_u32 s49, s49, s50")
        g.e(f"v_min_u32 v{v}, {n - 1}, v0")
        g.e(f"v_lshl_add_u32 v{v}, v{v}, 2, s49")

    w_voffsets(g, rowstride, VW)
    if not ztype:
        run(wdma_ops(0, 47))
        g.e("v_bfe_u32 v28, v0, 3, 3")
        g.e("v_and_b32 v29, 7, v0")
        g.e("v_lshrrev_b32 v30, 1, v28")
        g.e("v_xor_b32 v29, v29, v30")
        g.e("s_lshl_b32 s49, s41, 8")
        g.e("s_lshl_b32 s50, s40, 5")
        g.e("s_add_u32 s49, s49, s50")
        g.e("v_add_u32 v28, s49, v28")
        g.e("v_lshlrev_b32 v28, 10, v28")
        g.e("v_xor_b32 v30, 4, v29")
        g.e("v_lshl_add_u32 v29, v29, 4, v28")
        g.e("v_lshl_add_u32 v30, v30, 4, v28")
        for i in range(4): g.e(f"v_add_u32 v{VXA + i}, {i * 8192 - i * 1024}, v{29 + (i & 1)}")
        run(xdma_ops(0))
        code_touch(g, 36, 14, f"L_k1_{T}_end")
        g.e("s_barrier")
        if IB >= 1: run(xdma_ops(1))
        if IB >= 2: run(wdma_ops(1, 47))
        g.e("v_and_b32 v28, 15, v0")
        g.e("v_bfe_u32 v29, v0, 4, 2")
        g.e("v_lshrrev_b32 v30, 1, v28")
        g.e("v_xor_b32 v29, v29, v30")
        g.e("v_lshlrev_b32 v29, 4, v29")
        g.e("v_lshl_add_u32 v29, v28, 7, v29")
        g.e("s_add_u32 s49, s46, 0x10000")
        g.e(f"v_add_u32 v{VXR[0]}, s49, v29")
        g.e(f"v_xor_b32 v{VXR[0] + 1}, 64, v{VXR[0]}")
        for ks in range(2): g.e(f"v_add_u32 v{VXR[1] + ks}, 0x10000, v{VXR[0] + ks}")
    else:
        code_touch(g, 36, 255, f"L_k1_{T}_end")
        srd(g, 24, 16, 17, WS_XNP + SZ_XN, 0)
        ZLT = len(g.lines)
        g.e("s_mov_b32 s53, 0xffff0000")
        g.e(f"s_mov_b32 s52, {f32(C1)}")
        g.e(f"v_mov_b32 v{VC2}, {f32(C2)}")
        g.e("s_lshr_b32 s55, s55, 5")
        g.e("s_lshl_b32 s55, s55, 15")
        g.e("s_add_u32 s55, s55, s46")
        g.e(f"s_add_u32 s62, s55, {WS_XNP}")
        g.e("s_lshr_b32 s49, s40, 2")
        g.e("s_lshl_b32 s49, s49, 14")
        g.e("s_and_b32 s50, s40, 3")
        g.e("s_lshl_b32 s50, s50, 6")
        g.e("s_add_u32 s49, s49, s50")
        g.e("s_add_u32 s49, s49, 0x20000")
        g.e("v_and_b32 v28, 3, v0")
        g.e("v_lshlrev_b32 v28, 4, v28")
        g.e("v_bfe_u32 v29, v0, 2, 2")
        g.e("v_lshl_add_u32 v28, v29, 8, v28")
        g.e("v_bfe_u32 v29, v0, 4, 2")
        g.e("v_lshl_add_u32 v28, v29, 10, v28")
        g.e("v_add_u32 v13, s49, v28")
        g.e("s_add_u32 s49, s46, 0x20000")
        g.e(f"v_add_u32 v16, s49, v{VST}")
        g.e("s_and_b32 s49, s46, 0x3fff")
        g.e("s_lshr_b32 s50, s40, 2")
        g.e("s_lshl_b32 s50, s50, 6")
        g.e("s_add_u32 s49, s49, s50")
        g.e("s_add_u32 s49, s49, 0x20000")
        g.e("v_bfe_u32 v17, v0, 3, 1")
        g.e("v_lshlrev_b32 v17, 14, v17")
        g.e("v_bfe_u32 v28, v0, 2, 1")
        g.e("v_lshl_add_u32 v17, v28, 7, v17")
        g.e("v_and_b32 v28, 0x33, v0")
        g.e("v_lshl_add_u32 v17, v28, 4, v17")
        g.e("v_add_u32 v17, s49, v17")
        rb_poll_addr(15, 8, 0)
        nol = g.newlabel("noln")
        g.e("s_cmp_ge_u32 s54, 8")
        g.e(f"s_cbranch_scc1 {nol}")
        g.e("v_mov_b32 v9, 0")
        g.e("v_mov_b32 v10, 0")
        g.wait_vm("ln")
        g.stamp(8)
        g.e("v_mov_b32 v14, 20")
        w0(lambda: dbg_load(g, 14, 14, 18))
        for i in range(16):
            g.e(f"v_lshlrev_b32 v{96 + 2 * i}, 16, v{64 + i}")
            g.e(f"v_and_b32 v{97 + 2 * i}, s53, v{64 + i}")
        for i in range(32):
            g.e(f"v_add_f32 v9, v9, v{96 + i}")
            g.e(f"v_fmac_f32 v10, v{96 + i}, v{96 + i}")
        for sh in (4, 8):
            g.e("s_nop 1")
            for r in (9, 10): g.e(f"v_add_f32_dpp v{r}, v{r}, v{r} row_ror:{sh} row_mask:0xf bank_mask:0xf")
        for sw in ("v_permlane32_swap_b32", "v_permlane16_swap_b32"):
            for i in range(2): g.e(f"v_mov_b32 v{11 + i}, v{9 + i}")
            g.e("s_nop 1")
            for i in range(2): g.e(f"{sw} v{11 + i}, v{9 + i}")
            g.e("s_nop 1")
            for i in range(2): g.e(f"v_add_f32 v{9 + i}, v{9 + i}, v{11 + i}")
        ln_params(g, [9], [10], 512)
        for i in range(4):
            for e in range(8): g.e(f"v_fma_f32 v{96 + 8 * i + e}, v{96 + 8 * i + e}, v10, -v9")
            for r in range(4): g.e(f"PK {64 + 4 * i + r},{96 + 8 * i + 2 * r},{97 + 8 * i + 2 * r}")
            g.e(f"DW 13,{64 + 4 * i},{i * 4096}")
        g.e("s_waitcnt lgkmcnt(0)")
        g.e("s_barrier")
        for i in range(4): g.e(f"DR {96 + 4 * i},17,{i * 1024}")
        for i in range(4):
            g.e(f"s_waitcnt lgkmcnt({3 - i})")
            g.e(f"buffer_store_dwordx4 v[{96 + 4 * i}:{99 + 4 * i}], v{VST}, s[24:27], s62 offen offset:{(i & 3) * 1024} sc1")
        g.e("v_mov_b32 v11, 1")
        g.stamp(9)
        g.e("s_waitcnt vmcnt(0)")
        g.e("s_barrier")
        g.stamp(10)
        done = g.newlabel("sdone"); chk = g.newlabel("schk")
        g.e("s_cmp_lg_u32 s40, 0")
        g.e(f"s_cbranch_scc1 {done}")
        nonce_get(g, 14, 14, 2, True)
        rb_line(47, 0)
        g.e("s_lshl_b32 s49, s54, 2")
        g.e("s_add_u32 s47, s47, s49")
        flag_set(g, 10, 47, 59, 100)
        g.e(f"s_branch {chk}")
        g.label(nol)
        g.e("s_cmp_lg_u32 s40, 0")
        g.e(f"s_cbranch_scc1 {done}")
        if SL0: g.e(f"s_sleep {SL0}")
        nonce_get(g, 14, 14, 2, False)
        g.label(chk)
        flag_wait(g, 11, 15, 59, 100, SL1, False)
        g.label(done)
        g.vm = []
        run(wdma_ops(0, 47))
        g.e("s_mov_b32 s62, s55")
        g.e("s_mov_b32 s48, s54")
        g.e("s_lshl_b32 s49, s41, 18")
        g.e("s_lshl_b32 s50, s40, 15")
        g.e("s_add_u32 s54, s49, s50")
        g.e(f"s_add_u32 s54, s54, {WS_XNP}")
        g.e("s_barrier")
        g.stamp(11)
        def xload(m):
            if m % 4 == 0:
                g.e(f"s_add_u32 s63, s60, {m >> 2}")
                g.e("s_and_b32 s63, s63, 3")
                g.e("s_lshl_b32 s63, s63, 12")
                g.e("s_add_u32 s63, s63, s54")
                g.e(f"s_add_u32 s55, s63, 16384")
            for a in range(2):
                x = xreg(a, m)
                g.vmem(f"buffer_load_dwordx4 v[{x}:{x + 3}], v{VST}, s[24:27], s{55 if a else 63} offen offset:{(m % 4) * 1024} sc1", ("x", m))
        for m in range(4): xload(m)
    def lin_touch():
        g.e("s_lshl_b32 s43, s2, 3")
        g.e("s_add_u32 s43, s43, s40")
        g.e(f"v_lshlrev_b32 v26, 3, v{VST}")
        g.e("v_bfe_u32 v27, v0, 4, 2")
        g.e("v_lshl_add_u32 v26, v27, 28, v26")
        g.e("s_lshl_b32 s49, s43, 11")
        srd(g, 36, 10, 11, 4 * MB)
        g.vmem("buffer_load_dword v254, v26, s[36:39], s49 offen", "t")
        srd(g, 36, 12, 13, 4 * MB)
        g.vmem("buffer_load_dword v254, v26, s[36:39], s49 offen", "t")
        srd(g, 36, 14, 15, 512 * 3584)
        g.vmem("buffer_load_dword v254, v26, s[36:39], s49 offen", "t")
    if LT == 1 and not ztype: lin_touch()
    if LT and ztype:
        n0 = len(g.lines); sv = list(g.vm)
        lin_touch()
        blk = g.lines[n0:]; del g.lines[n0:]; g.lines[ZLT:ZLT] = blk; g.vm = sv
        k = g.lines.index(f"s_waitcnt vmcnt({CPF})", ZLT); g.lines[k] = f"s_waitcnt vmcnt({CPF + 3})"
    off, sz = {"K": (WS_K, SZ_KV), "V": (WS_V, SZ_KV), "Z1": (WS_Z1, SZ_Z), "Z2": (WS_Z2, SZ_Z)}[T]
    srd(g, 28, 16, 17, sz, off)
    tr_bases(g, VTE, VTO)
    if T == "Z2":
        for i in range(16): g.e(f"v_mov_b32 v{STAT + i}, 0")
    if T == "Z1":
        g.e("v_bfe_u32 v16, v0, 3, 1")
        g.e("v_lshlrev_b32 v16, 6, v16")
        g.e("v_bfe_u32 v18, v0, 2, 1")
        g.e("v_lshl_add_u32 v16, v18, 7, v16")
        g.e("v_and_b32 v18, 0x33, v0")
        g.e("v_lshl_add_u32 v16, v18, 4, v16")

    def outbase(I, p):
        if T == "Z2" and p == 2: I("s_mov_b32 s48, s42")
        elif ztype: I(f"s_add_u32 s48, s58, {p}")
        else:
            I("\n".join(u for t in pair_ops(p, 48) for u in ((t,) if isinstance(t, str) else t)))
            I("s_add_u32 s48, s48, s58")
        if T in ("K", "V"):
            I("s_lshr_b32 s49, s48, 1")
            I("s_lshl_b32 s49, s49, 19")
            I("s_and_b32 s48, s48, 1")
            I(f"s_lshl_b32 s48, s48, {11 if T == 'K' else 12}")
            I("s_add_u32 s48, s48, s49")
            I("s_lshl_b32 s49, s41, 16")
            I("s_add_u32 s48, s48, s49")
            I("s_lshl_b32 s49, s40, 13")
            I("s_add_u32 s48, s48, s49")
            I("s_add_u32 s50, s48, 4096")
        else:
            I(f"s_lshl_b32 s48, s48, {11 if ktp(p) else 12}")
            I("s_lshl_b32 s49, s41, 3")
            I("s_add_u32 s49, s49, s40")
            I("s_mul_i32 s49, s49, 57344")
            I("s_add_u32 s48, s48, s49")
            I("s_add_u32 s50, s48, 28672")

    ZPARK = 131072
    def epilogue(p, last=False):
        st = p & 1
        ops = []
        def I(s): ops.append(lambda s=s: g.e(s))
        hold = T == "Z2" and p < 2
        if not hold: outbase(I, p)
        frags = []
        if ktp(p):
            for a, mm in ([(0, 0), (1, 0), (0, 1), (1, 1)] if ztype else [(0, 0), (0, 1), (1, 0), (1, 1)]):
                if True:
                    frags.append((areg(st, 2 * mm, a), areg(st, 2 * mm + 1, a), a, mm * 1024))
        else:
            for cb in range(4):
                frags.append((areg(st, cb, 0), areg(st, cb, 1), 0, cb * 1024))
        for (x, y, a, io) in frags:
            if ztype:
                stats = None
                if hold:
                    stats = {}
                    for r in range(4):
                        stats[x + r] = (STAT + 2 * r, STAT + 2 * r + 1)
                        stats[y + r] = (STAT + 8 + 2 * r, STAT + 8 + 2 * r + 1)
                for s in gelu_ops([x, x + 1, x + 2, x + 3, y, y + 1, y + 2, y + 3], TMP, VC2, 52, stats): I(s)
            d = x
            if (p == 0 or (QM and p in (2, 4)) or (QT and not QM and p in (3, 4) and not last)) and not ztype: d = 16 + 4 * frags.index((x, y, a, io))
            I(f"PK {d},{x},{x + 1}"); I(f"PK {d + 1},{x + 2},{x + 3}")
            I(f"PK {d + 2},{y},{y + 1}"); I(f"PK {d + 3},{y + 2},{y + 3}")
            x = d
            if hold:
                if p == 0: ops.append(lambda x=x, io=io: g.lds(f"DW 13,{x},{io}", "park"))
            elif ztype:
                if a == 0: ops.append(lambda: None)
                else:
                    def fix(x1=x, io=io):
                        x0 = x1 - 4
                        for r in range(4): g.e(f"v_mov_b32 v{TMP[r]}, v{x0 + r}")
                        for r in range(4): g.e(f"v_mov_b32_dpp v{x0 + r}, v{x1 + r} row_ror:8 row_mask:0xf bank_mask:0xc")
                        for r in range(4): g.e(f"v_mov_b32_dpp v{x1 + r}, v{TMP[r]} row_ror:8 row_mask:0xf bank_mask:0x3")
                        sr = 24 if T == "Z2" else 28
                        for k, xx in enumerate((x0, x1)):
                            g.vmem(f"buffer_store_dwordx4 v[{xx}:{xx + 3}], v{14 if T == 'Z2' else 16}, s[{sr}:{sr + 3}], s{48 + 2 * k} offen offset:{io} {SC}", "st")
                    ops.append(fix)
            else:
                ops.append(lambda x=x, a=a, io=io: g.vmem(
                    f"buffer_store_dwordx4 v[{x}:{x + 3}], v{VST}, s[28:31], s{50 if a else 48} offen offset:{io} {STF if ztype else STKV}", "st"))
        return ops
    if T == "Z2":
        g.e(f"s_add_u32 s49, s46, {ZPARK}")
        g.e(f"v_add_u32 v13, s49, v{VST}")

    def publish_ops():
        ops = []
        def I(s): ops.append(lambda s=s: g.e(s))
        for sh in (8, 4, 2, 1):
            for i in range(16):
                I(f"v_add_f32_dpp v{STAT + i}, v{STAT + i}, v{STAT + i} row_ror:{sh} row_mask:0xf bank_mask:0xf")
        ops.append(lambda: srd(g, 36, 16, 17, GZ * 16384, WS_ST))
        I("v_bfe_u32 v9, v0, 4, 2")
        I("v_lshlrev_b32 v9, 6, v9")
        I("v_and_b32 v10, 15, v0")
        I("v_lshl_add_u32 v10, v10, 24, v9")
        I("s_lshl_b32 s63, s41, 11")
        I("s_lshl_b32 s49, s40, 8")
        I("s_add_u32 s63, s63, s49")
        I("s_lshl_b32 s49, s42, 14")
        I("s_add_u32 s49, s49, s63")
        for i in range(4):
            ops.append(lambda i=i: g.vmem(f"buffer_store_dwordx4 v[{STAT + 4 * i}:{STAT + 4 * i + 3}], v10, s[36:39], s49 offen offset:{16 * i} sc1", "pub"))
        return ops
    def arrive():
        g.wait_vm("pub")
        g.e("s_barrier")
        def f():
            rb_line(47, 32)
            g.e("s_lshl_b32 s49, s42, 2")
            g.e("s_add_u32 s47, s47, s49")
            flag_set(g, 10, 47, 59, 100)
            rb_poll_addr(15, GZ, 32)
            g.e("v_mov_b32 v14, 0")
        w0(f)
    PB = 16
    def collect():
        w0(lambda: flag_wait(g, 14, 15, 59, 100, SL1, True))
        g.e("s_barrier")
        g.stamp(14)
        g.e("v_and_b32 v9, 31, v0")
        g.e("v_lshlrev_b32 v9, 3, v9")
        for q in range(GZ):
            g.e(f"s_add_u32 s49, s63, {q * 16384}")
            g.vmem(f"buffer_load_dwordx2 v[{PB + 2 * q}:{PB + 2 * q + 1}], v9, s[36:39], s49 offen sc1", "col")

    def pf_next(short):
        if not PF3 or T == "Z2" or (T in ("K", "V") and not short): return
        g.e("s_load_dwordx2 s[32:33], s[0:1], 40")
        g.e("s_load_dwordx2 s[36:37], s[0:1], 80")
        g.e("s_lshl_b32 s43, s41, 3")
        g.e("s_add_u32 s43, s43, s40")
        g.e(f"v_lshlrev_b32 v13, 3, v{VST}")
        g.e("s_waitcnt lgkmcnt(0)")
        g.e(f"s_mov_b32 s34, {4 * MB}")
        g.e("s_mov_b32 s35, 0x20000")
        g.e(f"s_mov_b32 s38, {896 * 1024}")
        g.e("s_mov_b32 s39, 0x20000")
        if T == "Z1":
            g.e("s_lshl_b32 s47, s42, 6")
            g.e("s_add_u32 s43, s43, s47")
            g.e("s_lshl_b32 s43, s43, 13")
            if short:
                g.e(f"s_sub_u32 s47, s43, {64 * 8192}")
                g.e("buffer_load_dword v14, v13, s[36:39], s47 offen")
                g.e(f"s_add_u32 s47, s47, {3 * MB}")
                g.e("buffer_load_dword v14, v13, s[32:35], s47 offen")
        else:
            g.e(f"s_mul_i32 s43, s43, {3 * 8192}")
            if T == "V": g.e(f"s_add_u32 s43, s43, {64 * 3 * 8192}")
            for i in range(3):
                g.e(f"buffer_load_dword v14, v13, s[32:35], s43 offen")
                g.e("s_add_u32 s43, s43, 8192")

    def xn_snap():
        def f():
            if not ztype: nonce_get(g, 13, 13, 2, True)
            g.e("s_and_b32 s43, s2, 7")
            g.e("s_lshl_b32 s43, s43, 13")
            g.e(f"s_add_u32 s43, s43, {53 * 128 + 64}")
            g.e("v_lshrrev_b32 v13, 3, v0")
            g.e("v_lshlrev_b32 v13, 7, v13")
            g.e("v_and_b32 v15, 7, v0")
            g.e("v_lshl_add_u32 v13, v15, 2, v13")
            g.e("v_add_u32 v15, s43, v13")
            flag_load(g, 13, 15, 100)
        w0(f)
    ZF = {}; HELD = {}
    def final(p, short=False):
        g.stamp(12)
        g.e("s_nop 7")
        if T != "Z2":
            if short and QM: run(HELD[p - 1])
            for op in epilogue(p, True): op()
        else:
            PKD, VA, P2 = 224, 10, 240
            for i in range(4): g.e(f"DR {PKD + 4 * i},13,{i * 1024}")
            g.e(f"s_add_u32 s49, s46, {ZPARK}")
            g.e("v_add_u32 v9, s49, v9")
            g.e(f"v_bfe_u32 v{VA}, v0, 4, 2")
            g.e(f"v_lshl_add_u32 v{VA}, v{VA}, 6, s49")
            g.e("s_waitcnt vmcnt(0) lgkmcnt(0)")
            for q in range(1, GZ):
                for i in range(2): g.e(f"v_add_f32 v{PB + i}, v{PB + i}, v{PB + 2 * q + i}")
            ln_params(g, [PB], [PB + 1], 896)
            g.e(f"ds_write_b64 v9, v[{PB}:{PB + 1}]")
            g.e("s_waitcnt lgkmcnt(0)")
            for i in range(4): g.e(f"DR {P2 + 4 * i},{VA},{16 * i}")
            xn_snap()
            g.e("s_waitcnt lgkmcnt(0)")
            MEAN = [P2 + 2 * e for e in range(8)]; VAR = [P2 + 2 * e + 1 for e in range(8)]
            for pp in range(2):
                outbase(g.e, pp)
                for cb in range(4):
                    x = PKD + 4 * cb if pp == 0 else areg(pp & 1, cb, 0)
                    t = 16 + (cb & 1) * 8
                    for r in range(4): g.e(f"v_lshlrev_b32 v{t + 2 * r}, 16, v{x + r}")
                    for r in range(4): g.e(f"v_and_b32 v{t + 2 * r + 1}, s53, v{x + r}")
                    for e in range(8): g.e(f"v_fma_f32 v{t + e}, v{t + e}, v{VAR[e]}, -v{MEAN[e]}")
                    for r in range(4): g.e(f"PK {x + r},{t + 2 * r},{t + 2 * r + 1}")
                    g.e(f"buffer_store_dwordx4 v[{x}:{x + 3}], v{VST}, s[28:31], s48 offen offset:{cb * 1024} {STF}")
            ep = epilogue(p)
            nb = len(ep) - 4 * 61
            quart = [ep[nb + 61 * i:nb + 61 * i + 60] for i in range(4)]
            zst = [ep[nb + 61 * i + 60] for i in range(4)]
            ZQ = QFAST and QTAIL and ZFAST
            run(quart[0]); run(quart[1])
            if ZQ:
                ZF["qprep"]()
                w_voffsets(g, 8192, VW)
            g.e("s_waitcnt vmcnt(0)")
            if ZQ: w0(lambda: flag_wait(g, 13, 15, 59, 100, SL1, True))
            g.e("s_barrier")
            def z2flag():
                g.e("s_add_u32 s47, s42, 14")
                g.e("s_lshl_b32 s47, s47, 7")
                g.e("s_lshl_b32 s49, s41, 2")
                g.e("s_add_u32 s47, s47, s49")
                g.e("s_add_u32 s47, s47, 32")
                flag_set(g, 16, 47, 59, 100)
            w0(z2flag)
            g.stamp(10)
            srd(g, 24, 16, 17, SZ_Z, WS_Z1)
            g.e("v_bfe_u32 v14, v0, 3, 1")
            g.e("v_lshlrev_b32 v14, 6, v14")
            g.e("v_bfe_u32 v18, v0, 2, 1")
            g.e("v_lshl_add_u32 v14, v18, 7, v14")
            g.e("v_and_b32 v18, 0x33, v0")
            g.e("v_lshl_add_u32 v14, v18, 4, v14")
            if ZQ:
                ld = []
                g.vm = []
                for st in range(3):
                    ld += [lambda m=m: ZF["qx"](m) for m in range(4 * st, 4 * st + 4)]
                    for j in range(4 if st < 2 else 0):
                        def wq(st=st, j=j):
                            g.e(f"s_add_u32 s51, s54, {st * 128 * 8192}")
                            g.e(f"s_add_u32 m0, s46, {st * 32768}")
                            g.e("s_nop 0")
                            g.vmem(f"buffer_load_dwordx4 v{VW + j}, s[32:35], s51 offen offset:{j * 1024} lds", ("w", st))
                        ld.append(wq)
                body = quart[2] + quart[3]
                for i, op in enumerate(body):
                    op()
                    if i % 6 == 0 and ld: ld.pop(0)()
                assert not ld
                run(ep[:nb]); run(zst)
                g.e("v_xor_b32 v5, 0x10000, v5")
                g.e("v_xor_b32 v6, 0x10000, v6")
                if not PROF:
                    yo = lambda L, t: len(L) - 1 - max(i for i, u in enumerate(L) if u == t)
                    assert all(yo(g.vm, t) <= yo(FAST_VM, t) for t in set(FAST_VM)), (g.vm, FAST_VM)
                    FAST_VM[:] = g.vm
            else:
                run(ep[:nb]); run(zst[:2]); run(quart[2]); run(zst[2:3]); run(quart[3]); run(zst[3:])
        g.stamp(13)
        diag_mark(g, 2)
        g.stamp_dump(16, 17, 40, 0)
        if MERGE:
            g.e(f"s_add_u32 s58, s42, { {'K': 0, 'V': 0, 'Z1': 11, 'Z2': 14}[T] }")
            g.e("s_lshl_b32 s58, s58, 7")
            g.e("s_lshl_b32 s49, s41, 2")
            g.e("s_add_u32 s58, s58, s49")
            if T == "V": g.e("s_add_u32 s58, s58, 32")
            if QFAST and not ztype and not short:
                FAST_VM[:] = [] if PROF else [("w", t[1]) if isinstance(t, tuple) and t[0] == "wq" else t for t in g.vm]
                g.e("s_branch L_p2f")
            elif T == "Z2" and QFAST and QTAIL and ZFAST: g.e("s_branch L_p2f")
            else: g.e("s_branch L_p2")
        else: g.e("s_endpgm")

    pend = []
    def wread(F, half=None):
        s, f = F >> 5, F & 31
        if s >= NST: return
        if f == 0 and half != 1:
            assert not pend
            g.wait_vm(("w", s), *(["xn"] if s == 3 else []))
            if QFAST and not ztype and s == (3 if XPF else (9 if QT else NST - 1)): w0(lambda: flag_wait(g, 13, 15, 59, 100, SL1, True))
            g.e("s_barrier")
            if ztype and s == 3:
                def nflag():
                    sk = g.newlabel("nonf")
                    g.e("s_cmp_ge_u32 s48, 8")
                    g.e(f"s_cbranch_scc1 {sk}")
                    rb_line(43, 64)
                    g.e("s_lshl_b32 s49, s48, 2")
                    g.e("s_add_u32 s43, s43, s49")
                    flag_set(g, 10, 43, 59, 100)
                    g.label(sk)
                w0(nflag)
            if s >= 2 and s % 2 == 0:
                g.e(f"v_xor_b32 v{VTE}, 0x10000, v{VTE}")
                g.e(f"v_xor_b32 v{VTO}, 0x10000, v{VTO}")
            if s >= 2: pend.extend(wdma_ops(s + 2))
        if pend and f % WSP == 1 % WSP and f >= 1 and half != 0: pend.pop(0)()
        p, m, cb, mp = fmap(s, f)
        r = WR + (F % 8) * 4
        for a in (range(2) if half is None else [half]):
            o = (s & 1) * 32768 + mp * 4096 + a * 512 + (cb >> 1) * 256
            g.lds(f"TR {r + 2 * a},{VTO if cb & 1 else VTE},{o}", ("w", F))

    g.stamp(1)
    ev = {}
    def at(F, fn): ev.setdefault(F, []).append(fn)
    def spread(F0, ops, after=None):
        if after is not None: at(F0, lambda: g.wait_ds(("x", after)))
        for i, op in enumerate(ops): at(F0 + i, op)
    if not ztype:
        xread(0)
        at(0, lambda: g.wait_ds(("x", 0)))
        if CHG:
            xread(1)
            at(0, lambda: g.wait_ds(("x", 1)))
            spread(0, xdma_ops(2)); spread(4, xdma_ops(3)); spread(8, wdma_ops(2, 47))
        elif IB >= 2:
            spread(0, xdma_ops(2)); spread(4, wdma_ops(2, 47))
            at(10, lambda: xread(1)); spread(14, xdma_ops(3), 1)
        elif IB == 1:
            spread(0, wdma_ops(1, 47)); spread(4, xdma_ops(2))
            at(10, lambda: xread(1)); spread(14, xdma_ops(3), 1); spread(18, wdma_ops(2, 47))
        else:
            spread(0, xdma_ops(1)); spread(4, wdma_ops(1, 47)); spread(8, xdma_ops(2))
            at(13, lambda: xread(1)); spread(16, xdma_ops(3), 1); spread(30, wdma_ops(2, 47))
        if CHG:
            at(20, lambda: xread(2)); spread(24, xdma_ops(4), 2)
            at(28, lambda: xread(3)); spread(32, xdma_ops(5), 3)
            at(42, lambda: xread(4)); spread(46, wdma_ops(3, 47), 4)
            at(50, lambda: xread(5)); spread(54, xdma_ops(6), 5)
            at(70, lambda: xread(6)); spread(74, xdma_ops(7), 6)
            at(92, lambda: xread(7)); at(96, lambda: g.wait_ds(("x", 7)))
        else:
            at(22, lambda: xread(2)); spread(26, xdma_ops(4), 2)
            at(34, lambda: xread(3)); spread(38, xdma_ops(5), 3)
            at(44, lambda: xread(4)); spread(48, wdma_ops(3, 47), 4)
            at(56, lambda: xread(5)); spread(64, xdma_ops(6), 5)
            at(80, lambda: xread(6)); spread(84, xdma_ops(7), 6)
            at(99, lambda: xread(7)); at(103, lambda: g.wait_ds(("x", 7)))
    else:
        for m in range(16): at((m >> 2) * 32 if CHG else (8 * m if m < 12 else 96 + 4 * (m - 12)), lambda m=m: g.wait_vm(("x", m)))
        for m, F in zip(range(4, 16), (4, 8, 12, 16, 28, 34, 40, 46, 56, 64, 70, 74)): at(("post", F), lambda m=m: xload(m))
        def xnc(i, st):
            if not st:
                if i == 0:
                    g.e(f"s_add_u32 s49, s46, {ZPARK}")
                    g.e(f"v_add_u32 v14, s49, v{VST}")
                    g.e("s_cmp_ge_u32 s48, 8")
                    g.e("s_cselect_b32 s49, 0x40000000, 0")
                    g.e(f"v_add_u32 v15, s49, v{VST}")
                g.lds(f"DR 10,14,{i * 1024}", ("xn", i))
            else:
                g.wait_ds(("xn", i))
                g.vmem(f"buffer_store_dwordx4 v[10:13], v15, s[24:27], s62 offen offset:{i * 1024} sc1", "xn")
        for i in range(4):
            at(("post", 19 + 12 * i), lambda i=i: xnc(i, False)); at(("post", 25 + 12 * i), lambda i=i: xnc(i, True))
        if T == "Z2": at(("post", 66), lambda: g.e("v_mov_b32 v13, v14"))
        for F0, s in ((0, 1), (22, 2), (50, 3)):
            for i, op in enumerate(wdma_ops(s, 47)): at(("post", F0 + i), op)
    if PFW and not ztype:
        def pfw():
            g.e("s_bfe_u32 s43, s2, 0x20003")
            g.e("s_lshl_b32 s43, s43, 7")
            g.e("s_lshl_b32 s47, s40, 4")
            g.e("s_add_u32 s43, s43, s47")
            g.e("v_bfe_u32 v14, v0, 2, 4")
            g.e("v_add_u32 v14, s43, v14")
            g.e("v_lshlrev_b32 v14, 13, v14")
            g.e("v_and_b32 v15, 3, v0")
            g.e("v_min_u32 v15, 2, v15")
            g.e("v_lshl_add_u32 v14, v15, 7, v14")
            g.vmem(f"buffer_load_dword v14, v14, s[20:23], s44 offen offset:384", "t")
        at(PFW, pfw)
    if PF:
        def prefetch():
            sr = 36 if T == "Z2" else 32
            srd(g, sr, 8, 9, 4 * MB)
            g.e("s_and_b32 s43, s2, 0xf8")
            g.e("s_add_u32 s43, s43, s40")
            g.e("s_lshl_b32 s43, s43, 14")
            nb = 2 if BAL else 1
            g.e(f"s_and_b32 s47, s2, {6 if BAL else 7}")
            g.e("s_lshl_b32 s47, s47, 8")
            g.e("s_add_u32 s47, s47, s43")
            g.e(f"v_and_b32 v14, {(1 << nb) - 1}, v0")
            g.e("v_lshlrev_b32 v14, 7, v14")
            g.e(f"v_bfe_u32 v15, v0, {nb}, 3")
            g.e("v_lshl_add_u32 v14, v15, 11, v14")
            g.e(f"v_bfe_u32 v15, v0, {nb + 3}, {3 - nb}")
            g.e("v_lshl_add_u32 v15, v15, 28, v14")
            g.vmem(f"buffer_load_dword v14, v15, s[{sr}:{sr + 3}], s47 offen", "t")
            if T in ("K", "V"):
                sk = g.newlabel("nocode")
                g.e("s_cmp_lt_u32 s2, 8")
                g.e(f"s_cbranch_scc0 {sk}")
                code_touch(g, 36, 14, "L_all_end", "L_p2", False)
                g.label(sk)
            if SPT1 and T != "Z2":
                sk = g.newlabel("nosp")
                g.e(f"s_cmp_lt_u32 s2, {192 if BAL else 224}")
                g.e(f"s_cbranch_scc1 {sk}")
                if BAL:
                    g.e("s_bitcmp1_b32 s2, 0")
                    g.e(f"s_cbranch_scc1 {sk}")
                g.e("s_load_dwordx2 s[36:37], s[0:1], 64")
                g.e(f"s_and_b32 s43, s2, {0x38 if BAL else 0x18}")
                g.e("s_add_u32 s43, s43, s40")
                g.e("s_lshl_b32 s43, s43, 15")
                g.e("s_and_b32 s47, s2, 7")
                g.e("s_lshl_b32 s47, s47, 20")
                g.e("s_add_u32 s43, s43, s47")
                g.e("v_bfe_u32 v13, v0, 3, 3")
                g.e("v_lshlrev_b32 v13, 12, v13")
                g.e("v_and_b32 v15, 7, v0")
                g.e("v_lshl_add_u32 v13, v15, 7, v13")
                g.e("s_waitcnt lgkmcnt(0)")
                g.e(f"s_mov_b32 s38, {8 * MB}")
                g.e("s_mov_b32 s39, 0x20000")
                for i in range(SPT1): g.e(f"buffer_load_dword v14, v13, s[36:39], s43 offen offset:{1024 * i}")
                g.label(sk)
            if PF3 == 1 and T != "Z2":
                sk = g.newlabel("nopf3")
                g.e(f"s_cmp_lt_u32 s42, {SHORT0}")
                g.e(f"s_cbranch_scc1 {sk}")
                pf_next(True)
                g.label(sk)
        at(PF if not ztype else min(PF, 110), prefetch)
    if not ztype: at(42 if XPF else 150, lambda: (g.e("v_mov_b32 v13, 20"), w0(lambda: dbg_load(g, 13, 13, 18))))
    if T != "Z2": at(114 if ztype else (70 if XPF else (2 * NS - 1) * 32 - 12), xn_snap)
    if XPF and not ztype:
        def xn_touch():
            from k2 import role_ops
            sk = g.newlabel("noxt")
            g.e(f"s_cmp_ge_u32 s42, {SHORT0}")
            g.e(f"s_cbranch_scc1 {sk}")
            for t in role_ops(54, 55, 52, 53, 43, 47): g.e(t)
            srd(g, 36, 16, 17, SZ_XN, WS_XN)
            g.e("s_lshr_b32 s47, s40, 2")
            g.e("s_cmp_eq_u32 s47, 0")
            g.e("s_cselect_b32 s55, s52, s53")
            g.e("s_lshl_b32 s55, s55, 17")
            g.e("s_and_b32 s43, s40, 3")
            g.e("s_lshl_b32 s43, s43, 15")
            g.e("s_add_u32 s55, s55, s43")
            g.e("s_lshr_b32 s43, s54, 3")
            g.e("s_lshl_b32 s43, s43, 13")
            g.e("s_add_u32 s55, s55, s43")
            g.e(f"v_lshlrev_b32 v14, 3, v{VST}")
            g.e("buffer_load_dword v14, v14, s[36:39], s55 offen")
            g.label(sk)
        at(XPF, xn_touch)
    if QFAST and T != "Z1":
        from k2 import role_ops
        XA, XB = (52, 53) if not ztype else (56, 57)
        def qprep():
            g.e("s_load_dwordx2 s[6:7], s[0:1], 64")
            for t in role_ops(54, 55, XA, XB, 43, 47): g.e(t)
            srd(g, 32, 8, 9, 512 * 8192)
            srd(g, 36, 16, 17, SZ_XN, WS_XN)
            g.e("s_lshl_b32 s54, s54, 8")
            g.e("s_and_b32 s43, s40, 3")
            g.e("s_lshl_b32 s47, s43, 18")
            g.e("s_add_u32 s54, s54, s47")
            g.e("s_lshr_b32 s47, s40, 2")
            g.e("s_cmp_eq_u32 s47, 0")
            g.e(f"s_cselect_b32 s55, s{XA}, s{XB}")
            g.e("s_lshl_b32 s47, s47, 7")
            g.e("s_add_u32 s54, s54, s47")
            g.e("s_lshl_b32 s55, s55, 17")
            g.e("s_lshl_b32 s43, s43, 15")
            g.e("s_add_u32 s55, s55, s43")
            g.e("s_waitcnt lgkmcnt(0)")
            g.ds = []
        if not ztype: at(258 if QT else 270, qprep)
        def qx(m):
            if m % 4 == 0:
                g.e(f"s_lshr_b32 s{XA}, s2, 3" if QROT else f"s_mov_b32 s{XA}, 0")
                g.e(f"s_add_u32 s{XA}, s{XA}, {m >> 2}")
                g.e(f"s_and_b32 s{XA}, s{XA}, 3")
                g.e(f"s_lshl_b32 s{XA}, s{XA}, 12")
                g.e(f"s_add_u32 s{XA}, s{XA}, s55")
                g.e(f"s_add_u32 s{XB}, s{XA}, 16384")
            for a in range(2):
                x = xreg(a, m)
                g.vmem(f"buffer_load_dwordx4 v[{x}:{x + 3}], v{VST}, s[36:39], s{XA + a} offen offset:{(m % 4) * 1024} {SC}", ("x", m))
        ZF.update(qprep=qprep, qx=qx)
        if ztype: pass
        elif QT:
            for m in range(12): at(("post", 9 * 32 + 2 + (8 * m if m < 8 else 64 + 4 * (m - 8))), lambda m=m: qx(m))
        else:
            for m in range(8): at(("post", (NST - 1) * 32 + 1 + 3 * m), lambda m=m: qx(m))
    def place(ops, F0, n):
        for i, op in enumerate(ops): at(("post", F0 + i * n // len(ops)), op)
    for p in range(NP - 1):
        ops = epilogue(p)
        F0 = (2 * p + 2) * 32 + 3
        if not ztype:
            h = len(ops) - 20
            fr = [ops[h + 5 * i:h + 5 * i + 5] for i in range(4)]
            if QM:
                U = (p >> 1) * 128
                if p == 4: place(ops, U + 116, 12)
                elif p & 1: place(ops, U + 131, 13)
                else:
                    place([o for f4 in fr for o in f4[:4]], U + 116, 11)
                    HELD[p] = ops[:h] + [f4[4] for f4 in fr]
                    place(ops[:h], U + 150, 3)
                    for f4, F in zip(fr, (156, 180, 204, 228)): at(("post", U + F), f4[4])
            elif p == 0:
                place(ops[:h] + [o for f4 in fr for o in f4[:4]], 3 * 32 + 20, 11)
                for f4, F in zip(fr, (127, 138, 149, 160)): at(("post", F), f4[4])
            elif QT and p == 3:
                place(ops[:h] + [o for f4 in fr for o in f4[:4]], 8 * 32 + 3, 11)
                for f4, F in zip(fr, (272, 296, 320, 344)): at(("post", F), f4[4])
            elif QT and p == 4:
                place(ops, 11 * 32 + 20, 12)
            else:
                pos = (166, 174, 182, 189) if p == 1 else [F0 + 5 + 16 * i for i in range(4)]
                place(ops[:h], pos[0] - 4, 3)
                for f4, F in zip(fr, pos): place(f4, F - 1, 2)
        elif p == 0: place(ops, 3 * 32 + 20, 11)
        elif T == "Z2" and p == 1:
            place(ops + [lambda: g.e("s_nop 1")] + publish_ops(), F0, ZPUB)
            at(("post", F0 + ZPUB + ZA), arrive)
            at(("post", F0 + ZPUB + ZA + ZP), lambda: w0(lambda: flag_load(g, 14, 15, 100)))
            at(("post", min(191, F0 + ZPUB + ZA + ZP + ZC)), collect)
        else: place(ops, F0, 60)
    for F in range(8 if CHG else D): wread(F)
    rq = []
    for s in range(NST):
        if s == 1: diag_mark(g, 1)
        if s < 9 and PROF != 6: g.stamp(2 + s)
        if s == 2 * NS and NS < NP:
            cont = g.newlabel("cont")
            g.e(f"s_cmp_lt_u32 s42, {SHORT0}")
            g.e(f"s_cbranch_scc1 {cont}")
            sv = (list(g.vm), list(g.ds))
            final(NS - 1, True)
            g.vm, g.ds = sv
            g.label(cont)
        for f in range(32):
            F = s * 32 + f
            if PROF == 6 and F in PFL: g.stamp(2 + PFL.index(F))
            for fn in ev.pop(F, []): fn()
            post = ev.pop(("post", F), [])
            for h in range(2):
                if CHG:
                    i = (f & 3) * 2 + h
                    Fm, a = (F & ~3) + (i & 3), i >> 2
                else: Fm, a = F, h
                p, m, cb, mp = fmap(s, Fm & 31)
                if a == 0: g.wait_ds(("w", Fm))
                r = WR + (Fm % 8) * 4
                op = "MZ" if m == 0 else "M"
                if ktp(p): g.e(f"{op} {areg(p & 1, cb, a)},{r},{xreg(a, m)}")
                else: g.e(f"{op} {areg(p & 1, cb, a)},{xreg(a, m)},{r}")
                if CHG:
                    if rq: rq.pop(0)()
                    if a == 1: rq += [lambda Fm=Fm: wread(Fm + 8, 0), lambda Fm=Fm: wread(Fm + 8, 1)]
                else: wread(F + D, h)
                n = len(post) // 2 if h == 0 else len(post)
                for _ in range(n): post.pop(0)()
    assert not ev, ev.keys()
    final(NP - 1)
    g.label(f"L_k1_{T}_end")

def gen_k1(g):
    g.e(".p2align 8")
    g.e(f".type {KNAME},@function")
    g.label(KNAME)
    g.e("s_cmp_ge_u32 s2, 256")
    g.e("s_cbranch_scc1 L_k1_end")
    g.stamp(0)
    diag_mark(g, 0)
    if PROF: g.e("s_memrealtime s[94:95]")
    g.e("s_load_dwordx4 s[4:7], s[0:1], 0")
    g.e("s_load_dwordx4 s[8:11], s[0:1], 16")
    g.e("s_load_dwordx2 s[12:13], s[0:1], 32")
    g.e("s_load_dwordx2 s[14:15], s[0:1], 56")
    g.e("s_load_dwordx2 s[18:19], s[0:1], 96")
    g.e("s_load_dwordx2 s[16:17], s[0:1], 104")
    g.e("v_lshrrev_b32 v1, 6, v0")
    g.e("s_lshr_b32 s49, s2, 3")
    g.e("s_and_b32 s41, s2, 1")
    g.e("v_readfirstlane_b32 s40, v1")
    g.e("s_lshl_b32 s41, s41, 2")
    g.e("s_and_b32 s50, s49, 3")
    g.e("s_add_u32 s41, s41, s50")
    g.e("s_and_b32 s3, s2, 6")
    g.e("s_lshl_b32 s3, s3, 2")
    g.e("s_lshr_b32 s49, s49, 2")
    g.e("s_add_u32 s3, s3, s49")
    if BAL:
        g.e("s_and_b32 s50, s2, 1")
        g.e("s_or_b32 s51, s49, 1")
        g.e("s_sub_u32 s50, s51, s50")
        g.e("s_bfe_u32 s51, s2, 0x30003")
        g.e(f"s_cmp_ge_u32 s49, {4 if ZODD else 6}")
        g.e("s_cselect_b32 s49, s50, s49")
        g.e("s_cselect_b32 s41, s51, s41")
    if MIX:
        cst = [sum(v << (8 * i) for i, v in enumerate(row)) for row in GMAP]
        g.e("s_bitcmp1_b32 s2, 1")
        g.e(f"s_cselect_b32 s44, {cst[1] & 0xffffffff}, {cst[0] & 0xffffffff}") if False else None
        for k, (lo, hi) in enumerate(((44, 45), (46, 47))):
            g.e(f"s_mov_b32 s{lo}, {cst[2 * k] & 0xffffffff}")
            g.e(f"s_mov_b32 s{hi}, {cst[2 * k] >> 32}")
            g.e(f"s_cmov_b32 s{lo}, {cst[2 * k + 1] & 0xffffffff}")
            g.e(f"s_cmov_b32 s{hi}, {cst[2 * k + 1] >> 32}")
        g.e("s_bitcmp1_b32 s2, 2")
        g.e("s_cselect_b64 s[44:45], s[46:47], s[44:45]")
        g.e("s_lshl_b32 s49, s49, 3")
        g.e("s_lshr_b64 s[44:45], s[44:45], s49")
        g.e("s_and_b32 s3, s44, 31")
    g.e("s_waitcnt lgkmcnt(0)")
    g.e(f"s_add_u32 s100, s16, {WS_FL}")
    g.e("s_addc_u32 s101, s17, 0")
    if MERGE:
        sk = g.newlabel("nonce")
        g.e("s_or_b32 s49, s2, s40")
        g.e(f"s_cbranch_scc1 {sk}")
        g.e("s_memrealtime s[50:51]")
        g.e("v_mov_b32 v2, 20")
        g.e("s_waitcnt lgkmcnt(0)")
        g.e("s_or_b32 s49, s50, 1")
        g.e("v_mov_b32 v3, s49")
        g.e("s_mov_b64 exec, 1")
        g.e("global_store_dword v2, v3, s[18:19] sc1")
        g.e("s_mov_b64 exec, -1")
        g.label(sk)
    g.e(f"s_cmp_lt_u32 s3, {GKV}")
    g.e("s_cbranch_scc1 L_k1_K")
    g.e(f"s_cmp_lt_u32 s3, {2 * GKV}")
    g.e("s_cbranch_scc1 L_k1_V")
    g.e(f"s_cmp_lt_u32 s3, {2 * GKV + 3}")
    g.e("s_cbranch_scc1 L_k1_Z1")
    g.e("s_branch L_k1_Z2")
    g.label("L_k1_end")
    g.e("s_endpgm")
    for T in ("K", "V", "Z1", "Z2"):
        gen_type(g, T)
```

```python
from asmlib import *
import k1
from k1 import w_voffsets, tr_bases, xreg, areg, WR, D
import math

QSCALE = 128 ** -0.5 * math.log2(math.e)
STASH = 131072
DSP = int(os.environ.get('DSP', '3')); EB = int(os.environ.get('EB', '14'))
XPRE = int(os.environ.get('XPRE', '4'))
PS = int(os.environ.get('PS', '0'))
NTSP = os.environ.get('NTSP', '')
PF2 = int(os.environ.get('PF2', '0'))
KINS = int(os.environ.get('KINS', '0'))
NTAIL = int(os.environ.get('NTAIL', '0'))
STF2 = os.environ.get('STF2', 'sc1')
PFS = int(os.environ.get('PFS', '54'))
STFX = os.environ.get('STFX', 'sc1'); STFU = os.environ.get('STFU', 'sc1' if MERGE == 2 else '')
XSCH = eval(os.environ.get('XSCH', '(4, 8, 12, 16, 28, 34, 40, 46, 56, 62, 68, 74)'))
PF4 = int(os.environ.get('PF4', '1'))
SLA = int(os.environ.get('SLA', '8')); SLS = int(os.environ.get('SLS', '10'))
SPT = int(os.environ.get('SPT', '0'))
HOT = int(os.environ.get('HOT', '0'))
HACK = os.environ.get('HACK', '')
CH = int(os.environ.get('CH', '3'))
SF0 = int(os.environ.get('SF0', '1'))
SKIP = int(os.environ.get('SKIP', '1'))
NTWQ = os.environ.get('NTWQ', '')
NPART = 3
VF, VNEG, VL, VT, V16, VLT = 1, 3, 4, 6, 7, 8
NEGM, PR, TMP, OR, FR = 16, 24, 40, 128, 192
ML, FA, FB = 52, 56, 58
def sreg(kt, qb): return 72 + 16 * kt + 4 * qb
def preg(qb, kg): return PR + (qb * 2 + kg) * 4
def qreg(qb, mm): return 64 + 16 * mm + 4 * qb
def oreg(cb, qb): return OR + (cb * 2 + qb) * 4
def freg(j): return FR + j * 4
def kslot(j): return (j >> 1) + 8 * (j & 1) if CH & 2 else j

def merge_streams(main, fill, start=0):
    out = []
    n = len(main) - start
    acc = 0.0
    fill = list(fill)
    per = len(fill) / max(1, n)
    for i, m in enumerate(main):
        out.append(m)
        if i >= start:
            acc += per
            while fill and acc >= 0.999:
                out.append(fill.pop(0)); acc -= 1.0
    return out + fill

def dma4(g, so, first_m0=None, tag=None):
    ops = []
    for j in range(4):
        def op(j=j):
            if j == 0 and first_m0:
                g.e(first_m0); g.e("s_nop 0")
            g.vmem(f"buffer_load_dwordx4 v{V16}, s[28:31], s{so} offen offset:{j * 1024} {SC} lds", tag)
        ops.append(op)
    return ops

def next_ops(t):
    return [[f"s_and_b32 s19, s{t}, 3"], ["s_lshl_b32 s19, s19, 15"],
            ["s_xor_b32 s50, s19, 0x10000"], ["s_add_u32 s50, s50, s55"],
            [f"s_add_u32 s49, s{t}, 2"], ["s_lshl_b32 s51, s49, 14"], ["s_add_u32 s51, s51, s54"],
            ["s_cmp_lt_u32 s49, s48", "s_cselect_b32 s51, s51, s54"],
            [f"s_cmp_lt_u32 s{t}, s45", "s_cselect_b32 s49, s41, 0"],
            ["s_lshl_b32 s7, s49, 14"], ["s_add_u32 m0, s50, s7"], ["s_lshl_b32 s49, s49, 24"],
            ["s_add_u32 s7, s51, s49"], [f"s_add_u32 s51, s51, {16 * MB}"]]

def softmax_txt():
    out = []
    I = out.append
    T = [TMP + i for i in range(8)]
    for qb in range(2):
        for r in range(4): I(f"v_exp_f32 v{T[qb * 4 + r]}, v{sreg(0, qb) + r}")
    for qb in range(2): I(f"v_add_f32 v{VLT + qb}, v{T[qb * 4]}, v{T[qb * 4 + 1]}")
    for qb in range(2): I(f"PK {preg(qb, 0)},{T[qb * 4]},{T[qb * 4 + 1]}")
    for qb in range(2): I(f"v_add_f32 v{VLT + qb}, v{VLT + qb}, v{T[qb * 4 + 2]}")
    for qb in range(2): I(f"PK {preg(qb, 0) + 1},{T[qb * 4 + 2]},{T[qb * 4 + 3]}")
    for qb in range(2): I(f"v_add_f32 v{VLT + qb}, v{VLT + qb}, v{T[qb * 4 + 3]}")
    for kt in range(1, 4):
        for qb in range(2):
            s = sreg(kt, qb); t = T[qb * 4:qb * 4 + 4]
            for r in range(4): I(f"v_exp_f32 v{t[r]}, v{s + r}")
            p = preg(qb, kt >> 1) + (kt & 1) * 2
            I(f"v_add_f32 v{VLT + qb}, v{VLT + qb}, v{t[0]}")
            I(f"v_add_f32 v{VLT + qb}, v{VLT + qb}, v{t[1]}")
            I(f"PK {p},{t[0]},{t[1]}")
            I(f"v_add_f32 v{VLT + qb}, v{VLT + qb}, v{t[2]}")
            I(f"v_add_f32 v{VLT + qb}, v{VLT + qb}, v{t[3]}")
            I(f"PK {p + 1},{t[2]},{t[3]}")
    return out
def softmax_ops(g):
    return [lambda t=t: g.e(t) for t in softmax_txt()]

def xgroup(g, regs, op, tmp):
    for sw in ("v_permlane32_swap_b32", "v_permlane16_swap_b32"):
        for i, r in enumerate(regs): g.e(f"v_mov_b32 v{tmp + i}, v{r}")
        g.e("s_nop 1")
        for i, r in enumerate(regs): g.e(f"{sw} v{tmp + i}, v{r}")
        g.e("s_nop 1")
        for i, r in enumerate(regs): g.e(f"{op} v{r}, v{r}, v{tmp + i}")

def rescale(g, first):
    MX = [TMP + 8, TMP + 9]
    for qb in range(2):
        vals = [sreg(kt, qb) + r for kt in range(4) for r in range(4)]
        g.e(f"v_max3_f32 v{MX[qb]}, v{vals[0]}, v{vals[1]}, v{vals[2]}")
        for i in range(3, 15, 2): g.e(f"v_max3_f32 v{MX[qb]}, v{MX[qb]}, v{vals[i]}, v{vals[i + 1]}")
        g.e(f"v_max_f32 v{MX[qb]}, v{MX[qb]}, v{vals[15]}")
    xgroup(g, MX, "v_max_f32", TMP + 10)
    if not first:
        for qb in range(2): g.e(f"v_max_f32 v{MX[qb]}, 0, v{MX[qb]}")
    for kt in range(4):
        for qb in range(2):
            for r in range(4): g.e(f"v_sub_f32 v{sreg(kt, qb) + r}, v{sreg(kt, qb) + r}, v{MX[qb]}")
    for qb in range(2):
        for r in range(4): g.e(f"v_sub_f32 v{NEGM + qb * 4 + r}, v{NEGM + qb * 4 + r}, v{MX[qb]}")
    if not first:
        for qb in range(2): g.e(f"v_exp_f32 v{MX[qb]}, -v{MX[qb]}")
        g.e("s_nop 0")
        for cb in range(8):
            for qb in range(2):
                for r in range(4): g.e(f"v_mul_f32 v{oreg(cb, qb) + r}, v{oreg(cb, qb) + r}, v{MX[qb]}")
        for qb in range(2): g.e(f"v_mul_f32 v{VL + qb}, v{VL + qb}, v{MX[qb]}")

def mask_block(g):
    skip = g.newlabel("nomask"); l1 = g.newlabel("m1"); lf = g.newlabel("mf"); do = g.newlabel("domask")
    g.e("s_add_u32 s49, s52, 2")
    g.e("s_cmp_ge_u32 s49, s48")
    g.e(f"s_cbranch_scc1 {do}")
    g.e("s_sub_u32 s49, s52, s46")
    g.e("s_cmp_lt_u32 s49, 2")
    g.e(f"s_cbranch_scc0 {skip}")
    g.label(do)
    g.e("s_and_b32 s49, s52, 1")
    g.e("s_lshl_b32 s49, s49, 1")
    g.e("s_sub_u32 s49, s42, s49")
    def diag(kt, qb):
        for r in range(4): g.e(f"v_cndmask_b32 v{sreg(kt, qb) + r}, v{VNEG}, v{sreg(kt, qb) + r}, s[{8 + 2 * r}:{9 + 2 * r}]")
    def full(kt, qb):
        for r in range(4): g.e(f"v_mov_b32 v{sreg(kt, qb) + r}, v{VNEG}")
    g.e("s_cmp_ge_i32 s49, 2")
    g.e(f"s_cbranch_scc1 {skip}")
    g.e("s_cmp_eq_i32 s49, 1")
    g.e(f"s_cbranch_scc1 {l1}")
    g.e("s_cmp_lt_i32 s49, 0")
    g.e(f"s_cbranch_scc1 {lf}")
    diag(0, 0); full(1, 0); diag(1, 1); full(2, 0); full(2, 1); full(3, 0); full(3, 1)
    g.e(f"s_branch {skip}")
    g.label(l1)
    diag(2, 0); full(3, 0); diag(3, 1)
    g.e(f"s_branch {skip}")
    g.label(lf)
    for kt in range(4):
        for qb in range(2): full(kt, qb)
    g.label(skip)

def m_phase(g, has_pv, zero, split, post=None, pre=None):
    g.vm = []
    if has_pv: g.e("s_barrier")
    dma = dma4(g, 7) + (dma4(g, 51, "s_add_u32 m0, s50, 16384") if split else [])
    sal = [["s_add_u32 s49, s52, 2"], ["s_cmp_ge_u32 s49, s48", "s_cselect_b32 s4, 0, 4"], ["s_sub_u32 s49, s52, s46"], ["s_min_u32 s4, s4, s49"],
           ["s_cmp_lt_u32 s52, s53", "s_cselect_b32 s47, 1, 2"], ["s_add_u32 s47, s47, s52"]]
    sal2 = next_ops(47)
    rq = []
    if has_pv:
        g.ds = []
        sp = DSP if split else 4
        seq = [(kg, cb, qb) for cb in range(8) for qb in range(2) for kg in range(2)] if CH & 2 else [(j >> 3, j & 7, qb) for j in range(16) for qb in range(2)]
        lastuse = {kg * 8 + cb: i for i, (kg, cb, qb) in enumerate(seq)}
        for i, (kg, cb, qb) in enumerate(seq):
            g.e(f"{'MZ' if zero and kg == 0 else 'M'} {oreg(cb, qb)},{freg(kg * 8 + cb)},{preg(qb, kg)}")
            if rq and (i % 2 == 0): rq.pop(0)()
            for j in range(16):
                if lastuse[kslot(j)] == i: rq.append(lambda j=j: g.lds(f"DR {freg(kslot(j))},{VF},{j * 1024}", ("k", j)))
            if i % 2 == 1:
                if dma and (i >> 1) % sp == 0: dma.pop(0)()
                elif sal:
                    for t in sal.pop(0): g.e(t)
    else:
        sp = 2
    PT = int(os.environ.get('PT', '5'))
    if has_pv and not zero: g.stamp_if(7, 52, PT)
    tail = []
    assert NTAIL <= 8
    if has_pv: tail = [[o] for o in softmax_ops(g)[:NTAIL]]
    seq = [(kt, mm, qb) for kt in range(4) for qb in range(2) for mm in range(4)] if CH & 1 else [(j >> 2, j & 3, qb) for j in range(16) for qb in range(2)]
    lastuse = {kt * 4 + mm: i for i, (kt, mm, qb) in enumerate(seq)}
    for i, (kt, mm, qb) in enumerate(seq):
        j, odd = i >> 1, i & 1
        if i == 2 * EB:
            if pre: pre()
            if has_pv and not zero: g.stamp_if(8, 52, PT)
            if has_pv: g.e(f"s_waitcnt vmcnt({8 if split else 4})")
            g.e("s_setprio 2")
            g.e("s_barrier")
        if i == 0: g.wait_ds(("k", 9))
        if i == 12: g.wait_ds(("k", 15))
        f = freg(kslot(kt * 4 + mm))
        if mm == 0: g.e(f"MC {sreg(kt, qb)},{f},{qreg(qb, mm)},{NEGM + qb * 4}")
        else: g.e(f"M {sreg(kt, qb)},{f},{qreg(qb, mm)}")
        did = False
        if rq and (not odd or i >= 28): rq.pop(0)(); did = True
        for jj in range(16):
            if lastuse[jj] == i: rq.append(lambda sl=kslot(jj): g.lds(f"DR {freg(sl)},{VF},{16384 + sl * 1024}", "v"))
        if j >= EB and tail:
            for op in tail.pop(0): op()
        if not has_pv and j >= EB and dma: dma.pop(0)()
        elif has_pv and odd and dma and (j + 16) % sp == 0: dma.pop(0)()
        elif odd and sal:
            for t in sal.pop(0): g.e(t)
        elif not sal and not dma and sal2:
            for t in sal2.pop(0): g.e(t)
    while dma: dma.pop(0)()
    assert not sal
    if post: post()
    for grp in sal2:
        for t in grp: g.e(t)
    while rq: rq.pop(0)()
    g.e("s_setprio 0")
    for w in tail:
        for op in w: op()
    g.vm = []; g.ds = []
    if has_pv:
        g.e("s_cmp_lt_u32 s4, 4")
        g.e("s_cbranch_scc1 L_k2_sgen")
    elif SF0:
        g.e("s_cmp_lt_u32 s4, 4")
        g.e("s_cbranch_scc1 L_k2_sgen")
        for op in softmax_ops(g): op()
        g.e(f"v_max_f32 v{VT}, v{VLT}, v{VLT + 1}")
        g.e(f"v_min_f32 v{TMP}, v{VLT}, v{VLT + 1}")
        g.e(f"v_cmp_lt_f32 vcc, s56, v{VT}")
        g.e("s_cbranch_vccnz L_k2_sgen")
        g.e(f"v_cmp_gt_f32 vcc, s6, v{TMP}")
        g.e("s_cbranch_vccnz L_k2_sgen")
        for qb in range(2): g.e(f"v_mov_b32 v{VL + qb}, v{VLT + qb}")
        advance(g)
        g.e("s_waitcnt lgkmcnt(0)")
        g.e("s_branch L_k2_mzsh")
    else:
        g.e("s_branch L_k2_sgen")

def advance(g):
    g.e("s_mov_b32 s52, s47")
    g.e(f"v_add_u32 v{VF}, s19, v{V16}")

def role_ops(dh, dg, dx, dy, t1, t2):
    if BAL:
        ops = [f"s_lshr_b32 s{dg}, s2, 3", f"s_mul_i32 s{t1}, s{dg}, 43", f"s_lshr_b32 s{t1}, s{t1}, 7", f"s_mul_i32 s{t2}, s{t1}, 3",
               f"s_sub_u32 s{t2}, s{dg}, s{t2}", f"s_lshl_b32 s{t2}, s{t2}, 1", f"s_and_b32 s{dh}, s2, 1", f"s_add_u32 s{t2}, s{t2}, s{dh}",
               f"s_sub_u32 s{dh}, s{dg}, 24", f"s_cmp_ge_u32 s{dg}, 24", f"s_cselect_b32 s{t1}, s{dh}, s{t1}", f"s_cselect_b32 s{dg}, 6, s{t2}",
               f"s_and_b32 s{dh}, s2, 6", f"s_and_b32 s{t2}, s{t1}, 1", f"s_add_u32 s{dh}, s{dh}, s{t2}",
               f"s_lshr_b32 s{t1}, s{t1}, 1", f"s_lshl_b32 s{t1}, s{t1}, 3", f"s_add_u32 s{dh}, s{dh}, s{t1}"]
    else:
        ops = [f"s_lshr_b32 s{dg}, s2, 3", f"s_mul_i32 s{t1}, s{dg}, 37", f"s_lshr_b32 s{t1}, s{t1}, 8", f"s_mul_i32 s{t2}, s{t1}, 7",
               f"s_sub_u32 s{dg}, s{dg}, s{t2}", f"s_lshl_b32 s{t1}, s{t1}, 3", f"s_and_b32 s{dh}, s2, 7", f"s_add_u32 s{dh}, s{dh}, s{t1}"]
    return ops + [f"s_sub_u32 s{dx}, 15, s{dg}", f"s_xor_b32 s{dy}, s{dg}, {1 if BAL == 2 else 0}", f"s_add_u32 s{dy}, s{dy}, 4", f"s_cmp_eq_u32 s{dg}, 6",
            f"s_cselect_b32 s{dx}, 3, s{dx}", f"s_cselect_b32 s{dy}, 2, s{dy}"]

def gen_attn(g):
    def setup(fast):
        for t in role_ops(43, 44, 32, 33, 49, 50): g.e(t)
        g.e("s_lshr_b32 s41, s40, 2")
        g.e("s_and_b32 s42, s40, 3")
        g.e(f"s_and_b32 s49, s3, {6 if BAL else 7}")
        g.e("s_lshl_b32 s49, s49, 20")
        g.e("s_add_u32 s60, s6, s49")
        g.e("s_addc_u32 s61, s7, 0")
        g.e(f"s_mov_b32 s62, {2 * MB if BAL else MB}")
        g.e("s_mov_b32 s63, 0x20000")
        if fast: srd(g, 20, 8, 9, 512 * 8192)
        else: srd(g, 20, 4, 5, 512 * 8192)
        srd(g, 24, 16, 17, SZ_XN, WS_XN)
        srd(g, 28, 16, 17, 2 * SZ_KV, WS_K)
        srd(g, 36, 16, 17, SZ_CTX, WS_CTX)
        g.e("s_lshl_b32 s55, s42, 12")
        g.e("s_lshl_b32 s54, s43, 19")
        g.e("s_add_u32 s54, s54, s55")
        g.e("s_lshl_b32 s57, s42, 13")
        g.e(f"s_add_u32 s57, s57, {STASH}")
        g.e("v_and_b32 v28, 63, v0")
        g.e(f"v_lshlrev_b32 v{V16}, 4, v28")
        g.e("v_and_b32 v28, 15, v0")
        g.e("v_bfe_u32 v29, v0, 4, 2")
        g.e("v_lshlrev_b32 v29, 2, v29")
        g.e("v_sub_u32 v28, v28, v29")
        for r in range(4): g.e(f"v_cmp_le_i32 s[{8 + 2 * r}:{9 + 2 * r}], {r}, v28")
        if MERGE:
            g.e("s_mul_i32 s49, s43, 43")
            g.e("s_lshr_b32 s49, s49, 7")
            g.e("s_lshl_b32 s49, s49, 7")
            g.e("s_lshl_b32 s50, s3, 13")
            g.e("s_add_u32 s49, s49, s50")
            g.e("v_and_b32 v14, 15, v0")
            g.e("v_lshl_add_u32 v14, v14, 2, s49")
    def wdma(s):
        g.e("s_lshr_b32 s51, s2, 3" if k1.QROT else "s_mov_b32 s51, 0")
        g.e(f"s_add_u32 s51, s51, {s}")
        g.e("s_and_b32 s51, s51, 3")
        g.e("s_lshl_b32 s51, s51, 20")
        g.e("s_add_u32 s51, s51, s18")
        g.e(f"s_add_u32 m0, s19, {s * 32768}")
        g.e("s_nop 0")
        for j in range(4):
            g.vmem(f"buffer_load_dwordx4 v{1 + j}, s[20:23], s51 offen offset:{j * 1024} {NTWQ} lds", ("w", s))
    def xload(m):
        if m % 4 == 0:
            g.e("s_lshr_b32 s6, s2, 3" if k1.QROT else "s_mov_b32 s6, 0")
            g.e(f"s_add_u32 s6, s6, {m >> 2}")
            g.e("s_and_b32 s6, s6, 3")
            g.e("s_lshl_b32 s6, s6, 12")
            g.e("s_add_u32 s6, s6, s47")
            g.e("s_add_u32 s7, s6, 16384")
        for a in range(2):
            x = xreg(a, m)
            g.vmem(f"buffer_load_dwordx4 v[{x}:{x + 3}], v{V16}, s[24:27], s{6 + a} offen offset:{(m % 4) * 1024} {SC}", ("x", m))
    def pf_prep():
        g.e("s_load_dwordx2 s[96:97], s[0:1], 40")
        g.e("s_load_dwordx2 s[34:35], s[0:1], 80")
        g.e("s_and_b32 s5, s2, 0xf8")
        g.e("s_add_u32 s5, s5, s40")
        if BAL:
            g.e("s_and_b32 s49, s2, 1")
            g.e("s_mul_i32 s49, s49, 192")
            g.e("s_add_u32 s5, s5, s49")
            g.e("s_lshr_b32 s4, s3, 1")
            g.e("s_mul_i32 s4, s4, 448")
        else: g.e("s_mul_i32 s4, s3, 224")
        g.e("s_add_u32 s4, s4, s5")
        g.e("s_cmp_eq_u32 s32, 1")
        g.e("s_cselect_b32 s49, 0x10000, 0")
        g.e(f"v_lshl_add_u32 v15, v{V16}, 3, s49")
        g.e("v_mov_b32 v13, 0x10000000")
        for v, n, sr in ((10, 4736, 5), (11, 2432, 4), (12, 512, 4)):
            g.e(f"v_cmp_gt_u32 vcc, {n}, v15")
            g.e(f"s_mul_i32 s49, s{sr}, {n}")
            g.e(f"v_add_u32 v{v}, s49, v15")
            g.e(f"v_cndmask_b32 v{v}, v13, v{v}, vcc")
    def pf_wsp():
        g.e(f"s_mov_b32 s98, {4 * MB}")
        g.e("s_mov_b32 s99, 0x20000")
        g.e("buffer_load_dword v13, v10, s[60:63], 0 offen")
        g.e("buffer_load_dword v13, v11, s[96:99], 0 offen")
        srd(g, 96, 34, 35, 896 * 1024)
        g.e("buffer_load_dword v13, v12, s[96:99], 0 offen")
    def first_tile(t):
        g.e("s_lshl_b32 s49, s41, 24")
        g.e("s_add_u32 s50, s54, s49")
        if t: g.e("s_add_u32 s50, s50, 16384")
        return dma4(g, 50, f"s_add_u32 m0, s19, {t * 32768}", "kv")
    def w0_only(fn):
        sk = g.newlabel("w0")
        g.e("s_cmp_eq_u32 s32, 1")
        g.e("s_cselect_b32 s49, 1, s40")
        g.e("s_cmp_lg_u32 s49, 0")
        g.e(f"s_cbranch_scc1 {sk}")
        fn()
        g.label(sk)
    def fmap(s, f):
        if k1.CHG: return (f >> 4, f & 3, (f >> 2) & 3)
        return (f >> 4, (f >> 2) & 3, f & 3) if s == 3 else ((f >> 2) & 1, f >> 3, f & 3)
    def qpack(p):
        ops = []
        I = lambda s: ops.append(lambda s=s: g.e(s))
        for a in range(2):
            for mm in range(2):
                x, y = areg(p, 2 * mm, a), areg(p, 2 * mm + 1, a)
                assert x == qreg(a, 2 * p + mm)
                for r in range(4): I(f"v_mul_f32 v{x + r}, s56, v{x + r}")
                for r in range(4): I(f"v_mul_f32 v{y + r}, s56, v{y + r}")
                I(f"PK {x},{x},{x + 1}"); I(f"PK {x + 1},{x + 2},{x + 3}")
                I(f"PK {x + 2},{y},{y + 1}"); I(f"PK {x + 3},{y + 2},{y + 3}")
        return ops
    def qphase(fast):
        if not fast: w_voffsets(g, 8192, 1)
        g.e("s_lshl_b32 s18, s43, 8")
        g.e("s_lshl_b32 s49, s42, 18")
        g.e("s_add_u32 s18, s18, s49")
        g.e("s_lshl_b32 s49, s41, 7")
        g.e("s_add_u32 s18, s18, s49")
        g.e("s_lshl_b32 s19, s40, 12")
        g.e("s_cmp_eq_u32 s41, 0")
        g.e("s_cselect_b32 s47, s32, s33")
        g.e("s_lshl_b32 s47, s47, 17")
        g.e("s_lshl_b32 s49, s42, 15")
        g.e("s_add_u32 s47, s47, s49")
        if PROF == 1: g.stamp(6)
        if not fast:
            wdma(0)
            for m in range(2): xload(m)
            if not MERGE: code_touch(g, 96, 14, "L_k2_sp")
            g.e("s_barrier")
            for m in range(2, 4): xload(m)
            later = {0: lambda: wdma(1), 22: lambda: wdma(2), 50: lambda: wdma(3)}
            for m, F in zip(range(4, 16), XSCH): later[F] = lambda m=m: xload(m)
            tr_bases(g, 5, 6)
            FS, FL = 0, 20
        else:
            later = {0: lambda: wdma(2), 30: lambda: wdma(3)}
            if k1.QTAIL:
                for m, F in zip(range(12, 16), (8, 16, 38, 52)): later[F] = lambda m=m: xload(m)
            else:
                for m, F in zip(range(8, 16), (4, 10, 16, 22, 36, 42, 52, 60)): later[F] = lambda m=m: xload(m)
            g.e("v_xor_b32 v5, 0x10000, v5")
            g.e("v_xor_b32 v6, 0x10000, v6")
            g.e("v_mov_b32 v13, 0")
            FS, FL = 1, 46
        g.e(f"s_mov_b32 s56, {f32(QSCALE)}")
        g.e("s_lshl_b32 s48, s32, 1")
        g.e("s_add_u32 s48, s48, 2")
        if 'a' in HACK:
            g.e("s_cmp_ge_u32 s32, 10")
            g.e("s_cselect_b32 s49, 2, 0")
            g.e("s_sub_u32 s33, s33, s49")
            g.e("s_lshr_b32 s49, s49, 1")
            g.e("s_add_u32 s33, s33, s49")
        g.e("s_lshl_b32 s45, s33, 1")
        g.e("s_add_u32 s45, s45, 2")
        g.e("s_sub_u32 s53, s45, s41")
        g.e("s_sub_u32 s46, s45, 2")
        g.e("s_cmp_eq_u32 s41, 0")
        g.e("s_cselect_b32 s46, 0x1000, s46")
        g.stamp(1)
        if MERGE: later[FL] = lambda: w0_only(lambda: flag_load(g, 13, 14, 100))
        def wread(F, half=None):
            s, f = F >> 5, F & 31
            if s >= 4: return
            if f == 0 and half != 1:
                g.wait_vm(("w", s), "kv", *(["st"] if s == FS else []))
                if MERGE and s == 2: w0_only(lambda: flag_wait(g, 13, 14, 59, 100, SLA, True))
                g.e("s_barrier")
                if MERGE and s == FS: w0_only(lambda: flag_set(g, 10, 58, 59, 100))
                if s == 2:
                    g.e("v_xor_b32 v5, 0x10000, v5")
                    g.e("v_xor_b32 v6, 0x10000, v6")
                if s >= 2:
                    for op in first_tile(s - 2): op()
            p, ks, cb = fmap(s, f)
            mp = p * 4 + ks
            r = WR + (F % 8) * 4
            for a in (range(2) if half is None else [half]):
                o = (s & 1) * 32768 + mp * 4096 + a * 512 + (cb >> 1) * 256
                g.lds(f"TR {r + 2 * a},{6 if cb & 1 else 5},{o}", ("w", F))
        CHG = k1.CHG
        for F in range(8 if CHG else D): wread(F)
        fill = []; rq = []
        for s in range(4):
            if PROF == 1: g.stamp(7 + s)
            for f in range(32):
                F = s * 32 + f
                if F == 116: fill = qpack(0)
                for h in range(2):
                    if CHG:
                        i = (f & 3) * 2 + h
                        Fm, a = (F & ~3) + (i & 3), i >> 2
                    else: Fm, a = F, h
                    p, ks, cb = fmap(s, Fm & 31)
                    m = s * 4 + ks
                    if p == 0 and cb == 0 and a == 0: g.wait_vm(("x", m))
                    if a == 0: g.wait_ds(("w", Fm))
                    r = WR + (Fm % 8) * 4
                    g.e(f"{'MZ' if m == 0 else 'M'} {areg(p, cb, a)},{r},{xreg(a, m)}")
                    if CHG:
                        if rq: rq.pop(0)()
                        if a == 1: rq += [lambda Fm=Fm: wread(Fm + 8, 0), lambda Fm=Fm: wread(Fm + 8, 1)]
                    else: wread(F + D, h)
                    if fill: fill.pop(0)(); fill.pop(0)()
                if F in later: later.pop(F)()
        assert not fill and not later
    if k1.QFAST:
        g.label("L_p2f")
        g.stamp(0)
        if PROF: g.e("s_memrealtime s[94:95]")
        g.vm = list(k1.FAST_VM); g.ds = []
        g.e("s_and_b32 s3, s2, 7")
        setup(True)
        qphase(True)
        g.e("s_branch L_k2_qend")
    g.vm = []; g.ds = []
    g.label("L_k2_attn")
    setup(False)
    if MERGE: g.e("s_barrier")
    g.label("L_k2_round")
    qphase(False)
    g.label("L_k2_qend")
    g.stamp(2)
    g.e("s_mov_b32 s47, 0")
    for grp in next_ops(47):
        for t in grp: g.e(t)
    advance(g)
    g.vm = []; g.ds = []
    for j in range(16): g.e(f"DR {freg(kslot(j))},{VF},{j * 1024}")
    for op in qpack(1): op()
    g.e(f"v_mov_b32 v{VNEG}, {f32(-1e30)}")
    g.e(f"s_mov_b32 s56, {f32(2.0 ** 60)}")
    g.e(f"s_mov_b32 s6, {f32(2.0 ** -60)}")
    for i in range(8): g.e(f"v_mov_b32 v{NEGM + i}, 0")
    g.e(f"v_add_u32 v9, s57, v{V16}")
    if PFS: pf_prep()
    g.e("s_waitcnt vmcnt(0) lgkmcnt(0)")
    g.stamp(3)
    la = g.newlabel("qa")
    g.e("s_cmp_eq_u32 s41, 0")
    g.e(f"s_cbranch_scc1 {la}")
    g.e("s_barrier")
    g.label(la)
    def post0():
        if PFS: pf_wsp()
    def pre0():
        sk = g.newlabel("nost")
        g.e("s_cmp_eq_u32 s41, 0")
        g.e(f"s_cbranch_scc0 {sk}")
        for qb in range(2):
            for mm in range(4): g.e(f"DW 9,{qreg(qb, mm)},{(qb * 4 + mm) * 1024}")
        g.label(sk)
    m_phase(g, False, False, False, post0, pre0)
    def s_fast(tag):
        g.label(f"L_k2_s{tag}")
        PT = int(os.environ.get('PT', '5'))
        g.stamp_if(9, 52, PT)
        for op in softmax_ops(g)[NTAIL:]: op()
        g.e(f"v_max_f32 v{VT}, v{VLT}, v{VLT + 1}")
        g.e(f"v_cmp_lt_f32 vcc, s56, v{VT}")
        g.e("s_cbranch_vccnz L_k2_sgen")
        for qb in range(2): g.e(f"v_add_f32 v{VL + qb}, v{VL + qb}, v{VLT + qb}")
        g.stamp_if(10, 52, PT)
        if PROF == 2:
            g.e("s_waitcnt vmcnt(0) lgkmcnt(0)")
            g.stamp_if(11, 52, PT)
        advance(g)
        if tag == "sh": g.e("s_cmp_lt_u32 s52, s45")
        g.e("s_waitcnt lgkmcnt(0)" if tag == "sh" else "s_waitcnt vmcnt(0) lgkmcnt(0)")
    s_fast("sh")
    g.e("s_cbranch_scc0 L_k2_msp")
    def mcheck(tag):
        if not SKIP: return
        g.e("s_sub_u32 s49, s52, s46")
        g.e("s_cmp_lt_u32 s49, 4")
        g.e("s_cbranch_scc1 L_k2_mdisp")
        if tag == "sp":
            g.e("s_add_u32 s49, s52, 2")
            g.e("s_cmp_ge_u32 s49, s48")
            g.e("s_cbranch_scc1 L_k2_mdisp")
        g.label(f"L_k2_m{tag}2")
    g.label("L_k2_msh")
    mcheck("sh")
    g.stamp_if(6, 52, int(os.environ.get('PT', '5'))); g.stamp_if(12, 52, int(os.environ.get('PT', '5')) + 1)
    m_phase(g, True, False, False)
    g.e("s_branch L_k2_ssh")
    s_fast("sp")
    g.label("L_k2_msp")
    mcheck("sp")
    m_phase(g, True, False, True)
    g.e("s_branch L_k2_ssp")
    g.label("L_k2_mzsh")
    m_phase(g, True, True, False)
    g.e("s_branch L_k2_ssh")
    g.label("L_k2_mzsp")
    m_phase(g, True, True, True)
    g.e("s_branch L_k2_ssp")
    if SKIP:
        g.label("L_k2_mdisp")
        def level(dst, par):
            g.e(f"s_lshl_b32 s{dst}, s{par}, 1")
            g.e(f"s_add_u32 s{dst}, s{dst}, 1")
            g.e(f"s_sub_u32 s{dst}, s{dst}, s42")
            g.e(f"s_max_i32 s{dst}, s{dst}, 0")
            g.e(f"s_min_i32 s{dst}, s{dst}, 2")
        g.e("s_and_b32 s49, s52, 1")
        level(4, 49)
        g.e("s_sub_u32 s49, s52, s46")
        g.e("s_add_u32 s5, s52, 2")
        g.e("s_cmp_ge_u32 s5, s48")
        g.e("s_cselect_b32 s5, 0, s49")
        g.e("s_cmp_lt_u32 s5, 2")
        g.e("s_cselect_b32 s4, s4, 0")
        g.e("s_lshr_b32 s18, s49, 1")
        level(5, 18)
        g.e("s_or_b32 s49, s49, 2")
        g.e("s_cmp_eq_u32 s49, 3")
        g.e("s_cselect_b32 s5, s5, 0")
        g.e("s_or_b32 s49, s4, s5")
        g.e("s_cbranch_scc1 L_k2_mx")
        g.e("s_cmp_lt_u32 s52, s45")
        g.e("s_cbranch_scc1 L_k2_msh2")
        g.e("s_branch L_k2_msp2")
        g.label("L_k2_mx")
        def cond(sreg_, lim, fn):
            l = g.newlabel("sk")
            g.e(f"s_cmp_gt_u32 s{sreg_}, {lim}")
            g.e(f"s_cbranch_scc1 {l}")
            fn()
            g.label(l)
        def pvb(kg):
            for cb in range(8):
                for qb in range(2): g.e(f"M {oreg(cb, qb)},{freg(kg * 8 + cb)},{preg(qb, kg)}")
        def rd(h, base):
            for j in range(8 * h, 8 * h + 8): g.e(f"DR {freg(j)},{VF},{base + j * 1024}")
        def qkb(h):
            for kt in (2 * h, 2 * h + 1):
                for qb in range(2):
                    for mm in range(4):
                        if mm == 0: g.e(f"MC {sreg(kt, qb)},{freg(kt * 4)},{qreg(qb, 0)},{NEGM + qb * 4}")
                        else: g.e(f"M {sreg(kt, qb)},{freg(kt * 4 + mm)},{qreg(qb, mm)}")
        g.e("s_barrier")
        cond(5, 1, lambda: pvb(0))
        cond(4, 1, lambda: rd(0, 0))
        for op in dma4(g, 7): op()
        cond(5, 0, lambda: pvb(1))
        cond(4, 0, lambda: rd(1, 0))
        lsh = g.newlabel("sh"); lj = g.newlabel("j")
        g.e("s_cmp_lt_u32 s52, s45")
        g.e(f"s_cbranch_scc1 {lsh}")
        for op in dma4(g, 51, "s_add_u32 m0, s50, 16384"): op()
        g.e("s_waitcnt vmcnt(8)")
        g.e(f"s_branch {lj}")
        g.label(lsh)
        g.e("s_waitcnt vmcnt(4)")
        g.label(lj)
        g.e("s_cmp_lt_u32 s52, s53")
        g.e("s_cselect_b32 s47, 1, 2")
        g.e("s_add_u32 s47, s47, s52")
        for grp in next_ops(47):
            for t in grp: g.e(t)
        g.e("s_waitcnt lgkmcnt(0)")
        cond(4, 1, lambda: (qkb(0), rd(0, 16384)))
        cond(4, 0, lambda: (qkb(1), rd(1, 16384)))
        g.e("s_barrier")
        g.e("s_nop 4")
        g.e("s_branch L_k2_sgen")
        g.vm = []; g.ds = []
    EXP = os.environ.get('ATEXP', '')
    if EXP:
        i0 = g.lines.index("L_k2_ssh:")
        keep = []
        for l in g.lines[i0:]:
            if 'd' in EXP and l.startswith('buffer_load'): continue
            if 'r' in EXP and l.startswith('DR '): continue
            if 'e' in EXP and l.startswith('v_exp'): l = l.replace('v_exp_f32', 'v_mov_b32')
            if 'v' in EXP and (l.startswith('v_exp') or l.startswith('PK') or (l.startswith('v_add_f32 v8') or l.startswith('v_add_f32 v9'))): continue
            if 'b' in EXP and l.startswith('s_cbranch_vccnz'): continue
            keep.append(l)
        g.lines[i0:] = keep
    def ctx_base(blk):
        g.e(f"s_lshl_b32 s49, s{blk}, 3")
        g.e("s_lshl_b32 s35, s42, 1")
        g.e("s_add_u32 s49, s49, s35")
        g.e("s_mul_i32 s49, s49, 159744")
        g.e("s_lshl_b32 s35, s43, 12")
        g.e("s_add_u32 s34, s49, s35")
        g.e("s_add_u32 s35, s34, 159744")
    def pack_store(mm, qb, fl=STF2):
        x, y = oreg(2 * mm, qb), oreg(2 * mm + 1, qb)
        return [f"PK {x},{x},{x + 1}", f"PK {x + 1},{x + 2},{x + 3}", f"PK {x + 2},{y},{y + 1}", f"PK {x + 3},{y + 2},{y + 3}",
                f"buffer_store_dwordx4 v[{x}:{x + 3}], v{V16}, s[36:39], s{34 + qb} offen offset:{mm * 1024} {fl}"]
    g.label("L_k2_sgen")
    def st5(i, val):
        if PROF == 5:
            l = g.newlabel("st"); g.e(f"s_cmp_lg_u32 s52, {val}"); g.e(f"s_cbranch_scc1 {l}"); g.stamp(i); g.label(l)
    st5(4, 0); st5(7, 8); st5(9, 9); st5(11, 11)
    if PROF == 5: g.stamp(13)
    g.e("s_sub_u32 s49, s52, s46")
    g.e("s_cmp_eq_u32 s49, 3")
    g.e("s_cselect_b32 s5, 2, 0")
    g.e("s_cmp_eq_u32 s52, 0")
    g.e("s_cselect_b32 s5, 1, s5")
    g.e("s_cselect_b32 s18, s6, 0")
    g.e("s_cmp_eq_u32 s5, 2")
    g.e("s_cselect_b32 s18, s6, s18")
    mask_block(g)
    ny = g.newlabel("ny"); jy = g.newlabel("jy")
    g.e("s_cmp_eq_u32 s5, 2")
    g.e(f"s_cbranch_scc0 {ny}")
    ctx_base(33)
    so = softmax_ops(g)
    k = 0
    for mm in range(4):
        for qb in range(2):
            for cb in (2 * mm, 2 * mm + 1):
                for r in range(4): g.e(f"v_mul_f32 v{oreg(cb, qb) + r}, v{oreg(cb, qb) + r}, v{FA + qb}")
            for t in pack_store(mm, qb): g.e(t)
            n = 9 if k < 2 else 10
            for op in so[:n]: op()
            so = so[n:]; k += 1
    assert not so
    g.e(f"s_branch {jy}")
    g.label(ny)
    for op in softmax_ops(g): op()
    g.label(jy)
    g.e(f"v_max_f32 v{VT}, v{VLT}, v{VLT + 1}")
    g.e(f"v_min_f32 v{TMP}, v{VLT}, v{VLT + 1}")
    g.e(f"v_cmp_lt_f32 vcc, s56, v{VT}")
    g.e("s_cbranch_vccnz L_k2_slow")
    g.e(f"v_cmp_gt_f32 vcc, s18, v{TMP}")
    g.e("s_cbranch_vccnz L_k2_slow")
    g.label("L_k2_back")
    nf = g.newlabel("nf")
    g.e("s_cmp_eq_u32 s5, 0")
    g.e(f"s_cbranch_scc1 {nf}")
    for qb in range(2): g.e(f"v_mov_b32 v{VL + qb}, 0")
    g.label(nf)
    for qb in range(2): g.e(f"v_add_f32 v{VL + qb}, v{VL + qb}, v{VLT + qb}")
    g.e("s_add_u32 s49, s52, 2")
    g.e("s_cmp_ge_u32 s49, s48")
    g.e("s_cbranch_scc1 L_k2_xlast")
    nl = g.newlabel("nyl")
    g.e("s_sub_u32 s49, s52, s46")
    g.e("s_cmp_eq_u32 s49, 1")
    g.e(f"s_cbranch_scc0 {nl}")
    g.e(f"v_add_u32 v10, s57, v{V16}")
    for qb in range(2):
        for mm in range(4): g.e(f"DR {qreg(qb, mm)},10,{(qb * 4 + mm) * 1024}")
    xgroup(g, [VL, VL + 1], "v_add_f32", TMP + 2)
    for qb in range(2): g.e(f"v_rcp_f32 v{FA + qb}, v{VL + qb}")
    for i in range(8): g.e(f"v_mov_b32 v{NEGM + i}, 0")
    g.label(nl)
    st5(6, 0); st5(8, 8); st5(10, 9); st5(12, 11)
    advance(g)
    g.e("s_cmp_lt_u32 s52, s45")
    g.e("s_cselect_b32 s49, 0, 4")
    g.e("s_add_u32 s5, s5, s49")
    w8 = g.newlabel("w8")
    g.e("s_and_b32 s49, s5, 3")
    g.e(f"s_cbranch_scc1 {w8}")
    g.e("s_waitcnt vmcnt(0)")
    g.label(w8)
    g.e("s_waitcnt vmcnt(8) lgkmcnt(0)")
    g.e("s_cmp_eq_u32 s5, 0")
    g.e("s_cbranch_scc1 L_k2_msh")
    g.e("s_cmp_eq_u32 s5, 4")
    g.e("s_cbranch_scc1 L_k2_msp")
    g.e("s_cmp_eq_u32 s5, 1")
    g.e("s_cbranch_scc1 L_k2_mzsh")
    g.e("s_branch L_k2_mzsp")
    g.label("L_k2_xlast")
    if PROF == 5: g.stamp(14)
    g.e("s_and_b32 s49, s48, 3")
    g.e("s_lshl_b32 s49, s49, 15")
    g.e("s_lshl_b32 s50, s42, 13")
    g.e("s_add_u32 s50, s50, s49")
    g.e(f"v_add_u32 v11, s50, v{V16}")
    g.e(f"v_add_u32 v10, s57, v{V16}")
    g.e("s_xor_b32 s49, s49, 0x10000")
    g.e("s_lshl_b32 s50, s42, 10")
    g.e("s_add_u32 s49, s49, s50")
    g.e(f"v_add_u32 v{VT}, s49, v{V16}")
    xaddr = lambda i: (10 + (i >> 3), (i & 7) * 1024)
    def pvgroup(cb, zero, mid=()):
        mid = list(mid)
        for kg in range(2):
            for qb in range(2):
                g.e(f"{'MZ' if zero and kg == 0 else 'M'} {oreg(cb, qb)},{freg(kg * 8 + cb)},{preg(qb, kg)}")
                n = -(-len(mid) // (4 - (kg * 2 + qb)))
                for _ in range(n): mid.pop(0)()
    g.e("s_cmp_eq_u32 s41, 0")
    g.e("s_cbranch_scc0 L_k2_xlastB")
    g.e(f"v_mov_b32 v{ML}, v{NEGM}")
    g.e(f"v_mov_b32 v{ML + 1}, v{NEGM + 4}")
    g.e(f"v_mov_b32 v{ML + 2}, v{VL}")
    g.e(f"v_mov_b32 v{ML + 3}, v{VL + 1}")
    g.e(f"DW {VT},{ML},0")
    g.e("s_waitcnt vmcnt(0) lgkmcnt(0)")
    g.e("s_barrier")
    dw = lambda i: (lambda: g.e(f"DW {xaddr(i)[0]},{OR + i * 4},{xaddr(i)[1]}"))
    for cb in range(8):
        pvgroup(cb, False, [dw(2 * cb - 6), dw(2 * cb - 5)] if cb >= 3 else [])
    for i in range(10, 12): dw(i)()
    g.e("s_nop 3")
    for i in range(12, 16): dw(i)()
    g.e("s_waitcnt lgkmcnt(0)")
    g.e("s_barrier")
    g.e("s_branch L_k2_rend")
    g.label("L_k2_xlastB")
    g.e(f"DR {ML},{VT},0")
    ctx_base(32)
    NM = TMP
    g.e("s_waitcnt lgkmcnt(0)")
    for qb in range(2): g.e(f"v_min_f32 v{NM + qb}, v{ML + qb}, v{NEGM + 4 * qb}")
    for qb in range(2): g.e(f"v_sub_f32 v{FA + qb}, v{NM + qb}, v{ML + qb}")
    for qb in range(2): g.e(f"v_sub_f32 v{FB + qb}, v{NM + qb}, v{NEGM + 4 * qb}")
    for i in range(4): g.e(f"v_exp_f32 v{FA + i}, v{FA + i}")
    g.e("s_nop 0")
    for qb in range(2): g.e(f"v_mul_f32 v{VL + qb}, v{VL + qb}, v{FB + qb}")
    for qb in range(2): g.e(f"v_fmac_f32 v{VL + qb}, v{ML + 2 + qb}, v{FA + qb}")
    xgroup(g, [VL, VL + 1], "v_add_f32", TMP + 2)
    for qb in range(2): g.e(f"v_rcp_f32 v{VL + qb}, v{VL + qb}")
    g.e("s_nop 0")
    for qb in range(2): g.e(f"v_mul_f32 v{FA + qb}, v{FA + qb}, v{VL + qb}")
    for qb in range(2): g.e(f"v_mul_f32 v{FB + qb}, v{FB + qb}, v{VL + qb}")
    lz = g.newlabel("finz")
    g.e("s_cmp_eq_u32 s5, 0")
    g.e(f"s_cbranch_scc0 {lz}")
    for zero in (False, True):
        if zero: g.label(lz)
        g.ds = []
        for cb in range(4): pvgroup(cb, zero)
        g.e("s_barrier")
        def merge_ops(mm):
            ops = []
            I = lambda t: ops.append(lambda t=t: g.e(t))
            for qb in range(2):
                for cb in (2 * mm, 2 * mm + 1):
                    o = oreg(cb, qb)
                    for r in range(4): I(f"v_mul_f32 v{o + r}, v{o + r}, v{FB + qb}")
                    ops.append(lambda cb=cb, qb=qb: g.wait_ds(("o", cb, qb)))
                    for r in range(4): I(f"v_fmac_f32 v{o + r}, v{freg(qb * 8 + cb) + r}, v{FA + qb}")
                for t in pack_store(mm, qb, STFX): I(t)
            return ops
        xr = lambda cb, qb: (lambda: g.lds(f"DR {freg(qb * 8 + cb)},{xaddr(cb * 2 + qb)[0]},{xaddr(cb * 2 + qb)[1]}", ("o", cb, qb)))
        for cb in range(3): xr(cb, 0)(); xr(cb, 1)()
        m0 = merge_ops(0)
        for cb in range(4, 8):
            mid = [xr(cb - 1, 0), xr(cb - 1, 1)]
            if cb == 6: mid += m0[:len(m0) // 2]
            if cb == 7: mid += m0[len(m0) // 2:]
            pvgroup(cb, zero, mid)
        xr(7, 0)(); xr(7, 1)()
        for op in merge_ops(1) + merge_ops(2) + merge_ops(3): op()
        if not zero: g.e("s_branch L_k2_rend")
    g.label("L_k2_rend")
    g.stamp(5)
    g.e("s_cmp_eq_u32 s32, 3")
    g.e("s_cbranch_scc0 L_k2_aend")
    g.stamp(4)
    g.e("s_mov_b32 s32, 1")
    g.e("s_mov_b32 s33, 0")
    g.e("s_waitcnt vmcnt(0) lgkmcnt(0)")
    g.e("s_barrier")
    g.e("s_branch L_k2_round")
    g.label("L_k2_aend")
    skc = g.newlabel("nocode")
    g.e("s_cmp_eq_u32 s44, 6")
    g.e(f"s_cbranch_scc0 {skc}")
    code_touch(g, 96, 14, "L_all_end", "L_p3", False, va=26)
    if HOT:
        g.e("s_load_dwordx2 s[96:97], s[0:1], 40")
        g.e("s_and_b32 s49, s43, 0x1e")
        g.e("s_add_u32 s49, s49, s41")
        g.e("s_lshl_b32 s49, s49, 17")
        g.e("s_lshl_b32 s50, s42, 15")
        g.e("s_add_u32 s49, s49, s50")
        g.e("v_and_b32 v12, 31, v0")
        g.e("v_lshlrev_b32 v12, 10, v12")
        g.e("v_bfe_u32 v13, v0, 5, 1")
        g.e("v_lshl_add_u32 v12, v13, 9, v12")
        g.e("s_waitcnt lgkmcnt(0)")
        g.e(f"s_mov_b32 s98, {4 * MB}")
        g.e("s_mov_b32 s99, 0x20000")
        g.e("buffer_load_dword v13, v12, s[96:99], s49 offen offset:384")
        if HOT > 1: g.e("buffer_load_dword v13, v12, s[96:99], s49 offen offset:256")
    g.label(skc)
    if PF2:
        sk = g.newlabel("nopf")
        g.e("s_cmp_eq_u32 s44, 6")
        g.e(f"s_cbranch_scc0 {sk}")
        g.e("s_cmp_eq_u32 s41, 1")
        g.e(f"s_cbranch_scc0 {sk}")
        g.e("s_load_dwordx2 s[20:21], s[0:1], 40")
        g.e("s_load_dwordx2 s[28:29], s[0:1], 80")
        g.e("s_lshl_b32 s49, s43, 2")
        g.e("s_add_u32 s49, s49, s42")
        g.e(f"v_lshlrev_b32 v10, 3, v{V16}")
        g.e("s_lshl_b32 s50, s49, 15")
        g.e("s_mul_i32 s51, s49, 7168")
        g.e("s_waitcnt lgkmcnt(0)")
        g.e(f"s_mov_b32 s22, {4 * MB}")
        g.e("s_mov_b32 s23, 0x20000")
        g.e(f"s_mov_b32 s30, {896 * 1024}")
        g.e("s_mov_b32 s31, 0x20000")
        for i in range(4):
            g.e(f"buffer_load_dword v{12 + i}, v10, s[20:23], s50 offen")
            g.e("s_add_u32 s50, s50, 8192")
        g.e("buffer_load_dword v11, v10, s[28:31], s51 offen")
        g.label(sk)
    g.stamp_dump(16, 17, 40, 1)
    if MERGE == 2:
        g.e("s_lshl_b32 s58, s44, 2")
        g.e("s_bfe_u32 s49, s43, 0x20001")
        g.e("s_add_u32 s58, s58, s49")
        g.e("s_add_u32 s58, s58, 21")
        g.e("s_lshl_b32 s58, s58, 7")
        g.e("s_lshr_b32 s49, s43, 3")
        g.e("s_lshl_b32 s49, s49, 3")
        g.e("s_add_u32 s58, s58, s49")
        g.e("s_and_b32 s49, s43, 1")
        g.e("s_lshl_b32 s49, s49, 2")
        g.e("s_add_u32 s58, s58, s49")
        g.e("s_branch L_p3")
    else: g.e("s_endpgm")
    g.label("L_k2_slow")
    l1 = g.newlabel("slow1"); l2 = g.newlabel("slow2")
    g.e("s_cmp_eq_u32 s5, 0")
    g.e(f"s_cbranch_scc0 {l1}")
    rescale(g, False)
    g.e(f"s_branch {l2}")
    g.label(l1)
    rescale(g, True)
    g.label(l2)
    for op in softmax_ops(g): op()
    g.e("s_branch L_k2_back")

def gen_spatial(g):
    ACC, AR, BB, Z1R = 144, 116, 84, 24
    ZB, ZS = 98304, 14336
    VWD = 80
    acc = lambda fb, tt: ACC + (fb * 4 + tt) * 4
    g.vm = []; g.ds = []
    g.label("L_k2_sp")
    g.e("s_lshl_b32 s57, s3, 13")
    g.e("s_and_b32 s44, s41, 3")
    if BAL:
        g.e("s_bfe_u32 s49, s41, 0x10002")
        g.e("s_add_u32 s3, s3, s49")
    g.e("s_and_b32 s42, s40, 3")
    g.e("s_lshr_b32 s41, s40, 2")
    srd(g, 20, 6, 7, 2048 * 4096)
    srd(g, 24, 16, 17, SZ_Z, WS_Z2)
    g.e("v_and_b32 v28, 63, v0")
    g.e(f"v_lshlrev_b32 v{V16}, 4, v28")
    g.e("v_bfe_u32 v28, v0, 3, 3")
    g.e("v_and_b32 v29, 7, v0")
    g.e("v_lshrrev_b32 v30, 1, v28")
    g.e("v_xor_b32 v29, v29, v30")
    g.e("s_lshl_b32 s49, s3, 8")
    g.e("s_lshl_b32 s50, s40, 5")
    g.e("s_add_u32 s49, s49, s50")
    g.e("v_add_u32 v28, s49, v28")
    g.e("v_lshlrev_b32 v28, 12, v28")
    g.e("v_xor_b32 v30, 4, v29")
    g.e("v_lshl_add_u32 v29, v29, 4, v28")
    g.e("v_lshl_add_u32 v30, v30, 4, v28")
    for j in range(4): g.e(f"v_add_u32 v{VWD + j}, {j * 8 * 4096 - j * 1024}, v{29 + (j & 1)}")
    g.e("s_lshl_b32 s48, s40, 1")
    g.e("s_min_u32 s48, s48, 12")
    g.e("s_mul_i32 s49, s44, 14")
    g.e("s_add_u32 s49, s49, s48")
    g.e("s_lshl_b32 s43, s49, 10")
    g.e("s_mov_b32 s45, 0")
    g.e("s_lshl_b32 s46, s40, 12")
    g.e("s_lshl_b32 s47, s48, 10")
    g.e(f"s_add_u32 s47, s47, {ZB}")
    def wop(b, j):
        if j % 2 == 0:
            g.e(f"s_add_u32 m0, s46, {(b % 3) * 32768}")
            g.e("s_nop 0")
        g.vmem(f"buffer_load_dwordx4 v{VWD + j}, s[20:23], s45 offen offset:{j * 1024} {NTSP} lds", ("w", 2 * b))
        if j == 3: g.e("s_add_u32 s45, s45, 128")
    def zop(st, j):
        if j == 0:
            g.e(f"s_add_u32 m0, s47, {(st % 4) * ZS}")
            g.e("s_nop 0")
        g.vmem(f"buffer_load_dwordx4 v{V16}, s[24:27], s43 offen offset:{j * 1024} {SC} lds", ("z", st))
        if j == 1: g.e("s_add_u32 s43, s43, 57344")
    def dma_ops(st):
        b, h = st // 2 + 2, st & 1
        return [lambda: zop(st + 3, 0), lambda: zop(st + 3, 1), lambda: wop(b, 2 * h), lambda: wop(b, 2 * h + 1)]
    if MERGE:
        g.e("s_waitcnt vmcnt(0)")
        g.e("s_barrier")
        nw = g.newlabel("nw"); nw2 = g.newlabel("nw")
        g.e("s_cmp_lg_u32 s40, 0")
        g.e(f"s_cbranch_scc1 {nw}")
        if k1.STKV == '':
            g.e("buffer_wbl2 sc1")
            g.e("s_waitcnt vmcnt(0)")
        flag_set(g, 10, 58, 59, 100)
        g.e("v_min_u32 v14, 55, v0")
        g.e("v_and_b32 v15, 7, v14")
        g.e("v_lshrrev_b32 v14, 3, v14")
        g.e("v_lshlrev_b32 v14, 7, v14")
        g.e("v_lshl_add_u32 v14, v15, 2, v14")
        g.e(f"s_add_u32 s49, s57, {14 * 128 + 32}")
        g.e("v_add_u32 v14, s49, v14")
        flag_load(g, 12, 14, 100)
        g.label(nw)
        g.e("s_barrier")
        for j in range(4): wop(0, j)
        if SPT:
            g.e("s_lshl_b32 s49, s44, 3")
            g.e("s_add_u32 s49, s49, s40")
            g.e("s_lshl_b32 s49, s49, 15")
            g.e("s_lshl_b32 s50, s3, 20")
            g.e("s_add_u32 s49, s49, s50")
            g.e("v_bfe_u32 v9, v0, 3, 3")
            g.e("v_lshlrev_b32 v9, 12, v9")
            g.e("v_and_b32 v8, 7, v0")
            g.e("v_lshl_add_u32 v9, v8, 7, v9")
            for i in range(SPT): g.vmem(f"buffer_load_dword v8, v9, s[20:23], s49 offen offset:{128 + 1024 * i}", ("w", 0))
        g.e("s_cmp_lg_u32 s40, 0")
        g.e(f"s_cbranch_scc1 {nw2}")
        g.e(f"s_waitcnt vmcnt({4 + SPT})")
        flag_wait(g, 12, 14, 59, 100, SLS, True)
        g.e("v_min_u32 v14, 39, v0")
        g.e("v_and_b32 v15, 3, v14")
        g.e("v_lshrrev_b32 v14, 2, v14")
        g.e("v_lshlrev_b32 v14, 7, v14")
        g.e("v_lshl_add_u32 v14, v15, 3, v14")
        g.e(f"s_add_u32 s49, s57, {11 * 128}")
        g.e("v_add_u32 v14, s49, v14")
        g.label(nw2)
        g.e("s_barrier")
        zop(0, 0); zop(0, 1)
    else:
        zop(0, 0); zop(0, 1)
        for j in range(4): wop(0, j)
        code_touch(g, 96, 14, "L_k2_spend", None, False)
    srd(g, 12, 8, 9, 4096)
    g.e("v_and_b32 v11, 15, v0")
    g.e("v_lshlrev_b32 v11, 1, v11")
    g.e("s_lshl_b32 s49, s3, 9")
    g.e("s_lshl_b32 s50, s42, 7")
    g.e("s_add_u32 s49, s49, s50")
    for tt in range(4): g.vmem(f"buffer_load_ushort v{16 + tt}, v11, s[12:15], s49 offen offset:{tt * 32}", ("w", 0))
    g.e("s_barrier")
    zop(1, 0); zop(1, 1)
    if MERGE < 2:
        srd(g, 28, 16, 17, 32768, WS_PART + 8 * MB)
        g.e("s_sub_u32 s49, s2, 224")
        g.e("s_lshl_b32 s49, s49, 10")
        g.e("v_lshrrev_b32 v28, 6, v0")
        g.e(f"v_lshl_add_u32 v28, v28, 24, v{V16}")
        for i in range(4): g.e(f"v_mov_b32 v{20 + i}, 0")
        g.e("buffer_store_dwordx4 v[20:23], v28, s[28:31], s49 offen")
    srd(g, 28, 16, 17, SZ_Z, WS_Z1)
    srd(g, 36, 16, 17, SZ_CTX, WS_CTX)
    g.e("s_mul_i32 s49, s41, 7168")
    g.e(f"s_add_u32 s49, s49, {ZB}")
    g.e(f"v_add_u32 v4, s49, v{V16}")
    g.e("v_and_b32 v28, 15, v0")
    g.e("v_bfe_u32 v29, v0, 4, 2")
    g.e("v_lshrrev_b32 v30, 1, v28")
    g.e("v_xor_b32 v29, v29, v30")
    g.e("v_lshlrev_b32 v29, 4, v29")
    g.e("v_lshl_add_u32 v29, v28, 7, v29")
    g.e("s_lshl_b32 s49, s42, 13")
    g.e("v_add_u32 v1, s49, v29")
    g.e("v_xor_b32 v2, 64, v1")
    g.e("v_add_u32 v5, 0x10000, v1")
    g.e("v_add_u32 v6, 0x10000, v2")
    def aread(st, fb): g.lds(f"DR {AR + fb * 4},4,{(st % 4) * ZS + fb * 1024}", ("a", st, fb))
    def bread(st, tt):
        sl = (st // 2) % 3
        g.lds(f"DR {BB + (st & 1) * 16 + tt * 4},{(5 if sl == 2 else 1) + (st & 1)},{(sl & 1) * 32768 + tt * 2048}", ("b", st))
    SCH = {(3, 0): ("a", 0), (3, 1): ("b", 0), (3, 2): ("b", 1), (4, 0): ("b", 2), (4, 1): ("b", 3), (4, 2): ("a", 1), (5, 0): ("a", 2), (6, 0): ("a", 3)}
    rd = lambda st, k: (aread if k[0] == "a" else bread)(st, k[1])
    g.wait_vm(("z", 0), ("w", 0))
    g.e("s_barrier")
    for key in sorted(SCH): rd(0, SCH[key])
    for tt in range(4):
        for r in range(4): g.e(f"v_lshlrev_b32 v{24 + tt * 4 + r}, 16, v{16 + tt}")
    g.e("s_mov_b32 s52, 0")
    g.stamp(1)
    def step(st, extra=(), dma=4, nxt=True, init=False):
        extra = list(extra)
        pend = []
        for fb in range(7):
            g.wait_ds(("a", st, fb), ("b", st))
            for tt in range(4):
                if init: g.e(f"MC {acc(fb, tt)},{AR + fb * 4},{BB + (st & 1) * 16 + tt * 4},{24 + tt * 4}")
                else: g.e(f"M {acc(fb, tt)},{AR + fb * 4},{BB + (st & 1) * 16 + tt * 4}")
                if tt == 0 and fb < 3: aread(st, fb + 4)
                if nxt:
                    if (fb, tt) == (3, 0):
                        g.wait_vm(("z", st + 1), ("w", st + 1))
                        g.e("s_barrier")
                        pend = dma_ops(st)[:dma]
                    if (fb, tt) in SCH: rd(st + 1, SCH[(fb, tt)])
                if tt == 3 and pend: pend.pop(0)()
                if tt in (1, 3) and extra and fb < 3:
                    extra.pop(0)()
        assert not pend and not extra
    step(0, [lambda j=j: wop(1, j) for j in range(4)] + [lambda: zop(2, 0), lambda: zop(2, 1)], init=True)
    for st in range(1, 4): step(st)
    g.label("L_k2_sploop")
    vm0, ds0 = list(g.vm), list(g.ds)
    for st in range(4, 16): step(st)
    ren = lambda t: (t[0], t[1] - 12) + t[2:]
    g.vm = [ren(t) for t in g.vm]; g.ds = [ren(t) for t in g.ds]
    assert g.vm == vm0 and g.ds == ds0, (g.vm, vm0, g.ds, ds0)
    g.e("s_add_u32 s52, s52, 1")
    g.e("s_cmp_lt_u32 s52, 4")
    g.e("s_cbranch_scc1 L_k2_sploop")
    g.stamp(2)
    g.e("s_lshl_b32 s49, s3, 4")
    g.e("s_lshl_b32 s50, s42, 2")
    g.e("s_add_u32 s49, s49, s50")
    g.e("s_mul_i32 s54, s49, 28672")
    g.e("s_mul_i32 s55, s49, 159744")
    g.e(f"s_add_u32 s55, s55, {128 * 1024}")
    for tt in range(4):
        g.e(f"v_add_u32 v{16 + tt}, {tt * 28672}, v{V16}")
        g.e(f"v_add_u32 v{20 + tt}, {tt * 159744}, v{V16}")
    g.e("s_mul_i32 s56, s44, 14")
    g.e("s_mul_i32 s48, s41, 7")
    g.e("s_add_u32 s56, s56, s48")
    g.e("s_lshr_b32 s56, s56, 1")
    g.e("s_lshl_b32 s56, s56, 10")
    g.e("s_add_u32 s54, s54, s56")
    g.e("s_add_u32 s55, s55, s56")
    def z1load(u):
        for tt in range(4):
            r = Z1R + (u * 4 + tt) * 4
            g.vmem(f"buffer_load_dwordx4 v[{r}:{r + 3}], v{16 + tt}, s[28:31], s54 offen offset:{u * 1024} {SC}", ("z1", u))
    for st in range(4, 16):
        ex = {8: 0, 10: 1, 12: 2, 15: 3}
        def w0(fn):
            sk = g.newlabel("w0")
            g.e("s_cmp_lg_u32 s40, 0"); g.e(f"s_cbranch_scc1 {sk}")
            fn(); g.label(sk)
        fl = []
        if MERGE and st == 4: fl = [lambda: w0(lambda: flag_load(g, 12, 14, 100, True))]
        if MERGE and st == 7: fl = [lambda: w0(lambda: flag_wait(g, 12, 14, 59, 100, SLS, True, True))]
        step(st, [lambda u=ex[st]: z1load(u)] if st in ex else fl, dma=4 if st < 12 else (2 if st == 12 else 0), nxt=st < 15)
    g.stamp(4)
    g.e("s_nop 4")
    g.e("s_mov_b32 s53, 0xffff0000")
    g.e("s_lshl_b32 s49, s42, 11")
    g.e("s_add_u32 s49, s49, 155648")
    g.e(f"v_lshrrev_b32 v12, 1, v{V16}")
    g.e("v_add_u32 v12, s49, v12")
    vm_sv = list(g.vm)
    lode = g.newlabel("spodd"); lend = g.newlabel("spend")
    g.e("s_cmp_eq_u32 s41, 1")
    g.e(f"s_cbranch_scc1 {lode}")
    for fh in range(2):
        g.vm = list(vm_sv)
        if fh: g.label(lode)
        for u in range(4):
            halves = [(h, 2 * u + h - fh) for h in range(2) if 0 <= 2 * u + h - fh < 7]
            g.wait_vm(("z1", u))
            if u == 3:
                g.e("s_waitcnt lgkmcnt(0)")
                g.e("s_barrier")
                if fh == 0:
                    for tt in range(4): g.e(f"ds_read_b64 v[{Z1R + (12 + tt) * 4 + 2}:{Z1R + (12 + tt) * 4 + 3}], v12 offset:{tt * 512}")
            for tt in range(4):
                z = Z1R + (u * 4 + tt) * 4
                for h, fb in halves:
                    a = acc(fb, tt); t = 8 if h else 1
                    g.e(f"v_lshlrev_b32 v{t}, 16, v{z + 2 * h}")
                    g.e(f"v_and_b32 v{t + 1}, s53, v{z + 2 * h}")
                    g.e(f"v_lshlrev_b32 v{t + 2}, 16, v{z + 2 * h + 1}")
                    g.e(f"v_and_b32 v{t + 3}, s53, v{z + 2 * h + 1}")
                    for r in range(4): g.e(f"v_mul_f32 v{a + r}, v{a + r}, v{t + r}")
                    g.e(f"PK {z + 2 * h},{a},{a + 1}"); g.e(f"PK {z + 2 * h + 1},{a + 2},{a + 3}")
                if fh == 1 and u == 0:
                    g.e(f"ds_write_b64 v12, v[{z + 2}:{z + 3}] offset:{tt * 512}")
                else:
                    if fh == 0 and u == 3: g.e(f"s_waitcnt lgkmcnt({3 - tt})")
                    g.vmem(f"buffer_store_dwordx4 v[{z}:{z + 3}], v{20 + tt}, s[36:39], s55 offen offset:{u * 1024} {STFU}", "st")
        if fh == 0: g.e(f"s_branch {lend}")
    g.label(lend)
    g.stamp(3)
    g.stamp_dump(16, 17, 40, 1)
    if MERGE == 2:
        g.e("s_add_u32 s58, s44, 49")
        g.e("s_lshl_b32 s58, s58, 7")
        g.e("s_lshl_b32 s49, s3, 2")
        g.e("s_add_u32 s58, s58, s49")
        g.e("s_branch L_p3")
    else: g.e("s_endpgm")

def gen_k2(g):
    if not MERGE:
        g.e(".p2align 8")
        g.e(".type k2_kernel,@function")
        g.label("k2_kernel")
        g.e("s_cmp_ge_u32 s2, 256")
        g.e("s_cbranch_scc1 L_k2_end")
    g.label("L_p2")
    g.stamp(0)
    if PROF: g.e("s_memrealtime s[94:95]")
    g.e("s_load_dwordx2 s[4:5], s[0:1], 16")
    g.e("s_load_dwordx4 s[8:11], s[0:1], 64")
    g.e("s_load_dwordx2 s[16:17], s[0:1], 104")
    g.e("v_lshrrev_b32 v1, 6, v0")
    g.e("s_and_b32 s3, s2, 7")
    g.e("s_lshr_b32 s41, s2, 3")
    g.e("v_readfirstlane_b32 s40, v1")
    g.e("s_waitcnt lgkmcnt(0)")
    g.e("s_mov_b32 s6, s8")
    g.e("s_mov_b32 s7, s9")
    g.e("s_mov_b32 s8, s10")
    g.e("s_mov_b32 s9, s11")
    if MERGE:
        nw = g.newlabel("nw")
        g.e("s_cmp_lg_u32 s40, 0")
        g.e(f"s_cbranch_scc1 {nw}")
        g.e("s_lshl_b32 s49, s3, 13")
        g.e(f"s_add_u32 s49, s49, {53 * 128 + 64}")
        g.e("v_lshrrev_b32 v14, 3, v0")
        g.e("v_lshlrev_b32 v14, 7, v14")
        g.e("v_and_b32 v15, 7, v0")
        g.e("v_lshl_add_u32 v14, v15, 2, v14")
        g.e("v_add_u32 v15, s49, v14")
        flag_wait(g, 13, 15, 59, 100, SLA, True)
        g.e("v_mov_b32 v13, 0")
        g.label(nw)
    if BAL:
        g.e("s_bitcmp1_b32 s2, 0")
        g.e("s_cbranch_scc1 L_k2_attn")
    g.e(f"s_cmp_lt_u32 s41, {24 if BAL else 28}")
    g.e("s_cbranch_scc1 L_k2_attn")
    g.e("s_branch L_k2_sp")
    g.label("L_k2_end")
    g.e("s_endpgm")
    gen_attn(g)
    gen_spatial(g)
    g.label("L_k2_spend")
```

```python
import struct, os
KNAME = 'parallel_sum__compressed_kv_cla__mixer_gmlp__prompt_kernel'
PROF = int(os.environ.get('PROF', '0'))

def f32(x):
    return struct.unpack('<I', struct.pack('<f', x))[0]

class G:
    def __init__(self):
        self.lines = []
        self.vm = []
        self.ds = []
        self.uid = 0
    def e(self, s):
        self.lines.append(s)
    def label(self, name):
        al = os.environ.get('ALIGN')
        if al and name in ("L_k2_ssh", "L_k2_ssp", "L_k2_sploop", "L_k2_msh2", "L_k2_msp2"):
            self.lines.append(f".p2alignl {al[0]}, 0xbf800000")
            if len(al) > 1: self.lines.append("s_nop 0")
        self.lines.append(name + ":")
    def newlabel(self, base):
        self.uid += 1
        return f"L_{base}_{self.uid}"
    def vmem(self, s, tag=None):
        self.lines.append(s); self.vm.append(tag)
    def lds(self, s, tag=None):
        self.lines.append(s); self.ds.append(tag)
    def _need(self, lst, tags):
        idx = -1
        for i, t in enumerate(lst):
            if t in tags: idx = i
        return idx
    def wait_vm(self, *tags):
        idx = self._need(self.vm, tags)
        if idx < 0: return
        n = min(len(self.vm) - 1 - idx, 63)
        self.lines.append(f"s_waitcnt vmcnt({n})")
        self.vm = self.vm[len(self.vm) - n:] if n else []
    def wait_ds(self, *tags):
        idx = self._need(self.ds, tags)
        if idx < 0: return
        n = min(len(self.ds) - 1 - idx, 15)
        self.lines.append(f"s_waitcnt lgkmcnt({n})")
        self.ds = self.ds[len(self.ds) - n:] if n else []
    def wait_all(self, vm=True, ds=True):
        if vm and ds: self.lines.append("s_waitcnt vmcnt(0) lgkmcnt(0)")
        elif vm: self.lines.append("s_waitcnt vmcnt(0)")
        elif ds: self.lines.append("s_waitcnt lgkmcnt(0)")
        if vm: self.vm = []
        if ds: self.ds = []
    def stamp(self, i):
        if PROF == 4 and i > 6: return
        if PROF: self.lines.append(f"s_memtime s[{64 + 2 * i}:{65 + 2 * i}]")
        if PROF == 4 and 1 <= i <= 6: self.lines.append(f"s_memrealtime s[{64 + 2 * (i + 7)}:{65 + 2 * (i + 7)}]")
    def stamp_if(self, i, sreg, val):
        if PROF != 2: return
        l = self.newlabel("st")
        self.e(f"s_cmp_lg_u32 s{sreg}, {val}")
        self.e(f"s_cbranch_scc1 {l}")
        self.stamp(i)
        self.label(l)
    def stamp_dump(self, wslo, wshi, swave, kidx, n=16):
        if not PROF: return
        e = self.e
        e("s_waitcnt vmcnt(0) lgkmcnt(0)")
        e("s_memrealtime s[98:99]")
        e("s_memtime s[96:97]")
        e("s_waitcnt lgkmcnt(0)")
        e(f"s_add_u32 s60, s{wslo}, {WS_DBG + kidx * MB}")
        e(f"s_addc_u32 s61, s{wshi}, 0")
        e(f"s_mov_b32 s62, {MB}")
        e("s_mov_b32 s63, 0x20000")
        e("s_lshl_b32 s49, s2, 10")
        e(f"s_lshl_b32 s50, s{swave}, 7")
        e("s_add_u32 s49, s49, s50")
        e("v_and_b32 v1, 63, v0") if False else None
        e("v_mbcnt_lo_u32_b32 v30, -1, 0")
        e("v_mbcnt_hi_u32_b32 v30, -1, v30")
        e("v_lshlrev_b32 v30, 24, v30")
        for i in range(n + 2):
            e(f"v_mov_b32 v31, s{64 + 2 * i}")
            e(f"buffer_store_dword v31, v30, s[60:63], s49 offen offset:{4 * i}")
            e("s_nop 1")
    def text(self):
        return "\n".join(self.lines) + "\n"

MACROS = r"""
.macro M d,a,b
v_mfma_f32_16x16x32_bf16 v[\d:\d+3],v[\a:\a+3],v[\b:\b+3],v[\d:\d+3]
.endm
.macro MZ d,a,b
v_mfma_f32_16x16x32_bf16 v[\d:\d+3],v[\a:\a+3],v[\b:\b+3],0
.endm
.macro MC d,a,b,c
v_mfma_f32_16x16x32_bf16 v[\d:\d+3],v[\a:\a+3],v[\b:\b+3],v[\c:\c+3]
.endm
.macro TR d,a,o
ds_read_b64_tr_b16 v[\d:\d+1],v\a offset:\o
.endm
.macro DR d,a,o
ds_read_b128 v[\d:\d+3],v\a offset:\o
.endm
.macro DW a,d,o
ds_write_b128 v\a,v[\d:\d+3] offset:\o
.endm
.macro PK d,a,b
v_cvt_pk_bf16_f32 v\d,v\a,v\b
.endm
"""

def kd(name, vgpr, sgpr=102):
    acc = (vgpr + 3) // 4 * 4
    return f"""
.amdhsa_kernel {name}
  .amdhsa_next_free_vgpr {vgpr}
  .amdhsa_next_free_sgpr {sgpr}
  .amdhsa_accum_offset {acc}
  .amdhsa_group_segment_fixed_size 0
  .amdhsa_kernarg_size 112
  .amdhsa_user_sgpr_count 2
  .amdhsa_user_sgpr_kernarg_segment_ptr 1
  .amdhsa_system_sgpr_workgroup_id_x 1
.end_amdhsa_kernel
"""

def srd(g, s, lo, hi, size, off=0):
    if off:
        g.e(f"s_add_u32 s{s}, s{lo}, {off}")
        g.e(f"s_addc_u32 s{s+1}, s{hi}, 0")
    else:
        g.e(f"s_mov_b32 s{s}, s{lo}")
        g.e(f"s_mov_b32 s{s+1}, s{hi}")
    g.e(f"s_mov_b32 s{s+2}, {size}")
    g.e(f"s_mov_b32 s{s+3}, 0x20000")

MERGE = int(os.environ.get('MERGE', '2'))
SC = os.environ.get("SCL", "sc1") if MERGE else ""
def dbg_load(g, v, voff, base):
    g.e(f"global_load_dword v{v}, v{voff}, s[{base}:{base + 1}] sc1")
def dbg_wait(g, v, voff, vtgt, base, sleep, loaded):
    spin = g.newlabel("spin"); chk = g.newlabel("chk")
    if loaded: g.e(f"s_branch {chk}")
    g.label(spin)
    g.e(f"s_sleep {sleep}")
    dbg_load(g, v, voff, base)
    g.e("s_waitcnt vmcnt(0)")
    g.label(chk)
    g.e(f"v_cmp_lt_u32 vcc, v{v}, v{vtgt}")
    g.e(f"s_cbranch_vccnz {spin}")
def nonce_get(g, v, voff, sleep, loaded):
    spin = g.newlabel("spin"); chk = g.newlabel("chk")
    if loaded: g.e(f"s_branch {chk}")
    g.label(spin)
    g.e(f"s_sleep {sleep}")
    g.e(f"v_mov_b32 v{voff}, 20")
    dbg_load(g, v, voff, 18)
    g.label(chk)
    g.e("s_waitcnt vmcnt(0)") if not loaded else None
    g.e(f"v_readfirstlane_b32 s59, v{v}")
    g.e("s_bitcmp1_b32 s59, 0")
    if loaded:
        ok = g.newlabel("ok")
        g.e(f"s_cbranch_scc1 {ok}")
        g.e("s_waitcnt vmcnt(0)")
        g.e(f"v_readfirstlane_b32 s59, v{v}")
        g.e("s_bitcmp1_b32 s59, 0")
        g.e(f"s_cbranch_scc0 {spin}")
        g.label(ok)
    else:
        g.e(f"s_cbranch_scc0 {spin}")
def flag_set(g, vt, soff, snonce, base):
    g.e(f"v_lshlrev_b32 v{vt}, 13, v0")
    g.e(f"v_add_u32 v{vt}, s{soff}, v{vt}")
    g.e(f"v_mov_b32 v{vt + 1}, s{snonce}")
    g.e("s_mov_b64 exec, 0xff")
    g.e(f"global_store_dword v{vt}, v{vt + 1}, s[{base}:{base + 1}] sc1")
    g.e("s_mov_b64 exec, -1")
def flag_load(g, v, voff, base, wide=False):
    if wide: g.e(f"global_load_dwordx2 v[{v}:{v + 1}], v{voff}, s[{base}:{base + 1}] sc1")
    else: g.e(f"global_load_dword v{v}, v{voff}, s[{base}:{base + 1}] sc1")
def flag_wait(g, v, voff, snonce, base, sleep, loaded, wide=False):
    spin = g.newlabel("spin"); chk = g.newlabel("chk")
    if loaded: g.e(f"s_branch {chk}")
    g.label(spin)
    g.e(f"s_sleep {sleep}")
    flag_load(g, v, voff, base, wide)
    g.e("s_waitcnt vmcnt(0)")
    g.label(chk)
    g.e(f"v_cmp_ne_u32 vcc, s{snonce}, v{v}")
    g.e(f"s_cbranch_vccnz {spin}")
    if wide:
        g.e(f"v_cmp_ne_u32 vcc, s{snonce}, v{v + 1}")
        g.e(f"s_cbranch_vccnz {spin}")
BAL = int(os.environ.get('BAL', '2'))
DIAG = int(os.environ.get('DIAG', '0'))
def diag_mark(g, i):
    if DIAG: g.e(f"s_memrealtime s[{64 + 2 * i}:{65 + 2 * i}]")
def diag_end(g):
    if not DIAG: return
    g.e("s_waitcnt vmcnt(0) lgkmcnt(0)")
    diag_mark(g, 4)
    g.e("s_waitcnt lgkmcnt(0)")
    g.e(f"s_sub_u32 s80, s{64 + 2 * DIAG}, s64")
    l = g.newlabel("dg")
    g.label(l)
    g.e("s_memrealtime s[82:83]")
    g.e("s_waitcnt lgkmcnt(0)")
    g.e("s_sub_u32 s81, s82, s72")
    g.e("s_cmp_lt_u32 s81, s80")
    g.e(f"s_cbranch_scc1 {l}")
CPF = int(os.environ.get('CPF', '1'))
def code_touch(g, s, v, end, start=None, track=True):
    if not CPF: return
    here = g.newlabel("pc")
    g.e(f"s_getpc_b64 s[{s}:{s + 1}]")
    g.label(here)
    if start:
        g.e(f"s_add_u32 s{s}, s{s}, {start}-{here}")
        g.e(f"s_addc_u32 s{s + 1}, s{s + 1}, 0")
    g.e(f"s_mov_b32 s{s + 2}, {end}-{start or here}")
    g.e(f"s_mov_b32 s{s + 3}, 0x20000")
    g.e(f"v_lshlrev_b32 v{v}, 7, v0")
    t = f"buffer_load_dword v{v}, v{v}, s[{s}:{s + 3}], 0 offen"
    if track: g.vmem(t, "code")
    else: g.e(t)

MB = 1 << 20
WS_XN = 0
WS_K = 2 * MB
WS_V = 18 * MB
WS_Z1 = 34 * MB
WS_Z2 = 38 * MB
WS_ST = 42 * MB
WS_CTX = 44 * MB
SZ_XN = 2 * MB
SZ_KV = 16 * MB
SZ_Z = 2048 * 896 * 2
SZ_ST = 3 * 2048 * 8
SZ_CTX = 128 * 156 * 1024
WS_DBG = 200 * MB
WS_SCR = 64 * MB
SZ_SCR = 32 * MB
WS_PART = 64 * MB
WS_XNP = 74 * MB
WS_FL = 76 * MB
```

```python
from asmlib import *
import math

XR = 128
ACC = [64, 96]
WR = 32
D = 6
C2 = -2.0 * math.sqrt(2.0 / math.pi) * math.log2(math.e)
C1 = C2 * 0.044715
NPKV = int(os.environ.get('NPKV', '6'))
NPZ = int(os.environ.get('NPZ', '3'))
GKV = -(-64 // NPKV); GZ = 7
assert NPKV == 6 and NPZ == 3
GMAP = [[0, 1, 2, 25, 3, 4, 26, 10], [11, 12, 13, 27, 14, 15, 28, 21], [5, 6, 29, 7, 8, 30, 9, 23], [16, 17, 31, 18, 22, 19, 20, 24]]
ZODD = int(os.environ.get('ZODD', '0'))
if ZODD: GMAP = [[0, 1, 2, 3, 25, 4, 26, 10], [11, 12, 13, 14, 27, 15, 28, 21], [5, 6, 7, 8, 29, 9, 30, 23], [16, 17, 18, 19, 31, 20, 22, 24]]
assert sorted(sum(GMAP, [])) == list(range(32))
NTW = os.environ.get('NTW', '')
PF = int(os.environ.get('PF', '97'))
CLU = int(os.environ.get('CLU', '1'))
PFW = int(os.environ.get('PFW', '0'))
NTP = os.environ.get('NTP', '')
PF3 = int(os.environ.get('PF3', '0'))
ZPUB = int(os.environ.get('ZPUB', '20'))
MIX = int(os.environ.get('MIX', '1'))
PFWS = int(os.environ.get('PFWS', '16'))
ROT = int(os.environ.get('ROT', '3'))
SL0 = int(os.environ.get('SL0', '0')); SL1 = int(os.environ.get('SL1', '4'))
LT = int(os.environ.get('LT', '0'))
PFL = eval(os.environ.get('PFL', '[0,2,4,8,10,11,14,18,22,23]'))
PROT = int(os.environ.get('PROT', '0'))
ZA = int(os.environ.get('ZA', '10')); ZP = int(os.environ.get('ZP', '12')); ZC = int(os.environ.get('ZC', '12'))
STKV = os.environ.get('STKV', 'sc1')
QFAST = int(os.environ.get('QFAST', '1')) and MERGE
FAST_VM = []
SPT1 = int(os.environ.get('SPT1', '1'))
IB = int(os.environ.get('IB', '2'))
WSP = int(os.environ.get('WSP', '6'))
XPF = int(os.environ.get('XPF', '0'))
QTAIL = int(os.environ.get('QTAIL', '1'))
CHG = int(os.environ.get('CHG', '1'))
ZFAST = int(os.environ.get('ZFAST', '0'))
QMID = int(os.environ.get('QMID', '0'))
QROT = int(os.environ.get('QROT', '0'))
STF = os.environ.get('STF', 'sc1')

def xreg(a, m): return XR + (m * 2 + a) * 4
def areg(st, cb, a): return ACC[st] + (cb * 2 + a) * 4

def w_voffsets(g, rowstride, vbase):
    g.e("v_bfe_u32 v28, v0, 5, 1")
    g.e("v_bfe_u32 v29, v0, 2, 2")
    g.e("v_lshl_add_u32 v28, v28, 2, v29")
    g.e(f"v_mul_u32_u24 v28, {rowstride}, v28")
    g.e("v_bfe_u32 v29, v0, 4, 1")
    g.e("v_lshl_add_u32 v28, v29, 6, v28")
    g.e("v_and_b32 v29, 3, v0")
    g.e("v_xor_b32 v30, 2, v29")
    g.e("v_lshlrev_b32 v29, 4, v29")
    g.e("v_lshlrev_b32 v30, 4, v30")
    for j in range(4):
        g.e(f"v_add_u32 v31, {j * 8 * rowstride - j * 1024}, v28")
        g.e(f"v_add_u32 v{vbase + j}, v31, v{29 + (j & 1)}")

def tr_bases(g, ve, vo):
    g.e("v_bfe_u32 v28, v0, 4, 2")
    g.e("v_lshlrev_b32 v29, 10, v28")
    g.e("v_bfe_u32 v30, v0, 2, 2")
    g.e("v_lshl_add_u32 v29, v30, 6, v29")
    g.e("v_and_b32 v30, 3, v0")
    g.e("v_lshl_add_u32 v29, v30, 3, v29")
    g.e("v_and_b32 v28, 1, v28")
    g.e(f"v_lshl_add_u32 v{ve}, v28, 5, v29")
    g.e(f"v_xor_b32 v{vo}, 32, v{ve}")

def gelu_ops(regs, T, vc2, sc1, stats=None):
    out = []
    n = len(T)
    for i in range(0, len(regs), n):
        grp = list(zip(regs[i:i + n], T))
        out += [f"v_mul_f32 v{t}, v{x}, v{x}" for x, t in grp]
        out += [f"v_fma_f32 v{t}, v{t}, s{sc1}, v{vc2}" for x, t in grp]
        out += [f"v_mul_f32 v{t}, v{t}, v{x}" for x, t in grp]
        out += [f"v_exp_f32 v{t}, v{t}" for x, t in grp]
        out += [f"v_add_f32 v{t}, 1.0, v{t}" for x, t in grp]
        out += [f"v_rcp_f32 v{t}, v{t}" for x, t in grp]
        out += [f"v_mul_f32 v{x}, v{x}, v{t}" for x, t in grp]
        if stats:
            out += [f"v_add_f32 v{stats[x][0]}, v{stats[x][0]}, v{x}" for x, t in grp]
            out += [f"v_fmac_f32 v{stats[x][1]}, v{x}, v{x}" for x, t in grp]
    return out

def ln_params(g, MEAN, VAR, n):
    def rbf(rs):
        for r in rs: g.e(f"PK {r},{r},{r}")
        for r in rs: g.e(f"v_and_b32 v{r}, 0xffff0000, v{r}")
    for m, v in zip(MEAN, VAR):
        g.e(f"v_mul_f32 v{m}, {f32(1 / n)}, v{m}")
        g.e(f"v_mul_f32 v{v}, {f32(1 / n)}, v{v}")
    for m, v in zip(MEAN, VAR): g.e(f"v_fma_f32 v{v}, -v{m}, v{m}, v{v}")
    for v in VAR: g.e(f"v_max_f32 v{v}, 0, v{v}")
    rbf(list(MEAN) + list(VAR))
    for v in VAR: g.e(f"v_add_f32 v{v}, {f32(1e-5)}, v{v}")
    rbf(VAR)
    for v in VAR: g.e(f"v_sqrt_f32 v{v}, v{v}")
    g.e("s_nop 0")
    rbf(VAR)
    for v in VAR: g.e(f"v_rcp_f32 v{v}, v{v}")
    g.e("s_nop 0")
    for m, v in zip(MEAN, VAR): g.e(f"v_mul_f32 v{m}, v{m}, v{v}")

def gen_type(g, T):
    ktp = lambda p: T in ("K", "Z1") or (T == "Z2" and p == 2)
    ztype = T in ("Z1", "Z2")
    rowstride = 3584 if ztype else 8192
    NP = NPZ if ztype else NPKV
    NTOT = 14 if ztype else 64
    NG = {"Z1": 3, "Z2": GZ}.get(T, GKV)
    NS = {"Z1": 2, "Z2": 3}.get(T, NTOT - (NG - 1) * NP)
    SHORT0 = {"Z1": 1}.get(T, NG - 1)
    VW = 1
    VTE, VTO = 5, 6
    VST = 7
    VC2 = 8
    VXA = 20
    VXR = (9, 11)
    TMP = [9, 10, 11, 12]
    STAT = 16
    g.vm = []; g.ds = []
    g.label(f"L_k1_{T}")
    g0 = {"K": 0, "V": GKV, "Z1": 2 * GKV, "Z2": 2 * GKV + 3}[T]
    g.e(f"s_sub_u32 s42, s3, {g0}")
    g.e("v_and_b32 v28, 63, v0")
    g.e(f"v_lshlrev_b32 v{VST}, 4, v28")
    if ztype:
        srd(g, 24, 4, 5, 2 * MB)
        g.e(f"s_sub_u32 s54, s3, {2 * GKV}")
        g.e("s_and_b32 s49, s54, 7")
        g.e("s_lshl_b32 s49, s49, 5")
        g.e("s_lshl_b32 s50, s41, 8")
        g.e("s_add_u32 s49, s49, s50")
        g.e("s_lshl_b32 s50, s40, 2")
        g.e("s_add_u32 s55, s49, s50")
        g.e("s_lshl_b32 s49, s55, 10")
        g.e("v_and_b32 v28, 3, v0")
        g.e("v_lshlrev_b32 v30, 4, v28")
        g.e("v_bfe_u32 v29, v0, 2, 2")
        g.e("v_lshl_add_u32 v30, v29, 10, v30")
        g.e("v_bfe_u32 v29, v0, 4, 2")
        g.e("v_lshl_add_u32 v30, v29, 6, v30")
        for i in range(4): g.vmem(f"buffer_load_dwordx4 v[{64 + 4 * i}:{67 + 4 * i}], v30, s[24:27], s49 offen offset:{256 * i}", "ln")
    else:
        srd(g, 24, 6, 7, 2 * MB)
    if T == "K": srd(g, 20, 10, 11, 512 * 8192)
    if T == "V": srd(g, 20, 12, 13, 512 * 8192)
    if ztype: srd(g, 20, 14, 15, 512 * 3584)
    if T == "Z1":
        g.e("s_lshl_b32 s58, s42, 1")
        g.e("s_add_u32 s58, s58, 8")
        g.e("s_cmp_eq_u32 s42, 0")
        g.e("s_cselect_b32 s58, 7, s58")
    elif T == "Z2": g.e("s_lshl_b32 s58, s42, 1")
    else: g.e(f"s_mul_i32 s58, s42, {NP}")
    colbase = 1792 if T == "Z2" else 0
    g.e("s_lshl_b32 s44, s58, 7")
    if colbase: g.e(f"s_add_u32 s44, s44, {colbase}")
    if ztype: g.e(f"s_mov_b32 s45, {colbase + (NTOT - 1) * 128}")
    else:
        g.e(f"s_cmp_lt_u32 s42, {SHORT0}")
        g.e(f"s_cselect_b32 s45, {NP}, {NS}")
        g.e("s_bfe_u32 s63, s2, 0x20003" if PROT else "s_mov_b32 s63, 0")
        g.e("s_lshl_b32 s63, s63, 1")
        g.e("s_cmp_ge_u32 s63, s45")
        g.e("s_cselect_b32 s49, s45, 0")
        g.e("s_sub_u32 s63, s63, s49")
    def pair_ops(p, d):
        return [f"s_add_u32 s{d}, s63, {p % 4 if p >= NS else p}" if False else f"s_add_u32 s{d}, s63, {p}",
                (f"s_cmp_ge_u32 s{d}, s45", "s_cselect_b32 s62, s45, 0"), f"s_sub_u32 s{d}, s{d}, s62"]
    g.e("s_lshl_b32 s46, s40, 12")
    g.e("s_bfe_u32 s60, s2, 0x20005" if (ROT and (not ztype or ROT > 2)) else "s_mov_b32 s60, 0")
    if ROT >= 2 and (not ztype or ROT > 2):
        g.e("s_bfe_u32 s49, s2, 0x20003")
        g.e("s_add_u32 s60, s60, s49")
        g.e(f"s_and_b32 s60, s60, {os.environ.get('RM', '3')}")
        if os.environ.get('RSH'): g.e("s_lshl_b32 s60, s60, 1")
    g.e("s_lshl_b32 s49, s60, 2")
    g.e("s_add_u32 s49, s49, s40")
    g.e("s_and_b32 s50, s49, 15")
    g.e(f"s_mul_i32 s56, s50, {32 * rowstride}")
    g.e("s_xor_b32 s50, s50, 8")
    g.e(f"s_mul_i32 s61, s50, {32 * rowstride}")
    g.e("s_and_b32 s57, s40, 3")
    g.e(f"s_mul_i32 s57, s57, {32 * rowstride}")
    g.e("s_lshr_b32 s49, s40, 2")
    g.e("s_lshl_b32 s49, s49, 7")
    g.e("s_add_u32 s57, s57, s49")
    if not ztype:
        g.e("s_lshl_b32 s49, s63, 7")
        g.e("s_add_u32 s57, s57, s49")
    g.e("s_add_u32 s57, s57, s44")
    NST = 2 * NP
    NQ = 4
    QT = QTAIL and QFAST and not ztype
    QM = QMID and QT and CHG
    def fmap(s, f):
        if CHG:
            G, k = f >> 2, f & 3
            if s < NQ or (QT and s >= 8) or QM: return 2 * (s >> 2) + (G >> 2), 4 * (s & 3) + k, G & 3, (G >> 2) * 4 + k
            return s >> 1, (s & 1) * 8 + (G >> 2) * 4 + k, G & 3, (G >> 2) * 4 + k
        cb = f & 3
        if s < NQ:
            p, ks = (f >> 4, (f >> 2) & 3) if s == 3 else ((f >> 2) & 1, f >> 3)
            return p, 4 * s + ks, cb, p * 4 + ks
        if QT and s >= 8:
            p, ks = (f >> 4, (f >> 2) & 3) if s in (8, 11) else ((f >> 2) & 1, f >> 3)
            return 4 + p, 4 * (s - 8) + ks, cb, p * 4 + ks
        return s >> 1, (s & 1) * 8 + (f >> 2), cb, f >> 2
    XPOS = [3, 4, 3, 4, 3, 4, 4, 4]
    def xdma_ops(q):
        ops = []
        for i in range(4):
            def op(i=i):
                if i == 0:
                    g.e(f"s_add_u32 s43, s60, {q >> 1}")
                    g.e("s_and_b32 s43, s43, 3")
                    g.e("s_lshl_b32 s43, s43, 8")
                    if q & 1: g.e("s_add_u32 s43, s43, 128")
                g.e(f"s_add_u32 m0, s46, {XPOS[q] * 32768}")
                g.e("s_nop 0")
                g.vmem(f"buffer_load_dwordx4 v{VXA + i}, s[24:27], s43 offen offset:{i * 1024} lds", ("x", q))
            ops.append(op)
        return ops
    def xread(q):
        g.wait_vm(("x", q))
        for ks in range(2):
            for a in range(2):
                g.lds(f"DR {xreg(a, 2 * q + ks)},{VXR[(XPOS[q] >> 1) - 1] + ks},{(XPOS[q] & 1) * 32768 + a * 2048}", ("x", q))
    def wdma_ops(s, sr=51):
        if s >= NST and QFAST and not ztype:
            def op(j):
                if j == 0:
                    g.e(f"s_lshr_b32 s{sr}, s2, 3" if QROT else f"s_mov_b32 s{sr}, 0")
                    g.e(f"s_add_u32 s{sr}, s{sr}, {s - NST}")
                    g.e(f"s_and_b32 s{sr}, s{sr}, 3")
                    g.e(f"s_lshl_b32 s{sr}, s{sr}, 20")
                    g.e(f"s_add_u32 s{sr}, s{sr}, s54")
                g.e(f"s_add_u32 m0, s46, {(s % 4) * 32768}")
                g.e("s_nop 0")
                g.vmem(f"buffer_load_dwordx4 v{VW + j}, s[32:35], s{sr} offen offset:{j * 1024} lds", ("wq", s - NST))
            return [lambda j=j: op(j) for j in range(4)]
        if s >= NST: return []
        ops = []
        for j in range(4):
            def op(j=j):
                if j == 0:
                    if s < NQ or (QT and s >= 8) or QM:
                        g.e(f"s_add_u32 s{sr}, s60, {s & 3}")
                        g.e(f"s_and_b32 s{sr}, s{sr}, 3")
                        g.e(f"s_mul_i32 s{sr}, s{sr}, {128 * rowstride}")
                        g.e(f"s_add_u32 s{sr}, s{sr}, s57")
                        if 4 <= s < 8: g.e(f"s_add_u32 s{sr}, s{sr}, 256")
                        if s >= 8:
                            g.e("s_cmp_gt_u32 s45, 4")
                            g.e("s_cselect_b32 s62, 512, 0")
                            g.e(f"s_add_u32 s{sr}, s{sr}, s62")
                    else:
                        p, kh = s >> 1, s & 1
                        if T == "Z2" and p == 2: g.e(f"s_lshl_b32 s{sr}, s42, 7")
                        elif ztype:
                            g.e(f"s_add_u32 s{sr}, s44, {p * 128}")
                            g.e(f"s_min_u32 s{sr}, s{sr}, s45")
                        else:
                            for t in pair_ops(p, sr):
                                for u in ((t,) if isinstance(t, str) else t): g.e(u)
                            g.e(f"s_lshl_b32 s{sr}, s{sr}, 7")
                            g.e(f"s_add_u32 s{sr}, s{sr}, s44")
                        g.e(f"s_add_u32 s{sr}, s{sr}, s{61 if kh else 56}")
                g.e(f"s_add_u32 m0, s46, {(s % 4) * 32768}")
                g.e("s_nop 0")
                g.vmem(f"buffer_load_dwordx4 v{VW + j}, s[20:23], s{sr} offen offset:{j * 1024} {NTW} lds", ("w", s))
            ops.append(op)
        return ops
    def run(ops):
        for op in ops: op()
    def w0(fn):
        sk = g.newlabel("w0")
        g.e("s_cmp_lg_u32 s40, 0"); g.e(f"s_cbranch_scc1 {sk}")
        fn(); g.label(sk)
    def rb_line(dst, extra):
        g.e(f"s_add_u32 s{dst}, s41, 53")
        g.e(f"s_lshl_b32 s{dst}, s{dst}, 7")
        if extra: g.e(f"s_add_u32 s{dst}, s{dst}, {extra}")
    def rb_poll_addr(v, n, extra):
        rb_line(49, extra)
        g.e("s_and_b32 s50, s2, 7")
        g.e("s_lshl_b32 s50, s50, 13")
        g.e("s_add_u32 s49, s49, s50")
        g.e(f"v_min_u32 v{v}, {n - 1}, v0")
        g.e(f"v_lshl_add_u32 v{v}, v{v}, 2, s49")

    w_voffsets(g, rowstride, VW)
    if not ztype:
        run(wdma_ops(0, 47))
        g.e("v_bfe_u32 v28, v0, 3, 3")
        g.e("v_and_b32 v29, 7, v0")
        g.e("v_lshrrev_b32 v30, 1, v28")
        g.e("v_xor_b32 v29, v29, v30")
        g.e("s_lshl_b32 s49, s41, 8")
        g.e("s_lshl_b32 s50, s40, 5")
        g.e("s_add_u32 s49, s49, s50")
        g.e("v_add_u32 v28, s49, v28")
        g.e("v_lshlrev_b32 v28, 10, v28")
        g.e("v_xor_b32 v30, 4, v29")
        g.e("v_lshl_add_u32 v29, v29, 4, v28")
        g.e("v_lshl_add_u32 v30, v30, 4, v28")
        for i in range(4): g.e(f"v_add_u32 v{VXA + i}, {i * 8192 - i * 1024}, v{29 + (i & 1)}")
        run(xdma_ops(0))
        code_touch(g, 36, 14, f"L_k1_{T}_end")
        g.e("s_barrier")
        if IB >= 1: run(xdma_ops(1))
        if IB >= 2: run(wdma_ops(1, 47))
        g.e("v_and_b32 v28, 15, v0")
        g.e("v_bfe_u32 v29, v0, 4, 2")
        g.e("v_lshrrev_b32 v30, 1, v28")
        g.e("v_xor_b32 v29, v29, v30")
        g.e("v_lshlrev_b32 v29, 4, v29")
        g.e("v_lshl_add_u32 v29, v28, 7, v29")
        g.e("s_add_u32 s49, s46, 0x10000")
        g.e(f"v_add_u32 v{VXR[0]}, s49, v29")
        g.e(f"v_xor_b32 v{VXR[0] + 1}, 64, v{VXR[0]}")
        for ks in range(2): g.e(f"v_add_u32 v{VXR[1] + ks}, 0x10000, v{VXR[0] + ks}")
    else:
        code_touch(g, 36, 255, f"L_k1_{T}_end")
        srd(g, 24, 16, 17, WS_XNP + SZ_XN, 0)
        ZLT = len(g.lines)
        g.e("s_mov_b32 s53, 0xffff0000")
        g.e(f"s_mov_b32 s52, {f32(C1)}")
        g.e(f"v_mov_b32 v{VC2}, {f32(C2)}")
        g.e("s_lshr_b32 s55, s55, 5")
        g.e("s_lshl_b32 s55, s55, 15")
        g.e("s_add_u32 s55, s55, s46")
        g.e(f"s_add_u32 s62, s55, {WS_XNP}")
        g.e("s_lshr_b32 s49, s40, 2")
        g.e("s_lshl_b32 s49, s49, 14")
        g.e("s_and_b32 s50, s40, 3")
        g.e("s_lshl_b32 s50, s50, 6")
        g.e("s_add_u32 s49, s49, s50")
        g.e("s_add_u32 s49, s49, 0x20000")
        g.e("v_bfe_u32 v28, v0, 2, 2")
        g.e("v_lshlrev_b32 v28, 4, v28")
        g.e("v_and_b32 v30, 3, v0")
        g.e("v_lshl_add_u32 v28, v30, 8, v28")
        g.e("v_bfe_u32 v29, v0, 4, 2")
        g.e("v_lshl_add_u32 v28, v29, 10, v28")
        g.e("v_add_u32 v13, s49, v28")
        g.e("v_lshlrev_b32 v30, 5, v30")
        g.e("v_xor_b32 v13, v13, v30")
        g.e("s_and_b32 s49, s46, 0x3fff")
        g.e("s_lshr_b32 s50, s40, 2")
        g.e("s_lshl_b32 s50, s50, 6")
        g.e("s_add_u32 s49, s49, s50")
        g.e("s_add_u32 s49, s49, 0x20000")
        g.e("v_bfe_u32 v17, v0, 3, 1")
        g.e("v_lshlrev_b32 v17, 14, v17")
        g.e("v_bfe_u32 v28, v0, 2, 1")
        g.e("v_lshl_add_u32 v17, v28, 7, v17")
        g.e("v_and_b32 v28, 0x33, v0")
        g.e("v_lshl_add_u32 v17, v28, 4, v17")
        g.e("v_add_u32 v17, s49, v17")
        g.e("v_lshlrev_b32 v29, 5, v29")
        g.e("v_xor_b32 v17, v17, v29")
        rb_poll_addr(15, 8, 0)
        nol = g.newlabel("noln")
        g.e("s_cmp_ge_u32 s54, 8")
        g.e(f"s_cbranch_scc1 {nol}")
        for r in (9, 10, 11, 12): g.e(f"v_mov_b32 v{r}, 0")
        g.e("v_mov_b32 v16, 0x3f803f80")
        g.wait_vm("ln")
        g.stamp(8)
        g.e("v_mov_b32 v14, 20")
        w0(lambda: dbg_load(g, 14, 14, 18))
        for i in range(16):
            g.e(f"v_dot2c_f32_bf16 v{9 + 2 * (i & 1)}, v16, v{64 + i}")
            g.e(f"v_dot2c_f32_bf16 v{10 + 2 * (i & 1)}, v{64 + i}, v{64 + i}")
        for i in range(4):
            g.e(f"v_lshlrev_b32 v{96 + 2 * i}, 16, v{64 + i}")
            g.e(f"v_and_b32 v{97 + 2 * i}, s53, v{64 + i}")
        for r in (9, 10): g.e(f"v_add_f32 v{r}, v{r}, v{r + 2}")
        for k, qp in enumerate(("[1,0,3,2]", "[2,3,0,1]")):
            for i in range(4 + 6 * k, 10 + 6 * k):
                g.e(f"v_lshlrev_b32 v{96 + 2 * i}, 16, v{64 + i}")
                g.e(f"v_and_b32 v{97 + 2 * i}, s53, v{64 + i}")
            for r in (9, 10): g.e(f"v_add_f32_dpp v{r}, v{r}, v{r} quad_perm:{qp} row_mask:0xf bank_mask:0xf")
        for sw in ("v_permlane32_swap_b32", "v_permlane16_swap_b32"):
            for i in range(2): g.e(f"v_mov_b32 v{11 + i}, v{9 + i}")
            g.e("s_nop 1")
            for i in range(2): g.e(f"{sw} v{11 + i}, v{9 + i}")
            g.e("s_nop 1")
            for i in range(2): g.e(f"v_add_f32 v{9 + i}, v{9 + i}, v{11 + i}")
        ln_params(g, [9], [10], 512)
        for i in range(4):
            for e in range(8): g.e(f"v_fma_f32 v{96 + 8 * i + e}, v{96 + 8 * i + e}, v10, -v9")
            for r in range(4): g.e(f"PK {64 + 4 * i + r},{96 + 8 * i + 2 * r},{97 + 8 * i + 2 * r}")
            g.e(f"DW 13,{64 + 4 * i},{i * 4096}")
        g.e("s_waitcnt lgkmcnt(0)")
        g.e("s_barrier")
        for i in range(4): g.e(f"DR {96 + 4 * i},17,{i * 1024}")
        for i in range(4):
            g.e(f"s_waitcnt lgkmcnt({3 - i})")
            g.e(f"buffer_store_dwordx4 v[{96 + 4 * i}:{99 + 4 * i}], v{VST}, s[24:27], s62 offen offset:{(i & 3) * 1024} sc1")
        g.e("v_mov_b32 v11, 1")
        g.stamp(9)
        g.e("s_waitcnt vmcnt(0)")
        g.e("s_barrier")
        g.stamp(10)
        done = g.newlabel("sdone"); chk = g.newlabel("schk")
        g.e("s_cmp_lg_u32 s40, 0")
        g.e(f"s_cbranch_scc1 {done}")
        nonce_get(g, 14, 14, 2, True)
        rb_line(47, 0)
        g.e("s_lshl_b32 s49, s54, 2")
        g.e("s_add_u32 s47, s47, s49")
        flag_set(g, 10, 47, 59, 100)
        g.e(f"s_branch {chk}")
        g.label(nol)
        g.e("s_cmp_lg_u32 s40, 0")
        g.e(f"s_cbranch_scc1 {done}")
        if SL0: g.e(f"s_sleep {SL0}")
        nonce_get(g, 14, 14, 2, False)
        g.label(chk)
        flag_wait(g, 11, 15, 59, 100, SL1, False)
        g.label(done)
        g.vm = []
        run(wdma_ops(0, 47))
        g.e("s_mov_b32 s62, s55")
        g.e("s_mov_b32 s48, s54")
        g.e("s_lshl_b32 s49, s41, 18")
        g.e("s_lshl_b32 s50, s40, 15")
        g.e("s_add_u32 s54, s49, s50")
        g.e(f"s_add_u32 s54, s54, {WS_XNP}")
        g.e("s_barrier")
        g.stamp(11)
        def xload(m):
            if m % 4 == 0:
                g.e(f"s_add_u32 s63, s60, {m >> 2}")
                g.e("s_and_b32 s63, s63, 3")
                g.e("s_lshl_b32 s63, s63, 12")
                g.e("s_add_u32 s63, s63, s54")
                g.e(f"s_add_u32 s55, s63, 16384")
            for a in range(2):
                x = xreg(a, m)
                g.vmem(f"buffer_load_dwordx4 v[{x}:{x + 3}], v{VST}, s[24:27], s{55 if a else 63} offen offset:{(m % 4) * 1024} sc1", ("x", m))
        for m in range(4): xload(m)
    def lin_touch():
        g.e("s_lshl_b32 s43, s2, 3")
        g.e("s_add_u32 s43, s43, s40")
        g.e(f"v_lshlrev_b32 v26, 3, v{VST}")
        g.e("v_bfe_u32 v27, v0, 4, 2")
        g.e("v_lshl_add_u32 v26, v27, 28, v26")
        g.e("s_lshl_b32 s49, s43, 11")
        srd(g, 36, 10, 11, 4 * MB)
        g.vmem("buffer_load_dword v254, v26, s[36:39], s49 offen", "t")
        srd(g, 36, 12, 13, 4 * MB)
        g.vmem("buffer_load_dword v254, v26, s[36:39], s49 offen", "t")
        srd(g, 36, 14, 15, 512 * 3584)
        g.vmem("buffer_load_dword v254, v26, s[36:39], s49 offen", "t")
    if LT == 1 and not ztype: lin_touch()
    if LT and ztype:
        n0 = len(g.lines); sv = list(g.vm)
        lin_touch()
        blk = g.lines[n0:]; del g.lines[n0:]; g.lines[ZLT:ZLT] = blk; g.vm = sv
        k = g.lines.index(f"s_waitcnt vmcnt({CPF})", ZLT); g.lines[k] = f"s_waitcnt vmcnt({CPF + 3})"
    off, sz = {"K": (WS_K, SZ_KV), "V": (WS_V, SZ_KV), "Z1": (WS_Z1, SZ_Z), "Z2": (WS_Z2, SZ_Z)}[T]
    srd(g, 28, 16, 17, sz, off)
    tr_bases(g, VTE, VTO)
    if T == "Z2":
        for i in range(16): g.e(f"v_mov_b32 v{STAT + i}, 0")
    if T == "Z1":
        g.e("v_bfe_u32 v16, v0, 3, 1")
        g.e("v_lshlrev_b32 v16, 6, v16")
        g.e("v_bfe_u32 v18, v0, 2, 1")
        g.e("v_lshl_add_u32 v16, v18, 7, v16")
        g.e("v_and_b32 v18, 0x33, v0")
        g.e("v_lshl_add_u32 v16, v18, 4, v16")

    def outbase(I, p):
        if T == "Z2" and p == 2: I("s_mov_b32 s48, s42")
        elif ztype: I(f"s_add_u32 s48, s58, {p}")
        else:
            I("\n".join(u for t in pair_ops(p, 48) for u in ((t,) if isinstance(t, str) else t)))
            I("s_add_u32 s48, s48, s58")
        if T in ("K", "V"):
            I("s_lshr_b32 s49, s48, 1")
            I("s_lshl_b32 s49, s49, 19")
            I("s_and_b32 s48, s48, 1")
            I(f"s_lshl_b32 s48, s48, {11 if T == 'K' else 12}")
            I("s_add_u32 s48, s48, s49")
            I("s_lshl_b32 s49, s41, 16")
            I("s_add_u32 s48, s48, s49")
            I("s_lshl_b32 s49, s40, 13")
            I("s_add_u32 s48, s48, s49")
            I("s_add_u32 s50, s48, 4096")
        else:
            I(f"s_lshl_b32 s48, s48, {11 if ktp(p) else 12}")
            I("s_lshl_b32 s49, s41, 3")
            I("s_add_u32 s49, s49, s40")
            I("s_mul_i32 s49, s49, 57344")
            I("s_add_u32 s48, s48, s49")
            I("s_add_u32 s50, s48, 28672")

    ZPARK = 131072
    def epilogue(p, last=False):
        st = p & 1
        ops = []
        def I(s): ops.append(lambda s=s: g.e(s))
        hold = T == "Z2" and p < 2
        if not hold: outbase(I, p)
        frags = []
        if ktp(p):
            for a, mm in ([(0, 0), (1, 0), (0, 1), (1, 1)] if ztype else [(0, 0), (0, 1), (1, 0), (1, 1)]):
                if True:
                    frags.append((areg(st, 2 * mm, a), areg(st, 2 * mm + 1, a), a, mm * 1024))
        else:
            for cb in range(4):
                frags.append((areg(st, cb, 0), areg(st, cb, 1), 0, cb * 1024))
        for (x, y, a, io) in frags:
            if ztype:
                stats = None
                if hold:
                    stats = {}
                    for r in range(4):
                        stats[x + r] = (STAT + 2 * r, STAT + 2 * r + 1)
                        stats[y + r] = (STAT + 8 + 2 * r, STAT + 8 + 2 * r + 1)
                for s in gelu_ops([x, x + 1, x + 2, x + 3, y, y + 1, y + 2, y + 3], TMP, VC2, 52, stats): I(s)
            d = x
            if (p == 0 or (QM and p in (2, 4)) or (QT and not QM and p in (3, 4) and not last)) and not ztype: d = 16 + 4 * frags.index((x, y, a, io))
            I(f"PK {d},{x},{x + 1}"); I(f"PK {d + 1},{x + 2},{x + 3}")
            I(f"PK {d + 2},{y},{y + 1}"); I(f"PK {d + 3},{y + 2},{y + 3}")
            x = d
            if hold:
                if p == 0: ops.append(lambda x=x, io=io: g.lds(f"DW 13,{x},{io}", "park"))
            elif ztype:
                if a == 0: ops.append(lambda: None)
                else:
                    def fix(x1=x, io=io):
                        x0 = x1 - 4
                        for r in range(4): g.e(f"v_mov_b32 v{TMP[r]}, v{x0 + r}")
                        for r in range(4): g.e(f"v_mov_b32_dpp v{x0 + r}, v{x1 + r} row_ror:8 row_mask:0xf bank_mask:0xc")
                        for r in range(4): g.e(f"v_mov_b32_dpp v{x1 + r}, v{TMP[r]} row_ror:8 row_mask:0xf bank_mask:0x3")
                        sr = 24 if T == "Z2" else 28
                        for k, xx in enumerate((x0, x1)):
                            g.vmem(f"buffer_store_dwordx4 v[{xx}:{xx + 3}], v{14 if T == 'Z2' else 16}, s[{sr}:{sr + 3}], s{48 + 2 * k} offen offset:{io} {SC}", "st")
                    ops.append(fix)
            else:
                ops.append(lambda x=x, a=a, io=io: g.vmem(
                    f"buffer_store_dwordx4 v[{x}:{x + 3}], v{VST}, s[28:31], s{50 if a else 48} offen offset:{io} {STF if ztype else STKV}", "st"))
        return ops
    if T == "Z2":
        g.e(f"s_add_u32 s49, s46, {ZPARK}")
        g.e(f"v_add_u32 v13, s49, v{VST}")

    def publish_ops():
        ops = []
        def I(s): ops.append(lambda s=s: g.e(s))
        for sh in (8, 4, 2, 1):
            for i in range(16):
                I(f"v_add_f32_dpp v{STAT + i}, v{STAT + i}, v{STAT + i} row_ror:{sh} row_mask:0xf bank_mask:0xf")
        ops.append(lambda: srd(g, 36, 16, 17, GZ * 16384, WS_ST))
        I("v_bfe_u32 v9, v0, 4, 2")
        I("v_lshlrev_b32 v9, 6, v9")
        I("v_and_b32 v10, 15, v0")
        I("v_lshl_add_u32 v10, v10, 24, v9")
        I("s_lshl_b32 s63, s41, 11")
        I("s_lshl_b32 s49, s40, 8")
        I("s_add_u32 s63, s63, s49")
        I("s_lshl_b32 s49, s42, 14")
        I("s_add_u32 s49, s49, s63")
        for i in range(4):
            ops.append(lambda i=i: g.vmem(f"buffer_store_dwordx4 v[{STAT + 4 * i}:{STAT + 4 * i + 3}], v10, s[36:39], s49 offen offset:{16 * i} sc1", "pub"))
        return ops
    def arrive():
        g.wait_vm("pub")
        g.e("s_barrier")
        def f():
            rb_line(47, 32)
            g.e("s_lshl_b32 s49, s42, 2")
            g.e("s_add_u32 s47, s47, s49")
            flag_set(g, 10, 47, 59, 100)
            rb_poll_addr(15, GZ, 32)
            g.e("v_mov_b32 v14, 0")
        w0(f)
    PB = 16
    def collect():
        w0(lambda: flag_wait(g, 14, 15, 59, 100, SL1, True))
        g.e("s_barrier")
        g.stamp(14)
        g.e("v_and_b32 v9, 31, v0")
        g.e("v_lshlrev_b32 v9, 3, v9")
        for q in range(GZ):
            g.e(f"s_add_u32 s49, s63, {q * 16384}")
            g.vmem(f"buffer_load_dwordx2 v[{PB + 2 * q}:{PB + 2 * q + 1}], v9, s[36:39], s49 offen sc1", "col")

    def pf_next(short):
        if not PF3 or T == "Z2" or (T in ("K", "V") and not short): return
        g.e("s_load_dwordx2 s[32:33], s[0:1], 40")
        g.e("s_load_dwordx2 s[36:37], s[0:1], 80")
        g.e("s_lshl_b32 s43, s41, 3")
        g.e("s_add_u32 s43, s43, s40")
        g.e(f"v_lshlrev_b32 v13, 3, v{VST}")
        g.e("s_waitcnt lgkmcnt(0)")
        g.e(f"s_mov_b32 s34, {4 * MB}")
        g.e("s_mov_b32 s35, 0x20000")
        g.e(f"s_mov_b32 s38, {896 * 1024}")
        g.e("s_mov_b32 s39, 0x20000")
        if T == "Z1":
            g.e("s_lshl_b32 s47, s42, 6")
            g.e("s_add_u32 s43, s43, s47")
            g.e("s_lshl_b32 s43, s43, 13")
            if short:
                g.e(f"s_sub_u32 s47, s43, {64 * 8192}")
                g.e("buffer_load_dword v14, v13, s[36:39], s47 offen")
                g.e(f"s_add_u32 s47, s47, {3 * MB}")
                g.e("buffer_load_dword v14, v13, s[32:35], s47 offen")
        else:
            g.e(f"s_mul_i32 s43, s43, {3 * 8192}")
            if T == "V": g.e(f"s_add_u32 s43, s43, {64 * 3 * 8192}")
            for i in range(3):
                g.e(f"buffer_load_dword v14, v13, s[32:35], s43 offen")
                g.e("s_add_u32 s43, s43, 8192")

    def xn_snap():
        def f():
            if not ztype: nonce_get(g, 13, 13, 2, True)
            g.e("s_and_b32 s43, s2, 7")
            g.e("s_lshl_b32 s43, s43, 13")
            g.e(f"s_add_u32 s43, s43, {53 * 128 + 64}")
            g.e("v_lshrrev_b32 v13, 3, v0")
            g.e("v_lshlrev_b32 v13, 7, v13")
            g.e("v_and_b32 v15, 7, v0")
            g.e("v_lshl_add_u32 v13, v15, 2, v13")
            g.e("v_add_u32 v15, s43, v13")
            flag_load(g, 13, 15, 100)
        w0(f)
    ZF = {}; HELD = {}
    def final(p, short=False):
        g.stamp(12)
        g.e("s_nop 7")
        if T != "Z2":
            if short and QM: run(HELD[p - 1])
            for op in epilogue(p, True): op()
        else:
            PKD, VA, P2 = 224, 10, 240
            for i in range(4): g.e(f"DR {PKD + 4 * i},13,{i * 1024}")
            g.e(f"s_add_u32 s49, s46, {ZPARK}")
            g.e("v_add_u32 v9, s49, v9")
            g.e(f"v_bfe_u32 v{VA}, v0, 4, 2")
            g.e(f"v_lshl_add_u32 v{VA}, v{VA}, 6, s49")
            g.e("s_waitcnt vmcnt(0) lgkmcnt(0)")
            for q in range(1, GZ):
                for i in range(2): g.e(f"v_add_f32 v{PB + i}, v{PB + i}, v{PB + 2 * q + i}")
            ln_params(g, [PB], [PB + 1], 896)
            g.e(f"ds_write_b64 v9, v[{PB}:{PB + 1}]")
            g.e("s_waitcnt lgkmcnt(0)")
            for i in range(4): g.e(f"DR {P2 + 4 * i},{VA},{16 * i}")
            xn_snap()
            g.e("s_waitcnt lgkmcnt(0)")
            MEAN = [P2 + 2 * e for e in range(8)]; VAR = [P2 + 2 * e + 1 for e in range(8)]
            for pp in range(2):
                outbase(g.e, pp)
                for cb in range(4):
                    x = PKD + 4 * cb if pp == 0 else areg(pp & 1, cb, 0)
                    t = 16 + (cb & 1) * 8
                    for r in range(4): g.e(f"v_lshlrev_b32 v{t + 2 * r}, 16, v{x + r}")
                    for r in range(4): g.e(f"v_and_b32 v{t + 2 * r + 1}, s53, v{x + r}")
                    for e in range(8): g.e(f"v_fma_f32 v{t + e}, v{t + e}, v{VAR[e]}, -v{MEAN[e]}")
                    for r in range(4): g.e(f"PK {x + r},{t + 2 * r},{t + 2 * r + 1}")
                    g.e(f"buffer_store_dwordx4 v[{x}:{x + 3}], v{VST}, s[28:31], s48 offen offset:{cb * 1024} {STF}")
            ep = epilogue(p)
            nb = len(ep) - 4 * 61
            quart = [ep[nb + 61 * i:nb + 61 * i + 60] for i in range(4)]
            zst = [ep[nb + 61 * i + 60] for i in range(4)]
            ZQ = QFAST and QTAIL and ZFAST
            run(quart[0]); run(quart[1])
            if ZQ:
                ZF["qprep"]()
                w_voffsets(g, 8192, VW)
            g.e("s_waitcnt vmcnt(0)")
            if ZQ: w0(lambda: flag_wait(g, 13, 15, 59, 100, SL1, True))
            g.e("s_barrier")
            def z2flag():
                g.e("s_add_u32 s47, s42, 14")
                g.e("s_lshl_b32 s47, s47, 7")
                g.e("s_lshl_b32 s49, s41, 2")
                g.e("s_add_u32 s47, s47, s49")
                g.e("s_add_u32 s47, s47, 32")
                flag_set(g, 16, 47, 59, 100)
            w0(z2flag)
            g.stamp(10)
            srd(g, 24, 16, 17, SZ_Z, WS_Z1)
            g.e("v_bfe_u32 v14, v0, 3, 1")
            g.e("v_lshlrev_b32 v14, 6, v14")
            g.e("v_bfe_u32 v18, v0, 2, 1")
            g.e("v_lshl_add_u32 v14, v18, 7, v14")
            g.e("v_and_b32 v18, 0x33, v0")
            g.e("v_lshl_add_u32 v14, v18, 4, v14")
            if ZQ:
                ld = []
                g.vm = []
                for st in range(3):
                    ld += [lambda m=m: ZF["qx"](m) for m in range(4 * st, 4 * st + 4)]
                    for j in range(4 if st < 2 else 0):
                        def wq(st=st, j=j):
                            g.e(f"s_add_u32 s51, s54, {st * 128 * 8192}")
                            g.e(f"s_add_u32 m0, s46, {st * 32768}")
                            g.e("s_nop 0")
                            g.vmem(f"buffer_load_dwordx4 v{VW + j}, s[32:35], s51 offen offset:{j * 1024} lds", ("w", st))
                        ld.append(wq)
                body = quart[2] + quart[3]
                for i, op in enumerate(body):
                    op()
                    if i % 6 == 0 and ld: ld.pop(0)()
                assert not ld
                run(ep[:nb]); run(zst)
                g.e("v_xor_b32 v5, 0x10000, v5")
                g.e("v_xor_b32 v6, 0x10000, v6")
                if not PROF:
                    yo = lambda L, t: len(L) - 1 - max(i for i, u in enumerate(L) if u == t)
                    assert all(yo(g.vm, t) <= yo(FAST_VM, t) for t in set(FAST_VM)), (g.vm, FAST_VM)
                    FAST_VM[:] = g.vm
            else:
                run(ep[:nb]); run(zst[:2]); run(quart[2]); run(zst[2:3]); run(quart[3]); run(zst[3:])
        g.stamp(13)
        diag_mark(g, 2)
        g.stamp_dump(16, 17, 40, 0)
        if MERGE:
            g.e(f"s_add_u32 s58, s42, { {'K': 0, 'V': 0, 'Z1': 11, 'Z2': 14}[T] }")
            g.e("s_lshl_b32 s58, s58, 7")
            g.e("s_lshl_b32 s49, s41, 2")
            g.e("s_add_u32 s58, s58, s49")
            if T == "V": g.e("s_add_u32 s58, s58, 32")
            if QFAST and not ztype and not short:
                FAST_VM[:] = [] if PROF else [("w", t[1]) if isinstance(t, tuple) and t[0] == "wq" else t for t in g.vm]
                g.e("s_branch L_p2f")
            elif T == "Z2" and QFAST and QTAIL and ZFAST: g.e("s_branch L_p2f")
            else: g.e("s_branch L_p2")
        else: g.e("s_endpgm")

    pend = []
    def wread(F, half=None):
        s, f = F >> 5, F & 31
        if s >= NST: return
        if f == 0 and half != 1:
            assert not pend
            g.wait_vm(("w", s), *(["xn"] if s == 3 else []))
            if QFAST and not ztype and s == (3 if XPF else (9 if QT else NST - 1)): w0(lambda: flag_wait(g, 13, 15, 59, 100, SL1, True))
            g.e("s_barrier")
            if ztype and s == 3:
                def nflag():
                    sk = g.newlabel("nonf")
                    g.e("s_cmp_ge_u32 s48, 8")
                    g.e(f"s_cbranch_scc1 {sk}")
                    rb_line(43, 64)
                    g.e("s_lshl_b32 s49, s48, 2")
                    g.e("s_add_u32 s43, s43, s49")
                    flag_set(g, 10, 43, 59, 100)
                    g.label(sk)
                w0(nflag)
            if s >= 2 and s % 2 == 0:
                g.e(f"v_xor_b32 v{VTE}, 0x10000, v{VTE}")
                g.e(f"v_xor_b32 v{VTO}, 0x10000, v{VTO}")
            if s >= 2: pend.extend(wdma_ops(s + 2))
        if pend and f % WSP == 1 % WSP and f >= 1 and half != 0: pend.pop(0)()
        p, m, cb, mp = fmap(s, f)
        r = WR + (F % 8) * 4
        for a in (range(2) if half is None else [half]):
            o = (s & 1) * 32768 + mp * 4096 + a * 512 + (cb >> 1) * 256
            g.lds(f"TR {r + 2 * a},{VTO if cb & 1 else VTE},{o}", ("w", F))

    g.stamp(1)
    ev = {}
    def at(F, fn): ev.setdefault(F, []).append(fn)
    def spread(F0, ops, after=None):
        if after is not None: at(F0, lambda: g.wait_ds(("x", after)))
        for i, op in enumerate(ops): at(F0 + i, op)
    if not ztype:
        xread(0)
        at(0, lambda: g.wait_ds(("x", 0)))
        if CHG:
            xread(1)
            at(0, lambda: g.wait_ds(("x", 1)))
            spread(0, xdma_ops(2)); spread(4, xdma_ops(3)); spread(8, wdma_ops(2, 47))
        elif IB >= 2:
            spread(0, xdma_ops(2)); spread(4, wdma_ops(2, 47))
            at(10, lambda: xread(1)); spread(14, xdma_ops(3), 1)
        elif IB == 1:
            spread(0, wdma_ops(1, 47)); spread(4, xdma_ops(2))
            at(10, lambda: xread(1)); spread(14, xdma_ops(3), 1); spread(18, wdma_ops(2, 47))
        else:
            spread(0, xdma_ops(1)); spread(4, wdma_ops(1, 47)); spread(8, xdma_ops(2))
            at(13, lambda: xread(1)); spread(16, xdma_ops(3), 1); spread(30, wdma_ops(2, 47))
        if CHG:
            at(20, lambda: xread(2)); spread(24, xdma_ops(4), 2)
            at(28, lambda: xread(3)); spread(32, xdma_ops(5), 3)
            at(42, lambda: xread(4)); spread(46, wdma_ops(3, 47), 4)
            at(50, lambda: xread(5)); spread(54, xdma_ops(6), 5)
            at(70, lambda: xread(6)); spread(74, xdma_ops(7), 6)
            at(92, lambda: xread(7)); at(96, lambda: g.wait_ds(("x", 7)))
        else:
            at(22, lambda: xread(2)); spread(26, xdma_ops(4), 2)
            at(34, lambda: xread(3)); spread(38, xdma_ops(5), 3)
            at(44, lambda: xread(4)); spread(48, wdma_ops(3, 47), 4)
            at(56, lambda: xread(5)); spread(64, xdma_ops(6), 5)
            at(80, lambda: xread(6)); spread(84, xdma_ops(7), 6)
            at(99, lambda: xread(7)); at(103, lambda: g.wait_ds(("x", 7)))
    else:
        for m in range(16): at((m >> 2) * 32 if CHG else (8 * m if m < 12 else 96 + 4 * (m - 12)), lambda m=m: g.wait_vm(("x", m)))
        for m, F in zip(range(4, 16), (4, 8, 12, 16, 28, 34, 40, 46, 56, 64, 70, 74)): at(("post", F), lambda m=m: xload(m))
        def xnc(i, st):
            if not st:
                if i == 0:
                    g.e(f"s_add_u32 s49, s46, {ZPARK}")
                    g.e(f"v_add_u32 v14, s49, v{VST}")
                    g.e("v_bfe_u32 v15, v0, 4, 2")
                    g.e("v_lshlrev_b32 v15, 5, v15")
                    g.e("v_xor_b32 v14, v14, v15")
                    g.e("s_cmp_ge_u32 s48, 8")
                    g.e("s_cselect_b32 s49, 0x40000000, 0")
                    g.e(f"v_add_u32 v15, s49, v{VST}")
                g.lds(f"DR 10,14,{i * 1024}", ("xn", i))
            else:
                g.wait_ds(("xn", i))
                g.vmem(f"buffer_store_dwordx4 v[10:13], v15, s[24:27], s62 offen offset:{i * 1024} sc1", "xn")
        for i in range(4):
            at(("post", 19 + 12 * i), lambda i=i: xnc(i, False)); at(("post", 25 + 12 * i), lambda i=i: xnc(i, True))
        if T == "Z2": at(("post", 66), lambda: g.e("v_mov_b32 v13, v14"))
        for F0, s in ((0, 1), (22, 2), (50, 3)):
            for i, op in enumerate(wdma_ops(s, 47)): at(("post", F0 + i), op)
    if PFW and not ztype:
        def pfw():
            g.e("s_bfe_u32 s43, s2, 0x20003")
            g.e("s_lshl_b32 s43, s43, 7")
            g.e("s_lshl_b32 s47, s40, 4")
            g.e("s_add_u32 s43, s43, s47")
            g.e("v_bfe_u32 v14, v0, 2, 4")
            g.e("v_add_u32 v14, s43, v14")
            g.e("v_lshlrev_b32 v14, 13, v14")
            g.e("v_and_b32 v15, 3, v0")
            g.e("v_min_u32 v15, 2, v15")
            g.e("v_lshl_add_u32 v14, v15, 7, v14")
            g.vmem(f"buffer_load_dword v14, v14, s[20:23], s44 offen offset:384", "t")
        at(PFW, pfw)
    if PF:
        def prefetch():
            sr = 36 if T == "Z2" else 32
            srd(g, sr, 8, 9, 4 * MB)
            g.e("s_and_b32 s43, s2, 0xf8")
            g.e("s_add_u32 s43, s43, s40")
            g.e("s_lshl_b32 s43, s43, 14")
            nb = 2 if BAL else 1
            g.e(f"s_and_b32 s47, s2, {6 if BAL else 7}")
            g.e("s_lshl_b32 s47, s47, 8")
            g.e("s_add_u32 s47, s47, s43")
            g.e(f"v_and_b32 v14, {(1 << nb) - 1}, v0")
            g.e("v_lshlrev_b32 v14, 7, v14")
            g.e(f"v_bfe_u32 v15, v0, {nb}, 3")
            g.e("v_lshl_add_u32 v14, v15, 11, v14")
            g.e(f"v_bfe_u32 v15, v0, {nb + 3}, {3 - nb}")
            g.e("v_lshl_add_u32 v15, v15, 28, v14")
            g.vmem(f"buffer_load_dword v14, v15, s[{sr}:{sr + 3}], s47 offen", "t")
            if T in ("K", "V"):
                sk = g.newlabel("nocode")
                g.e("s_cmp_lt_u32 s2, 8")
                g.e(f"s_cbranch_scc0 {sk}")
                code_touch(g, 36, 14, "L_all_end", "L_p2", False)
                g.label(sk)
            if SPT1 and T != "Z2":
                sk = g.newlabel("nosp")
                g.e(f"s_cmp_lt_u32 s2, {192 if BAL else 224}")
                g.e(f"s_cbranch_scc1 {sk}")
                if BAL:
                    g.e("s_bitcmp1_b32 s2, 0")
                    g.e(f"s_cbranch_scc1 {sk}")
                g.e("s_load_dwordx2 s[36:37], s[0:1], 64")
                g.e(f"s_and_b32 s43, s2, {0x38 if BAL else 0x18}")
                g.e("s_add_u32 s43, s43, s40")
                g.e("s_lshl_b32 s43, s43, 15")
                g.e("s_and_b32 s47, s2, 7")
                g.e("s_lshl_b32 s47, s47, 20")
                g.e("s_add_u32 s43, s43, s47")
                g.e("v_bfe_u32 v13, v0, 3, 3")
                g.e("v_lshlrev_b32 v13, 12, v13")
                g.e("v_and_b32 v15, 7, v0")
                g.e("v_lshl_add_u32 v13, v15, 7, v13")
                g.e("s_waitcnt lgkmcnt(0)")
                g.e(f"s_mov_b32 s38, {8 * MB}")
                g.e("s_mov_b32 s39, 0x20000")
                for i in range(SPT1): g.e(f"buffer_load_dword v14, v13, s[36:39], s43 offen offset:{1024 * i}")
                g.label(sk)
            if PF3 == 1 and T != "Z2":
                sk = g.newlabel("nopf3")
                g.e(f"s_cmp_lt_u32 s42, {SHORT0}")
                g.e(f"s_cbranch_scc1 {sk}")
                pf_next(True)
                g.label(sk)
        at(PF if not ztype else min(PF, 110), prefetch)
    if not ztype: at(42 if XPF else 150, lambda: (g.e("v_mov_b32 v13, 20"), w0(lambda: dbg_load(g, 13, 13, 18))))
    if T != "Z2": at(114 if ztype else (70 if XPF else (2 * NS - 1) * 32 - 12), xn_snap)
    if XPF and not ztype:
        def xn_touch():
            from k2 import role_ops
            sk = g.newlabel("noxt")
            g.e(f"s_cmp_ge_u32 s42, {SHORT0}")
            g.e(f"s_cbranch_scc1 {sk}")
            for t in role_ops(54, 55, 52, 53, 43, 47): g.e(t)
            srd(g, 36, 16, 17, SZ_XN, WS_XN)
            g.e("s_lshr_b32 s47, s40, 2")
            g.e("s_cmp_eq_u32 s47, 0")
            g.e("s_cselect_b32 s55, s52, s53")
            g.e("s_lshl_b32 s55, s55, 17")
            g.e("s_and_b32 s43, s40, 3")
            g.e("s_lshl_b32 s43, s43, 15")
            g.e("s_add_u32 s55, s55, s43")
            g.e("s_lshr_b32 s43, s54, 3")
            g.e("s_lshl_b32 s43, s43, 13")
            g.e("s_add_u32 s55, s55, s43")
            g.e(f"v_lshlrev_b32 v14, 3, v{VST}")
            g.e("buffer_load_dword v14, v14, s[36:39], s55 offen")
            g.label(sk)
        at(XPF, xn_touch)
    if QFAST and T != "Z1":
        from k2 import role_ops
        XA, XB = (52, 53) if not ztype else (56, 57)
        def qprep():
            g.e("s_load_dwordx2 s[6:7], s[0:1], 64")
            for t in role_ops(54, 55, XA, XB, 43, 47): g.e(t)
            srd(g, 32, 8, 9, 512 * 8192)
            srd(g, 36, 16, 17, SZ_XN, WS_XN)
            g.e("s_lshl_b32 s54, s54, 8")
            g.e("s_and_b32 s43, s40, 3")
            g.e("s_lshl_b32 s47, s43, 18")
            g.e("s_add_u32 s54, s54, s47")
            g.e("s_lshr_b32 s47, s40, 2")
            g.e("s_cmp_eq_u32 s47, 0")
            g.e(f"s_cselect_b32 s55, s{XA}, s{XB}")
            g.e("s_lshl_b32 s47, s47, 7")
            g.e("s_add_u32 s54, s54, s47")
            g.e("s_lshl_b32 s55, s55, 17")
            g.e("s_lshl_b32 s43, s43, 15")
            g.e("s_add_u32 s55, s55, s43")
            g.e("s_waitcnt lgkmcnt(0)")
            g.ds = []
        if not ztype: at(258 if QT else 270, qprep)
        def qx(m):
            if m % 4 == 0:
                g.e(f"s_lshr_b32 s{XA}, s2, 3" if QROT else f"s_mov_b32 s{XA}, 0")
                g.e(f"s_add_u32 s{XA}, s{XA}, {m >> 2}")
                g.e(f"s_and_b32 s{XA}, s{XA}, 3")
                g.e(f"s_lshl_b32 s{XA}, s{XA}, 12")
                g.e(f"s_add_u32 s{XA}, s{XA}, s55")
                g.e(f"s_add_u32 s{XB}, s{XA}, 16384")
            for a in range(2):
                x = xreg(a, m)
                g.vmem(f"buffer_load_dwordx4 v[{x}:{x + 3}], v{VST}, s[36:39], s{XA + a} offen offset:{(m % 4) * 1024} {SC}", ("x", m))
        ZF.update(qprep=qprep, qx=qx)
        if ztype: pass
        elif QT:
            for m in range(12): at(("post", 9 * 32 + 2 + (8 * m if m < 8 else 64 + 4 * (m - 8))), lambda m=m: qx(m))
        else:
            for m in range(8): at(("post", (NST - 1) * 32 + 1 + 3 * m), lambda m=m: qx(m))
    def place(ops, F0, n):
        for i, op in enumerate(ops): at(("post", F0 + i * n // len(ops)), op)
    for p in range(NP - 1):
        ops = epilogue(p)
        F0 = (2 * p + 2) * 32 + 3
        if not ztype:
            h = len(ops) - 20
            fr = [ops[h + 5 * i:h + 5 * i + 5] for i in range(4)]
            if QM:
                U = (p >> 1) * 128
                if p == 4: place(ops, U + 116, 12)
                elif p & 1: place(ops, U + 131, 13)
                else:
                    place([o for f4 in fr for o in f4[:4]], U + 116, 11)
                    HELD[p] = ops[:h] + [f4[4] for f4 in fr]
                    place(ops[:h], U + 150, 3)
                    for f4, F in zip(fr, (156, 180, 204, 228)): at(("post", U + F), f4[4])
            elif p == 0:
                place(ops[:h] + [o for f4 in fr for o in f4[:4]], 3 * 32 + 20, 11)
                for f4, F in zip(fr, (127, 138, 149, 160)): at(("post", F), f4[4])
            elif QT and p == 3:
                place(ops[:h] + [o for f4 in fr for o in f4[:4]], 8 * 32 + 3, 11)
                for f4, F in zip(fr, (272, 296, 320, 344)): at(("post", F), f4[4])
            elif QT and p == 4:
                place(ops, 11 * 32 + 20, 12)
            else:
                pos = (166, 174, 182, 189) if p == 1 else [F0 + 5 + 16 * i for i in range(4)]
                place(ops[:h], pos[0] - 4, 3)
                for f4, F in zip(fr, pos): place(f4, F - 1, 2)
        elif p == 0: place(ops, 3 * 32 + 20, 11)
        elif T == "Z2" and p == 1:
            place(ops + [lambda: g.e("s_nop 1")] + publish_ops(), F0, ZPUB)
            at(("post", F0 + ZPUB + ZA), arrive)
            at(("post", F0 + ZPUB + ZA + ZP), lambda: w0(lambda: flag_load(g, 14, 15, 100)))
            at(("post", min(191, F0 + ZPUB + ZA + ZP + ZC)), collect)
        else: place(ops, F0, 60)
    for F in range(8 if CHG else D): wread(F)
    rq = []
    for s in range(NST):
        if s == 1: diag_mark(g, 1)
        if s < 9 and PROF != 6: g.stamp(2 + s)
        if s == 2 * NS and NS < NP:
            cont = g.newlabel("cont")
            g.e(f"s_cmp_lt_u32 s42, {SHORT0}")
            g.e(f"s_cbranch_scc1 {cont}")
            sv = (list(g.vm), list(g.ds))
            final(NS - 1, True)
            g.vm, g.ds = sv
            g.label(cont)
        for f in range(32):
            F = s * 32 + f
            if PROF == 6 and F in PFL: g.stamp(2 + PFL.index(F))
            for fn in ev.pop(F, []): fn()
            post = ev.pop(("post", F), [])
            for h in range(2):
                if CHG:
                    i = (f & 3) * 2 + h
                    Fm, a = (F & ~3) + (i & 3), i >> 2
                else: Fm, a = F, h
                p, m, cb, mp = fmap(s, Fm & 31)
                if a == 0: g.wait_ds(("w", Fm))
                r = WR + (Fm % 8) * 4
                op = "MZ" if m == 0 else "M"
                if ktp(p): g.e(f"{op} {areg(p & 1, cb, a)},{r},{xreg(a, m)}")
                else: g.e(f"{op} {areg(p & 1, cb, a)},{xreg(a, m)},{r}")
                if CHG:
                    if rq: rq.pop(0)()
                    if a == 1: rq += [lambda Fm=Fm: wread(Fm + 8, 0), lambda Fm=Fm: wread(Fm + 8, 1)]
                else: wread(F + D, h)
                n = len(post) // 2 if h == 0 else len(post)
                for _ in range(n): post.pop(0)()
    assert not ev, ev.keys()
    final(NP - 1)
    g.label(f"L_k1_{T}_end")

def gen_k1(g):
    g.e(".p2align 8")
    g.e(f".type {KNAME},@function")
    g.label(KNAME)
    g.e("s_cmp_ge_u32 s2, 256")
    g.e("s_cbranch_scc1 L_k1_end")
    g.stamp(0)
    diag_mark(g, 0)
    if PROF: g.e("s_memrealtime s[94:95]")
    g.e("s_load_dwordx4 s[4:7], s[0:1], 0")
    g.e("s_load_dwordx4 s[8:11], s[0:1], 16")
    g.e("s_load_dwordx2 s[12:13], s[0:1], 32")
    g.e("s_load_dwordx2 s[14:15], s[0:1], 56")
    g.e("s_load_dwordx2 s[18:19], s[0:1], 96")
    g.e("s_load_dwordx2 s[16:17], s[0:1], 104")
    g.e("v_lshrrev_b32 v1, 6, v0")
    g.e("s_lshr_b32 s49, s2, 3")
    g.e("s_and_b32 s41, s2, 1")
    g.e("v_readfirstlane_b32 s40, v1")
    g.e("s_lshl_b32 s41, s41, 2")
    g.e("s_and_b32 s50, s49, 3")
    g.e("s_add_u32 s41, s41, s50")
    g.e("s_and_b32 s3, s2, 6")
    g.e("s_lshl_b32 s3, s3, 2")
    g.e("s_lshr_b32 s49, s49, 2")
    g.e("s_add_u32 s3, s3, s49")
    if BAL:
        g.e("s_and_b32 s50, s2, 1")
        g.e("s_or_b32 s51, s49, 1")
        g.e("s_sub_u32 s50, s51, s50")
        g.e("s_bfe_u32 s51, s2, 0x30003")
        g.e(f"s_cmp_ge_u32 s49, {4 if ZODD else 6}")
        g.e("s_cselect_b32 s49, s50, s49")
        g.e("s_cselect_b32 s41, s51, s41")
    if MIX:
        cst = [sum(v << (8 * i) for i, v in enumerate(row)) for row in GMAP]
        g.e("s_bitcmp1_b32 s2, 1")
        g.e(f"s_cselect_b32 s44, {cst[1] & 0xffffffff}, {cst[0] & 0xffffffff}") if False else None
        for k, (lo, hi) in enumerate(((44, 45), (46, 47))):
            g.e(f"s_mov_b32 s{lo}, {cst[2 * k] & 0xffffffff}")
            g.e(f"s_mov_b32 s{hi}, {cst[2 * k] >> 32}")
            g.e(f"s_cmov_b32 s{lo}, {cst[2 * k + 1] & 0xffffffff}")
            g.e(f"s_cmov_b32 s{hi}, {cst[2 * k + 1] >> 32}")
        g.e("s_bitcmp1_b32 s2, 2")
        g.e("s_cselect_b64 s[44:45], s[46:47], s[44:45]")
        g.e("s_lshl_b32 s49, s49, 3")
        g.e("s_lshr_b64 s[44:45], s[44:45], s49")
        g.e("s_and_b32 s3, s44, 31")
    g.e("s_waitcnt lgkmcnt(0)")
    if os.environ.get('PRIO'):
        lp = g.newlabel("prio")
        g.e("s_cmp_lt_u32 s40, 4")
        g.e(f"s_cbranch_scc1 {lp}")
        g.e("s_setprio 1")
        g.label(lp)
    g.e(f"s_add_u32 s100, s16, {WS_FL}")
    g.e("s_addc_u32 s101, s17, 0")
    if MERGE:
        sk = g.newlabel("nonce")
        g.e("s_or_b32 s49, s2, s40")
        g.e(f"s_cbranch_scc1 {sk}")
        g.e("s_memrealtime s[50:51]")
        g.e("v_mov_b32 v2, 20")
        g.e("s_waitcnt lgkmcnt(0)")
        g.e("s_or_b32 s49, s50, 1")
        g.e("v_mov_b32 v3, s49")
        g.e("s_mov_b64 exec, 1")
        g.e("global_store_dword v2, v3, s[18:19] sc1")
        g.e("s_mov_b64 exec, -1")
        g.label(sk)
    g.e(f"s_cmp_lt_u32 s3, {GKV}")
    g.e("s_cbranch_scc1 L_k1_K")
    g.e(f"s_cmp_lt_u32 s3, {2 * GKV}")
    g.e("s_cbranch_scc1 L_k1_V")
    g.e(f"s_cmp_lt_u32 s3, {2 * GKV + 3}")
    g.e("s_cbranch_scc1 L_k1_Z1")
    g.e("s_branch L_k1_Z2")
    g.label("L_k1_end")
    g.e("s_endpgm")
    for T in ("K", "V", "Z1", "Z2"):
        gen_type(g, T)
```

```python
import struct, os
KNAME = 'parallel_sum__compressed_kv_cla__mixer_gmlp__prompt_kernel'
PROF = int(os.environ.get('PROF', '0'))

def f32(x):
    return struct.unpack('<I', struct.pack('<f', x))[0]

class G:
    def __init__(self):
        self.lines = []
        self.vm = []
        self.ds = []
        self.uid = 0
    def e(self, s):
        self.lines.append(s)
    def label(self, name):
        al = os.environ.get('ALIGN')
        if al and name in ("L_k2_ssh", "L_k2_ssp", "L_k2_sploop", "L_k2_msh2", "L_k2_msp2"):
            self.lines.append(f".p2alignl {al[0]}, 0xbf800000")
            if len(al) > 1: self.lines.append("s_nop 0")
        self.lines.append(name + ":")
    def newlabel(self, base):
        self.uid += 1
        return f"L_{base}_{self.uid}"
    def vmem(self, s, tag=None):
        self.lines.append(s); self.vm.append(tag)
    def lds(self, s, tag=None):
        self.lines.append(s); self.ds.append(tag)
    def _need(self, lst, tags):
        idx = -1
        for i, t in enumerate(lst):
            if t in tags: idx = i
        return idx
    def wait_vm(self, *tags):
        idx = self._need(self.vm, tags)
        if idx < 0: return
        n = min(len(self.vm) - 1 - idx, 63)
        self.lines.append(f"s_waitcnt vmcnt({n})")
        self.vm = self.vm[len(self.vm) - n:] if n else []
    def wait_ds(self, *tags):
        idx = self._need(self.ds, tags)
        if idx < 0: return
        n = min(len(self.ds) - 1 - idx, 15)
        self.lines.append(f"s_waitcnt lgkmcnt({n})")
        self.ds = self.ds[len(self.ds) - n:] if n else []
    def wait_all(self, vm=True, ds=True):
        if vm and ds: self.lines.append("s_waitcnt vmcnt(0) lgkmcnt(0)")
        elif vm: self.lines.append("s_waitcnt vmcnt(0)")
        elif ds: self.lines.append("s_waitcnt lgkmcnt(0)")
        if vm: self.vm = []
        if ds: self.ds = []
    def stamp(self, i):
        if PROF == 4 and i > 6: return
        if PROF: self.lines.append(f"s_memtime s[{64 + 2 * i}:{65 + 2 * i}]")
        if PROF == 4 and 1 <= i <= 6: self.lines.append(f"s_memrealtime s[{64 + 2 * (i + 7)}:{65 + 2 * (i + 7)}]")
    def stamp_if(self, i, sreg, val):
        if PROF != 2: return
        l = self.newlabel("st")
        self.e(f"s_cmp_lg_u32 s{sreg}, {val}")
        self.e(f"s_cbranch_scc1 {l}")
        self.stamp(i)
        self.label(l)
    def stamp_dump(self, wslo, wshi, swave, kidx, n=16):
        if not PROF: return
        e = self.e
        e("s_waitcnt vmcnt(0) lgkmcnt(0)")
        e("s_memrealtime s[98:99]")
        e("s_memtime s[96:97]")
        e("s_waitcnt lgkmcnt(0)")
        e(f"s_add_u32 s60, s{wslo}, {WS_DBG + kidx * MB}")
        e(f"s_addc_u32 s61, s{wshi}, 0")
        e(f"s_mov_b32 s62, {MB}")
        e("s_mov_b32 s63, 0x20000")
        e("s_lshl_b32 s49, s2, 10")
        e(f"s_lshl_b32 s50, s{swave}, 7")
        e("s_add_u32 s49, s49, s50")
        e("v_and_b32 v1, 63, v0") if False else None
        e("v_mbcnt_lo_u32_b32 v30, -1, 0")
        e("v_mbcnt_hi_u32_b32 v30, -1, v30")
        e("v_lshlrev_b32 v30, 24, v30")
        for i in range(n + 2):
            e(f"v_mov_b32 v31, s{64 + 2 * i}")
            e(f"buffer_store_dword v31, v30, s[60:63], s49 offen offset:{4 * i}")
            e("s_nop 1")
    def text(self):
        return "\n".join(self.lines) + "\n"

MACROS = r"""
.macro M d,a,b
v_mfma_f32_16x16x32_bf16 v[\d:\d+3],v[\a:\a+3],v[\b:\b+3],v[\d:\d+3]
.endm
.macro MZ d,a,b
v_mfma_f32_16x16x32_bf16 v[\d:\d+3],v[\a:\a+3],v[\b:\b+3],0
.endm
.macro MC d,a,b,c
v_mfma_f32_16x16x32_bf16 v[\d:\d+3],v[\a:\a+3],v[\b:\b+3],v[\c:\c+3]
.endm
.macro TR d,a,o
ds_read_b64_tr_b16 v[\d:\d+1],v\a offset:\o
.endm
.macro DR d,a,o
ds_read_b128 v[\d:\d+3],v\a offset:\o
.endm
.macro DW a,d,o
ds_write_b128 v\a,v[\d:\d+3] offset:\o
.endm
.macro PK d,a,b
v_cvt_pk_bf16_f32 v\d,v\a,v\b
.endm
"""

def kd(name, vgpr, sgpr=102):
    acc = (vgpr + 3) // 4 * 4
    return f"""
.amdhsa_kernel {name}
  .amdhsa_next_free_vgpr {vgpr}
  .amdhsa_next_free_sgpr {sgpr}
  .amdhsa_accum_offset {acc}
  .amdhsa_group_segment_fixed_size 0
  .amdhsa_kernarg_size 112
  .amdhsa_user_sgpr_count 2
  .amdhsa_user_sgpr_kernarg_segment_ptr 1
  .amdhsa_system_sgpr_workgroup_id_x 1
.end_amdhsa_kernel
"""

def srd(g, s, lo, hi, size, off=0):
    if off:
        g.e(f"s_add_u32 s{s}, s{lo}, {off}")
        g.e(f"s_addc_u32 s{s+1}, s{hi}, 0")
    else:
        g.e(f"s_mov_b32 s{s}, s{lo}")
        g.e(f"s_mov_b32 s{s+1}, s{hi}")
    g.e(f"s_mov_b32 s{s+2}, {size}")
    g.e(f"s_mov_b32 s{s+3}, 0x20000")

MERGE = int(os.environ.get('MERGE', '2'))
SC = os.environ.get("SCL", "sc1") if MERGE else ""
def dbg_load(g, v, voff, base):
    g.e(f"global_load_dword v{v}, v{voff}, s[{base}:{base + 1}] sc1")
def dbg_wait(g, v, voff, vtgt, base, sleep, loaded):
    spin = g.newlabel("spin"); chk = g.newlabel("chk")
    if loaded: g.e(f"s_branch {chk}")
    g.label(spin)
    g.e(f"s_sleep {sleep}")
    dbg_load(g, v, voff, base)
    g.e("s_waitcnt vmcnt(0)")
    g.label(chk)
    g.e(f"v_cmp_lt_u32 vcc, v{v}, v{vtgt}")
    g.e(f"s_cbranch_vccnz {spin}")
def nonce_get(g, v, voff, sleep, loaded):
    spin = g.newlabel("spin"); chk = g.newlabel("chk")
    if loaded: g.e(f"s_branch {chk}")
    g.label(spin)
    g.e(f"s_sleep {sleep}")
    g.e(f"v_mov_b32 v{voff}, 20")
    dbg_load(g, v, voff, 18)
    g.label(chk)
    g.e("s_waitcnt vmcnt(0)") if not loaded else None
    g.e(f"v_readfirstlane_b32 s59, v{v}")
    g.e("s_bitcmp1_b32 s59, 0")
    if loaded:
        ok = g.newlabel("ok")
        g.e(f"s_cbranch_scc1 {ok}")
        g.e("s_waitcnt vmcnt(0)")
        g.e(f"v_readfirstlane_b32 s59, v{v}")
        g.e("s_bitcmp1_b32 s59, 0")
        g.e(f"s_cbranch_scc0 {spin}")
        g.label(ok)
    else:
        g.e(f"s_cbranch_scc0 {spin}")
def flag_set(g, vt, soff, snonce, base):
    g.e(f"v_lshlrev_b32 v{vt}, 13, v0")
    g.e(f"v_add_u32 v{vt}, s{soff}, v{vt}")
    g.e(f"v_mov_b32 v{vt + 1}, s{snonce}")
    g.e("s_mov_b64 exec, 0xff")
    g.e(f"global_store_dword v{vt}, v{vt + 1}, s[{base}:{base + 1}] sc1")
    g.e("s_mov_b64 exec, -1")
def flag_load(g, v, voff, base, wide=False):
    if wide: g.e(f"global_load_dwordx2 v[{v}:{v + 1}], v{voff}, s[{base}:{base + 1}] sc1")
    else: g.e(f"global_load_dword v{v}, v{voff}, s[{base}:{base + 1}] sc1")
def flag_wait(g, v, voff, snonce, base, sleep, loaded, wide=False):
    spin = g.newlabel("spin"); chk = g.newlabel("chk")
    if loaded: g.e(f"s_branch {chk}")
    g.label(spin)
    g.e(f"s_sleep {sleep}")
    flag_load(g, v, voff, base, wide)
    g.e("s_waitcnt vmcnt(0)")
    g.label(chk)
    g.e(f"v_cmp_ne_u32 vcc, s{snonce}, v{v}")
    g.e(f"s_cbranch_vccnz {spin}")
    if wide:
        g.e(f"v_cmp_ne_u32 vcc, s{snonce}, v{v + 1}")
        g.e(f"s_cbranch_vccnz {spin}")
BAL = int(os.environ.get('BAL', '2'))
DIAG = int(os.environ.get('DIAG', '0'))
def diag_mark(g, i):
    if DIAG: g.e(f"s_memrealtime s[{64 + 2 * i}:{65 + 2 * i}]")
def diag_end(g):
    if not DIAG: return
    g.e("s_waitcnt vmcnt(0) lgkmcnt(0)")
    diag_mark(g, 4)
    g.e("s_waitcnt lgkmcnt(0)")
    g.e(f"s_sub_u32 s80, s{64 + 2 * DIAG}, s64")
    l = g.newlabel("dg")
    g.label(l)
    g.e("s_memrealtime s[82:83]")
    g.e("s_waitcnt lgkmcnt(0)")
    g.e("s_sub_u32 s81, s82, s72")
    g.e("s_cmp_lt_u32 s81, s80")
    g.e(f"s_cbranch_scc1 {l}")
CPF = int(os.environ.get('CPF', '1'))
def code_touch(g, s, v, end, start=None, track=True, va=None):
    if not CPF: return
    here = g.newlabel("pc")
    g.e(f"s_getpc_b64 s[{s}:{s + 1}]")
    g.label(here)
    if start:
        g.e(f"s_add_u32 s{s}, s{s}, {start}-{here}")
        g.e(f"s_addc_u32 s{s + 1}, s{s + 1}, 0")
    g.e(f"v_lshlrev_b32 v{va}, 7, v0")
    g.e(f"v_min_u32 v{va}, {end}-{start or here}-4, v{va}")
    g.e(f"v_mov_b32 v{va + 1}, s{s + 1}")
    g.e(f"v_add_co_u32 v{va}, vcc, s{s}, v{va}")
    g.e("s_nop 1")
    g.e(f"v_addc_co_u32 v{va + 1}, vcc, 0, v{va + 1}, vcc")
    t = f"global_load_dword v{v}, v[{va}:{va + 1}], off"
    if track: g.vmem(t, "code")
    else: g.e(t)

MB = 1 << 20
WS_XN = 0
WS_K = 2 * MB
WS_V = 18 * MB
WS_Z1 = 34 * MB
WS_Z2 = 38 * MB
WS_ST = 42 * MB
WS_CTX = 44 * MB
SZ_XN = 2 * MB
SZ_KV = 16 * MB
SZ_Z = 2048 * 896 * 2
SZ_ST = 3 * 2048 * 8
SZ_CTX = 128 * 156 * 1024
WS_DBG = 200 * MB
WS_SCR = 64 * MB
SZ_SCR = 32 * MB
WS_PART = 64 * MB
WS_XNP = 74 * MB
WS_FL = 76 * MB
```

```python
from asmlib import *
import math

XR = 128
ACC = [64, 96]
WR = 32
D = 6
C2 = -2.0 * math.sqrt(2.0 / math.pi) * math.log2(math.e)
C1 = C2 * 0.044715
NPKV = int(os.environ.get('NPKV', '6'))
NPZ = int(os.environ.get('NPZ', '3'))
GKV = -(-64 // NPKV); GZ = 7
assert NPKV == 6 and NPZ == 3
GMAP = [[0, 1, 2, 25, 3, 4, 26, 10], [11, 12, 13, 27, 14, 15, 28, 21], [5, 6, 29, 7, 8, 30, 9, 23], [16, 17, 31, 18, 22, 19, 20, 24]]
ZODD = int(os.environ.get('ZODD', '0'))
if ZODD: GMAP = [[0, 1, 2, 3, 25, 4, 26, 10], [11, 12, 13, 14, 27, 15, 28, 21], [5, 6, 7, 8, 29, 9, 30, 23], [16, 17, 18, 19, 31, 20, 22, 24]]
assert sorted(sum(GMAP, [])) == list(range(32))
NTW = os.environ.get('NTW', '')
PF = int(os.environ.get('PF', '97'))
CLU = int(os.environ.get('CLU', '1'))
PFW = int(os.environ.get('PFW', '0'))
NTP = os.environ.get('NTP', '')
PF3 = int(os.environ.get('PF3', '0'))
ZPUB = int(os.environ.get('ZPUB', '20'))
MIX = int(os.environ.get('MIX', '1'))
PFWS = int(os.environ.get('PFWS', '16'))
ROT = int(os.environ.get('ROT', '3'))
SL0 = int(os.environ.get('SL0', '0')); SL1 = int(os.environ.get('SL1', '4'))
LT = int(os.environ.get('LT', '0'))
PFL = eval(os.environ.get('PFL', '[0,2,4,8,10,11,14,18,22,23]'))
PROT = int(os.environ.get('PROT', '0'))
ZA = int(os.environ.get('ZA', '10')); ZP = int(os.environ.get('ZP', '12')); ZC = int(os.environ.get('ZC', '12'))
STKV = os.environ.get('STKV', 'sc1')
QFAST = int(os.environ.get('QFAST', '1')) and MERGE
FAST_VM = []
SPT1 = int(os.environ.get('SPT1', '1'))
IB = int(os.environ.get('IB', '2'))
WSP = int(os.environ.get('WSP', '6'))
XPF = int(os.environ.get('XPF', '0'))
QTAIL = int(os.environ.get('QTAIL', '1'))
CHG = int(os.environ.get('CHG', '1'))
ZFAST = int(os.environ.get('ZFAST', '0'))
QMID = int(os.environ.get('QMID', '0'))
QROT = int(os.environ.get('QROT', '0'))
EARLY = int(os.environ.get('EARLY', '1'))
STF = os.environ.get('STF', 'sc1')

def xreg(a, m): return XR + (m * 2 + a) * 4
def areg(st, cb, a): return ACC[st] + (cb * 2 + a) * 4

def w_voffsets(g, rowstride, vbase):
    g.e("v_bfe_u32 v28, v0, 5, 1")
    g.e("v_bfe_u32 v29, v0, 2, 2")
    g.e("v_lshl_add_u32 v28, v28, 2, v29")
    g.e(f"v_mul_u32_u24 v28, {rowstride}, v28")
    g.e("v_bfe_u32 v29, v0, 4, 1")
    g.e("v_lshl_add_u32 v28, v29, 6, v28")
    g.e("v_and_b32 v29, 3, v0")
    g.e("v_xor_b32 v30, 2, v29")
    g.e("v_lshlrev_b32 v29, 4, v29")
    g.e("v_lshlrev_b32 v30, 4, v30")
    for j in range(4):
        g.e(f"v_add_u32 v31, {j * 8 * rowstride - j * 1024}, v28")
        g.e(f"v_add_u32 v{vbase + j}, v31, v{29 + (j & 1)}")

def tr_bases(g, ve, vo):
    g.e("v_bfe_u32 v28, v0, 4, 2")
    g.e("v_lshlrev_b32 v29, 10, v28")
    g.e("v_bfe_u32 v30, v0, 2, 2")
    g.e("v_lshl_add_u32 v29, v30, 6, v29")
    g.e("v_and_b32 v30, 3, v0")
    g.e("v_lshl_add_u32 v29, v30, 3, v29")
    g.e("v_and_b32 v28, 1, v28")
    g.e(f"v_lshl_add_u32 v{ve}, v28, 5, v29")
    g.e(f"v_xor_b32 v{vo}, 32, v{ve}")

def gelu_ops(regs, T, vc2, sc1, stats=None):
    out = []
    n = len(T)
    for i in range(0, len(regs), n):
        grp = list(zip(regs[i:i + n], T))
        out += [f"v_mul_f32 v{t}, v{x}, v{x}" for x, t in grp]
        out += [f"v_fma_f32 v{t}, v{t}, s{sc1}, v{vc2}" for x, t in grp]
        out += [f"v_mul_f32 v{t}, v{t}, v{x}" for x, t in grp]
        out += [f"v_exp_f32 v{t}, v{t}" for x, t in grp]
        out += [f"v_add_f32 v{t}, 1.0, v{t}" for x, t in grp]
        out += [f"v_rcp_f32 v{t}, v{t}" for x, t in grp]
        out += [f"v_mul_f32 v{x}, v{x}, v{t}" for x, t in grp]
        if stats:
            out += [f"v_add_f32 v{stats[x][0]}, v{stats[x][0]}, v{x}" for x, t in grp]
            out += [f"v_fmac_f32 v{stats[x][1]}, v{x}, v{x}" for x, t in grp]
    return out

def ln_params(g, MEAN, VAR, n):
    def rbf(rs):
        for r in rs: g.e(f"PK {r},{r},{r}")
        for r in rs: g.e(f"v_and_b32 v{r}, 0xffff0000, v{r}")
    for m, v in zip(MEAN, VAR):
        g.e(f"v_mul_f32 v{m}, {f32(1 / n)}, v{m}")
        g.e(f"v_mul_f32 v{v}, {f32(1 / n)}, v{v}")
    for m, v in zip(MEAN, VAR): g.e(f"v_fma_f32 v{v}, -v{m}, v{m}, v{v}")
    for v in VAR: g.e(f"v_max_f32 v{v}, 0, v{v}")
    rbf(list(MEAN) + list(VAR))
    for v in VAR: g.e(f"v_add_f32 v{v}, {f32(1e-5)}, v{v}")
    rbf(VAR)
    for v in VAR: g.e(f"v_sqrt_f32 v{v}, v{v}")
    g.e("s_nop 0")
    rbf(VAR)
    for v in VAR: g.e(f"v_rcp_f32 v{v}, v{v}")
    g.e("s_nop 0")
    for m, v in zip(MEAN, VAR): g.e(f"v_mul_f32 v{m}, v{m}, v{v}")

def entry_wait(g, nonce):
    g.e("s_waitcnt lgkmcnt(0)")
    g.e(f"s_add_u32 s100, s16, {WS_FL}")
    g.e("s_addc_u32 s101, s17, 0")
    if nonce:
        sk = g.newlabel("nonce")
        g.e("s_or_b32 s49, s2, s40")
        g.e(f"s_cbranch_scc1 {sk}")
        g.e("s_memrealtime s[50:51]")
        g.e("v_mov_b32 v24, 20")
        g.e("s_waitcnt lgkmcnt(0)")
        g.e("s_or_b32 s49, s50, 1")
        g.e("v_mov_b32 v25, s49")
        g.e("s_mov_b64 exec, 1")
        g.e("global_store_dword v24, v25, s[18:19] sc1")
        g.e("s_mov_b64 exec, -1")
        g.label(sk)

def gen_type(g, T):
    ktp = lambda p: T in ("K", "Z1") or (T == "Z2" and p == 2)
    ztype = T in ("Z1", "Z2")
    rowstride = 3584 if ztype else 8192
    NP = NPZ if ztype else NPKV
    NTOT = 14 if ztype else 64
    NG = {"Z1": 3, "Z2": GZ}.get(T, GKV)
    NS = {"Z1": 2, "Z2": 3}.get(T, NTOT - (NG - 1) * NP)
    SHORT0 = {"Z1": 1}.get(T, NG - 1)
    VW = 1
    VTE, VTO = 5, 6
    VST = 7
    VC2 = 8
    VXA = 20
    VXR = (9, 11)
    TMP = [9, 10, 11, 12]
    STAT = 16
    g.vm = []; g.ds = []
    g.label(f"L_k1_{T}")
    g0 = {"K": 0, "V": GKV, "Z1": 2 * GKV, "Z2": 2 * GKV + 3}[T]
    if EARLY:
        assert GMAP[0][0] < GKV
        code_touch(g, 36, 255 if ztype else 14, f"L_k1_{T}_end", va=26)
        w_voffsets(g, rowstride, VW)
        entry_wait(g, T == "K")
    g.e(f"s_sub_u32 s42, s3, {g0}")
    g.e("v_and_b32 v28, 63, v0")
    g.e(f"v_lshlrev_b32 v{VST}, 4, v28")
    if ztype:
        srd(g, 24, 4, 5, 2 * MB)
        g.e(f"s_sub_u32 s54, s3, {2 * GKV}")
        g.e("s_and_b32 s49, s54, 7")
        g.e("s_lshl_b32 s49, s49, 5")
        g.e("s_lshl_b32 s50, s41, 8")
        g.e("s_add_u32 s49, s49, s50")
        g.e("s_lshl_b32 s50, s40, 2")
        g.e("s_add_u32 s55, s49, s50")
        g.e("s_lshl_b32 s49, s55, 10")
        g.e("v_and_b32 v28, 3, v0")
        g.e("v_lshlrev_b32 v30, 4, v28")
        g.e("v_bfe_u32 v29, v0, 2, 2")
        g.e("v_lshl_add_u32 v30, v29, 10, v30")
        g.e("v_bfe_u32 v29, v0, 4, 2")
        g.e("v_lshl_add_u32 v30, v29, 6, v30")
        for i in range(4): g.vmem(f"buffer_load_dwordx4 v[{64 + 4 * i}:{67 + 4 * i}], v30, s[24:27], s49 offen offset:{256 * i}", "ln")
    else:
        srd(g, 24, 6, 7, 2 * MB)
    if T == "K": srd(g, 20, 10, 11, 512 * 8192)
    if T == "V": srd(g, 20, 12, 13, 512 * 8192)
    if ztype: srd(g, 20, 14, 15, 512 * 3584)
    if T == "Z1":
        g.e("s_lshl_b32 s58, s42, 1")
        g.e("s_add_u32 s58, s58, 8")
        g.e("s_cmp_eq_u32 s42, 0")
        g.e("s_cselect_b32 s58, 7, s58")
    elif T == "Z2": g.e("s_lshl_b32 s58, s42, 1")
    else: g.e(f"s_mul_i32 s58, s42, {NP}")
    colbase = 1792 if T == "Z2" else 0
    g.e("s_lshl_b32 s44, s58, 7")
    if colbase: g.e(f"s_add_u32 s44, s44, {colbase}")
    if ztype: g.e(f"s_mov_b32 s45, {colbase + (NTOT - 1) * 128}")
    else:
        g.e(f"s_cmp_lt_u32 s42, {SHORT0}")
        g.e(f"s_cselect_b32 s45, {NP}, {NS}")
        g.e("s_bfe_u32 s63, s2, 0x20003" if PROT else "s_mov_b32 s63, 0")
        g.e("s_lshl_b32 s63, s63, 1")
        g.e("s_cmp_ge_u32 s63, s45")
        g.e("s_cselect_b32 s49, s45, 0")
        g.e("s_sub_u32 s63, s63, s49")
    def pair_ops(p, d):
        return [f"s_add_u32 s{d}, s63, {p % 4 if p >= NS else p}" if False else f"s_add_u32 s{d}, s63, {p}",
                (f"s_cmp_ge_u32 s{d}, s45", "s_cselect_b32 s62, s45, 0"), f"s_sub_u32 s{d}, s{d}, s62"]
    g.e("s_lshl_b32 s46, s40, 12")
    g.e("s_bfe_u32 s60, s2, 0x20005" if (ROT and (not ztype or ROT > 2)) else "s_mov_b32 s60, 0")
    if ROT >= 2 and (not ztype or ROT > 2):
        g.e("s_bfe_u32 s49, s2, 0x20003")
        g.e("s_add_u32 s60, s60, s49")
        g.e(f"s_and_b32 s60, s60, {os.environ.get('RM', '3')}")
        if os.environ.get('RSH'): g.e("s_lshl_b32 s60, s60, 1")
    g.e("s_lshl_b32 s49, s60, 2")
    g.e("s_add_u32 s49, s49, s40")
    g.e("s_and_b32 s50, s49, 15")
    g.e(f"s_mul_i32 s56, s50, {32 * rowstride}")
    g.e("s_xor_b32 s50, s50, 8")
    g.e(f"s_mul_i32 s61, s50, {32 * rowstride}")
    g.e("s_and_b32 s57, s40, 3")
    g.e(f"s_mul_i32 s57, s57, {32 * rowstride}")
    g.e("s_lshr_b32 s49, s40, 2")
    g.e("s_lshl_b32 s49, s49, 7")
    g.e("s_add_u32 s57, s57, s49")
    if not ztype:
        g.e("s_lshl_b32 s49, s63, 7")
        g.e("s_add_u32 s57, s57, s49")
    g.e("s_add_u32 s57, s57, s44")
    NST = 2 * NP
    NQ = 4
    QT = QTAIL and QFAST and not ztype
    QM = QMID and QT and CHG
    def fmap(s, f):
        if CHG:
            G, k = f >> 2, f & 3
            if s < NQ or (QT and s >= 8) or QM: return 2 * (s >> 2) + (G >> 2), 4 * (s & 3) + k, G & 3, (G >> 2) * 4 + k
            return s >> 1, (s & 1) * 8 + (G >> 2) * 4 + k, G & 3, (G >> 2) * 4 + k
        cb = f & 3
        if s < NQ:
            p, ks = (f >> 4, (f >> 2) & 3) if s == 3 else ((f >> 2) & 1, f >> 3)
            return p, 4 * s + ks, cb, p * 4 + ks
        if QT and s >= 8:
            p, ks = (f >> 4, (f >> 2) & 3) if s in (8, 11) else ((f >> 2) & 1, f >> 3)
            return 4 + p, 4 * (s - 8) + ks, cb, p * 4 + ks
        return s >> 1, (s & 1) * 8 + (f >> 2), cb, f >> 2
    XPOS = [3, 4, 3, 4, 3, 4, 4, 4]
    def xdma_ops(q):
        ops = []
        for i in range(4):
            def op(i=i):
                if i == 0:
                    g.e(f"s_add_u32 s43, s60, {q >> 1}")
                    g.e("s_and_b32 s43, s43, 3")
                    g.e("s_lshl_b32 s43, s43, 8")
                    if q & 1: g.e("s_add_u32 s43, s43, 128")
                g.e(f"s_add_u32 m0, s46, {XPOS[q] * 32768}")
                g.e("s_nop 0")
                g.vmem(f"buffer_load_dwordx4 v{VXA + i}, s[24:27], s43 offen offset:{i * 1024} lds", ("x", q))
            ops.append(op)
        return ops
    def xread(q):
        g.wait_vm(("x", q))
        for ks in range(2):
            for a in range(2):
                g.lds(f"DR {xreg(a, 2 * q + ks)},{VXR[(XPOS[q] >> 1) - 1] + ks},{(XPOS[q] & 1) * 32768 + a * 2048}", ("x", q))
    def wdma_ops(s, sr=51):
        if s >= NST and QFAST and not ztype:
            def op(j):
                if j == 0:
                    g.e(f"s_lshr_b32 s{sr}, s2, 3" if QROT else f"s_mov_b32 s{sr}, 0")
                    g.e(f"s_add_u32 s{sr}, s{sr}, {s - NST}")
                    g.e(f"s_and_b32 s{sr}, s{sr}, 3")
                    g.e(f"s_lshl_b32 s{sr}, s{sr}, 20")
                    g.e(f"s_add_u32 s{sr}, s{sr}, s54")
                g.e(f"s_add_u32 m0, s46, {(s % 4) * 32768}")
                g.e("s_nop 0")
                g.vmem(f"buffer_load_dwordx4 v{VW + j}, s[32:35], s{sr} offen offset:{j * 1024} lds", ("wq", s - NST))
            return [lambda j=j: op(j) for j in range(4)]
        if s >= NST: return []
        ops = []
        for j in range(4):
            def op(j=j):
                if j == 0:
                    if s < NQ or (QT and s >= 8) or QM:
                        g.e(f"s_add_u32 s{sr}, s60, {s & 3}")
                        g.e(f"s_and_b32 s{sr}, s{sr}, 3")
                        g.e(f"s_mul_i32 s{sr}, s{sr}, {128 * rowstride}")
                        g.e(f"s_add_u32 s{sr}, s{sr}, s57")
                        if 4 <= s < 8: g.e(f"s_add_u32 s{sr}, s{sr}, 256")
                        if s >= 8:
                            g.e("s_cmp_gt_u32 s45, 4")
                            g.e("s_cselect_b32 s62, 512, 0")
                            g.e(f"s_add_u32 s{sr}, s{sr}, s62")
                    else:
                        p, kh = s >> 1, s & 1
                        if T == "Z2" and p == 2: g.e(f"s_lshl_b32 s{sr}, s42, 7")
                        elif ztype:
                            g.e(f"s_add_u32 s{sr}, s44, {p * 128}")
                            g.e(f"s_min_u32 s{sr}, s{sr}, s45")
                        else:
                            for t in pair_ops(p, sr):
                                for u in ((t,) if isinstance(t, str) else t): g.e(u)
                            g.e(f"s_lshl_b32 s{sr}, s{sr}, 7")
                            g.e(f"s_add_u32 s{sr}, s{sr}, s44")
                        g.e(f"s_add_u32 s{sr}, s{sr}, s{61 if kh else 56}")
                g.e(f"s_add_u32 m0, s46, {(s % 4) * 32768}")
                g.e("s_nop 0")
                g.vmem(f"buffer_load_dwordx4 v{VW + j}, s[20:23], s{sr} offen offset:{j * 1024} {NTW} lds", ("w", s))
            ops.append(op)
        return ops
    def run(ops):
        for op in ops: op()
    def w0(fn):
        sk = g.newlabel("w0")
        g.e("s_cmp_lg_u32 s40, 0"); g.e(f"s_cbranch_scc1 {sk}")
        fn(); g.label(sk)
    def rb_line(dst, extra):
        g.e(f"s_add_u32 s{dst}, s41, 53")
        g.e(f"s_lshl_b32 s{dst}, s{dst}, 7")
        if extra: g.e(f"s_add_u32 s{dst}, s{dst}, {extra}")
    def rb_poll_addr(v, n, extra):
        rb_line(49, extra)
        g.e("s_and_b32 s50, s2, 7")
        g.e("s_lshl_b32 s50, s50, 13")
        g.e("s_add_u32 s49, s49, s50")
        g.e(f"v_min_u32 v{v}, {n - 1}, v0")
        g.e(f"v_lshl_add_u32 v{v}, v{v}, 2, s49")

    if not EARLY: w_voffsets(g, rowstride, VW)
    if not ztype:
        run(wdma_ops(0, 47))
        g.e("v_bfe_u32 v28, v0, 3, 3")
        g.e("v_and_b32 v29, 7, v0")
        g.e("v_lshrrev_b32 v30, 1, v28")
        g.e("v_xor_b32 v29, v29, v30")
        g.e("s_lshl_b32 s49, s41, 8")
        g.e("s_lshl_b32 s50, s40, 5")
        g.e("s_add_u32 s49, s49, s50")
        g.e("v_add_u32 v28, s49, v28")
        g.e("v_lshlrev_b32 v28, 10, v28")
        g.e("v_xor_b32 v30, 4, v29")
        g.e("v_lshl_add_u32 v29, v29, 4, v28")
        g.e("v_lshl_add_u32 v30, v30, 4, v28")
        for i in range(4): g.e(f"v_add_u32 v{VXA + i}, {i * 8192 - i * 1024}, v{29 + (i & 1)}")
        run(xdma_ops(0))
        if not EARLY: code_touch(g, 36, 14, f"L_k1_{T}_end", va=26)
        g.e("s_barrier")
        if IB >= 1: run(xdma_ops(1))
        if IB >= 2: run(wdma_ops(1, 47))
        g.e("v_and_b32 v28, 15, v0")
        g.e("v_bfe_u32 v29, v0, 4, 2")
        g.e("v_lshrrev_b32 v30, 1, v28")
        g.e("v_xor_b32 v29, v29, v30")
        g.e("v_lshlrev_b32 v29, 4, v29")
        g.e("v_lshl_add_u32 v29, v28, 7, v29")
        g.e("s_add_u32 s49, s46, 0x10000")
        g.e(f"v_add_u32 v{VXR[0]}, s49, v29")
        g.e(f"v_xor_b32 v{VXR[0] + 1}, 64, v{VXR[0]}")
        for ks in range(2): g.e(f"v_add_u32 v{VXR[1] + ks}, 0x10000, v{VXR[0] + ks}")
    else:
        if not EARLY: code_touch(g, 36, 255, f"L_k1_{T}_end", va=26)
        srd(g, 24, 16, 17, WS_XNP + SZ_XN, 0)
        ZLT = len(g.lines)
        g.e("s_mov_b32 s53, 0xffff0000")
        g.e(f"s_mov_b32 s52, {f32(C1)}")
        g.e(f"v_mov_b32 v{VC2}, {f32(C2)}")
        g.e("s_lshr_b32 s55, s55, 5")
        g.e("s_lshl_b32 s55, s55, 15")
        g.e("s_add_u32 s55, s55, s46")
        g.e(f"s_add_u32 s62, s55, {WS_XNP}")
        g.e("s_lshr_b32 s49, s40, 2")
        g.e("s_lshl_b32 s49, s49, 14")
        g.e("s_and_b32 s50, s40, 3")
        g.e("s_lshl_b32 s50, s50, 6")
        g.e("s_add_u32 s49, s49, s50")
        g.e("s_add_u32 s49, s49, 0x20000")
        g.e("v_bfe_u32 v28, v0, 2, 2")
        g.e("v_lshlrev_b32 v28, 4, v28")
        g.e("v_and_b32 v30, 3, v0")
        g.e("v_lshl_add_u32 v28, v30, 8, v28")
        g.e("v_bfe_u32 v29, v0, 4, 2")
        g.e("v_lshl_add_u32 v28, v29, 10, v28")
        g.e("v_add_u32 v13, s49, v28")
        g.e("v_lshlrev_b32 v30, 5, v30")
        g.e("v_xor_b32 v13, v13, v30")
        g.e("s_and_b32 s49, s46, 0x3fff")
        g.e("s_lshr_b32 s50, s40, 2")
        g.e("s_lshl_b32 s50, s50, 6")
        g.e("s_add_u32 s49, s49, s50")
        g.e("s_add_u32 s49, s49, 0x20000")
        g.e("v_bfe_u32 v17, v0, 3, 1")
        g.e("v_lshlrev_b32 v17, 14, v17")
        g.e("v_bfe_u32 v28, v0, 2, 1")
        g.e("v_lshl_add_u32 v17, v28, 7, v17")
        g.e("v_and_b32 v28, 0x33, v0")
        g.e("v_lshl_add_u32 v17, v28, 4, v17")
        g.e("v_add_u32 v17, s49, v17")
        g.e("v_lshlrev_b32 v29, 5, v29")
        g.e("v_xor_b32 v17, v17, v29")
        rb_poll_addr(15, 8, 0)
        nol = g.newlabel("noln")
        g.e("s_cmp_ge_u32 s54, 8")
        g.e(f"s_cbranch_scc1 {nol}")
        for r in (9, 10, 11, 12): g.e(f"v_mov_b32 v{r}, 0")
        g.e("v_mov_b32 v16, 0x3f803f80")
        g.wait_vm("ln")
        g.stamp(8)
        g.e("v_mov_b32 v14, 20")
        w0(lambda: dbg_load(g, 14, 14, 18))
        for i in range(16):
            g.e(f"v_dot2c_f32_bf16 v{9 + 2 * (i & 1)}, v16, v{64 + i}")
            g.e(f"v_dot2c_f32_bf16 v{10 + 2 * (i & 1)}, v{64 + i}, v{64 + i}")
        for i in range(4):
            g.e(f"v_lshlrev_b32 v{96 + 2 * i}, 16, v{64 + i}")
            g.e(f"v_and_b32 v{97 + 2 * i}, s53, v{64 + i}")
        for r in (9, 10): g.e(f"v_add_f32 v{r}, v{r}, v{r + 2}")
        for k, qp in enumerate(("[1,0,3,2]", "[2,3,0,1]")):
            for i in range(4 + 6 * k, 10 + 6 * k):
                g.e(f"v_lshlrev_b32 v{96 + 2 * i}, 16, v{64 + i}")
                g.e(f"v_and_b32 v{97 + 2 * i}, s53, v{64 + i}")
            for r in (9, 10): g.e(f"v_add_f32_dpp v{r}, v{r}, v{r} quad_perm:{qp} row_mask:0xf bank_mask:0xf")
        for sw in ("v_permlane32_swap_b32", "v_permlane16_swap_b32"):
            for i in range(2): g.e(f"v_mov_b32 v{11 + i}, v{9 + i}")
            g.e("s_nop 1")
            for i in range(2): g.e(f"{sw} v{11 + i}, v{9 + i}")
            g.e("s_nop 1")
            for i in range(2): g.e(f"v_add_f32 v{9 + i}, v{9 + i}, v{11 + i}")
        ln_params(g, [9], [10], 512)
        for i in range(4):
            for e in range(8): g.e(f"v_fma_f32 v{96 + 8 * i + e}, v{96 + 8 * i + e}, v10, -v9")
            for r in range(4): g.e(f"PK {64 + 4 * i + r},{96 + 8 * i + 2 * r},{97 + 8 * i + 2 * r}")
            g.e(f"DW 13,{64 + 4 * i},{i * 4096}")
        g.e("s_waitcnt lgkmcnt(0)")
        g.e("s_barrier")
        for i in range(4): g.e(f"DR {96 + 4 * i},17,{i * 1024}")
        for i in range(4):
            g.e(f"s_waitcnt lgkmcnt({3 - i})")
            g.e(f"buffer_store_dwordx4 v[{96 + 4 * i}:{99 + 4 * i}], v{VST}, s[24:27], s62 offen offset:{(i & 3) * 1024} sc1")
        g.e("v_mov_b32 v11, 1")
        g.stamp(9)
        g.e("s_waitcnt vmcnt(0)")
        g.e("s_barrier")
        g.stamp(10)
        done = g.newlabel("sdone"); chk = g.newlabel("schk")
        g.e("s_cmp_lg_u32 s40, 0")
        g.e(f"s_cbranch_scc1 {done}")
        nonce_get(g, 14, 14, 2, True)
        rb_line(47, 0)
        g.e("s_lshl_b32 s49, s54, 2")
        g.e("s_add_u32 s47, s47, s49")
        flag_set(g, 10, 47, 59, 100)
        g.e(f"s_branch {chk}")
        g.label(nol)
        g.e("s_cmp_lg_u32 s40, 0")
        g.e(f"s_cbranch_scc1 {done}")
        if SL0: g.e(f"s_sleep {SL0}")
        nonce_get(g, 14, 14, 2, False)
        g.label(chk)
        flag_wait(g, 11, 15, 59, 100, SL1, False)
        g.label(done)
        g.vm = []
        run(wdma_ops(0, 47))
        g.e("s_mov_b32 s62, s55")
        g.e("s_mov_b32 s48, s54")
        g.e("s_lshl_b32 s49, s41, 18")
        g.e("s_lshl_b32 s50, s40, 15")
        g.e("s_add_u32 s54, s49, s50")
        g.e(f"s_add_u32 s54, s54, {WS_XNP}")
        g.e("s_barrier")
        g.stamp(11)
        def xload(m):
            if m % 4 == 0:
                g.e(f"s_add_u32 s63, s60, {m >> 2}")
                g.e("s_and_b32 s63, s63, 3")
                g.e("s_lshl_b32 s63, s63, 12")
                g.e("s_add_u32 s63, s63, s54")
                g.e(f"s_add_u32 s55, s63, 16384")
            for a in range(2):
                x = xreg(a, m)
                g.vmem(f"buffer_load_dwordx4 v[{x}:{x + 3}], v{VST}, s[24:27], s{55 if a else 63} offen offset:{(m % 4) * 1024} sc1", ("x", m))
        for m in range(4): xload(m)
    def lin_touch():
        g.e("s_lshl_b32 s43, s2, 3")
        g.e("s_add_u32 s43, s43, s40")
        g.e(f"v_lshlrev_b32 v26, 3, v{VST}")
        g.e("v_bfe_u32 v27, v0, 4, 2")
        g.e("v_lshl_add_u32 v26, v27, 28, v26")
        g.e("s_lshl_b32 s49, s43, 11")
        srd(g, 36, 10, 11, 4 * MB)
        g.vmem("buffer_load_dword v254, v26, s[36:39], s49 offen", "t")
        srd(g, 36, 12, 13, 4 * MB)
        g.vmem("buffer_load_dword v254, v26, s[36:39], s49 offen", "t")
        srd(g, 36, 14, 15, 512 * 3584)
        g.vmem("buffer_load_dword v254, v26, s[36:39], s49 offen", "t")
    if LT == 1 and not ztype: lin_touch()
    if LT and ztype:
        n0 = len(g.lines); sv = list(g.vm)
        lin_touch()
        blk = g.lines[n0:]; del g.lines[n0:]; g.lines[ZLT:ZLT] = blk; g.vm = sv
        k = g.lines.index(f"s_waitcnt vmcnt({CPF})", ZLT); g.lines[k] = f"s_waitcnt vmcnt({CPF + 3})"
    off, sz = {"K": (WS_K, SZ_KV), "V": (WS_V, SZ_KV), "Z1": (WS_Z1, SZ_Z), "Z2": (WS_Z2, SZ_Z)}[T]
    srd(g, 28, 16, 17, sz, off)
    tr_bases(g, VTE, VTO)
    if T == "Z2":
        for i in range(16): g.e(f"v_mov_b32 v{STAT + i}, 0")
    if T == "Z1":
        g.e("v_bfe_u32 v16, v0, 3, 1")
        g.e("v_lshlrev_b32 v16, 6, v16")
        g.e("v_bfe_u32 v18, v0, 2, 1")
        g.e("v_lshl_add_u32 v16, v18, 7, v16")
        g.e("v_and_b32 v18, 0x33, v0")
        g.e("v_lshl_add_u32 v16, v18, 4, v16")

    def outbase(I, p):
        if T == "Z2" and p == 2: I("s_mov_b32 s48, s42")
        elif ztype: I(f"s_add_u32 s48, s58, {p}")
        else:
            I("\n".join(u for t in pair_ops(p, 48) for u in ((t,) if isinstance(t, str) else t)))
            I("s_add_u32 s48, s48, s58")
        if T in ("K", "V"):
            I("s_lshr_b32 s49, s48, 1")
            I("s_lshl_b32 s49, s49, 19")
            I("s_and_b32 s48, s48, 1")
            I(f"s_lshl_b32 s48, s48, {11 if T == 'K' else 12}")
            I("s_add_u32 s48, s48, s49")
            I("s_lshl_b32 s49, s41, 16")
            I("s_add_u32 s48, s48, s49")
            I("s_lshl_b32 s49, s40, 13")
            I("s_add_u32 s48, s48, s49")
            I("s_add_u32 s50, s48, 4096")
        else:
            I(f"s_lshl_b32 s48, s48, {11 if ktp(p) else 12}")
            I("s_lshl_b32 s49, s41, 3")
            I("s_add_u32 s49, s49, s40")
            I("s_mul_i32 s49, s49, 57344")
            I("s_add_u32 s48, s48, s49")
            I("s_add_u32 s50, s48, 28672")

    ZPARK = 131072
    def epilogue(p, last=False):
        st = p & 1
        ops = []
        def I(s): ops.append(lambda s=s: g.e(s))
        hold = T == "Z2" and p < 2
        if not hold: outbase(I, p)
        frags = []
        if ktp(p):
            for a, mm in ([(0, 0), (1, 0), (0, 1), (1, 1)] if ztype else [(0, 0), (0, 1), (1, 0), (1, 1)]):
                if True:
                    frags.append((areg(st, 2 * mm, a), areg(st, 2 * mm + 1, a), a, mm * 1024))
        else:
            for cb in range(4):
                frags.append((areg(st, cb, 0), areg(st, cb, 1), 0, cb * 1024))
        for (x, y, a, io) in frags:
            if ztype:
                stats = None
                if hold:
                    stats = {}
                    for r in range(4):
                        stats[x + r] = (STAT + 2 * r, STAT + 2 * r + 1)
                        stats[y + r] = (STAT + 8 + 2 * r, STAT + 8 + 2 * r + 1)
                for s in gelu_ops([x, x + 1, x + 2, x + 3, y, y + 1, y + 2, y + 3], TMP, VC2, 52, stats): I(s)
            d = x
            if (p == 0 or (QM and p in (2, 4)) or (QT and not QM and p in (3, 4) and not last)) and not ztype: d = 16 + 4 * frags.index((x, y, a, io))
            I(f"PK {d},{x},{x + 1}"); I(f"PK {d + 1},{x + 2},{x + 3}")
            I(f"PK {d + 2},{y},{y + 1}"); I(f"PK {d + 3},{y + 2},{y + 3}")
            x = d
            if hold:
                if p == 0: ops.append(lambda x=x, io=io: g.lds(f"DW 13,{x},{io}", "park"))
            elif ztype:
                if a == 0: ops.append(lambda: None)
                else:
                    def fix(x1=x, io=io):
                        x0 = x1 - 4
                        for r in range(4): g.e(f"v_mov_b32 v{TMP[r]}, v{x0 + r}")
                        for r in range(4): g.e(f"v_mov_b32_dpp v{x0 + r}, v{x1 + r} row_ror:8 row_mask:0xf bank_mask:0xc")
                        for r in range(4): g.e(f"v_mov_b32_dpp v{x1 + r}, v{TMP[r]} row_ror:8 row_mask:0xf bank_mask:0x3")
                        sr = 24 if T == "Z2" else 28
                        for k, xx in enumerate((x0, x1)):
                            g.vmem(f"buffer_store_dwordx4 v[{xx}:{xx + 3}], v{14 if T == 'Z2' else 16}, s[{sr}:{sr + 3}], s{48 + 2 * k} offen offset:{io} {SC}", "st")
                    ops.append(fix)
            else:
                ops.append(lambda x=x, a=a, io=io: g.vmem(
                    f"buffer_store_dwordx4 v[{x}:{x + 3}], v{VST}, s[28:31], s{50 if a else 48} offen offset:{io} {STF if ztype else STKV}", "st"))
        return ops
    if T == "Z2":
        g.e(f"s_add_u32 s49, s46, {ZPARK}")
        g.e(f"v_add_u32 v13, s49, v{VST}")

    def publish_ops():
        ops = []
        def I(s): ops.append(lambda s=s: g.e(s))
        for sh in (8, 4, 2, 1):
            for i in range(16):
                I(f"v_add_f32_dpp v{STAT + i}, v{STAT + i}, v{STAT + i} row_ror:{sh} row_mask:0xf bank_mask:0xf")
        ops.append(lambda: srd(g, 36, 16, 17, GZ * 16384, WS_ST))
        I("v_bfe_u32 v9, v0, 4, 2")
        I("v_lshlrev_b32 v9, 6, v9")
        I("v_and_b32 v10, 15, v0")
        I("v_lshl_add_u32 v10, v10, 24, v9")
        I("s_lshl_b32 s63, s41, 11")
        I("s_lshl_b32 s49, s40, 8")
        I("s_add_u32 s63, s63, s49")
        I("s_lshl_b32 s49, s42, 14")
        I("s_add_u32 s49, s49, s63")
        for i in range(4):
            ops.append(lambda i=i: g.vmem(f"buffer_store_dwordx4 v[{STAT + 4 * i}:{STAT + 4 * i + 3}], v10, s[36:39], s49 offen offset:{16 * i} sc1", "pub"))
        return ops
    def arrive():
        g.wait_vm("pub")
        g.e("s_barrier")
        def f():
            rb_line(47, 32)
            g.e("s_lshl_b32 s49, s42, 2")
            g.e("s_add_u32 s47, s47, s49")
            flag_set(g, 10, 47, 59, 100)
            rb_poll_addr(15, GZ, 32)
            g.e("v_mov_b32 v14, 0")
        w0(f)
    PB = 16
    def collect():
        w0(lambda: flag_wait(g, 14, 15, 59, 100, SL1, True))
        g.e("s_barrier")
        g.stamp(14)
        g.e("v_and_b32 v9, 31, v0")
        g.e("v_lshlrev_b32 v9, 3, v9")
        for q in range(GZ):
            g.e(f"s_add_u32 s49, s63, {q * 16384}")
            g.vmem(f"buffer_load_dwordx2 v[{PB + 2 * q}:{PB + 2 * q + 1}], v9, s[36:39], s49 offen sc1", "col")

    def pf_next(short):
        if not PF3 or T == "Z2" or (T in ("K", "V") and not short): return
        g.e("s_load_dwordx2 s[32:33], s[0:1], 40")
        g.e("s_load_dwordx2 s[36:37], s[0:1], 80")
        g.e("s_lshl_b32 s43, s41, 3")
        g.e("s_add_u32 s43, s43, s40")
        g.e(f"v_lshlrev_b32 v13, 3, v{VST}")
        g.e("s_waitcnt lgkmcnt(0)")
        g.e(f"s_mov_b32 s34, {4 * MB}")
        g.e("s_mov_b32 s35, 0x20000")
        g.e(f"s_mov_b32 s38, {896 * 1024}")
        g.e("s_mov_b32 s39, 0x20000")
        if T == "Z1":
            g.e("s_lshl_b32 s47, s42, 6")
            g.e("s_add_u32 s43, s43, s47")
            g.e("s_lshl_b32 s43, s43, 13")
            if short:
                g.e(f"s_sub_u32 s47, s43, {64 * 8192}")
                g.e("buffer_load_dword v14, v13, s[36:39], s47 offen")
                g.e(f"s_add_u32 s47, s47, {3 * MB}")
                g.e("buffer_load_dword v14, v13, s[32:35], s47 offen")
        else:
            g.e(f"s_mul_i32 s43, s43, {3 * 8192}")
            if T == "V": g.e(f"s_add_u32 s43, s43, {64 * 3 * 8192}")
            for i in range(3):
                g.e(f"buffer_load_dword v14, v13, s[32:35], s43 offen")
                g.e("s_add_u32 s43, s43, 8192")

    def xn_snap():
        def f():
            if not ztype: nonce_get(g, 13, 13, 2, True)
            g.e("s_and_b32 s43, s2, 7")
            g.e("s_lshl_b32 s43, s43, 13")
            g.e(f"s_add_u32 s43, s43, {53 * 128 + 64}")
            g.e("v_lshrrev_b32 v13, 3, v0")
            g.e("v_lshlrev_b32 v13, 7, v13")
            g.e("v_and_b32 v15, 7, v0")
            g.e("v_lshl_add_u32 v13, v15, 2, v13")
            g.e("v_add_u32 v15, s43, v13")
            flag_load(g, 13, 15, 100)
        w0(f)
    ZF = {}; HELD = {}
    def final(p, short=False):
        g.stamp(12)
        g.e("s_nop 7")
        if T != "Z2":
            if short and QM: run(HELD[p - 1])
            for op in epilogue(p, True): op()
        else:
            PKD, VA, P2 = 224, 10, 240
            for i in range(4): g.e(f"DR {PKD + 4 * i},13,{i * 1024}")
            g.e(f"s_add_u32 s49, s46, {ZPARK}")
            g.e("v_add_u32 v9, s49, v9")
            g.e(f"v_bfe_u32 v{VA}, v0, 4, 2")
            g.e(f"v_lshl_add_u32 v{VA}, v{VA}, 6, s49")
            g.e("s_waitcnt vmcnt(0) lgkmcnt(0)")
            for q in range(1, GZ):
                for i in range(2): g.e(f"v_add_f32 v{PB + i}, v{PB + i}, v{PB + 2 * q + i}")
            ln_params(g, [PB], [PB + 1], 896)
            g.e(f"ds_write_b64 v9, v[{PB}:{PB + 1}]")
            g.e("s_waitcnt lgkmcnt(0)")
            for i in range(4): g.e(f"DR {P2 + 4 * i},{VA},{16 * i}")
            xn_snap()
            g.e("s_waitcnt lgkmcnt(0)")
            MEAN = [P2 + 2 * e for e in range(8)]; VAR = [P2 + 2 * e + 1 for e in range(8)]
            for pp in range(2):
                outbase(g.e, pp)
                for cb in range(4):
                    x = PKD + 4 * cb if pp == 0 else areg(pp & 1, cb, 0)
                    t = 16 + (cb & 1) * 8
                    for r in range(4): g.e(f"v_lshlrev_b32 v{t + 2 * r}, 16, v{x + r}")
                    for r in range(4): g.e(f"v_and_b32 v{t + 2 * r + 1}, s53, v{x + r}")
                    for e in range(8): g.e(f"v_fma_f32 v{t + e}, v{t + e}, v{VAR[e]}, -v{MEAN[e]}")
                    for r in range(4): g.e(f"PK {x + r},{t + 2 * r},{t + 2 * r + 1}")
                    g.e(f"buffer_store_dwordx4 v[{x}:{x + 3}], v{VST}, s[28:31], s48 offen offset:{cb * 1024} {STF}")
            ep = epilogue(p)
            nb = len(ep) - 4 * 61
            quart = [ep[nb + 61 * i:nb + 61 * i + 60] for i in range(4)]
            zst = [ep[nb + 61 * i + 60] for i in range(4)]
            ZQ = QFAST and QTAIL and ZFAST
            run(quart[0]); run(quart[1])
            if ZQ:
                ZF["qprep"]()
                w_voffsets(g, 8192, VW)
            g.e("s_waitcnt vmcnt(0)")
            if ZQ: w0(lambda: flag_wait(g, 13, 15, 59, 100, SL1, True))
            g.e("s_barrier")
            def z2flag():
                g.e("s_add_u32 s47, s42, 14")
                g.e("s_lshl_b32 s47, s47, 7")
                g.e("s_lshl_b32 s49, s41, 2")
                g.e("s_add_u32 s47, s47, s49")
                g.e("s_add_u32 s47, s47, 32")
                flag_set(g, 16, 47, 59, 100)
            w0(z2flag)
            g.stamp(10)
            srd(g, 24, 16, 17, SZ_Z, WS_Z1)
            g.e("v_bfe_u32 v14, v0, 3, 1")
            g.e("v_lshlrev_b32 v14, 6, v14")
            g.e("v_bfe_u32 v18, v0, 2, 1")
            g.e("v_lshl_add_u32 v14, v18, 7, v14")
            g.e("v_and_b32 v18, 0x33, v0")
            g.e("v_lshl_add_u32 v14, v18, 4, v14")
            if ZQ:
                ld = []
                g.vm = []
                for st in range(3):
                    ld += [lambda m=m: ZF["qx"](m) for m in range(4 * st, 4 * st + 4)]
                    for j in range(4 if st < 2 else 0):
                        def wq(st=st, j=j):
                            g.e(f"s_add_u32 s51, s54, {st * 128 * 8192}")
                            g.e(f"s_add_u32 m0, s46, {st * 32768}")
                            g.e("s_nop 0")
                            g.vmem(f"buffer_load_dwordx4 v{VW + j}, s[32:35], s51 offen offset:{j * 1024} lds", ("w", st))
                        ld.append(wq)
                body = quart[2] + quart[3]
                for i, op in enumerate(body):
                    op()
                    if i % 6 == 0 and ld: ld.pop(0)()
                assert not ld
                run(ep[:nb]); run(zst)
                g.e("v_xor_b32 v5, 0x10000, v5")
                g.e("v_xor_b32 v6, 0x10000, v6")
                if not PROF:
                    yo = lambda L, t: len(L) - 1 - max(i for i, u in enumerate(L) if u == t)
                    assert all(yo(g.vm, t) <= yo(FAST_VM, t) for t in set(FAST_VM)), (g.vm, FAST_VM)
                    FAST_VM[:] = g.vm
            else:
                run(ep[:nb]); run(zst[:2]); run(quart[2]); run(zst[2:3]); run(quart[3]); run(zst[3:])
        g.stamp(13)
        diag_mark(g, 2)
        g.stamp_dump(16, 17, 40, 0)
        if MERGE:
            g.e(f"s_add_u32 s58, s42, { {'K': 0, 'V': 0, 'Z1': 11, 'Z2': 14}[T] }")
            g.e("s_lshl_b32 s58, s58, 7")
            g.e("s_lshl_b32 s49, s41, 2")
            g.e("s_add_u32 s58, s58, s49")
            if T == "V": g.e("s_add_u32 s58, s58, 32")
            if QFAST and not ztype and not short:
                FAST_VM[:] = [] if PROF else [("w", t[1]) if isinstance(t, tuple) and t[0] == "wq" else t for t in g.vm]
                g.e("s_branch L_p2f")
            elif T == "Z2" and QFAST and QTAIL and ZFAST: g.e("s_branch L_p2f")
            else: g.e("s_branch L_p2")
        else: g.e("s_endpgm")

    pend = []
    def wread(F, half=None):
        s, f = F >> 5, F & 31
        if s >= NST: return
        if f == 0 and half != 1:
            assert not pend
            g.wait_vm(("w", s), *(["xn"] if s == 3 else []))
            if QFAST and not ztype and s == (3 if XPF else (9 if QT else NST - 1)): w0(lambda: flag_wait(g, 13, 15, 59, 100, SL1, True))
            g.e("s_barrier")
            if ztype and s == 3:
                def nflag():
                    sk = g.newlabel("nonf")
                    g.e("s_cmp_ge_u32 s48, 8")
                    g.e(f"s_cbranch_scc1 {sk}")
                    rb_line(43, 64)
                    g.e("s_lshl_b32 s49, s48, 2")
                    g.e("s_add_u32 s43, s43, s49")
                    flag_set(g, 10, 43, 59, 100)
                    g.label(sk)
                w0(nflag)
            if s >= 2 and s % 2 == 0:
                g.e(f"v_xor_b32 v{VTE}, 0x10000, v{VTE}")
                g.e(f"v_xor_b32 v{VTO}, 0x10000, v{VTO}")
            if s >= 2: pend.extend(wdma_ops(s + 2))
        if pend and f % WSP == 1 % WSP and f >= 1 and half != 0: pend.pop(0)()
        p, m, cb, mp = fmap(s, f)
        r = WR + (F % 8) * 4
        for a in (range(2) if half is None else [half]):
            o = (s & 1) * 32768 + mp * 4096 + a * 512 + (cb >> 1) * 256
            g.lds(f"TR {r + 2 * a},{VTO if cb & 1 else VTE},{o}", ("w", F))

    g.stamp(1)
    ev = {}
    def at(F, fn): ev.setdefault(F, []).append(fn)
    def spread(F0, ops, after=None):
        if after is not None: at(F0, lambda: g.wait_ds(("x", after)))
        for i, op in enumerate(ops): at(F0 + i, op)
    if not ztype:
        xread(0)
        at(0, lambda: g.wait_ds(("x", 0)))
        if CHG:
            xread(1)
            at(0, lambda: g.wait_ds(("x", 1)))
            spread(0, xdma_ops(2)); spread(4, xdma_ops(3)); spread(8, wdma_ops(2, 47))
        elif IB >= 2:
            spread(0, xdma_ops(2)); spread(4, wdma_ops(2, 47))
            at(10, lambda: xread(1)); spread(14, xdma_ops(3), 1)
        elif IB == 1:
            spread(0, wdma_ops(1, 47)); spread(4, xdma_ops(2))
            at(10, lambda: xread(1)); spread(14, xdma_ops(3), 1); spread(18, wdma_ops(2, 47))
        else:
            spread(0, xdma_ops(1)); spread(4, wdma_ops(1, 47)); spread(8, xdma_ops(2))
            at(13, lambda: xread(1)); spread(16, xdma_ops(3), 1); spread(30, wdma_ops(2, 47))
        if CHG:
            at(20, lambda: xread(2)); spread(24, xdma_ops(4), 2)
            at(28, lambda: xread(3)); spread(32, xdma_ops(5), 3)
            at(42, lambda: xread(4)); spread(46, wdma_ops(3, 47), 4)
            at(50, lambda: xread(5)); spread(54, xdma_ops(6), 5)
            at(70, lambda: xread(6)); spread(74, xdma_ops(7), 6)
            at(92, lambda: xread(7)); at(96, lambda: g.wait_ds(("x", 7)))
        else:
            at(22, lambda: xread(2)); spread(26, xdma_ops(4), 2)
            at(34, lambda: xread(3)); spread(38, xdma_ops(5), 3)
            at(44, lambda: xread(4)); spread(48, wdma_ops(3, 47), 4)
            at(56, lambda: xread(5)); spread(64, xdma_ops(6), 5)
            at(80, lambda: xread(6)); spread(84, xdma_ops(7), 6)
            at(99, lambda: xread(7)); at(103, lambda: g.wait_ds(("x", 7)))
    else:
        for m in range(16): at((m >> 2) * 32 if CHG else (8 * m if m < 12 else 96 + 4 * (m - 12)), lambda m=m: g.wait_vm(("x", m)))
        for m, F in zip(range(4, 16), (4, 8, 12, 16, 28, 34, 40, 46, 56, 64, 70, 74)): at(("post", F), lambda m=m: xload(m))
        def xnc(i, st):
            if not st:
                if i == 0:
                    g.e(f"s_add_u32 s49, s46, {ZPARK}")
                    g.e(f"v_add_u32 v14, s49, v{VST}")
                    g.e("v_bfe_u32 v15, v0, 4, 2")
                    g.e("v_lshlrev_b32 v15, 5, v15")
                    g.e("v_xor_b32 v14, v14, v15")
                    g.e("s_cmp_ge_u32 s48, 8")
                    g.e("s_cselect_b32 s49, 0x40000000, 0")
                    g.e(f"v_add_u32 v15, s49, v{VST}")
                g.lds(f"DR 10,14,{i * 1024}", ("xn", i))
            else:
                g.wait_ds(("xn", i))
                g.vmem(f"buffer_store_dwordx4 v[10:13], v15, s[24:27], s62 offen offset:{i * 1024} sc1", "xn")
        for i in range(4):
            at(("post", 19 + 12 * i), lambda i=i: xnc(i, False)); at(("post", 25 + 12 * i), lambda i=i: xnc(i, True))
        if T == "Z2": at(("post", 66), lambda: g.e("v_mov_b32 v13, v14"))
        for F0, s in ((0, 1), (22, 2), (50, 3)):
            for i, op in enumerate(wdma_ops(s, 47)): at(("post", F0 + i), op)
    if PFW and not ztype:
        def pfw():
            g.e("s_bfe_u32 s43, s2, 0x20003")
            g.e("s_lshl_b32 s43, s43, 7")
            g.e("s_lshl_b32 s47, s40, 4")
            g.e("s_add_u32 s43, s43, s47")
            g.e("v_bfe_u32 v14, v0, 2, 4")
            g.e("v_add_u32 v14, s43, v14")
            g.e("v_lshlrev_b32 v14, 13, v14")
            g.e("v_and_b32 v15, 3, v0")
            g.e("v_min_u32 v15, 2, v15")
            g.e("v_lshl_add_u32 v14, v15, 7, v14")
            g.vmem(f"buffer_load_dword v14, v14, s[20:23], s44 offen offset:384", "t")
        at(PFW, pfw)
    if PF:
        def prefetch():
            sr = 36 if T == "Z2" else 32
            srd(g, sr, 8, 9, 4 * MB)
            g.e("s_and_b32 s43, s2, 0xf8")
            g.e("s_add_u32 s43, s43, s40")
            g.e("s_lshl_b32 s43, s43, 14")
            nb = 2 if BAL else 1
            g.e(f"s_and_b32 s47, s2, {6 if BAL else 7}")
            g.e("s_lshl_b32 s47, s47, 8")
            g.e("s_add_u32 s47, s47, s43")
            g.e(f"v_and_b32 v14, {(1 << nb) - 1}, v0")
            g.e("v_lshlrev_b32 v14, 7, v14")
            g.e(f"v_bfe_u32 v15, v0, {nb}, 3")
            g.e("v_lshl_add_u32 v14, v15, 11, v14")
            g.e(f"v_bfe_u32 v15, v0, {nb + 3}, {3 - nb}")
            g.e("v_lshl_add_u32 v15, v15, 28, v14")
            g.vmem(f"buffer_load_dword v14, v15, s[{sr}:{sr + 3}], s47 offen", "t")
            if T in ("K", "V"):
                sk = g.newlabel("nocode")
                g.e("s_cmp_lt_u32 s2, 8")
                g.e(f"s_cbranch_scc0 {sk}")
                code_touch(g, 36, 14, "L_all_end", "L_p2", False, va=26)
                g.label(sk)
            if SPT1 and T != "Z2":
                sk = g.newlabel("nosp")
                g.e(f"s_cmp_lt_u32 s2, {192 if BAL else 224}")
                g.e(f"s_cbranch_scc1 {sk}")
                if BAL:
                    g.e("s_bitcmp1_b32 s2, 0")
                    g.e(f"s_cbranch_scc1 {sk}")
                g.e("s_load_dwordx2 s[36:37], s[0:1], 64")
                g.e(f"s_and_b32 s43, s2, {0x38 if BAL else 0x18}")
                g.e("s_add_u32 s43, s43, s40")
                g.e("s_lshl_b32 s43, s43, 15")
                g.e("s_and_b32 s47, s2, 7")
                g.e("s_lshl_b32 s47, s47, 20")
                g.e("s_add_u32 s43, s43, s47")
                g.e("v_bfe_u32 v13, v0, 3, 3")
                g.e("v_lshlrev_b32 v13, 12, v13")
                g.e("v_and_b32 v15, 7, v0")
                g.e("v_lshl_add_u32 v13, v15, 7, v13")
                g.e("s_waitcnt lgkmcnt(0)")
                g.e(f"s_mov_b32 s38, {8 * MB}")
                g.e("s_mov_b32 s39, 0x20000")
                for i in range(SPT1): g.e(f"buffer_load_dword v14, v13, s[36:39], s43 offen offset:{1024 * i}")
                g.label(sk)
            if PF3 == 1 and T != "Z2":
                sk = g.newlabel("nopf3")
                g.e(f"s_cmp_lt_u32 s42, {SHORT0}")
                g.e(f"s_cbranch_scc1 {sk}")
                pf_next(True)
                g.label(sk)
        at(PF if not ztype else min(PF, 110), prefetch)
    if not ztype: at(42 if XPF else 150, lambda: (g.e("v_mov_b32 v13, 20"), w0(lambda: dbg_load(g, 13, 13, 18))))
    if T != "Z2": at(114 if ztype else (70 if XPF else (2 * NS - 1) * 32 - 12), xn_snap)
    if XPF and not ztype:
        def xn_touch():
            from k2 import role_ops
            sk = g.newlabel("noxt")
            g.e(f"s_cmp_ge_u32 s42, {SHORT0}")
            g.e(f"s_cbranch_scc1 {sk}")
            for t in role_ops(54, 55, 52, 53, 43, 47): g.e(t)
            srd(g, 36, 16, 17, SZ_XN, WS_XN)
            g.e("s_lshr_b32 s47, s40, 2")
            g.e("s_cmp_eq_u32 s47, 0")
            g.e("s_cselect_b32 s55, s52, s53")
            g.e("s_lshl_b32 s55, s55, 17")
            g.e("s_and_b32 s43, s40, 3")
            g.e("s_lshl_b32 s43, s43, 15")
            g.e("s_add_u32 s55, s55, s43")
            g.e("s_lshr_b32 s43, s54, 3")
            g.e("s_lshl_b32 s43, s43, 13")
            g.e("s_add_u32 s55, s55, s43")
            g.e(f"v_lshlrev_b32 v14, 3, v{VST}")
            g.e("buffer_load_dword v14, v14, s[36:39], s55 offen")
            g.label(sk)
        at(XPF, xn_touch)
    if QFAST and T != "Z1":
        from k2 import role_ops
        XA, XB = (52, 53) if not ztype else (56, 57)
        def qprep():
            g.e("s_load_dwordx2 s[6:7], s[0:1], 64")
            for t in role_ops(54, 55, XA, XB, 43, 47): g.e(t)
            srd(g, 32, 8, 9, 512 * 8192)
            srd(g, 36, 16, 17, SZ_XN, WS_XN)
            g.e("s_lshl_b32 s54, s54, 8")
            g.e("s_and_b32 s43, s40, 3")
            g.e("s_lshl_b32 s47, s43, 18")
            g.e("s_add_u32 s54, s54, s47")
            g.e("s_lshr_b32 s47, s40, 2")
            g.e("s_cmp_eq_u32 s47, 0")
            g.e(f"s_cselect_b32 s55, s{XA}, s{XB}")
            g.e("s_lshl_b32 s47, s47, 7")
            g.e("s_add_u32 s54, s54, s47")
            g.e("s_lshl_b32 s55, s55, 17")
            g.e("s_lshl_b32 s43, s43, 15")
            g.e("s_add_u32 s55, s55, s43")
            g.e("s_waitcnt lgkmcnt(0)")
            g.ds = []
        if not ztype: at(258 if QT else 270, qprep)
        def qx(m):
            if m % 4 == 0:
                g.e(f"s_lshr_b32 s{XA}, s2, 3" if QROT else f"s_mov_b32 s{XA}, 0")
                g.e(f"s_add_u32 s{XA}, s{XA}, {m >> 2}")
                g.e(f"s_and_b32 s{XA}, s{XA}, 3")
                g.e(f"s_lshl_b32 s{XA}, s{XA}, 12")
                g.e(f"s_add_u32 s{XA}, s{XA}, s55")
                g.e(f"s_add_u32 s{XB}, s{XA}, 16384")
            for a in range(2):
                x = xreg(a, m)
                g.vmem(f"buffer_load_dwordx4 v[{x}:{x + 3}], v{VST}, s[36:39], s{XA + a} offen offset:{(m % 4) * 1024} {SC}", ("x", m))
        ZF.update(qprep=qprep, qx=qx)
        if ztype: pass
        elif QT:
            for m in range(12): at(("post", 9 * 32 + 2 + (8 * m if m < 8 else 64 + 4 * (m - 8))), lambda m=m: qx(m))
        else:
            for m in range(8): at(("post", (NST - 1) * 32 + 1 + 3 * m), lambda m=m: qx(m))
    def place(ops, F0, n):
        for i, op in enumerate(ops): at(("post", F0 + i * n // len(ops)), op)
    for p in range(NP - 1):
        ops = epilogue(p)
        F0 = (2 * p + 2) * 32 + 3
        if not ztype:
            h = len(ops) - 20
            fr = [ops[h + 5 * i:h + 5 * i + 5] for i in range(4)]
            if QM:
                U = (p >> 1) * 128
                if p == 4: place(ops, U + 116, 12)
                elif p & 1: place(ops, U + 131, 13)
                else:
                    place([o for f4 in fr for o in f4[:4]], U + 116, 11)
                    HELD[p] = ops[:h] + [f4[4] for f4 in fr]
                    place(ops[:h], U + 150, 3)
                    for f4, F in zip(fr, (156, 180, 204, 228)): at(("post", U + F), f4[4])
            elif p == 0:
                place(ops[:h] + [o for f4 in fr for o in f4[:4]], 3 * 32 + 20, 11)
                for f4, F in zip(fr, (127, 138, 149, 160)): at(("post", F), f4[4])
            elif QT and p == 3:
                place(ops[:h] + [o for f4 in fr for o in f4[:4]], 8 * 32 + 3, 11)
                for f4, F in zip(fr, (272, 296, 320, 344)): at(("post", F), f4[4])
            elif QT and p == 4:
                place(ops, 11 * 32 + 20, 12)
            else:
                pos = (166, 174, 182, 189) if p == 1 else [F0 + 5 + 16 * i for i in range(4)]
                place(ops[:h], pos[0] - 4, 3)
                for f4, F in zip(fr, pos): place(f4, F - 1, 2)
        elif p == 0: place(ops, 3 * 32 + 20, 11)
        elif T == "Z2" and p == 1:
            place(ops + [lambda: g.e("s_nop 1")] + publish_ops(), F0, ZPUB)
            at(("post", F0 + ZPUB + ZA), arrive)
            at(("post", F0 + ZPUB + ZA + ZP), lambda: w0(lambda: flag_load(g, 14, 15, 100)))
            at(("post", min(191, F0 + ZPUB + ZA + ZP + ZC)), collect)
        else: place(ops, F0, 60)
    for F in range(8 if CHG else D): wread(F)
    rq = []
    for s in range(NST):
        if s == 1: diag_mark(g, 1)
        if s < 9 and PROF != 6: g.stamp(2 + s)
        if s == 2 * NS and NS < NP:
            cont = g.newlabel("cont")
            g.e(f"s_cmp_lt_u32 s42, {SHORT0}")
            g.e(f"s_cbranch_scc1 {cont}")
            sv = (list(g.vm), list(g.ds))
            final(NS - 1, True)
            g.vm, g.ds = sv
            g.label(cont)
        for f in range(32):
            F = s * 32 + f
            if PROF == 6 and F in PFL: g.stamp(2 + PFL.index(F))
            for fn in ev.pop(F, []): fn()
            post = ev.pop(("post", F), [])
            for h in range(2):
                if CHG:
                    i = (f & 3) * 2 + h
                    Fm, a = (F & ~3) + (i & 3), i >> 2
                else: Fm, a = F, h
                p, m, cb, mp = fmap(s, Fm & 31)
                if a == 0: g.wait_ds(("w", Fm))
                r = WR + (Fm % 8) * 4
                op = "MZ" if m == 0 else "M"
                if ktp(p): g.e(f"{op} {areg(p & 1, cb, a)},{r},{xreg(a, m)}")
                else: g.e(f"{op} {areg(p & 1, cb, a)},{xreg(a, m)},{r}")
                if CHG:
                    if rq: rq.pop(0)()
                    if a == 1: rq += [lambda Fm=Fm: wread(Fm + 8, 0), lambda Fm=Fm: wread(Fm + 8, 1)]
                else: wread(F + D, h)
                n = len(post) // 2 if h == 0 else len(post)
                for _ in range(n): post.pop(0)()
    assert not ev, ev.keys()
    final(NP - 1)
    g.label(f"L_k1_{T}_end")

def gen_k1(g):
    g.e(".p2align 8")
    g.e(f".type {KNAME},@function")
    g.label(KNAME)
    g.e("s_cmp_ge_u32 s2, 256")
    g.e("s_cbranch_scc1 L_k1_end")
    g.stamp(0)
    diag_mark(g, 0)
    if PROF: g.e("s_memrealtime s[94:95]")
    g.e("s_load_dwordx4 s[4:7], s[0:1], 0")
    g.e("s_load_dwordx4 s[8:11], s[0:1], 16")
    g.e("s_load_dwordx2 s[12:13], s[0:1], 32")
    g.e("s_load_dwordx2 s[14:15], s[0:1], 56")
    g.e("s_load_dwordx2 s[18:19], s[0:1], 96")
    g.e("s_load_dwordx2 s[16:17], s[0:1], 104")
    g.e("v_lshrrev_b32 v1, 6, v0")
    g.e("s_lshr_b32 s49, s2, 3")
    g.e("s_and_b32 s41, s2, 1")
    g.e("v_readfirstlane_b32 s40, v1")
    g.e("s_lshl_b32 s41, s41, 2")
    g.e("s_and_b32 s50, s49, 3")
    g.e("s_add_u32 s41, s41, s50")
    g.e("s_and_b32 s3, s2, 6")
    g.e("s_lshl_b32 s3, s3, 2")
    g.e("s_lshr_b32 s49, s49, 2")
    g.e("s_add_u32 s3, s3, s49")
    if BAL:
        g.e("s_and_b32 s50, s2, 1")
        g.e("s_or_b32 s51, s49, 1")
        g.e("s_sub_u32 s50, s51, s50")
        g.e("s_bfe_u32 s51, s2, 0x30003")
        g.e(f"s_cmp_ge_u32 s49, {4 if ZODD else 6}")
        g.e("s_cselect_b32 s49, s50, s49")
        g.e("s_cselect_b32 s41, s51, s41")
    if MIX:
        cst = [sum(v << (8 * i) for i, v in enumerate(row)) for row in GMAP]
        g.e("s_bitcmp1_b32 s2, 1")
        g.e(f"s_cselect_b32 s44, {cst[1] & 0xffffffff}, {cst[0] & 0xffffffff}") if False else None
        for k, (lo, hi) in enumerate(((44, 45), (46, 47))):
            g.e(f"s_mov_b32 s{lo}, {cst[2 * k] & 0xffffffff}")
            g.e(f"s_mov_b32 s{hi}, {cst[2 * k] >> 32}")
            g.e(f"s_cmov_b32 s{lo}, {cst[2 * k + 1] & 0xffffffff}")
            g.e(f"s_cmov_b32 s{hi}, {cst[2 * k + 1] >> 32}")
        g.e("s_bitcmp1_b32 s2, 2")
        g.e("s_cselect_b64 s[44:45], s[46:47], s[44:45]")
        g.e("s_lshl_b32 s49, s49, 3")
        g.e("s_lshr_b64 s[44:45], s[44:45], s49")
        g.e("s_and_b32 s3, s44, 31")
    if not EARLY: entry_wait(g, True)
    g.e(f"s_cmp_lt_u32 s3, {GKV}")
    g.e("s_cbranch_scc1 L_k1_K")
    g.e(f"s_cmp_lt_u32 s3, {2 * GKV}")
    g.e("s_cbranch_scc1 L_k1_V")
    g.e(f"s_cmp_lt_u32 s3, {2 * GKV + 3}")
    g.e("s_cbranch_scc1 L_k1_Z1")
    g.e("s_branch L_k1_Z2")
    g.label("L_k1_end")
    g.e("s_endpgm")
    for T in ("K", "V", "Z1", "Z2"):
        gen_type(g, T)
```

```python
from asmlib import *
import math

XR = 128
ACC = [64, 96]
WR = 32
D = 6
C2 = -2.0 * math.sqrt(2.0 / math.pi) * math.log2(math.e)
C1 = C2 * 0.044715
NPKV = int(os.environ.get('NPKV', '6'))
NPZ = int(os.environ.get('NPZ', '3'))
GKV = -(-64 // NPKV); GZ = 7
assert NPKV == 6 and NPZ == 3
GMAP = [[0, 1, 2, 25, 3, 4, 26, 10], [11, 12, 13, 27, 14, 15, 28, 21], [5, 6, 29, 7, 8, 30, 9, 23], [16, 17, 31, 18, 22, 19, 20, 24]]
ZODD = int(os.environ.get('ZODD', '0'))
if ZODD: GMAP = [[0, 1, 2, 3, 25, 4, 26, 10], [11, 12, 13, 14, 27, 15, 28, 21], [5, 6, 7, 8, 29, 9, 30, 23], [16, 17, 18, 19, 31, 20, 22, 24]]
assert sorted(sum(GMAP, [])) == list(range(32))
NTW = os.environ.get('NTW', '')
PF = int(os.environ.get('PF', '97'))
CLU = int(os.environ.get('CLU', '1'))
PFW = int(os.environ.get('PFW', '0'))
NTP = os.environ.get('NTP', '')
PF3 = int(os.environ.get('PF3', '0'))
ZPUB = int(os.environ.get('ZPUB', '20'))
MIX = int(os.environ.get('MIX', '1'))
PFWS = int(os.environ.get('PFWS', '16'))
ROT = int(os.environ.get('ROT', '3'))
SL0 = int(os.environ.get('SL0', '0')); SL1 = int(os.environ.get('SL1', '4'))
LT = int(os.environ.get('LT', '0'))
PFL = eval(os.environ.get('PFL', '[0,2,4,8,10,11,14,18,22,23]'))
PROT = int(os.environ.get('PROT', '0'))
ZA = int(os.environ.get('ZA', '10')); ZP = int(os.environ.get('ZP', '12')); ZC = int(os.environ.get('ZC', '12'))
STKV = os.environ.get('STKV', 'sc1')
QFAST = int(os.environ.get('QFAST', '1')) and MERGE
FAST_VM = []
SPT1 = int(os.environ.get('SPT1', '1'))
IB = int(os.environ.get('IB', '2'))
WSP = int(os.environ.get('WSP', '6'))
XPF = int(os.environ.get('XPF', '0'))
QTAIL = int(os.environ.get('QTAIL', '1'))
CHG = int(os.environ.get('CHG', '1'))
ZFAST = int(os.environ.get('ZFAST', '0'))
QMID = int(os.environ.get('QMID', '0'))
QROT = int(os.environ.get('QROT', '0'))
EARLY = int(os.environ.get('EARLY', '1'))
TOP = int(os.environ.get('TOP', '0'))
NOB = int(os.environ.get('NOB', '0'))
STF = os.environ.get('STF', 'sc1')

def xreg(a, m): return XR + (m * 2 + a) * 4
def areg(st, cb, a): return ACC[st] + (cb * 2 + a) * 4

def w_voffsets(g, rowstride, vbase):
    g.e("v_bfe_u32 v28, v0, 5, 1")
    g.e("v_bfe_u32 v29, v0, 2, 2")
    g.e("v_lshl_add_u32 v28, v28, 2, v29")
    g.e(f"v_mul_u32_u24 v28, {rowstride}, v28")
    g.e("v_bfe_u32 v29, v0, 4, 1")
    g.e("v_lshl_add_u32 v28, v29, 6, v28")
    g.e("v_and_b32 v29, 3, v0")
    g.e("v_xor_b32 v30, 2, v29")
    g.e("v_lshlrev_b32 v29, 4, v29")
    g.e("v_lshlrev_b32 v30, 4, v30")
    for j in range(4):
        g.e(f"v_add_u32 v31, {j * 8 * rowstride - j * 1024}, v28")
        g.e(f"v_add_u32 v{vbase + j}, v31, v{29 + (j & 1)}")

def tr_bases(g, ve, vo):
    g.e("v_bfe_u32 v28, v0, 4, 2")
    g.e("v_lshlrev_b32 v29, 10, v28")
    g.e("v_bfe_u32 v30, v0, 2, 2")
    g.e("v_lshl_add_u32 v29, v30, 6, v29")
    g.e("v_and_b32 v30, 3, v0")
    g.e("v_lshl_add_u32 v29, v30, 3, v29")
    g.e("v_and_b32 v28, 1, v28")
    g.e(f"v_lshl_add_u32 v{ve}, v28, 5, v29")
    g.e(f"v_xor_b32 v{vo}, 32, v{ve}")

def gelu_ops(regs, T, vc2, sc1, stats=None):
    out = []
    n = len(T)
    for i in range(0, len(regs), n):
        grp = list(zip(regs[i:i + n], T))
        out += [f"v_mul_f32 v{t}, v{x}, v{x}" for x, t in grp]
        out += [f"v_fma_f32 v{t}, v{t}, s{sc1}, v{vc2}" for x, t in grp]
        out += [f"v_mul_f32 v{t}, v{t}, v{x}" for x, t in grp]
        out += [f"v_exp_f32 v{t}, v{t}" for x, t in grp]
        out += [f"v_add_f32 v{t}, 1.0, v{t}" for x, t in grp]
        out += [f"v_rcp_f32 v{t}, v{t}" for x, t in grp]
        out += [f"v_mul_f32 v{x}, v{x}, v{t}" for x, t in grp]
        if stats:
            out += [f"v_add_f32 v{stats[x][0]}, v{stats[x][0]}, v{x}" for x, t in grp]
            out += [f"v_fmac_f32 v{stats[x][1]}, v{x}, v{x}" for x, t in grp]
    return out

def ln_params(g, MEAN, VAR, n):
    def rbf(rs):
        for r in rs: g.e(f"PK {r},{r},{r}")
        for r in rs: g.e(f"v_and_b32 v{r}, 0xffff0000, v{r}")
    for m, v in zip(MEAN, VAR):
        g.e(f"v_mul_f32 v{m}, {f32(1 / n)}, v{m}")
        g.e(f"v_mul_f32 v{v}, {f32(1 / n)}, v{v}")
    for m, v in zip(MEAN, VAR): g.e(f"v_fma_f32 v{v}, -v{m}, v{m}, v{v}")
    for v in VAR: g.e(f"v_max_f32 v{v}, 0, v{v}")
    rbf(list(MEAN) + list(VAR))
    for v in VAR: g.e(f"v_add_f32 v{v}, {f32(1e-5)}, v{v}")
    rbf(VAR)
    for v in VAR: g.e(f"v_sqrt_f32 v{v}, v{v}")
    g.e("s_nop 0")
    rbf(VAR)
    for v in VAR: g.e(f"v_rcp_f32 v{v}, v{v}")
    g.e("s_nop 0")
    for m, v in zip(MEAN, VAR): g.e(f"v_mul_f32 v{m}, v{m}, v{v}")

def entry_wait(g, nonce):
    g.e("s_waitcnt lgkmcnt(0)")
    g.e(f"s_add_u32 s100, s16, {WS_FL}")
    g.e("s_addc_u32 s101, s17, 0")
    if nonce:
        sk = g.newlabel("nonce")
        g.e("s_or_b32 s49, s2, s40")
        g.e(f"s_cbranch_scc1 {sk}")
        g.e("s_memrealtime s[50:51]")
        g.e("v_mov_b32 v24, 20")
        g.e("s_waitcnt lgkmcnt(0)")
        g.e("s_or_b32 s49, s50, 1")
        g.e("v_mov_b32 v25, s49")
        g.e("s_mov_b64 exec, 1")
        g.e("global_store_dword v24, v25, s[18:19] sc1")
        g.e("s_mov_b64 exec, -1")
        g.label(sk)

def gen_type(g, T):
    ktp = lambda p: T in ("K", "Z1") or (T == "Z2" and p == 2)
    ztype = T in ("Z1", "Z2")
    rowstride = 3584 if ztype else 8192
    NP = NPZ if ztype else NPKV
    NTOT = 14 if ztype else 64
    NG = {"Z1": 3, "Z2": GZ}.get(T, GKV)
    NS = {"Z1": 2, "Z2": 3}.get(T, NTOT - (NG - 1) * NP)
    SHORT0 = {"Z1": 1}.get(T, NG - 1)
    VW = 1
    VTE, VTO = 5, 6
    VST = 7
    VC2 = 8
    VXA = 20
    VXR = (9, 11)
    TMP = [9, 10, 11, 12]
    STAT = 16
    g.vm = []; g.ds = []
    g.label(f"L_k1_{T}")
    g0 = {"K": 0, "V": GKV, "Z1": 2 * GKV, "Z2": 2 * GKV + 3}[T]
    if EARLY:
        assert GMAP[0][0] < GKV
        if PROF == 6: g.stamp(2)
        if TOP != 1: code_touch(g, 36, 255 if ztype else 14, f"L_k1_{T}_end", va=26)
        w_voffsets(g, rowstride, VW)
        if PROF == 6: g.stamp(3)
        entry_wait(g, T == "K")
        if PROF == 6: g.stamp(4)
    g.e(f"s_sub_u32 s42, s3, {g0}")
    g.e("v_and_b32 v28, 63, v0")
    g.e(f"v_lshlrev_b32 v{VST}, 4, v28")
    if ztype:
        srd(g, 24, 4, 5, 2 * MB)
        g.e(f"s_sub_u32 s54, s3, {2 * GKV}")
        g.e("s_and_b32 s49, s54, 7")
        g.e("s_lshl_b32 s49, s49, 5")
        g.e("s_lshl_b32 s50, s41, 8")
        g.e("s_add_u32 s49, s49, s50")
        g.e("s_lshl_b32 s50, s40, 2")
        g.e("s_add_u32 s55, s49, s50")
        g.e("s_lshl_b32 s49, s55, 10")
        g.e("v_and_b32 v28, 3, v0")
        g.e("v_lshlrev_b32 v30, 4, v28")
        g.e("v_bfe_u32 v29, v0, 2, 2")
        g.e("v_lshl_add_u32 v30, v29, 10, v30")
        g.e("v_bfe_u32 v29, v0, 4, 2")
        g.e("v_lshl_add_u32 v30, v29, 6, v30")
        for i in range(4): g.vmem(f"buffer_load_dwordx4 v[{64 + 4 * i}:{67 + 4 * i}], v30, s[24:27], s49 offen offset:{256 * i}", "ln")
    else:
        srd(g, 24, 6, 7, 2 * MB)
    if T == "K": srd(g, 20, 10, 11, 512 * 8192)
    if T == "V": srd(g, 20, 12, 13, 512 * 8192)
    if ztype: srd(g, 20, 14, 15, 512 * 3584)
    if T == "Z1":
        g.e("s_lshl_b32 s58, s42, 1")
        g.e("s_add_u32 s58, s58, 8")
        g.e("s_cmp_eq_u32 s42, 0")
        g.e("s_cselect_b32 s58, 7, s58")
    elif T == "Z2": g.e("s_lshl_b32 s58, s42, 1")
    else: g.e(f"s_mul_i32 s58, s42, {NP}")
    colbase = 1792 if T == "Z2" else 0
    g.e("s_lshl_b32 s44, s58, 7")
    if colbase: g.e(f"s_add_u32 s44, s44, {colbase}")
    if ztype: g.e(f"s_mov_b32 s45, {colbase + (NTOT - 1) * 128}")
    else:
        g.e(f"s_cmp_lt_u32 s42, {SHORT0}")
        g.e(f"s_cselect_b32 s45, {NP}, {NS}")
        g.e("s_bfe_u32 s63, s2, 0x20003" if PROT else "s_mov_b32 s63, 0")
        g.e("s_lshl_b32 s63, s63, 1")
        g.e("s_cmp_ge_u32 s63, s45")
        g.e("s_cselect_b32 s49, s45, 0")
        g.e("s_sub_u32 s63, s63, s49")
    def pair_ops(p, d):
        return [f"s_add_u32 s{d}, s63, {p % 4 if p >= NS else p}" if False else f"s_add_u32 s{d}, s63, {p}",
                (f"s_cmp_ge_u32 s{d}, s45", "s_cselect_b32 s62, s45, 0"), f"s_sub_u32 s{d}, s{d}, s62"]
    g.e("s_lshl_b32 s46, s40, 12")
    g.e("s_bfe_u32 s60, s2, 0x20005" if (ROT and (not ztype or ROT > 2)) else "s_mov_b32 s60, 0")
    if ROT >= 2 and (not ztype or ROT > 2):
        g.e("s_bfe_u32 s49, s2, 0x20003")
        g.e("s_add_u32 s60, s60, s49")
        g.e(f"s_and_b32 s60, s60, {os.environ.get('RM', '3')}")
        if os.environ.get('RSH'): g.e("s_lshl_b32 s60, s60, 1")
    g.e("s_lshl_b32 s49, s60, 2")
    g.e("s_add_u32 s49, s49, s40")
    g.e("s_and_b32 s50, s49, 15")
    g.e(f"s_mul_i32 s56, s50, {32 * rowstride}")
    g.e("s_xor_b32 s50, s50, 8")
    g.e(f"s_mul_i32 s61, s50, {32 * rowstride}")
    g.e("s_and_b32 s57, s40, 3")
    g.e(f"s_mul_i32 s57, s57, {32 * rowstride}")
    g.e("s_lshr_b32 s49, s40, 2")
    g.e("s_lshl_b32 s49, s49, 7")
    g.e("s_add_u32 s57, s57, s49")
    if not ztype:
        g.e("s_lshl_b32 s49, s63, 7")
        g.e("s_add_u32 s57, s57, s49")
    g.e("s_add_u32 s57, s57, s44")
    NST = 2 * NP
    NQ = 4
    QT = QTAIL and QFAST and not ztype
    QM = QMID and QT and CHG
    def fmap(s, f):
        if CHG:
            G, k = f >> 2, f & 3
            if s < NQ or (QT and s >= 8) or QM: return 2 * (s >> 2) + (G >> 2), 4 * (s & 3) + k, G & 3, (G >> 2) * 4 + k
            return s >> 1, (s & 1) * 8 + (G >> 2) * 4 + k, G & 3, (G >> 2) * 4 + k
        cb = f & 3
        if s < NQ:
            p, ks = (f >> 4, (f >> 2) & 3) if s == 3 else ((f >> 2) & 1, f >> 3)
            return p, 4 * s + ks, cb, p * 4 + ks
        if QT and s >= 8:
            p, ks = (f >> 4, (f >> 2) & 3) if s in (8, 11) else ((f >> 2) & 1, f >> 3)
            return 4 + p, 4 * (s - 8) + ks, cb, p * 4 + ks
        return s >> 1, (s & 1) * 8 + (f >> 2), cb, f >> 2
    XPOS = [3, 4, 3, 4, 3, 4, 4, 4]
    def xdma_ops(q):
        ops = []
        for i in range(4):
            def op(i=i):
                if i == 0:
                    g.e(f"s_add_u32 s43, s60, {q >> 1}")
                    g.e("s_and_b32 s43, s43, 3")
                    g.e("s_lshl_b32 s43, s43, 8")
                    if q & 1: g.e("s_add_u32 s43, s43, 128")
                g.e(f"s_add_u32 m0, s46, {XPOS[q] * 32768}")
                g.e("s_nop 0")
                g.vmem(f"buffer_load_dwordx4 v{VXA + i}, s[24:27], s43 offen offset:{i * 1024} lds", ("x", q))
            ops.append(op)
        return ops
    def xread(q):
        g.wait_vm(("x", q))
        for ks in range(2):
            for a in range(2):
                g.lds(f"DR {xreg(a, 2 * q + ks)},{VXR[(XPOS[q] >> 1) - 1] + ks},{(XPOS[q] & 1) * 32768 + a * 2048}", ("x", q))
    def wdma_ops(s, sr=51):
        if s >= NST and QFAST and not ztype:
            def op(j):
                if j == 0:
                    g.e(f"s_lshr_b32 s{sr}, s2, 3" if QROT else f"s_mov_b32 s{sr}, 0")
                    g.e(f"s_add_u32 s{sr}, s{sr}, {s - NST}")
                    g.e(f"s_and_b32 s{sr}, s{sr}, 3")
                    g.e(f"s_lshl_b32 s{sr}, s{sr}, 20")
                    g.e(f"s_add_u32 s{sr}, s{sr}, s54")
                g.e(f"s_add_u32 m0, s46, {(s % 4) * 32768}")
                g.e("s_nop 0")
                g.vmem(f"buffer_load_dwordx4 v{VW + j}, s[32:35], s{sr} offen offset:{j * 1024} lds", ("wq", s - NST))
            return [lambda j=j: op(j) for j in range(4)]
        if s >= NST: return []
        ops = []
        for j in range(4):
            def op(j=j):
                if j == 0:
                    if s < NQ or (QT and s >= 8) or QM:
                        g.e(f"s_add_u32 s{sr}, s60, {s & 3}")
                        g.e(f"s_and_b32 s{sr}, s{sr}, 3")
                        g.e(f"s_mul_i32 s{sr}, s{sr}, {128 * rowstride}")
                        g.e(f"s_add_u32 s{sr}, s{sr}, s57")
                        if 4 <= s < 8: g.e(f"s_add_u32 s{sr}, s{sr}, 256")
                        if s >= 8:
                            g.e("s_cmp_gt_u32 s45, 4")
                            g.e("s_cselect_b32 s62, 512, 0")
                            g.e(f"s_add_u32 s{sr}, s{sr}, s62")
                    else:
                        p, kh = s >> 1, s & 1
                        if T == "Z2" and p == 2: g.e(f"s_lshl_b32 s{sr}, s42, 7")
                        elif ztype:
                            g.e(f"s_add_u32 s{sr}, s44, {p * 128}")
                            g.e(f"s_min_u32 s{sr}, s{sr}, s45")
                        else:
                            for t in pair_ops(p, sr):
                                for u in ((t,) if isinstance(t, str) else t): g.e(u)
                            g.e(f"s_lshl_b32 s{sr}, s{sr}, 7")
                            g.e(f"s_add_u32 s{sr}, s{sr}, s44")
                        g.e(f"s_add_u32 s{sr}, s{sr}, s{61 if kh else 56}")
                g.e(f"s_add_u32 m0, s46, {(s % 4) * 32768}")
                g.e("s_nop 0")
                g.vmem(f"buffer_load_dwordx4 v{VW + j}, s[20:23], s{sr} offen offset:{j * 1024} {NTW} lds", ("w", s))
            ops.append(op)
        return ops
    def run(ops):
        for op in ops: op()
    def w0(fn):
        sk = g.newlabel("w0")
        g.e("s_cmp_lg_u32 s40, 0"); g.e(f"s_cbranch_scc1 {sk}")
        fn(); g.label(sk)
    def rb_line(dst, extra):
        g.e(f"s_add_u32 s{dst}, s41, 53")
        g.e(f"s_lshl_b32 s{dst}, s{dst}, 7")
        if extra: g.e(f"s_add_u32 s{dst}, s{dst}, {extra}")
    def rb_poll_addr(v, n, extra):
        rb_line(49, extra)
        g.e("s_and_b32 s50, s2, 7")
        g.e("s_lshl_b32 s50, s50, 13")
        g.e("s_add_u32 s49, s49, s50")
        g.e(f"v_min_u32 v{v}, {n - 1}, v0")
        g.e(f"v_lshl_add_u32 v{v}, v{v}, 2, s49")

    if not EARLY: w_voffsets(g, rowstride, VW)
    if not ztype:
        if PROF == 6: g.stamp(5)
        run(wdma_ops(0, 47))
        g.e("v_bfe_u32 v28, v0, 3, 3")
        g.e("v_and_b32 v29, 7, v0")
        g.e("v_lshrrev_b32 v30, 1, v28")
        g.e("v_xor_b32 v29, v29, v30")
        g.e("s_lshl_b32 s49, s41, 8")
        g.e("s_lshl_b32 s50, s40, 5")
        g.e("s_add_u32 s49, s49, s50")
        g.e("v_add_u32 v28, s49, v28")
        g.e("v_lshlrev_b32 v28, 10, v28")
        g.e("v_xor_b32 v30, 4, v29")
        g.e("v_lshl_add_u32 v29, v29, 4, v28")
        g.e("v_lshl_add_u32 v30, v30, 4, v28")
        for i in range(4): g.e(f"v_add_u32 v{VXA + i}, {i * 8192 - i * 1024}, v{29 + (i & 1)}")
        run(xdma_ops(0))
        if NOB: run(xdma_ops(1))
        if PROF == 6: g.stamp(6)
        if not EARLY: code_touch(g, 36, 14, f"L_k1_{T}_end", va=26)
        g.e("s_barrier")
        if IB >= 1 and not NOB: run(xdma_ops(1))
        if IB >= 2: run(wdma_ops(1, 47))
        g.e("v_and_b32 v28, 15, v0")
        g.e("v_bfe_u32 v29, v0, 4, 2")
        g.e("v_lshrrev_b32 v30, 1, v28")
        g.e("v_xor_b32 v29, v29, v30")
        g.e("v_lshlrev_b32 v29, 4, v29")
        g.e("v_lshl_add_u32 v29, v28, 7, v29")
        g.e("s_add_u32 s49, s46, 0x10000")
        g.e(f"v_add_u32 v{VXR[0]}, s49, v29")
        g.e(f"v_xor_b32 v{VXR[0] + 1}, 64, v{VXR[0]}")
        for ks in range(2): g.e(f"v_add_u32 v{VXR[1] + ks}, 0x10000, v{VXR[0] + ks}")
    else:
        if not EARLY: code_touch(g, 36, 255, f"L_k1_{T}_end", va=26)
        srd(g, 24, 16, 17, WS_XNP + SZ_XN, 0)
        ZLT = len(g.lines)
        g.e("s_mov_b32 s53, 0xffff0000")
        g.e(f"s_mov_b32 s52, {f32(C1)}")
        g.e(f"v_mov_b32 v{VC2}, {f32(C2)}")
        g.e("s_lshr_b32 s55, s55, 5")
        g.e("s_lshl_b32 s55, s55, 15")
        g.e("s_add_u32 s55, s55, s46")
        g.e(f"s_add_u32 s62, s55, {WS_XNP}")
        g.e("s_lshr_b32 s49, s40, 2")
        g.e("s_lshl_b32 s49, s49, 14")
        g.e("s_and_b32 s50, s40, 3")
        g.e("s_lshl_b32 s50, s50, 6")
        g.e("s_add_u32 s49, s49, s50")
        g.e("s_add_u32 s49, s49, 0x20000")
        g.e("v_bfe_u32 v28, v0, 2, 2")
        g.e("v_lshlrev_b32 v28, 4, v28")
        g.e("v_and_b32 v30, 3, v0")
        g.e("v_lshl_add_u32 v28, v30, 8, v28")
        g.e("v_bfe_u32 v29, v0, 4, 2")
        g.e("v_lshl_add_u32 v28, v29, 10, v28")
        g.e("v_add_u32 v13, s49, v28")
        g.e("v_lshlrev_b32 v30, 5, v30")
        g.e("v_xor_b32 v13, v13, v30")
        g.e("s_and_b32 s49, s46, 0x3fff")
        g.e("s_lshr_b32 s50, s40, 2")
        g.e("s_lshl_b32 s50, s50, 6")
        g.e("s_add_u32 s49, s49, s50")
        g.e("s_add_u32 s49, s49, 0x20000")
        g.e("v_bfe_u32 v17, v0, 3, 1")
        g.e("v_lshlrev_b32 v17, 14, v17")
        g.e("v_bfe_u32 v28, v0, 2, 1")
        g.e("v_lshl_add_u32 v17, v28, 7, v17")
        g.e("v_and_b32 v28, 0x33, v0")
        g.e("v_lshl_add_u32 v17, v28, 4, v17")
        g.e("v_add_u32 v17, s49, v17")
        g.e("v_lshlrev_b32 v29, 5, v29")
        g.e("v_xor_b32 v17, v17, v29")
        rb_poll_addr(15, 8, 0)
        nol = g.newlabel("noln")
        g.e("s_cmp_ge_u32 s54, 8")
        g.e(f"s_cbranch_scc1 {nol}")
        for r in (9, 10, 11, 12): g.e(f"v_mov_b32 v{r}, 0")
        g.e("v_mov_b32 v16, 0x3f803f80")
        g.wait_vm("ln")
        g.stamp(8)
        g.e("v_mov_b32 v14, 20")
        w0(lambda: dbg_load(g, 14, 14, 18))
        for i in range(16):
            g.e(f"v_dot2c_f32_bf16 v{9 + 2 * (i & 1)}, v16, v{64 + i}")
            g.e(f"v_dot2c_f32_bf16 v{10 + 2 * (i & 1)}, v{64 + i}, v{64 + i}")
        for i in range(4):
            g.e(f"v_lshlrev_b32 v{96 + 2 * i}, 16, v{64 + i}")
            g.e(f"v_and_b32 v{97 + 2 * i}, s53, v{64 + i}")
        for r in (9, 10): g.e(f"v_add_f32 v{r}, v{r}, v{r + 2}")
        for k, qp in enumerate(("[1,0,3,2]", "[2,3,0,1]")):
            for i in range(4 + 6 * k, 10 + 6 * k):
                g.e(f"v_lshlrev_b32 v{96 + 2 * i}, 16, v{64 + i}")
                g.e(f"v_and_b32 v{97 + 2 * i}, s53, v{64 + i}")
            for r in (9, 10): g.e(f"v_add_f32_dpp v{r}, v{r}, v{r} quad_perm:{qp} row_mask:0xf bank_mask:0xf")
        for sw in ("v_permlane32_swap_b32", "v_permlane16_swap_b32"):
            for i in range(2): g.e(f"v_mov_b32 v{11 + i}, v{9 + i}")
            g.e("s_nop 1")
            for i in range(2): g.e(f"{sw} v{11 + i}, v{9 + i}")
            g.e("s_nop 1")
            for i in range(2): g.e(f"v_add_f32 v{9 + i}, v{9 + i}, v{11 + i}")
        ln_params(g, [9], [10], 512)
        for i in range(4):
            for e in range(8): g.e(f"v_fma_f32 v{96 + 8 * i + e}, v{96 + 8 * i + e}, v10, -v9")
            for r in range(4): g.e(f"PK {64 + 4 * i + r},{96 + 8 * i + 2 * r},{97 + 8 * i + 2 * r}")
            g.e(f"DW 13,{64 + 4 * i},{i * 4096}")
        g.e("s_waitcnt lgkmcnt(0)")
        g.e("s_barrier")
        for i in range(4): g.e(f"DR {96 + 4 * i},17,{i * 1024}")
        for i in range(4):
            g.e(f"s_waitcnt lgkmcnt({3 - i})")
            g.e(f"buffer_store_dwordx4 v[{96 + 4 * i}:{99 + 4 * i}], v{VST}, s[24:27], s62 offen offset:{(i & 3) * 1024} sc1")
        g.e("v_mov_b32 v11, 1")
        g.stamp(9)
        g.e("s_waitcnt vmcnt(0)")
        g.e("s_barrier")
        g.stamp(10)
        done = g.newlabel("sdone"); chk = g.newlabel("schk")
        g.e("s_cmp_lg_u32 s40, 0")
        g.e(f"s_cbranch_scc1 {done}")
        nonce_get(g, 14, 14, 2, True)
        rb_line(47, 0)
        g.e("s_lshl_b32 s49, s54, 2")
        g.e("s_add_u32 s47, s47, s49")
        flag_set(g, 10, 47, 59, 100)
        g.e(f"s_branch {chk}")
        g.label(nol)
        g.e("s_cmp_lg_u32 s40, 0")
        g.e(f"s_cbranch_scc1 {done}")
        if SL0: g.e(f"s_sleep {SL0}")
        nonce_get(g, 14, 14, 2, False)
        g.label(chk)
        flag_wait(g, 11, 15, 59, 100, SL1, False)
        g.label(done)
        g.vm = []
        run(wdma_ops(0, 47))
        g.e("s_mov_b32 s62, s55")
        g.e("s_mov_b32 s48, s54")
        g.e("s_lshl_b32 s49, s41, 18")
        g.e("s_lshl_b32 s50, s40, 15")
        g.e("s_add_u32 s54, s49, s50")
        g.e(f"s_add_u32 s54, s54, {WS_XNP}")
        g.e("s_barrier")
        g.stamp(11)
        def xload(m):
            if m % 4 == 0:
                g.e(f"s_add_u32 s63, s60, {m >> 2}")
                g.e("s_and_b32 s63, s63, 3")
                g.e("s_lshl_b32 s63, s63, 12")
                g.e("s_add_u32 s63, s63, s54")
                g.e(f"s_add_u32 s55, s63, 16384")
            for a in range(2):
                x = xreg(a, m)
                g.vmem(f"buffer_load_dwordx4 v[{x}:{x + 3}], v{VST}, s[24:27], s{55 if a else 63} offen offset:{(m % 4) * 1024} sc1", ("x", m))
        for m in range(4): xload(m)
    def lin_touch():
        g.e("s_lshl_b32 s43, s2, 3")
        g.e("s_add_u32 s43, s43, s40")
        g.e(f"v_lshlrev_b32 v26, 3, v{VST}")
        g.e("v_bfe_u32 v27, v0, 4, 2")
        g.e("v_lshl_add_u32 v26, v27, 28, v26")
        g.e("s_lshl_b32 s49, s43, 11")
        srd(g, 36, 10, 11, 4 * MB)
        g.vmem("buffer_load_dword v254, v26, s[36:39], s49 offen", "t")
        srd(g, 36, 12, 13, 4 * MB)
        g.vmem("buffer_load_dword v254, v26, s[36:39], s49 offen", "t")
        srd(g, 36, 14, 15, 512 * 3584)
        g.vmem("buffer_load_dword v254, v26, s[36:39], s49 offen", "t")
    if LT == 1 and not ztype: lin_touch()
    if LT and ztype:
        n0 = len(g.lines); sv = list(g.vm)
        lin_touch()
        blk = g.lines[n0:]; del g.lines[n0:]; g.lines[ZLT:ZLT] = blk; g.vm = sv
        k = g.lines.index(f"s_waitcnt vmcnt({CPF})", ZLT); g.lines[k] = f"s_waitcnt vmcnt({CPF + 3})"
    off, sz = {"K": (WS_K, SZ_KV), "V": (WS_V, SZ_KV), "Z1": (WS_Z1, SZ_Z), "Z2": (WS_Z2, SZ_Z)}[T]
    srd(g, 28, 16, 17, sz, off)
    tr_bases(g, VTE, VTO)
    if T == "Z2":
        for i in range(16): g.e(f"v_mov_b32 v{STAT + i}, 0")
    if T == "Z1":
        g.e("v_bfe_u32 v16, v0, 3, 1")
        g.e("v_lshlrev_b32 v16, 6, v16")
        g.e("v_bfe_u32 v18, v0, 2, 1")
        g.e("v_lshl_add_u32 v16, v18, 7, v16")
        g.e("v_and_b32 v18, 0x33, v0")
        g.e("v_lshl_add_u32 v16, v18, 4, v16")

    def outbase(I, p):
        if T == "Z2" and p == 2: I("s_mov_b32 s48, s42")
        elif ztype: I(f"s_add_u32 s48, s58, {p}")
        else:
            I("\n".join(u for t in pair_ops(p, 48) for u in ((t,) if isinstance(t, str) else t)))
            I("s_add_u32 s48, s48, s58")
        if T in ("K", "V"):
            I("s_lshr_b32 s49, s48, 1")
            I("s_lshl_b32 s49, s49, 19")
            I("s_and_b32 s48, s48, 1")
            I(f"s_lshl_b32 s48, s48, {11 if T == 'K' else 12}")
            I("s_add_u32 s48, s48, s49")
            I("s_lshl_b32 s49, s41, 16")
            I("s_add_u32 s48, s48, s49")
            I("s_lshl_b32 s49, s40, 13")
            I("s_add_u32 s48, s48, s49")
            I("s_add_u32 s50, s48, 4096")
        else:
            I(f"s_lshl_b32 s48, s48, {11 if ktp(p) else 12}")
            I("s_lshl_b32 s49, s41, 3")
            I("s_add_u32 s49, s49, s40")
            I("s_mul_i32 s49, s49, 57344")
            I("s_add_u32 s48, s48, s49")
            I("s_add_u32 s50, s48, 28672")

    ZPARK = 131072
    def epilogue(p, last=False):
        st = p & 1
        ops = []
        def I(s): ops.append(lambda s=s: g.e(s))
        hold = T == "Z2" and p < 2
        if not hold: outbase(I, p)
        frags = []
        if ktp(p):
            for a, mm in ([(0, 0), (1, 0), (0, 1), (1, 1)] if ztype else [(0, 0), (0, 1), (1, 0), (1, 1)]):
                if True:
                    frags.append((areg(st, 2 * mm, a), areg(st, 2 * mm + 1, a), a, mm * 1024))
        else:
            for cb in range(4):
                frags.append((areg(st, cb, 0), areg(st, cb, 1), 0, cb * 1024))
        for (x, y, a, io) in frags:
            if ztype:
                stats = None
                if hold:
                    stats = {}
                    for r in range(4):
                        stats[x + r] = (STAT + 2 * r, STAT + 2 * r + 1)
                        stats[y + r] = (STAT + 8 + 2 * r, STAT + 8 + 2 * r + 1)
                for s in gelu_ops([x, x + 1, x + 2, x + 3, y, y + 1, y + 2, y + 3], TMP, VC2, 52, stats): I(s)
            d = x
            if (p == 0 or (QM and p in (2, 4)) or (QT and not QM and p in (3, 4) and not last)) and not ztype: d = 16 + 4 * frags.index((x, y, a, io))
            I(f"PK {d},{x},{x + 1}"); I(f"PK {d + 1},{x + 2},{x + 3}")
            I(f"PK {d + 2},{y},{y + 1}"); I(f"PK {d + 3},{y + 2},{y + 3}")
            x = d
            if hold:
                if p == 0: ops.append(lambda x=x, io=io: g.lds(f"DW 13,{x},{io}", "park"))
            elif ztype:
                if a == 0: ops.append(lambda: None)
                else:
                    def fix(x1=x, io=io):
                        x0 = x1 - 4
                        for r in range(4): g.e(f"v_mov_b32 v{TMP[r]}, v{x0 + r}")
                        for r in range(4): g.e(f"v_mov_b32_dpp v{x0 + r}, v{x1 + r} row_ror:8 row_mask:0xf bank_mask:0xc")
                        for r in range(4): g.e(f"v_mov_b32_dpp v{x1 + r}, v{TMP[r]} row_ror:8 row_mask:0xf bank_mask:0x3")
                        sr = 24 if T == "Z2" else 28
                        for k, xx in enumerate((x0, x1)):
                            g.vmem(f"buffer_store_dwordx4 v[{xx}:{xx + 3}], v{14 if T == 'Z2' else 16}, s[{sr}:{sr + 3}], s{48 + 2 * k} offen offset:{io} {SC}", "st")
                    ops.append(fix)
            else:
                ops.append(lambda x=x, a=a, io=io: g.vmem(
                    f"buffer_store_dwordx4 v[{x}:{x + 3}], v{VST}, s[28:31], s{50 if a else 48} offen offset:{io} {STF if ztype else STKV}", "st"))
        return ops
    if T == "Z2":
        g.e(f"s_add_u32 s49, s46, {ZPARK}")
        g.e(f"v_add_u32 v13, s49, v{VST}")

    def publish_ops():
        ops = []
        def I(s): ops.append(lambda s=s: g.e(s))
        for sh in (8, 4, 2, 1):
            for i in range(16):
                I(f"v_add_f32_dpp v{STAT + i}, v{STAT + i}, v{STAT + i} row_ror:{sh} row_mask:0xf bank_mask:0xf")
        ops.append(lambda: srd(g, 36, 16, 17, GZ * 16384, WS_ST))
        I("v_bfe_u32 v9, v0, 4, 2")
        I("v_lshlrev_b32 v9, 6, v9")
        I("v_and_b32 v10, 15, v0")
        I("v_lshl_add_u32 v10, v10, 24, v9")
        I("s_lshl_b32 s63, s41, 11")
        I("s_lshl_b32 s49, s40, 8")
        I("s_add_u32 s63, s63, s49")
        I("s_lshl_b32 s49, s42, 14")
        I("s_add_u32 s49, s49, s63")
        for i in range(4):
            ops.append(lambda i=i: g.vmem(f"buffer_store_dwordx4 v[{STAT + 4 * i}:{STAT + 4 * i + 3}], v10, s[36:39], s49 offen offset:{16 * i} sc1", "pub"))
        return ops
    def arrive():
        g.wait_vm("pub")
        g.e("s_barrier")
        def f():
            rb_line(47, 32)
            g.e("s_lshl_b32 s49, s42, 2")
            g.e("s_add_u32 s47, s47, s49")
            flag_set(g, 10, 47, 59, 100)
            rb_poll_addr(15, GZ, 32)
            g.e("v_mov_b32 v14, 0")
        w0(f)
    PB = 16
    def collect():
        w0(lambda: flag_wait(g, 14, 15, 59, 100, SL1, True))
        g.e("s_barrier")
        g.stamp(14)
        g.e("v_and_b32 v9, 31, v0")
        g.e("v_lshlrev_b32 v9, 3, v9")
        for q in range(GZ):
            g.e(f"s_add_u32 s49, s63, {q * 16384}")
            g.vmem(f"buffer_load_dwordx2 v[{PB + 2 * q}:{PB + 2 * q + 1}], v9, s[36:39], s49 offen sc1", "col")

    def pf_next(short):
        if not PF3 or T == "Z2" or (T in ("K", "V") and not short): return
        g.e("s_load_dwordx2 s[32:33], s[0:1], 40")
        g.e("s_load_dwordx2 s[36:37], s[0:1], 80")
        g.e("s_lshl_b32 s43, s41, 3")
        g.e("s_add_u32 s43, s43, s40")
        g.e(f"v_lshlrev_b32 v13, 3, v{VST}")
        g.e("s_waitcnt lgkmcnt(0)")
        g.e(f"s_mov_b32 s34, {4 * MB}")
        g.e("s_mov_b32 s35, 0x20000")
        g.e(f"s_mov_b32 s38, {896 * 1024}")
        g.e("s_mov_b32 s39, 0x20000")
        if T == "Z1":
            g.e("s_lshl_b32 s47, s42, 6")
            g.e("s_add_u32 s43, s43, s47")
            g.e("s_lshl_b32 s43, s43, 13")
            if short:
                g.e(f"s_sub_u32 s47, s43, {64 * 8192}")
                g.e("buffer_load_dword v14, v13, s[36:39], s47 offen")
                g.e(f"s_add_u32 s47, s47, {3 * MB}")
                g.e("buffer_load_dword v14, v13, s[32:35], s47 offen")
        else:
            g.e(f"s_mul_i32 s43, s43, {3 * 8192}")
            if T == "V": g.e(f"s_add_u32 s43, s43, {64 * 3 * 8192}")
            for i in range(3):
                g.e(f"buffer_load_dword v14, v13, s[32:35], s43 offen")
                g.e("s_add_u32 s43, s43, 8192")

    def xn_snap():
        def f():
            if not ztype: nonce_get(g, 13, 13, 2, True)
            g.e("s_and_b32 s43, s2, 7")
            g.e("s_lshl_b32 s43, s43, 13")
            g.e(f"s_add_u32 s43, s43, {53 * 128 + 64}")
            g.e("v_lshrrev_b32 v13, 3, v0")
            g.e("v_lshlrev_b32 v13, 7, v13")
            g.e("v_and_b32 v15, 7, v0")
            g.e("v_lshl_add_u32 v13, v15, 2, v13")
            g.e("v_add_u32 v15, s43, v13")
            flag_load(g, 13, 15, 100)
        w0(f)
    ZF = {}; HELD = {}
    def final(p, short=False):
        g.stamp(12)
        g.e("s_nop 7")
        if T != "Z2":
            if short and QM: run(HELD[p - 1])
            for op in epilogue(p, True): op()
        else:
            PKD, VA, P2 = 224, 10, 240
            for i in range(4): g.e(f"DR {PKD + 4 * i},13,{i * 1024}")
            g.e(f"s_add_u32 s49, s46, {ZPARK}")
            g.e("v_add_u32 v9, s49, v9")
            g.e(f"v_bfe_u32 v{VA}, v0, 4, 2")
            g.e(f"v_lshl_add_u32 v{VA}, v{VA}, 6, s49")
            g.e("s_waitcnt vmcnt(0) lgkmcnt(0)")
            for q in range(1, GZ):
                for i in range(2): g.e(f"v_add_f32 v{PB + i}, v{PB + i}, v{PB + 2 * q + i}")
            ln_params(g, [PB], [PB + 1], 896)
            g.e(f"ds_write_b64 v9, v[{PB}:{PB + 1}]")
            g.e("s_waitcnt lgkmcnt(0)")
            for i in range(4): g.e(f"DR {P2 + 4 * i},{VA},{16 * i}")
            xn_snap()
            g.e("s_waitcnt lgkmcnt(0)")
            MEAN = [P2 + 2 * e for e in range(8)]; VAR = [P2 + 2 * e + 1 for e in range(8)]
            for pp in range(2):
                outbase(g.e, pp)
                for cb in range(4):
                    x = PKD + 4 * cb if pp == 0 else areg(pp & 1, cb, 0)
                    t = 16 + (cb & 1) * 8
                    for r in range(4): g.e(f"v_lshlrev_b32 v{t + 2 * r}, 16, v{x + r}")
                    for r in range(4): g.e(f"v_and_b32 v{t + 2 * r + 1}, s53, v{x + r}")
                    for e in range(8): g.e(f"v_fma_f32 v{t + e}, v{t + e}, v{VAR[e]}, -v{MEAN[e]}")
                    for r in range(4): g.e(f"PK {x + r},{t + 2 * r},{t + 2 * r + 1}")
                    g.e(f"buffer_store_dwordx4 v[{x}:{x + 3}], v{VST}, s[28:31], s48 offen offset:{cb * 1024} {STF}")
            ep = epilogue(p)
            nb = len(ep) - 4 * 61
            quart = [ep[nb + 61 * i:nb + 61 * i + 60] for i in range(4)]
            zst = [ep[nb + 61 * i + 60] for i in range(4)]
            ZQ = QFAST and QTAIL and ZFAST
            run(quart[0]); run(quart[1])
            if ZQ:
                ZF["qprep"]()
                w_voffsets(g, 8192, VW)
            g.e("s_waitcnt vmcnt(0)")
            if ZQ: w0(lambda: flag_wait(g, 13, 15, 59, 100, SL1, True))
            g.e("s_barrier")
            def z2flag():
                g.e("s_add_u32 s47, s42, 14")
                g.e("s_lshl_b32 s47, s47, 7")
                g.e("s_lshl_b32 s49, s41, 2")
                g.e("s_add_u32 s47, s47, s49")
                g.e("s_add_u32 s47, s47, 32")
                flag_set(g, 16, 47, 59, 100)
            w0(z2flag)
            g.stamp(10)
            srd(g, 24, 16, 17, SZ_Z, WS_Z1)
            g.e("v_bfe_u32 v14, v0, 3, 1")
            g.e("v_lshlrev_b32 v14, 6, v14")
            g.e("v_bfe_u32 v18, v0, 2, 1")
            g.e("v_lshl_add_u32 v14, v18, 7, v14")
            g.e("v_and_b32 v18, 0x33, v0")
            g.e("v_lshl_add_u32 v14, v18, 4, v14")
            if ZQ:
                ld = []
                g.vm = []
                for st in range(3):
                    ld += [lambda m=m: ZF["qx"](m) for m in range(4 * st, 4 * st + 4)]
                    for j in range(4 if st < 2 else 0):
                        def wq(st=st, j=j):
                            g.e(f"s_add_u32 s51, s54, {st * 128 * 8192}")
                            g.e(f"s_add_u32 m0, s46, {st * 32768}")
                            g.e("s_nop 0")
                            g.vmem(f"buffer_load_dwordx4 v{VW + j}, s[32:35], s51 offen offset:{j * 1024} lds", ("w", st))
                        ld.append(wq)
                body = quart[2] + quart[3]
                for i, op in enumerate(body):
                    op()
                    if i % 6 == 0 and ld: ld.pop(0)()
                assert not ld
                run(ep[:nb]); run(zst)
                g.e("v_xor_b32 v5, 0x10000, v5")
                g.e("v_xor_b32 v6, 0x10000, v6")
                if not PROF:
                    yo = lambda L, t: len(L) - 1 - max(i for i, u in enumerate(L) if u == t)
                    assert all(yo(g.vm, t) <= yo(FAST_VM, t) for t in set(FAST_VM)), (g.vm, FAST_VM)
                    FAST_VM[:] = g.vm
            else:
                run(ep[:nb]); run(zst[:2]); run(quart[2]); run(zst[2:3]); run(quart[3]); run(zst[3:])
        g.stamp(13)
        diag_mark(g, 2)
        g.stamp_dump(16, 17, 40, 0)
        if MERGE:
            g.e(f"s_add_u32 s58, s42, { {'K': 0, 'V': 0, 'Z1': 11, 'Z2': 14}[T] }")
            g.e("s_lshl_b32 s58, s58, 7")
            g.e("s_lshl_b32 s49, s41, 2")
            g.e("s_add_u32 s58, s58, s49")
            if T == "V": g.e("s_add_u32 s58, s58, 32")
            if QFAST and not ztype and not short:
                FAST_VM[:] = [] if PROF else [("w", t[1]) if isinstance(t, tuple) and t[0] == "wq" else t for t in g.vm]
                g.e("s_branch L_p2f")
            elif T == "Z2" and QFAST and QTAIL and ZFAST: g.e("s_branch L_p2f")
            else: g.e("s_branch L_p2")
        else: g.e("s_endpgm")

    pend = []
    def wread(F, half=None):
        s, f = F >> 5, F & 31
        if s >= NST: return
        if f == 0 and half != 1:
            assert not pend
            g.wait_vm(("w", s), *(["xn"] if s == 3 else []))
            if QFAST and not ztype and s == (3 if XPF else (9 if QT else NST - 1)): w0(lambda: flag_wait(g, 13, 15, 59, 100, SL1, True))
            g.e("s_barrier")
            if ztype and s == 3:
                def nflag():
                    sk = g.newlabel("nonf")
                    g.e("s_cmp_ge_u32 s48, 8")
                    g.e(f"s_cbranch_scc1 {sk}")
                    rb_line(43, 64)
                    g.e("s_lshl_b32 s49, s48, 2")
                    g.e("s_add_u32 s43, s43, s49")
                    flag_set(g, 10, 43, 59, 100)
                    g.label(sk)
                w0(nflag)
            if s >= 2 and s % 2 == 0:
                g.e(f"v_xor_b32 v{VTE}, 0x10000, v{VTE}")
                g.e(f"v_xor_b32 v{VTO}, 0x10000, v{VTO}")
            if s >= 2: pend.extend(wdma_ops(s + 2))
        if pend and f % WSP == 1 % WSP and f >= 1 and half != 0: pend.pop(0)()
        p, m, cb, mp = fmap(s, f)
        r = WR + (F % 8) * 4
        for a in (range(2) if half is None else [half]):
            o = (s & 1) * 32768 + mp * 4096 + a * 512 + (cb >> 1) * 256
            g.lds(f"TR {r + 2 * a},{VTO if cb & 1 else VTE},{o}", ("w", F))

    g.stamp(1)
    ev = {}
    def at(F, fn): ev.setdefault(F, []).append(fn)
    def spread(F0, ops, after=None):
        if after is not None: at(F0, lambda: g.wait_ds(("x", after)))
        for i, op in enumerate(ops): at(F0 + i, op)
    if not ztype:
        xread(0)
        at(0, lambda: g.wait_ds(("x", 0)))
        if CHG:
            xread(1)
            at(0, lambda: g.wait_ds(("x", 1)))
            if IB >= 2: spread(0, xdma_ops(2)); spread(4, xdma_ops(3)); spread(8, wdma_ops(2, 47))
            else: spread(0, wdma_ops(1, 47)); spread(4, xdma_ops(2)); spread(8, xdma_ops(3)); spread(12, wdma_ops(2, 47))
        elif IB >= 2:
            spread(0, xdma_ops(2)); spread(4, wdma_ops(2, 47))
            at(10, lambda: xread(1)); spread(14, xdma_ops(3), 1)
        elif IB == 1:
            spread(0, wdma_ops(1, 47)); spread(4, xdma_ops(2))
            at(10, lambda: xread(1)); spread(14, xdma_ops(3), 1); spread(18, wdma_ops(2, 47))
        else:
            spread(0, xdma_ops(1)); spread(4, wdma_ops(1, 47)); spread(8, xdma_ops(2))
            at(13, lambda: xread(1)); spread(16, xdma_ops(3), 1); spread(30, wdma_ops(2, 47))
        if CHG:
            at(20, lambda: xread(2)); spread(24, xdma_ops(4), 2)
            at(28, lambda: xread(3)); spread(32, xdma_ops(5), 3)
            at(42, lambda: xread(4)); spread(46, wdma_ops(3, 47), 4)
            at(50, lambda: xread(5)); spread(54, xdma_ops(6), 5)
            at(70, lambda: xread(6)); spread(74, xdma_ops(7), 6)
            at(92, lambda: xread(7)); at(96, lambda: g.wait_ds(("x", 7)))
        else:
            at(22, lambda: xread(2)); spread(26, xdma_ops(4), 2)
            at(34, lambda: xread(3)); spread(38, xdma_ops(5), 3)
            at(44, lambda: xread(4)); spread(48, wdma_ops(3, 47), 4)
            at(56, lambda: xread(5)); spread(64, xdma_ops(6), 5)
            at(80, lambda: xread(6)); spread(84, xdma_ops(7), 6)
            at(99, lambda: xread(7)); at(103, lambda: g.wait_ds(("x", 7)))
    else:
        for m in range(16): at((m >> 2) * 32 if CHG else (8 * m if m < 12 else 96 + 4 * (m - 12)), lambda m=m: g.wait_vm(("x", m)))
        for m, F in zip(range(4, 16), (4, 8, 12, 16, 28, 34, 40, 46, 56, 64, 70, 74)): at(("post", F), lambda m=m: xload(m))
        def xnc(i, st):
            if not st:
                if i == 0:
                    g.e(f"s_add_u32 s49, s46, {ZPARK}")
                    g.e(f"v_add_u32 v14, s49, v{VST}")
                    g.e("v_bfe_u32 v15, v0, 4, 2")
                    g.e("v_lshlrev_b32 v15, 5, v15")
                    g.e("v_xor_b32 v14, v14, v15")
                    g.e("s_cmp_ge_u32 s48, 8")
                    g.e("s_cselect_b32 s49, 0x40000000, 0")
                    g.e(f"v_add_u32 v15, s49, v{VST}")
                g.lds(f"DR 10,14,{i * 1024}", ("xn", i))
            else:
                g.wait_ds(("xn", i))
                g.vmem(f"buffer_store_dwordx4 v[10:13], v15, s[24:27], s62 offen offset:{i * 1024} sc1", "xn")
        for i in range(4):
            at(("post", 19 + 12 * i), lambda i=i: xnc(i, False)); at(("post", 25 + 12 * i), lambda i=i: xnc(i, True))
        if T == "Z2": at(("post", 66), lambda: g.e("v_mov_b32 v13, v14"))
        for F0, s in ((0, 1), (22, 2), (50, 3)):
            for i, op in enumerate(wdma_ops(s, 47)): at(("post", F0 + i), op)
    if PFW and not ztype:
        def pfw():
            g.e("s_bfe_u32 s43, s2, 0x20003")
            g.e("s_lshl_b32 s43, s43, 7")
            g.e("s_lshl_b32 s47, s40, 4")
            g.e("s_add_u32 s43, s43, s47")
            g.e("v_bfe_u32 v14, v0, 2, 4")
            g.e("v_add_u32 v14, s43, v14")
            g.e("v_lshlrev_b32 v14, 13, v14")
            g.e("v_and_b32 v15, 3, v0")
            g.e("v_min_u32 v15, 2, v15")
            g.e("v_lshl_add_u32 v14, v15, 7, v14")
            g.vmem(f"buffer_load_dword v14, v14, s[20:23], s44 offen offset:384", "t")
        at(PFW, pfw)
    if PF:
        def prefetch():
            sr = 36 if T == "Z2" else 32
            srd(g, sr, 8, 9, 4 * MB)
            g.e("s_and_b32 s43, s2, 0xf8")
            g.e("s_add_u32 s43, s43, s40")
            g.e("s_lshl_b32 s43, s43, 14")
            nb = 2 if BAL else 1
            g.e(f"s_and_b32 s47, s2, {6 if BAL else 7}")
            g.e("s_lshl_b32 s47, s47, 8")
            g.e("s_add_u32 s47, s47, s43")
            g.e(f"v_and_b32 v14, {(1 << nb) - 1}, v0")
            g.e("v_lshlrev_b32 v14, 7, v14")
            g.e(f"v_bfe_u32 v15, v0, {nb}, 3")
            g.e("v_lshl_add_u32 v14, v15, 11, v14")
            g.e(f"v_bfe_u32 v15, v0, {nb + 3}, {3 - nb}")
            g.e("v_lshl_add_u32 v15, v15, 28, v14")
            g.vmem(f"buffer_load_dword v14, v15, s[{sr}:{sr + 3}], s47 offen", "t")
            if T in ("K", "V"):
                sk = g.newlabel("nocode")
                g.e("s_cmp_lt_u32 s2, 8")
                g.e(f"s_cbranch_scc0 {sk}")
                code_touch(g, 36, 14, "L_all_end", "L_p2", False, va=26)
                g.label(sk)
            if SPT1 and T != "Z2":
                sk = g.newlabel("nosp")
                g.e(f"s_cmp_lt_u32 s2, {192 if BAL else 224}")
                g.e(f"s_cbranch_scc1 {sk}")
                if BAL:
                    g.e("s_bitcmp1_b32 s2, 0")
                    g.e(f"s_cbranch_scc1 {sk}")
                g.e("s_load_dwordx2 s[36:37], s[0:1], 64")
                g.e(f"s_and_b32 s43, s2, {0x38 if BAL else 0x18}")
                g.e("s_add_u32 s43, s43, s40")
                g.e("s_lshl_b32 s43, s43, 15")
                g.e("s_and_b32 s47, s2, 7")
                g.e("s_lshl_b32 s47, s47, 20")
                g.e("s_add_u32 s43, s43, s47")
                g.e("v_bfe_u32 v13, v0, 3, 3")
                g.e("v_lshlrev_b32 v13, 12, v13")
                g.e("v_and_b32 v15, 7, v0")
                g.e("v_lshl_add_u32 v13, v15, 7, v13")
                g.e("s_waitcnt lgkmcnt(0)")
                g.e(f"s_mov_b32 s38, {8 * MB}")
                g.e("s_mov_b32 s39, 0x20000")
                for i in range(SPT1): g.e(f"buffer_load_dword v14, v13, s[36:39], s43 offen offset:{1024 * i}")
                g.label(sk)
            if PF3 == 1 and T != "Z2":
                sk = g.newlabel("nopf3")
                g.e(f"s_cmp_lt_u32 s42, {SHORT0}")
                g.e(f"s_cbranch_scc1 {sk}")
                pf_next(True)
                g.label(sk)
        at(PF if not ztype else min(PF, 110), prefetch)
    if not ztype: at(42 if XPF else 150, lambda: (g.e("v_mov_b32 v13, 20"), w0(lambda: dbg_load(g, 13, 13, 18))))
    if T != "Z2": at(114 if ztype else (70 if XPF else (2 * NS - 1) * 32 - 12), xn_snap)
    if XPF and not ztype:
        def xn_touch():
            from k2 import role_ops
            sk = g.newlabel("noxt")
            g.e(f"s_cmp_ge_u32 s42, {SHORT0}")
            g.e(f"s_cbranch_scc1 {sk}")
            for t in role_ops(54, 55, 52, 53, 43, 47): g.e(t)
            srd(g, 36, 16, 17, SZ_XN, WS_XN)
            g.e("s_lshr_b32 s47, s40, 2")
            g.e("s_cmp_eq_u32 s47, 0")
            g.e("s_cselect_b32 s55, s52, s53")
            g.e("s_lshl_b32 s55, s55, 17")
            g.e("s_and_b32 s43, s40, 3")
            g.e("s_lshl_b32 s43, s43, 15")
            g.e("s_add_u32 s55, s55, s43")
            g.e("s_lshr_b32 s43, s54, 3")
            g.e("s_lshl_b32 s43, s43, 13")
            g.e("s_add_u32 s55, s55, s43")
            g.e(f"v_lshlrev_b32 v14, 3, v{VST}")
            g.e("buffer_load_dword v14, v14, s[36:39], s55 offen")
            g.label(sk)
        at(XPF, xn_touch)
    if QFAST and T != "Z1":
        from k2 import role_ops
        XA, XB = (52, 53) if not ztype else (56, 57)
        def qprep():
            g.e("s_load_dwordx2 s[6:7], s[0:1], 64")
            for t in role_ops(54, 55, XA, XB, 43, 47): g.e(t)
            srd(g, 32, 8, 9, 512 * 8192)
            srd(g, 36, 16, 17, SZ_XN, WS_XN)
            g.e("s_lshl_b32 s54, s54, 8")
            g.e("s_and_b32 s43, s40, 3")
            g.e("s_lshl_b32 s47, s43, 18")
            g.e("s_add_u32 s54, s54, s47")
            g.e("s_lshr_b32 s47, s40, 2")
            g.e("s_cmp_eq_u32 s47, 0")
            g.e(f"s_cselect_b32 s55, s{XA}, s{XB}")
            g.e("s_lshl_b32 s47, s47, 7")
            g.e("s_add_u32 s54, s54, s47")
            g.e("s_lshl_b32 s55, s55, 17")
            g.e("s_lshl_b32 s43, s43, 15")
            g.e("s_add_u32 s55, s55, s43")
            g.e("s_waitcnt lgkmcnt(0)")
            g.ds = []
        if not ztype: at(258 if QT else 270, qprep)
        def qx(m):
            if m % 4 == 0:
                g.e(f"s_lshr_b32 s{XA}, s2, 3" if QROT else f"s_mov_b32 s{XA}, 0")
                g.e(f"s_add_u32 s{XA}, s{XA}, {m >> 2}")
                g.e(f"s_and_b32 s{XA}, s{XA}, 3")
                g.e(f"s_lshl_b32 s{XA}, s{XA}, 12")
                g.e(f"s_add_u32 s{XA}, s{XA}, s55")
                g.e(f"s_add_u32 s{XB}, s{XA}, 16384")
            for a in range(2):
                x = xreg(a, m)
                g.vmem(f"buffer_load_dwordx4 v[{x}:{x + 3}], v{VST}, s[36:39], s{XA + a} offen offset:{(m % 4) * 1024} {SC}", ("x", m))
        ZF.update(qprep=qprep, qx=qx)
        if ztype: pass
        elif QT:
            for m in range(12): at(("post", 9 * 32 + 2 + (8 * m if m < 8 else 64 + 4 * (m - 8))), lambda m=m: qx(m))
        else:
            for m in range(8): at(("post", (NST - 1) * 32 + 1 + 3 * m), lambda m=m: qx(m))
    def place(ops, F0, n):
        for i, op in enumerate(ops): at(("post", F0 + i * n // len(ops)), op)
    for p in range(NP - 1):
        ops = epilogue(p)
        F0 = (2 * p + 2) * 32 + 3
        if not ztype:
            h = len(ops) - 20
            fr = [ops[h + 5 * i:h + 5 * i + 5] for i in range(4)]
            if QM:
                U = (p >> 1) * 128
                if p == 4: place(ops, U + 116, 12)
                elif p & 1: place(ops, U + 131, 13)
                else:
                    place([o for f4 in fr for o in f4[:4]], U + 116, 11)
                    HELD[p] = ops[:h] + [f4[4] for f4 in fr]
                    place(ops[:h], U + 150, 3)
                    for f4, F in zip(fr, (156, 180, 204, 228)): at(("post", U + F), f4[4])
            elif p == 0:
                place(ops[:h] + [o for f4 in fr for o in f4[:4]], 3 * 32 + 20, 11)
                for f4, F in zip(fr, (127, 138, 149, 160)): at(("post", F), f4[4])
            elif QT and p == 3:
                place(ops[:h] + [o for f4 in fr for o in f4[:4]], 8 * 32 + 3, 11)
                for f4, F in zip(fr, (272, 296, 320, 344)): at(("post", F), f4[4])
            elif QT and p == 4:
                place(ops, 11 * 32 + 20, 12)
            else:
                pos = (166, 174, 182, 189) if p == 1 else [F0 + 5 + 16 * i for i in range(4)]
                place(ops[:h], pos[0] - 4, 3)
                for f4, F in zip(fr, pos): place(f4, F - 1, 2)
        elif p == 0: place(ops, 3 * 32 + 20, 11)
        elif T == "Z2" and p == 1:
            place(ops + [lambda: g.e("s_nop 1")] + publish_ops(), F0, ZPUB)
            at(("post", F0 + ZPUB + ZA), arrive)
            at(("post", F0 + ZPUB + ZA + ZP), lambda: w0(lambda: flag_load(g, 14, 15, 100)))
            at(("post", min(191, F0 + ZPUB + ZA + ZP + ZC)), collect)
        else: place(ops, F0, 60)
    for F in range(8 if CHG else D): wread(F)
    rq = []
    for s in range(NST):
        if s == 1: diag_mark(g, 1)
        if s < 9 and PROF != 6: g.stamp(2 + s)
        if s == 2 * NS and NS < NP:
            cont = g.newlabel("cont")
            g.e(f"s_cmp_lt_u32 s42, {SHORT0}")
            g.e(f"s_cbranch_scc1 {cont}")
            sv = (list(g.vm), list(g.ds))
            final(NS - 1, True)
            g.vm, g.ds = sv
            g.label(cont)
        for f in range(32):
            F = s * 32 + f
            if PROF == 6 and F in PFL: g.stamp(2 + PFL.index(F))
            for fn in ev.pop(F, []): fn()
            post = ev.pop(("post", F), [])
            for h in range(2):
                if CHG:
                    i = (f & 3) * 2 + h
                    Fm, a = (F & ~3) + (i & 3), i >> 2
                else: Fm, a = F, h
                p, m, cb, mp = fmap(s, Fm & 31)
                if a == 0: g.wait_ds(("w", Fm))
                r = WR + (Fm % 8) * 4
                op = "MZ" if m == 0 else "M"
                if ktp(p): g.e(f"{op} {areg(p & 1, cb, a)},{r},{xreg(a, m)}")
                else: g.e(f"{op} {areg(p & 1, cb, a)},{xreg(a, m)},{r}")
                if CHG:
                    if rq: rq.pop(0)()
                    if a == 1: rq += [lambda Fm=Fm: wread(Fm + 8, 0), lambda Fm=Fm: wread(Fm + 8, 1)]
                else: wread(F + D, h)
                n = len(post) // 2 if h == 0 else len(post)
                for _ in range(n): post.pop(0)()
    assert not ev, ev.keys()
    final(NP - 1)
    g.label(f"L_k1_{T}_end")

def gen_k1(g):
    g.e(".p2align 8")
    g.e(f".type {KNAME},@function")
    g.label(KNAME)
    g.e("s_cmp_ge_u32 s2, 256")
    g.e("s_cbranch_scc1 L_k1_end")
    g.stamp(0)
    diag_mark(g, 0)
    if PROF: g.e("s_memrealtime s[94:95]")
    g.e("s_load_dwordx4 s[4:7], s[0:1], 0")
    g.e("s_load_dwordx4 s[8:11], s[0:1], 16")
    g.e("s_load_dwordx2 s[12:13], s[0:1], 32")
    g.e("s_load_dwordx2 s[14:15], s[0:1], 56")
    g.e("s_load_dwordx2 s[18:19], s[0:1], 96")
    g.e("s_load_dwordx2 s[16:17], s[0:1], 104")
    if TOP:
        g.e("s_getpc_b64 s[36:37]")
        g.label("L_top")
        g.e("s_bfe_u32 s49, s2, 0x30003")
        g.e("s_mul_i32 s49, s49, 9472")
        g.e("v_min_u32 v26, 73, v0")
        g.e("v_lshl_add_u32 v26, v26, 7, s49")
        g.e("v_mov_b32 v27, s37")
        g.e("v_add_co_u32 v26, vcc, s36, v26")
        g.e("s_nop 1")
        g.e("v_addc_co_u32 v27, vcc, 0, v27, vcc")
        g.e("global_load_dword v255, v[26:27], off")
    g.e("v_lshrrev_b32 v1, 6, v0")
    g.e("s_lshr_b32 s49, s2, 3")
    g.e("s_and_b32 s41, s2, 1")
    g.e("v_readfirstlane_b32 s40, v1")
    g.e("s_lshl_b32 s41, s41, 2")
    g.e("s_and_b32 s50, s49, 3")
    g.e("s_add_u32 s41, s41, s50")
    g.e("s_and_b32 s3, s2, 6")
    g.e("s_lshl_b32 s3, s3, 2")
    g.e("s_lshr_b32 s49, s49, 2")
    g.e("s_add_u32 s3, s3, s49")
    if BAL:
        g.e("s_and_b32 s50, s2, 1")
        g.e("s_or_b32 s51, s49, 1")
        g.e("s_sub_u32 s50, s51, s50")
        g.e("s_bfe_u32 s51, s2, 0x30003")
        g.e(f"s_cmp_ge_u32 s49, {4 if ZODD else 6}")
        g.e("s_cselect_b32 s49, s50, s49")
        g.e("s_cselect_b32 s41, s51, s41")
    if MIX:
        cst = [sum(v << (8 * i) for i, v in enumerate(row)) for row in GMAP]
        g.e("s_bitcmp1_b32 s2, 1")
        g.e(f"s_cselect_b32 s44, {cst[1] & 0xffffffff}, {cst[0] & 0xffffffff}") if False else None
        for k, (lo, hi) in enumerate(((44, 45), (46, 47))):
            g.e(f"s_mov_b32 s{lo}, {cst[2 * k] & 0xffffffff}")
            g.e(f"s_mov_b32 s{hi}, {cst[2 * k] >> 32}")
            g.e(f"s_cmov_b32 s{lo}, {cst[2 * k + 1] & 0xffffffff}")
            g.e(f"s_cmov_b32 s{hi}, {cst[2 * k + 1] >> 32}")
        g.e("s_bitcmp1_b32 s2, 2")
        g.e("s_cselect_b64 s[44:45], s[46:47], s[44:45]")
        g.e("s_lshl_b32 s49, s49, 3")
        g.e("s_lshr_b64 s[44:45], s[44:45], s49")
        g.e("s_and_b32 s3, s44, 31")
    if not EARLY: entry_wait(g, True)
    g.e(f"s_cmp_lt_u32 s3, {GKV}")
    g.e("s_cbranch_scc1 L_k1_K")
    g.e(f"s_cmp_lt_u32 s3, {2 * GKV}")
    g.e("s_cbranch_scc1 L_k1_V")
    g.e(f"s_cmp_lt_u32 s3, {2 * GKV + 3}")
    g.e("s_cbranch_scc1 L_k1_Z1")
    g.e("s_branch L_k1_Z2")
    g.label("L_k1_end")
    g.e("s_endpgm")
    for T in ("K", "V", "Z1", "Z2"):
        gen_type(g, T)
```

```python
from asmlib import *
import k1
from k1 import w_voffsets, tr_bases, xreg, areg, WR, D
import math

QSCALE = 128 ** -0.5 * math.log2(math.e)
STASH = 131072
DSP = int(os.environ.get('DSP', '3')); EB = int(os.environ.get('EB', '14'))
XPRE = int(os.environ.get('XPRE', '4'))
PS = int(os.environ.get('PS', '0'))
NTSP = os.environ.get('NTSP', '')
PF2 = int(os.environ.get('PF2', '0'))
KINS = int(os.environ.get('KINS', '0'))
NTAIL = int(os.environ.get('NTAIL', '0'))
STF2 = os.environ.get('STF2', 'sc1')
PFS = int(os.environ.get('PFS', '54'))
STFX = os.environ.get('STFX', 'sc1'); STFU = os.environ.get('STFU', 'sc1' if MERGE == 2 else '')
XSCH = eval(os.environ.get('XSCH', '(4, 8, 12, 16, 28, 34, 40, 46, 56, 62, 68, 74)'))
PF4 = int(os.environ.get('PF4', '1'))
SLA = int(os.environ.get('SLA', '8')); SLS = int(os.environ.get('SLS', '10'))
SPT = int(os.environ.get('SPT', '0'))
HOT = int(os.environ.get('HOT', '0'))
HACK = os.environ.get('HACK', '')
CH = int(os.environ.get('CH', '3'))
SF0 = int(os.environ.get('SF0', '1'))
SKIP = int(os.environ.get('SKIP', '1'))
SYM = int(os.environ.get('SYM', '0'))
SCT = int(os.environ.get('SCT', '0'))
THR = int(os.environ.get('THR', '44'))
NTWQ = os.environ.get('NTWQ', '')
NPART = 3
VF, VNEG, VL, VT, V16, VLT = 1, 3, 4, 6, 7, 8
NEGM, PR, TMP, OR, FR = 16, 24, 40, 128, 192
ML, FA, FB = 52, 56, 58
def sreg(kt, qb): return 72 + 16 * kt + 4 * qb
def preg(qb, kg): return PR + (qb * 2 + kg) * 4
def qreg(qb, mm): return 64 + 16 * mm + 4 * qb
def oreg(cb, qb): return OR + (cb * 2 + qb) * 4
def freg(j): return FR + j * 4
def kslot(j): return (j >> 1) + 8 * (j & 1) if CH & 2 else j

def merge_streams(main, fill, start=0):
    out = []
    n = len(main) - start
    acc = 0.0
    fill = list(fill)
    per = len(fill) / max(1, n)
    for i, m in enumerate(main):
        out.append(m)
        if i >= start:
            acc += per
            while fill and acc >= 0.999:
                out.append(fill.pop(0)); acc -= 1.0
    return out + fill

def dma4(g, so, first_m0=None, tag=None):
    ops = []
    for j in range(4):
        def op(j=j):
            if j == 0 and first_m0:
                g.e(first_m0); g.e("s_nop 0")
            g.vmem(f"buffer_load_dwordx4 v{V16}, s[28:31], s{so} offen offset:{j * 1024} {SC} lds", tag)
        ops.append(op)
    return ops

def next_ops(t):
    return [[f"s_and_b32 s19, s{t}, 3"], ["s_lshl_b32 s19, s19, 15"],
            ["s_xor_b32 s50, s19, 0x10000"], ["s_add_u32 s50, s50, s55"],
            [f"s_add_u32 s49, s{t}, 2"], ["s_lshl_b32 s51, s49, 14"], ["s_add_u32 s51, s51, s54"],
            ["s_cmp_lt_u32 s49, s48", "s_cselect_b32 s51, s51, s54"],
            [f"s_cmp_lt_u32 s{t}, s45", "s_cselect_b32 s49, s41, 0"],
            ["s_lshl_b32 s7, s49, 14"], ["s_add_u32 m0, s50, s7"], ["s_lshl_b32 s49, s49, 24"],
            ["s_add_u32 s7, s51, s49"], [f"s_add_u32 s51, s51, {16 * MB}"]]

def softmax_txt():
    out = []
    I = out.append
    T = [TMP + i for i in range(8)]
    for qb in range(2):
        for r in range(4): I(f"v_exp_f32 v{T[qb * 4 + r]}, v{sreg(0, qb) + r}")
    for qb in range(2): I(f"v_add_f32 v{VLT + qb}, v{T[qb * 4]}, v{T[qb * 4 + 1]}")
    for qb in range(2): I(f"PK {preg(qb, 0)},{T[qb * 4]},{T[qb * 4 + 1]}")
    for qb in range(2): I(f"v_add_f32 v{VLT + qb}, v{VLT + qb}, v{T[qb * 4 + 2]}")
    for qb in range(2): I(f"PK {preg(qb, 0) + 1},{T[qb * 4 + 2]},{T[qb * 4 + 3]}")
    for qb in range(2): I(f"v_add_f32 v{VLT + qb}, v{VLT + qb}, v{T[qb * 4 + 3]}")
    for kt in range(1, 4):
        for qb in range(2):
            s = sreg(kt, qb); t = T[qb * 4:qb * 4 + 4]
            for r in range(4): I(f"v_exp_f32 v{t[r]}, v{s + r}")
            p = preg(qb, kt >> 1) + (kt & 1) * 2
            I(f"v_add_f32 v{VLT + qb}, v{VLT + qb}, v{t[0]}")
            I(f"v_add_f32 v{VLT + qb}, v{VLT + qb}, v{t[1]}")
            I(f"PK {p},{t[0]},{t[1]}")
            I(f"v_add_f32 v{VLT + qb}, v{VLT + qb}, v{t[2]}")
            I(f"v_add_f32 v{VLT + qb}, v{VLT + qb}, v{t[3]}")
            I(f"PK {p + 1},{t[2]},{t[3]}")
    return out
def softmax_ops(g):
    return [lambda t=t: g.e(t) for t in softmax_txt()]

def xgroup(g, regs, op, tmp):
    for sw in ("v_permlane32_swap_b32", "v_permlane16_swap_b32"):
        for i, r in enumerate(regs): g.e(f"v_mov_b32 v{tmp + i}, v{r}")
        g.e("s_nop 1")
        for i, r in enumerate(regs): g.e(f"{sw} v{tmp + i}, v{r}")
        g.e("s_nop 1")
        for i, r in enumerate(regs): g.e(f"{op} v{r}, v{r}, v{tmp + i}")

def rescale(g, first):
    MX = [TMP + 8, TMP + 9]
    for qb in range(2):
        vals = [sreg(kt, qb) + r for kt in range(4) for r in range(4)]
        g.e(f"v_max3_f32 v{MX[qb]}, v{vals[0]}, v{vals[1]}, v{vals[2]}")
        for i in range(3, 15, 2): g.e(f"v_max3_f32 v{MX[qb]}, v{MX[qb]}, v{vals[i]}, v{vals[i + 1]}")
        g.e(f"v_max_f32 v{MX[qb]}, v{MX[qb]}, v{vals[15]}")
    xgroup(g, MX, "v_max_f32", TMP + 10)
    if not first:
        for qb in range(2): g.e(f"v_max_f32 v{MX[qb]}, 0, v{MX[qb]}")
    for kt in range(4):
        for qb in range(2):
            for r in range(4): g.e(f"v_sub_f32 v{sreg(kt, qb) + r}, v{sreg(kt, qb) + r}, v{MX[qb]}")
    for qb in range(2):
        for r in range(4): g.e(f"v_sub_f32 v{NEGM + qb * 4 + r}, v{NEGM + qb * 4 + r}, v{MX[qb]}")
    if not first:
        for qb in range(2): g.e(f"v_exp_f32 v{MX[qb]}, -v{MX[qb]}")
        g.e("s_nop 0")
        for cb in range(8):
            for qb in range(2):
                for r in range(4): g.e(f"v_mul_f32 v{oreg(cb, qb) + r}, v{oreg(cb, qb) + r}, v{MX[qb]}")
        for qb in range(2): g.e(f"v_mul_f32 v{VL + qb}, v{VL + qb}, v{MX[qb]}")

def mask_block(g):
    skip = g.newlabel("nomask"); l1 = g.newlabel("m1"); lf = g.newlabel("mf"); do = g.newlabel("domask")
    g.e("s_add_u32 s49, s52, 2")
    g.e("s_cmp_ge_u32 s49, s48")
    g.e(f"s_cbranch_scc1 {do}")
    g.e("s_sub_u32 s49, s52, s46")
    g.e("s_cmp_lt_u32 s49, 2")
    g.e(f"s_cbranch_scc0 {skip}")
    g.label(do)
    g.e("s_and_b32 s49, s52, 1")
    g.e("s_lshl_b32 s49, s49, 1")
    g.e("s_sub_u32 s49, s42, s49")
    def diag(kt, qb):
        for r in range(4): g.e(f"v_cndmask_b32 v{sreg(kt, qb) + r}, v{VNEG}, v{sreg(kt, qb) + r}, s[{8 + 2 * r}:{9 + 2 * r}]")
    def full(kt, qb):
        for r in range(4): g.e(f"v_mov_b32 v{sreg(kt, qb) + r}, v{VNEG}")
    g.e("s_cmp_ge_i32 s49, 2")
    g.e(f"s_cbranch_scc1 {skip}")
    g.e("s_cmp_eq_i32 s49, 1")
    g.e(f"s_cbranch_scc1 {l1}")
    g.e("s_cmp_lt_i32 s49, 0")
    g.e(f"s_cbranch_scc1 {lf}")
    diag(0, 0); full(1, 0); diag(1, 1); full(2, 0); full(2, 1); full(3, 0); full(3, 1)
    g.e(f"s_branch {skip}")
    g.label(l1)
    diag(2, 0); full(3, 0); diag(3, 1)
    g.e(f"s_branch {skip}")
    g.label(lf)
    for kt in range(4):
        for qb in range(2): full(kt, qb)
    g.label(skip)

def m_phase(g, has_pv, zero, split, post=None, pre=None):
    g.vm = []
    if has_pv: g.e("s_barrier")
    dma = dma4(g, 7) + (dma4(g, 51, "s_add_u32 m0, s50, 16384") if split else [])
    sal = [["s_add_u32 s49, s52, 2"], ["s_cmp_ge_u32 s49, s48", "s_cselect_b32 s4, 0, 4"], ["s_sub_u32 s49, s52, s46"], ["s_min_u32 s4, s4, s49"],
           ["s_cmp_lt_u32 s52, s53", "s_cselect_b32 s47, 1, 2"], ["s_add_u32 s47, s47, s52"]]
    sal2 = next_ops(47)
    rq = []
    if has_pv:
        g.ds = []
        sp = DSP if split else 4
        seq = [(kg, cb, qb) for cb in range(8) for qb in range(2) for kg in range(2)] if CH & 2 else [(j >> 3, j & 7, qb) for j in range(16) for qb in range(2)]
        lastuse = {kg * 8 + cb: i for i, (kg, cb, qb) in enumerate(seq)}
        for i, (kg, cb, qb) in enumerate(seq):
            g.e(f"{'MZ' if zero and kg == 0 else 'M'} {oreg(cb, qb)},{freg(kg * 8 + cb)},{preg(qb, kg)}")
            if rq and (i % 2 == 0): rq.pop(0)()
            for j in range(16):
                if lastuse[kslot(j)] == i: rq.append(lambda j=j: g.lds(f"DR {freg(kslot(j))},{VF},{j * 1024}", ("k", j)))
            if i % 2 == 1:
                if dma and (i >> 1) % sp == 0: dma.pop(0)()
                elif sal:
                    for t in sal.pop(0): g.e(t)
    else:
        sp = 2
    PT = int(os.environ.get('PT', '5'))
    if has_pv and not zero: g.stamp_if(7, 52, PT)
    tail = []
    assert NTAIL <= 8
    if has_pv: tail = [[o] for o in softmax_ops(g)[:NTAIL]]
    seq = [(kt, mm, qb) for kt in range(4) for qb in range(2) for mm in range(4)] if CH & 1 else [(j >> 2, j & 3, qb) for j in range(16) for qb in range(2)]
    lastuse = {kt * 4 + mm: i for i, (kt, mm, qb) in enumerate(seq)}
    for i, (kt, mm, qb) in enumerate(seq):
        j, odd = i >> 1, i & 1
        if i == 2 * EB:
            if pre: pre()
            if has_pv and not zero: g.stamp_if(8, 52, PT)
            if has_pv: g.e(f"s_waitcnt vmcnt({8 if split else 4})")
            g.e("s_setprio 2")
            g.e("s_barrier")
        if i == 0: g.wait_ds(("k", 9))
        if i == 12: g.wait_ds(("k", 15))
        f = freg(kslot(kt * 4 + mm))
        if mm == 0: g.e(f"MC {sreg(kt, qb)},{f},{qreg(qb, mm)},{NEGM + qb * 4}")
        else: g.e(f"M {sreg(kt, qb)},{f},{qreg(qb, mm)}")
        did = False
        if rq and (not odd or i >= 28): rq.pop(0)(); did = True
        for jj in range(16):
            if lastuse[jj] == i: rq.append(lambda sl=kslot(jj): g.lds(f"DR {freg(sl)},{VF},{16384 + sl * 1024}", "v"))
        if j >= EB and tail:
            for op in tail.pop(0): op()
        if not has_pv and j >= EB and dma: dma.pop(0)()
        elif has_pv and odd and dma and (j + 16) % sp == 0: dma.pop(0)()
        elif odd and sal:
            for t in sal.pop(0): g.e(t)
        elif not sal and not dma and sal2:
            for t in sal2.pop(0): g.e(t)
    while dma: dma.pop(0)()
    assert not sal
    if post: post()
    for grp in sal2:
        for t in grp: g.e(t)
    while rq: rq.pop(0)()
    g.e("s_setprio 0")
    for w in tail:
        for op in w: op()
    g.vm = []; g.ds = []
    if has_pv:
        g.e("s_cmp_lt_u32 s4, 4")
        g.e("s_cbranch_scc1 L_k2_sgen")
    elif SF0:
        g.e("s_cmp_lt_u32 s4, 4")
        g.e("s_cbranch_scc1 L_k2_sgen")
        for op in softmax_ops(g): op()
        g.e(f"v_max_f32 v{VT}, v{VLT}, v{VLT + 1}")
        g.e(f"v_min_f32 v{TMP}, v{VLT}, v{VLT + 1}")
        g.e(f"v_cmp_lt_f32 vcc, s56, v{VT}")
        g.e("s_cbranch_vccnz L_k2_sgen")
        g.e(f"v_cmp_gt_f32 vcc, s6, v{TMP}")
        g.e("s_cbranch_vccnz L_k2_sgen")
        for qb in range(2): g.e(f"v_mov_b32 v{VL + qb}, v{VLT + qb}")
        advance(g)
        g.e("s_waitcnt lgkmcnt(0)")
        g.e("s_branch L_k2_mzsh")
    else:
        g.e("s_branch L_k2_sgen")

def advance(g):
    g.e("s_mov_b32 s52, s47")
    g.e(f"v_add_u32 v{VF}, s19, v{V16}")

def role_ops(dh, dg, dx, dy, t1, t2):
    if BAL:
        ops = [f"s_lshr_b32 s{dg}, s2, 3", f"s_mul_i32 s{t1}, s{dg}, 43", f"s_lshr_b32 s{t1}, s{t1}, 7", f"s_mul_i32 s{t2}, s{t1}, 3",
               f"s_sub_u32 s{t2}, s{dg}, s{t2}", f"s_lshl_b32 s{t2}, s{t2}, 1", f"s_and_b32 s{dh}, s2, 1", f"s_add_u32 s{t2}, s{t2}, s{dh}",
               f"s_sub_u32 s{dh}, s{dg}, 24", f"s_cmp_ge_u32 s{dg}, 24", f"s_cselect_b32 s{t1}, s{dh}, s{t1}", f"s_cselect_b32 s{dg}, 6, s{t2}",
               f"s_and_b32 s{dh}, s2, 6", f"s_and_b32 s{t2}, s{t1}, 1", f"s_add_u32 s{dh}, s{dh}, s{t2}",
               f"s_lshr_b32 s{t1}, s{t1}, 1", f"s_lshl_b32 s{t1}, s{t1}, 3", f"s_add_u32 s{dh}, s{dh}, s{t1}"]
    else:
        ops = [f"s_lshr_b32 s{dg}, s2, 3", f"s_mul_i32 s{t1}, s{dg}, 37", f"s_lshr_b32 s{t1}, s{t1}, 8", f"s_mul_i32 s{t2}, s{t1}, 7",
               f"s_sub_u32 s{dg}, s{dg}, s{t2}", f"s_lshl_b32 s{t1}, s{t1}, 3", f"s_and_b32 s{dh}, s2, 7", f"s_add_u32 s{dh}, s{dh}, s{t1}"]
    return ops + [f"s_sub_u32 s{dx}, 15, s{dg}", f"s_xor_b32 s{dy}, s{dg}, {1 if BAL == 2 else 0}", f"s_add_u32 s{dy}, s{dy}, 4", f"s_cmp_eq_u32 s{dg}, 6",
            f"s_cselect_b32 s{dx}, 3, s{dx}", f"s_cselect_b32 s{dy}, 2, s{dy}"]

def gen_attn(g):
    def setup(fast):
        for t in role_ops(43, 44, 32, 33, 49, 50): g.e(t)
        g.e("s_lshr_b32 s41, s40, 2")
        g.e("s_and_b32 s42, s40, 3")
        g.e(f"s_and_b32 s49, s3, {6 if BAL else 7}")
        g.e("s_lshl_b32 s49, s49, 20")
        g.e("s_add_u32 s60, s6, s49")
        g.e("s_addc_u32 s61, s7, 0")
        g.e(f"s_mov_b32 s62, {2 * MB if BAL else MB}")
        g.e("s_mov_b32 s63, 0x20000")
        if fast: srd(g, 20, 8, 9, 512 * 8192)
        else: srd(g, 20, 4, 5, 512 * 8192)
        srd(g, 24, 16, 17, SZ_XN, WS_XN)
        srd(g, 28, 16, 17, 2 * SZ_KV, WS_K)
        srd(g, 36, 16, 17, SZ_CTX, WS_CTX)
        g.e("s_lshl_b32 s55, s42, 12")
        g.e("s_lshl_b32 s54, s43, 19")
        g.e("s_add_u32 s54, s54, s55")
        g.e("s_lshl_b32 s57, s42, 13")
        g.e(f"s_add_u32 s57, s57, {STASH}")
        g.e("v_and_b32 v28, 63, v0")
        g.e(f"v_lshlrev_b32 v{V16}, 4, v28")
        g.e("v_and_b32 v28, 15, v0")
        g.e("v_bfe_u32 v29, v0, 4, 2")
        g.e("v_lshlrev_b32 v29, 2, v29")
        g.e("v_sub_u32 v28, v28, v29")
        for r in range(4): g.e(f"v_cmp_le_i32 s[{8 + 2 * r}:{9 + 2 * r}], {r}, v28")
        if MERGE:
            g.e("s_mul_i32 s49, s43, 43")
            g.e("s_lshr_b32 s49, s49, 7")
            g.e("s_lshl_b32 s49, s49, 7")
            g.e("s_lshl_b32 s50, s3, 13")
            g.e("s_add_u32 s49, s49, s50")
            g.e("v_and_b32 v14, 15, v0")
            g.e("v_lshl_add_u32 v14, v14, 2, s49")
    def wdma(s):
        g.e("s_lshr_b32 s51, s2, 3" if k1.QROT else "s_mov_b32 s51, 0")
        g.e(f"s_add_u32 s51, s51, {s}")
        g.e("s_and_b32 s51, s51, 3")
        g.e("s_lshl_b32 s51, s51, 20")
        g.e("s_add_u32 s51, s51, s18")
        g.e(f"s_add_u32 m0, s19, {s * 32768}")
        g.e("s_nop 0")
        for j in range(4):
            g.vmem(f"buffer_load_dwordx4 v{1 + j}, s[20:23], s51 offen offset:{j * 1024} {NTWQ} lds", ("w", s))
    def xload(m):
        if m % 4 == 0:
            g.e("s_lshr_b32 s6, s2, 3" if k1.QROT else "s_mov_b32 s6, 0")
            g.e(f"s_add_u32 s6, s6, {m >> 2}")
            g.e("s_and_b32 s6, s6, 3")
            g.e("s_lshl_b32 s6, s6, 12")
            g.e("s_add_u32 s6, s6, s47")
            g.e("s_add_u32 s7, s6, 16384")
        for a in range(2):
            x = xreg(a, m)
            g.vmem(f"buffer_load_dwordx4 v[{x}:{x + 3}], v{V16}, s[24:27], s{6 + a} offen offset:{(m % 4) * 1024} {SC}", ("x", m))
    def pf_prep():
        g.e("s_load_dwordx2 s[96:97], s[0:1], 40")
        g.e("s_load_dwordx2 s[34:35], s[0:1], 80")
        g.e("s_and_b32 s5, s2, 0xf8")
        g.e("s_add_u32 s5, s5, s40")
        if BAL:
            g.e("s_and_b32 s49, s2, 1")
            g.e("s_mul_i32 s49, s49, 192")
            g.e("s_add_u32 s5, s5, s49")
            g.e("s_lshr_b32 s4, s3, 1")
            g.e("s_mul_i32 s4, s4, 448")
        else: g.e("s_mul_i32 s4, s3, 224")
        g.e("s_add_u32 s4, s4, s5")
        g.e("s_cmp_eq_u32 s32, 1")
        g.e("s_cselect_b32 s49, 0x10000, 0")
        g.e(f"v_lshl_add_u32 v15, v{V16}, 3, s49")
        g.e("v_mov_b32 v13, 0x10000000")
        for v, n, sr in ((10, 4736, 5), (11, 2432, 4), (12, 512, 4)):
            g.e(f"v_cmp_gt_u32 vcc, {n}, v15")
            g.e(f"s_mul_i32 s49, s{sr}, {n}")
            g.e(f"v_add_u32 v{v}, s49, v15")
            g.e(f"v_cndmask_b32 v{v}, v13, v{v}, vcc")
    def pf_wsp():
        g.e(f"s_mov_b32 s98, {4 * MB}")
        g.e("s_mov_b32 s99, 0x20000")
        g.e("buffer_load_dword v13, v10, s[60:63], 0 offen")
        g.e("buffer_load_dword v13, v11, s[96:99], 0 offen")
        srd(g, 96, 34, 35, 896 * 1024)
        g.e("buffer_load_dword v13, v12, s[96:99], 0 offen")
    def first_tile(t):
        g.e("s_lshl_b32 s49, s41, 24")
        g.e("s_add_u32 s50, s54, s49")
        if t: g.e("s_add_u32 s50, s50, 16384")
        return dma4(g, 50, f"s_add_u32 m0, s19, {t * 32768}", "kv")
    def w0_only(fn):
        sk = g.newlabel("w0")
        g.e("s_cmp_eq_u32 s32, 1")
        g.e("s_cselect_b32 s49, 1, s40")
        g.e("s_cmp_lg_u32 s49, 0")
        g.e(f"s_cbranch_scc1 {sk}")
        fn()
        g.label(sk)
    def fmap(s, f):
        if k1.CHG: return (f >> 4, f & 3, (f >> 2) & 3)
        return (f >> 4, (f >> 2) & 3, f & 3) if s == 3 else ((f >> 2) & 1, f >> 3, f & 3)
    def qpack(p):
        ops = []
        I = lambda s: ops.append(lambda s=s: g.e(s))
        for a in range(2):
            for mm in range(2):
                x, y = areg(p, 2 * mm, a), areg(p, 2 * mm + 1, a)
                assert x == qreg(a, 2 * p + mm)
                for r in range(4): I(f"v_mul_f32 v{x + r}, s56, v{x + r}")
                for r in range(4): I(f"v_mul_f32 v{y + r}, s56, v{y + r}")
                I(f"PK {x},{x},{x + 1}"); I(f"PK {x + 1},{x + 2},{x + 3}")
                I(f"PK {x + 2},{y},{y + 1}"); I(f"PK {x + 3},{y + 2},{y + 3}")
        return ops
    def qphase(fast):
        if not fast: w_voffsets(g, 8192, 1)
        g.e("s_lshl_b32 s18, s43, 8")
        g.e("s_lshl_b32 s49, s42, 18")
        g.e("s_add_u32 s18, s18, s49")
        g.e("s_lshl_b32 s49, s41, 7")
        g.e("s_add_u32 s18, s18, s49")
        g.e("s_lshl_b32 s19, s40, 12")
        g.e("s_cmp_eq_u32 s41, 0")
        g.e("s_cselect_b32 s47, s32, s33")
        g.e("s_lshl_b32 s47, s47, 17")
        g.e("s_lshl_b32 s49, s42, 15")
        g.e("s_add_u32 s47, s47, s49")
        if PROF == 1: g.stamp(6)
        if not fast:
            wdma(0)
            for m in range(2): xload(m)
            if not MERGE: code_touch(g, 96, 14, "L_k2_sp")
            g.e("s_barrier")
            for m in range(2, 4): xload(m)
            later = {0: lambda: wdma(1), 22: lambda: wdma(2), 50: lambda: wdma(3)}
            for m, F in zip(range(4, 16), XSCH): later[F] = lambda m=m: xload(m)
            tr_bases(g, 5, 6)
            FS, FL = 0, 20
        else:
            later = {0: lambda: wdma(2), 30: lambda: wdma(3)}
            if k1.QTAIL:
                for m, F in zip(range(12, 16), (8, 16, 38, 52)): later[F] = lambda m=m: xload(m)
            else:
                for m, F in zip(range(8, 16), (4, 10, 16, 22, 36, 42, 52, 60)): later[F] = lambda m=m: xload(m)
            g.e("v_xor_b32 v5, 0x10000, v5")
            g.e("v_xor_b32 v6, 0x10000, v6")
            g.e("v_mov_b32 v13, 0")
            FS, FL = 1, 46
        g.e(f"s_mov_b32 s56, {f32(QSCALE)}")
        g.e("s_lshl_b32 s48, s32, 1")
        g.e("s_add_u32 s48, s48, 2")
        if 'a' in HACK:
            g.e("s_cmp_ge_u32 s32, 10")
            g.e("s_cselect_b32 s49, 2, 0")
            g.e("s_sub_u32 s33, s33, s49")
            g.e("s_lshr_b32 s49, s49, 1")
            g.e("s_add_u32 s33, s33, s49")
        g.e("s_lshl_b32 s45, s33, 1")
        g.e("s_add_u32 s45, s45, 2")
        g.e("s_sub_u32 s53, s45, s41")
        g.e("s_sub_u32 s46, s45, 2")
        g.e("s_cmp_eq_u32 s41, 0")
        g.e("s_cselect_b32 s46, 0x1000, s46")
        g.stamp(1)
        if MERGE: later[FL] = lambda: w0_only(lambda: flag_load(g, 13, 14, 100))
        def wread(F, half=None):
            s, f = F >> 5, F & 31
            if s >= 4: return
            if f == 0 and half != 1:
                g.wait_vm(("w", s), "kv", *(["st"] if s == FS else []))
                if MERGE and s == 2: w0_only(lambda: flag_wait(g, 13, 14, 59, 100, SLA, True))
                g.e("s_barrier")
                if MERGE and s == FS: w0_only(lambda: flag_set(g, 10, 58, 59, 100))
                if s == 2:
                    g.e("v_xor_b32 v5, 0x10000, v5")
                    g.e("v_xor_b32 v6, 0x10000, v6")
                if s >= 2:
                    for op in first_tile(s - 2): op()
            p, ks, cb = fmap(s, f)
            mp = p * 4 + ks
            r = WR + (F % 8) * 4
            for a in (range(2) if half is None else [half]):
                o = (s & 1) * 32768 + mp * 4096 + a * 512 + (cb >> 1) * 256
                g.lds(f"TR {r + 2 * a},{6 if cb & 1 else 5},{o}", ("w", F))
        CHG = k1.CHG
        for F in range(8 if CHG else D): wread(F)
        fill = []; rq = []
        for s in range(4):
            if PROF == 1: g.stamp(7 + s)
            for f in range(32):
                F = s * 32 + f
                if F == 116: fill = qpack(0)
                for h in range(2):
                    if CHG:
                        i = (f & 3) * 2 + h
                        Fm, a = (F & ~3) + (i & 3), i >> 2
                    else: Fm, a = F, h
                    p, ks, cb = fmap(s, Fm & 31)
                    m = s * 4 + ks
                    if p == 0 and cb == 0 and a == 0: g.wait_vm(("x", m))
                    if a == 0: g.wait_ds(("w", Fm))
                    r = WR + (Fm % 8) * 4
                    g.e(f"{'MZ' if m == 0 else 'M'} {areg(p, cb, a)},{r},{xreg(a, m)}")
                    if CHG:
                        if rq: rq.pop(0)()
                        if a == 1: rq += [lambda Fm=Fm: wread(Fm + 8, 0), lambda Fm=Fm: wread(Fm + 8, 1)]
                    else: wread(F + D, h)
                    if fill: fill.pop(0)(); fill.pop(0)()
                if F in later: later.pop(F)()
        assert not fill and not later
    if k1.QFAST:
        g.label("L_p2f")
        g.stamp(0)
        if PROF: g.e("s_memrealtime s[94:95]")
        g.vm = list(k1.FAST_VM); g.ds = []
        g.e("s_and_b32 s3, s2, 7")
        setup(True)
        qphase(True)
        g.e("s_branch L_k2_qend")
    g.vm = []; g.ds = []
    g.label("L_k2_attn")
    setup(False)
    if MERGE: g.e("s_barrier")
    g.label("L_k2_round")
    qphase(False)
    g.label("L_k2_qend")
    g.stamp(2)
    g.e("s_mov_b32 s47, 0")
    for grp in next_ops(47):
        for t in grp: g.e(t)
    advance(g)
    g.vm = []; g.ds = []
    for j in range(16): g.e(f"DR {freg(kslot(j))},{VF},{j * 1024}")
    for op in qpack(1): op()
    g.e(f"v_mov_b32 v{VNEG}, {f32(-1e30)}")
    g.e(f"s_mov_b32 s56, {f32(2.0 ** THR)}")
    g.e(f"s_mov_b32 s6, {f32(2.0 ** -THR)}")
    for i in range(8): g.e(f"v_mov_b32 v{NEGM + i}, 0")
    g.e(f"v_add_u32 v9, s57, v{V16}")
    if PFS: pf_prep()
    g.e("s_waitcnt vmcnt(0) lgkmcnt(0)")
    g.stamp(3)
    la = g.newlabel("qa")
    g.e("s_cmp_eq_u32 s41, 0")
    g.e(f"s_cbranch_scc1 {la}")
    g.e("s_barrier")
    g.label(la)
    def post0():
        if PFS: pf_wsp()
    def pre0():
        sk = g.newlabel("nost")
        g.e("s_cmp_eq_u32 s41, 0")
        g.e(f"s_cbranch_scc0 {sk}")
        for qb in range(2):
            for mm in range(4): g.e(f"DW 9,{qreg(qb, mm)},{(qb * 4 + mm) * 1024}")
        g.label(sk)
    m_phase(g, False, False, False, post0, pre0)
    def s_fast(tag):
        g.label(f"L_k2_s{tag}")
        PT = int(os.environ.get('PT', '5'))
        g.stamp_if(9, 52, PT)
        for op in softmax_ops(g)[NTAIL:]: op()
        g.e(f"v_max_f32 v{VT}, v{VLT}, v{VLT + 1}")
        g.e(f"v_cmp_lt_f32 vcc, s56, v{VT}")
        g.e("s_cbranch_vccnz L_k2_sgen")
        for qb in range(2): g.e(f"v_add_f32 v{VL + qb}, v{VL + qb}, v{VLT + qb}")
        g.stamp_if(10, 52, PT)
        if PROF == 2:
            g.e("s_waitcnt vmcnt(0) lgkmcnt(0)")
            g.stamp_if(11, 52, PT)
        advance(g)
        if tag == "sh": g.e("s_cmp_lt_u32 s52, s45")
        g.e("s_waitcnt lgkmcnt(0)" if tag == "sh" else "s_waitcnt vmcnt(0) lgkmcnt(0)")
    s_fast("sh")
    g.e("s_cbranch_scc0 L_k2_msp")
    def mcheck(tag):
        if not SKIP: return
        g.e("s_sub_u32 s49, s52, s46")
        g.e("s_cmp_lt_u32 s49, 4")
        g.e("s_cbranch_scc1 L_k2_mdisp")
        if tag == "sp":
            g.e("s_add_u32 s49, s52, 2")
            g.e("s_cmp_ge_u32 s49, s48")
            g.e("s_cbranch_scc1 L_k2_mdisp")
        g.label(f"L_k2_m{tag}2")
    g.label("L_k2_msh")
    mcheck("sh")
    g.stamp_if(6, 52, int(os.environ.get('PT', '5'))); g.stamp_if(12, 52, int(os.environ.get('PT', '5')) + 1)
    m_phase(g, True, False, False)
    g.e("s_branch L_k2_ssh")
    s_fast("sp")
    g.label("L_k2_msp")
    mcheck("sp")
    m_phase(g, True, False, True)
    g.e("s_branch L_k2_ssp")
    g.label("L_k2_mzsh")
    m_phase(g, True, True, False)
    g.e("s_branch L_k2_ssh")
    g.label("L_k2_mzsp")
    m_phase(g, True, True, True)
    g.e("s_branch L_k2_ssp")
    if SKIP:
        g.label("L_k2_mdisp")
        def level(dst, par):
            g.e(f"s_lshl_b32 s{dst}, s{par}, 1")
            g.e(f"s_add_u32 s{dst}, s{dst}, 1")
            g.e(f"s_sub_u32 s{dst}, s{dst}, s42")
            g.e(f"s_max_i32 s{dst}, s{dst}, 0")
            g.e(f"s_min_i32 s{dst}, s{dst}, 2")
        g.e("s_and_b32 s49, s52, 1")
        level(4, 49)
        g.e("s_sub_u32 s49, s52, s46")
        g.e("s_add_u32 s5, s52, 2")
        g.e("s_cmp_ge_u32 s5, s48")
        g.e("s_cselect_b32 s5, 0, s49")
        g.e("s_cmp_lt_u32 s5, 2")
        g.e("s_cselect_b32 s4, s4, 0")
        g.e("s_lshr_b32 s18, s49, 1")
        level(5, 18)
        g.e("s_or_b32 s49, s49, 2")
        g.e("s_cmp_eq_u32 s49, 3")
        g.e("s_cselect_b32 s5, s5, 0")
        g.e("s_or_b32 s49, s4, s5")
        g.e("s_cbranch_scc1 L_k2_mx")
        g.e("s_cmp_lt_u32 s52, s45")
        g.e("s_cbranch_scc1 L_k2_msh2")
        g.e("s_branch L_k2_msp2")
        g.label("L_k2_mx")
        def cond(sreg_, lim, fn):
            l = g.newlabel("sk")
            g.e(f"s_cmp_gt_u32 s{sreg_}, {lim}")
            g.e(f"s_cbranch_scc1 {l}")
            fn()
            g.label(l)
        def pvb(kg):
            for cb in range(8):
                for qb in range(2): g.e(f"M {oreg(cb, qb)},{freg(kg * 8 + cb)},{preg(qb, kg)}")
        def rd(h, base):
            for j in range(8 * h, 8 * h + 8): g.e(f"DR {freg(j)},{VF},{base + j * 1024}")
        def qkb(h):
            for kt in (2 * h, 2 * h + 1):
                for qb in range(2):
                    for mm in range(4):
                        if mm == 0: g.e(f"MC {sreg(kt, qb)},{freg(kt * 4)},{qreg(qb, 0)},{NEGM + qb * 4}")
                        else: g.e(f"M {sreg(kt, qb)},{freg(kt * 4 + mm)},{qreg(qb, mm)}")
        g.e("s_barrier")
        cond(5, 1, lambda: pvb(0))
        cond(4, 1, lambda: rd(0, 0))
        for op in dma4(g, 7): op()
        cond(5, 0, lambda: pvb(1))
        cond(4, 0, lambda: rd(1, 0))
        lsh = g.newlabel("sh"); lj = g.newlabel("j")
        g.e("s_cmp_lt_u32 s52, s45")
        g.e(f"s_cbranch_scc1 {lsh}")
        for op in dma4(g, 51, "s_add_u32 m0, s50, 16384"): op()
        g.e("s_waitcnt vmcnt(8)")
        g.e(f"s_branch {lj}")
        g.label(lsh)
        g.e("s_waitcnt vmcnt(4)")
        g.label(lj)
        g.e("s_cmp_lt_u32 s52, s53")
        g.e("s_cselect_b32 s47, 1, 2")
        g.e("s_add_u32 s47, s47, s52")
        for grp in next_ops(47):
            for t in grp: g.e(t)
        g.e("s_waitcnt lgkmcnt(0)")
        cond(4, 1, lambda: (qkb(0), rd(0, 16384)))
        cond(4, 0, lambda: (qkb(1), rd(1, 16384)))
        g.e("s_barrier")
        g.e("s_nop 4")
        g.e("s_branch L_k2_sgen")
        g.vm = []; g.ds = []
    EXP = os.environ.get('ATEXP', '')
    if EXP:
        i0 = g.lines.index("L_k2_ssh:")
        keep = []
        for l in g.lines[i0:]:
            if 'd' in EXP and l.startswith('buffer_load'): continue
            if 'r' in EXP and l.startswith('DR '): continue
            if 'e' in EXP and l.startswith('v_exp'): l = l.replace('v_exp_f32', 'v_mov_b32')
            if 'v' in EXP and (l.startswith('v_exp') or l.startswith('PK') or (l.startswith('v_add_f32 v8') or l.startswith('v_add_f32 v9'))): continue
            if 'b' in EXP and l.startswith('s_cbranch_vccnz'): continue
            keep.append(l)
        g.lines[i0:] = keep
    def ctx_base(blk):
        g.e(f"s_lshl_b32 s49, s{blk}, 3")
        g.e("s_lshl_b32 s35, s42, 1")
        g.e("s_add_u32 s49, s49, s35")
        g.e("s_mul_i32 s49, s49, 159744")
        g.e("s_lshl_b32 s35, s43, 12")
        g.e("s_add_u32 s34, s49, s35")
        g.e("s_add_u32 s35, s34, 159744")
    def pack_store(mm, qb, fl=STF2):
        x, y = oreg(2 * mm, qb), oreg(2 * mm + 1, qb)
        return [f"PK {x},{x},{x + 1}", f"PK {x + 1},{x + 2},{x + 3}", f"PK {x + 2},{y},{y + 1}", f"PK {x + 3},{y + 2},{y + 3}",
                f"buffer_store_dwordx4 v[{x}:{x + 3}], v{V16}, s[36:39], s{34 + qb} offen offset:{mm * 1024} {fl}"]
    g.label("L_k2_sgen")
    def st5(i, val):
        if PROF == 5:
            l = g.newlabel("st"); g.e(f"s_cmp_lg_u32 s52, {val}"); g.e(f"s_cbranch_scc1 {l}"); g.stamp(i); g.label(l)
    st5(4, 0); st5(7, 8); st5(9, 9); st5(11, 11)
    if PROF == 5: g.stamp(13)
    g.e("s_sub_u32 s49, s52, s46")
    g.e("s_cmp_eq_u32 s49, 3")
    g.e("s_cselect_b32 s5, 2, 0")
    g.e("s_cmp_eq_u32 s52, 0")
    g.e("s_cselect_b32 s5, 1, s5")
    g.e("s_cselect_b32 s18, s6, 0")
    g.e("s_cmp_eq_u32 s5, 2")
    g.e("s_cselect_b32 s18, s6, s18")
    mask_block(g)
    ny = g.newlabel("ny"); jy = g.newlabel("jy")
    g.e("s_cmp_eq_u32 s5, 2")
    g.e(f"s_cbranch_scc0 {ny}")
    ctx_base(33)
    so = softmax_ops(g)
    k = 0
    for mm in range(4):
        for qb in range(2):
            for cb in (2 * mm, 2 * mm + 1):
                for r in range(4): g.e(f"v_mul_f32 v{oreg(cb, qb) + r}, v{oreg(cb, qb) + r}, v{FA + qb}")
            for t in pack_store(mm, qb): g.e(t)
            n = 9 if k < 2 else 10
            for op in so[:n]: op()
            so = so[n:]; k += 1
    assert not so
    g.e(f"s_branch {jy}")
    g.label(ny)
    for op in softmax_ops(g): op()
    g.label(jy)
    g.e(f"v_max_f32 v{VT}, v{VLT}, v{VLT + 1}")
    g.e(f"v_min_f32 v{TMP}, v{VLT}, v{VLT + 1}")
    g.e(f"v_cmp_lt_f32 vcc, s56, v{VT}")
    g.e("s_cbranch_vccnz L_k2_slow")
    g.e(f"v_cmp_gt_f32 vcc, s18, v{TMP}")
    g.e("s_cbranch_vccnz L_k2_slow")
    g.label("L_k2_back")
    nf = g.newlabel("nf")
    g.e("s_cmp_eq_u32 s5, 0")
    g.e(f"s_cbranch_scc1 {nf}")
    for qb in range(2): g.e(f"v_mov_b32 v{VL + qb}, 0")
    g.label(nf)
    for qb in range(2): g.e(f"v_add_f32 v{VL + qb}, v{VL + qb}, v{VLT + qb}")
    g.e("s_add_u32 s49, s52, 2")
    g.e("s_cmp_ge_u32 s49, s48")
    g.e("s_cbranch_scc1 L_k2_xlast")
    nl = g.newlabel("nyl")
    g.e("s_sub_u32 s49, s52, s46")
    g.e("s_cmp_eq_u32 s49, 1")
    g.e(f"s_cbranch_scc0 {nl}")
    g.e(f"v_add_u32 v10, s57, v{V16}")
    for qb in range(2):
        for mm in range(4): g.e(f"DR {qreg(qb, mm)},10,{(qb * 4 + mm) * 1024}")
    xgroup(g, [VL, VL + 1], "v_add_f32", TMP + 2)
    for qb in range(2): g.e(f"v_rcp_f32 v{FA + qb}, v{VL + qb}")
    for i in range(8): g.e(f"v_mov_b32 v{NEGM + i}, 0")
    g.label(nl)
    st5(6, 0); st5(8, 8); st5(10, 9); st5(12, 11)
    advance(g)
    g.e("s_cmp_lt_u32 s52, s45")
    g.e("s_cselect_b32 s49, 0, 4")
    g.e("s_add_u32 s5, s5, s49")
    w8 = g.newlabel("w8")
    g.e("s_and_b32 s49, s5, 3")
    g.e(f"s_cbranch_scc1 {w8}")
    g.e("s_waitcnt vmcnt(0)")
    g.label(w8)
    g.e("s_waitcnt vmcnt(8) lgkmcnt(0)")
    g.e("s_cmp_eq_u32 s5, 0")
    g.e("s_cbranch_scc1 L_k2_msh")
    g.e("s_cmp_eq_u32 s5, 4")
    g.e("s_cbranch_scc1 L_k2_msp")
    g.e("s_cmp_eq_u32 s5, 1")
    g.e("s_cbranch_scc1 L_k2_mzsh")
    g.e("s_branch L_k2_mzsp")
    g.label("L_k2_xlast")
    if PROF == 5: g.stamp(14)
    g.e("s_and_b32 s49, s48, 3")
    g.e("s_lshl_b32 s49, s49, 15")
    g.e("s_lshl_b32 s50, s42, 13")
    g.e("s_add_u32 s50, s50, s49")
    g.e(f"v_add_u32 v11, s50, v{V16}")
    g.e(f"v_add_u32 v10, s57, v{V16}")
    g.e("s_xor_b32 s49, s49, 0x10000")
    g.e("s_lshl_b32 s50, s42, 10")
    g.e("s_add_u32 s49, s49, s50")
    g.e(f"v_add_u32 v{VT}, s49, v{V16}")
    xaddr = lambda i: (10 + (i >> 3), (i & 7) * 1024)
    def pvgroup(cb, zero, mid=()):
        mid = list(mid)
        for kg in range(2):
            for qb in range(2):
                g.e(f"{'MZ' if zero and kg == 0 else 'M'} {oreg(cb, qb)},{freg(kg * 8 + cb)},{preg(qb, kg)}")
                n = -(-len(mid) // (4 - (kg * 2 + qb)))
                for _ in range(n): mid.pop(0)()
    g.e("s_cmp_eq_u32 s41, 0")
    g.e("s_cbranch_scc0 L_k2_xlastB")
    g.e(f"v_mov_b32 v{ML}, v{NEGM}")
    g.e(f"v_mov_b32 v{ML + 1}, v{NEGM + 4}")
    g.e(f"v_mov_b32 v{ML + 2}, v{VL}")
    g.e(f"v_mov_b32 v{ML + 3}, v{VL + 1}")
    g.e(f"DW {VT},{ML},0")
    g.e("s_waitcnt vmcnt(0) lgkmcnt(0)")
    g.e("s_barrier")
    def sym_fin(half, zero):
        give = range(4, 8) if half == 0 else range(0, 4)
        keep = range(0, 4) if half == 0 else range(4, 8)
        wa, ra = (10, 11) if half == 0 else (11, 10)
        dw = lambda cb, qb: (lambda: g.e(f"DW {wa},{oreg(cb, qb)},{((cb & 3) * 2 + qb) * 1024}"))
        order = list(give) + list(keep)
        for i, cb in enumerate(order):
            pvgroup(cb, zero, [dw(order[i - 3], 0), dw(order[i - 3], 1)] if 3 <= i < 7 else [])
        g.e("s_waitcnt vmcnt(0) lgkmcnt(0)")
        g.e("s_barrier")
        g.ds = []
        if half == 0: g.lds(f"DR {FA},{VT},4096", "f")
        for cb in keep:
            for qb in range(2): g.lds(f"DR {freg((cb & 3) * 2 + qb)},{ra},{((cb & 3) * 2 + qb) * 1024}", ("o", cb, qb))
        own, oth = (FA, FB) if half == 0 else (FB, FA)
        g.wait_ds("f")
        for mm in (keep[0] // 2, keep[0] // 2 + 1):
            for qb in range(2):
                for cb in (2 * mm, 2 * mm + 1):
                    o = oreg(cb, qb)
                    for r in range(4): g.e(f"v_mul_f32 v{o + r}, v{o + r}, v{own + qb}")
                    g.wait_ds(("o", cb, qb))
                    for r in range(4): g.e(f"v_fmac_f32 v{o + r}, v{freg((cb & 3) * 2 + qb) + r}, v{oth + qb}")
                for t in pack_store(mm, qb, STFX): g.e(t)
    if SYM:
        ctx_base(32)
        sym_fin(0, False)
        g.e("s_branch L_k2_rend")
    else:
        dw = lambda i: (lambda: g.e(f"DW {xaddr(i)[0]},{OR + i * 4},{xaddr(i)[1]}"))
        for cb in range(8):
            pvgroup(cb, False, [dw(2 * cb - 6), dw(2 * cb - 5)] if cb >= 3 else [])
        for i in range(10, 12): dw(i)()
        g.e("s_nop 3")
        for i in range(12, 16): dw(i)()
        g.e("s_waitcnt lgkmcnt(0)")
        g.e("s_barrier")
        g.e("s_branch L_k2_rend")
    g.label("L_k2_xlastB")
    g.e(f"DR {ML},{VT},0")
    ctx_base(32)
    NM = TMP
    g.e("s_waitcnt lgkmcnt(0)")
    for qb in range(2): g.e(f"v_min_f32 v{NM + qb}, v{ML + qb}, v{NEGM + 4 * qb}")
    for qb in range(2): g.e(f"v_sub_f32 v{FA + qb}, v{NM + qb}, v{ML + qb}")
    for qb in range(2): g.e(f"v_sub_f32 v{FB + qb}, v{NM + qb}, v{NEGM + 4 * qb}")
    for i in range(4): g.e(f"v_exp_f32 v{FA + i}, v{FA + i}")
    g.e("s_nop 0")
    for qb in range(2): g.e(f"v_mul_f32 v{VL + qb}, v{VL + qb}, v{FB + qb}")
    for qb in range(2): g.e(f"v_fmac_f32 v{VL + qb}, v{ML + 2 + qb}, v{FA + qb}")
    xgroup(g, [VL, VL + 1], "v_add_f32", TMP + 2)
    for qb in range(2): g.e(f"v_rcp_f32 v{VL + qb}, v{VL + qb}")
    g.e("s_nop 0")
    for qb in range(2): g.e(f"v_mul_f32 v{FA + qb}, v{FA + qb}, v{VL + qb}")
    for qb in range(2): g.e(f"v_mul_f32 v{FB + qb}, v{FB + qb}, v{VL + qb}")
    if SYM: g.e(f"DW {VT},{FA},4096")
    lz = g.newlabel("finz")
    g.e("s_cmp_eq_u32 s5, 0")
    g.e(f"s_cbranch_scc0 {lz}")
    for zero in (False, True):
        if zero: g.label(lz)
        if SYM:
            sym_fin(1, zero)
            if not zero: g.e("s_branch L_k2_rend")
            continue
        g.ds = []
        for cb in range(4): pvgroup(cb, zero)
        g.e("s_waitcnt vmcnt(0)")
        g.e("s_barrier")
        def merge_ops(mm):
            ops = []
            I = lambda t: ops.append(lambda t=t: g.e(t))
            for qb in range(2):
                for cb in (2 * mm, 2 * mm + 1):
                    o = oreg(cb, qb)
                    for r in range(4): I(f"v_mul_f32 v{o + r}, v{o + r}, v{FB + qb}")
                    ops.append(lambda cb=cb, qb=qb: g.wait_ds(("o", cb, qb)))
                    for r in range(4): I(f"v_fmac_f32 v{o + r}, v{freg(qb * 8 + cb) + r}, v{FA + qb}")
                for t in pack_store(mm, qb, STFX): I(t)
            return ops
        xr = lambda cb, qb: (lambda: g.lds(f"DR {freg(qb * 8 + cb)},{xaddr(cb * 2 + qb)[0]},{xaddr(cb * 2 + qb)[1]}", ("o", cb, qb)))
        for cb in range(3): xr(cb, 0)(); xr(cb, 1)()
        m0 = merge_ops(0)
        for cb in range(4, 8):
            mid = [xr(cb - 1, 0), xr(cb - 1, 1)]
            if cb == 6: mid += m0[:len(m0) // 2]
            if cb == 7: mid += m0[len(m0) // 2:]
            pvgroup(cb, zero, mid)
        xr(7, 0)(); xr(7, 1)()
        for op in merge_ops(1) + merge_ops(2) + merge_ops(3): op()
        if not zero: g.e("s_branch L_k2_rend")
    g.label("L_k2_rend")
    g.stamp(5)
    g.e("s_cmp_eq_u32 s32, 3")
    g.e("s_cbranch_scc0 L_k2_aend")
    g.stamp(4)
    g.e("s_mov_b32 s32, 1")
    g.e("s_mov_b32 s33, 0")
    g.e("s_waitcnt vmcnt(0) lgkmcnt(0)")
    g.e("s_barrier")
    g.e("s_branch L_k2_round")
    g.label("L_k2_aend")
    skc = g.newlabel("nocode")
    g.e("s_cmp_eq_u32 s44, 6")
    g.e(f"s_cbranch_scc0 {skc}")
    code_touch(g, 96, 14, "L_all_end", "L_p3", False, va=26)
    if HOT:
        g.e("s_load_dwordx2 s[96:97], s[0:1], 40")
        g.e("s_and_b32 s49, s43, 0x1e")
        g.e("s_add_u32 s49, s49, s41")
        g.e("s_lshl_b32 s49, s49, 17")
        g.e("s_lshl_b32 s50, s42, 15")
        g.e("s_add_u32 s49, s49, s50")
        g.e("v_and_b32 v12, 31, v0")
        g.e("v_lshlrev_b32 v12, 10, v12")
        g.e("v_bfe_u32 v13, v0, 5, 1")
        g.e("v_lshl_add_u32 v12, v13, 9, v12")
        g.e("s_waitcnt lgkmcnt(0)")
        g.e(f"s_mov_b32 s98, {4 * MB}")
        g.e("s_mov_b32 s99, 0x20000")
        g.e("buffer_load_dword v13, v12, s[96:99], s49 offen offset:384")
        if HOT > 1: g.e("buffer_load_dword v13, v12, s[96:99], s49 offen offset:256")
    g.label(skc)
    if PF2:
        sk = g.newlabel("nopf")
        g.e("s_cmp_eq_u32 s44, 6")
        g.e(f"s_cbranch_scc0 {sk}")
        g.e("s_cmp_eq_u32 s41, 1")
        g.e(f"s_cbranch_scc0 {sk}")
        g.e("s_load_dwordx2 s[20:21], s[0:1], 40")
        g.e("s_load_dwordx2 s[28:29], s[0:1], 80")
        g.e("s_lshl_b32 s49, s43, 2")
        g.e("s_add_u32 s49, s49, s42")
        g.e(f"v_lshlrev_b32 v10, 3, v{V16}")
        g.e("s_lshl_b32 s50, s49, 15")
        g.e("s_mul_i32 s51, s49, 7168")
        g.e("s_waitcnt lgkmcnt(0)")
        g.e(f"s_mov_b32 s22, {4 * MB}")
        g.e("s_mov_b32 s23, 0x20000")
        g.e(f"s_mov_b32 s30, {896 * 1024}")
        g.e("s_mov_b32 s31, 0x20000")
        for i in range(4):
            g.e(f"buffer_load_dword v{12 + i}, v10, s[20:23], s50 offen")
            g.e("s_add_u32 s50, s50, 8192")
        g.e("buffer_load_dword v11, v10, s[28:31], s51 offen")
        g.label(sk)
    g.stamp_dump(16, 17, 40, 1)
    if MERGE == 2:
        g.e("s_lshl_b32 s58, s44, 2")
        g.e("s_bfe_u32 s49, s43, 0x20001")
        g.e("s_add_u32 s58, s58, s49")
        g.e("s_add_u32 s58, s58, 21")
        g.e("s_lshl_b32 s58, s58, 7")
        g.e("s_lshr_b32 s49, s43, 3")
        g.e("s_lshl_b32 s49, s49, 3")
        g.e("s_add_u32 s58, s58, s49")
        g.e("s_and_b32 s49, s43, 1")
        g.e("s_lshl_b32 s49, s49, 2")
        g.e("s_add_u32 s58, s58, s49")
        g.e("s_branch L_p3")
    else: g.e("s_endpgm")
    g.label("L_k2_slow")
    l1 = g.newlabel("slow1"); l2 = g.newlabel("slow2")
    g.e("s_cmp_eq_u32 s5, 0")
    g.e(f"s_cbranch_scc0 {l1}")
    rescale(g, False)
    g.e(f"s_branch {l2}")
    g.label(l1)
    rescale(g, True)
    g.label(l2)
    for op in softmax_ops(g): op()
    g.e("s_branch L_k2_back")

def gen_spatial(g):
    ACC, AR, BB, Z1R = 144, 116, 84, 24
    ZB, ZS = 98304, 14336
    VWD = 80
    acc = lambda fb, tt: ACC + (fb * 4 + tt) * 4
    g.vm = []; g.ds = []
    g.label("L_k2_sp")
    g.e("s_lshl_b32 s57, s3, 13")
    g.e("s_and_b32 s44, s41, 3")
    if BAL:
        g.e("s_bfe_u32 s49, s41, 0x10002")
        g.e("s_add_u32 s3, s3, s49")
    g.e("s_and_b32 s42, s40, 3")
    g.e("s_lshr_b32 s41, s40, 2")
    srd(g, 20, 6, 7, 2048 * 4096)
    srd(g, 24, 16, 17, SZ_Z, WS_Z2)
    g.e("v_and_b32 v28, 63, v0")
    g.e(f"v_lshlrev_b32 v{V16}, 4, v28")
    g.e("v_bfe_u32 v28, v0, 3, 3")
    g.e("v_and_b32 v29, 7, v0")
    g.e("v_lshrrev_b32 v30, 1, v28")
    g.e("v_xor_b32 v29, v29, v30")
    g.e("s_lshl_b32 s49, s3, 8")
    g.e("s_lshl_b32 s50, s40, 5")
    g.e("s_add_u32 s49, s49, s50")
    g.e("v_add_u32 v28, s49, v28")
    g.e("v_lshlrev_b32 v28, 12, v28")
    g.e("v_xor_b32 v30, 4, v29")
    g.e("v_lshl_add_u32 v29, v29, 4, v28")
    g.e("v_lshl_add_u32 v30, v30, 4, v28")
    for j in range(4): g.e(f"v_add_u32 v{VWD + j}, {j * 8 * 4096 - j * 1024}, v{29 + (j & 1)}")
    g.e("s_lshl_b32 s48, s40, 1")
    g.e("s_min_u32 s48, s48, 12")
    g.e("s_mul_i32 s49, s44, 14")
    g.e("s_add_u32 s49, s49, s48")
    g.e("s_lshl_b32 s43, s49, 10")
    g.e("s_mov_b32 s45, 0")
    g.e("s_lshl_b32 s46, s40, 12")
    g.e("s_lshl_b32 s47, s48, 10")
    g.e(f"s_add_u32 s47, s47, {ZB}")
    def wop(b, j):
        if j % 2 == 0:
            g.e(f"s_add_u32 m0, s46, {(b % 3) * 32768}")
            g.e("s_nop 0")
        g.vmem(f"buffer_load_dwordx4 v{VWD + j}, s[20:23], s45 offen offset:{j * 1024} {NTSP} lds", ("w", 2 * b))
        if j == 3: g.e("s_add_u32 s45, s45, 128")
    def zop(st, j):
        if j == 0:
            g.e(f"s_add_u32 m0, s47, {(st % 4) * ZS}")
            g.e("s_nop 0")
        g.vmem(f"buffer_load_dwordx4 v{V16}, s[24:27], s43 offen offset:{j * 1024} {SC} lds", ("z", st))
        if j == 1: g.e("s_add_u32 s43, s43, 57344")
    def dma_ops(st):
        b, h = st // 2 + 2, st & 1
        return [lambda: zop(st + 3, 0), lambda: zop(st + 3, 1), lambda: wop(b, 2 * h), lambda: wop(b, 2 * h + 1)]
    if MERGE:
        g.e("s_waitcnt vmcnt(0)")
        g.e("s_barrier")
        nw = g.newlabel("nw"); nw2 = g.newlabel("nw")
        g.e("s_cmp_lg_u32 s40, 0")
        g.e(f"s_cbranch_scc1 {nw}")
        if k1.STKV == '':
            g.e("buffer_wbl2 sc1")
            g.e("s_waitcnt vmcnt(0)")
        flag_set(g, 10, 58, 59, 100)
        g.e("v_min_u32 v14, 55, v0")
        g.e("v_and_b32 v15, 7, v14")
        g.e("v_lshrrev_b32 v14, 3, v14")
        g.e("v_lshlrev_b32 v14, 7, v14")
        g.e("v_lshl_add_u32 v14, v15, 2, v14")
        g.e(f"s_add_u32 s49, s57, {14 * 128 + 32}")
        g.e("v_add_u32 v14, s49, v14")
        flag_load(g, 12, 14, 100)
        g.label(nw)
        g.e("s_barrier")
        for j in range(4): wop(0, j)
        if SPT:
            g.e("s_lshl_b32 s49, s44, 3")
            g.e("s_add_u32 s49, s49, s40")
            g.e("s_lshl_b32 s49, s49, 15")
            g.e("s_lshl_b32 s50, s3, 20")
            g.e("s_add_u32 s49, s49, s50")
            g.e("v_bfe_u32 v9, v0, 3, 3")
            g.e("v_lshlrev_b32 v9, 12, v9")
            g.e("v_and_b32 v8, 7, v0")
            g.e("v_lshl_add_u32 v9, v8, 7, v9")
            for i in range(SPT): g.vmem(f"buffer_load_dword v8, v9, s[20:23], s49 offen offset:{128 + 1024 * i}", ("w", 0))
        g.e("s_cmp_lg_u32 s40, 0")
        g.e(f"s_cbranch_scc1 {nw2}")
        g.e(f"s_waitcnt vmcnt({4 + SPT})")
        flag_wait(g, 12, 14, 59, 100, SLS, True)
        g.e("v_min_u32 v14, 39, v0")
        g.e("v_and_b32 v15, 3, v14")
        g.e("v_lshrrev_b32 v14, 2, v14")
        g.e("v_lshlrev_b32 v14, 7, v14")
        g.e("v_lshl_add_u32 v14, v15, 3, v14")
        g.e(f"s_add_u32 s49, s57, {11 * 128}")
        g.e("v_add_u32 v14, s49, v14")
        g.label(nw2)
        g.e("s_barrier")
        zop(0, 0); zop(0, 1)
    else:
        zop(0, 0); zop(0, 1)
        for j in range(4): wop(0, j)
        code_touch(g, 96, 14, "L_k2_spend", None, False)
    srd(g, 12, 8, 9, 4096)
    g.e("v_and_b32 v11, 15, v0")
    g.e("v_lshlrev_b32 v11, 1, v11")
    g.e("s_lshl_b32 s49, s3, 9")
    g.e("s_lshl_b32 s50, s42, 7")
    g.e("s_add_u32 s49, s49, s50")
    for tt in range(4): g.vmem(f"buffer_load_ushort v{16 + tt}, v11, s[12:15], s49 offen offset:{tt * 32}", ("w", 0))
    g.e("s_barrier")
    zop(1, 0); zop(1, 1)
    if MERGE < 2:
        srd(g, 28, 16, 17, 32768, WS_PART + 8 * MB)
        g.e("s_sub_u32 s49, s2, 224")
        g.e("s_lshl_b32 s49, s49, 10")
        g.e("v_lshrrev_b32 v28, 6, v0")
        g.e(f"v_lshl_add_u32 v28, v28, 24, v{V16}")
        for i in range(4): g.e(f"v_mov_b32 v{20 + i}, 0")
        g.e("buffer_store_dwordx4 v[20:23], v28, s[28:31], s49 offen")
    srd(g, 28, 16, 17, SZ_Z, WS_Z1)
    srd(g, 36, 16, 17, SZ_CTX, WS_CTX)
    g.e("s_mul_i32 s49, s41, 7168")
    g.e(f"s_add_u32 s49, s49, {ZB}")
    g.e(f"v_add_u32 v4, s49, v{V16}")
    g.e("v_and_b32 v28, 15, v0")
    g.e("v_bfe_u32 v29, v0, 4, 2")
    g.e("v_lshrrev_b32 v30, 1, v28")
    g.e("v_xor_b32 v29, v29, v30")
    g.e("v_lshlrev_b32 v29, 4, v29")
    g.e("v_lshl_add_u32 v29, v28, 7, v29")
    g.e("s_lshl_b32 s49, s42, 13")
    g.e("v_add_u32 v1, s49, v29")
    g.e("v_xor_b32 v2, 64, v1")
    g.e("v_add_u32 v5, 0x10000, v1")
    g.e("v_add_u32 v6, 0x10000, v2")
    def aread(st, fb): g.lds(f"DR {AR + fb * 4},4,{(st % 4) * ZS + fb * 1024}", ("a", st, fb))
    def bread(st, tt):
        sl = (st // 2) % 3
        g.lds(f"DR {BB + (st & 1) * 16 + tt * 4},{(5 if sl == 2 else 1) + (st & 1)},{(sl & 1) * 32768 + tt * 2048}", ("b", st))
    SCH = {(3, 0): ("a", 0), (3, 1): ("b", 0), (3, 2): ("b", 1), (4, 0): ("b", 2), (4, 1): ("b", 3), (4, 2): ("a", 1), (5, 0): ("a", 2), (6, 0): ("a", 3)}
    rd = lambda st, k: (aread if k[0] == "a" else bread)(st, k[1])
    g.wait_vm(("z", 0), ("w", 0))
    g.e("s_barrier")
    for key in sorted(SCH): rd(0, SCH[key])
    for tt in range(4):
        for r in range(4): g.e(f"v_lshlrev_b32 v{24 + tt * 4 + r}, 16, v{16 + tt}")
    g.e("s_mov_b32 s52, 0")
    g.stamp(1)
    def step(st, extra=(), dma=4, nxt=True, init=False):
        extra = list(extra)
        pend = []
        for fb in range(7):
            g.wait_ds(("a", st, fb), ("b", st))
            for tt in range(4):
                if init: g.e(f"MC {acc(fb, tt)},{AR + fb * 4},{BB + (st & 1) * 16 + tt * 4},{24 + tt * 4}")
                else: g.e(f"M {acc(fb, tt)},{AR + fb * 4},{BB + (st & 1) * 16 + tt * 4}")
                if tt == 0 and fb < 3: aread(st, fb + 4)
                if nxt:
                    if (fb, tt) == (3, 0):
                        g.wait_vm(("z", st + 1), ("w", st + 1))
                        g.e("s_barrier")
                        pend = dma_ops(st)[:dma]
                    if (fb, tt) in SCH: rd(st + 1, SCH[(fb, tt)])
                if tt == 3 and pend: pend.pop(0)()
                if tt in (1, 3) and extra and fb < 3:
                    extra.pop(0)()
        assert not pend and not extra
    step(0, [lambda j=j: wop(1, j) for j in range(4)] + [lambda: zop(2, 0), lambda: zop(2, 1)], init=True)
    for st in range(1, 4): step(st)
    g.label("L_k2_sploop")
    vm0, ds0 = list(g.vm), list(g.ds)
    for st in range(4, 16): step(st)
    ren = lambda t: (t[0], t[1] - 12) + t[2:]
    g.vm = [ren(t) for t in g.vm]; g.ds = [ren(t) for t in g.ds]
    assert g.vm == vm0 and g.ds == ds0, (g.vm, vm0, g.ds, ds0)
    g.e("s_add_u32 s52, s52, 1")
    g.e("s_cmp_lt_u32 s52, 4")
    g.e("s_cbranch_scc1 L_k2_sploop")
    g.stamp(2)
    g.e("s_lshl_b32 s49, s3, 4")
    g.e("s_lshl_b32 s50, s42, 2")
    g.e("s_add_u32 s49, s49, s50")
    g.e("s_mul_i32 s54, s49, 28672")
    g.e("s_mul_i32 s55, s49, 159744")
    g.e(f"s_add_u32 s55, s55, {128 * 1024}")
    for tt in range(4):
        g.e(f"v_add_u32 v{16 + tt}, {tt * 28672}, v{V16}")
        g.e(f"v_add_u32 v{20 + tt}, {tt * 159744}, v{V16}")
    g.e("s_mul_i32 s56, s44, 14")
    g.e("s_mul_i32 s48, s41, 7")
    g.e("s_add_u32 s56, s56, s48")
    g.e("s_lshr_b32 s56, s56, 1")
    g.e("s_lshl_b32 s56, s56, 10")
    g.e("s_add_u32 s54, s54, s56")
    g.e("s_add_u32 s55, s55, s56")
    def z1load(u):
        for tt in range(4):
            r = Z1R + (u * 4 + tt) * 4
            g.vmem(f"buffer_load_dwordx4 v[{r}:{r + 3}], v{16 + tt}, s[28:31], s54 offen offset:{u * 1024} {SC}", ("z1", u))
    for st in range(4, 16):
        ex = {8: 0, 10: 1, 12: 2, 15: 3}
        def w0(fn):
            sk = g.newlabel("w0")
            g.e("s_cmp_lg_u32 s40, 0"); g.e(f"s_cbranch_scc1 {sk}")
            fn(); g.label(sk)
        fl = []
        if MERGE and st == 4: fl = [lambda: w0(lambda: flag_load(g, 12, 14, 100, True))]
        if MERGE == 2 and st == 13 and SCT: fl = [lambda: code_touch(g, 96, 15, "L_all_end", "L_p3", False, va=8)]
        if MERGE and st == 7: fl = [lambda: w0(lambda: flag_wait(g, 12, 14, 59, 100, SLS, True, True))]
        step(st, [lambda u=ex[st]: z1load(u)] if st in ex else fl, dma=4 if st < 12 else (2 if st == 12 else 0), nxt=st < 15)
    g.stamp(4)
    g.e("s_nop 4")
    g.e("s_mov_b32 s53, 0xffff0000")
    g.e("s_lshl_b32 s49, s42, 11")
    g.e("s_add_u32 s49, s49, 155648")
    g.e(f"v_lshrrev_b32 v12, 1, v{V16}")
    g.e("v_add_u32 v12, s49, v12")
    vm_sv = list(g.vm)
    lode = g.newlabel("spodd"); lend = g.newlabel("spend")
    g.e("s_cmp_eq_u32 s41, 1")
    g.e(f"s_cbranch_scc1 {lode}")
    for fh in range(2):
        g.vm = list(vm_sv)
        if fh: g.label(lode)
        for u in range(4):
            halves = [(h, 2 * u + h - fh) for h in range(2) if 0 <= 2 * u + h - fh < 7]
            g.wait_vm(("z1", u))
            if u == 3:
                g.e("s_waitcnt lgkmcnt(0)")
                g.e("s_barrier")
                if fh == 0:
                    for tt in range(4): g.e(f"ds_read_b64 v[{Z1R + (12 + tt) * 4 + 2}:{Z1R + (12 + tt) * 4 + 3}], v12 offset:{tt * 512}")
            for tt in range(4):
                z = Z1R + (u * 4 + tt) * 4
                for h, fb in halves:
                    a = acc(fb, tt); t = 8 if h else 1
                    g.e(f"v_lshlrev_b32 v{t}, 16, v{z + 2 * h}")
                    g.e(f"v_and_b32 v{t + 1}, s53, v{z + 2 * h}")
                    g.e(f"v_lshlrev_b32 v{t + 2}, 16, v{z + 2 * h + 1}")
                    g.e(f"v_and_b32 v{t + 3}, s53, v{z + 2 * h + 1}")
                    for r in range(4): g.e(f"v_mul_f32 v{a + r}, v{a + r}, v{t + r}")
                    g.e(f"PK {z + 2 * h},{a},{a + 1}"); g.e(f"PK {z + 2 * h + 1},{a + 2},{a + 3}")
                if fh == 1 and u == 0:
                    g.e(f"ds_write_b64 v12, v[{z + 2}:{z + 3}] offset:{tt * 512}")
                else:
                    if fh == 0 and u == 3: g.e(f"s_waitcnt lgkmcnt({3 - tt})")
                    g.vmem(f"buffer_store_dwordx4 v[{z}:{z + 3}], v{20 + tt}, s[36:39], s55 offen offset:{u * 1024} {STFU}", "st")
        if fh == 0: g.e(f"s_branch {lend}")
    g.label(lend)
    g.stamp(3)
    g.stamp_dump(16, 17, 40, 1)
    if MERGE == 2:
        g.e("s_add_u32 s58, s44, 49")
        g.e("s_lshl_b32 s58, s58, 7")
        g.e("s_lshl_b32 s49, s3, 2")
        g.e("s_add_u32 s58, s58, s49")
        g.e("s_branch L_p3")
    else: g.e("s_endpgm")

def gen_k2(g):
    if not MERGE:
        g.e(".p2align 8")
        g.e(".type k2_kernel,@function")
        g.label("k2_kernel")
        g.e("s_cmp_ge_u32 s2, 256")
        g.e("s_cbranch_scc1 L_k2_end")
    g.label("L_p2")
    g.stamp(0)
    if PROF: g.e("s_memrealtime s[94:95]")
    g.e("s_load_dwordx2 s[4:5], s[0:1], 16")
    g.e("s_load_dwordx4 s[8:11], s[0:1], 64")
    g.e("s_load_dwordx2 s[16:17], s[0:1], 104")
    g.e("v_lshrrev_b32 v1, 6, v0")
    g.e("s_and_b32 s3, s2, 7")
    g.e("s_lshr_b32 s41, s2, 3")
    g.e("v_readfirstlane_b32 s40, v1")
    g.e("s_waitcnt lgkmcnt(0)")
    g.e("s_mov_b32 s6, s8")
    g.e("s_mov_b32 s7, s9")
    g.e("s_mov_b32 s8, s10")
    g.e("s_mov_b32 s9, s11")
    if MERGE:
        nw = g.newlabel("nw")
        g.e("s_cmp_lg_u32 s40, 0")
        g.e(f"s_cbranch_scc1 {nw}")
        g.e("s_lshl_b32 s49, s3, 13")
        g.e(f"s_add_u32 s49, s49, {53 * 128 + 64}")
        g.e("v_lshrrev_b32 v14, 3, v0")
        g.e("v_lshlrev_b32 v14, 7, v14")
        g.e("v_and_b32 v15, 7, v0")
        g.e("v_lshl_add_u32 v14, v15, 2, v14")
        g.e("v_add_u32 v15, s49, v14")
        flag_wait(g, 13, 15, 59, 100, SLA, True)
        g.e("v_mov_b32 v13, 0")
        g.label(nw)
    if BAL:
        g.e("s_bitcmp1_b32 s2, 0")
        g.e("s_cbranch_scc1 L_k2_attn")
    g.e(f"s_cmp_lt_u32 s41, {24 if BAL else 28}")
    g.e("s_cbranch_scc1 L_k2_attn")
    g.e("s_branch L_k2_sp")
    g.label("L_k2_end")
    g.e("s_endpgm")
    gen_attn(g)
    gen_spatial(g)
    g.label("L_k2_spend")
```

```python
from asmlib import *
from k1 import tr_bases

LDS = 163840
NVGPR = 128
ACC = 32
AF = 64
WF = 96
NS = 39
WEARLY = int(os.environ.get('WEARLY', '0'))
if WEARLY:
    WADDR = [32768 + 8192 * i for i in range(4)] + [98304 + 8192 * i for i in range(4)] + [131072, 139264]
    AADDR = [8192 * i for i in range(4)] + [65536 + 8192 * i for i in range(4)] + [147456, 155648]
else:
    NA = int(os.environ.get('NA', '8'))
    AADDR = [8192 * i for i in range(NA)]; WADDR = [8192 * i for i in range(NA, 20)]
WPRE = int(os.environ.get('WPRE', '10'))
UF = int(os.environ.get('UF', '0'))
FULLF = int(os.environ.get('FULLF', '0'))
DYN = int(os.environ.get('DYN', '0'))
SL3 = int(os.environ.get('SL3', '4'))
FUSE = int(os.environ.get('FUSE', '1'))
PD = int(os.environ.get('PD', '8'))
STP = os.environ.get('STP', 'sc1')

if WPRE: WPRE = len(WADDR); PD = len(AADDR) - 2
PDW = len(WADDR) - 2
def gen_k3(g):
    g.vm = []; g.ds = []
    M2 = MERGE == 2
    if not M2:
        g.e(".p2align 8")
        g.e(".type k3_kernel,@function")
        g.label("k3_kernel")
        g.e("s_cmp_ge_u32 s2, 256")
        g.e("s_cbranch_scc1 L_k3_end")
    g.label("L_p3")
    diag_mark(g, 3)
    g.stamp(0)
    if PROF: g.e("s_memrealtime s[94:95]")
    g.e("s_load_dwordx2 s[6:7], s[0:1], 40")
    g.e("s_load_dwordx4 s[8:11], s[0:1], 80")
    g.e("s_load_dwordx2 s[4:5], s[0:1], 0")
    g.e("s_load_dwordx2 s[16:17], s[0:1], 104")
    g.e("v_lshrrev_b32 v1, 6, v0")
    g.e("s_bfe_u32 s43, s2, 0x20001")
    g.e("s_and_b32 s42, s2, 1")
    g.e("v_readfirstlane_b32 s40, v1")
    g.e("s_lshl_b32 s42, s42, 3")
    g.e("s_lshr_b32 s49, s2, 5")
    g.e("s_add_u32 s42, s42, s49")
    g.e("s_bfe_u32 s41, s2, 0x20003")
    g.e("v_bfe_u32 v28, v0, 5, 1")
    g.e("v_bfe_u32 v29, v0, 2, 2")
    g.e("v_lshl_add_u32 v28, v28, 4, v29")
    g.e("v_bfe_u32 v29, v0, 6, 2")
    g.e("v_lshl_add_u32 v28, v29, 2, v28")
    g.e("v_lshlrev_b32 v28, 10, v28")
    g.e("v_bfe_u32 v30, v0, 4, 1")
    g.e("v_lshl_add_u32 v28, v30, 6, v28")
    g.e("v_lshrrev_b32 v30, 8, v0")
    g.e("v_lshl_add_u32 v28, v30, 7, v28")
    g.e("v_and_b32 v29, 1, v29")
    g.e("v_lshlrev_b32 v29, 1, v29")
    g.e("v_and_b32 v30, 3, v0")
    g.e("v_xor_b32 v29, v29, v30")
    g.e("v_lshl_add_u32 v1, v29, 4, v28")
    g.e("v_and_b32 v28, 63, v0")
    g.e("v_lshlrev_b32 v7, 4, v28")
    g.e("s_lshl_b32 s46, s40, 10")
    g.e("s_lshl_b32 s49, s42, 3")
    g.e("s_add_u32 s49, s49, s40")
    g.e("s_mul_i32 s47, s49, 159744")
    g.e("s_lshl_b32 s49, s43, 13")
    g.e("s_add_u32 s44, s47, s49")
    g.e("s_mul_i32 s49, s43, 7168")
    g.e("s_add_u32 s45, s47, s49")
    g.e(f"s_add_u32 s45, s45, {128 * 1024}")
    g.e("s_lshl_b32 s49, s41, 8")
    g.e("s_lshl_b32 s52, s43, 18")
    g.e("s_add_u32 s52, s52, s49")
    g.e(f"s_mul_i32 s53, s43, {7 * 32768}")
    g.e("s_add_u32 s53, s53, s49")
    g.e("s_waitcnt lgkmcnt(0)")
    srd(g, 20, 6, 7, 4096 * 1024)
    srd(g, 24, 8, 9, 896 * 1024)
    srd(g, 28, 16, 17, SZ_CTX, WS_CTX)
    def dma_ops(t, allw=False):
        if t >= NS: return []
        to = (t + 32) % NS if UF else t
        u = to >= 32
        dyn = M2 and DYN and not u
        tt = to - 32 if u else ((t & 3) if dyn else (((to >> 2) & 1) + 8 * (to >> 3)) * 4 + (to & 3))
        def a():
            if dyn and t % 4 == 0:
                g.e("s_ff1_i32_b32 s49, s62")
                g.e("s_bitset0_b32 s62, s49")
                g.e("s_and_b32 s60, s49, 1")
                g.e("s_bfe_u32 s49, s49, 0x20001")
                g.e("s_lshl_b32 s49, s49, 3")
                g.e("s_add_u32 s49, s49, s60")
                g.e("s_lshl_b32 s60, s49, 12")
                g.e("s_add_u32 s60, s60, s44")
                g.e("s_lshl_b32 s61, s49, 17")
                g.e("s_add_u32 s61, s61, s52")
            g.e(f"s_add_u32 m0, s46, {AADDR[t % len(AADDR)]}")
            g.e(f"s_add_u32 s49, s{45 if u else (60 if dyn else 44)}, {tt * 1024}")
            g.vmem(f"buffer_load_dwordx4 v7, s[28:31], s49 offen {'sc1' if M2 else ''} lds", t // 2)
        def w(other=0, track=True):
            g.e(f"s_add_u32 m0, s46, {WADDR[t % len(WADDR)] + 4096 * other}")
            g.e(f"s_add_u32 s49, s{53 if u else (61 if dyn else 52)}, {tt * 32768 + 128 * other}")
            x = f"buffer_load_dwordx4 v1, s[{24 if u else 20}:{27 if u else 23}], s49 offen lds"
            if track: g.vmem(x, t // 2)
            else: g.e(x)
        return [a] if (t < WPRE and not allw) else [a, w]
    def w0(fn):
        sk = g.newlabel("w0")
        g.e("s_cmp_lg_u32 s40, 0"); g.e(f"s_cbranch_scc1 {sk}")
        fn(); g.label(sk)
    if M2:
        if not DYN and not UF and not WPRE:
            g.e("s_waitcnt vmcnt(0)")
            g.e("s_barrier")
            w0(lambda: flag_set(g, 20, 58, 59, 100))
            for t in range(4): dma_ops(t)[1]()
        g.e("s_sub_u32 s49, 15, s42")
        g.e("s_sub_u32 s50, s42, 4")
        if BAL == 2: g.e("s_xor_b32 s50, s50, 1")
        g.e("s_cmp_ge_u32 s42, 10")
        g.e("s_cselect_b32 s49, s49, s50")
        g.e("s_cmp_lt_u32 s42, 4")
        g.e("s_cselect_b32 s49, 6, s49")
        g.e("s_lshl_b32 s49, s49, 2")
        g.e("s_add_u32 s49, s49, s43")
        g.e("s_add_u32 s49, s49, 21")
        g.e("s_lshl_b32 s49, s49, 7")
        g.e("s_and_b32 s50, s2, 7")
        g.e("s_lshl_b32 s50, s50, 13")
        g.e("s_add_u32 s49, s49, s50")
        g.e("v_and_b32 v17, 7, v0")
        g.e("v_lshl_add_u32 v17, v17, 2, s49")
        g.e("s_add_u32 s49, s43, 49")
        g.e("s_lshl_b32 s49, s49, 7")
        g.e("s_add_u32 s49, s49, s50")
        g.e("s_lshr_b32 s50, s42, 1")
        g.e("s_lshl_b32 s50, s50, 2")
        g.e("s_add_u32 s49, s49, s50")
        g.e("v_mov_b32 v18, s49")
        if UF:
            w0(lambda: flag_load(g, 26, 18, 100))
            g.e("v_mov_b32 v27, 0")
            g.e("s_waitcnt vmcnt(0)")
            g.e("s_barrier")
            w0(lambda: (flag_set(g, 20, 58, 59, 100), flag_wait(g, 26, 18, 59, 100, SL3, True)))
            g.e("s_barrier")
            for t in range(4):
                for op in dma_ops(t): op()
        elif WPRE:
            n0 = 0
            if WEARLY:
                n0 = 8
                lb = g.newlabel("hb"); lj = g.newlabel("hj")
                g.e("s_cmp_ge_u32 s40, 4")
                g.e(f"s_cbranch_scc1 {lb}")
                for t in range(8):
                    for o in range(2): dma_ops(t, True)[1](o, False)
                g.e("s_waitcnt vmcnt(16)")
                g.e(f"s_branch {lj}")
                g.label(lb)
                g.e("s_waitcnt vmcnt(0)")
                g.label(lj)
            else: g.e("s_waitcnt vmcnt(0)")
            g.e("s_barrier")
            w0(lambda: (flag_set(g, 20, 58, 59, 100), flag_load(g, 26, 17, 100)))
            g.e("s_barrier")
            for t in range(n0, WPRE): dma_ops(t, True)[1]()
            w0(lambda: (g.e(f"s_waitcnt vmcnt({WPRE - n0})"), flag_wait(g, 26, 17, 59, 100, SL3, True)))
            g.e("v_mov_b32 v26, 0")
            g.e("s_barrier")
            for t in range(4): dma_ops(t)[0]()
        elif not DYN:
            w0(lambda: flag_wait(g, 26, 17, 59, 100, SL3, False))
            g.e("v_mov_b32 v26, 0")
            g.e("s_barrier")
            for t in range(4): dma_ops(t)[0]()
        else:
            w0(lambda: flag_load(g, 27, 17, 100))
            g.e("v_mov_b32 v26, 0")
            g.e("v_mov_b32 v25, 163832")
            g.e("s_waitcnt vmcnt(0)")
            g.e("s_barrier")
            def order():
                flag_set(g, 20, 58, 59, 100)
                spin = g.newlabel("spin"); chk = g.newlabel("chk")
                g.e(f"s_branch {chk}")
                g.label(spin)
                g.e(f"s_sleep {SL3}")
                flag_load(g, 27, 17, 100)
                g.e("s_waitcnt vmcnt(0)")
                g.label(chk)
                g.e("v_cmp_eq_u32 vcc, s59, v27")
                g.e("s_nop 1")
                g.e("s_and_b32 s62, vcc_lo, 0xff")
                g.e("s_bcnt1_i32_b32 s49, s62")
                g.e("s_cmp_lt_u32 s49, 2")
                g.e(f"s_cbranch_scc1 {spin}")
                g.e("s_xor_b32 s49, s62, 0xff")
                g.e("s_lshl_b32 s49, s49, 8")
                g.e("s_or_b32 s62, s62, s49")
                g.e("v_mov_b32 v24, s62")
                g.e("ds_write_b32 v25, v24")
                g.e("s_waitcnt lgkmcnt(0)")
            w0(order)
            g.e("s_barrier")
            g.e("ds_read_b32 v24, v25")
            g.e("s_waitcnt lgkmcnt(0)")
            g.e("v_readfirstlane_b32 s62, v24")
            g.e("s_nop 3")
            for t in range(4):
                for op in dma_ops(t): op()
    else:
        for t in range(2):
            for op in dma_ops(t): op()
        code_touch(g, 60, 20, "L_all_end")
        g.e("s_barrier")
        for t in range(2, 4):
            for op in dma_ops(t): op()
    srd(g, 32, 16, 17, 8 * MB + 32768, WS_PART)
    if FUSE:
        srd(g, 12, 4, 5, 2 * MB)
        srd(g, 36, 10, 11, 2 * MB)
        g.e("s_lshl_b32 s49, s42, 2")
        g.e("s_add_u32 s49, s49, s41")
        g.e("s_lshl_b32 s56, s49, 9")
        g.e(f"s_add_u32 s56, s56, {8 * MB}")
        g.e("s_lshl_b32 s57, s43, 7")
        g.e("s_add_u32 s57, s57, s56")
        g.e("s_lshl_b32 s49, s49, 15")
        g.e("s_lshl_b32 s50, s40, 12")
        g.e("s_add_u32 s49, s49, s50")
        g.e("s_lshl_b32 s50, s43, 21")
        g.e("s_add_u32 s54, s49, s50")
        g.e("s_lshl_b32 s50, s43, 10")
        g.e("s_add_u32 s55, s49, s50")
        if FULLF:
            g.e("v_lshrrev_b32 v22, 2, v7")
            g.e("v_bfe_u32 v24, v0, 5, 1")
            g.e("v_lshl_add_u32 v22, v24, 24, v22")
        else: g.e("v_lshlrev_b32 v22, 20, v7")
        g.e("v_lshlrev_b32 v23, 3, v7")
        g.e("v_bfe_u32 v24, v0, 2, 4")
        g.e("v_lshl_add_u32 v23, v24, 24, v23")
        g.e("v_and_b32 v19, 15, v0")
        g.e("v_lshlrev_b32 v19, 10, v19")
        g.e("v_bfe_u32 v24, v0, 4, 1")
        g.e("v_lshl_add_u32 v19, v24, 5, v19")
        g.e("v_bfe_u32 v24, v0, 5, 1")
        g.e("v_lshl_add_u32 v19, v24, 4, v19")
        g.e("s_lshl_b32 s48, s42, 17")
        g.e("s_lshr_b32 s49, s40, 2")
        g.e("s_lshl_b32 s49, s49, 16")
        g.e("s_add_u32 s48, s48, s49")
        g.e("s_lshl_b32 s49, s43, 14")
        g.e("s_add_u32 s48, s48, s49")
        g.e("s_lshl_b32 s49, s41, 8")
        g.e("s_add_u32 s48, s48, s49")
        g.e("s_and_b32 s49, s40, 3")
        g.e("s_lshl_b32 s49, s49, 6")
        g.e("s_add_u32 s48, s48, s49")
    tr_bases(g, 8, 9)
    g.e("s_bfe_u32 s49, s40, 0x10001")
    g.e("s_lshl_b32 s49, s49, 12")
    g.e("s_and_b32 s50, s40, 1")
    g.e("s_lshl_b32 s50, s50, 8")
    g.e("s_add_u32 s49, s49, s50")
    g.e("v_add_u32 v8, s49, v8")
    g.e("v_add_u32 v9, s49, v9")
    g.e("s_lshr_b32 s49, s40, 2")
    g.e("s_lshl_b32 s49, s49, 12")
    g.e("v_add_u32 v10, s49, v7")
    for k in (1, 2):
        for i in range(3): g.e(f"v_add_u32 v{8 + 3 * k + i}, {k * 0x10000}, v{8 + i}")
    g.stamp(1)
    pend = []
    def reads(t):
        if t >= NS: return []
        bw, ow = 8 + 3 * (WADDR[t % len(WADDR)] >> 16), WADDR[t % len(WADDR)] & 0xffff
        ba, oa = 8 + 3 * (AADDR[t % len(AADDR)] >> 16), AADDR[t % len(AADDR)] & 0xffff
        ops = []
        if t % 2 == 0:
            def sync():
                assert not pend
                g.wait_vm(t // 2)
                if M2 and DYN and (t + PD) % 4 == 0 and t + PD < 32:
                    def late():
                        sk = g.newlabel("rdy")
                        if t == 0: g.e("s_sub_u32 s49, s62, 1"); g.e("s_and_b32 s49, s49, s62"); g.e("s_and_b32 s49, s49, 0xff")
                        else: g.e("s_and_b32 s49, s62, 0xff")
                        g.e(f"s_cbranch_scc1 {sk}")
                        flag_wait(g, 27, 17, 59, 100, SL3, True)
                        g.label(sk)
                    w0(late)
                if UF:
                    if t == UF: w0(lambda: flag_wait(g, 27, 17, 59, 100, SL3, True))
                    g.e("s_barrier")
                    if t == UF - 2: w0(lambda: flag_load(g, 27, 17, 100))
                    if t == UF: ramp.extend([op for u in range(7, t + PD + 2) for op in dma_ops(u)])
                    elif t > UF: (ramp if ramp else pend).extend(dma_ops(t + PD) + dma_ops(t + PD + 1))
                    return
                if M2 and t + PD == 32: w0(lambda: flag_wait(g, 26, 18, 59, 100, SL3, True))
                g.e("s_barrier")
                if M2 and t + PD == 26: w0(lambda: flag_load(g, 26, 18, 100))
                for u in range(2):
                    if t + PD + u < NS: pend.append(dma_ops(t + PD + u, True)[0])
                    if WPRE <= t + PDW + u < NS: pend.append(dma_ops(t + PDW + u, True)[1])
            ops.append(sync)
        rd = []
        for cb in range(2):
            for a in range(2):
                rd.append(lambda cb=cb, a=a: g.lds(f"TR {WF + (t & 1) * 8 + cb * 4 + 2 * a},{bw + cb},{ow + a * 512}", ("r", t)))
        dr = [lambda rt=rt: g.lds(f"DR {AF + (t & 1) * 16 + rt * 4},{ba + 2},{oa + rt * 1024}", ("r", t)) for rt in range(4)]
        return ops + rd[:2] + dr + rd[2:]
    ramp = [op for t in range(4, 7 if UF else PD) for op in dma_ops(t)]
    for op in reads(0): op()
    ramp += pend; del pend[:]
    for t in range(NS):
        nx = reads(t + 1)
        g.wait_ds(("r", t))
        k = 0
        for cb in range(2):
            for rt in range(4):
                g.e(f"{'MZ' if t == 0 else 'M'} {ACC + (cb * 4 + rt) * 4},{WF + (t & 1) * 8 + cb * 4},{AF + (t & 1) * 16 + rt * 4}")
                n = 2 if k < 4 else 1
                for _ in range(n):
                    if nx: nx.pop(0)()
                if ramp:
                    ramp.pop(0)()
                    if t == 0 and k >= 4 and ramp: ramp.pop(0)()
                elif k >= 5 and k != 6 and pend: pend.pop(0)()
                k += 1
        assert not nx
        if FUSE and t == 32: g.vmem("buffer_load_dwordx4 v[112:115], v19, s[12:15], s48 offen", "xx")
        if t in (0, 9, 19, 29): g.stamp({0: 2, 9: 3, 19: 4, 29: 5}[t])
    g.stamp(6)
    if not FUSE:
        g.e("s_lshl_b32 s49, s43, 21")
        g.e("s_lshl_b32 s50, s42, 17")
        g.e("s_add_u32 s49, s49, s50")
        g.e("s_lshl_b32 s50, s41, 15")
        g.e("s_add_u32 s49, s49, s50")
        g.e("s_lshl_b32 s50, s40, 12")
        g.e("s_add_u32 s49, s49, s50")
        g.e("s_nop 4")
        for rt in range(4):
            x, y = ACC + rt * 4, ACC + (4 + rt) * 4
            g.e(f"PK {x},{x},{x + 1}"); g.e(f"PK {x + 1},{x + 2},{x + 3}")
            g.e(f"PK {x + 2},{y},{y + 1}"); g.e(f"PK {x + 3},{y + 2},{y + 3}")
        g.e("s_nop 1")
        for rt in range(4):
            x = ACC + rt * 4
            g.e(f"v_permlane16_swap_b32 v{x}, v{x + 2}")
            g.e(f"v_permlane16_swap_b32 v{x + 1}, v{x + 3}")
            g.e(f"buffer_store_dwordx4 v[{x}:{x + 3}], v7, s[32:35], s49 offen offset:{rt * 1024} {STP}")
    else:
        g.e("s_nop 4")
        for rt in range(4):
            x, y = ACC + rt * 4, ACC + (4 + rt) * 4
            d = AF + rt * 4
            g.e(f"PK {d},{x},{x + 1}"); g.e(f"PK {d + 1},{x + 2},{x + 3}")
            g.e(f"PK {d + 2},{y},{y + 1}"); g.e(f"PK {d + 3},{y + 2},{y + 3}")
            sk = g.newlabel("own")
            g.e(f"s_cmp_eq_u32 s43, {rt}")
            g.e(f"s_cbranch_scc1 {sk}")
            g.e(f"buffer_store_dwordx4 v[{d}:{d + 3}], v7, s[32:35], s54 offen offset:{rt * 1024} sc1")
            g.label(sk)
        for rt in range(1, 4):
            sk = g.newlabel("mv")
            g.e(f"s_cmp_lg_u32 s43, {rt}")
            g.e(f"s_cbranch_scc1 {sk}")
            for cb in range(2):
                for r in range(4): g.e(f"v_mov_b32 v{ACC + cb * 16 + r}, v{ACC + (cb * 4 + rt) * 4 + r}")
            g.label(sk)
        g.e("v_mov_b32 v21, s59" if M2 else "v_mov_b32 v21, 1")
        g.e("s_waitcnt vmcnt(0)")
        g.e("s_barrier")
        g.stamp(7)
        spin = g.newlabel("spin"); done = g.newlabel("done")
        g.e("s_cmp_lg_u32 s40, 0")
        g.e(f"s_cbranch_scc1 {done}")
        g.e("buffer_store_dword v21, v22, s[32:35], s57 offen sc1")
        g.label(spin)
        g.e("buffer_load_dword v24, v23, s[32:35], s56 offen sc1")
        g.e("s_waitcnt vmcnt(0)")
        g.e("v_cmp_eq_u32 vcc, v21, v24")
        g.e("s_nop 1")
        g.e("s_and_b32 s49, vcc_lo, 15")
        g.e("s_cmp_eq_u32 s49, 15")
        g.e(f"s_cbranch_scc1 {done}")
        g.e(f"s_sleep {os.environ.get('SL4', '2')}")
        g.e(f"s_branch {spin}")
        g.label(done)
        g.e("s_barrier")
        g.stamp(8)
        for i in range(3):
            g.e(f"s_add_u32 s49, s43, {i + 1}")
            g.e("s_and_b32 s49, s49, 3")
            g.e("s_lshl_b32 s49, s49, 21")
            g.e("s_add_u32 s49, s49, s55")
            g.e(f"buffer_load_dwordx4 v[{AF + 4 * i}:{AF + 4 * i + 3}], v7, s[32:35], s49 offen sc1")
        A8 = [ACC + r for r in range(4)] + [ACC + 16 + r for r in range(4)]
        g.e("s_mov_b32 s50, 0xffff0000")
        for i in range(3):
            g.e(f"s_waitcnt vmcnt({2 - i})")
            for r in range(4):
                g.e(f"v_lshlrev_b32 v24, 16, v{AF + 4 * i + r}")
                g.e(f"v_and_b32 v25, s50, v{AF + 4 * i + r}")
                g.e(f"v_add_f32 v{A8[2 * r]}, v{A8[2 * r]}, v24")
                g.e(f"v_add_f32 v{A8[2 * r + 1]}, v{A8[2 * r + 1]}, v25")
        g.e("s_nop 1")
        for r in range(4): g.e(f"v_permlane16_swap_b32 v{A8[r]}, v{A8[4 + r]}")
        g.e("s_nop 1")
        for r in range(4):
            g.e(f"v_lshlrev_b32 v24, 16, v{112 + r}")
            g.e(f"v_and_b32 v25, s50, v{112 + r}")
            g.e(f"v_add_f32 v{A8[2 * r]}, v{A8[2 * r]}, v24")
            g.e(f"v_add_f32 v{A8[2 * r + 1]}, v{A8[2 * r + 1]}, v25")
        for r in range(4): g.e(f"PK {28 + r},{A8[2 * r]},{A8[2 * r + 1]}")
        g.e(f"buffer_store_dwordx4 v[28:31], v19, s[36:39], s48 offen {os.environ.get('STO', '')}")
    diag_end(g)
    g.stamp_dump(16, 17, 40, 2)
    g.label("L_k3_end")
    g.e("s_endpgm")
    if FUSE: g.label("L_all_end")

def gen_k4(g):
    g.e(".p2align 8")
    g.e(".type k4_kernel,@function")
    g.label("k4_kernel")
    g.e("s_cmp_ge_u32 s2, 256")
    g.e("s_cbranch_scc1 L_k4_end")
    g.e("s_load_dwordx2 s[4:5], s[0:1], 0")
    g.e("s_load_dwordx2 s[6:7], s[0:1], 88")
    g.e("s_load_dwordx2 s[16:17], s[0:1], 104")
    g.e("v_lshlrev_b32 v1, 4, v0")
    g.e("s_lshl_b32 s20, s2, 13")
    g.e("v_lshrrev_b32 v2, 6, v0")
    g.e("v_lshl_add_u32 v2, s2, 3, v2")
    g.e("v_lshrrev_b32 v3, 7, v2")
    g.e("v_lshlrev_b32 v3, 7, v3")
    g.e("v_bfe_u32 v4, v2, 4, 1")
    g.e("v_lshl_add_u32 v3, v4, 6, v3")
    g.e("v_and_b32 v4, 3, v2")
    g.e("v_lshl_add_u32 v3, v4, 4, v3")
    g.e("v_and_b32 v4, 15, v0")
    g.e("v_add_u32 v3, v3, v4")
    g.e("v_lshlrev_b32 v3, 10, v3")
    g.e("v_bfe_u32 v4, v2, 5, 2")
    g.e("v_lshl_add_u32 v3, v4, 8, v3")
    g.e("v_bfe_u32 v4, v2, 2, 2")
    g.e("v_lshl_add_u32 v3, v4, 6, v3")
    g.e("v_bfe_u32 v4, v0, 4, 1")
    g.e("v_lshl_add_u32 v3, v4, 5, v3")
    g.e("v_bfe_u32 v4, v0, 5, 1")
    g.e("v_lshl_add_u32 v3, v4, 4, v3")
    g.e("s_waitcnt lgkmcnt(0)")
    srd(g, 8, 16, 17, 8 * MB, WS_PART)
    srd(g, 12, 4, 5, 2 * MB)
    for q in range(4):
        g.e(f"buffer_load_dwordx4 v[{8 + 4 * q}:{11 + 4 * q}], v1, s[8:11], s20 offen")
        g.e(f"s_add_u32 s20, s20, {2 * MB}")
    g.e("buffer_load_dwordx4 v[24:27], v3, s[12:15], 0 offen")
    srd(g, 24, 6, 7, 2 * MB)
    g.e("s_mov_b32 s21, 0xffff0000")
    for q in range(5):
        g.e(f"s_waitcnt vmcnt({4 - q})")
        for i in range(4):
            r = 8 + 4 * q + i
            if q == 0:
                g.e(f"v_lshlrev_b32 v{28 + 2 * i}, 16, v{r}")
                g.e(f"v_and_b32 v{29 + 2 * i}, s21, v{r}")
            else:
                g.e(f"v_lshlrev_b32 v4, 16, v{r}")
                g.e(f"v_and_b32 v5, s21, v{r}")
                g.e(f"v_add_f32 v{28 + 2 * i}, v{28 + 2 * i}, v4")
                g.e(f"v_add_f32 v{29 + 2 * i}, v{29 + 2 * i}, v5")
    for i in range(4): g.e(f"PK {8 + i},{28 + 2 * i},{29 + 2 * i}")
    g.e("buffer_store_dwordx4 v[8:11], v3, s[24:27], 0 offen")
    g.label("L_k4_end")
    g.e("s_endpgm")
    g.label("L_all_end")
```

```python
import sys
from asmlib import *
import k1
NAME = "parallel_sum__compressed_kv_cla__mixer_gmlp__prompt"
HDR = open(f"cdna_kernels/{NAME}.s.ref").read().split("\n")
HDR = [l for l in HDR if l.startswith(";   offset") or l.startswith("; Kernarg")]
DOC = """; Generated by a hand-written Python generator (own scheduling / register allocation). One persistent launch,
;  1 (L_k1_*): LayerNorm(x); K = c_kv*w_uk, V = c_kv*w_uv; z = gelu_tanh(xn*w_in), LayerNorm of z2 (row sums exchanged
;  2 (L_p2*, L_k2_*): Q projection + causal flash attention (two 4-wave halves alternate MFMA and softmax phases) on 224
;              tile checks its row sums against 2^+-44 and falls back to the true running maximum (L_k2_slow) when outside.
"""
def build(kernels):
    g = G()
    launches = []
    kds = []
    if "k1" in kernels:
        k1.gen_k1(g); launches.append(f"; @launch kernel={KNAME} grid=(256,1,1) block=(512,1,1) lds=163840"); kds.append(kd(KNAME, 256))
    if "k2" in kernels:
        import k2
        k2.gen_k2(g)
        if not MERGE: launches.append("; @launch kernel=k2_kernel grid=(256,1,1) block=(512,1,1) lds=163840"); kds.append(kd("k2_kernel", 256))
    if "k3" in kernels:
        import k3
        k3.gen_k3(g)
        if MERGE < 2: launches.append(f"; @launch kernel=k3_kernel grid=(256,1,1) block=(512,1,1) lds={k3.LDS}"); kds.append(kd("k3_kernel", k3.NVGPR))
        if not k3.FUSE: k3.gen_k4(g); launches.append("; @launch kernel=k4_kernel grid=(256,1,1) block=(512,1,1) lds=0"); kds.append(kd("k4_kernel", 40))
    if os.environ.get("REPORT"):
        items = eval(os.environ["REPORT"])
        g.e(".p2align 8"); g.e(".type rep_kernel,@function"); g.label("rep_kernel")
        g.e("s_cmp_lg_u32 s2, 0"); g.e("s_cbranch_scc1 L_rep_end")
        g.e("s_load_dwordx4 s[4:7], s[0:1], 96")
        g.e("s_waitcnt lgkmcnt(0)")
        for k in range(3):
            g.e(f"s_add_u32 s{12 + 2 * k}, s6, {WS_DBG + k * MB}"); g.e(f"s_addc_u32 s{13 + 2 * k}, s7, 0")
        for i, (k, wg, w, sl) in enumerate(items):
            g.e(f"s_load_dword s{20 + i}, s[{12 + 2 * k}:{13 + 2 * k}], {wg * 1024 + w * 128 + sl * 4}")
        srd(g, 8, 4, 5, 256)
        g.e("v_lshlrev_b32 v1, 20, v0")
        g.e("s_waitcnt lgkmcnt(0)")
        for i in range(len(items)):
            g.e(f"s_sub_u32 s40, s{20 + i}, s20")
            g.e("v_mov_b32 v2, s40")
            g.e(f"buffer_store_dword v2, v1, s[8:11], 0 offen offset:{4 * i}")
            g.e("s_nop 1")
        g.label("L_rep_end"); g.e("s_endpgm")
        kds.append(kd("rep_kernel", 8))
        launches.append("; @launch kernel=rep_kernel grid=(1,1,1) block=(64,1,1) lds=0")
    nn = int(os.environ.get("NOPK", "0"))
    if nn:
        g.e(".p2align 8"); g.e(".type nop_kernel,@function"); g.label("nop_kernel"); g.e("s_endpgm")
        kds.append(kd("nop_kernel", 8))
        l = "; @launch kernel=nop_kernel grid=(256,1,1) block=(64,1,1) lds=0"
        pos = int(os.environ.get("NOPP", "3"))
        launches[pos:pos] = [l] * nn
    if os.environ.get("ONLY"):
        launches = [launches[int(i)] for i in os.environ["ONLY"].split(",")]
    if os.environ.get("DUP"):
        i = int(os.environ["DUP"]); launches.insert(i, launches[i])
    if len(launches) == 1 and os.environ.get("PLAIN"): launches = ["; @launch grid=(256,1,1) block=(512,1,1) lds=163840"]
    out = "\n".join(HDR + launches) + "\n"
    out += DOC
    out += '.amdgcn_target "amdgcn-amd-amdhsa--gfx950"\n' + MACROS + f".text\n.globl {KNAME}\n" + g.text()
    out += '.section .rodata,"a"\n'
    for k in kds: out += ".p2align 6" + k
    return out
if __name__ == "__main__":
    ks = sys.argv[2].split(",") if len(sys.argv) > 2 else ["k1", "k2", "k3"]
    open(sys.argv[1], "w").write(build(ks))
```
